```python
import torch

def _softmax(x, axis=-1):
    return torch.softmax(x, dim=axis)
def _gelu(x):
    return torch.nn.functional.gelu(x, approximate="tanh")
def _silu(x):
    return torch.nn.functional.silu(x)
def _sigmoid(x):
    return torch.sigmoid(x)
def _layernorm(x, axis=-1, eps=1e-5):
    m = x.mean(dim=axis, keepdim=True)
    v = x.var(dim=axis, keepdim=True, unbiased=False)
    return (x - m) / torch.sqrt(v + eps)
def _scatter_add(tgt, idx, src, axis=0):
    return tgt.clone().index_add_(axis, idx, src)
def _segment_sum(src, seg, n):
    out = torch.zeros((n,) + src.shape[1:], dtype=src.dtype)
    return out.index_add_(0, seg, src)
def _pad(x, pw):
    flat = tuple(v for pair in reversed(pw) for v in pair)
    return torch.nn.functional.pad(x, flat)

kernel_name = 'parallel_sum__ssm_conv_s5__glu_gated_geglu__prompt'

def setup_inputs():

    _w = (lambda a: (lambda t: t.to(torch.bfloat16) if t.is_floating_point() else t)(torch.as_tensor(a)))
    def _A_setup():
        B, S, D = 1, 2048, 1024
        P = D
        Lambda_re = -0.5 * (lambda _x: torch.exp(torch.as_tensor(_x)))((lambda *s: torch.randn(*s, dtype=torch.bfloat16) * 0.2)(P))
        Lambda_im = (lambda *s: torch.randn(*s, dtype=torch.bfloat16) * 0.8)(P) * 1.0
        B_re = (lambda *s: torch.randn(*s, dtype=torch.bfloat16) * 0.2)(P, D) * (D ** -0.5)
        B_im = (lambda *s: torch.randn(*s, dtype=torch.bfloat16) * 0.2)(P, D) * (D ** -0.5)
        C_re = (lambda *s: torch.randn(*s, dtype=torch.bfloat16) * 0.2)(D, P) * (P ** -0.5)
        C_im = (lambda *s: torch.randn(*s, dtype=torch.bfloat16) * 0.2)(D, P) * (P ** -0.5)
        log_dt = (lambda *s: torch.randn(*s, dtype=torch.bfloat16) * 0.2)(P) * 0.3 - 2.0
        Dskip = (lambda *s: torch.randn(*s, dtype=torch.bfloat16) * 0.05)(D)
        return {
            "x": _w((lambda *s: torch.randn(*s, dtype=torch.bfloat16) * 0.05)(B, S, D)),
            "Lambda_re": _w(Lambda_re),
            "Lambda_im": _w(Lambda_im),
            "B_re": _w(B_re),
            "B_im": _w(B_im),
            "C_re": _w(C_re),
            "C_im": _w(C_im),
            "log_dt": _w(log_dt),
            "Dskip": _w(Dskip),
        }
    _A_in = _A_setup()

    def _B_setup():
        B, S, Dm, Df = 1, 2048, 1024, 3584
        return {
            "x": _w((lambda *s: torch.randn(*s, dtype=torch.bfloat16) * 0.05)(B, S, Dm)),
            "w_gate": _w((lambda *s: torch.randn(*s, dtype=torch.bfloat16) * 0.4)(Dm, Df) * (Dm ** -0.5)),
            "w_up": _w((lambda *s: torch.randn(*s, dtype=torch.bfloat16) * 0.4)(Dm, Df) * (Dm ** -0.5)),
            "w_down": _w((lambda *s: torch.randn(*s, dtype=torch.bfloat16) * 0.4)(Df, Dm) * (Df ** -0.5)),
        }
    _B_in = _B_setup()

    return {
        "A_x": _A_in["x"],
        "A_Lambda_re": _A_in["Lambda_re"],
        "A_Lambda_im": _A_in["Lambda_im"],
        "A_B_re": _A_in["B_re"],
        "A_B_im": _A_in["B_im"],
        "A_C_re": _A_in["C_re"],
        "A_C_im": _A_in["C_im"],
        "A_log_dt": _A_in["log_dt"],
        "A_Dskip": _A_in["Dskip"],
        "B_x": _B_in["x"],
        "B_w_gate": _B_in["w_gate"],
        "B_w_up": _B_in["w_up"],
        "B_w_down": _B_in["w_down"],
    }

def reference(A_x, A_Lambda_re, A_Lambda_im, A_B_re, A_B_im, A_C_re, A_C_im, A_log_dt, A_Dskip, B_x, B_w_gate, B_w_up, B_w_down):
    def _A_ref(x, Lambda_re, Lambda_im, B_re, B_im, C_re, C_im, log_dt, Dskip):
        Bsz, L, H = x.shape
        Lam = Lambda_re + 1j * Lambda_im
        Bmat = B_re + 1j * B_im
        Cmat = C_re + 1j * C_im
        dt = torch.exp(log_dt)
        Lam_bar = torch.exp(dt * Lam)
        B_bar = ((Lam_bar - 1.0) / Lam)[:, None] * Bmat
        Bu = torch.einsum("bld,pd->blp", x + 0j, B_bar)
        h = torch.zeros_like(Bu[:, 0, :])
        hs = []
        for t in range(L):
            h = Lam_bar[None, :] * h + Bu[:, t, :]
            hs.append(h)
        hseq = torch.stack(hs, 1)
        y = 2.0 * torch.einsum("blp,dp->bld", hseq, Cmat).real + x * Dskip[None, None, :]
        return y

    def _B_ref(x, w_gate, w_up, w_down):
        g = torch.einsum("bsd,df->bsf", x, w_gate)
        u = torch.einsum("bsd,df->bsf", x, w_up)
        h = _gelu(g) * u
        return torch.einsum("bsf,fd->bsd", h, w_down)

    x = A_x
    xn = _layernorm(x, axis=-1)
    return x + _A_ref(xn, A_Lambda_re, A_Lambda_im, A_B_re, A_B_im, A_C_re, A_C_im, A_log_dt, A_Dskip) + _B_ref(xn, B_w_gate, B_w_up, B_w_down)
```

```python
import re

class Asm:
    def __init__(self):
        self.lines = []
        self._lab = 0
    def __call__(self, s=""):
        for l in s.split("\n"):
            self.lines.append(l.strip())
    def label(self, name):
        self.lines.append(name + ":")
    def newlabel(self, p="L"):
        self._lab += 1
        return "%s_%d" % (p, self._lab)
    def text(self):
        return "\n".join(self.lines) + "\n"

def kernel_header(a, name):
    a(".text")
    a(".globl %s" % name)
    a(".p2align 8")
    a(".type %s,@function" % name)
    a("%s:" % name)

def kernel_desc(a, name, vgpr, sgpr=102, accum=None, kernarg=128):
    if accum is None:
        accum = (vgpr + 3) // 4 * 4
    a('.section .rodata,"a"')
    a(".p2align 6")
    a(".amdhsa_kernel %s" % name)
    a("  .amdhsa_next_free_vgpr %d" % vgpr)
    a("  .amdhsa_next_free_sgpr %d" % sgpr)
    a("  .amdhsa_accum_offset %d" % accum)
    a("  .amdhsa_group_segment_fixed_size 0")
    a("  .amdhsa_kernarg_size %d" % kernarg)
    a("  .amdhsa_user_sgpr_count 2")
    a("  .amdhsa_user_sgpr_kernarg_segment_ptr 1")
    a("  .amdhsa_system_sgpr_workgroup_id_x 1")
    a(".end_amdhsa_kernel")

def srd(a, r, lo, hi, size):
    a("s_mov_b32 s%d, s%d\ns_and_b32 s%d, s%d, 0xffff\ns_mov_b32 s%d, %d\ns_mov_b32 s%d, 0x20000" % (r, lo, r+1, hi, r+2, size, r+3))

def R(k, i, n=1):
    return "%s%d" % (k, i) if n == 1 else "%s[%d:%d]" % (k, i, i + n - 1)

_REG = re.compile(r"^-?\|?(?:abs\()?([vas])(?:(\d+)|\[(\d+):(\d+)\])\)?\|?$")
TRANS = ("v_exp_f32", "v_log_f32", "v_rcp_f32", "v_rsq_f32", "v_sqrt_f32", "v_sin_f32", "v_cos_f32", "v_rcp_iflag_f32")

def _regs(op):
    op = op.strip()
    if op in ("vcc",): return {("s", "vcc")}
    if op in ("vcc_lo", "vcc_hi"): return {("s", "vcc")}
    if op == "m0": return {("s", "m0")}
    if op in ("exec", "exec_lo", "exec_hi"): return {("s", "exec")}
    m = _REG.match(op)
    if not m: return set()
    k = m.group(1)
    if m.group(2) is not None: return {(k, int(m.group(2)))}
    return {(k, i) for i in range(int(m.group(3)), int(m.group(4)) + 1)}

def parse(line):
    l = line.split(";")[0].strip()
    if not l or l.endswith(":") or l.startswith("."): return None
    parts = l.split(None, 1)
    opc = parts[0]
    rest = parts[1] if len(parts) > 1 else ""
    ops = []; cur = ""; d = 0
    for ch in rest:
        if ch == "[": d += 1
        if ch == "]": d -= 1
        if ch == "," and d == 0: ops.append(cur.strip()); cur = ""
        else: cur += ch
    mods = ""
    if cur.strip():
        t = cur.strip().split(None, 1)
        ops.append(t[0]); mods = t[1] if len(t) > 1 else ""
    I = dict(opc=opc, ops=ops, mods=mods, defs=set(), uses=set(), cls="other", text=l)
    base = re.sub(r"_(e32|e64|dpp|sdwa)$", "", opc)
    I["base"] = base
    if opc.startswith("v_mfma"):
        I["cls"] = "mfma"; I["defs"] = _regs(ops[0]); I["A"] = _regs(ops[1]); I["B"] = _regs(ops[2]); I["C"] = _regs(ops[3])
        I["uses"] = I["A"] | I["B"] | I["C"]; I["passes"] = 8 if "32x32x16" in opc else 4
    elif opc.startswith("v_"):
        I["cls"] = "valu"
        I["defs"] = _regs(ops[0]); src = ops[1:]
        if base in ("v_add_co_u32", "v_sub_co_u32", "v_addc_co_u32", "v_subb_co_u32", "v_subrev_co_u32", "v_mad_u64_u32"):
            I["defs"] |= _regs(ops[1]); src = ops[2:]
        for o in src: I["uses"] |= _regs(o)
        if base.startswith("v_fmac") or base.startswith("v_dot2c") or base.startswith("v_permlane") or base == "v_writelane_b32" or "dpp" in opc or "row_" in mods or "quad_perm" in mods:
            I["uses"] |= _regs(ops[0])
        if base.startswith("v_permlane") and "swap" in base: I["defs"] |= _regs(ops[1])
        if base.startswith("v_cmpx"): raise Exception("no cmpx")
        I["dpp"] = ("dpp" in opc) or ("row_" in mods) or ("quad_perm" in mods) or ("wave_" in mods)
        I["trans"] = base in TRANS
    elif opc.startswith("buffer_") or opc.startswith("global_"):
        I["cls"] = "vmem"
        islds = (" lds" in " " + mods) or ("load_lds" in opc)
        I["lds"] = islds
        if opc in ("buffer_wbl2", "buffer_inv"):
            pass
        elif "load" in opc and not islds:
            I["defs"] = _regs(ops[0])
            for o in ops[1:]: I["uses"] |= _regs(o)
        elif "atomic" in opc:
            for o in ops: I["uses"] |= _regs(o)
            if "sc0" in mods: I["defs"] = _regs(ops[0])
        else:
            for o in ops: I["uses"] |= _regs(o)
            if "store" in opc and ("x4" in opc or "x3" in opc):
                I["wdata"] = _regs(ops[0]) if opc.startswith("buffer_") else _regs(ops[1])
        if islds: I["uses"] |= {("s", "m0")}
    elif opc.startswith("ds_"):
        I["cls"] = "ds"
        if "read" in opc or "permute" in opc or "swizzle" in opc or "_rtn" in opc:
            I["defs"] = _regs(ops[0])
            for o in ops[1:]: I["uses"] |= _regs(o)
        else:
            for o in ops: I["uses"] |= _regs(o)
    elif opc.startswith("s_"):
        I["cls"] = "salu"
        if opc == "s_nop": I["n"] = int(ops[0], 0) + 1
        nodef = opc.startswith(("s_cmp", "s_cbranch", "s_branch", "s_waitcnt", "s_barrier", "s_nop", "s_endpgm", "s_sleep", "s_setprio", "s_bitcmp"))
        if ops and not nodef:
            I["defs"] = _regs(ops[0])
            for o in ops[1:]: I["uses"] |= _regs(o)
            if "saveexec" in opc: I["defs"] |= {("s", "exec")}
        else:
            for o in ops: I["uses"] |= _regs(o)
    return I

def _vec(s): return {r for r in s if r[0] in "va"}
def _sc(s): return {r for r in s if r[0] == "s"}

def need(P, C):
    n = 0
    pc, cc = P["cls"], C["cls"]
    if pc == "valu":
        d = _vec(P["defs"]); sd = _sc(P["defs"])
        if cc == "mfma" and d & C["uses"]: n = max(n, 2)
        if cc == "valu":
            if P.get("trans") and not C.get("trans") and d & (C["uses"]): n = max(n, 1)
            if C.get("dpp") and d & C["uses"]: n = max(n, 2)
            if C["base"].startswith("v_permlane") and d & C["uses"]: n = max(n, 2)
            if C["base"] in ("v_readlane_b32", "v_readfirstlane_b32") and d & C["uses"]: n = max(n, 1)
            if sd & C["uses"]: n = max(n, 4 if C["base"] in ("v_readlane_b32", "v_writelane_b32") else 2)
        if cc == "vmem" and sd & C["uses"]: n = max(n, 5)
        if cc == "salu" and sd & C["uses"]: n = max(n, 1)
    if pc == "mfma":
        d = P["defs"]; k = 8 if P["passes"] == 4 else 12
        if cc in ("valu", "vmem", "ds") and d & (C["uses"] | C["defs"]): n = max(n, k)
        if cc == "mfma":
            if d & (C["A"] | C["B"]): n = max(n, k)
            if d & C["C"] and not (d == C["C"] and P["passes"] == C["passes"]): n = max(n, k - 2)
            if d & C["defs"] and not d & C["C"]: n = max(n, k)
        if cc == "valu" and P["C"] & C["defs"]: n = max(n, 3 if P["passes"] == 4 else 7)
    if pc == "vmem" and P.get("wdata"):
        if P["wdata"] & C["defs"]: n = max(n, 2 if cc in ("valu", "mfma") else 1)
    if pc == "salu" and ("s", "m0") in P["defs"] and cc == "vmem" and C.get("lds"): n = max(n, 1)
    return n

def pad_hazards(lines, verbose=False):
    out = []; hist = []
    def dist_scan(hist, C):
        req = 0; d = 0
        for P in reversed(hist):
            r = need(P, C) - d
            if r > req: req = r
            d += P.get("n", 1)
            if d > 20: break
        return req
    labels = {}
    for l in lines:
        I = parse(l)
        if I is None:
            if l.strip().endswith(":"): labels[l.strip()[:-1]] = len(out)
            out.append(l); continue
        req = dist_scan(hist, I)
        if req > 0:
            if verbose: print("pad %d before: %s" % (req, l))
            out.append("s_nop %d" % (req - 1)); hist.append(parse("s_nop %d" % (req - 1)))
        out.append(l); hist.append(I); hist = hist[-24:]
    pl = [parse(l) for l in out]
    labels = {l.strip()[:-1]: i for i, l in enumerate(out) if pl[i] is None and l.strip().endswith(":")}
    for i, I in enumerate(pl):
        if I and I["opc"].startswith(("s_cbranch", "s_branch")):
            tgt = labels[I["ops"][0]]
            h = [p for p in pl[max(0, i - 40):i + 1] if p][-24:]
            cnt = 0
            for j in range(tgt, len(out)):
                if pl[j] is None: continue
                r = dist_scan(h, pl[j])
                assert r <= 0, ("hazard across branch", out[i], out[j], r)
                h.append(pl[j]); cnt += 1
                if cnt > 16: break
    return out

class Op:
    def __init__(self, text, cls=None, tag=None, needs=None, drain=None):
        self.text = text; self.cls = cls; self.tag = tag; self.needs = needs; self.drain = drain
        self.w = {"vm": None, "lg": None}

class Prog:
    def __init__(self):
        self.segs = []
    def add(self, ops, iters=(0,), label=None, tail=None):
        self.segs.append((ops, list(iters), label, tail))
    def solve(self):
        MAX = {"vm": 63, "lg": 15}
        pos = {}; cnt = {"vm": 0, "lg": 0}
        for ops, iters, _, _ in self.segs:
            for it in iters:
                for o in ops:
                    if o.needs:
                        for t in o.needs(it):
                            assert t in pos, ("needed tag never issued", t, o.text)
                            c, p = pos[t]
                            n = min(cnt[c] - p - 1, MAX[c])
                            o.w[c] = n if o.w[c] is None else min(o.w[c], n)
                    if o.drain:
                        for c in o.drain: o.w[c] = 0
                    if o.cls:
                        t = o.tag(it) if o.tag else None
                        if t is not None: pos[t] = (o.cls, cnt[o.cls])
                        cnt[o.cls] += 1
        done = {"vm": 0, "lg": 0}; cnt = {"vm": 0, "lg": 0}
        useful = set()
        for ops, iters, _, _ in self.segs:
            for it in iters:
                for o in ops:
                    for c in ("vm", "lg"):
                        if o.w[c] is not None:
                            nd = cnt[c] - o.w[c]
                            if nd > done[c]:
                                useful.add((id(o), c)); done[c] = nd
                    if o.cls:
                        cnt[o.cls] += 1
                        assert o.cls != "vm" or cnt["vm"] - done["vm"] <= 63 + 1000
        for ops, _, _, _ in self.segs:
            for o in ops:
                for c in ("vm", "lg"):
                    if (id(o), c) not in useful: o.w[c] = None
    def emit(self, a):
        self.solve()
        for ops, iters, label, tail in self.segs:
            if label: a(label + ":")
            for o in ops:
                w = []
                if o.w["vm"] is not None: w.append("vmcnt(%d)" % o.w["vm"])
                if o.w["lg"] is not None: w.append("lgkmcnt(%d)" % o.w["lg"])
                if w: a("s_waitcnt " + " ".join(w))
                if o.text: a(o.text)
            if tail: a(tail)
```

```python
import sys, math, struct
from asmlib import *

NAME = "parallel_sum__ssm_conv_s5__glu_gated_geglu__prompt"
KX, KLRE, KLIM, KBRE, KBIM, KCRE, KCIM, KLDT, KDSK, KBX, KWG, KWU, KWD, KOUT, KDBG, KWS = [8 * i for i in range(16)]
WS_XN = 0
WS_H = 0x400000
H_BLK = 176 * 4096
WS_AG = 0x1A00000
WS_ST = 0x1A40000
WS_FL = 0x1A48000
WS_TS = 0x1A50000
WS_PART = 0x2000000

def f2u(x): return struct.unpack("<I", struct.pack("<f", x))[0]
def fx(x): return "0x%08x" % f2u(x)

def ws_srd(a, r, wslo, off, size, t0):
    a("s_add_u32 s%d, s%d, 0x%x" % (r, wslo, off))
    a("s_addc_u32 s%d, s%d, 0" % (r + 1, wslo + 1))
    a("s_and_b32 s%d, s%d, 0xffff" % (r + 1, r + 1))
    a("s_mov_b32 s%d, 0x%x" % (r + 2, size))
    a("s_mov_b32 s%d, 0x20000" % (r + 3))

def stamp(a, cfg, idx):
    if cfg.get("ts"):
        a("s_memrealtime s[%d:%d]" % (80 + 2 * idx, 81 + 2 * idx))

def stamp_out(a, cfg, kid, n, wslo, wavesreg):
    if not cfg.get("ts"): return
    L = a.newlabel("Lts%d" % kid)
    a("s_waitcnt lgkmcnt(0)")
    a("s_cmp_lg_u32 s%d, 0" % wavesreg)
    a("s_cbranch_scc1 %s" % L)
    ws_srd(a, 76, wslo, WS_TS + kid * 16384, 16384, 0)
    a("s_lshl_b32 s75, s2, 6")
    a("v_mov_b32 v1, 0")
    for i in range(n):
        a("v_mov_b32 v2, s%d" % (80 + 2 * i))
        a("buffer_store_dword v2, v1, s[76:79], s75 offen offset:%d" % (4 * i))
    a(L + ":")

def dpp_sum(a, v):
    for sh in (1, 2, 4, 8):
        a("v_add_f32_dpp v%d, v%d, v%d row_shr:%d row_mask:0xf bank_mask:0xf" % (v, v, v, sh))
    a("v_add_f32_dpp v%d, v%d, v%d row_bcast:15 row_mask:0xa bank_mask:0xf" % (v, v, v))
    a("v_add_f32_dpp v%d, v%d, v%d row_bcast:31 row_mask:0xc bank_mask:0xf" % (v, v, v))

def gen_k0(cfg):
    a = Asm(); name = "k0_kernel"
    kernel_header(a, name)
    a("s_cmp_ge_u32 s2, 256")
    a("s_cbranch_scc1 k0_end")
    stamp(a, cfg, 0)
    a("s_load_dwordx2 s[4:5], s[0:1], %d" % KX)
    a("s_load_dwordx2 s[6:7], s[0:1], %d" % KWS)
    a("v_lshrrev_b32 v1, 6, v0")
    a("v_and_b32 v2, 63, v0")
    a("v_readfirstlane_b32 s20, v1")
    a("s_lshr_b32 s21, s2, 3")
    a("s_bfe_u32 s22, s2, 0x20001")
    a("s_and_b32 s23, s2, 1")
    a("s_lshl_b32 s24, s23, 3")
    a("s_add_u32 s24, s24, s20")
    a("s_lshr_b32 s25, s24, 2")
    a("s_lshl_b32 s25, s25, 4")
    a("s_and_b32 s26, s24, 1")
    a("s_lshl_b32 s26, s26, 3")
    a("s_add_u32 s25, s25, s26")
    a("s_bfe_u32 s26, s24, 0x10001")
    a("s_add_u32 s25, s25, s26")
    a("s_lshl_b32 s26, s22, 1")
    a("s_add_u32 s25, s25, s26")
    a("s_lshl_b32 s26, s21, 6")
    a("s_add_u32 s25, s25, s26")
    a("s_lshl_b32 s27, s25, 11")
    a("v_lshlrev_b32 v3, 4, v2")
    a("s_waitcnt lgkmcnt(0)")
    srd(a, 8, 4, 5, 2048 * 2048)
    a("buffer_load_dwordx4 v[4:7], v3, s[8:11], s27 offen")
    a("buffer_load_dwordx4 v[8:11], v3, s[8:11], s27 offen offset:1024")
    ws_srd(a, 12, 6, 0, WS_PART, 0)
    a("s_cmp_eq_u32 s20, 1")
    a("s_cbranch_scc0 k0_nofill")
    a("v_mov_b32 v12, -1\nv_mov_b32 v13, -1\nv_mov_b32 v14, -1\nv_mov_b32 v15, -1")
    a("s_lshl_b32 s28, s2, 10")
    a("s_add_u32 s28, s28, 0x%x" % WS_AG)
    a("buffer_store_dwordx4 v[12:15], v3, s[12:15], s28 offen")
    a("v_mov_b32 v16, 0")
    a("v_and_b32 v17, 31, v2")
    a("v_lshlrev_b32 v17, 2, v17")
    a("s_lshl_b32 s28, s2, 7")
    a("s_add_u32 s28, s28, 0x%x" % WS_FL)
    a("buffer_store_dword v16, v17, s[12:15], s28 offen")
    a("s_waitcnt vmcnt(2)")
    a("s_branch k0_go")
    a("k0_nofill:")
    a("s_waitcnt vmcnt(0)")
    a("k0_go:")
    for i in range(8):
        a("v_lshlrev_b32 v%d, 16, v%d" % (16 + 2 * i, 4 + i))
        a("v_and_b32 v%d, 0xffff0000, v%d" % (17 + 2 * i, 4 + i))
    a("v_pk_add_f32 v[32:33], v[16:17], v[18:19]")
    a("v_pk_add_f32 v[34:35], v[20:21], v[22:23]")
    a("v_pk_add_f32 v[36:37], v[24:25], v[26:27]")
    a("v_pk_add_f32 v[38:39], v[28:29], v[30:31]")
    a("v_pk_add_f32 v[32:33], v[32:33], v[34:35]")
    a("v_pk_add_f32 v[36:37], v[36:37], v[38:39]")
    a("v_pk_add_f32 v[32:33], v[32:33], v[36:37]")
    a("v_add_f32 v32, v32, v33")
    dpp_sum(a, 32)
    a("v_readlane_b32 s29, v32, 63")
    a("v_mov_b32 v40, %s" % fx(1.0 / 1024))
    a("v_mul_f32 v42, s29, v40")
    for i in range(8):
        a("v_pk_add_f32 v[%d:%d], v[%d:%d], v[42:43] op_sel_hi:[1,0] neg_lo:[0,1] neg_hi:[0,1]" % (48 + 2 * i, 49 + 2 * i, 16 + 2 * i, 17 + 2 * i))
    a("v_pk_mul_f32 v[32:33], v[48:49], v[48:49]")
    a("v_pk_mul_f32 v[34:35], v[50:51], v[50:51]")
    for i in range(2, 8):
        d = 32 + 2 * (i % 2)
        a("v_pk_fma_f32 v[%d:%d], v[%d:%d], v[%d:%d], v[%d:%d]" % (d, d + 1, 48 + 2 * i, 49 + 2 * i, 48 + 2 * i, 49 + 2 * i, d, d + 1))
    a("v_pk_add_f32 v[32:33], v[32:33], v[34:35]")
    a("v_add_f32 v32, v32, v33")
    dpp_sum(a, 32)
    a("v_readlane_b32 s29, v32, 63")
    a("v_mul_f32 v43, s29, v40")
    a("v_cvt_pk_bf16_f32 v44, v42, v43")
    a("v_lshlrev_b32 v42, 16, v44")
    a("v_and_b32 v43, 0xffff0000, v44")
    a("v_add_f32 v43, %s, v43" % fx(1e-5))
    a("v_cvt_pk_bf16_f32 v43, v43, v43")
    a("v_and_b32 v43, 0xffff0000, v43")
    a("v_sqrt_f32 v43, v43")
    a("v_cvt_pk_bf16_f32 v43, v43, v43")
    a("v_and_b32 v43, 0xffff0000, v43")
    a("v_rcp_f32 v43, v43")
    for i in range(8):
        a("v_pk_add_f32 v[%d:%d], v[%d:%d], v[42:43] op_sel_hi:[1,0] neg_lo:[0,1] neg_hi:[0,1]" % (16 + 2 * i, 17 + 2 * i, 16 + 2 * i, 17 + 2 * i))
    for i in range(8):
        a("v_cvt_pk_bf16_f32 v%d, v%d, v%d" % (4 + i, 16 + 2 * i, 17 + 2 * i))
    for i in range(8):
        a("v_lshlrev_b32 v%d, 16, v%d" % (16 + 2 * i, 4 + i))
        a("v_and_b32 v%d, 0xffff0000, v%d" % (17 + 2 * i, 4 + i))
    for i in range(8):
        a("v_pk_mul_f32 v[%d:%d], v[%d:%d], v[42:43] op_sel:[0,1] op_sel_hi:[1,1]" % (16 + 2 * i, 17 + 2 * i, 16 + 2 * i, 17 + 2 * i))
    for i in range(8):
        a("v_cvt_pk_bf16_f32 v%d, v%d, v%d" % (4 + i, 16 + 2 * i, 17 + 2 * i))
    a("v_and_b32 v12, 7, v2")
    a("v_xor_b32 v12, s20, v12")
    a("v_lshlrev_b32 v12, 4, v12")
    a("v_lshl_add_u32 v12, v2, 7, v12")
    a("ds_write_b128 v12, v[4:7]")
    a("ds_write_b128 v12, v[8:11] offset:8192")
    a("s_lshl_b32 s28, s25, 3")
    a("s_add_u32 s28, s28, 0x%x" % WS_ST)
    a("v_mov_b32 v13, 0")
    a("s_mov_b64 exec, 1")
    a("buffer_store_dwordx2 v[42:43], v13, s[12:15], s28 offen")
    a("s_mov_b64 exec, -1")
    a("v_lshrrev_b32 v14, 3, v0")
    a("v_and_b32 v15, 7, v0")
    a("v_and_b32 v13, 7, v14")
    a("v_xor_b32 v13, v13, v15")
    a("v_lshlrev_b32 v13, 4, v13")
    a("v_lshl_add_u32 v13, v14, 7, v13")
    a("v_lshrrev_b32 v16, 2, v14")
    a("v_lshlrev_b32 v16, 12, v16")
    a("v_and_b32 v17, 3, v14")
    a("v_lshl_add_u32 v16, v17, 8, v16")
    a("v_lshl_add_u32 v16, v15, 4, v16")
    a("s_lshl_b32 s28, s21, 17")
    a("s_lshl_b32 s29, s22, 10")
    a("s_add_u32 s28, s28, s29")
    a("s_lshl_b32 s29, s23, 7")
    a("s_add_u32 s28, s28, s29")
    a("s_add_u32 s29, s28, 65536")
    a("s_waitcnt lgkmcnt(0)")
    a("s_barrier")
    a("ds_read_b128 v[4:7], v13")
    a("ds_read_b128 v[8:11], v13 offset:8192")
    a("s_waitcnt lgkmcnt(1)")
    a("buffer_store_dwordx4 v[4:7], v16, s[12:15], s28 offen %s" % cfg.get("k0st", ""))
    a("s_waitcnt lgkmcnt(0)")
    a("buffer_store_dwordx4 v[8:11], v16, s[12:15], s29 offen %s" % cfg.get("k0st", ""))
    if cfg.get("ts"):
        a("s_waitcnt vmcnt(0)")
        stamp(a, cfg, 1)
        stamp_out(a, cfg, 0, 2, 6, 20)
    a("k0_end:")
    a("s_endpgm")
    return name, a, dict(vgpr=64, accum=64, grid=256, block=512, lds=16384)

W_HALF = 65536; W_ST = 28672; U_OFF = 14336
B_BASE = 131072; B_HALF = 16384; B_ST = 8192

def mfma16(d, A, B):
    return "v_mfma_f32_16x16x32_bf16 %s, %s, %s, %s" % (R(d[0], d[1], 4), R(A[0], A[1], 4), R(B[0], B[1], 4), R(d[0], d[1], 4))

def spread(n, lo, hi):
    return [lo + int(i * (hi - lo) / n) for i in range(n)]

def cmul_pk(a, dr, di, ar, ai, br, bi, t):
    P = lambda r: "v[%d:%d]" % (r, r + 1)
    a("v_pk_mul_f32 %s, %s, %s" % (P(t), P(ai), P(bi)))
    a("v_pk_fma_f32 %s, %s, %s, %s neg_lo:[0,0,1] neg_hi:[0,0,1]" % (P(t), P(ar), P(br), P(t)))
    a("v_pk_mul_f32 %s, %s, %s" % (P(t + 2), P(ar), P(bi)))
    a("v_pk_fma_f32 %s, %s, %s, %s" % (P(di), P(ai), P(br), P(t + 2)))
    a("v_mov_b32 v%d, v%d\nv_mov_b32 v%d, v%d" % (dr, t, dr + 1, t + 1))

def horner_pk(a, s, L, e, d):
    P = lambda r: "v[%d:%d]" % (r, r + 1)
    a("v_pk_fma_f32 %s, %s, %s, %s" % (P(d), P(L), P(s), P(e)))
    a("v_pk_fma_f32 %s, %s, %s, %s" % (P(d + 2), P(L), P(s + 2), P(e + 2)))
    a("v_pk_fma_f32 %s, %s, %s, %s neg_lo:[1,0,0] neg_hi:[1,0,0]" % (P(d), P(L + 2), P(s + 2), P(d)))
    a("v_pk_fma_f32 %s, %s, %s, %s" % (P(d + 2), P(L + 2), P(s), P(d + 2)))

def gelu_block(a, items, CC, T):
    P = lambda r: "v[%d:%d]" % (r, r + 1)
    n = len(items)
    assert n <= 4
    for k, (g, u, o) in enumerate(items): a("v_pk_mul_f32 %s, %s, %s" % (P(T + 2 * k), P(g), P(g)))
    for k, (g, u, o) in enumerate(items): a("v_pk_fma_f32 %s, %s, %s, %s op_sel:[0,1,0] op_sel_hi:[1,1,0]" % (P(T + 2 * k), P(T + 2 * k), P(CC), P(CC)))
    for k, (g, u, o) in enumerate(items): a("v_pk_mul_f32 %s, %s, %s" % (P(T + 2 * k), P(T + 2 * k), P(g)))
    for k, (g, u, o) in enumerate(items):
        a("v_exp_f32 v%d, v%d" % (T + 2 * k, T + 2 * k)); a("v_exp_f32 v%d, v%d" % (T + 2 * k + 1, T + 2 * k + 1))
        a("v_pk_mul_f32 %s, %s, %s" % (P(u), P(g), P(u)))
    for k, (g, u, o) in enumerate(items): a("v_pk_add_f32 %s, %s, 1.0 op_sel_hi:[1,0]" % (P(T + 2 * k), P(T + 2 * k)))
    for k, (g, u, o) in enumerate(items):
        a("v_rcp_f32 v%d, v%d" % (T + 2 * k, T + 2 * k)); a("v_rcp_f32 v%d, v%d" % (T + 2 * k + 1, T + 2 * k + 1))
    for k, (g, u, o) in enumerate(items): a("v_pk_mul_f32 %s, %s, %s" % (P(u), P(u), P(T + 2 * k)))
    for k, (g, u, o) in enumerate(items): a("v_cvt_pk_bf16_f32 v%d, v%d, v%d" % (o, u, u + 1))

def gen_k1(cfg):
    a = Asm(); name = "k1_kernel"
    P = lambda r: "v[%d:%d]" % (r, r + 1)
    kernel_header(a, name)
    a("s_cmp_ge_u32 s2, 256")
    a("s_cbranch_scc1 k1_end")
    stamp(a, cfg, 0)
    a("s_load_dwordx4 s[40:43], s[0:1], %d" % KWG)
    a("s_load_dwordx4 s[44:47], s[0:1], %d" % KBRE)
    a("s_load_dwordx2 s[6:7], s[0:1], %d" % KWS)
    a("s_load_dwordx4 s[48:51], s[0:1], %d" % KLRE)
    a("s_load_dwordx2 s[52:53], s[0:1], %d" % KLDT)
    sJ, sI, sW, sB = 60, 61, 62, 63
    a("s_and_b32 s64, s2, 7")
    a("s_lshr_b32 s65, s2, 3")
    a("s_and_b32 s%d, s65, 3" % sJ)
    a("s_lshl_b32 s64, s64, 2")
    a("s_add_u32 s%d, s%d, s64" % (sJ, sJ))
    a("s_lshr_b32 s%d, s65, 2" % sI)
    a("v_lshrrev_b32 v1, 6, v0")
    a("v_and_b32 v0, 63, v0")
    a("v_readfirstlane_b32 s%d, v1" % sW)
    a("v_lshlrev_b32 v1, 4, v0")
    a("s_lshl_b32 s%d, s%d, 2" % (sB, sI))
    a("s_add_u32 s%d, s%d, s%d" % (sB, sB, sW))
    vWA, vBA0, vBA1, vX, vW0, vW3, vB = 2, 3, 4, 5, 6, 9, 10
    a("s_and_b32 s66, s%d, 1" % sJ)
    a("s_lshl_b32 s66, s66, 1")
    a("s_mul_i32 s67, s%d, 224" % sJ)
    a("s_and_b32 s68, s%d, 1" % sW)
    a("s_add_u32 s68, s68, 12")
    for k in range(4):
        if k < 3: a("s_add_u32 s69, s%d, %d" % (sW, 4 * k))
        else: a("s_mov_b32 s69, s68")
        a("s_lshl_b32 s69, s69, 6")
        a("v_add_u32 v40, s69, v0")
        a("v_mul_u32_u24 v41, 4682, v40")
        a("v_lshrrev_b32 v41, 16, v41")
        a("v_mul_u32_u24 v42, 14, v41")
        a("v_sub_u32 v42, v40, v42")
        a("v_add_u32 v42, s66, v42")
        a("v_subrev_u32 v43, 14, v42")
        a("v_min_u32 v42, v42, v43")
        a("v_and_b32 v43, 4, v41\nv_lshlrev_b32 v43, 1, v43\nv_and_b32 v44, 8, v41\nv_lshrrev_b32 v44, 1, v44")
        a("v_and_b32 v41, 0x33, v41\nv_or3_b32 v41, v41, v43, v44")
        a("v_mul_u32_u24 v41, 7168, v41")
        a("v_lshl_add_u32 v41, v42, 4, v41")
        a("v_add_u32 v%d, s67, v41" % (vW0 + k))
    a("v_lshrrev_b32 v40, 3, v0")
    a("s_lshl_b32 s69, s%d, 3" % sW)
    a("v_add_u32 v40, s69, v40")
    a("v_bfe_u32 v41, v40, 1, 3")
    a("v_and_b32 v42, 7, v0")
    a("v_xor_b32 v41, v41, v42")
    a("s_lshl_b32 s69, s%d, 5" % sJ)
    a("v_add_u32 v40, s69, v40")
    a("v_lshlrev_b32 v40, 11, v40")
    a("v_lshl_add_u32 v%d, v41, 4, v40" % vB)
    a("s_lshl_b32 s69, s%d, 17" % sB)
    a("v_add_u32 v%d, s69, v1" % vX)
    sMW, sM3, sMB, sKW, sKB, sKX, sCNT = 54, 55, 56, 57, 58, 59, 70
    a("s_lshl_b32 s%d, s%d, 10" % (sMW, sW))
    a("s_lshl_b32 s%d, s68, 10" % sM3)
    a("s_cmp_ge_u32 s%d, 2" % sW)
    a("s_cselect_b32 s69, %d, 0" % U_OFF)
    a("s_add_u32 s%d, s%d, s69" % (sM3, sM3))
    a("s_add_u32 s%d, s%d, %d" % (sMB, sMW, B_BASE))
    a("s_mov_b32 s%d, 0\ns_mov_b32 s%d, 0\ns_mov_b32 s%d, 0" % (sKW, sKB, sKX))
    a("s_waitcnt lgkmcnt(0)")
    srd(a, 12, 40, 41, 1024 * 7168)
    srd(a, 16, 42, 43, 1024 * 7168)
    a("s_cmp_ge_u32 s%d, 2" % sW)
    a("s_cselect_b32 s20, s16, s12\ns_cselect_b32 s21, s17, s13\ns_mov_b32 s22, %d\ns_mov_b32 s23, 0x20000" % (1024 * 7168))
    srd(a, 24, 44, 45, 1024 * 2048)
    srd(a, 28, 46, 47, 1024 * 2048)
    ws_srd(a, 8, 6, WS_XN, 0x400000, 0)
    dma_items = [(vW0, 12, sKW, sMW, 0), (vW0 + 1, 12, sKW, sMW, 4096), (vW0 + 2, 12, sKW, sMW, 8192), (vW3, 20, sKW, sM3, 0),
                 (vW0, 16, sKW, sMW, U_OFF), (vW0 + 1, 16, sKW, sMW, U_OFF + 4096), (vW0 + 2, 16, sKW, sMW, U_OFF + 8192),
                 (vB, 24, sKB, sMB, 0), (vB, 28, sKB, sMB, 4096)]
    def dma_ops(k, st, tagf):
        v, sr, so, mb, off = dma_items[k]
        stride = B_ST if mb == sMB else W_ST
        return (Op("s_add_u32 m0, s%d, %d" % (mb, off + st * stride)),
                Op("buffer_load_dwordx4 v%d, s[%d:%d], s%d offen lds" % (v, sr, sr + 3, so), "vm", tagf))
    aX, aW, NWB = 96, 160, 8
    def xload(setidx, m, tagf):
        return Op("buffer_load_dwordx4 %s, v%d, s[8:11], s%d offen offset:%d" % (R("a", aX + 16 * setidx + 4 * m, 4), vX, sKX, 1024 * m), "vm", tagf)
    def toggle_m0():
        return [Op("s_xor_b32 s%d, s%d, 0x10000" % (sMW, sMW)), Op("s_xor_b32 s%d, s%d, 0x10000" % (sM3, sM3)), Op("s_xor_b32 s%d, s%d, 0x4000" % (sMB, sMB))]
    def step_kw():
        return [Op("s_add_u32 s%d, s%d, %d" % (sKW, sKW, 64 * 7168)), Op("s_add_u32 s%d, s%d, 128" % (sKB, sKB)),
                Op("s_cmp_ge_u32 s%d, 2048" % sKB), Op("s_cselect_b32 s%d, 0x40000000, s%d" % (sKB, sKB))]
    def step_kx():
        return [Op("s_add_u32 s%d, s%d, 4096" % (sKX, sKX)), Op("s_cmp_ge_u32 s%d, 0x20000" % sKX), Op("s_cselect_b32 s%d, 0x40000000, s%d" % (sKX, sKX))]
    prog = Prog()
    pro = []
    for st in range(3):
        if st == 2: pro += toggle_m0()
        for k in range(9):
            pro += dma_ops(k, st % 2, (lambda it, st=st, k=k: ("D", st, k)))
        pro += step_kw()
        for m in range(4): pro.append(xload(st, m, (lambda it, st=st, m=m: ("X", st, m))))
        pro += step_kx()
    b = Asm()
    vC = 16
    cL, cC, cL8, cL16, cL64, cL512 = 16, 20, 24, 28, 32, 36
    mid = []
    srd(b, 72, 48, 49, 2048)
    b("v_and_b32 v40, 15, v0")
    b("s_lshl_b32 s69, s%d, 5" % sJ)
    b("v_add_u32 v40, s69, v40")
    b("v_lshlrev_b32 v40, 1, v40")
    mid.append(Op(b.text().strip())); b = Asm()
    mid.append(Op("buffer_load_ushort v42, v40, s[72:75], 0 offen", "vm", lambda it: "c0"))
    mid.append(Op("buffer_load_ushort v43, v40, s[72:75], 0 offen offset:32", "vm", lambda it: "c1"))
    srd(b, 76, 50, 51, 2048); mid.append(Op(b.text().strip())); b = Asm()
    mid.append(Op("buffer_load_ushort v44, v40, s[76:79], 0 offen", "vm", lambda it: "c2"))
    mid.append(Op("buffer_load_ushort v45, v40, s[76:79], 0 offen offset:32", "vm", lambda it: "c3"))
    srd(b, 36, 52, 53, 2048); mid.append(Op(b.text().strip())); b = Asm()
    mid.append(Op("buffer_load_ushort v46, v40, s[36:39], 0 offen", "vm", lambda it: "c4"))
    mid.append(Op("buffer_load_ushort v47, v40, s[36:39], 0 offen offset:32", "vm", lambda it: "c5"))
    mid += pro
    b("v_and_b32 v48, 15, v0\nv_lshrrev_b32 v49, 4, v0")
    b("v_lshrrev_b32 v50, 1, v48\nv_xor_b32 v50, v50, v49\nv_lshlrev_b32 v50, 4, v50\nv_lshl_add_u32 v50, v48, 7, v50")
    b("v_add_u32 v%d, %d, v50\nv_xor_b32 v%d, 64, v%d" % (vBA0, B_BASE, vBA1, vBA0))
    b("v_lshrrev_b32 v50, 1, v49\nv_lshlrev_b32 v50, 4, v50\nv_and_b32 v51, 1, v49\nv_lshlrev_b32 v51, 2, v51\nv_lshrrev_b32 v52, 2, v48\nv_add3_u32 v11, v50, v51, v52")
    b("v_mul_u32_u24 v50, 224, v11\nv_and_b32 v52, 3, v0\nv_lshl_add_u32 v%d, v52, 3, v50" % vWA)
    for r in range(64, 256): b("v_mov_b32 v%d, 0" % r)
    for r in range(0, 96): b("v_accvgpr_write_b32 a%d, 0" % r)
    mid.append(Op(b.text().strip())); b = Asm()
    prog.add(mid)
    tiles = []
    for q in range(7): tiles += [("G", q), ("U", q)]
    tiles += [("R", 0), ("I", 0), ("R", 1), ("I", 1)]
    def acc(t, m):
        k, q = t
        if k == "R": return ("v", 64 + 16 * q + 4 * m)
        if k == "I": return ("v", 96 + 16 * q + 4 * m)
        o = 32 * q + (16 if k == "U" else 0) + 4 * m
        return ("v", 128 + o) if q < 4 else ("a", o - 128)
    NS = 144; btail = cfg.get("k1_btail", 12); bgap = cfg.get("k1_bgap", 8); B = NS - btail
    rd = []
    for kk in range(2):
        for ti, t in enumerate(tiles):
            rd += [(kk, ti, 0), (kk, ti, 1)] if t[0] in "GU" else [(kk, ti, None)]
    nfr = 36
    rslot = {}
    for (kk, ti, part) in rd:
        f = kk * 18 + ti
        first = -btail + f * ((B - bgap - 1) + btail) / (nfr - 1.0)
        rslot[(kk, ti, part)] = int(math.floor(first)) - (1 if (part == 0 and f > 0) else 0)
    for f in range(nfr):
        kk, ti = divmod(f, 18)
        first_issue = min(s for (k2, t2, p), s in rslot.items() if (k2, t2) == (kk, ti))
        assert 4 * (f - NWB) + 3 < first_issue, ("ring", f)
        assert first_issue >= -btail
    def read_op(sidx, kk, ti, part, tagstage):
        t = tiles[ti]; f = (sidx * 36 + kk * 18 + ti) % NWB
        tagf = lambda it: ("F", tagstage(it), kk, ti, part)
        if t[0] in "GU":
            off = sidx * W_ST + (U_OFF if t[0] == "U" else 0) + kk * 7168 + part * 1792 + t[1] * 32
            return Op("ds_read_b64_tr_b16 %s, v%d offset:%d" % (R("a", aW + 4 * f + 2 * part, 2), vWA, off), "lg", tagf)
        off = sidx * B_ST + (4096 if t[0] == "I" else 0) + t[1] * 2048
        return Op("ds_read_b128 %s, v%d offset:%d" % (R("a", aW + 4 * f, 4), vBA1 if kk else vBA0, off), "lg", tagf)
    pre = [Op("s_barrier", needs=lambda it: [("D", 0, k) for k in range(9)])]
    if cfg.get("ts"): pre.append(Op("s_memrealtime s[82:83]\ns_waitcnt lgkmcnt(0)"))
    for s in range(-btail, 0):
        for key in rd:
            if rslot[key] == s: pre.append(read_op(0, key[0], key[1], key[2], lambda it: 0))
    b("v_lshlrev_b32 v42, 16, v42\nv_lshlrev_b32 v43, 16, v43\nv_lshlrev_b32 v44, 16, v44\nv_lshlrev_b32 v45, 16, v45\nv_lshlrev_b32 v46, 16, v46\nv_lshlrev_b32 v47, 16, v47")
    LOG2E = 1.4426950408889634
    b("v_mul_f32 v46, %s, v46\nv_mul_f32 v47, %s, v47" % (fx(LOG2E), fx(LOG2E)))
    b("v_exp_f32 v46, v46\nv_exp_f32 v47, v47")
    b("v_cvt_pk_bf16_f32 v47, v46, v47\nv_lshlrev_b32 v46, 16, v47\nv_and_b32 v47, 0xffff0000, v47")
    b("v_pk_mul_f32 v[48:49], v[46:47], v[42:43]")
    b("v_pk_mul_f32 v[50:51], v[46:47], v[44:45]")
    b("v_mul_f32 v48, %s, v48\nv_mul_f32 v49, %s, v49" % (fx(LOG2E), fx(LOG2E)))
    b("v_exp_f32 v48, v48\nv_exp_f32 v49, v49")
    b("v_mul_f32 v50, 0.15915494, v50\nv_mul_f32 v51, 0.15915494, v51")
    b("v_rndne_f32 v52, v50\nv_rndne_f32 v53, v51\nv_sub_f32 v50, v50, v52\nv_sub_f32 v51, v51, v53")
    b("v_cos_f32 v52, v50\nv_cos_f32 v53, v51\nv_sin_f32 v54, v50\nv_sin_f32 v55, v51")
    b("v_pk_mul_f32 %s, v[48:49], v[52:53]" % P(cL))
    b("v_pk_mul_f32 v[54:55], v[48:49], v[54:55]")
    b("v_pk_add_f32 v[52:53], %s, -1.0 op_sel_hi:[1,0]" % P(cL))
    b("v_pk_mul_f32 v[48:49], v[42:43], v[42:43]\nv_pk_fma_f32 v[48:49], v[44:45], v[44:45], v[48:49]")
    b("v_rcp_f32 v48, v48\nv_rcp_f32 v49, v49")
    b("v_pk_mul_f32 v[50:51], v[52:53], v[42:43]\nv_pk_fma_f32 v[50:51], v[54:55], v[44:45], v[50:51]")
    b("v_pk_mul_f32 v[56:57], v[54:55], v[42:43]\nv_pk_fma_f32 v[56:57], v[52:53], v[44:45], v[56:57] neg_lo:[1,0,0] neg_hi:[1,0,0]")
    b("v_pk_add_f32 v[48:49], v[48:49], v[48:49]")
    b("v_pk_mul_f32 %s, v[50:51], v[48:49]\nv_pk_mul_f32 %s, v[56:57], v[48:49]" % (P(cC), P(cC + 2)))
    b("v_sub_f32 v%d, 0, v54\nv_sub_f32 v%d, 0, v55" % (cL + 2, cL + 3))
    def sq(d, s): cmul_pk(b, d, d + 2, s, s + 2, s, s + 2, 48)
    sq(cL8, cL); sq(cL8, cL8); sq(cL8, cL8); sq(cL16, cL8); sq(cL64, cL16); sq(cL64, cL64); sq(cL512, cL64); sq(cL512, cL512); sq(cL512, cL512)
    b("s_mov_b32 s%d, 8" % sCNT)
    constop = Op(b.text().strip(), needs=lambda it: ["c%d" % i for i in range(6)]); b = Asm()
    prog.add([constop] + pre)
    body = []
    vslots = spread(17, cfg.get("k1_vstart", 2), B - 2)
    vorder = ["x", "d", "x", "d", "x", "d", "x", "d", "d", "d", "x", "d", "x", "d", "x", "d", "x"]
    for sidx in range(2):
        stage = lambda it, sidx=sidx: 2 * it + sidx
        vm_at = {}
        nd = nx = 0
        for sl, kind in zip(vslots, vorder):
            if kind == "d": vm_at[sl] = ("d", nd); nd += 1
            else:
                kk, m = divmod(nx, 4); nx += 1
                assert sl >= 72 * kk and sl < 72 * (kk + 1), (sl, kk)
                vm_at[sl] = ("x", kk, m)
        for s in range(NS):
            kk, r = divmod(s, 72); ti, m = divmod(r, 4)
            post = []
            if s == B:
                body.append(Op("s_barrier", needs=lambda it, stage=stage: [("D", stage(it) + 1, k) for k in range(9)], drain=["lg"]))
                if sidx == 1:
                    body.append(Op("v_xor_b32 v%d, 0x10000, v%d\nv_xor_b32 v%d, 0x4000, v%d\nv_xor_b32 v%d, 0x4000, v%d" % (vWA, vWA, vBA0, vBA0, vBA1, vBA1)))
            for key in rd:
                if s < B and rslot[key] == s: body.append(read_op(sidx, key[0], key[1], key[2], stage))
                if s >= B and rslot[key] == s - NS: body.append(read_op(1 - sidx, key[0], key[1], key[2], lambda it, stage=stage: stage(it) + 1))
            if s in vm_at:
                v = vm_at[s]
                if v[0] == "d":
                    o1, o2 = dma_ops(v[1], 1 - sidx, (lambda it, stage=stage, k=v[1]: ("D", stage(it) + 3, k)))
                    body.append(o1); post.append(o2)
                    if v[1] == 8:
                        post += step_kw()
                        if sidx == 0: post += toggle_m0()
                else:
                    u = 2 * sidx + v[1]
                    post.append(xload((u + 3) % 4, v[2], (lambda it, u=u, m2=v[2]: ("X", 4 * it + u + 3, m2))))
                    if v[2] == 3: post += step_kx()
            t = tiles[ti]; f = (sidx * 36 + kk * 18 + ti) % NWB
            u = 2 * sidx + kk
            xr = ("a", aX + 16 * u + 4 * m); wr = ("a", aW + 4 * f)
            parts = [0, 1] if t[0] in "GU" else [None]
            nf = (lambda it, stage=stage, kk=kk, ti=ti, parts=parts, u=u, m=m: [("F", stage(it), kk, ti, p) for p in parts] + [("X", 4 * it + u, m)])
            body.append(Op(mfma16(acc(t, m), wr, xr) if t[0] in "GU" else mfma16(acc(t, m), xr, wr), needs=nf))
            body += post
    prog.add(body, range(8), "k1_loop", "s_sub_u32 s%d, s%d, 1\ns_cmp_lg_u32 s%d, 0\ns_cbranch_scc1 k1_loop" % (sCNT, sCNT, sCNT))
    prog.emit(a)
    a("s_waitcnt vmcnt(0) lgkmcnt(0)")
    a("s_barrier")
    stamp(a, cfg, 2)
    ws_srd(a, 32, 6, WS_H, 32 * H_BLK, 0)
    ws_srd(a, 36, 6, WS_AG, 0x40000, 0)
    def sel(T, pos):
        lo = [0, 0, 0]; hi = [1, 1, 1]; lo[pos] = T; hi[pos] = T
        return lo, hi
    def pkfma(d, s0, s1, s2, T, neg=False):
        lo, hi = sel(T, 0)
        a("v_pk_fma_f32 %s, %s, %s, %s op_sel:[%d,%d,%d] op_sel_hi:[%d,%d,%d]%s" % (P(d), P(s0), P(s1), P(s2), *lo, *hi, " neg_lo:[1,0,0] neg_hi:[1,0,0]" if neg else ""))
    def pkmul(d, s0, s1, T, neg=False):
        a("v_pk_mul_f32 %s, %s, %s op_sel:[%d,0] op_sel_hi:[%d,1]%s" % (P(d), P(s0), P(s1), T, T, " neg_lo:[1,0] neg_hi:[1,0]" if neg else ""))
    BR = lambda T, s: 64 + 16 * T + 2 * s
    BI = lambda T, s: 96 + 16 * T + 2 * s
    for s in range(8):
        for T in range(2):
            t = 40 + 2 * T
            pkmul(t, cC + 2, BI(T, s), T, True)
            pkmul(BI(T, s), cC, BI(T, s), T, True)
        for T in range(2):
            t = 40 + 2 * T
            pkfma(BI(T, s), cC + 2, BR(T, s), BI(T, s), T, True)
            pkfma(BR(T, s), cC, BR(T, s), t, T)
    sr = [BR(0, 0), BR(1, 0)]; si = [BI(0, 0), BI(1, 0)]
    bufs = [[44, 46], [50, 52]]; SI = [48, 54]
    for s in range(1, 8):
        nr = [bufs[T][s % 2] for T in range(2)]
        for T in range(2): pkfma(nr[T], cL, sr[T], BR(T, s), T)
        for T in range(2): pkfma(nr[T], cL + 2, si[T], nr[T], T, True)
        for T in range(2): pkfma(SI[T], cL, si[T], BI(T, s), T)
        for T in range(2): pkfma(SI[T], cL + 2, sr[T], SI[T], T)
        sr = nr; si = list(SI)
    ER, EI = sr, si
    for T in range(2):
        a("v_fma_f32 v%d, v%d, v%d, v%d" % (56 + T, cL8 + T, ER[T], ER[T] + 1))
        a("v_fma_f32 v%d, v%d, v%d, v%d" % (58 + T, cL8 + T, EI[T], EI[T] + 1))
    for T in range(2):
        a("v_fma_f32 v%d, -v%d, v%d, v%d" % (56 + T, cL8 + 2 + T, EI[T], 56 + T))
        a("v_fma_f32 v%d, v%d, v%d, v%d" % (58 + T, cL8 + 2 + T, ER[T], 58 + T))
    a("s_lshl_b32 s69, s%d, 14" % sW)
    a("v_add_u32 v2, s69, v1")
    a("v_and_b32 v3, 0xf0, v1")
    a("v_add_u32 v3, s69, v3")
    a("ds_write_b128 v2, v[56:59]")
    a("ds_read_b128 v[4:7], v3")
    a("ds_read_b128 v[12:15], v3 offset:256")
    a("ds_read_b128 v[40:43], v3 offset:512")
    a("ds_read_b128 v[60:63], v3 offset:768")
    a("s_lshl_b32 s64, s%d, 13" % sB)
    a("s_lshl_b32 s65, s%d, 8" % sJ)
    a("s_add_u32 s64, s64, s65")
    a("s_waitcnt lgkmcnt(2)")
    horner_pk(a, 4, cL16, 12, 12)
    a("s_waitcnt lgkmcnt(1)")
    horner_pk(a, 12, cL16, 40, 40)
    a("s_waitcnt lgkmcnt(0)")
    horner_pk(a, 40, cL16, 60, 60)
    for r in range(60, 64): a("v_min_u32 v%d, -2, v%d" % (r, r))
    a("s_mov_b64 exec, 0xffff")
    a("buffer_store_dwordx4 v[60:63], v1, s[36:39], s64 offen sc0 sc1")
    a("s_mov_b64 exec, -1")
    stamp(a, cfg, 3)
    c1 = -2.0 * math.sqrt(2.0 / math.pi) * LOG2E
    a("v_mov_b32 v4, %s\nv_mov_b32 v5, %s" % (fx(c1), fx(c1 * 0.044715)))
    a("s_mul_i32 s65, s%d, 7" % sJ)
    a("s_add_u32 s66, s65, 1\ns_lshr_b32 s66, s66, 1")
    a("s_lshr_b32 s67, s%d, 3" % sJ)
    a("s_lshl_b32 s68, s67, 4\ns_add_u32 s66, s66, s68")
    a("s_mul_i32 s68, s%d, 176\ns_add_u32 s66, s66, s68\ns_lshl_b32 s66, s66, 12" % sB)
    a("s_and_b32 s69, s%d, 1" % sJ)
    a("s_mul_i32 s71, s69, %d\ns_add_u32 s71, s71, %d" % (-4 * 4096 + 8, 3 * 4096))
    a("s_add_u32 s71, s71, s66")
    a("s_mul_i32 s72, s67, 44\ns_and_b32 s73, s%d, 7\ns_add_u32 s72, s72, s73\ns_add_u32 s72, s72, s68\ns_add_u32 s72, s72, 28\ns_lshl_b32 s72, s72, 12" % sJ)
    a("s_add_u32 s73, s72, %d" % (8 * 4096))
    hst = cfg.get("hst", "")
    OUT = [12, 40]
    def gelu_pair(base0, base1, soff, cnt=[0]):
        for m in range(4):
            o = OUT[cnt[0] % 2]; cnt[0] += 1
            items = [(base0 + 4 * m, base0 + 16 + 4 * m, o), (base0 + 4 * m + 2, base0 + 18 + 4 * m, o + 1),
                     (base1 + 4 * m, base1 + 16 + 4 * m, o + 2), (base1 + 4 * m + 2, base1 + 18 + 4 * m, o + 3)]
            gelu_block(a, items, 4, 56)
            a("buffer_store_dwordx4 v[%d:%d], v1, s[32:35], s%d offen offset:%d %s" % (o, o + 3, soff, 1024 * m, hst))
    gelu_pair(128, 160, 66)
    a("s_add_u32 s66, s66, 4096")
    gelu_pair(192, 224, 66)
    a("s_add_u32 s66, s66, 4096")
    a("v_lshrrev_b32 v6, 4, v0\nv_lshlrev_b32 v6, 16, v6")
    a("v_and_b32 v7, 0xf0, v1")
    a("v_sub_u32 v6, v7, v6")
    a("s_sub_u32 s64, s64, 8192")
    a("v_add_u32 v6, s64, v6")
    for s in range(8): a("v_subrev_u32 v%d, %d, v6" % (160 + s, 8192 * s))
    def gather():
        for s in range(8): a("buffer_load_dwordx4 v[%d:%d], v%d, s[36:39], 0 offen sc0 sc1" % (128 + 4 * s, 131 + 4 * s, 160 + s))
    gather()
    for r in range(64): a("v_accvgpr_read_b32 v%d, a%d" % (192 + r, r))
    gelu_pair(192, 224, 66)
    for r in range(32): a("v_accvgpr_read_b32 v%d, a%d" % (192 + r, 64 + r))
    for mp in range(2):
        o = OUT[mp]
        items = []
        for mm in range(2):
            m = 2 * mp + mm
            items += [(192 + 4 * m, 208 + 4 * m, o + 2 * mm), (194 + 4 * m, 210 + 4 * m, o + 2 * mm + 1)]
        gelu_block(a, items, 4, 56)
        for mm in range(2):
            a("buffer_store_dwordx2 v[%d:%d], v1, s[32:35], s71 offen offset:%d %s" % (o + 2 * mm, o + 2 * mm + 1, 1024 * (2 * mp + mm), hst))
    stamp(a, cfg, 4)
    a("s_mov_b32 s74, 0x100000")
    a("s_waitcnt vmcnt(8)")
    a("k1_poll:")
    a("v_max3_u32 v6, v128, v129, v130")
    for r in range(131, 159, 2): a("v_max3_u32 v6, v6, v%d, v%d" % (r, r + 1))
    a("v_max_u32 v6, v6, v159")
    a("v_cmp_eq_u32 vcc, -1, v6")
    a("s_cmp_eq_u64 vcc, 0")
    a("s_cbranch_scc1 k1_pollok")
    a("s_sub_u32 s74, s74, 1")
    a("s_cmp_eq_u32 s74, 0")
    a("s_cbranch_scc1 k1_pollok")
    a("s_sleep 2")
    gather()
    a("s_waitcnt vmcnt(0)")
    a("s_branch k1_poll")
    a("k1_pollok:")
    stamp(a, cfg, 5)
    a("ds_read_b128 v[160:163], v3\nds_read_b128 v[164:167], v3 offset:256\nds_read_b128 v[168:171], v3 offset:512")
    for s in range(6, -1, -1): horner_pk(a, 128 + 4 * (s + 1), cL64, 128 + 4 * s, 128 + 4 * s)
    a("ds_write_b128 v2, v[128:131] offset:1024")
    for g in range(4): a("ds_read_b128 v[%d:%d], v3 offset:%d" % (132 + 4 * g, 135 + 4 * g, 1024 + 256 * g))
    a("v_lshrrev_b32 v6, 4, v0")
    a("v_cmp_eq_u32 s[64:65], 1, v6\nv_cmp_eq_u32 s[66:67], 2, v6\nv_cmp_eq_u32 s[68:69], 3, v6")
    a("s_waitcnt lgkmcnt(0)")
    for g in (2, 1, 0): horner_pk(a, 132 + 4 * (g + 1), cL512, 132 + 4 * g, 132 + 4 * g)
    horner_pk(a, 132, cL16, 160, 160)
    horner_pk(a, 160, cL16, 164, 164)
    horner_pk(a, 164, cL16, 168, 168)
    for g, sm in ((160, 64), (164, 66), (168, 68)):
        for r in range(4): a("v_cndmask_b32 v%d, v%d, v%d, s[%d:%d]" % (132 + r, 132 + r, g + r, sm, sm + 1))
    for T in range(2):
        a("v_mov_b32 v%d, v%d\nv_mov_b32 v%d, v%d" % (140 + 2 * T, 132 + T, 144 + 2 * T, 134 + T))
        a("v_fma_f32 v%d, v%d, v%d, v%d" % (141 + 2 * T, cL8 + T, 132 + T, ER[T]))
        a("v_fma_f32 v%d, v%d, v%d, v%d" % (145 + 2 * T, cL8 + T, 134 + T, EI[T]))
    for T in range(2):
        a("v_fma_f32 v%d, -v%d, v%d, v%d" % (141 + 2 * T, cL8 + 2 + T, 134 + T, 141 + 2 * T))
        a("v_fma_f32 v%d, v%d, v%d, v%d" % (145 + 2 * T, cL8 + 2 + T, 132 + T, 145 + 2 * T))
    a("v_and_b32 v6, 4, v0\nv_lshlrev_b32 v6, 1, v6\nv_and_b32 v7, 8, v0\nv_lshrrev_b32 v7, 1, v7\nv_and_b32 v8, 3, v0\nv_or3_b32 v6, v6, v7, v8")
    a("v_lshlrev_b32 v6, 5, v6\nv_lshrrev_b32 v7, 4, v0\nv_lshl_add_u32 v6, v7, 3, v6")
    a("s_lshl_b32 s69, s%d, 14\ns_add_u32 s69, s69, 2048" % sW)
    a("v_add_u32 v6, s69, v6")
    a("v_lshlrev_b32 v7, 5, v11\nv_lshl_add_u32 v7, v8, 3, v7\nv_add_u32 v7, s69, v7")
    sr = [140, 142]; si = [144, 146]
    for s in range(8):
        for T in range(2): pkfma(BR(T, s), cL, sr[T], BR(T, s), T)
        for T in range(2): pkfma(BI(T, s), cL, si[T], BI(T, s), T)
        for T in range(2): pkfma(BR(T, s), cL + 2, si[T], BR(T, s), T, True)
        for T in range(2): pkfma(BI(T, s), cL + 2, sr[T], BI(T, s), T)
        sr = [BR(0, s), BR(1, s)]; si = [BI(0, s), BI(1, s)]
        if s % 2 == 1:
            m = s // 2
            for part, F in enumerate((BR, BI)):
                for T in range(2):
                    o = 176 + 8 * (m % 2) + 4 * part + 2 * T
                    a("v_cvt_pk_bf16_f32 v%d, v%d, v%d" % (o, F(T, s - 1), F(T, s - 1) + 1))
                    a("v_cvt_pk_bf16_f32 v%d, v%d, v%d" % (o + 1, F(T, s), F(T, s) + 1))
                    a("ds_write_b64 v6, v[%d:%d] offset:%d" % (o, o + 1, (2 * m + part) * 1024 + 512 * T))
            for part in range(2):
                for half in range(2):
                    o = 192 + 8 * m + 4 * part + 2 * half
                    a("ds_read_b64_tr_b16 v[%d:%d], v7 offset:%d" % (o, o + 1, (2 * m + part) * 1024 + 256 * half))
            if m > 0:
                a("s_waitcnt lgkmcnt(8)")
                for part in range(2):
                    o = 192 + 8 * (m - 1) + 4 * part
                    a("buffer_store_dwordx4 v[%d:%d], v1, s[32:35], s%d offen offset:%d %s" % (o, o + 3, 72 + part, 1024 * (m - 1), hst))
    a("s_waitcnt lgkmcnt(0)")
    for part in range(2):
        o = 192 + 24 + 4 * part
        a("buffer_store_dwordx4 v[%d:%d], v1, s[32:35], s%d offen offset:%d %s" % (o, o + 3, 72 + part, 3072, hst))
    if cfg.get("ts"):
        stamp(a, cfg, 6)
        a("s_waitcnt vmcnt(0)")
        stamp(a, cfg, 7)
        stamp_out(a, cfg, 1, 8, 6, sW)
    a("k1_end:")
    a("s_endpgm")
    return name, a, dict(vgpr=448, accum=256, grid=256, block=256, lds=163840)

def gen_k2(cfg):
    a = Asm(); name = "k2_kernel"
    P = lambda r: "v[%d:%d]" % (r, r + 1)
    kernel_header(a, name)
    a("s_cmp_ge_u32 s2, 256")
    a("s_cbranch_scc1 k2_end")
    stamp(a, cfg, 0)
    a("s_load_dwordx4 s[40:43], s[0:1], %d" % KWD)
    a("s_load_dwordx4 s[44:47], s[0:1], %d" % KCRE)
    a("s_load_dwordx2 s[6:7], s[0:1], %d" % KWS)
    a("s_load_dwordx2 s[48:49], s[0:1], %d" % KX)
    a("s_load_dwordx2 s[50:51], s[0:1], %d" % KDSK)
    sQ, sTI, sTN, sW, sB = 60, 61, 62, 63, 64
    a("s_bfe_u32 s%d, s2, 0x20001" % sQ)
    a("s_and_b32 s65, s2, 1\ns_lshl_b32 s65, s65, 2\ns_lshr_b32 s%d, s2, 6\ns_add_u32 s%d, s%d, s65" % (sTI, sTI, sTI))
    a("s_bfe_u32 s%d, s2, 0x30003" % sTN)
    a("v_lshrrev_b32 v1, 6, v0")
    a("v_and_b32 v0, 63, v0")
    a("v_readfirstlane_b32 s%d, v1" % sW)
    a("v_lshlrev_b32 v1, 4, v0")
    a("s_lshl_b32 s%d, s%d, 2\ns_add_u32 s%d, s%d, s%d" % (sB, sTI, sB, sB, sW))
    vD, vC, vH, vTA, vCA0, vCA1 = 2, 6, 10, 12, 20, 21
    a("v_lshrrev_b32 v40, 4, v0")
    a("s_lshl_b32 s65, s%d, 2" % sW)
    a("v_add_u32 v40, s65, v40")
    a("v_and_b32 v41, 7, v40")
    a("v_bfe_u32 v42, v0, 1, 3")
    a("v_xor_b32 v41, v41, v42")
    a("s_lshl_b32 s66, s%d, 1" % sQ)
    a("v_xor_b32 v41, s66, v41")
    a("v_lshlrev_b32 v41, 5, v41")
    a("v_and_b32 v42, 1, v0")
    a("v_lshl_add_u32 v41, v42, 4, v41")
    a("s_mul_i32 s67, s%d, 896" % sQ)
    a("v_add_u32 v40, s67, v40")
    a("v_lshl_add_u32 v40, v40, 11, v41")
    a("s_lshl_b32 s67, s%d, 8" % sTN)
    a("v_add_u32 v%d, s67, v40" % vD)
    for s in range(1, 4): a("v_add_u32 v%d, %d, v%d" % (vD + s, 16 * 2048 * s, vD))
    a("v_lshrrev_b32 v40, 3, v0")
    a("s_lshl_b32 s65, s%d, 3" % sW)
    a("v_add_u32 v40, s65, v40")
    a("v_bfe_u32 v41, v40, 1, 3")
    a("v_and_b32 v42, 7, v0")
    a("v_xor_b32 v41, v41, v42")
    a("s_lshl_b32 s65, s%d, 7" % sTN)
    a("v_add_u32 v40, s65, v40")
    a("v_lshlrev_b32 v40, 11, v40")
    a("v_lshl_add_u32 v40, v41, 4, v40")
    a("s_lshl_b32 s65, s%d, 9" % sQ)
    a("v_add_u32 v40, s65, v40")
    for s in range(4):
        a("s_xor_b32 s65, s%d, %d\ns_lshl_b32 s65, s65, 16" % (sQ, s))
        a("v_add_u32 v%d, s65, v40" % (vC + s))
    a("s_mul_i32 s65, s%d, 176\ns_mul_i32 s66, s%d, 44\ns_add_u32 s65, s65, s66\ns_lshl_b32 s65, s65, 12" % (sB, sQ))
    a("v_add_u32 v%d, s65, v1" % vH)
    sM, sKD, sKH = 54, 55, 56
    a("s_lshl_b32 s%d, s%d, 10" % (sM, sW))
    a("s_waitcnt lgkmcnt(0)")
    srd(a, 12, 40, 41, 3584 * 2048)
    srd(a, 16, 44, 45, 1024 * 2048)
    srd(a, 20, 46, 47, 1024 * 2048)
    ws_srd(a, 8, 6, WS_H, 32 * H_BLK, 0)
    NST = 22; NH = cfg.get("k2_nh", 8); NWB = 8; aH = 0; aW = 16 * NH
    def dma_ops(st, s):
        ops = []
        if s == 0:
            ops.append(Op("s_mov_b32 s%d, %d" % (sKD, st * 64 * 2048 if st < 14 else ((st - 14) % 4) * 128)))
        ops.append(Op("s_add_u32 m0, s%d, %d" % (sM, (st % 4) * 16384 + s * 4096)))
        v, sr = (vD + s, 12) if st < 14 else (vC + s, 16 if st < 18 else 20)
        return ops, Op("buffer_load_dwordx4 v%d, s[%d:%d], s%d offen lds" % (v, sr, sr + 3, sKD), "vm", lambda it: ("D", st, s))
    def hload(u, m):
        ops = []
        if m == 0: ops.append(Op("s_mov_b32 s%d, %d" % (sKH, u * 4096)))
        return ops, Op("buffer_load_dwordx4 %s, v%d, s[8:11], s%d offen offset:%d" % (R("a", aH + 16 * (u % NH) + 4 * m, 4), vH, sKH, 1024 * m), "vm", lambda it: ("H", u, m))
    prog = Prog()
    pro = []
    for st in range(4):
        if st < 3:
            for s in range(4):
                o1, o2 = dma_ops(st, s); pro += o1 + [o2]
        for u in (2 * st, 2 * st + 1):
            if u < NH - 1:
                for m in range(4):
                    o1, o2 = hload(u, m); pro += o1 + [o2]
    b = Asm()
    b("v_and_b32 v48, 15, v0\nv_lshrrev_b32 v49, 4, v0")
    b("v_lshrrev_b32 v50, 1, v48\nv_xor_b32 v50, v50, v49\nv_lshlrev_b32 v50, 4, v50\nv_lshl_add_u32 v%d, v48, 7, v50" % vCA0)
    b("v_xor_b32 v%d, 64, v%d" % (vCA1, vCA0))
    b("v_lshrrev_b32 v50, 2, v0")
    b("v_and_b32 v51, 7, v50\nv_lshlrev_b32 v51, 5, v51\nv_lshl_add_u32 v51, v50, 8, v51\nv_and_b32 v52, 3, v0\nv_lshl_add_u32 v%d, v52, 3, v51" % vTA)
    for u in range(1, 8): b("v_xor_b32 v%d, %d, v%d" % (vTA + u, 32 * u, vTA))
    for r in range(128, 256): b("v_mov_b32 v%d, 0" % r)
    b("v_lshrrev_b32 v50, 2, v48\nv_lshlrev_b32 v50, 4, v50\nv_and_b32 v51, 1, v48\nv_lshl_add_u32 v50, v51, 3, v50\nv_bfe_u32 v51, v48, 1, 1\nv_add_u32 v50, v50, v51")
    b("s_lshl_b32 s65, s%d, 6\nv_add_u32 v22, s65, v50" % sB)
    b("s_lshl_b32 s65, s%d, 7\ns_lshl_b32 s66, s%d, 5\ns_add_u32 s65, s65, s66\nv_lshl_add_u32 v23, v49, 2, s65" % (sTN, sQ))
    b("v_lshlrev_b32 v24, 1, v23")
    b("v_lshl_add_u32 v25, v22, 11, v24")
    b("v_lshlrev_b32 v26, 3, v22")
    b("v_lshlrev_b32 v27, 1, v25")
    srd(b, 24, 48, 49, 2048 * 2048)
    srd(b, 28, 50, 51, 2048)
    ws_srd(b, 32, 6, WS_ST, 16384, 0)
    b("s_mov_b32 s57, 0\ns_mov_b32 s58, 4096\ns_mov_b32 s59, 8192\ns_mov_b32 s52, 12288")
    pro.append(Op(b.text().strip())); b = Asm()
    NS = 64; btail = cfg.get("k2_btail", 12); bgap = cfg.get("k2_bgap", 8); B = NS - btail
    def rd_list(st):
        L = []
        for kk in range(2):
            for u in range(8):
                f = kk * 8 + u
                first = int(math.floor(-btail + f * ((B - bgap - 1) + btail) / 15.0))
                if st < 14:
                    L.append((first - (1 if f > 0 else 0), kk, u, 0)); L.append((first, kk, u, 1))
                else: L.append((first, kk, u, None))
                assert 4 * (f - NWB) + 3 < first - (1 if f > 0 else 0)
        return L
    def read_op(st, kk, u, part):
        f = (kk * 8 + u) % NWB
        if st < 14:
            return Op("ds_read_b64_tr_b16 %s, v%d offset:%d" % (R("a", aW + 4 * f + 2 * part, 2), vTA + u, (st % 4) * 16384 + kk * 8192 + part * 4096), "lg", lambda it: ("F", st, kk, u, part))
        return Op("ds_read_b128 %s, v%d offset:%d" % (R("a", aW + 4 * f, 4), vCA1 if kk else vCA0, (st % 4) * 16384 + u * 2048), "lg", lambda it: ("F", st, kk, u, part))
    pro.append(Op("s_barrier", needs=lambda it: [("D", 0, s) for s in range(4)]))
    if cfg.get("ts"): pro.append(Op("s_memrealtime s[82:83]\ns_waitcnt lgkmcnt(0)"))
    for s in range(-btail, 0):
        for (sl, kk, u, part) in rd_list(0):
            if sl == s: pro.append(read_op(0, kk, u, part))
    body = []
    vslots = spread(12, 1, 63)
    vorder = ["h", "d", "h", "h", "d", "h", "h", "d", "h", "d", "h", "h"]
    extra = []
    sM4 = [57, 58, 59, 52]
    for m in range(4):
        extra.append(Op("buffer_load_dwordx2 v[%d:%d], v26, s[32:35], 0 offen offset:%d" % (64 + 2 * m, 65 + 2 * m, 16 * m), "vm", lambda it, m=m: ("E", m)))
        for u in range(2):
            extra.append(Op("buffer_load_dwordx2 v[%d:%d], v25, s[24:27], s%d offen offset:%d" % (72 + 4 * m + 2 * u, 73 + 4 * m + 2 * u, sM4[m], 32 * u), "vm", lambda it, m=m, u=u: ("E", m, u)))
    for u in range(2):
        extra.append(Op("buffer_load_dwordx2 v[%d:%d], v24, s[28:31], 0 offen offset:%d" % (88 + 2 * u, 89 + 2 * u, 32 * u), "vm", lambda it, u=u: ("E", "d", u)))
    for st in range(NST):
        vm_at = {}; nd = nh = 0
        for sl, kind in zip(vslots, vorder):
            if kind == "d":
                assert sl < B
                vm_at[sl] = ("d", nd); nd += 1
            else:
                kk, m = divmod(nh, 4); nh += 1
                assert 32 * kk <= sl < 32 * (kk + 1), (sl, kk)
                vm_at[sl] = ("h", kk, m)
        cur = rd_list(st); nxt = rd_list(st + 1) if st + 1 < NST else []
        for s in range(NS):
            kk, r = divmod(s, 32); u, m = divmod(r, 4)
            post = []
            if s == B and st + 1 < NST:
                body.append(Op("s_barrier", needs=lambda it, st=st: [("D", st + 1, k) for k in range(4)], drain=["lg"]))
            for (sl, k2, u2, part) in cur:
                if s < B and sl == s: body.append(read_op(st, k2, u2, part))
            for (sl, k2, u2, part) in nxt:
                if s >= B and sl == s - NS: body.append(read_op(st + 1, k2, u2, part))
            if s in vm_at:
                v = vm_at[s]; did = False
                if v[0] == "d" and st + 3 < NST:
                    o1, o2 = dma_ops(st + 3, v[1]); body += o1; post.append(o2); did = True
                if v[0] == "h" and 2 * st + v[1] + NH - 1 < 2 * NST:
                    o1, o2 = hload(2 * st + v[1] + NH - 1, v[2]); body += o1; post.append(o2); did = True
                if not did and extra: post.append(extra.pop(0))
            f = (kk * 8 + u) % NWB; uu = 2 * st + kk
            parts = [0, 1] if st < 14 else [None]
            nf = (lambda it, st=st, kk=kk, u=u, parts=parts, uu=uu, m=m: [("F", st, kk, u, p) for p in parts] + [("H", uu, m)])
            body.append(Op(mfma16(("v", 128 + 16 * u + 4 * m), ("a", aW + 4 * f), ("a", aH + 16 * (uu % NH) + 4 * m)), needs=nf))
            body += post
    assert not extra
    prog.add(pro); prog.add(body)
    prog.emit(a)
    stamp(a, cfg, 2)
    ws_srd(a, 36, 6, WS_PART, 0x2000000, 0)
    ws_srd(a, 68, 6, WS_FL, 0x8000, 0)
    a("s_lshl_b32 s65, s%d, 3\ns_add_u32 s65, s65, s%d" % (sTI, sTN))
    a("s_lshl_b32 s66, s65, 19\ns_lshl_b32 s67, s%d, 13\ns_add_u32 s66, s66, s67" % sW)
    for d in (1, 2, 3):
        a("s_xor_b32 s67, s%d, %d\ns_lshl_b32 s67, s67, 17\ns_add_u32 s67, s67, s66\ns_add_u32 s67, s67, %d" % (sQ, d, d * 32768))
        a("s_add_u32 s53, s67, 4096")
        for k in range(8):
            r = 128 + 32 * d + 4 * k
            a("buffer_store_dwordx4 v[%d:%d], v1, s[36:39], s%d offen offset:%d sc0 sc1" % (r, r + 3, 67 if k < 4 else 53, 1024 * (k % 4)))
    a("s_waitcnt vmcnt(24)")
    for u in range(2):
        for h in range(2):
            a("v_lshlrev_b32 v%d, 16, v%d\nv_and_b32 v%d, 0xffff0000, v%d" % (92 + 4 * u + 2 * h, 88 + 2 * u + h, 93 + 4 * u + 2 * h, 88 + 2 * u + h))
    for m in range(4):
        S = 64 + 2 * m
        for k in range(4):
            x = 72 + 4 * m + k
            a("v_lshlrev_b32 v%d, 16, v%d\nv_and_b32 v%d, 0xffff0000, v%d" % (40 + 2 * k, x, 41 + 2 * k, x))
        for k in range(4): a("v_pk_add_f32 %s, %s, %s op_sel_hi:[1,0] neg_lo:[0,1] neg_hi:[0,1]" % (P(48 + 2 * k), P(40 + 2 * k), P(S)))
        def rnd():
            for k in range(4): a("v_cvt_pk_bf16_f32 v%d, v%d, v%d" % (56 + k, 48 + 2 * k, 49 + 2 * k))
            for k in range(4): a("v_lshlrev_b32 v%d, 16, v%d\nv_and_b32 v%d, 0xffff0000, v%d" % (48 + 2 * k, 56 + k, 49 + 2 * k, 56 + k))
        rnd()
        for k in range(4): a("v_pk_mul_f32 %s, %s, %s op_sel:[0,1] op_sel_hi:[1,1]" % (P(48 + 2 * k), P(48 + 2 * k), P(S)))
        rnd()
        for k in range(4): a("v_pk_mul_f32 %s, %s, %s" % (P(48 + 2 * k), P(48 + 2 * k), P(92 + 2 * k)))
        rnd()
        for k in range(4): a("v_pk_add_f32 %s, %s, %s" % (P(48 + 2 * k), P(48 + 2 * k), P(40 + 2 * k)))
        for k in range(4):
            d = 128 + 16 * (k // 2) + 4 * m + 2 * (k % 2)
            a("v_pk_add_f32 %s, %s, %s" % (P(d), P(d), P(48 + 2 * k)))
    a("s_lshl_b32 s67, s65, 2\ns_add_u32 s67, s67, s%d\ns_lshl_b32 s67, s67, 7" % sW)
    a("s_lshl_b32 s53, s%d, 2" % sQ)
    a("v_mov_b32 v40, s53\nv_mov_b32 v41, 1\nv_mov_b32 v42, 0")
    a("s_waitcnt vmcnt(0)")
    stamp(a, cfg, 3)
    a("s_mov_b64 exec, 1")
    a("buffer_store_dword v41, v40, s[68:71], s67 offen sc0 sc1")
    a("s_mov_b32 s74, 0x100000")
    a("k2_poll:")
    a("buffer_load_dwordx4 v[44:47], v42, s[68:71], s67 offen sc0 sc1")
    a("s_waitcnt vmcnt(0)")
    a("v_and_b32 v44, v44, v45\nv_and_b32 v46, v46, v47\nv_and_b32 v44, v44, v46")
    a("v_readfirstlane_b32 s53, v44")
    a("s_cmp_eq_u32 s53, 1")
    a("s_cbranch_scc1 k2_pollok")
    a("s_sub_u32 s74, s74, 1")
    a("s_cmp_eq_u32 s74, 0")
    a("s_cbranch_scc1 k2_pollok")
    a("s_sleep 1")
    a("s_branch k2_poll")
    a("k2_pollok:")
    a("s_mov_b64 exec, -1")
    stamp(a, cfg, 4)
    a("s_lshl_b32 s67, s%d, 17\ns_add_u32 s67, s67, s66" % sQ)
    for d in (1, 2, 3):
        a("s_add_u32 s%d, s67, %d\ns_add_u32 s%d, s67, %d" % (70 + 2 * d, d * 32768, 71 + 2 * d, d * 32768 + 4096))
    order = [(u, m) for m in range(4) for u in range(2)]
    for (u, m) in order:
        for d in (1, 2, 3):
            r = 128 + 32 * d + 16 * u + 4 * m
            a("buffer_load_dwordx4 v[%d:%d], v1, s[36:39], s%d offen offset:%d sc0 sc1" % (r, r + 3, 70 + 2 * d + u, 1024 * m))
    srd(a, 24, 42, 43, 2048 * 4096)
    a("s_mov_b32 s57, 0\ns_mov_b32 s58, 8192\ns_mov_b32 s59, 16384\ns_mov_b32 s52, 24576")
    for idx, (u, m) in enumerate(order):
        a("s_waitcnt vmcnt(%d)" % (24 - 3 * (idx + 1) + idx))
        r0 = 128 + 16 * u + 4 * m
        for h in (0, 2):
            a("v_pk_add_f32 %s, %s, %s" % (P(r0 + h), P(r0 + h), P(r0 + 32 + h)))
            a("v_pk_add_f32 %s, %s, %s" % (P(r0 + 64 + h), P(r0 + 64 + h), P(r0 + 96 + h)))
        for h in (0, 2):
            a("v_pk_add_f32 %s, %s, %s" % (P(r0 + h), P(r0 + h), P(r0 + 64 + h)))
        a("buffer_store_dwordx4 v[%d:%d], v27, s[24:27], s%d offen offset:%d" % (r0, r0 + 3, sM4[m], 64 * u))
    if cfg.get("ts"):
        stamp(a, cfg, 5)
        a("s_waitcnt vmcnt(0)")
        stamp(a, cfg, 6)
        stamp_out(a, cfg, 2, 7, 6, sW)
    a("k2_end:")
    a("s_endpgm")
    return name, a, dict(vgpr=256 + aW + 32, accum=256, grid=256, block=256, lds=cfg.get("k2_lds", 98304))

def build(cfg):
    ks = [gen_k0(cfg), gen_k1(cfg), gen_k2(cfg)]
    hdr = open("cdna_kernels/%s.s.ref" % NAME).read().split("; Override launch")[0]
    out = hdr
    for name, a, d in ks:
        out += "; @launch kernel=%s grid=(%d,1,1) block=(%d,1,1) lds=%d\n" % (name, d["grid"], d["block"], d["lds"])
    out += '.amdgcn_target "amdgcn-amd-amdhsa--gfx950"\n'
    for name, a, d in ks:
        out += "\n".join(pad_hazards(a.lines, cfg.get("verbose"))) + "\n"
    for name, a, d in ks:
        b = Asm(); kernel_desc(b, name, d["vgpr"], accum=d["accum"]); out += b.text()
    return out

if __name__ == "__main__":
    cfg = {}
    for kv in sys.argv[2:]:
        k, v = kv.split("=")
        try: v = int(v)
        except ValueError: pass
        cfg[k] = v
    open(sys.argv[1], "w").write(build(cfg))
```

```python
import re

class Asm:
    def __init__(self):
        self.lines = []
        self._lab = 0
    def __call__(self, s=""):
        for l in s.split("\n"):
            self.lines.append(l.strip())
    def label(self, name):
        self.lines.append(name + ":")
    def newlabel(self, p="L"):
        self._lab += 1
        return "%s_%d" % (p, self._lab)
    def text(self):
        return "\n".join(self.lines) + "\n"

def kernel_header(a, name):
    a(".text")
    a(".globl %s" % name)
    a(".p2align 8")
    a(".type %s,@function" % name)
    a("%s:" % name)

def kernel_desc(a, name, vgpr, sgpr=102, accum=None, kernarg=128):
    if accum is None:
        accum = (vgpr + 3) // 4 * 4
    a('.section .rodata,"a"')
    a(".p2align 6")
    a(".amdhsa_kernel %s" % name)
    a("  .amdhsa_next_free_vgpr %d" % vgpr)
    a("  .amdhsa_next_free_sgpr %d" % sgpr)
    a("  .amdhsa_accum_offset %d" % accum)
    a("  .amdhsa_group_segment_fixed_size 0")
    a("  .amdhsa_kernarg_size %d" % kernarg)
    a("  .amdhsa_user_sgpr_count 2")
    a("  .amdhsa_user_sgpr_kernarg_segment_ptr 1")
    a("  .amdhsa_system_sgpr_workgroup_id_x 1")
    a(".end_amdhsa_kernel")

def srd(a, r, lo, hi, size):
    a("s_mov_b32 s%d, s%d\ns_and_b32 s%d, s%d, 0xffff\ns_mov_b32 s%d, %d\ns_mov_b32 s%d, 0x20000" % (r, lo, r+1, hi, r+2, size, r+3))

def R(k, i, n=1):
    return "%s%d" % (k, i) if n == 1 else "%s[%d:%d]" % (k, i, i + n - 1)

_REG = re.compile(r"^-?\|?(?:abs\()?([vas])(?:(\d+)|\[(\d+):(\d+)\])\)?\|?$")
TRANS = ("v_exp_f32", "v_log_f32", "v_rcp_f32", "v_rsq_f32", "v_sqrt_f32", "v_sin_f32", "v_cos_f32", "v_rcp_iflag_f32")

def _regs(op):
    op = op.strip()
    if op in ("vcc",): return {("s", "vcc")}
    if op in ("vcc_lo", "vcc_hi"): return {("s", "vcc")}
    if op == "m0": return {("s", "m0")}
    if op in ("exec", "exec_lo", "exec_hi"): return {("s", "exec")}
    m = _REG.match(op)
    if not m: return set()
    k = m.group(1)
    if m.group(2) is not None: return {(k, int(m.group(2)))}
    return {(k, i) for i in range(int(m.group(3)), int(m.group(4)) + 1)}

def parse(line):
    l = line.split(";")[0].strip()
    if not l or l.endswith(":") or l.startswith("."): return None
    parts = l.split(None, 1)
    opc = parts[0]
    rest = parts[1] if len(parts) > 1 else ""
    ops = []; cur = ""; d = 0
    for ch in rest:
        if ch == "[": d += 1
        if ch == "]": d -= 1
        if ch == "," and d == 0: ops.append(cur.strip()); cur = ""
        else: cur += ch
    mods = ""
    if cur.strip():
        t = cur.strip().split(None, 1)
        ops.append(t[0]); mods = t[1] if len(t) > 1 else ""
    I = dict(opc=opc, ops=ops, mods=mods, defs=set(), uses=set(), cls="other", text=l)
    base = re.sub(r"_(e32|e64|dpp|sdwa)$", "", opc)
    I["base"] = base
    if opc.startswith("v_mfma"):
        I["cls"] = "mfma"; I["defs"] = _regs(ops[0]); I["A"] = _regs(ops[1]); I["B"] = _regs(ops[2]); I["C"] = _regs(ops[3])
        I["uses"] = I["A"] | I["B"] | I["C"]; I["passes"] = 8 if "32x32x16" in opc else 4
    elif opc.startswith("v_"):
        I["cls"] = "valu"
        I["defs"] = _regs(ops[0]); src = ops[1:]
        if base in ("v_add_co_u32", "v_sub_co_u32", "v_addc_co_u32", "v_subb_co_u32", "v_subrev_co_u32", "v_mad_u64_u32"):
            I["defs"] |= _regs(ops[1]); src = ops[2:]
        for o in src: I["uses"] |= _regs(o)
        if base.startswith("v_fmac") or base.startswith("v_dot2c") or base.startswith("v_permlane") or base == "v_writelane_b32" or "dpp" in opc or "row_" in mods or "quad_perm" in mods:
            I["uses"] |= _regs(ops[0])
        if base.startswith("v_permlane") and "swap" in base: I["defs"] |= _regs(ops[1])
        if base.startswith("v_cmpx"): raise Exception("no cmpx")
        I["dpp"] = ("dpp" in opc) or ("row_" in mods) or ("quad_perm" in mods) or ("wave_" in mods)
        I["trans"] = base in TRANS
    elif opc.startswith("buffer_") or opc.startswith("global_"):
        I["cls"] = "vmem"
        islds = (" lds" in " " + mods) or ("load_lds" in opc)
        I["lds"] = islds
        if opc in ("buffer_wbl2", "buffer_inv"):
            pass
        elif "load" in opc and not islds:
            I["defs"] = _regs(ops[0])
            for o in ops[1:]: I["uses"] |= _regs(o)
        elif "atomic" in opc:
            for o in ops: I["uses"] |= _regs(o)
            if "sc0" in mods: I["defs"] = _regs(ops[0])
        else:
            for o in ops: I["uses"] |= _regs(o)
            if "store" in opc and ("x4" in opc or "x3" in opc):
                I["wdata"] = _regs(ops[0]) if opc.startswith("buffer_") else _regs(ops[1])
        if islds: I["uses"] |= {("s", "m0")}
    elif opc.startswith("ds_"):
        I["cls"] = "ds"
        if "read" in opc or "permute" in opc or "swizzle" in opc or "_rtn" in opc:
            I["defs"] = _regs(ops[0])
            for o in ops[1:]: I["uses"] |= _regs(o)
        else:
            for o in ops: I["uses"] |= _regs(o)
    elif opc.startswith("s_"):
        I["cls"] = "salu"
        if opc == "s_nop": I["n"] = int(ops[0], 0) + 1
        nodef = opc.startswith(("s_cmp", "s_cbranch", "s_branch", "s_waitcnt", "s_barrier", "s_nop", "s_endpgm", "s_sleep", "s_setprio", "s_bitcmp"))
        if ops and not nodef:
            I["defs"] = _regs(ops[0])
            for o in ops[1:]: I["uses"] |= _regs(o)
            if "saveexec" in opc: I["defs"] |= {("s", "exec")}
        else:
            for o in ops: I["uses"] |= _regs(o)
    return I

def _vec(s): return {r for r in s if r[0] in "va"}
def _sc(s): return {r for r in s if r[0] == "s"}

def need(P, C):
    n = 0
    pc, cc = P["cls"], C["cls"]
    if pc == "valu":
        d = _vec(P["defs"]); sd = _sc(P["defs"])
        if cc == "mfma" and d & C["uses"]: n = max(n, 2)
        if cc == "valu":
            if P.get("trans") and not C.get("trans") and d & (C["uses"]): n = max(n, 1)
            if C.get("dpp") and d & C["uses"]: n = max(n, 2)
            if C["base"].startswith("v_permlane") and d & C["uses"]: n = max(n, 2)
            if C["base"] in ("v_readlane_b32", "v_readfirstlane_b32") and d & C["uses"]: n = max(n, 1)
            if sd & C["uses"]: n = max(n, 4 if C["base"] in ("v_readlane_b32", "v_writelane_b32") else 2)
        if cc == "vmem" and sd & C["uses"]: n = max(n, 5)
        if cc == "salu" and sd & C["uses"]: n = max(n, 1)
    if pc == "mfma":
        d = P["defs"]; k = 8 if P["passes"] == 4 else 12
        if cc in ("valu", "vmem", "ds") and d & (C["uses"] | C["defs"]): n = max(n, k)
        if cc == "mfma":
            if d & (C["A"] | C["B"]): n = max(n, k)
            if d & C["C"] and not (d == C["C"] and P["passes"] == C["passes"]): n = max(n, k - 2)
            if d & C["defs"] and not d & C["C"]: n = max(n, k)
        if cc == "valu" and P["C"] & C["defs"]: n = max(n, 3 if P["passes"] == 4 else 7)
    if pc == "vmem" and P.get("wdata"):
        if P["wdata"] & C["defs"]: n = max(n, 2 if cc in ("valu", "mfma") else 1)
    if pc == "salu" and ("s", "m0") in P["defs"] and cc == "vmem" and C.get("lds"): n = max(n, 1)
    return n

def pad_hazards(lines, verbose=False):
    out = []; hist = []
    def dist_scan(hist, C):
        req = 0; d = 0
        for P in reversed(hist):
            r = need(P, C) - d
            if r > req: req = r
            d += P.get("n", 1)
            if d > 20: break
        return req
    labels = {}
    for l in lines:
        I = parse(l)
        if I is None:
            if l.strip().endswith(":"): labels[l.strip()[:-1]] = len(out)
            out.append(l); continue
        req = dist_scan(hist, I)
        if req > 0:
            if verbose: print("pad %d before: %s" % (req, l))
            out.append("s_nop %d" % (req - 1)); hist.append(parse("s_nop %d" % (req - 1)))
        out.append(l); hist.append(I); hist = hist[-24:]
    pl = [parse(l) for l in out]
    labels = {l.strip()[:-1]: i for i, l in enumerate(out) if pl[i] is None and l.strip().endswith(":")}
    for i, I in enumerate(pl):
        if I and I["opc"].startswith(("s_cbranch", "s_branch")):
            tgt = labels[I["ops"][0]]
            h = [p for p in pl[max(0, i - 40):i + 1] if p][-24:]
            cnt = 0
            for j in range(tgt, len(out)):
                if pl[j] is None: continue
                r = dist_scan(h, pl[j])
                assert r <= 0, ("hazard across branch", out[i], out[j], r)
                h.append(pl[j]); cnt += 1
                if cnt > 16: break
    return out

class Op:
    def __init__(self, text, cls=None, tag=None, needs=None, drain=None):
        self.text = text; self.cls = cls; self.tag = tag; self.needs = needs; self.drain = drain
        self.w = {"vm": None, "lg": None}; self.keep = False

class Prog:
    def __init__(self):
        self.segs = []
    def add(self, ops, iters=(0,), label=None, tail=None):
        self.segs.append((ops, list(iters), label, tail))
    def solve(self):
        MAX = {"vm": 63, "lg": 15}
        pos = {}; cnt = {"vm": 0, "lg": 0}
        for ops, iters, _, _ in self.segs:
            for it in iters:
                for o in ops:
                    if o.needs:
                        for t in o.needs(it):
                            assert t in pos, ("needed tag never issued", t, o.text)
                            c, p = pos[t]
                            n = min(cnt[c] - p - 1, MAX[c])
                            o.w[c] = n if o.w[c] is None else min(o.w[c], n)
                    if o.drain:
                        for c in o.drain: o.w[c] = 0
                    if o.cls:
                        t = o.tag(it) if o.tag else None
                        if t is not None: pos[t] = (o.cls, cnt[o.cls])
                        cnt[o.cls] += 1
        done = {"vm": 0, "lg": 0}; cnt = {"vm": 0, "lg": 0}
        useful = set()
        for ops, iters, _, _ in self.segs:
            for it in iters:
                for o in ops:
                    for c in ("vm", "lg"):
                        if o.w[c] is not None:
                            nd = cnt[c] - o.w[c]
                            if nd > done[c]:
                                useful.add((id(o), c)); done[c] = nd
                    if o.cls:
                        cnt[o.cls] += 1
                        assert o.cls != "vm" or cnt["vm"] - done["vm"] <= 63 + 1000
        for ops, _, _, _ in self.segs:
            for o in ops:
                for c in ("vm", "lg"):
                    if (id(o), c) not in useful and not o.keep: o.w[c] = None
    def emit(self, a):
        self.solve()
        for ops, iters, label, tail in self.segs:
            if label: a(label + ":")
            for o in ops:
                w = []
                if o.w["vm"] is not None: w.append("vmcnt(%d)" % o.w["vm"])
                if o.w["lg"] is not None: w.append("lgkmcnt(%d)" % o.w["lg"])
                if w: a("s_waitcnt " + " ".join(w))
                if o.text: a(o.text)
            if tail: a(tail)

def opclass(text):
    o = text.split()[0]
    if o.endswith(":"): return "L"
    if o.startswith("ds_"): return "D" if "read" in o else "Y"
    if o.startswith(("buffer_", "global_")): return "X" if "store" in o else "G"
    if o.startswith("v_"):
        assert not o.startswith("v_pk_"), text
        return "E" if o in TRANS else "V"
    return "S"

def gap_time(cls):
    c = [x for x in cls if x != "L"]
    if "G" in c or "Y" in c: return 16 if len(c) == 1 else None
    if "X" in c: return 16 if c in (["X"], ["X", "S"]) else None
    t = 4; prev = None
    for i, x in enumerate(c):
        if x == "S": t += 4
        elif x == "D":
            if prev in ("V", "E"): return None
            if i == 1 and prev == "D": return None
            t = max(t, 8) + 4
        elif x == "V": t = max(t, 8) + 4
        elif x == "E": t = max(t, 8) + 8
        prev = x
    return t

class Sch:
    def __init__(self, mf):
        self.mf = mf; self.n = len(mf)
        self.g = [[] for _ in range(self.n)]
        self.seq = 0
        self.lastvm = []
        self.over = 0
    def _cls(self, o):
        c = []
        if o.needs or o.drain: c.append("S")
        if o.text: c += [opclass(l) for l in o.text.split("\n")]
        return c
    def classes(self, g, extra=()):
        items = sorted(self.g[g] + list(extra), key=lambda x: (x[0], x[1]))
        return sum([x[3] for x in items], [])
    def fits(self, g, unit, prio):
        ex = [(prio, self.seq + i, o, self._cls(o)) for i, o in enumerate(unit)]
        t = gap_time(self.classes(g, ex))
        return t is not None and t <= 16
    def put(self, g, unit, prio):
        for o in unit:
            self.g[g].append((prio, self.seq, o, self._cls(o))); self.seq += 1
    def isvm(self, unit): return any(c in ("G", "X") for o in unit for c in self._cls(o))
    def vm_ok(self, g, sp): return all(abs(g - h) >= sp for h in self.lastvm)
    def stream(self, units, start, prio, vmspace=4, hi=None):
        pos = start; res = []
        hi = self.n if hi is None else hi
        for unit, early in units:
            if callable(early): early = early(res)
            if early is not None: pos = max(pos, early)
            vm = self.isvm(unit)
            force = gap_time(sum([self._cls(o) for o in unit], [])); force = force is None or force > 16
            while True:
                assert pos < hi, ("stream ran off the end", [o.text for o in unit])
                ok = (not self.g[pos]) if force else self.fits(pos, unit, prio)
                if ok and (not vm or self.vm_ok(pos, vmspace)): break
                pos += 1
            self.put(pos, unit, prio)
            if vm: self.lastvm.append(pos)
            res.append(pos)
        return res
    def ops(self):
        out = []
        for g in range(self.n):
            out.append(self.mf[g])
            items = sorted(self.g[g], key=lambda x: (x[0], x[1]))
            out += [x[2] for x in items]
        return out

def gap_report(lines):
    lost = 0; cur = None; n = 0; bad = {}
    for l in lines:
        t = l.split(";")[0].strip()
        if not t or t.startswith("."): continue
        if t.startswith("v_mfma_f32_16x16x32"):
            if cur is not None and len(cur) < 12:
                try:
                    c = [opclass(x) for x in cur]
                except AssertionError:
                    c = None
                if c is not None:
                    e = gap_time(c)
                    k = "".join(c)
                    if e is None or e > 16 or "X" in c or "Y" in c: bad[k] = bad.get(k, 0) + 1
            cur = []; n += 1
        elif cur is not None: cur.append(t)
    return n, bad
```

```python
import sys, math, struct
from asmlib import *

NAME = "parallel_sum__ssm_conv_s5__glu_gated_geglu__prompt"
KX, KLRE, KLIM, KBRE, KBIM, KCRE, KCIM, KLDT, KDSK, KBX, KWG, KWU, KWD, KOUT, KDBG, KWS = [8 * i for i in range(16)]
WS_XN = 0
WS_H = 0x400000
H_BLK = 176 * 4096
WS_SM = 0x1A00000
SM_AG = 0; SM_ST = 0x40000; SM_F1 = 0x44000; SM_F3 = 0x45000; SM_F4 = 0x49000; SM_EP = 0x51000; SM_SIZE = 0x52000
WS_TS = 0x1A60000
WS_PART = 0x2000000
NSTAMPS = [16]
SPLIT_LAYOUT = True
STAMPS = []

def f2u(x): return struct.unpack("<I", struct.pack("<f", x))[0]
def fx(x): return "0x%08x" % f2u(x)
P = lambda r: "v[%d:%d]" % (r, r + 1)
Q = lambda r: "v[%d:%d]" % (r, r + 3)
LOG2E = 1.4426950408889634
K = lambda v: (lambda it: v)

def ws_srd(a, r, off, size):
    a("s_add_u32 s%d, s6, 0x%x\ns_addc_u32 s%d, s7, 0\ns_and_b32 s%d, s%d, 0xffff\ns_mov_b32 s%d, 0x%x\ns_mov_b32 s%d, 0x20000" % (r, off, r + 1, r + 1, r + 1, r + 2, size, r + 3))

def mfma16(d, A, B, zero=False):
    return "v_mfma_f32_16x16x32_bf16 %s, %s, %s, %s" % (R(d[0], d[1], 4), R(A[0], A[1], 4), R(B[0], B[1], 4), "0" if zero else R(d[0], d[1], 4))

def cmul_pk(a, dr, di, ar, ai, br, bi, t):
    a("v_pk_mul_f32 %s, %s, %s" % (P(t), P(ai), P(bi)))
    a("v_pk_fma_f32 %s, %s, %s, %s neg_lo:[0,0,1] neg_hi:[0,0,1]" % (P(t), P(ar), P(br), P(t)))
    a("v_pk_mul_f32 %s, %s, %s" % (P(t + 2), P(ar), P(bi)))
    a("v_pk_fma_f32 %s, %s, %s, %s" % (P(di), P(ai), P(br), P(t + 2)))
    a("v_mov_b32 v%d, v%d\nv_mov_b32 v%d, v%d" % (dr, t, dr + 1, t + 1))

def horner_pk(a, s, L, e, d):
    a("v_pk_fma_f32 %s, %s, %s, %s" % (P(d), P(L), P(s), P(e)))
    a("v_pk_fma_f32 %s, %s, %s, %s" % (P(d + 2), P(L), P(s + 2), P(e + 2)))
    a("v_pk_fma_f32 %s, %s, %s, %s neg_lo:[1,0,0] neg_hi:[1,0,0]" % (P(d), P(L + 2), P(s + 2), P(d)))
    a("v_pk_fma_f32 %s, %s, %s, %s" % (P(d + 2), P(L + 2), P(s), P(d + 2)))

def horner_sc(a, s, L, e):
    for T in range(2):
        a("v_fmac_f32 v%d, v%d, v%d" % (e + T, L + T, s + T)); a("v_fmac_f32 v%d, v%d, v%d" % (e + 2 + T, L + T, s + 2 + T))
    for T in range(2):
        a("v_fma_f32 v%d, -v%d, v%d, v%d" % (e + T, L + 2 + T, s + 2 + T, e + T)); a("v_fmac_f32 v%d, v%d, v%d" % (e + 2 + T, L + 2 + T, s + T))

def gelu_block(a, items, CC, T):
    for k, (g, u, o) in enumerate(items): a("v_pk_mul_f32 %s, %s, %s" % (P(T + 2 * k), P(g), P(g)))
    for k, (g, u, o) in enumerate(items): a("v_pk_fma_f32 %s, %s, %s, %s op_sel:[0,1,0] op_sel_hi:[1,1,0]" % (P(T + 2 * k), P(T + 2 * k), P(CC), P(CC)))
    for k, (g, u, o) in enumerate(items): a("v_pk_mul_f32 %s, %s, %s" % (P(T + 2 * k), P(T + 2 * k), P(g)))
    for k, (g, u, o) in enumerate(items):
        a("v_exp_f32 v%d, v%d" % (T + 2 * k, T + 2 * k)); a("v_exp_f32 v%d, v%d" % (T + 2 * k + 1, T + 2 * k + 1))
        a("v_pk_mul_f32 %s, %s, %s" % (P(u), P(g), P(u)))
    for k, (g, u, o) in enumerate(items): a("v_pk_add_f32 %s, %s, 1.0 op_sel_hi:[1,0]" % (P(T + 2 * k), P(T + 2 * k)))
    for k, (g, u, o) in enumerate(items):
        a("v_rcp_f32 v%d, v%d" % (T + 2 * k, T + 2 * k)); a("v_rcp_f32 v%d, v%d" % (T + 2 * k + 1, T + 2 * k + 1))
    for k, (g, u, o) in enumerate(items): a("v_pk_mul_f32 %s, %s, %s" % (P(u), P(u), P(T + 2 * k)))
    for k, (g, u, o) in enumerate(items): a("v_cvt_pk_bf16_f32 v%d, v%d, v%d" % (o, u, u + 1))

class Seq:
    def __init__(self): self.u = []
    def __call__(self, s):
        for l in s.split("\n"):
            l = l.strip()
            assert not l.startswith(("buffer_", "global_", "ds_")), ("uncounted memory op", l)
            self.u.append([[Op(l)], None])
    def atom(self, ops, early=None): self.u.append([[o if isinstance(o, Op) else Op(o) for o in ops], early])
    def vm(self, text, tag=None, needs=None, early=None):
        if needs: self.wait(needs, early=early); early = None
        self.u.append([[Op(text, "vm", K(tag) if tag is not None else None)], early])
    def lg(self, text, tag=None, needs=None):
        if needs: self.wait(needs)
        self.u.append([[Op(text, "lg", K(tag) if tag is not None else None)], None])
    def wait(self, needs, drain=None, early=None): self.u.append([[Op("", needs=K(needs) if needs else None, drain=drain)], early])
    def op(self, o, early=None): self.u.append([[o], early])
    def delay(self, n):
        self._d = n; i = len(self.u) - 1
        self.u.append([[Op("")], lambda res, n=n: res[-1] + n])
    def at(self, g): self.u.append([[Op("")], g])
    def done(self):
        o = [x for un, _ in self.u for x in un]; self.u = []; return o
    def units(self):
        u = self.u; self.u = []; return u

W_ST = 28672; U_OFF = 14336
B_BASE = 131072; B_ST = 8192
LN_LDS = 65536 + W_ST

def gen(cfg):
    name = NAME + "_kernel"
    a = Asm(); kernel_header(a, name)
    ool = Asm()
    TS = cfg.get("ts")
    names = ["start"] + cfg.get("stamps", "flag1 poll1 loop1 end1 p01 pub ok3a loop2 end2 drain4 poll4").split() + ["end"]
    STAMPS[:] = names; NSTAMPS[0] = len(names)
    vTS = 15
    def stamp(s, nm):
        if TS and nm in names: s.atom(["s_memrealtime s[100:101]", "s_waitcnt lgkmcnt(0)", "v_writelane_b32 v%d, s100, %d" % (vTS, names.index(nm))])
    SC = "sc0 sc1"
    prog = Prog(); s = Seq()
    sJ, sI, sW, sB, sQ, sTN, sTAG = 60, 61, 62, 63, 52, 53, 3
    sMW, sM3, sMB, sKW, sKB, sKX, sCNT = 54, 55, 56, 57, 58, 59, 81
    sPAs, sKPA, sKPB, sPBs = 76, 77, 78, 80
    def poll(s, nm, loadtext, dst, tagneed, mask=None, early=None):
        s.wait([tagneed], early=early)
        s.atom(["%s_chk:" % nm, "v_cmp_ne_u32 vcc, s%d, v%d" % (sTAG, dst), "s_and_b64 vcc, vcc, %s" % (mask or "exec"), "s_cbranch_scc1 %s_retry" % nm, "%s_ok:" % nm])
        ool("%s_retry:\ns_cmp_eq_u32 s79, 0\ns_cbranch_scc1 %s_ok\ns_sub_u32 s79, s79, 1\ns_sleep 1\n%s\ns_waitcnt vmcnt(0)\ns_branch %s_chk" % (nm, nm, loadtext, nm))
    def flag(s, text, needs, early=None):
        s.wait(needs, early=early)
        s.atom(["s_mov_b64 exec, 1", Op(text, "vm"), "s_mov_b64 exec, -1"])

    s("s_cmp_ge_u32 s2, 256\ns_cbranch_scc1 L_end")
    if TS: s("s_memrealtime s[100:101]")
    s("s_load_dwordx2 s[4:5], s[0:1], %d" % KX)
    s("s_load_dwordx2 s[6:7], s[0:1], %d" % KWS)
    s("s_load_dwordx4 s[12:15], s[0:1], %d" % KWG)
    s("s_load_dwordx4 s[24:27], s[0:1], %d" % KBRE)
    s("s_load_dwordx4 s[72:75], s[0:1], %d" % KLRE)
    s("s_load_dwordx4 s[92:95], s[0:1], %d" % KLDT)
    s("s_load_dwordx4 s[84:87], s[0:1], %d" % KWD)
    s("s_load_dwordx4 s[88:91], s[0:1], %d" % KCRE)
    s("v_lshrrev_b32 v1, 6, v0\nv_and_b32 v0, 63, v0")
    s("v_readfirstlane_b32 s%d, v1" % sW)
    s("v_lshlrev_b32 v1, 4, v0")
    s("s_mov_b32 s79, 0x40000")
    s("s_bfe_u32 s%d, s2, 0x20001" % sQ)
    s("s_and_b32 s64, s2, 1\ns_lshl_b32 s64, s64, 2\ns_lshr_b32 s%d, s2, 6\ns_add_u32 s%d, s%d, s64" % (sI, sI, sI))
    s("s_bfe_u32 s%d, s2, 0x30003" % sTN)
    s("s_lshl_b32 s%d, s%d, 3\ns_add_u32 s%d, s%d, s%d" % (sJ, sQ, sJ, sJ, sTN))
    s("s_lshl_b32 s%d, s%d, 2\ns_add_u32 s%d, s%d, s%d" % (sB, sI, sB, sB, sW))
    s("s_and_b32 s64, s2, 1\ns_lshl_b32 s64, s64, 1\ns_lshr_b32 s65, s%d, 1\ns_add_u32 s64, s64, s65\ns_lshl_b32 s64, s64, 4" % sW)
    s("s_and_b32 s65, s%d, 1\ns_add_u32 s64, s64, s65\ns_lshl_b32 s65, s%d, 1\ns_add_u32 s64, s64, s65" % (sW, sQ))
    s("s_lshr_b32 s66, s2, 3\ns_lshl_b32 s65, s66, 6\ns_add_u32 s64, s64, s65")
    s("s_lshl_b32 s67, s64, 11\ns_add_u32 s68, s67, %d" % (8 * 2048))
    s("s_mov_b32 s10, %d\ns_mov_b32 s11, 0x20000" % (2048 * 2048))
    s("s_waitcnt lgkmcnt(0)")
    if TS: s("v_writelane_b32 v%d, s100, 0" % vTS)
    stamp(s, "karg")
    s("s_mov_b32 s8, s4\ns_and_b32 s9, s5, 0xffff")
    for r in range(2):
        for h in range(2):
            s.vm("buffer_load_dwordx4 %s, v1, s[8:11], s%d offen offset:%d" % (Q(64 + 8 * r + 4 * h), 67 + r, 1024 * h), ("x", r, h))
    s("s_add_u32 s70, s6, 0x%x\ns_addc_u32 s71, s7, 0" % (WS_SM + SM_EP))
    s("s_load_dword s%d, s[70:71], 0" % sTAG)
    srd(s, 16, 14, 15, 1024 * 7168); srd(s, 12, 12, 13, 1024 * 7168)
    srd(s, 28, 26, 27, 1024 * 2048); srd(s, 24, 24, 25, 1024 * 2048)
    s("s_cmp_ge_u32 s%d, 2" % sW)
    s("s_cselect_b32 s20, s16, s12\ns_cselect_b32 s21, s17, s13\ns_mov_b32 s22, %d\ns_mov_b32 s23, 0x20000" % (1024 * 7168))
    ws_srd(s, 36, WS_SM, SM_SIZE)
    s("v_and_b32 v48, 15, v0\nv_lshrrev_b32 v49, 4, v0")
    s("s_lshl_b32 s69, s%d, 5\nv_add_u32 v40, s69, v48\nv_lshlrev_b32 v40, 1, v40" % sJ)
    for k, (lo, r) in enumerate(((72, 48), (74, 44), (92, 40))):
        srd(s, r, lo, lo + 1, 2048)
        for T in range(2):
            s.vm("buffer_load_ushort v%d, v40, s[%d:%d], 0 offen offset:%d" % (16 + 2 * k + T, r, r + 3, 32 * T), ("c", k, T))
    s("v_mov_b32 v41, -1\nv_lshlrev_b32 v42, 2, v0\ns_xor_b32 s69, s2, 0xf8\ns_lshl_b32 s69, s69, 10\ns_lshl_b32 s65, s%d, 8\ns_add_u32 s69, s69, s65" % sW)
    s.vm("buffer_store_dword v41, v42, s[36:39], s69 offen %s" % SC, "agfill")
    vWA, vBA0, vBA1, vW0, vW3, vB, vJ, vPA, vPB = 2, 3, 4, 6, 9, 10, 12, 13, 14
    s("v_min_u32 v40, 27, v0\nv_cmp_le_u32 vcc, 14, v40\nv_lshlrev_b32 v44, 7, v40\nv_mov_b32 v45, %d\nv_cndmask_b32 v45, 0, v45, vcc\nv_add_u32 v44, v44, v45" % (7168 - 14 * 128))
    s("s_mul_i32 s69, s66, %d\ns_mul_i32 s65, s%d, 1792\ns_add_u32 s69, s69, s65\nv_add_u32 v44, s69, v44" % (2 * 7168, sQ))
    s("v_and_b32 v45, 7, v0\ns_lshl_b32 s69, s%d, 8\ns_lshl_b32 s65, s66, 3\ns_add_u32 s69, s69, s65\nv_add_u32 v45, s69, v45\nv_lshlrev_b32 v45, 11, v45" % sQ)
    s("s_mov_b32 s69, %d\ns_cmp_ge_u32 s%d, 2\ns_cselect_b64 vcc, -1, 0\nv_cndmask_b32 v%d, v44, v45, vcc\ns_cselect_b32 s%d, 128, s69" % (64 * 7168, sW, vPA, sPAs))
    s("s_cselect_b32 s40, s24, s12\ns_cselect_b32 s41, s25, s13\ns_cselect_b32 s69, s28, s16\ns_cselect_b32 s65, s29, s17\ns_cselect_b32 s42, s26, s14")
    s("s_bitcmp1_b32 s%d, 0\ns_cselect_b32 s40, s69, s40\ns_cselect_b32 s41, s65, s41\ns_mov_b32 s43, 0x20000\ns_mov_b32 s%d, 0" % (sW, sKPA))
    def pfa(s):
        s.vm("buffer_load_dword v%d, v%d, s[40:43], s%d offen" % (vJ, vPA, sKPA)); s("s_add_u32 s%d, s%d, s%d" % (sKPA, sKPA, sPAs))
    def pfb(s):
        s.vm("buffer_load_dword v%d, v%d, s[44:47], s%d offen" % (vJ, vPB, sKPB)); s("s_add_u32 s%d, s%d, s%d" % (sKPB, sKPB, sPBs))
    for _ in range(cfg.get("pf_t0", 0)): pfa(s)
    s("s_and_b32 s71, s%d, 1\ns_lshl_b32 s71, s71, 1\ns_mul_i32 s72, s%d, 224\ns_and_b32 s73, s%d, 1\ns_add_u32 s73, s73, 12" % (sJ, sJ, sW))
    for k in range(4):
        if k < 3: s("s_add_u32 s69, s%d, %d\ns_lshl_b32 s69, s69, 6" % (sW, 4 * k))
        else: s("s_lshl_b32 s69, s73, 6")
        s("v_add_u32 v40, s69, v0\nv_mul_u32_u24 v44, 4682, v40\nv_lshrrev_b32 v44, 16, v44\nv_mul_u32_u24 v45, 14, v44\nv_sub_u32 v45, v40, v45")
        s("v_add_u32 v45, s71, v45\nv_subrev_u32 v43, 14, v45\nv_min_u32 v45, v45, v43")
        s("v_lshrrev_b32 v43, 1, v44\nv_xor_b32 v43, v43, v44\nv_and_b32 v43, 4, v43\nv_mul_u32_u24 v43, 3, v43\nv_xor_b32 v44, v44, v43")
        s("v_mul_u32_u24 v44, 7168, v44\nv_lshl_add_u32 v44, v45, 4, v44\nv_add_u32 v%d, s72, v44" % (vW0 + k))
    s("v_lshrrev_b32 v50, 3, v0\ns_lshl_b32 s69, s%d, 3\nv_add_u32 v40, s69, v50\nv_bfe_u32 v44, v40, 1, 3\nv_and_b32 v51, 7, v0\nv_xor_b32 v44, v44, v51" % sW)
    s("v_lshlrev_b32 v47, 11, v40\nv_lshl_add_u32 v47, v44, 4, v47")
    s("s_lshl_b32 s69, s%d, 16\nv_add_u32 v%d, s69, v47" % (sJ, vB))
    s("s_lshl_b32 s%d, s%d, 10\ns_lshl_b32 s%d, s73, 10" % (sMW, sW, sM3))
    s("s_cmp_ge_u32 s%d, 2\ns_cselect_b32 s69, %d, 0\ns_add_u32 s%d, s%d, s69\ns_add_u32 s%d, s%d, %d" % (sW, U_OFF, sM3, sM3, sMB, sMW, B_BASE))
    s("s_mov_b32 s%d, 0\ns_mov_b32 s%d, 0\ns_mov_b32 s%d, 0" % (sKW, sKB, sKX))
    s("s_lshl_b32 s65, s%d, 1\nv_xor_b32 v52, s65, v51\nv_lshlrev_b32 v52, 4, v52\nv_lshl_add_u32 v52, v0, 7, v52\nv_add_u32 v52, %d, v52\nv_xor_b32 v53, 16, v52" % (sW, LN_LDS))
    s("v_xor_b32 v54, v50, v51\nv_lshlrev_b32 v54, 4, v54\nv_lshl_add_u32 v54, v50, 7, v54\ns_add_u32 s65, s%d, %d\nv_add_u32 v54, s65, v54" % (sMW, LN_LDS))
    s("v_lshrrev_b32 v55, 5, v0\nv_lshlrev_b32 v55, 12, v55\nv_and_b32 v44, 3, v50\nv_lshl_add_u32 v55, v44, 8, v55\nv_lshl_add_u32 v55, v51, 4, v55")
    s("s_lshl_b32 s70, s66, 17\ns_lshl_b32 s67, s%d, 10\ns_add_u32 s70, s70, s67\ns_and_b32 s67, s2, 1\ns_lshl_b32 s67, s67, 7\ns_add_u32 s70, s70, s67\ns_lshl_b32 s67, s%d, 13\ns_add_u32 s70, s70, s67" % (sQ, sW))
    s("s_add_u32 s71, s70, 32768\ns_add_u32 s72, s70, 65536\ns_add_u32 s73, s70, 98304")
    s("s_lshl_b32 s74, s64, 3\ns_add_u32 s74, s74, 0x%x\nv_mov_b32 v46, 0\nv_mov_b32 v44, %s" % (SM_ST, fx(1.0 / 1024)))
    ws_srd(s, 48, WS_XN, 0x400000)
    dma_items = [(vW0, 12, sKW, sMW, 0), (vW0 + 1, 12, sKW, sMW, 4096), (vW0 + 2, 12, sKW, sMW, 8192), (vW3, 20, sKW, sM3, 0),
                 (vW0, 16, sKW, sMW, U_OFF), (vW0 + 1, 16, sKW, sMW, U_OFF + 4096), (vW0 + 2, 16, sKW, sMW, U_OFF + 8192),
                 (vB, 24, sKB, sMB, 0), (vB, 28, sKB, sMB, 4096)]
    def dma1(s, k, st, tagf, early=None):
        v, sr, so, mb, off = dma_items[k]
        stride = B_ST if mb == sMB else W_ST
        s.op(Op("s_add_u32 m0, s%d, %d" % (mb, off + st * stride)))
        s.op(Op("buffer_load_dwordx4 v%d, s[%d:%d], s%d offen lds" % (v, sr, sr + 3, so), "vm", tagf), early)
        if k == 6: s("s_add_u32 s%d, s%d, %d" % (sKW, sKW, 64 * 7168))
        if k == 8: s("s_add_u32 s%d, s%d, 128" % (sKB, sKB))
    aX, aW, NWB = 96, 160, 8
    def xload(s, setidx, m, tagf, early=None):
        s.op(Op("buffer_load_dwordx4 %s, v1, s[8:11], s%d offen offset:%d" % (R("a", aX + 16 * setidx + 4 * m, 4), sKX, 1024 * m), "vm", tagf), early)
        if m == 3: s("s_add_u32 s%d, s%d, 4096" % (sKX, sKX))
    def toggle_m0(s): s("s_xor_b32 s%d, s%d, 0x10000\ns_xor_b32 s%d, s%d, 0x10000\ns_xor_b32 s%d, s%d, 0x4000" % (sMW, sMW, sM3, sM3, sMB, sMB))
    def pro_stage(st):
        if st == 2: toggle_m0(s)
        for k in range(9): dma1(s, k, st % 2, K(("D", st, k)))
    stamp(s, "prex")
    s.wait([("x", r, h) for r in range(2) for h in range(2)])
    stamp(s, "xin")
    for _ in range(cfg.get("pf_t1", 3)): pfa(s)
    RW = lambda r: 64 + 8 * r
    F = lambda r: 80 + 16 * r
    D = lambda r: 112 + 16 * r
    t_ = lambda r: 144 + 8 * r
    def both(f):
        o = [f(0).split("\n"), f(1).split("\n")]
        for x, y in zip(*o): s(x); s(y)
    def dsum():
        for sh in (1, 2, 4, 8): both(lambda r: "v_add_f32_dpp v%d, v%d, v%d row_shr:%d row_mask:0xf bank_mask:0xf" % (t_(r), t_(r), t_(r), sh))
        both(lambda r: "v_add_f32_dpp v%d, v%d, v%d row_bcast:15 row_mask:0xa bank_mask:0xf" % (t_(r), t_(r), t_(r)))
        both(lambda r: "v_add_f32_dpp v%d, v%d, v%d row_bcast:31 row_mask:0xc bank_mask:0xf" % (t_(r), t_(r), t_(r)))
        both(lambda r: "v_readlane_b32 s%d, v%d, 63" % (67 + r, t_(r)))
    def unpack():
        for i in range(8): both(lambda r: "v_lshlrev_b32 v%d, 16, v%d\nv_and_b32 v%d, 0xffff0000, v%d" % (F(r) + 2 * i, RW(r) + i, F(r) + 2 * i + 1, RW(r) + i))
    def pack():
        for i in range(8): both(lambda r: "v_cvt_pk_bf16_f32 v%d, v%d, v%d" % (RW(r) + i, F(r) + 2 * i, F(r) + 2 * i + 1))
    ST = lambda r: 40 + 2 * r
    unpack()
    for i in range(4): both(lambda r: "v_pk_add_f32 %s, %s, %s" % (P(t_(r) + 2 * i), P(F(r) + 4 * i), P(F(r) + 4 * i + 2)))
    both(lambda r: "v_pk_add_f32 %s, %s, %s\nv_pk_add_f32 %s, %s, %s" % (P(t_(r)), P(t_(r)), P(t_(r) + 2), P(t_(r) + 4), P(t_(r) + 4), P(t_(r) + 6)))
    both(lambda r: "v_pk_add_f32 %s, %s, %s\nv_add_f32 v%d, v%d, v%d" % (P(t_(r)), P(t_(r)), P(t_(r) + 4), t_(r), t_(r), t_(r) + 1))
    dsum()
    both(lambda r: "v_mul_f32 v%d, s%d, v44" % (ST(r), 67 + r))
    for i in range(8): both(lambda r: "v_pk_add_f32 %s, %s, %s op_sel_hi:[1,0] neg_lo:[0,1] neg_hi:[0,1]" % (P(D(r) + 2 * i), P(F(r) + 2 * i), P(ST(r))))
    both(lambda r: "v_pk_mul_f32 %s, %s, %s" % (P(t_(r)), P(D(r)), P(D(r))))
    for i in range(1, 8): both(lambda r: "v_pk_fma_f32 %s, %s, %s, %s" % (P(t_(r)), P(D(r) + 2 * i), P(D(r) + 2 * i), P(t_(r))))
    both(lambda r: "v_add_f32 v%d, v%d, v%d" % (t_(r), t_(r), t_(r) + 1))
    dsum()
    both(lambda r: "v_mul_f32 v%d, s%d, v44" % (ST(r) + 1, 67 + r))
    both(lambda r: "v_cvt_pk_bf16_f32 v%d, v%d, v%d\nv_lshlrev_b32 v%d, 16, v%d\nv_and_b32 v%d, 0xffff0000, v%d" % (t_(r), ST(r), ST(r) + 1, ST(r), t_(r), ST(r) + 1, t_(r)))
    both(lambda r: ("v_add_f32 V, %s, V\nv_cvt_pk_bf16_f32 V, V, V\nv_and_b32 V, 0xffff0000, V\nv_sqrt_f32 V, V\nv_cvt_pk_bf16_f32 V, V, V\nv_and_b32 V, 0xffff0000, V\nv_rcp_f32 V, V" % fx(1e-5)).replace("V", "v%d" % (ST(r) + 1)))
    for i in range(8): both(lambda r: "v_pk_add_f32 %s, %s, %s op_sel_hi:[1,0] neg_lo:[0,1] neg_hi:[0,1]" % (P(F(r) + 2 * i), P(F(r) + 2 * i), P(ST(r))))
    pack(); unpack()
    for i in range(8): both(lambda r: "v_pk_mul_f32 %s, %s, %s op_sel:[0,1] op_sel_hi:[1,1]" % (P(F(r) + 2 * i), P(F(r) + 2 * i), P(ST(r))))
    pack()
    for r in range(2):
        for h in range(2): s.lg("ds_write_b128 v%d, %s offset:%d" % (52 + r, Q(RW(r) + 4 * h), 8192 * h))
    s("s_mov_b64 exec, 1")
    for r in range(2): s.vm("buffer_store_dwordx2 %s, v46, s[36:39], s74 offen offset:%d %s" % (P(ST(r)), 64 * r, SC))
    s("s_mov_b64 exec, -1")
    s.wait(None, drain=["lg"])
    stamp(s, "lnc")
    s("s_barrier")
    for k in range(4): s.lg("ds_read_b128 %s, v54 offset:%d" % (Q(64 + 4 * k), 4096 * k), ("ln", k))
    for k in range(4): s.vm("buffer_store_dwordx4 %s, v55, s[48:51], s%d offen %s" % (Q(64 + 4 * k), 70 + k, SC), ("xn", k), needs=[("ln", k)])
    stamp(s, "xnst")
    nD_a = cfg.get("d_t2", 1)
    nD_b = cfg.get("d_t3", 3)
    for st in range(nD_a): pro_stage(st)
    s("s_mul_i32 s%d, s%d, 0x9E3779B1\ns_add_u32 s%d, s%d, 0x7F4A7C15" % (sTAG, sTAG, sTAG, sTAG))
    s("v_mov_b32 v60, 0\nv_mov_b32 v61, 0\nv_mov_b32 v62, 0\nv_mov_b32 v63, 0")
    zl = ["v_mfma_f32_32x32x16_bf16 %s, v[60:63], v[60:63], 0" % R(k, r, 16) for k, r in [("a", 16 * i) for i in range(6)] + [("v", 255 - 15 - 16 * i) for i in range(12)]]
    cq = Seq()
    cL, cC, cL8, cL16, cL64, cL512 = 16, 20, 24, 28, 32, 36
    for k in range(4): cq("v_lshlrev_b32 v%d, 16, v%d" % (42 + k, 16 + k))
    cq("v_lshlrev_b32 v46, 16, v20\nv_lshlrev_b32 v58, 16, v21")
    cq("v_mul_f32 v46, %s, v46\nv_mul_f32 v58, %s, v58" % (fx(LOG2E), fx(LOG2E)))
    cq("v_exp_f32 v46, v46\nv_exp_f32 v58, v58")
    cq("v_cvt_pk_bf16_f32 v59, v46, v58\nv_lshlrev_b32 v58, 16, v59\nv_and_b32 v59, 0xffff0000, v59")
    cq("v_pk_mul_f32 v[24:25], v[58:59], v[42:43]\nv_pk_mul_f32 v[26:27], v[58:59], v[44:45]")
    cq("v_mul_f32 v24, %s, v24\nv_mul_f32 v25, %s, v25" % (fx(LOG2E), fx(LOG2E)))
    cq("v_exp_f32 v24, v24\nv_exp_f32 v25, v25")
    cq("v_mul_f32 v26, 0.15915494, v26\nv_mul_f32 v27, 0.15915494, v27")
    cq("v_rndne_f32 v52, v26\nv_rndne_f32 v53, v27\nv_sub_f32 v26, v26, v52\nv_sub_f32 v27, v27, v53")
    cq("v_cos_f32 v52, v26\nv_cos_f32 v53, v27\nv_sin_f32 v54, v26\nv_sin_f32 v55, v27")
    cq("v_pk_mul_f32 %s, v[24:25], v[52:53]\nv_pk_mul_f32 v[54:55], v[24:25], v[54:55]" % P(cL))
    cq("v_pk_add_f32 v[52:53], %s, -1.0 op_sel_hi:[1,0]" % P(cL))
    cq("v_pk_mul_f32 v[24:25], v[42:43], v[42:43]\nv_pk_fma_f32 v[24:25], v[44:45], v[44:45], v[24:25]")
    cq("v_rcp_f32 v24, v24\nv_rcp_f32 v25, v25")
    cq("v_pk_mul_f32 v[26:27], v[52:53], v[42:43]\nv_pk_fma_f32 v[26:27], v[54:55], v[44:45], v[26:27]")
    cq("v_pk_mul_f32 v[56:57], v[54:55], v[42:43]\nv_pk_fma_f32 v[56:57], v[52:53], v[44:45], v[56:57] neg_lo:[1,0,0] neg_hi:[1,0,0]")
    cq("v_pk_add_f32 v[24:25], v[24:25], v[24:25]")
    cq("v_pk_mul_f32 %s, v[26:27], v[24:25]\nv_pk_mul_f32 %s, v[56:57], v[24:25]" % (P(cC), P(cC + 2)))
    cq("v_sub_f32 v%d, 0, v54\nv_sub_f32 v%d, 0, v55" % (cL + 2, cL + 3))
    def sq(d, x): cmul_pk(cq, d, d + 2, x, x + 2, x, x + 2, 52)
    sq(cL8, cL); sq(cL8, cL8); sq(cL8, cL8); sq(cL16, cL8); sq(cL64, cL16); sq(cL64, cL64); sq(cL512, cL64); sq(cL512, cL512); sq(cL512, cL512)
    consts = cq.units()
    EP_LDS = cfg.get("ep_lds", 98304); EPW = 16384 if EP_LDS <= 98304 else 8192
    PK = dict(D=224, C=225, H=226, TA=227, CA=228, TOK=229, COL=230, TRW=231, TRR=232, AG=233)
    cq("v_lshrrev_b32 v40, 1, v48\nv_xor_b32 v40, v40, v49\nv_lshlrev_b32 v40, 4, v40\nv_lshl_add_u32 v40, v48, 7, v40")
    cq("v_add_u32 v%d, %d, v40\nv_xor_b32 v%d, 64, v%d\nv_accvgpr_write_b32 a%d, v40" % (vBA0, B_BASE, vBA1, vBA0, PK["CA"]))
    cq("v_lshrrev_b32 v40, 1, v49\nv_lshlrev_b32 v40, 4, v40\nv_and_b32 v41, 1, v49\nv_lshlrev_b32 v41, 2, v41\nv_lshrrev_b32 v50, 2, v48\nv_add3_u32 v11, v40, v41, v50")
    cq("v_mul_u32_u24 v40, 224, v11\nv_and_b32 v51, 3, v0\nv_lshl_add_u32 v%d, v51, 3, v40" % vWA)
    cq("s_mul_i32 s69, s%d, %d\ns_add_u32 s69, s69, %d" % (sW, EPW, EP_LDS + 2048))
    cq("v_lshlrev_b32 v40, 5, v11\nv_lshl_add_u32 v40, v51, 3, v40\nv_add_u32 v40, s69, v40\nv_accvgpr_write_b32 a%d, v40" % PK["TRR"])
    cq("v_lshrrev_b32 v40, 1, v48\nv_xor_b32 v40, v40, v48\nv_and_b32 v40, 4, v40\nv_mul_u32_u24 v40, 3, v40\nv_xor_b32 v40, v40, v48\nv_lshlrev_b32 v40, 5, v40\nv_lshl_add_u32 v40, v49, 3, v40\nv_add_u32 v40, s69, v40\nv_accvgpr_write_b32 a%d, v40" % PK["TRW"])
    cq("v_lshrrev_b32 v40, 2, v0\nv_and_b32 v41, 7, v40\nv_lshlrev_b32 v41, 5, v41\nv_lshl_add_u32 v41, v40, 8, v41\nv_lshl_add_u32 v41, v51, 3, v41\nv_accvgpr_write_b32 a%d, v41" % PK["TA"])
    cq("s_lshl_b32 s65, s%d, 2\nv_add_u32 v40, s65, v49\nv_and_b32 v41, 7, v40\nv_bfe_u32 v51, v0, 1, 3\nv_xor_b32 v41, v41, v51\ns_lshl_b32 s66, s%d, 1\nv_xor_b32 v41, s66, v41\nv_lshlrev_b32 v41, 5, v41" % (sW, sQ))
    cq("v_and_b32 v51, 1, v0\nv_lshl_add_u32 v41, v51, 4, v41\ns_mul_i32 s67, s%d, 896\nv_add_u32 v40, s67, v40\nv_lshl_add_u32 v40, v40, 11, v41\ns_lshl_b32 s67, s%d, 8\nv_add_u32 v40, s67, v40\nv_accvgpr_write_b32 a%d, v40" % (sQ, sTN, PK["D"]))
    cq("s_lshl_b32 s65, s%d, 18\ns_lshl_b32 s66, s%d, 9\ns_add_u32 s65, s65, s66\nv_add_u32 v40, s65, v47\nv_accvgpr_write_b32 a%d, v40" % (sTN, sQ, PK["C"]))
    cq("s_mul_i32 s65, s%d, 176\ns_mul_i32 s66, s%d, 44\ns_add_u32 s65, s65, s66\ns_lshl_b32 s65, s65, 12\nv_add_u32 v40, s65, v1\nv_accvgpr_write_b32 a%d, v40" % (sB, sQ, PK["H"]))
    cq("v_lshlrev_b32 v40, 4, v50\nv_lshl_add_u32 v40, v51, 3, v40\nv_bfe_u32 v41, v48, 1, 1\ns_lshl_b32 s65, s%d, 6\nv_add3_u32 v40, v40, v41, s65\nv_accvgpr_write_b32 a%d, v40" % (sB, PK["TOK"]))
    cq("s_lshl_b32 s65, s%d, 7\ns_lshl_b32 s66, s%d, 5\ns_add_u32 s65, s65, s66\nv_lshl_add_u32 v40, v49, 2, s65\nv_accvgpr_write_b32 a%d, v40" % (sTN, sQ, PK["COL"]))
    cq("s_sub_u32 s65, 32, s%d\ns_lshl_b32 s65, s65, 13\ns_lshl_b32 s66, s%d, 8\ns_add_u32 s65, s65, s66\nv_lshl_add_u32 v40, v48, 4, s65\nv_lshl_add_u32 v40, v49, 16, v40\nv_accvgpr_write_b32 a%d, v40" % (sB, sJ, PK["AG"]))
    cq("s_lshl_b32 s65, s2, 1\ns_and_b32 s66, s%d, 1\ns_add_u32 s65, s65, s66\ns_lshl_b32 s65, s65, 10\nv_and_b32 v40, 7, v0\nv_lshl_add_u32 v40, v40, 7, s65" % sW)
    cq("s_mul_i32 s65, s2, 640\nv_min_u32 v41, 4, v0\nv_lshl_add_u32 v41, v41, 7, s65")
    cq("s_bitcmp1_b32 s%d, 0\ns_cselect_b32 s65, s90, s88\ns_cselect_b32 s66, s91, s89\ns_mov_b32 s67, %d\ns_mov_b32 s68, 524288" % (sW, 3584 * 2048))
    cq("s_cmp_ge_u32 s%d, 2\ns_cselect_b64 vcc, -1, 0\nv_cndmask_b32 v%d, v40, v41, vcc" % (sW, vPB))
    cq("s_cselect_b32 s44, s65, s84\ns_cselect_b32 s45, s66, s85\ns_cselect_b32 s46, %d, s67\ns_cselect_b32 s%d, 163840, s68" % (1024 * 2048, sPBs))
    cq("s_and_b32 s45, s45, 0xffff\ns_mov_b32 s47, 0x20000\ns_mov_b32 s%d, 0" % sKPB)
    cq("s_lshl_b32 s65, s%d, 17\ns_add_u32 s8, s6, s65\ns_addc_u32 s9, s7, 0\ns_and_b32 s9, s9, 0xffff\ns_mov_b32 s10, 0x20000" % sB)
    cq("s_mov_b32 s%d, 8" % sCNT)
    addr = cq.units()
    per = max(1, len(addr) // len(zl))
    for i, u in enumerate(addr):
        if i % per == 0 and zl: s(zl.pop(0))
        s.u.append(u)
    assert not zl
    s("s_lshl_b32 s65, s2, 4\ns_lshl_b32 s67, s%d, 2\ns_add_u32 s65, s65, s67\ns_add_u32 s65, s65, 0x%x\nv_mov_b32 v40, s%d\nv_mov_b32 v41, 0" % (sW, SM_F1, sTAG))
    flag(s, "buffer_store_dword v40, v41, s[36:39], s65 offen %s" % SC, [("xn", 3), "agfill"])
    stamp(s, "flag1")
    for st in range(nD_a, nD_b): pro_stage(st)
    half = cfg.get("poll_at", 50)
    s.u += consts[:half]
    s("v_and_b32 v40, 31, v0\nv_lshlrev_b32 v40, 2, v40\ns_lshl_b32 s65, s%d, 7\ns_add_u32 s65, s65, 0x%x" % (sB, SM_F1))
    f1load = "buffer_load_dword v41, v40, s[36:39], s65 offen %s" % SC
    s.vm(f1load, "f1")
    s.u += consts[half:]
    poll(s, "P1", f1load, 41, "f1")
    stamp(s, "poll1")
    for u in range(3):
        for m in range(4): xload(s, u, m, K(("X", u, m)))
        if u >= 1 and u >= nD_b: pro_stage(u)
    PFL = cfg.get("pfl", 5)
    for _ in range(PFL - cfg.get("pf_t0", 0) - cfg.get("pf_t1", 3)): pfa(s)
    tiles = []
    for q in range(7): tiles += [("G", q), ("U", q)]
    tiles += [("R", 0), ("I", 0), ("R", 1), ("I", 1)]
    def acc(t, m):
        k, q = t
        if k == "R": return ("v", 64 + 16 * q + 4 * m)
        if k == "I": return ("v", 96 + 16 * q + 4 * m)
        o = 32 * q + (16 if k == "U" else 0) + 4 * m
        return ("v", 128 + o) if q < 4 else ("a", o - 128)
    L0 = cfg.get("l1_lead", 3)
    def read1(sidx, kk, ti, part, tagstage):
        t = tiles[ti]; f = (sidx * 36 + kk * 18 + ti) % NWB
        tagf = lambda it: ("F", tagstage(it), kk, ti, part)
        if t[0] in "GU":
            off = sidx * W_ST + (U_OFF if t[0] == "U" else 0) + kk * 7168 + part * 1792 + t[1] * 32
            return Op("ds_read_b64_tr_b16 %s, v%d offset:%d" % (R("a", aW + 4 * f + 2 * part, 2), vWA, off), "lg", tagf)
        off = sidx * B_ST + (4096 if t[0] == "I" else 0) + t[1] * 2048
        return Op("ds_read_b128 %s, v%d offset:%d" % (R("a", aW + 4 * f, 4), vBA1 if kk else vBA0, off), "lg", tagf)
    rgroups = []
    for kk in range(2):
        for ti in range(14): rgroups.append((kk * 18 + ti - L0, [(kk, ti, 0), (kk, ti, 1)]))
        if kk == 0:
            for ti in range(14, 18): rgroups.append((ti - L0, [(kk, ti, None)]))
        else:
            for h in range(2): rgroups.append((32 + h - L0, [(kk, 14 + 2 * h, None), (kk, 15 + 2 * h, None)]))
    for g, items in rgroups:
        for (kk, ti, part) in items: assert kk * 18 + ti - NWB < g
    s.wait([("D", 0, k) for k in range(9)])
    s("s_barrier")
    stamp(s, "loop1")
    for g, items in rgroups:
        if g <= 0:
            for (kk, ti, part) in items: s.op(read1(0, kk, ti, part, K(0)))
    s.wait([("F", 0, 0, 0, 0), ("F", 0, 0, 0, 1)] + [("X", 0, m) for m in range(4)])
    prog.add(s.done())
    mf = []; gneeds = {}
    for sidx in range(2):
        for kk in range(2):
            for ti, t in enumerate(tiles):
                G = sidx * 36 + kk * 18 + ti; u = 2 * sidx + kk
                parts = [0, 1] if t[0] in "GU" else [None]
                gneeds[G] = (lambda it, sidx=sidx, kk=kk, ti=ti, parts=parts, u=u: [("F", 2 * it + sidx, kk, ti, p) for p in parts] + ([("X", 4 * it + u, m) for m in range(4)] if ti == 0 else []))
                for m in range(4):
                    xr = ("a", aX + 16 * u + 4 * m); wr = ("a", aW + 4 * (G % NWB))
                    mf.append(Op(mfma16(acc(t, m), wr, xr) if t[0] in "GU" else mfma16(acc(t, m), xr, wr)))
    sc = Sch(mf)
    for G in range(1, 73):
        nf = gneeds[G] if G < 72 else (lambda it: gneeds[0](it + 1))
        w = Op("", needs=nf); w.keep = True
        sc.put(4 * G - 1 if G < 72 else 286, [w], 0)
    for sidx in range(3):
        for g, items in rgroups:
            G = sidx * 36 + g
            if 0 < G <= 72:
                st = (lambda it, sidx=sidx: 2 * it + sidx)
                sc.put(4 * G - 1 if G < 72 else 286, [read1(sidx % 2, kk, ti, part, st) for (kk, ti, part) in items], 1)
    bar = {}
    for sidx in range(2):
        gb = 4 * (36 * (sidx + 1) - L0) - 2
        bar[sidx] = gb
        sc.put(gb, [Op("s_barrier", needs=lambda it, sidx=sidx: [("D", 2 * it + sidx + 1, k) for k in range(9)], drain=["lg"])], 0)
    sc.put(bar[1] - 1, [Op("v_xor_b32 v%d, 0x10000, v%d" % (vWA, vWA)), Op("v_xor_b32 v%d, 0x4000, v%d" % (vBA0, vBA0))], 2)
    sc.put(bar[1] - 2, [Op("v_xor_b32 v%d, 0x4000, v%d" % (vBA1, vBA1))], 2)
    sc.put(287, [Op("s_sub_u32 s%d, s%d, 1" % (sCNT, sCNT)), Op("s_cmp_lg_u32 s%d, 0" % sCNT), Op("s_cbranch_scc1 L_loop1")], 3)
    vorder = "xdxdxdxdadd" + "xdxdxdxb"
    for sidx in range(2):
        nd = nx = 0
        n = len(vorder); span = bar[sidx] - 144 * sidx - 6
        for i, kind in enumerate(vorder):
            e = 144 * sidx + 1 + int(i * span / n)
            if kind == "d":
                dma1(s, nd, 1 - sidx, (lambda it, sidx=sidx, k=nd: ("D", 2 * it + sidx + 3, k)), e); nd += 1
                if nd == 9 and sidx == 0: toggle_m0(s)
            elif kind == "x":
                kk, m = divmod(nx, 4); nx += 1; u = 2 * sidx + kk
                xload(s, (u + 3) % 4, m, (lambda it, u=u, m=m: ("X", 4 * it + u + 3, m)), max(e, 72 * u))
            elif kind == "a":
                if cfg.get("pf1", 1): s.at(e); pfa(s)
            elif kind == "b":
                if cfg.get("pf2", 1): s.at(e); pfb(s)
        assert nd == 9 and nx == 8
        r = sc.stream(s.units(), 144 * sidx, 2, hi=bar[sidx] + 8)
    prog.add(sc.ops(), range(8), "L_loop1")
    vEW, vER, vTG, vFO, vTRW, vTRR, vH8, vD0, vH, vD1, vPAd, vPD, vAG = 2, 3, 4, 5, 6, 7, 8, 9, 10, 11, 12, 13, 14
    vTA = 40
    s("v_accvgpr_read_b32 v41, a%d\nv_accvgpr_read_b32 v42, a%d" % (PK["D"], PK["H"]))
    s("v_and_b32 v43, 31, v0\nv_lshlrev_b32 v43, 7, v43\ns_lshl_b32 s71, s%d, 2\ns_add_u32 s71, s71, 0x%x" % (sJ, SM_F1))
    ws_srd(s, 32, WS_H, 32 * H_BLK)
    s.wait(None, drain=["vm", "lg"])
    s("s_barrier")
    stamp(s, "end1")
    srd(s, 12, 84, 85, 3584 * 2048)
    sM, sKD, sKH = 54, 55, 56
    s("v_mov_b32 v%d, v41\nv_mov_b32 v%d, v42\nv_add_u32 v%d, 32768, v41\ns_lshl_b32 s%d, s%d, 10" % (vD0, vH, vD1, sM, sW))
    steps = []
    for g in range(4): steps += [("g", 7 * g), ("g", 7 * g + 1), ("g", 7 * g + 4), ("g", 7 * g + 5)]
    for g in range(4): steps += [("g", 7 * g + 2), ("s", 7 * g + 3)]
    steps += [("g", 7 * g + 6) for g in range(4)]
    steps += [("r", k) for k in range(8)] + [("i", k) for k in range(8)]
    NST = 22; KC = cfg.get("kc", 8); NSL = max(4, KC // 2 + 2)
    assert NSL * 16384 <= EP_LDS
    slot = {st: st % 4 for st in range(14)}; prevocc = {st: (st - 4 if st >= 4 else None) for st in range(14)}
    freeq = [(sl, None) for sl in range(4, NSL)] + [(st % 4, st) for st in range(10, 14)]
    for st in range(14, NST):
        sl, po = freeq.pop(0); slot[st] = sl; prevocc[st] = po; freeq.append((sl, st))
    aW2 = 0; aAG = 32
    vC, vCA = 16, 20
    def dma2(s, st, k, early=None):
        kind, idx = steps[2 * st + k // 2]
        if kind in "gs":
            if k % 2 == 0: s("s_mov_b32 s%d, %d" % (sKD, idx * 32 * 2048))
            v, sr = (vD0, vD1)[k % 2], 12
        else:
            if k == 0: s("s_mov_b32 s%d, %d" % (sKD, idx * 64))
            v, sr = vC + k, (16 if kind == "r" else 20)
        s("s_add_u32 m0, s%d, %d" % (sM, slot[st] * 16384 + k * 4096))
        s.op(Op("buffer_load_dwordx4 v%d, s[%d:%d], s%d offen lds" % (v, sr, sr + 3, sKD), "vm", K(("D2", st, k))), early)
    hreg = {u: 96 + 16 * (u % 8) for u in range(28)}; hprev = {u: (u - 8 if u >= 8 else None) for u in range(28)}
    nextra = cfg.get("hextra", min(4, max(0, KC - 5)))
    hq = [(r, None) for r in (64, 80, 32, 48)[:nextra]] + [(hreg[u], u) for u in range(20, 28)]
    for u in range(28, 44):
        r, po = hq.pop(0); hreg[u] = r; hprev[u] = po; hq.append((r, u))
    def hload(s, u, m, early=None):
        kind, idx = steps[u]
        kb = idx + {"g": 0, "s": 0, "r": 28, "i": 36}[kind]
        if m == 0: s("s_mov_b32 s%d, %d" % (sKH, kb * 4096))
        d = hreg[u] + 4 * m
        if kind == "s":
            s.op(Op("buffer_load_dwordx2 %s, v%d, s[32:35], s%d offen offset:%d" % (R("a", d, 2), vH8, sKH, 1024 * m), "vm"), early)
            s.op(Op("buffer_load_dwordx2 %s, v%d, s[32:35], s%d offen offset:%d" % (R("a", d + 2, 2), vH8, sKH, 1024 * m + 512), "vm", K(("H", u, m))))
        else: s.op(Op("buffer_load_dwordx4 %s, v%d, s[32:35], s%d offen offset:%d" % (R("a", d, 4), vH, sKH, 1024 * m), "vm", K(("H", u, m))), early)
    f1bload = "buffer_load_dword v44, v43, s[36:39], s71 offen %s" % SC
    s.vm(f1bload, "f1b")
    c1 = -2.0 * math.sqrt(2.0 / math.pi) * LOG2E
    CC = 46
    s("v_mov_b32 v46, %s\nv_mov_b32 v47, %s" % (fx(c1), fx(c1 * 0.044715)))
    s("s_mul_i32 s65, s%d, 7\ns_add_u32 s66, s65, 1\ns_lshr_b32 s66, s66, 1\ns_lshl_b32 s66, s66, 12" % sTN)
    hst = cfg.get("hst", SC)
    OUT = [56, 60]; cnt = [0]
    def gelu_pair(base0, base1, pid, hook=None):
        for m in range(4):
            o = OUT[cnt[0] % 2]; cnt[0] += 1
            items = [(base0 + 4 * m, base0 + 16 + 4 * m, o), (base0 + 4 * m + 2, base0 + 18 + 4 * m, o + 1),
                     (base1 + 4 * m, base1 + 16 + 4 * m, o + 2), (base1 + 4 * m + 2, base1 + 18 + 4 * m, o + 3)]
            gelu_block(s, items, CC, 48)
            s.vm("buffer_store_dwordx4 %s, v%d, s[32:35], s66 offen offset:%d %s" % (Q(o), vH, 1024 * m, hst), ("hs", pid, m))
            if hook: hook(m)
        s("s_add_u32 s66, s66, 4096")
    NPRE = 4
    def pre_dma(base):
        def h(m):
            for k in (0, 1): dma2(s, base + m // 2, 2 * (m % 2) + k)
        return h
    gelu_pair(128, 160, 0, pre_dma(0))
    gelu_pair(192, 224, 1, pre_dma(2))
    stamp(s, "p01")
    def pkfma(d, s0, s1, s2, T, neg=False):
        s("v_pk_fma_f32 %s, %s, %s, %s op_sel:[%d,0,0] op_sel_hi:[%d,1,1]%s" % (P(d), P(s0), P(s1), P(s2), T, T, " neg_lo:[1,0,0] neg_hi:[1,0,0]" if neg else ""))
    def pkmul(d, s0, s1, T, neg=False):
        s("v_pk_mul_f32 %s, %s, %s op_sel:[%d,0] op_sel_hi:[%d,1]%s" % (P(d), P(s0), P(s1), T, T, " neg_lo:[1,0] neg_hi:[1,0]" if neg else ""))
    BR = lambda T, x: 64 + 16 * T + 2 * x
    BI = lambda T, x: 96 + 16 * T + 2 * x
    for x in range(8):
        for T in range(2):
            pkmul(128 + 2 * T, cC + 2, BI(T, x), T, True); pkmul(BI(T, x), cC, BI(T, x), T, True)
        for T in range(2):
            pkfma(BI(T, x), cC + 2, BR(T, x), BI(T, x), T, True); pkfma(BR(T, x), cC, BR(T, x), 128 + 2 * T, T)
    sr = [BR(0, 0), BR(1, 0)]; si = [BI(0, 0), BI(1, 0)]
    bufs = [[132, 134], [138, 140]]; SI = [136, 142]
    for x in range(1, 8):
        nr = [bufs[T][x % 2] for T in range(2)]
        for T in range(2): pkfma(nr[T], cL, sr[T], BR(T, x), T)
        for T in range(2): pkfma(nr[T], cL + 2, si[T], nr[T], T, True)
        for T in range(2): pkfma(SI[T], cL, si[T], BI(T, x), T)
        for T in range(2): pkfma(SI[T], cL + 2, sr[T], SI[T], T)
        sr = nr; si = list(SI)
    EA = 20
    for T in range(2):
        s("v_mov_b32 v%d, v%d\nv_mov_b32 v%d, v%d\nv_mov_b32 v%d, v%d\nv_mov_b32 v%d, v%d" % (EA + T, sr[T], EA + 2 + T, si[T], 144 + T, sr[T] + 1, 146 + T, si[T] + 1))
    horner_pk(s, EA, cL8, 144, 144)
    s("s_mul_i32 s69, s%d, %d\ns_add_u32 s69, s69, %d\nv_add_u32 v%d, s69, v1\nv_and_b32 v%d, 0xf0, v1\nv_add_u32 v%d, s69, v%d" % (sW, EPW, EP_LDS, vEW, vER, vER, vER))
    s.lg("ds_write_b128 v%d, v[144:147]" % vEW)
    for g in range(4): s.lg("ds_read_b128 %s, v%d offset:%d" % (Q(148 + 4 * g), vER, 256 * g), ("e", g))
    s("s_lshl_b32 s68, s%d, 2\ns_add_u32 s68, s68, s%d\ns_lshl_b32 s68, s68, 7\ns_add_u32 s68, s68, 0x%x" % (sB, sQ, SM_F3))
    s("v_mov_b32 v%d, s%d\ns_lshl_b32 s69, s%d, 2\nv_mov_b32 v%d, s69\nv_and_b32 v%d, 7, v0\nv_lshlrev_b32 v%d, 2, v%d" % (vTG, sTAG, sTN, vFO, vPAd, vPAd, vPAd))
    s("s_sub_u32 s64, 31, s%d\ns_lshl_b32 s64, s64, 13\ns_lshl_b32 s65, s%d, 8\ns_add_u32 s64, s64, s65" % (sB, sJ))
    s("s_and_b32 s69, s%d, 1\ns_mul_i32 s67, s69, %d\ns_add_u32 s67, s67, %d\ns_add_u32 s67, s67, s66" % (sTN, -4 * 4096 + 512, 4096))
    s("s_add_u32 s72, s%d, 28\ns_lshl_b32 s72, s72, 12\ns_add_u32 s73, s72, %d" % (sTN, 8 * 4096))
    s("v_lshrrev_b32 v%d, 1, v1\nv_sub_u32 v%d, v%d, v%d" % (vH8, vH8, vH, vH8))
    fstore = lambda off: "buffer_store_dword v%d, v%d, s[36:39], s68 offen offset:%d %s" % (vTG, vFO, off, SC)
    fload = lambda off: "buffer_load_dword v%d, v%d, s[36:39], s68 offen offset:%d %s" % (vPD, vPAd, off, SC)
    flag(s, fstore(0), [("hs", 1, 3)])
    for g in range(1, 4):
        s.wait([("e", g)]); horner_pk(s, 148 + 4 * (g - 1), cL16, 148 + 4 * g, 148 + 4 * g)
    for r in range(160, 164): s("v_min_u32 v%d, -2, v%d" % (r, r))
    s.atom(["s_mov_b64 exec, 0xffff", Op("buffer_store_dwordx4 v[160:163], v1, s[36:39], s64 offen %s" % SC, "vm"), "s_mov_b64 exec, -1"])
    stamp(s, "pub")
    poll(s, "P1b", f1bload, 44, "f1b")
    for r in range(64): s("v_accvgpr_read_b32 v%d, a%d" % (192 + r, r))
    nh_pre = [0]
    def issue_h(n):
        for u in range(nh_pre[0], nh_pre[0] + n):
            for m in range(4): hload(s, u, m)
        nh_pre[0] += n
    pa_l, pa_c = cfg.get("pa_l", 0), cfg.get("pa_c", 2)
    def hookA(m):
        if m == pa_l: s.vm(fload(0), "f3a")
        if m == pa_c:
            poll(s, "P3a", fload(0), vPD, "f3a"); stamp(s, "ok3a"); issue_h(1)
        if m > pa_c: issue_h(1)
    gelu_pair(192, 224, 2, hookA)
    for r in range(32): s("v_accvgpr_read_b32 v%d, a%d" % (192 + r, 64 + r))
    issue_h(1)
    for mp in range(2):
        o = OUT[mp]; items = []
        for mm in range(2):
            m = 2 * mp + mm
            items += [(192 + 4 * m, 208 + 4 * m, o + 2 * mm), (194 + 4 * m, 210 + 4 * m, o + 2 * mm + 1)]
        gelu_block(s, items, CC, 48)
        for mm in range(2):
            s.vm("buffer_store_dwordx2 %s, v%d, s[32:35], s67 offen offset:%d %s" % (P(o + 2 * mm), vH8, 1024 * (2 * mp + mm), hst), ("hsS", 2 * mp + mm))
        if mp == 0:
            issue_h(1)
            s("v_accvgpr_read_b32 v%d, a%d" % (vTA, PK["TA"]))
            for u in range(1, 6): s("v_xor_b32 v%d, %d, v%d" % (vTA + u, 32 * u, vTA))
            s.wait([("D2", 0, k) for k in range(4)])
            s("s_barrier")
    for u in range(6, 8): s("v_xor_b32 v%d, %d, v%d" % (vTA + u, 32 * u, vTA))
    F0 = 44 - KC
    groups = [(uu, u) for uu in range(F0) for u in range(8)]
    for d in (1, 2, 3, 0): groups += [(uu, u) for uu in range(F0, 44) for u in (2 * d, 2 * d + 1)]
    NG = len(groups)
    L2 = cfg.get("l2_lead", 3)
    def read2(G, part):
        uu, u = groups[G]; st, kk = divmod(uu, 2); f = G % NWB
        if st < 14:
            return Op("ds_read_b64_tr_b16 %s, v%d offset:%d" % (R("a", aW2 + 4 * f + 2 * part, 2), vTA + u, slot[st] * 16384 + kk * 8192 + part * 4096), "lg", K(("F2", G, part)))
        hi = slot[st] >= 4
        return Op("ds_read_b128 %s, v%d offset:%d" % (R("a", aW2 + 4 * f, 4), vCA + 2 * hi + kk, (slot[st] % 4) * 16384 + u * 2048), "lg", K(("F2", G, part)))
    parts = lambda G: [0, 1] if groups[G][0] < 28 else [None]
    mf = []; seen = set(); lastuse = {}; firstuse = {}
    for G, (uu, u) in enumerate(groups):
        firstuse.setdefault(uu, G); lastuse[uu] = G
        for m in range(4):
            mf.append(Op(mfma16(("v", 128 + 16 * u + 4 * m), ("a", aW2 + 4 * (G % NWB)), ("a", hreg[uu] + 4 * m), zero=(uu == 0))))
    sc = Sch(mf)
    def gneed(G):
        uu, u = groups[G]
        return [("F2", G, p) for p in parts(G)] + ([("H", uu, m) for m in range(4)] if firstuse[uu] == G else [])
    rgap = {}
    SF = F0 // 2
    for G in range(NG):
        st, f = divmod(G, 16)
        if st < SF:
            if st < 14:
                if f <= 4: rgap[G] = 4 * (G - L2) - 1
                elif f == 5: rgap[G] = 4 * (G - 1 - L2) + 1
                elif f <= 10: rgap[G] = 4 * (G - 1 - L2) - 1
                elif f == 11: rgap[G] = 4 * (G - 2 - L2) + 1
                else: rgap[G] = 4 * (G - 2 - L2) - 1
            else:
                sh = 0 if f <= 4 else (1 if f <= 10 else 2)
                rgap[G] = 4 * (G - sh - L2) - 1
        else: rgap[G] = 4 * (G - L2) - 1
        assert rgap[G] >= 4 * (G - NWB) + 3
    for G in range(NG):
        if rgap[G] < 0:
            for p in parts(G): s.op(read2(G, p))
    s.wait(gneed(0))
    stamp(s, "loop2")
    prog.add(s.done())
    for G in range(1, NG):
        w = Op("", needs=K(gneed(G))); w.keep = True
        sc.put(4 * G - 1, [w], 0)
    for G in range(NG):
        if rgap[G] >= 0:
            if rgap[G] % 4 != 3: sc.put(rgap[G], [Op("s_waitcnt lgkmcnt(15)")], 0)
            sc.put(rgap[G], [read2(G, p) for p in parts(G)], 1)
    bar = {}
    for st in range(SF):
        if st + 1 >= NST: break
        gb = 4 * (16 * (st + 1) - L2) - 2
        bar[st] = gb
        pub = [st + 1] if st + 1 < SF else list(range(SF, NST))
        sc.put(gb, [Op("s_barrier", needs=K([("D2", x, k) for x in pub for k in range(4)]), drain=["lg"])], 0)
    gl = []
    t = Seq()
    flag(t, fstore(32), [("hsS", 3)], early=cfg.get("fb_gap", 40))
    t("v_accvgpr_read_b32 v%d, a%d\nv_accvgpr_read_b32 v%d, a%d\nv_accvgpr_read_b32 v%d, a%d" % (vAG, PK["AG"], vTRW, PK["TRW"], vTRR, PK["TRR"]))
    t("s_mov_b32 s40, s36\ns_mov_b32 s41, s37\ns_mov_b32 s42, 0x40000\ns_mov_b32 s43, 0x20000")
    t("v_lshrrev_b32 v48, 4, v0\nv_cmp_eq_u32 s[64:65], 1, v48\nv_cmp_eq_u32 s[66:67], 2, v48\nv_cmp_eq_u32 s[74:75], 3, v48")
    t.at(cfg.get("ag_gap", 96))
    for x in range(7, -1, -1):
        t("s_mov_b32 s57, %d" % (8192 * x))
        g = "buffer_load_dwordx4 %s, v%d, s[40:43], s57 offen %s" % (R("a", aAG + 4 * x, 4), vAG, SC)
        gl.append("s_mov_b32 s57, %d\n%s" % (8192 * x, g))
        t.vm(g, ("ag", x))
    t.delay(cfg.get("ag_lat", 40))
    def ag_horner(o, w, pk):
        cur = None
        for x in range(7, -1, -1):
            q = 48 + 4 * (x % 2)
            if w: o.wait([("ag", x)])
            for r in range(4): o("v_accvgpr_read_b32 v%d, a%d" % (q + r, aAG + 4 * x + r))
            o(("v_max3_u32 v56, v%d, v%d, v%d\nv_max_u32 v56, v56, v%d" % (q, q + 1, q + 2, q + 3)) if x == 7 else ("v_max3_u32 v56, v56, v%d, v%d\nv_max3_u32 v56, v56, v%d, v%d" % (q, q + 1, q + 2, q + 3)))
            if cur is not None: horner_sc(o, cur, cL64, q)
            cur = q
    ag_horner(t, True, False)
    t.atom(["PAG_chk:", "v_cmp_eq_u32 vcc, -1, v56", "s_and_b64 vcc, vcc, exec", "s_cbranch_scc1 PAG_retry", "PAG_ok:"])
    ool("PAG_retry:\ns_cmp_eq_u32 s79, 0\ns_cbranch_scc1 PAG_ok\ns_sub_u32 s79, s79, 1\ns_sleep 1\n" + "\n".join(gl) + "\ns_waitcnt vmcnt(0)")
    ag_horner(ool, False, True)
    ool("s_branch PAG_chk")
    stamp(t, "agok")
    t.lg("ds_write_b128 v%d, v[48:51] offset:1024" % vEW)
    for g, r in ((3, 52), (2, 56), (1, 60)): t.lg("ds_read_b128 %s, v%d offset:%d" % (Q(r), vER, 1024 + 256 * g), ("s", g))
    t.lg("ds_read_b128 %s, v%d offset:1024" % (Q(48), vER), ("s", 0))
    t.delay(8)
    t.wait([("s", 2)]); horner_sc(t, 52, cL512, 56)
    t.lg("ds_read_b128 %s, v%d" % (Q(52), vER), ("e2", 0))
    t.wait([("s", 1)]); horner_sc(t, 56, cL512, 60)
    t.lg("ds_read_b128 %s, v%d offset:256" % (Q(56), vER), ("e2", 1))
    t.wait([("s", 0)]); horner_sc(t, 60, cL512, 48)
    t.lg("ds_read_b128 %s, v%d offset:512" % (Q(60), vER), ("e2", 2))
    t.wait([("e2", 0)]); horner_sc(t, 48, cL16, 52)
    t.wait([("e2", 1)]); horner_sc(t, 52, cL16, 56)
    t.wait([("e2", 2)]); horner_sc(t, 56, cL16, 60)
    for g, sm in ((52, 64), (56, 66), (60, 74)):
        for r in range(4): t("v_cndmask_b32 v%d, v%d, v%d, s[%d:%d]" % (48 + r, 48 + r, g + r, sm, sm + 1))
    horner_sc(t, 48, cL8, EA)
    st_r = {(T, h): (48, EA)[h] + T for T in range(2) for h in range(2)}
    st_i = {(T, h): (48, EA)[h] + 2 + T for T in range(2) for h in range(2)}
    TH = [(T, h) for T in range(2) for h in range(2)]
    for x in range(8):
        for (T, h) in TH: t("v_fmac_f32 v%d, v%d, v%d" % (BR(T, x) + h, cL + T, st_r[T, h]))
        for (T, h) in TH: t("v_fmac_f32 v%d, v%d, v%d" % (BI(T, x) + h, cL + T, st_i[T, h]))
        for (T, h) in TH: t("v_fma_f32 v%d, -v%d, v%d, v%d" % (BR(T, x) + h, cL + 2 + T, st_i[T, h], BR(T, x) + h))
        for (T, h) in TH: t("v_fmac_f32 v%d, v%d, v%d" % (BI(T, x) + h, cL + 2 + T, st_r[T, h]))
        for (T, h) in TH: st_r[T, h] = BR(T, x) + h; st_i[T, h] = BI(T, x) + h
        if x % 2 == 1:
            m = x // 2; mo = (m % (4 if EPW == 16384 else 2)) * 2048
            for part, Fn in enumerate((BR, BI)):
                for T in range(2):
                    o = 56 + 4 * part + 2 * T
                    t("v_cvt_pk_bf16_f32 v%d, v%d, v%d\nv_cvt_pk_bf16_f32 v%d, v%d, v%d" % (o, Fn(T, x - 1), Fn(T, x - 1) + 1, o + 1, Fn(T, x), Fn(T, x) + 1))
                    t.lg("ds_write_b64 v%d, %s offset:%d" % (vTRW, P(o), mo + part * 1024 + 512 * T))
            for part in range(2):
                for half in range(2):
                    t.lg("ds_read_b64_tr_b16 %s, v%d offset:%d" % (R("a", aAG + 8 * m + 4 * part + 2 * half, 2), vTRR, mo + part * 1024 + 256 * half), ("tr", m, part, half))
        if x % 2 == 0 and x > 0 or x == 7:
            m = x // 2 - 1 if x < 7 else 3
            if x == 7: t.delay(8)
            for part in range(2):
                t.vm("buffer_store_dwordx4 %s, v%d, s[32:35], s%d offen offset:%d %s" % (R("a", aAG + 8 * m + 4 * part, 4), vH, 72 + part, 1024 * m, hst), ("hl", m, part), needs=[("tr", m, part, 1)])
    i_lastst = len(t.u) - 1
    t("v_accvgpr_read_b32 v48, a%d\nv_accvgpr_read_b32 v%d, a%d" % (PK["C"], vCA, PK["CA"]))
    for k in range(4): t("s_xor_b32 s65, s%d, %d\ns_lshl_b32 s65, s65, 16\nv_add_u32 v%d, s65, v48" % (sQ, k, vC + k))
    t("v_xor_b32 v%d, 64, v%d\nv_add_u32 v%d, 0x10000, v%d\nv_xor_b32 v%d, 64, v%d" % (vCA + 1, vCA, vCA + 2, vCA, vCA + 3, vCA + 2))
    srd(t, 16, 88, 89, 1024 * 2048); srd(t, 20, 90, 91, 1024 * 2048)
    i_cready = len(t.u) - 1
    flag(t, fstore(64), [("hl", 3, 1)], early=lambda res: res[i_lastst] + cfg.get("fc_lat", 56))
    i_flagc = len(t.u) - 1
    stamp(t, "flagc")
    vTOK, vXO, vSO, vDO, vOO = 24, 25, 26, 27, 28
    t("v_accvgpr_read_b32 v%d, a%d\nv_accvgpr_read_b32 v%d, a%d" % (vTOK, PK["TOK"], vDO, PK["COL"]))
    t("v_lshlrev_b32 v%d, 1, v%d\nv_lshl_add_u32 v%d, v%d, 11, v%d\nv_lshlrev_b32 v%d, 3, v%d\nv_lshlrev_b32 v%d, 1, v%d" % (vDO, vDO, vXO, vTOK, vDO, vSO, vTOK, vOO, vXO))
    srd(t, 24, 4, 5, 2048 * 2048); srd(t, 28, 94, 95, 2048); srd(t, 8, 86, 87, 2048 * 4096)
    t("s_mov_b32 s58, 0x%x" % SM_ST)
    for u in range(2): t.vm("buffer_load_dwordx2 %s, v%d, s[28:31], 0 offen offset:%d" % (P(120 + 2 * u), vDO, 32 * u))
    for m in range(4):
        t("s_mov_b32 s57, %d" % (4096 * m))
        t.vm("buffer_load_dwordx2 %s, v%d, s[36:39], s58 offen offset:%d" % (P(96 + 2 * m), vSO, 16 * m))
        for u in range(2): t.vm("buffer_load_dwordx2 %s, v%d, s[24:27], s57 offen offset:%d" % (P(104 + 4 * m + 2 * u), vXO, 32 * u), ("E", m, u))
    t.delay(cfg.get("e_lat", 40))
    t.wait([("E", 0, 1)])
    for k in range(4): t("v_lshlrev_b32 v%d, 16, v%d\nv_and_b32 v%d, 0xffff0000, v%d" % (32 + 2 * k, 120 + k, 33 + 2 * k, 120 + k))
    RB = lambda u, m: 64 + 16 * u + 4 * m
    for m in range(4):
        S = 96 + 2 * m
        if m: t.wait([("E", m, 1)])
        dst = [RB(k // 4, m) + k % 4 for k in range(8)]
        for k in range(4): t("v_lshlrev_b32 v%d, 16, v%d\nv_and_b32 v%d, 0xffff0000, v%d" % (dst[2 * k], 104 + 4 * m + k, dst[2 * k + 1], 104 + 4 * m + k))
        for k in range(8): t("v_sub_f32 v%d, v%d, v%d" % (48 + k, dst[k], S))
        def rnd():
            for k in range(4): t("v_cvt_pk_bf16_f32 v%d, v%d, v%d" % (56 + k, 48 + 2 * k, 49 + 2 * k))
            for k in range(4): t("v_lshlrev_b32 v%d, 16, v%d\nv_and_b32 v%d, 0xffff0000, v%d" % (48 + 2 * k, 56 + k, 49 + 2 * k, 56 + k))
        rnd()
        for k in range(8): t("v_mul_f32 v%d, v%d, v%d" % (48 + k, 48 + k, S + 1))
        rnd()
        for k in range(8): t("v_mul_f32 v%d, v%d, v%d" % (48 + k, 48 + k, 32 + k))
        rnd()
        for k in range(8): t("v_add_f32 v%d, v%d, v%d" % (dst[k], dst[k], 48 + k))
    t.atom(["s_add_u32 s40, s6, 0x%x" % WS_PART, "s_addc_u32 s41, s7, 0"])
    t("s_and_b32 s41, s41, 0xffff\ns_mov_b32 s42, 0x1000000\ns_mov_b32 s43, 0x20000")
    t("s_lshl_b32 s65, s%d, 3\ns_add_u32 s65, s65, s%d\ns_lshl_b32 s66, s65, 18\ns_lshl_b32 s67, s%d, 12\ns_add_u32 s66, s66, s67" % (sI, sTN, sW))
    for d in (1, 2, 3):
        t("s_xor_b32 s67, s%d, %d\ns_lshl_b32 s%d, s67, 16\ns_add_u32 s%d, s%d, s66\ns_add_u32 s%d, s%d, %d" % (sQ, d, 43 + d, 43 + d, 43 + d, 43 + d, 43 + d, d * 16384))
        t("s_lshl_b32 s67, s67, 4\ns_add_u32 s67, s67, %d\nv_mov_b32 v%d, s67" % (4 * d, 28 + d))
        t("s_lshl_b32 s%d, s%d, 16\ns_add_u32 s%d, s%d, s66\ns_add_u32 s%d, s%d, %d" % (47 + d, sQ, 47 + d, 47 + d, 47 + d, 47 + d, d * 16384))
    t("s_lshl_b32 s69, s65, 2\ns_add_u32 s69, s69, s%d\ns_lshl_b32 s69, s69, 7\ns_add_u32 s69, s69, 0x%x" % (sW, SM_F4))
    t("s_lshl_b32 s67, s%d, 4\nv_and_b32 v32, 3, v0\nv_lshl_add_u32 v32, v32, 2, s67" % sQ)
    t("s_mov_b32 s57, 0\ns_mov_b32 s58, 8192\ns_mov_b32 s59, 16384\ns_mov_b32 s64, 24576")
    t("v_mov_b32 v34, 0x3f80\nv_mov_b32 v35, 0x3f800000")
    i_setup = len(t.u) - 1
    def send(o, d, early=None):
        if early is not None: o.at(early)
        for m in range(4):
            A = 128 + 32 * d + 4 * m; Bq = A + 16
            o("v_cvt_pk_bf16_f32 v%d, v%d, v%d\nv_cvt_pk_bf16_f32 v%d, v%d, v%d\nv_cvt_pk_bf16_f32 v%d, v%d, v%d\nv_cvt_pk_bf16_f32 v%d, v%d, v%d" % (A, A, A + 1, A + 1, A + 2, A + 3, A + 2, Bq, Bq + 1, A + 3, Bq + 2, Bq + 3))
            o.vm("buffer_store_dwordx4 %s, v1, s[40:43], s%d offen offset:%d %s" % (Q(A), 43 + d, 1024 * m, SC), ("ps", d, m))
    f4store = lambda d: "buffer_store_dword v%d, v%d, s[36:39], s69 offen %s" % (vTG, 28 + d, SC)
    flags_done = []
    if KC:
        gp = lambda d: 4 * (8 * F0 + 2 * KC * d) - 1 + 3
        for d in (1, 2, 3):
            send(t, d, gp(d))
            if d >= 2:
                flag(t, f4store(d - 1), [("ps", d - 1, 3)]); flags_done.append(d - 1)
    tu = t.units()
    def vm_stream(dst_list, h_list, start, extra_early):
        items = []
        for st in dst_list:
            dl = bar[min(st, SF) - 1]
            e = bar[prevocc[st]] + 1 if prevocc[st] is not None else 0
            for k in range(4): items.append((dl, 0, max(e, extra_early("d", st)), "d", st, k))
        for u in h_list:
            dl = 4 * firstuse[u] - 1
            e = 4 * lastuse[hprev[u]] + 3 if hprev[u] is not None else 0
            for m in range(4): items.append((dl, 1, max(e, extra_early("h", u)), "h", u, m))
        o = Seq(); done = []; now = start; pend = sorted(items)
        LA = cfg.get("l2_la", 400)
        while pend:
            av = [x for x in pend if x[2] <= now and x[0] - now <= LA]
            if not av: now += 1; continue
            x = av[0]; pend.remove(x)
            if x[3] == "h" and x[4] in pollat and x[5] == 0:
                nm, off = pollat[x[4]]
                poll(o, nm, fload(off), vPD, nm, early=now)
            if x[3] == "d": dma2(o, x[4], x[5], now)
            else: hload(o, x[4], x[5], now)
            if x[3] == "h" and (x[4], x[5]) in pollload:
                nm, off = pollload[x[4], x[5]]
                o.vm(fload(off), nm); now += cfg.get("l2_sp", 4.7)
            done.append((x, len(o.u) - 1)); now += cfg.get("l2_sp", 4.7) * (2 if (x[3] == "h" and steps[x[4]][0] == "s") else 1)
        un = o.units()
        for u_ in un:
            if u_[1] is not None: u_[1] = int(u_[1])
        res = sc.stream(un, start, 2)
        slack = [(x[0] - res[i], x[3], x[4]) for x, i in done]
        return res, min(slack), slack
    pollat = {16: ("P3b", 32)}; pollload = {(13, 3): ("P3b", 32)}
    r1, sl1, _ = vm_stream(range(NPRE, 14), range(nh_pre[0], 28), 0, lambda k, x: 0)
    rt = sc.stream(tu[:i_flagc + 1], 1, 3, vmspace=2)
    gC = rt[i_flagc] + cfg.get("pc_lat", 64)
    pollat = {28: ("P3c", 64)}; pollload = {}
    o = Seq(); o.vm(fload(64), "P3c", early=max(gC - 48, r1[-1] + 1)); rp = sc.stream(o.units(), 0, 2, vmspace=2)
    gC = max(gC, rp[0] + 40)
    r2, sl2, sll = vm_stream(range(14, NST), range(28, 44), r1[-1] + 1, lambda k, x: gC if k == "h" else rt[i_cready] + 2)
    rt2 = sc.stream(tu[i_flagc + 1:], rt[-1], 3, vmspace=2) if True else None
    if cfg.get("verbose"):
        print("vm1 end", r1[-1], "minslack", sl1, "| tail: lastst", rt[i_lastst], "flagc", rt[i_flagc], "gC", gC, "| vm2 end", r2[-1], "minslack", sl2, "| setup end", rt2[i_setup - i_flagc - 1], "final start", 32 * F0, "stream end", rt2[-1], "of", 4 * NG)
    assert sl1[0] > 40 and sl2[0] > 30, (sl1, sl2)
    for nm in names:
        if TS and nm[0] == "g" and nm[1:].isdigit():
            st_ = int(nm[1:])
            sc.put(bar[st_] - 1, [Op("s_memrealtime s[100:101]")], 5)
            sc.put(bar[st_], [Op("v_writelane_b32 v%d, s100, %d" % (vTS, names.index(nm)))], 5)
    prog.add(sc.ops())
    stamp(s, "end2")
    if not KC:
        for d in (1, 2, 3): send(s, d)
    for m in range(4):
        for u in range(2):
            for h in (0, 2): s("v_pk_add_f32 %s, %s, %s" % (P(RB(u, m) + h), P(RB(u, m) + h), P(128 + 16 * u + 4 * m + h)))
    for d in (1, 2, 3):
        if d not in flags_done: flag(s, f4store(d), [("ps", d, 3)])
    stamp(s, "drain4")
    f4load = "buffer_load_dword v33, v32, s[36:39], s69 offen %s" % SC
    s.vm(f4load, "f4")
    def recv(d):
        poll(s, "P4%d" % d, f4load, 33, "f4", mask=str(1 << d))
        for m in range(4): s.vm("buffer_load_dwordx4 %s, v1, s[40:43], s%d offen offset:%d %s" % (Q(128 + 32 * d + 16 + 4 * m), 47 + d, 1024 * m, SC), ("pl", d, m))
    def addp(d, m):
        s.wait([("pl", d, m)])
        for k in range(8):
            r = RB(k // 4, m) + k % 4
            s("v_dot2_f32_bf16 v%d, v%d, v%d, v%d" % (r, 128 + 32 * d + 16 + 4 * m + k // 2, 34 + k % 2, r))
    recv(1); recv(2); recv(3)
    stamp(s, "poll4")
    for d in (1, 2):
        for m in range(4): addp(d, m)
    sM4 = [57, 58, 59, 64]
    for m in range(4):
        addp(3, m)
        if m > 0:
            for u in range(2): s.vm("buffer_store_dwordx4 %s, v%d, s[8:11], s%d offen offset:%d %s" % (Q(RB(u, m - 1)), vOO, sM4[m - 1], 64 * u, cfg.get("ost", SC)))
    s("s_nop 2")
    for u in range(2): s.vm("buffer_store_dwordx4 %s, v%d, s[8:11], s%d offen offset:%d %s" % (Q(RB(u, 3)), vOO, sM4[3], 64 * u, cfg.get("ost", SC)))
    prog.add(s.done())
    prog.emit(a)
    a("s_cmp_eq_u32 s%d, 31\ns_cbranch_scc0 L_noep\ns_cmp_eq_u32 s%d, 0\ns_cbranch_scc0 L_noep" % (sB, sJ))
    a("v_mov_b32 v40, 0x%x\ns_mov_b64 exec, 1\nbuffer_store_dword v%d, v40, s[36:39], 0 offen %s\ns_mov_b64 exec, -1" % (SM_EP, vTG, SC))
    a("L_noep:")
    if TS:
        a("s_waitcnt vmcnt(0)\ns_memrealtime s[100:101]\ns_waitcnt lgkmcnt(0)\nv_writelane_b32 v%d, s100, %d" % (vTS, len(names) - 1))
        a("s_cmp_lg_u32 s%d, %d\ns_cbranch_scc1 L_end" % (sW, cfg.get("tsw", 0)))
        ws_srd(a, 12, WS_TS, 16384)
        a("s_lshl_b32 s75, s2, 6\nv_lshlrev_b32 v1, 2, v0\ns_mov_b64 exec, 0xffff\nbuffer_store_dword v%d, v1, s[12:15], s75 offen" % vTS)
    a("L_end:")
    a("s_endpgm")
    a.lines += ool.lines
    return name, a

def build(cfg):
    name, a = gen(cfg)
    hdr = open("cdna_kernels/%s.s.ref" % NAME).read().split("; Override launch")[0]
    out = hdr + "; @launch grid=(256,1,1) block=(256,1,1) lds=163840\n"
    out += '.amdgcn_target "amdgcn-amd-amdhsa--gfx950"\n'
    lines = pad_hazards([l for l in a.lines if l], cfg.get("verbose", 0) > 1)
    if cfg.get("verbose"): print(gap_report(lines))
    out += "\n".join(lines) + "\n"
    if cfg.get("cyc"): out = out.replace("s_memrealtime", "s_memtime")
    b = Asm(); kernel_desc(b, name, 512, accum=256); out += b.text()
    return out

if __name__ == "__main__":
    cfg = {}
    for kv in sys.argv[2:]:
        k, v = kv.split("=")
        try: v = int(v)
        except ValueError:
            try: v = float(v)
            except ValueError: v = v.replace("+", " ")
        cfg[k] = v
    open(sys.argv[1], "w").write(build(cfg))
```

```python
import re

class Asm:
    def __init__(self):
        self.lines = []
        self._lab = 0
    def __call__(self, s=""):
        for l in s.split("\n"):
            self.lines.append(l.strip())
    def label(self, name):
        self.lines.append(name + ":")
    def newlabel(self, p="L"):
        self._lab += 1
        return "%s_%d" % (p, self._lab)
    def text(self):
        return "\n".join(self.lines) + "\n"

def kernel_header(a, name):
    a(".text")
    a(".globl %s" % name)
    a(".p2align 8")
    a(".type %s,@function" % name)
    a("%s:" % name)

def kernel_desc(a, name, vgpr, sgpr=102, accum=None, kernarg=128):
    if accum is None:
        accum = (vgpr + 3) // 4 * 4
    a('.section .rodata,"a"')
    a(".p2align 6")
    a(".amdhsa_kernel %s" % name)
    a("  .amdhsa_next_free_vgpr %d" % vgpr)
    a("  .amdhsa_next_free_sgpr %d" % sgpr)
    a("  .amdhsa_accum_offset %d" % accum)
    a("  .amdhsa_group_segment_fixed_size 0")
    a("  .amdhsa_kernarg_size %d" % kernarg)
    a("  .amdhsa_user_sgpr_count 2")
    a("  .amdhsa_user_sgpr_kernarg_segment_ptr 1")
    a("  .amdhsa_system_sgpr_workgroup_id_x 1")
    a(".end_amdhsa_kernel")

def srd(a, r, lo, hi, size):
    a("s_mov_b32 s%d, s%d\ns_and_b32 s%d, s%d, 0xffff\ns_mov_b32 s%d, %d\ns_mov_b32 s%d, 0x20000" % (r, lo, r+1, hi, r+2, size, r+3))

def R(k, i, n=1):
    return "%s%d" % (k, i) if n == 1 else "%s[%d:%d]" % (k, i, i + n - 1)

_REG = re.compile(r"^-?\|?(?:abs\()?([vas])(?:(\d+)|\[(\d+):(\d+)\])\)?\|?$")
TRANS = ("v_exp_f32", "v_log_f32", "v_rcp_f32", "v_rsq_f32", "v_sqrt_f32", "v_sin_f32", "v_cos_f32", "v_rcp_iflag_f32")

def _regs(op):
    op = op.strip()
    if op in ("vcc",): return {("s", "vcc")}
    if op in ("vcc_lo", "vcc_hi"): return {("s", "vcc")}
    if op == "m0": return {("s", "m0")}
    if op in ("exec", "exec_lo", "exec_hi"): return {("s", "exec")}
    m = _REG.match(op)
    if not m: return set()
    k = m.group(1)
    if m.group(2) is not None: return {(k, int(m.group(2)))}
    return {(k, i) for i in range(int(m.group(3)), int(m.group(4)) + 1)}

def parse(line):
    l = line.split(";")[0].strip()
    if not l or l.endswith(":") or l.startswith("."): return None
    parts = l.split(None, 1)
    opc = parts[0]
    rest = parts[1] if len(parts) > 1 else ""
    ops = []; cur = ""; d = 0
    for ch in rest:
        if ch == "[": d += 1
        if ch == "]": d -= 1
        if ch == "," and d == 0: ops.append(cur.strip()); cur = ""
        else: cur += ch
    mods = ""
    if cur.strip():
        t = cur.strip().split(None, 1)
        ops.append(t[0]); mods = t[1] if len(t) > 1 else ""
    I = dict(opc=opc, ops=ops, mods=mods, defs=set(), uses=set(), cls="other", text=l)
    base = re.sub(r"_(e32|e64|dpp|sdwa)$", "", opc)
    I["base"] = base
    if opc.startswith("v_mfma"):
        I["cls"] = "mfma"; I["defs"] = _regs(ops[0]); I["A"] = _regs(ops[1]); I["B"] = _regs(ops[2]); I["C"] = _regs(ops[3])
        I["uses"] = I["A"] | I["B"] | I["C"]; I["passes"] = 8 if "32x32x16" in opc else 4
    elif opc.startswith("v_"):
        I["cls"] = "valu"
        I["defs"] = _regs(ops[0]); src = ops[1:]
        if base in ("v_add_co_u32", "v_sub_co_u32", "v_addc_co_u32", "v_subb_co_u32", "v_subrev_co_u32", "v_mad_u64_u32"):
            I["defs"] |= _regs(ops[1]); src = ops[2:]
        for o in src: I["uses"] |= _regs(o)
        if base.startswith("v_fmac") or base.startswith("v_dot2c") or base.startswith("v_permlane") or base == "v_writelane_b32" or "dpp" in opc or "row_" in mods or "quad_perm" in mods:
            I["uses"] |= _regs(ops[0])
        if base.startswith("v_permlane") and "swap" in base: I["defs"] |= _regs(ops[1])
        if base.startswith("v_cmpx"): raise Exception("no cmpx")
        I["dpp"] = ("dpp" in opc) or ("row_" in mods) or ("quad_perm" in mods) or ("wave_" in mods)
        I["trans"] = base in TRANS
    elif opc.startswith("buffer_") or opc.startswith("global_"):
        I["cls"] = "vmem"
        islds = (" lds" in " " + mods) or ("load_lds" in opc)
        I["lds"] = islds
        if opc in ("buffer_wbl2", "buffer_inv"):
            pass
        elif "load" in opc and not islds:
            I["defs"] = _regs(ops[0])
            for o in ops[1:]: I["uses"] |= _regs(o)
        elif "atomic" in opc:
            for o in ops: I["uses"] |= _regs(o)
            if "sc0" in mods: I["defs"] = _regs(ops[0])
        else:
            for o in ops: I["uses"] |= _regs(o)
            if "store" in opc and ("x4" in opc or "x3" in opc):
                I["wdata"] = _regs(ops[0]) if opc.startswith("buffer_") else _regs(ops[1])
        if islds: I["uses"] |= {("s", "m0")}
    elif opc.startswith("ds_"):
        I["cls"] = "ds"
        if "read" in opc or "permute" in opc or "swizzle" in opc or "_rtn" in opc:
            I["defs"] = _regs(ops[0])
            for o in ops[1:]: I["uses"] |= _regs(o)
        else:
            for o in ops: I["uses"] |= _regs(o)
    elif opc.startswith("s_"):
        I["cls"] = "salu"
        if opc == "s_nop": I["n"] = int(ops[0], 0) + 1
        nodef = opc.startswith(("s_cmp", "s_cbranch", "s_branch", "s_waitcnt", "s_barrier", "s_nop", "s_endpgm", "s_sleep", "s_setprio", "s_bitcmp"))
        if ops and not nodef:
            I["defs"] = _regs(ops[0])
            for o in ops[1:]: I["uses"] |= _regs(o)
            if "saveexec" in opc: I["defs"] |= {("s", "exec")}
        else:
            for o in ops: I["uses"] |= _regs(o)
    return I

def _vec(s): return {r for r in s if r[0] in "va"}
def _sc(s): return {r for r in s if r[0] == "s"}

def need(P, C):
    n = 0
    pc, cc = P["cls"], C["cls"]
    if pc == "valu":
        d = _vec(P["defs"]); sd = _sc(P["defs"])
        if cc == "mfma" and d & C["uses"]: n = max(n, 2)
        if cc == "valu":
            if P.get("trans") and not C.get("trans") and d & (C["uses"]): n = max(n, 1)
            if C.get("dpp") and d & C["uses"]: n = max(n, 2)
            if C["base"].startswith("v_permlane") and d & C["uses"]: n = max(n, 2)
            if C["base"] in ("v_readlane_b32", "v_readfirstlane_b32") and d & C["uses"]: n = max(n, 1)
            if sd & C["uses"]: n = max(n, 4 if C["base"] in ("v_readlane_b32", "v_writelane_b32") else 2)
        if cc == "vmem" and sd & C["uses"]: n = max(n, 5)
        if cc == "salu" and sd & C["uses"]: n = max(n, 1)
    if pc == "mfma":
        d = P["defs"]; k = 8 if P["passes"] == 4 else 12
        if cc in ("valu", "vmem", "ds") and d & (C["uses"] | C["defs"]): n = max(n, k)
        if cc == "mfma":
            if d & (C["A"] | C["B"]): n = max(n, k)
            if d & C["C"] and not (d == C["C"] and P["passes"] == C["passes"]): n = max(n, k - 2)
            if d & C["defs"] and not d & C["C"]: n = max(n, k)
        if cc == "valu" and P["C"] & C["defs"]: n = max(n, 3 if P["passes"] == 4 else 7)
    if pc == "vmem" and P.get("wdata"):
        if P["wdata"] & C["defs"]: n = max(n, 2 if cc in ("valu", "mfma") else 1)
    if pc == "salu" and ("s", "m0") in P["defs"] and cc == "vmem" and C.get("lds"): n = max(n, 1)
    return n

def pad_hazards(lines, verbose=False):
    out = []; hist = []
    def dist_scan(hist, C):
        req = 0; d = 0
        for P in reversed(hist):
            r = need(P, C) - d
            if r > req: req = r
            d += P.get("n", 1)
            if d > 20: break
        return req
    labels = {}
    for l in lines:
        I = parse(l)
        if I is None:
            if l.strip().endswith(":"): labels[l.strip()[:-1]] = len(out)
            out.append(l); continue
        req = dist_scan(hist, I)
        if req > 0:
            if verbose: print("pad %d before: %s" % (req, l))
            out.append("s_nop %d" % (req - 1)); hist.append(parse("s_nop %d" % (req - 1)))
        out.append(l); hist.append(I); hist = hist[-24:]
    pl = [parse(l) for l in out]
    labels = {l.strip()[:-1]: i for i, l in enumerate(out) if pl[i] is None and l.strip().endswith(":")}
    for i, I in enumerate(pl):
        if I and I["opc"].startswith(("s_cbranch", "s_branch")):
            if I["ops"][0].startswith("L_tr"): continue
            tgt = labels[I["ops"][0]]
            h = [p for p in pl[max(0, i - 40):i + 1] if p][-24:]
            cnt = 0
            for j in range(tgt, len(out)):
                if pl[j] is None: continue
                r = dist_scan(h, pl[j])
                assert r <= 0, ("hazard across branch", out[i], out[j], r)
                h.append(pl[j]); cnt += 1
                if cnt > 16: break
    return out

class Op:
    def __init__(self, text, cls=None, tag=None, needs=None, drain=None):
        self.text = text; self.cls = cls; self.tag = tag; self.needs = needs; self.drain = drain
        self.w = {"vm": None, "lg": None}; self.keep = False

class Prog:
    def __init__(self):
        self.segs = []
    def add(self, ops, iters=(0,), label=None, tail=None):
        self.segs.append((ops, list(iters), label, tail))
    def solve(self):
        MAX = {"vm": 63, "lg": 15}
        pos = {}; cnt = {"vm": 0, "lg": 0}
        for ops, iters, _, _ in self.segs:
            for it in iters:
                for o in ops:
                    if o.needs:
                        for t in o.needs(it):
                            assert t in pos, ("needed tag never issued", t, o.text)
                            c, p = pos[t]
                            n = min(cnt[c] - p - 1, MAX[c])
                            o.w[c] = n if o.w[c] is None else min(o.w[c], n)
                    if o.drain:
                        for c in o.drain: o.w[c] = 0
                    if o.cls:
                        t = o.tag(it) if o.tag else None
                        if t is not None: pos[t] = (o.cls, cnt[o.cls])
                        cnt[o.cls] += 1
        done = {"vm": 0, "lg": 0}; cnt = {"vm": 0, "lg": 0}
        useful = set()
        for ops, iters, _, _ in self.segs:
            for it in iters:
                for o in ops:
                    for c in ("vm", "lg"):
                        if o.w[c] is not None:
                            nd = cnt[c] - o.w[c]
                            if nd > done[c]:
                                useful.add((id(o), c)); done[c] = nd
                    if o.cls:
                        cnt[o.cls] += 1
                        assert o.cls != "vm" or cnt["vm"] - done["vm"] <= 63 + 1000
        for ops, _, _, _ in self.segs:
            for o in ops:
                for c in ("vm", "lg"):
                    if (id(o), c) not in useful and not o.keep: o.w[c] = None
    def emit(self, a):
        self.solve()
        for ops, iters, label, tail in self.segs:
            if label: a(label + ":")
            for o in ops:
                w = []
                if o.w["vm"] is not None: w.append("vmcnt(%d)" % o.w["vm"])
                if o.w["lg"] is not None: w.append("lgkmcnt(%d)" % o.w["lg"])
                if w: a("s_waitcnt " + " ".join(w))
                if o.text: a(o.text)
            if tail: a(tail)

def opclass(text):
    o = text.split()[0]
    if o.endswith(":"): return "L"
    if o.startswith("ds_"): return "D" if "read" in o else "Y"
    if o.startswith(("buffer_", "global_")): return "X" if "store" in o else "G"
    if o.startswith("v_"):
        assert not o.startswith("v_pk_"), text
        return "E" if o in TRANS else "V"
    return "S"

def gap_time(cls):
    c = [x for x in cls if x != "L"]
    if "G" in c or "Y" in c: return 16 if len(c) == 1 else None
    if "X" in c: return 16 if c in (["X"], ["X", "S"]) else None
    t = 4; prev = None
    for i, x in enumerate(c):
        if x == "S": t += 4
        elif x == "D":
            if prev in ("V", "E"): return None
            if i == 1 and prev == "D": return None
            t = max(t, 8) + 4
        elif x == "V": t = max(t, 8) + 4
        elif x == "E": t = max(t, 8) + 8
        prev = x
    return t

class Sch:
    def __init__(self, mf):
        self.mf = mf; self.n = len(mf)
        self.g = [[] for _ in range(self.n)]
        self.seq = 0
        self.lastvm = []
        self.over = 0
    def _cls(self, o):
        c = []
        if o.needs or o.drain: c.append("S")
        if o.text: c += [opclass(l) for l in o.text.split("\n")]
        return c
    def classes(self, g, extra=()):
        items = sorted(self.g[g] + list(extra), key=lambda x: (x[0], x[1]))
        return sum([x[3] for x in items], [])
    def fits(self, g, unit, prio):
        ex = [(prio, self.seq + i, o, self._cls(o)) for i, o in enumerate(unit)]
        t = gap_time(self.classes(g, ex))
        return t is not None and t <= 16
    def put(self, g, unit, prio):
        for o in unit:
            self.g[g].append((prio, self.seq, o, self._cls(o))); self.seq += 1
    def isvm(self, unit): return any(c in ("G", "X") for o in unit for c in self._cls(o))
    def vm_ok(self, g, sp): return all(abs(g - h) >= sp for h in self.lastvm)
    def stream(self, units, start, prio, vmspace=4, hi=None, overflow=False):
        pos = start; res = []
        hi = self.n if hi is None else hi
        for unit, early in units:
            if callable(early): early = early(res)
            if early is not None: pos = max(pos, early)
            vm = self.isvm(unit)
            force = gap_time(sum([self._cls(o) for o in unit], [])); force = force is None or force > 16
            while True:
                if overflow and pos >= hi: return res
                assert pos < hi, ("stream ran off the end", [o.text for o in unit])
                ok = (not self.g[pos]) if force else self.fits(pos, unit, prio)
                if ok and (not vm or self.vm_ok(pos, vmspace)): break
                pos += 1
            self.put(pos, unit, prio)
            if vm: self.lastvm.append(pos)
            res.append(pos)
        return res
    def ops(self):
        out = []
        for g in range(self.n):
            out.append(self.mf[g])
            items = sorted(self.g[g], key=lambda x: (x[0], x[1]))
            out += [x[2] for x in items]
        return out

def gap_report(lines):
    lost = 0; cur = None; n = 0; bad = {}
    for l in lines:
        t = l.split(";")[0].strip()
        if not t or t.startswith("."): continue
        if t.startswith("v_mfma_f32_16x16x32"):
            if cur is not None and len(cur) < 12:
                try:
                    c = [opclass(x) for x in cur]
                except AssertionError:
                    c = None
                if c is not None:
                    e = gap_time(c)
                    k = "".join(c)
                    if e is None or e > 16 or "X" in c or "Y" in c: bad[k] = bad.get(k, 0) + 1
            cur = []; n += 1
        elif cur is not None: cur.append(t)
    return n, bad

def vm_cost(text, cl, cs):
    o = text.split()[0]
    if "store" in o and "s[36:39]" in text: return cs * 0.1
    wide = 1.0 if "x4" in o else (0.5 if "x2" in o else 0.3)
    if "store" in o: return (cs if "sc1" in text else cs / 2) * (wide if "x" in o.split("dword")[1] else 0.1)
    return cl * wide

class Stream:
    def __init__(self, name, units, prio, start=0, deadline=None):
        self.name = name; self.units = units; self.prio = prio; self.pos = 0; self.res = []; self.start = start
        self.deadline = deadline

def multi(sc, streams, cl=75, cs=240, B0=150, vmspace=4, busy0=0, marks=None, tinyfree=False):
    marks = {} if marks is None else marks
    busy = busy0; lastvm = -100
    for g in range(sc.n):
        progress = True
        while progress:
            progress = False
            cand = []
            for st in streams:
                if st.pos >= len(st.units) or g < st.start: continue
                un = st.units[st.pos]; unit, early = un[0], un[1]
                if callable(early):
                    marks["_prev"] = st.res[-1] if st.res else st.start
                    early = early(marks)
                    if early is None: continue
                if early is not None and early > g: continue
                vm = sc.isvm(unit)
                t = gap_time(sum([sc._cls(o) for o in unit], [])); force = t is None or t > 16
                ok = (not [x for x in sc.g[g] if x[3]]) if force else sc.fits(g, unit, st.prio)
                if not ok: continue
                if vm:
                    small = sum(vm_cost(o.text, cl, cs) for o in unit if o.cls == "vm") < cl * 0.6
                    tiny = tinyfree and sum(vm_cost(o.text, cl, cs) for o in unit if o.cls == "vm") < cl * 0.4
                    if g - lastvm < (2 if small else vmspace) or (busy - 16 * g > B0 and not tiny): continue
                dl = st.deadline(st.pos) if (vm and st.deadline) else -1
                cand.append((0 if vm else 1, dl, st.prio, id(st), st, unit, vm, un))
            if cand:
                cand.sort(key=lambda x: x[:4])
                _, _, _, _, st, unit, vm, un = cand[0]
                sc.put(g, unit, st.prio); st.res.append(g); st.pos += 1
                if len(un) > 2: marks[un[2]] = g
                if vm:
                    lastvm = g; busy = max(busy, 16 * g) + sum(vm_cost(o.text, cl, cs) for o in unit if o.cls == "vm")
                progress = True
    for st in streams: assert getattr(st, 'overflow', False) or st.pos == len(st.units), ("stream incomplete", st.name, st.pos, len(st.units), [o.text for o in st.units[st.pos][0]])
    return marks
```

```python
import sys, math, struct
from asmlib import *

NAME = "parallel_sum__ssm_conv_s5__glu_gated_geglu__prompt"
KX, KLRE, KLIM, KBRE, KBIM, KCRE, KCIM, KLDT, KDSK, KBX, KWG, KWU, KWD, KOUT, KDBG, KWS = [8 * i for i in range(16)]
WS_XN = 0
WS_H = 0x400000
H_BLK = 176 * 4096
WS_SM = 0x1A00000
SM_AG = 0; SM_ST = 0x40000; SM_F1 = 0x44000; SM_F3 = 0x45000; SM_F4 = 0x49000; SM_EP = 0x51000; SM_F1B = 0x52000; SM_SIZE = 0x53000
WS_TS = 0x1A60000
WS_PART = 0x2000000
NSTAMPS = [16]
SPLIT_LAYOUT = True
STAMPS = []

def f2u(x): return struct.unpack("<I", struct.pack("<f", x))[0]
def fx(x): return "0x%08x" % f2u(x)
P = lambda r: "v[%d:%d]" % (r, r + 1)
Q = lambda r: "v[%d:%d]" % (r, r + 3)
LOG2E = 1.4426950408889634
K = lambda v: (lambda it: v)

def ws_srd(a, r, off, size):
    a("s_add_u32 s%d, s6, 0x%x\ns_addc_u32 s%d, s7, 0\ns_and_b32 s%d, s%d, 0xffff\ns_mov_b32 s%d, 0x%x\ns_mov_b32 s%d, 0x20000" % (r, off, r + 1, r + 1, r + 1, r + 2, size, r + 3))

def mfma16(d, A, B, zero=False):
    return "v_mfma_f32_16x16x32_bf16 %s, %s, %s, %s" % (R(d[0], d[1], 4), R(A[0], A[1], 4), R(B[0], B[1], 4), "0" if zero else R(d[0], d[1], 4))

def cmul_pk(a, dr, di, ar, ai, br, bi, t):
    a("v_pk_mul_f32 %s, %s, %s" % (P(t), P(ai), P(bi)))
    a("v_pk_fma_f32 %s, %s, %s, %s neg_lo:[0,0,1] neg_hi:[0,0,1]" % (P(t), P(ar), P(br), P(t)))
    a("v_pk_mul_f32 %s, %s, %s" % (P(t + 2), P(ar), P(bi)))
    a("v_pk_fma_f32 %s, %s, %s, %s" % (P(di), P(ai), P(br), P(t + 2)))
    a("v_mov_b32 v%d, v%d\nv_mov_b32 v%d, v%d" % (dr, t, dr + 1, t + 1))

def horner_pk(a, s, L, e, d):
    a("v_pk_fma_f32 %s, %s, %s, %s" % (P(d), P(L), P(s), P(e)))
    a("v_pk_fma_f32 %s, %s, %s, %s" % (P(d + 2), P(L), P(s + 2), P(e + 2)))
    a("v_pk_fma_f32 %s, %s, %s, %s neg_lo:[1,0,0] neg_hi:[1,0,0]" % (P(d), P(L + 2), P(s + 2), P(d)))
    a("v_pk_fma_f32 %s, %s, %s, %s" % (P(d + 2), P(L + 2), P(s), P(d + 2)))

def horner_sc(a, s, L, e):
    for T in range(2):
        a("v_fmac_f32 v%d, v%d, v%d" % (e + T, L + T, s + T)); a("v_fmac_f32 v%d, v%d, v%d" % (e + 2 + T, L + T, s + 2 + T))
    for T in range(2):
        a("v_fma_f32 v%d, -v%d, v%d, v%d" % (e + T, L + 2 + T, s + 2 + T, e + T)); a("v_fmac_f32 v%d, v%d, v%d" % (e + 2 + T, L + 2 + T, s + T))

def gelu_block(a, items, CC, T):
    for k, (g, u, o) in enumerate(items): a("v_pk_mul_f32 %s, %s, %s" % (P(T + 2 * k), P(g), P(g)))
    for k, (g, u, o) in enumerate(items): a("v_pk_fma_f32 %s, %s, %s, %s op_sel:[0,1,0] op_sel_hi:[1,1,0]" % (P(T + 2 * k), P(T + 2 * k), P(CC), P(CC)))
    for k, (g, u, o) in enumerate(items): a("v_pk_mul_f32 %s, %s, %s" % (P(T + 2 * k), P(T + 2 * k), P(g)))
    for k, (g, u, o) in enumerate(items):
        a("v_exp_f32 v%d, v%d" % (T + 2 * k, T + 2 * k)); a("v_exp_f32 v%d, v%d" % (T + 2 * k + 1, T + 2 * k + 1))
        a("v_pk_mul_f32 %s, %s, %s" % (P(u), P(g), P(u)))
    for k, (g, u, o) in enumerate(items): a("v_pk_add_f32 %s, %s, 1.0 op_sel_hi:[1,0]" % (P(T + 2 * k), P(T + 2 * k)))
    for k, (g, u, o) in enumerate(items):
        a("v_rcp_f32 v%d, v%d" % (T + 2 * k, T + 2 * k)); a("v_rcp_f32 v%d, v%d" % (T + 2 * k + 1, T + 2 * k + 1))
    for k, (g, u, o) in enumerate(items): a("v_pk_mul_f32 %s, %s, %s" % (P(u), P(u), P(T + 2 * k)))
    for k, (g, u, o) in enumerate(items): a("v_cvt_pk_bf16_f32 v%d, v%d, v%d" % (o, u, u + 1))

class Seq:
    def __init__(self): self.u = []
    def __call__(self, s):
        for l in s.split("\n"):
            l = l.strip()
            assert not l.startswith(("buffer_", "global_", "ds_")), ("uncounted memory op", l)
            self.u.append([[Op(l)], None])
    def atom(self, ops, early=None): self.u.append([[o if isinstance(o, Op) else Op(o) for o in ops], early])
    def vm(self, text, tag=None, needs=None, early=None):
        if needs: self.wait(needs, early=early); early = None
        self.u.append([[Op(text, "vm", K(tag) if tag is not None else None)], early])
    def lg(self, text, tag=None, needs=None):
        if needs: self.wait(needs)
        self.u.append([[Op(text, "lg", K(tag) if tag is not None else None)], None])
    def wait(self, needs, drain=None, early=None): self.u.append([[Op("", needs=K(needs) if needs else None, drain=drain)], early])
    def op(self, o, early=None): self.u.append([[o], early])
    def delay(self, n):
        self._d = n; i = len(self.u) - 1
        self.u.append([[Op("")], lambda res, n=n: res[-1] + n])
    def at(self, g): self.u.append([[Op("")], g])
    def done(self):
        o = [x for un, _ in self.u for x in un]; self.u = []; return o
    def units(self):
        u = self.u; self.u = []; return u

W_ST = 28672; U_OFF = 14336
B_BASE = 131072; B_ST = 8192
LN_LDS = 65536 + W_ST

def gen(cfg):
    name = NAME + "_kernel"
    a = Asm(); kernel_header(a, name)
    ool = Asm()
    TS = cfg.get("ts")
    names = ["start"] + cfg.get("stamps", "flag1 poll1 loop1 end1 p01 pub ok3a loop2 end2 drain4 poll4").split() + ["end"]
    STAMPS[:] = names; NSTAMPS[0] = len(names)
    vTS = 15
    def stamp(s, nm):
        if TS and nm in names: s.atom(["s_memrealtime s[100:101]", "s_waitcnt lgkmcnt(0)", "v_writelane_b32 v%d, s100, %d" % (vTS, names.index(nm))])
    SC = "sc0 sc1"
    prog = Prog(); s = Seq()
    sJ, sI, sW, sB, sQ, sTN, sTAG = 60, 61, 62, 63, 52, 53, 3
    sMW, sM3, sMB, sKW, sKB, sKX, sCNT = 54, 55, 56, 57, 58, 59, 81
    sPAs, sKPA, sKPB, sPBs = 76, 77, 78, 80
    def poll(s, nm, loadtext, dst, tagneed, mask=None, early=None):
        s.wait([tagneed], early=early)
        s.atom(["%s_chk:" % nm, "v_cmp_ne_u32 vcc, s%d, v%d" % (sTAG, dst), "s_and_b64 vcc, vcc, %s" % (mask or "exec"), "s_cbranch_scc1 %s_retry" % nm, "%s_ok:" % nm])
        ool("%s_retry:\ns_cmp_eq_u32 s79, 0\ns_cbranch_scc1 %s_ok\ns_sub_u32 s79, s79, 1\ns_sleep 1\n%s\ns_waitcnt vmcnt(0)\ns_branch %s_chk" % (nm, nm, loadtext, nm))
    def flag(s, text, needs, early=None):
        s.wait(needs, early=early)
        s.atom(["s_mov_b64 exec, 1", Op(text, "vm"), "s_mov_b64 exec, -1"])

    s("s_cmp_ge_u32 s2, 256\ns_cbranch_scc1 L_end")
    if TS: s("s_memrealtime s[100:101]")
    CP = cfg.get("cpf", 1)
    s("s_load_dwordx2 s[4:5], s[0:1], %d" % KX)
    s("s_load_dwordx2 s[6:7], s[0:1], %d" % KWS)
    s("s_load_dwordx4 s[12:15], s[0:1], %d" % KWG)
    s("s_load_dwordx4 s[24:27], s[0:1], %d" % KBRE)
    s("s_load_dwordx4 s[72:75], s[0:1], %d" % KLRE)
    s("s_load_dwordx4 s[92:95], s[0:1], %d" % KLDT)
    s("s_load_dwordx4 s[84:87], s[0:1], %d" % KWD)
    s("s_load_dwordx4 s[88:91], s[0:1], %d" % KCRE)
    if CP:
        s("s_getpc_b64 s[98:99]")
        s.atom(["L_pc:"])
        s("s_lshr_b32 s64, s2, 3\ns_mul_i32 s64, s64, 28\nv_add_u32 v3, s64, v0\nv_cmp_gt_u32 vcc, 64, v0\nv_cndmask_b32 v2, v3, v0, vcc\nv_lshlrev_b32 v2, 7, v2")
        s("v_min_u32 v2, L_codeend-L_pc-4, v2\nv_mov_b32 v3, 0\nv_lshl_add_u64 v[2:3], v[2:3], 0, s[98:99]")
        s("v_cmp_gt_u32 vcc, 92, v0\ns_and_saveexec_b64 s[96:97], vcc\ns_cbranch_execz L_nocp")
        s.atom([Op("global_load_dword a246, v[2:3], off")])
        s.atom(["L_nocp:", "s_mov_b64 exec, -1"])
    s("v_lshrrev_b32 v1, 6, v0\nv_and_b32 v0, 63, v0")
    s("v_readfirstlane_b32 s%d, v1" % sW)
    s("v_lshlrev_b32 v1, 4, v0")
    s("s_mov_b32 s79, 0x40000")
    s("s_bfe_u32 s%d, s2, 0x20001" % sQ)
    s("s_and_b32 s64, s2, 1\ns_lshl_b32 s64, s64, 2\ns_lshr_b32 s%d, s2, 6\ns_add_u32 s%d, s%d, s64" % (sI, sI, sI))
    s("s_bfe_u32 s%d, s2, 0x30003" % sTN)
    s("s_lshl_b32 s%d, s%d, 3\ns_add_u32 s%d, s%d, s%d" % (sJ, sQ, sJ, sJ, sTN))
    s("s_lshl_b32 s%d, s%d, 2\ns_add_u32 s%d, s%d, s%d" % (sB, sI, sB, sB, sW))
    s("s_and_b32 s64, s2, 1\ns_lshl_b32 s64, s64, 1\ns_lshr_b32 s65, s%d, 1\ns_add_u32 s64, s64, s65\ns_lshl_b32 s64, s64, 4" % sW)
    s("s_and_b32 s65, s%d, 1\ns_add_u32 s64, s64, s65\ns_lshl_b32 s65, s%d, 1\ns_add_u32 s64, s64, s65" % (sW, sQ))
    s("s_lshr_b32 s66, s2, 3\ns_lshl_b32 s65, s66, 6\ns_add_u32 s64, s64, s65")
    s("s_lshl_b32 s67, s64, 11\ns_add_u32 s68, s67, %d" % (8 * 2048))
    s("s_mov_b32 s10, %d\ns_mov_b32 s11, 0x20000" % (2048 * 2048))
    s("s_waitcnt lgkmcnt(0)")
    if TS: s("v_writelane_b32 v%d, s100, 0" % vTS)
    stamp(s, "karg")
    s("s_mov_b32 s8, s4\ns_and_b32 s9, s5, 0xffff")
    for r in range(2):
        for h in range(2):
            s.vm("buffer_load_dwordx4 %s, v1, s[8:11], s%d offen offset:%d" % (Q(64 + 8 * r + 4 * h), 67 + r, 1024 * h), ("x", r, h))
    s("s_add_u32 s70, s6, 0x%x\ns_addc_u32 s71, s7, 0" % (WS_SM + SM_EP))
    s("s_load_dword s%d, s[70:71], 0" % sTAG)
    srd(s, 16, 14, 15, 1024 * 7168); srd(s, 12, 12, 13, 1024 * 7168)
    srd(s, 28, 26, 27, 1024 * 2048); srd(s, 24, 24, 25, 1024 * 2048)
    s("s_cmp_ge_u32 s%d, 2" % sW)
    s("s_cselect_b32 s20, s16, s12\ns_cselect_b32 s21, s17, s13\ns_mov_b32 s22, %d\ns_mov_b32 s23, 0x20000" % (1024 * 7168))
    ws_srd(s, 36, WS_SM, SM_SIZE)
    s("v_and_b32 v48, 15, v0\nv_lshrrev_b32 v49, 4, v0")
    s("s_lshl_b32 s69, s%d, 5\nv_add_u32 v40, s69, v48\nv_lshlrev_b32 v40, 1, v40" % sJ)
    for k, (lo, r) in enumerate(((72, 48), (74, 44), (92, 40))):
        srd(s, r, lo, lo + 1, 2048)
        for T in range(2):
            s.vm("buffer_load_ushort v%d, v40, s[%d:%d], 0 offen offset:%d" % (16 + 2 * k + T, r, r + 3, 32 * T), ("c", k, T))
    s("v_mov_b32 v41, -1\nv_lshlrev_b32 v42, 2, v0\ns_xor_b32 s69, s2, 0xf8\ns_lshl_b32 s69, s69, 10\ns_lshl_b32 s65, s%d, 8\ns_add_u32 s69, s69, s65" % sW)
    s.vm("buffer_store_dword v41, v42, s[36:39], s69 offen %s" % SC, "agfill")
    vWA, vBA0, vBA1, vWA2, vW0, vW3, vB, vJ, vPA, vPB = 2, 3, 4, 5, 6, 9, 10, 12, 13, 14
    s("s_lshl_b32 s70, s66, 1\ns_and_b32 s65, s2, 1\ns_add_u32 s70, s70, s65")
    s("s_mul_i32 s69, s70, 7168\ns_mul_i32 s65, s%d, 1792\ns_add_u32 s69, s69, s65\nv_min_u32 v40, 13, v0\nv_lshl_add_u32 v44, v40, 7, s69" % sQ)
    s("v_and_b32 v45, 3, v0\ns_lshl_b32 s69, s%d, 8\ns_lshl_b32 s65, s70, 2\ns_add_u32 s69, s69, s65\nv_add_u32 v45, s69, v45\nv_lshlrev_b32 v45, 11, v45" % sQ)
    s("s_mov_b32 s69, %d\ns_cmp_ge_u32 s%d, 2\ns_cselect_b64 vcc, -1, 0\nv_cndmask_b32 v%d, v44, v45, vcc\ns_cselect_b32 s%d, 128, s69" % (64 * 7168, sW, vPA, sPAs))
    s("s_cselect_b32 s40, s24, s12\ns_cselect_b32 s41, s25, s13\ns_cselect_b32 s69, s28, s16\ns_cselect_b32 s65, s29, s17\ns_cselect_b32 s42, s26, s14")
    s("s_bitcmp1_b32 s%d, 0\ns_cselect_b32 s40, s69, s40\ns_cselect_b32 s41, s65, s41\ns_mov_b32 s43, 0x20000\ns_mov_b32 s%d, 0" % (sW, sKPA))
    def pfa(s):
        s.vm("buffer_load_dword a246, v%d, s[40:43], s%d offen" % (vPA, sKPA)); s("s_add_u32 s%d, s%d, s%d" % (sKPA, sKPA, sPAs))
    def pfb(s):
        s.vm("buffer_load_dword a246, v%d, s[44:47], s%d offen" % (vPB, sKPB)); s("s_add_u32 s%d, s%d, s%d" % (sKPB, sKPB, sPBs))
    for _ in range(cfg.get("pf_t0", 0)): pfa(s)
    s("s_and_b32 s71, s%d, 1\ns_lshl_b32 s71, s71, 1\ns_mul_i32 s72, s%d, 224\ns_and_b32 s73, s%d, 1\ns_add_u32 s73, s73, 12" % (sJ, sJ, sW))
    for k in range(4):
        if k < 3: s("s_add_u32 s69, s%d, %d\ns_lshl_b32 s69, s69, 6" % (sW, 4 * k))
        else: s("s_lshl_b32 s69, s73, 6")
        s("v_add_u32 v40, s69, v0\nv_mul_u32_u24 v44, 4682, v40\nv_lshrrev_b32 v44, 16, v44\nv_mul_u32_u24 v45, 14, v44\nv_sub_u32 v45, v40, v45")
        s("v_add_u32 v45, s71, v45\nv_subrev_u32 v43, 14, v45\nv_min_u32 v45, v45, v43")
        s("v_lshrrev_b32 v43, 1, v44\nv_xor_b32 v43, v43, v44\nv_and_b32 v43, 4, v43\nv_mul_u32_u24 v43, 3, v43\nv_xor_b32 v44, v44, v43")
        s("v_mul_u32_u24 v44, 7168, v44\nv_lshl_add_u32 v44, v45, 4, v44\nv_add_u32 v%d, s72, v44" % (vW0 + k))
    s("v_lshrrev_b32 v50, 3, v0\ns_lshl_b32 s69, s%d, 3\nv_add_u32 v40, s69, v50\nv_bfe_u32 v44, v40, 1, 3\nv_and_b32 v51, 7, v0\nv_xor_b32 v44, v44, v51" % sW)
    s("v_lshlrev_b32 v47, 11, v40\nv_lshl_add_u32 v47, v44, 4, v47")
    s("s_lshl_b32 s69, s%d, 16\nv_add_u32 v%d, s69, v47" % (sJ, vB))
    s("s_lshl_b32 s%d, s%d, 10\ns_lshl_b32 s%d, s73, 10" % (sMW, sW, sM3))
    s("s_cmp_ge_u32 s%d, 2\ns_cselect_b32 s69, %d, 0\ns_add_u32 s%d, s%d, s69\ns_add_u32 s%d, s%d, %d" % (sW, U_OFF, sM3, sM3, sMB, sMW, B_BASE))
    s("s_lshl_b32 s65, s%d, 1\nv_xor_b32 v52, s65, v51\nv_lshlrev_b32 v52, 4, v52\nv_lshl_add_u32 v52, v0, 7, v52\nv_add_u32 v52, %d, v52\nv_xor_b32 v53, 16, v52" % (sW, LN_LDS))
    s("v_xor_b32 v54, v50, v51\nv_lshlrev_b32 v54, 4, v54\nv_lshl_add_u32 v54, v50, 7, v54\ns_add_u32 s65, s%d, %d\nv_add_u32 v54, s65, v54" % (sMW, LN_LDS))
    s("v_lshrrev_b32 v55, 5, v0\nv_lshlrev_b32 v55, 12, v55\nv_and_b32 v44, 3, v50\nv_lshl_add_u32 v55, v44, 8, v55\nv_lshl_add_u32 v55, v51, 4, v55")
    s("s_lshl_b32 s70, s66, 17\ns_lshl_b32 s67, s%d, 10\ns_add_u32 s70, s70, s67\ns_and_b32 s67, s2, 1\ns_lshl_b32 s67, s67, 7\ns_add_u32 s70, s70, s67\ns_lshl_b32 s67, s%d, 13\ns_add_u32 s70, s70, s67" % (sQ, sW))
    s("s_add_u32 s71, s70, 32768\ns_add_u32 s72, s70, 65536\ns_add_u32 s73, s70, 98304")
    s("s_lshl_b32 s74, s64, 3\ns_add_u32 s74, s74, 0x%x\nv_mov_b32 v46, 0\nv_mov_b32 v44, %s" % (SM_ST, fx(1.0 / 1024)))
    ws_srd(s, 48, WS_XN, 0x400000)
    dma_items = [(vW0, 12, sKW, sMW, 0), (vW0 + 1, 12, sKW, sMW, 4096), (vW0 + 2, 12, sKW, sMW, 8192), (vW3, 20, sKW, sM3, 0),
                 (vW0, 16, sKW, sMW, U_OFF), (vW0 + 1, 16, sKW, sMW, U_OFF + 4096), (vW0 + 2, 16, sKW, sMW, U_OFF + 8192),
                 (vB, 24, sKB, sMB, 0), (vB, 28, sKB, sMB, 4096)]
    def dma1(s, st, k, early=None):
        v, sr, so, mb, off = dma_items[k]
        isb = mb == sMB
        base = ((st >> 1) & 1) * (16384 if isb else 65536) + (st & 1) * (B_ST if isb else W_ST)
        if k == 0: s("s_mov_b32 s%d, %d" % (sKW, st * 64 * 7168))
        if k == 7: s("s_mov_b32 s%d, %d" % (sKB, st * 128))
        s("s_add_u32 m0, s%d, %d" % (mb, off + base))
        s.op(Op("buffer_load_dwordx4 v%d, s[%d:%d], s%d offen lds" % (v, sr, sr + 3, so), "vm", K(("D", st, k))), early)
    NX = cfg.get("nx", 4)
    aX, aW, NWB = 96, 208, 8
    def xload(s, u, m, early=None):
        if m == 0: s("s_mov_b32 s%d, %d" % (sKX, u * 4096))
        s.op(Op("buffer_load_dwordx4 %s, v1, s[8:11], s%d offen offset:%d" % (R("a", aX + 16 * (u % NX) + 4 * m, 4), sKX, 1024 * m), "vm", K(("X", u, m))), early)
    def pro_stage(st):
        for k in range(9): dma1(s, st, k)
    stamp(s, "prex")
    s.wait([("x", r, h) for r in range(2) for h in range(2)])
    stamp(s, "xin")
    for _ in range(cfg.get("pf_t1", 2)): pfa(s)
    RW = lambda r: 64 + 8 * r
    F = lambda r: 80 + 16 * r
    D = lambda r: 112 + 16 * r
    t_ = lambda r: 144 + 8 * r
    def both(f):
        o = [f(0).split("\n"), f(1).split("\n")]
        for x, y in zip(*o): s(x); s(y)
    def dsum():
        for sh in (1, 2, 4, 8): both(lambda r: "v_add_f32_dpp v%d, v%d, v%d row_shr:%d row_mask:0xf bank_mask:0xf" % (t_(r), t_(r), t_(r), sh))
        both(lambda r: "v_add_f32_dpp v%d, v%d, v%d row_bcast:15 row_mask:0xa bank_mask:0xf" % (t_(r), t_(r), t_(r)))
        both(lambda r: "v_add_f32_dpp v%d, v%d, v%d row_bcast:31 row_mask:0xc bank_mask:0xf" % (t_(r), t_(r), t_(r)))
        both(lambda r: "v_readlane_b32 s%d, v%d, 63" % (67 + r, t_(r)))
    def unpack():
        for i in range(8): both(lambda r: "v_lshlrev_b32 v%d, 16, v%d\nv_and_b32 v%d, 0xffff0000, v%d" % (F(r) + 2 * i, RW(r) + i, F(r) + 2 * i + 1, RW(r) + i))
    def pack():
        for i in range(8): both(lambda r: "v_cvt_pk_bf16_f32 v%d, v%d, v%d" % (RW(r) + i, F(r) + 2 * i, F(r) + 2 * i + 1))
    ST = lambda r: 40 + 2 * r
    unpack()
    for i in range(4): both(lambda r: "v_pk_add_f32 %s, %s, %s" % (P(t_(r) + 2 * i), P(F(r) + 4 * i), P(F(r) + 4 * i + 2)))
    both(lambda r: "v_pk_add_f32 %s, %s, %s\nv_pk_add_f32 %s, %s, %s" % (P(t_(r)), P(t_(r)), P(t_(r) + 2), P(t_(r) + 4), P(t_(r) + 4), P(t_(r) + 6)))
    both(lambda r: "v_pk_add_f32 %s, %s, %s\nv_add_f32 v%d, v%d, v%d" % (P(t_(r)), P(t_(r)), P(t_(r) + 4), t_(r), t_(r), t_(r) + 1))
    dsum()
    both(lambda r: "v_mul_f32 v%d, s%d, v44" % (ST(r), 67 + r))
    for i in range(8): both(lambda r: "v_pk_add_f32 %s, %s, %s op_sel_hi:[1,0] neg_lo:[0,1] neg_hi:[0,1]" % (P(D(r) + 2 * i), P(F(r) + 2 * i), P(ST(r))))
    both(lambda r: "v_pk_mul_f32 %s, %s, %s" % (P(t_(r)), P(D(r)), P(D(r))))
    for i in range(1, 8): both(lambda r: "v_pk_fma_f32 %s, %s, %s, %s" % (P(t_(r)), P(D(r) + 2 * i), P(D(r) + 2 * i), P(t_(r))))
    both(lambda r: "v_add_f32 v%d, v%d, v%d" % (t_(r), t_(r), t_(r) + 1))
    dsum()
    both(lambda r: "v_mul_f32 v%d, s%d, v44" % (ST(r) + 1, 67 + r))
    both(lambda r: "v_cvt_pk_bf16_f32 v%d, v%d, v%d\nv_lshlrev_b32 v%d, 16, v%d\nv_and_b32 v%d, 0xffff0000, v%d" % (t_(r), ST(r), ST(r) + 1, ST(r), t_(r), ST(r) + 1, t_(r)))
    both(lambda r: ("v_add_f32 V, %s, V\nv_cvt_pk_bf16_f32 V, V, V\nv_and_b32 V, 0xffff0000, V\nv_sqrt_f32 V, V\nv_cvt_pk_bf16_f32 V, V, V\nv_and_b32 V, 0xffff0000, V\nv_rcp_f32 V, V" % fx(1e-5)).replace("V", "v%d" % (ST(r) + 1)))
    for i in range(8): both(lambda r: "v_pk_add_f32 %s, %s, %s op_sel_hi:[1,0] neg_lo:[0,1] neg_hi:[0,1]" % (P(F(r) + 2 * i), P(F(r) + 2 * i), P(ST(r))))
    pack(); unpack()
    for i in range(8): both(lambda r: "v_pk_mul_f32 %s, %s, %s op_sel:[0,1] op_sel_hi:[1,1]" % (P(F(r) + 2 * i), P(F(r) + 2 * i), P(ST(r))))
    pack()
    for r in range(2):
        for h in range(2): s.lg("ds_write_b128 v%d, %s offset:%d" % (52 + r, Q(RW(r) + 4 * h), 8192 * h))
    s("s_mov_b64 exec, 1")
    for r in range(2): s.vm("buffer_store_dwordx2 %s, v46, s[36:39], s74 offen offset:%d %s" % (P(ST(r)), 64 * r, SC))
    s("s_mov_b64 exec, -1")
    s.wait(None, drain=["lg"])
    stamp(s, "lnc")
    s("s_barrier")
    for k in range(4): s.lg("ds_read_b128 %s, v54 offset:%d" % (Q(64 + 4 * k), 4096 * k), ("ln", k))
    for k in range(4): s.vm("buffer_store_dwordx4 %s, v55, s[48:51], s%d offen %s" % (Q(64 + 4 * k), 70 + k, SC), ("xn", k), needs=[("ln", k)])
    stamp(s, "xnst")
    nD_a = cfg.get("d_t2", 0)
    nD_b = cfg.get("d_t3", 2)
    for st in range(nD_a): pro_stage(st)
    s("s_mul_i32 s%d, s%d, 0x9E3779B1\ns_add_u32 s%d, s%d, 0x7F4A7C15" % (sTAG, sTAG, sTAG, sTAG))
    cq = Seq()
    cL, cC, cL8, cL16, cL64, cL512 = 16, 20, 24, 28, 32, 36
    for k in range(4): cq("v_lshlrev_b32 v%d, 16, v%d" % (42 + k, 16 + k))
    cq("v_lshlrev_b32 v46, 16, v20\nv_lshlrev_b32 v58, 16, v21")
    cq("v_mul_f32 v46, %s, v46\nv_mul_f32 v58, %s, v58" % (fx(LOG2E), fx(LOG2E)))
    cq("v_exp_f32 v46, v46\nv_exp_f32 v58, v58")
    cq("v_cvt_pk_bf16_f32 v59, v46, v58\nv_lshlrev_b32 v58, 16, v59\nv_and_b32 v59, 0xffff0000, v59")
    cq("v_pk_mul_f32 v[24:25], v[58:59], v[42:43]\nv_pk_mul_f32 v[26:27], v[58:59], v[44:45]")
    cq("v_mul_f32 v24, %s, v24\nv_mul_f32 v25, %s, v25" % (fx(LOG2E), fx(LOG2E)))
    cq("v_exp_f32 v24, v24\nv_exp_f32 v25, v25")
    cq("v_mul_f32 v26, 0.15915494, v26\nv_mul_f32 v27, 0.15915494, v27")
    cq("v_rndne_f32 v52, v26\nv_rndne_f32 v53, v27\nv_sub_f32 v26, v26, v52\nv_sub_f32 v27, v27, v53")
    cq("v_cos_f32 v52, v26\nv_cos_f32 v53, v27\nv_sin_f32 v54, v26\nv_sin_f32 v55, v27")
    cq("v_pk_mul_f32 %s, v[24:25], v[52:53]\nv_pk_mul_f32 v[54:55], v[24:25], v[54:55]" % P(cL))
    cq("v_pk_add_f32 v[52:53], %s, -1.0 op_sel_hi:[1,0]" % P(cL))
    cq("v_pk_mul_f32 v[24:25], v[42:43], v[42:43]\nv_pk_fma_f32 v[24:25], v[44:45], v[44:45], v[24:25]")
    cq("v_rcp_f32 v24, v24\nv_rcp_f32 v25, v25")
    cq("v_pk_mul_f32 v[26:27], v[52:53], v[42:43]\nv_pk_fma_f32 v[26:27], v[54:55], v[44:45], v[26:27]")
    cq("v_pk_mul_f32 v[56:57], v[54:55], v[42:43]\nv_pk_fma_f32 v[56:57], v[52:53], v[44:45], v[56:57] neg_lo:[1,0,0] neg_hi:[1,0,0]")
    cq("v_pk_add_f32 v[24:25], v[24:25], v[24:25]")
    cq("v_pk_mul_f32 %s, v[26:27], v[24:25]\nv_pk_mul_f32 %s, v[56:57], v[24:25]" % (P(cC), P(cC + 2)))
    cq("v_sub_f32 v%d, 0, v54\nv_sub_f32 v%d, 0, v55" % (cL + 2, cL + 3))
    def sq(d, x): cmul_pk(cq, d, d + 2, x, x + 2, x, x + 2, 52)
    sq(cL8, cL); sq(cL8, cL8); sq(cL8, cL8); sq(cL16, cL8); sq(cL64, cL16); sq(cL64, cL64); sq(cL512, cL64); sq(cL512, cL512); sq(cL512, cL512)
    consts = cq.units()
    EP_LDS = cfg.get("ep_lds", 131072); EPW = 16384 if EP_LDS <= 98304 else 8192
    PK = dict(C=252, CA=253, TOK=254, COL=255, D=240, H=241, TA=242, TRW=243, TRR=244, AG=245)
    cq("v_lshrrev_b32 v40, 1, v48\nv_xor_b32 v40, v40, v49\nv_lshlrev_b32 v40, 4, v40\nv_lshl_add_u32 v40, v48, 7, v40")
    cq("v_add_u32 v%d, %d, v40\nv_xor_b32 v%d, 64, v%d\nv_accvgpr_write_b32 a%d, v40" % (vBA0, B_BASE, vBA1, vBA0, PK["CA"]))
    cq("v_lshrrev_b32 v40, 1, v49\nv_lshlrev_b32 v40, 4, v40\nv_and_b32 v41, 1, v49\nv_lshlrev_b32 v41, 2, v41\nv_lshrrev_b32 v50, 2, v48\nv_add3_u32 v11, v40, v41, v50")
    cq("v_mul_u32_u24 v40, 224, v11\nv_and_b32 v51, 3, v0\nv_lshl_add_u32 v%d, v51, 3, v40\nv_add_u32 v%d, 0x10000, v%d" % (vWA, vWA2, vWA))
    cq("s_mul_i32 s69, s%d, %d\ns_add_u32 s69, s69, %d" % (sW, EPW, EP_LDS + 2048))
    cq("v_and_b32 v41, 1, v49\nv_xor_b32 v41, v41, v51\nv_lshlrev_b32 v40, 5, v11\nv_lshl_add_u32 v40, v41, 3, v40\nv_add_u32 v40, s69, v40\nv_accvgpr_write_b32 a%d, v40" % PK["TRR"])
    cq("v_lshrrev_b32 v40, 1, v48\nv_xor_b32 v40, v40, v48\nv_and_b32 v40, 4, v40\nv_mul_u32_u24 v40, 3, v40\nv_xor_b32 v40, v40, v48\nv_lshrrev_b32 v41, 2, v40\nv_xor_b32 v41, v41, v49\nv_lshlrev_b32 v40, 5, v40\nv_lshl_add_u32 v40, v41, 3, v40\nv_add_u32 v40, s69, v40\nv_accvgpr_write_b32 a%d, v40" % PK["TRW"])
    cq("v_lshrrev_b32 v40, 2, v0\nv_and_b32 v41, 7, v40\nv_lshlrev_b32 v41, 5, v41\nv_lshl_add_u32 v41, v40, 8, v41\nv_lshl_add_u32 v41, v51, 3, v41\nv_accvgpr_write_b32 a%d, v41" % PK["TA"])
    cq("s_lshl_b32 s65, s%d, 2\nv_add_u32 v40, s65, v49\nv_and_b32 v41, 7, v40\nv_bfe_u32 v51, v0, 1, 3\nv_xor_b32 v41, v41, v51\ns_lshl_b32 s66, s%d, 1\nv_xor_b32 v41, s66, v41\nv_lshlrev_b32 v41, 5, v41" % (sW, sQ))
    cq("v_and_b32 v51, 1, v0\nv_lshl_add_u32 v41, v51, 4, v41\ns_mul_i32 s67, s%d, 896\nv_add_u32 v40, s67, v40\nv_lshl_add_u32 v40, v40, 11, v41\ns_lshl_b32 s67, s%d, 8\nv_add_u32 v40, s67, v40\nv_accvgpr_write_b32 a%d, v40" % (sQ, sTN, PK["D"]))
    cq("s_lshl_b32 s65, s%d, 18\ns_lshl_b32 s66, s%d, 9\ns_add_u32 s65, s65, s66\nv_add_u32 v40, s65, v47\nv_accvgpr_write_b32 a%d, v40" % (sTN, sQ, PK["C"]))
    cq("v_lshlrev_b32 v40, 4, v50\nv_lshl_add_u32 v40, v51, 3, v40\nv_bfe_u32 v41, v48, 1, 1\ns_lshl_b32 s65, s%d, 6\nv_add3_u32 v40, v40, v41, s65\nv_accvgpr_write_b32 a%d, v40" % (sB, PK["TOK"]))
    cq("s_lshl_b32 s65, s%d, 7\ns_lshl_b32 s66, s%d, 5\ns_add_u32 s65, s65, s66\nv_lshl_add_u32 v40, v49, 2, s65\nv_accvgpr_write_b32 a%d, v40" % (sTN, sQ, PK["COL"]))
    cq("s_sub_u32 s65, 32, s%d\ns_lshl_b32 s65, s65, 13\ns_lshl_b32 s66, s%d, 8\ns_add_u32 s65, s65, s66\nv_lshl_add_u32 v40, v48, 4, s65\nv_lshl_add_u32 v40, v49, 16, v40\nv_accvgpr_write_b32 a%d, v40" % (sB, sJ, PK["AG"]))
    NPB = cfg.get("npb", 4); ld, lc = 112 // NPB, 64 // NPB
    assert ld * NPB == 112 and lc * NPB == 64
    cq("s_lshl_b32 s65, s2, 1\ns_and_b32 s66, s%d, 1\ns_add_u32 s65, s65, s66\ns_mul_i32 s65, s65, %d\nv_min_u32 v40, %d, v0\nv_lshl_add_u32 v40, v40, 7, s65" % (sW, ld * 128, ld - 1))
    cq("s_mul_i32 s65, s2, %d\nv_min_u32 v41, %d, v0\nv_lshl_add_u32 v41, v41, 7, s65" % (lc * 128, lc - 1))
    cq("s_bitcmp1_b32 s%d, 0\ns_cselect_b32 s65, s90, s88\ns_cselect_b32 s66, s91, s89\ns_mov_b32 s67, %d\ns_mov_b32 s68, %d" % (sW, 3584 * 2048, 512 * ld * 128))
    cq("s_cmp_ge_u32 s%d, 2\ns_cselect_b64 vcc, -1, 0\nv_cndmask_b32 v%d, v40, v41, vcc" % (sW, vPB))
    cq("s_cselect_b32 s44, s65, s84\ns_cselect_b32 s45, s66, s85\ns_cselect_b32 s46, %d, s67\ns_cselect_b32 s%d, %d, s68" % (1024 * 2048, sPBs, 256 * lc * 128))
    cq("s_and_b32 s45, s45, 0xffff\ns_mov_b32 s47, 0x20000\ns_mov_b32 s%d, 0" % sKPB)
    if CP:
        cq("s_lshr_b32 s65, s2, 3\ns_lshl_b32 s65, s65, 1\ns_lshr_b32 s66, s%d, 1\ns_add_u32 s65, s65, s66\ns_lshl_b32 s65, s65, 7\ns_add_u32 s92, s98, s65\ns_addc_u32 s93, s99, 0" % sW)
    ncp = [0]
    def cpf(o, vp, early=None):
        if not CP or not cfg.get("cpf2", 1): return
        ncp[0] += 1; L = "L_cp%d" % ncp[0]
        o.atom([L + ":", "s_mov_b32 s82, %s-L_pc+%d" % (L, cfg.get("cpf_la", 2048))], early)
        o("s_min_u32 s82, s82, L_codeend-L_pc-8192")
        o.atom(["s_add_u32 s82, s82, s92", "s_addc_u32 s83, s93, 0"])
        o("v_mov_b32 v%d, s82\nv_mov_b32 v%d, s83" % (vp, vp + 1))
        o.vm("global_load_dword a246, v[%d:%d], off" % (vp, vp + 1))
    cq("s_lshl_b32 s65, s%d, 17\ns_add_u32 s8, s6, s65\ns_addc_u32 s9, s7, 0\ns_and_b32 s9, s9, 0xffff\ns_mov_b32 s10, 0x20000" % sB)
    addr = cq.units()
    na = cfg.get("fa_at", 40)
    s("s_lshl_b32 s74, s2, 4\ns_lshl_b32 s67, s%d, 2\ns_add_u32 s74, s74, s67\ns_add_u32 s75, s74, 0x%x\ns_add_u32 s74, s74, 0x%x\nv_mov_b32 v62, s%d\nv_mov_b32 v63, 0" % (sW, SM_F1B, SM_F1, sTAG))
    def scc_live(k):
        for u in addr[k:]:
            o = u[0][0].text.split()[0]
            if o.startswith(("s_cselect", "s_addc")): return True
            if o.startswith(("s_cmp", "s_bitcmp", "s_add_u32", "s_lshl", "s_lshr", "s_and", "s_sub")): return False
        return False
    while scc_live(na): na += 1
    s.u += addr[:na]
    TWO = cfg.get("two", 1)
    flag(s, "buffer_store_dword v62, v63, s[36:39], s74 offen %s" % SC, [("xn", 0 if TWO else 3), "agfill"])
    stamp(s, "flag1")
    for st in range(nD_a, nD_b): pro_stage(st)
    s.u += addr[na:]
    if TWO: flag(s, "buffer_store_dword v62, v63, s[36:39], s75 offen %s" % SC, [("xn", 3)])
    half = cfg.get("poll_at", 50)
    s.u += consts[:half]
    s("v_and_b32 v40, 31, v0\nv_lshlrev_b32 v40, 2, v40\ns_lshl_b32 s65, s%d, 7\ns_add_u32 s65, s65, 0x%x" % (sB, SM_F1))
    f1load = "buffer_load_dword v41, v40, s[36:39], s65 offen %s" % SC
    s.vm(f1load, "f1")
    if not cfg.get("tr_early"): s.u += consts[half:]
    if cfg.get("tramp", 1):
        s("s_mov_b64 exec, 0")
        for w in range(1, 4): s("s_cmp_eq_u32 s%d, %d\ns_cbranch_scc1 L_tr%d" % (sW, w, w * cfg.get("tramp", 1)))
        s("s_branch L_tr0")
        s.atom([".p2align 12"]); s.atom(["L_main:"])
        s("s_mov_b64 exec, -1")
    if cfg.get("tr_early"): s.u += consts[half:]
    poll(s, "P1", f1load, 41, "f1")
    stamp(s, "poll1")
    NXP = cfg.get("nxpre", 1)
    for u in range(NXP):
        for m in range(4): xload(s, u, m)
    for _ in range(cfg.get("pf_t4", 0)): pfa(s)
    npfa = cfg.get("pf_t0", 0) + cfg.get("pf_t1", 2) + cfg.get("pf_t4", 0)
    tiles = []
    for q in range(7): tiles += [("G", q), ("U", q)]
    tiles += [("R", 0), ("I", 0), ("R", 1), ("I", 1)]
    def acc(t, m):
        k, q = t
        if k == "R": return ("v", 64 + 16 * q + 4 * m)
        if k == "I": return ("v", 96 + 16 * q + 4 * m)
        o = 32 * q + (16 if k == "U" else 0) + 4 * m
        return ("v", 128 + o) if q < 4 else ("a", o - 128)
    L0 = cfg.get("l1_lead", 3)
    groups = [(u, ti) for u in range(32) for ti in range(18)]
    NG = len(groups)
    parts = lambda G: [0, 1] if groups[G][1] < 14 else [None]
    def read1(G, part):
        u, ti = groups[G]; st, kk = divmod(u, 2); t = tiles[ti]; f = G % NWB
        if t[0] in "GU":
            off = (st & 1) * W_ST + (U_OFF if t[0] == "U" else 0) + kk * 7168 + part * 1792 + t[1] * 32
            return Op("ds_read_b64_tr_b16 %s, v%d offset:%d" % (R("a", aW + 4 * f + 2 * part, 2), (vWA, vWA2)[(st >> 1) & 1], off), "lg", K(("F", G, part)))
        off = (st & 3) * B_ST + (4096 if t[0] == "I" else 0) + t[1] * 2048
        return Op("ds_read_b128 %s, v%d offset:%d" % (R("a", aW + 4 * f, 4), vBA1 if kk else vBA0, off), "lg", K(("F", G, part)))
    rgap = {}
    for G in range(NG):
        f = G % 36
        g = G if f < 33 else G - (1 if f < 35 else 2)
        rgap[G] = 4 * (g - L0) - 1
        assert rgap[G] >= 4 * (G - NWB) + 3
    gneed = lambda G: [("F", G, p) for p in parts(G)] + ([("X", groups[G][0], m) for m in range(4)] if groups[G][1] == 0 else [])
    s.wait([("D", 0, k) for k in range(9)])
    s("s_barrier")
    for G in range(NG):
        if rgap[G] < 0:
            for p in parts(G): s.op(read1(G, p))
    s.wait(gneed(0))
    stamp(s, "loop1")
    prog.add(s.done())
    mf = []
    for G, (u, ti) in enumerate(groups):
        t = tiles[ti]
        for m in range(4):
            xr = ("a", aX + 16 * (u % NX) + 4 * m); wr = ("a", aW + 4 * (G % NWB))
            mf.append(Op(mfma16(acc(t, m), wr, xr, u == 0) if t[0] in "GU" else mfma16(acc(t, m), xr, wr, u == 0)))
    sc = Sch(mf)
    for G in range(1, NG):
        w = Op("", needs=K(gneed(G))); w.keep = True
        sc.put(4 * G - 1, [w], 0)
    for G in range(NG):
        if rgap[G] >= 0: sc.put(rgap[G], [read1(G, p) for p in parts(G)], 1)
    bar = {}
    for st in range(15):
        bar[st] = 4 * (36 * (st + 1) - L0) - 2
        sc.put(bar[st], [Op("s_barrier", needs=K([("D", st + 1, k) for k in range(9)]), drain=["lg"])], 0)
    items = []
    PFL = cfg.get("pfl", 1.0)
    pft = {}
    if cfg.get("pf1", 1):
        ev = cfg.get("pf_first", 40); st = npfa
        while st < 16:
            n = 0
            while st < 16 and n < cfg.get("pf_max", 2) and (n == 0 or 144 * (st - 3 - PFL) < ev):
                e = max(int(144 * (st - 3 - PFL)), ev); pft[st] = e; items.append((0, 2, e, "a", st, 0)); st += 1; n += 1
            ev = e + cfg.get("pf_min", 120)
    for st in range(nD_b, 16):
        e = max(bar[st - 4] + 1 if st >= 4 else 0, pft.get(st, -1000) + cfg.get("pf_lat", 80))
        for k in range(9): items.append((bar[st - 1], 0, e, "d", st, k))
    for u in range(NXP, 32):
        e = 72 * (u - NX + 1) - 1 if u >= NX else 0
        for m in range(4): items.append((72 * u - 1, 1, e, "x", u, m))
    f1cload = "buffer_load_dword v41, v40, s[36:39], s64 offen %s" % SC
    if cfg.get("pf2", 1):
        for c in range(NPB): items.append((0, 2, cfg.get("pfb_first", 1700) + int(c * cfg.get("pfb_sp", 110)), "b", c, 0))
    now = 0; pend = sorted(items); done = []; quiet = -1
    while pend:
        av = [x for x in pend if x[2] <= now]
        if not av: now += 1; continue
        x = av[0]; pend.remove(x)
        if x[3] == "d": dma1(s, x[4], x[5], int(now))
        elif x[3] == "x":
            if TWO and x[4:] == (8, 0): poll(s, "P1c", f1cload, 41, "f1c", early=int(now))
            xload(s, x[4], x[5], int(now))
            if TWO and x[4:] == (6, 3): s("s_add_u32 s64, s65, 0x%x" % (SM_F1B - SM_F1)); s.vm(f1cload, "f1c")
        elif x[3] == "a":
            s.at(int(now)); pfa(s); quiet = now + cfg.get("q_len", 64)
            if [y for y in pend if y[3] == "a" and y[2] <= now]: now -= cfg.get("q_sp", 10) - 4
        else: s.at(int(now)); pfb(s); quiet = now + cfg.get("q_len", 64)
        if x[3] in "dx": done.append((x, len(s.u) - 1))
        if x[3:] == ("x", 8, 0): i_p1c = len(s.u) - 1
        now += cfg.get("q_sp", 10) if now < quiet else cfg.get("l1_sp", 5)
    res = sc.stream(s.units(), 0, 2)
    sl = sorted((x[0] - res[i], x[3], x[4], x[5]) for x, i in done)
    if cfg.get("verbose"): print("loop1 vm end", res[-1], "of", 4 * NG, "min slacks", sl[:3], "steady", min(z for z in sl if z[2] > 8))
    for nm in names:
        if TS and nm[0] == "f" and nm[1:].isdigit():
            st_ = int(nm[1:])
            sc.put(bar[st_] - 1, [Op("s_memrealtime s[100:101]")], 5)
            sc.put(bar[st_], [Op("v_writelane_b32 v%d, s100, %d" % (vTS, names.index(nm)))], 5)
    for g in range(cfg.get("cp1_first", 300), 2304, cfg.get("cp1_sp", 400)): cpf(s, 50, g)
    sc.stream(s.units(), 0, 3, vmspace=2)
    aBS = 160
    assert NX <= 4
    s.at(res[i_p1c] + 2)
    srd(s, 48, 4, 5, 2048 * 2048); srd(s, 32, 94, 95, 2048)
    s("v_accvgpr_read_b32 v12, a%d\nv_accvgpr_read_b32 v48, a%d\nv_lshlrev_b32 v48, 1, v48\nv_lshl_add_u32 v11, v12, 11, v48\nv_lshlrev_b32 v12, 3, v12\ns_mov_b32 s66, 0x%x" % (PK["TOK"], PK["COL"], SM_ST))
    for u in range(2): s.vm("buffer_load_dwordx2 %s, v48, s[32:35], 0 offen offset:%d" % (P(40 + 2 * u), 32 * u))
    for m in range(4):
        s("s_mov_b32 s67, %d" % (4096 * m))
        s.vm("buffer_load_dwordx2 v[44:45], v12, s[36:39], s66 offen offset:%d" % (16 * m))
        for u in range(2):
            s.delay(cfg.get("e_sp", 12)); s.vm("buffer_load_dwordx2 %s, v11, s[48:51], s67 offen offset:%d" % (P(52 + 2 * u), 32 * u), ("E", m, u))
        s.delay(cfg.get("e_lat", 110))
        s.wait([("E", m, 1)])
        for u in range(2):
            def unp(d, x):
                for h in range(2): s("v_lshlrev_b32 v%d, 16, v%d\nv_and_b32 v%d, 0xffff0000, v%d" % (d + 2 * h, x + h, d + 2 * h + 1, x + h))
            def rnd():
                for h in range(2): s("v_cvt_pk_bf16_f32 v%d, v%d, v%d" % (48 + h, 60 + 2 * h, 61 + 2 * h))
                unp(60, 48)
            unp(56, 52 + 2 * u)
            for k in range(4): s("v_sub_f32 v%d, v%d, v44" % (60 + k, 56 + k))
            rnd()
            for k in range(4): s("v_mul_f32 v%d, v%d, v45" % (60 + k, 60 + k))
            rnd()
            for h in range(2):
                s("v_lshlrev_b32 v46, 16, v%d\nv_and_b32 v47, 0xffff0000, v%d\nv_mul_f32 v%d, v%d, v46\nv_mul_f32 v%d, v%d, v47" % (40 + 2 * u + h, 40 + 2 * u + h, 60 + 2 * h, 60 + 2 * h, 61 + 2 * h, 61 + 2 * h))
            rnd()
            for k in range(4): s("v_add_f32 v%d, v%d, v%d" % (56 + k, 56 + k, 60 + k))
            for k in range(4): s("v_accvgpr_write_b32 a%d, v%d" % (aBS + 16 * u + 4 * m + k, 56 + k))
    rb = sc.stream(s.units(), 0, 3, vmspace=2)
    assert rb[-1] < res[-1]
    vEW, vER, vTG, vAG, vTRW, vTRR, vCP, vH8, vD1, vPAd, vPD, vD0 = 2, 3, 4, 5, 6, 7, 8, 10, 11, 12, 13, 14
    sM, sKD, sKH = 54, 55, 56
    c1 = -2.0 * math.sqrt(2.0 / math.pi) * LOG2E
    CC = 46
    s("v_accvgpr_read_b32 v%d, a%d\nv_lshlrev_b32 v%d, 3, v0\nv_add_u32 v%d, 32768, v%d" % (vD0, PK["D"], vH8, vD1, vD0))
    s("v_and_b32 v43, 31, v0\nv_lshlrev_b32 v43, 7, v43\ns_lshl_b32 s71, s%d, 2\ns_add_u32 s71, s71, 0x%x" % (sJ, SM_F1))
    s("s_mul_i32 s65, s%d, 176\ns_mul_i32 s66, s%d, 44\ns_add_u32 s65, s65, s66\ns_lshl_b32 s65, s65, 12\ns_add_u32 s65, s65, 0x%x" % (sB, sQ, WS_H))
    s.atom(["s_add_u32 s32, s6, s65", "s_addc_u32 s33, s7, 0"])
    s("s_and_b32 s33, s33, 0xffff\ns_mov_b32 s34, 0x%x\ns_mov_b32 s35, 0x20000" % (44 * 4096))
    srd(s, 12, 84, 85, 3584 * 2048); srd(s, 16, 88, 89, 1024 * 2048); srd(s, 20, 90, 91, 1024 * 2048)
    s("s_lshl_b32 s%d, s%d, 10" % (sM, sW))
    s("v_mov_b32 v46, %s\nv_mov_b32 v47, %s" % (fx(c1), fx(c1 * 0.044715)))
    ROT = cfg.get("rot", 1)
    sTQ = [96, 97, 98, 99, 48, 49, 50, 51]; sTS = [76, 77, 78, 80]; sJ12, sG7 = 44, 45
    s("s_and_b32 s67, s%d, 3\ns_lshl_b32 s67, s67, 1" % sI)
    for k in range(8):
        if k == 0: s("s_mov_b32 s65, s%d" % sTN)
        elif ROT: s("s_add_u32 s65, s67, %d\ns_sub_u32 s66, s65, 7\ns_min_u32 s65, s65, s66\ns_add_u32 s65, s65, 1\ns_xor_b32 s65, s65, s%d" % (k - 1, sTN))
        else: s("s_xor_b32 s65, s%d, %d" % (sTN, k))
        s("s_mul_i32 s65, s65, 7\ns_add_u32 s65, s65, 1\ns_lshr_b32 s65, s65, 1\ns_lshl_b32 s%d, s65, 12" % sTQ[k])
    s("s_lshr_b32 s67, s%d, 1" % sTN)
    for p in range(4): s("s_xor_b32 s65, s67, %d\ns_mul_i32 s65, s65, %d\ns_add_u32 s%d, s65, %d" % (p, 7 * 4096, sTS[p], 3 * 4096))
    s("s_lshl_b32 s%d, s%d, 12\ns_lshl_b32 s%d, s67, 7" % (sJ12, sTN, sG7))
    s("s_and_b32 s69, s%d, 1\ns_lshl_b32 s67, s69, 9\ns_add_u32 s67, s67, s%d" % (sTN, sTS[0]))
    s("s_add_u32 s72, s%d, %d\ns_add_u32 s73, s%d, %d\ns_mov_b32 s66, s%d" % (sJ12, 28 * 4096, sJ12, 36 * 4096, sTQ[0]))
    s("s_lshl_b32 s68, s%d, 2\ns_add_u32 s68, s68, s%d\ns_lshl_b32 s68, s68, 7\ns_add_u32 s68, s68, 0x%x" % (sB, sQ, SM_F3))
    s("s_lshl_b32 s81, s%d, 2\ns_add_u32 s81, s81, s68\nv_and_b32 v%d, 7, v0\nv_lshlrev_b32 v%d, 2, v%d" % (sTN, vPAd, vPAd, vPAd))
    s("s_sub_u32 s64, 31, s%d\ns_lshl_b32 s64, s64, 13\ns_lshl_b32 s65, s%d, 8\ns_add_u32 s64, s64, s65" % (sB, sJ))
    s("s_mul_i32 s46, s%d, %d\ns_add_u32 s46, s46, %d" % (sW, EPW, EP_LDS))
    f1bload = "buffer_load_dword v44, v43, s[36:39], s71 offen %s" % SC
    s.vm(f1bload, "f1b")
    steps = [("g", 0, 2), ("g", 0, 0), ("g", 0, 1)]
    for k in range(1, 8): steps += [("g", k, 0), ("g", k, 1)]
    UB = len(steps)
    for k in range(1, 8): steps += [("g", k, 2)] + ([("s", k // 2, 0)] if k % 2 else [])
    assert len(steps) == 28
    cst = [("r", 0), ("i", 0), ("r", 1), ("r", 2), ("r", 3), ("i", 1), ("i", 2), ("i", 3)]
    steps += [("c", 14, 0), ("c", 15, 0), ("c", 14, 1), ("c", 15, 1)]
    for st in range(16, 22): steps += [("c", st, 0), ("c", st, 1)]
    own = {0, 1, 2, 28, 29}; UC = 30
    NST = 22; KC = cfg.get("kc", 8)
    slot = {st: st % 8 for st in range(22)}; prevocc = {st: (st - 8 if st >= 8 else None) for st in range(22)}
    aW2 = 0; aAG = 32
    vC, vCA = 16, 20
    def dma2(s, st, k, early=None, vC=vC):
        if st < 14:
            kind, x, p = steps[2 * st + k // 2]
            if k % 2 == 0:
                if kind == "g" and p: s("s_add_u32 s%d, s%d, %d\ns_lshl_b32 s%d, s%d, 4" % (sKD, sTQ[x], p * 4096, sKD, sKD))
                else: s("s_lshl_b32 s%d, s%d, 4" % (sKD, (sTQ if kind == "g" else sTS)[x]))
            v, sr = (vD0, vD1)[k % 2], 12
        else:
            part, p = cst[st - 14]
            if k == 0: s("s_xor_b32 s%d, s%d, %d" % (sKD, sG7, p * 128))
            v, sr = vC + k, (16 if part == "r" else 20)
        s("s_add_u32 m0, s%d, %d" % (sM, slot[st] * 16384 + k * 4096))
        s.op(Op("buffer_load_dwordx4 v%d, s[%d:%d], s%d offen lds" % (v, sr, sr + 3, sKD), "vm", K(("D2", st, k))), early)
    NPRE = 4
    s.at(max(bar[13] + 1, cfg.get("pre_at", 2170)))
    for st in range(NPRE):
        for k in range(4):
            dma2(s, st, k)
            if (st, k) != (NPRE - 1, 3): s.delay(cfg.get("pre_sp", 5))
    r = sc.stream(s.units(), res[-1] + 2, 3)
    prog.add(sc.ops())
    vTA = 40
    s("s_barrier")
    stamp(s, "end1")
    F0 = 44 - KC
    groups = [(uu, u) for uu in range(F0) for u in range(8)]
    for d in (1, 2, 3, 0): groups += [(uu, u) for uu in range(F0, 44) for u in (2 * d, 2 * d + 1)]
    NG = len(groups)
    lastuse = {}; firstuse = {}
    for G, (uu, u) in enumerate(groups): firstuse.setdefault(uu, G); lastuse[uu] = G
    hreg = {0: ("v", 48), 1: ("a", 96), 2: ("a", 112), 28: ("a", 32), 29: ("a", 48)}; hfree = {}
    pool = [(-1, r) for r in [128, 144, 192, 208, 224, 64, 80, 160, 176][:cfg.get("nhs", 9)]] + [(4 * lastuse[u] + 3, hreg[u][1]) for u in (1, 2, 28, 29)]
    for u in range(44):
        if u in own: continue
        pool.sort(key=lambda x: x[0]); e, r = pool.pop(0)
        hreg[u] = ("a", r); hfree[u] = e; pool.append((4 * lastuse[u] + 3, r))
    def hload(s, u, m, early=None):
        kind, x, p = steps[u]
        if m == 0:
            if kind == "g": s("s_add_u32 s%d, s%d, %d" % (sKH, sTQ[x], p * 4096))
            elif kind == "s": s("s_mov_b32 s%d, s%d" % (sKH, sTS[x]))
            else:
                part, pp = cst[x - 14]
                s("s_xor_b32 s%d, s%d, %d\ns_add_u32 s%d, s%d, %d" % (sKH, sJ12, (2 * pp + p) * 4096, sKH, sKH, (28 if part == "r" else 36) * 4096))
        d = hreg[u][1] + 4 * m
        if kind == "s":
            s.op(Op("buffer_load_dwordx2 %s, v%d, s[32:35], s%d offen offset:%d" % (R("a", d, 2), vH8, sKH, 1024 * m), "vm"), early)
            s.op(Op("buffer_load_dwordx2 %s, v%d, s[32:35], s%d offen offset:%d" % (R("a", d + 2, 2), vH8, sKH, 1024 * m + 512), "vm", K(("H", u, m))))
        else: s.op(Op("buffer_load_dwordx4 %s, v1, s[32:35], s%d offen offset:%d" % (R("a", d, 4), sKH, 1024 * m), "vm", K(("H", u, m))), early)
    hst = cfg.get("hst", SC)
    def gelu_pair(base0, base1, pid, T, OUT, keep=None, hook=None):
        for m in range(4):
            o = OUT[m % len(OUT)]
            items = [(base0 + 4 * m, base0 + 16 + 4 * m, o), (base0 + 4 * m + 2, base0 + 18 + 4 * m, o + 1),
                     (base1 + 4 * m, base1 + 16 + 4 * m, o + 2), (base1 + 4 * m + 2, base1 + 18 + 4 * m, o + 3)]
            gelu_block(s, items, CC, T)
            s.vm("buffer_store_dwordx4 %s, v1, s[32:35], s66 offen offset:%d %s" % (Q(o), 1024 * m, hst), ("hs", pid, m))
            if keep is not None:
                for r in range(4): s("v_accvgpr_write_b32 a%d, v%d" % (keep + 4 * m + r, o + r))
            if hook: hook(m)
        s("s_add_u32 s66, s66, 4096")
    NPRE2 = cfg.get("npre2", 8)
    cpre = [(st, k) for st in range(NPRE, NPRE2) for k in range(4)]
    def cdma(n):
        for _ in range(n):
            if cpre: st, k = cpre.pop(0); dma2(s, st, k)
    npg = cfg.get("cpre_g", 0)
    cdma(cfg.get("cpre_0", 4))
    gelu_pair(128, 160, 0, 48, [56, 60], 96, lambda m: cdma(npg))
    cpf(s, 2)
    gelu_pair(192, 224, 1, 48, [56, 60], 112, lambda m: cdma(npg))
    stamp(s, "p01")
    def pkfma(d, s0, s1, s2, T, neg=False):
        s("v_pk_fma_f32 %s, %s, %s, %s op_sel:[%d,0,0] op_sel_hi:[%d,1,1]%s" % (P(d), P(s0), P(s1), P(s2), T, T, " neg_lo:[1,0,0] neg_hi:[1,0,0]" if neg else ""))
    def pkmul(d, s0, s1, T, neg=False):
        s("v_pk_mul_f32 %s, %s, %s op_sel:[%d,0] op_sel_hi:[%d,1]%s" % (P(d), P(s0), P(s1), T, T, " neg_lo:[1,0] neg_hi:[1,0]" if neg else ""))
    BR = lambda T, x: 64 + 16 * T + 2 * x
    BI = lambda T, x: 96 + 16 * T + 2 * x
    for x in range(8):
        for T in range(2):
            pkmul(128 + 2 * T, cC + 2, BI(T, x), T, True); pkmul(BI(T, x), cC, BI(T, x), T, True)
        for T in range(2):
            pkfma(BI(T, x), cC + 2, BR(T, x), BI(T, x), T, True); pkfma(BR(T, x), cC, BR(T, x), 128 + 2 * T, T)
    sr = [BR(0, 0), BR(1, 0)]; si = [BI(0, 0), BI(1, 0)]
    bufs = [[132, 134], [138, 140]]; SI = [136, 142]
    for x in range(1, 8):
        nr = [bufs[T][x % 2] for T in range(2)]
        for T in range(2): pkfma(nr[T], cL, sr[T], BR(T, x), T)
        for T in range(2): pkfma(nr[T], cL + 2, si[T], nr[T], T, True)
        for T in range(2): pkfma(SI[T], cL, si[T], BI(T, x), T)
        for T in range(2): pkfma(SI[T], cL + 2, sr[T], SI[T], T)
        sr = nr; si = list(SI)
        if x % 2: cdma(1)
    EA = 20
    for T in range(2):
        s("v_mov_b32 v%d, v%d\nv_mov_b32 v%d, v%d\nv_mov_b32 v%d, v%d\nv_mov_b32 v%d, v%d" % (EA + T, sr[T], EA + 2 + T, si[T], 144 + T, sr[T] + 1, 146 + T, si[T] + 1))
    horner_pk(s, EA, cL8, 144, 144)
    s("v_add_u32 v%d, s46, v1\nv_and_b32 v%d, 0xf0, v1\nv_add_u32 v%d, s46, v%d\nv_mov_b32 v%d, s%d" % (vEW, vER, vER, vER, vTG, sTAG))
    s.lg("ds_write_b128 v%d, v[144:147]" % vEW)
    for g in range(4): s.lg("ds_read_b128 %s, v%d offset:%d" % (Q(148 + 4 * g), vER, 256 * g), ("e", g))
    fstore = lambda off: "buffer_store_dword v%d, v%d, s[36:39], s81 offen offset:%d %s" % (vTG, vPAd, off, SC)
    fload = lambda off: "buffer_load_dword v%d, v%d, s[36:39], s68 offen offset:%d %s" % (vPD, vPAd, off, SC)
    for r in range(32):
        s("v_accvgpr_read_b32 v%d, a%d" % (192 + r, r))
        if r % 16 == 15: cdma(1)
    flag(s, fstore(0), [("hs", 1, 3)])
    for g in range(1, 4):
        s.wait([("e", g)]); horner_pk(s, 148 + 4 * (g - 1), cL16, 148 + 4 * g, 148 + 4 * g)
    for r in range(160, 164): s("v_min_u32 v%d, -2, v%d" % (r, r))
    s.atom(["s_mov_b64 exec, 0xffff", Op("buffer_store_dwordx4 v[160:163], v1, s[36:39], s64 offen %s" % SC, "vm"), "s_mov_b64 exec, -1"])
    stamp(s, "pub")
    poll(s, "P1b", f1bload, 44, "f1b")
    for r in range(32, 64):
        s("v_accvgpr_read_b32 v%d, a%d" % (192 + r, r))
        if r % 16 == 15: cdma(1)
    nh_pre = [3]
    def issue_h(n):
        for u in range(nh_pre[0], nh_pre[0] + n):
            for m in range(4): hload(s, u, m)
        nh_pre[0] += n
    hp = [int(c) for c in str(cfg.get("hp", "111"))]
    pa_l = cfg.get("pa_l", 2)
    def hookA(m):
        cdma(1)
        if m == pa_l: s.vm(fload(0), "f3a")
    gelu_pair(192, 224, 2, 168, [48, 52, 56, 60], None, hookA)
    for r in range(32): s("v_accvgpr_read_b32 v%d, a%d" % (128 + r, aBS + r))
    cdma(16)
    cpf(s, vCP)
    for r in range(32): s("v_accvgpr_read_b32 v%d, a%d" % (192 + r, 64 + r))
    PA_IN = cfg.get("pa_in", 0)
    if not PA_IN:
        poll(s, "P3a", fload(0), vPD, "f3a"); stamp(s, "ok3a"); issue_h(hp[0])
    for mp in range(2):
        o = 240 + 4 * mp; items = []
        for mm in range(2):
            m = 2 * mp + mm
            items += [(192 + 4 * m, 208 + 4 * m, o + 2 * mm), (194 + 4 * m, 210 + 4 * m, o + 2 * mm + 1)]
        gelu_block(s, items, CC, 168)
        if mp == 0:
            s("v_accvgpr_read_b32 v%d, a%d" % (vTA, PK["TA"]))
            for u in range(1, 6): s("v_xor_b32 v%d, %d, v%d" % (vTA + u, 32 * u, vTA))
        if not PA_IN: issue_h(hp[1 + mp])
        for mm in range(2):
            s.vm("buffer_store_dwordx2 %s, v%d, s[32:35], s67 offen offset:%d %s" % (P(o + 2 * mm), vH8, 1024 * (2 * mp + mm), hst), ("hsS", 2 * mp + mm))
        if mp == 0:
            s.wait([("D2", 0, k) for k in range(4)])
            s("s_barrier")
            pre_reads_at = len(s.u)
    for u in range(6, 8): s("v_xor_b32 v%d, %d, v%d" % (vTA + u, 32 * u, vTA))
    L2 = cfg.get("l2_lead", 3)
    def read2(G, part):
        uu, u = groups[G]; f = G % NWB
        if uu < 28:
            st, kk = divmod(uu, 2)
            return Op("ds_read_b64_tr_b16 %s, v%d offset:%d" % (R("a", aW2 + 4 * f + 2 * part, 2), vTA + u, (slot[st] % 4) * 16384 + kk * 8192 + part * 4096), "lg", K(("F2", G, part)))
        _, st, kk = steps[uu]
        return Op("ds_read_b128 %s, v%d offset:%d" % (R("a", aW2 + 4 * f, 4), vCA + 2 * (slot[st] >= 4) + kk, (slot[st] % 4) * 16384 + u * 2048), "lg", K(("F2", G, part)))
    parts = lambda G: [0, 1] if groups[G][0] < 28 else [None]
    mf = []
    for G, (uu, u) in enumerate(groups):
        for m in range(4):
            mf.append(Op(mfma16(("v", 128 + 16 * u + 4 * m), ("a", aW2 + 4 * (G % NWB)), (hreg[uu][0], hreg[uu][1] + 4 * m), zero=(uu == 0 and u >= 2))))
    sc = Sch(mf)
    def gneed(G):
        uu, u = groups[G]
        return [("F2", G, p) for p in parts(G)] + ([("H", uu, m) for m in range(4)] if firstuse[uu] == G and uu not in own else [])
    rgap = {}
    for G in range(NG):
        st, f = divmod(G, 16)
        if st < 14:
            if f <= 4: rgap[G] = 4 * (G - L2) - 1
            elif f == 5: rgap[G] = 4 * (G - 1 - L2) + 1
            elif f <= 10: rgap[G] = 4 * (G - 1 - L2) - 1
            elif f == 11: rgap[G] = 4 * (G - 2 - L2) + 1
            else: rgap[G] = 4 * (G - 2 - L2) - 1
        else: rgap[G] = 4 * (G - L2) - 1
        assert rgap[G] >= 4 * (G - NWB) + 3
    pr = Seq()
    for G in range(NG):
        if rgap[G] < 0:
            for p in parts(G): pr.op(read2(G, p))
    s.u[pre_reads_at:pre_reads_at] = pr.units()
    s.wait(gneed(0))
    stamp(s, "loop2")
    prog.add(s.done())
    for G in range(1, NG):
        w = Op("", needs=K(gneed(G))); w.keep = True
        sc.put(4 * G - 1, [w], 0)
    for G in range(NG):
        if rgap[G] >= 0:
            if rgap[G] % 4 != 3: sc.put(rgap[G], [Op("s_waitcnt lgkmcnt(15)")], 0)
            sc.put(rgap[G], [read2(G, p) for p in parts(G)], 1)
    bar = {}
    for st in range(14):
        bar[st] = 4 * (16 * (st + 1) - L2) - 2
        pub = [st + 1] if st < 13 else [14, 15, 16, 17]
        sc.put(bar[st], [Op("s_barrier", needs=K([("D2", x, k) for x in pub for k in range(4)]), drain=["lg"])], 0)
    for st in (3, 7, 11):
        for i_, g_ in enumerate((1, 2, 4, 5)):
            sc.put(bar[st] - g_, [Op("v_xor_b32 v%d, 0x10000, v%d" % (vTA + 2 * i_ + k, vTA + 2 * i_ + k)) for k in range(2)], 2)
        assert max(rgap[G] for G in range(16 * st, 16 * st + 16)) < bar[st] - 5
    barF = min(rgap[G] for G in range(NG) if groups[G][0] >= 36) - 1
    sc.put(barF, [Op("s_barrier", needs=K([("D2", x, k) for x in range(18, 22) for k in range(4)]))], 0)
    def mark(o, nm): o.u[-1].append(nm)
    def after(o, nm, n): o.u.append([[Op("")], lambda mk: (mk[nm] + n) if nm in mk else None])
    def dly(o, n): o.u.append([[Op("")], lambda mk: mk["_prev"] + n])
    gl = []
    t = Seq()
    t("v_accvgpr_read_b32 v%d, a%d\nv_accvgpr_read_b32 v%d, a%d\nv_accvgpr_read_b32 v%d, a%d" % (vAG, PK["AG"], vTRW, PK["TRW"], vTRR, PK["TRR"]))
    t("s_mov_b32 s40, s36\ns_mov_b32 s41, s37\ns_mov_b32 s42, 0x40000\ns_mov_b32 s43, 0x20000")
    t.at(cfg.get("ag_gap", 32))
    t("v_lshrrev_b32 v48, 4, v0\nv_cmp_eq_u32 s[64:65], 1, v48\nv_cmp_eq_u32 s[66:67], 2, v48\nv_cmp_eq_u32 s[74:75], 3, v48")
    for x in range(7, -1, -1):
        t("s_mov_b32 s57, %d" % (8192 * x))
        g = "buffer_load_dwordx4 %s, v%d, s[40:43], s57 offen %s" % (R("a", aAG + 4 * x, 4), vAG, SC)
        gl.append("s_mov_b32 s57, %d\n%s" % (8192 * x, g))
        t.vm(g, ("ag", x))
        if x: dly(t, cfg.get("ag_sp", 8))
    mark(t, "ag")
    srd(t, 8, 86, 87, 2048 * 4096)
    flag(t, fstore(32), [("hsS", 3)], early=cfg.get("fb_gap", 80)); mark(t, "flagb")
    after(t, "ag", cfg.get("ag_lat", 20))
    def ag_horner(o, w):
        cur = None
        for x in range(7, -1, -1):
            q = 48 + 4 * (x % 2)
            if w: o.wait([("ag", x)])
            for r in range(4): o("v_accvgpr_read_b32 v%d, a%d" % (q + r, aAG + 4 * x + r))
            if not w: o(("v_max3_u32 v56, v%d, v%d, v%d\nv_max_u32 v56, v56, v%d" % (q, q + 1, q + 2, q + 3)) if x == 7 else ("v_max3_u32 v56, v56, v%d, v%d\nv_max3_u32 v56, v56, v%d, v%d" % (q, q + 1, q + 2, q + 3)))
            if cur is not None: horner_sc(o, cur, cL64, q)
            cur = q
    ag_horner(t, True)
    t("v_cmp_u_f32 s[70:71], v48, v49")
    t.atom(["v_cmp_u_f32 vcc, v50, v51", "s_or_b64 vcc, vcc, s[70:71]", "s_cbranch_scc1 PAG_retry", "PAG_ok:"])
    ool("PAG_retry:\n" + "\n".join(gl) + "\ns_waitcnt vmcnt(0)")
    ag_horner(ool, False)
    ool("v_cmp_eq_u32 vcc, -1, v56\ns_and_b64 vcc, vcc, exec\ns_cbranch_scc0 PAG_ok\ns_cmp_eq_u32 s79, 0\ns_cbranch_scc1 PAG_ok\ns_sub_u32 s79, s79, 1\ns_sleep 1\ns_branch PAG_retry")
    t.lg("ds_write_b128 v%d, v[48:51] offset:1024" % vEW)
    for g, r in ((3, 52), (2, 56), (1, 60)): t.lg("ds_read_b128 %s, v%d offset:%d" % (Q(r), vER, 1024 + 256 * g), ("s", g))
    t.lg("ds_read_b128 %s, v%d offset:1024" % (Q(48), vER), ("s", 0))
    dly(t, 8)
    t.wait([("s", 2)]); horner_sc(t, 52, cL512, 56)
    t.lg("ds_read_b128 %s, v%d" % (Q(52), vER), ("e2", 0))
    t.wait([("s", 1)]); horner_sc(t, 56, cL512, 60)
    t.lg("ds_read_b128 %s, v%d offset:256" % (Q(56), vER), ("e2", 1))
    t.wait([("s", 0)]); horner_sc(t, 60, cL512, 48)
    t.lg("ds_read_b128 %s, v%d offset:512" % (Q(60), vER), ("e2", 2))
    t.wait([("e2", 0)]); horner_sc(t, 48, cL16, 52)
    t.wait([("e2", 1)]); horner_sc(t, 52, cL16, 56)
    t.wait([("e2", 2)]); horner_sc(t, 56, cL16, 60)
    for g, sm in ((52, 64), (56, 66), (60, 74)):
        for r in range(4): t("v_cndmask_b32 v%d, v%d, v%d, s[%d:%d]" % (48 + r, 48 + r, g + r, sm, sm + 1))
    horner_sc(t, 48, cL8, EA)
    t("v_xor_b32 v52, 16, v%d" % vTRR)
    st_r = {(T, h): (48, EA)[h] + T for T in range(2) for h in range(2)}
    st_i = {(T, h): (48, EA)[h] + 2 + T for T in range(2) for h in range(2)}
    TH = [(T, h) for T in range(2) for h in range(2)]
    xs = Seq()
    for x in range(8):
        for (T, h) in TH: t("v_fmac_f32 v%d, v%d, v%d" % (BR(T, x) + h, cL + T, st_r[T, h]))
        for (T, h) in TH: t("v_fmac_f32 v%d, v%d, v%d" % (BI(T, x) + h, cL + T, st_i[T, h]))
        for (T, h) in TH: t("v_fma_f32 v%d, -v%d, v%d, v%d" % (BR(T, x) + h, cL + 2 + T, st_i[T, h], BR(T, x) + h))
        for (T, h) in TH: t("v_fmac_f32 v%d, v%d, v%d" % (BI(T, x) + h, cL + 2 + T, st_r[T, h]))
        for (T, h) in TH: st_r[T, h] = BR(T, x) + h; st_i[T, h] = BI(T, x) + h
        if x % 2 == 1:
            m = x // 2; mo = (m % 2) * 2048
            for part, Fn in enumerate((BR, BI)):
                for T in range(2):
                    o = 56 + 4 * part + 2 * T
                    t("v_cvt_pk_bf16_f32 v%d, v%d, v%d\nv_cvt_pk_bf16_f32 v%d, v%d, v%d" % (o, Fn(T, x - 1), Fn(T, x - 1) + 1, o + 1, Fn(T, x), Fn(T, x) + 1))
                    t.lg("ds_write_b64 v%d, %s offset:%d" % (vTRW, P(o), mo + part * 1024 + 512 * T))
                t.atom(["s_waitcnt lgkmcnt(15)"] + [Op("ds_read_b64_tr_b16 %s, v%d offset:%d" % (R("a", aAG + 16 * part + 4 * m + 2 * half, 2), (vTRR, 52)[half], mo + part * 1024 + 256 * half), "lg", K(("tr", m, part, half))) for half in range(2)])
                mark(t, ("tr", m, part))
                after(xs, ("tr", m, part), 10)
                if (m, part) != (0, 0) and m < 3: after(xs, ("hl", m - 1 + part, 1 - part), cfg.get("hl_sp", 24))
                xs.vm("buffer_store_dwordx4 %s, v1, s[32:35], s%d offen offset:%d %s" % (R("a", aAG + 16 * part + 4 * m, 4), 72 + part, 1024 * m, hst), ("hl", m, part), needs=[("tr", m, part, 1)])
                mark(xs, ("hl", m, part))
    dly(xs, cfg.get("fc_lat", 60))
    flag(xs, fstore(64), [("hl", 3, 1)]); mark(xs, "flagc")
    t("v_accvgpr_read_b32 v48, a%d\nv_accvgpr_read_b32 v%d, a%d" % (PK["C"], vCA, PK["CA"]))
    for k in range(4): t("s_xor_b32 s65, s%d, %d\ns_lshl_b32 s65, s65, 16\nv_add_u32 v%d, s65, v48" % (sQ, k, vC + k))
    t("s_and_b32 s65, s%d, 1\ns_lshl_b32 s65, s65, 6\nv_xor_b32 v%d, s65, v%d" % (sTN, vCA, vCA))
    t("v_xor_b32 v%d, 64, v%d\nv_add_u32 v%d, 0x10000, v%d\nv_xor_b32 v%d, 64, v%d" % (vCA + 1, vCA, vCA + 2, vCA, vCA + 3, vCA + 2))
    vOO = 28
    t("v_accvgpr_read_b32 v24, a%d\nv_accvgpr_read_b32 v25, a%d\nv_lshlrev_b32 v25, 2, v25\nv_lshl_add_u32 v%d, v24, 12, v25" % (PK["TOK"], PK["COL"], vOO))
    mark(t, "cready")
    RB = lambda u, m: 128 + 16 * u + 4 * m
    after(t, "flagc", 1)
    t.atom(["s_add_u32 s40, s6, 0x%x" % WS_PART, "s_addc_u32 s41, s7, 0"])
    t("s_and_b32 s41, s41, 0xffff\ns_mov_b32 s42, 0x1000000\ns_mov_b32 s43, 0x20000")
    t("s_lshl_b32 s65, s%d, 3\ns_add_u32 s65, s65, s%d\ns_lshl_b32 s66, s65, 18\ns_lshl_b32 s67, s%d, 12\ns_add_u32 s66, s66, s67" % (sI, sTN, sW))
    for d in (1, 2, 3):
        t("s_xor_b32 s67, s%d, %d\ns_lshl_b32 s%d, s67, 16\ns_add_u32 s%d, s%d, s66\ns_add_u32 s%d, s%d, %d" % (sQ, d, 72 + d, 72 + d, 72 + d, 72 + d, 72 + d, d * 16384))
        t("s_lshl_b32 s67, s67, 4\ns_add_u32 s67, s67, %d\nv_mov_b32 v%d, s67" % (4 * d, 28 + d))
        t("s_lshl_b32 s%d, s%d, 16\ns_add_u32 s%d, s%d, s66\ns_add_u32 s%d, s%d, %d" % (69 + d, sQ, 69 + d, 69 + d, 69 + d, 69 + d, d * 16384))
    t("s_lshl_b32 s69, s65, 2\ns_add_u32 s69, s69, s%d\ns_lshl_b32 s69, s69, 7\ns_add_u32 s69, s69, 0x%x" % (sW, SM_F4))
    t("s_lshl_b32 s67, s%d, 4\nv_and_b32 v32, 3, v0\nv_lshl_add_u32 v32, v32, 2, s67" % sQ)
    t("s_mov_b32 s57, 0\ns_mov_b32 s58, 8192\ns_mov_b32 s59, 16384\ns_mov_b32 s64, 24576")
    t("v_mov_b32 v34, 0x3f80\nv_mov_b32 v35, 0x3f800000")
    mark(t, "setup")
    f4store = lambda d: "buffer_store_dword v%d, v%d, s[36:39], s69 offen %s" % (vTG, 28 + d, SC)
    gp = lambda d: 4 * (8 * F0 + 2 * KC * d) - 1 + 3
    post = Seq(); lim = cfg.get("nsend_in", 12)
    for d in (1, 2, 3):
        t.at(gp(d))
        for m in range(4):
            A = 128 + 32 * d + 4 * m; Bq = A + 16
            t("v_cvt_pk_bf16_f32 v%d, v%d, v%d\nv_cvt_pk_bf16_f32 v%d, v%d, v%d\nv_cvt_pk_bf16_f32 v%d, v%d, v%d\nv_cvt_pk_bf16_f32 v%d, v%d, v%d" % (A, A, A + 1, A + 1, A + 2, A + 3, A + 2, Bq, Bq + 1, A + 3, Bq + 2, Bq + 3))
            mark(t, ("cv", d, m))
            after(xs, ("cv", d, m), 1)
            xs.vm("buffer_store_dwordx4 %s, v1, s[40:43], s%d offen offset:%d %s" % (Q(A), 72 + d, 1024 * m, SC), ("ps", d, m)); mark(xs, ("ps", d, m))
            if d >= 2 and m == cfg.get("f4_m", 2): flag(xs, f4store(d - 1), [("ps", d - 1, 3)])
    hs = Seq(); hdl = {}
    if PA_IN: poll(hs, "P3a", fload(0), vPD, "f3a", early=cfg.get("pa_gap", 4))
    for u in range(nh_pre[0], 44):
        if u in own: continue
        for (U, nm, off, fl, lat) in ((UB, "P3b", 32, "flagb", cfg.get("pb_lat", 80)), (UC, "P3c", 64, "flagc", cfg.get("pc_lat", 80))):
            if u == (U - 2 if U == UB else U):
                after(hs, fl, lat); hs.vm(fload(off), nm); mark(hs, nm + "l")
            if u == U:
                after(hs, nm + "l", cfg.get("poll_rt", 44)); poll(hs, nm, fload(off), vPD, nm); mark(hs, nm)
        n0 = len(hs.u)
        for m in range(4): hload(hs, u, m, max(hfree[u], 4 * firstuse[u] - cfg.get("l2_la", 400)))
        for i in range(n0, len(hs.u)): hdl[i] = 4 * firstuse[u] - 1
        mark(hs, ("H", u))
    ds = Seq(); ddl = {}
    DL = lambda st: bar[st - 1] if st < 14 else (bar[13] if st < 18 else barF)
    for st in range(NPRE2, 22):
        n0 = len(ds.u)
        if st == "E":
            after(ds, "cready", 1); after(ds, ("hl", 3, 1), 1)
            for n in range(4):
                ds("s_mov_b32 s%d, %d\ns_add_u32 m0, s46, %d" % (sKD, 32768 * n, 2048 + 1024 * n))
                ds.vm("buffer_load_dwordx4 v26, s[24:27], s%d offen lds" % sKD)
            ds("s_add_u32 m0, s46, 6144"); ds.vm("buffer_load_dwordx4 v1, s[36:39], s59 offen lds")
            ds("s_add_u32 m0, s46, 7168"); ds.vm("buffer_load_dwordx4 v1, s[28:31], s58 offen lds", "Elast"); mark(ds, "edma")
            dl = 900
        else:
            if st == 14: after(ds, "cready", 1)
            for k in range(4): dma2(ds, st, k, bar[prevocc[st]] + 1 if st >= 8 else 0)
            dl = DL(st)
            mark(ds, ("D", st))
        for i in range(n0, len(ds.u)): ddl[i] = dl
    cs_ = Seq()
    for g in range(cfg.get("cp2_first", 200), 1300, cfg.get("cp2_sp", 250)): cpf(cs_, vCP, g)
    mk = multi(sc, [Stream("h", hs.units(), 2, deadline=lambda i: hdl.get(i, 0)), Stream("d", ds.units(), 2, deadline=lambda i: ddl.get(i, 0)),
                    Stream("x", xs.units(), 2), Stream("t", t.units(), 3, start=1), Stream("c", cs_.units(), 4)],
               cl=cfg.get("cl", 75), cs=cfg.get("cs", 240), B0=cfg.get("b0", 150), busy0=cfg.get("busy0", 300))
    sl = sorted([(4 * firstuse[u] - 1 - mk[("H", u)], "h", u) for u in range(nh_pre[0], 44) if u not in own] + [(DL(st) - mk[("D", st)], "d", st) for st in range(NPRE2, 22)])
    if cfg.get("verbose"):
        print("loop2 slacks", sl[:6], {k: v for k, v in mk.items() if isinstance(k, str)}, "hl", [mk[("hl", m, p)] for m in range(4) for p in range(2)], "ps", [mk[("ps", d, m)] for d in (1, 2, 3) for m in range(4)], "barF", barF)
    assert sl[0][0] > cfg.get("minslack", 30), sl[:4]
    assert mk["cready"] < rgap[firstuse[28]] and mk[("hl", 3, 1)] < 4 * firstuse[28] - 1 and mk["setup"] < gp(1)
    for nm in names:
        if TS and nm[0] == "g" and nm[1:].isdigit():
            g_ = 4 * (16 * (int(nm[1:]) + 1) - L2) - 2
            sc.put(g_ - 1, [Op("s_memrealtime s[100:101]")], 5)
            sc.put(g_, [Op("s_waitcnt lgkmcnt(0)\nv_writelane_b32 v%d, s100, %d" % (vTS, names.index(nm)))], 5)
    if cfg.get("drop"):
        for g in range(cfg.get("drop_lo", 120), cfg.get("drop_hi", 600)):
            for it in sc.g[g]:
                o = it[2]
                if it[0] in (2, 3) and o.text and "\n" not in o.text and not o.text.endswith(":"):
                    c = opclass(o.text)
                    if it[0] == 2 and not (c == "X" and "x4" in o.text): continue
                    if c in cfg["drop"] and "cmp" not in o.text and not any(("v%d," % r) in o.text.split(None, 2)[1] + "," for r in range(16, 32)):
                        o.text = "s_nop 0" if cfg.get("dropnop") else ""
    prog.add(sc.ops())
    stamp(s, "end2")
    flag(s, f4store(3), [("ps", 3, 3)])
    stamp(s, "drain4")
    f4load = "buffer_load_dword v33, v32, s[36:39], s69 offen %s" % SC
    s.vm(f4load, "f4")
    def recv(d):
        poll(s, "P4%d" % d, f4load, 33, "f4", mask=str(1 << d))
        for m in range(4): s.vm("buffer_load_dwordx4 %s, v1, s[40:43], s%d offen offset:%d %s" % (Q(128 + 32 * d + 16 + 4 * m), 69 + d, 1024 * m, SC), ("pl", d, m))
    def addp(d, m):
        s.wait([("pl", d, m)])
        for k in range(8):
            r = RB(k // 4, m) + k % 4
            s("v_dot2_f32_bf16 v%d, v%d, v%d, v%d" % (r, 128 + 32 * d + 16 + 4 * m + k // 2, 34 + k % 2, r))
    recv(1); recv(2); recv(3)
    stamp(s, "poll4")
    for d in (1, 2):
        for m in range(4): addp(d, m)
    sM4 = [57, 58, 59, 64]
    for m in range(4):
        addp(3, m)
        if m > 0:
            for u in range(2): s.vm("buffer_store_dwordx4 %s, v%d, s[8:11], s%d offen offset:%d %s" % (Q(RB(u, m - 1)), vOO, sM4[m - 1], 64 * u, cfg.get("ost", SC)))
    s("s_nop 2")
    for u in range(2): s.vm("buffer_store_dwordx4 %s, v%d, s[8:11], s%d offen offset:%d %s" % (Q(RB(u, 3)), vOO, sM4[3], 64 * u, cfg.get("ost", SC)))
    prog.add(s.done())
    prog.emit(a)
    a("s_cmp_eq_u32 s%d, 31\ns_cbranch_scc0 L_noep\ns_cmp_eq_u32 s%d, 0\ns_cbranch_scc0 L_noep" % (sB, sJ))
    a("v_mov_b32 v40, 0x%x\ns_mov_b64 exec, 1\nbuffer_store_dword v%d, v40, s[36:39], 0 offen %s\ns_mov_b64 exec, -1" % (SM_EP, vTG, SC))
    a("L_noep:")
    if TS:
        a("s_waitcnt vmcnt(0)\ns_memrealtime s[100:101]\ns_waitcnt lgkmcnt(0)\nv_writelane_b32 v%d, s100, %d" % (vTS, len(names) - 1))
        a("s_cmp_lg_u32 s%d, %d\ns_cbranch_scc1 L_end" % (sW, cfg.get("tsw", 0)))
        ws_srd(a, 12, WS_TS, 16384)
        a("s_lshl_b32 s75, s2, 6\nv_lshlrev_b32 v1, 2, v0\ns_mov_b64 exec, 0xffff\nbuffer_store_dword v%d, v1, s[12:15], s75 offen" % vTS)
    a("L_end:")
    a("s_endpgm")
    a.lines += ool.lines
    a("L_codeend:")
    return name, a

def inst_sizes(lines):
    import subprocess, tempfile, os, re
    d = tempfile.mkdtemp()
    und = sorted(set(re.findall(r"L_tr\d+", "\n".join(lines))))
    open(d + "/a.s", "w").write('.amdgcn_target "amdgcn-amd-amdhsa--gfx950"\n' + "\n".join(l for l in lines if not l.startswith(".p2align 12")) + "\n" + "".join(u + ":\n" for u in und))
    subprocess.check_call(["clang", "-x", "assembler", "-target", "amdgcn-amd-amdhsa", "-mcpu=gfx950", "-c", d + "/a.s", "-o", d + "/a.o"])
    o = subprocess.check_output(["llvm-objdump", "-d", "--mcpu=gfx950", d + "/a.o"], text=True)
    sz = [4 * len(m.group(1).split()) for m in re.finditer(r"// [0-9A-F]+: ([0-9A-F ]+)", o)]
    n = sum(1 for l in lines if parse(l))
    assert n == len(sz), (n, len(sz))
    return sz

def add_stubs(lines, cfg):
    NL = cfg.get("tramp", 1); step = cfg.get("tr_step", 128)
    sz = iter(inst_sizes(lines)); size = [next(sz) if parse(l) else 0 for l in lines]
    i0 = lines.index("L_main:"); iend = lines.index("L_end:")
    out = lines[:i0 + 1]; off = 0; targets = [4096 * p + step * k for p in range(1, 40) for k in range(NL)]
    n = 0; pos = []
    def penalty(i):
        if not lines[i - 1].startswith("v_mfma"): return 0 if not any(l.startswith("v_mfma") for l in lines[max(0, i - 6):i + 6]) else 1
        j = i; c = ["S"]
        while not lines[j].startswith("v_mfma") and j - i < 8:
            try: c.append(opclass(lines[j]))
            except AssertionError: return 0
            j += 1
        t = gap_time(c)
        return 0 if (t is not None and t <= 16) else 1
    for i in range(i0 + 1, len(lines)):
        if i < iend and size[i] and off >= targets[n] and (penalty(i) == 0 or off + size[i] > targets[n] + 56):
            out.append("L_tr%d:" % n); out.append(("STUB", n)); off += 4; n += 1
        out.append(lines[i]); off += size[i]
    n -= n % NL
    res = []
    for l in out:
        if isinstance(l, tuple):
            k = l[1]; nx = k + 1 if (k + 1) % NL else k + 1 + 3 * NL
            res.append("s_cbranch_execz %s" % ("L_tr%d" % nx if nx < n else "L_main"))
        else: res.append(l)
    return res

def build(cfg):
    name, a = gen(cfg)
    hdr = open("cdna_kernels/%s.s.ref" % NAME).read().split("; Override launch")[0]
    out = hdr + "; @launch grid=(256,1,1) block=(256,1,1) lds=163840\n"
    out += '.amdgcn_target "amdgcn-amd-amdhsa--gfx950"\n'
    lines = pad_hazards([l for l in a.lines if l], cfg.get("verbose", 0) > 1)
    if cfg.get("tramp", 1): lines = add_stubs(lines, cfg)
    if cfg.get("verbose"): print(gap_report(lines))
    out += "\n".join(lines) + "\n"
    if cfg.get("cyc"): out = out.replace("s_memrealtime", "s_memtime")
    b = Asm(); kernel_desc(b, name, 512, accum=256); out += b.text()
    return out

if __name__ == "__main__":
    cfg = {}
    for kv in sys.argv[2:]:
        k, v = kv.split("=")
        try: v = int(v)
        except ValueError:
            try: v = float(v)
            except ValueError: v = v.replace("+", " ")
        cfg[k] = v
    open(sys.argv[1], "w").write(build(cfg))
```

```python
import sys, math, struct
from asmlib import *

NAME = "parallel_sum__ssm_conv_s5__glu_gated_geglu__prompt"
KX, KLRE, KLIM, KBRE, KBIM, KCRE, KCIM, KLDT, KDSK, KBX, KWG, KWU, KWD, KOUT, KDBG, KWS = [8 * i for i in range(16)]
WS_XN = 0
WS_H = 0x400000
H_BLK = 176 * 4096
WS_SM = 0x1A00000
SM_AG = 0; SM_ST = 0x40000; SM_F1 = 0x44000; SM_F3 = 0x45000; SM_F4 = 0x49000; SM_EP = 0x51000; SM_F1B = 0x52000; SM_SIZE = 0x53000
WS_TS = 0x1A60000
WS_PART = 0x2000000
NSTAMPS = [16]
SPLIT_LAYOUT = True
STAMPS = []

def f2u(x): return struct.unpack("<I", struct.pack("<f", x))[0]
def fx(x): return "0x%08x" % f2u(x)
P = lambda r: "v[%d:%d]" % (r, r + 1)
Q = lambda r: "v[%d:%d]" % (r, r + 3)
LOG2E = 1.4426950408889634
K = lambda v: (lambda it: v)

def ws_srd(a, r, off, size):
    a("s_add_u32 s%d, s6, 0x%x\ns_addc_u32 s%d, s7, 0\ns_and_b32 s%d, s%d, 0xffff\ns_mov_b32 s%d, 0x%x\ns_mov_b32 s%d, 0x20000" % (r, off, r + 1, r + 1, r + 1, r + 2, size, r + 3))

def mfma16(d, A, B, zero=False):
    return "v_mfma_f32_16x16x32_bf16 %s, %s, %s, %s" % (R(d[0], d[1], 4), R(A[0], A[1], 4), R(B[0], B[1], 4), "0" if zero else R(d[0], d[1], 4))

def cmul_pk(a, dr, di, ar, ai, br, bi, t):
    a("v_pk_mul_f32 %s, %s, %s" % (P(t), P(ai), P(bi)))
    a("v_pk_fma_f32 %s, %s, %s, %s neg_lo:[0,0,1] neg_hi:[0,0,1]" % (P(t), P(ar), P(br), P(t)))
    a("v_pk_mul_f32 %s, %s, %s" % (P(t + 2), P(ar), P(bi)))
    a("v_pk_fma_f32 %s, %s, %s, %s" % (P(di), P(ai), P(br), P(t + 2)))
    a("v_mov_b32 v%d, v%d\nv_mov_b32 v%d, v%d" % (dr, t, dr + 1, t + 1))

def horner_pk(a, s, L, e, d):
    a("v_pk_fma_f32 %s, %s, %s, %s" % (P(d), P(L), P(s), P(e)))
    a("v_pk_fma_f32 %s, %s, %s, %s" % (P(d + 2), P(L), P(s + 2), P(e + 2)))
    a("v_pk_fma_f32 %s, %s, %s, %s neg_lo:[1,0,0] neg_hi:[1,0,0]" % (P(d), P(L + 2), P(s + 2), P(d)))
    a("v_pk_fma_f32 %s, %s, %s, %s" % (P(d + 2), P(L + 2), P(s), P(d + 2)))

def horner_sc(a, s, L, e):
    for T in range(2):
        a("v_fmac_f32 v%d, v%d, v%d" % (e + T, L + T, s + T)); a("v_fmac_f32 v%d, v%d, v%d" % (e + 2 + T, L + T, s + 2 + T))
    for T in range(2):
        a("v_fma_f32 v%d, -v%d, v%d, v%d" % (e + T, L + 2 + T, s + 2 + T, e + T)); a("v_fmac_f32 v%d, v%d, v%d" % (e + 2 + T, L + 2 + T, s + T))

def gelu_block(a, items, CC, T):
    for k, (g, u, o) in enumerate(items): a("v_pk_mul_f32 %s, %s, %s" % (P(T + 2 * k), P(g), P(g)))
    for k, (g, u, o) in enumerate(items): a("v_pk_fma_f32 %s, %s, %s, %s op_sel:[0,1,0] op_sel_hi:[1,1,0]" % (P(T + 2 * k), P(T + 2 * k), P(CC), P(CC)))
    for k, (g, u, o) in enumerate(items): a("v_pk_mul_f32 %s, %s, %s" % (P(T + 2 * k), P(T + 2 * k), P(g)))
    for k, (g, u, o) in enumerate(items):
        a("v_exp_f32 v%d, v%d" % (T + 2 * k, T + 2 * k)); a("v_exp_f32 v%d, v%d" % (T + 2 * k + 1, T + 2 * k + 1))
        a("v_pk_mul_f32 %s, %s, %s" % (P(u), P(g), P(u)))
    for k, (g, u, o) in enumerate(items): a("v_pk_add_f32 %s, %s, 1.0 op_sel_hi:[1,0]" % (P(T + 2 * k), P(T + 2 * k)))
    for k, (g, u, o) in enumerate(items):
        a("v_rcp_f32 v%d, v%d" % (T + 2 * k, T + 2 * k)); a("v_rcp_f32 v%d, v%d" % (T + 2 * k + 1, T + 2 * k + 1))
    for k, (g, u, o) in enumerate(items): a("v_pk_mul_f32 %s, %s, %s" % (P(u), P(u), P(T + 2 * k)))
    for k, (g, u, o) in enumerate(items): a("v_cvt_pk_bf16_f32 v%d, v%d, v%d" % (o, u, u + 1))

class Seq:
    def __init__(self): self.u = []
    def __call__(self, s):
        for l in s.split("\n"):
            l = l.strip()
            assert not l.startswith(("buffer_", "global_", "ds_")), ("uncounted memory op", l)
            self.u.append([[Op(l)], None])
    def atom(self, ops, early=None): self.u.append([[o if isinstance(o, Op) else Op(o) for o in ops], early])
    def vm(self, text, tag=None, needs=None, early=None):
        if needs: self.wait(needs, early=early); early = None
        self.u.append([[Op(text, "vm", K(tag) if tag is not None else None)], early])
    def lg(self, text, tag=None, needs=None):
        if needs: self.wait(needs)
        self.u.append([[Op(text, "lg", K(tag) if tag is not None else None)], None])
    def wait(self, needs, drain=None, early=None): self.u.append([[Op("", needs=K(needs) if needs else None, drain=drain)], early])
    def op(self, o, early=None): self.u.append([[o], early])
    def delay(self, n):
        self._d = n; i = len(self.u) - 1
        self.u.append([[Op("")], lambda res, n=n: res[-1] + n])
    def at(self, g): self.u.append([[Op("")], g])
    def done(self):
        o = [x for un, _ in self.u for x in un]; self.u = []; return o
    def units(self):
        u = self.u; self.u = []; return u

W_ST = 28672; U_OFF = 14336
B_BASE = 131072; B_ST = 8192
LN_LDS = 65536 + W_ST

def gen(cfg):
    name = NAME + "_kernel"
    a = Asm(); kernel_header(a, name)
    ool = Asm()
    TS = cfg.get("ts")
    names = ["start"] + cfg.get("stamps", "flag1 poll1 loop1 end1 p01 pub ok3a loop2 end2 drain4 poll4").split() + ["end"]
    STAMPS[:] = names; NSTAMPS[0] = len(names)
    vTS = 15
    def stamp(s, nm):
        if TS and nm in names: s.atom(["s_memrealtime s[100:101]", "s_waitcnt lgkmcnt(0)", "v_writelane_b32 v%d, s100, %d" % (vTS, names.index(nm))])
    SC = "sc0 sc1"
    prog = Prog(); s = Seq()
    sJ, sI, sW, sB, sQ, sTN, sTAG = 60, 61, 62, 63, 52, 53, 3
    sMW, sM3, sMB, sKW, sKB, sKX, sCNT = 54, 55, 56, 57, 58, 59, 81
    sPAs, sKPA, sKPB, sPBs = 76, 77, 78, 80
    def poll(s, nm, loadtext, dst, tagneed, mask=None, early=None):
        s.wait([tagneed], early=early)
        s.atom(["%s_chk:" % nm, "v_cmp_ne_u32 vcc, s%d, v%d" % (sTAG, dst), "s_and_b64 vcc, vcc, %s" % (mask or "exec"), "s_cbranch_scc1 %s_retry" % nm, "%s_ok:" % nm])
        ool("%s_retry:\ns_cmp_eq_u32 s79, 0\ns_cbranch_scc1 %s_ok\ns_sub_u32 s79, s79, 1\ns_sleep 1\n%s\ns_waitcnt vmcnt(0)\ns_branch %s_chk" % (nm, nm, loadtext, nm))
    def flag(s, text, needs, early=None):
        s.wait(needs, early=early)
        s.atom(["s_mov_b64 exec, 1", Op(text, "vm"), "s_mov_b64 exec, -1"])

    s("s_cmp_ge_u32 s2, 256\ns_cbranch_scc1 L_end")
    if TS: s("s_memrealtime s[100:101]")
    CP = cfg.get("cpf", 1)
    s("s_load_dwordx2 s[4:5], s[0:1], %d" % KX)
    s("s_load_dwordx2 s[6:7], s[0:1], %d" % KWS)
    s("s_load_dwordx4 s[12:15], s[0:1], %d" % KWG)
    s("s_load_dwordx4 s[24:27], s[0:1], %d" % KBRE)
    s("s_load_dwordx4 s[72:75], s[0:1], %d" % KLRE)
    s("s_load_dwordx4 s[92:95], s[0:1], %d" % KLDT)
    s("s_load_dwordx4 s[84:87], s[0:1], %d" % KWD)
    s("s_load_dwordx4 s[88:91], s[0:1], %d" % KCRE)
    if CP:
        s("s_getpc_b64 s[98:99]")
        s.atom(["L_pc:"])
        s("s_lshr_b32 s64, s2, 3\ns_mul_i32 s64, s64, 28\nv_add_u32 v3, s64, v0\nv_cmp_gt_u32 vcc, 64, v0\nv_cndmask_b32 v2, v3, v0, vcc\nv_lshlrev_b32 v2, 7, v2")
        s("v_min_u32 v2, L_codeend-L_pc-4, v2\nv_mov_b32 v3, 0\nv_lshl_add_u64 v[2:3], v[2:3], 0, s[98:99]")
        s("v_cmp_gt_u32 vcc, 92, v0\ns_and_saveexec_b64 s[96:97], vcc\ns_cbranch_execz L_nocp")
        s.atom([Op("global_load_dword a246, v[2:3], off")])
        s.atom(["L_nocp:", "s_mov_b64 exec, -1"])
    s("v_lshrrev_b32 v1, 6, v0\nv_and_b32 v0, 63, v0")
    s("v_readfirstlane_b32 s%d, v1" % sW)
    s("v_lshlrev_b32 v1, 4, v0")
    s("s_mov_b32 s79, 0x40000")
    s("s_bfe_u32 s%d, s2, 0x20001" % sQ)
    s("s_and_b32 s64, s2, 1\ns_lshl_b32 s64, s64, 2\ns_lshr_b32 s%d, s2, 6\ns_add_u32 s%d, s%d, s64" % (sI, sI, sI))
    s("s_bfe_u32 s%d, s2, 0x30003" % sTN)
    s("s_lshl_b32 s%d, s%d, 3\ns_add_u32 s%d, s%d, s%d" % (sJ, sQ, sJ, sJ, sTN))
    s("s_lshl_b32 s%d, s%d, 2\ns_add_u32 s%d, s%d, s%d" % (sB, sI, sB, sB, sW))
    s("s_and_b32 s64, s2, 1\ns_lshl_b32 s64, s64, 1\ns_lshr_b32 s65, s%d, 1\ns_add_u32 s64, s64, s65\ns_lshl_b32 s64, s64, 4" % sW)
    s("s_and_b32 s65, s%d, 1\ns_add_u32 s64, s64, s65\ns_lshl_b32 s65, s%d, 1\ns_add_u32 s64, s64, s65" % (sW, sQ))
    s("s_lshr_b32 s66, s2, 3\ns_lshl_b32 s65, s66, 6\ns_add_u32 s64, s64, s65")
    s("s_lshl_b32 s67, s64, 11\ns_add_u32 s68, s67, %d" % (8 * 2048))
    s("s_mov_b32 s10, %d\ns_mov_b32 s11, 0x20000" % (2048 * 2048))
    s("s_waitcnt lgkmcnt(0)")
    if TS: s("v_writelane_b32 v%d, s100, 0" % vTS)
    stamp(s, "karg")
    s("s_mov_b32 s8, s4\ns_and_b32 s9, s5, 0xffff")
    for r in range(2):
        for h in range(2):
            s.vm("buffer_load_dwordx4 %s, v1, s[8:11], s%d offen offset:%d" % (Q(64 + 8 * r + 4 * h), 67 + r, 1024 * h), ("x", r, h))
    s("s_add_u32 s70, s6, 0x%x\ns_addc_u32 s71, s7, 0" % (WS_SM + SM_EP))
    s("s_load_dword s%d, s[70:71], 0" % sTAG)
    srd(s, 16, 14, 15, 1024 * 7168); srd(s, 12, 12, 13, 1024 * 7168)
    srd(s, 28, 26, 27, 1024 * 2048); srd(s, 24, 24, 25, 1024 * 2048)
    s("s_cmp_ge_u32 s%d, 2" % sW)
    s("s_cselect_b32 s20, s16, s12\ns_cselect_b32 s21, s17, s13\ns_mov_b32 s22, %d\ns_mov_b32 s23, 0x20000" % (1024 * 7168))
    ws_srd(s, 36, WS_SM, SM_SIZE)
    s("v_and_b32 v48, 15, v0\nv_lshrrev_b32 v49, 4, v0")
    s("s_lshl_b32 s69, s%d, 5\nv_add_u32 v40, s69, v48\nv_lshlrev_b32 v40, 1, v40" % sJ)
    for k, (lo, r) in enumerate(((72, 48), (74, 44), (92, 40))):
        srd(s, r, lo, lo + 1, 2048)
        for T in range(2):
            s.vm("buffer_load_ushort v%d, v40, s[%d:%d], 0 offen offset:%d" % (16 + 2 * k + T, r, r + 3, 32 * T), ("c", k, T))
    s("v_mov_b32 v41, -1\nv_lshlrev_b32 v42, 2, v0\ns_xor_b32 s69, s2, 0xf8\ns_lshl_b32 s69, s69, 10\ns_lshl_b32 s65, s%d, 8\ns_add_u32 s69, s69, s65" % sW)
    s.vm("buffer_store_dword v41, v42, s[36:39], s69 offen %s" % SC, "agfill")
    vWA, vBA0, vBA1, vWA2, vW0, vW3, vB, vJ, vPA, vPB = 2, 3, 4, 5, 6, 9, 10, 12, 13, 14
    s("s_lshl_b32 s70, s66, 1\ns_and_b32 s65, s2, 1\ns_add_u32 s70, s70, s65")
    s("s_mul_i32 s69, s70, 7168\ns_mul_i32 s65, s%d, 1792\ns_add_u32 s69, s69, s65\nv_min_u32 v40, 13, v0\nv_lshl_add_u32 v44, v40, 7, s69" % sQ)
    s("v_and_b32 v45, 3, v0\ns_lshl_b32 s69, s%d, 8\ns_lshl_b32 s65, s70, 2\ns_add_u32 s69, s69, s65\nv_add_u32 v45, s69, v45\nv_lshlrev_b32 v45, 11, v45" % sQ)
    s("s_mov_b32 s69, %d\ns_cmp_ge_u32 s%d, 2\ns_cselect_b64 vcc, -1, 0\nv_cndmask_b32 v%d, v44, v45, vcc\ns_cselect_b32 s%d, 128, s69" % (64 * 7168, sW, vPA, sPAs))
    s("s_cselect_b32 s40, s24, s12\ns_cselect_b32 s41, s25, s13\ns_cselect_b32 s69, s28, s16\ns_cselect_b32 s65, s29, s17\ns_cselect_b32 s42, s26, s14")
    s("s_bitcmp1_b32 s%d, 0\ns_cselect_b32 s40, s69, s40\ns_cselect_b32 s41, s65, s41\ns_mov_b32 s43, 0x20000\ns_mov_b32 s%d, 0" % (sW, sKPA))
    def pfa(s):
        s.vm("buffer_load_dword a246, v%d, s[40:43], s%d offen" % (vPA, sKPA)); s("s_add_u32 s%d, s%d, s%d" % (sKPA, sKPA, sPAs))
    def pfb(s):
        s.vm("buffer_load_dword a246, v%d, s[44:47], s%d offen" % (vPB, sKPB)); s("s_add_u32 s%d, s%d, s%d" % (sKPB, sKPB, sPBs))
    for _ in range(cfg.get("pf_t0", 0)): pfa(s)
    s("s_and_b32 s71, s%d, 1\ns_lshl_b32 s71, s71, 1\ns_mul_i32 s72, s%d, 224\ns_and_b32 s73, s%d, 1\ns_add_u32 s73, s73, 12" % (sJ, sJ, sW))
    for k in range(4):
        if k < 3: s("s_add_u32 s69, s%d, %d\ns_lshl_b32 s69, s69, 6" % (sW, 4 * k))
        else: s("s_lshl_b32 s69, s73, 6")
        s("v_add_u32 v40, s69, v0\nv_mul_u32_u24 v44, 4682, v40\nv_lshrrev_b32 v44, 16, v44\nv_mul_u32_u24 v45, 14, v44\nv_sub_u32 v45, v40, v45")
        s("v_add_u32 v45, s71, v45\nv_subrev_u32 v43, 14, v45\nv_min_u32 v45, v45, v43")
        s("v_lshrrev_b32 v43, 1, v44\nv_xor_b32 v43, v43, v44\nv_and_b32 v43, 4, v43\nv_mul_u32_u24 v43, 3, v43\nv_xor_b32 v44, v44, v43")
        s("v_mul_u32_u24 v44, 7168, v44\nv_lshl_add_u32 v44, v45, 4, v44\nv_add_u32 v%d, s72, v44" % (vW0 + k))
    s("v_lshrrev_b32 v50, 3, v0\ns_lshl_b32 s69, s%d, 3\nv_add_u32 v40, s69, v50\nv_bfe_u32 v44, v40, 1, 3\nv_and_b32 v51, 7, v0\nv_xor_b32 v44, v44, v51" % sW)
    s("v_lshlrev_b32 v47, 11, v40\nv_lshl_add_u32 v47, v44, 4, v47")
    s("s_lshl_b32 s69, s%d, 16\nv_add_u32 v%d, s69, v47" % (sJ, vB))
    s("s_lshl_b32 s%d, s%d, 10\ns_lshl_b32 s%d, s73, 10" % (sMW, sW, sM3))
    s("s_cmp_ge_u32 s%d, 2\ns_cselect_b32 s69, %d, 0\ns_add_u32 s%d, s%d, s69\ns_add_u32 s%d, s%d, %d" % (sW, U_OFF, sM3, sM3, sMB, sMW, B_BASE))
    s("s_lshl_b32 s65, s%d, 1\nv_xor_b32 v52, s65, v51\nv_lshlrev_b32 v52, 4, v52\nv_lshl_add_u32 v52, v0, 7, v52\nv_add_u32 v52, %d, v52\nv_xor_b32 v53, 16, v52" % (sW, LN_LDS))
    s("v_xor_b32 v54, v50, v51\nv_lshlrev_b32 v54, 4, v54\nv_lshl_add_u32 v54, v50, 7, v54\ns_add_u32 s65, s%d, %d\nv_add_u32 v54, s65, v54" % (sMW, LN_LDS))
    s("v_lshrrev_b32 v55, 5, v0\nv_lshlrev_b32 v55, 12, v55\nv_and_b32 v44, 3, v50\nv_lshl_add_u32 v55, v44, 8, v55\nv_lshl_add_u32 v55, v51, 4, v55")
    s("s_lshl_b32 s70, s66, 17\ns_lshl_b32 s67, s%d, 10\ns_add_u32 s70, s70, s67\ns_and_b32 s67, s2, 1\ns_lshl_b32 s67, s67, 7\ns_add_u32 s70, s70, s67\ns_lshl_b32 s67, s%d, 13\ns_add_u32 s70, s70, s67" % (sQ, sW))
    s("s_add_u32 s71, s70, 32768\ns_add_u32 s72, s70, 65536\ns_add_u32 s73, s70, 98304")
    s("s_lshl_b32 s74, s64, 3\ns_add_u32 s74, s74, 0x%x\nv_mov_b32 v46, 0\nv_mov_b32 v44, %s" % (SM_ST, fx(1.0 / 1024)))
    ws_srd(s, 48, WS_XN, 0x400000)
    dma_items = [(vW0, 12, sKW, sMW, 0), (vW0 + 1, 12, sKW, sMW, 4096), (vW0 + 2, 12, sKW, sMW, 8192), (vW3, 20, sKW, sM3, 0),
                 (vW0, 16, sKW, sMW, U_OFF), (vW0 + 1, 16, sKW, sMW, U_OFF + 4096), (vW0 + 2, 16, sKW, sMW, U_OFF + 8192),
                 (vB, 24, sKB, sMB, 0), (vB, 28, sKB, sMB, 4096)]
    def dma1(s, st, k, early=None):
        v, sr, so, mb, off = dma_items[k]
        isb = mb == sMB
        base = ((st >> 1) & 1) * (16384 if isb else 65536) + (st & 1) * (B_ST if isb else W_ST)
        if k == 0: s("s_mov_b32 s%d, %d" % (sKW, st * 64 * 7168))
        if k == 7: s("s_mov_b32 s%d, %d" % (sKB, st * 128))
        s("s_add_u32 m0, s%d, %d" % (mb, off + base))
        s.op(Op("buffer_load_dwordx4 v%d, s[%d:%d], s%d offen lds" % (v, sr, sr + 3, so), "vm", K(("D", st, k))), early)
    NX = cfg.get("nx", 4)
    aX, aW, NWB = 96, 208, 8
    def xload(s, u, m, early=None):
        if m == 0: s("s_mov_b32 s%d, %d" % (sKX, u * 4096))
        s.op(Op("buffer_load_dwordx4 %s, v1, s[8:11], s%d offen offset:%d" % (R("a", aX + 16 * (u % NX) + 4 * m, 4), sKX, 1024 * m), "vm", K(("X", u, m))), early)
    def pro_stage(st):
        for k in range(9): dma1(s, st, k)
    stamp(s, "prex")
    s.wait([("x", r, h) for r in range(2) for h in range(2)])
    stamp(s, "xin")
    for _ in range(cfg.get("pf_t1", 2)): pfa(s)
    RW = lambda r: 64 + 8 * r
    F = lambda r: 80 + 16 * r
    D = lambda r: 112 + 16 * r
    t_ = lambda r: 144 + 8 * r
    def both(f):
        o = [f(0).split("\n"), f(1).split("\n")]
        for x, y in zip(*o): s(x); s(y)
    def dsum():
        for sh in (1, 2, 4, 8): both(lambda r: "v_add_f32_dpp v%d, v%d, v%d row_shr:%d row_mask:0xf bank_mask:0xf" % (t_(r), t_(r), t_(r), sh))
        both(lambda r: "v_add_f32_dpp v%d, v%d, v%d row_bcast:15 row_mask:0xa bank_mask:0xf" % (t_(r), t_(r), t_(r)))
        both(lambda r: "v_add_f32_dpp v%d, v%d, v%d row_bcast:31 row_mask:0xc bank_mask:0xf" % (t_(r), t_(r), t_(r)))
        both(lambda r: "v_readlane_b32 s%d, v%d, 63" % (67 + r, t_(r)))
    def unpack():
        for i in range(8): both(lambda r: "v_lshlrev_b32 v%d, 16, v%d\nv_and_b32 v%d, 0xffff0000, v%d" % (F(r) + 2 * i, RW(r) + i, F(r) + 2 * i + 1, RW(r) + i))
    def pack():
        for i in range(8): both(lambda r: "v_cvt_pk_bf16_f32 v%d, v%d, v%d" % (RW(r) + i, F(r) + 2 * i, F(r) + 2 * i + 1))
    ST = lambda r: 40 + 2 * r
    unpack()
    for i in range(4): both(lambda r: "v_pk_add_f32 %s, %s, %s" % (P(t_(r) + 2 * i), P(F(r) + 4 * i), P(F(r) + 4 * i + 2)))
    both(lambda r: "v_pk_add_f32 %s, %s, %s\nv_pk_add_f32 %s, %s, %s" % (P(t_(r)), P(t_(r)), P(t_(r) + 2), P(t_(r) + 4), P(t_(r) + 4), P(t_(r) + 6)))
    both(lambda r: "v_pk_add_f32 %s, %s, %s\nv_add_f32 v%d, v%d, v%d" % (P(t_(r)), P(t_(r)), P(t_(r) + 4), t_(r), t_(r), t_(r) + 1))
    dsum()
    both(lambda r: "v_mul_f32 v%d, s%d, v44" % (ST(r), 67 + r))
    for i in range(8): both(lambda r: "v_pk_add_f32 %s, %s, %s op_sel_hi:[1,0] neg_lo:[0,1] neg_hi:[0,1]" % (P(D(r) + 2 * i), P(F(r) + 2 * i), P(ST(r))))
    both(lambda r: "v_pk_mul_f32 %s, %s, %s" % (P(t_(r)), P(D(r)), P(D(r))))
    for i in range(1, 8): both(lambda r: "v_pk_fma_f32 %s, %s, %s, %s" % (P(t_(r)), P(D(r) + 2 * i), P(D(r) + 2 * i), P(t_(r))))
    both(lambda r: "v_add_f32 v%d, v%d, v%d" % (t_(r), t_(r), t_(r) + 1))
    dsum()
    both(lambda r: "v_mul_f32 v%d, s%d, v44" % (ST(r) + 1, 67 + r))
    both(lambda r: "v_cvt_pk_bf16_f32 v%d, v%d, v%d\nv_lshlrev_b32 v%d, 16, v%d\nv_and_b32 v%d, 0xffff0000, v%d" % (t_(r), ST(r), ST(r) + 1, ST(r), t_(r), ST(r) + 1, t_(r)))
    both(lambda r: ("v_add_f32 V, %s, V\nv_cvt_pk_bf16_f32 V, V, V\nv_and_b32 V, 0xffff0000, V\nv_sqrt_f32 V, V\nv_cvt_pk_bf16_f32 V, V, V\nv_and_b32 V, 0xffff0000, V\nv_rcp_f32 V, V" % fx(1e-5)).replace("V", "v%d" % (ST(r) + 1)))
    for i in range(8): both(lambda r: "v_pk_add_f32 %s, %s, %s op_sel_hi:[1,0] neg_lo:[0,1] neg_hi:[0,1]" % (P(F(r) + 2 * i), P(F(r) + 2 * i), P(ST(r))))
    pack(); unpack()
    for i in range(8): both(lambda r: "v_pk_mul_f32 %s, %s, %s op_sel:[0,1] op_sel_hi:[1,1]" % (P(F(r) + 2 * i), P(F(r) + 2 * i), P(ST(r))))
    pack()
    for r in range(2):
        for h in range(2): s.lg("ds_write_b128 v%d, %s offset:%d" % (52 + r, Q(RW(r) + 4 * h), 8192 * h))
    s("s_mov_b64 exec, 1")
    for r in range(2): s.vm("buffer_store_dwordx2 %s, v46, s[36:39], s74 offen offset:%d %s" % (P(ST(r)), 64 * r, SC))
    s("s_mov_b64 exec, -1")
    s.wait(None, drain=["lg"])
    stamp(s, "lnc")
    s("s_barrier")
    for k in range(4): s.lg("ds_read_b128 %s, v54 offset:%d" % (Q(64 + 4 * k), 4096 * k), ("ln", k))
    for k in range(4): s.vm("buffer_store_dwordx4 %s, v55, s[48:51], s%d offen %s" % (Q(64 + 4 * k), 70 + k, SC), ("xn", k), needs=[("ln", k)])
    stamp(s, "xnst")
    nD_a = cfg.get("d_t2", 0)
    nD_b = cfg.get("d_t3", 2)
    for st in range(nD_a): pro_stage(st)
    s("s_mul_i32 s%d, s%d, 0x9E3779B1\ns_add_u32 s%d, s%d, 0x7F4A7C15" % (sTAG, sTAG, sTAG, sTAG))
    cq = Seq()
    cL, cC, cL8, cL16, cL64, cL512 = 16, 20, 24, 28, 32, 36
    for k in range(4): cq("v_lshlrev_b32 v%d, 16, v%d" % (42 + k, 16 + k))
    cq("v_lshlrev_b32 v46, 16, v20\nv_lshlrev_b32 v58, 16, v21")
    cq("v_mul_f32 v46, %s, v46\nv_mul_f32 v58, %s, v58" % (fx(LOG2E), fx(LOG2E)))
    cq("v_exp_f32 v46, v46\nv_exp_f32 v58, v58")
    cq("v_cvt_pk_bf16_f32 v59, v46, v58\nv_lshlrev_b32 v58, 16, v59\nv_and_b32 v59, 0xffff0000, v59")
    cq("v_pk_mul_f32 v[24:25], v[58:59], v[42:43]\nv_pk_mul_f32 v[26:27], v[58:59], v[44:45]")
    cq("v_mul_f32 v24, %s, v24\nv_mul_f32 v25, %s, v25" % (fx(LOG2E), fx(LOG2E)))
    cq("v_exp_f32 v24, v24\nv_exp_f32 v25, v25")
    cq("v_mul_f32 v26, 0.15915494, v26\nv_mul_f32 v27, 0.15915494, v27")
    cq("v_rndne_f32 v52, v26\nv_rndne_f32 v53, v27\nv_sub_f32 v26, v26, v52\nv_sub_f32 v27, v27, v53")
    cq("v_cos_f32 v52, v26\nv_cos_f32 v53, v27\nv_sin_f32 v54, v26\nv_sin_f32 v55, v27")
    cq("v_pk_mul_f32 %s, v[24:25], v[52:53]\nv_pk_mul_f32 v[54:55], v[24:25], v[54:55]" % P(cL))
    cq("v_pk_add_f32 v[52:53], %s, -1.0 op_sel_hi:[1,0]" % P(cL))
    cq("v_pk_mul_f32 v[24:25], v[42:43], v[42:43]\nv_pk_fma_f32 v[24:25], v[44:45], v[44:45], v[24:25]")
    cq("v_rcp_f32 v24, v24\nv_rcp_f32 v25, v25")
    cq("v_pk_mul_f32 v[26:27], v[52:53], v[42:43]\nv_pk_fma_f32 v[26:27], v[54:55], v[44:45], v[26:27]")
    cq("v_pk_mul_f32 v[56:57], v[54:55], v[42:43]\nv_pk_fma_f32 v[56:57], v[52:53], v[44:45], v[56:57] neg_lo:[1,0,0] neg_hi:[1,0,0]")
    cq("v_pk_add_f32 v[24:25], v[24:25], v[24:25]")
    cq("v_pk_mul_f32 %s, v[26:27], v[24:25]\nv_pk_mul_f32 %s, v[56:57], v[24:25]" % (P(cC), P(cC + 2)))
    cq("v_sub_f32 v%d, 0, v54\nv_sub_f32 v%d, 0, v55" % (cL + 2, cL + 3))
    def sq(d, x): cmul_pk(cq, d, d + 2, x, x + 2, x, x + 2, 52)
    sq(cL8, cL); sq(cL8, cL8); sq(cL8, cL8); sq(cL16, cL8); sq(cL64, cL16); sq(cL64, cL64); sq(cL512, cL64); sq(cL512, cL512); sq(cL512, cL512)
    consts = cq.units()
    EP_LDS = cfg.get("ep_lds", 131072); EPW = 16384 if EP_LDS <= 98304 else 8192
    PK = dict(C=252, CA=253, TOK=254, COL=255, D=240, H=241, TA=242, TRW=243, TRR=244, AG=245)
    cq("v_lshrrev_b32 v40, 1, v48\nv_xor_b32 v40, v40, v49\nv_lshlrev_b32 v40, 4, v40\nv_lshl_add_u32 v40, v48, 7, v40")
    cq("v_add_u32 v%d, %d, v40\nv_xor_b32 v%d, 64, v%d\nv_accvgpr_write_b32 a%d, v40" % (vBA0, B_BASE, vBA1, vBA0, PK["CA"]))
    cq("v_lshrrev_b32 v40, 1, v49\nv_lshlrev_b32 v40, 4, v40\nv_and_b32 v41, 1, v49\nv_lshlrev_b32 v41, 2, v41\nv_lshrrev_b32 v50, 2, v48\nv_add3_u32 v11, v40, v41, v50")
    cq("v_mul_u32_u24 v40, 224, v11\nv_and_b32 v51, 3, v0\nv_lshl_add_u32 v%d, v51, 3, v40\nv_add_u32 v%d, 0x10000, v%d" % (vWA, vWA2, vWA))
    cq("s_mul_i32 s69, s%d, %d\ns_add_u32 s69, s69, %d" % (sW, EPW, EP_LDS + 2048))
    cq("v_and_b32 v41, 1, v49\nv_xor_b32 v41, v41, v51\nv_lshlrev_b32 v40, 5, v11\nv_lshl_add_u32 v40, v41, 3, v40\nv_add_u32 v40, s69, v40\nv_accvgpr_write_b32 a%d, v40" % PK["TRR"])
    cq("v_lshrrev_b32 v40, 1, v48\nv_xor_b32 v40, v40, v48\nv_and_b32 v40, 4, v40\nv_mul_u32_u24 v40, 3, v40\nv_xor_b32 v40, v40, v48\nv_lshrrev_b32 v41, 2, v40\nv_xor_b32 v41, v41, v49\nv_lshlrev_b32 v40, 5, v40\nv_lshl_add_u32 v40, v41, 3, v40\nv_add_u32 v40, s69, v40\nv_accvgpr_write_b32 a%d, v40" % PK["TRW"])
    cq("v_lshrrev_b32 v40, 2, v0\nv_and_b32 v41, 7, v40\nv_lshlrev_b32 v41, 5, v41\nv_lshl_add_u32 v41, v40, 8, v41\nv_lshl_add_u32 v41, v51, 3, v41\nv_accvgpr_write_b32 a%d, v41" % PK["TA"])
    cq("s_lshl_b32 s65, s%d, 2\nv_add_u32 v40, s65, v49\nv_and_b32 v41, 7, v40\nv_bfe_u32 v51, v0, 1, 3\nv_xor_b32 v41, v41, v51\ns_lshl_b32 s66, s%d, 1\nv_xor_b32 v41, s66, v41\nv_lshlrev_b32 v41, 5, v41" % (sW, sQ))
    cq("v_and_b32 v51, 1, v0\nv_lshl_add_u32 v41, v51, 4, v41\ns_mul_i32 s67, s%d, 896\nv_add_u32 v40, s67, v40\nv_lshl_add_u32 v40, v40, 11, v41\ns_lshl_b32 s67, s%d, 8\nv_add_u32 v40, s67, v40\nv_accvgpr_write_b32 a%d, v40" % (sQ, sTN, PK["D"]))
    cq("s_lshl_b32 s65, s%d, 18\ns_lshl_b32 s66, s%d, 9\ns_add_u32 s65, s65, s66\nv_add_u32 v40, s65, v47\nv_accvgpr_write_b32 a%d, v40" % (sTN, sQ, PK["C"]))
    cq("v_lshlrev_b32 v40, 4, v50\nv_lshl_add_u32 v40, v51, 3, v40\nv_bfe_u32 v41, v48, 1, 1\ns_lshl_b32 s65, s%d, 6\nv_add3_u32 v40, v40, v41, s65\nv_accvgpr_write_b32 a%d, v40" % (sB, PK["TOK"]))
    cq("s_lshl_b32 s65, s%d, 7\ns_lshl_b32 s66, s%d, 5\ns_add_u32 s65, s65, s66\nv_lshl_add_u32 v40, v49, 2, s65\nv_accvgpr_write_b32 a%d, v40" % (sTN, sQ, PK["COL"]))
    cq("s_sub_u32 s65, 32, s%d\ns_lshl_b32 s65, s65, 13\ns_lshl_b32 s66, s%d, 8\ns_add_u32 s65, s65, s66\nv_lshl_add_u32 v40, v48, 4, s65\nv_lshl_add_u32 v40, v49, 16, v40\nv_accvgpr_write_b32 a%d, v40" % (sB, sJ, PK["AG"]))
    NPB = cfg.get("npb", 4); ld, lc = 112 // NPB, 64 // NPB
    assert ld * NPB == 112 and lc * NPB == 64
    cq("s_lshl_b32 s65, s2, 1\ns_and_b32 s66, s%d, 1\ns_add_u32 s65, s65, s66\ns_mul_i32 s65, s65, %d\nv_min_u32 v40, %d, v0\nv_lshl_add_u32 v40, v40, 7, s65" % (sW, ld * 128, ld - 1))
    cq("s_mul_i32 s65, s2, %d\nv_min_u32 v41, %d, v0\nv_lshl_add_u32 v41, v41, 7, s65" % (lc * 128, lc - 1))
    cq("s_bitcmp1_b32 s%d, 0\ns_cselect_b32 s65, s90, s88\ns_cselect_b32 s66, s91, s89\ns_mov_b32 s67, %d\ns_mov_b32 s68, %d" % (sW, 3584 * 2048, 512 * ld * 128))
    cq("s_cmp_ge_u32 s%d, 2\ns_cselect_b64 vcc, -1, 0\nv_cndmask_b32 v%d, v40, v41, vcc" % (sW, vPB))
    cq("s_cselect_b32 s44, s65, s84\ns_cselect_b32 s45, s66, s85\ns_cselect_b32 s46, %d, s67\ns_cselect_b32 s%d, %d, s68" % (1024 * 2048, sPBs, 256 * lc * 128))
    cq("s_and_b32 s45, s45, 0xffff\ns_mov_b32 s47, 0x20000\ns_mov_b32 s%d, 0" % sKPB)
    if CP:
        cq("s_lshr_b32 s65, s2, 3\ns_lshl_b32 s65, s65, 1\ns_lshr_b32 s66, s%d, 1\ns_add_u32 s65, s65, s66\ns_lshl_b32 s65, s65, 7\ns_add_u32 s92, s98, s65\ns_addc_u32 s93, s99, 0" % sW)
    ncp = [0]
    def cpf(o, vp, early=None):
        if not CP or not cfg.get("cpf2", 1): return
        ncp[0] += 1; L = "L_cp%d" % ncp[0]
        o.atom([L + ":", "s_mov_b32 s82, %s-L_pc+%d" % (L, cfg.get("cpf_la", 2048))], early)
        o("s_min_u32 s82, s82, L_codeend-L_pc-8192")
        o.atom(["s_add_u32 s82, s82, s92", "s_addc_u32 s83, s93, 0"])
        o("v_mov_b32 v%d, s82\nv_mov_b32 v%d, s83" % (vp, vp + 1))
        o.vm("global_load_dword a246, v[%d:%d], off" % (vp, vp + 1))
    cq("s_lshl_b32 s65, s%d, 17\ns_add_u32 s8, s6, s65\ns_addc_u32 s9, s7, 0\ns_and_b32 s9, s9, 0xffff\ns_mov_b32 s10, 0x20000" % sB)
    addr = cq.units()
    na = cfg.get("fa_at", 40)
    s("s_lshl_b32 s74, s2, 4\ns_lshl_b32 s67, s%d, 2\ns_add_u32 s74, s74, s67\ns_add_u32 s75, s74, 0x%x\ns_add_u32 s74, s74, 0x%x\nv_mov_b32 v62, s%d\nv_mov_b32 v63, 0" % (sW, SM_F1B, SM_F1, sTAG))
    def scc_live(k):
        for u in addr[k:]:
            o = u[0][0].text.split()[0]
            if o.startswith(("s_cselect", "s_addc")): return True
            if o.startswith(("s_cmp", "s_bitcmp", "s_add_u32", "s_lshl", "s_lshr", "s_and", "s_sub")): return False
        return False
    while scc_live(na): na += 1
    s.u += addr[:na]
    TWO = cfg.get("two", 1)
    flag(s, "buffer_store_dword v62, v63, s[36:39], s74 offen %s" % SC, [("xn", 0 if TWO else 3), "agfill"])
    stamp(s, "flag1")
    for st in range(nD_a, nD_b): pro_stage(st)
    s.u += addr[na:]
    if TWO: flag(s, "buffer_store_dword v62, v63, s[36:39], s75 offen %s" % SC, [("xn", 3)])
    half = cfg.get("poll_at", 50)
    s.u += consts[:half]
    s("v_and_b32 v40, 31, v0\nv_lshlrev_b32 v40, 2, v40\ns_lshl_b32 s65, s%d, 7\ns_add_u32 s65, s65, 0x%x" % (sB, SM_F1))
    f1load = "buffer_load_dword v41, v40, s[36:39], s65 offen %s" % SC
    s.vm(f1load, "f1")
    if not cfg.get("tr_early"): s.u += consts[half:]
    if cfg.get("tramp", 1):
        s("s_mov_b64 exec, 0")
        for w in range(1, 4): s("s_cmp_eq_u32 s%d, %d\ns_cbranch_scc1 L_tr%d" % (sW, w, w * cfg.get("tramp", 1)))
        s("s_branch L_tr0")
        s.atom([".p2align 12"]); s.atom(["L_main:"])
        s("s_mov_b64 exec, -1")
    if cfg.get("tr_early"): s.u += consts[half:]
    poll(s, "P1", f1load, 41, "f1")
    stamp(s, "poll1")
    NXP = cfg.get("nxpre", 1)
    for u in range(NXP):
        for m in range(4): xload(s, u, m)
    for _ in range(cfg.get("pf_t4", 0)): pfa(s)
    npfa = cfg.get("pf_t0", 0) + cfg.get("pf_t1", 2) + cfg.get("pf_t4", 0)
    tiles = []
    for q in range(7): tiles += [("G", q), ("U", q)]
    tiles += [("R", 0), ("I", 0), ("R", 1), ("I", 1)]
    def acc(t, m):
        k, q = t
        if k == "R": return ("v", 64 + 16 * q + 4 * m)
        if k == "I": return ("v", 96 + 16 * q + 4 * m)
        o = 32 * q + (16 if k == "U" else 0) + 4 * m
        return ("v", 128 + o) if q < 4 else ("a", o - 128)
    L0 = cfg.get("l1_lead", 3)
    groups = [(u, ti) for u in range(32) for ti in range(18)]
    NG = len(groups)
    parts = lambda G: [0, 1] if groups[G][1] < 14 else [None]
    def read1(G, part):
        u, ti = groups[G]; st, kk = divmod(u, 2); t = tiles[ti]; f = G % NWB
        if t[0] in "GU":
            off = (st & 1) * W_ST + (U_OFF if t[0] == "U" else 0) + kk * 7168 + part * 1792 + t[1] * 32
            return Op("ds_read_b64_tr_b16 %s, v%d offset:%d" % (R("a", aW + 4 * f + 2 * part, 2), (vWA, vWA2)[(st >> 1) & 1], off), "lg", K(("F", G, part)))
        off = (st & 3) * B_ST + (4096 if t[0] == "I" else 0) + t[1] * 2048
        return Op("ds_read_b128 %s, v%d offset:%d" % (R("a", aW + 4 * f, 4), vBA1 if kk else vBA0, off), "lg", K(("F", G, part)))
    rgap = {}
    for G in range(NG):
        f = G % 36
        g = G if f < 33 else G - (1 if f < 35 else 2)
        rgap[G] = 4 * (g - L0) - 1
        assert rgap[G] >= 4 * (G - NWB) + 3
    gneed = lambda G: [("F", G, p) for p in parts(G)] + ([("X", groups[G][0], m) for m in range(4)] if groups[G][1] == 0 else [])
    s.wait([("D", 0, k) for k in range(9)])
    s("s_barrier")
    for G in range(NG):
        if rgap[G] < 0:
            for p in parts(G): s.op(read1(G, p))
    s.wait(gneed(0))
    stamp(s, "loop1")
    prog.add(s.done())
    mf = []
    for G, (u, ti) in enumerate(groups):
        t = tiles[ti]
        for m in range(4):
            xr = ("a", aX + 16 * (u % NX) + 4 * m); wr = ("a", aW + 4 * (G % NWB))
            mf.append(Op(mfma16(acc(t, m), wr, xr, u == 0) if t[0] in "GU" else mfma16(acc(t, m), xr, wr, u == 0)))
    sc = Sch(mf)
    for G in range(1, NG):
        w = Op("", needs=K(gneed(G))); w.keep = True
        sc.put(4 * G - 1, [w], 0)
    for G in range(NG):
        if rgap[G] >= 0: sc.put(rgap[G], [read1(G, p) for p in parts(G)], 1)
    bar = {}
    for st in range(15):
        bar[st] = 4 * (36 * (st + 1) - L0) - 2
        sc.put(bar[st], [Op("s_barrier", needs=K([("D", st + 1, k) for k in range(9)]), drain=["lg"])], 0)
    items = []
    PFL = cfg.get("pfl", 1.0)
    pft = {}
    if cfg.get("pf1", 1):
        ev = cfg.get("pf_first", 40); st = npfa
        while st < 16:
            n = 0
            while st < 16 and n < cfg.get("pf_max", 2) and (n == 0 or 144 * (st - 3 - PFL) < ev):
                e = max(int(144 * (st - 3 - PFL)), ev); pft[st] = e; items.append((0, 2, e, "a", st, 0)); st += 1; n += 1
            ev = e + cfg.get("pf_min", 120)
    for st in range(nD_b, 16):
        e = max(bar[st - 4] + 1 if st >= 4 else 0, pft.get(st, -1000) + cfg.get("pf_lat", 80))
        for k in range(9): items.append((bar[st - 1], 0, e, "d", st, k))
    for u in range(NXP, 32):
        e = 72 * (u - NX + 1) - 1 if u >= NX else 0
        for m in range(4): items.append((72 * u - 1, 1, e, "x", u, m))
    f1cload = "buffer_load_dword v41, v40, s[36:39], s64 offen %s" % SC
    if cfg.get("pf2", 1):
        for c in range(NPB): items.append((0, 2, cfg.get("pfb_first", 1700) + int(c * cfg.get("pfb_sp", 110)), "b", c, 0))
    now = 0; pend = sorted(items); done = []; quiet = -1
    while pend:
        av = [x for x in pend if x[2] <= now]
        if not av: now += 1; continue
        x = av[0]; pend.remove(x)
        if x[3] == "d": dma1(s, x[4], x[5], int(now))
        elif x[3] == "x":
            if TWO and x[4:] == (8, 0): poll(s, "P1c", f1cload, 41, "f1c", early=int(now))
            xload(s, x[4], x[5], int(now))
            if TWO and x[4:] == (6, 3): s("s_add_u32 s64, s65, 0x%x" % (SM_F1B - SM_F1)); s.vm(f1cload, "f1c")
        elif x[3] == "a":
            s.at(int(now)); pfa(s); quiet = now + cfg.get("q_len", 64)
            if [y for y in pend if y[3] == "a" and y[2] <= now]: now -= cfg.get("q_sp", 10) - 4
        else: s.at(int(now)); pfb(s); quiet = now + cfg.get("q_len", 64)
        if x[3] in "dx": done.append((x, len(s.u) - 1))
        if x[3:] == ("x", 8, 0): i_p1c = len(s.u) - 1
        now += cfg.get("q_sp", 10) if now < quiet else cfg.get("l1_sp", 5)
    res = sc.stream(s.units(), 0, 2)
    sl = sorted((x[0] - res[i], x[3], x[4], x[5]) for x, i in done)
    if cfg.get("verbose"): print("loop1 vm end", res[-1], "of", 4 * NG, "min slacks", sl[:3], "steady", min(z for z in sl if z[2] > 8))
    for nm in names:
        if TS and nm[0] == "f" and nm[1:].isdigit():
            st_ = int(nm[1:])
            sc.put(bar[st_] - 1, [Op("s_memrealtime s[100:101]")], 5)
            sc.put(bar[st_], [Op("v_writelane_b32 v%d, s100, %d" % (vTS, names.index(nm)))], 5)
    for g in range(cfg.get("cp1_first", 300), 2304, cfg.get("cp1_sp", 400)): cpf(s, 50, g)
    sc.stream(s.units(), 0, 3, vmspace=2)
    aBS = 160
    assert NX <= 4
    s.at(res[i_p1c] + 2)
    srd(s, 48, 4, 5, 2048 * 2048); srd(s, 32, 94, 95, 2048)
    s("v_accvgpr_read_b32 v12, a%d\nv_accvgpr_read_b32 v48, a%d\nv_lshlrev_b32 v48, 1, v48\nv_lshl_add_u32 v11, v12, 11, v48\nv_lshlrev_b32 v12, 3, v12\ns_mov_b32 s66, 0x%x" % (PK["TOK"], PK["COL"], SM_ST))
    for u in range(2): s.vm("buffer_load_dwordx2 %s, v48, s[32:35], 0 offen offset:%d" % (P(40 + 2 * u), 32 * u))
    for m in range(4):
        s("s_mov_b32 s67, %d" % (4096 * m))
        s.vm("buffer_load_dwordx2 v[44:45], v12, s[36:39], s66 offen offset:%d" % (16 * m))
        for u in range(2):
            s.delay(cfg.get("e_sp", 12)); s.vm("buffer_load_dwordx2 %s, v11, s[48:51], s67 offen offset:%d" % (P(52 + 2 * u), 32 * u), ("E", m, u))
        s.delay(cfg.get("e_lat", 110))
        s.wait([("E", m, 1)])
        for u in range(2):
            def unp(d, x):
                for h in range(2): s("v_lshlrev_b32 v%d, 16, v%d\nv_and_b32 v%d, 0xffff0000, v%d" % (d + 2 * h, x + h, d + 2 * h + 1, x + h))
            def rnd():
                for h in range(2): s("v_cvt_pk_bf16_f32 v%d, v%d, v%d" % (48 + h, 60 + 2 * h, 61 + 2 * h))
                unp(60, 48)
            unp(56, 52 + 2 * u)
            for k in range(4): s("v_sub_f32 v%d, v%d, v44" % (60 + k, 56 + k))
            rnd()
            for k in range(4): s("v_mul_f32 v%d, v%d, v45" % (60 + k, 60 + k))
            rnd()
            for h in range(2):
                s("v_lshlrev_b32 v46, 16, v%d\nv_and_b32 v47, 0xffff0000, v%d\nv_mul_f32 v%d, v%d, v46\nv_mul_f32 v%d, v%d, v47" % (40 + 2 * u + h, 40 + 2 * u + h, 60 + 2 * h, 60 + 2 * h, 61 + 2 * h, 61 + 2 * h))
            rnd()
            for k in range(4): s("v_add_f32 v%d, v%d, v%d" % (56 + k, 56 + k, 60 + k))
            for k in range(4): s("v_accvgpr_write_b32 a%d, v%d" % (aBS + 16 * u + 4 * m + k, 56 + k))
    rb = sc.stream(s.units(), 0, 3, vmspace=2)
    assert rb[-1] < res[-1]
    vEW, vER, vTG, vAG, vTRW, vTRR, vCP, vH8, vD1, vPAd, vPD, vD0 = 2, 3, 4, 5, 6, 7, 8, 10, 11, 12, 13, 14
    sM, sKD, sKH = 54, 55, 56
    c1 = -2.0 * math.sqrt(2.0 / math.pi) * LOG2E
    CC = 46
    s("v_accvgpr_read_b32 v%d, a%d\nv_lshlrev_b32 v%d, 3, v0\nv_add_u32 v%d, 32768, v%d" % (vD0, PK["D"], vH8, vD1, vD0))
    s("v_and_b32 v43, 31, v0\nv_lshlrev_b32 v43, 7, v43\ns_lshl_b32 s71, s%d, 2\ns_add_u32 s71, s71, 0x%x" % (sJ, SM_F1))
    s("s_mul_i32 s65, s%d, 176\ns_mul_i32 s66, s%d, 44\ns_add_u32 s65, s65, s66\ns_lshl_b32 s65, s65, 12\ns_add_u32 s65, s65, 0x%x" % (sB, sQ, WS_H))
    s.atom(["s_add_u32 s32, s6, s65", "s_addc_u32 s33, s7, 0"])
    s("s_and_b32 s33, s33, 0xffff\ns_mov_b32 s34, 0x%x\ns_mov_b32 s35, 0x20000" % (44 * 4096))
    srd(s, 12, 84, 85, 3584 * 2048); srd(s, 16, 88, 89, 1024 * 2048); srd(s, 20, 90, 91, 1024 * 2048)
    s("s_lshl_b32 s%d, s%d, 10" % (sM, sW))
    s("v_mov_b32 v46, %s\nv_mov_b32 v47, %s" % (fx(c1), fx(c1 * 0.044715)))
    ROT = cfg.get("rot", 1)
    sTQ = [96, 97, 98, 99, 48, 49, 50, 51]; sTS = [76, 77, 78, 80]; sJ12, sG7 = 44, 45
    s("s_and_b32 s67, s%d, 3\ns_lshl_b32 s67, s67, 1" % sI)
    for k in range(8):
        if k == 0: s("s_mov_b32 s65, s%d" % sTN)
        elif ROT: s("s_add_u32 s65, s67, %d\ns_sub_u32 s66, s65, 7\ns_min_u32 s65, s65, s66\ns_add_u32 s65, s65, 1\ns_xor_b32 s65, s65, s%d" % (k - 1, sTN))
        else: s("s_xor_b32 s65, s%d, %d" % (sTN, k))
        s("s_mul_i32 s65, s65, 7\ns_add_u32 s65, s65, 1\ns_lshr_b32 s65, s65, 1\ns_lshl_b32 s%d, s65, 12" % sTQ[k])
    s("s_lshr_b32 s67, s%d, 1" % sTN)
    for p in range(4): s("s_xor_b32 s65, s67, %d\ns_mul_i32 s65, s65, %d\ns_add_u32 s%d, s65, %d" % (p, 7 * 4096, sTS[p], 3 * 4096))
    s("s_lshl_b32 s%d, s%d, 12\ns_lshl_b32 s%d, s67, 7" % (sJ12, sTN, sG7))
    s("s_and_b32 s69, s%d, 1\ns_lshl_b32 s67, s69, 9\ns_add_u32 s67, s67, s%d" % (sTN, sTS[0]))
    s("s_add_u32 s72, s%d, %d\ns_add_u32 s73, s%d, %d\ns_mov_b32 s66, s%d" % (sJ12, 28 * 4096, sJ12, 36 * 4096, sTQ[0]))
    s("s_lshl_b32 s68, s%d, 2\ns_add_u32 s68, s68, s%d\ns_lshl_b32 s68, s68, 7\ns_add_u32 s68, s68, 0x%x" % (sB, sQ, SM_F3))
    s("s_lshl_b32 s81, s%d, 2\ns_add_u32 s81, s81, s68\nv_and_b32 v%d, 7, v0\nv_lshlrev_b32 v%d, 2, v%d" % (sTN, vPAd, vPAd, vPAd))
    s("s_sub_u32 s64, 31, s%d\ns_lshl_b32 s64, s64, 13\ns_lshl_b32 s65, s%d, 8\ns_add_u32 s64, s64, s65" % (sB, sJ))
    s("s_mul_i32 s46, s%d, %d\ns_add_u32 s46, s46, %d" % (sW, EPW, EP_LDS))
    f1bload = "buffer_load_dword v44, v43, s[36:39], s71 offen %s" % SC
    s.vm(f1bload, "f1b")
    steps = [("g", 0, 2), ("g", 0, 0), ("g", 0, 1)]
    for k in range(1, 8): steps += [("g", k, 0), ("g", k, 1)]
    UB = len(steps)
    for k in range(1, 8): steps += [("g", k, 2)] + ([("s", k // 2, 0)] if k % 2 else [])
    assert len(steps) == 28
    cst = [("r", 0), ("i", 0), ("r", 1), ("r", 2), ("r", 3), ("i", 1), ("i", 2), ("i", 3)]
    steps += [("c", 14, 0), ("c", 15, 0), ("c", 14, 1), ("c", 15, 1)]
    for st in range(16, 22): steps += [("c", st, 0), ("c", st, 1)]
    own = {0, 1, 2, 28, 29}; UC = 30
    NST = 22; KC = cfg.get("kc", 8)
    slot = {st: st % 8 for st in range(22)}; prevocc = {st: (st - 8 if st >= 8 else None) for st in range(22)}
    aW2 = 0; aAG = 32
    vC, vCA = 16, 20
    def dma2(s, st, k, early=None, vC=vC):
        if st < 14:
            kind, x, p = steps[2 * st + k // 2]
            if k % 2 == 0:
                if kind == "g" and p: s("s_add_u32 s%d, s%d, %d\ns_lshl_b32 s%d, s%d, 4" % (sKD, sTQ[x], p * 4096, sKD, sKD))
                else: s("s_lshl_b32 s%d, s%d, 4" % (sKD, (sTQ if kind == "g" else sTS)[x]))
            v, sr = (vD0, vD1)[k % 2], 12
        else:
            part, p = cst[st - 14]
            if k == 0: s("s_xor_b32 s%d, s%d, %d" % (sKD, sG7, p * 128))
            v, sr = vC + k, (16 if part == "r" else 20)
        s("s_add_u32 m0, s%d, %d" % (sM, slot[st] * 16384 + k * 4096))
        s.op(Op("buffer_load_dwordx4 v%d, s[%d:%d], s%d offen lds" % (v, sr, sr + 3, sKD), "vm", K(("D2", st, k))), early)
    NPRE = 4
    s.at(max(bar[13] + 1, cfg.get("pre_at", 2170)))
    for st in range(NPRE):
        for k in range(4):
            dma2(s, st, k)
            if (st, k) != (NPRE - 1, 3): s.delay(cfg.get("pre_sp", 5))
    r = sc.stream(s.units(), res[-1] + 2, 3)
    prog.add(sc.ops())
    vTA = 40
    s("s_barrier")
    stamp(s, "end1")
    F0 = 44 - KC
    groups = [(uu, u) for uu in range(F0) for u in range(8)]
    for d in (1, 2, 3, 0): groups += [(uu, u) for uu in range(F0, 44) for u in (2 * d, 2 * d + 1)]
    NG = len(groups)
    lastuse = {}; firstuse = {}
    for G, (uu, u) in enumerate(groups): firstuse.setdefault(uu, G); lastuse[uu] = G
    hreg = {0: ("v", 48), 1: ("a", 96), 2: ("a", 112), 28: ("a", 32), 29: ("a", 48)}; hfree = {}
    pool = [(-1, r) for r in [128, 144, 192, 208, 224, 64, 80, 160, 176][:cfg.get("nhs", 9)]] + [(4 * lastuse[u] + 3, hreg[u][1]) for u in (1, 2, 28, 29)]
    for u in range(44):
        if u in own: continue
        pool.sort(key=lambda x: x[0]); e, r = pool.pop(0)
        hreg[u] = ("a", r); hfree[u] = e; pool.append((4 * lastuse[u] + 3, r))
    def hload(s, u, m, early=None):
        kind, x, p = steps[u]
        if m == 0:
            if kind == "g": s("s_add_u32 s%d, s%d, %d" % (sKH, sTQ[x], p * 4096))
            elif kind == "s": s("s_mov_b32 s%d, s%d" % (sKH, sTS[x]))
            else:
                part, pp = cst[x - 14]
                s("s_xor_b32 s%d, s%d, %d\ns_add_u32 s%d, s%d, %d" % (sKH, sJ12, (2 * pp + p) * 4096, sKH, sKH, (28 if part == "r" else 36) * 4096))
        d = hreg[u][1] + 4 * m
        if kind == "s":
            s.op(Op("buffer_load_dwordx2 %s, v%d, s[32:35], s%d offen offset:%d" % (R("a", d, 2), vH8, sKH, 1024 * m), "vm"), early)
            s.op(Op("buffer_load_dwordx2 %s, v%d, s[32:35], s%d offen offset:%d" % (R("a", d + 2, 2), vH8, sKH, 1024 * m + 512), "vm", K(("H", u, m))))
        else: s.op(Op("buffer_load_dwordx4 %s, v1, s[32:35], s%d offen offset:%d" % (R("a", d, 4), sKH, 1024 * m), "vm", K(("H", u, m))), early)
    hst = cfg.get("hst", SC)
    def gelu_pair(base0, base1, pid, T, OUT, keep=None, hook=None):
        for m in range(4):
            o = OUT[m % len(OUT)]
            items = [(base0 + 4 * m, base0 + 16 + 4 * m, o), (base0 + 4 * m + 2, base0 + 18 + 4 * m, o + 1),
                     (base1 + 4 * m, base1 + 16 + 4 * m, o + 2), (base1 + 4 * m + 2, base1 + 18 + 4 * m, o + 3)]
            gelu_block(s, items, CC, T)
            s.vm("buffer_store_dwordx4 %s, v1, s[32:35], s66 offen offset:%d %s" % (Q(o), 1024 * m, hst), ("hs", pid, m))
            if keep is not None:
                for r in range(4): s("v_accvgpr_write_b32 a%d, v%d" % (keep + 4 * m + r, o + r))
            if hook: hook(m)
        s("s_add_u32 s66, s66, 4096")
    NPRE2 = cfg.get("npre2", 8)
    cpre = [(st, k) for st in range(NPRE, NPRE2) for k in range(4)]
    def cdma(n):
        for _ in range(n):
            if cpre: st, k = cpre.pop(0); dma2(s, st, k)
    npg = cfg.get("cpre_g", 0)
    cdma(cfg.get("cpre_0", 4))
    gelu_pair(128, 160, 0, 48, [56, 60], 96, lambda m: cdma(npg))
    cpf(s, 2)
    gelu_pair(192, 224, 1, 48, [56, 60], 112, lambda m: cdma(npg))
    stamp(s, "p01")
    def pkfma(d, s0, s1, s2, T, neg=False):
        s("v_pk_fma_f32 %s, %s, %s, %s op_sel:[%d,0,0] op_sel_hi:[%d,1,1]%s" % (P(d), P(s0), P(s1), P(s2), T, T, " neg_lo:[1,0,0] neg_hi:[1,0,0]" if neg else ""))
    def pkmul(d, s0, s1, T, neg=False):
        s("v_pk_mul_f32 %s, %s, %s op_sel:[%d,0] op_sel_hi:[%d,1]%s" % (P(d), P(s0), P(s1), T, T, " neg_lo:[1,0] neg_hi:[1,0]" if neg else ""))
    BR = lambda T, x: 64 + 16 * T + 2 * x
    BI = lambda T, x: 96 + 16 * T + 2 * x
    for x in range(8):
        for T in range(2):
            pkmul(128 + 2 * T, cC + 2, BI(T, x), T, True); pkmul(BI(T, x), cC, BI(T, x), T, True)
        for T in range(2):
            pkfma(BI(T, x), cC + 2, BR(T, x), BI(T, x), T, True); pkfma(BR(T, x), cC, BR(T, x), 128 + 2 * T, T)
    sr = [BR(0, 0), BR(1, 0)]; si = [BI(0, 0), BI(1, 0)]
    bufs = [[132, 134], [138, 140]]; SI = [136, 142]
    for x in range(1, 8):
        nr = [bufs[T][x % 2] for T in range(2)]
        for T in range(2): pkfma(nr[T], cL, sr[T], BR(T, x), T)
        for T in range(2): pkfma(nr[T], cL + 2, si[T], nr[T], T, True)
        for T in range(2): pkfma(SI[T], cL, si[T], BI(T, x), T)
        for T in range(2): pkfma(SI[T], cL + 2, sr[T], SI[T], T)
        sr = nr; si = list(SI)
        if x % 2: cdma(1)
    EA = 20
    for T in range(2):
        s("v_mov_b32 v%d, v%d\nv_mov_b32 v%d, v%d\nv_mov_b32 v%d, v%d\nv_mov_b32 v%d, v%d" % (EA + T, sr[T], EA + 2 + T, si[T], 144 + T, sr[T] + 1, 146 + T, si[T] + 1))
    horner_pk(s, EA, cL8, 144, 144)
    s("v_add_u32 v%d, s46, v1\nv_and_b32 v%d, 0xf0, v1\nv_add_u32 v%d, s46, v%d\nv_mov_b32 v%d, s%d" % (vEW, vER, vER, vER, vTG, sTAG))
    s.lg("ds_write_b128 v%d, v[144:147]" % vEW)
    for g in range(4): s.lg("ds_read_b128 %s, v%d offset:%d" % (Q(148 + 4 * g), vER, 256 * g), ("e", g))
    fstore = lambda off: "buffer_store_dword v%d, v%d, s[36:39], s81 offen offset:%d %s" % (vTG, vPAd, off, SC)
    fload = lambda off: "buffer_load_dword v%d, v%d, s[36:39], s68 offen offset:%d %s" % (vPD, vPAd, off, SC)
    for r in range(32):
        s("v_accvgpr_read_b32 v%d, a%d" % (192 + r, r))
        if r % 16 == 15: cdma(1)
    flag(s, fstore(0), [("hs", 1, 3)])
    for g in range(1, 4):
        s.wait([("e", g)]); horner_pk(s, 148 + 4 * (g - 1), cL16, 148 + 4 * g, 148 + 4 * g)
    for r in range(160, 164): s("v_min_u32 v%d, -2, v%d" % (r, r))
    s.atom(["s_mov_b64 exec, 0xffff", Op("buffer_store_dwordx4 v[160:163], v1, s[36:39], s64 offen %s" % SC, "vm"), "s_mov_b64 exec, -1"])
    stamp(s, "pub")
    poll(s, "P1b", f1bload, 44, "f1b")
    for r in range(32, 64):
        s("v_accvgpr_read_b32 v%d, a%d" % (192 + r, r))
        if r % 16 == 15: cdma(1)
    nh_pre = [3]
    def issue_h(n):
        for u in range(nh_pre[0], nh_pre[0] + n):
            for m in range(4): hload(s, u, m)
        nh_pre[0] += n
    hp = [int(c) for c in str(cfg.get("hp", "111"))]
    pa_l = cfg.get("pa_l", 2)
    def hookA(m):
        cdma(1)
        if m == pa_l: s.vm(fload(0), "f3a")
    gelu_pair(192, 224, 2, 168, [48, 52, 56, 60], None, hookA)
    for r in range(32): s("v_accvgpr_read_b32 v%d, a%d" % (128 + r, aBS + r))
    cdma(16)
    cpf(s, vCP)
    for r in range(32): s("v_accvgpr_read_b32 v%d, a%d" % (192 + r, 64 + r))
    PA_IN = cfg.get("pa_in", 0)
    if not PA_IN:
        poll(s, "P3a", fload(0), vPD, "f3a"); stamp(s, "ok3a"); issue_h(hp[0])
    for mp in range(2):
        o = 240 + 4 * mp; items = []
        for mm in range(2):
            m = 2 * mp + mm
            items += [(192 + 4 * m, 208 + 4 * m, o + 2 * mm), (194 + 4 * m, 210 + 4 * m, o + 2 * mm + 1)]
        gelu_block(s, items, CC, 168)
        if mp == 0:
            s("v_accvgpr_read_b32 v%d, a%d" % (vTA, PK["TA"]))
            for u in range(1, 6): s("v_xor_b32 v%d, %d, v%d" % (vTA + u, 32 * u, vTA))
        if not PA_IN: issue_h(hp[1 + mp])
        for mm in range(2):
            s.vm("buffer_store_dwordx2 %s, v%d, s[32:35], s67 offen offset:%d %s" % (P(o + 2 * mm), vH8, 1024 * (2 * mp + mm), hst), ("hsS", 2 * mp + mm))
        if mp == 0:
            s.wait([("D2", 0, k) for k in range(4)])
            s("s_barrier")
            pre_reads_at = len(s.u)
    for u in range(6, 8): s("v_xor_b32 v%d, %d, v%d" % (vTA + u, 32 * u, vTA))
    L2 = cfg.get("l2_lead", 3)
    def read2(G, part):
        uu, u = groups[G]; f = G % NWB
        if uu < 28:
            st, kk = divmod(uu, 2)
            return Op("ds_read_b64_tr_b16 %s, v%d offset:%d" % (R("a", aW2 + 4 * f + 2 * part, 2), vTA + u, (slot[st] % 4) * 16384 + kk * 8192 + part * 4096), "lg", K(("F2", G, part)))
        _, st, kk = steps[uu]
        return Op("ds_read_b128 %s, v%d offset:%d" % (R("a", aW2 + 4 * f, 4), vCA + 2 * (slot[st] >= 4) + kk, (slot[st] % 4) * 16384 + u * 2048), "lg", K(("F2", G, part)))
    parts = lambda G: [0, 1] if groups[G][0] < 28 else [None]
    mf = []
    for G, (uu, u) in enumerate(groups):
        for m in range(4):
            mf.append(Op(mfma16(("v", 128 + 16 * u + 4 * m), ("a", aW2 + 4 * (G % NWB)), (hreg[uu][0], hreg[uu][1] + 4 * m), zero=(uu == 0 and u >= 2))))
    sc = Sch(mf)
    def gneed(G):
        uu, u = groups[G]
        return [("F2", G, p) for p in parts(G)] + ([("H", uu, m) for m in range(4)] if firstuse[uu] == G and uu not in own else [])
    rgap = {}
    for G in range(NG):
        st, f = divmod(G, 16)
        if st < 14:
            if f <= 4: rgap[G] = 4 * (G - L2) - 1
            elif f == 5: rgap[G] = 4 * (G - 1 - L2) + 1
            elif f <= 10: rgap[G] = 4 * (G - 1 - L2) - 1
            elif f == 11: rgap[G] = 4 * (G - 2 - L2) + 1
            else: rgap[G] = 4 * (G - 2 - L2) - 1
        else: rgap[G] = 4 * (G - L2) - 1
        assert rgap[G] >= 4 * (G - NWB) + 3
    pr = Seq()
    for G in range(NG):
        if rgap[G] < 0:
            for p in parts(G): pr.op(read2(G, p))
    s.u[pre_reads_at:pre_reads_at] = pr.units()
    s.wait(gneed(0))
    stamp(s, "loop2")
    prog.add(s.done())
    for G in range(1, NG):
        w = Op("", needs=K(gneed(G))); w.keep = True
        sc.put(4 * G - 1, [w], 0)
    for G in range(NG):
        if rgap[G] >= 0:
            if rgap[G] % 4 != 3: sc.put(rgap[G], [Op("s_waitcnt lgkmcnt(15)")], 0)
            sc.put(rgap[G], [read2(G, p) for p in parts(G)], 1)
    bar = {}
    for st in range(14):
        bar[st] = 4 * (16 * (st + 1) - L2) - 2
        pub = [st + 1] if st < 13 else [14, 15, 16, 17]
        sc.put(bar[st], [Op("s_barrier", needs=K([("D2", x, k) for x in pub for k in range(4)]), drain=["lg"])], 0)
    for st in (3, 7, 11):
        for i_, g_ in enumerate((1, 2, 4, 5)):
            sc.put(bar[st] - g_, [Op("v_xor_b32 v%d, 0x10000, v%d" % (vTA + 2 * i_ + k, vTA + 2 * i_ + k)) for k in range(2)], 2)
        assert max(rgap[G] for G in range(16 * st, 16 * st + 16)) < bar[st] - 5
    barF = min(rgap[G] for G in range(NG) if groups[G][0] >= 36) - 1
    sc.put(barF, [Op("s_barrier", needs=K([("D2", x, k) for x in range(18, 22) for k in range(4)]))], 0)
    def mark(o, nm): o.u[-1].append(nm)
    def after(o, nm, n): o.u.append([[Op("")], lambda mk: (mk[nm] + n) if nm in mk else None])
    def dly(o, n): o.u.append([[Op("")], lambda mk: mk["_prev"] + n])
    gl = []
    t = Seq()
    t("v_accvgpr_read_b32 v%d, a%d\nv_accvgpr_read_b32 v%d, a%d\nv_accvgpr_read_b32 v%d, a%d" % (vAG, PK["AG"], vTRW, PK["TRW"], vTRR, PK["TRR"]))
    t("s_mov_b32 s40, s36\ns_mov_b32 s41, s37\ns_mov_b32 s42, 0x40000\ns_mov_b32 s43, 0x20000")
    t.at(cfg.get("ag_gap", 32))
    t("v_lshrrev_b32 v48, 4, v0\nv_cmp_eq_u32 s[64:65], 1, v48\nv_cmp_eq_u32 s[66:67], 2, v48\nv_cmp_eq_u32 s[74:75], 3, v48")
    for x in range(7, -1, -1):
        t("s_mov_b32 s57, %d" % (8192 * x))
        g = "buffer_load_dwordx4 %s, v%d, s[40:43], s57 offen %s" % (R("a", aAG + 4 * x, 4), vAG, SC)
        gl.append("s_mov_b32 s57, %d\n%s" % (8192 * x, g))
        t.vm(g, ("ag", x))
        if x: dly(t, cfg.get("ag_sp", 8))
    mark(t, "ag")
    srd(t, 8, 86, 87, 2048 * 4096)
    flag(t, fstore(32), [("hsS", 3)], early=cfg.get("fb_gap", 80)); mark(t, "flagb")
    after(t, "ag", cfg.get("ag_lat", 20))
    def ag_horner(o, w):
        cur = None
        for x in range(7, -1, -1):
            q = 48 + 4 * (x % 2)
            if w: o.wait([("ag", x)])
            for r in range(4): o("v_accvgpr_read_b32 v%d, a%d" % (q + r, aAG + 4 * x + r))
            if not w: o(("v_max3_u32 v56, v%d, v%d, v%d\nv_max_u32 v56, v56, v%d" % (q, q + 1, q + 2, q + 3)) if x == 7 else ("v_max3_u32 v56, v56, v%d, v%d\nv_max3_u32 v56, v56, v%d, v%d" % (q, q + 1, q + 2, q + 3)))
            if cur is not None: horner_sc(o, cur, cL64, q)
            cur = q
    ag_horner(t, True)
    t("v_cmp_u_f32 s[70:71], v48, v49")
    t.atom(["v_cmp_u_f32 vcc, v50, v51", "s_or_b64 vcc, vcc, s[70:71]", "s_cbranch_scc1 PAG_retry", "PAG_ok:"])
    ool("PAG_retry:\n" + "\n".join(gl) + "\ns_waitcnt vmcnt(0)")
    ag_horner(ool, False)
    ool("v_cmp_eq_u32 vcc, -1, v56\ns_and_b64 vcc, vcc, exec\ns_cbranch_scc0 PAG_ok\ns_cmp_eq_u32 s79, 0\ns_cbranch_scc1 PAG_ok\ns_sub_u32 s79, s79, 1\ns_sleep 1\ns_branch PAG_retry")
    t.lg("ds_write_b128 v%d, v[48:51] offset:1024" % vEW)
    for g, r in ((3, 52), (2, 56), (1, 60)): t.lg("ds_read_b128 %s, v%d offset:%d" % (Q(r), vER, 1024 + 256 * g), ("s", g))
    t.lg("ds_read_b128 %s, v%d offset:1024" % (Q(48), vER), ("s", 0))
    dly(t, 8)
    t.wait([("s", 2)]); horner_sc(t, 52, cL512, 56)
    t.lg("ds_read_b128 %s, v%d" % (Q(52), vER), ("e2", 0))
    t.wait([("s", 1)]); horner_sc(t, 56, cL512, 60)
    t.lg("ds_read_b128 %s, v%d offset:256" % (Q(56), vER), ("e2", 1))
    t.wait([("s", 0)]); horner_sc(t, 60, cL512, 48)
    t.lg("ds_read_b128 %s, v%d offset:512" % (Q(60), vER), ("e2", 2))
    t.wait([("e2", 0)]); horner_sc(t, 48, cL16, 52)
    t.wait([("e2", 1)]); horner_sc(t, 52, cL16, 56)
    t.wait([("e2", 2)]); horner_sc(t, 56, cL16, 60)
    for g, sm in ((52, 64), (56, 66), (60, 74)):
        for r in range(4): t("v_cndmask_b32 v%d, v%d, v%d, s[%d:%d]" % (48 + r, 48 + r, g + r, sm, sm + 1))
    horner_sc(t, 48, cL8, EA)
    t("v_xor_b32 v52, 16, v%d" % vTRR)
    st_r = {(T, h): (48, EA)[h] + T for T in range(2) for h in range(2)}
    st_i = {(T, h): (48, EA)[h] + 2 + T for T in range(2) for h in range(2)}
    TH = [(T, h) for T in range(2) for h in range(2)]
    xs = Seq()
    for x in range(8):
        for (T, h) in TH: t("v_fmac_f32 v%d, v%d, v%d" % (BR(T, x) + h, cL + T, st_r[T, h]))
        for (T, h) in TH: t("v_fmac_f32 v%d, v%d, v%d" % (BI(T, x) + h, cL + T, st_i[T, h]))
        for (T, h) in TH: t("v_fma_f32 v%d, -v%d, v%d, v%d" % (BR(T, x) + h, cL + 2 + T, st_i[T, h], BR(T, x) + h))
        for (T, h) in TH: t("v_fmac_f32 v%d, v%d, v%d" % (BI(T, x) + h, cL + 2 + T, st_r[T, h]))
        for (T, h) in TH: st_r[T, h] = BR(T, x) + h; st_i[T, h] = BI(T, x) + h
        if x % 2 == 1:
            m = x // 2; mo = (m % 2) * 2048
            for part, Fn in enumerate((BR, BI)):
                for T in range(2):
                    o = 56 + 4 * part + 2 * T
                    t("v_cvt_pk_bf16_f32 v%d, v%d, v%d\nv_cvt_pk_bf16_f32 v%d, v%d, v%d" % (o, Fn(T, x - 1), Fn(T, x - 1) + 1, o + 1, Fn(T, x), Fn(T, x) + 1))
                    t.lg("ds_write_b64 v%d, %s offset:%d" % (vTRW, P(o), mo + part * 1024 + 512 * T))
                t.atom(["s_waitcnt lgkmcnt(15)"] + [Op("ds_read_b64_tr_b16 %s, v%d offset:%d" % (R("a", aAG + 16 * part + 4 * m + 2 * half, 2), (vTRR, 52)[half], mo + part * 1024 + 256 * half), "lg", K(("tr", m, part, half))) for half in range(2)])
                mark(t, ("tr", m, part))
                after(xs, ("tr", m, part), 10)
                if (m, part) != (0, 0) and m < 3: after(xs, ("hl", m - 1 + part, 1 - part), cfg.get("hl_sp", 24))
                xs.vm("buffer_store_dwordx4 %s, v1, s[32:35], s%d offen offset:%d %s" % (R("a", aAG + 16 * part + 4 * m, 4), 72 + part, 1024 * m, hst), ("hl", m, part), needs=[("tr", m, part, 1)])
                mark(xs, ("hl", m, part))
    dly(xs, cfg.get("fc_lat", 60))
    flag(xs, fstore(64), [("hl", 3, 1)]); mark(xs, "flagc")
    t("v_accvgpr_read_b32 v48, a%d\nv_accvgpr_read_b32 v%d, a%d" % (PK["C"], vCA, PK["CA"]))
    for k in range(4): t("s_xor_b32 s65, s%d, %d\ns_lshl_b32 s65, s65, 16\nv_add_u32 v%d, s65, v48" % (sQ, k, vC + k))
    t("s_and_b32 s65, s%d, 1\ns_lshl_b32 s65, s65, 6\nv_xor_b32 v%d, s65, v%d" % (sTN, vCA, vCA))
    t("v_xor_b32 v%d, 64, v%d\nv_add_u32 v%d, 0x10000, v%d\nv_xor_b32 v%d, 64, v%d" % (vCA + 1, vCA, vCA + 2, vCA, vCA + 3, vCA + 2))
    vOO = 28
    t("v_accvgpr_read_b32 v24, a%d\nv_accvgpr_read_b32 v25, a%d\nv_lshlrev_b32 v25, 2, v25\nv_lshl_add_u32 v%d, v24, 12, v25" % (PK["TOK"], PK["COL"], vOO))
    mark(t, "cready")
    RB = lambda u, m: 128 + 16 * u + 4 * m
    after(t, "flagc", 1)
    t.atom(["s_add_u32 s40, s6, 0x%x" % WS_PART, "s_addc_u32 s41, s7, 0"])
    t("s_and_b32 s41, s41, 0xffff\ns_mov_b32 s42, 0x1000000\ns_mov_b32 s43, 0x20000")
    t("s_lshl_b32 s65, s%d, 3\ns_add_u32 s65, s65, s%d\ns_lshl_b32 s66, s65, 18\ns_lshl_b32 s67, s%d, 12\ns_add_u32 s66, s66, s67" % (sI, sTN, sW))
    for d in (1, 2, 3):
        t("s_xor_b32 s67, s%d, %d\ns_lshl_b32 s%d, s67, 16\ns_add_u32 s%d, s%d, s66\ns_add_u32 s%d, s%d, %d" % (sQ, d, 72 + d, 72 + d, 72 + d, 72 + d, 72 + d, d * 16384))
        t("s_lshl_b32 s67, s67, 4\ns_add_u32 s67, s67, %d\nv_mov_b32 v%d, s67" % (4 * d, 28 + d))
        t("s_lshl_b32 s%d, s%d, 16\ns_add_u32 s%d, s%d, s66\ns_add_u32 s%d, s%d, %d" % (69 + d, sQ, 69 + d, 69 + d, 69 + d, 69 + d, d * 16384))
    t("s_lshl_b32 s69, s65, 2\ns_add_u32 s69, s69, s%d\ns_lshl_b32 s69, s69, 7\ns_add_u32 s69, s69, 0x%x" % (sW, SM_F4))
    t("s_lshl_b32 s67, s%d, 4\nv_and_b32 v32, 3, v0\nv_lshl_add_u32 v32, v32, 2, s67" % sQ)
    t("s_mov_b32 s57, 0\ns_mov_b32 s58, 8192\ns_mov_b32 s59, 16384\ns_mov_b32 s64, 24576")
    t("v_mov_b32 v34, 0x3f80\nv_mov_b32 v35, 0x3f800000")
    mark(t, "setup")
    f4store = lambda d: "buffer_store_dword v%d, v%d, s[36:39], s69 offen %s" % (vTG, 28 + d, SC)
    gp = lambda d: 4 * (8 * F0 + 2 * KC * d) - 1 + 3
    post = Seq(); lim = cfg.get("nsend_in", 12)
    for d in (1, 2, 3):
        t.at(gp(d))
        for m in range(4):
            A = 128 + 32 * d + 4 * m; Bq = A + 16
            t("v_cvt_pk_bf16_f32 v%d, v%d, v%d\nv_cvt_pk_bf16_f32 v%d, v%d, v%d\nv_cvt_pk_bf16_f32 v%d, v%d, v%d\nv_cvt_pk_bf16_f32 v%d, v%d, v%d" % (A, A, A + 1, A + 1, A + 2, A + 3, A + 2, Bq, Bq + 1, A + 3, Bq + 2, Bq + 3))
            mark(t, ("cv", d, m))
            after(xs, ("cv", d, m), 1)
            xs.vm("buffer_store_dwordx4 %s, v1, s[40:43], s%d offen offset:%d %s" % (Q(A), 72 + d, 1024 * m, SC), ("ps", d, m)); mark(xs, ("ps", d, m))
            if d >= 2 and m == cfg.get("f4_m", 2): flag(xs, f4store(d - 1), [("ps", d - 1, 3)])
    hs = Seq(); hdl = {}
    if PA_IN: poll(hs, "P3a", fload(0), vPD, "f3a", early=cfg.get("pa_gap", 4))
    for u in range(nh_pre[0], 44):
        if u in own: continue
        for (U, nm, off, fl, lat) in ((UB, "P3b", 32, "flagb", cfg.get("pb_lat", 80)), (UC, "P3c", 64, "flagc", cfg.get("pc_lat", 80))):
            if u == (U - 2 if U == UB else U):
                after(hs, fl, lat); hs.vm(fload(off), nm); mark(hs, nm + "l")
            if u == U:
                after(hs, nm + "l", cfg.get("poll_rt", 44)); poll(hs, nm, fload(off), vPD, nm); mark(hs, nm)
        n0 = len(hs.u)
        for m in range(4): hload(hs, u, m, max(hfree[u], 4 * firstuse[u] - cfg.get("l2_la", 400)))
        for i in range(n0, len(hs.u)): hdl[i] = 4 * firstuse[u] - 1
        mark(hs, ("H", u))
    ds = Seq(); ddl = {}
    DL = lambda st: bar[st - 1] if st < 14 else (bar[13] if st < 18 else barF)
    for st in range(NPRE2, 22):
        n0 = len(ds.u)
        if st == "E":
            after(ds, "cready", 1); after(ds, ("hl", 3, 1), 1)
            for n in range(4):
                ds("s_mov_b32 s%d, %d\ns_add_u32 m0, s46, %d" % (sKD, 32768 * n, 2048 + 1024 * n))
                ds.vm("buffer_load_dwordx4 v26, s[24:27], s%d offen lds" % sKD)
            ds("s_add_u32 m0, s46, 6144"); ds.vm("buffer_load_dwordx4 v1, s[36:39], s59 offen lds")
            ds("s_add_u32 m0, s46, 7168"); ds.vm("buffer_load_dwordx4 v1, s[28:31], s58 offen lds", "Elast"); mark(ds, "edma")
            dl = 900
        else:
            if st == 14: after(ds, "cready", 1)
            for k in range(4): dma2(ds, st, k, bar[prevocc[st]] + 1 if st >= 8 else 0)
            dl = DL(st)
            mark(ds, ("D", st))
        for i in range(n0, len(ds.u)): ddl[i] = dl
    cs_ = Seq()
    for g in range(cfg.get("cp2_first", 200), 1300, cfg.get("cp2_sp", 250)): cpf(cs_, vCP, g)
    mk = multi(sc, [Stream("h", hs.units(), 2, deadline=lambda i: hdl.get(i, 0)), Stream("d", ds.units(), 2, deadline=lambda i: ddl.get(i, 0)),
                    Stream("x", xs.units(), 2), Stream("t", t.units(), 3, start=1), Stream("c", cs_.units(), 4)],
               cl=cfg.get("cl", 75), cs=cfg.get("cs", 240), B0=cfg.get("b0", 150), busy0=cfg.get("busy0", 300))
    sl = sorted([(4 * firstuse[u] - 1 - mk[("H", u)], "h", u) for u in range(nh_pre[0], 44) if u not in own] + [(DL(st) - mk[("D", st)], "d", st) for st in range(NPRE2, 22)])
    if cfg.get("verbose"):
        print("loop2 slacks", sl[:6], {k: v for k, v in mk.items() if isinstance(k, str)}, "hl", [mk[("hl", m, p)] for m in range(4) for p in range(2)], "ps", [mk[("ps", d, m)] for d in (1, 2, 3) for m in range(4)], "barF", barF)
    assert sl[0][0] > cfg.get("minslack", 30), sl[:4]
    assert mk["cready"] < rgap[firstuse[28]] and mk[("hl", 3, 1)] < 4 * firstuse[28] - 1 and mk["setup"] < gp(1)
    for nm in names:
        if TS and nm[0] == "g" and nm[1:].isdigit():
            g_ = 4 * (16 * (int(nm[1:]) + 1) - L2) - 2
            sc.put(g_ - 1, [Op("s_memrealtime s[100:101]")], 5)
            sc.put(g_, [Op("s_waitcnt lgkmcnt(0)\nv_writelane_b32 v%d, s100, %d" % (vTS, names.index(nm)))], 5)
    if cfg.get("drop"):
        for g in range(cfg.get("drop_lo", 120), cfg.get("drop_hi", 600)):
            for it in sc.g[g]:
                o = it[2]
                if it[0] in (2, 3) and o.text and "\n" not in o.text and not o.text.endswith(":"):
                    c = opclass(o.text)
                    if it[0] == 2 and not (c == "X" and "x4" in o.text): continue
                    if c in cfg["drop"] and "cmp" not in o.text and not any(("v%d," % r) in o.text.split(None, 2)[1] + "," for r in range(16, 32)):
                        o.text = "s_nop 0" if cfg.get("dropnop") else ""
    prog.add(sc.ops())
    stamp(s, "end2")
    flag(s, f4store(3), [("ps", 3, 3)])
    stamp(s, "drain4")
    f4load = "buffer_load_dword v33, v32, s[36:39], s69 offen %s" % SC
    s.vm(f4load, "f4")
    def recv(d):
        poll(s, "P4%d" % d, f4load, 33, "f4", mask=str(1 << d))
        for m in range(4): s.vm("buffer_load_dwordx4 %s, v1, s[40:43], s%d offen offset:%d %s" % (Q(128 + 32 * d + 16 + 4 * m), 69 + d, 1024 * m, SC), ("pl", d, m))
    def addp(d, m):
        s.wait([("pl", d, m)])
        for k in range(8):
            r = RB(k // 4, m) + k % 4
            s("v_dot2_f32_bf16 v%d, v%d, v%d, v%d" % (r, 128 + 32 * d + 16 + 4 * m + k // 2, 34 + k % 2, r))
    recv(1); recv(2); recv(3)
    stamp(s, "poll4")
    for d in (1, 2):
        for m in range(4): addp(d, m)
    sM4 = [57, 58, 59, 64]
    for m in range(4):
        addp(3, m)
        if m > 0:
            for u in range(2): s.vm("buffer_store_dwordx4 %s, v%d, s[8:11], s%d offen offset:%d %s" % (Q(RB(u, m - 1)), vOO, sM4[m - 1], 64 * u, cfg.get("ost", SC)))
    s("s_nop 2")
    for u in range(2): s.vm("buffer_store_dwordx4 %s, v%d, s[8:11], s%d offen offset:%d %s" % (Q(RB(u, 3)), vOO, sM4[3], 64 * u, cfg.get("ost", SC)))
    prog.add(s.done())
    prog.emit(a)
    a("s_cmp_eq_u32 s%d, 31\ns_cbranch_scc0 L_noep\ns_cmp_eq_u32 s%d, 0\ns_cbranch_scc0 L_noep" % (sB, sJ))
    a("v_mov_b32 v40, 0x%x\ns_mov_b64 exec, 1\nbuffer_store_dword v%d, v40, s[36:39], 0 offen %s\ns_mov_b64 exec, -1" % (SM_EP, vTG, SC))
    a("L_noep:")
    if TS:
        a("s_waitcnt vmcnt(0)\ns_memrealtime s[100:101]\ns_waitcnt lgkmcnt(0)\nv_writelane_b32 v%d, s100, %d" % (vTS, len(names) - 1))
        a("s_cmp_lg_u32 s%d, %d\ns_cbranch_scc1 L_end" % (sW, cfg.get("tsw", 0)))
        if cfg.get("leak"):
            A, B = cfg["leak"].split(":")
            a("s_cmp_lg_u32 s2, %d\ns_cbranch_scc1 L_end" % cfg.get("leakwg", 100))
            a("v_readlane_b32 s64, v%d, %d\nv_readlane_b32 s65, v%d, %d\ns_nop 4\ns_sub_u32 s64, s65, s64\ns_mul_i32 s64, s64, %d\ns_min_u32 s64, s64, 200000" % (vTS, names.index(A), vTS, names.index(B), cfg.get("leakk", 8)))
            a("L_leak:\ns_memrealtime s[66:67]\ns_waitcnt lgkmcnt(0)\ns_sub_u32 s66, s66, s100\ns_cmp_lt_u32 s66, s64\ns_cbranch_scc1 L_leak")
        ws_srd(a, 12, WS_TS, 16384)
        a("s_lshl_b32 s75, s2, 6\nv_lshlrev_b32 v1, 2, v0\ns_mov_b64 exec, 0xffff\nbuffer_store_dword v%d, v1, s[12:15], s75 offen" % vTS)
    a("L_end:")
    a("s_endpgm")
    a.lines += ool.lines
    a("L_codeend:")
    return name, a

def inst_sizes(lines):
    import subprocess, tempfile, os, re
    d = tempfile.mkdtemp()
    und = sorted(set(re.findall(r"L_tr\d+", "\n".join(lines))))
    open(d + "/a.s", "w").write('.amdgcn_target "amdgcn-amd-amdhsa--gfx950"\n' + "\n".join(l for l in lines if not l.startswith(".p2align 12")) + "\n" + "".join(u + ":\n" for u in und))
    subprocess.check_call(["clang", "-x", "assembler", "-target", "amdgcn-amd-amdhsa", "-mcpu=gfx950", "-c", d + "/a.s", "-o", d + "/a.o"])
    o = subprocess.check_output(["llvm-objdump", "-d", "--mcpu=gfx950", d + "/a.o"], text=True)
    sz = [4 * len(m.group(1).split()) for m in re.finditer(r"// [0-9A-F]+: ([0-9A-F ]+)", o)]
    n = sum(1 for l in lines if parse(l))
    assert n == len(sz), (n, len(sz))
    return sz

def add_stubs(lines, cfg):
    NL = cfg.get("tramp", 1); step = cfg.get("tr_step", 128)
    sz = iter(inst_sizes(lines)); size = [next(sz) if parse(l) else 0 for l in lines]
    i0 = lines.index("L_main:"); iend = lines.index("L_end:")
    out = lines[:i0 + 1]; off = 0; targets = [4096 * p + step * k for p in range(1, 40) for k in range(NL)]
    n = 0; pos = []
    def penalty(i):
        if not lines[i - 1].startswith("v_mfma"): return 0 if not any(l.startswith("v_mfma") for l in lines[max(0, i - 6):i + 6]) else 1
        j = i; c = ["S"]
        while not lines[j].startswith("v_mfma") and j - i < 8:
            try: c.append(opclass(lines[j]))
            except AssertionError: return 0
            j += 1
        t = gap_time(c)
        return 0 if (t is not None and t <= 16) else 1
    for i in range(i0 + 1, len(lines)):
        if i < iend and size[i] and off >= targets[n] and (penalty(i) == 0 or off + size[i] > targets[n] + 56):
            out.append("L_tr%d:" % n); out.append(("STUB", n)); off += 4; n += 1
        out.append(lines[i]); off += size[i]
    n -= n % NL
    res = []
    for l in out:
        if isinstance(l, tuple):
            k = l[1]; nx = k + 1 if (k + 1) % NL else k + 1 + 3 * NL
            res.append("s_cbranch_execz %s" % ("L_tr%d" % nx if nx < n else "L_main"))
        else: res.append(l)
    return res

def build(cfg):
    name, a = gen(cfg)
    hdr = open("cdna_kernels/%s.s.ref" % NAME).read().split("; Override launch")[0]
    out = hdr + "; @launch grid=(256,1,1) block=(256,1,1) lds=163840\n"
    out += '.amdgcn_target "amdgcn-amd-amdhsa--gfx950"\n'
    lines = pad_hazards([l for l in a.lines if l], cfg.get("verbose", 0) > 1)
    if cfg.get("tramp", 1): lines = add_stubs(lines, cfg)
    if cfg.get("verbose"): print(gap_report(lines))
    out += "\n".join(lines) + "\n"
    if cfg.get("cyc"): out = out.replace("s_memrealtime", "s_memtime")
    b = Asm(); kernel_desc(b, name, 512, accum=256); out += b.text()
    return out

if __name__ == "__main__":
    cfg = {}
    for kv in sys.argv[2:]:
        k, v = kv.split("=")
        try: v = int(v)
        except ValueError:
            try: v = float(v)
            except ValueError: v = v.replace("+", " ")
        cfg[k] = v
    open(sys.argv[1], "w").write(build(cfg))
```

```python
import sys, math, struct
from asmlib import *

NAME = "parallel_sum__ssm_conv_s5__glu_gated_geglu__prompt"
KX, KLRE, KLIM, KBRE, KBIM, KCRE, KCIM, KLDT, KDSK, KBX, KWG, KWU, KWD, KOUT, KDBG, KWS = [8 * i for i in range(16)]
WS_XN = 0
WS_H = 0x400000
H_BLK = 176 * 4096
WS_SM = 0x1A00000
SM_AG = 0; SM_ST = 0x40000; SM_F1 = 0x44000; SM_F3 = 0x45000; SM_F4 = 0x49000; SM_EP = 0x51000; SM_F1B = 0x52000; SM_SIZE = 0x53000
WS_TS = 0x1A60000
WS_PART = 0x2000000
NSTAMPS = [16]
SPLIT_LAYOUT = True
STAMPS = []

def f2u(x): return struct.unpack("<I", struct.pack("<f", x))[0]
def fx(x): return "0x%08x" % f2u(x)
P = lambda r: "v[%d:%d]" % (r, r + 1)
Q = lambda r: "v[%d:%d]" % (r, r + 3)
LOG2E = 1.4426950408889634
K = lambda v: (lambda it: v)

def ws_srd(a, r, off, size):
    a("s_add_u32 s%d, s6, 0x%x\ns_addc_u32 s%d, s7, 0\ns_and_b32 s%d, s%d, 0xffff\ns_mov_b32 s%d, 0x%x\ns_mov_b32 s%d, 0x20000" % (r, off, r + 1, r + 1, r + 1, r + 2, size, r + 3))

def mfma16(d, A, B, zero=False):
    return "v_mfma_f32_16x16x32_bf16 %s, %s, %s, %s" % (R(d[0], d[1], 4), R(A[0], A[1], 4), R(B[0], B[1], 4), "0" if zero else R(d[0], d[1], 4))

def cmul_pk(a, dr, di, ar, ai, br, bi, t):
    a("v_pk_mul_f32 %s, %s, %s" % (P(t), P(ai), P(bi)))
    a("v_pk_fma_f32 %s, %s, %s, %s neg_lo:[0,0,1] neg_hi:[0,0,1]" % (P(t), P(ar), P(br), P(t)))
    a("v_pk_mul_f32 %s, %s, %s" % (P(t + 2), P(ar), P(bi)))
    a("v_pk_fma_f32 %s, %s, %s, %s" % (P(di), P(ai), P(br), P(t + 2)))
    a("v_mov_b32 v%d, v%d\nv_mov_b32 v%d, v%d" % (dr, t, dr + 1, t + 1))

def horner_pk(a, s, L, e, d):
    a("v_pk_fma_f32 %s, %s, %s, %s" % (P(d), P(L), P(s), P(e)))
    a("v_pk_fma_f32 %s, %s, %s, %s" % (P(d + 2), P(L), P(s + 2), P(e + 2)))
    a("v_pk_fma_f32 %s, %s, %s, %s neg_lo:[1,0,0] neg_hi:[1,0,0]" % (P(d), P(L + 2), P(s + 2), P(d)))
    a("v_pk_fma_f32 %s, %s, %s, %s" % (P(d + 2), P(L + 2), P(s), P(d + 2)))

def horner_sc(a, s, L, e):
    for T in range(2):
        a("v_fmac_f32 v%d, v%d, v%d" % (e + T, L + T, s + T)); a("v_fmac_f32 v%d, v%d, v%d" % (e + 2 + T, L + T, s + 2 + T))
    for T in range(2):
        a("v_fma_f32 v%d, -v%d, v%d, v%d" % (e + T, L + 2 + T, s + 2 + T, e + T)); a("v_fmac_f32 v%d, v%d, v%d" % (e + 2 + T, L + 2 + T, s + T))

def gelu_block(a, items, CC, T):
    for k, (g, u, o) in enumerate(items): a("v_pk_mul_f32 %s, %s, %s" % (P(T + 2 * k), P(g), P(g)))
    for k, (g, u, o) in enumerate(items): a("v_pk_fma_f32 %s, %s, %s, %s op_sel:[0,1,0] op_sel_hi:[1,1,0]" % (P(T + 2 * k), P(T + 2 * k), P(CC), P(CC)))
    for k, (g, u, o) in enumerate(items): a("v_pk_mul_f32 %s, %s, %s" % (P(T + 2 * k), P(T + 2 * k), P(g)))
    for k, (g, u, o) in enumerate(items):
        a("v_exp_f32 v%d, v%d" % (T + 2 * k, T + 2 * k)); a("v_exp_f32 v%d, v%d" % (T + 2 * k + 1, T + 2 * k + 1))
        a("v_pk_mul_f32 %s, %s, %s" % (P(u), P(g), P(u)))
    for k, (g, u, o) in enumerate(items): a("v_pk_add_f32 %s, %s, 1.0 op_sel_hi:[1,0]" % (P(T + 2 * k), P(T + 2 * k)))
    for k, (g, u, o) in enumerate(items):
        a("v_rcp_f32 v%d, v%d" % (T + 2 * k, T + 2 * k)); a("v_rcp_f32 v%d, v%d" % (T + 2 * k + 1, T + 2 * k + 1))
    for k, (g, u, o) in enumerate(items): a("v_pk_mul_f32 %s, %s, %s" % (P(u), P(u), P(T + 2 * k)))
    for k, (g, u, o) in enumerate(items): a("v_cvt_pk_bf16_f32 v%d, v%d, v%d" % (o, u, u + 1))

class Seq:
    def __init__(self): self.u = []
    def __call__(self, s):
        for l in s.split("\n"):
            l = l.strip()
            assert not l.startswith(("buffer_", "global_", "ds_")), ("uncounted memory op", l)
            self.u.append([[Op(l)], None])
    def atom(self, ops, early=None): self.u.append([[o if isinstance(o, Op) else Op(o) for o in ops], early])
    def vm(self, text, tag=None, needs=None, early=None):
        if needs: self.wait(needs, early=early); early = None
        self.u.append([[Op(text, "vm", K(tag) if tag is not None else None)], early])
    def lg(self, text, tag=None, needs=None):
        if needs: self.wait(needs)
        self.u.append([[Op(text, "lg", K(tag) if tag is not None else None)], None])
    def wait(self, needs, drain=None, early=None): self.u.append([[Op("", needs=K(needs) if needs else None, drain=drain)], early])
    def op(self, o, early=None): self.u.append([[o], early])
    def delay(self, n):
        self._d = n; i = len(self.u) - 1
        self.u.append([[Op("")], lambda res, n=n: res[-1] + n])
    def at(self, g): self.u.append([[Op("")], g])
    def done(self):
        o = [x for un, _ in self.u for x in un]; self.u = []; return o
    def units(self):
        u = self.u; self.u = []; return u

W_ST = 28672; U_OFF = 14336
B_BASE = 131072; B_ST = 8192
LN_LDS = 65536 + W_ST

def gen(cfg):
    name = NAME + "_kernel"
    a = Asm(); kernel_header(a, name)
    ool = Asm()
    TS = cfg.get("ts")
    names = ["start"] + cfg.get("stamps", "flag1 poll1 loop1 end1 p01 pub loop2 end2 poll4").split() + ["end"]
    STAMPS[:] = names; NSTAMPS[0] = len(names)
    vTS = 15
    def stamp(s, nm):
        if TS and nm in names: s.atom(["s_memrealtime s[100:101]", "s_waitcnt lgkmcnt(0)", "v_writelane_b32 v%d, s100, %d" % (vTS, names.index(nm))])
    SC = "sc0 sc1"
    prog = Prog(); s = Seq()
    sJ, sI, sW, sB, sQ, sTN, sTAG = 60, 61, 62, 63, 52, 53, 3
    sMW, sM3, sMB, sKW, sKB, sKX, sCNT = 54, 55, 56, 57, 58, 59, 81
    sPAs, sKPA, sKPB, sPBs = 76, 77, 78, 80
    def poll(s, nm, loadtext, dst, tagneed, mask=None, early=None):
        s.wait([tagneed], early=early)
        s.atom(["%s_chk:" % nm, "v_cmp_ne_u32 vcc, s%d, v%d" % (sTAG, dst), "s_and_b64 vcc, vcc, %s" % (mask or "exec"), "s_cbranch_scc1 %s_retry" % nm, "%s_ok:" % nm])
        ool("%s_retry:\ns_cmp_eq_u32 s79, 0\ns_cbranch_scc1 %s_ok\ns_sub_u32 s79, s79, 1\ns_sleep 1\n%s\ns_waitcnt vmcnt(0)\ns_branch %s_chk" % (nm, nm, loadtext, nm))
    def flag(s, text, needs, early=None):
        s.wait(needs, early=early)
        s.atom(["s_mov_b64 exec, 1", Op(text, "vm"), "s_mov_b64 exec, -1"])

    s("s_cmp_ge_u32 s2, 256\ns_cbranch_scc1 L_end")
    if TS: s("s_memrealtime s[100:101]")
    CP = cfg.get("cpf", 1)
    s("s_load_dwordx2 s[4:5], s[0:1], %d" % KX)
    s("s_load_dwordx2 s[6:7], s[0:1], %d" % KWS)
    s("s_load_dwordx4 s[12:15], s[0:1], %d" % KWG)
    s("s_load_dwordx4 s[24:27], s[0:1], %d" % KBRE)
    s("s_load_dwordx4 s[96:99], s[0:1], %d" % KLRE)
    s("s_load_dwordx4 s[92:95], s[0:1], %d" % KLDT)
    s("s_load_dwordx4 s[84:87], s[0:1], %d" % KWD)
    s("s_load_dwordx4 s[88:91], s[0:1], %d" % KCRE)
    if CP:
        s("s_getpc_b64 s[82:83]")
        s.atom(["L_pc:"])
        s("s_lshr_b32 s64, s2, 3\ns_mul_i32 s64, s64, 28\nv_add_u32 v3, s64, v0\nv_cmp_gt_u32 vcc, 64, v0\nv_cndmask_b32 v2, v3, v0, vcc\nv_lshlrev_b32 v2, 7, v2")
        s("v_min_u32 v2, L_codeend-L_pc-4, v2\nv_mov_b32 v3, 0\nv_lshl_add_u64 v[2:3], v[2:3], 0, s[82:83]")
        s("v_cmp_gt_u32 vcc, 92, v0\ns_and_saveexec_b64 s[66:67], vcc\ns_cbranch_execz L_nocp")
        s.atom([Op("global_load_dword a246, v[2:3], off")])
        s.atom(["L_nocp:", "s_mov_b64 exec, -1"])
    s("v_lshrrev_b32 v1, 6, v0\nv_and_b32 v0, 63, v0")
    s("v_readfirstlane_b32 s%d, v1" % sW)
    s("v_lshlrev_b32 v1, 4, v0")
    s("s_mov_b32 s79, 0x40000")
    s("s_bfe_u32 s%d, s2, 0x20001" % sQ)
    s("s_and_b32 s64, s2, 1\ns_lshl_b32 s64, s64, 2\ns_lshr_b32 s%d, s2, 6\ns_add_u32 s%d, s%d, s64" % (sI, sI, sI))
    s("s_bfe_u32 s%d, s2, 0x30003" % sTN)
    s("s_lshl_b32 s%d, s%d, 3\ns_add_u32 s%d, s%d, s%d" % (sJ, sQ, sJ, sJ, sTN))
    s("s_lshl_b32 s%d, s%d, 2\ns_add_u32 s%d, s%d, s%d" % (sB, sI, sB, sB, sW))
    s("s_and_b32 s64, s2, 1\ns_lshl_b32 s64, s64, 1\ns_lshr_b32 s65, s%d, 1\ns_add_u32 s64, s64, s65\ns_lshl_b32 s64, s64, 4" % sW)
    s("s_and_b32 s65, s%d, 1\ns_add_u32 s64, s64, s65\ns_lshl_b32 s65, s%d, 1\ns_add_u32 s64, s64, s65" % (sW, sQ))
    s("s_lshr_b32 s66, s2, 3\ns_lshl_b32 s65, s66, 6\ns_add_u32 s64, s64, s65")
    s("s_lshl_b32 s67, s64, 11\ns_add_u32 s68, s67, %d" % (8 * 2048))
    s("s_mov_b32 s10, %d\ns_mov_b32 s11, 0x20000" % (2048 * 2048))
    s("s_waitcnt lgkmcnt(0)")
    if TS: s("v_writelane_b32 v%d, s100, 0" % vTS)
    stamp(s, "karg")
    s("s_mov_b32 s8, s4\ns_and_b32 s9, s5, 0xffff")
    for r in range(2):
        for h in range(2):
            s.vm("buffer_load_dwordx4 %s, v1, s[8:11], s%d offen offset:%d" % (Q(64 + 8 * r + 4 * h), 67 + r, 1024 * h), ("x", r, h))
    s("s_add_u32 s70, s6, 0x%x\ns_addc_u32 s71, s7, 0" % (WS_SM + SM_EP))
    s("s_load_dword s%d, s[70:71], 0" % sTAG)
    srd(s, 16, 14, 15, 1024 * 7168); srd(s, 12, 12, 13, 1024 * 7168)
    srd(s, 28, 26, 27, 1024 * 2048); srd(s, 24, 24, 25, 1024 * 2048)
    s("s_cmp_ge_u32 s%d, 2" % sW)
    s("s_cselect_b32 s20, s16, s12\ns_cselect_b32 s21, s17, s13\ns_mov_b32 s22, %d\ns_mov_b32 s23, 0x20000" % (1024 * 7168))
    ws_srd(s, 36, WS_SM, SM_SIZE)
    s("v_and_b32 v48, 15, v0\nv_lshrrev_b32 v49, 4, v0")
    s("v_mov_b32 v41, -1\nv_lshlrev_b32 v42, 2, v0\ns_xor_b32 s69, s2, 0xf8\ns_lshl_b32 s69, s69, 10\ns_lshl_b32 s65, s%d, 8\ns_add_u32 s69, s69, s65" % sW)
    s.vm("buffer_store_dword v41, v42, s[36:39], s69 offen %s" % SC, "agfill")
    vWA, vBA0, vBA1, vWA2, vW0, vW3, vB, vJ, vPA, vPB = 2, 3, 4, 5, 6, 9, 10, 12, 13, 14
    s("s_lshl_b32 s70, s66, 1\ns_and_b32 s65, s2, 1\ns_add_u32 s70, s70, s65")
    s("s_mul_i32 s69, s70, 7168\ns_mul_i32 s65, s%d, 1792\ns_add_u32 s69, s69, s65\nv_min_u32 v40, 13, v0\nv_lshl_add_u32 v44, v40, 7, s69" % sQ)
    s("v_and_b32 v45, 3, v0\ns_lshl_b32 s69, s%d, 8\ns_lshl_b32 s65, s70, 2\ns_add_u32 s69, s69, s65\nv_add_u32 v45, s69, v45\nv_lshlrev_b32 v45, 11, v45" % sQ)
    s("s_mov_b32 s69, %d\ns_cmp_ge_u32 s%d, 2\ns_cselect_b64 vcc, -1, 0\nv_cndmask_b32 v%d, v44, v45, vcc\ns_cselect_b32 s%d, 128, s69" % (64 * 7168, sW, vPA, sPAs))
    s("s_cselect_b32 s40, s24, s12\ns_cselect_b32 s41, s25, s13\ns_cselect_b32 s69, s28, s16\ns_cselect_b32 s65, s29, s17\ns_cselect_b32 s42, s26, s14")
    s("s_bitcmp1_b32 s%d, 0\ns_cselect_b32 s40, s69, s40\ns_cselect_b32 s41, s65, s41\ns_mov_b32 s43, 0x20000\ns_mov_b32 s%d, 0" % (sW, sKPA))
    def pfa(s):
        s.vm("buffer_load_dword a246, v%d, s[40:43], s%d offen" % (vPA, sKPA)); s("s_add_u32 s%d, s%d, s%d" % (sKPA, sKPA, sPAs))
    def pfb(s):
        s.vm("buffer_load_dword a246, v%d, s[44:47], s%d offen" % (vPB, sKPB)); s("s_add_u32 s%d, s%d, s%d" % (sKPB, sKPB, sPBs))
    for _ in range(cfg.get("pf_t0", 0)): pfa(s)
    s("s_and_b32 s71, s%d, 1\ns_lshl_b32 s71, s71, 1\ns_mul_i32 s72, s%d, 224\ns_and_b32 s73, s%d, 1\ns_add_u32 s73, s73, 12" % (sJ, sJ, sW))
    for k in range(4):
        if k < 3: s("s_add_u32 s69, s%d, %d\ns_lshl_b32 s69, s69, 6" % (sW, 4 * k))
        else: s("s_lshl_b32 s69, s73, 6")
        s("v_add_u32 v40, s69, v0\nv_mul_u32_u24 v44, 4682, v40\nv_lshrrev_b32 v44, 16, v44\nv_mul_u32_u24 v45, 14, v44\nv_sub_u32 v45, v40, v45")
        s("v_add_u32 v45, s71, v45\nv_subrev_u32 v43, 14, v45\nv_min_u32 v45, v45, v43")
        s("v_lshrrev_b32 v43, 1, v44\nv_xor_b32 v43, v43, v44\nv_and_b32 v43, 4, v43\nv_mul_u32_u24 v43, 3, v43\nv_xor_b32 v44, v44, v43")
        s("v_mul_u32_u24 v44, 7168, v44\nv_lshl_add_u32 v44, v45, 4, v44\nv_add_u32 v%d, s72, v44" % (vW0 + k))
    s("v_lshrrev_b32 v50, 3, v0\ns_lshl_b32 s69, s%d, 3\nv_add_u32 v40, s69, v50\nv_bfe_u32 v44, v40, 1, 3\nv_and_b32 v51, 7, v0\nv_xor_b32 v44, v44, v51" % sW)
    s("v_lshlrev_b32 v47, 11, v40\nv_lshl_add_u32 v47, v44, 4, v47")
    s("s_lshl_b32 s69, s%d, 16\nv_add_u32 v%d, s69, v47" % (sJ, vB))
    s("s_lshl_b32 s%d, s%d, 10\ns_lshl_b32 s%d, s73, 10" % (sMW, sW, sM3))
    s("s_cmp_ge_u32 s%d, 2\ns_cselect_b32 s69, %d, 0\ns_add_u32 s%d, s%d, s69\ns_add_u32 s%d, s%d, %d" % (sW, U_OFF, sM3, sM3, sMB, sMW, B_BASE))
    s("s_lshl_b32 s65, s%d, 1\nv_xor_b32 v52, s65, v51\nv_lshlrev_b32 v52, 4, v52\nv_lshl_add_u32 v52, v0, 7, v52\nv_add_u32 v52, %d, v52\nv_xor_b32 v53, 16, v52" % (sW, LN_LDS))
    s("v_xor_b32 v54, v50, v51\nv_lshlrev_b32 v54, 4, v54\nv_lshl_add_u32 v54, v50, 7, v54\ns_add_u32 s65, s%d, %d\nv_add_u32 v54, s65, v54" % (sMW, LN_LDS))
    s("v_lshrrev_b32 v55, 5, v0\nv_lshlrev_b32 v55, 12, v55\nv_and_b32 v44, 3, v50\nv_lshl_add_u32 v55, v44, 8, v55\nv_lshl_add_u32 v55, v51, 4, v55")
    s("s_lshl_b32 s70, s66, 17\ns_lshl_b32 s67, s%d, 10\ns_add_u32 s70, s70, s67\ns_and_b32 s67, s2, 1\ns_lshl_b32 s67, s67, 7\ns_add_u32 s70, s70, s67\ns_lshl_b32 s67, s%d, 13\ns_add_u32 s70, s70, s67" % (sQ, sW))
    s("s_add_u32 s71, s70, 32768\ns_add_u32 s72, s70, 65536\ns_add_u32 s73, s70, 98304")
    s("s_lshl_b32 s74, s64, 3\ns_add_u32 s74, s74, 0x%x\nv_mov_b32 v46, 0\nv_mov_b32 v44, %s" % (SM_ST, fx(1.0 / 1024)))
    ws_srd(s, 48, WS_XN, 0x400000)
    dma_items = [(vW0, 12, sKW, sMW, 0), (vW0 + 1, 12, sKW, sMW, 4096), (vW0 + 2, 12, sKW, sMW, 8192), (vW3, 20, sKW, sM3, 0),
                 (vW0, 16, sKW, sMW, U_OFF), (vW0 + 1, 16, sKW, sMW, U_OFF + 4096), (vW0 + 2, 16, sKW, sMW, U_OFF + 8192),
                 (vB, 24, sKB, sMB, 0), (vB, 28, sKB, sMB, 4096)]
    def dma1(s, st, k, early=None):
        v, sr, so, mb, off = dma_items[k]
        isb = mb == sMB
        base = ((st >> 1) & 1) * (16384 if isb else 65536) + (st & 1) * (B_ST if isb else W_ST)
        if k == 0: s("s_mov_b32 s%d, %d" % (sKW, st * 64 * 7168))
        if k == 7: s("s_mov_b32 s%d, %d" % (sKB, st * 128))
        s("s_add_u32 m0, s%d, %d" % (mb, off + base))
        s.op(Op("buffer_load_dwordx4 v%d, s[%d:%d], s%d offen lds" % (v, sr, sr + 3, so), "vm", K(("D", st, k))), early)
    NX = cfg.get("nx", 4)
    aX, aW, NWB = 96, 208, 8
    def xload(s, u, m, early=None):
        if m == 0: s("s_mov_b32 s%d, %d" % (sKX, u * 4096))
        s.op(Op("buffer_load_dwordx4 %s, v1, s[8:11], s%d offen offset:%d" % (R("a", aX + 16 * (u % NX) + 4 * m, 4), sKX, 1024 * m), "vm", K(("X", u, m))), early)
    def pro_stage(st):
        for k in range(9): dma1(s, st, k)
    EP_LDS = 131072; EPW = 8192
    PK = dict(C=252, CA=253, TOK=254, COL=255, D=240, TA=242, TRW=243, TRR=244, AG=245)
    s("v_lshrrev_b32 v40, 1, v48\nv_xor_b32 v40, v40, v49\nv_lshlrev_b32 v40, 4, v40\nv_lshl_add_u32 v40, v48, 7, v40")
    s("v_add_u32 v%d, %d, v40\nv_xor_b32 v%d, 64, v%d" % (vBA0, B_BASE, vBA1, vBA0))
    s("v_lshrrev_b32 v40, 1, v49\nv_lshlrev_b32 v40, 4, v40\nv_and_b32 v41, 1, v49\nv_lshlrev_b32 v41, 2, v41\nv_lshrrev_b32 v50, 2, v48\nv_add3_u32 v11, v40, v41, v50")
    s("v_mul_u32_u24 v40, 224, v11\nv_and_b32 v51, 3, v0\nv_lshl_add_u32 v%d, v51, 3, v40\nv_add_u32 v%d, 0x10000, v%d" % (vWA, vWA2, vWA))
    s("s_lshl_b32 s65, s%d, 17\ns_add_u32 s8, s6, s65\ns_addc_u32 s9, s7, 0\ns_and_b32 s9, s9, 0xffff\ns_mov_b32 s10, 0x20000" % sB)
    s("s_lshl_b32 s82, s2, 4\ns_lshl_b32 s65, s%d, 2\ns_add_u32 s82, s82, s65\ns_add_u32 s83, s82, 0x%x\ns_add_u32 s82, s82, 0x%x" % (sW, SM_F1B, SM_F1))
    s("v_and_b32 v60, 31, v0\nv_lshlrev_b32 v60, 2, v60\ns_lshl_b32 s65, s%d, 7\ns_add_u32 s64, s65, 0x%x\ns_add_u32 s65, s65, 0x%x" % (sB, SM_F1B, SM_F1))
    def tramp():
        s("s_mov_b64 exec, 0")
        for w in range(1, 4): s("s_cmp_eq_u32 s%d, %d\ns_cbranch_scc1 L_tr%d" % (sW, w, w))
        s("s_branch L_tr0")
        s.atom(["L_trret:"])
        s("s_mov_b64 exec, -1")
    TRP = cfg.get("tr_at", 2) if cfg.get("tramp", 1) else -1
    if TRP == 0: tramp()
    stamp(s, "prex")
    s.wait([("x", r, h) for r in range(2) for h in range(2)])
    stamp(s, "xin")
    nD_0 = cfg.get("d_t1", 0)
    for st in range(nD_0): pro_stage(st); s("s_add_u32 s%d, s%d, s%d" % (sKPA, sKPA, sPAs))
    for _ in range(cfg.get("pf_t1", 2)): pfa(s)
    RW = lambda r: 64 + 8 * r
    F = lambda r: 80 + 16 * r
    D = lambda r: 112 + 16 * r
    t_ = lambda r: 144 + 8 * r
    def both(f):
        o = [f(0).split("\n"), f(1).split("\n")]
        for x, y in zip(*o): s(x); s(y)
    def dsum():
        for sh in (1, 2, 4, 8): both(lambda r: "v_add_f32_dpp v%d, v%d, v%d row_shr:%d row_mask:0xf bank_mask:0xf" % (t_(r), t_(r), t_(r), sh))
        both(lambda r: "v_add_f32_dpp v%d, v%d, v%d row_bcast:15 row_mask:0xa bank_mask:0xf" % (t_(r), t_(r), t_(r)))
        both(lambda r: "v_add_f32_dpp v%d, v%d, v%d row_bcast:31 row_mask:0xc bank_mask:0xf" % (t_(r), t_(r), t_(r)))
        both(lambda r: "v_readlane_b32 s%d, v%d, 63" % (67 + r, t_(r)))
    def unpack():
        for i in range(8): both(lambda r: "v_lshlrev_b32 v%d, 16, v%d\nv_and_b32 v%d, 0xffff0000, v%d" % (F(r) + 2 * i, RW(r) + i, F(r) + 2 * i + 1, RW(r) + i))
    def pack():
        for i in range(8): both(lambda r: "v_cvt_pk_bf16_f32 v%d, v%d, v%d" % (RW(r) + i, F(r) + 2 * i, F(r) + 2 * i + 1))
    ST = lambda r: 40 + 2 * r
    unpack()
    for i in range(4): both(lambda r: "v_pk_add_f32 %s, %s, %s" % (P(t_(r) + 2 * i), P(F(r) + 4 * i), P(F(r) + 4 * i + 2)))
    both(lambda r: "v_pk_add_f32 %s, %s, %s\nv_pk_add_f32 %s, %s, %s" % (P(t_(r)), P(t_(r)), P(t_(r) + 2), P(t_(r) + 4), P(t_(r) + 4), P(t_(r) + 6)))
    both(lambda r: "v_pk_add_f32 %s, %s, %s\nv_add_f32 v%d, v%d, v%d" % (P(t_(r)), P(t_(r)), P(t_(r) + 4), t_(r), t_(r), t_(r) + 1))
    dsum()
    both(lambda r: "v_mul_f32 v%d, s%d, v44" % (ST(r), 67 + r))
    for i in range(8): both(lambda r: "v_pk_add_f32 %s, %s, %s op_sel_hi:[1,0] neg_lo:[0,1] neg_hi:[0,1]" % (P(D(r) + 2 * i), P(F(r) + 2 * i), P(ST(r))))
    both(lambda r: "v_pk_mul_f32 %s, %s, %s" % (P(t_(r)), P(D(r)), P(D(r))))
    for i in range(1, 8): both(lambda r: "v_pk_fma_f32 %s, %s, %s, %s" % (P(t_(r)), P(D(r) + 2 * i), P(D(r) + 2 * i), P(t_(r))))
    both(lambda r: "v_add_f32 v%d, v%d, v%d" % (t_(r), t_(r), t_(r) + 1))
    dsum()
    both(lambda r: "v_mul_f32 v%d, s%d, v44" % (ST(r) + 1, 67 + r))
    both(lambda r: "v_cvt_pk_bf16_f32 v%d, v%d, v%d\nv_lshlrev_b32 v%d, 16, v%d\nv_and_b32 v%d, 0xffff0000, v%d" % (t_(r), ST(r), ST(r) + 1, ST(r), t_(r), ST(r) + 1, t_(r)))
    both(lambda r: ("v_add_f32 V, %s, V\nv_cvt_pk_bf16_f32 V, V, V\nv_and_b32 V, 0xffff0000, V\nv_sqrt_f32 V, V\nv_cvt_pk_bf16_f32 V, V, V\nv_and_b32 V, 0xffff0000, V\nv_rcp_f32 V, V" % fx(1e-5)).replace("V", "v%d" % (ST(r) + 1)))
    for i in range(8): both(lambda r: "v_pk_add_f32 %s, %s, %s op_sel_hi:[1,0] neg_lo:[0,1] neg_hi:[0,1]" % (P(F(r) + 2 * i), P(F(r) + 2 * i), P(ST(r))))
    pack(); unpack()
    for i in range(8): both(lambda r: "v_pk_mul_f32 %s, %s, %s op_sel:[0,1] op_sel_hi:[1,1]" % (P(F(r) + 2 * i), P(F(r) + 2 * i), P(ST(r))))
    pack()
    for r in range(2):
        for h in range(2): s.lg("ds_write_b128 v%d, %s offset:%d" % (52 + r, Q(RW(r) + 4 * h), 8192 * h))
    s("s_mov_b64 exec, 1")
    for r in range(2): s.vm("buffer_store_dwordx2 %s, v46, s[36:39], s74 offen offset:%d %s" % (P(ST(r)), 64 * r, SC))
    s("s_mov_b64 exec, -1")
    s.wait(None, drain=["lg"])
    stamp(s, "lnc")
    s("s_barrier")
    for k in range(4): s.lg("ds_read_b128 %s, v54 offset:%d" % (Q(64 + 4 * k), 4096 * k), ("ln", k))
    TWO = cfg.get("two", 1)
    def xnst(ks):
        for k in ks: s.vm("buffer_store_dwordx4 %s, v55, s[48:51], s%d offen %s" % (Q(64 + 4 * k), 70 + k, SC), ("xn", k), needs=[("ln", k)])
    xnst(range(1 if TWO >= 2 else 4))
    stamp(s, "xnst")
    nD_b = cfg.get("d_t3", 1)
    nD_c = cfg.get("d_t4", 2)
    s("s_mul_i32 s%d, s%d, 0x9E3779B1\ns_add_u32 s%d, s%d, 0x7F4A7C15\nv_mov_b32 v62, s%d" % (sTAG, sTAG, sTAG, sTAG, sTAG))
    if TRP == 1: tramp()
    flag(s, "buffer_store_dword v62, v46, s[36:39], s82 offen %s" % SC, [("xn", 0 if TWO else 3), "agfill"])
    stamp(s, "flag1")
    if TWO == 2: xnst(range(1, 4))
    for st in range(nD_0, nD_b): pro_stage(st)
    if TWO == 3: xnst(range(1, 4))
    stamp(s, "d0")
    if TRP == 2: tramp()
    stamp(s, "trd")
    if TWO: flag(s, "buffer_store_dword v62, v46, s[36:39], s83 offen %s" % SC, [("xn", 3)])
    f1load = "buffer_load_dword v61, v60, s[36:39], s65 offen %s" % SC
    s.vm(f1load, "f1")
    for st in range(max(nD_0, nD_b), nD_c): pro_stage(st)
    nD_b = max(nD_0, nD_b, nD_c)
    if TRP == 3: tramp()
    stamp(s, "prepoll")
    if TRP >= 0:
        s("s_branch L_main"); s.atom([".p2align 12"]); s.atom(["L_main:"])
    poll(s, "P1", f1load, 61, "f1")
    stamp(s, "poll1")
    NXP = cfg.get("nxpre", 1)
    for u in range(NXP):
        for m in range(4): xload(s, u, m)
    npfa = cfg.get("pf_t0", 0) + cfg.get("pf_t1", 2) + nD_0
    NPB = 4
    tiles = []
    for q in range(7): tiles += [("G", q), ("U", q)]
    tiles += [("R", 0), ("I", 0), ("R", 1), ("I", 1)]
    def acc(t, m):
        k, q = t
        if k == "R": return ("v", 64 + 16 * q + 4 * m)
        if k == "I": return ("v", 96 + 16 * q + 4 * m)
        o = 32 * q + (16 if k == "U" else 0) + 4 * m
        return ("v", 128 + o) if q < 4 else ("a", o - 128)
    L0 = cfg.get("l1_lead", 3)
    groups = [(u, ti) for u in range(32) for ti in range(18)]
    NG = len(groups)
    parts = lambda G: [0, 1] if groups[G][1] < 14 else [None]
    def read1(G, part):
        u, ti = groups[G]; st, kk = divmod(u, 2); t = tiles[ti]; f = G % NWB
        if t[0] in "GU":
            off = (st & 1) * W_ST + (U_OFF if t[0] == "U" else 0) + kk * 7168 + part * 1792 + t[1] * 32
            return Op("ds_read_b64_tr_b16 %s, v%d offset:%d" % (R("a", aW + 4 * f + 2 * part, 2), (vWA, vWA2)[(st >> 1) & 1], off), "lg", K(("F", G, part)))
        off = (st & 3) * B_ST + (4096 if t[0] == "I" else 0) + t[1] * 2048
        return Op("ds_read_b128 %s, v%d offset:%d" % (R("a", aW + 4 * f, 4), vBA1 if kk else vBA0, off), "lg", K(("F", G, part)))
    rgap = {}
    for G in range(NG):
        f = G % 36
        g = G if f < 33 else G - (1 if f < 35 else 2)
        rgap[G] = 4 * (g - L0) - 1
        assert rgap[G] >= 4 * (G - NWB) + 3
    gneed = lambda G: [("F", G, p) for p in parts(G)] + ([("X", groups[G][0], m) for m in range(4)] if groups[G][1] == 0 else [])
    s.wait([("D", 0, k) for k in range(9)])
    s("s_barrier")
    for G in range(NG):
        if rgap[G] < 0:
            for p in parts(G): s.op(read1(G, p))
    s.wait(gneed(0))
    stamp(s, "loop1")
    prog.add(s.done())
    mf = []
    for G, (u, ti) in enumerate(groups):
        t = tiles[ti]
        for m in range(4):
            xr = ("a", aX + 16 * (u % NX) + 4 * m); wr = ("a", aW + 4 * (G % NWB))
            mf.append(Op(mfma16(acc(t, m), wr, xr, u == 0) if t[0] in "GU" else mfma16(acc(t, m), xr, wr, u == 0)))
    sc = Sch(mf)
    for G in range(1, NG):
        w = Op("", needs=K(gneed(G))); w.keep = True
        sc.put(4 * G - 1, [w], 0)
    for G in range(NG):
        if rgap[G] >= 0: sc.put(rgap[G], [read1(G, p) for p in parts(G)], 1)
    bar = {}
    for st in range(15):
        bar[st] = 4 * (36 * (st + 1) - L0) - 2
        sc.put(bar[st], [Op("s_barrier", needs=K([("D", st + 1, k) for k in range(9)]), drain=["lg"])], 0)
    items = []
    PFL = cfg.get("pfl", 1.0)
    pft = {}
    if cfg.get("pf1", 1):
        ev = cfg.get("pf_first", 40); st = npfa
        while st < 16:
            n = 0
            while st < 16 and n < cfg.get("pf_max", 2) and (n == 0 or 144 * (st - 3 - PFL) < ev):
                e = max(int(144 * (st - 3 - PFL)), ev); pft[st] = e; items.append((0, 2, e, "a", st, 0)); st += 1; n += 1
            ev = e + cfg.get("pf_min", 120)
    for st in range(nD_b, 16):
        e = max(bar[st - 4] + 1 if st >= 4 else 0, pft.get(st, -1000) + cfg.get("pf_lat", 80))
        for k in range(9): items.append((bar[st - 1], 0, e, "d", st, k))
    for u in range(NXP, 32):
        e = 72 * (u - NX + 1) - 1 if u >= NX else 0
        for m in range(4): items.append((72 * u - 1, 1, e, "x", u, m))
    gC_ = sorted(set(pft.values()))[cfg.get("c_ev", 2)] if pft else 300
    items.append((0, 3, gC_, "c", 0, 0))
    gE_ = gC_ + cfg.get("e_off", 90)
    for n in range(4): items.append((gE_ + 100, 3, gE_ + 20 * n, "e", n, 0))
    f1cload = "buffer_load_dword v61, v60, s[36:39], s64 offen %s" % SC
    if cfg.get("pf2", 1):
        for c in range(NPB): items.append((0, 2, cfg.get("pfb_first", 1700) + int(c * cfg.get("pfb_sp", 110)), "b", c, 0))
    now = 0; pend = sorted(items); done = []; quiet = -1
    while pend:
        av = [x for x in pend if x[2] <= now]
        if not av: now += 1; continue
        x = av[0]; pend.remove(x)
        if x[3] == "d": dma1(s, x[4], x[5], int(now))
        elif x[3] == "x":
            if TWO and x[4:] == (8, 0): poll(s, "P1c", f1cload, 61, "f1c", early=int(now))
            xload(s, x[4], x[5], int(now))
            if TWO and x[4:] == (6, 3): s.vm(f1cload, "f1c")
        elif x[3] == "a":
            s.at(int(now)); pfa(s); quiet = now + cfg.get("q_len", 64)
            if [y for y in pend if y[3] == "a" and y[2] <= now]: now -= cfg.get("q_sp", 10) - 4
        elif x[3] == "c":
            s.at(int(now)); i_c0 = len(s.u) - 1
            for k, lo in enumerate((96, 98, 92)):
                s("s_mov_b32 s32, s%d\ns_and_b32 s33, s%d, 0xffff" % (lo, lo + 1))
                for T in range(2): s.vm("buffer_load_ushort v%d, v40, s[32:35], 0 offen offset:%d" % (16 + 2 * k + T, 32 * T), ("c", k, T))
            s("s_mov_b32 s32, s94\ns_and_b32 s33, s95, 0xffff")
            for u in range(2): s.vm("buffer_load_dwordx2 %s, v41, s[32:35], 0 offen offset:%d" % (R("a", 248 + 2 * u, 2), 32 * u), ("dk", u))
            i_c1 = len(s.u) - 1; now += 30
        elif x[3] == "e":
            s("s_mov_b32 s70, %d\ns_add_u32 m0, s71, %d" % (32768 * x[4], 1024 * x[4]))
            s.op(Op("buffer_load_dwordx4 v12, s[48:51], s70 offen lds", "vm", K(("E", x[4]))), int(now)); i_e1 = len(s.u) - 1; now += 4
        else: s.at(int(now)); pfb(s); quiet = now + cfg.get("q_len", 64)
        if x[3] in "dx": done.append((x, len(s.u) - 1))
        if x[3:] == ("x", 8, 0): i_p1c = len(s.u) - 1
        now += cfg.get("q_sp", 10) if now < quiet else cfg.get("l1_sp", 5)
    res = sc.stream(s.units(), 0, 2)
    sl = sorted((x[0] - res[i], x[3], x[4], x[5]) for x, i in done)
    if cfg.get("verbose"): print("loop1 vm end", res[-1], "of", 4 * NG, "min slacks", sl[:3], "steady", min(z for z in sl if z[2] > 8))
    for nm in names:
        if TS and nm[0] == "f" and nm[1:].isdigit():
            st_ = int(nm[1:])
            sc.put(bar[st_] - 1, [Op("s_memrealtime s[100:101]")], 5)
            sc.put(bar[st_], [Op("v_writelane_b32 v%d, s100, %d" % (vTS, names.index(nm)))], 5)
    s.at(cfg.get("sh_at", 20))
    cL, cC, cL8, cL16, cL64, cL512 = 16, 20, 24, 28, 32, 36
    s("s_mov_b32 s34, 2048\ns_mov_b32 s35, 0x20000")
    s("s_lshl_b32 s69, s%d, 5\nv_add_u32 v40, s69, v48\nv_lshlrev_b32 v40, 1, v40" % sJ)
    s("s_lshl_b32 s68, s%d, 7\ns_lshl_b32 s66, s%d, 5\ns_add_u32 s68, s68, s66\nv_lshl_add_u32 v41, v49, 2, s68\nv_accvgpr_write_b32 a%d, v41\nv_lshlrev_b32 v41, 1, v41" % (sTN, sQ, PK["COL"]))
    srd(s, 48, 4, 5, 2048 * 2048)
    s("s_lshl_b32 s68, s68, 1\ns_lshl_b32 s66, s%d, 17\ns_add_u32 s68, s68, s66\nv_lshrrev_b32 v12, 2, v0\nv_lshl_add_u32 v12, v12, 11, s68\nv_lshl_add_u32 v12, v51, 4, v12" % sB)
    s("s_lshr_b32 s66, s%d, 1\ns_lshl_b32 s66, s66, 16\ns_and_b32 s71, s%d, 1\ns_lshl_b32 s71, s71, 12\ns_add_u32 s71, s71, s66\ns_add_u32 s71, s71, 57344" % (sW, sW))
    r0 = sc.stream(s.units(), 0, 3)
    assert r0[-1] < res[i_c0]
    s.at(res[i_c1] + 1)
    s("v_subrev_u32 v40, %d, v%d\nv_accvgpr_write_b32 a%d, v40" % (B_BASE, vBA0, PK["CA"]))
    s("s_mul_i32 s69, s%d, %d\ns_add_u32 s69, s69, %d" % (sW, EPW, EP_LDS + 2048))
    s("v_and_b32 v41, 1, v49\nv_xor_b32 v41, v41, v51\nv_lshlrev_b32 v40, 5, v11\nv_lshl_add_u32 v40, v41, 3, v40\nv_add_u32 v40, s69, v40\nv_accvgpr_write_b32 a%d, v40" % PK["TRR"])
    s("v_lshrrev_b32 v40, 1, v48\nv_xor_b32 v40, v40, v48\nv_and_b32 v40, 4, v40\nv_mul_u32_u24 v40, 3, v40\nv_xor_b32 v40, v40, v48\nv_lshrrev_b32 v41, 2, v40\nv_xor_b32 v41, v41, v49\nv_lshlrev_b32 v40, 5, v40\nv_lshl_add_u32 v40, v41, 3, v40\nv_add_u32 v40, s69, v40\nv_accvgpr_write_b32 a%d, v40" % PK["TRW"])
    s("v_lshrrev_b32 v40, 2, v0\nv_and_b32 v41, 7, v40\nv_lshlrev_b32 v41, 5, v41\nv_lshl_add_u32 v41, v40, 8, v41\nv_lshl_add_u32 v41, v51, 3, v41\nv_accvgpr_write_b32 a%d, v41" % PK["TA"])
    s("s_lshl_b32 s68, s%d, 2\nv_add_u32 v40, s68, v49\nv_and_b32 v41, 7, v40\nv_bfe_u32 v51, v0, 1, 3\nv_xor_b32 v41, v41, v51\ns_lshl_b32 s66, s%d, 1\nv_xor_b32 v41, s66, v41\nv_lshlrev_b32 v41, 5, v41" % (sW, sQ))
    s("v_and_b32 v51, 1, v0\nv_lshl_add_u32 v41, v51, 4, v41\ns_mul_i32 s67, s%d, 896\nv_add_u32 v40, s67, v40\nv_lshl_add_u32 v40, v40, 11, v41\ns_lshl_b32 s67, s%d, 8\nv_add_u32 v40, s67, v40\nv_accvgpr_write_b32 a%d, v40" % (sQ, sTN, PK["D"]))
    s("s_lshl_b32 s68, s%d, 18\ns_lshl_b32 s66, s%d, 9\ns_add_u32 s68, s68, s66\nv_add_u32 v40, s68, v47\nv_accvgpr_write_b32 a%d, v40" % (sTN, sQ, PK["C"]))
    s("v_lshlrev_b32 v40, 4, v50\nv_lshl_add_u32 v40, v51, 3, v40\nv_bfe_u32 v41, v48, 1, 1\ns_lshl_b32 s68, s%d, 6\nv_add3_u32 v40, v40, v41, s68\nv_accvgpr_write_b32 a%d, v40" % (sB, PK["TOK"]))
    s("s_sub_u32 s68, 32, s%d\ns_lshl_b32 s68, s68, 13\ns_lshl_b32 s66, s%d, 8\ns_add_u32 s68, s68, s66\nv_lshl_add_u32 v40, v48, 4, s68\nv_lshl_add_u32 v40, v49, 16, v40\nv_accvgpr_write_b32 a%d, v40" % (sB, sJ, PK["AG"]))
    ld, lc = 28, 16
    s("s_lshl_b32 s68, s2, 1\ns_and_b32 s66, s%d, 1\ns_add_u32 s68, s68, s66\ns_mul_i32 s68, s68, %d\ns_mul_i32 s66, s2, %d" % (sW, ld * 128, lc * 128))
    ge2 = "s_cmp_ge_u32 s%d, 2" % sW
    s.atom([ge2, "s_cselect_b32 s68, s66, s68", "s_cselect_b32 s66, %d, %d" % (lc - 1, ld - 1)])
    s("v_min_u32 v40, s66, v0\nv_lshl_add_u32 v%d, v40, 7, s68" % vPB)
    s.atom(["s_bitcmp1_b32 s%d, 0" % sW, "s_cselect_b32 s68, s90, s88", "s_cselect_b32 s66, s91, s89"])
    s.atom([ge2, "s_cselect_b32 s44, s68, s84", "s_cselect_b32 s45, s66, s85"])
    s("s_mov_b32 s67, %d\ns_mov_b32 s68, %d" % (3584 * 2048, 512 * ld * 128))
    s.atom([ge2, "s_cselect_b32 s46, %d, s67" % (1024 * 2048), "s_cselect_b32 s%d, %d, s68" % (sPBs, 256 * lc * 128)])
    s("s_and_b32 s45, s45, 0xffff\ns_mov_b32 s47, 0x20000\ns_mov_b32 s%d, 0" % sKPB)
    s.at(res[i_c1] + 90)
    s.wait([("c", 2, 1)])
    def two(f):
        for T in range(2): s(f(T))
    for k in range(6): s("v_lshlrev_b32 v%d, 16, v%d" % (40 + k, 16 + k))
    two(lambda T: "v_mul_f32 v%d, %s, v%d" % (44 + T, fx(LOG2E), 44 + T)); two(lambda T: "v_exp_f32 v%d, v%d" % (44 + T, 44 + T))
    s("v_cvt_pk_bf16_f32 v45, v44, v45\nv_lshlrev_b32 v44, 16, v45\nv_and_b32 v45, 0xffff0000, v45")
    two(lambda T: "v_mul_f32 v%d, v%d, v%d\nv_mul_f32 v%d, v%d, v%d" % (24 + T, 44 + T, 40 + T, 26 + T, 44 + T, 42 + T))
    two(lambda T: "v_mul_f32 v%d, %s, v%d" % (24 + T, fx(LOG2E), 24 + T)); two(lambda T: "v_exp_f32 v%d, v%d" % (24 + T, 24 + T))
    two(lambda T: "v_mul_f32 v%d, 0.15915494, v%d\nv_rndne_f32 v%d, v%d\nv_sub_f32 v%d, v%d, v%d" % (26 + T, 26 + T, 52 + T, 26 + T, 26 + T, 26 + T, 52 + T))
    two(lambda T: "v_cos_f32 v%d, v%d\nv_sin_f32 v%d, v%d" % (52 + T, 26 + T, 54 + T, 26 + T))
    two(lambda T: "v_mul_f32 v%d, v%d, v%d\nv_mul_f32 v%d, v%d, v%d\nv_add_f32 v%d, -1.0, v%d" % (cL + T, 24 + T, 52 + T, 54 + T, 24 + T, 54 + T, 52 + T, cL + T))
    two(lambda T: "v_mul_f32 v%d, v%d, v%d\nv_fmac_f32 v%d, v%d, v%d\nv_rcp_f32 v%d, v%d" % (24 + T, 40 + T, 40 + T, 24 + T, 42 + T, 42 + T, 24 + T, 24 + T))
    two(lambda T: "v_mul_f32 v%d, v%d, v%d\nv_fmac_f32 v%d, v%d, v%d" % (26 + T, 52 + T, 40 + T, 26 + T, 54 + T, 42 + T))
    two(lambda T: "v_mul_f32 v%d, v%d, v%d\nv_fma_f32 v%d, -v%d, v%d, v%d" % (56 + T, 54 + T, 40 + T, 56 + T, 52 + T, 42 + T, 56 + T))
    two(lambda T: "v_add_f32 v%d, v%d, v%d\nv_mul_f32 v%d, v%d, v%d\nv_mul_f32 v%d, v%d, v%d\nv_sub_f32 v%d, 0, v%d" % (24 + T, 24 + T, 24 + T, cC + T, 26 + T, 24 + T, cC + 2 + T, 56 + T, 24 + T, cL + 2 + T, 54 + T))
    def sq(d, x):
        two(lambda T: "v_mul_f32 v%d, v%d, v%d\nv_mul_f32 v%d, v%d, v%d\nv_fma_f32 v%d, v%d, v%d, -v%d\nv_add_f32 v%d, v%d, v%d" % (52 + T, x + 2 + T, x + 2 + T, 54 + T, x + T, x + 2 + T, d + T, x + T, x + T, 52 + T, d + 2 + T, 54 + T, 54 + T))
    sq(cL8, cL); sq(cL8, cL8); sq(cL8, cL8); sq(cL16, cL8); sq(cL64, cL16); sq(cL64, cL64); sq(cL512, cL64); sq(cL512, cL512); sq(cL512, cL512)
    aBS = 160
    assert NX <= 4
    s.at(max(res[i_p1c] + 2, res[i_e1] + 90))
    s("v_accvgpr_read_b32 v12, a%d\nv_and_b32 v11, 63, v12\nv_lshlrev_b32 v11, 6, v11\nv_lshl_add_u32 v11, v49, 3, v11\nv_add_u32 v11, s71, v11\nv_lshlrev_b32 v12, 3, v12\ns_mov_b32 s66, 0x%x" % (PK["TOK"], SM_ST))
    s.wait([("E", 3), ("dk", 1)])
    for k in range(4): s("v_accvgpr_read_b32 v%d, a%d" % (40 + k, 248 + k))
    for m in range(4):
        s.vm("buffer_load_dwordx2 v[44:45], v12, s[36:39], s66 offen offset:%d" % (16 * m), ("St", m))
        for u in range(2): s.lg("ds_read_b64 %s, v11 offset:%d" % (P(52 + 2 * u), 128 * m + 32 * u), ("er", m, u))
        s.delay(cfg.get("e_lat", 90))
        s.wait([("St", m), ("er", m, 1)])
        for u in range(2):
            def unp(d, x):
                for h in range(2): s("v_lshlrev_b32 v%d, 16, v%d\nv_and_b32 v%d, 0xffff0000, v%d" % (d + 2 * h, x + h, d + 2 * h + 1, x + h))
            def rnd():
                for h in range(2): s("v_cvt_pk_bf16_f32 v%d, v%d, v%d" % (48 + h, 60 + 2 * h, 61 + 2 * h))
                unp(60, 48)
            unp(56, 52 + 2 * u)
            for k in range(4): s("v_sub_f32 v%d, v%d, v44" % (60 + k, 56 + k))
            rnd()
            for k in range(4): s("v_mul_f32 v%d, v%d, v45" % (60 + k, 60 + k))
            rnd()
            for h in range(2):
                s("v_lshlrev_b32 v46, 16, v%d\nv_and_b32 v47, 0xffff0000, v%d\nv_mul_f32 v%d, v%d, v46\nv_mul_f32 v%d, v%d, v47" % (40 + 2 * u + h, 40 + 2 * u + h, 60 + 2 * h, 60 + 2 * h, 61 + 2 * h, 61 + 2 * h))
            rnd()
            for k in range(4): s("v_add_f32 v%d, v%d, v%d" % (56 + k, 56 + k, 60 + k))
            for k in range(4): s("v_accvgpr_write_b32 a%d, v%d" % (aBS + 16 * u + 4 * m + k, 56 + k))
    rb = sc.stream(s.units(), 0, 3, vmspace=2)
    if cfg.get("verbose"): print("shadow end", rb[-1])
    assert rb[-1] < res[-1] and rb[-1] < bar[13]
    vEW, vER, vTG, vAG, vTRW, vTRR, vCP, vH8, vD1, vPAd, vPD, vD0 = 2, 3, 4, 5, 6, 7, 8, 10, 11, 12, 13, 14
    sM, sKD, sKH = 54, 55, 56
    c1 = -2.0 * math.sqrt(2.0 / math.pi) * LOG2E
    CC = 46
    s("v_accvgpr_read_b32 v%d, a%d\nv_lshlrev_b32 v%d, 3, v0\nv_add_u32 v%d, 32768, v%d" % (vD0, PK["D"], vH8, vD1, vD0))
    s("v_and_b32 v43, 31, v0\nv_lshlrev_b32 v43, 7, v43\ns_lshl_b32 s71, s%d, 2\ns_add_u32 s71, s71, 0x%x" % (sJ, SM_F1))
    s("s_mul_i32 s65, s%d, 176\ns_mul_i32 s66, s%d, 44\ns_add_u32 s65, s65, s66\ns_lshl_b32 s65, s65, 12\ns_add_u32 s65, s65, 0x%x" % (sB, sQ, WS_H))
    s.atom(["s_add_u32 s32, s6, s65", "s_addc_u32 s33, s7, 0"])
    s("s_and_b32 s33, s33, 0xffff\ns_mov_b32 s34, 0x%x\ns_mov_b32 s35, 0x20000" % (44 * 4096))
    srd(s, 12, 84, 85, 3584 * 2048); srd(s, 16, 88, 89, 1024 * 2048); srd(s, 20, 90, 91, 1024 * 2048)
    s("s_lshl_b32 s%d, s%d, 10" % (sM, sW))
    s("v_mov_b32 v46, %s\nv_mov_b32 v47, %s" % (fx(c1), fx(c1 * 0.044715)))
    ROT = cfg.get("rot", 2)
    sTQ = [96, 97, 98, 99, 48, 49, 50, 51]; sTS = [76, 77, 78, 80]; sJ12, sG7 = 44, 45
    s("s_and_b32 s67, s%d, 3\ns_lshl_b32 s67, s67, 1" % sI)
    for k in range(8):
        if k == 0: s("s_mov_b32 s65, s%d" % sTN)
        elif ROT == 2: s.atom(["s_cmp_le_u32 s%d, %d" % (sTN, k - 1), "s_cselect_b32 s65, %d, %d" % (k, k - 1)])
        elif ROT: s("s_add_u32 s65, s67, %d\ns_sub_u32 s66, s65, 7\ns_min_u32 s65, s65, s66\ns_add_u32 s65, s65, 1\ns_xor_b32 s65, s65, s%d" % (k - 1, sTN))
        else: s("s_xor_b32 s65, s%d, %d" % (sTN, k))
        s("s_mul_i32 s65, s65, 7\ns_add_u32 s65, s65, 1\ns_lshr_b32 s65, s65, 1\ns_lshl_b32 s%d, s65, 12" % sTQ[k])
    s("s_lshr_b32 s67, s%d, 1" % sTN)
    sGp = [24, 25, 26, 27]; sPar = 45
    for p in range(4):
        if ROT == 2:
            s("s_mov_b32 s%d, %d" % (sTS[p], (7 * p + 3) * 4096))
            if p == 0: s("s_lshl_b32 s%d, s67, 13" % sGp[0])
            else:
                s.atom(["s_cmp_le_u32 s67, %d" % (p - 1), "s_cselect_b32 s65, %d, %d" % (p, p - 1)]); s("s_lshl_b32 s%d, s65, 13" % sGp[p])
        else: s("s_xor_b32 s65, s67, %d\ns_lshl_b32 s%d, s65, 13\ns_mul_i32 s65, s65, %d\ns_add_u32 s%d, s65, %d" % (p, sGp[p], 7 * 4096, sTS[p], 3 * 4096))
    s("s_lshl_b32 s%d, s%d, 12\ns_and_b32 s69, s%d, 1\ns_lshl_b32 s%d, s69, 12" % (sJ12, sTN, sTN, sPar))
    s("s_mul_i32 s67, s67, %d\ns_lshl_b32 s69, s69, 9\ns_add_u32 s67, s67, s69\ns_add_u32 s67, s67, %d" % (7 * 4096, 3 * 4096))
    s("s_add_u32 s72, s%d, %d\ns_add_u32 s73, s%d, %d\ns_mov_b32 s66, s%d" % (sJ12, 28 * 4096, sJ12, 36 * 4096, sTQ[0]))
    s("s_lshl_b32 s68, s%d, 2\ns_add_u32 s68, s68, s%d\ns_lshl_b32 s68, s68, 7\ns_add_u32 s68, s68, 0x%x" % (sB, sQ, SM_F3))
    s("s_lshl_b32 s81, s%d, 2\ns_add_u32 s81, s81, s68\nv_and_b32 v%d, 7, v0\nv_lshlrev_b32 v%d, 2, v%d" % (sTN, vPAd, vPAd, vPAd))
    s("s_sub_u32 s64, 31, s%d\ns_lshl_b32 s64, s64, 13\ns_lshl_b32 s65, s%d, 8\ns_add_u32 s64, s64, s65" % (sB, sJ))
    s("s_mul_i32 s46, s%d, %d\ns_add_u32 s46, s46, %d" % (sW, EPW, EP_LDS))
    if TRP >= 0 and cfg.get("tr2", 1) and cfg.get("tr2pf", 1):
        s.atom(["s_getpc_b64 s[82:83]", "L_pc2:"])
        s("v_lshrrev_b32 v50, 3, v0\nv_lshlrev_b32 v50, 12, v50\nv_and_b32 v51, 7, v0\nv_lshl_add_u32 v50, v51, 7, v50\nv_add_u32 v50, L_main-L_pc2+%d, v50" % (4096 * cfg.get("tr_n", 12)))
        s("v_min_u32 v50, L_codeend-L_pc2-4, v50\nv_mov_b32 v51, 0\nv_lshl_add_u64 v[50:51], v[50:51], 0, s[82:83]")
        s.vm("global_load_dword a246, v[50:51], off")
    f1bload = "buffer_load_dword v44, v43, s[36:39], s71 offen %s" % SC
    s.vm(f1bload, "f1b")
    steps = [("g", 0, 2), ("g", 0, 0), ("g", 0, 1)]
    for k in range(1, 8): steps += [("g", k, 0), ("g", k, 1)]
    UB = len(steps)
    for k in range(1, 8): steps += [("g", k, 2)] + ([("s", k // 2, 0)] if k % 2 else [])
    assert len(steps) == 28
    cst = [("r", 0), ("i", 0), ("r", 1), ("r", 2), ("r", 3), ("i", 1), ("i", 2), ("i", 3)]
    steps += [("c", 14, 0), ("c", 15, 0), ("c", 14, 1), ("c", 15, 1)]
    for st in range(16, 22): steps += [("c", st, 0), ("c", st, 1)]
    own = {0, 1, 2, 28, 29}; UC = 30
    NST = 22; KC = cfg.get("kc", 8)
    slot = {st: st % 8 for st in range(22)}; prevocc = {st: (st - 8 if st >= 8 else None) for st in range(22)}
    aW2 = 0; aAG = 32
    vC, vCA = 16, 20
    def dma2(s, st, k, early=None, vC=vC):
        if st < 14:
            kind, x, p = steps[2 * st + k // 2]
            if k % 2 == 0:
                if kind == "g" and p: s("s_add_u32 s%d, s%d, %d\ns_lshl_b32 s%d, s%d, 4" % (sKD, sTQ[x], p * 4096, sKD, sKD))
                else: s("s_lshl_b32 s%d, s%d, 4" % (sKD, (sTQ if kind == "g" else sTS)[x]))
            v, sr = (vD0, vD1)[k % 2], 12
        else:
            part, p = cst[st - 14]
            if k == 0: s("s_lshr_b32 s%d, s%d, 6" % (sKD, sGp[p]))
            v, sr = vC + k, (16 if part == "r" else 20)
        s("s_add_u32 m0, s%d, %d" % (sM, slot[st] * 16384 + k * 4096))
        s.op(Op("buffer_load_dwordx4 v%d, s[%d:%d], s%d offen lds" % (v, sr, sr + 3, sKD), "vm", K(("D2", st, k))), early)
    NPRE = 4
    s.at(max(bar[13] + 1, cfg.get("pre_at", 2170)))
    for st in range(NPRE):
        for k in range(4):
            dma2(s, st, k)
            if (st, k) != (NPRE - 1, 3): s.delay(cfg.get("pre_sp", 5))
    r = sc.stream(s.units(), res[-1] + 2, 3)
    prog.add(sc.ops())
    vTA = 40
    s("s_barrier")
    stamp(s, "end1")
    KD = [int(c, 36) for c in str(cfg.get("kd", "g088"))]
    groups = [(uu, u) for uu in range(44) for u in (2, 3, 4, 5, 6, 7, 0, 1) if uu < 44 - KD[u // 2]]
    groups = [g for g in groups if g[0] < 28 and False] + [(uu, u) for uu in range(28) for u in range(8)] + [g for g in groups if g[0] >= 28]
    pend_ = {}
    for d in (1, 2, 3, 0):
        groups += [(uu, u) for uu in range(44 - KD[d], 44) for u in (2 * d, 2 * d + 1)]
    for G, (uu, u) in enumerate(groups): pend_[u // 2] = G
    assert len(groups) == 352 and max(KD) <= 16
    NG = len(groups)
    lastuse = {}; firstuse = {}
    for G, (uu, u) in enumerate(groups): firstuse.setdefault(uu, G); lastuse[uu] = G
    hreg = {0: ("v", 48), 1: ("a", 96), 2: ("a", 112), 28: ("a", 32), 29: ("a", 48)}; hfree = {}
    pool = [(-1, ("a", r)) for r in [128, 144, 192, 208, 224, 64, 80, 160, 176]] + [(4 * lastuse[u] + 3, hreg[u]) for u in (1, 2, 28, 29)]
    VFREE = cfg.get("vfree", 700)
    pool += [(VFREE, ("v", r)) for r in (64, 80, 96, 112)[:cfg.get("nvs", 4)]]
    for u in range(44):
        if u in own: continue
        pool.sort(key=lambda x: x[0]); e, r = pool.pop(0)
        hreg[u] = r; hfree[u] = e; pool.append((4 * lastuse[u] + 3, r))
    def hload(s, u, m, early=None):
        kind, x, p = steps[u]
        if m == 0:
            if kind == "g": s("s_add_u32 s%d, s%d, %d" % (sKH, sTQ[x], p * 4096))
            elif kind == "s": s("s_mov_b32 s%d, s%d" % (sKH, sTS[x]))
            else:
                part, pp = cst[x - 14]
                s("s_xor_b32 s%d, s%d, %d\ns_add_u32 s%d, s%d, s%d" % (sKH, sPar, ((28 if part == "r" else 36) + p) * 4096, sKH, sKH, sGp[pp]))
        hk, d = hreg[u]; d += 4 * m
        if kind == "s":
            s.op(Op("buffer_load_dwordx2 %s, v%d, s[32:35], s%d offen offset:%d" % (R(hk, d, 2), vH8, sKH, 1024 * m), "vm"), early)
            s.op(Op("buffer_load_dwordx2 %s, v%d, s[32:35], s%d offen offset:%d" % (R(hk, d + 2, 2), vH8, sKH, 1024 * m + 512), "vm", K(("H", u, m))))
        else: s.op(Op("buffer_load_dwordx4 %s, v1, s[32:35], s%d offen offset:%d" % (R(hk, d, 4), sKH, 1024 * m), "vm", K(("H", u, m))), early)
    hst = cfg.get("hst", SC)
    def gelu_pair(base0, base1, pid, T, OUT, keep=None, hook=None):
        for m in range(4):
            o = OUT[m % len(OUT)]
            items = [(base0 + 4 * m, base0 + 16 + 4 * m, o), (base0 + 4 * m + 2, base0 + 18 + 4 * m, o + 1),
                     (base1 + 4 * m, base1 + 16 + 4 * m, o + 2), (base1 + 4 * m + 2, base1 + 18 + 4 * m, o + 3)]
            gelu_block(s, items, CC, T)
            s.vm("buffer_store_dwordx4 %s, v1, s[32:35], s66 offen offset:%d %s" % (Q(o), 1024 * m, hst), ("hs", pid, m))
            if keep is not None:
                for r in range(4): s("v_accvgpr_write_b32 a%d, v%d" % (keep + 4 * m + r, o + r))
            if hook: hook(m)
        s("s_add_u32 s66, s66, 4096")
    NPRE2 = cfg.get("npre2", 8)
    cpre = [(st, k) for st in range(NPRE, NPRE2) for k in range(4)]
    def cdma(n):
        for _ in range(n):
            if cpre: st, k = cpre.pop(0); dma2(s, st, k)
    npg = cfg.get("cpre_g", 0)
    cdma(cfg.get("cpre_0", 4))
    gelu_pair(128, 160, 0, 48, [56, 60], 96, lambda m: cdma(npg))
    gelu_pair(192, 224, 1, 48, [56, 60], 112, lambda m: cdma(npg))
    stamp(s, "p01")
    def pkfma(d, s0, s1, s2, T, neg=False):
        s("v_pk_fma_f32 %s, %s, %s, %s op_sel:[%d,0,0] op_sel_hi:[%d,1,1]%s" % (P(d), P(s0), P(s1), P(s2), T, T, " neg_lo:[1,0,0] neg_hi:[1,0,0]" if neg else ""))
    def pkmul(d, s0, s1, T, neg=False):
        s("v_pk_mul_f32 %s, %s, %s op_sel:[%d,0] op_sel_hi:[%d,1]%s" % (P(d), P(s0), P(s1), T, T, " neg_lo:[1,0] neg_hi:[1,0]" if neg else ""))
    BR = lambda T, x: 64 + 16 * T + 2 * x
    BI = lambda T, x: 96 + 16 * T + 2 * x
    for x in range(8):
        for T in range(2):
            pkmul(128 + 2 * T, cC + 2, BI(T, x), T, True); pkmul(BI(T, x), cC, BI(T, x), T, True)
        for T in range(2):
            pkfma(BI(T, x), cC + 2, BR(T, x), BI(T, x), T, True); pkfma(BR(T, x), cC, BR(T, x), 128 + 2 * T, T)
    sr = [BR(0, 0), BR(1, 0)]; si = [BI(0, 0), BI(1, 0)]
    bufs = [[132, 134], [138, 140]]; SI = [136, 142]
    for x in range(1, 8):
        nr = [bufs[T][x % 2] for T in range(2)]
        for T in range(2): pkfma(nr[T], cL, sr[T], BR(T, x), T)
        for T in range(2): pkfma(nr[T], cL + 2, si[T], nr[T], T, True)
        for T in range(2): pkfma(SI[T], cL, si[T], BI(T, x), T)
        for T in range(2): pkfma(SI[T], cL + 2, sr[T], SI[T], T)
        sr = nr; si = list(SI)
        if x % 2: cdma(1)
    EA = 20
    for T in range(2):
        s("v_mov_b32 v%d, v%d\nv_mov_b32 v%d, v%d\nv_mov_b32 v%d, v%d\nv_mov_b32 v%d, v%d" % (EA + T, sr[T], EA + 2 + T, si[T], 144 + T, sr[T] + 1, 146 + T, si[T] + 1))
    horner_pk(s, EA, cL8, 144, 144)
    s("v_add_u32 v%d, s46, v1\nv_and_b32 v%d, 0xf0, v1\nv_add_u32 v%d, s46, v%d\nv_mov_b32 v%d, s%d" % (vEW, vER, vER, vER, vTG, sTAG))
    s.lg("ds_write_b128 v%d, v[144:147]" % vEW)
    for g in range(4): s.lg("ds_read_b128 %s, v%d offset:%d" % (Q(148 + 4 * g), vER, 256 * g), ("e", g))
    fstore = lambda off: "buffer_store_dword v%d, v%d, s[36:39], s81 offen offset:%d %s" % (vTG, vPAd, off, SC)
    fload = lambda off: "buffer_load_dword v%d, v%d, s[36:39], s68 offen offset:%d %s" % (vPD, vPAd, off, SC)
    for r in range(32):
        s("v_accvgpr_read_b32 v%d, a%d" % (192 + r, r))
        if r % 16 == 15: cdma(1)
    flag(s, fstore(0), [("hs", 1, 3)])
    for g in range(1, 4):
        s.wait([("e", g)]); horner_pk(s, 148 + 4 * (g - 1), cL16, 148 + 4 * g, 148 + 4 * g)
    for r in range(160, 164): s("v_min_u32 v%d, -2, v%d" % (r, r))
    s.atom(["s_mov_b64 exec, 0xffff", Op("buffer_store_dwordx4 v[160:163], v1, s[36:39], s64 offen %s" % SC, "vm"), "s_mov_b64 exec, -1"])
    stamp(s, "pub")
    poll(s, "P1b", f1bload, 44, "f1b")
    for r in range(32, 64):
        s("v_accvgpr_read_b32 v%d, a%d" % (192 + r, r))
        if r % 16 == 15: cdma(1)
    nh_pre = [3]
    def issue_h(n):
        for u in range(nh_pre[0], nh_pre[0] + n):
            for m in range(4): hload(s, u, m)
        nh_pre[0] += n
    hp = [int(c) for c in str(cfg.get("hp", "111"))]
    pa_l = cfg.get("pa_l", 2)
    def hookA(m):
        cdma(1)
        if m == pa_l and not cfg.get("pa_in", 1): s.vm(fload(0), "f3a")
    def tramp2():
        s("s_mov_b64 exec, 0")
        for w in range(1, 4): s("s_cmp_eq_u32 s%d, %d\ns_cbranch_scc1 L_trB%d" % (sW, w, w))
        s("s_branch L_trB0")
        s.atom(["L_trret2:"])
        s("s_mov_b64 exec, -1")
    if TRP >= 0 and cfg.get("tr2", 1): tramp2()
    gelu_pair(192, 224, 2, 168, [48, 52, 56, 60], None, hookA)
    for r in range(32): s("v_accvgpr_read_b32 v%d, a%d" % (128 + r, aBS + r))
    cdma(16)
    for r in range(32): s("v_accvgpr_read_b32 v%d, a%d" % (192 + r, 64 + r))
    PA_IN = cfg.get("pa_in", 1)
    if not PA_IN:
        poll(s, "P3a", fload(0), vPD, "f3a"); stamp(s, "ok3a"); issue_h(hp[0])
    for mp in range(2):
        o = 240 + 4 * mp; items = []
        for mm in range(2):
            m = 2 * mp + mm
            items += [(192 + 4 * m, 208 + 4 * m, o + 2 * mm), (194 + 4 * m, 210 + 4 * m, o + 2 * mm + 1)]
        gelu_block(s, items, CC, 168)
        if mp == 0:
            s("v_accvgpr_read_b32 v%d, a%d" % (vTA, PK["TA"]))
            for u in range(1, 6): s("v_xor_b32 v%d, %d, v%d" % (vTA + u, 32 * u, vTA))
        if not PA_IN: issue_h(hp[1 + mp])
        elif mp == cfg.get("pa_mp", 1): s.vm(fload(0), "f3a")
        for mm in range(2):
            s.vm("buffer_store_dwordx2 %s, v%d, s[32:35], s67 offen offset:%d %s" % (P(o + 2 * mm), vH8, 1024 * (2 * mp + mm), hst), ("hsS", 2 * mp + mm))
        if mp == 0:
            s.wait([("D2", 0, k) for k in range(4)])
            s("s_barrier")
            pre_reads_at = len(s.u)
    for u in range(6, 8): s("v_xor_b32 v%d, %d, v%d" % (vTA + u, 32 * u, vTA))
    L2 = cfg.get("l2_lead", 3)
    def read2(G, part):
        uu, u = groups[G]; f = G % NWB
        if uu < 28:
            st, kk = divmod(uu, 2)
            return Op("ds_read_b64_tr_b16 %s, v%d offset:%d" % (R("a", aW2 + 4 * f + 2 * part, 2), vTA + u, (slot[st] % 4) * 16384 + kk * 8192 + part * 4096), "lg", K(("F2", G, part)))
        _, st, kk = steps[uu]
        return Op("ds_read_b128 %s, v%d offset:%d" % (R("a", aW2 + 4 * f, 4), vCA + 2 * (slot[st] >= 4) + kk, (slot[st] % 4) * 16384 + u * 2048), "lg", K(("F2", G, part)))
    parts = lambda G: [0, 1] if groups[G][0] < 28 else [None]
    mf = []
    for G, (uu, u) in enumerate(groups):
        for m in range(4):
            mf.append(Op(mfma16(("v", 128 + 16 * u + 4 * m), ("a", aW2 + 4 * (G % NWB)), (hreg[uu][0], hreg[uu][1] + 4 * m), zero=(uu == 0 and u >= 2))))
    sc = Sch(mf)
    def gneed(G):
        uu, u = groups[G]
        return [("F2", G, p) for p in parts(G)] + ([("H", uu, m) for m in range(4)] if firstuse[uu] == G and uu not in own else [])
    rgap = {}
    for G in range(NG):
        st, f = divmod(G, 16)
        if st < 14:
            if f <= 4: rgap[G] = 4 * (G - L2) - 1
            elif f == 5: rgap[G] = 4 * (G - 1 - L2) + 1
            elif f <= 10: rgap[G] = 4 * (G - 1 - L2) - 1
            elif f == 11: rgap[G] = 4 * (G - 2 - L2) + 1
            else: rgap[G] = 4 * (G - 2 - L2) - 1
        else: rgap[G] = 4 * (G - L2) - 1
        assert rgap[G] >= 4 * (G - NWB) + 3
    pr = Seq()
    for G in range(NG):
        if rgap[G] < 0:
            for p in parts(G): pr.op(read2(G, p))
    s.u[pre_reads_at:pre_reads_at] = pr.units()
    s.wait(gneed(0))
    stamp(s, "loop2")
    prog.add(s.done())
    for G in range(1, NG):
        w = Op("", needs=K(gneed(G))); w.keep = True
        sc.put(4 * G - 1, [w], 0)
    for G in range(NG):
        if rgap[G] >= 0:
            if rgap[G] % 4 != 3: sc.put(rgap[G], [Op("s_waitcnt lgkmcnt(15)")], 0)
            sc.put(rgap[G], [read2(G, p) for p in parts(G)], 1)
    bar = {}
    for st in range(14):
        bar[st] = 4 * (16 * (st + 1) - L2) - 2
        pub = [st + 1] if st < 13 else [14, 15, 16, 17]
        sc.put(bar[st], [Op("s_barrier", needs=K([("D2", x, k) for x in pub for k in range(4)]), drain=["lg"])], 0)
    for st in (3, 7, 11):
        for i_, g_ in enumerate((1, 2, 4, 5)):
            sc.put(bar[st] - g_, [Op("v_xor_b32 v%d, 0x10000, v%d" % (vTA + 2 * i_ + k, vTA + 2 * i_ + k)) for k in range(2)], 2)
        assert max(rgap[G] for G in range(16 * st, 16 * st + 16)) < bar[st] - 5
    barF = min(rgap[G] for G in range(NG) if groups[G][0] >= 36) - 1
    sc.put(barF, [Op("s_barrier", needs=K([("D2", x, k) for x in range(18, 22) for k in range(4)]))], 0)
    def mark(o, nm): o.u[-1].append(nm)
    def after(o, nm, n): o.u.append([[Op("")], lambda mk: (mk[nm] + n) if nm in mk else None])
    def dly(o, n): o.u.append([[Op("")], lambda mk: mk["_prev"] + n])
    gl = []
    t = Seq()
    t("v_accvgpr_read_b32 v%d, a%d\nv_accvgpr_read_b32 v%d, a%d\nv_accvgpr_read_b32 v%d, a%d" % (vAG, PK["AG"], vTRW, PK["TRW"], vTRR, PK["TRR"]))
    t("s_mov_b32 s40, s36\ns_mov_b32 s41, s37\ns_mov_b32 s42, 0x40000\ns_mov_b32 s43, 0x20000")
    t.at(cfg.get("ag_gap", 32))
    t("v_lshrrev_b32 v48, 4, v0\nv_cmp_eq_u32 s[64:65], 1, v48\nv_cmp_eq_u32 s[66:67], 2, v48\nv_cmp_eq_u32 s[74:75], 3, v48")
    for x in range(7, -1, -1):
        t("s_mov_b32 s57, %d" % (8192 * x))
        g = "buffer_load_dwordx4 %s, v%d, s[40:43], s57 offen %s" % (R("a", aAG + 4 * x, 4), vAG, SC)
        gl.append("s_mov_b32 s57, %d\n%s" % (8192 * x, g))
        t.vm(g, ("ag", x))
        if x: dly(t, cfg.get("ag_sp", 8))
    mark(t, "ag")
    srd(t, 8, 86, 87, 2048 * 4096)
    flag(t, fstore(32), [("hsS", 3)], early=cfg.get("fb_gap", 80)); mark(t, "flagb")
    after(t, "ag", cfg.get("ag_lat", 20))
    def ag_horner(o, w):
        cur = None
        for x in range(7, -1, -1):
            q = 48 + 4 * (x % 2)
            if w: o.wait([("ag", x)])
            for r in range(4): o("v_accvgpr_read_b32 v%d, a%d" % (q + r, aAG + 4 * x + r))
            if not w: o(("v_max3_u32 v56, v%d, v%d, v%d\nv_max_u32 v56, v56, v%d" % (q, q + 1, q + 2, q + 3)) if x == 7 else ("v_max3_u32 v56, v56, v%d, v%d\nv_max3_u32 v56, v56, v%d, v%d" % (q, q + 1, q + 2, q + 3)))
            if cur is not None: horner_sc(o, cur, cL64, q)
            cur = q
    ag_horner(t, True)
    t("v_cmp_u_f32 s[70:71], v48, v49")
    t.atom(["v_cmp_u_f32 vcc, v50, v51", "s_or_b64 vcc, vcc, s[70:71]", "s_cbranch_scc1 PAG_retry", "PAG_ok:"])
    ool("PAG_retry:\n" + "\n".join(gl) + "\ns_waitcnt vmcnt(0)")
    ag_horner(ool, False)
    ool("v_cmp_eq_u32 vcc, -1, v56\ns_and_b64 vcc, vcc, exec\ns_cbranch_scc0 PAG_ok\ns_cmp_eq_u32 s79, 0\ns_cbranch_scc1 PAG_ok\ns_sub_u32 s79, s79, 1\ns_sleep 1\ns_branch PAG_retry")
    t.lg("ds_write_b128 v%d, v[48:51] offset:1024" % vEW)
    for g, r in ((3, 52), (2, 56), (1, 60)): t.lg("ds_read_b128 %s, v%d offset:%d" % (Q(r), vER, 1024 + 256 * g), ("s", g))
    t.lg("ds_read_b128 %s, v%d offset:1024" % (Q(48), vER), ("s", 0))
    dly(t, 8)
    t.wait([("s", 2)]); horner_sc(t, 52, cL512, 56)
    t.lg("ds_read_b128 %s, v%d" % (Q(52), vER), ("e2", 0))
    t.wait([("s", 1)]); horner_sc(t, 56, cL512, 60)
    t.lg("ds_read_b128 %s, v%d offset:256" % (Q(56), vER), ("e2", 1))
    t.wait([("s", 0)]); horner_sc(t, 60, cL512, 48)
    t.lg("ds_read_b128 %s, v%d offset:512" % (Q(60), vER), ("e2", 2))
    t.wait([("e2", 0)]); horner_sc(t, 48, cL16, 52)
    t.wait([("e2", 1)]); horner_sc(t, 52, cL16, 56)
    t.wait([("e2", 2)]); horner_sc(t, 56, cL16, 60)
    for g, sm in ((52, 64), (56, 66), (60, 74)):
        for r in range(4): t("v_cndmask_b32 v%d, v%d, v%d, s[%d:%d]" % (48 + r, 48 + r, g + r, sm, sm + 1))
    horner_sc(t, 48, cL8, EA)
    t("v_xor_b32 v52, 16, v%d" % vTRR)
    st_r = {(T, h): (48, EA)[h] + T for T in range(2) for h in range(2)}
    st_i = {(T, h): (48, EA)[h] + 2 + T for T in range(2) for h in range(2)}
    TH = [(T, h) for T in range(2) for h in range(2)]
    xs = Seq()
    for x in range(8):
        for (T, h) in TH: t("v_fmac_f32 v%d, v%d, v%d" % (BR(T, x) + h, cL + T, st_r[T, h]))
        for (T, h) in TH: t("v_fmac_f32 v%d, v%d, v%d" % (BI(T, x) + h, cL + T, st_i[T, h]))
        for (T, h) in TH: t("v_fma_f32 v%d, -v%d, v%d, v%d" % (BR(T, x) + h, cL + 2 + T, st_i[T, h], BR(T, x) + h))
        for (T, h) in TH: t("v_fmac_f32 v%d, v%d, v%d" % (BI(T, x) + h, cL + 2 + T, st_r[T, h]))
        for (T, h) in TH: st_r[T, h] = BR(T, x) + h; st_i[T, h] = BI(T, x) + h
        if x % 2 == 1:
            m = x // 2; mo = (m % 2) * 2048
            for part, Fn in enumerate((BR, BI)):
                for T in range(2):
                    o = 56 + 4 * part + 2 * T
                    t("v_cvt_pk_bf16_f32 v%d, v%d, v%d\nv_cvt_pk_bf16_f32 v%d, v%d, v%d" % (o, Fn(T, x - 1), Fn(T, x - 1) + 1, o + 1, Fn(T, x), Fn(T, x) + 1))
                    t.lg("ds_write_b64 v%d, %s offset:%d" % (vTRW, P(o), mo + part * 1024 + 512 * T))
                t.atom(["s_waitcnt lgkmcnt(15)"] + [Op("ds_read_b64_tr_b16 %s, v%d offset:%d" % (R("a", aAG + 16 * part + 4 * m + 2 * half, 2), (vTRR, 52)[half], mo + part * 1024 + 256 * half), "lg", K(("tr", m, part, half))) for half in range(2)])
                mark(t, ("tr", m, part))
                after(xs, ("tr", m, part), 10)
                if (m, part) != (0, 0) and m < 3: after(xs, ("hl", m - 1 + part, 1 - part), cfg.get("hl_sp", 24))
                xs.vm("buffer_store_dwordx4 %s, v1, s[32:35], s%d offen offset:%d %s" % (R("a", aAG + 16 * part + 4 * m, 4), 72 + part, 1024 * m, hst), ("hl", m, part), needs=[("tr", m, part, 1)])
                mark(xs, ("hl", m, part))
    dly(xs, cfg.get("fc_lat", 60))
    flag(xs, fstore(64), [("hl", 3, 1)]); mark(xs, "flagc")
    t("v_accvgpr_read_b32 v48, a%d\nv_accvgpr_read_b32 v%d, a%d" % (PK["C"], vCA, PK["CA"]))
    for k in range(4): t("s_xor_b32 s65, s%d, %d\ns_lshl_b32 s65, s65, 16\nv_add_u32 v%d, s65, v48" % (sQ, k, vC + k))
    t("s_and_b32 s65, s%d, 1\ns_lshl_b32 s65, s65, 6\nv_xor_b32 v%d, s65, v%d" % (sTN, vCA, vCA))
    t("v_xor_b32 v%d, 64, v%d\nv_add_u32 v%d, 0x10000, v%d\nv_xor_b32 v%d, 64, v%d" % (vCA + 1, vCA, vCA + 2, vCA, vCA + 3, vCA + 2))
    vOO = 28
    t("v_accvgpr_read_b32 v24, a%d\nv_accvgpr_read_b32 v25, a%d\nv_lshlrev_b32 v25, 2, v25\nv_lshl_add_u32 v%d, v24, 12, v25" % (PK["TOK"], PK["COL"], vOO))
    mark(t, "cready")
    RB = lambda u, m: 128 + 16 * u + 4 * m
    after(t, "flagc", 1)
    t("s_lshl_b32 s65, s%d, 3\ns_add_u32 s65, s65, s%d\ns_lshl_b32 s66, s65, 18\ns_lshl_b32 s67, s%d, 14\ns_add_u32 s66, s66, s67\ns_add_u32 s66, s66, 0x%x" % (sI, sTN, sW, WS_PART))
    t.atom(["s_add_u32 s40, s6, s66", "s_addc_u32 s41, s7, 0"])
    t("s_and_b32 s41, s41, 0xffff\ns_mov_b32 s42, 0x34000\ns_mov_b32 s43, 0x20000")
    t("s_lshl_b32 s69, s65, 2\ns_add_u32 s69, s69, s%d\ns_lshl_b32 s69, s69, 7\ns_add_u32 s69, s69, 0x%x" % (sW, SM_F4))
    for d in (1, 2, 3):
        t("s_xor_b32 s67, s%d, %d\ns_lshl_b32 s66, s67, 16\ns_add_u32 s%d, s66, %d" % (sQ, d, 72 + d, (d - 1) * 4096))
        t("s_lshl_b32 s67, s67, 4\ns_add_u32 s67, s67, %d\nv_mov_b32 v%d, s67" % (4 * d, 28 + d))
        t("s_lshl_b32 s67, s%d, 16\ns_add_u32 s%d, s67, %d" % (sQ, 69 + d, (d - 1) * 4096))
    t("s_lshl_b32 s67, s%d, 4\nv_and_b32 v32, 3, v0\nv_lshl_add_u32 v32, v32, 2, s67" % sQ)
    t("s_mov_b32 s57, 0\ns_mov_b32 s58, 8192\ns_mov_b32 s59, 16384\ns_mov_b32 s64, 24576")
    t("v_mov_b32 v34, 0x3f80\nv_mov_b32 v35, 0x3f800000")
    mark(t, "setup")
    f4store = lambda d: "buffer_store_dword v%d, v%d, s[36:39], s69 offen %s" % (vTG, 28 + d, SC)
    f4load = "buffer_load_dword v33, v32, s[36:39], s69 offen %s" % SC
    gp = lambda d: 4 * pend_[d] + 3 + 3
    RV = lambda d, m: 128 + 32 * d + 16 + 4 * m
    rload = lambda d, m: "buffer_load_dwordx4 %s, v1, s[40:43], s%d offen offset:%d %s" % (Q(RV(d, m)), 69 + d, 1024 * m, SC)
    NFI = cfg.get("nfi", 3); NRI = cfg.get("nri", 1)
    fs = Seq(); rs = Seq()
    for d in (1, 2, 3):
        t.at(gp(d))
        for m in range(4):
            A = 128 + 32 * d + 4 * m; Bq = A + 16
            t("v_cvt_pk_bf16_f32 v%d, v%d, v%d\nv_cvt_pk_bf16_f32 v%d, v%d, v%d\nv_cvt_pk_bf16_f32 v%d, v%d, v%d\nv_cvt_pk_bf16_f32 v%d, v%d, v%d" % (A, A, A + 1, A + 1, A + 2, A + 3, A + 2, Bq, Bq + 1, A + 3, Bq + 2, Bq + 3))
            mark(t, ("cv", d, m))
            after(xs, ("cv", d, m), 1)
            xs.vm("buffer_store_dwordx4 %s, v1, s[40:43], s%d offen offset:%d %s" % (Q(A), 72 + d, 1024 * m, SC), ("ps", d, m)); mark(xs, ("ps", d, m))
        if d <= NFI:
            after(fs, ("ps", d, 3), cfg.get("f4_lat", 44)); flag(fs, f4store(d), [("ps", d, 3)]); mark(fs, ("f4", d))
        if d <= NRI:
            after(rs, ("f4", d), cfg.get("p4_lat", 36)); rs.vm(f4load, ("f4l", d)); dly(rs, cfg.get("p4_rt", 40))
            poll(rs, "P4%d" % d, f4load, 33, ("f4l", d), mask=str(1 << d))
            for m in range(4):
                rs.vm(rload(d, m), ("pl", d, m)); mark(rs, ("pl", d, m))
    hs = Seq(); hdl = {}
    if PA_IN: poll(hs, "P3a", fload(0), vPD, "f3a", early=cfg.get("pa_gap", 12))
    for u in range(nh_pre[0], 44):
        if u in own: continue
        for (U, nm, off, fl, lat) in ((UB, "P3b", 32, "flagb", cfg.get("pb_lat", 80)), (UC, "P3c", 64, "flagc", cfg.get("pc_lat", 80))):
            if u == (U - 2 if U == UB else U):
                after(hs, fl, lat); hs.vm(fload(off), nm); mark(hs, nm + "l")
            if u == U:
                after(hs, nm + "l", cfg.get("poll_rt", 44)); poll(hs, nm, fload(off), vPD, nm); mark(hs, nm)
        n0 = len(hs.u)
        for m in range(4): hload(hs, u, m, max(hfree[u], 4 * firstuse[u] - cfg.get("l2_la", 400)))
        for i in range(n0, len(hs.u)): hdl[i] = 4 * firstuse[u] - 1
        mark(hs, ("H", u))
    ds = Seq(); ddl = {}
    DL = lambda st: bar[st - 1] if st < 14 else (bar[13] if st < 18 else barF)
    for st in range(NPRE2, 22):
        n0 = len(ds.u)
        if st == "E":
            after(ds, "cready", 1); after(ds, ("hl", 3, 1), 1)
            for n in range(4):
                ds("s_mov_b32 s%d, %d\ns_add_u32 m0, s46, %d" % (sKD, 32768 * n, 2048 + 1024 * n))
                ds.vm("buffer_load_dwordx4 v26, s[24:27], s%d offen lds" % sKD)
            ds("s_add_u32 m0, s46, 6144"); ds.vm("buffer_load_dwordx4 v1, s[36:39], s59 offen lds")
            ds("s_add_u32 m0, s46, 7168"); ds.vm("buffer_load_dwordx4 v1, s[28:31], s58 offen lds", "Elast"); mark(ds, "edma")
            dl = 900
        else:
            if st == 14: after(ds, "cready", 1)
            for k in range(4): dma2(ds, st, k, bar[prevocc[st]] + 1 if st >= 8 else 0)
            dl = DL(st)
            mark(ds, ("D", st))
        for i in range(n0, len(ds.u)): ddl[i] = dl
    mk = multi(sc, [Stream("h", hs.units(), 2, deadline=lambda i: hdl.get(i, 0)), Stream("d", ds.units(), 2, deadline=lambda i: ddl.get(i, 0)),
                    Stream("x", xs.units(), 2), Stream("t", t.units(), 3, start=1), Stream("r", rs.units(), 2, deadline=lambda i: 0), Stream("f", fs.units(), 2, deadline=lambda i: -2)],
               cl=cfg.get("cl", 70), cs=cfg.get("cs", 240), B0=cfg.get("b0", 150), busy0=cfg.get("busy0", 300))
    sl = sorted([(4 * firstuse[u] - 1 - mk[("H", u)], "h", u) for u in range(nh_pre[0], 44) if u not in own] + [(DL(st) - mk[("D", st)], "d", st) for st in range(NPRE2, 22)])
    if cfg.get("verbose"):
        print("loop2 slacks", sl[:6], {k: v for k, v in mk.items() if isinstance(k, str)}, "hl", [mk[("hl", m, p)] for m in range(4) for p in range(2)], "ps", [mk[("ps", d, m)] for d in (1, 2, 3) for m in range(4)], "barF", barF, "f4", [mk.get(("f4", d)) for d in (1, 2, 3)], "pl", [mk.get(("pl", d, 3)) for d in (1, 2, 3)])
    assert sl[0][0] > cfg.get("minslack", 30), sl[:4]
    assert mk["cready"] < rgap[firstuse[28]] and mk[("hl", 3, 1)] < 4 * firstuse[28] - 1 and mk["setup"] < gp(1) and mk[("tr", 3, 1)] < VFREE
    for nm in names:
        if TS and nm[0] == "g" and nm[1:].isdigit():
            g_ = 4 * (16 * (int(nm[1:]) + 1) - L2) - 2
            sc.put(g_ - 1, [Op("s_memrealtime s[100:101]")], 5)
            sc.put(g_, [Op("s_waitcnt lgkmcnt(0)\nv_writelane_b32 v%d, s100, %d" % (vTS, names.index(nm)))], 5)
    if cfg.get("drop"):
        for g in range(cfg.get("drop_lo", 120), cfg.get("drop_hi", 600)):
            for it in sc.g[g]:
                o = it[2]
                if it[0] in (2, 3) and o.text and "\n" not in o.text and not o.text.endswith(":"):
                    c = opclass(o.text)
                    if it[0] == 2 and not (c == "X" and "x4" in o.text): continue
                    if c in cfg["drop"] and "cmp" not in o.text and not any(("v%d," % r) in o.text.split(None, 2)[1] + "," for r in range(16, 32)):
                        o.text = "s_nop 0" if cfg.get("dropnop") else ""
    prog.add(sc.ops())
    stamp(s, "end2")
    def addp(d, m):
        s.wait([("pl", d, m)])
        for k in range(8):
            r = RB(k // 4, m) + k % 4
            s("v_dot2_f32_bf16 v%d, v%d, v%d, v%d" % (r, RV(d, m) + k // 2, 34 + k % 2, r))
    for d in range(NFI + 1, 4): flag(s, f4store(d), [("ps", d, 3)])
    stamp(s, "drain4")
    s.vm(f4load, "f4")
    for d in range(1, NRI + 1):
        for m in range(4): addp(d, m)
    for d in range(NRI + 1, 4):
        poll(s, "P4%d" % d, f4load, 33, "f4", mask=str(1 << d))
        for m in range(4): s.vm(rload(d, m), ("pl", d, m))
    stamp(s, "poll4")
    for d in range(NRI + 1, 3):
        for m in range(4): addp(d, m)
    sM4 = [57, 58, 59, 64]
    for m in range(4):
        addp(3, m)
        stamp(s, "r%d" % m)
        s.vm("buffer_store_dwordx4 %s, v%d, s[8:11], s%d offen %s" % (Q(RB(0, m)), vOO, sM4[m], cfg.get("ost", SC)))
        s("s_nop 1")
        s.vm("buffer_store_dwordx4 %s, v%d, s[8:11], s%d offen offset:64 %s" % (Q(RB(1, m)), vOO, sM4[m], cfg.get("ost", SC)))
    prog.add(s.done())
    prog.emit(a)
    a("s_cmp_eq_u32 s%d, 31\ns_cbranch_scc0 L_noep\ns_cmp_eq_u32 s%d, 0\ns_cbranch_scc0 L_noep" % (sB, sJ))
    a("v_mov_b32 v40, 0x%x\ns_mov_b64 exec, 1\nbuffer_store_dword v%d, v40, s[36:39], 0 offen %s\ns_mov_b64 exec, -1" % (SM_EP, vTG, SC))
    a("L_noep:")
    if TS:
        a("s_waitcnt vmcnt(0)\ns_memrealtime s[100:101]\ns_waitcnt lgkmcnt(0)\nv_writelane_b32 v%d, s100, %d" % (vTS, len(names) - 1))
        a("s_cmp_lg_u32 s%d, %d\ns_cbranch_scc1 L_end" % (sW, cfg.get("tsw", 0)))
        if cfg.get("leak"):
            A, B = cfg["leak"].split(":")
            a("s_cmp_lg_u32 s2, %d\ns_cbranch_scc1 L_end" % cfg.get("leakwg", 100))
            a("v_readlane_b32 s64, v%d, %d\nv_readlane_b32 s65, v%d, %d\ns_nop 4\ns_sub_u32 s64, s65, s64\ns_mul_i32 s64, s64, %d\ns_min_u32 s64, s64, 200000" % (vTS, names.index(A), vTS, names.index(B), cfg.get("leakk", 8)))
            a("L_leak:\ns_memrealtime s[66:67]\ns_waitcnt lgkmcnt(0)\ns_sub_u32 s66, s66, s100\ns_cmp_lt_u32 s66, s64\ns_cbranch_scc1 L_leak")
        ws_srd(a, 12, WS_TS, 16384)
        a("s_lshl_b32 s75, s2, 6\nv_lshlrev_b32 v1, 2, v0\ns_mov_b64 exec, 0xffff\nbuffer_store_dword v%d, v1, s[12:15], s75 offen" % vTS)
    a("L_end:")
    a("s_endpgm")
    a.lines += ool.lines
    a("L_codeend:")
    return name, a

def inst_sizes(lines):
    import subprocess, tempfile, os, re
    d = tempfile.mkdtemp()
    und = sorted(set(re.findall(r"L_trB?\d+\b", "\n".join(lines))))
    open(d + "/a.s", "w").write('.amdgcn_target "amdgcn-amd-amdhsa--gfx950"\n' + "\n".join(l for l in lines if not l.startswith(".p2align 12")) + "\n" + "".join(u + ":\n" for u in und))
    subprocess.check_call(["clang", "-x", "assembler", "-target", "amdgcn-amd-amdhsa", "-mcpu=gfx950", "-c", d + "/a.s", "-o", d + "/a.o"])
    o = subprocess.check_output(["llvm-objdump", "-d", "--mcpu=gfx950", d + "/a.o"], text=True)
    sz = [4 * len(m.group(1).split()) for m in re.finditer(r"// [0-9A-F]+: ([0-9A-F ]+)", o)]
    n = sum(1 for l in lines if parse(l))
    assert n == len(sz), (n, len(sz))
    return sz

def add_stubs(lines, cfg):
    NL = 1; step = cfg.get("tr_step", 128)
    sz = iter(inst_sizes(lines)); size = [next(sz) if parse(l) else 0 for l in lines]
    i0 = lines.index("L_main:"); iend = lines.index("L_end:")
    out = lines[:i0 + 1]; off = 0; targets = [4096 * p + step * k for p in range(0, 40) for k in range(NL)]
    n = 0; pos = []
    def penalty(i):
        if not lines[i - 1].startswith("v_mfma"): return 0 if not any(l.startswith("v_mfma") for l in lines[max(0, i - 6):i + 6]) else 1
        j = i; c = ["S"]
        while not lines[j].startswith("v_mfma") and j - i < 8:
            try: c.append(opclass(lines[j]))
            except AssertionError: return 0
            j += 1
        t = gap_time(c)
        return 0 if (t is not None and t <= 16) else 1
    for i in range(i0 + 1, len(lines)):
        if i < iend and size[i] and off >= targets[n] and (penalty(i) == 0 or off + size[i] > targets[n] + 56):
            out.append("L_tr%d:" % n); out.append(("STUB", n)); off += 4; n += 1
        out.append(lines[i]); off += size[i]
    n1 = min(n, cfg.get("tr_n", 12))
    res = []
    for l in out:
        if isinstance(l, tuple):
            k = l[1]; nx = k + 4
            if k < n1: res.append("s_cbranch_execz %s" % ("L_tr%d" % nx if nx < n1 else "L_trret"))
            elif cfg.get("tr2", 1): res.append("s_cbranch_execz %s" % ("L_tr%d" % nx if nx < n else "L_trret2"))
            else: res.append("s_nop 0")
        elif "L_trB" in l:
            k = n1 + int(l[-1]); res.append(l.replace("L_trB" + l[-1], "L_tr%d" % k if k < n else "L_trret2"))
        else: res.append(l)
    if cfg.get("verbose"): print("pages", n)
    return res

def build(cfg):
    name, a = gen(cfg)
    hdr = open("cdna_kernels/%s.s.ref" % NAME).read().split("; Override launch")[0]
    out = hdr + "; @launch grid=(256,1,1) block=(256,1,1) lds=163840\n"
    out += '.amdgcn_target "amdgcn-amd-amdhsa--gfx950"\n'
    lines = pad_hazards([l for l in a.lines if l], cfg.get("verbose", 0) > 1)
    if cfg.get("tramp", 1): lines = add_stubs(lines, cfg)
    if cfg.get("verbose"): print(gap_report(lines))
    out += "\n".join(lines) + "\n"
    if cfg.get("cyc"): out = out.replace("s_memrealtime", "s_memtime")
    b = Asm(); kernel_desc(b, name, 512, accum=256); out += b.text()
    return out

if __name__ == "__main__":
    cfg = {}
    for kv in sys.argv[2:]:
        k, v = kv.split("=")
        try: v = int(v)
        except ValueError:
            try: v = float(v)
            except ValueError: v = v.replace("+", " ")
        cfg[k] = v
    open(sys.argv[1], "w").write(build(cfg))
```

```python
import sys, math, struct
from asmlib import *

NAME = "parallel_sum__ssm_conv_s5__glu_gated_geglu__prompt"
KX, KLRE, KLIM, KBRE, KBIM, KCRE, KCIM, KLDT, KDSK, KBX, KWG, KWU, KWD, KOUT, KDBG, KWS = [8 * i for i in range(16)]
WS_XN = 0
WS_H = 0x400000
H_BLK = 176 * 4096
WS_SM = 0x1A00000
SM_AG = 0; SM_ST = 0x40000; SM_EP = 0x48000; SM_F1 = 0x50000; SM_F1B = 0x60000; SM_F3 = 0x70000; SM_F4 = 0xB0000; SM_SIZE = 0xF0000
WS_TS = 0x1B00000
WS_PART = 0x2000000
NSTAMPS = [16]
SPLIT_LAYOUT = True
XN_DIRECT = 0
STAMPS = []

def f2u(x): return struct.unpack("<I", struct.pack("<f", x))[0]
def fx(x): return "0x%08x" % f2u(x)
P = lambda r: "v[%d:%d]" % (r, r + 1)
Q = lambda r: "v[%d:%d]" % (r, r + 3)
LOG2E = 1.4426950408889634
K = lambda v: (lambda it: v)

def ws_srd(a, r, off, size):
    a("s_add_u32 s%d, s6, 0x%x\ns_addc_u32 s%d, s7, 0\ns_and_b32 s%d, s%d, 0xffff\ns_mov_b32 s%d, 0x%x\ns_mov_b32 s%d, 0x20000" % (r, off, r + 1, r + 1, r + 1, r + 2, size, r + 3))

def mfma16(d, A, B, zero=False):
    return "v_mfma_f32_16x16x32_bf16 %s, %s, %s, %s" % (R(d[0], d[1], 4), R(A[0], A[1], 4), R(B[0], B[1], 4), "0" if zero else R(d[0], d[1], 4))

def cmul_pk(a, dr, di, ar, ai, br, bi, t):
    a("v_pk_mul_f32 %s, %s, %s" % (P(t), P(ai), P(bi)))
    a("v_pk_fma_f32 %s, %s, %s, %s neg_lo:[0,0,1] neg_hi:[0,0,1]" % (P(t), P(ar), P(br), P(t)))
    a("v_pk_mul_f32 %s, %s, %s" % (P(t + 2), P(ar), P(bi)))
    a("v_pk_fma_f32 %s, %s, %s, %s" % (P(di), P(ai), P(br), P(t + 2)))
    a("v_mov_b32 v%d, v%d\nv_mov_b32 v%d, v%d" % (dr, t, dr + 1, t + 1))

def horner_pk(a, s, L, e, d):
    a("v_pk_fma_f32 %s, %s, %s, %s" % (P(d), P(L), P(s), P(e)))
    a("v_pk_fma_f32 %s, %s, %s, %s" % (P(d + 2), P(L), P(s + 2), P(e + 2)))
    a("v_pk_fma_f32 %s, %s, %s, %s neg_lo:[1,0,0] neg_hi:[1,0,0]" % (P(d), P(L + 2), P(s + 2), P(d)))
    a("v_pk_fma_f32 %s, %s, %s, %s" % (P(d + 2), P(L + 2), P(s), P(d + 2)))

def horner_sc(a, s, L, e):
    for T in range(2):
        a("v_fmac_f32 v%d, v%d, v%d" % (e + T, L + T, s + T)); a("v_fmac_f32 v%d, v%d, v%d" % (e + 2 + T, L + T, s + 2 + T))
    for T in range(2):
        a("v_fma_f32 v%d, -v%d, v%d, v%d" % (e + T, L + 2 + T, s + 2 + T, e + T)); a("v_fmac_f32 v%d, v%d, v%d" % (e + 2 + T, L + 2 + T, s + T))

def gelu_block(a, items, CC, T):
    for k, (g, u, o) in enumerate(items): a("v_pk_mul_f32 %s, %s, %s" % (P(T + 2 * k), P(g), P(g)))
    for k, (g, u, o) in enumerate(items): a("v_pk_fma_f32 %s, %s, %s, %s op_sel:[0,1,0] op_sel_hi:[1,1,0]" % (P(T + 2 * k), P(T + 2 * k), P(CC), P(CC)))
    for k, (g, u, o) in enumerate(items): a("v_pk_mul_f32 %s, %s, %s" % (P(T + 2 * k), P(T + 2 * k), P(g)))
    for k, (g, u, o) in enumerate(items):
        a("v_exp_f32 v%d, v%d" % (T + 2 * k, T + 2 * k)); a("v_exp_f32 v%d, v%d" % (T + 2 * k + 1, T + 2 * k + 1))
        a("v_pk_mul_f32 %s, %s, %s" % (P(u), P(g), P(u)))
    for k, (g, u, o) in enumerate(items): a("v_pk_add_f32 %s, %s, 1.0 op_sel_hi:[1,0]" % (P(T + 2 * k), P(T + 2 * k)))
    for k, (g, u, o) in enumerate(items):
        a("v_rcp_f32 v%d, v%d" % (T + 2 * k, T + 2 * k)); a("v_rcp_f32 v%d, v%d" % (T + 2 * k + 1, T + 2 * k + 1))
    for k, (g, u, o) in enumerate(items): a("v_pk_mul_f32 %s, %s, %s" % (P(u), P(u), P(T + 2 * k)))
    for k, (g, u, o) in enumerate(items): a("v_cvt_pk_bf16_f32 v%d, v%d, v%d" % (o, u, u + 1))

class Seq:
    def __init__(self): self.u = []
    def __call__(self, s):
        for l in s.split("\n"):
            l = l.strip()
            assert not l.startswith(("buffer_", "global_", "ds_")), ("uncounted memory op", l)
            self.u.append([[Op(l)], None])
    def atom(self, ops, early=None): self.u.append([[o if isinstance(o, Op) else Op(o) for o in ops], early])
    def vm(self, text, tag=None, needs=None, early=None):
        if needs: self.wait(needs, early=early); early = None
        self.u.append([[Op(text, "vm", K(tag) if tag is not None else None)], early])
    def lg(self, text, tag=None, needs=None):
        if needs: self.wait(needs)
        self.u.append([[Op(text, "lg", K(tag) if tag is not None else None)], None])
    def wait(self, needs, drain=None, early=None): self.u.append([[Op("", needs=K(needs) if needs else None, drain=drain)], early])
    def op(self, o, early=None): self.u.append([[o], early])
    def delay(self, n):
        self._d = n; i = len(self.u) - 1
        self.u.append([[Op("")], lambda res, n=n: res[-1] + n])
    def at(self, g): self.u.append([[Op("")], g])
    def done(self):
        o = [x for un, _ in self.u for x in un]; self.u = []; return o
    def units(self):
        u = self.u; self.u = []; return u

def order_mfma(groups):
    ch = [groups[2 * p][1] == groups[2 * p + 1][1] for p in range(len(groups) // 2)]
    out = []; up = True
    for p, c in enumerate(ch):
        if c:
            for m in (range(4) if up else range(3, -1, -1)): out += [(2 * p, m), (2 * p + 1, m)]
            up = not up
        else:
            for G in (2 * p, 2 * p + 1):
                out += [(G, m) for m in (range(4) if up else range(3, -1, -1))]; up = not up
    return out, (lambda G: G & ~1 if ch[G // 2] else G), (lambda G: G | 1 if (G >= 0 and ch[G // 2]) else G)

W_ST = 28672; U_OFF = 14336
B_BASE = 131072; B_ST = 8192
LN_LDS = 65536 + W_ST

def gen(cfg):
    name = NAME + "_kernel"
    a = Asm(); kernel_header(a, name)
    ool = Asm()
    TS = cfg.get("ts")
    names = ["start"] + cfg.get("stamps", "flag1 poll1 loop1 end1 p01 pub loop2 end2 poll4").split() + ["end"]
    STAMPS[:] = names; NSTAMPS[0] = len(names)
    vTS = 15
    def stamp(s, nm):
        if TS and nm in names: s.atom(["s_memrealtime s[100:101]", "s_waitcnt lgkmcnt(0)", "v_writelane_b32 v%d, s100, %d" % (vTS, names.index(nm))])
    SC = cfg.get("sc", "sc0 sc1")
    FS = cfg.get("f1s", 128)
    prog = Prog(); s = Seq()
    sJ, sI, sW, sB, sQ, sTN, sTAG = 60, 61, 62, 63, 52, 53, 3
    sMW, sM3, sMB, sKW, sKB, sKX, sCNT = 54, 55, 56, 57, 58, 59, 81
    sPAs, sKPA, sKPB, sPBs = 76, 77, 78, 80
    def poll(s, nm, loadtext, dst, tagneed, mask=None, early=None):
        s.wait([tagneed], early=early)
        s.atom(["%s_chk:" % nm, "v_cmp_ne_u32 vcc, s%d, v%d" % (sTAG, dst), "s_and_b64 vcc, vcc, %s" % (mask or "exec"), "s_cbranch_scc1 %s_retry" % nm, "%s_ok:" % nm])
        ool("%s_retry:\ns_cmp_eq_u32 s79, 0\ns_cbranch_scc1 %s_ok\ns_sub_u32 s79, s79, 1\ns_sleep %d\n%s\ns_waitcnt vmcnt(0)\ns_branch %s_chk" % (nm, nm, cfg.get("psl", 1), loadtext, nm))
    def flag(s, text, needs, early=None):
        s.wait(needs, early=early)
        s.atom(["s_mov_b64 exec, %d" % (15 if "x4" in text else 1), Op(text, "vm"), "s_mov_b64 exec, -1"])

    s("s_cmp_ge_u32 s2, 256\ns_cbranch_scc1 L_end")
    if TS: s("s_memrealtime s[100:101]")
    CP = cfg.get("cpf", 1)
    s("s_load_dwordx2 s[4:5], s[0:1], %d" % KX)
    s("s_load_dwordx2 s[6:7], s[0:1], %d" % KWS)
    s("s_load_dwordx4 s[12:15], s[0:1], %d" % KWG)
    s("s_load_dwordx4 s[24:27], s[0:1], %d" % KBRE)
    s("s_load_dwordx4 s[96:99], s[0:1], %d" % KLRE)
    s("s_load_dwordx4 s[92:95], s[0:1], %d" % KLDT)
    s("s_load_dwordx4 s[84:87], s[0:1], %d" % KWD)
    s("s_load_dwordx4 s[88:91], s[0:1], %d" % KCRE)
    if CP:
        s("s_getpc_b64 s[82:83]")
        s.atom(["L_pc:"])
        s("s_lshr_b32 s64, s2, 3\ns_mul_i32 s64, s64, 28\nv_add_u32 v3, s64, v0\nv_cmp_gt_u32 vcc, 64, v0\nv_cndmask_b32 v2, v3, v0, vcc\nv_lshlrev_b32 v2, 7, v2")
        s("v_min_u32 v2, L_codeend-L_pc-4, v2\nv_mov_b32 v3, 0\nv_lshl_add_u64 v[2:3], v[2:3], 0, s[82:83]")
        s("v_cmp_gt_u32 vcc, 92, v0\ns_and_saveexec_b64 s[66:67], vcc\ns_cbranch_execz L_nocp")
        s.atom([Op("global_load_dword a246, v[2:3], off")])
        s.atom(["L_nocp:", "s_mov_b64 exec, -1"])
    s("v_lshrrev_b32 v1, 6, v0\nv_and_b32 v0, 63, v0")
    s("v_readfirstlane_b32 s%d, v1" % sW)
    s("v_lshlrev_b32 v1, 4, v0")
    s("s_mov_b32 s79, 0x40000")
    s("s_bfe_u32 s%d, s2, 0x20001" % sQ)
    s("s_and_b32 s64, s2, 1\ns_lshl_b32 s64, s64, 2\ns_lshr_b32 s%d, s2, 6\ns_add_u32 s%d, s%d, s64" % (sI, sI, sI))
    s("s_bfe_u32 s%d, s2, 0x30003" % sTN)
    s("s_lshl_b32 s%d, s%d, 3\ns_add_u32 s%d, s%d, s%d" % (sJ, sQ, sJ, sJ, sTN))
    s("s_lshl_b32 s%d, s%d, 2\ns_add_u32 s%d, s%d, s%d" % (sB, sI, sB, sB, sW))
    s("s_and_b32 s64, s2, 1\ns_lshl_b32 s64, s64, 1\ns_lshr_b32 s65, s%d, 1\ns_add_u32 s64, s64, s65\ns_lshl_b32 s64, s64, 4" % sW)
    s("s_lshl_b32 s65, s%d, 1\ns_add_u32 s64, s64, s65" % sQ)
    s("s_lshr_b32 s66, s2, 3\ns_lshl_b32 s65, s66, 6\ns_add_u32 s64, s64, s65")
    s("s_lshl_b32 s67, s64, 11\ns_and_b32 s68, s%d, 1\ns_lshl_b32 s65, s68, 8\ns_add_u32 s67, s67, s65" % sW)
    s("v_and_b32 v48, 15, v0\nv_lshrrev_b32 v56, 5, v0\nv_bfe_u32 v57, v0, 4, 1\nv_lshl_add_u32 v56, v57, 3, v56\nv_lshlrev_b32 v40, 11, v56\nv_lshl_add_u32 v40, v48, 4, v40")
    s("s_mov_b32 s10, %d\ns_mov_b32 s11, 0x20000" % (2048 * 2048))
    s("s_waitcnt lgkmcnt(0)")
    if TS: s("v_writelane_b32 v%d, s100, 0" % vTS)
    stamp(s, "karg")
    s("s_mov_b32 s8, s4\ns_and_b32 s9, s5, 0xffff")
    for q in range(4): s.vm("buffer_load_dwordx4 %s, v40, s[8:11], s67 offen offset:%d" % (Q(64 + 4 * q), 512 * q), ("x", q))
    s("s_add_u32 s70, s6, 0x%x\ns_addc_u32 s71, s7, 0" % (WS_SM + SM_EP))
    s("s_load_dword s%d, s[70:71], 0" % sTAG)
    srd(s, 16, 14, 15, 1024 * 7168); srd(s, 12, 12, 13, 1024 * 7168)
    srd(s, 28, 26, 27, 1024 * 2048); srd(s, 24, 24, 25, 1024 * 2048)
    s("s_cmp_ge_u32 s%d, 2" % sW)
    s("s_cselect_b32 s20, s16, s12\ns_cselect_b32 s21, s17, s13\ns_mov_b32 s22, %d\ns_mov_b32 s23, 0x20000" % (1024 * 7168))
    ws_srd(s, 36, WS_SM, SM_SIZE)
    s("v_lshrrev_b32 v49, 4, v0")
    WGF = 1; vP1 = 63
    s("v_and_b32 v60, 31, v0\nv_lshlrev_b32 v60, 2, v60\ns_lshl_b32 s81, s%d, 7\ns_add_u32 s81, s81, 0x%x" % (sB, SM_F1B))
    s("v_and_b32 v63, 7, v0\nv_lshlrev_b32 v63, 6, v63\ns_lshl_b32 s75, s%d, 11\ns_lshl_b32 s65, s%d, 9\ns_add_u32 s75, s75, s65\ns_add_u32 s75, s75, 0x%x" % (sB, sQ, SM_F1))
    FT = cfg.get("ftouch", 0)
    if FT & 4: s.vm("buffer_load_dword a246, v63, s[36:39], s75 offen %s" % SC)
    if FT & 1: s.vm("buffer_load_dword a246, v60, s[36:39], s81 offen %s" % SC)
    s("v_mov_b32 v41, -1\nv_lshlrev_b32 v42, 2, v0\ns_xor_b32 s69, s2, 0xf8\ns_lshl_b32 s69, s69, 10\ns_lshl_b32 s65, s%d, 8\ns_add_u32 s69, s69, s65" % sW)
    s.vm("buffer_store_dword v41, v42, s[36:39], s69 offen %s" % SC, "agfill")
    vWA, vBA0, vBA1, vWA2, vW0, vW3, vB, vJ, vPA, vPB = 2, 3, 4, 5, 6, 9, 10, 12, 13, 14
    s("s_lshl_b32 s70, s66, 1\ns_and_b32 s65, s2, 1\ns_add_u32 s70, s70, s65")
    s("s_mul_i32 s69, s70, 7168\ns_mul_i32 s65, s%d, 1792\ns_add_u32 s69, s69, s65\nv_min_u32 v40, 13, v0\nv_lshl_add_u32 v44, v40, 7, s69" % sQ)
    s("v_and_b32 v45, 3, v0\ns_lshl_b32 s69, s%d, 8\ns_lshl_b32 s65, s70, 2\ns_add_u32 s69, s69, s65\nv_add_u32 v45, s69, v45\nv_lshlrev_b32 v45, 11, v45" % sQ)
    s("s_mov_b32 s69, %d\ns_cmp_ge_u32 s%d, 2\ns_cselect_b64 vcc, -1, 0\nv_cndmask_b32 v%d, v44, v45, vcc\ns_cselect_b32 s%d, 128, s69" % (64 * 7168, sW, vPA, sPAs))
    s("s_cselect_b32 s40, s24, s12\ns_cselect_b32 s41, s25, s13\ns_cselect_b32 s69, s28, s16\ns_cselect_b32 s65, s29, s17\ns_cselect_b32 s42, s26, s14")
    s("s_bitcmp1_b32 s%d, 0\ns_cselect_b32 s40, s69, s40\ns_cselect_b32 s41, s65, s41\ns_mov_b32 s43, 0x20000\ns_mov_b32 s%d, 0" % (sW, sKPA))
    def pfa(s):
        s.vm("buffer_load_dword a246, v%d, s[40:43], s%d offen" % (vPA, sKPA)); s("s_add_u32 s%d, s%d, s%d" % (sKPA, sKPA, sPAs))
    def pfb(s):
        s.vm("buffer_load_dword a246, v%d, s[44:47], s%d offen" % (vPB, sKPB)); s("s_add_u32 s%d, s%d, s%d" % (sKPB, sKPB, sPBs))
    if cfg.get("pf_skip0"): s("s_mov_b32 s%d, s%d" % (sKPA, sPAs))
    for _ in range(cfg.get("pf_t0", 3) - cfg.get("pf_skip0", 0)): pfa(s)
    s("s_and_b32 s71, s%d, 1\ns_lshl_b32 s71, s71, 1\ns_mul_i32 s72, s%d, 224\ns_and_b32 s73, s%d, 1\ns_add_u32 s73, s73, 12" % (sJ, sJ, sW))
    for k in range(4):
        if k < 3: s("s_add_u32 s69, s%d, %d\ns_lshl_b32 s69, s69, 6" % (sW, 4 * k))
        else: s("s_lshl_b32 s69, s73, 6")
        s("v_add_u32 v40, s69, v0\nv_mul_u32_u24 v44, 4682, v40\nv_lshrrev_b32 v44, 16, v44\nv_mul_u32_u24 v45, 14, v44\nv_sub_u32 v45, v40, v45")
        s("v_add_u32 v45, s71, v45\nv_subrev_u32 v43, 14, v45\nv_min_u32 v45, v45, v43")
        s("v_lshrrev_b32 v43, 1, v44\nv_xor_b32 v43, v43, v44\nv_and_b32 v43, 4, v43\nv_mul_u32_u24 v43, 3, v43\nv_xor_b32 v44, v44, v43")
        s("v_mul_u32_u24 v44, 7168, v44\nv_lshl_add_u32 v44, v45, 4, v44\nv_add_u32 v%d, s72, v44" % (vW0 + k))
    s("v_lshrrev_b32 v50, 3, v0\ns_lshl_b32 s69, s%d, 3\nv_add_u32 v40, s69, v50\nv_bfe_u32 v44, v40, 1, 3\nv_and_b32 v51, 7, v0\nv_xor_b32 v44, v44, v51" % sW)
    s("v_lshlrev_b32 v47, 11, v40\nv_lshl_add_u32 v47, v44, 4, v47")
    s("s_lshl_b32 s69, s%d, 16\nv_add_u32 v%d, s69, v47" % (sJ, vB))
    s("s_lshl_b32 s%d, s%d, 10\ns_lshl_b32 s%d, s73, 10" % (sMW, sW, sM3))
    s("s_cmp_ge_u32 s%d, 2\ns_cselect_b32 s69, %d, 0\ns_add_u32 s%d, s%d, s69\ns_add_u32 s%d, s%d, %d" % (sW, U_OFF, sM3, sM3, sMB, sMW, B_BASE))
    s("s_lshl_b32 s65, s%d, 9\ns_add_u32 s65, s65, 57344\nv_lshl_add_u32 v52, v0, 3, s65\nv_xor_b32 v54, 512, v52" % sW)
    s("v_lshrrev_b32 v55, 2, v48\nv_lshlrev_b32 v55, 12, v55\nv_and_b32 v44, 3, v0\nv_lshl_add_u32 v55, v44, 8, v55\nv_lshl_add_u32 v55, v49, 4, v55")
    s("s_lshl_b32 s70, s66, 17\ns_lshl_b32 s67, s%d, 10\ns_add_u32 s70, s70, s67\ns_and_b32 s67, s2, 1\ns_lshl_b32 s67, s67, 7\ns_add_u32 s70, s70, s67" % sQ)
    s("s_lshr_b32 s67, s%d, 1\ns_lshl_b32 s67, s67, 6\ns_add_u32 s70, s70, s67\ns_lshl_b32 s67, s68, 14\ns_add_u32 s70, s70, s67" % sW)
    s("s_add_u32 s71, s70, 32768\ns_add_u32 s72, s70, 65536\ns_add_u32 s73, s70, 98304")
    s("s_lshl_b32 s74, s2, 7\ns_lshr_b32 s67, s%d, 1\ns_lshl_b32 s67, s67, 6\ns_add_u32 s74, s74, s67\ns_add_u32 s74, s74, 0x%x" % (sW, SM_ST))
    ws_srd(s, 48, WS_XN, 0x400000)
    dma_items = [(vW0, 12, sKW, sMW, 0), (vW0 + 1, 12, sKW, sMW, 4096), (vW0 + 2, 12, sKW, sMW, 8192), (vW3, 20, sKW, sM3, 0),
                 (vW0, 16, sKW, sMW, U_OFF), (vW0 + 1, 16, sKW, sMW, U_OFF + 4096), (vW0 + 2, 16, sKW, sMW, U_OFF + 8192),
                 (vB, 24, sKB, sMB, 0), (vB, 28, sKB, sMB, 4096)]
    def dma1(s, st, k, early=None):
        v, sr, so, mb, off = dma_items[k]
        isb = mb == sMB
        base = ((st >> 1) & 1) * (16384 if isb else 65536) + (st & 1) * (B_ST if isb else W_ST)
        if k == 0: s("s_mov_b32 s%d, %d" % (sKW, st * 64 * 7168))
        if k == 7: s("s_mov_b32 s%d, %d" % (sKB, st * 128))
        s("s_add_u32 m0, s%d, %d" % (mb, off + base))
        s.op(Op("buffer_load_dwordx4 v%d, s[%d:%d], s%d offen lds" % (v, sr, sr + 3, so), "vm", K(("D", st, k))), early)
    CH1 = cfg.get("ch1", 1)
    xalloc = {}; xprev = {}; fifo = [(("a", r), None) for r in (96, 112, 128, 144, 192)]
    for u in range(32):
        if u == 26: xalloc[u] = ("v", 48); xprev[u] = None; continue
        xalloc[u], xprev[u] = fifo.pop(0); fifo.append((xalloc[u], u))
    aX, aW, NWB = 96, 208, 8
    def xload(s, u, m, early=None):
        if m == 0: s("s_mov_b32 s%d, %d" % (sKX, u * 4096))
        s.op(Op("buffer_load_dwordx4 %s, v%d, s[8:11], s%d offen offset:%d" % (R(xalloc[u][0], xalloc[u][1] + 4 * m, 4), 1, sKX, 1024 * m), "vm", K(("X", u, m))), early)
    def pro_stage(st):
        for k in range(9): dma1(s, st, k)
    ND0P = cfg.get("d_t0", 0)
    for k in range(ND0P): dma1(s, 0, k)
    EP_LDS = 131072; EPW = 8192
    PK = dict(C=252, CA=253, TOK=254, COL=255, D=240, TA=242, TRW=243, TRR=244, AG=245)
    s("v_lshrrev_b32 v40, 1, v48\nv_xor_b32 v40, v40, v49\nv_lshlrev_b32 v40, 4, v40\nv_lshl_add_u32 v40, v48, 7, v40")
    s("v_add_u32 v%d, %d, v40\nv_xor_b32 v%d, 64, v%d" % (vBA0, B_BASE, vBA1, vBA0))
    s("v_lshrrev_b32 v40, 1, v49\nv_lshlrev_b32 v40, 4, v40\nv_and_b32 v41, 1, v49\nv_lshlrev_b32 v41, 2, v41\nv_lshrrev_b32 v50, 2, v48\nv_add3_u32 v11, v40, v41, v50")
    s("v_mul_u32_u24 v40, 224, v11\nv_and_b32 v51, 3, v0\nv_lshl_add_u32 v%d, v51, 3, v40\nv_add_u32 v%d, 0x10000, v%d" % (vWA, vWA2, vWA))
    s("s_lshl_b32 s65, s%d, 17\ns_add_u32 s8, s6, s65\ns_addc_u32 s9, s7, 0\ns_and_b32 s9, s9, 0xffff\ns_mov_b32 s10, 0x20000" % sB)
    s("s_lshl_b32 s83, s2, 4\ns_lshl_b32 s65, s%d, 2\ns_add_u32 s83, s83, s65" % sW)
    if WGF: s("s_and_b32 s82, s2, 7\ns_lshl_b32 s82, s82, 6\ns_lshl_b32 s65, s66, 11\ns_add_u32 s82, s82, s65\ns_lshl_b32 s65, s%d, 9\ns_add_u32 s82, s82, s65\ns_add_u32 s82, s82, 0x%x" % (sW, SM_F1))
    else: s("s_add_u32 s82, s83, 0x%x" % SM_F1)
    s("s_add_u32 s83, s83, 0x%x" % SM_F1B)
    def tramp():
        s("s_mov_b64 exec, 0")
        for w in range(1, 4): s("s_cmp_eq_u32 s%d, %d\ns_cbranch_scc1 L_tr%d" % (sW, w, w))
        s("s_branch L_tr0")
        s.atom(["L_trret:"])
        s("s_mov_b64 exec, -1")
    TRP = cfg.get("tr_at", 2) if cfg.get("tramp", 1) else -1
    if TRP == 0: tramp()
    stamp(s, "prex")
    F = 80; D = 112; T0 = 144; ST = 28
    ln = Seq()
    def unpack(q):
        for i in range(4 * q, 4 * q + 4): ln("v_lshlrev_b32 v%d, 16, v%d\nv_and_b32 v%d, 0xffff0000, v%d" % (F + 2 * i, 64 + i, F + 2 * i + 1, 64 + i))
    def pack(q, dst=64):
        for i in range(4 * q, 4 * q + 4): ln("v_cvt_pk_bf16_f32 v%d, v%d, v%d" % (dst + i, F + 2 * i, F + 2 * i + 1))
    def hsum(dst):
        ln("v_pk_add_f32 %s, %s, %s\nv_add_f32 v%d, v%d, v%d" % (P(T0), P(T0), P(T0 + 2), T0, T0, T0 + 1))
        for sh in (1, 2, 4, 8): ln("v_add_f32_dpp v%d, v%d, v%d row_ror:%d row_mask:0xf bank_mask:0xf" % (T0, T0, T0, sh))
        ln("v_mul_f32 v%d, %s, v%d" % (dst, fx(1.0 / 512), T0))
    for q in range(4):
        ln.wait([("x", q)])
        if q == 3:
            stamp(ln, "xin")
            for _ in range(cfg.get("pf_t1", 0)): pfa(ln)
            i_d0 = len(ln.u)
        unpack(q)
        if q == 0: ln("v_pk_add_f32 %s, %s, %s\nv_pk_add_f32 %s, %s, %s" % (P(T0), P(F), P(F + 2), P(T0 + 2), P(F + 4), P(F + 6)))
        else:
            for i in range(4): ln("v_pk_add_f32 %s, %s, %s" % (P(T0 + 2 * (i % 2)), P(T0 + 2 * (i % 2)), P(F + 8 * q + 2 * i)))
    hsum(ST)
    for i in range(16): ln("v_pk_add_f32 %s, %s, %s op_sel_hi:[1,0] neg_lo:[0,1] neg_hi:[0,1]" % (P(D + 2 * i), P(F + 2 * i), P(ST)))
    for i in range(16):
        if i < 2: ln("v_pk_mul_f32 %s, %s, %s" % (P(T0 + 2 * i), P(D + 2 * i), P(D + 2 * i)))
        else: ln("v_pk_fma_f32 %s, %s, %s, %s" % (P(T0 + 2 * (i % 2)), P(D + 2 * i), P(D + 2 * i), P(T0 + 2 * (i % 2))))
    hsum(ST + 1)
    ln.lg("ds_write_b64 v52, %s" % P(ST))
    ln.wait(None, drain=["lg"])
    ln("s_barrier")
    ln.lg("ds_read_b64 %s, v54" % P(T0), "oth")
    ln("s_mul_i32 s%d, s%d, 0x9E3779B1\ns_add_u32 s%d, s%d, 0x7F4A7C15\nv_mov_b32 v56, s%d" % (sTAG, sTAG, sTAG, sTAG, sTAG))
    ln.wait(["oth"])
    ln("v_sub_f32 v%d, v%d, v%d\nv_pk_add_f32 %s, %s, %s\nv_mul_f32 v%d, 0.5, v%d\nv_pk_mul_f32 %s, %s, 0.5 op_sel_hi:[1,0]\nv_fmac_f32 v%d, v%d, v%d" % (T0 + 2, ST, T0, P(ST), P(ST), P(T0), T0 + 2, T0 + 2, P(ST), P(ST), ST + 1, T0 + 2, T0 + 2))
    ln("v_cvt_pk_bf16_f32 v%d, v%d, v%d\nv_lshlrev_b32 v%d, 16, v%d\nv_and_b32 v%d, 0xffff0000, v%d" % (T0, ST, ST + 1, ST, T0, ST + 1, T0))
    ln(("v_add_f32 V, %s, V\nv_cvt_pk_bf16_f32 V, V, V\nv_and_b32 V, 0xffff0000, V\nv_sqrt_f32 V, V" % fx(1e-5)).replace("V", "v%d" % (ST + 1)))
    def sub(q):
        for i in range(4 * q, 4 * q + 4): ln("v_pk_add_f32 %s, %s, %s op_sel_hi:[1,0] neg_lo:[0,1] neg_hi:[0,1]" % (P(F + 2 * i), P(F + 2 * i), P(ST)))
    def fin(q):
        pack(q); unpack(q)
        for i in range(4 * q, 4 * q + 4): ln("v_pk_mul_f32 %s, %s, %s op_sel:[0,1] op_sel_hi:[1,1]" % (P(F + 2 * i), P(F + 2 * i), P(ST)))
        pack(q, 12 if q else 64)
    ln("v_cvt_pk_bf16_f32 V, V, V\nv_and_b32 V, 0xffff0000, V\nv_rcp_f32 V, V".replace("V", "v%d" % (ST + 1)))
    sub(0); fin(0)
    lu = ln.units()
    nD_0 = cfg.get("d_t1", 1 if ND0P else 0)
    if nD_0:
        dq = Seq(); step = cfg.get("d0_step", 10); pos = i_d0 + cfg.get("d0_off", 6)
        for k in range(ND0P, 9):
            dma1(dq, 0, k); un = dq.units()
            lu[pos:pos] = un[:-1]; pos += len(un); lu[pos:pos] = un[-1:]; pos += step
    s.u += lu
    xst = lambda q: "buffer_store_dwordx4 %s, v55, s[48:51], s%d offen %s" % (Q(12 + 4 * q if q else 64), 70 + q, SC)
    stst = lambda: ["s_mov_b32 exec_lo, 0x10001", "s_mov_b32 exec_hi, 0x10001", Op("buffer_store_dwordx4 %s, v0, s[36:39], s74 offen %s" % (Q(ST), SC), "vm"), "s_mov_b64 exec, -1"]
    s.vm(xst(0), ("xn", 0))
    stamp(s, "xnst")
    for q in range(1, 4):
        sub(q); fin(q); s.u += ln.units()
    XBP = cfg.get("xbp", 2)
    TWO = 1
    nD_b = cfg.get("d_t3", 1)
    nD_c = cfg.get("d_t4", 1)
    nD_d = cfg.get("d_t5", 2)
    if TRP == 1: tramp()
    if WGF: s.wait([("xn", 0), "agfill"]); s("s_barrier")
    flag(s, "buffer_store_dwordx4 v[56:59], v1, s[36:39], s82 offen %s" % SC, [("xn", 0), "agfill"])
    stamp(s, "flag1")
    if TRP == 4: tramp()
    if cfg.get("bar_f"): s("s_barrier")
    stamp(s, "barf")
    def xb_now():
        s.atom(stst())
        for q in range(1, 4): s.vm(xst(q), ("xn", q))
    if XBP == 1: xb_now()
    for st in range(nD_0, nD_b): pro_stage(st)
    stamp(s, "d0")
    if TRP == 2: tramp()
    stamp(s, "trd")
    f1load = "buffer_load_dword v61, v%d, s[36:39], s75 offen %s" % (vP1, SC)
    s.vm(f1load, "f1")
    if XBP == 2: xb_now()
    for st in range(max(nD_0, nD_b), nD_c): pro_stage(st)
    nD_b = max(nD_0, nD_b, nD_c)
    if TRP == 3: tramp()
    stamp(s, "prepoll")
    if TRP >= 0:
        s("s_branch L_main"); s.atom([".p2align 12"]); s.atom(["L_main:"])
    poll(s, "P1", f1load, 61, "f1")
    stamp(s, "poll1")
    NXP = cfg.get("nxpre", 1 if cfg.get("ch1_first", 1) else 2)
    for u in range(NXP):
        for m in range(4): xload(s, u, m)
    if XBP == 3: xb_now()
    for _ in range(cfg.get("pf_t5", 0)): pfa(s)
    for st in range(nD_b, nD_d): pro_stage(st)
    nD_b = max(nD_b, nD_d)
    npfa = cfg.get("pf_t0", 3) + cfg.get("pf_t1", 0) + cfg.get("pf_t5", 0)
    NPB = cfg.get("npb", 8)
    tiles = []
    for q in range(7): tiles += [("G", q), ("U", q)]
    tiles += [("R", 0), ("I", 0), ("R", 1), ("I", 1)]
    def acc(t, m):
        k, q = t
        if k == "R": return ("v", 64 + 16 * q + 4 * m)
        if k == "I": return ("v", 96 + 16 * q + 4 * m)
        o = 32 * q + (16 if k == "U" else 0) + 4 * m
        return ("v", 128 + o) if q < 4 else ("a", o - 128)
    L0 = cfg.get("l1_lead", 4)
    KT = cfg.get("kt", 1)
    def stage_groups(st, tl):
        if CH1 and st >= cfg.get("ch1_first", 1): return [(2 * st + kk, ti) for ti in tl for kk in range(2)]
        return [(2 * st + kk, ti) for kk in range(2) for ti in tl]
    groups = []
    for st in range(14 if KT else 16): groups += stage_groups(st, range(18))
    if KT:
        for tl in (range(4), range(4, 18)):
            for st in (14, 15): groups += stage_groups(st, tl)
    NG = len(groups)
    mo, head, tail = order_mfma(groups)
    xfirst = {}; xlast = {}
    for G, (u, ti) in enumerate(groups): xfirst.setdefault(u, head(G)); xlast[u] = tail(G)
    parts = lambda G: [0, 1] if groups[G][1] < 14 else [None]
    def read1(G, part):
        u, ti = groups[G]; st, kk = divmod(u, 2); t = tiles[ti]; f = G % NWB
        if t[0] in "GU":
            off = (st & 1) * W_ST + (U_OFF if t[0] == "U" else 0) + kk * 7168 + part * 1792 + t[1] * 32
            return Op("ds_read_b64_tr_b16 %s, v%d offset:%d" % (R("a", aW + 4 * f + 2 * part, 2), (vWA, vWA2)[(st >> 1) & 1], off), "lg", K(("F", G, part)))
        off = (st & 3) * B_ST + (4096 if t[0] == "I" else 0) + t[1] * 2048
        return Op("ds_read_b128 %s, v%d offset:%d" % (R("a", aW + 4 * f, 4), vBA1 if kk else vBA0, off), "lg", K(("F", G, part)))
    rgap = {}
    for G in range(NG):
        f = G % 36
        g = G if (f < 33 or (KT and G >= 28 * 18)) else G - (1 if f < 35 else 2)
        rgap[G] = 4 * (g - L0) - 1
        assert rgap[G] >= 4 * tail(G - NWB) + 3
    gneed = lambda G: [("F", H, p) for H in range(G, tail(G) + 1) for p in parts(H)] + [("X", u, m) for u in range(32) if xfirst[u] == G for m in range(4)]
    s.wait([("D", 0, k) for k in range(9)])
    s("s_barrier")
    for G in range(NG):
        if rgap[G] < 0:
            for p in parts(G): s.op(read1(G, p))
    s.wait(gneed(0))
    stamp(s, "loop1")
    prog.add(s.done())
    mf = []
    for G, m in mo:
        u, ti = groups[G]; t = tiles[ti]
        xr = (xalloc[u][0], xalloc[u][1] + 4 * m); wr = ("a", aW + 4 * (G % NWB))
        mf.append(Op(mfma16(acc(t, m), wr, xr, u == 0) if t[0] in "GU" else mfma16(acc(t, m), xr, wr, u == 0)))
    sc = Sch(mf)
    for G in range(1, NG):
        w = Op("", needs=K(gneed(G))); w.keep = True
        sc.put(4 * G - 1, [w], 0)
    for G in range(NG):
        if rgap[G] >= 0: sc.put(rgap[G], [read1(G, p) for p in parts(G)], 1)
    bar = {}
    for st in range(15):
        bar[st] = rgap[xfirst[2 * st + 2]] - 1
        sc.put(bar[st], [Op("s_barrier", needs=K([("D", st + 1, k) for k in range(9)]), drain=["lg"] if st < 14 else None)], 0)
    items = []
    PFL = cfg.get("pfl", -0.3)
    pft = {}
    if cfg.get("pf1", 1):
        ev = cfg.get("pf_first", 50); st = npfa
        while st < 16:
            n = 0
            while st < 16 and n < cfg.get("pf_max", 1) and (n == 0 or 144 * (st - 3 - PFL) < ev):
                e = max(int(144 * (st - 3 - PFL)), ev); pft[st] = e; items.append((0, 2, e, "a", st, 0)); st += 1; n += 1
            ev = e + cfg.get("pf_min", 144)
    for st in range(nD_b, 16):
        e = max(bar[st - 4] + 1 if st >= 4 else 0, pft.get(st, -1000) + cfg.get("pf_lat", 100))
        for k in range(9): items.append((bar[st - 1], 0, e, "d", st, k))
    for u in range(NXP, 32):
        e = 4 * xlast[xprev[u]] + 3 if xprev[u] is not None else 0
        for m in range(4): items.append((4 * xfirst[u] - 1, 1, max(e, 4 * xfirst[u] - cfg.get("x_la", 230)), "x", u, m))
    for k in range(1, 4 if not XBP else 0): items.append((0, 3, cfg.get("xb_first", 45) + cfg.get("xb_sp", 25) * (k - 1), "s", k, 0))
    items.append((0, 3, cfg.get("xb_first", 45) + cfg.get("xb_sp", 25) * 2 + cfg.get("xb_lat", 70) if not XBP else cfg.get("fb_at", 30), "f", 0, 0))
    gC_ = sorted(set(pft.values()))[cfg.get("c_ev", 2)] if pft else 300
    items.append((0, 3, gC_, "c", 0, 0))
    gE_ = gC_ + cfg.get("e_off", 90)
    for n in range(4): items.append((gE_ + 100, 3, gE_ + 20 * n, "e", n, 0))
    f1cload = "buffer_load_dword v61, v60, s[36:39], s81 offen %s" % SC
    if cfg.get("pf2", 1):
        for c in range(NPB): items.append((0, 2, cfg.get("pfb_first", 770) + int(c * cfg.get("pfb_sp", 144)), "b", c, 0))
    now = 0; pend = sorted(items); done = []; quiet = -1
    while pend:
        nxt = {}
        for x in pend:
            if x[3] not in nxt or x[4:] < nxt[x[3]][4:]: nxt[x[3]] = x
        av = sorted(x for x in nxt.values() if x[2] <= now)
        if not av: now += 1; continue
        x = av[0]; pend.remove(x)
        if x[3] == "d": dma1(s, x[4], x[5], int(now))
        elif x[3] == "x":
            if TWO and x[4:] == (8, 0): poll(s, "P1c", f1cload, 61, "f1c", early=int(now))
            xload(s, x[4], x[5], int(now))
            if TWO and x[4:] == (7, 0): s.vm(f1cload, "f1c"); i_f1c = len(s.u) - 1
        elif x[3] == "a":
            s.at(int(now)); pfa(s); quiet = now + cfg.get("q_len", 64)
            if [y for y in pend if y[3] in "abc" and y[2] <= now]: now -= cfg.get("q_sp", 10) - 4
        elif x[3] == "c":
            s.at(int(now)); i_c0 = len(s.u) - 1
            for k, lo in enumerate((96, 98, 92)):
                s("s_mov_b32 s32, s%d\ns_and_b32 s33, s%d, 0xffff" % (lo, lo + 1))
                for T in range(2): s.vm("buffer_load_ushort v%d, v40, s[32:35], 0 offen offset:%d" % (16 + 2 * k + T, 32 * T), ("c", k, T))
            s("s_mov_b32 s32, s94\ns_and_b32 s33, s95, 0xffff")
            for u in range(2): s.vm("buffer_load_dwordx2 %s, v41, s[32:35], 0 offen offset:%d" % (R("a", 248 + 2 * u, 2), 32 * u), ("dk", u))
            if FT & 2:
                s.vm("buffer_load_dword a246, v42, s[36:39], 0 offen %s" % SC); now += 4
            i_c1 = len(s.u) - 1; now += 30
        elif x[3] == "s":
            if x[4] == 1: s.atom(stst(), int(now)); now += 4
            s.op(Op(xst(x[4]), "vm", K(("xn", x[4]))), int(now)); now += (4 - cfg.get("q_sp", 10)) if now < quiet else 10
        elif x[3] == "f":
            flag(s, "buffer_store_dword v56, v1, s[36:39], s83 offen %s" % SC, [("xn", 3)], early=int(now)); i_fb = len(s.u) - 1
        elif x[3] == "e":
            s("s_mov_b32 s70, %d\ns_add_u32 m0, s71, %d" % (32768 * x[4], 1024 * x[4]))
            s.op(Op("buffer_load_dwordx4 v12, s[48:51], s70 offen lds", "vm", K(("E", x[4]))), int(now)); i_e1 = len(s.u) - 1; now += 4
        else: s.at(int(now)); pfb(s); quiet = now + cfg.get("q_len", 64)
        if x[3] in "dx": done.append((x, len(s.u) - 1))
        if x[3:] == ("x", 8, 0): i_p1c = len(s.u) - 1
        if x[3:] == ("x", 26, 0): i_x26 = len(s.u) - 1
        now += cfg.get("q_sp", 10) if now < quiet else cfg.get("l1_sp", 5)
    res = sc.stream(s.units(), 0, 2)
    sl = sorted((x[0] - res[i], x[3], x[4], x[5]) for x, i in done)
    if cfg.get("verbose"): print("loop1 vm end", res[-1], "of", 4 * NG, "min slacks", sl[:3], "steady", min(z for z in sl if z[2] > 8))
    for nm in names:
        if TS and nm[0] == "f" and nm[1:].isdigit():
            st_ = int(nm[1:])
            sc.put(bar[st_] - 1, [Op("s_memrealtime s[100:101]")], 5)
            sc.put(bar[st_], [Op("v_writelane_b32 v%d, s100, %d" % (vTS, names.index(nm)))], 5)
    if cfg.get("verbose"): print("flag b", res[i_fb], "poll load", res[i_f1c], "check", res[i_p1c])
    s.at(res[i_fb] + 1)
    cL, cC, cL8, cL16, cL64, cL512 = 16, 20, 24, 28, 32, 36
    s("s_mov_b32 s34, 2048\ns_mov_b32 s35, 0x20000")
    s("s_lshl_b32 s69, s%d, 5\nv_add_u32 v40, s69, v48\nv_lshlrev_b32 v40, 1, v40" % sJ)
    s("s_lshl_b32 s68, s%d, 7\ns_lshl_b32 s66, s%d, 5\ns_add_u32 s68, s68, s66\nv_lshl_add_u32 v41, v49, 2, s68\nv_accvgpr_write_b32 a%d, v41\nv_lshlrev_b32 v41, 1, v41" % (sTN, sQ, PK["COL"]))
    srd(s, 48, 4, 5, 2048 * 2048)
    s("s_lshl_b32 s66, s%d, 2\ns_add_u32 s66, s66, s%d\ns_lshl_b32 s66, s66, 7\ns_add_u32 s66, s66, 0x%x\nv_mov_b32 v42, s66" % (sB, sQ, SM_F3))
    s("s_lshl_b32 s66, s%d, 3\ns_add_u32 s66, s66, s%d\ns_lshl_b32 s66, s66, 2\ns_add_u32 s66, s66, s%d\ns_lshl_b32 s66, s66, 7\ns_add_u32 s66, s66, 0x%x\nv_writelane_b32 v42, s66, 0" % (sI, sTN, sW, SM_F4))
    s("s_lshl_b32 s68, s68, 1\ns_lshl_b32 s66, s%d, 17\ns_add_u32 s68, s68, s66\nv_lshrrev_b32 v12, 2, v0\nv_lshl_add_u32 v12, v12, 11, s68\nv_lshl_add_u32 v12, v51, 4, v12" % sB)
    s("s_lshr_b32 s66, s%d, 1\ns_lshl_b32 s66, s66, 16\ns_and_b32 s71, s%d, 1\ns_lshl_b32 s71, s71, 12\ns_add_u32 s71, s71, s66\ns_add_u32 s71, s71, 57344" % (sW, sW))
    r0 = sc.stream(s.units(), 0, 3)
    assert r0[-1] < res[i_c0]
    s.at(res[i_c1] + 1)
    s("v_subrev_u32 v40, %d, v%d\nv_accvgpr_write_b32 a%d, v40" % (B_BASE, vBA0, PK["CA"]))
    s("s_mul_i32 s69, s%d, %d\ns_add_u32 s69, s69, %d" % (sW, EPW, EP_LDS + 2048))
    s("v_and_b32 v41, 1, v49\nv_xor_b32 v41, v41, v51\nv_lshlrev_b32 v40, 5, v11\nv_lshl_add_u32 v40, v41, 3, v40\nv_add_u32 v40, s69, v40\nv_accvgpr_write_b32 a%d, v40" % PK["TRR"])
    s("v_lshrrev_b32 v40, 1, v48\nv_xor_b32 v40, v40, v48\nv_and_b32 v40, 4, v40\nv_mul_u32_u24 v40, 3, v40\nv_xor_b32 v40, v40, v48\nv_lshrrev_b32 v41, 2, v40\nv_xor_b32 v41, v41, v49\nv_lshlrev_b32 v40, 5, v40\nv_lshl_add_u32 v40, v41, 3, v40\nv_add_u32 v40, s69, v40\nv_accvgpr_write_b32 a%d, v40" % PK["TRW"])
    s("v_lshrrev_b32 v40, 2, v0\nv_and_b32 v41, 7, v40\nv_lshlrev_b32 v41, 5, v41\nv_lshl_add_u32 v41, v40, 8, v41\nv_lshl_add_u32 v41, v51, 3, v41\nv_accvgpr_write_b32 a%d, v41" % PK["TA"])
    s("s_lshl_b32 s68, s%d, 2\nv_add_u32 v40, s68, v49\nv_and_b32 v41, 7, v40\nv_bfe_u32 v51, v0, 1, 3\nv_xor_b32 v41, v41, v51\ns_lshl_b32 s66, s%d, 1\nv_xor_b32 v41, s66, v41\nv_lshlrev_b32 v41, 5, v41" % (sW, sQ))
    s("v_and_b32 v51, 1, v0\nv_lshl_add_u32 v41, v51, 4, v41\ns_mul_i32 s67, s%d, 896\nv_add_u32 v40, s67, v40\nv_lshl_add_u32 v40, v40, 11, v41\ns_lshl_b32 s67, s%d, 8\nv_add_u32 v40, s67, v40\nv_accvgpr_write_b32 a%d, v40" % (sQ, sTN, PK["D"]))
    s("s_lshl_b32 s68, s%d, 18\ns_lshl_b32 s66, s%d, 9\ns_add_u32 s68, s68, s66\nv_add_u32 v40, s68, v47\nv_accvgpr_write_b32 a%d, v40" % (sTN, sQ, PK["C"]))
    s("v_lshlrev_b32 v40, 4, v50\nv_lshl_add_u32 v40, v51, 3, v40\nv_bfe_u32 v41, v48, 1, 1\ns_lshl_b32 s68, s%d, 6\nv_add3_u32 v40, v40, v41, s68\nv_accvgpr_write_b32 a%d, v40" % (sB, PK["TOK"]))
    s("s_sub_u32 s68, 32, s%d\ns_lshl_b32 s68, s68, 13\ns_lshl_b32 s66, s%d, 8\ns_add_u32 s68, s68, s66\nv_lshl_add_u32 v40, v48, 4, s68\nv_lshl_add_u32 v40, v49, 16, v40\nv_accvgpr_write_b32 a%d, v40" % (sB, sJ, PK["AG"]))
    ld, lc = 112 // NPB, 64 // NPB
    s("s_lshl_b32 s68, s2, 1\ns_and_b32 s66, s%d, 1\ns_add_u32 s68, s68, s66\ns_mul_i32 s68, s68, %d\ns_mul_i32 s66, s2, %d" % (sW, ld * 128, lc * 128))
    ge2 = "s_cmp_ge_u32 s%d, 2" % sW
    s.atom([ge2, "s_cselect_b32 s68, s66, s68", "s_cselect_b32 s66, %d, %d" % (lc - 1, ld - 1)])
    s("v_min_u32 v40, s66, v0\nv_lshl_add_u32 v%d, v40, 7, s68" % vPB)
    s.atom(["s_bitcmp1_b32 s%d, 0" % sW, "s_cselect_b32 s68, s90, s88", "s_cselect_b32 s66, s91, s89"])
    s.atom([ge2, "s_cselect_b32 s44, s68, s84", "s_cselect_b32 s45, s66, s85"])
    s("s_mov_b32 s67, %d\ns_mov_b32 s68, %d" % (3584 * 2048, 512 * ld * 128))
    s.atom([ge2, "s_cselect_b32 s46, %d, s67" % (1024 * 2048), "s_cselect_b32 s%d, %d, s68" % (sPBs, 256 * lc * 128)])
    s("s_and_b32 s45, s45, 0xffff\ns_mov_b32 s47, 0x20000\ns_mov_b32 s%d, 0" % sKPB)
    i_pbs = len(s.u) - 1
    s.at(res[i_c1] + 90)
    s.wait([("c", 2, 1)])
    def two(f):
        for T in range(2): s(f(T))
    for k in range(6): s("v_lshlrev_b32 v%d, 16, v%d" % (40 + k, 16 + k))
    two(lambda T: "v_mul_f32 v%d, %s, v%d" % (44 + T, fx(LOG2E), 44 + T)); two(lambda T: "v_exp_f32 v%d, v%d" % (44 + T, 44 + T))
    s("v_cvt_pk_bf16_f32 v45, v44, v45\nv_lshlrev_b32 v44, 16, v45\nv_and_b32 v45, 0xffff0000, v45")
    two(lambda T: "v_mul_f32 v%d, v%d, v%d\nv_mul_f32 v%d, v%d, v%d" % (24 + T, 44 + T, 40 + T, 26 + T, 44 + T, 42 + T))
    two(lambda T: "v_mul_f32 v%d, %s, v%d" % (24 + T, fx(LOG2E), 24 + T)); two(lambda T: "v_exp_f32 v%d, v%d" % (24 + T, 24 + T))
    two(lambda T: "v_mul_f32 v%d, 0.15915494, v%d\nv_rndne_f32 v%d, v%d\nv_sub_f32 v%d, v%d, v%d" % (26 + T, 26 + T, 52 + T, 26 + T, 26 + T, 26 + T, 52 + T))
    two(lambda T: "v_cos_f32 v%d, v%d\nv_sin_f32 v%d, v%d" % (52 + T, 26 + T, 54 + T, 26 + T))
    two(lambda T: "v_mul_f32 v%d, v%d, v%d\nv_mul_f32 v%d, v%d, v%d\nv_add_f32 v%d, -1.0, v%d" % (cL + T, 24 + T, 52 + T, 54 + T, 24 + T, 54 + T, 52 + T, cL + T))
    two(lambda T: "v_mul_f32 v%d, v%d, v%d\nv_fmac_f32 v%d, v%d, v%d\nv_rcp_f32 v%d, v%d" % (24 + T, 40 + T, 40 + T, 24 + T, 42 + T, 42 + T, 24 + T, 24 + T))
    two(lambda T: "v_mul_f32 v%d, v%d, v%d\nv_fmac_f32 v%d, v%d, v%d" % (26 + T, 52 + T, 40 + T, 26 + T, 54 + T, 42 + T))
    two(lambda T: "v_mul_f32 v%d, v%d, v%d\nv_fma_f32 v%d, -v%d, v%d, v%d" % (56 + T, 54 + T, 40 + T, 56 + T, 52 + T, 42 + T, 56 + T))
    two(lambda T: "v_add_f32 v%d, v%d, v%d\nv_mul_f32 v%d, v%d, v%d\nv_mul_f32 v%d, v%d, v%d\nv_sub_f32 v%d, 0, v%d" % (24 + T, 24 + T, 24 + T, cC + T, 26 + T, 24 + T, cC + 2 + T, 56 + T, 24 + T, cL + 2 + T, 54 + T))
    def sq(d, x):
        two(lambda T: "v_mul_f32 v%d, v%d, v%d\nv_mul_f32 v%d, v%d, v%d\nv_fma_f32 v%d, v%d, v%d, -v%d\nv_add_f32 v%d, v%d, v%d" % (52 + T, x + 2 + T, x + 2 + T, 54 + T, x + T, x + 2 + T, d + T, x + T, x + T, 52 + T, d + 2 + T, 54 + T, 54 + T))
    sq(cL8, cL); sq(cL8, cL8); sq(cL8, cL8); sq(cL16, cL8); sq(cL64, cL16); sq(cL64, cL64); sq(cL512, cL64); sq(cL512, cL512); sq(cL512, cL512)
    aBS = 160
    s.at(max(res[i_p1c] + 2, res[i_e1] + 90))
    s("v_accvgpr_read_b32 v12, a%d\nv_and_b32 v11, 63, v12\nv_lshlrev_b32 v11, 6, v11\nv_lshl_add_u32 v11, v49, 3, v11\nv_add_u32 v11, s71, v11\nv_and_b32 v12, 0xf0, v1\ns_lshl_b32 s66, s%d, 10\ns_add_u32 s66, s66, 0x%x" % (PK["TOK"], sB, SM_ST))
    s.wait([("E", 3), ("dk", 1)])
    for k in range(4): s("v_accvgpr_read_b32 v%d, a%d" % (40 + k, 248 + k))
    for m in range(4):
        s.vm("buffer_load_dwordx2 v[44:45], v12, s[36:39], s66 offen offset:%d" % (256 * m), ("St", m))
        for u in range(2): s.lg("ds_read_b64 %s, v11 offset:%d" % (P(52 + 2 * u), 128 * m + 32 * u), ("er", m, u))
        s.delay(cfg.get("e_lat", 90))
        s.wait([("St", m), ("er", m, 1)])
        for u in range(2):
            def unp(d, x):
                for h in range(2): s("v_lshlrev_b32 v%d, 16, v%d\nv_and_b32 v%d, 0xffff0000, v%d" % (d + 2 * h, x + h, d + 2 * h + 1, x + h))
            def rnd():
                for h in range(2): s("v_cvt_pk_bf16_f32 v%d, v%d, v%d" % (48 + h, 60 + 2 * h, 61 + 2 * h))
                unp(60, 48)
            unp(56, 52 + 2 * u)
            for k in range(4): s("v_sub_f32 v%d, v%d, v44" % (60 + k, 56 + k))
            rnd()
            for k in range(4): s("v_mul_f32 v%d, v%d, v45" % (60 + k, 60 + k))
            rnd()
            for h in range(2):
                s("v_lshlrev_b32 v46, 16, v%d\nv_and_b32 v47, 0xffff0000, v%d\nv_mul_f32 v%d, v%d, v46\nv_mul_f32 v%d, v%d, v47" % (40 + 2 * u + h, 40 + 2 * u + h, 60 + 2 * h, 60 + 2 * h, 61 + 2 * h, 61 + 2 * h))
            rnd()
            for k in range(4): s("v_add_f32 v%d, v%d, v%d" % (56 + k, 56 + k, 60 + k))
            for k in range(4): s("v_accvgpr_write_b32 a%d, v%d" % (aBS + 16 * u + 4 * m + k, 56 + k))
    rb = sc.stream(s.units(), 0, 3, vmspace=2)
    if cfg.get("verbose"): print("shadow end", rb[-1])
    assert rb[-1] < res[i_x26] and rb[-1] < bar[13] and rb[i_pbs] < cfg.get("pfb_first", 770)
    vEW, vER, vTG, vAG, vTRW, vTRR, vCP, vH8, vD1, vPAd, vPD, vD0 = 2, 3, 4, 5, 6, 7, 8, 10, 11, 12, 13, 14
    sM, sKD, sKH = 54, 55, 56
    c1 = -2.0 * math.sqrt(2.0 / math.pi) * LOG2E
    CC = 46
    s("v_accvgpr_read_b32 v%d, a%d\nv_lshlrev_b32 v%d, 3, v0\nv_add_u32 v%d, 32768, v%d" % (vD0, PK["D"], vH8, vD1, vD0))
    s("v_and_b32 v43, 31, v0\nv_lshlrev_b32 v43, 7, v43\ns_lshl_b32 s71, s%d, 2\ns_add_u32 s71, s71, 0x%x" % (sJ, SM_F1B))
    s("s_mul_i32 s65, s%d, 176\ns_mul_i32 s66, s%d, 44\ns_add_u32 s65, s65, s66\ns_lshl_b32 s65, s65, 12\ns_add_u32 s65, s65, 0x%x" % (sB, sQ, WS_H))
    s.atom(["s_add_u32 s32, s6, s65", "s_addc_u32 s33, s7, 0"])
    s("s_and_b32 s33, s33, 0xffff\ns_mov_b32 s34, 0x%x\ns_mov_b32 s35, 0x20000" % (44 * 4096))
    srd(s, 12, 84, 85, 3584 * 2048); srd(s, 16, 88, 89, 1024 * 2048); srd(s, 20, 90, 91, 1024 * 2048)
    s("s_lshl_b32 s%d, s%d, 10" % (sM, sW))
    s("v_mov_b32 v46, %s\nv_mov_b32 v47, %s" % (fx(c1), fx(c1 * 0.044715)))
    ROT = cfg.get("rot", 2)
    sTQ = [96, 97, 98, 99, 48, 49, 50, 51]; sTS = [76, 77, 78, 80]; sJ12, sG7 = 44, 45
    s("s_and_b32 s67, s%d, 3\ns_lshl_b32 s67, s67, 1" % sI)
    for k in range(8):
        if k == 0: s("s_mov_b32 s65, s%d" % sTN)
        elif ROT == 2: s.atom(["s_cmp_le_u32 s%d, %d" % (sTN, k - 1), "s_cselect_b32 s65, %d, %d" % (k, k - 1)])
        elif ROT: s("s_add_u32 s65, s67, %d\ns_sub_u32 s66, s65, 7\ns_min_u32 s65, s65, s66\ns_add_u32 s65, s65, 1\ns_xor_b32 s65, s65, s%d" % (k - 1, sTN))
        else: s("s_xor_b32 s65, s%d, %d" % (sTN, k))
        s("s_mul_i32 s65, s65, 7\ns_add_u32 s65, s65, 1\ns_lshr_b32 s65, s65, 1\ns_lshl_b32 s%d, s65, 12" % sTQ[k])
    s("s_lshr_b32 s67, s%d, 1" % sTN)
    sGp = [24, 25, 26, 27]; sPar = 45
    for p in range(4):
        if ROT == 2:
            s("s_mov_b32 s%d, %d" % (sTS[p], (7 * p + 3) * 4096))
            if p == 0: s("s_lshl_b32 s%d, s67, 13" % sGp[0])
            else:
                s.atom(["s_cmp_le_u32 s67, %d" % (p - 1), "s_cselect_b32 s65, %d, %d" % (p, p - 1)]); s("s_lshl_b32 s%d, s65, 13" % sGp[p])
        else: s("s_xor_b32 s65, s67, %d\ns_lshl_b32 s%d, s65, 13\ns_mul_i32 s65, s65, %d\ns_add_u32 s%d, s65, %d" % (p, sGp[p], 7 * 4096, sTS[p], 3 * 4096))
    s("s_lshl_b32 s%d, s%d, 12\ns_and_b32 s69, s%d, 1\ns_lshl_b32 s%d, s69, 12" % (sJ12, sTN, sTN, sPar))
    s("s_mul_i32 s67, s67, %d\ns_lshl_b32 s69, s69, 9\ns_add_u32 s67, s67, s69\ns_add_u32 s67, s67, %d" % (7 * 4096, 3 * 4096))
    s("s_add_u32 s72, s%d, %d\ns_add_u32 s73, s%d, %d\ns_mov_b32 s66, s%d" % (sJ12, 28 * 4096, sJ12, 36 * 4096, sTQ[0]))
    s("s_lshl_b32 s68, s%d, 2\ns_add_u32 s68, s68, s%d\ns_lshl_b32 s68, s68, 7\ns_add_u32 s68, s68, 0x%x" % (sB, sQ, SM_F3))
    s("s_lshl_b32 s81, s%d, 2\ns_add_u32 s81, s81, s68\nv_and_b32 v%d, 7, v0\nv_lshlrev_b32 v%d, 2, v%d" % (sTN, vPAd, vPAd, vPAd))
    s("s_sub_u32 s64, 31, s%d\ns_lshl_b32 s64, s64, 13\ns_lshl_b32 s65, s%d, 8\ns_add_u32 s64, s64, s65" % (sB, sJ))
    s("s_mul_i32 s46, s%d, %d\ns_add_u32 s46, s46, %d" % (sW, EPW, EP_LDS))
    if TRP >= 0 and cfg.get("tr2", 1) and cfg.get("tr2pf", 1):
        s.atom(["s_getpc_b64 s[82:83]", "L_pc2:"])
        s("v_lshrrev_b32 v40, 3, v0\nv_lshlrev_b32 v40, 12, v40\nv_and_b32 v41, 7, v0\nv_lshl_add_u32 v40, v41, 7, v40\nv_add_u32 v40, L_main-L_pc2+%d, v40" % (4096 * cfg.get("tr_n", 12)))
        s("v_min_u32 v40, L_codeend-L_pc2-4, v40\nv_mov_b32 v41, 0\nv_lshl_add_u64 v[40:41], v[40:41], 0, s[82:83]")
        s.vm("global_load_dword a246, v[40:41], off")
    f1bload = "buffer_load_dword v44, v43, s[36:39], s71 offen %s" % SC
    s.vm(f1bload, "f1b")
    steps = [("g", 0, 2), ("g", 0, 0), ("g", 0, 1)]
    NA0 = cfg.get("na0", 2)
    steps += [("g", k, 0) for k in range(1, NA0 + 1)]
    UA = len(steps)
    steps += [("g", k, 1) for k in range(1, NA0 + 1)]
    for k in range(NA0 + 1, 8): steps += [("g", k, 0), ("g", k, 1)]
    UB = len(steps)
    for k in range(1, 8): steps += [("g", k, 2)] + ([("s", k // 2, 0)] if k % 2 else [])
    assert len(steps) == 28
    cst = [("r", 0), ("i", 0), ("r", 1), ("r", 2), ("r", 3), ("i", 1), ("i", 2), ("i", 3)]
    steps += [("c", 14, 0), ("c", 15, 0), ("c", 14, 1), ("c", 15, 1)]
    for st in range(16, 22): steps += [("c", st, 0), ("c", st, 1)]
    own = {0, 1, 2, 28, 29}; UC = 30
    NST = 22; KC = cfg.get("kc", 8)
    slot = {st: st % 8 for st in range(22)}; prevocc = {st: (st - 8 if st >= 8 else None) for st in range(22)}
    aW2 = 0; aAG = 32
    vC, vCA = 16, 20
    def dma2(s, st, k, early=None, vC=vC):
        if st < 14:
            kind, x, p = steps[2 * st + k // 2]
            if k % 2 == 0:
                if kind == "g" and p: s("s_add_u32 s%d, s%d, %d\ns_lshl_b32 s%d, s%d, 4" % (sKD, sTQ[x], p * 4096, sKD, sKD))
                else: s("s_lshl_b32 s%d, s%d, 4" % (sKD, (sTQ if kind == "g" else sTS)[x]))
            v, sr = (vD0, vD1)[k % 2], 12
        else:
            part, p = cst[st - 14]
            if k == 0: s("s_lshr_b32 s%d, s%d, 6" % (sKD, sGp[p]))
            v, sr = vC + k, (16 if part == "r" else 20)
        s("s_add_u32 m0, s%d, %d" % (sM, slot[st] * 16384 + k * 4096))
        s.op(Op("buffer_load_dwordx4 v%d, s[%d:%d], s%d offen lds" % (v, sr, sr + 3, sKD), "vm", K(("D2", st, k))), early)
    NPRE = 4
    r = sc.stream(s.units(), res[-1] + 2, 3)
    gS = r[-1]
    s.at(max(bar[13] + 1, cfg.get("pre_at", 0 if KT else 2170)))
    for st in range(NPRE):
        for k in range(4): dma2(s, st, k)
    r = sc.stream(s.units(), gS + 1, 2, vmspace=cfg.get("pre_sp", 5))
    hst = cfg.get("hst", SC)
    aK0 = xalloc[27][1] if KT else 96; aK1 = 112 if aK0 != 112 else 96
    left = []; msh = 0
    if KT:
        msh = cfg.get("msh", 4)
        for m in range(msh):
            gs = [128 + 4 * m + e for e in range(4)] + [160 + 4 * m + e for e in range(4)]
            o = (56, 60)[m % 2]
            for k, g in enumerate(gs): s("v_mul_f32 v%d, v%d, v%d" % (48 + k, g, g))
            for k, g in enumerate(gs): s("v_fma_f32 v%d, v%d, v47, v46" % (48 + k, 48 + k))
            for k, g in enumerate(gs): s("v_mul_f32 v%d, v%d, v%d" % (48 + k, 48 + k, g))
            for k, g in enumerate(gs): s("v_exp_f32 v%d, v%d" % (48 + k, 48 + k))
            for k, g in enumerate(gs): s("v_mul_f32 v%d, v%d, v%d" % (g + 16, g, g + 16))
            for k, g in enumerate(gs): s("v_add_f32 v%d, 1.0, v%d" % (48 + k, 48 + k))
            for k, g in enumerate(gs): s("v_rcp_f32 v%d, v%d" % (48 + k, 48 + k))
            for k, g in enumerate(gs): s("v_mul_f32 v%d, v%d, v%d" % (g + 16, g + 16, 48 + k))
            for k in range(4): s("v_cvt_pk_bf16_f32 v%d, v%d, v%d" % (o + k, gs[2 * k] + 16, gs[2 * k] + 17))
            s.vm("buffer_store_dwordx4 %s, v1, s[32:35], s66 offen offset:%d %s" % (Q(o), 1024 * m, hst), ("hs", 0, m))
            for k in range(4): s("v_accvgpr_write_b32 a%d, v%d" % (aK0 + 4 * m + k, o + k))
        un = s.units()
        r = sc.stream(un, max(gS + 1, 4 * (28 * 18 + 16) + 2), 3, vmspace=2, overflow=True)
        left = un[len(r):]
        if cfg.get("verbose"): print("setup end", gS, "shadow gelu placed", len(r), "left", len(left))
    if cfg.get("stall"):
        for G in range(1, NG):
            if G % cfg["stall"] == 0 and len(sc.classes(4 * G - 1)) == 3: sc.put(4 * G - 1, [Op("s_nop 0")], 9)
    prog.add(sc.ops())
    vTA = 40
    s("s_barrier")
    stamp(s, "end1")
    s.u += left
    KD = [int(c, 36) for c in str(cfg.get("kd", "g088"))]
    CH2 = cfg.get("ch2", 1); nochain = [int(c) for c in str(cfg.get("ch2_skip", "1"))]
    assert all(k % 2 == 0 for k in KD)
    def sg2(st, ul):
        if CH2 and st not in nochain: return [(2 * st + kk, u) for u in ul for kk in range(2)]
        return [(2 * st + kk, u) for kk in range(2) for u in ul]
    groups = []
    for st in range(22): groups += sg2(st, [u for u in (range(8) if st < 14 else (2, 3, 4, 5, 6, 7, 0, 1)) if 2 * st < 44 - KD[u // 2]])
    pend_ = {}
    for d in (1, 2, 3, 0):
        for st in range(22 - KD[d] // 2, 22): groups += sg2(st, (2 * d, 2 * d + 1))
    for G, (uu, u) in enumerate(groups): pend_[u // 2] = G
    assert len(groups) == 352 and max(KD) <= 16
    NG = len(groups)
    mo, head, tail = order_mfma(groups)
    lastuse = {}; firstuse = {}
    for G, (uu, u) in enumerate(groups): firstuse.setdefault(uu, head(G)); lastuse[uu] = tail(G)
    hreg = {0: ("v", 48), 1: ("a", aK0), 2: ("a", aK1), 28: ("a", 32), 29: ("a", 48)}; hfree = {}
    pool = [(-1, ("a", r)) for r in [96, 112, 128, 144, 192, 208, 224, 160, 176, 64, 80] if r not in (aK0, aK1)] + [(4 * lastuse[u] + 3, hreg[u]) for u in (1, 2, 28, 29)]
    VFREE = cfg.get("vfree", 700)
    pool += [(VFREE, ("v", r)) for r in (64, 80, 96, 112)[:cfg.get("nvs", 4)]]
    for u in range(44):
        if u in own: continue
        pool.sort(key=lambda x: x[0]); e, r = pool.pop(0)
        hreg[u] = r; hfree[u] = e; pool.append((4 * lastuse[u] + 3, r))
    def hload(s, u, m, early=None):
        kind, x, p = steps[u]
        if m == 0:
            if kind == "g": s("s_add_u32 s%d, s%d, %d" % (sKH, sTQ[x], p * 4096))
            elif kind == "s": s("s_mov_b32 s%d, s%d" % (sKH, sTS[x]))
            else:
                part, pp = cst[x - 14]
                s("s_xor_b32 s%d, s%d, %d\ns_add_u32 s%d, s%d, s%d" % (sKH, sPar, ((28 if part == "r" else 36) + p) * 4096, sKH, sKH, sGp[pp]))
        hk, d = hreg[u]; d += 4 * m
        if kind == "s":
            s.op(Op("buffer_load_dwordx2 %s, v%d, s[32:35], s%d offen offset:%d" % (R(hk, d, 2), vH8, sKH, 1024 * m), "vm"), early)
            s.op(Op("buffer_load_dwordx2 %s, v%d, s[32:35], s%d offen offset:%d" % (R(hk, d + 2, 2), vH8, sKH, 1024 * m + 512), "vm", K(("H", u, m))))
        else: s.op(Op("buffer_load_dwordx4 %s, v1, s[32:35], s%d offen offset:%d" % (R(hk, d, 4), sKH, 1024 * m), "vm", K(("H", u, m))), early)
    def gelu_pair(base0, base1, pid, T, OUT, keep=None, hook=None, m0=0):
        for m in range(m0, 4):
            o = OUT[m % len(OUT)]
            items = [(base0 + 4 * m, base0 + 16 + 4 * m, o), (base0 + 4 * m + 2, base0 + 18 + 4 * m, o + 1),
                     (base1 + 4 * m, base1 + 16 + 4 * m, o + 2), (base1 + 4 * m + 2, base1 + 18 + 4 * m, o + 3)]
            gelu_block(s, items, CC, T)
            s.vm("buffer_store_dwordx4 %s, v1, s[32:35], s66 offen offset:%d %s" % (Q(o), 1024 * m, hst), ("hs", pid, m))
            if keep is not None:
                for r in range(4): s("v_accvgpr_write_b32 a%d, v%d" % (keep + 4 * m + r, o + r))
            if hook: hook(m)
        s("s_add_u32 s66, s66, 4096")
    NPRE2 = cfg.get("npre2", 8)
    cpre = [(st, k) for st in range(NPRE, NPRE2) for k in range(4)]
    def cdma(n):
        for _ in range(n):
            if cpre: st, k = cpre.pop(0); dma2(s, st, k)
    fstore = lambda off: "buffer_store_dword v%d, v1, s[36:39], s81 offen offset:%d %s" % (vTG, off, SC)
    fload = lambda off: "buffer_load_dword v%d, v%d, s[36:39], s68 offen offset:%d %s" % (vPD, vPAd, off, SC)
    s("v_mov_b32 v%d, s%d" % (vTG, sTAG))
    npg = cfg.get("cpre_g", 1)
    cdma(cfg.get("cpre_0", 4))
    gelu_pair(128, 160, 0, 48, [56, 60], aK0, lambda m: cdma(npg), m0=msh)
    def hook1(m):
        cdma(npg)
        if m == cfg.get("fa0_m", 1): flag(s, fstore(96), [("hs", 0, 3)])
    gelu_pair(192, 224, 1, 48, [56, 60], aK1, hook1)
    stamp(s, "p01")
    def pkfma(d, s0, s1, s2, T, neg=False):
        s("v_pk_fma_f32 %s, %s, %s, %s op_sel:[%d,0,0] op_sel_hi:[%d,1,1]%s" % (P(d), P(s0), P(s1), P(s2), T, T, " neg_lo:[1,0,0] neg_hi:[1,0,0]" if neg else ""))
    def pkmul(d, s0, s1, T, neg=False):
        s("v_pk_mul_f32 %s, %s, %s op_sel:[%d,0] op_sel_hi:[%d,1]%s" % (P(d), P(s0), P(s1), T, T, " neg_lo:[1,0] neg_hi:[1,0]" if neg else ""))
    BR = lambda T, x: 64 + 16 * T + 2 * x
    BI = lambda T, x: 96 + 16 * T + 2 * x
    for x in range(8):
        for T in range(2):
            pkmul(128 + 2 * T, cC + 2, BI(T, x), T, True); pkmul(BI(T, x), cC, BI(T, x), T, True)
        for T in range(2):
            pkfma(BI(T, x), cC + 2, BR(T, x), BI(T, x), T, True); pkfma(BR(T, x), cC, BR(T, x), 128 + 2 * T, T)
    sr = [BR(0, 0), BR(1, 0)]; si = [BI(0, 0), BI(1, 0)]
    bufs = [[132, 134], [138, 140]]; SI = [136, 142]
    for x in range(1, 8):
        nr = [bufs[T][x % 2] for T in range(2)]
        for T in range(2): pkfma(nr[T], cL, sr[T], BR(T, x), T)
        for T in range(2): pkfma(nr[T], cL + 2, si[T], nr[T], T, True)
        for T in range(2): pkfma(SI[T], cL, si[T], BI(T, x), T)
        for T in range(2): pkfma(SI[T], cL + 2, sr[T], SI[T], T)
        sr = nr; si = list(SI)
        if x % 2: cdma(1)
    EA = 20
    for T in range(2):
        s("v_mov_b32 v%d, v%d\nv_mov_b32 v%d, v%d\nv_mov_b32 v%d, v%d\nv_mov_b32 v%d, v%d" % (EA + T, sr[T], EA + 2 + T, si[T], 144 + T, sr[T] + 1, 146 + T, si[T] + 1))
    horner_pk(s, EA, cL8, 144, 144)
    s("v_add_u32 v%d, s46, v1\nv_and_b32 v%d, 0xf0, v1\nv_add_u32 v%d, s46, v%d" % (vEW, vER, vER, vER))
    s.lg("ds_write_b128 v%d, v[144:147]" % vEW)
    for g in range(4): s.lg("ds_read_b128 %s, v%d offset:%d" % (Q(148 + 4 * g), vER, 256 * g), ("e", g))
    HPN = cfg.get("hpn", 0)
    if HPN: s.vm(fload(96), "f3a0")
    for r in range(32):
        s("v_accvgpr_read_b32 v%d, a%d" % (192 + r, r))
        if r % 16 == 15: cdma(1)
    flag(s, fstore(0), [("hs", 1, 3)])
    for g in range(1, 4):
        s.wait([("e", g)]); horner_pk(s, 148 + 4 * (g - 1), cL16, 148 + 4 * g, 148 + 4 * g)
    for r in range(160, 164): s("v_min_u32 v%d, -2, v%d" % (r, r))
    s.atom(["s_mov_b64 exec, 0xffff", Op("buffer_store_dwordx4 v[160:163], v1, s[36:39], s64 offen %s" % SC, "vm"), "s_mov_b64 exec, -1"])
    stamp(s, "pub")
    poll(s, "P1b", f1bload, 44, "f1b")
    for r in range(32, 64):
        s("v_accvgpr_read_b32 v%d, a%d" % (192 + r, r))
        if r % 16 == 15: cdma(1)
    cdma(16)
    for r in range(32): s("v_accvgpr_read_b32 v%d, a%d" % (128 + r, aBS + r))
    hq = [(u, m) for u in range(3, UA) for m in range(4)][:HPN]; nh_pre = [3 + HPN // 4]
    assert HPN % 4 == 0
    def issue_h(n):
        for _ in range(n):
            if hq: hload(s, *hq.pop(0))
    hpb = cfg.get("hpb", 3)
    def hookA(m): issue_h(hpb)
    def tramp2():
        s("s_mov_b64 exec, 0")
        for w in range(1, 4): s("s_cmp_eq_u32 s%d, %d\ns_cbranch_scc1 L_trB%d" % (sW, w, w))
        s("s_branch L_trB0")
        s.atom(["L_trret2:"])
        s("s_mov_b64 exec, -1")
    if TRP >= 0 and cfg.get("tr2", 1): tramp2()
    if HPN:
        poll(s, "P3a0", fload(96), vPD, "f3a0"); stamp(s, "ok3a"); issue_h(hpb)
    gelu_pair(192, 224, 2, 168, [48, 52, 56, 60], None, hookA)
    for r in range(32): s("v_accvgpr_read_b32 v%d, a%d" % (192 + r, 64 + r))
    issue_h(hpb)
    for mp in range(2):
        o = 240 + 4 * mp; items = []
        for mm in range(2):
            m = 2 * mp + mm
            items += [(192 + 4 * m, 208 + 4 * m, o + 2 * mm), (194 + 4 * m, 210 + 4 * m, o + 2 * mm + 1)]
        gelu_block(s, items, CC, 168)
        if mp == 0:
            s("v_accvgpr_read_b32 v%d, a%d" % (vTA, PK["TA"]))
            for u in range(1, 6): s("v_xor_b32 v%d, %d, v%d" % (vTA + u, 32 * u, vTA))
        issue_h(hpb if mp == 0 else 99)
        if mp == 1 and not HPN: s.vm(fload(96), "f3a0")
        for mm in range(2):
            s.vm("buffer_store_dwordx2 %s, v%d, s[32:35], s67 offen offset:%d %s" % (P(o + 2 * mm), vH8, 1024 * (2 * mp + mm), hst), ("hsS", 2 * mp + mm))
        if mp == 0:
            s.wait([("D2", 0, k) for k in range(4)])
            s("s_barrier")
            pre_reads_at = len(s.u)
    for u in range(6, 8): s("v_xor_b32 v%d, %d, v%d" % (vTA + u, 32 * u, vTA))
    L2 = cfg.get("l2_lead", 4)
    def read2(G, part):
        uu, u = groups[G]; f = G % NWB
        if uu < 28:
            st, kk = divmod(uu, 2)
            return Op("ds_read_b64_tr_b16 %s, v%d offset:%d" % (R("a", aW2 + 4 * f + 2 * part, 2), vTA + u, (slot[st] % 4) * 16384 + kk * 8192 + part * 4096), "lg", K(("F2", G, part)))
        _, st, kk = steps[uu]
        return Op("ds_read_b128 %s, v%d offset:%d" % (R("a", aW2 + 4 * f, 4), vCA + 2 * (slot[st] >= 4) + kk, (slot[st] % 4) * 16384 + u * 2048), "lg", K(("F2", G, part)))
    parts = lambda G: [0, 1] if groups[G][0] < 28 else [None]
    mf = []
    for G, m in mo:
        uu, u = groups[G]
        mf.append(Op(mfma16(("v", 128 + 16 * u + 4 * m), ("a", aW2 + 4 * (G % NWB)), (hreg[uu][0], hreg[uu][1] + 4 * m), zero=(uu == 0 and u >= 2))))
    sc = Sch(mf)
    gneed = lambda G: [("F2", H, p) for H in range(G, tail(G) + 1) for p in parts(H)] + [("H", uu, m) for uu in range(44) if firstuse[uu] == G and uu not in own for m in range(4)]
    rgap = {}
    for G in range(NG):
        st, f = divmod(G, 16)
        if st < 14:
            if f <= 4: rgap[G] = 4 * (G - L2) - 1
            elif f == 5: rgap[G] = 4 * (G - 1 - L2) + 1
            elif f <= 10: rgap[G] = 4 * (G - 1 - L2) - 1
            elif f == 11: rgap[G] = 4 * (G - 2 - L2) + 1
            else: rgap[G] = 4 * (G - 2 - L2) - 1
        else: rgap[G] = 4 * (G - L2) - 1
        assert rgap[G] >= 4 * tail(G - NWB) + 3
    pr = Seq()
    for G in range(NG):
        if rgap[G] < 0:
            for p in parts(G): pr.op(read2(G, p))
    s.u[pre_reads_at:pre_reads_at] = pr.units()
    s.wait(gneed(0))
    stamp(s, "loop2")
    prog.add(s.done())
    for G in range(1, NG):
        w = Op("", needs=K(gneed(G))); w.keep = True
        sc.put(4 * G - 1, [w], 0)
    for G in range(NG):
        if rgap[G] >= 0:
            if rgap[G] % 4 != 3: sc.put(rgap[G], [Op("s_waitcnt lgkmcnt(15)")], 0)
            sc.put(rgap[G], [read2(G, p) for p in parts(G)], 1)
    bar = {}
    for st in range(14):
        bar[st] = 4 * (16 * (st + 1) - L2) - 2
        pub = [st + 1] if st < 13 else [14, 15, 16, 17]
        sc.put(bar[st], [Op("s_barrier", needs=K([("D2", x, k) for x in pub for k in range(4)]), drain=["lg"])], 0)
    for st in (3, 7, 11):
        for i_, g_ in enumerate((1, 2, 4, 5)):
            sc.put(bar[st] - g_, [Op("v_xor_b32 v%d, 0x10000, v%d" % (vTA + 2 * i_ + k, vTA + 2 * i_ + k)) for k in range(2)], 2)
        assert max(rgap[G] for G in range(16 * st, 16 * st + 16)) < bar[st] - 5
    barF = min(rgap[G] for G in range(NG) if groups[G][0] >= 36) - 1
    sc.put(barF, [Op("s_barrier", needs=K([("D2", x, k) for x in range(18, 22) for k in range(4)]))], 0)
    def mark(o, nm): o.u[-1].append(nm)
    def after(o, nm, n): o.u.append([[Op("")], lambda mk: (mk[nm] + n) if nm in mk else None])
    def dly(o, n): o.u.append([[Op("")], lambda mk: mk["_prev"] + n])
    gl = []
    t = Seq()
    t("v_accvgpr_read_b32 v%d, a%d\nv_accvgpr_read_b32 v%d, a%d\nv_accvgpr_read_b32 v%d, a%d" % (vAG, PK["AG"], vTRW, PK["TRW"], vTRR, PK["TRR"]))
    t("s_mov_b32 s40, s36\ns_mov_b32 s41, s37\ns_mov_b32 s42, 0x40000\ns_mov_b32 s43, 0x20000")
    t("v_lshrrev_b32 v8, 4, v0\nv_cmp_eq_u32 s[64:65], 1, v8\nv_cmp_eq_u32 s[66:67], 2, v8\nv_cmp_eq_u32 s[74:75], 3, v8")
    t.at(cfg.get("ag_gap", 32))
    for x in range(7, -1, -1):
        t("s_mov_b32 s57, %d" % (8192 * x))
        g = "buffer_load_dwordx4 %s, v%d, s[40:43], s57 offen %s" % (R("a", aAG + 4 * x, 4), vAG, SC)
        gl.append("s_mov_b32 s57, %d\n%s" % (8192 * x, g))
        t.vm(g, ("ag", x))
        if x: dly(t, cfg.get("ag_sp", 8))
    mark(t, "ag")
    srd(t, 8, 86, 87, 2048 * 4096)
    flag(t, fstore(32), [("hsS", 3)], early=cfg.get("fb_gap", 80)); mark(t, "flagb")
    after(t, "ag", cfg.get("ag_lat", 20)); t.at(4 * lastuse[0] + 4)
    def ag_horner(o, w):
        cur = None
        for x in range(7, -1, -1):
            q = 48 + 4 * (x % 2)
            if w: o.wait([("ag", x)])
            for r in range(4): o("v_accvgpr_read_b32 v%d, a%d" % (q + r, aAG + 4 * x + r))
            if not w: o(("v_max3_u32 v56, v%d, v%d, v%d\nv_max_u32 v56, v56, v%d" % (q, q + 1, q + 2, q + 3)) if x == 7 else ("v_max3_u32 v56, v56, v%d, v%d\nv_max3_u32 v56, v56, v%d, v%d" % (q, q + 1, q + 2, q + 3)))
            if cur is not None: horner_sc(o, cur, cL64, q)
            cur = q
    ag_horner(t, True)
    t("v_cmp_u_f32 s[70:71], v48, v49")
    t.atom(["v_cmp_u_f32 vcc, v50, v51", "s_or_b64 vcc, vcc, s[70:71]", "s_cbranch_scc1 PAG_retry", "PAG_ok:"])
    ool("PAG_retry:\n" + "\n".join(gl) + "\ns_waitcnt vmcnt(0)")
    ag_horner(ool, False)
    ool("v_cmp_eq_u32 vcc, -1, v56\ns_and_b64 vcc, vcc, exec\ns_cbranch_scc0 PAG_ok\ns_cmp_eq_u32 s79, 0\ns_cbranch_scc1 PAG_ok\ns_sub_u32 s79, s79, 1\ns_sleep 1\ns_branch PAG_retry")
    t.lg("ds_write_b128 v%d, v[48:51] offset:1024" % vEW)
    for g, r in ((3, 52), (2, 56), (1, 60)): t.lg("ds_read_b128 %s, v%d offset:%d" % (Q(r), vER, 1024 + 256 * g), ("s", g))
    t.lg("ds_read_b128 %s, v%d offset:1024" % (Q(48), vER), ("s", 0))
    dly(t, 8)
    t.wait([("s", 2)]); horner_sc(t, 52, cL512, 56)
    t.lg("ds_read_b128 %s, v%d" % (Q(52), vER), ("e2", 0))
    t.wait([("s", 1)]); horner_sc(t, 56, cL512, 60)
    t.lg("ds_read_b128 %s, v%d offset:256" % (Q(56), vER), ("e2", 1))
    t.wait([("s", 0)]); horner_sc(t, 60, cL512, 48)
    t.lg("ds_read_b128 %s, v%d offset:512" % (Q(60), vER), ("e2", 2))
    t.wait([("e2", 0)]); horner_sc(t, 48, cL16, 52)
    t.wait([("e2", 1)]); horner_sc(t, 52, cL16, 56)
    t.wait([("e2", 2)]); horner_sc(t, 56, cL16, 60)
    for g, sm in ((52, 64), (56, 66), (60, 74)):
        for r in range(4): t("v_cndmask_b32 v%d, v%d, v%d, s[%d:%d]" % (48 + r, 48 + r, g + r, sm, sm + 1))
    horner_sc(t, 48, cL8, EA)
    t("v_xor_b32 v52, 16, v%d" % vTRR)
    st_r = {(T, h): (48, EA)[h] + T for T in range(2) for h in range(2)}
    st_i = {(T, h): (48, EA)[h] + 2 + T for T in range(2) for h in range(2)}
    TH = [(T, h) for T in range(2) for h in range(2)]
    xs = Seq()
    for x in range(8):
        for (T, h) in TH: t("v_fmac_f32 v%d, v%d, v%d" % (BR(T, x) + h, cL + T, st_r[T, h]))
        for (T, h) in TH: t("v_fmac_f32 v%d, v%d, v%d" % (BI(T, x) + h, cL + T, st_i[T, h]))
        for (T, h) in TH: t("v_fma_f32 v%d, -v%d, v%d, v%d" % (BR(T, x) + h, cL + 2 + T, st_i[T, h], BR(T, x) + h))
        for (T, h) in TH: t("v_fmac_f32 v%d, v%d, v%d" % (BI(T, x) + h, cL + 2 + T, st_r[T, h]))
        for (T, h) in TH: st_r[T, h] = BR(T, x) + h; st_i[T, h] = BI(T, x) + h
        if x % 2 == 1:
            m = x // 2; mo = (m % 2) * 2048
            for part, Fn in enumerate((BR, BI)):
                for T in range(2):
                    o = 56 + 4 * part + 2 * T
                    t("v_cvt_pk_bf16_f32 v%d, v%d, v%d\nv_cvt_pk_bf16_f32 v%d, v%d, v%d" % (o, Fn(T, x - 1), Fn(T, x - 1) + 1, o + 1, Fn(T, x), Fn(T, x) + 1))
                    t.lg("ds_write_b64 v%d, %s offset:%d" % (vTRW, P(o), mo + part * 1024 + 512 * T))
                t.atom(["s_waitcnt lgkmcnt(15)"] + [Op("ds_read_b64_tr_b16 %s, v%d offset:%d" % (R("a", aAG + 16 * part + 4 * m + 2 * half, 2), (vTRR, 52)[half], mo + part * 1024 + 256 * half), "lg", K(("tr", m, part, half))) for half in range(2)])
                mark(t, ("tr", m, part))
                after(xs, ("tr", m, part), 10)
                if (m, part) != (0, 0) and m < 3: after(xs, ("hl", m - 1 + part, 1 - part), cfg.get("hl_sp", 24))
                xs.vm("buffer_store_dwordx4 %s, v1, s[32:35], s%d offen offset:%d %s" % (R("a", aAG + 16 * part + 4 * m, 4), 72 + part, 1024 * m, hst), ("hl", m, part), needs=[("tr", m, part, 1)])
                mark(xs, ("hl", m, part))
    dly(xs, cfg.get("fc_lat", 60))
    flag(xs, fstore(64), [("hl", 3, 1)]); mark(xs, "flagc")
    t("v_accvgpr_read_b32 v48, a%d\nv_accvgpr_read_b32 v%d, a%d" % (PK["C"], vCA, PK["CA"]))
    for k in range(4): t("s_xor_b32 s65, s%d, %d\ns_lshl_b32 s65, s65, 16\nv_add_u32 v%d, s65, v48" % (sQ, k, vC + k))
    t("s_and_b32 s65, s%d, 1\ns_lshl_b32 s65, s65, 6\nv_xor_b32 v%d, s65, v%d" % (sTN, vCA, vCA))
    t("v_xor_b32 v%d, 64, v%d\nv_add_u32 v%d, 0x10000, v%d\nv_xor_b32 v%d, 64, v%d" % (vCA + 1, vCA, vCA + 2, vCA, vCA + 3, vCA + 2))
    vOO = 28
    t("v_accvgpr_read_b32 v24, a%d\nv_accvgpr_read_b32 v25, a%d\nv_lshlrev_b32 v25, 2, v25\nv_lshl_add_u32 v%d, v24, 12, v25" % (PK["TOK"], PK["COL"], vOO))
    mark(t, "cready")
    RB = lambda u, m: 128 + 16 * u + 4 * m
    after(t, "flagc", 1)
    t("s_lshl_b32 s65, s%d, 3\ns_add_u32 s65, s65, s%d\ns_lshl_b32 s66, s65, 18\ns_lshl_b32 s67, s%d, 14\ns_add_u32 s66, s66, s67\ns_add_u32 s66, s66, 0x%x" % (sI, sTN, sW, WS_PART))
    t.atom(["s_add_u32 s40, s6, s66", "s_addc_u32 s41, s7, 0"])
    t("s_and_b32 s41, s41, 0xffff\ns_mov_b32 s42, 0x34000\ns_mov_b32 s43, 0x20000")
    t("s_lshl_b32 s69, s65, 2\ns_add_u32 s69, s69, s%d\ns_lshl_b32 s69, s69, 7\ns_add_u32 s69, s69, 0x%x" % (sW, SM_F4))
    for d in (1, 2, 3):
        t("s_xor_b32 s67, s%d, %d\ns_lshl_b32 s66, s67, 16\ns_add_u32 s%d, s66, %d" % (sQ, d, 72 + d, (d - 1) * 4096))
        t("s_lshl_b32 s67, s67, 4\ns_add_u32 s67, s67, %d\nv_mov_b32 v%d, s67" % (4 * d, 28 + d))
        t("s_lshl_b32 s67, s%d, 16\ns_add_u32 s%d, s67, %d" % (sQ, 69 + d, (d - 1) * 4096))
    t("s_lshl_b32 s67, s%d, 4\nv_and_b32 v32, 3, v0\nv_lshl_add_u32 v32, v32, 2, s67" % sQ)
    t("s_mov_b32 s57, 0\ns_mov_b32 s58, 8192\ns_mov_b32 s59, 16384\ns_mov_b32 s64, 24576")
    t("v_mov_b32 v34, 0x3f80\nv_mov_b32 v35, 0x3f800000")
    mark(t, "setup")
    f4store = lambda d: "buffer_store_dword v%d, v%d, s[36:39], s69 offen %s" % (vTG, 28 + d, SC)
    f4load = "buffer_load_dword v33, v32, s[36:39], s69 offen %s" % SC
    gp = lambda d: 4 * pend_[d] + 3 + 3
    RV = lambda d, m: 128 + 32 * d + 16 + 4 * m
    rload = lambda d, m: "buffer_load_dwordx4 %s, v1, s[40:43], s%d offen offset:%d %s" % (Q(RV(d, m)), 69 + d, 1024 * m, SC)
    NFI = cfg.get("nfi", 3); NRI = cfg.get("nri", 1)
    fs = Seq(); rs = Seq()
    for d in (1, 2, 3):
        t.at(gp(d))
        for m in range(4):
            A = 128 + 32 * d + 4 * m; Bq = A + 16
            t("v_cvt_pk_bf16_f32 v%d, v%d, v%d\nv_cvt_pk_bf16_f32 v%d, v%d, v%d\nv_cvt_pk_bf16_f32 v%d, v%d, v%d\nv_cvt_pk_bf16_f32 v%d, v%d, v%d" % (A, A, A + 1, A + 1, A + 2, A + 3, A + 2, Bq, Bq + 1, A + 3, Bq + 2, Bq + 3))
            mark(t, ("cv", d, m))
            after(xs, ("cv", d, m), 1)
            xs.vm("buffer_store_dwordx4 %s, v1, s[40:43], s%d offen offset:%d %s" % (Q(A), 72 + d, 1024 * m, SC), ("ps", d, m)); mark(xs, ("ps", d, m))
        if d <= NFI:
            after(fs, ("ps", d, 3), cfg.get("f4_lat", 44)); flag(fs, f4store(d), [("ps", d, 3)]); mark(fs, ("f4", d))
        if d <= NRI:
            after(rs, ("f4", d), cfg.get("p4_lat", 36)); rs.vm(f4load, ("f4l", d)); dly(rs, cfg.get("p4_rt", 40))
            poll(rs, "P4%d" % d, f4load, 33, ("f4l", d), mask=str(1 << d))
            for m in range(4):
                rs.vm(rload(d, m), ("pl", d, m)); mark(rs, ("pl", d, m))
    hs = Seq(); hdl = {}
    if not HPN: poll(hs, "P3a0", fload(96), vPD, "f3a0", early=cfg.get("pa_gap", 12))
    for u in range(nh_pre[0], 44):
        if u in own: continue
        for (U, nm, off, fl, lat) in ((UA, "P3a", 0, None, 0), (UB, "P3b", 32, "flagb", cfg.get("pb_lat", 80)), (UC, "P3c", 64, "flagc", cfg.get("pc_lat", 80))):
            if u == (max(U - 2, nh_pre[0]) if U != UC else U):
                if fl: after(hs, fl, lat)
                hs.vm(fload(off), nm); mark(hs, nm + "l")
            if u == U:
                after(hs, nm + "l", cfg.get("poll_rt", 44)); poll(hs, nm, fload(off), vPD, nm); mark(hs, nm)
        n0 = len(hs.u)
        for m in range(4): hload(hs, u, m, max(hfree[u], 4 * firstuse[u] - cfg.get("l2_la", 400)))
        for i in range(n0, len(hs.u)): hdl[i] = 4 * firstuse[u] - 1
        mark(hs, ("H", u))
    ds = Seq(); ddl = {}
    DL = lambda st: bar[st - 1] if st < 14 else (bar[13] if st < 18 else barF)
    for st in range(NPRE2, 22):
        n0 = len(ds.u)
        if st == "E":
            after(ds, "cready", 1); after(ds, ("hl", 3, 1), 1)
            for n in range(4):
                ds("s_mov_b32 s%d, %d\ns_add_u32 m0, s46, %d" % (sKD, 32768 * n, 2048 + 1024 * n))
                ds.vm("buffer_load_dwordx4 v26, s[24:27], s%d offen lds" % sKD)
            ds("s_add_u32 m0, s46, 6144"); ds.vm("buffer_load_dwordx4 v1, s[36:39], s59 offen lds")
            ds("s_add_u32 m0, s46, 7168"); ds.vm("buffer_load_dwordx4 v1, s[28:31], s58 offen lds", "Elast"); mark(ds, "edma")
            dl = 900
        else:
            if st == 14: after(ds, "cready", 1)
            for k in range(4): dma2(ds, st, k, bar[prevocc[st]] + 1 if st >= 8 else 0)
            dl = DL(st)
            mark(ds, ("D", st))
        for i in range(n0, len(ds.u)): ddl[i] = dl
    mk = multi(sc, [Stream("h", hs.units(), 2, deadline=lambda i: hdl.get(i, 0)), Stream("d", ds.units(), 2, deadline=lambda i: ddl.get(i, 0)),
                    Stream("x", xs.units(), 2), Stream("t", t.units(), 3, start=1), Stream("r", rs.units(), 2, deadline=lambda i: 0), Stream("f", fs.units(), 2, deadline=lambda i: -2)],
               cl=cfg.get("cl", 70), cs=cfg.get("cs", 240), B0=cfg.get("b0", 150), busy0=cfg.get("busy0", 300))
    sl = sorted([(4 * firstuse[u] - 1 - mk[("H", u)], "h", u) for u in range(nh_pre[0], 44) if u not in own] + [(DL(st) - mk[("D", st)], "d", st) for st in range(NPRE2, 22)])
    if cfg.get("verbose"):
        print("loop2 slacks", sl[:6], {k: v for k, v in mk.items() if isinstance(k, str)}, "hl", [mk[("hl", m, p)] for m in range(4) for p in range(2)], "ps", [mk[("ps", d, m)] for d in (1, 2, 3) for m in range(4)], "barF", barF, "f4", [mk.get(("f4", d)) for d in (1, 2, 3)], "pl", [mk.get(("pl", d, 3)) for d in (1, 2, 3)])
    assert sl[0][0] > cfg.get("minslack", 30), sl[:4]
    assert mk["cready"] < rgap[firstuse[28]] and mk[("hl", 3, 1)] < 4 * firstuse[28] - 1 and mk["setup"] < gp(1) and mk[("tr", 3, 1)] < VFREE
    for nm in names:
        if TS and nm[0] == "g" and nm[1:].isdigit():
            g_ = 4 * (16 * (int(nm[1:]) + 1) - L2) - 2
            sc.put(g_ - 1, [Op("s_memrealtime s[100:101]")], 5)
            sc.put(g_, [Op("s_waitcnt lgkmcnt(0)\nv_writelane_b32 v%d, s100, %d" % (vTS, names.index(nm)))], 5)
    if cfg.get("drop"):
        for g in range(cfg.get("drop_lo", 120), cfg.get("drop_hi", 600)):
            for it in sc.g[g]:
                o = it[2]
                if it[0] in (2, 3) and o.text and "\n" not in o.text and not o.text.endswith(":"):
                    c = opclass(o.text)
                    if it[0] == 2 and not (c == "X" and "x4" in o.text): continue
                    if c in cfg["drop"] and "cmp" not in o.text and not any(("v%d," % r) in o.text.split(None, 2)[1] + "," for r in range(16, 32)):
                        o.text = "s_nop 0" if cfg.get("dropnop") else ""
    prog.add(sc.ops())
    stamp(s, "end2")
    def addp(d, m):
        s.wait([("pl", d, m)])
        for k in range(8):
            r = RB(k // 4, m) + k % 4
            s("v_dot2_f32_bf16 v%d, v%d, v%d, v%d" % (r, RV(d, m) + k // 2, 34 + k % 2, r))
    for d in range(NFI + 1, 4): flag(s, f4store(d), [("ps", d, 3)])
    stamp(s, "drain4")
    s.vm(f4load, "f4")
    for d in range(1, NRI + 1):
        for m in range(4): addp(d, m)
    for d in range(NRI + 1, 4):
        poll(s, "P4%d" % d, f4load, 33, "f4", mask=str(1 << d))
        for m in range(4): s.vm(rload(d, m), ("pl", d, m))
    stamp(s, "poll4")
    for d in range(NRI + 1, 3):
        for m in range(4): addp(d, m)
    sM4 = [57, 58, 59, 64]
    for m in range(4):
        addp(3, m)
        stamp(s, "r%d" % m)
        s.vm("buffer_store_dwordx4 %s, v%d, s[8:11], s%d offen %s" % (Q(RB(0, m)), vOO, sM4[m], cfg.get("ost", SC)))
        s("s_nop 1")
        s.vm("buffer_store_dwordx4 %s, v%d, s[8:11], s%d offen offset:64 %s" % (Q(RB(1, m)), vOO, sM4[m], cfg.get("ost", SC)))
    prog.add(s.done())
    prog.emit(a)
    a("s_cmp_eq_u32 s%d, 31\ns_cbranch_scc0 L_noep\ns_cmp_eq_u32 s%d, 0\ns_cbranch_scc0 L_noep" % (sB, sJ))
    a("v_mov_b32 v40, 0x%x\ns_mov_b64 exec, 1\nbuffer_store_dword v%d, v40, s[36:39], 0 offen %s\ns_mov_b64 exec, -1" % (SM_EP, vTG, SC))
    a("L_noep:")
    if TS:
        a("s_waitcnt vmcnt(0)\ns_memrealtime s[100:101]\ns_waitcnt lgkmcnt(0)\nv_writelane_b32 v%d, s100, %d" % (vTS, len(names) - 1))
        a("s_cmp_lg_u32 s%d, %d\ns_cbranch_scc1 L_end" % (sW, cfg.get("tsw", 0)))
        if cfg.get("leak"):
            A, B = cfg["leak"].split(":")
            a("s_cmp_lg_u32 s2, %d\ns_cbranch_scc1 L_end" % cfg.get("leakwg", 100))
            a("v_readlane_b32 s64, v%d, %d\nv_readlane_b32 s65, v%d, %d\ns_nop 4\ns_sub_u32 s64, s65, s64\ns_mul_i32 s64, s64, %d\ns_min_u32 s64, s64, 200000" % (vTS, names.index(A), vTS, names.index(B), cfg.get("leakk", 8)))
            a("L_leak:\ns_memrealtime s[66:67]\ns_waitcnt lgkmcnt(0)\ns_sub_u32 s66, s66, s100\ns_cmp_lt_u32 s66, s64\ns_cbranch_scc1 L_leak")
        ws_srd(a, 12, WS_TS, 16384)
        a("s_lshl_b32 s75, s2, 6\nv_lshlrev_b32 v1, 2, v0\ns_mov_b64 exec, 0xffff\nbuffer_store_dword v%d, v1, s[12:15], s75 offen" % vTS)
    a("L_end:")
    a("s_endpgm")
    a.lines += ool.lines
    a("L_codeend:")
    return name, a

def inst_sizes(lines):
    import subprocess, tempfile, os, re
    d = tempfile.mkdtemp()
    und = sorted(set(re.findall(r"L_trB?\d+\b", "\n".join(lines))))
    open(d + "/a.s", "w").write('.amdgcn_target "amdgcn-amd-amdhsa--gfx950"\n' + "\n".join(l for l in lines if not l.startswith(".p2align 12")) + "\n" + "".join(u + ":\n" for u in und))
    subprocess.check_call(["clang", "-x", "assembler", "-target", "amdgcn-amd-amdhsa", "-mcpu=gfx950", "-c", d + "/a.s", "-o", d + "/a.o"])
    o = subprocess.check_output(["llvm-objdump", "-d", "--mcpu=gfx950", d + "/a.o"], text=True)
    sz = [4 * len(m.group(1).split()) for m in re.finditer(r"// [0-9A-F]+: ([0-9A-F ]+)", o)]
    n = sum(1 for l in lines if parse(l))
    assert n == len(sz), (n, len(sz))
    return sz

def add_stubs(lines, cfg):
    NL = 1; step = cfg.get("tr_step", 128)
    sz = iter(inst_sizes(lines)); size = [next(sz) if parse(l) else 0 for l in lines]
    i0 = lines.index("L_main:"); iend = lines.index("L_end:")
    out = lines[:i0 + 1]; off = 0; targets = [4096 * p + step * k for p in range(0, 40) for k in range(NL)]
    n = 0; pos = []
    def penalty(i):
        if not lines[i - 1].startswith("v_mfma"): return 0 if not any(l.startswith("v_mfma") for l in lines[max(0, i - 6):i + 6]) else 1
        j = i; c = ["S"]
        while not lines[j].startswith("v_mfma") and j - i < 8:
            try: c.append(opclass(lines[j]))
            except AssertionError: return 0
            j += 1
        t = gap_time(c)
        return 0 if (t is not None and t <= 16) else 1
    for i in range(i0 + 1, len(lines)):
        if i < iend and size[i] and off >= targets[n] and (penalty(i) == 0 or off + size[i] > targets[n] + 56):
            out.append("L_tr%d:" % n); out.append(("STUB", n)); off += 4; n += 1
        out.append(lines[i]); off += size[i]
    n1 = min(n, cfg.get("tr_n", 12))
    res = []
    for l in out:
        if isinstance(l, tuple):
            k = l[1]; nx = k + 4
            if k < n1: res.append("s_cbranch_execz %s" % ("L_tr%d" % nx if nx < n1 else "L_trret"))
            elif cfg.get("tr2", 1): res.append("s_cbranch_execz %s" % ("L_tr%d" % nx if nx < n else "L_trret2"))
            else: res.append("s_nop 0")
        elif "L_trB" in l:
            k = n1 + int(l[-1]); res.append(l.replace("L_trB" + l[-1], "L_tr%d" % k if k < n else "L_trret2"))
        else: res.append(l)
    if cfg.get("verbose"): print("pages", n)
    return res

def build(cfg):
    name, a = gen(cfg)
    hdr = open("cdna_kernels/%s.s.ref" % NAME).read().split("; Override launch")[0]
    out = hdr + "; @launch grid=(256,1,1) block=(256,1,1) lds=163840\n"
    out += '.amdgcn_target "amdgcn-amd-amdhsa--gfx950"\n'
    lines = pad_hazards([l for l in a.lines if l], cfg.get("verbose", 0) > 1)
    if cfg.get("tramp", 1): lines = add_stubs(lines, cfg)
    if cfg.get("verbose"): print(gap_report(lines))
    if cfg.get("lsc"): lines = [l.replace("sc0 sc1", cfg["lsc"]) if l.startswith("buffer_load") else l for l in lines]
    la = cfg.get("laux"); da = cfg.get("daux")
    if la: lines = [l + " " + la if (l.startswith("buffer_load_dwordx4 a[") and "sc1" not in l) else l for l in lines]
    if da: lines = [l.replace(" lds", " %s lds" % da) if l.endswith(" lds") else l for l in lines]
    out += "\n".join(lines) + "\n"
    if cfg.get("cyc"): out = out.replace("s_memrealtime", "s_memtime")
    b = Asm(); kernel_desc(b, name, 512, accum=256); out += b.text()
    return out

if __name__ == "__main__":
    cfg = {}
    for kv in sys.argv[2:]:
        k, v = kv.split("=")
        try: v = int(v)
        except ValueError:
            try: v = float(v)
            except ValueError: v = v.replace("+", " ")
        cfg[k] = v
    open(sys.argv[1], "w").write(build(cfg))
```

```python
import sys, math, struct
from asmlib import *

NAME = "parallel_sum__ssm_conv_s5__glu_gated_geglu__prompt"
KX, KLRE, KLIM, KBRE, KBIM, KCRE, KCIM, KLDT, KDSK, KBX, KWG, KWU, KWD, KOUT, KDBG, KWS = [8 * i for i in range(16)]
WS_XN = 0
WS_H = 0x400000
H_BLK = 176 * 4096
WS_SM = 0x1A00000
SM_AG = 0; SM_ST = 0x40000; SM_EP = 0x48000; SM_F1 = 0x50000; SM_F1B = 0x60000; SM_F3 = 0x70000; SM_F4 = 0xB0000; SM_SIZE = 0xF0000
WS_TS = 0x1B00000
WS_PART = 0x2000000
NSTAMPS = [16]
SPLIT_LAYOUT = True
XN_DIRECT = 0
STAMPS = []

def f2u(x): return struct.unpack("<I", struct.pack("<f", x))[0]
def fx(x): return "0x%08x" % f2u(x)
P = lambda r: "v[%d:%d]" % (r, r + 1)
Q = lambda r: "v[%d:%d]" % (r, r + 3)
LOG2E = 1.4426950408889634
K = lambda v: (lambda it: v)

def ws_srd(a, r, off, size):
    a("s_add_u32 s%d, s6, 0x%x\ns_addc_u32 s%d, s7, 0\ns_and_b32 s%d, s%d, 0xffff\ns_mov_b32 s%d, 0x%x\ns_mov_b32 s%d, 0x20000" % (r, off, r + 1, r + 1, r + 1, r + 2, size, r + 3))

def mfma16(d, A, B, zero=False):
    return "v_mfma_f32_16x16x32_bf16 %s, %s, %s, %s" % (R(d[0], d[1], 4), R(A[0], A[1], 4), R(B[0], B[1], 4), "0" if zero else R(d[0], d[1], 4))

def cmul_pk(a, dr, di, ar, ai, br, bi, t):
    a("v_pk_mul_f32 %s, %s, %s" % (P(t), P(ai), P(bi)))
    a("v_pk_fma_f32 %s, %s, %s, %s neg_lo:[0,0,1] neg_hi:[0,0,1]" % (P(t), P(ar), P(br), P(t)))
    a("v_pk_mul_f32 %s, %s, %s" % (P(t + 2), P(ar), P(bi)))
    a("v_pk_fma_f32 %s, %s, %s, %s" % (P(di), P(ai), P(br), P(t + 2)))
    a("v_mov_b32 v%d, v%d\nv_mov_b32 v%d, v%d" % (dr, t, dr + 1, t + 1))

def horner_pk(a, s, L, e, d):
    a("v_pk_fma_f32 %s, %s, %s, %s" % (P(d), P(L), P(s), P(e)))
    a("v_pk_fma_f32 %s, %s, %s, %s" % (P(d + 2), P(L), P(s + 2), P(e + 2)))
    a("v_pk_fma_f32 %s, %s, %s, %s neg_lo:[1,0,0] neg_hi:[1,0,0]" % (P(d), P(L + 2), P(s + 2), P(d)))
    a("v_pk_fma_f32 %s, %s, %s, %s" % (P(d + 2), P(L + 2), P(s), P(d + 2)))

def horner_sc(a, s, L, e):
    for T in range(2):
        a("v_fmac_f32 v%d, v%d, v%d" % (e + T, L + T, s + T)); a("v_fmac_f32 v%d, v%d, v%d" % (e + 2 + T, L + T, s + 2 + T))
    for T in range(2):
        a("v_fma_f32 v%d, -v%d, v%d, v%d" % (e + T, L + 2 + T, s + 2 + T, e + T)); a("v_fmac_f32 v%d, v%d, v%d" % (e + 2 + T, L + 2 + T, s + T))

def gelu_block(a, items, CC, T):
    for k, (g, u, o) in enumerate(items): a("v_pk_mul_f32 %s, %s, %s" % (P(T + 2 * k), P(g), P(g)))
    for k, (g, u, o) in enumerate(items): a("v_pk_fma_f32 %s, %s, %s, %s op_sel:[0,1,0] op_sel_hi:[1,1,0]" % (P(T + 2 * k), P(T + 2 * k), P(CC), P(CC)))
    for k, (g, u, o) in enumerate(items): a("v_pk_mul_f32 %s, %s, %s" % (P(T + 2 * k), P(T + 2 * k), P(g)))
    for k, (g, u, o) in enumerate(items):
        a("v_exp_f32 v%d, v%d" % (T + 2 * k, T + 2 * k)); a("v_exp_f32 v%d, v%d" % (T + 2 * k + 1, T + 2 * k + 1))
        a("v_pk_mul_f32 %s, %s, %s" % (P(u), P(g), P(u)))
    for k, (g, u, o) in enumerate(items): a("v_pk_add_f32 %s, %s, 1.0 op_sel_hi:[1,0]" % (P(T + 2 * k), P(T + 2 * k)))
    for k, (g, u, o) in enumerate(items):
        a("v_rcp_f32 v%d, v%d" % (T + 2 * k, T + 2 * k)); a("v_rcp_f32 v%d, v%d" % (T + 2 * k + 1, T + 2 * k + 1))
    for k, (g, u, o) in enumerate(items): a("v_pk_mul_f32 %s, %s, %s" % (P(u), P(u), P(T + 2 * k)))
    for k, (g, u, o) in enumerate(items): a("v_cvt_pk_bf16_f32 v%d, v%d, v%d" % (o, u, u + 1))

class Seq:
    def __init__(self): self.u = []
    def __call__(self, s):
        for l in s.split("\n"):
            l = l.strip()
            assert not l.startswith(("buffer_", "global_", "ds_")), ("uncounted memory op", l)
            self.u.append([[Op(l)], None])
    def atom(self, ops, early=None): self.u.append([[o if isinstance(o, Op) else Op(o) for o in ops], early])
    def vm(self, text, tag=None, needs=None, early=None):
        if needs: self.wait(needs, early=early); early = None
        self.u.append([[Op(text, "vm", K(tag) if tag is not None else None)], early])
    def lg(self, text, tag=None, needs=None):
        if needs: self.wait(needs)
        self.u.append([[Op(text, "lg", K(tag) if tag is not None else None)], None])
    def wait(self, needs, drain=None, early=None): self.u.append([[Op("", needs=K(needs) if needs else None, drain=drain)], early])
    def op(self, o, early=None): self.u.append([[o], early])
    def delay(self, n):
        self._d = n; i = len(self.u) - 1
        self.u.append([[Op("")], lambda res, n=n: res[-1] + n])
    def at(self, g): self.u.append([[Op("")], g])
    def done(self):
        o = [x for un, _ in self.u for x in un]; self.u = []; return o
    def units(self):
        u = self.u; self.u = []; return u

def order_mfma(groups):
    ch = [groups[2 * p][1] == groups[2 * p + 1][1] for p in range(len(groups) // 2)]
    out = []; up = True
    for p, c in enumerate(ch):
        if c:
            for m in (range(4) if up else range(3, -1, -1)): out += [(2 * p, m), (2 * p + 1, m)]
            up = not up
        else:
            for G in (2 * p, 2 * p + 1):
                out += [(G, m) for m in (range(4) if up else range(3, -1, -1))]; up = not up
    return out, (lambda G: G & ~1 if ch[G // 2] else G), (lambda G: G | 1 if (G >= 0 and ch[G // 2]) else G)

W_ST = 28672; U_OFF = 14336
B_BASE = 131072; B_ST = 8192
LN_LDS = 65536 + W_ST

def gen(cfg):
    name = NAME + "_kernel"
    a = Asm(); kernel_header(a, name)
    ool = Asm()
    TS = cfg.get("ts")
    names = ["start"] + cfg.get("stamps", "flag1 poll1 loop1 end1 p01 pub loop2 end2 poll4").split() + ["end"]
    STAMPS[:] = names; NSTAMPS[0] = len(names)
    vTS = 15
    def stamp(s, nm):
        if TS and nm in names: s.atom(["s_memrealtime s[100:101]", "s_waitcnt lgkmcnt(0)", "v_writelane_b32 v%d, s100, %d" % (vTS, names.index(nm))])
    SC = cfg.get("sc", "sc0 sc1")
    FS = cfg.get("f1s", 128)
    prog = Prog(); s = Seq()
    sJ, sI, sW, sB, sQ, sTN, sTAG = 60, 61, 62, 63, 52, 53, 3
    sMW, sM3, sMB, sKW, sKB, sKX, sCNT = 54, 55, 56, 57, 58, 59, 81
    sPAs, sKPA, sKPB, sPBs = 76, 77, 78, 80
    def poll(s, nm, loadtext, dst, tagneed, mask=None, early=None):
        s.wait([tagneed], early=early)
        s.atom(["%s_chk:" % nm, "v_cmp_ne_u32 vcc, s%d, v%d" % (sTAG, dst), "s_and_b64 vcc, vcc, %s" % (mask or "exec"), "s_cbranch_scc1 %s_retry" % nm, "%s_ok:" % nm])
        ool("%s_retry:\ns_cmp_eq_u32 s79, 0\ns_cbranch_scc1 %s_ok\ns_sub_u32 s79, s79, 1\ns_sleep %d\n%s\ns_waitcnt vmcnt(0)\ns_branch %s_chk" % (nm, nm, cfg.get("psl", 1), loadtext, nm))
    def flag(s, text, needs, early=None):
        s.wait(needs, early=early)
        s.atom(["s_mov_b64 exec, %d" % (15 if "x4" in text else 1), Op(text, "vm"), "s_mov_b64 exec, -1"])

    s("s_cmp_ge_u32 s2, 256\ns_cbranch_scc1 L_end")
    if TS: s("s_memrealtime s[100:101]")
    CP = cfg.get("cpf", 1)
    s("s_load_dwordx2 s[4:5], s[0:1], %d" % KX)
    s("s_load_dwordx2 s[6:7], s[0:1], %d" % KWS)
    s("s_load_dwordx4 s[12:15], s[0:1], %d" % KWG)
    s("s_load_dwordx4 s[24:27], s[0:1], %d" % KBRE)
    s("s_load_dwordx4 s[96:99], s[0:1], %d" % KLRE)
    s("s_load_dwordx4 s[92:95], s[0:1], %d" % KLDT)
    s("s_load_dwordx4 s[84:87], s[0:1], %d" % KWD)
    s("s_load_dwordx4 s[88:91], s[0:1], %d" % KCRE)
    if CP:
        s("s_getpc_b64 s[82:83]")
        s.atom(["L_pc:"])
        s("s_lshr_b32 s64, s2, 3\ns_mul_i32 s64, s64, 28\nv_add_u32 v3, s64, v0\nv_cmp_gt_u32 vcc, 64, v0\nv_cndmask_b32 v2, v3, v0, vcc\nv_lshlrev_b32 v2, 7, v2")
        s("v_min_u32 v2, L_codeend-L_pc-4, v2\nv_mov_b32 v3, 0\nv_lshl_add_u64 v[2:3], v[2:3], 0, s[82:83]")
        s("v_cmp_gt_u32 vcc, 92, v0\ns_and_saveexec_b64 s[66:67], vcc\ns_cbranch_execz L_nocp")
        s.atom([Op("global_load_dword a246, v[2:3], off")])
        s.atom(["L_nocp:", "s_mov_b64 exec, -1"])
    s("v_lshrrev_b32 v1, 6, v0\nv_and_b32 v0, 63, v0")
    s("v_readfirstlane_b32 s%d, v1" % sW)
    s("v_lshlrev_b32 v1, 4, v0")
    s("s_mov_b32 s79, 0x40000")
    s("s_bfe_u32 s%d, s2, 0x20001" % sQ)
    s("s_and_b32 s64, s2, 1\ns_lshl_b32 s64, s64, 2\ns_lshr_b32 s%d, s2, 6\ns_add_u32 s%d, s%d, s64" % (sI, sI, sI))
    s("s_bfe_u32 s%d, s2, 0x30003" % sTN)
    s("s_lshl_b32 s%d, s%d, 3\ns_add_u32 s%d, s%d, s%d" % (sJ, sQ, sJ, sJ, sTN))
    s("s_lshl_b32 s%d, s%d, 2\ns_add_u32 s%d, s%d, s%d" % (sB, sI, sB, sB, sW))
    s("s_and_b32 s64, s2, 1\ns_lshl_b32 s64, s64, 1\ns_lshr_b32 s65, s%d, 1\ns_add_u32 s64, s64, s65\ns_lshl_b32 s64, s64, 4" % sW)
    s("s_lshl_b32 s65, s%d, 1\ns_add_u32 s64, s64, s65" % sQ)
    s("s_lshr_b32 s66, s2, 3\ns_lshl_b32 s65, s66, 6\ns_add_u32 s64, s64, s65")
    s("s_lshl_b32 s67, s64, 11\ns_and_b32 s68, s%d, 1\ns_lshl_b32 s65, s68, 8\ns_add_u32 s67, s67, s65" % sW)
    LQ = cfg.get("lq", 1)
    if LQ: s("v_and_b32 v48, 15, v0\nv_bfe_u32 v56, v0, 1, 1\nv_and_b32 v57, 1, v0\nv_lshl_add_u32 v56, v57, 3, v56\nv_lshrrev_b32 v57, 2, v0\nv_lshlrev_b32 v40, 11, v56\nv_lshl_add_u32 v40, v57, 4, v40")
    else: s("v_and_b32 v48, 15, v0\nv_lshrrev_b32 v56, 5, v0\nv_bfe_u32 v57, v0, 4, 1\nv_lshl_add_u32 v56, v57, 3, v56\nv_lshlrev_b32 v40, 11, v56\nv_lshl_add_u32 v40, v48, 4, v40")
    s("s_mov_b32 s10, %d\ns_mov_b32 s11, 0x20000" % (2048 * 2048))
    s("s_waitcnt lgkmcnt(0)")
    if TS: s("v_writelane_b32 v%d, s100, 0" % vTS)
    stamp(s, "karg")
    s("s_mov_b32 s8, s4\ns_and_b32 s9, s5, 0xffff")
    for q in range(4): s.vm("buffer_load_dwordx4 %s, v40, s[8:11], s67 offen offset:%d" % (Q(64 + 4 * q), 512 * q), ("x", q))
    s("s_add_u32 s70, s6, 0x%x\ns_addc_u32 s71, s7, 0" % (WS_SM + SM_EP))
    s("s_load_dword s%d, s[70:71], 0" % sTAG)
    srd(s, 16, 14, 15, 1024 * 7168); srd(s, 12, 12, 13, 1024 * 7168)
    srd(s, 28, 26, 27, 1024 * 2048); srd(s, 24, 24, 25, 1024 * 2048)
    s("s_cmp_ge_u32 s%d, 2" % sW)
    s("s_cselect_b32 s20, s16, s12\ns_cselect_b32 s21, s17, s13\ns_mov_b32 s22, %d\ns_mov_b32 s23, 0x20000" % (1024 * 7168))
    ws_srd(s, 36, WS_SM, SM_SIZE)
    s("v_lshrrev_b32 v49, 4, v0")
    WGF = 1; vP1 = 63
    s("v_and_b32 v60, 31, v0\nv_lshlrev_b32 v60, 2, v60\ns_lshl_b32 s81, s%d, 7\ns_add_u32 s81, s81, 0x%x" % (sB, SM_F1B))
    s("v_and_b32 v63, 7, v0\nv_lshlrev_b32 v63, 6, v63\ns_lshl_b32 s75, s%d, 11\ns_lshl_b32 s65, s%d, 9\ns_add_u32 s75, s75, s65\ns_add_u32 s75, s75, 0x%x" % (sB, sQ, SM_F1))
    FT = cfg.get("ftouch", 0)
    if FT & 4: s.vm("buffer_load_dword a246, v63, s[36:39], s75 offen %s" % SC)
    if FT & 1: s.vm("buffer_load_dword a246, v60, s[36:39], s81 offen %s" % SC)
    s("v_mov_b32 v41, -1\nv_lshlrev_b32 v42, 2, v0\ns_xor_b32 s69, s2, 0xf8\ns_lshl_b32 s69, s69, 10\ns_lshl_b32 s65, s%d, 8\ns_add_u32 s69, s69, s65" % sW)
    s.vm("buffer_store_dword v41, v42, s[36:39], s69 offen %s" % SC, "agfill")
    vWA, vBA0, vBA1, vWA2, vW0, vW3, vB, vJ, vPA, vPB = 2, 3, 4, 5, 6, 9, 10, 12, 13, 14
    s("s_lshl_b32 s70, s66, 1\ns_and_b32 s65, s2, 1\ns_add_u32 s70, s70, s65")
    s("s_mul_i32 s69, s70, 7168\ns_mul_i32 s65, s%d, 1792\ns_add_u32 s69, s69, s65\nv_and_b32 v40, 31, v0\nv_min_u32 v40, 13, v40\nv_lshl_add_u32 v44, v40, 7, s69" % sQ)
    s("v_and_b32 v45, 3, v0\ns_lshl_b32 s69, s%d, 8\ns_lshl_b32 s65, s70, 2\ns_add_u32 s69, s69, s65\nv_add_u32 v45, s69, v45\nv_lshlrev_b32 v45, 11, v45" % sQ)
    if cfg.get("pfd"):
        n_ = cfg["pfd"]
        s("s_and_b32 s65, s2, 1\ns_mul_i32 s69, s65, %d\ns_add_u32 s69, s69, 7168\ns_mul_i32 s65, s65, %d\ns_add_u32 s65, s65, 8192\nv_cmp_gt_u32 vcc, 32, v0" % (-2 * 7168, -2 * 8192))
        s("v_mov_b32 v40, s69\nv_mov_b32 v43, %d\nv_cndmask_b32 v40, v40, v43, vcc\nv_add_u32 v44, v44, v40\nv_mov_b32 v40, s65\nv_mov_b32 v43, %d\nv_cndmask_b32 v40, v40, v43, vcc\nv_add_u32 v45, v45, v40" % (n_ * 64 * 7168, n_ * 128))
    s("s_mov_b32 s69, %d\ns_cmp_ge_u32 s%d, 2\ns_cselect_b64 vcc, -1, 0\nv_cndmask_b32 v%d, v44, v45, vcc\ns_cselect_b32 s%d, 128, s69" % (64 * 7168, sW, vPA, sPAs))
    s("s_cselect_b32 s40, s24, s12\ns_cselect_b32 s41, s25, s13\ns_cselect_b32 s69, s28, s16\ns_cselect_b32 s65, s29, s17\ns_cselect_b32 s42, s26, s14")
    s("s_bitcmp1_b32 s%d, 0\ns_cselect_b32 s40, s69, s40\ns_cselect_b32 s41, s65, s41\ns_mov_b32 s43, 0x20000\ns_mov_b32 s%d, 0" % (sW, sKPA))
    def pfa(s):
        s.vm("buffer_load_dword a246, v%d, s[40:43], s%d offen" % (vPA, sKPA)); s("s_add_u32 s%d, s%d, s%d" % (sKPA, sKPA, sPAs))
    def pfb(s):
        s.vm("buffer_load_dword a246, v%d, s[44:47], s%d offen" % (vPB, sKPB)); s("s_add_u32 s%d, s%d, s%d" % (sKPB, sKPB, sPBs))
    if cfg.get("pf_skip0"): s("s_mov_b32 s%d, s%d" % (sKPA, sPAs))
    if cfg.get("pfd"): s("s_mov_b32 exec_lo, 0")
    for _ in range(cfg.get("pf_t0", 3) - cfg.get("pf_skip0", 0)): pfa(s)
    if cfg.get("pfd"): s("s_mov_b64 exec, -1\ns_mul_i32 s%d, s%d, %d" % (sKPA, sPAs, cfg.get("pf_t0", 3) - cfg["pfd"]))
    s("s_and_b32 s71, s%d, 1\ns_lshl_b32 s71, s71, 1\ns_mul_i32 s72, s%d, 224\ns_and_b32 s73, s%d, 1\ns_add_u32 s73, s73, 12" % (sJ, sJ, sW))
    for k in range(4):
        if k < 3: s("s_add_u32 s69, s%d, %d\ns_lshl_b32 s69, s69, 6" % (sW, 4 * k))
        else: s("s_lshl_b32 s69, s73, 6")
        s("v_add_u32 v40, s69, v0\nv_mul_u32_u24 v44, 4682, v40\nv_lshrrev_b32 v44, 16, v44\nv_mul_u32_u24 v45, 14, v44\nv_sub_u32 v45, v40, v45")
        s("v_add_u32 v45, s71, v45\nv_subrev_u32 v43, 14, v45\nv_min_u32 v45, v45, v43")
        s("v_lshrrev_b32 v43, 1, v44\nv_xor_b32 v43, v43, v44\nv_and_b32 v43, 4, v43\nv_mul_u32_u24 v43, 3, v43\nv_xor_b32 v44, v44, v43")
        s("v_mul_u32_u24 v44, 7168, v44\nv_lshl_add_u32 v44, v45, 4, v44\nv_add_u32 v%d, s72, v44" % (vW0 + k))
    s("v_lshrrev_b32 v50, 3, v0\ns_lshl_b32 s69, s%d, 3\nv_add_u32 v40, s69, v50\nv_bfe_u32 v44, v40, 1, 3\nv_and_b32 v51, 7, v0\nv_xor_b32 v44, v44, v51" % sW)
    s("v_lshlrev_b32 v47, 11, v40\nv_lshl_add_u32 v47, v44, 4, v47")
    s("s_lshl_b32 s69, s%d, 16\nv_add_u32 v%d, s69, v47" % (sJ, vB))
    s("s_lshl_b32 s%d, s%d, 10\ns_lshl_b32 s%d, s73, 10" % (sMW, sW, sM3))
    s("s_cmp_ge_u32 s%d, 2\ns_cselect_b32 s69, %d, 0\ns_add_u32 s%d, s%d, s69\ns_add_u32 s%d, s%d, %d" % (sW, U_OFF, sM3, sM3, sMB, sMW, B_BASE))
    s("s_lshl_b32 s65, s%d, 9\ns_add_u32 s65, s65, 57344\nv_lshl_add_u32 v52, v0, 3, s65\nv_xor_b32 v54, 512, v52" % sW)
    if LQ: s("v_lshlrev_b32 v55, 12, v49\nv_lshrrev_b32 v44, 2, v48\nv_lshl_add_u32 v55, v44, 8, v55\nv_and_b32 v44, 48, v1\nv_add_u32 v55, v55, v44")
    else: s("v_lshrrev_b32 v55, 2, v48\nv_lshlrev_b32 v55, 12, v55\nv_and_b32 v44, 3, v0\nv_lshl_add_u32 v55, v44, 8, v55\nv_lshl_add_u32 v55, v49, 4, v55")
    s("s_lshl_b32 s70, s66, 17\ns_lshl_b32 s67, s%d, 10\ns_add_u32 s70, s70, s67\ns_and_b32 s67, s2, 1\ns_lshl_b32 s67, s67, 7\ns_add_u32 s70, s70, s67" % sQ)
    s("s_lshr_b32 s67, s%d, 1\ns_lshl_b32 s67, s67, 6\ns_add_u32 s70, s70, s67\ns_lshl_b32 s67, s68, 14\ns_add_u32 s70, s70, s67" % sW)
    s("s_add_u32 s71, s70, 32768\ns_add_u32 s72, s70, 65536\ns_add_u32 s73, s70, 98304")
    s("s_lshl_b32 s74, s2, 7\ns_lshr_b32 s67, s%d, 1\ns_lshl_b32 s67, s67, 6\ns_add_u32 s74, s74, s67\ns_add_u32 s74, s74, 0x%x" % (sW, SM_ST))
    ws_srd(s, 48, WS_XN, 0x400000)
    dma_items = [(vW0, 12, sKW, sMW, 0), (vW0 + 1, 12, sKW, sMW, 4096), (vW0 + 2, 12, sKW, sMW, 8192), (vW3, 20, sKW, sM3, 0),
                 (vW0, 16, sKW, sMW, U_OFF), (vW0 + 1, 16, sKW, sMW, U_OFF + 4096), (vW0 + 2, 16, sKW, sMW, U_OFF + 8192),
                 (vB, 24, sKB, sMB, 0), (vB, 28, sKB, sMB, 4096)]
    def dma1(s, st, k, early=None):
        v, sr, so, mb, off = dma_items[k]
        isb = mb == sMB
        base = ((st >> 1) & 1) * (16384 if isb else 65536) + (st & 1) * (B_ST if isb else W_ST)
        if k == 0: s("s_mov_b32 s%d, %d" % (sKW, st * 64 * 7168))
        if k == 7: s("s_mov_b32 s%d, %d" % (sKB, st * 128))
        s("s_add_u32 m0, s%d, %d" % (mb, off + base))
        s.op(Op("buffer_load_dwordx4 v%d, s[%d:%d], s%d offen lds" % (v, sr, sr + 3, so), "vm", K(("D", st, k))), early)
    CH1 = cfg.get("ch1", 1)
    xalloc = {}; xprev = {}; fifo = [(("a", r), None) for r in (96, 112, 128, 144, 192)]
    for u in range(32):
        if u == 26: xalloc[u] = ("v", 48); xprev[u] = None; continue
        xalloc[u], xprev[u] = fifo.pop(0); fifo.append((xalloc[u], u))
    aX, aW, NWB = 96, 208, 8
    def xload(s, u, m, early=None):
        if m == 0: s("s_mov_b32 s%d, %d" % (sKX, u * 4096))
        s.op(Op("buffer_load_dwordx4 %s, v%d, s[8:11], s%d offen offset:%d" % (R(xalloc[u][0], xalloc[u][1] + 4 * m, 4), 1, sKX, 1024 * m), "vm", K(("X", u, m))), early)
    def pro_stage(st):
        for k in range(9): dma1(s, st, k)
    ND0P = cfg.get("d_t0", 0)
    for k in range(ND0P): dma1(s, 0, k)
    EP_LDS = 131072; EPW = 8192
    PK = dict(C=252, CA=253, TOK=254, COL=255, D=240, TA=242, TRW=243, TRR=244, AG=245)
    s("v_lshrrev_b32 v40, 1, v48\nv_xor_b32 v40, v40, v49\nv_lshlrev_b32 v40, 4, v40\nv_lshl_add_u32 v40, v48, 7, v40")
    s("v_add_u32 v%d, %d, v40\nv_xor_b32 v%d, 64, v%d" % (vBA0, B_BASE, vBA1, vBA0))
    s("v_lshrrev_b32 v40, 1, v49\nv_lshlrev_b32 v40, 4, v40\nv_and_b32 v41, 1, v49\nv_lshlrev_b32 v41, 2, v41\nv_lshrrev_b32 v50, 2, v48\nv_add3_u32 v11, v40, v41, v50")
    s("v_mul_u32_u24 v40, 224, v11\nv_and_b32 v51, 3, v0\nv_lshl_add_u32 v%d, v51, 3, v40\nv_add_u32 v%d, 0x10000, v%d" % (vWA, vWA2, vWA))
    s("s_lshl_b32 s65, s%d, 17\ns_add_u32 s8, s6, s65\ns_addc_u32 s9, s7, 0\ns_and_b32 s9, s9, 0xffff\ns_mov_b32 s10, 0x20000" % sB)
    s("s_lshl_b32 s83, s2, 4\ns_lshl_b32 s65, s%d, 2\ns_add_u32 s83, s83, s65" % sW)
    if WGF: s("s_and_b32 s82, s2, 7\ns_lshl_b32 s82, s82, 6\ns_lshl_b32 s65, s66, 11\ns_add_u32 s82, s82, s65\ns_lshl_b32 s65, s%d, 9\ns_add_u32 s82, s82, s65\ns_add_u32 s82, s82, 0x%x" % (sW, SM_F1))
    else: s("s_add_u32 s82, s83, 0x%x" % SM_F1)
    s("s_add_u32 s83, s83, 0x%x" % SM_F1B)
    def tramp():
        s("s_mov_b64 exec, 0")
        for w in range(1, 4): s("s_cmp_eq_u32 s%d, %d\ns_cbranch_scc1 L_tr%d" % (sW, w, w))
        s("s_branch L_tr0")
        s.atom(["L_trret:"])
        s("s_mov_b64 exec, -1")
    TRP = cfg.get("tr_at", 2) if cfg.get("tramp", 1) else -1
    if TRP == 0: tramp()
    stamp(s, "prex")
    F = 80; D = 112; T0 = 144; ST = 28
    ln = Seq()
    def unpack(q):
        for i in range(4 * q, 4 * q + 4): ln("v_lshlrev_b32 v%d, 16, v%d\nv_and_b32 v%d, 0xffff0000, v%d" % (F + 2 * i, 64 + i, F + 2 * i + 1, 64 + i))
    def pack(q, dst=64):
        for i in range(4 * q, 4 * q + 4): ln("v_cvt_pk_bf16_f32 v%d, v%d, v%d" % (dst + i, F + 2 * i, F + 2 * i + 1))
    def hsum(dst):
        ln("v_pk_add_f32 %s, %s, %s\nv_add_f32 v%d, v%d, v%d" % (P(T0), P(T0), P(T0 + 2), T0, T0, T0 + 1))
        for sh in ((4, 8) if LQ else (1, 2, 4, 8)): ln("v_add_f32_dpp v%d, v%d, v%d row_ror:%d row_mask:0xf bank_mask:0xf" % (T0, T0, T0, sh))
        if LQ:
            for w_ in (16, 32): ln("v_mov_b32 v%d, v%d\nv_permlane%d_swap_b32 v%d, v%d\nv_add_f32 v%d, v%d, v%d" % (T0 + 1, T0, w_, T0, T0 + 1, T0, T0, T0 + 1))
        ln("v_mul_f32 v%d, %s, v%d" % (dst, fx(1.0 / 512), T0))
    for q in range(4):
        ln.wait([("x", q)])
        if q == 3:
            stamp(ln, "xin")
            for _ in range(cfg.get("pf_t1", 0)): pfa(ln)
            i_d0 = len(ln.u)
        unpack(q)
        if q == 0: ln("v_pk_add_f32 %s, %s, %s\nv_pk_add_f32 %s, %s, %s" % (P(T0), P(F), P(F + 2), P(T0 + 2), P(F + 4), P(F + 6)))
        else:
            for i in range(4): ln("v_pk_add_f32 %s, %s, %s" % (P(T0 + 2 * (i % 2)), P(T0 + 2 * (i % 2)), P(F + 8 * q + 2 * i)))
    hsum(ST)
    for i in range(16): ln("v_pk_add_f32 %s, %s, %s op_sel_hi:[1,0] neg_lo:[0,1] neg_hi:[0,1]" % (P(D + 2 * i), P(F + 2 * i), P(ST)))
    for i in range(16):
        if i < 2: ln("v_pk_mul_f32 %s, %s, %s" % (P(T0 + 2 * i), P(D + 2 * i), P(D + 2 * i)))
        else: ln("v_pk_fma_f32 %s, %s, %s, %s" % (P(T0 + 2 * (i % 2)), P(D + 2 * i), P(D + 2 * i), P(T0 + 2 * (i % 2))))
    hsum(ST + 1)
    ln.lg("ds_write_b64 v52, %s" % P(ST))
    ln.wait(None, drain=["lg"])
    ln("s_barrier")
    ln.lg("ds_read_b64 %s, v54" % P(T0), "oth")
    ln("s_mul_i32 s%d, s%d, 0x9E3779B1\ns_add_u32 s%d, s%d, 0x7F4A7C15\nv_mov_b32 v56, s%d" % (sTAG, sTAG, sTAG, sTAG, sTAG))
    ln.wait(["oth"])
    ln("v_sub_f32 v%d, v%d, v%d\nv_pk_add_f32 %s, %s, %s\nv_mul_f32 v%d, 0.5, v%d\nv_pk_mul_f32 %s, %s, 0.5 op_sel_hi:[1,0]\nv_fmac_f32 v%d, v%d, v%d" % (T0 + 2, ST, T0, P(ST), P(ST), P(T0), T0 + 2, T0 + 2, P(ST), P(ST), ST + 1, T0 + 2, T0 + 2))
    ln("v_cvt_pk_bf16_f32 v%d, v%d, v%d\nv_lshlrev_b32 v%d, 16, v%d\nv_and_b32 v%d, 0xffff0000, v%d" % (T0, ST, ST + 1, ST, T0, ST + 1, T0))
    ln(("v_add_f32 V, %s, V\nv_cvt_pk_bf16_f32 V, V, V\nv_and_b32 V, 0xffff0000, V\nv_sqrt_f32 V, V" % fx(1e-5)).replace("V", "v%d" % (ST + 1)))
    def sub(q):
        for i in range(4 * q, 4 * q + 4): ln("v_pk_add_f32 %s, %s, %s op_sel_hi:[1,0] neg_lo:[0,1] neg_hi:[0,1]" % (P(F + 2 * i), P(F + 2 * i), P(ST)))
    def fin(q):
        pack(q); unpack(q)
        for i in range(4 * q, 4 * q + 4): ln("v_pk_mul_f32 %s, %s, %s op_sel:[0,1] op_sel_hi:[1,1]" % (P(F + 2 * i), P(F + 2 * i), P(ST)))
        pack(q, 12 if q else 64)
    ln("v_cvt_pk_bf16_f32 V, V, V\nv_and_b32 V, 0xffff0000, V\nv_rcp_f32 V, V".replace("V", "v%d" % (ST + 1)))
    sub(0); fin(0)
    lu = ln.units()
    nD_0 = cfg.get("d_t1", 1 if ND0P else 0)
    if nD_0:
        dq = Seq(); step = cfg.get("d0_step", 10); pos = i_d0 + cfg.get("d0_off", 6)
        for k in range(ND0P, 9):
            dma1(dq, 0, k); un = dq.units()
            lu[pos:pos] = un[:-1]; pos += len(un); lu[pos:pos] = un[-1:]; pos += step
    s.u += lu
    xst = lambda q: "buffer_store_dwordx4 %s, v55, s[48:51], s%d offen %s" % (Q(12 + 4 * q if q else 64), 70 + q, SC)
    stst = lambda: (["s_mov_b64 exec, 15"] if LQ else ["s_mov_b32 exec_lo, 0x10001", "s_mov_b32 exec_hi, 0x10001"]) + [Op("buffer_store_dwordx4 %s, v%d, s[36:39], s74 offen %s" % (Q(ST), LQ, SC), "vm"), "s_mov_b64 exec, -1"]
    s.vm(xst(0), ("xn", 0))
    stamp(s, "xnst")
    for q in range(1, 4):
        sub(q); fin(q); s.u += ln.units()
    XBP = cfg.get("xbp", 0)
    TWO = 1
    nD_b = cfg.get("d_t3", 1)
    nD_c = cfg.get("d_t4", 2)
    nD_d = cfg.get("d_t5", 2)
    if TRP == 1: tramp()
    if WGF: s.wait([("xn", 0), "agfill"]); s("s_barrier")
    flag(s, "buffer_store_dwordx4 v[56:59], v1, s[36:39], s82 offen %s" % SC, [("xn", 0), "agfill"])
    stamp(s, "flag1")
    if TRP == 4: tramp()
    if cfg.get("bar_f"): s("s_barrier")
    stamp(s, "barf")
    def xb_now():
        s.atom(stst())
        for q in range(1, 4): s.vm(xst(q), ("xn", q))
    if XBP == 1: xb_now()
    for st in range(nD_0, nD_b): pro_stage(st)
    stamp(s, "d0")
    if TRP == 2: tramp()
    stamp(s, "trd")
    f1load = "buffer_load_dword v61, v%d, s[36:39], s75 offen %s" % (vP1, SC)
    s.vm(f1load, "f1")
    if XBP == 2: xb_now()
    for st in range(max(nD_0, nD_b), nD_c): pro_stage(st)
    nD_b = max(nD_0, nD_b, nD_c)
    if TRP == 3: tramp()
    stamp(s, "prepoll")
    if TRP >= 0:
        s("s_branch L_main"); s.atom([".p2align 12"]); s.atom(["L_main:"])
    poll(s, "P1", f1load, 61, "f1")
    stamp(s, "poll1")
    NXP = cfg.get("nxpre", 1 if cfg.get("ch1_first", 1) else 2)
    for u in range(NXP):
        for m in range(4): xload(s, u, m)
    if XBP == 3: xb_now()
    for _ in range(cfg.get("pf_t5", 0)): pfa(s)
    for st in range(nD_b, nD_d): pro_stage(st)
    nD_b = max(nD_b, nD_d)
    npfa = cfg.get("pf_t0", 3) + cfg.get("pf_t1", 0) + cfg.get("pf_t5", 0)
    NPB = cfg.get("npb", 4)
    tiles = []
    for q in range(7): tiles += [("G", q), ("U", q)]
    tiles += [("R", 0), ("I", 0), ("R", 1), ("I", 1)]
    def acc(t, m):
        k, q = t
        if k == "R": return ("v", 64 + 16 * q + 4 * m)
        if k == "I": return ("v", 96 + 16 * q + 4 * m)
        o = 32 * q + (16 if k == "U" else 0) + 4 * m
        return ("v", 128 + o) if q < 4 else ("a", o - 128)
    L0 = cfg.get("l1_lead", 4)
    KT = cfg.get("kt", 1)
    def stage_groups(st, tl):
        if CH1 and st >= cfg.get("ch1_first", 1): return [(2 * st + kk, ti) for ti in tl for kk in range(2)]
        return [(2 * st + kk, ti) for kk in range(2) for ti in tl]
    groups = []
    for st in range(14 if KT else 16): groups += stage_groups(st, range(18))
    if KT:
        for tl in (range(4), range(4, 18)):
            for st in (14, 15): groups += stage_groups(st, tl)
    NG = len(groups)
    mo, head, tail = order_mfma(groups)
    xfirst = {}; xlast = {}
    for G, (u, ti) in enumerate(groups): xfirst.setdefault(u, head(G)); xlast[u] = tail(G)
    parts = lambda G: [0, 1] if groups[G][1] < 14 else [None]
    def read1(G, part):
        u, ti = groups[G]; st, kk = divmod(u, 2); t = tiles[ti]; f = G % NWB
        if t[0] in "GU":
            off = (st & 1) * W_ST + (U_OFF if t[0] == "U" else 0) + kk * 7168 + part * 1792 + t[1] * 32
            return Op("ds_read_b64_tr_b16 %s, v%d offset:%d" % (R("a", aW + 4 * f + 2 * part, 2), (vWA, vWA2)[(st >> 1) & 1], off), "lg", K(("F", G, part)))
        off = (st & 3) * B_ST + (4096 if t[0] == "I" else 0) + t[1] * 2048
        return Op("ds_read_b128 %s, v%d offset:%d" % (R("a", aW + 4 * f, 4), vBA1 if kk else vBA0, off), "lg", K(("F", G, part)))
    rgap = {}
    for G in range(NG):
        f = G % 36
        g = G if (f < 33 or (KT and G >= 28 * 18)) else G - (1 if f < 35 else 2)
        rgap[G] = 4 * (g - L0) - 1
        assert rgap[G] >= 4 * tail(G - NWB) + 3
    gneed = lambda G: [("F", H, p) for H in range(G, tail(G) + 1) for p in parts(H)] + [("X", u, m) for u in range(32) if xfirst[u] == G for m in range(4)]
    s.wait([("D", 0, k) for k in range(9)])
    s("s_barrier")
    for G in range(NG):
        if rgap[G] < 0:
            for p in parts(G): s.op(read1(G, p))
    s.wait(gneed(0))
    stamp(s, "loop1")
    prog.add(s.done())
    mf = []
    for G, m in mo:
        u, ti = groups[G]; t = tiles[ti]
        xr = (xalloc[u][0], xalloc[u][1] + 4 * m); wr = ("a", aW + 4 * (G % NWB))
        mf.append(Op(mfma16(acc(t, m), wr, xr, u == 0) if t[0] in "GU" else mfma16(acc(t, m), xr, wr, u == 0)))
    sc = Sch(mf)
    for G in range(1, NG):
        w = Op("", needs=K(gneed(G)))
        w.keep = sum(len(parts(H)) for H in range(max(0, G - 2), min(NG, G + 10)) if rgap[H] == 4 * G - 1) == 2
        if w.keep or head(G) == G: sc.put(4 * G - 1, [w], 0)
    for G in range(NG):
        if rgap[G] >= 0: sc.put(rgap[G], [read1(G, p) for p in parts(G)], 1)
    bar = {}
    for st in range(15):
        bar[st] = rgap[xfirst[2 * st + 2]] - 1
        sc.put(bar[st], [Op("s_barrier", needs=K([("D", st + 1, k) for k in range(9)]), drain=["lg"] if st < 14 else None)], 0)
    items = []
    PFL = cfg.get("pfl", 9)
    pft = {}
    if cfg.get("pf1", 1):
        ev = cfg.get("pf_first", 70); st = npfa
        for k in range(npfa - cfg.get("pfd", 0), npfa): items.append((0, 2, ev - cfg.get("pfd_pre", 0), "a", k, 0))
        while st < 16:
            n = 0
            while st < 16 and (n < cfg.get("pf_max", 2) or (st == 15 and cfg.get("pf_l3", 1))) and (n == 0 or 144 * (st - 3 - PFL) < ev):
                e = max(int(144 * (st - 3 - PFL)), ev); pft[st] = e; items.append((0, 2, e, "a", st, 0)); st += 1; n += 1
            ev = e + cfg.get("pf_min", 288)
    for st in range(nD_b, 16):
        e = max(bar[st - 4] + 1 if st >= 4 else 0, pft.get(st, -1000) + cfg.get("pf_lat", 100))
        for k in range(9): items.append((bar[st - 1], 0, e, "d", st, k))
    for u in range(NXP, 32):
        e = 4 * xlast[xprev[u]] + 3 if xprev[u] is not None else 0
        for m in range(4): items.append((4 * xfirst[u] - 1, 1, max(e, 4 * xfirst[u] - (cfg.get("x_la", 230) if u != 8 else cfg.get("x_la8", 190))), "x", u, m))
    for k in range(1, 4 if not XBP else 0): items.append((0, 3, cfg.get("xb_first", 75) + cfg.get("xb_sp", 16) * (k - 1), "s", k, 0))
    items.append((0, 3, cfg.get("xb_first", 75) + cfg.get("xb_sp", 16) * 2 + cfg.get("xb_lat", 70) if not XBP else cfg.get("fb_at", 30), "f", 0, 0))
    gC_ = sorted(set(pft.values()))[cfg.get("c_ev", 1)] if pft else 300
    items.append((0, 3, gC_, "c", 0, 0))
    gE_ = gC_ + cfg.get("e_off", 90)
    for n in range(4): items.append((gE_ + 100, 3, gE_ + 20 * n, "e", n, 0))
    f1cload = "buffer_load_dword v61, v60, s[36:39], s81 offen %s" % SC
    if cfg.get("pf2", 1):
        for c in range(NPB): items.append((0, 2, cfg.get("pfb_first", 646) + int(c * cfg.get("pfb_sp", 288)), "b", c, 0))
    now = 0; pend = sorted(items); done = []; quiet = -1
    FM = cfg.get("fm", 1); WL = cfg.get("fm_wl", 14); fifo = []; comp = cfg.get("fm_c0", 30); fsl = []; lastk = ""; PFD = cfg.get("pfd", 0); PFX = cfg.get("pfx", 0)
    while pend:
        nxt = {}
        for x in pend:
            if x[3] not in nxt or x[4:] < nxt[x[3]][4:]: nxt[x[3]] = x
        av = sorted(x for x in nxt.values() if x[2] <= now)
        if FM:
            occ = sum(n for c, n in fifo if c > now)
            lines_of = lambda x: {"d": WL if x[5] < 7 else 8, "x": 8, "a": 9 * (1 + bool(PFD)) + 8 * PFX, "b": 88 // NPB, "c": 10, "e": 16}.get(x[3], 1)
            if av and av[0][3] in "dx" and len(av) > 1 and av[1][3] in "dx" and av[0][3] == lastk and av[0][0] - now > cfg.get("alt_slack", 110): av = av[1:]
            av = [x for x in av[:1] if occ + lines_of(x) <= cfg.get("fm_c", 66)]
        if not av: now += 1; continue
        x = av[0]; pend.remove(x); lastk = x[3]
        if FM:
            lat = cfg.get("fm_slow", 64) if x[3] in "abc" else cfg.get("fm_fast", 36)
            comp = max(comp + 4.3, now + lat); fifo.append((comp, lines_of(x)))
            if x[3] in "dx": fsl.append((x[0] - comp, x[3], x[4], x[5]))
        fifo_now = now
        if x[3] == "d": dma1(s, x[4], x[5], int(now))
        elif x[3] == "x":
            if TWO and x[4:] == (8, 0): poll(s, "P1c", f1cload, 61, "f1c", early=int(now))
            xload(s, x[4], x[5], int(now))
            if TWO and x[4:] == (7, 3): s.vm(f1cload, "f1c"); i_f1c = len(s.u) - 1
        elif x[3] == "a":
            s.at(int(now)); pfa(s); quiet = now + cfg.get("q_len", 64)
            if [y for y in pend if y[3] in "abc" and y[2] <= now]: now -= cfg.get("q_sp", 10) - 4
        elif x[3] == "c":
            s.at(int(now)); i_c0 = len(s.u) - 1
            for k, lo in enumerate((96, 98, 92)):
                s("s_mov_b32 s32, s%d\ns_and_b32 s33, s%d, 0xffff" % (lo, lo + 1))
                for T in range(2): s.vm("buffer_load_ushort v%d, v40, s[32:35], 0 offen offset:%d" % (16 + 2 * k + T, 32 * T), ("c", k, T))
            s("s_mov_b32 s32, s94\ns_and_b32 s33, s95, 0xffff")
            for u in range(2): s.vm("buffer_load_dwordx2 %s, v41, s[32:35], 0 offen offset:%d" % (R("a", 248 + 2 * u, 2), 32 * u), ("dk", u))
            if FT & 2:
                s.vm("buffer_load_dword a246, v42, s[36:39], 0 offen %s" % SC); now += 4
            i_c1 = len(s.u) - 1; now += 30
        elif x[3] == "s":
            if x[4] == 1: s.atom(stst(), int(now)); now += 4
            s.op(Op(xst(x[4]), "vm", K(("xn", x[4]))), int(now)); now += (4 - cfg.get("q_sp", 10)) if now < quiet else 10
        elif x[3] == "f":
            flag(s, "buffer_store_dword v56, v1, s[36:39], s83 offen %s" % SC, [("xn", 3)], early=int(now)); i_fb = len(s.u) - 1
        elif x[3] == "e":
            s("s_mov_b32 s70, %d\ns_add_u32 m0, s71, %d" % (32768 * x[4], 1024 * x[4]))
            s.op(Op("buffer_load_dwordx4 v12, s[48:51], s70 offen lds", "vm", K(("E", x[4]))), int(now)); i_e1 = len(s.u) - 1; now += 4
        else: s.at(int(now)); pfb(s); quiet = now + cfg.get("q_len", 64)
        if x[3] in "dx": done.append((x, len(s.u) - 1))
        if x[3:] == ("x", 8, 0): i_p1c = len(s.u) - 1
        if x[3:] == ("x", 26, 0): i_x26 = len(s.u) - 1
        if FM: now = fifo_now + {"c": 36, "s": cfg.get("fm_st", 16) + 4 * (x[4] == 1)}.get(x[3], cfg.get("fm_sp", 4.5))
        else: now += cfg.get("q_sp", 10) if now < quiet else cfg.get("l1_sp", 5)
    res = sc.stream(s.units(), 0, 2)
    sl = sorted((x[0] - res[i], x[3], x[4], x[5]) for x, i in done)
    if cfg.get("verbose") and FM: print("model slacks", sorted(fsl)[:5])
    if cfg.get("verbose"): print("loop1 vm end", res[-1], "of", 4 * NG, "min slacks", sl[:3], "steady", min(z for z in sl if z[2] > 8))
    for nm in names:
        if TS and nm[0] == "f" and nm[1:].isdigit():
            st_ = int(nm[1:])
            sc.put(bar[st_] - 1, [Op("s_memrealtime s[100:101]")], 5)
            sc.put(bar[st_], [Op("v_writelane_b32 v%d, s100, %d" % (vTS, names.index(nm)))], 5)
    if cfg.get("verbose"): print("flag b", res[i_fb], "poll load", res[i_f1c], "check", res[i_p1c])
    s.at(res[i_fb] + 1)
    cL, cC, cL8, cL16, cL64, cL512 = 16, 20, 24, 28, 32, 36
    s("s_mov_b32 s34, 2048\ns_mov_b32 s35, 0x20000")
    s("s_lshl_b32 s69, s%d, 5\nv_add_u32 v40, s69, v48\nv_lshlrev_b32 v40, 1, v40" % sJ)
    s("s_lshl_b32 s68, s%d, 7\ns_lshl_b32 s66, s%d, 5\ns_add_u32 s68, s68, s66\nv_lshl_add_u32 v41, v49, 2, s68\nv_accvgpr_write_b32 a%d, v41\nv_lshlrev_b32 v41, 1, v41" % (sTN, sQ, PK["COL"]))
    srd(s, 48, 4, 5, 2048 * 2048)
    s("s_lshl_b32 s66, s%d, 2\ns_add_u32 s66, s66, s%d\ns_lshl_b32 s66, s66, 7\ns_add_u32 s66, s66, 0x%x\nv_mov_b32 v42, s66" % (sB, sQ, SM_F3))
    s("s_lshl_b32 s66, s%d, 3\ns_add_u32 s66, s66, s%d\ns_lshl_b32 s66, s66, 2\ns_add_u32 s66, s66, s%d\ns_lshl_b32 s66, s66, 7\ns_add_u32 s66, s66, 0x%x\nv_writelane_b32 v42, s66, 0" % (sI, sTN, sW, SM_F4))
    s("s_lshl_b32 s68, s68, 1\ns_lshl_b32 s66, s%d, 17\ns_add_u32 s68, s68, s66\nv_lshrrev_b32 v12, 2, v0\nv_lshl_add_u32 v12, v12, 11, s68\nv_lshl_add_u32 v12, v51, 4, v12" % sB)
    s("s_lshr_b32 s66, s%d, 1\ns_lshl_b32 s66, s66, 16\ns_and_b32 s71, s%d, 1\ns_lshl_b32 s71, s71, 12\ns_add_u32 s71, s71, s66\ns_add_u32 s71, s71, 57344" % (sW, sW))
    r0 = sc.stream(s.units(), 0, 3)
    assert r0[-1] < res[i_c0]
    s.at(res[i_c1] + 1)
    s("v_subrev_u32 v40, %d, v%d\nv_accvgpr_write_b32 a%d, v40" % (B_BASE, vBA0, PK["CA"]))
    s("s_mul_i32 s69, s%d, %d\ns_add_u32 s69, s69, %d" % (sW, EPW, EP_LDS + 2048))
    s("v_and_b32 v41, 1, v49\nv_xor_b32 v41, v41, v51\nv_lshlrev_b32 v40, 5, v11\nv_lshl_add_u32 v40, v41, 3, v40\nv_add_u32 v40, s69, v40\nv_accvgpr_write_b32 a%d, v40" % PK["TRR"])
    s("v_lshrrev_b32 v40, 1, v48\nv_xor_b32 v40, v40, v48\nv_and_b32 v40, 4, v40\nv_mul_u32_u24 v40, 3, v40\nv_xor_b32 v40, v40, v48\nv_lshrrev_b32 v41, 2, v40\nv_xor_b32 v41, v41, v49\nv_lshlrev_b32 v40, 5, v40\nv_lshl_add_u32 v40, v41, 3, v40\nv_add_u32 v40, s69, v40\nv_accvgpr_write_b32 a%d, v40" % PK["TRW"])
    s("v_lshrrev_b32 v40, 2, v0\nv_and_b32 v41, 7, v40\nv_lshlrev_b32 v41, 5, v41\nv_lshl_add_u32 v41, v40, 8, v41\nv_lshl_add_u32 v41, v51, 3, v41\nv_accvgpr_write_b32 a%d, v41" % PK["TA"])
    s("s_lshl_b32 s68, s%d, 2\nv_add_u32 v40, s68, v49\nv_and_b32 v41, 7, v40\nv_bfe_u32 v51, v0, 1, 3\nv_xor_b32 v41, v41, v51\ns_lshl_b32 s66, s%d, 1\nv_xor_b32 v41, s66, v41\nv_lshlrev_b32 v41, 5, v41" % (sW, sQ))
    s("v_and_b32 v51, 1, v0\nv_lshl_add_u32 v41, v51, 4, v41\ns_mul_i32 s67, s%d, 896\nv_add_u32 v40, s67, v40\nv_lshl_add_u32 v40, v40, 11, v41\ns_lshl_b32 s67, s%d, 8\nv_add_u32 v40, s67, v40\nv_accvgpr_write_b32 a%d, v40" % (sQ, sTN, PK["D"]))
    s("s_lshl_b32 s68, s%d, 18\ns_lshl_b32 s66, s%d, 9\ns_add_u32 s68, s68, s66\nv_add_u32 v40, s68, v47\nv_accvgpr_write_b32 a%d, v40" % (sTN, sQ, PK["C"]))
    s("v_lshlrev_b32 v40, 4, v50\nv_lshl_add_u32 v40, v51, 3, v40\nv_bfe_u32 v41, v48, 1, 1\ns_lshl_b32 s68, s%d, 6\nv_add3_u32 v40, v40, v41, s68\nv_accvgpr_write_b32 a%d, v40" % (sB, PK["TOK"]))
    s("s_sub_u32 s68, 32, s%d\ns_lshl_b32 s68, s68, 13\ns_lshl_b32 s66, s%d, 8\ns_add_u32 s68, s68, s66\nv_lshl_add_u32 v40, v48, 4, s68\nv_lshl_add_u32 v40, v49, 16, v40\nv_accvgpr_write_b32 a%d, v40" % (sB, sJ, PK["AG"]))
    ld, lc = 112 // NPB, 64 // NPB
    s("s_lshl_b32 s68, s2, 1\ns_and_b32 s66, s%d, 1\ns_add_u32 s68, s68, s66\ns_mul_i32 s68, s68, %d\ns_mul_i32 s66, s2, %d" % (sW, ld * 128, lc * 128))
    ge2 = "s_cmp_ge_u32 s%d, 2" % sW
    s.atom([ge2, "s_cselect_b32 s68, s66, s68", "s_cselect_b32 s66, %d, %d" % (lc - 1, ld - 1)])
    s("v_min_u32 v40, s66, v0\nv_lshl_add_u32 v%d, v40, 7, s68" % vPB)
    s.atom(["s_bitcmp1_b32 s%d, 0" % sW, "s_cselect_b32 s68, s90, s88", "s_cselect_b32 s66, s91, s89"])
    s.atom([ge2, "s_cselect_b32 s44, s68, s84", "s_cselect_b32 s45, s66, s85"])
    s("s_mov_b32 s67, %d\ns_mov_b32 s68, %d" % (3584 * 2048, 512 * ld * 128))
    s.atom([ge2, "s_cselect_b32 s46, %d, s67" % (1024 * 2048), "s_cselect_b32 s%d, %d, s68" % (sPBs, 256 * lc * 128)])
    s("s_and_b32 s45, s45, 0xffff\ns_mov_b32 s47, 0x20000\ns_mov_b32 s%d, 0" % sKPB)
    i_pbs = len(s.u) - 1
    s.at(res[i_c1] + 90)
    s.wait([("c", 2, 1)])
    def two(f):
        for T in range(2): s(f(T))
    for k in range(6): s("v_lshlrev_b32 v%d, 16, v%d" % (40 + k, 16 + k))
    two(lambda T: "v_mul_f32 v%d, %s, v%d" % (44 + T, fx(LOG2E), 44 + T)); two(lambda T: "v_exp_f32 v%d, v%d" % (44 + T, 44 + T))
    s("v_cvt_pk_bf16_f32 v45, v44, v45\nv_lshlrev_b32 v44, 16, v45\nv_and_b32 v45, 0xffff0000, v45")
    two(lambda T: "v_mul_f32 v%d, v%d, v%d\nv_mul_f32 v%d, v%d, v%d" % (24 + T, 44 + T, 40 + T, 26 + T, 44 + T, 42 + T))
    two(lambda T: "v_mul_f32 v%d, %s, v%d" % (24 + T, fx(LOG2E), 24 + T)); two(lambda T: "v_exp_f32 v%d, v%d" % (24 + T, 24 + T))
    two(lambda T: "v_mul_f32 v%d, 0.15915494, v%d\nv_rndne_f32 v%d, v%d\nv_sub_f32 v%d, v%d, v%d" % (26 + T, 26 + T, 52 + T, 26 + T, 26 + T, 26 + T, 52 + T))
    two(lambda T: "v_cos_f32 v%d, v%d\nv_sin_f32 v%d, v%d" % (52 + T, 26 + T, 54 + T, 26 + T))
    two(lambda T: "v_mul_f32 v%d, v%d, v%d\nv_mul_f32 v%d, v%d, v%d\nv_add_f32 v%d, -1.0, v%d" % (cL + T, 24 + T, 52 + T, 54 + T, 24 + T, 54 + T, 52 + T, cL + T))
    two(lambda T: "v_mul_f32 v%d, v%d, v%d\nv_fmac_f32 v%d, v%d, v%d\nv_rcp_f32 v%d, v%d" % (24 + T, 40 + T, 40 + T, 24 + T, 42 + T, 42 + T, 24 + T, 24 + T))
    two(lambda T: "v_mul_f32 v%d, v%d, v%d\nv_fmac_f32 v%d, v%d, v%d" % (26 + T, 52 + T, 40 + T, 26 + T, 54 + T, 42 + T))
    two(lambda T: "v_mul_f32 v%d, v%d, v%d\nv_fma_f32 v%d, -v%d, v%d, v%d" % (56 + T, 54 + T, 40 + T, 56 + T, 52 + T, 42 + T, 56 + T))
    two(lambda T: "v_add_f32 v%d, v%d, v%d\nv_mul_f32 v%d, v%d, v%d\nv_mul_f32 v%d, v%d, v%d\nv_sub_f32 v%d, 0, v%d" % (24 + T, 24 + T, 24 + T, cC + T, 26 + T, 24 + T, cC + 2 + T, 56 + T, 24 + T, cL + 2 + T, 54 + T))
    def sq(d, x):
        two(lambda T: "v_mul_f32 v%d, v%d, v%d\nv_mul_f32 v%d, v%d, v%d\nv_fma_f32 v%d, v%d, v%d, -v%d\nv_add_f32 v%d, v%d, v%d" % (52 + T, x + 2 + T, x + 2 + T, 54 + T, x + T, x + 2 + T, d + T, x + T, x + T, 52 + T, d + 2 + T, 54 + T, 54 + T))
    sq(cL8, cL); sq(cL8, cL8); sq(cL8, cL8); sq(cL16, cL8); sq(cL64, cL16); sq(cL64, cL64); sq(cL512, cL64); sq(cL512, cL512); sq(cL512, cL512)
    aBS = 160
    s.at(max(res[i_p1c] + 2, res[i_e1] + 90))
    s("v_accvgpr_read_b32 v12, a%d\nv_and_b32 v11, 63, v12\nv_lshlrev_b32 v11, 6, v11\nv_lshl_add_u32 v11, v49, 3, v11\nv_add_u32 v11, s71, v11\nv_and_b32 v12, 0xf0, v1\ns_lshl_b32 s66, s%d, 10\ns_add_u32 s66, s66, 0x%x" % (PK["TOK"], sB, SM_ST))
    s.wait([("E", 3), ("dk", 1)])
    for k in range(4): s("v_accvgpr_read_b32 v%d, a%d" % (40 + k, 248 + k))
    for m in range(4):
        s.vm("buffer_load_dwordx2 v[44:45], v12, s[36:39], s66 offen offset:%d" % (256 * m), ("St", m))
        for u in range(2): s.lg("ds_read_b64 %s, v11 offset:%d" % (P(52 + 2 * u), 128 * m + 32 * u), ("er", m, u))
        s.delay(cfg.get("e_lat", 90))
        s.wait([("St", m), ("er", m, 1)])
        for u in range(2):
            def unp(d, x):
                for h in range(2): s("v_lshlrev_b32 v%d, 16, v%d\nv_and_b32 v%d, 0xffff0000, v%d" % (d + 2 * h, x + h, d + 2 * h + 1, x + h))
            def rnd():
                for h in range(2): s("v_cvt_pk_bf16_f32 v%d, v%d, v%d" % (48 + h, 60 + 2 * h, 61 + 2 * h))
                unp(60, 48)
            unp(56, 52 + 2 * u)
            for k in range(4): s("v_sub_f32 v%d, v%d, v44" % (60 + k, 56 + k))
            rnd()
            for k in range(4): s("v_mul_f32 v%d, v%d, v45" % (60 + k, 60 + k))
            rnd()
            for h in range(2):
                s("v_lshlrev_b32 v46, 16, v%d\nv_and_b32 v47, 0xffff0000, v%d\nv_mul_f32 v%d, v%d, v46\nv_mul_f32 v%d, v%d, v47" % (40 + 2 * u + h, 40 + 2 * u + h, 60 + 2 * h, 60 + 2 * h, 61 + 2 * h, 61 + 2 * h))
            rnd()
            for k in range(4): s("v_add_f32 v%d, v%d, v%d" % (56 + k, 56 + k, 60 + k))
            for k in range(4): s("v_accvgpr_write_b32 a%d, v%d" % (aBS + 16 * u + 4 * m + k, 56 + k))
    rb = sc.stream(s.units(), 0, 3, vmspace=2)
    if cfg.get("verbose"): print("shadow end", rb[-1])
    assert rb[-1] < res[i_x26] and rb[-1] < bar[13] and rb[i_pbs] < cfg.get("pfb_first", 646)
    vEW, vER, vTG, vAG, vTRW, vTRR, vCP, vH8, vD1, vPAd, vPD, vD0 = 2, 3, 4, 5, 6, 7, 8, 10, 11, 12, 13, 14
    sM, sKD, sKH = 54, 55, 56
    c1 = -2.0 * math.sqrt(2.0 / math.pi) * LOG2E
    CC = 46
    s("v_accvgpr_read_b32 v%d, a%d\nv_lshlrev_b32 v%d, 3, v0\nv_add_u32 v%d, 32768, v%d" % (vD0, PK["D"], vH8, vD1, vD0))
    s("v_and_b32 v43, 31, v0\nv_lshlrev_b32 v43, 7, v43\ns_lshl_b32 s71, s%d, 2\ns_add_u32 s71, s71, 0x%x" % (sJ, SM_F1B))
    s("s_mul_i32 s65, s%d, 176\ns_mul_i32 s66, s%d, 44\ns_add_u32 s65, s65, s66\ns_lshl_b32 s65, s65, 12\ns_add_u32 s65, s65, 0x%x" % (sB, sQ, WS_H))
    s.atom(["s_add_u32 s32, s6, s65", "s_addc_u32 s33, s7, 0"])
    s("s_and_b32 s33, s33, 0xffff\ns_mov_b32 s34, 0x%x\ns_mov_b32 s35, 0x20000" % (44 * 4096))
    srd(s, 12, 84, 85, 3584 * 2048); srd(s, 16, 88, 89, 1024 * 2048); srd(s, 20, 90, 91, 1024 * 2048)
    s("s_lshl_b32 s%d, s%d, 10" % (sM, sW))
    s("v_mov_b32 v46, %s\nv_mov_b32 v47, %s" % (fx(c1), fx(c1 * 0.044715)))
    ROT = cfg.get("rot", 2)
    sTQ = [96, 97, 98, 99, 48, 49, 50, 51]; sTS = [76, 77, 78, 80]; sJ12, sG7 = 44, 45
    s("s_and_b32 s67, s%d, 3\ns_lshl_b32 s67, s67, 1" % sI)
    for k in range(8):
        if k == 0: s("s_mov_b32 s65, s%d" % sTN)
        elif ROT == 2: s.atom(["s_cmp_le_u32 s%d, %d" % (sTN, k - 1), "s_cselect_b32 s65, %d, %d" % (k, k - 1)])
        elif ROT: s("s_add_u32 s65, s67, %d\ns_sub_u32 s66, s65, 7\ns_min_u32 s65, s65, s66\ns_add_u32 s65, s65, 1\ns_xor_b32 s65, s65, s%d" % (k - 1, sTN))
        else: s("s_xor_b32 s65, s%d, %d" % (sTN, k))
        s("s_mul_i32 s65, s65, 7\ns_add_u32 s65, s65, 1\ns_lshr_b32 s65, s65, 1\ns_lshl_b32 s%d, s65, 12" % sTQ[k])
    s("s_lshr_b32 s67, s%d, 1" % sTN)
    sGp = [24, 25, 26, 27]; sPar = 45
    for p in range(4):
        if ROT == 2:
            s("s_mov_b32 s%d, %d" % (sTS[p], (7 * p + 3) * 4096))
            if p == 0: s("s_lshl_b32 s%d, s67, 13" % sGp[0])
            else:
                s.atom(["s_cmp_le_u32 s67, %d" % (p - 1), "s_cselect_b32 s65, %d, %d" % (p, p - 1)]); s("s_lshl_b32 s%d, s65, 13" % sGp[p])
        else: s("s_xor_b32 s65, s67, %d\ns_lshl_b32 s%d, s65, 13\ns_mul_i32 s65, s65, %d\ns_add_u32 s%d, s65, %d" % (p, sGp[p], 7 * 4096, sTS[p], 3 * 4096))
    s("s_lshl_b32 s%d, s%d, 12\ns_and_b32 s69, s%d, 1\ns_lshl_b32 s%d, s69, 12" % (sJ12, sTN, sTN, sPar))
    s("s_mul_i32 s67, s67, %d\ns_lshl_b32 s69, s69, 9\ns_add_u32 s67, s67, s69\ns_add_u32 s67, s67, %d" % (7 * 4096, 3 * 4096))
    s("s_add_u32 s72, s%d, %d\ns_add_u32 s73, s%d, %d\ns_mov_b32 s66, s%d" % (sJ12, 28 * 4096, sJ12, 36 * 4096, sTQ[0]))
    s("s_lshl_b32 s68, s%d, 2\ns_add_u32 s68, s68, s%d\ns_lshl_b32 s68, s68, 7\ns_add_u32 s68, s68, 0x%x" % (sB, sQ, SM_F3))
    s("s_lshl_b32 s81, s%d, 2\ns_add_u32 s81, s81, s68\nv_and_b32 v%d, 7, v0\nv_lshlrev_b32 v%d, 2, v%d" % (sTN, vPAd, vPAd, vPAd))
    s("s_sub_u32 s64, 31, s%d\ns_lshl_b32 s64, s64, 13\ns_lshl_b32 s65, s%d, 8\ns_add_u32 s64, s64, s65" % (sB, sJ))
    s("s_mul_i32 s46, s%d, %d\ns_add_u32 s46, s46, %d" % (sW, EPW, EP_LDS))
    if TRP >= 0 and cfg.get("tr2", 1) and cfg.get("tr2pf", 1):
        s.atom(["s_getpc_b64 s[82:83]", "L_pc2:"])
        s("v_lshrrev_b32 v40, 3, v0\nv_lshlrev_b32 v40, 12, v40\nv_and_b32 v41, 7, v0\nv_lshl_add_u32 v40, v41, 7, v40\nv_add_u32 v40, L_main-L_pc2+%d, v40" % (4096 * cfg.get("tr_n", 14)))
        s("v_min_u32 v40, L_codeend-L_pc2-4, v40\nv_mov_b32 v41, 0\nv_lshl_add_u64 v[40:41], v[40:41], 0, s[82:83]")
        s.vm("global_load_dword a246, v[40:41], off")
        if cfg.get("cpe", 0):
            n_ = 16 * cfg.get("cpe", 0)
            s("s_mul_i32 s65, s%d, %d\ns_add_u32 s65, s65, L_epi-L_pc2+%d\nv_min_u32 v40, %d, v0\nv_lshl_add_u32 v40, v40, 7, s65\nv_mov_b32 v41, 0\nv_lshl_add_u64 v[40:41], v[40:41], 0, s[82:83]" % (sW, n_ * 128, cfg.get("cpe_off", -2048), n_ - 1))
            s.vm("global_load_dword a246, v[40:41], off")
    f1bload = "buffer_load_dword v44, v43, s[36:39], s71 offen %s" % SC
    s.vm(f1bload, "f1b")
    steps = [("g", 0, 2), ("g", 0, 0), ("g", 0, 1)]
    NA0 = cfg.get("na0", 2)
    steps += [("g", k, 0) for k in range(1, NA0 + 1)]
    UA = len(steps)
    steps += [("g", k, 1) for k in range(1, NA0 + 1)]
    for k in range(NA0 + 1, 8): steps += [("g", k, 0), ("g", k, 1)]
    UB = len(steps)
    for k in range(1, 8): steps += [("g", k, 2)] + ([("s", k // 2, 0)] if k % 2 else [])
    assert len(steps) == 28
    cst = [("r", 0), ("i", 0), ("r", 1), ("r", 2), ("r", 3), ("i", 1), ("i", 2), ("i", 3)]
    steps += [("c", 14, 0), ("c", 15, 0), ("c", 14, 1), ("c", 15, 1)]
    for st in range(16, 22): steps += [("c", st, 0), ("c", st, 1)]
    own = {0, 1, 2, 28, 29}; UC = 30
    NST = 22; KC = cfg.get("kc", 8)
    slot = {st: st % 8 for st in range(22)}; prevocc = {st: (st - 8 if st >= 8 else None) for st in range(22)}
    aW2 = 0; aAG = 32
    vC, vCA = 16, 20
    def dma2(s, st, k, early=None, vC=vC):
        if st < 14:
            kind, x, p = steps[2 * st + k // 2]
            if k % 2 == 0:
                if kind == "g" and p: s("s_add_u32 s%d, s%d, %d\ns_lshl_b32 s%d, s%d, 4" % (sKD, sTQ[x], p * 4096, sKD, sKD))
                else: s("s_lshl_b32 s%d, s%d, 4" % (sKD, (sTQ if kind == "g" else sTS)[x]))
            v, sr = (vD0, vD1)[k % 2], 12
        else:
            part, p = cst[st - 14]
            if k == 0: s("s_lshr_b32 s%d, s%d, 6" % (sKD, sGp[p]))
            v, sr = vC + k, (16 if part == "r" else 20)
        s("s_add_u32 m0, s%d, %d" % (sM, slot[st] * 16384 + k * 4096))
        s.op(Op("buffer_load_dwordx4 v%d, s[%d:%d], s%d offen lds" % (v, sr, sr + 3, sKD), "vm", K(("D2", st, k))), early)
    NPRE = 4
    r = sc.stream(s.units(), res[-1] + 2, 3)
    gS = r[-1]
    L2P = cfg.get("l2p", 0)
    if L2P:
        s("s_lshr_b32 s65, s2, 3\ns_lshl_b32 s65, s65, 2\ns_add_u32 s65, s65, s%d" % sW)
        s("s_mul_i32 s69, s65, %d\ns_mul_i32 s70, s%d, %d\ns_add_u32 s69, s69, s70\nv_min_u32 v40, 55, v0\nv_lshl_add_u32 v40, v40, 7, s69\ns_mov_b32 s70, %d" % (56 * 128, sQ, 896 * 2048, 448 * 2048))
        s.vm("buffer_load_dword a246, v40, s[12:15], 0 offen"); s.delay(cfg.get("l2p_sp", 40))
        s.vm("buffer_load_dword a246, v40, s[12:15], s70 offen"); s.delay(cfg.get("l2p_sp", 40))
        if L2P >= 2:
            s("s_lshl_b32 s69, s65, 14\ns_lshl_b32 s70, s%d, 9\ns_add_u32 s69, s69, s70\nv_bfe_u32 v40, v0, 2, 3\nv_lshl_add_u32 v40, v40, 11, s69\nv_and_b32 v41, 3, v0\nv_lshl_add_u32 v40, v41, 7, v40" % sQ)
    s.at(max(bar[13] + 1, cfg.get("pre_at", 0 if KT else 2170)))
    for st in range(NPRE):
        for k in range(4): dma2(s, st, k)
    if L2P >= 2:
        s.vm("buffer_load_dword a246, v40, s[16:19], 0 offen")
        if L2P >= 3: s.delay(20); s.vm("buffer_load_dword a246, v40, s[20:23], 0 offen")
    r = sc.stream(s.units(), gS + 1, 2, vmspace=cfg.get("pre_sp", 5))
    hst = cfg.get("hst", SC)
    aK0 = xalloc[27][1] if KT else 96; aK1 = 112 if aK0 != 112 else 96
    left = []; msh = 0
    if KT:
        msh = cfg.get("msh", 4)
        for m in range(msh):
            gs = [128 + 4 * m + e for e in range(4)] + [160 + 4 * m + e for e in range(4)]
            o = (56, 60)[m % 2]
            for k, g in enumerate(gs): s("v_mul_f32 v%d, v%d, v%d" % (48 + k, g, g))
            for k, g in enumerate(gs): s("v_fma_f32 v%d, v%d, v47, v46" % (48 + k, 48 + k))
            for k, g in enumerate(gs): s("v_mul_f32 v%d, v%d, v%d" % (48 + k, 48 + k, g))
            for k, g in enumerate(gs): s("v_exp_f32 v%d, v%d" % (48 + k, 48 + k))
            for k, g in enumerate(gs): s("v_mul_f32 v%d, v%d, v%d" % (g + 16, g, g + 16))
            for k, g in enumerate(gs): s("v_add_f32 v%d, 1.0, v%d" % (48 + k, 48 + k))
            for k, g in enumerate(gs): s("v_rcp_f32 v%d, v%d" % (48 + k, 48 + k))
            for k, g in enumerate(gs): s("v_mul_f32 v%d, v%d, v%d" % (g + 16, g + 16, 48 + k))
            for k in range(4): s("v_cvt_pk_bf16_f32 v%d, v%d, v%d" % (o + k, gs[2 * k] + 16, gs[2 * k] + 17))
            s.vm("buffer_store_dwordx4 %s, v1, s[32:35], s66 offen offset:%d %s" % (Q(o), 1024 * m, hst), ("hs", 0, m))
            for k in range(4): s("v_accvgpr_write_b32 a%d, v%d" % (aK0 + 4 * m + k, o + k))
        un = s.units()
        r = sc.stream(un, max(gS + 1, 4 * (28 * 18 + 16) + 2), 3, vmspace=2, overflow=True)
        left = un[len(r):]
        if cfg.get("verbose"): print("setup end", gS, "shadow gelu placed", len(r), "left", len(left))
    if cfg.get("stall"):
        for G in range(1, NG):
            if G % cfg["stall"] == 0 and len(sc.classes(4 * G - 1)) == 3: sc.put(4 * G - 1, [Op("s_nop 0")], 9)
    prog.add(sc.ops())
    vTA = 40
    s.atom(["L_epi:"])
    s("s_barrier")
    stamp(s, "end1")
    s.u += left
    KD = [int(c, 36) for c in str(cfg.get("kd", "g088"))]
    CH2 = cfg.get("ch2", 1); nochain = [int(c) for c in str(cfg.get("ch2_skip", "1"))]
    assert all(k % 2 == 0 for k in KD)
    def sg2(st, ul):
        if CH2 and st not in nochain: return [(2 * st + kk, u) for u in ul for kk in range(2)]
        return [(2 * st + kk, u) for kk in range(2) for u in ul]
    groups = []
    for st in range(22): groups += sg2(st, [u for u in (range(8) if st < 14 else (2, 3, 4, 5, 6, 7, 0, 1)) if 2 * st < 44 - KD[u // 2]])
    pend_ = {}
    for d in (1, 2, 3, 0):
        for st in range(22 - KD[d] // 2, 22): groups += sg2(st, (2 * d, 2 * d + 1))
    for G, (uu, u) in enumerate(groups): pend_[u // 2] = G
    assert len(groups) == 352 and max(KD) <= 16
    NG = len(groups)
    mo, head, tail = order_mfma(groups)
    lastuse = {}; firstuse = {}
    for G, (uu, u) in enumerate(groups): firstuse.setdefault(uu, head(G)); lastuse[uu] = tail(G)
    hreg = {0: ("v", 48), 1: ("a", aK0), 2: ("a", aK1), 28: ("a", 32), 29: ("a", 48)}; hfree = {}
    pool = [(-1, ("a", r)) for r in [96, 112, 128, 144, 192, 208, 224, 160, 176, 64, 80] if r not in (aK0, aK1)] + [(4 * lastuse[u] + 3, hreg[u]) for u in (1, 2, 28, 29)]
    VFREE = cfg.get("vfree", 700)
    pool += [(VFREE, ("v", r)) for r in (64, 80, 96, 112)[:cfg.get("nvs", 4)]]
    for u in range(44):
        if u in own: continue
        pool.sort(key=lambda x: x[0]); e, r = pool.pop(0)
        hreg[u] = r; hfree[u] = e; pool.append((4 * lastuse[u] + 3, r))
    def hload(s, u, m, early=None):
        kind, x, p = steps[u]
        if m == 0:
            if kind == "g": s("s_add_u32 s%d, s%d, %d" % (sKH, sTQ[x], p * 4096))
            elif kind == "s": s("s_mov_b32 s%d, s%d" % (sKH, sTS[x]))
            else:
                part, pp = cst[x - 14]
                s("s_xor_b32 s%d, s%d, %d\ns_add_u32 s%d, s%d, s%d" % (sKH, sPar, ((28 if part == "r" else 36) + p) * 4096, sKH, sKH, sGp[pp]))
        hk, d = hreg[u]; d += 4 * m
        if kind == "s":
            s.op(Op("buffer_load_dwordx2 %s, v%d, s[32:35], s%d offen offset:%d" % (R(hk, d, 2), vH8, sKH, 1024 * m), "vm"), early)
            s.op(Op("buffer_load_dwordx2 %s, v%d, s[32:35], s%d offen offset:%d" % (R(hk, d + 2, 2), vH8, sKH, 1024 * m + 512), "vm", K(("H", u, m))))
        else: s.op(Op("buffer_load_dwordx4 %s, v1, s[32:35], s%d offen offset:%d" % (R(hk, d, 4), sKH, 1024 * m), "vm", K(("H", u, m))), early)
    def gelu_pair(base0, base1, pid, T, OUT, keep=None, hook=None, m0=0):
        for m in range(m0, 4):
            o = OUT[m % len(OUT)]
            items = [(base0 + 4 * m, base0 + 16 + 4 * m, o), (base0 + 4 * m + 2, base0 + 18 + 4 * m, o + 1),
                     (base1 + 4 * m, base1 + 16 + 4 * m, o + 2), (base1 + 4 * m + 2, base1 + 18 + 4 * m, o + 3)]
            gelu_block(s, items, CC, T)
            s.vm("buffer_store_dwordx4 %s, v1, s[32:35], s66 offen offset:%d %s" % (Q(o), 1024 * m, hst), ("hs", pid, m))
            if keep is not None:
                for r in range(4): s("v_accvgpr_write_b32 a%d, v%d" % (keep + 4 * m + r, o + r))
            if hook: hook(m)
        s("s_add_u32 s66, s66, 4096")
    NPRE2 = cfg.get("npre2", 8)
    cpre = [(st, k) for st in range(NPRE, NPRE2) for k in range(4)]
    def cdma(n):
        for _ in range(n):
            if cpre: st, k = cpre.pop(0); dma2(s, st, k)
    fstore = lambda off: "buffer_store_dword v%d, v1, s[36:39], s81 offen offset:%d %s" % (vTG, off, SC)
    fload = lambda off: "buffer_load_dword v%d, v%d, s[36:39], s68 offen offset:%d %s" % (vPD, vPAd, off, SC)
    s("v_mov_b32 v%d, s%d" % (vTG, sTAG))
    npg = cfg.get("cpre_g", 1)
    cdma(cfg.get("cpre_0", 4))
    gelu_pair(128, 160, 0, 48, [56, 60], aK0, lambda m: cdma(npg), m0=msh)
    def hook1(m):
        cdma(npg)
        if m == cfg.get("fa0_m", 1): flag(s, fstore(96), [("hs", 0, 3)])
    gelu_pair(192, 224, 1, 48, [56, 60], aK1, hook1)
    stamp(s, "p01")
    def pkfma(d, s0, s1, s2, T, neg=False):
        s("v_pk_fma_f32 %s, %s, %s, %s op_sel:[%d,0,0] op_sel_hi:[%d,1,1]%s" % (P(d), P(s0), P(s1), P(s2), T, T, " neg_lo:[1,0,0] neg_hi:[1,0,0]" if neg else ""))
    def pkmul(d, s0, s1, T, neg=False):
        s("v_pk_mul_f32 %s, %s, %s op_sel:[%d,0] op_sel_hi:[%d,1]%s" % (P(d), P(s0), P(s1), T, T, " neg_lo:[1,0] neg_hi:[1,0]" if neg else ""))
    BR = lambda T, x: 64 + 16 * T + 2 * x
    BI = lambda T, x: 96 + 16 * T + 2 * x
    for x in range(8):
        for T in range(2):
            pkmul(128 + 2 * T, cC + 2, BI(T, x), T, True); pkmul(BI(T, x), cC, BI(T, x), T, True)
        for T in range(2):
            pkfma(BI(T, x), cC + 2, BR(T, x), BI(T, x), T, True); pkfma(BR(T, x), cC, BR(T, x), 128 + 2 * T, T)
    sr = [BR(0, 0), BR(1, 0)]; si = [BI(0, 0), BI(1, 0)]
    bufs = [[132, 134], [138, 140]]; SI = [136, 142]
    for x in range(1, 8):
        nr = [bufs[T][x % 2] for T in range(2)]
        for T in range(2): pkfma(nr[T], cL, sr[T], BR(T, x), T)
        for T in range(2): pkfma(nr[T], cL + 2, si[T], nr[T], T, True)
        for T in range(2): pkfma(SI[T], cL, si[T], BI(T, x), T)
        for T in range(2): pkfma(SI[T], cL + 2, sr[T], SI[T], T)
        sr = nr; si = list(SI)
        if x % 2: cdma(1)
    EA = 20
    for T in range(2):
        s("v_mov_b32 v%d, v%d\nv_mov_b32 v%d, v%d\nv_mov_b32 v%d, v%d\nv_mov_b32 v%d, v%d" % (EA + T, sr[T], EA + 2 + T, si[T], 144 + T, sr[T] + 1, 146 + T, si[T] + 1))
    horner_pk(s, EA, cL8, 144, 144)
    s("v_add_u32 v%d, s46, v1\nv_and_b32 v%d, 0xf0, v1\nv_add_u32 v%d, s46, v%d" % (vEW, vER, vER, vER))
    s.lg("ds_write_b128 v%d, v[144:147]" % vEW)
    for g in range(4): s.lg("ds_read_b128 %s, v%d offset:%d" % (Q(148 + 4 * g), vER, 256 * g), ("e", g))
    HPN = cfg.get("hpn", 0)
    if HPN: s.vm(fload(96), "f3a0")
    for r in range(32):
        s("v_accvgpr_read_b32 v%d, a%d" % (192 + r, r))
        if r % 16 == 15: cdma(1)
    flag(s, fstore(0), [("hs", 1, 3)])
    for g in range(1, 4):
        s.wait([("e", g)]); horner_pk(s, 148 + 4 * (g - 1), cL16, 148 + 4 * g, 148 + 4 * g)
    for r in range(160, 164): s("v_min_u32 v%d, -2, v%d" % (r, r))
    s.atom(["s_mov_b64 exec, 0xffff", Op("buffer_store_dwordx4 v[160:163], v1, s[36:39], s64 offen %s" % SC, "vm"), "s_mov_b64 exec, -1"])
    stamp(s, "pub")
    poll(s, "P1b", f1bload, 44, "f1b")
    for r in range(32, 64):
        s("v_accvgpr_read_b32 v%d, a%d" % (192 + r, r))
        if r % 16 == 15: cdma(1)
    cdma(16)
    for r in range(32): s("v_accvgpr_read_b32 v%d, a%d" % (128 + r, aBS + r))
    hq = [(u, m) for u in range(3, UA) for m in range(4)][:HPN]; nh_pre = [3 + HPN // 4]
    assert HPN % 4 == 0
    def issue_h(n):
        for _ in range(n):
            if hq: hload(s, *hq.pop(0))
    hpb = cfg.get("hpb", 3)
    def hookA(m): issue_h(hpb)
    def tramp2():
        s("s_mov_b64 exec, 0")
        for w in range(1, 4): s("s_cmp_eq_u32 s%d, %d\ns_cbranch_scc1 L_trB%d" % (sW, w, w))
        s("s_branch L_trB0")
        s.atom(["L_trret2:"])
        s("s_mov_b64 exec, -1")
    if TRP >= 0 and cfg.get("tr2", 1): tramp2()
    if HPN:
        poll(s, "P3a0", fload(96), vPD, "f3a0"); stamp(s, "ok3a"); issue_h(hpb)
    gelu_pair(192, 224, 2, 168, [48, 52, 56, 60], None, hookA)
    for r in range(32): s("v_accvgpr_read_b32 v%d, a%d" % (192 + r, 64 + r))
    issue_h(hpb)
    for mp in range(2):
        o = 240 + 4 * mp; items = []
        for mm in range(2):
            m = 2 * mp + mm
            items += [(192 + 4 * m, 208 + 4 * m, o + 2 * mm), (194 + 4 * m, 210 + 4 * m, o + 2 * mm + 1)]
        gelu_block(s, items, CC, 168)
        if mp == 0:
            s("v_accvgpr_read_b32 v%d, a%d" % (vTA, PK["TA"]))
            for u in range(1, 6): s("v_xor_b32 v%d, %d, v%d" % (vTA + u, 32 * u, vTA))
        issue_h(hpb if mp == 0 else 99)
        if mp == 1 and not HPN: s.vm(fload(96), "f3a0")
        for mm in range(2):
            s.vm("buffer_store_dwordx2 %s, v%d, s[32:35], s67 offen offset:%d %s" % (P(o + 2 * mm), vH8, 1024 * (2 * mp + mm), hst), ("hsS", 2 * mp + mm))
        if mp == 0:
            s.wait([("D2", st, k) for st in range(cfg.get("bar2", 2)) for k in range(4)])
            s("s_barrier")
            pre_reads_at = len(s.u)
    for u in range(6, 8): s("v_xor_b32 v%d, %d, v%d" % (vTA + u, 32 * u, vTA))
    L2 = cfg.get("l2_lead", 4); B2 = cfg.get("bar2", 2)
    def read2(G, part):
        uu, u = groups[G]; f = G % NWB
        if uu < 28:
            st, kk = divmod(uu, 2)
            return Op("ds_read_b64_tr_b16 %s, v%d offset:%d" % (R("a", aW2 + 4 * f + 2 * part, 2), vTA + u, (slot[st] % 4) * 16384 + kk * 8192 + part * 4096), "lg", K(("F2", G, part)))
        _, st, kk = steps[uu]
        return Op("ds_read_b128 %s, v%d offset:%d" % (R("a", aW2 + 4 * f, 4), vCA + 2 * (slot[st] >= 4) + kk, (slot[st] % 4) * 16384 + u * 2048), "lg", K(("F2", G, part)))
    parts = lambda G: [0, 1] if groups[G][0] < 28 else [None]
    mf = []
    for G, m in mo:
        uu, u = groups[G]
        mf.append(Op(mfma16(("v", 128 + 16 * u + 4 * m), ("a", aW2 + 4 * (G % NWB)), (hreg[uu][0], hreg[uu][1] + 4 * m), zero=(uu == 0 and u >= 2))))
    sc = Sch(mf)
    gneed = lambda G: [("F2", H, p) for H in range(G, tail(G) + 1) for p in parts(H)] + [("H", uu, m) for uu in range(44) if firstuse[uu] == G and uu not in own for m in range(4)]
    rgap = {}
    for G in range(NG):
        st, f = divmod(G, 16)
        if st < 14 and st % B2 == B2 - 1:
            if f <= 4: rgap[G] = 4 * (G - L2) - 1
            elif f == 5: rgap[G] = 4 * (G - 1 - L2) + 1
            elif f <= 10: rgap[G] = 4 * (G - 1 - L2) - 1
            elif f == 11: rgap[G] = 4 * (G - 2 - L2) + 1
            else: rgap[G] = 4 * (G - 2 - L2) - 1
        else: rgap[G] = 4 * (G - L2) - 1
        assert rgap[G] >= 4 * tail(G - NWB) + 3
    pr = Seq()
    for G in range(NG):
        if rgap[G] < 0:
            for p in parts(G): pr.op(read2(G, p))
    s.u[pre_reads_at:pre_reads_at] = pr.units()
    s.wait(gneed(0))
    stamp(s, "loop2")
    prog.add(s.done())
    for G in range(1, NG):
        w = Op("", needs=K(gneed(G)))
        w.keep = sum(len(parts(H)) for H in range(max(0, G - 2), min(NG, G + 10)) if rgap[H] == 4 * G - 1) == 2
        if w.keep or head(G) == G: sc.put(4 * G - 1, [w], 0)
    for G in range(NG):
        if rgap[G] >= 0:
            if rgap[G] % 4 != 3: sc.put(rgap[G], [Op("s_waitcnt lgkmcnt(15)")], 0)
            sc.put(rgap[G], [read2(G, p) for p in parts(G)], 1)
    bar = {}
    for st in range(14):
        if st % B2 != B2 - 1: continue
        bar[st] = 4 * (16 * (st + 1) - L2) - 2
        pub = list(range(st + 1, st + 1 + B2)) if st < 13 else [14, 15, 16, 17]
        sc.put(bar[st], [Op("s_barrier", needs=K([("D2", x, k) for x in pub for k in range(4)]), drain=["lg"])], 0)
    for st in (3, 7, 11):
        for i_, g_ in enumerate((1, 2, 4, 5)):
            sc.put(bar[st] - g_, [Op("v_xor_b32 v%d, 0x10000, v%d" % (vTA + 2 * i_ + k, vTA + 2 * i_ + k)) for k in range(2)], 2)
        assert max(rgap[G] for G in range(16 * st, 16 * st + 16)) < bar[st] - 5
    barF = min(rgap[G] for G in range(NG) if groups[G][0] >= 36) - 1
    sc.put(barF, [Op("s_barrier", needs=K([("D2", x, k) for x in range(18, 22) for k in range(4)]))], 0)
    def mark(o, nm): o.u[-1].append(nm)
    def after(o, nm, n): o.u.append([[Op("")], lambda mk: (mk[nm] + n) if nm in mk else None])
    def dly(o, n): o.u.append([[Op("")], lambda mk: mk["_prev"] + n])
    gl = []
    t = Seq()
    t("v_accvgpr_read_b32 v%d, a%d\nv_accvgpr_read_b32 v%d, a%d\nv_accvgpr_read_b32 v%d, a%d" % (vAG, PK["AG"], vTRW, PK["TRW"], vTRR, PK["TRR"]))
    t("s_mov_b32 s40, s36\ns_mov_b32 s41, s37\ns_mov_b32 s42, 0x40000\ns_mov_b32 s43, 0x20000")
    t("v_lshrrev_b32 v8, 4, v0\nv_cmp_eq_u32 s[64:65], 1, v8\nv_cmp_eq_u32 s[66:67], 2, v8\nv_cmp_eq_u32 s[74:75], 3, v8")
    t.at(cfg.get("ag_gap", 32))
    for x in range(7, -1, -1):
        t("s_mov_b32 s57, %d" % (8192 * x))
        g = "buffer_load_dwordx4 %s, v%d, s[40:43], s57 offen %s" % (R("a", aAG + 4 * x, 4), vAG, SC)
        gl.append("s_mov_b32 s57, %d\n%s" % (8192 * x, g))
        t.vm(g, ("ag", x))
        if x: dly(t, cfg.get("ag_sp", 8))
    mark(t, "ag")
    srd(t, 8, 86, 87, 2048 * 4096)
    flag(t, fstore(32), [("hsS", 3)], early=cfg.get("fb_gap", 80)); mark(t, "flagb")
    after(t, "ag", cfg.get("ag_lat", 20)); t.at(4 * lastuse[0] + 4)
    def ag_horner(o, w):
        cur = None
        for x in range(7, -1, -1):
            q = 48 + 4 * (x % 2)
            if w: o.wait([("ag", x)])
            for r in range(4): o("v_accvgpr_read_b32 v%d, a%d" % (q + r, aAG + 4 * x + r))
            if not w: o(("v_max3_u32 v56, v%d, v%d, v%d\nv_max_u32 v56, v56, v%d" % (q, q + 1, q + 2, q + 3)) if x == 7 else ("v_max3_u32 v56, v56, v%d, v%d\nv_max3_u32 v56, v56, v%d, v%d" % (q, q + 1, q + 2, q + 3)))
            if cur is not None: horner_sc(o, cur, cL64, q)
            cur = q
    ag_horner(t, True)
    t("v_cmp_u_f32 s[70:71], v48, v49")
    t.atom(["v_cmp_u_f32 vcc, v50, v51", "s_or_b64 vcc, vcc, s[70:71]", "s_cbranch_scc1 PAG_retry", "PAG_ok:"])
    ool("PAG_retry:\n" + "\n".join(gl) + "\ns_waitcnt vmcnt(0)")
    ag_horner(ool, False)
    ool("v_cmp_eq_u32 vcc, -1, v56\ns_and_b64 vcc, vcc, exec\ns_cbranch_scc0 PAG_ok\ns_cmp_eq_u32 s79, 0\ns_cbranch_scc1 PAG_ok\ns_sub_u32 s79, s79, 1\ns_sleep 1\ns_branch PAG_retry")
    t.lg("ds_write_b128 v%d, v[48:51] offset:1024" % vEW)
    for g, r in ((3, 52), (2, 56), (1, 60)): t.lg("ds_read_b128 %s, v%d offset:%d" % (Q(r), vER, 1024 + 256 * g), ("s", g))
    t.lg("ds_read_b128 %s, v%d offset:1024" % (Q(48), vER), ("s", 0))
    dly(t, 8)
    t.wait([("s", 2)]); horner_sc(t, 52, cL512, 56)
    t.lg("ds_read_b128 %s, v%d" % (Q(52), vER), ("e2", 0))
    t.wait([("s", 1)]); horner_sc(t, 56, cL512, 60)
    t.lg("ds_read_b128 %s, v%d offset:256" % (Q(56), vER), ("e2", 1))
    t.wait([("s", 0)]); horner_sc(t, 60, cL512, 48)
    t.lg("ds_read_b128 %s, v%d offset:512" % (Q(60), vER), ("e2", 2))
    t.wait([("e2", 0)]); horner_sc(t, 48, cL16, 52)
    t.wait([("e2", 1)]); horner_sc(t, 52, cL16, 56)
    t.wait([("e2", 2)]); horner_sc(t, 56, cL16, 60)
    for g, sm in ((52, 64), (56, 66), (60, 74)):
        for r in range(4): t("v_cndmask_b32 v%d, v%d, v%d, s[%d:%d]" % (48 + r, 48 + r, g + r, sm, sm + 1))
    horner_sc(t, 48, cL8, EA)
    t("v_xor_b32 v52, 16, v%d" % vTRR)
    st_r = {(T, h): (48, EA)[h] + T for T in range(2) for h in range(2)}
    st_i = {(T, h): (48, EA)[h] + 2 + T for T in range(2) for h in range(2)}
    TH = [(T, h) for T in range(2) for h in range(2)]
    xs = Seq()
    for x in range(8):
        for (T, h) in TH: t("v_fmac_f32 v%d, v%d, v%d" % (BR(T, x) + h, cL + T, st_r[T, h]))
        for (T, h) in TH: t("v_fmac_f32 v%d, v%d, v%d" % (BI(T, x) + h, cL + T, st_i[T, h]))
        for (T, h) in TH: t("v_fma_f32 v%d, -v%d, v%d, v%d" % (BR(T, x) + h, cL + 2 + T, st_i[T, h], BR(T, x) + h))
        for (T, h) in TH: t("v_fmac_f32 v%d, v%d, v%d" % (BI(T, x) + h, cL + 2 + T, st_r[T, h]))
        for (T, h) in TH: st_r[T, h] = BR(T, x) + h; st_i[T, h] = BI(T, x) + h
        if x % 2 == 1:
            m = x // 2; mo = (m % 2) * 2048
            for part, Fn in enumerate((BR, BI)):
                for T in range(2):
                    o = 56 + 4 * part + 2 * T
                    t("v_cvt_pk_bf16_f32 v%d, v%d, v%d\nv_cvt_pk_bf16_f32 v%d, v%d, v%d" % (o, Fn(T, x - 1), Fn(T, x - 1) + 1, o + 1, Fn(T, x), Fn(T, x) + 1))
                    t.lg("ds_write_b64 v%d, %s offset:%d" % (vTRW, P(o), mo + part * 1024 + 512 * T))
                t.atom(["s_waitcnt lgkmcnt(15)"] + [Op("ds_read_b64_tr_b16 %s, v%d offset:%d" % (R("a", aAG + 16 * part + 4 * m + 2 * half, 2), (vTRR, 52)[half], mo + part * 1024 + 256 * half), "lg", K(("tr", m, part, half))) for half in range(2)])
                mark(t, ("tr", m, part))
                after(xs, ("tr", m, part), 10)
                if (m, part) != (0, 0) and m < 3: after(xs, ("hl", m - 1 + part, 1 - part), cfg.get("hl_sp", 24))
                xs.vm("buffer_store_dwordx4 %s, v1, s[32:35], s%d offen offset:%d %s" % (R("a", aAG + 16 * part + 4 * m, 4), 72 + part, 1024 * m, hst), ("hl", m, part), needs=[("tr", m, part, 1)])
                mark(xs, ("hl", m, part))
    dly(xs, cfg.get("fc_lat", 60))
    flag(xs, fstore(64), [("hl", 3, 1)]); mark(xs, "flagc")
    t("v_accvgpr_read_b32 v48, a%d\nv_accvgpr_read_b32 v%d, a%d" % (PK["C"], vCA, PK["CA"]))
    for k in range(4): t("s_xor_b32 s65, s%d, %d\ns_lshl_b32 s65, s65, 16\nv_add_u32 v%d, s65, v48" % (sQ, k, vC + k))
    t("s_and_b32 s65, s%d, 1\ns_lshl_b32 s65, s65, 6\nv_xor_b32 v%d, s65, v%d" % (sTN, vCA, vCA))
    t("v_xor_b32 v%d, 64, v%d\nv_add_u32 v%d, 0x10000, v%d\nv_xor_b32 v%d, 64, v%d" % (vCA + 1, vCA, vCA + 2, vCA, vCA + 3, vCA + 2))
    vOO = 28
    t("v_accvgpr_read_b32 v24, a%d\nv_accvgpr_read_b32 v25, a%d\nv_lshlrev_b32 v25, 2, v25\nv_lshl_add_u32 v%d, v24, 12, v25" % (PK["TOK"], PK["COL"], vOO))
    mark(t, "cready")
    RB = lambda u, m: 128 + 16 * u + 4 * m
    after(t, "flagc", 1)
    t("s_lshl_b32 s65, s%d, 3\ns_add_u32 s65, s65, s%d\ns_lshl_b32 s66, s65, 18\ns_lshl_b32 s67, s%d, 14\ns_add_u32 s66, s66, s67\ns_add_u32 s66, s66, 0x%x" % (sI, sTN, sW, WS_PART))
    t.atom(["s_add_u32 s40, s6, s66", "s_addc_u32 s41, s7, 0"])
    t("s_and_b32 s41, s41, 0xffff\ns_mov_b32 s42, 0x34000\ns_mov_b32 s43, 0x20000")
    t("s_lshl_b32 s69, s65, 2\ns_add_u32 s69, s69, s%d\ns_lshl_b32 s69, s69, 7\ns_add_u32 s69, s69, 0x%x" % (sW, SM_F4))
    for d in (1, 2, 3):
        t("s_xor_b32 s67, s%d, %d\ns_lshl_b32 s66, s67, 16\ns_add_u32 s%d, s66, %d" % (sQ, d, 72 + d, (d - 1) * 4096))
        t("s_lshl_b32 s67, s67, 4\ns_add_u32 s67, s67, %d\nv_mov_b32 v%d, s67" % (4 * d, 28 + d))
        t("s_lshl_b32 s67, s%d, 16\ns_add_u32 s%d, s67, %d" % (sQ, 69 + d, (d - 1) * 4096))
    t("s_lshl_b32 s67, s%d, 4\nv_and_b32 v32, 3, v0\nv_lshl_add_u32 v32, v32, 2, s67" % sQ)
    t("s_mov_b32 s57, 0\ns_mov_b32 s58, 8192\ns_mov_b32 s59, 16384\ns_mov_b32 s64, 24576")
    t("v_mov_b32 v34, 0x3f80\nv_mov_b32 v35, 0x3f800000")
    mark(t, "setup")
    f4store = lambda d: "buffer_store_dword v%d, v%d, s[36:39], s69 offen %s" % (vTG, 28 + d, SC)
    f4load = "buffer_load_dword v33, v32, s[36:39], s69 offen %s" % SC
    gp = lambda d: 4 * pend_[d] + 3 + 3
    RV = lambda d, m: 128 + 32 * d + 16 + 4 * m
    rload = lambda d, m: "buffer_load_dwordx4 %s, v1, s[40:43], s%d offen offset:%d %s" % (Q(RV(d, m)), 69 + d, 1024 * m, SC)
    NFI = cfg.get("nfi", 3); NRI = cfg.get("nri", 1)
    fs = Seq(); rs = Seq()
    for d in (1, 2, 3):
        t.at(gp(d))
        for m in range(4):
            A = 128 + 32 * d + 4 * m; Bq = A + 16
            t("v_cvt_pk_bf16_f32 v%d, v%d, v%d\nv_cvt_pk_bf16_f32 v%d, v%d, v%d\nv_cvt_pk_bf16_f32 v%d, v%d, v%d\nv_cvt_pk_bf16_f32 v%d, v%d, v%d" % (A, A, A + 1, A + 1, A + 2, A + 3, A + 2, Bq, Bq + 1, A + 3, Bq + 2, Bq + 3))
            mark(t, ("cv", d, m))
            after(xs, ("cv", d, m), 1)
            xs.vm("buffer_store_dwordx4 %s, v1, s[40:43], s%d offen offset:%d %s" % (Q(A), 72 + d, 1024 * m, SC), ("ps", d, m)); mark(xs, ("ps", d, m))
        if d <= NFI:
            after(fs, ("ps", d, 3), cfg.get("f4_lat", 44)); flag(fs, f4store(d), [("ps", d, 3)]); mark(fs, ("f4", d))
        if d <= NRI:
            after(rs, ("f4", d), cfg.get("p4_lat", 36)); rs.vm(f4load, ("f4l", d)); dly(rs, cfg.get("p4_rt", 40))
            poll(rs, "P4%d" % d, f4load, 33, ("f4l", d), mask=str(1 << d))
            for m in range(4):
                rs.vm(rload(d, m), ("pl", d, m)); mark(rs, ("pl", d, m))
    hs = Seq(); hdl = {}
    if not HPN: poll(hs, "P3a0", fload(96), vPD, "f3a0", early=cfg.get("pa_gap", 12))
    for u in range(nh_pre[0], 44):
        if u in own: continue
        for (U, nm, off, fl, lat) in ((UA, "P3a", 0, None, 0), (UB, "P3b", 32, "flagb", cfg.get("pb_lat", 80)), (UC, "P3c", 64, "flagc", cfg.get("pc_lat", 80))):
            if u == (max(U - 2, nh_pre[0]) if U != UC else U):
                if fl: after(hs, fl, lat)
                hs.vm(fload(off), nm); mark(hs, nm + "l")
            if u == U:
                after(hs, nm + "l", cfg.get("poll_rt", 44)); poll(hs, nm, fload(off), vPD, nm); mark(hs, nm)
        n0 = len(hs.u)
        for m in range(4): hload(hs, u, m, max(hfree[u], 4 * firstuse[u] - cfg.get("l2_la", 400)))
        for i in range(n0, len(hs.u)): hdl[i] = 4 * firstuse[u] - 1
        mark(hs, ("H", u))
    ds = Seq(); ddl = {}
    DL = lambda st: bar[st // B2 * B2 - 1] if st < 14 else (bar[13] if st < 18 else barF)
    for st in range(NPRE2, 22):
        n0 = len(ds.u)
        if st == "E":
            after(ds, "cready", 1); after(ds, ("hl", 3, 1), 1)
            for n in range(4):
                ds("s_mov_b32 s%d, %d\ns_add_u32 m0, s46, %d" % (sKD, 32768 * n, 2048 + 1024 * n))
                ds.vm("buffer_load_dwordx4 v26, s[24:27], s%d offen lds" % sKD)
            ds("s_add_u32 m0, s46, 6144"); ds.vm("buffer_load_dwordx4 v1, s[36:39], s59 offen lds")
            ds("s_add_u32 m0, s46, 7168"); ds.vm("buffer_load_dwordx4 v1, s[28:31], s58 offen lds", "Elast"); mark(ds, "edma")
            dl = 900
        else:
            if st == 14: after(ds, "cready", 1)
            for k in range(4): dma2(ds, st, k, bar[prevocc[st] // B2 * B2 + B2 - 1] + 1 if st >= 8 else 0)
            dl = DL(st)
            mark(ds, ("D", st))
        for i in range(n0, len(ds.u)): ddl[i] = dl
    mk = multi(sc, [Stream("h", hs.units(), 2, deadline=lambda i: hdl.get(i, 0)), Stream("d", ds.units(), 2, deadline=lambda i: ddl.get(i, 0)),
                    Stream("x", xs.units(), 2), Stream("t", t.units(), 3, start=1), Stream("r", rs.units(), 2, deadline=lambda i: 0), Stream("f", fs.units(), 2, deadline=lambda i: -2)],
               cl=cfg.get("cl", 70), cs=cfg.get("cs", 240), B0=cfg.get("b0", 150), busy0=cfg.get("busy0", 300))
    sl = sorted([(4 * firstuse[u] - 1 - mk[("H", u)], "h", u) for u in range(nh_pre[0], 44) if u not in own] + [(DL(st) - mk[("D", st)], "d", st) for st in range(NPRE2, 22)])
    if cfg.get("verbose"):
        print("loop2 slacks", sl[:6], {k: v for k, v in mk.items() if isinstance(k, str)}, "hl", [mk[("hl", m, p)] for m in range(4) for p in range(2)], "ps", [mk[("ps", d, m)] for d in (1, 2, 3) for m in range(4)], "barF", barF, "f4", [mk.get(("f4", d)) for d in (1, 2, 3)], "pl", [mk.get(("pl", d, 3)) for d in (1, 2, 3)])
    assert sl[0][0] > cfg.get("minslack", 30), sl[:4]
    assert mk["cready"] < rgap[firstuse[28]] and mk[("hl", 3, 1)] < 4 * firstuse[28] - 1 and mk["setup"] < gp(1) and mk[("tr", 3, 1)] < VFREE
    for nm in names:
        if TS and nm[0] == "g" and nm[1:].isdigit():
            g_ = 4 * (16 * (int(nm[1:]) + 1) - L2) - 2
            sc.put(g_ - 1, [Op("s_memrealtime s[100:101]")], 5)
            sc.put(g_, [Op("s_waitcnt lgkmcnt(0)\nv_writelane_b32 v%d, s100, %d" % (vTS, names.index(nm)))], 5)
    if cfg.get("drop"):
        for g in range(cfg.get("drop_lo", 120), cfg.get("drop_hi", 600)):
            for it in sc.g[g]:
                o = it[2]
                if it[0] in (2, 3) and o.text and "\n" not in o.text and not o.text.endswith(":"):
                    c = opclass(o.text)
                    if it[0] == 2 and not (c == "X" and "x4" in o.text): continue
                    if c in cfg["drop"] and "cmp" not in o.text and not any(("v%d," % r) in o.text.split(None, 2)[1] + "," for r in range(16, 32)):
                        o.text = "s_nop 0" if cfg.get("dropnop") else ""
    prog.add(sc.ops())
    stamp(s, "end2")
    def addp(d, m):
        s.wait([("pl", d, m)])
        for k in range(8):
            r = RB(k // 4, m) + k % 4
            s("v_dot2_f32_bf16 v%d, v%d, v%d, v%d" % (r, RV(d, m) + k // 2, 34 + k % 2, r))
    for d in range(NFI + 1, 4): flag(s, f4store(d), [("ps", d, 3)])
    stamp(s, "drain4")
    s.vm(f4load, "f4")
    for d in range(1, NRI + 1):
        for m in range(4): addp(d, m)
    for d in range(NRI + 1, 4):
        poll(s, "P4%d" % d, f4load, 33, "f4", mask=str(1 << d))
        for m in range(4): s.vm(rload(d, m), ("pl", d, m))
    stamp(s, "poll4")
    for d in range(NRI + 1, 3):
        for m in range(4): addp(d, m)
    sM4 = [57, 58, 59, 64]
    for m in range(4):
        addp(3, m)
        stamp(s, "r%d" % m)
        s.vm("buffer_store_dwordx4 %s, v%d, s[8:11], s%d offen %s" % (Q(RB(0, m)), vOO, sM4[m], cfg.get("ost", SC)))
        s("s_nop 1")
        s.vm("buffer_store_dwordx4 %s, v%d, s[8:11], s%d offen offset:64 %s" % (Q(RB(1, m)), vOO, sM4[m], cfg.get("ost", SC)))
    prog.add(s.done())
    prog.emit(a)
    a("s_cmp_eq_u32 s%d, 31\ns_cbranch_scc0 L_noep\ns_cmp_eq_u32 s%d, 0\ns_cbranch_scc0 L_noep" % (sB, sJ))
    a("v_mov_b32 v40, 0x%x\ns_mov_b64 exec, 1\nbuffer_store_dword v%d, v40, s[36:39], 0 offen %s\ns_mov_b64 exec, -1" % (SM_EP, vTG, SC))
    a("L_noep:")
    if TS:
        a("s_waitcnt vmcnt(0)\ns_memrealtime s[100:101]\ns_waitcnt lgkmcnt(0)\nv_writelane_b32 v%d, s100, %d" % (vTS, len(names) - 1))
        a("s_cmp_lg_u32 s%d, %d\ns_cbranch_scc1 L_end" % (sW, cfg.get("tsw", 0)))
        if cfg.get("leak"):
            A, B = cfg["leak"].split(":")
            a("s_cmp_lg_u32 s2, %d\ns_cbranch_scc1 L_end" % cfg.get("leakwg", 100))
            a("v_readlane_b32 s64, v%d, %d\nv_readlane_b32 s65, v%d, %d\ns_nop 4\ns_sub_u32 s64, s65, s64\ns_mul_i32 s64, s64, %d\ns_min_u32 s64, s64, 200000" % (vTS, names.index(A), vTS, names.index(B), cfg.get("leakk", 8)))
            a("L_leak:\ns_memrealtime s[66:67]\ns_waitcnt lgkmcnt(0)\ns_sub_u32 s66, s66, s100\ns_cmp_lt_u32 s66, s64\ns_cbranch_scc1 L_leak")
        ws_srd(a, 12, WS_TS, 16384)
        a("s_lshl_b32 s75, s2, 6\nv_lshlrev_b32 v1, 2, v0\ns_mov_b64 exec, 0xffff\nbuffer_store_dword v%d, v1, s[12:15], s75 offen" % vTS)
    a("L_end:")
    a("s_endpgm")
    if ".p2align 12" in a.lines and cfg.get("oolf", 1):
        i = a.lines.index(".p2align 12"); a.lines[i:i] = ool.lines
    else: a.lines += ool.lines
    a("L_codeend:")
    return name, a

def inst_sizes(lines):
    import subprocess, tempfile, os, re
    d = tempfile.mkdtemp()
    und = sorted(set(re.findall(r"L_trB?\d+\b", "\n".join(lines))))
    open(d + "/a.s", "w").write('.amdgcn_target "amdgcn-amd-amdhsa--gfx950"\n' + "\n".join(l for l in lines if not l.startswith(".p2align 12")) + "\n" + "".join(u + ":\n" for u in und))
    subprocess.check_call(["clang", "-x", "assembler", "-target", "amdgcn-amd-amdhsa", "-mcpu=gfx950", "-c", d + "/a.s", "-o", d + "/a.o"])
    o = subprocess.check_output(["llvm-objdump", "-d", "--mcpu=gfx950", d + "/a.o"], text=True)
    sz = [4 * len(m.group(1).split()) for m in re.finditer(r"// [0-9A-F]+: ([0-9A-F ]+)", o)]
    n = sum(1 for l in lines if parse(l))
    assert n == len(sz), (n, len(sz))
    return sz

def add_stubs(lines, cfg):
    NL = 1; step = cfg.get("tr_step", 128)
    sz = iter(inst_sizes(lines)); size = [next(sz) if parse(l) else 0 for l in lines]
    i0 = lines.index("L_main:"); iend = lines.index("L_end:")
    out = lines[:i0 + 1]; off = 0; targets = [4096 * p + step * k for p in range(0, 40) for k in range(NL)]
    n = 0; pos = []
    def penalty(i):
        if not lines[i - 1].startswith("v_mfma"): return 0 if not any(l.startswith("v_mfma") for l in lines[max(0, i - 6):i + 6]) else 1
        j = i; c = ["S"]
        while not lines[j].startswith("v_mfma") and j - i < 8:
            try: c.append(opclass(lines[j]))
            except AssertionError: return 0
            j += 1
        t = gap_time(c)
        return 0 if (t is not None and t <= 16) else 1
    for i in range(i0 + 1, len(lines)):
        if i < iend and size[i] and off >= targets[n] and (penalty(i) == 0 or off + size[i] > targets[n] + 56):
            out.append("L_tr%d:" % n); out.append(("STUB", n)); off += 4; n += 1
        out.append(lines[i]); off += size[i]
    n1 = min(n, cfg.get("tr_n", 14))
    res = []
    for l in out:
        if isinstance(l, tuple):
            k = l[1]; nx = k + 4
            if k < n1: res.append("s_cbranch_execz %s" % ("L_tr%d" % nx if nx < n1 else "L_trret"))
            elif cfg.get("tr2", 1): res.append("s_cbranch_execz %s" % ("L_tr%d" % nx if nx < n else "L_trret2"))
            else: res.append("s_nop 0")
        elif "L_trB" in l:
            k = n1 + int(l[-1]); res.append(l.replace("L_trB" + l[-1], "L_tr%d" % k if k < n else "L_trret2"))
        else: res.append(l)
    if cfg.get("verbose"): print("pages", n)
    return res

def build(cfg):
    name, a = gen(cfg)
    hdr = open("cdna_kernels/%s.s.ref" % NAME).read().split("; Override launch")[0]
    out = hdr + "; @launch grid=(256,1,1) block=(256,1,1) lds=163840\n"
    out += '.amdgcn_target "amdgcn-amd-amdhsa--gfx950"\n'
    lines = pad_hazards([l for l in a.lines if l], cfg.get("verbose", 0) > 1)
    if cfg.get("tramp", 1): lines = add_stubs(lines, cfg)
    if cfg.get("verbose"): print(gap_report(lines))
    if cfg.get("lsc"): lines = [l.replace("sc0 sc1", cfg["lsc"]) if l.startswith("buffer_load") else l for l in lines]
    la = cfg.get("laux"); da = cfg.get("daux")
    if la: lines = [l + " " + la if (l.startswith("buffer_load_dwordx4 a[") and "sc1" not in l) else l for l in lines]
    if da: lines = [l.replace(" lds", " %s lds" % da) if l.endswith(" lds") else l for l in lines]
    out += "\n".join(lines) + "\n"
    if cfg.get("cyc"): out = out.replace("s_memrealtime", "s_memtime")
    b = Asm(); kernel_desc(b, name, 512, accum=256); out += b.text()
    return out

if __name__ == "__main__":
    cfg = {}
    for kv in sys.argv[2:]:
        k, v = kv.split("=")
        try: v = int(v)
        except ValueError:
            try: v = float(v)
            except ValueError: v = v.replace("+", " ")
        cfg[k] = v
    open(sys.argv[1], "w").write(build(cfg))
```

```python
import sys, math, struct
from asmlib import *

NAME = "parallel_sum__ssm_conv_s5__glu_gated_geglu__prompt"
KX, KLRE, KLIM, KBRE, KBIM, KCRE, KCIM, KLDT, KDSK, KBX, KWG, KWU, KWD, KOUT, KDBG, KWS = [8 * i for i in range(16)]
WS_XN = 0
WS_H = 0x400000
H_BLK = 176 * 4096
WS_SM = 0x1A00000
SM_AG = 0; SM_ST = 0x40000; SM_EP = 0x48000; SM_F1 = 0x50000; SM_F1B = 0x60000; SM_F3 = 0x70000; SM_F4 = 0xB0000; SM_SIZE = 0xF0000
WS_TS = 0x1B00000
WS_PART = 0x2000000
NSTAMPS = [16]
SPLIT_LAYOUT = True
XN_DIRECT = 0
STAMPS = []

def f2u(x): return struct.unpack("<I", struct.pack("<f", x))[0]
def fx(x): return "0x%08x" % f2u(x)
P = lambda r: "v[%d:%d]" % (r, r + 1)
Q = lambda r: "v[%d:%d]" % (r, r + 3)
LOG2E = 1.4426950408889634
K = lambda v: (lambda it: v)

def ws_srd(a, r, off, size):
    a("s_add_u32 s%d, s6, 0x%x\ns_addc_u32 s%d, s7, 0\ns_and_b32 s%d, s%d, 0xffff\ns_mov_b32 s%d, 0x%x\ns_mov_b32 s%d, 0x20000" % (r, off, r + 1, r + 1, r + 1, r + 2, size, r + 3))

def mfma16(d, A, B, zero=False):
    return "v_mfma_f32_16x16x32_bf16 %s, %s, %s, %s" % (R(d[0], d[1], 4), R(A[0], A[1], 4), R(B[0], B[1], 4), "0" if zero else R(d[0], d[1], 4))

def cmul_pk(a, dr, di, ar, ai, br, bi, t):
    a("v_pk_mul_f32 %s, %s, %s" % (P(t), P(ai), P(bi)))
    a("v_pk_fma_f32 %s, %s, %s, %s neg_lo:[0,0,1] neg_hi:[0,0,1]" % (P(t), P(ar), P(br), P(t)))
    a("v_pk_mul_f32 %s, %s, %s" % (P(t + 2), P(ar), P(bi)))
    a("v_pk_fma_f32 %s, %s, %s, %s" % (P(di), P(ai), P(br), P(t + 2)))
    a("v_mov_b32 v%d, v%d\nv_mov_b32 v%d, v%d" % (dr, t, dr + 1, t + 1))

def horner_pk(a, s, L, e, d):
    a("v_pk_fma_f32 %s, %s, %s, %s" % (P(d), P(L), P(s), P(e)))
    a("v_pk_fma_f32 %s, %s, %s, %s" % (P(d + 2), P(L), P(s + 2), P(e + 2)))
    a("v_pk_fma_f32 %s, %s, %s, %s neg_lo:[1,0,0] neg_hi:[1,0,0]" % (P(d), P(L + 2), P(s + 2), P(d)))
    a("v_pk_fma_f32 %s, %s, %s, %s" % (P(d + 2), P(L + 2), P(s), P(d + 2)))

def horner_sc(a, s, L, e):
    for T in range(2):
        a("v_fmac_f32 v%d, v%d, v%d" % (e + T, L + T, s + T)); a("v_fmac_f32 v%d, v%d, v%d" % (e + 2 + T, L + T, s + 2 + T))
    for T in range(2):
        a("v_fma_f32 v%d, -v%d, v%d, v%d" % (e + T, L + 2 + T, s + 2 + T, e + T)); a("v_fmac_f32 v%d, v%d, v%d" % (e + 2 + T, L + 2 + T, s + T))

def gelu_block(a, items, CC, T):
    for k, (g, u, o) in enumerate(items): a("v_pk_mul_f32 %s, %s, %s" % (P(T + 2 * k), P(g), P(g)))
    for k, (g, u, o) in enumerate(items): a("v_pk_fma_f32 %s, %s, %s, %s op_sel:[0,1,0] op_sel_hi:[1,1,0]" % (P(T + 2 * k), P(T + 2 * k), P(CC), P(CC)))
    for k, (g, u, o) in enumerate(items): a("v_pk_mul_f32 %s, %s, %s" % (P(T + 2 * k), P(T + 2 * k), P(g)))
    for k, (g, u, o) in enumerate(items):
        a("v_exp_f32 v%d, v%d" % (T + 2 * k, T + 2 * k)); a("v_exp_f32 v%d, v%d" % (T + 2 * k + 1, T + 2 * k + 1))
        a("v_pk_mul_f32 %s, %s, %s" % (P(u), P(g), P(u)))
    for k, (g, u, o) in enumerate(items): a("v_pk_add_f32 %s, %s, 1.0 op_sel_hi:[1,0]" % (P(T + 2 * k), P(T + 2 * k)))
    for k, (g, u, o) in enumerate(items):
        a("v_rcp_f32 v%d, v%d" % (T + 2 * k, T + 2 * k)); a("v_rcp_f32 v%d, v%d" % (T + 2 * k + 1, T + 2 * k + 1))
    for k, (g, u, o) in enumerate(items): a("v_pk_mul_f32 %s, %s, %s" % (P(u), P(u), P(T + 2 * k)))
    for k, (g, u, o) in enumerate(items): a("v_cvt_pk_bf16_f32 v%d, v%d, v%d" % (o, u, u + 1))

class Seq:
    def __init__(self): self.u = []
    def __call__(self, s):
        for l in s.split("\n"):
            l = l.strip()
            assert not l.startswith(("buffer_", "global_", "ds_")), ("uncounted memory op", l)
            self.u.append([[Op(l)], None])
    def atom(self, ops, early=None): self.u.append([[o if isinstance(o, Op) else Op(o) for o in ops], early])
    def vm(self, text, tag=None, needs=None, early=None):
        if needs: self.wait(needs, early=early); early = None
        self.u.append([[Op(text, "vm", K(tag) if tag is not None else None)], early])
    def lg(self, text, tag=None, needs=None):
        if needs: self.wait(needs)
        self.u.append([[Op(text, "lg", K(tag) if tag is not None else None)], None])
    def wait(self, needs, drain=None, early=None): self.u.append([[Op("", needs=K(needs) if needs else None, drain=drain)], early])
    def op(self, o, early=None): self.u.append([[o], early])
    def delay(self, n):
        self._d = n; i = len(self.u) - 1
        self.u.append([[Op("")], lambda res, n=n: res[-1] + n])
    def at(self, g): self.u.append([[Op("")], g])
    def done(self):
        o = [x for un, _ in self.u for x in un]; self.u = []; return o
    def units(self):
        u = self.u; self.u = []; return u

def order_mfma(groups):
    ch = [groups[2 * p][1] == groups[2 * p + 1][1] for p in range(len(groups) // 2)]
    out = []; up = True
    for p, c in enumerate(ch):
        if c:
            for m in (range(4) if up else range(3, -1, -1)): out += [(2 * p, m), (2 * p + 1, m)]
            up = not up
        else:
            for G in (2 * p, 2 * p + 1):
                out += [(G, m) for m in (range(4) if up else range(3, -1, -1))]; up = not up
    return out, (lambda G: G & ~1 if ch[G // 2] else G), (lambda G: G | 1 if (G >= 0 and ch[G // 2]) else G)

W_ST = 28672; U_OFF = 14336
B_BASE = 131072; B_ST = 8192
LN_LDS = 65536 + W_ST

def gen(cfg):
    name = NAME + "_kernel"
    a = Asm(); kernel_header(a, name)
    ool = Asm()
    TS = cfg.get("ts")
    names = ["start"] + cfg.get("stamps", "flag1 poll1 loop1 end1 p01 pub loop2 end2 poll4").split() + ["end"]
    STAMPS[:] = names; NSTAMPS[0] = len(names)
    vTS = 15
    def stamp(s, nm):
        if TS and nm in names: s.atom(["s_memrealtime s[100:101]", "s_waitcnt lgkmcnt(0)", "v_writelane_b32 v%d, s100, %d" % (vTS, names.index(nm))])
    SC = cfg.get("sc", "sc0 sc1")
    FS = cfg.get("f1s", 128)
    prog = Prog(); s = Seq()
    sJ, sI, sW, sB, sQ, sTN, sTAG = 60, 61, 62, 63, 52, 53, 3
    sMW, sM3, sMB, sKW, sKB, sKX, sCNT = 54, 55, 56, 57, 58, 59, 81
    sPAs, sKPA, sKPB, sPBs = 76, 77, 78, 80
    def poll(s, nm, loadtext, dst, tagneed, mask=None, early=None):
        s.wait([tagneed], early=early)
        s.atom(["%s_chk:" % nm, "v_cmp_ne_u32 vcc, s%d, v%d" % (sTAG, dst), "s_and_b64 vcc, vcc, %s" % (mask or "exec"), "s_cbranch_scc1 %s_retry" % nm, "%s_ok:" % nm])
        ool("%s_retry:\ns_cmp_eq_u32 s79, 0\ns_cbranch_scc1 %s_ok\ns_sub_u32 s79, s79, 1\ns_sleep %d\n%s\ns_waitcnt vmcnt(0)\ns_branch %s_chk" % (nm, nm, cfg.get("psl", 1), loadtext, nm))
    def flag(s, text, needs, early=None):
        s.wait(needs, early=early)
        s.atom(["s_mov_b64 exec, %d" % (15 if "x4" in text else 1), Op(text, "vm"), "s_mov_b64 exec, -1"])

    s("s_cmp_ge_u32 s2, 256\ns_cbranch_scc1 L_end")
    if cfg.get("gx"): s("s_xor_b32 s2, s2, %d" % cfg["gx"])
    if TS: s("s_memrealtime s[100:101]")
    CP = cfg.get("cpf", 1)
    s("s_load_dwordx2 s[4:5], s[0:1], %d" % KX)
    s("s_load_dwordx2 s[6:7], s[0:1], %d" % KWS)
    s("s_load_dwordx4 s[12:15], s[0:1], %d" % KWG)
    s("s_load_dwordx4 s[24:27], s[0:1], %d" % KBRE)
    s("s_load_dwordx4 s[96:99], s[0:1], %d" % KLRE)
    s("s_load_dwordx4 s[92:95], s[0:1], %d" % KLDT)
    s("s_load_dwordx4 s[84:87], s[0:1], %d" % KWD)
    s("s_load_dwordx4 s[88:91], s[0:1], %d" % KCRE)
    if CP:
        s("s_getpc_b64 s[82:83]")
        s.atom(["L_pc:"])
        s("s_lshr_b32 s64, s2, 3\ns_mul_i32 s64, s64, 28\nv_add_u32 v3, s64, v0\nv_cmp_gt_u32 vcc, 64, v0\nv_cndmask_b32 v2, v3, v0, vcc\nv_lshlrev_b32 v2, 7, v2")
        s("v_min_u32 v2, L_codeend-L_pc-4, v2\nv_mov_b32 v3, 0\nv_lshl_add_u64 v[2:3], v[2:3], 0, s[82:83]")
        s("v_cmp_gt_u32 vcc, 92, v0\ns_and_saveexec_b64 s[66:67], vcc\ns_cbranch_execz L_nocp")
        s.atom([Op("global_load_dword a246, v[2:3], off")])
        s.atom(["L_nocp:", "s_mov_b64 exec, -1"])
    s("v_lshrrev_b32 v1, 6, v0\nv_and_b32 v0, 63, v0")
    s("v_readfirstlane_b32 s%d, v1" % sW)
    s("v_lshlrev_b32 v1, 4, v0")
    s("s_mov_b32 s79, 0x40000")
    s("s_bfe_u32 s%d, s2, 0x20001" % sQ)
    s("s_and_b32 s64, s2, 1\ns_lshl_b32 s64, s64, 2\ns_lshr_b32 s%d, s2, 6\ns_add_u32 s%d, s%d, s64" % (sI, sI, sI))
    s("s_bfe_u32 s%d, s2, 0x30003" % sTN)
    s("s_lshl_b32 s%d, s%d, 3\ns_add_u32 s%d, s%d, s%d" % (sJ, sQ, sJ, sJ, sTN))
    s("s_lshl_b32 s%d, s%d, 2\ns_add_u32 s%d, s%d, s%d" % (sB, sI, sB, sB, sW))
    s("s_and_b32 s64, s2, 1\ns_lshl_b32 s64, s64, 1\ns_lshr_b32 s65, s%d, 1\ns_add_u32 s64, s64, s65\ns_lshl_b32 s64, s64, 4" % sW)
    s("s_lshl_b32 s65, s%d, 1\ns_add_u32 s64, s64, s65" % sQ)
    s("s_lshr_b32 s66, s2, 3\ns_lshl_b32 s65, s66, 6\ns_add_u32 s64, s64, s65")
    s("s_lshl_b32 s67, s64, 11\ns_and_b32 s68, s%d, 1\ns_lshl_b32 s65, s68, 8\ns_add_u32 s67, s67, s65" % sW)
    LQ = cfg.get("lq", 1)
    if LQ: s("v_and_b32 v48, 15, v0\nv_bfe_u32 v56, v0, 1, 1\nv_and_b32 v57, 1, v0\nv_lshl_add_u32 v56, v57, 3, v56\nv_lshrrev_b32 v57, 2, v0\nv_lshlrev_b32 v40, 11, v56\nv_lshl_add_u32 v40, v57, 4, v40")
    else: s("v_and_b32 v48, 15, v0\nv_lshrrev_b32 v56, 5, v0\nv_bfe_u32 v57, v0, 4, 1\nv_lshl_add_u32 v56, v57, 3, v56\nv_lshlrev_b32 v40, 11, v56\nv_lshl_add_u32 v40, v48, 4, v40")
    s("s_mov_b32 s10, %d\ns_mov_b32 s11, 0x20000" % (2048 * 2048))
    s("s_waitcnt lgkmcnt(0)")
    if TS: s("v_writelane_b32 v%d, s100, 0" % vTS)
    stamp(s, "karg")
    s("s_mov_b32 s8, s4\ns_and_b32 s9, s5, 0xffff")
    for q in range(4): s.vm("buffer_load_dwordx4 %s, v40, s[8:11], s67 offen offset:%d" % (Q(64 + 4 * q), 512 * q), ("x", q))
    s("s_add_u32 s70, s6, 0x%x\ns_addc_u32 s71, s7, 0" % (WS_SM + SM_EP))
    s("s_load_dword s%d, s[70:71], 0" % sTAG)
    srd(s, 16, 14, 15, 1024 * 7168); srd(s, 12, 12, 13, 1024 * 7168)
    srd(s, 28, 26, 27, 1024 * 2048); srd(s, 24, 24, 25, 1024 * 2048)
    s("s_cmp_ge_u32 s%d, 2" % sW)
    s("s_cselect_b32 s20, s16, s12\ns_cselect_b32 s21, s17, s13\ns_mov_b32 s22, %d\ns_mov_b32 s23, 0x20000" % (1024 * 7168))
    ws_srd(s, 36, WS_SM, SM_SIZE)
    s("v_lshrrev_b32 v49, 4, v0")
    WGF = 1; vP1 = 63
    s("v_and_b32 v60, 31, v0\nv_lshlrev_b32 v60, 2, v60\ns_lshl_b32 s81, s%d, 7\ns_add_u32 s81, s81, 0x%x" % (sB, SM_F1B))
    s("v_and_b32 v63, 7, v0\nv_lshlrev_b32 v63, 6, v63\ns_lshl_b32 s75, s%d, 11\ns_lshl_b32 s65, s%d, 9\ns_add_u32 s75, s75, s65\ns_add_u32 s75, s75, 0x%x" % (sB, sQ, SM_F1))
    FT = cfg.get("ftouch", 0)
    if FT & 4: s.vm("buffer_load_dword a246, v63, s[36:39], s75 offen %s" % SC)
    if FT & 1: s.vm("buffer_load_dword a246, v60, s[36:39], s81 offen %s" % SC)
    s("v_mov_b32 v41, -1\nv_lshlrev_b32 v42, 2, v0\ns_xor_b32 s69, s2, 0xf8\ns_lshl_b32 s69, s69, 10\ns_lshl_b32 s65, s%d, 8\ns_add_u32 s69, s69, s65" % sW)
    s.vm("buffer_store_dword v41, v42, s[36:39], s69 offen %s" % SC, "agfill")
    vWA, vBA0, vBA1, vWA2, vW0, vW3, vB, vJ, vPA, vPB = 2, 3, 4, 5, 6, 9, 10, 12, 13, 14
    s("s_lshl_b32 s70, s66, 1\ns_and_b32 s65, s2, 1\ns_add_u32 s70, s70, s65")
    s("s_mul_i32 s69, s70, 7168\ns_mul_i32 s65, s%d, 1792\ns_add_u32 s69, s69, s65\nv_and_b32 v40, 31, v0\nv_min_u32 v40, 13, v40\nv_lshl_add_u32 v44, v40, 7, s69" % sQ)
    s("v_and_b32 v45, 3, v0\ns_lshl_b32 s69, s%d, 8\ns_lshl_b32 s65, s70, 2\ns_add_u32 s69, s69, s65\nv_add_u32 v45, s69, v45\nv_lshlrev_b32 v45, 11, v45" % sQ)
    if cfg.get("pfd"):
        n_ = cfg["pfd"]
        s("s_and_b32 s65, s2, 1\ns_mul_i32 s69, s65, %d\ns_add_u32 s69, s69, 7168\ns_mul_i32 s65, s65, %d\ns_add_u32 s65, s65, 8192\nv_cmp_gt_u32 vcc, 32, v0" % (-2 * 7168, -2 * 8192))
        s("v_mov_b32 v40, s69\nv_mov_b32 v43, %d\nv_cndmask_b32 v40, v40, v43, vcc\nv_add_u32 v44, v44, v40\nv_mov_b32 v40, s65\nv_mov_b32 v43, %d\nv_cndmask_b32 v40, v40, v43, vcc\nv_add_u32 v45, v45, v40" % (n_ * 64 * 7168, n_ * 128))
    s("s_mov_b32 s69, %d\ns_cmp_ge_u32 s%d, 2\ns_cselect_b64 vcc, -1, 0\nv_cndmask_b32 v%d, v44, v45, vcc\ns_cselect_b32 s%d, 128, s69" % (64 * 7168, sW, vPA, sPAs))
    s("s_cselect_b32 s40, s24, s12\ns_cselect_b32 s41, s25, s13\ns_cselect_b32 s69, s28, s16\ns_cselect_b32 s65, s29, s17\ns_cselect_b32 s42, s26, s14")
    s("s_bitcmp1_b32 s%d, 0\ns_cselect_b32 s40, s69, s40\ns_cselect_b32 s41, s65, s41\ns_mov_b32 s43, 0x20000\ns_mov_b32 s%d, 0" % (sW, sKPA))
    def pfa(s):
        s.vm("buffer_load_dword a246, v%d, s[40:43], s%d offen" % (vPA, sKPA)); s("s_add_u32 s%d, s%d, s%d" % (sKPA, sKPA, sPAs))
    def pfb(s):
        s.vm("buffer_load_dword a246, v%d, s[44:47], s%d offen" % (vPB, sKPB)); s("s_add_u32 s%d, s%d, s%d" % (sKPB, sKPB, sPBs))
    if cfg.get("pf_skip0"): s("s_mov_b32 s%d, s%d" % (sKPA, sPAs))
    if cfg.get("pfd"): s("s_mov_b32 exec_lo, 0")
    for _ in range(cfg.get("pf_t0", 3) - cfg.get("pf_skip0", 0)): pfa(s)
    if cfg.get("pfd"): s("s_mov_b64 exec, -1\ns_mul_i32 s%d, s%d, %d" % (sKPA, sPAs, cfg.get("pf_t0", 3) - cfg["pfd"]))
    s("s_and_b32 s71, s%d, 1\ns_lshl_b32 s71, s71, 1\ns_mul_i32 s72, s%d, 224\ns_and_b32 s73, s%d, 1\ns_add_u32 s73, s73, 12" % (sJ, sJ, sW))
    for k in range(4):
        if k < 3: s("s_add_u32 s69, s%d, %d\ns_lshl_b32 s69, s69, 6" % (sW, 4 * k))
        else: s("s_lshl_b32 s69, s73, 6")
        s("v_add_u32 v40, s69, v0\nv_mul_u32_u24 v44, 4682, v40\nv_lshrrev_b32 v44, 16, v44\nv_mul_u32_u24 v45, 14, v44\nv_sub_u32 v45, v40, v45")
        s("v_add_u32 v45, s71, v45\nv_subrev_u32 v43, 14, v45\nv_min_u32 v45, v45, v43")
        s("v_lshrrev_b32 v43, 1, v44\nv_xor_b32 v43, v43, v44\nv_and_b32 v43, 4, v43\nv_mul_u32_u24 v43, 3, v43\nv_xor_b32 v44, v44, v43")
        s("v_mul_u32_u24 v44, 7168, v44\nv_lshl_add_u32 v44, v45, 4, v44\nv_add_u32 v%d, s72, v44" % (vW0 + k))
    s("v_lshrrev_b32 v50, 3, v0\ns_lshl_b32 s69, s%d, 3\nv_add_u32 v40, s69, v50\nv_bfe_u32 v44, v40, 1, 3\nv_and_b32 v51, 7, v0\nv_xor_b32 v44, v44, v51" % sW)
    s("v_lshlrev_b32 v47, 11, v40\nv_lshl_add_u32 v47, v44, 4, v47")
    s("s_lshl_b32 s69, s%d, 16\nv_add_u32 v%d, s69, v47" % (sJ, vB))
    s("s_lshl_b32 s%d, s%d, 10\ns_lshl_b32 s%d, s73, 10" % (sMW, sW, sM3))
    s("s_cmp_ge_u32 s%d, 2\ns_cselect_b32 s69, %d, 0\ns_add_u32 s%d, s%d, s69\ns_add_u32 s%d, s%d, %d" % (sW, U_OFF, sM3, sM3, sMB, sMW, B_BASE))
    s("s_lshl_b32 s65, s%d, 9\ns_add_u32 s65, s65, 57344\nv_lshl_add_u32 v52, v0, 3, s65\nv_xor_b32 v54, 512, v52" % sW)
    if LQ: s("v_lshlrev_b32 v55, 12, v49\nv_lshrrev_b32 v44, 2, v48\nv_lshl_add_u32 v55, v44, 8, v55\nv_and_b32 v44, 48, v1\nv_add_u32 v55, v55, v44")
    else: s("v_lshrrev_b32 v55, 2, v48\nv_lshlrev_b32 v55, 12, v55\nv_and_b32 v44, 3, v0\nv_lshl_add_u32 v55, v44, 8, v55\nv_lshl_add_u32 v55, v49, 4, v55")
    s("s_lshl_b32 s70, s66, 17\ns_lshl_b32 s67, s%d, 10\ns_add_u32 s70, s70, s67\ns_and_b32 s67, s2, 1\ns_lshl_b32 s67, s67, 7\ns_add_u32 s70, s70, s67" % sQ)
    s("s_lshr_b32 s67, s%d, 1\ns_lshl_b32 s67, s67, 6\ns_add_u32 s70, s70, s67\ns_lshl_b32 s67, s68, 14\ns_add_u32 s70, s70, s67" % sW)
    s("s_add_u32 s71, s70, 32768\ns_add_u32 s72, s70, 65536\ns_add_u32 s73, s70, 98304")
    s("s_lshl_b32 s74, s2, 7\ns_lshr_b32 s67, s%d, 1\ns_lshl_b32 s67, s67, 6\ns_add_u32 s74, s74, s67\ns_add_u32 s74, s74, 0x%x" % (sW, SM_ST))
    ws_srd(s, 48, WS_XN, 0x400000)
    dma_items = [(vW0, 12, sKW, sMW, 0), (vW0 + 1, 12, sKW, sMW, 4096), (vW0 + 2, 12, sKW, sMW, 8192), (vW3, 20, sKW, sM3, 0),
                 (vW0, 16, sKW, sMW, U_OFF), (vW0 + 1, 16, sKW, sMW, U_OFF + 4096), (vW0 + 2, 16, sKW, sMW, U_OFF + 8192),
                 (vB, 24, sKB, sMB, 0), (vB, 28, sKB, sMB, 4096)]
    def dma1(s, st, k, early=None):
        v, sr, so, mb, off = dma_items[k]
        isb = mb == sMB
        base = ((st >> 1) & 1) * (16384 if isb else 65536) + (st & 1) * (B_ST if isb else W_ST)
        if k == 0: s("s_mov_b32 s%d, %d" % (sKW, st * 64 * 7168))
        if k == 7: s("s_mov_b32 s%d, %d" % (sKB, st * 128))
        s("s_add_u32 m0, s%d, %d" % (mb, off + base))
        s.op(Op("buffer_load_dwordx4 v%d, s[%d:%d], s%d offen lds" % (v, sr, sr + 3, so), "vm", K(("D", st, k))), early)
    CH1 = cfg.get("ch1", 1)
    xalloc = {}; xprev = {}; fifo = [(("a", r), None) for r in (96, 112, 128, 144, 192)]
    for u in range(32):
        if u == 26: xalloc[u] = ("v", 48); xprev[u] = None; continue
        xalloc[u], xprev[u] = fifo.pop(0); fifo.append((xalloc[u], u))
    aX, aW, NWB = 96, 208, 8
    def xload(s, u, m, early=None):
        if m == 0: s("s_mov_b32 s%d, %d" % (sKX, u * 4096))
        s.op(Op("buffer_load_dwordx4 %s, v%d, s[8:11], s%d offen offset:%d" % (R(xalloc[u][0], xalloc[u][1] + 4 * m, 4), 1, sKX, 1024 * m), "vm", K(("X", u, m))), early)
    def pro_stage(st):
        for k in range(9): dma1(s, st, k)
    ND0P = cfg.get("d_t0", 0)
    for k in range(ND0P): dma1(s, 0, k)
    EP_LDS = 131072; EPW = 8192
    PK = dict(C=252, CA=253, TOK=254, COL=255, D=240, TA=242, TRW=243, TRR=244, AG=245)
    s("v_lshrrev_b32 v40, 1, v48\nv_xor_b32 v40, v40, v49\nv_lshlrev_b32 v40, 4, v40\nv_lshl_add_u32 v40, v48, 7, v40")
    s("v_add_u32 v%d, %d, v40\nv_xor_b32 v%d, 64, v%d" % (vBA0, B_BASE, vBA1, vBA0))
    s("v_lshrrev_b32 v40, 1, v49\nv_lshlrev_b32 v40, 4, v40\nv_and_b32 v41, 1, v49\nv_lshlrev_b32 v41, 2, v41\nv_lshrrev_b32 v50, 2, v48\nv_add3_u32 v11, v40, v41, v50")
    s("v_mul_u32_u24 v40, 224, v11\nv_and_b32 v51, 3, v0\nv_lshl_add_u32 v%d, v51, 3, v40\nv_add_u32 v%d, 0x10000, v%d" % (vWA, vWA2, vWA))
    s("s_lshl_b32 s65, s%d, 17\ns_add_u32 s8, s6, s65\ns_addc_u32 s9, s7, 0\ns_and_b32 s9, s9, 0xffff\ns_mov_b32 s10, 0x20000" % sB)
    s("s_lshl_b32 s83, s2, 4\ns_lshl_b32 s65, s%d, 2\ns_add_u32 s83, s83, s65" % sW)
    if WGF: s("s_and_b32 s82, s2, 7\ns_lshl_b32 s82, s82, 6\ns_lshl_b32 s65, s66, 11\ns_add_u32 s82, s82, s65\ns_lshl_b32 s65, s%d, 9\ns_add_u32 s82, s82, s65\ns_add_u32 s82, s82, 0x%x" % (sW, SM_F1))
    else: s("s_add_u32 s82, s83, 0x%x" % SM_F1)
    s("s_add_u32 s83, s83, 0x%x" % SM_F1B)
    def tramp():
        s("s_mov_b64 exec, 0")
        for w in range(1, 4): s("s_cmp_eq_u32 s%d, %d\ns_cbranch_scc1 L_tr%d" % (sW, w, w))
        s("s_branch L_tr0")
        s.atom(["L_trret:"])
        s("s_mov_b64 exec, -1")
    TRP = cfg.get("tr_at", 2) if cfg.get("tramp", 1) else -1
    if TRP == 0: tramp()
    stamp(s, "prex")
    F = 80; D = 112; T0 = 144; ST = 28
    ln = Seq()
    def unpack(q):
        for i in range(4 * q, 4 * q + 4): ln("v_lshlrev_b32 v%d, 16, v%d\nv_and_b32 v%d, 0xffff0000, v%d" % (F + 2 * i, 64 + i, F + 2 * i + 1, 64 + i))
    def pack(q, dst=64):
        for i in range(4 * q, 4 * q + 4): ln("v_cvt_pk_bf16_f32 v%d, v%d, v%d" % (dst + i, F + 2 * i, F + 2 * i + 1))
    def hsum(dst):
        ln("v_pk_add_f32 %s, %s, %s\nv_add_f32 v%d, v%d, v%d" % (P(T0), P(T0), P(T0 + 2), T0, T0, T0 + 1))
        for sh in ((4, 8) if LQ else (1, 2, 4, 8)): ln("v_add_f32_dpp v%d, v%d, v%d row_ror:%d row_mask:0xf bank_mask:0xf" % (T0, T0, T0, sh))
        if LQ:
            for w_ in (16, 32): ln("v_mov_b32 v%d, v%d\nv_permlane%d_swap_b32 v%d, v%d\nv_add_f32 v%d, v%d, v%d" % (T0 + 1, T0, w_, T0, T0 + 1, T0, T0, T0 + 1))
        ln("v_mul_f32 v%d, %s, v%d" % (dst, fx(1.0 / 512), T0))
    for q in range(4):
        ln.wait([("x", q)])
        if q == 3:
            stamp(ln, "xin")
            for _ in range(cfg.get("pf_t1", 0)): pfa(ln)
            i_d0 = len(ln.u)
        unpack(q)
        if q == 0: ln("v_pk_add_f32 %s, %s, %s\nv_pk_add_f32 %s, %s, %s" % (P(T0), P(F), P(F + 2), P(T0 + 2), P(F + 4), P(F + 6)))
        else:
            for i in range(4): ln("v_pk_add_f32 %s, %s, %s" % (P(T0 + 2 * (i % 2)), P(T0 + 2 * (i % 2)), P(F + 8 * q + 2 * i)))
    hsum(ST)
    for i in range(16): ln("v_pk_add_f32 %s, %s, %s op_sel_hi:[1,0] neg_lo:[0,1] neg_hi:[0,1]" % (P(D + 2 * i), P(F + 2 * i), P(ST)))
    for i in range(16):
        if i < 2: ln("v_pk_mul_f32 %s, %s, %s" % (P(T0 + 2 * i), P(D + 2 * i), P(D + 2 * i)))
        else: ln("v_pk_fma_f32 %s, %s, %s, %s" % (P(T0 + 2 * (i % 2)), P(D + 2 * i), P(D + 2 * i), P(T0 + 2 * (i % 2))))
    hsum(ST + 1)
    ln.lg("ds_write_b64 v52, %s" % P(ST))
    ln.wait(None, drain=["lg"])
    ln("s_barrier")
    ln.lg("ds_read_b64 %s, v54" % P(T0), "oth")
    ln("s_mul_i32 s%d, s%d, 0x9E3779B1\ns_add_u32 s%d, s%d, 0x7F4A7C15\nv_mov_b32 v56, s%d" % (sTAG, sTAG, sTAG, sTAG, sTAG))
    ln.wait(["oth"])
    ln("v_sub_f32 v%d, v%d, v%d\nv_pk_add_f32 %s, %s, %s\nv_mul_f32 v%d, 0.5, v%d\nv_pk_mul_f32 %s, %s, 0.5 op_sel_hi:[1,0]\nv_fmac_f32 v%d, v%d, v%d" % (T0 + 2, ST, T0, P(ST), P(ST), P(T0), T0 + 2, T0 + 2, P(ST), P(ST), ST + 1, T0 + 2, T0 + 2))
    ln("v_cvt_pk_bf16_f32 v%d, v%d, v%d\nv_lshlrev_b32 v%d, 16, v%d\nv_and_b32 v%d, 0xffff0000, v%d" % (T0, ST, ST + 1, ST, T0, ST + 1, T0))
    ln(("v_add_f32 V, %s, V\nv_cvt_pk_bf16_f32 V, V, V\nv_and_b32 V, 0xffff0000, V\nv_sqrt_f32 V, V" % fx(1e-5)).replace("V", "v%d" % (ST + 1)))
    def sub(q):
        for i in range(4 * q, 4 * q + 4): ln("v_pk_add_f32 %s, %s, %s op_sel_hi:[1,0] neg_lo:[0,1] neg_hi:[0,1]" % (P(F + 2 * i), P(F + 2 * i), P(ST)))
    def fin(q):
        pack(q); unpack(q)
        for i in range(4 * q, 4 * q + 4): ln("v_pk_mul_f32 %s, %s, %s op_sel:[0,1] op_sel_hi:[1,1]" % (P(F + 2 * i), P(F + 2 * i), P(ST)))
        pack(q, 12 if q else 64)
    ln("v_cvt_pk_bf16_f32 V, V, V\nv_and_b32 V, 0xffff0000, V\nv_rcp_f32 V, V".replace("V", "v%d" % (ST + 1)))
    sub(0); fin(0)
    lu = ln.units()
    nD_0 = cfg.get("d_t1", 1 if ND0P else 0)
    if nD_0:
        dq = Seq(); step = cfg.get("d0_step", 10); pos = i_d0 + cfg.get("d0_off", 6)
        for k in range(ND0P, 9):
            dma1(dq, 0, k); un = dq.units()
            lu[pos:pos] = un[:-1]; pos += len(un); lu[pos:pos] = un[-1:]; pos += step
    s.u += lu
    xst = lambda q: "buffer_store_dwordx4 %s, v55, s[48:51], s%d offen %s" % (Q(12 + 4 * q if q else 64), 70 + q, SC)
    stst = lambda: (["s_mov_b64 exec, 15"] if LQ else ["s_mov_b32 exec_lo, 0x10001", "s_mov_b32 exec_hi, 0x10001"]) + [Op("buffer_store_dwordx4 %s, v%d, s[36:39], s74 offen %s" % (Q(ST), LQ, SC), "vm"), "s_mov_b64 exec, -1"]
    s.vm(xst(0), ("xn", 0))
    stamp(s, "xnst")
    for q in range(1, 4):
        sub(q); fin(q); s.u += ln.units()
    XBP = cfg.get("xbp", 0)
    TWO = 1
    nD_b = cfg.get("d_t3", 1)
    nD_c = cfg.get("d_t4", 2)
    nD_d = cfg.get("d_t5", 2)
    if TRP == 1: tramp()
    if WGF: s.wait([("xn", 0), "agfill"]); s("s_barrier")
    flag(s, "buffer_store_dwordx4 v[56:59], v1, s[36:39], s82 offen %s" % SC, [("xn", 0), "agfill"])
    stamp(s, "flag1")
    if TRP == 4: tramp()
    if cfg.get("bar_f"): s("s_barrier")
    stamp(s, "barf")
    def xb_now():
        s.atom(stst())
        for q in range(1, 4): s.vm(xst(q), ("xn", q))
    if XBP == 1: xb_now()
    for st in range(nD_0, nD_b): pro_stage(st)
    stamp(s, "d0")
    if TRP == 2: tramp()
    stamp(s, "trd")
    f1load = "buffer_load_dword v61, v%d, s[36:39], s75 offen %s" % (vP1, SC)
    s.vm(f1load, "f1")
    if XBP == 2: xb_now()
    for st in range(max(nD_0, nD_b), nD_c): pro_stage(st)
    nD_b = max(nD_0, nD_b, nD_c)
    if TRP == 3: tramp()
    stamp(s, "prepoll")
    if TRP >= 0:
        s("s_branch L_main"); s.atom([".p2align 12"]); s.atom(["L_main:"])
    poll(s, "P1", f1load, 61, "f1")
    stamp(s, "poll1")
    NXP = cfg.get("nxpre", 1 if cfg.get("ch1_first", 1) else 2)
    for u in range(NXP):
        for m in range(4): xload(s, u, m)
    if XBP == 3: xb_now()
    for _ in range(cfg.get("pf_t5", 0)): pfa(s)
    for st in range(nD_b, nD_d): pro_stage(st)
    nD_b = max(nD_b, nD_d)
    npfa = cfg.get("pf_t0", 3) + cfg.get("pf_t1", 0) + cfg.get("pf_t5", 0)
    NPB = cfg.get("npb", 4)
    tiles = []
    for q in range(7): tiles += [("G", q), ("U", q)]
    tiles += [("R", 0), ("I", 0), ("R", 1), ("I", 1)]
    def acc(t, m):
        k, q = t
        if k == "R": return ("v", 64 + 16 * q + 4 * m)
        if k == "I": return ("v", 96 + 16 * q + 4 * m)
        o = 32 * q + (16 if k == "U" else 0) + 4 * m
        return ("v", 128 + o) if q < 4 else ("a", o - 128)
    L0 = cfg.get("l1_lead", 4)
    KT = cfg.get("kt", 1)
    def stage_groups(st, tl):
        if CH1 and st >= cfg.get("ch1_first", 1): return [(2 * st + kk, ti) for ti in tl for kk in range(2)]
        return [(2 * st + kk, ti) for kk in range(2) for ti in tl]
    groups = []
    for st in range(14 if KT else 16): groups += stage_groups(st, range(18))
    if KT:
        for tl in (range(4), range(4, 18)):
            for st in (14, 15): groups += stage_groups(st, tl)
    NG = len(groups)
    mo, head, tail = order_mfma(groups)
    xfirst = {}; xlast = {}
    for G, (u, ti) in enumerate(groups): xfirst.setdefault(u, head(G)); xlast[u] = tail(G)
    parts = lambda G: [0, 1] if groups[G][1] < 14 else [None]
    def read1(G, part):
        u, ti = groups[G]; st, kk = divmod(u, 2); t = tiles[ti]; f = G % NWB
        if t[0] in "GU":
            off = (st & 1) * W_ST + (U_OFF if t[0] == "U" else 0) + kk * 7168 + part * 1792 + t[1] * 32
            return Op("ds_read_b64_tr_b16 %s, v%d offset:%d" % (R("a", aW + 4 * f + 2 * part, 2), (vWA, vWA2)[(st >> 1) & 1], off), "lg", K(("F", G, part)))
        off = (st & 3) * B_ST + (4096 if t[0] == "I" else 0) + t[1] * 2048
        return Op("ds_read_b128 %s, v%d offset:%d" % (R("a", aW + 4 * f, 4), vBA1 if kk else vBA0, off), "lg", K(("F", G, part)))
    rgap = {}
    for G in range(NG):
        f = G % 36
        g = G if (f < 33 or (KT and G >= 28 * 18)) else G - (1 if f < 35 else 2)
        rgap[G] = 4 * (g - L0) - 1
        assert rgap[G] >= 4 * tail(G - NWB) + 3
    gneed = lambda G: [("F", H, p) for H in range(G, tail(G) + 1) for p in parts(H)] + [("X", u, m) for u in range(32) if xfirst[u] == G for m in range(4)]
    s.wait([("D", 0, k) for k in range(9)])
    s("s_barrier")
    for G in range(NG):
        if rgap[G] < 0:
            for p in parts(G): s.op(read1(G, p))
    s.wait(gneed(0))
    stamp(s, "loop1")
    prog.add(s.done())
    mf = []
    for G, m in mo:
        u, ti = groups[G]; t = tiles[ti]
        xr = (xalloc[u][0], xalloc[u][1] + 4 * m); wr = ("a", aW + 4 * (G % NWB))
        mf.append(Op(mfma16(acc(t, m), wr, xr, u == 0) if t[0] in "GU" else mfma16(acc(t, m), xr, wr, u == 0)))
    sc = Sch(mf)
    for G in range(1, NG):
        w = Op("", needs=K(gneed(G)))
        w.keep = sum(len(parts(H)) for H in range(max(0, G - 2), min(NG, G + 10)) if rgap[H] == 4 * G - 1) == 2
        if w.keep or head(G) == G: sc.put(4 * G - 1, [w], 0)
    for G in range(NG):
        if rgap[G] >= 0: sc.put(rgap[G], [read1(G, p) for p in parts(G)], 1)
    bar = {}
    for st in range(15):
        bar[st] = rgap[xfirst[2 * st + 2]] - 1
        sc.put(bar[st], [Op("s_barrier", needs=K([("D", st + 1, k) for k in range(9)]), drain=["lg"] if st < 14 else None)], 0)
    items = []
    PFL = cfg.get("pfl", 9)
    pft = {}
    if cfg.get("pf1", 1):
        ev = cfg.get("pf_first", 70); st = npfa
        for k in range(npfa - cfg.get("pfd", 0), npfa): items.append((0, 2, ev - cfg.get("pfd_pre", 0), "a", k, 0))
        while st < 16:
            n = 0
            while st < 16 and (n < cfg.get("pf_max", 2) or (st == 15 and cfg.get("pf_l3", 1))) and (n == 0 or 144 * (st - 3 - PFL) < ev):
                e = max(int(144 * (st - 3 - PFL)), ev); pft[st] = e; items.append((0, 2, e, "a", st, 0)); st += 1; n += 1
            ev = e + cfg.get("pf_min", 288)
    for st in range(nD_b, 16):
        e = max(bar[st - 4] + 1 if st >= 4 else 0, pft.get(st, -1000) + cfg.get("pf_lat", 100))
        for k in range(9): items.append((bar[st - 1], 0, e, "d", st, k))
    for u in range(NXP, 32):
        e = 4 * xlast[xprev[u]] + 3 if xprev[u] is not None else 0
        for m in range(4): items.append((4 * xfirst[u] - 1, 1, max(e, 4 * xfirst[u] - (cfg.get("x_la", 230) if u != 8 else cfg.get("x_la8", 190))), "x", u, m))
    for k in range(1, 4 if not XBP else 0): items.append((0, 3, cfg.get("xb_first", 75) + cfg.get("xb_sp", 16) * (k - 1), "s", k, 0))
    items.append((0, 3, cfg.get("xb_first", 75) + cfg.get("xb_sp", 16) * 2 + cfg.get("xb_lat", 70) if not XBP else cfg.get("fb_at", 30), "f", 0, 0))
    gC_ = sorted(set(pft.values()))[cfg.get("c_ev", 1)] if pft else 300
    items.append((0, 3, gC_, "c", 0, 0))
    gE_ = gC_ + cfg.get("e_off", 90)
    for n in range(4): items.append((gE_ + 100, 3, gE_ + 20 * n, "e", n, 0))
    f1cload = "buffer_load_dword v61, v60, s[36:39], s81 offen %s" % SC
    if cfg.get("pf2", 1):
        for c in range(NPB): items.append((0, 2, cfg.get("pfb_first", 646) + int(c * cfg.get("pfb_sp", 288)), "b", c, 0))
    now = 0; pend = sorted(items); done = []; quiet = -1
    FM = cfg.get("fm", 1); WL = cfg.get("fm_wl", 14); fifo = []; comp = cfg.get("fm_c0", 30); fsl = []; lastk = ""; PFD = cfg.get("pfd", 0); PFX = cfg.get("pfx", 0)
    while pend:
        nxt = {}
        for x in pend:
            if x[3] not in nxt or x[4:] < nxt[x[3]][4:]: nxt[x[3]] = x
        av = sorted(x for x in nxt.values() if x[2] <= now)
        if FM:
            occ = sum(n for c, n in fifo if c > now)
            lines_of = lambda x: {"d": WL if x[5] < 7 else 8, "x": 8, "a": 9 * (1 + bool(PFD)) + 8 * PFX, "b": 88 // NPB, "c": 10, "e": 16}.get(x[3], 1)
            if av and av[0][3] in "dx" and len(av) > 1 and av[1][3] in "dx" and av[0][3] == lastk and av[0][0] - now > cfg.get("alt_slack", 110): av = av[1:]
            av = [x for x in av[:1] if occ + lines_of(x) <= cfg.get("fm_c", 66)]
        if not av: now += 1; continue
        x = av[0]; pend.remove(x); lastk = x[3]
        if FM:
            lat = cfg.get("fm_slow", 64) if x[3] in "abc" else cfg.get("fm_fast", 36)
            comp = max(comp + 4.3, now + lat); fifo.append((comp, lines_of(x)))
            if x[3] in "dx": fsl.append((x[0] - comp, x[3], x[4], x[5]))
        fifo_now = now
        if x[3] == "d": dma1(s, x[4], x[5], int(now))
        elif x[3] == "x":
            if TWO and x[4:] == (8, 0): poll(s, "P1c", f1cload, 61, "f1c", early=int(now))
            xload(s, x[4], x[5], int(now))
            if TWO and x[4:] == (7, 3): s.vm(f1cload, "f1c"); i_f1c = len(s.u) - 1
        elif x[3] == "a":
            s.at(int(now)); pfa(s); quiet = now + cfg.get("q_len", 64)
            if [y for y in pend if y[3] in "abc" and y[2] <= now]: now -= cfg.get("q_sp", 10) - 4
        elif x[3] == "c":
            s.at(int(now)); i_c0 = len(s.u) - 1
            for k, lo in enumerate((96, 98, 92)):
                s("s_mov_b32 s32, s%d\ns_and_b32 s33, s%d, 0xffff" % (lo, lo + 1))
                for T in range(2): s.vm("buffer_load_ushort v%d, v40, s[32:35], 0 offen offset:%d" % (16 + 2 * k + T, 32 * T), ("c", k, T))
            s("s_mov_b32 s32, s94\ns_and_b32 s33, s95, 0xffff")
            for u in range(2): s.vm("buffer_load_dwordx2 %s, v41, s[32:35], 0 offen offset:%d" % (R("a", 248 + 2 * u, 2), 32 * u), ("dk", u))
            if FT & 2:
                s.vm("buffer_load_dword a246, v42, s[36:39], 0 offen %s" % SC); now += 4
            i_c1 = len(s.u) - 1; now += 30
        elif x[3] == "s":
            if x[4] == 1: s.atom(stst(), int(now)); now += 4
            s.op(Op(xst(x[4]), "vm", K(("xn", x[4]))), int(now)); now += (4 - cfg.get("q_sp", 10)) if now < quiet else 10
        elif x[3] == "f":
            flag(s, "buffer_store_dword v56, v1, s[36:39], s83 offen %s" % SC, [("xn", 3)], early=int(now)); i_fb = len(s.u) - 1
        elif x[3] == "e":
            s("s_mov_b32 s70, %d\ns_add_u32 m0, s71, %d" % (32768 * x[4], 1024 * x[4]))
            s.op(Op("buffer_load_dwordx4 v12, s[48:51], s70 offen lds", "vm", K(("E", x[4]))), int(now)); i_e1 = len(s.u) - 1; now += 4
        else: s.at(int(now)); pfb(s); quiet = now + cfg.get("q_len", 64)
        if x[3] in "dx": done.append((x, len(s.u) - 1))
        if x[3:] == ("x", 8, 0): i_p1c = len(s.u) - 1
        if x[3:] == ("x", 26, 0): i_x26 = len(s.u) - 1
        if FM: now = fifo_now + {"c": 36, "s": cfg.get("fm_st", 16) + 4 * (x[4] == 1)}.get(x[3], cfg.get("fm_sp", 4.5))
        else: now += cfg.get("q_sp", 10) if now < quiet else cfg.get("l1_sp", 5)
    res = sc.stream(s.units(), 0, 2)
    sl = sorted((x[0] - res[i], x[3], x[4], x[5]) for x, i in done)
    if cfg.get("verbose") and FM: print("model slacks", sorted(fsl)[:5])
    if cfg.get("verbose"): print("loop1 vm end", res[-1], "of", 4 * NG, "min slacks", sl[:3], "steady", min(z for z in sl if z[2] > 8))
    for nm in names:
        if TS and nm[0] == "f" and nm[1:].isdigit():
            st_ = int(nm[1:])
            sc.put(bar[st_] - 1, [Op("s_memrealtime s[100:101]")], 5)
            sc.put(bar[st_], [Op("v_writelane_b32 v%d, s100, %d" % (vTS, names.index(nm)))], 5)
    if cfg.get("verbose"): print("flag b", res[i_fb], "poll load", res[i_f1c], "check", res[i_p1c])
    s.at(res[i_fb] + 1)
    cL, cC, cL8, cL16, cL64, cL512 = 16, 20, 24, 28, 32, 36
    s("s_mov_b32 s34, 2048\ns_mov_b32 s35, 0x20000")
    s("s_lshl_b32 s69, s%d, 5\nv_add_u32 v40, s69, v48\nv_lshlrev_b32 v40, 1, v40" % sJ)
    s("s_lshl_b32 s68, s%d, 7\ns_lshl_b32 s66, s%d, 5\ns_add_u32 s68, s68, s66\nv_lshl_add_u32 v41, v49, 2, s68\nv_accvgpr_write_b32 a%d, v41\nv_lshlrev_b32 v41, 1, v41" % (sTN, sQ, PK["COL"]))
    srd(s, 48, 4, 5, 2048 * 2048)
    s("s_lshl_b32 s66, s%d, 2\ns_add_u32 s66, s66, s%d\ns_lshl_b32 s66, s66, 7\ns_add_u32 s66, s66, 0x%x\nv_mov_b32 v42, s66" % (sB, sQ, SM_F3))
    s("s_lshl_b32 s66, s%d, 3\ns_add_u32 s66, s66, s%d\ns_lshl_b32 s66, s66, 2\ns_add_u32 s66, s66, s%d\ns_lshl_b32 s66, s66, 7\ns_add_u32 s66, s66, 0x%x\nv_writelane_b32 v42, s66, 0" % (sI, sTN, sW, SM_F4))
    s("s_lshl_b32 s68, s68, 1\ns_lshl_b32 s66, s%d, 17\ns_add_u32 s68, s68, s66\nv_lshrrev_b32 v12, 2, v0\nv_lshl_add_u32 v12, v12, 11, s68\nv_lshl_add_u32 v12, v51, 4, v12" % sB)
    s("s_lshr_b32 s66, s%d, 1\ns_lshl_b32 s66, s66, 16\ns_and_b32 s71, s%d, 1\ns_lshl_b32 s71, s71, 12\ns_add_u32 s71, s71, s66\ns_add_u32 s71, s71, 57344" % (sW, sW))
    r0 = sc.stream(s.units(), 0, 3)
    assert r0[-1] < res[i_c0]
    s.at(res[i_c1] + 1)
    s("v_subrev_u32 v40, %d, v%d\nv_accvgpr_write_b32 a%d, v40" % (B_BASE, vBA0, PK["CA"]))
    s("s_mul_i32 s69, s%d, %d\ns_add_u32 s69, s69, %d" % (sW, EPW, EP_LDS + 2048))
    s("v_and_b32 v41, 1, v49\nv_xor_b32 v41, v41, v51\nv_lshlrev_b32 v40, 5, v11\nv_lshl_add_u32 v40, v41, 3, v40\nv_add_u32 v40, s69, v40\nv_accvgpr_write_b32 a%d, v40" % PK["TRR"])
    s("v_lshrrev_b32 v40, 1, v48\nv_xor_b32 v40, v40, v48\nv_and_b32 v40, 4, v40\nv_mul_u32_u24 v40, 3, v40\nv_xor_b32 v40, v40, v48\nv_lshrrev_b32 v41, 2, v40\nv_xor_b32 v41, v41, v49\nv_lshlrev_b32 v40, 5, v40\nv_lshl_add_u32 v40, v41, 3, v40\nv_add_u32 v40, s69, v40\nv_accvgpr_write_b32 a%d, v40" % PK["TRW"])
    s("v_lshrrev_b32 v40, 2, v0\nv_and_b32 v41, 7, v40\nv_lshlrev_b32 v41, 5, v41\nv_lshl_add_u32 v41, v40, 8, v41\nv_lshl_add_u32 v41, v51, 3, v41\nv_accvgpr_write_b32 a%d, v41" % PK["TA"])
    s("s_lshl_b32 s68, s%d, 2\nv_add_u32 v40, s68, v49\nv_and_b32 v41, 7, v40\nv_bfe_u32 v51, v0, 1, 3\nv_xor_b32 v41, v41, v51\ns_lshl_b32 s66, s%d, 1\nv_xor_b32 v41, s66, v41\nv_lshlrev_b32 v41, 5, v41" % (sW, sQ))
    s("v_and_b32 v51, 1, v0\nv_lshl_add_u32 v41, v51, 4, v41\ns_mul_i32 s67, s%d, 896\nv_add_u32 v40, s67, v40\nv_lshl_add_u32 v40, v40, 11, v41\ns_lshl_b32 s67, s%d, 8\nv_add_u32 v40, s67, v40\nv_accvgpr_write_b32 a%d, v40" % (sQ, sTN, PK["D"]))
    s("s_lshl_b32 s68, s%d, 18\ns_lshl_b32 s66, s%d, 9\ns_add_u32 s68, s68, s66\nv_add_u32 v40, s68, v47\nv_accvgpr_write_b32 a%d, v40" % (sTN, sQ, PK["C"]))
    s("v_lshlrev_b32 v40, 4, v50\nv_lshl_add_u32 v40, v51, 3, v40\nv_bfe_u32 v41, v48, 1, 1\ns_lshl_b32 s68, s%d, 6\nv_add3_u32 v40, v40, v41, s68\nv_accvgpr_write_b32 a%d, v40" % (sB, PK["TOK"]))
    s("s_sub_u32 s68, 32, s%d\ns_lshl_b32 s68, s68, 13\ns_lshl_b32 s66, s%d, 8\ns_add_u32 s68, s68, s66\nv_lshl_add_u32 v40, v48, 4, s68\nv_lshl_add_u32 v40, v49, 16, v40\nv_accvgpr_write_b32 a%d, v40" % (sB, sJ, PK["AG"]))
    ld, lc = 112 // NPB, 64 // NPB
    s("s_lshl_b32 s68, s2, 1\ns_and_b32 s66, s%d, 1\ns_add_u32 s68, s68, s66\ns_mul_i32 s68, s68, %d\ns_mul_i32 s66, s2, %d" % (sW, ld * 128, lc * 128))
    ge2 = "s_cmp_ge_u32 s%d, 2" % sW
    s.atom([ge2, "s_cselect_b32 s68, s66, s68", "s_cselect_b32 s66, %d, %d" % (lc - 1, ld - 1)])
    s("v_min_u32 v40, s66, v0\nv_lshl_add_u32 v%d, v40, 7, s68" % vPB)
    s.atom(["s_bitcmp1_b32 s%d, 0" % sW, "s_cselect_b32 s68, s90, s88", "s_cselect_b32 s66, s91, s89"])
    s.atom([ge2, "s_cselect_b32 s44, s68, s84", "s_cselect_b32 s45, s66, s85"])
    s("s_mov_b32 s67, %d\ns_mov_b32 s68, %d" % (3584 * 2048, 512 * ld * 128))
    s.atom([ge2, "s_cselect_b32 s46, %d, s67" % (1024 * 2048), "s_cselect_b32 s%d, %d, s68" % (sPBs, 256 * lc * 128)])
    s("s_and_b32 s45, s45, 0xffff\ns_mov_b32 s47, 0x20000\ns_mov_b32 s%d, 0" % sKPB)
    i_pbs = len(s.u) - 1
    s.at(res[i_c1] + 90)
    s.wait([("c", 2, 1)])
    def two(f):
        for T in range(2): s(f(T))
    for k in range(6): s("v_lshlrev_b32 v%d, 16, v%d" % (40 + k, 16 + k))
    two(lambda T: "v_mul_f32 v%d, %s, v%d" % (44 + T, fx(LOG2E), 44 + T)); two(lambda T: "v_exp_f32 v%d, v%d" % (44 + T, 44 + T))
    s("v_cvt_pk_bf16_f32 v45, v44, v45\nv_lshlrev_b32 v44, 16, v45\nv_and_b32 v45, 0xffff0000, v45")
    two(lambda T: "v_mul_f32 v%d, v%d, v%d\nv_mul_f32 v%d, v%d, v%d" % (24 + T, 44 + T, 40 + T, 26 + T, 44 + T, 42 + T))
    two(lambda T: "v_mul_f32 v%d, %s, v%d" % (24 + T, fx(LOG2E), 24 + T)); two(lambda T: "v_exp_f32 v%d, v%d" % (24 + T, 24 + T))
    two(lambda T: "v_mul_f32 v%d, 0.15915494, v%d\nv_rndne_f32 v%d, v%d\nv_sub_f32 v%d, v%d, v%d" % (26 + T, 26 + T, 52 + T, 26 + T, 26 + T, 26 + T, 52 + T))
    two(lambda T: "v_cos_f32 v%d, v%d\nv_sin_f32 v%d, v%d" % (52 + T, 26 + T, 54 + T, 26 + T))
    two(lambda T: "v_mul_f32 v%d, v%d, v%d\nv_mul_f32 v%d, v%d, v%d\nv_add_f32 v%d, -1.0, v%d" % (cL + T, 24 + T, 52 + T, 54 + T, 24 + T, 54 + T, 52 + T, cL + T))
    two(lambda T: "v_mul_f32 v%d, v%d, v%d\nv_fmac_f32 v%d, v%d, v%d\nv_rcp_f32 v%d, v%d" % (24 + T, 40 + T, 40 + T, 24 + T, 42 + T, 42 + T, 24 + T, 24 + T))
    two(lambda T: "v_mul_f32 v%d, v%d, v%d\nv_fmac_f32 v%d, v%d, v%d" % (26 + T, 52 + T, 40 + T, 26 + T, 54 + T, 42 + T))
    two(lambda T: "v_mul_f32 v%d, v%d, v%d\nv_fma_f32 v%d, -v%d, v%d, v%d" % (56 + T, 54 + T, 40 + T, 56 + T, 52 + T, 42 + T, 56 + T))
    two(lambda T: "v_add_f32 v%d, v%d, v%d\nv_mul_f32 v%d, v%d, v%d\nv_mul_f32 v%d, v%d, v%d\nv_sub_f32 v%d, 0, v%d" % (24 + T, 24 + T, 24 + T, cC + T, 26 + T, 24 + T, cC + 2 + T, 56 + T, 24 + T, cL + 2 + T, 54 + T))
    def sq(d, x):
        two(lambda T: "v_mul_f32 v%d, v%d, v%d\nv_mul_f32 v%d, v%d, v%d\nv_fma_f32 v%d, v%d, v%d, -v%d\nv_add_f32 v%d, v%d, v%d" % (52 + T, x + 2 + T, x + 2 + T, 54 + T, x + T, x + 2 + T, d + T, x + T, x + T, 52 + T, d + 2 + T, 54 + T, 54 + T))
    sq(cL8, cL); sq(cL8, cL8); sq(cL8, cL8); sq(cL16, cL8); sq(cL64, cL16); sq(cL64, cL64); sq(cL512, cL64); sq(cL512, cL512); sq(cL512, cL512)
    aBS = 160
    s.at(max(res[i_p1c] + 2, res[i_e1] + 90))
    s("v_accvgpr_read_b32 v12, a%d\nv_and_b32 v11, 63, v12\nv_lshlrev_b32 v11, 6, v11\nv_lshl_add_u32 v11, v49, 3, v11\nv_add_u32 v11, s71, v11\nv_and_b32 v12, 0xf0, v1\ns_lshl_b32 s66, s%d, 10\ns_add_u32 s66, s66, 0x%x" % (PK["TOK"], sB, SM_ST))
    s.wait([("E", 3), ("dk", 1)])
    for k in range(4): s("v_accvgpr_read_b32 v%d, a%d" % (40 + k, 248 + k))
    for m in range(4):
        s.vm("buffer_load_dwordx2 v[44:45], v12, s[36:39], s66 offen offset:%d" % (256 * m), ("St", m))
        for u in range(2): s.lg("ds_read_b64 %s, v11 offset:%d" % (P(52 + 2 * u), 128 * m + 32 * u), ("er", m, u))
        s.delay(cfg.get("e_lat", 90))
        s.wait([("St", m), ("er", m, 1)])
        for u in range(2):
            def unp(d, x):
                for h in range(2): s("v_lshlrev_b32 v%d, 16, v%d\nv_and_b32 v%d, 0xffff0000, v%d" % (d + 2 * h, x + h, d + 2 * h + 1, x + h))
            def rnd():
                for h in range(2): s("v_cvt_pk_bf16_f32 v%d, v%d, v%d" % (48 + h, 60 + 2 * h, 61 + 2 * h))
                unp(60, 48)
            unp(56, 52 + 2 * u)
            for k in range(4): s("v_sub_f32 v%d, v%d, v44" % (60 + k, 56 + k))
            rnd()
            for k in range(4): s("v_mul_f32 v%d, v%d, v45" % (60 + k, 60 + k))
            rnd()
            for h in range(2):
                s("v_lshlrev_b32 v46, 16, v%d\nv_and_b32 v47, 0xffff0000, v%d\nv_mul_f32 v%d, v%d, v46\nv_mul_f32 v%d, v%d, v47" % (40 + 2 * u + h, 40 + 2 * u + h, 60 + 2 * h, 60 + 2 * h, 61 + 2 * h, 61 + 2 * h))
            rnd()
            for k in range(4): s("v_add_f32 v%d, v%d, v%d" % (56 + k, 56 + k, 60 + k))
            for k in range(4): s("v_accvgpr_write_b32 a%d, v%d" % (aBS + 16 * u + 4 * m + k, 56 + k))
    rb = sc.stream(s.units(), 0, 3, vmspace=2)
    if cfg.get("verbose"): print("shadow end", rb[-1])
    assert rb[-1] < res[i_x26] and rb[-1] < bar[13] and rb[i_pbs] < cfg.get("pfb_first", 646)
    vEW, vER, vTG, vAG, vTRW, vTRR, vCP, vH8, vD1, vPAd, vPD, vD0 = 2, 3, 4, 5, 6, 7, 8, 10, 11, 12, 13, 14
    sM, sKD, sKH = 54, 55, 56
    c1 = -2.0 * math.sqrt(2.0 / math.pi) * LOG2E
    CC = 46
    s("v_accvgpr_read_b32 v%d, a%d\nv_lshlrev_b32 v%d, 3, v0\nv_add_u32 v%d, 32768, v%d" % (vD0, PK["D"], vH8, vD1, vD0))
    s("v_and_b32 v43, 31, v0\nv_lshlrev_b32 v43, 7, v43\ns_lshl_b32 s71, s%d, 2\ns_add_u32 s71, s71, 0x%x" % (sJ, SM_F1B))
    s("s_mul_i32 s65, s%d, 176\ns_mul_i32 s66, s%d, 44\ns_add_u32 s65, s65, s66\ns_lshl_b32 s65, s65, 12\ns_add_u32 s65, s65, 0x%x" % (sB, sQ, WS_H))
    s.atom(["s_add_u32 s32, s6, s65", "s_addc_u32 s33, s7, 0"])
    s("s_and_b32 s33, s33, 0xffff\ns_mov_b32 s34, 0x%x\ns_mov_b32 s35, 0x20000" % (44 * 4096))
    srd(s, 12, 84, 85, 3584 * 2048); srd(s, 16, 88, 89, 1024 * 2048); srd(s, 20, 90, 91, 1024 * 2048)
    s("s_lshl_b32 s%d, s%d, 10" % (sM, sW))
    s("v_mov_b32 v46, %s\nv_mov_b32 v47, %s" % (fx(c1), fx(c1 * 0.044715)))
    ROT = cfg.get("rot", 2)
    sTQ = [96, 97, 98, 99, 48, 49, 50, 51]; sTS = [76, 77, 78, 80]; sJ12, sG7 = 44, 45
    s("s_and_b32 s67, s%d, 3\ns_lshl_b32 s67, s67, 1" % sI)
    for k in range(8):
        if k == 0: s("s_mov_b32 s65, s%d" % sTN)
        elif ROT == 2: s.atom(["s_cmp_le_u32 s%d, %d" % (sTN, k - 1), "s_cselect_b32 s65, %d, %d" % (k, k - 1)])
        elif ROT: s("s_add_u32 s65, s67, %d\ns_sub_u32 s66, s65, 7\ns_min_u32 s65, s65, s66\ns_add_u32 s65, s65, 1\ns_xor_b32 s65, s65, s%d" % (k - 1, sTN))
        else: s("s_xor_b32 s65, s%d, %d" % (sTN, k))
        s("s_mul_i32 s65, s65, 7\ns_add_u32 s65, s65, 1\ns_lshr_b32 s65, s65, 1\ns_lshl_b32 s%d, s65, 12" % sTQ[k])
    s("s_lshr_b32 s67, s%d, 1" % sTN)
    sGp = [24, 25, 26, 27]; sPar = 45
    for p in range(4):
        if ROT == 2:
            s("s_mov_b32 s%d, %d" % (sTS[p], (7 * p + 3) * 4096))
            if p == 0: s("s_lshl_b32 s%d, s67, 13" % sGp[0])
            else:
                s.atom(["s_cmp_le_u32 s67, %d" % (p - 1), "s_cselect_b32 s65, %d, %d" % (p, p - 1)]); s("s_lshl_b32 s%d, s65, 13" % sGp[p])
        else: s("s_xor_b32 s65, s67, %d\ns_lshl_b32 s%d, s65, 13\ns_mul_i32 s65, s65, %d\ns_add_u32 s%d, s65, %d" % (p, sGp[p], 7 * 4096, sTS[p], 3 * 4096))
    s("s_lshl_b32 s%d, s%d, 12\ns_and_b32 s69, s%d, 1\ns_lshl_b32 s%d, s69, 12" % (sJ12, sTN, sTN, sPar))
    s("s_mul_i32 s67, s67, %d\ns_lshl_b32 s69, s69, 9\ns_add_u32 s67, s67, s69\ns_add_u32 s67, s67, %d" % (7 * 4096, 3 * 4096))
    s("s_add_u32 s72, s%d, %d\ns_add_u32 s73, s%d, %d\ns_mov_b32 s66, s%d" % (sJ12, 28 * 4096, sJ12, 36 * 4096, sTQ[0]))
    s("s_lshl_b32 s68, s%d, 2\ns_add_u32 s68, s68, s%d\ns_lshl_b32 s68, s68, 7\ns_add_u32 s68, s68, 0x%x" % (sB, sQ, SM_F3))
    s("s_lshl_b32 s81, s%d, 2\ns_add_u32 s81, s81, s68\nv_and_b32 v%d, 7, v0\nv_lshlrev_b32 v%d, 2, v%d" % (sTN, vPAd, vPAd, vPAd))
    s("s_sub_u32 s64, 31, s%d\ns_lshl_b32 s64, s64, 13\ns_lshl_b32 s65, s%d, 8\ns_add_u32 s64, s64, s65" % (sB, sJ))
    s("s_mul_i32 s46, s%d, %d\ns_add_u32 s46, s46, %d" % (sW, EPW, EP_LDS))
    if TRP >= 0 and cfg.get("tr2", 1) and cfg.get("tr2pf", 1):
        s.atom(["s_getpc_b64 s[82:83]", "L_pc2:"])
        s("v_lshrrev_b32 v40, 3, v0\nv_lshlrev_b32 v40, 12, v40\nv_and_b32 v41, 7, v0\nv_lshl_add_u32 v40, v41, 7, v40\nv_add_u32 v40, L_main-L_pc2+%d, v40" % (4096 * cfg.get("tr_n", 14)))
        s("v_min_u32 v40, L_codeend-L_pc2-4, v40\nv_mov_b32 v41, 0\nv_lshl_add_u64 v[40:41], v[40:41], 0, s[82:83]")
        s.vm("global_load_dword a246, v[40:41], off")
        if cfg.get("cpe", 0):
            n_ = 16 * cfg.get("cpe", 0)
            s("s_mul_i32 s65, s%d, %d\ns_add_u32 s65, s65, L_epi-L_pc2+%d\nv_min_u32 v40, %d, v0\nv_lshl_add_u32 v40, v40, 7, s65\nv_mov_b32 v41, 0\nv_lshl_add_u64 v[40:41], v[40:41], 0, s[82:83]" % (sW, n_ * 128, cfg.get("cpe_off", -2048), n_ - 1))
            s.vm("global_load_dword a246, v[40:41], off")
    f1bload = "buffer_load_dword v44, v43, s[36:39], s71 offen %s" % SC
    s.vm(f1bload, "f1b")
    steps = [("g", 0, 2), ("g", 0, 0), ("g", 0, 1)]
    NA0 = cfg.get("na0", 2)
    steps += [("g", k, 0) for k in range(1, NA0 + 1)]
    UA = len(steps)
    steps += [("g", k, 1) for k in range(1, NA0 + 1)]
    for k in range(NA0 + 1, 8): steps += [("g", k, 0), ("g", k, 1)]
    UB = len(steps)
    for k in range(1, 8): steps += [("g", k, 2)] + ([("s", k // 2, 0)] if k % 2 else [])
    assert len(steps) == 28
    cst = [("r", 0), ("i", 0), ("r", 1), ("r", 2), ("r", 3), ("i", 1), ("i", 2), ("i", 3)]
    steps += [("c", 14, 0), ("c", 15, 0), ("c", 14, 1), ("c", 15, 1)]
    for st in range(16, 22): steps += [("c", st, 0), ("c", st, 1)]
    own = {0, 1, 2, 28, 29}; UC = 30
    NST = 22; KC = cfg.get("kc", 8)
    slot = {st: st % 8 for st in range(22)}; prevocc = {st: (st - 8 if st >= 8 else None) for st in range(22)}
    aW2 = 0; aAG = 32
    vC, vCA = 16, 20
    def dma2(s, st, k, early=None, vC=vC):
        if st < 14:
            kind, x, p = steps[2 * st + k // 2]
            if k % 2 == 0:
                if kind == "g" and p: s("s_add_u32 s%d, s%d, %d\ns_lshl_b32 s%d, s%d, 4" % (sKD, sTQ[x], p * 4096, sKD, sKD))
                else: s("s_lshl_b32 s%d, s%d, 4" % (sKD, (sTQ if kind == "g" else sTS)[x]))
            v, sr = (vD0, vD1)[k % 2], 12
        else:
            part, p = cst[st - 14]
            if k == 0: s("s_lshr_b32 s%d, s%d, 6" % (sKD, sGp[p]))
            v, sr = vC + k, (16 if part == "r" else 20)
        s("s_add_u32 m0, s%d, %d" % (sM, slot[st] * 16384 + k * 4096))
        s.op(Op("buffer_load_dwordx4 v%d, s[%d:%d], s%d offen lds" % (v, sr, sr + 3, sKD), "vm", K(("D2", st, k))), early)
    NPRE = 4
    r = sc.stream(s.units(), res[-1] + 2, 3)
    gS = r[-1]
    L2P = cfg.get("l2p", 0)
    if L2P:
        s("s_lshr_b32 s65, s2, 3\ns_lshl_b32 s65, s65, 2\ns_add_u32 s65, s65, s%d" % sW)
        s("s_mul_i32 s69, s65, %d\ns_mul_i32 s70, s%d, %d\ns_add_u32 s69, s69, s70\nv_min_u32 v40, 55, v0\nv_lshl_add_u32 v40, v40, 7, s69\ns_mov_b32 s70, %d" % (56 * 128, sQ, 896 * 2048, 448 * 2048))
        s.vm("buffer_load_dword a246, v40, s[12:15], 0 offen"); s.delay(cfg.get("l2p_sp", 40))
        s.vm("buffer_load_dword a246, v40, s[12:15], s70 offen"); s.delay(cfg.get("l2p_sp", 40))
        if L2P >= 2:
            s("s_lshl_b32 s69, s65, 14\ns_lshl_b32 s70, s%d, 9\ns_add_u32 s69, s69, s70\nv_bfe_u32 v40, v0, 2, 3\nv_lshl_add_u32 v40, v40, 11, s69\nv_and_b32 v41, 3, v0\nv_lshl_add_u32 v40, v41, 7, v40" % sQ)
    s.at(max(bar[13] + 1, cfg.get("pre_at", 0 if KT else 2170)))
    for st in range(NPRE):
        for k in range(4): dma2(s, st, k)
    if L2P >= 2:
        s.vm("buffer_load_dword a246, v40, s[16:19], 0 offen")
        if L2P >= 3: s.delay(20); s.vm("buffer_load_dword a246, v40, s[20:23], 0 offen")
    r = sc.stream(s.units(), gS + 1, 2, vmspace=cfg.get("pre_sp", 5))
    hst = cfg.get("hst", SC)
    aK0 = xalloc[27][1] if KT else 96; aK1 = 112 if aK0 != 112 else 96
    left = []; msh = 0
    if KT:
        msh = cfg.get("msh", 4)
        for m in range(msh):
            gs = [128 + 4 * m + e for e in range(4)] + [160 + 4 * m + e for e in range(4)]
            o = (56, 60)[m % 2]
            for k, g in enumerate(gs): s("v_mul_f32 v%d, v%d, v%d" % (48 + k, g, g))
            for k, g in enumerate(gs): s("v_fma_f32 v%d, v%d, v47, v46" % (48 + k, 48 + k))
            for k, g in enumerate(gs): s("v_mul_f32 v%d, v%d, v%d" % (48 + k, 48 + k, g))
            for k, g in enumerate(gs): s("v_exp_f32 v%d, v%d" % (48 + k, 48 + k))
            for k, g in enumerate(gs): s("v_mul_f32 v%d, v%d, v%d" % (g + 16, g, g + 16))
            for k, g in enumerate(gs): s("v_add_f32 v%d, 1.0, v%d" % (48 + k, 48 + k))
            for k, g in enumerate(gs): s("v_rcp_f32 v%d, v%d" % (48 + k, 48 + k))
            for k, g in enumerate(gs): s("v_mul_f32 v%d, v%d, v%d" % (g + 16, g + 16, 48 + k))
            for k in range(4): s("v_cvt_pk_bf16_f32 v%d, v%d, v%d" % (o + k, gs[2 * k] + 16, gs[2 * k] + 17))
            s.vm("buffer_store_dwordx4 %s, v1, s[32:35], s66 offen offset:%d %s" % (Q(o), 1024 * m, hst), ("hs", 0, m))
            for k in range(4): s("v_accvgpr_write_b32 a%d, v%d" % (aK0 + 4 * m + k, o + k))
        un = s.units()
        r = sc.stream(un, max(gS + 1, 4 * (28 * 18 + 16) + 2), 3, vmspace=2, overflow=True)
        left = un[len(r):]
        if cfg.get("verbose"): print("setup end", gS, "shadow gelu placed", len(r), "left", len(left))
    if cfg.get("stall"):
        for G in range(1, NG):
            if G % cfg["stall"] == 0 and len(sc.classes(4 * G - 1)) == 3: sc.put(4 * G - 1, [Op("s_nop 0")], 9)
    prog.add(sc.ops())
    vTA = 40
    s.atom(["L_epi:"])
    s("s_barrier")
    stamp(s, "end1")
    s.u += left
    KD = [int(c, 36) for c in str(cfg.get("kd", "g088"))]
    CH2 = cfg.get("ch2", 1); nochain = [int(c) for c in str(cfg.get("ch2_skip", "1"))]
    assert all(k % 2 == 0 for k in KD)
    def sg2(st, ul):
        if CH2 and st not in nochain: return [(2 * st + kk, u) for u in ul for kk in range(2)]
        return [(2 * st + kk, u) for kk in range(2) for u in ul]
    groups = []
    for st in range(22): groups += sg2(st, [u for u in (range(8) if st < 14 else (2, 3, 4, 5, 6, 7, 0, 1)) if 2 * st < 44 - KD[u // 2]])
    pend_ = {}
    for d in (1, 2, 3, 0):
        for st in range(22 - KD[d] // 2, 22): groups += sg2(st, (2 * d, 2 * d + 1))
    for G, (uu, u) in enumerate(groups): pend_[u // 2] = G
    assert len(groups) == 352 and max(KD) <= 16
    NG = len(groups)
    mo, head, tail = order_mfma(groups)
    lastuse = {}; firstuse = {}
    for G, (uu, u) in enumerate(groups): firstuse.setdefault(uu, head(G)); lastuse[uu] = tail(G)
    hreg = {0: ("v", 48), 1: ("a", aK0), 2: ("a", aK1), 28: ("a", 32), 29: ("a", 48)}; hfree = {}
    pool = [(-1, ("a", r)) for r in [96, 112, 128, 144, 192, 208, 224, 160, 176, 64, 80] if r not in (aK0, aK1)] + [(4 * lastuse[u] + 3, hreg[u]) for u in (1, 2, 28, 29)]
    VFREE = cfg.get("vfree", 700)
    pool += [(VFREE, ("v", r)) for r in (64, 80, 96, 112)[:cfg.get("nvs", 4)]]
    for u in range(44):
        if u in own: continue
        pool.sort(key=lambda x: x[0]); e, r = pool.pop(0)
        hreg[u] = r; hfree[u] = e; pool.append((4 * lastuse[u] + 3, r))
    def hload(s, u, m, early=None):
        kind, x, p = steps[u]
        if m == 0:
            if kind == "g": s("s_add_u32 s%d, s%d, %d" % (sKH, sTQ[x], p * 4096))
            elif kind == "s": s("s_mov_b32 s%d, s%d" % (sKH, sTS[x]))
            else:
                part, pp = cst[x - 14]
                s("s_xor_b32 s%d, s%d, %d\ns_add_u32 s%d, s%d, s%d" % (sKH, sPar, ((28 if part == "r" else 36) + p) * 4096, sKH, sKH, sGp[pp]))
        hk, d = hreg[u]; d += 4 * m
        if kind == "s":
            s.op(Op("buffer_load_dwordx2 %s, v%d, s[32:35], s%d offen offset:%d" % (R(hk, d, 2), vH8, sKH, 1024 * m), "vm"), early)
            s.op(Op("buffer_load_dwordx2 %s, v%d, s[32:35], s%d offen offset:%d" % (R(hk, d + 2, 2), vH8, sKH, 1024 * m + 512), "vm", K(("H", u, m))))
        else: s.op(Op("buffer_load_dwordx4 %s, v1, s[32:35], s%d offen offset:%d" % (R(hk, d, 4), sKH, 1024 * m), "vm", K(("H", u, m))), early)
    def gelu_pair(base0, base1, pid, T, OUT, keep=None, hook=None, m0=0):
        for m in range(m0, 4):
            o = OUT[m % len(OUT)]
            items = [(base0 + 4 * m, base0 + 16 + 4 * m, o), (base0 + 4 * m + 2, base0 + 18 + 4 * m, o + 1),
                     (base1 + 4 * m, base1 + 16 + 4 * m, o + 2), (base1 + 4 * m + 2, base1 + 18 + 4 * m, o + 3)]
            gelu_block(s, items, CC, T)
            s.vm("buffer_store_dwordx4 %s, v1, s[32:35], s66 offen offset:%d %s" % (Q(o), 1024 * m, hst), ("hs", pid, m))
            if keep is not None:
                for r in range(4): s("v_accvgpr_write_b32 a%d, v%d" % (keep + 4 * m + r, o + r))
            if hook: hook(m)
        s("s_add_u32 s66, s66, 4096")
    NPRE2 = cfg.get("npre2", 8)
    cpre = [(st, k) for st in range(NPRE, NPRE2) for k in range(4)]
    def cdma(n):
        for _ in range(n):
            if cpre: st, k = cpre.pop(0); dma2(s, st, k)
    fstore = lambda off: "buffer_store_dword v%d, v1, s[36:39], s81 offen offset:%d %s" % (vTG, off, SC)
    fload = lambda off: "buffer_load_dword v%d, v%d, s[36:39], s68 offen offset:%d %s" % (vPD, vPAd, off, SC)
    s("v_mov_b32 v%d, s%d" % (vTG, sTAG))
    npg = cfg.get("cpre_g", 1)
    cdma(cfg.get("cpre_0", 4))
    gelu_pair(128, 160, 0, 48, [56, 60], aK0, lambda m: cdma(npg), m0=msh)
    def hook1(m):
        cdma(npg)
        if m == cfg.get("fa0_m", 1): flag(s, fstore(96), [("hs", 0, 3)])
    gelu_pair(192, 224, 1, 48, [56, 60], aK1, hook1)
    stamp(s, "p01")
    def pkfma(d, s0, s1, s2, T, neg=False):
        s("v_pk_fma_f32 %s, %s, %s, %s op_sel:[%d,0,0] op_sel_hi:[%d,1,1]%s" % (P(d), P(s0), P(s1), P(s2), T, T, " neg_lo:[1,0,0] neg_hi:[1,0,0]" if neg else ""))
    def pkmul(d, s0, s1, T, neg=False):
        s("v_pk_mul_f32 %s, %s, %s op_sel:[%d,0] op_sel_hi:[%d,1]%s" % (P(d), P(s0), P(s1), T, T, " neg_lo:[1,0] neg_hi:[1,0]" if neg else ""))
    BR = lambda T, x: 64 + 16 * T + 2 * x
    BI = lambda T, x: 96 + 16 * T + 2 * x
    for x in range(8):
        for T in range(2):
            pkmul(128 + 2 * T, cC + 2, BI(T, x), T, True); pkmul(BI(T, x), cC, BI(T, x), T, True)
        for T in range(2):
            pkfma(BI(T, x), cC + 2, BR(T, x), BI(T, x), T, True); pkfma(BR(T, x), cC, BR(T, x), 128 + 2 * T, T)
    sr = [BR(0, 0), BR(1, 0)]; si = [BI(0, 0), BI(1, 0)]
    bufs = [[132, 134], [138, 140]]; SI = [136, 142]
    for x in range(1, 8):
        nr = [bufs[T][x % 2] for T in range(2)]
        for T in range(2): pkfma(nr[T], cL, sr[T], BR(T, x), T)
        for T in range(2): pkfma(nr[T], cL + 2, si[T], nr[T], T, True)
        for T in range(2): pkfma(SI[T], cL, si[T], BI(T, x), T)
        for T in range(2): pkfma(SI[T], cL + 2, sr[T], SI[T], T)
        sr = nr; si = list(SI)
        if x % 2: cdma(1)
    EA = 20
    for T in range(2):
        s("v_mov_b32 v%d, v%d\nv_mov_b32 v%d, v%d\nv_mov_b32 v%d, v%d\nv_mov_b32 v%d, v%d" % (EA + T, sr[T], EA + 2 + T, si[T], 144 + T, sr[T] + 1, 146 + T, si[T] + 1))
    horner_pk(s, EA, cL8, 144, 144)
    s("v_add_u32 v%d, s46, v1\nv_and_b32 v%d, 0xf0, v1\nv_add_u32 v%d, s46, v%d" % (vEW, vER, vER, vER))
    s.lg("ds_write_b128 v%d, v[144:147]" % vEW)
    for g in range(4): s.lg("ds_read_b128 %s, v%d offset:%d" % (Q(148 + 4 * g), vER, 256 * g), ("e", g))
    HPN = cfg.get("hpn", 0)
    if HPN: s.vm(fload(96), "f3a0")
    for r in range(32):
        s("v_accvgpr_read_b32 v%d, a%d" % (192 + r, r))
        if r % 16 == 15: cdma(1)
    flag(s, fstore(0), [("hs", 1, 3)])
    for g in range(1, 4):
        s.wait([("e", g)]); horner_pk(s, 148 + 4 * (g - 1), cL16, 148 + 4 * g, 148 + 4 * g)
    for r in range(160, 164): s("v_min_u32 v%d, -2, v%d" % (r, r))
    s.atom(["s_mov_b64 exec, 0xffff", Op("buffer_store_dwordx4 v[160:163], v1, s[36:39], s64 offen %s" % SC, "vm"), "s_mov_b64 exec, -1"])
    stamp(s, "pub")
    poll(s, "P1b", f1bload, 44, "f1b")
    for r in range(32, 64):
        s("v_accvgpr_read_b32 v%d, a%d" % (192 + r, r))
        if r % 16 == 15: cdma(1)
    cdma(16)
    for r in range(32): s("v_accvgpr_read_b32 v%d, a%d" % (128 + r, aBS + r))
    hq = [(u, m) for u in range(3, UA) for m in range(4)][:HPN]; nh_pre = [3 + HPN // 4]
    assert HPN % 4 == 0
    def issue_h(n):
        for _ in range(n):
            if hq: hload(s, *hq.pop(0))
    hpb = cfg.get("hpb", 3)
    def hookA(m): issue_h(hpb)
    def tramp2():
        s("s_mov_b64 exec, 0")
        for w in range(1, 4): s("s_cmp_eq_u32 s%d, %d\ns_cbranch_scc1 L_trB%d" % (sW, w, w))
        s("s_branch L_trB0")
        s.atom(["L_trret2:"])
        s("s_mov_b64 exec, -1")
    if TRP >= 0 and cfg.get("tr2", 1): tramp2()
    if HPN:
        poll(s, "P3a0", fload(96), vPD, "f3a0"); stamp(s, "ok3a"); issue_h(hpb)
    gelu_pair(192, 224, 2, 168, [48, 52, 56, 60], None, hookA)
    for r in range(32): s("v_accvgpr_read_b32 v%d, a%d" % (192 + r, 64 + r))
    issue_h(hpb)
    for mp in range(2):
        o = 240 + 4 * mp; items = []
        for mm in range(2):
            m = 2 * mp + mm
            items += [(192 + 4 * m, 208 + 4 * m, o + 2 * mm), (194 + 4 * m, 210 + 4 * m, o + 2 * mm + 1)]
        gelu_block(s, items, CC, 168)
        if mp == 0:
            s("v_accvgpr_read_b32 v%d, a%d" % (vTA, PK["TA"]))
            for u in range(1, 6): s("v_xor_b32 v%d, %d, v%d" % (vTA + u, 32 * u, vTA))
        issue_h(hpb if mp == 0 else 99)
        if mp == 1 and not HPN: s.vm(fload(96), "f3a0")
        for mm in range(2):
            s.vm("buffer_store_dwordx2 %s, v%d, s[32:35], s67 offen offset:%d %s" % (P(o + 2 * mm), vH8, 1024 * (2 * mp + mm), hst), ("hsS", 2 * mp + mm))
        if mp == 0:
            s.wait([("D2", st, k) for st in range(cfg.get("bar2", 2)) for k in range(4)])
            s("s_barrier")
            pre_reads_at = len(s.u)
    for u in range(6, 8): s("v_xor_b32 v%d, %d, v%d" % (vTA + u, 32 * u, vTA))
    L2 = cfg.get("l2_lead", 4); B2 = cfg.get("bar2", 2)
    def read2(G, part):
        uu, u = groups[G]; f = G % NWB
        if uu < 28:
            st, kk = divmod(uu, 2)
            return Op("ds_read_b64_tr_b16 %s, v%d offset:%d" % (R("a", aW2 + 4 * f + 2 * part, 2), vTA + u, (slot[st] % 4) * 16384 + kk * 8192 + part * 4096), "lg", K(("F2", G, part)))
        _, st, kk = steps[uu]
        return Op("ds_read_b128 %s, v%d offset:%d" % (R("a", aW2 + 4 * f, 4), vCA + 2 * (slot[st] >= 4) + kk, (slot[st] % 4) * 16384 + u * 2048), "lg", K(("F2", G, part)))
    parts = lambda G: [0, 1] if groups[G][0] < 28 else [None]
    mf = []
    for G, m in mo:
        uu, u = groups[G]
        mf.append(Op(mfma16(("v", 128 + 16 * u + 4 * m), ("a", aW2 + 4 * (G % NWB)), (hreg[uu][0], hreg[uu][1] + 4 * m), zero=(uu == 0 and u >= 2))))
    sc = Sch(mf)
    gneed = lambda G: [("F2", H, p) for H in range(G, tail(G) + 1) for p in parts(H)] + [("H", uu, m) for uu in range(44) if firstuse[uu] == G and uu not in own for m in range(4)]
    rgap = {}
    for G in range(NG):
        st, f = divmod(G, 16)
        if st < 14 and st % B2 == B2 - 1:
            if f <= 4: rgap[G] = 4 * (G - L2) - 1
            elif f == 5: rgap[G] = 4 * (G - 1 - L2) + 1
            elif f <= 10: rgap[G] = 4 * (G - 1 - L2) - 1
            elif f == 11: rgap[G] = 4 * (G - 2 - L2) + 1
            else: rgap[G] = 4 * (G - 2 - L2) - 1
        else: rgap[G] = 4 * (G - L2) - 1
        assert rgap[G] >= 4 * tail(G - NWB) + 3
    pr = Seq()
    for G in range(NG):
        if rgap[G] < 0:
            for p in parts(G): pr.op(read2(G, p))
    s.u[pre_reads_at:pre_reads_at] = pr.units()
    s.wait(gneed(0))
    stamp(s, "loop2")
    prog.add(s.done())
    for G in range(1, NG):
        w = Op("", needs=K(gneed(G)))
        w.keep = sum(len(parts(H)) for H in range(max(0, G - 2), min(NG, G + 10)) if rgap[H] == 4 * G - 1) == 2
        if w.keep or head(G) == G: sc.put(4 * G - 1, [w], 0)
    for G in range(NG):
        if rgap[G] >= 0:
            if rgap[G] % 4 != 3: sc.put(rgap[G], [Op("s_waitcnt lgkmcnt(15)")], 0)
            sc.put(rgap[G], [read2(G, p) for p in parts(G)], 1)
    bar = {}
    for st in range(14):
        if st % B2 != B2 - 1: continue
        bar[st] = 4 * (16 * (st + 1) - L2) - 2
        pub = list(range(st + 1, st + 1 + B2)) if st < 13 else [14, 15, 16, 17]
        sc.put(bar[st], [Op("s_barrier", needs=K([("D2", x, k) for x in pub for k in range(4)]), drain=["lg"])], 0)
    for st in (3, 7, 11):
        for i_, g_ in enumerate((1, 2, 4, 5)):
            sc.put(bar[st] - g_, [Op("v_xor_b32 v%d, 0x10000, v%d" % (vTA + 2 * i_ + k, vTA + 2 * i_ + k)) for k in range(2)], 2)
        assert max(rgap[G] for G in range(16 * st, 16 * st + 16)) < bar[st] - 5
    barF = min(rgap[G] for G in range(NG) if groups[G][0] >= 36) - 1
    sc.put(barF, [Op("s_barrier", needs=K([("D2", x, k) for x in range(18, 22) for k in range(4)]))], 0)
    def mark(o, nm): o.u[-1].append(nm)
    def after(o, nm, n): o.u.append([[Op("")], lambda mk: (mk[nm] + n) if nm in mk else None])
    def dly(o, n): o.u.append([[Op("")], lambda mk: mk["_prev"] + n])
    gl = []
    t = Seq()
    t("v_accvgpr_read_b32 v%d, a%d\nv_accvgpr_read_b32 v%d, a%d\nv_accvgpr_read_b32 v%d, a%d" % (vAG, PK["AG"], vTRW, PK["TRW"], vTRR, PK["TRR"]))
    t("s_mov_b32 s40, s36\ns_mov_b32 s41, s37\ns_mov_b32 s42, 0x40000\ns_mov_b32 s43, 0x20000")
    t("v_lshrrev_b32 v8, 4, v0\nv_cmp_eq_u32 s[64:65], 1, v8\nv_cmp_eq_u32 s[66:67], 2, v8\nv_cmp_eq_u32 s[74:75], 3, v8")
    t.at(cfg.get("ag_gap", 32))
    for x in range(7, -1, -1):
        t("s_mov_b32 s57, %d" % (8192 * x))
        g = "buffer_load_dwordx4 %s, v%d, s[40:43], s57 offen %s" % (R("a", aAG + 4 * x, 4), vAG, SC)
        gl.append("s_mov_b32 s57, %d\n%s" % (8192 * x, g))
        t.vm(g, ("ag", x))
        if x: dly(t, cfg.get("ag_sp", 8))
    mark(t, "ag")
    srd(t, 8, 86, 87, 2048 * 4096)
    flag(t, fstore(32), [("hsS", 3)], early=cfg.get("fb_gap", 80)); mark(t, "flagb")
    after(t, "ag", cfg.get("ag_lat", 20)); t.at(4 * lastuse[0] + 4)
    def ag_horner(o, w):
        cur = None
        for x in range(7, -1, -1):
            q = 48 + 4 * (x % 2)
            if w: o.wait([("ag", x)])
            for r in range(4): o("v_accvgpr_read_b32 v%d, a%d" % (q + r, aAG + 4 * x + r))
            if not w: o(("v_max3_u32 v56, v%d, v%d, v%d\nv_max_u32 v56, v56, v%d" % (q, q + 1, q + 2, q + 3)) if x == 7 else ("v_max3_u32 v56, v56, v%d, v%d\nv_max3_u32 v56, v56, v%d, v%d" % (q, q + 1, q + 2, q + 3)))
            if cur is not None: horner_sc(o, cur, cL64, q)
            cur = q
    ag_horner(t, True)
    t("v_cmp_u_f32 s[70:71], v48, v49")
    t.atom(["v_cmp_u_f32 vcc, v50, v51", "s_or_b64 vcc, vcc, s[70:71]", "s_cbranch_scc1 PAG_retry", "PAG_ok:"])
    ool("PAG_retry:\n" + "\n".join(gl) + "\ns_waitcnt vmcnt(0)")
    ag_horner(ool, False)
    ool("v_cmp_eq_u32 vcc, -1, v56\ns_and_b64 vcc, vcc, exec\ns_cbranch_scc0 PAG_ok\ns_cmp_eq_u32 s79, 0\ns_cbranch_scc1 PAG_ok\ns_sub_u32 s79, s79, 1\ns_sleep 1\ns_branch PAG_retry")
    t.lg("ds_write_b128 v%d, v[48:51] offset:1024" % vEW)
    for g, r in ((3, 52), (2, 56), (1, 60)): t.lg("ds_read_b128 %s, v%d offset:%d" % (Q(r), vER, 1024 + 256 * g), ("s", g))
    t.lg("ds_read_b128 %s, v%d offset:1024" % (Q(48), vER), ("s", 0))
    dly(t, 8)
    t.wait([("s", 2)]); horner_sc(t, 52, cL512, 56)
    t.lg("ds_read_b128 %s, v%d" % (Q(52), vER), ("e2", 0))
    t.wait([("s", 1)]); horner_sc(t, 56, cL512, 60)
    t.lg("ds_read_b128 %s, v%d offset:256" % (Q(56), vER), ("e2", 1))
    t.wait([("s", 0)]); horner_sc(t, 60, cL512, 48)
    t.lg("ds_read_b128 %s, v%d offset:512" % (Q(60), vER), ("e2", 2))
    t.wait([("e2", 0)]); horner_sc(t, 48, cL16, 52)
    t.wait([("e2", 1)]); horner_sc(t, 52, cL16, 56)
    t.wait([("e2", 2)]); horner_sc(t, 56, cL16, 60)
    for g, sm in ((52, 64), (56, 66), (60, 74)):
        for r in range(4): t("v_cndmask_b32 v%d, v%d, v%d, s[%d:%d]" % (48 + r, 48 + r, g + r, sm, sm + 1))
    horner_sc(t, 48, cL8, EA)
    t("v_xor_b32 v52, 16, v%d" % vTRR)
    st_r = {(T, h): (48, EA)[h] + T for T in range(2) for h in range(2)}
    st_i = {(T, h): (48, EA)[h] + 2 + T for T in range(2) for h in range(2)}
    TH = [(T, h) for T in range(2) for h in range(2)]
    xs = Seq()
    for x in range(8):
        for (T, h) in TH: t("v_fmac_f32 v%d, v%d, v%d" % (BR(T, x) + h, cL + T, st_r[T, h]))
        for (T, h) in TH: t("v_fmac_f32 v%d, v%d, v%d" % (BI(T, x) + h, cL + T, st_i[T, h]))
        for (T, h) in TH: t("v_fma_f32 v%d, -v%d, v%d, v%d" % (BR(T, x) + h, cL + 2 + T, st_i[T, h], BR(T, x) + h))
        for (T, h) in TH: t("v_fmac_f32 v%d, v%d, v%d" % (BI(T, x) + h, cL + 2 + T, st_r[T, h]))
        for (T, h) in TH: st_r[T, h] = BR(T, x) + h; st_i[T, h] = BI(T, x) + h
        if x % 2 == 1:
            m = x // 2; mo = (m % 2) * 2048
            for part, Fn in enumerate((BR, BI)):
                for T in range(2):
                    o = 56 + 4 * part + 2 * T
                    t("v_cvt_pk_bf16_f32 v%d, v%d, v%d\nv_cvt_pk_bf16_f32 v%d, v%d, v%d" % (o, Fn(T, x - 1), Fn(T, x - 1) + 1, o + 1, Fn(T, x), Fn(T, x) + 1))
                    t.lg("ds_write_b64 v%d, %s offset:%d" % (vTRW, P(o), mo + part * 1024 + 512 * T))
                t.atom(["s_waitcnt lgkmcnt(15)"] + [Op("ds_read_b64_tr_b16 %s, v%d offset:%d" % (R("a", aAG + 16 * part + 4 * m + 2 * half, 2), (vTRR, 52)[half], mo + part * 1024 + 256 * half), "lg", K(("tr", m, part, half))) for half in range(2)])
                mark(t, ("tr", m, part))
                after(xs, ("tr", m, part), 10)
                if (m, part) != (0, 0) and m < 3: after(xs, ("hl", m - 1 + part, 1 - part), cfg.get("hl_sp", 24))
                xs.vm("buffer_store_dwordx4 %s, v1, s[32:35], s%d offen offset:%d %s" % (R("a", aAG + 16 * part + 4 * m, 4), 72 + part, 1024 * m, hst), ("hl", m, part), needs=[("tr", m, part, 1)])
                mark(xs, ("hl", m, part))
    dly(xs, cfg.get("fc_lat", 60))
    flag(xs, fstore(64), [("hl", 3, 1)]); mark(xs, "flagc")
    t("v_accvgpr_read_b32 v48, a%d\nv_accvgpr_read_b32 v%d, a%d" % (PK["C"], vCA, PK["CA"]))
    for k in range(4): t("s_xor_b32 s65, s%d, %d\ns_lshl_b32 s65, s65, 16\nv_add_u32 v%d, s65, v48" % (sQ, k, vC + k))
    t("s_and_b32 s65, s%d, 1\ns_lshl_b32 s65, s65, 6\nv_xor_b32 v%d, s65, v%d" % (sTN, vCA, vCA))
    t("v_xor_b32 v%d, 64, v%d\nv_add_u32 v%d, 0x10000, v%d\nv_xor_b32 v%d, 64, v%d" % (vCA + 1, vCA, vCA + 2, vCA, vCA + 3, vCA + 2))
    vOO = 28
    t("v_accvgpr_read_b32 v24, a%d\nv_accvgpr_read_b32 v25, a%d\nv_lshlrev_b32 v25, 2, v25\nv_lshl_add_u32 v%d, v24, 12, v25" % (PK["TOK"], PK["COL"], vOO))
    mark(t, "cready")
    RB = lambda u, m: 128 + 16 * u + 4 * m
    after(t, "flagc", 1)
    t("s_lshl_b32 s65, s%d, 3\ns_add_u32 s65, s65, s%d\ns_lshl_b32 s66, s65, 18\ns_lshl_b32 s67, s%d, 14\ns_add_u32 s66, s66, s67\ns_add_u32 s66, s66, 0x%x" % (sI, sTN, sW, WS_PART))
    t.atom(["s_add_u32 s40, s6, s66", "s_addc_u32 s41, s7, 0"])
    t("s_and_b32 s41, s41, 0xffff\ns_mov_b32 s42, 0x34000\ns_mov_b32 s43, 0x20000")
    t("s_lshl_b32 s69, s65, 2\ns_add_u32 s69, s69, s%d\ns_lshl_b32 s69, s69, 7\ns_add_u32 s69, s69, 0x%x" % (sW, SM_F4))
    for d in (1, 2, 3):
        t("s_xor_b32 s67, s%d, %d\ns_lshl_b32 s66, s67, 16\ns_add_u32 s%d, s66, %d" % (sQ, d, 72 + d, (d - 1) * 4096))
        t("s_lshl_b32 s67, s67, 4\ns_add_u32 s67, s67, %d\nv_mov_b32 v%d, s67" % (4 * d, 28 + d))
        t("s_lshl_b32 s67, s%d, 16\ns_add_u32 s%d, s67, %d" % (sQ, 69 + d, (d - 1) * 4096))
    t("s_lshl_b32 s67, s%d, 4\nv_and_b32 v32, 3, v0\nv_lshl_add_u32 v32, v32, 2, s67" % sQ)
    t("s_mov_b32 s57, 0\ns_mov_b32 s58, 8192\ns_mov_b32 s59, 16384\ns_mov_b32 s64, 24576")
    t("v_mov_b32 v34, 0x3f80\nv_mov_b32 v35, 0x3f800000")
    mark(t, "setup")
    f4store = lambda d: "buffer_store_dword v%d, v%d, s[36:39], s69 offen %s" % (vTG, 28 + d, SC)
    f4load = "buffer_load_dword v33, v32, s[36:39], s69 offen %s" % SC
    gp = lambda d: 4 * pend_[d] + 3 + 3
    RV = lambda d, m: 128 + 32 * d + 16 + 4 * m
    rload = lambda d, m: "buffer_load_dwordx4 %s, v1, s[40:43], s%d offen offset:%d %s" % (Q(RV(d, m)), 69 + d, 1024 * m, SC)
    NFI = cfg.get("nfi", 3); NRI = cfg.get("nri", 1)
    fs = Seq(); rs = Seq(); pl_ = Seq(); assert NFI == 3
    for d in (1, 2, 3):
        t.at(gp(d))
        for m in range(4):
            A = 128 + 32 * d + 4 * m; Bq = A + 16
            t("v_cvt_pk_bf16_f32 v%d, v%d, v%d\nv_cvt_pk_bf16_f32 v%d, v%d, v%d\nv_cvt_pk_bf16_f32 v%d, v%d, v%d\nv_cvt_pk_bf16_f32 v%d, v%d, v%d" % (A, A, A + 1, A + 1, A + 2, A + 3, A + 2, Bq, Bq + 1, A + 3, Bq + 2, Bq + 3))
            mark(t, ("cv", d, m))
            after(xs, ("cv", d, m), 1)
            xs.vm("buffer_store_dwordx4 %s, v1, s[40:43], s%d offen offset:%d %s" % (Q(A), 72 + d, 1024 * m, SC), ("ps", d, m)); mark(xs, ("ps", d, m))
        if d <= NFI:
            after(fs, ("ps", d, 3), cfg.get("f4_lat", 44)); flag(fs, f4store(d), [("ps", d, 3)]); mark(fs, ("f4", d))
        f4l = f4load.replace("v33,", "v%d," % (35 + d))
        after(pl_, ("f4", d), cfg.get("p4_lat", 30)); pl_.vm(f4l, ("f4l", d)); mark(pl_, ("f4l", d))
        after(rs, ("f4l", d), cfg.get("p4_rt", 36))
        poll(rs, "P4%d" % d, f4l, 35 + d, ("f4l", d), mask=str(1 << d))
        for m in range(4):
            rs.vm(rload(d, m), ("pl", d, m)); mark(rs, ("pl", d, m)); dly(rs, cfg.get("r_sp", 12))
    hs = Seq(); hdl = {}
    if not HPN: poll(hs, "P3a0", fload(96), vPD, "f3a0", early=cfg.get("pa_gap", 12))
    for u in range(nh_pre[0], 44):
        if u in own: continue
        for (U, nm, off, fl, lat) in ((UA, "P3a", 0, None, 0), (UB, "P3b", 32, "flagb", cfg.get("pb_lat", 80)), (UC, "P3c", 64, "flagc", cfg.get("pc_lat", 80))):
            if u == (max(U - 2, nh_pre[0]) if U != UC else U):
                if fl: after(hs, fl, lat)
                hs.vm(fload(off), nm); mark(hs, nm + "l")
            if u == U:
                after(hs, nm + "l", cfg.get("poll_rt", 44)); poll(hs, nm, fload(off), vPD, nm); mark(hs, nm)
        n0 = len(hs.u)
        for m in range(4): hload(hs, u, m, max(hfree[u], 4 * firstuse[u] - cfg.get("l2_la", 400)))
        for i in range(n0, len(hs.u)): hdl[i] = 4 * firstuse[u] - 1
        mark(hs, ("H", u))
    ds = Seq(); ddl = {}
    DL = lambda st: bar[st // B2 * B2 - 1] if st < 14 else (bar[13] if st < 18 else barF)
    for st in range(NPRE2, 22):
        n0 = len(ds.u)
        if st == "E":
            after(ds, "cready", 1); after(ds, ("hl", 3, 1), 1)
            for n in range(4):
                ds("s_mov_b32 s%d, %d\ns_add_u32 m0, s46, %d" % (sKD, 32768 * n, 2048 + 1024 * n))
                ds.vm("buffer_load_dwordx4 v26, s[24:27], s%d offen lds" % sKD)
            ds("s_add_u32 m0, s46, 6144"); ds.vm("buffer_load_dwordx4 v1, s[36:39], s59 offen lds")
            ds("s_add_u32 m0, s46, 7168"); ds.vm("buffer_load_dwordx4 v1, s[28:31], s58 offen lds", "Elast"); mark(ds, "edma")
            dl = 900
        else:
            if st == 14: after(ds, "cready", 1)
            for k in range(4): dma2(ds, st, k, bar[prevocc[st] // B2 * B2 + B2 - 1] + 1 if st >= 8 else 0)
            dl = DL(st)
            mark(ds, ("D", st))
        for i in range(n0, len(ds.u)): ddl[i] = dl
    RS = Stream("r", rs.units(), 2, deadline=lambda i: cfg.get("r_prio", -3)); PS = Stream("pl", pl_.units(), 2, deadline=lambda i: -2); RS.overflow = PS.overflow = True
    mk = multi(sc, [Stream("h", hs.units(), 2, deadline=lambda i: hdl.get(i, 0)), Stream("d", ds.units(), 2, deadline=lambda i: ddl.get(i, 0)),
                    Stream("x", xs.units(), 2), Stream("t", t.units(), 3, start=1), RS, PS, Stream("f", fs.units(), 2, deadline=lambda i: -2)],
               cl=cfg.get("cl", 70), cs=cfg.get("cs", 210), B0=cfg.get("b0", 150), busy0=cfg.get("busy0", 300))
    sl = sorted([(4 * firstuse[u] - 1 - mk[("H", u)], "h", u) for u in range(nh_pre[0], 44) if u not in own] + [(DL(st) - mk[("D", st)], "d", st) for st in range(NPRE2, 22)])
    if cfg.get("verbose"):
        print("loop2 slacks", sl[:6], {k: v for k, v in mk.items() if isinstance(k, str)}, "hl", [mk[("hl", m, p)] for m in range(4) for p in range(2)], "ps", [mk[("ps", d, m)] for d in (1, 2, 3) for m in range(4)], "barF", barF, "f4", [mk.get(("f4", d)) for d in (1, 2, 3)], "f4l", [mk.get(("f4l", d)) for d in (1, 2, 3)], "pl", [mk.get(("pl", d, m)) for d in (1, 2, 3) for m in range(4)])
    assert sl[0][0] > cfg.get("minslack", 30), sl[:4]
    assert mk["cready"] < rgap[firstuse[28]] and mk[("hl", 3, 1)] < 4 * firstuse[28] - 1 and mk["setup"] < gp(1) and mk[("tr", 3, 1)] < VFREE
    for nm in names:
        if TS and nm[0] == "g" and nm[1:].isdigit():
            g_ = 4 * (16 * (int(nm[1:]) + 1) - L2) - 2
            sc.put(g_ - 1, [Op("s_memrealtime s[100:101]")], 5)
            sc.put(g_, [Op("s_waitcnt lgkmcnt(0)\nv_writelane_b32 v%d, s100, %d" % (vTS, names.index(nm)))], 5)
    if cfg.get("drop"):
        for g in range(cfg.get("drop_lo", 120), cfg.get("drop_hi", 600)):
            for it in sc.g[g]:
                o = it[2]
                if it[0] in (2, 3) and o.text and "\n" not in o.text and not o.text.endswith(":"):
                    c = opclass(o.text)
                    if it[0] == 2 and not (c == "X" and "x4" in o.text): continue
                    if c in cfg["drop"] and "cmp" not in o.text and not any(("v%d," % r) in o.text.split(None, 2)[1] + "," for r in range(16, 32)):
                        o.text = "s_nop 0" if cfg.get("dropnop") else ""
    prog.add(sc.ops())
    stamp(s, "end2")
    def addp(d, m):
        s.wait([("pl", d, m)])
        for k in range(8):
            r = RB(k // 4, m) + k % 4
            s("v_dot2_f32_bf16 v%d, v%d, v%d, v%d" % (r, RV(d, m) + k // 2, 34 + k % 2, r))
    for un in PS.units[PS.pos:]: s.u.append([un[0], None])
    added = set()
    for un in RS.units[RS.pos:]:
        if un[0][0].needs and not un[0][0].text:
            for d in (1, 2):
                for m in range(4):
                    if ("pl", d, m) in mk and (d, m) not in added: addp(d, m); added.add((d, m))
        s.u.append([un[0], None])
    stamp(s, "poll4")
    for d in (1, 2):
        for m in range(4):
            if (d, m) not in added: addp(d, m)
    sM4 = [57, 58, 59, 64]
    for m in range(4):
        addp(3, m)
        stamp(s, "r%d" % m)
        s.vm("buffer_store_dwordx4 %s, v%d, s[8:11], s%d offen %s" % (Q(RB(0, m)), vOO, sM4[m], cfg.get("ost", SC)))
        s("s_nop 1")
        s.vm("buffer_store_dwordx4 %s, v%d, s[8:11], s%d offen offset:64 %s" % (Q(RB(1, m)), vOO, sM4[m], cfg.get("ost", SC)))
    prog.add(s.done())
    prog.emit(a)
    a("s_cmp_eq_u32 s%d, 31\ns_cbranch_scc0 L_noep\ns_cmp_eq_u32 s%d, 0\ns_cbranch_scc0 L_noep" % (sB, sJ))
    a("v_mov_b32 v40, 0x%x\ns_mov_b64 exec, 1\nbuffer_store_dword v%d, v40, s[36:39], 0 offen %s\ns_mov_b64 exec, -1" % (SM_EP, vTG, SC))
    a("L_noep:")
    if TS:
        a("s_waitcnt vmcnt(0)\ns_memrealtime s[100:101]\ns_waitcnt lgkmcnt(0)\nv_writelane_b32 v%d, s100, %d" % (vTS, len(names) - 1))
        a("s_cmp_lg_u32 s%d, %d\ns_cbranch_scc1 L_end" % (sW, cfg.get("tsw", 0)))
        if cfg.get("leak"):
            A, B = cfg["leak"].split(":")
            a("s_cmp_lg_u32 s2, %d\ns_cbranch_scc1 L_end" % cfg.get("leakwg", 100))
            a("v_readlane_b32 s64, v%d, %d\nv_readlane_b32 s65, v%d, %d\ns_nop 4\ns_sub_u32 s64, s65, s64\ns_mul_i32 s64, s64, %d\ns_min_u32 s64, s64, 200000" % (vTS, names.index(A), vTS, names.index(B), cfg.get("leakk", 8)))
            a("L_leak:\ns_memrealtime s[66:67]\ns_waitcnt lgkmcnt(0)\ns_sub_u32 s66, s66, s100\ns_cmp_lt_u32 s66, s64\ns_cbranch_scc1 L_leak")
        ws_srd(a, 12, WS_TS, 16384)
        a("s_lshl_b32 s75, s2, 6\nv_lshlrev_b32 v1, 2, v0\ns_mov_b64 exec, 0xffff\nbuffer_store_dword v%d, v1, s[12:15], s75 offen" % vTS)
    a("L_end:")
    a("s_endpgm")
    if ".p2align 12" in a.lines and cfg.get("oolf", 1):
        i = a.lines.index(".p2align 12"); a.lines[i:i] = ool.lines
    else: a.lines += ool.lines
    a("L_codeend:")
    return name, a

def inst_sizes(lines):
    import subprocess, tempfile, os, re
    d = tempfile.mkdtemp()
    und = sorted(set(re.findall(r"L_trB?\d+\b", "\n".join(lines))))
    open(d + "/a.s", "w").write('.amdgcn_target "amdgcn-amd-amdhsa--gfx950"\n' + "\n".join(l for l in lines if not l.startswith(".p2align 12")) + "\n" + "".join(u + ":\n" for u in und))
    subprocess.check_call(["clang", "-x", "assembler", "-target", "amdgcn-amd-amdhsa", "-mcpu=gfx950", "-c", d + "/a.s", "-o", d + "/a.o"])
    o = subprocess.check_output(["llvm-objdump", "-d", "--mcpu=gfx950", d + "/a.o"], text=True)
    sz = [4 * len(m.group(1).split()) for m in re.finditer(r"// [0-9A-F]+: ([0-9A-F ]+)", o)]
    n = sum(1 for l in lines if parse(l))
    assert n == len(sz), (n, len(sz))
    return sz

def add_stubs(lines, cfg):
    NL = 1; step = cfg.get("tr_step", 128)
    sz = iter(inst_sizes(lines)); size = [next(sz) if parse(l) else 0 for l in lines]
    i0 = lines.index("L_main:"); iend = lines.index("L_end:")
    out = lines[:i0 + 1]; off = 0; targets = [4096 * p + step * k for p in range(0, 40) for k in range(NL)]
    n = 0; pos = []
    def penalty(i):
        if not lines[i - 1].startswith("v_mfma"): return 0 if not any(l.startswith("v_mfma") for l in lines[max(0, i - 6):i + 6]) else 1
        j = i; c = ["S"]
        while not lines[j].startswith("v_mfma") and j - i < 8:
            try: c.append(opclass(lines[j]))
            except AssertionError: return 0
            j += 1
        t = gap_time(c)
        return 0 if (t is not None and t <= 16) else 1
    for i in range(i0 + 1, len(lines)):
        if i < iend and size[i] and off >= targets[n] and (penalty(i) == 0 or off + size[i] > targets[n] + 56):
            out.append("L_tr%d:" % n); out.append(("STUB", n)); off += 4; n += 1
        out.append(lines[i]); off += size[i]
    n1 = min(n, cfg.get("tr_n", 14))
    res = []
    for l in out:
        if isinstance(l, tuple):
            k = l[1]; nx = k + 4
            if k < n1: res.append("s_cbranch_execz %s" % ("L_tr%d" % nx if nx < n1 else "L_trret"))
            elif cfg.get("tr2", 1): res.append("s_cbranch_execz %s" % ("L_tr%d" % nx if nx < n else "L_trret2"))
            else: res.append("s_nop 0")
        elif "L_trB" in l:
            k = n1 + int(l[-1]); res.append(l.replace("L_trB" + l[-1], "L_tr%d" % k if k < n else "L_trret2"))
        else: res.append(l)
    if cfg.get("verbose"): print("pages", n)
    return res

def build(cfg):
    name, a = gen(cfg)
    hdr = open("cdna_kernels/%s.s.ref" % NAME).read().split("; Override launch")[0]
    out = hdr + "; @launch grid=(256,1,1) block=(256,1,1) lds=163840\n"
    out += '.amdgcn_target "amdgcn-amd-amdhsa--gfx950"\n'
    lines = pad_hazards([l for l in a.lines if l], cfg.get("verbose", 0) > 1)
    if cfg.get("tramp", 1): lines = add_stubs(lines, cfg)
    if cfg.get("verbose"): print(gap_report(lines))
    if cfg.get("lsc"): lines = [l.replace("sc0 sc1", cfg["lsc"]) if l.startswith("buffer_load") else l for l in lines]
    la = cfg.get("laux"); da = cfg.get("daux")
    if la: lines = [l + " " + la if (l.startswith("buffer_load_dwordx4 a[") and "sc1" not in l) else l for l in lines]
    if da: lines = [l.replace(" lds", " %s lds" % da) if l.endswith(" lds") else l for l in lines]
    out += "\n".join(lines) + "\n"
    if cfg.get("cyc"): out = out.replace("s_memrealtime", "s_memtime")
    b = Asm(); kernel_desc(b, name, 512, accum=256); out += b.text()
    return out

if __name__ == "__main__":
    cfg = {}
    for kv in sys.argv[2:]:
        k, v = kv.split("=")
        try: v = int(v)
        except ValueError:
            try: v = float(v)
            except ValueError: v = v.replace("+", " ")
        cfg[k] = v
    open(sys.argv[1], "w").write(build(cfg))
```

```python
import sys, math, struct
from asmlib import *

NAME = "parallel_sum__ssm_conv_s5__glu_gated_geglu__prompt"
KX, KLRE, KLIM, KBRE, KBIM, KCRE, KCIM, KLDT, KDSK, KBX, KWG, KWU, KWD, KOUT, KDBG, KWS = [8 * i for i in range(16)]
WS_XN = 0
WS_H = 0x400000
H_BLK = 176 * 4096
WS_SM = 0x1A00000
SM_AG = 0; SM_ST = 0x40000; SM_EP = 0x48000; SM_F1 = 0x50000; SM_F1B = 0x60000; SM_F3 = 0x70000; SM_F4 = 0xB0000; SM_SIZE = 0xF0000
WS_TS = 0x1B00000
WS_PART = 0x2000000
NSTAMPS = [16]
SPLIT_LAYOUT = True
XN_DIRECT = 0
STAMPS = []

def f2u(x): return struct.unpack("<I", struct.pack("<f", x))[0]
def fx(x): return "0x%08x" % f2u(x)
P = lambda r: "v[%d:%d]" % (r, r + 1)
Q = lambda r: "v[%d:%d]" % (r, r + 3)
LOG2E = 1.4426950408889634
K = lambda v: (lambda it: v)

def ws_srd(a, r, off, size):
    a("s_add_u32 s%d, s6, 0x%x\ns_addc_u32 s%d, s7, 0\ns_and_b32 s%d, s%d, 0xffff\ns_mov_b32 s%d, 0x%x\ns_mov_b32 s%d, 0x20000" % (r, off, r + 1, r + 1, r + 1, r + 2, size, r + 3))

def mfma16(d, A, B, zero=False):
    return "v_mfma_f32_16x16x32_bf16 %s, %s, %s, %s" % (R(d[0], d[1], 4), R(A[0], A[1], 4), R(B[0], B[1], 4), "0" if zero else R(d[0], d[1], 4))

def cmul_pk(a, dr, di, ar, ai, br, bi, t):
    a("v_pk_mul_f32 %s, %s, %s" % (P(t), P(ai), P(bi)))
    a("v_pk_fma_f32 %s, %s, %s, %s neg_lo:[0,0,1] neg_hi:[0,0,1]" % (P(t), P(ar), P(br), P(t)))
    a("v_pk_mul_f32 %s, %s, %s" % (P(t + 2), P(ar), P(bi)))
    a("v_pk_fma_f32 %s, %s, %s, %s" % (P(di), P(ai), P(br), P(t + 2)))
    a("v_mov_b32 v%d, v%d\nv_mov_b32 v%d, v%d" % (dr, t, dr + 1, t + 1))

def horner_pk(a, s, L, e, d):
    a("v_pk_fma_f32 %s, %s, %s, %s" % (P(d), P(L), P(s), P(e)))
    a("v_pk_fma_f32 %s, %s, %s, %s" % (P(d + 2), P(L), P(s + 2), P(e + 2)))
    a("v_pk_fma_f32 %s, %s, %s, %s neg_lo:[1,0,0] neg_hi:[1,0,0]" % (P(d), P(L + 2), P(s + 2), P(d)))
    a("v_pk_fma_f32 %s, %s, %s, %s" % (P(d + 2), P(L + 2), P(s), P(d + 2)))

def horner_sc(a, s, L, e):
    for T in range(2):
        a("v_fmac_f32 v%d, v%d, v%d" % (e + T, L + T, s + T)); a("v_fmac_f32 v%d, v%d, v%d" % (e + 2 + T, L + T, s + 2 + T))
    for T in range(2):
        a("v_fma_f32 v%d, -v%d, v%d, v%d" % (e + T, L + 2 + T, s + 2 + T, e + T)); a("v_fmac_f32 v%d, v%d, v%d" % (e + 2 + T, L + 2 + T, s + T))

def gelu_block(a, items, CC, T):
    for k, (g, u, o) in enumerate(items): a("v_pk_mul_f32 %s, %s, %s" % (P(T + 2 * k), P(g), P(g)))
    for k, (g, u, o) in enumerate(items): a("v_pk_fma_f32 %s, %s, %s, %s op_sel:[0,1,0] op_sel_hi:[1,1,0]" % (P(T + 2 * k), P(T + 2 * k), P(CC), P(CC)))
    for k, (g, u, o) in enumerate(items): a("v_pk_mul_f32 %s, %s, %s" % (P(T + 2 * k), P(T + 2 * k), P(g)))
    for k, (g, u, o) in enumerate(items):
        a("v_exp_f32 v%d, v%d" % (T + 2 * k, T + 2 * k)); a("v_exp_f32 v%d, v%d" % (T + 2 * k + 1, T + 2 * k + 1))
        a("v_pk_mul_f32 %s, %s, %s" % (P(u), P(g), P(u)))
    for k, (g, u, o) in enumerate(items): a("v_pk_add_f32 %s, %s, 1.0 op_sel_hi:[1,0]" % (P(T + 2 * k), P(T + 2 * k)))
    for k, (g, u, o) in enumerate(items):
        a("v_rcp_f32 v%d, v%d" % (T + 2 * k, T + 2 * k)); a("v_rcp_f32 v%d, v%d" % (T + 2 * k + 1, T + 2 * k + 1))
    for k, (g, u, o) in enumerate(items): a("v_pk_mul_f32 %s, %s, %s" % (P(u), P(u), P(T + 2 * k)))
    for k, (g, u, o) in enumerate(items): a("v_cvt_pk_bf16_f32 v%d, v%d, v%d" % (o, u, u + 1))

class Seq:
    def __init__(self): self.u = []
    def __call__(self, s):
        for l in s.split("\n"):
            l = l.strip()
            assert not l.startswith(("buffer_", "global_", "ds_")), ("uncounted memory op", l)
            self.u.append([[Op(l)], None])
    def atom(self, ops, early=None): self.u.append([[o if isinstance(o, Op) else Op(o) for o in ops], early])
    def vm(self, text, tag=None, needs=None, early=None):
        if needs: self.wait(needs, early=early); early = None
        self.u.append([[Op(text, "vm", K(tag) if tag is not None else None)], early])
    def lg(self, text, tag=None, needs=None):
        if needs: self.wait(needs)
        self.u.append([[Op(text, "lg", K(tag) if tag is not None else None)], None])
    def wait(self, needs, drain=None, early=None): self.u.append([[Op("", needs=K(needs) if needs else None, drain=drain)], early])
    def op(self, o, early=None): self.u.append([[o], early])
    def delay(self, n):
        self._d = n; i = len(self.u) - 1
        self.u.append([[Op("")], lambda res, n=n: res[-1] + n])
    def at(self, g): self.u.append([[Op("")], g])
    def done(self):
        o = [x for un, _ in self.u for x in un]; self.u = []; return o
    def units(self):
        u = self.u; self.u = []; return u

def order_mfma(groups):
    ch = [groups[2 * p][1] == groups[2 * p + 1][1] for p in range(len(groups) // 2)]
    out = []; up = True
    for p, c in enumerate(ch):
        if c:
            for m in (range(4) if up else range(3, -1, -1)): out += [(2 * p, m), (2 * p + 1, m)]
            up = not up
        else:
            for G in (2 * p, 2 * p + 1):
                out += [(G, m) for m in (range(4) if up else range(3, -1, -1))]; up = not up
    return out, (lambda G: G & ~1 if ch[G // 2] else G), (lambda G: G | 1 if (G >= 0 and ch[G // 2]) else G)

W_ST = 28672; U_OFF = 14336
B_BASE = 131072; B_ST = 8192
LN_LDS = 65536 + W_ST

def gen(cfg):
    name = NAME + "_kernel"
    a = Asm(); kernel_header(a, name)
    ool = Asm()
    TS = cfg.get("ts")
    names = ["start"] + cfg.get("stamps", "flag1 poll1 loop1 end1 p01 pub loop2 end2 poll4").split() + ["end"]
    STAMPS[:] = names; NSTAMPS[0] = len(names)
    vTS = 15
    def stamp(s, nm):
        if TS and nm in names: s.atom(["s_memrealtime s[100:101]", "s_waitcnt lgkmcnt(0)", "v_writelane_b32 v%d, s100, %d" % (vTS, names.index(nm))])
    SC = cfg.get("sc", "sc0 sc1")
    FS = cfg.get("f1s", 128)
    prog = Prog(); s = Seq()
    sJ, sI, sW, sB, sQ, sTN, sTAG = 60, 61, 62, 63, 52, 53, 3
    sMW, sM3, sMB, sKW, sKB, sKX, sCNT = 54, 55, 56, 57, 58, 59, 81
    sPAs, sKPA, sKPB, sPBs = 76, 77, 78, 80
    def poll(s, nm, loadtext, dst, tagneed, mask=None, early=None):
        s.wait([tagneed], early=early)
        s.atom(["%s_chk:" % nm, "v_cmp_ne_u32 vcc, s%d, v%d" % (sTAG, dst), "s_and_b64 vcc, vcc, %s" % (mask or "exec"), "s_cbranch_scc1 %s_retry" % nm, "%s_ok:" % nm])
        ool("%s_retry:\ns_cmp_eq_u32 s79, 0\ns_cbranch_scc1 %s_ok\ns_sub_u32 s79, s79, 1\ns_sleep %d\n%s\ns_waitcnt vmcnt(0)\ns_branch %s_chk" % (nm, nm, cfg.get("psl", 1), loadtext, nm))
    def flag(s, text, needs, early=None):
        s.wait(needs, early=early)
        s.atom(["s_mov_b64 exec, %d" % (15 if "x4" in text else 1), Op(text, "vm"), "s_mov_b64 exec, -1"])

    s("s_cmp_ge_u32 s2, 256\ns_cbranch_scc1 L_end")
    if cfg.get("gx"): s("s_xor_b32 s2, s2, %d" % cfg["gx"])
    if TS: s("s_memrealtime s[100:101]")
    CP = cfg.get("cpf", 1)
    s("s_load_dwordx2 s[4:5], s[0:1], %d" % KX)
    s("s_load_dwordx2 s[6:7], s[0:1], %d" % KWS)
    s("s_load_dwordx4 s[12:15], s[0:1], %d" % KWG)
    s("s_load_dwordx4 s[24:27], s[0:1], %d" % KBRE)
    s("s_load_dwordx4 s[96:99], s[0:1], %d" % KLRE)
    s("s_load_dwordx4 s[92:95], s[0:1], %d" % KLDT)
    s("s_load_dwordx4 s[84:87], s[0:1], %d" % KWD)
    s("s_load_dwordx4 s[88:91], s[0:1], %d" % KCRE)
    if CP:
        s("s_getpc_b64 s[82:83]")
        s.atom(["L_pc:"])
        s("s_lshr_b32 s64, s2, 3\ns_mul_i32 s64, s64, 28\nv_add_u32 v3, s64, v0\nv_cmp_gt_u32 vcc, 64, v0\nv_cndmask_b32 v2, v3, v0, vcc\nv_lshlrev_b32 v2, 7, v2")
        s("v_min_u32 v2, L_codeend-L_pc-4, v2\nv_mov_b32 v3, 0\nv_lshl_add_u64 v[2:3], v[2:3], 0, s[82:83]")
        s("v_cmp_gt_u32 vcc, 92, v0\ns_and_saveexec_b64 s[66:67], vcc\ns_cbranch_execz L_nocp")
        s.atom([Op("global_load_dword a246, v[2:3], off")])
        s.atom(["L_nocp:", "s_mov_b64 exec, -1"])
    s("v_lshrrev_b32 v1, 6, v0\nv_and_b32 v0, 63, v0")
    s("v_readfirstlane_b32 s%d, v1" % sW)
    s("v_lshlrev_b32 v1, 4, v0")
    s("s_mov_b32 s79, 0x40000")
    s("s_bfe_u32 s%d, s2, 0x20001" % sQ)
    s("s_and_b32 s64, s2, 1\ns_lshl_b32 s64, s64, 2\ns_lshr_b32 s%d, s2, 6\ns_add_u32 s%d, s%d, s64" % (sI, sI, sI))
    s("s_bfe_u32 s%d, s2, 0x30003" % sTN)
    s("s_lshl_b32 s%d, s%d, 3\ns_add_u32 s%d, s%d, s%d" % (sJ, sQ, sJ, sJ, sTN))
    s("s_lshl_b32 s%d, s%d, 2\ns_add_u32 s%d, s%d, s%d" % (sB, sI, sB, sB, sW))
    s("s_and_b32 s64, s2, 1\ns_lshl_b32 s64, s64, 1\ns_lshr_b32 s65, s%d, 1\ns_add_u32 s64, s64, s65\ns_lshl_b32 s64, s64, 4" % sW)
    s("s_lshl_b32 s65, s%d, 1\ns_add_u32 s64, s64, s65" % sQ)
    s("s_lshr_b32 s66, s2, 3\ns_lshl_b32 s65, s66, 6\ns_add_u32 s64, s64, s65")
    s("s_lshl_b32 s67, s64, 11\ns_and_b32 s68, s%d, 1\ns_lshl_b32 s65, s68, 8\ns_add_u32 s67, s67, s65" % sW)
    LQ = cfg.get("lq", 1)
    if LQ: s("v_and_b32 v48, 15, v0\nv_bfe_u32 v56, v0, 1, 1\nv_and_b32 v57, 1, v0\nv_lshl_add_u32 v56, v57, 3, v56\nv_lshrrev_b32 v57, 2, v0\nv_lshlrev_b32 v40, 11, v56\nv_lshl_add_u32 v40, v57, 4, v40")
    else: s("v_and_b32 v48, 15, v0\nv_lshrrev_b32 v56, 5, v0\nv_bfe_u32 v57, v0, 4, 1\nv_lshl_add_u32 v56, v57, 3, v56\nv_lshlrev_b32 v40, 11, v56\nv_lshl_add_u32 v40, v48, 4, v40")
    s("s_mov_b32 s10, %d\ns_mov_b32 s11, 0x20000" % (2048 * 2048))
    s("s_waitcnt lgkmcnt(0)")
    if TS: s("v_writelane_b32 v%d, s100, 0" % vTS)
    stamp(s, "karg")
    s("s_mov_b32 s8, s4\ns_and_b32 s9, s5, 0xffff")
    for q in range(4): s.vm("buffer_load_dwordx4 %s, v40, s[8:11], s67 offen offset:%d" % (Q(64 + 4 * q), 512 * q), ("x", q))
    s("s_add_u32 s70, s6, 0x%x\ns_addc_u32 s71, s7, 0" % (WS_SM + SM_EP))
    s("s_load_dword s%d, s[70:71], 0" % sTAG)
    srd(s, 16, 14, 15, 1024 * 7168); srd(s, 12, 12, 13, 1024 * 7168)
    srd(s, 28, 26, 27, 1024 * 2048); srd(s, 24, 24, 25, 1024 * 2048)
    s("s_cmp_ge_u32 s%d, 2" % sW)
    s("s_cselect_b32 s20, s16, s12\ns_cselect_b32 s21, s17, s13\ns_mov_b32 s22, %d\ns_mov_b32 s23, 0x20000" % (1024 * 7168))
    ws_srd(s, 36, WS_SM, SM_SIZE)
    s("v_lshrrev_b32 v49, 4, v0")
    WGF = 1; vP1 = 63
    s("v_and_b32 v60, 31, v0\nv_lshlrev_b32 v60, 2, v60\ns_lshl_b32 s81, s%d, 7\ns_add_u32 s81, s81, 0x%x" % (sB, SM_F1B))
    s("v_and_b32 v63, 7, v0\nv_lshlrev_b32 v63, 6, v63\ns_lshl_b32 s75, s%d, 11\ns_lshl_b32 s65, s%d, 9\ns_add_u32 s75, s75, s65\ns_add_u32 s75, s75, 0x%x" % (sB, sQ, SM_F1))
    FT = cfg.get("ftouch", 0)
    if FT & 4: s.vm("buffer_load_dword a246, v63, s[36:39], s75 offen %s" % SC)
    if FT & 1: s.vm("buffer_load_dword a246, v60, s[36:39], s81 offen %s" % SC)
    s("v_mov_b32 v41, -1\nv_lshlrev_b32 v42, 2, v0\ns_xor_b32 s69, s2, 0xf8\ns_lshl_b32 s69, s69, 10\ns_lshl_b32 s65, s%d, 8\ns_add_u32 s69, s69, s65" % sW)
    s.vm("buffer_store_dword v41, v42, s[36:39], s69 offen %s" % SC, "agfill")
    vWA, vBA0, vBA1, vWA2, vW0, vW3, vB, vJ, vPA, vPB = 2, 3, 4, 5, 6, 9, 10, 12, 13, 14
    s("s_lshl_b32 s70, s66, 1\ns_and_b32 s65, s2, 1\ns_add_u32 s70, s70, s65")
    s("s_mul_i32 s69, s70, 7168\ns_mul_i32 s65, s%d, 1792\ns_add_u32 s69, s69, s65\nv_and_b32 v40, 31, v0\nv_min_u32 v40, 13, v40\nv_lshl_add_u32 v44, v40, 7, s69" % sQ)
    s("v_and_b32 v45, 3, v0\ns_lshl_b32 s69, s%d, 8\ns_lshl_b32 s65, s70, 2\ns_add_u32 s69, s69, s65\nv_add_u32 v45, s69, v45\nv_lshlrev_b32 v45, 11, v45" % sQ)
    if cfg.get("pfd"):
        n_ = cfg["pfd"]
        s("s_and_b32 s65, s2, 1\ns_mul_i32 s69, s65, %d\ns_add_u32 s69, s69, 7168\ns_mul_i32 s65, s65, %d\ns_add_u32 s65, s65, 8192\nv_cmp_gt_u32 vcc, 32, v0" % (-2 * 7168, -2 * 8192))
        s("v_mov_b32 v40, s69\nv_mov_b32 v43, %d\nv_cndmask_b32 v40, v40, v43, vcc\nv_add_u32 v44, v44, v40\nv_mov_b32 v40, s65\nv_mov_b32 v43, %d\nv_cndmask_b32 v40, v40, v43, vcc\nv_add_u32 v45, v45, v40" % (n_ * 64 * 7168, n_ * 128))
    s("s_mov_b32 s69, %d\ns_cmp_ge_u32 s%d, 2\ns_cselect_b64 vcc, -1, 0\nv_cndmask_b32 v%d, v44, v45, vcc\ns_cselect_b32 s%d, 128, s69" % (64 * 7168, sW, vPA, sPAs))
    s("s_cselect_b32 s40, s24, s12\ns_cselect_b32 s41, s25, s13\ns_cselect_b32 s69, s28, s16\ns_cselect_b32 s65, s29, s17\ns_cselect_b32 s42, s26, s14")
    s("s_bitcmp1_b32 s%d, 0\ns_cselect_b32 s40, s69, s40\ns_cselect_b32 s41, s65, s41\ns_mov_b32 s43, 0x20000\ns_mov_b32 s%d, 0" % (sW, sKPA))
    def pfa(s):
        s.vm("buffer_load_dword a246, v%d, s[40:43], s%d offen" % (vPA, sKPA)); s("s_add_u32 s%d, s%d, s%d" % (sKPA, sKPA, sPAs))
    def pfb(s):
        s.vm("buffer_load_dword a246, v%d, s[44:47], s%d offen" % (vPB, sKPB)); s("s_add_u32 s%d, s%d, s%d" % (sKPB, sKPB, sPBs))
    if cfg.get("pf_skip0"): s("s_mov_b32 s%d, s%d" % (sKPA, sPAs))
    if cfg.get("pfd"): s("s_mov_b32 exec_lo, 0")
    for _ in range(cfg.get("pf_t0", 3) - cfg.get("pf_skip0", 0)): pfa(s)
    if cfg.get("pfd"): s("s_mov_b64 exec, -1\ns_mul_i32 s%d, s%d, %d" % (sKPA, sPAs, cfg.get("pf_t0", 3) - cfg["pfd"]))
    s("s_and_b32 s71, s%d, 1\ns_lshl_b32 s71, s71, 1\ns_mul_i32 s72, s%d, 224\ns_and_b32 s73, s%d, 1\ns_add_u32 s73, s73, 12" % (sJ, sJ, sW))
    for k in range(4):
        if k < 3: s("s_add_u32 s69, s%d, %d\ns_lshl_b32 s69, s69, 6" % (sW, 4 * k))
        else: s("s_lshl_b32 s69, s73, 6")
        s("v_add_u32 v40, s69, v0\nv_mul_u32_u24 v44, 4682, v40\nv_lshrrev_b32 v44, 16, v44\nv_mul_u32_u24 v45, 14, v44\nv_sub_u32 v45, v40, v45")
        s("v_add_u32 v45, s71, v45\nv_subrev_u32 v43, 14, v45\nv_min_u32 v45, v45, v43")
        s("v_lshrrev_b32 v43, 1, v44\nv_xor_b32 v43, v43, v44\nv_and_b32 v43, 4, v43\nv_mul_u32_u24 v43, 3, v43\nv_xor_b32 v44, v44, v43")
        s("v_mul_u32_u24 v44, 7168, v44\nv_lshl_add_u32 v44, v45, 4, v44\nv_add_u32 v%d, s72, v44" % (vW0 + k))
    s("v_lshrrev_b32 v50, 3, v0\ns_lshl_b32 s69, s%d, 3\nv_add_u32 v40, s69, v50\nv_bfe_u32 v44, v40, 1, 3\nv_and_b32 v51, 7, v0\nv_xor_b32 v44, v44, v51" % sW)
    s("v_lshlrev_b32 v47, 11, v40\nv_lshl_add_u32 v47, v44, 4, v47")
    s("s_lshl_b32 s69, s%d, 16\nv_add_u32 v%d, s69, v47" % (sJ, vB))
    s("s_lshl_b32 s%d, s%d, 10\ns_lshl_b32 s%d, s73, 10" % (sMW, sW, sM3))
    s("s_cmp_ge_u32 s%d, 2\ns_cselect_b32 s69, %d, 0\ns_add_u32 s%d, s%d, s69\ns_add_u32 s%d, s%d, %d" % (sW, U_OFF, sM3, sM3, sMB, sMW, B_BASE))
    s("s_lshl_b32 s65, s%d, 9\ns_add_u32 s65, s65, 57344\nv_lshl_add_u32 v52, v0, 3, s65\nv_xor_b32 v54, 512, v52" % sW)
    if LQ: s("v_lshlrev_b32 v55, 12, v49\nv_lshrrev_b32 v44, 2, v48\nv_lshl_add_u32 v55, v44, 8, v55\nv_and_b32 v44, 48, v1\nv_add_u32 v55, v55, v44")
    else: s("v_lshrrev_b32 v55, 2, v48\nv_lshlrev_b32 v55, 12, v55\nv_and_b32 v44, 3, v0\nv_lshl_add_u32 v55, v44, 8, v55\nv_lshl_add_u32 v55, v49, 4, v55")
    s("s_lshl_b32 s70, s66, 17\ns_lshl_b32 s67, s%d, 10\ns_add_u32 s70, s70, s67\ns_and_b32 s67, s2, 1\ns_lshl_b32 s67, s67, 7\ns_add_u32 s70, s70, s67" % sQ)
    s("s_lshr_b32 s67, s%d, 1\ns_lshl_b32 s67, s67, 6\ns_add_u32 s70, s70, s67\ns_lshl_b32 s67, s68, 14\ns_add_u32 s70, s70, s67" % sW)
    s("s_add_u32 s71, s70, 32768\ns_add_u32 s72, s70, 65536\ns_add_u32 s73, s70, 98304")
    s("s_lshl_b32 s74, s2, 7\ns_lshr_b32 s67, s%d, 1\ns_lshl_b32 s67, s67, 6\ns_add_u32 s74, s74, s67\ns_add_u32 s74, s74, 0x%x" % (sW, SM_ST))
    ws_srd(s, 48, WS_XN, 0x400000)
    dma_items = [(vW0, 12, sKW, sMW, 0), (vW0 + 1, 12, sKW, sMW, 4096), (vW0 + 2, 12, sKW, sMW, 8192), (vW3, 20, sKW, sM3, 0),
                 (vW0, 16, sKW, sMW, U_OFF), (vW0 + 1, 16, sKW, sMW, U_OFF + 4096), (vW0 + 2, 16, sKW, sMW, U_OFF + 8192),
                 (vB, 24, sKB, sMB, 0), (vB, 28, sKB, sMB, 4096)]
    def dma1(s, st, k, early=None):
        v, sr, so, mb, off = dma_items[k]
        isb = mb == sMB
        base = ((st >> 1) & 1) * (16384 if isb else 65536) + (st & 1) * (B_ST if isb else W_ST)
        if k == 0: s("s_mov_b32 s%d, %d" % (sKW, st * 64 * 7168))
        if k == 7: s("s_mov_b32 s%d, %d" % (sKB, st * 128))
        s("s_add_u32 m0, s%d, %d" % (mb, off + base))
        s.op(Op("buffer_load_dwordx4 v%d, s[%d:%d], s%d offen lds" % (v, sr, sr + 3, so), "vm", K(("D", st, k))), early)
    CH1 = cfg.get("ch1", 1)
    xalloc = {}; xprev = {}; fifo = [(("a", r), None) for r in (96, 112, 128, 144, 192)]
    for u in range(32):
        if u == 26: xalloc[u] = ("v", 48); xprev[u] = None; continue
        xalloc[u], xprev[u] = fifo.pop(0); fifo.append((xalloc[u], u))
    aX, aW, NWB = 96, 208, 8
    def xload(s, u, m, early=None):
        if m == 0: s("s_mov_b32 s%d, %d" % (sKX, u * 4096))
        s.op(Op("buffer_load_dwordx4 %s, v%d, s[8:11], s%d offen offset:%d" % (R(xalloc[u][0], xalloc[u][1] + 4 * m, 4), 1, sKX, 1024 * m), "vm", K(("X", u, m))), early)
    def pro_stage(st):
        for k in range(9): dma1(s, st, k)
    ND0P = cfg.get("d_t0", 0)
    for k in range(ND0P): dma1(s, 0, k)
    EP_LDS = 131072; EPW = 8192
    PK = dict(C=252, CA=253, TOK=254, COL=255, D=240, TA=242, TRW=243, TRR=244, AG=245)
    s("v_lshrrev_b32 v40, 1, v48\nv_xor_b32 v40, v40, v49\nv_lshlrev_b32 v40, 4, v40\nv_lshl_add_u32 v40, v48, 7, v40")
    s("v_add_u32 v%d, %d, v40\nv_xor_b32 v%d, 64, v%d" % (vBA0, B_BASE, vBA1, vBA0))
    s("v_lshrrev_b32 v40, 1, v49\nv_lshlrev_b32 v40, 4, v40\nv_and_b32 v41, 1, v49\nv_lshlrev_b32 v41, 2, v41\nv_lshrrev_b32 v50, 2, v48\nv_add3_u32 v11, v40, v41, v50")
    s("v_mul_u32_u24 v40, 224, v11\nv_and_b32 v51, 3, v0\nv_lshl_add_u32 v%d, v51, 3, v40\nv_add_u32 v%d, 0x10000, v%d" % (vWA, vWA2, vWA))
    s("s_lshl_b32 s65, s%d, 17\ns_add_u32 s8, s6, s65\ns_addc_u32 s9, s7, 0\ns_and_b32 s9, s9, 0xffff\ns_mov_b32 s10, 0x20000" % sB)
    s("s_lshl_b32 s83, s2, 4\ns_lshl_b32 s65, s%d, 2\ns_add_u32 s83, s83, s65" % sW)
    if WGF: s("s_and_b32 s82, s2, 7\ns_lshl_b32 s82, s82, 6\ns_lshl_b32 s65, s66, 11\ns_add_u32 s82, s82, s65\ns_lshl_b32 s65, s%d, 9\ns_add_u32 s82, s82, s65\ns_add_u32 s82, s82, 0x%x" % (sW, SM_F1))
    else: s("s_add_u32 s82, s83, 0x%x" % SM_F1)
    s("s_add_u32 s83, s83, 0x%x" % SM_F1B)
    def tramp():
        s("s_mov_b64 exec, 0")
        for w in range(1, 4): s("s_cmp_eq_u32 s%d, %d\ns_cbranch_scc1 L_tr%d" % (sW, w, w))
        s("s_branch L_tr0")
        s.atom(["L_trret:"])
        s("s_mov_b64 exec, -1")
    TRP = cfg.get("tr_at", 2) if cfg.get("tramp", 1) else -1
    if TRP == 0: tramp()
    stamp(s, "prex")
    F = 80; D = 112; T0 = 144; ST = 28
    ln = Seq()
    def unpack(q):
        for i in range(4 * q, 4 * q + 4): ln("v_lshlrev_b32 v%d, 16, v%d\nv_and_b32 v%d, 0xffff0000, v%d" % (F + 2 * i, 64 + i, F + 2 * i + 1, 64 + i))
    def pack(q, dst=64):
        for i in range(4 * q, 4 * q + 4): ln("v_cvt_pk_bf16_f32 v%d, v%d, v%d" % (dst + i, F + 2 * i, F + 2 * i + 1))
    def hsum(dst):
        ln("v_pk_add_f32 %s, %s, %s\nv_add_f32 v%d, v%d, v%d" % (P(T0), P(T0), P(T0 + 2), T0, T0, T0 + 1))
        for sh in ((4, 8) if LQ else (1, 2, 4, 8)): ln("v_add_f32_dpp v%d, v%d, v%d row_ror:%d row_mask:0xf bank_mask:0xf" % (T0, T0, T0, sh))
        if LQ:
            for w_ in (16, 32): ln("v_mov_b32 v%d, v%d\nv_permlane%d_swap_b32 v%d, v%d\nv_add_f32 v%d, v%d, v%d" % (T0 + 1, T0, w_, T0, T0 + 1, T0, T0, T0 + 1))
        ln("v_mul_f32 v%d, %s, v%d" % (dst, fx(1.0 / 512), T0))
    for q in range(4):
        ln.wait([("x", q)])
        if q == 3:
            stamp(ln, "xin")
            for _ in range(cfg.get("pf_t1", 0)): pfa(ln)
            i_d0 = len(ln.u)
        unpack(q)
        if q == 0: ln("v_pk_add_f32 %s, %s, %s\nv_pk_add_f32 %s, %s, %s" % (P(T0), P(F), P(F + 2), P(T0 + 2), P(F + 4), P(F + 6)))
        else:
            for i in range(4): ln("v_pk_add_f32 %s, %s, %s" % (P(T0 + 2 * (i % 2)), P(T0 + 2 * (i % 2)), P(F + 8 * q + 2 * i)))
    hsum(ST)
    for i in range(16): ln("v_pk_add_f32 %s, %s, %s op_sel_hi:[1,0] neg_lo:[0,1] neg_hi:[0,1]" % (P(D + 2 * i), P(F + 2 * i), P(ST)))
    for i in range(16):
        if i < 2: ln("v_pk_mul_f32 %s, %s, %s" % (P(T0 + 2 * i), P(D + 2 * i), P(D + 2 * i)))
        else: ln("v_pk_fma_f32 %s, %s, %s, %s" % (P(T0 + 2 * (i % 2)), P(D + 2 * i), P(D + 2 * i), P(T0 + 2 * (i % 2))))
    hsum(ST + 1)
    ln.lg("ds_write_b64 v52, %s" % P(ST))
    ln.wait(None, drain=["lg"])
    ln("s_barrier")
    ln.lg("ds_read_b64 %s, v54" % P(T0), "oth")
    ln("s_mul_i32 s%d, s%d, 0x9E3779B1\ns_add_u32 s%d, s%d, 0x7F4A7C15\nv_mov_b32 v56, s%d" % (sTAG, sTAG, sTAG, sTAG, sTAG))
    ln.wait(["oth"])
    ln("v_sub_f32 v%d, v%d, v%d\nv_pk_add_f32 %s, %s, %s\nv_mul_f32 v%d, 0.5, v%d\nv_pk_mul_f32 %s, %s, 0.5 op_sel_hi:[1,0]\nv_fmac_f32 v%d, v%d, v%d" % (T0 + 2, ST, T0, P(ST), P(ST), P(T0), T0 + 2, T0 + 2, P(ST), P(ST), ST + 1, T0 + 2, T0 + 2))
    ln("v_cvt_pk_bf16_f32 v%d, v%d, v%d\nv_lshlrev_b32 v%d, 16, v%d\nv_and_b32 v%d, 0xffff0000, v%d" % (T0, ST, ST + 1, ST, T0, ST + 1, T0))
    ln(("v_add_f32 V, %s, V\nv_cvt_pk_bf16_f32 V, V, V\nv_and_b32 V, 0xffff0000, V\nv_sqrt_f32 V, V" % fx(1e-5)).replace("V", "v%d" % (ST + 1)))
    def sub(q):
        for i in range(4 * q, 4 * q + 4): ln("v_pk_add_f32 %s, %s, %s op_sel_hi:[1,0] neg_lo:[0,1] neg_hi:[0,1]" % (P(F + 2 * i), P(F + 2 * i), P(ST)))
    def fin(q):
        pack(q); unpack(q)
        for i in range(4 * q, 4 * q + 4): ln("v_pk_mul_f32 %s, %s, %s op_sel:[0,1] op_sel_hi:[1,1]" % (P(F + 2 * i), P(F + 2 * i), P(ST)))
        pack(q, 12 if q else 64)
    ln("v_cvt_pk_bf16_f32 V, V, V\nv_and_b32 V, 0xffff0000, V\nv_rcp_f32 V, V".replace("V", "v%d" % (ST + 1)))
    sub(0); fin(0)
    lu = ln.units()
    nD_0 = cfg.get("d_t1", 1 if ND0P else 0)
    if nD_0:
        dq = Seq(); step = cfg.get("d0_step", 10); pos = i_d0 + cfg.get("d0_off", 6)
        for k in range(ND0P, 9):
            dma1(dq, 0, k); un = dq.units()
            lu[pos:pos] = un[:-1]; pos += len(un); lu[pos:pos] = un[-1:]; pos += step
    s.u += lu
    xst = lambda q: "buffer_store_dwordx4 %s, v55, s[48:51], s%d offen %s" % (Q(12 + 4 * q if q else 64), 70 + q, SC)
    stst = lambda: (["s_mov_b64 exec, 15"] if LQ else ["s_mov_b32 exec_lo, 0x10001", "s_mov_b32 exec_hi, 0x10001"]) + [Op("buffer_store_dwordx4 %s, v%d, s[36:39], s74 offen %s" % (Q(ST), LQ, SC), "vm"), "s_mov_b64 exec, -1"]
    s.vm(xst(0), ("xn", 0))
    stamp(s, "xnst")
    for q in range(1, 4):
        sub(q); fin(q); s.u += ln.units()
    XBP = cfg.get("xbp", 0)
    TWO = 1
    nD_b = cfg.get("d_t3", 1)
    nD_c = cfg.get("d_t4", 2)
    nD_d = cfg.get("d_t5", 2)
    if TRP == 1: tramp()
    if WGF: s.wait([("xn", 0), "agfill"]); s("s_barrier")
    flag(s, "buffer_store_dwordx4 v[56:59], v1, s[36:39], s82 offen %s" % SC, [("xn", 0), "agfill"])
    stamp(s, "flag1")
    if TRP == 4: tramp()
    if cfg.get("bar_f"): s("s_barrier")
    stamp(s, "barf")
    def xb_now():
        s.atom(stst())
        for q in range(1, 4): s.vm(xst(q), ("xn", q))
    if XBP == 1: xb_now()
    for st in range(nD_0, nD_b): pro_stage(st)
    stamp(s, "d0")
    if TRP == 2: tramp()
    stamp(s, "trd")
    f1load = "buffer_load_dword v61, v%d, s[36:39], s75 offen %s" % (vP1, SC)
    s.vm(f1load, "f1")
    if XBP == 2: xb_now()
    for st in range(max(nD_0, nD_b), nD_c): pro_stage(st)
    nD_b = max(nD_0, nD_b, nD_c)
    if TRP == 3: tramp()
    stamp(s, "prepoll")
    if TRP >= 0:
        s("s_branch L_main"); s.atom([".p2align 12"]); s.atom(["L_main:"])
    poll(s, "P1", f1load, 61, "f1")
    stamp(s, "poll1")
    NXP = cfg.get("nxpre", 1 if cfg.get("ch1_first", 1) else 2)
    for u in range(NXP):
        for m in range(4): xload(s, u, m)
    if XBP == 3: xb_now()
    for _ in range(cfg.get("pf_t5", 0)): pfa(s)
    for st in range(nD_b, nD_d): pro_stage(st)
    nD_b = max(nD_b, nD_d)
    npfa = cfg.get("pf_t0", 3) + cfg.get("pf_t1", 0) + cfg.get("pf_t5", 0)
    NPB = cfg.get("npb", 4)
    tiles = []
    for q in range(7): tiles += [("G", q), ("U", q)]
    tiles += [("R", 0), ("I", 0), ("R", 1), ("I", 1)]
    def acc(t, m):
        k, q = t
        if k == "R": return ("v", 64 + 16 * q + 4 * m)
        if k == "I": return ("v", 96 + 16 * q + 4 * m)
        o = 32 * q + (16 if k == "U" else 0) + 4 * m
        return ("v", 128 + o) if q < 4 else ("a", o - 128)
    L0 = cfg.get("l1_lead", 4)
    KT = cfg.get("kt", 1)
    def stage_groups(st, tl):
        if CH1 and st >= cfg.get("ch1_first", 1): return [(2 * st + kk, ti) for ti in tl for kk in range(2)]
        return [(2 * st + kk, ti) for kk in range(2) for ti in tl]
    groups = []
    for st in range(14 if KT else 16): groups += stage_groups(st, range(18))
    if KT:
        for tl in (range(4), range(4, 18)):
            for st in (14, 15): groups += stage_groups(st, tl)
    NG = len(groups)
    mo, head, tail = order_mfma(groups)
    xfirst = {}; xlast = {}
    for G, (u, ti) in enumerate(groups): xfirst.setdefault(u, head(G)); xlast[u] = tail(G)
    parts = lambda G: [0, 1] if groups[G][1] < 14 else [None]
    def read1(G, part):
        u, ti = groups[G]; st, kk = divmod(u, 2); t = tiles[ti]; f = G % NWB
        if t[0] in "GU":
            off = (st & 1) * W_ST + (U_OFF if t[0] == "U" else 0) + kk * 7168 + part * 1792 + t[1] * 32
            return Op("ds_read_b64_tr_b16 %s, v%d offset:%d" % (R("a", aW + 4 * f + 2 * part, 2), (vWA, vWA2)[(st >> 1) & 1], off), "lg", K(("F", G, part)))
        off = (st & 3) * B_ST + (4096 if t[0] == "I" else 0) + t[1] * 2048
        return Op("ds_read_b128 %s, v%d offset:%d" % (R("a", aW + 4 * f, 4), vBA1 if kk else vBA0, off), "lg", K(("F", G, part)))
    rgap = {}
    for G in range(NG):
        f = G % 36
        g = G if (f < 33 or (KT and G >= 28 * 18)) else G - (1 if f < 35 else 2)
        rgap[G] = 4 * (g - L0) - 1
        assert rgap[G] >= 4 * tail(G - NWB) + 3
    gneed = lambda G: [("F", H, p) for H in range(G, tail(G) + 1) for p in parts(H)] + [("X", u, m) for u in range(32) if xfirst[u] == G for m in range(4)]
    s.wait([("D", 0, k) for k in range(9)])
    s("s_barrier")
    for G in range(NG):
        if rgap[G] < 0:
            for p in parts(G): s.op(read1(G, p))
    s.wait(gneed(0))
    stamp(s, "loop1")
    prog.add(s.done())
    mf = []
    for G, m in mo:
        u, ti = groups[G]; t = tiles[ti]
        xr = (xalloc[u][0], xalloc[u][1] + 4 * m); wr = ("a", aW + 4 * (G % NWB))
        mf.append(Op(mfma16(acc(t, m), wr, xr, u == 0) if t[0] in "GU" else mfma16(acc(t, m), xr, wr, u == 0)))
    sc = Sch(mf)
    for G in range(1, NG):
        w = Op("", needs=K(gneed(G)))
        w.keep = sum(len(parts(H)) for H in range(max(0, G - 2), min(NG, G + 10)) if rgap[H] == 4 * G - 1) == 2
        if w.keep or head(G) == G: sc.put(4 * G - 1, [w], 0)
    for G in range(NG):
        if rgap[G] >= 0: sc.put(rgap[G], [read1(G, p) for p in parts(G)], 1)
    bar = {}
    for st in range(15):
        bar[st] = rgap[xfirst[2 * st + 2]] - 1
        sc.put(bar[st], [Op("s_barrier", needs=K([("D", st + 1, k) for k in range(9)]), drain=["lg"] if st < 14 else None)], 0)
    items = []
    PFL = cfg.get("pfl", 9)
    pft = {}
    if cfg.get("pf1", 1):
        ev = cfg.get("pf_first", 70); st = npfa
        for k in range(npfa - cfg.get("pfd", 0), npfa): items.append((0, 2, ev - cfg.get("pfd_pre", 0), "a", k, 0))
        while st < 16:
            n = 0
            while st < 16 and (n < cfg.get("pf_max", 2) or (st == 15 and cfg.get("pf_l3", 1))) and (n == 0 or 144 * (st - 3 - PFL) < ev):
                e = max(int(144 * (st - 3 - PFL)), ev); pft[st] = e; items.append((0, 2, e, "a", st, 0)); st += 1; n += 1
            ev = e + cfg.get("pf_min", 288)
    for st in range(nD_b, 16):
        e = max(bar[st - 4] + 1 if st >= 4 else 0, pft.get(st, -1000) + cfg.get("pf_lat", 100))
        for k in range(9): items.append((bar[st - 1], 0, e, "d", st, k))
    for u in range(NXP, 32):
        e = 4 * xlast[xprev[u]] + 3 if xprev[u] is not None else 0
        for m in range(4): items.append((4 * xfirst[u] - 1, 1, max(e, 4 * xfirst[u] - (cfg.get("x_la", 230) if u != 8 else cfg.get("x_la8", 190))), "x", u, m))
    for k in range(1, 4 if not XBP else 0): items.append((0, 3, cfg.get("xb_first", 75) + cfg.get("xb_sp", 16) * (k - 1), "s", k, 0))
    items.append((0, 3, cfg.get("xb_first", 75) + cfg.get("xb_sp", 16) * 2 + cfg.get("xb_lat", 70) if not XBP else cfg.get("fb_at", 30), "f", 0, 0))
    gC_ = sorted(set(pft.values()))[cfg.get("c_ev", 1)] if pft else 300
    items.append((0, 3, gC_, "c", 0, 0))
    gE_ = gC_ + cfg.get("e_off", 90)
    for n in range(4): items.append((gE_ + 100, 3, gE_ + 20 * n, "e", n, 0))
    f1cload = "buffer_load_dword v61, v60, s[36:39], s81 offen %s" % SC
    if cfg.get("pf2", 1):
        for c in range(NPB): items.append((0, 2, cfg.get("pfb_first", 646) + int(c * cfg.get("pfb_sp", 288)), "b", c, 0))
    now = 0; pend = sorted(items); done = []; quiet = -1
    FM = cfg.get("fm", 1); WL = cfg.get("fm_wl", 14); fifo = []; comp = cfg.get("fm_c0", 30); fsl = []; lastk = ""; PFD = cfg.get("pfd", 0); PFX = cfg.get("pfx", 0)
    while pend:
        nxt = {}
        for x in pend:
            if x[3] not in nxt or x[4:] < nxt[x[3]][4:]: nxt[x[3]] = x
        av = sorted(x for x in nxt.values() if x[2] <= now)
        if FM:
            occ = sum(n for c, n in fifo if c > now)
            lines_of = lambda x: {"d": WL if x[5] < 7 else 8, "x": 8, "a": 9 * (1 + bool(PFD)) + 8 * PFX, "b": 88 // NPB, "c": 10, "e": 16}.get(x[3], 1)
            if av and av[0][3] in "dx" and len(av) > 1 and av[1][3] in "dx" and av[0][3] == lastk and av[0][0] - now > cfg.get("alt_slack", 110): av = av[1:]
            av = [x for x in av[:1] if occ + lines_of(x) <= cfg.get("fm_c", 66)]
        if not av: now += 1; continue
        x = av[0]; pend.remove(x); lastk = x[3]
        if FM:
            lat = cfg.get("fm_slow", 64) if x[3] in "abc" else cfg.get("fm_fast", 36)
            comp = max(comp + 4.3, now + lat); fifo.append((comp, lines_of(x)))
            if x[3] in "dx": fsl.append((x[0] - comp, x[3], x[4], x[5]))
        fifo_now = now
        if x[3] == "d": dma1(s, x[4], x[5], int(now))
        elif x[3] == "x":
            if TWO and x[4:] == (8, 0): poll(s, "P1c", f1cload, 61, "f1c", early=int(now))
            xload(s, x[4], x[5], int(now))
            if TWO and x[4:] == (7, 3): s.vm(f1cload, "f1c"); i_f1c = len(s.u) - 1
        elif x[3] == "a":
            s.at(int(now)); pfa(s); quiet = now + cfg.get("q_len", 64)
            if [y for y in pend if y[3] in "abc" and y[2] <= now]: now -= cfg.get("q_sp", 10) - 4
        elif x[3] == "c":
            s.at(int(now)); i_c0 = len(s.u) - 1
            for k, lo in enumerate((96, 98, 92)):
                s("s_mov_b32 s32, s%d\ns_and_b32 s33, s%d, 0xffff" % (lo, lo + 1))
                for T in range(2): s.vm("buffer_load_ushort v%d, v40, s[32:35], 0 offen offset:%d" % (16 + 2 * k + T, 32 * T), ("c", k, T))
            s("s_mov_b32 s32, s94\ns_and_b32 s33, s95, 0xffff")
            for u in range(2): s.vm("buffer_load_dwordx2 %s, v41, s[32:35], 0 offen offset:%d" % (R("a", 248 + 2 * u, 2), 32 * u), ("dk", u))
            if FT & 2:
                s.vm("buffer_load_dword a246, v42, s[36:39], 0 offen %s" % SC); now += 4
            i_c1 = len(s.u) - 1; now += 30
        elif x[3] == "s":
            if x[4] == 1: s.atom(stst(), int(now)); now += 4
            s.op(Op(xst(x[4]), "vm", K(("xn", x[4]))), int(now)); now += (4 - cfg.get("q_sp", 10)) if now < quiet else 10
        elif x[3] == "f":
            flag(s, "buffer_store_dword v56, v1, s[36:39], s83 offen %s" % SC, [("xn", 3)], early=int(now)); i_fb = len(s.u) - 1
        elif x[3] == "e":
            s("s_mov_b32 s70, %d\ns_add_u32 m0, s71, %d" % (32768 * x[4], 1024 * x[4]))
            s.op(Op("buffer_load_dwordx4 v12, s[48:51], s70 offen lds", "vm", K(("E", x[4]))), int(now)); i_e1 = len(s.u) - 1; now += 4
        else: s.at(int(now)); pfb(s); quiet = now + cfg.get("q_len", 64)
        if x[3] in "dx": done.append((x, len(s.u) - 1))
        if x[3:] == ("x", 8, 0): i_p1c = len(s.u) - 1
        if x[3:] == ("x", 26, 0): i_x26 = len(s.u) - 1
        if FM: now = fifo_now + {"c": 36, "s": cfg.get("fm_st", 16) + 4 * (x[4] == 1)}.get(x[3], cfg.get("fm_sp", 4.5))
        else: now += cfg.get("q_sp", 10) if now < quiet else cfg.get("l1_sp", 5)
    res = sc.stream(s.units(), 0, 2)
    sl = sorted((x[0] - res[i], x[3], x[4], x[5]) for x, i in done)
    if cfg.get("verbose") and FM: print("model slacks", sorted(fsl)[:5])
    if cfg.get("verbose"): print("loop1 vm end", res[-1], "of", 4 * NG, "min slacks", sl[:3], "steady", min(z for z in sl if z[2] > 8))
    for nm in names:
        if TS and nm[0] == "f" and nm[1:].isdigit():
            st_ = int(nm[1:])
            sc.put(bar[st_] - 1, [Op("s_memrealtime s[100:101]")], 5)
            sc.put(bar[st_], [Op("v_writelane_b32 v%d, s100, %d" % (vTS, names.index(nm)))], 5)
    if cfg.get("verbose"): print("flag b", res[i_fb], "poll load", res[i_f1c], "check", res[i_p1c])
    s.at(res[i_fb] + 1)
    cL, cC, cL8, cL16, cL64, cL512 = 16, 20, 24, 28, 32, 36
    s("s_mov_b32 s34, 2048\ns_mov_b32 s35, 0x20000")
    s("s_lshl_b32 s69, s%d, 5\nv_add_u32 v40, s69, v48\nv_lshlrev_b32 v40, 1, v40" % sJ)
    s("s_lshl_b32 s68, s%d, 7\ns_lshl_b32 s66, s%d, 5\ns_add_u32 s68, s68, s66\nv_lshl_add_u32 v41, v49, 2, s68\nv_accvgpr_write_b32 a%d, v41\nv_lshlrev_b32 v41, 1, v41" % (sTN, sQ, PK["COL"]))
    srd(s, 48, 4, 5, 2048 * 2048)
    s("s_lshl_b32 s66, s%d, 2\ns_add_u32 s66, s66, s%d\ns_lshl_b32 s66, s66, 7\ns_add_u32 s66, s66, 0x%x\nv_mov_b32 v42, s66" % (sB, sQ, SM_F3))
    s("s_lshl_b32 s66, s%d, 3\ns_add_u32 s66, s66, s%d\ns_lshl_b32 s66, s66, 2\ns_add_u32 s66, s66, s%d\ns_lshl_b32 s66, s66, 7\ns_add_u32 s66, s66, 0x%x\nv_writelane_b32 v42, s66, 0" % (sI, sTN, sW, SM_F4))
    s("s_lshl_b32 s68, s68, 1\ns_lshl_b32 s66, s%d, 17\ns_add_u32 s68, s68, s66\nv_lshrrev_b32 v12, 2, v0\nv_lshl_add_u32 v12, v12, 11, s68\nv_lshl_add_u32 v12, v51, 4, v12" % sB)
    s("s_lshr_b32 s66, s%d, 1\ns_lshl_b32 s66, s66, 16\ns_and_b32 s71, s%d, 1\ns_lshl_b32 s71, s71, 12\ns_add_u32 s71, s71, s66\ns_add_u32 s71, s71, 57344" % (sW, sW))
    r0 = sc.stream(s.units(), 0, 3)
    assert r0[-1] < res[i_c0]
    s.at(res[i_c1] + 1)
    s("v_subrev_u32 v40, %d, v%d\nv_accvgpr_write_b32 a%d, v40" % (B_BASE, vBA0, PK["CA"]))
    s("s_mul_i32 s69, s%d, %d\ns_add_u32 s69, s69, %d" % (sW, EPW, EP_LDS + 2048))
    s("v_and_b32 v41, 1, v49\nv_xor_b32 v41, v41, v51\nv_lshlrev_b32 v40, 5, v11\nv_lshl_add_u32 v40, v41, 3, v40\nv_add_u32 v40, s69, v40\nv_accvgpr_write_b32 a%d, v40" % PK["TRR"])
    s("v_lshrrev_b32 v40, 1, v48\nv_xor_b32 v40, v40, v48\nv_and_b32 v40, 4, v40\nv_mul_u32_u24 v40, 3, v40\nv_xor_b32 v40, v40, v48\nv_lshrrev_b32 v41, 2, v40\nv_xor_b32 v41, v41, v49\nv_lshlrev_b32 v40, 5, v40\nv_lshl_add_u32 v40, v41, 3, v40\nv_add_u32 v40, s69, v40\nv_accvgpr_write_b32 a%d, v40" % PK["TRW"])
    s("v_lshrrev_b32 v40, 2, v0\nv_and_b32 v41, 7, v40\nv_lshlrev_b32 v41, 5, v41\nv_lshl_add_u32 v41, v40, 8, v41\nv_lshl_add_u32 v41, v51, 3, v41\nv_accvgpr_write_b32 a%d, v41" % PK["TA"])
    s("s_lshl_b32 s68, s%d, 2\nv_add_u32 v40, s68, v49\nv_and_b32 v41, 7, v40\nv_bfe_u32 v51, v0, 1, 3\nv_xor_b32 v41, v41, v51\ns_lshl_b32 s66, s%d, 1\nv_xor_b32 v41, s66, v41\nv_lshlrev_b32 v41, 5, v41" % (sW, sQ))
    s("v_and_b32 v51, 1, v0\nv_lshl_add_u32 v41, v51, 4, v41\ns_mul_i32 s67, s%d, 896\nv_add_u32 v40, s67, v40\nv_lshl_add_u32 v40, v40, 11, v41\ns_lshl_b32 s67, s%d, 8\nv_add_u32 v40, s67, v40\nv_accvgpr_write_b32 a%d, v40" % (sQ, sTN, PK["D"]))
    s("s_lshl_b32 s68, s%d, 18\ns_lshl_b32 s66, s%d, 9\ns_add_u32 s68, s68, s66\nv_add_u32 v40, s68, v47\nv_accvgpr_write_b32 a%d, v40" % (sTN, sQ, PK["C"]))
    s("v_lshlrev_b32 v40, 4, v50\nv_lshl_add_u32 v40, v51, 3, v40\nv_bfe_u32 v41, v48, 1, 1\ns_lshl_b32 s68, s%d, 6\nv_add3_u32 v40, v40, v41, s68\nv_accvgpr_write_b32 a%d, v40" % (sB, PK["TOK"]))
    s("s_sub_u32 s68, 32, s%d\ns_lshl_b32 s68, s68, 13\ns_lshl_b32 s66, s%d, 8\ns_add_u32 s68, s68, s66\nv_lshl_add_u32 v40, v48, 4, s68\nv_lshl_add_u32 v40, v49, 16, v40\nv_accvgpr_write_b32 a%d, v40" % (sB, sJ, PK["AG"]))
    ld, lc = 112 // NPB, 64 // NPB
    s("s_lshl_b32 s68, s2, 1\ns_and_b32 s66, s%d, 1\ns_add_u32 s68, s68, s66\ns_mul_i32 s68, s68, %d\ns_mul_i32 s66, s2, %d" % (sW, ld * 128, lc * 128))
    ge2 = "s_cmp_ge_u32 s%d, 2" % sW
    s.atom([ge2, "s_cselect_b32 s68, s66, s68", "s_cselect_b32 s66, %d, %d" % (lc - 1, ld - 1)])
    s("v_min_u32 v40, s66, v0\nv_lshl_add_u32 v%d, v40, 7, s68" % vPB)
    s.atom(["s_bitcmp1_b32 s%d, 0" % sW, "s_cselect_b32 s68, s90, s88", "s_cselect_b32 s66, s91, s89"])
    s.atom([ge2, "s_cselect_b32 s44, s68, s84", "s_cselect_b32 s45, s66, s85"])
    s("s_mov_b32 s67, %d\ns_mov_b32 s68, %d" % (3584 * 2048, 512 * ld * 128))
    s.atom([ge2, "s_cselect_b32 s46, %d, s67" % (1024 * 2048), "s_cselect_b32 s%d, %d, s68" % (sPBs, 256 * lc * 128)])
    s("s_and_b32 s45, s45, 0xffff\ns_mov_b32 s47, 0x20000\ns_mov_b32 s%d, 0" % sKPB)
    i_pbs = len(s.u) - 1
    s.at(res[i_c1] + 90)
    s.wait([("c", 2, 1)])
    def two(f):
        for T in range(2): s(f(T))
    for k in range(6): s("v_lshlrev_b32 v%d, 16, v%d" % (40 + k, 16 + k))
    two(lambda T: "v_mul_f32 v%d, %s, v%d" % (44 + T, fx(LOG2E), 44 + T)); two(lambda T: "v_exp_f32 v%d, v%d" % (44 + T, 44 + T))
    s("v_cvt_pk_bf16_f32 v45, v44, v45\nv_lshlrev_b32 v44, 16, v45\nv_and_b32 v45, 0xffff0000, v45")
    two(lambda T: "v_mul_f32 v%d, v%d, v%d\nv_mul_f32 v%d, v%d, v%d" % (24 + T, 44 + T, 40 + T, 26 + T, 44 + T, 42 + T))
    two(lambda T: "v_mul_f32 v%d, %s, v%d" % (24 + T, fx(LOG2E), 24 + T)); two(lambda T: "v_exp_f32 v%d, v%d" % (24 + T, 24 + T))
    two(lambda T: "v_mul_f32 v%d, 0.15915494, v%d\nv_rndne_f32 v%d, v%d\nv_sub_f32 v%d, v%d, v%d" % (26 + T, 26 + T, 52 + T, 26 + T, 26 + T, 26 + T, 52 + T))
    two(lambda T: "v_cos_f32 v%d, v%d\nv_sin_f32 v%d, v%d" % (52 + T, 26 + T, 54 + T, 26 + T))
    two(lambda T: "v_mul_f32 v%d, v%d, v%d\nv_mul_f32 v%d, v%d, v%d\nv_add_f32 v%d, -1.0, v%d" % (cL + T, 24 + T, 52 + T, 54 + T, 24 + T, 54 + T, 52 + T, cL + T))
    two(lambda T: "v_mul_f32 v%d, v%d, v%d\nv_fmac_f32 v%d, v%d, v%d\nv_rcp_f32 v%d, v%d" % (24 + T, 40 + T, 40 + T, 24 + T, 42 + T, 42 + T, 24 + T, 24 + T))
    two(lambda T: "v_mul_f32 v%d, v%d, v%d\nv_fmac_f32 v%d, v%d, v%d" % (26 + T, 52 + T, 40 + T, 26 + T, 54 + T, 42 + T))
    two(lambda T: "v_mul_f32 v%d, v%d, v%d\nv_fma_f32 v%d, -v%d, v%d, v%d" % (56 + T, 54 + T, 40 + T, 56 + T, 52 + T, 42 + T, 56 + T))
    two(lambda T: "v_add_f32 v%d, v%d, v%d\nv_mul_f32 v%d, v%d, v%d\nv_mul_f32 v%d, v%d, v%d\nv_sub_f32 v%d, 0, v%d" % (24 + T, 24 + T, 24 + T, cC + T, 26 + T, 24 + T, cC + 2 + T, 56 + T, 24 + T, cL + 2 + T, 54 + T))
    def sq(d, x):
        two(lambda T: "v_mul_f32 v%d, v%d, v%d\nv_mul_f32 v%d, v%d, v%d\nv_fma_f32 v%d, v%d, v%d, -v%d\nv_add_f32 v%d, v%d, v%d" % (52 + T, x + 2 + T, x + 2 + T, 54 + T, x + T, x + 2 + T, d + T, x + T, x + T, 52 + T, d + 2 + T, 54 + T, 54 + T))
    sq(cL8, cL); sq(cL8, cL8); sq(cL8, cL8); sq(cL16, cL8); sq(cL64, cL16); sq(cL64, cL64); sq(cL512, cL64); sq(cL512, cL512); sq(cL512, cL512)
    aBS = 160
    s.at(max(res[i_p1c] + 2, res[i_e1] + 90))
    s("v_accvgpr_read_b32 v12, a%d\nv_and_b32 v11, 63, v12\nv_lshlrev_b32 v11, 6, v11\nv_lshl_add_u32 v11, v49, 3, v11\nv_add_u32 v11, s71, v11\nv_and_b32 v12, 0xf0, v1\ns_lshl_b32 s66, s%d, 10\ns_add_u32 s66, s66, 0x%x" % (PK["TOK"], sB, SM_ST))
    s.wait([("E", 3), ("dk", 1)])
    for k in range(4): s("v_accvgpr_read_b32 v%d, a%d" % (40 + k, 248 + k))
    for m in range(4):
        s.vm("buffer_load_dwordx2 v[44:45], v12, s[36:39], s66 offen offset:%d" % (256 * m), ("St", m))
        for u in range(2): s.lg("ds_read_b64 %s, v11 offset:%d" % (P(52 + 2 * u), 128 * m + 32 * u), ("er", m, u))
        s.delay(cfg.get("e_lat", 90))
        s.wait([("St", m), ("er", m, 1)])
        for u in range(2):
            def unp(d, x):
                for h in range(2): s("v_lshlrev_b32 v%d, 16, v%d\nv_and_b32 v%d, 0xffff0000, v%d" % (d + 2 * h, x + h, d + 2 * h + 1, x + h))
            def rnd():
                for h in range(2): s("v_cvt_pk_bf16_f32 v%d, v%d, v%d" % (48 + h, 60 + 2 * h, 61 + 2 * h))
                unp(60, 48)
            unp(56, 52 + 2 * u)
            for k in range(4): s("v_sub_f32 v%d, v%d, v44" % (60 + k, 56 + k))
            rnd()
            for k in range(4): s("v_mul_f32 v%d, v%d, v45" % (60 + k, 60 + k))
            rnd()
            for h in range(2):
                s("v_lshlrev_b32 v46, 16, v%d\nv_and_b32 v47, 0xffff0000, v%d\nv_mul_f32 v%d, v%d, v46\nv_mul_f32 v%d, v%d, v47" % (40 + 2 * u + h, 40 + 2 * u + h, 60 + 2 * h, 60 + 2 * h, 61 + 2 * h, 61 + 2 * h))
            rnd()
            for k in range(4): s("v_add_f32 v%d, v%d, v%d" % (56 + k, 56 + k, 60 + k))
            for k in range(4): s("v_accvgpr_write_b32 a%d, v%d" % (aBS + 16 * u + 4 * m + k, 56 + k))
    rb = sc.stream(s.units(), 0, 3, vmspace=2)
    if cfg.get("verbose"): print("shadow end", rb[-1])
    assert rb[-1] < res[i_x26] and rb[-1] < bar[13] and rb[i_pbs] < cfg.get("pfb_first", 646)
    vEW, vER, vTG, vAG, vTRW, vTRR, vCP, vH8, vD1, vPAd, vPD, vD0 = 2, 3, 4, 5, 6, 7, 8, 10, 11, 12, 13, 14
    sM, sKD, sKH = 54, 55, 56
    c1 = -2.0 * math.sqrt(2.0 / math.pi) * LOG2E
    CC = 46
    s("v_accvgpr_read_b32 v%d, a%d\nv_lshlrev_b32 v%d, 3, v0\nv_add_u32 v%d, 32768, v%d" % (vD0, PK["D"], vH8, vD1, vD0))
    s("v_and_b32 v43, 31, v0\nv_lshlrev_b32 v43, 7, v43\ns_lshl_b32 s71, s%d, 2\ns_add_u32 s71, s71, 0x%x" % (sJ, SM_F1B))
    s("s_mul_i32 s65, s%d, 176\ns_mul_i32 s66, s%d, 44\ns_add_u32 s65, s65, s66\ns_lshl_b32 s65, s65, 12\ns_add_u32 s65, s65, 0x%x" % (sB, sQ, WS_H))
    s.atom(["s_add_u32 s32, s6, s65", "s_addc_u32 s33, s7, 0"])
    s("s_and_b32 s33, s33, 0xffff\ns_mov_b32 s34, 0x%x\ns_mov_b32 s35, 0x20000" % (44 * 4096))
    srd(s, 12, 84, 85, 3584 * 2048); srd(s, 16, 88, 89, 1024 * 2048); srd(s, 20, 90, 91, 1024 * 2048)
    s("s_lshl_b32 s%d, s%d, 10" % (sM, sW))
    s("v_mov_b32 v46, %s\nv_mov_b32 v47, %s" % (fx(c1), fx(c1 * 0.044715)))
    ROT = cfg.get("rot", 2)
    sTQ = [96, 97, 98, 99, 48, 49, 50, 51]; sTS = [76, 77, 78, 80]; sJ12, sG7 = 44, 45
    s("s_and_b32 s67, s%d, 3\ns_lshl_b32 s67, s67, 1" % sI)
    for k in range(8):
        if k == 0: s("s_mov_b32 s65, s%d" % sTN)
        elif ROT == 2: s.atom(["s_cmp_le_u32 s%d, %d" % (sTN, k - 1), "s_cselect_b32 s65, %d, %d" % (k, k - 1)])
        elif ROT: s("s_add_u32 s65, s67, %d\ns_sub_u32 s66, s65, 7\ns_min_u32 s65, s65, s66\ns_add_u32 s65, s65, 1\ns_xor_b32 s65, s65, s%d" % (k - 1, sTN))
        else: s("s_xor_b32 s65, s%d, %d" % (sTN, k))
        s("s_mul_i32 s65, s65, 7\ns_add_u32 s65, s65, 1\ns_lshr_b32 s65, s65, 1\ns_lshl_b32 s%d, s65, 12" % sTQ[k])
    s("s_lshr_b32 s67, s%d, 1" % sTN)
    sGp = [24, 25, 26, 27]; sPar = 45
    for p in range(4):
        if ROT == 2:
            s("s_mov_b32 s%d, %d" % (sTS[p], (7 * p + 3) * 4096))
            if p == 0: s("s_lshl_b32 s%d, s67, 13" % sGp[0])
            else:
                s.atom(["s_cmp_le_u32 s67, %d" % (p - 1), "s_cselect_b32 s65, %d, %d" % (p, p - 1)]); s("s_lshl_b32 s%d, s65, 13" % sGp[p])
        else: s("s_xor_b32 s65, s67, %d\ns_lshl_b32 s%d, s65, 13\ns_mul_i32 s65, s65, %d\ns_add_u32 s%d, s65, %d" % (p, sGp[p], 7 * 4096, sTS[p], 3 * 4096))
    s("s_lshl_b32 s%d, s%d, 12\ns_and_b32 s69, s%d, 1\ns_lshl_b32 s%d, s69, 12" % (sJ12, sTN, sTN, sPar))
    s("s_mul_i32 s67, s67, %d\ns_lshl_b32 s69, s69, 9\ns_add_u32 s67, s67, s69\ns_add_u32 s67, s67, %d" % (7 * 4096, 3 * 4096))
    s("s_add_u32 s72, s%d, %d\ns_add_u32 s73, s%d, %d\ns_mov_b32 s66, s%d" % (sJ12, 28 * 4096, sJ12, 36 * 4096, sTQ[0]))
    s("s_lshl_b32 s68, s%d, 2\ns_add_u32 s68, s68, s%d\ns_lshl_b32 s68, s68, 7\ns_add_u32 s68, s68, 0x%x" % (sB, sQ, SM_F3))
    s("s_lshl_b32 s81, s%d, 2\ns_add_u32 s81, s81, s68\nv_and_b32 v%d, 7, v0\nv_lshlrev_b32 v%d, 2, v%d" % (sTN, vPAd, vPAd, vPAd))
    s("s_sub_u32 s64, 31, s%d\ns_lshl_b32 s64, s64, 13\ns_lshl_b32 s65, s%d, 8\ns_add_u32 s64, s64, s65" % (sB, sJ))
    s("s_mul_i32 s46, s%d, %d\ns_add_u32 s46, s46, %d" % (sW, EPW, EP_LDS))
    if TRP >= 0 and cfg.get("tr2", 1) and cfg.get("tr2pf", 1):
        s.atom(["s_getpc_b64 s[82:83]", "L_pc2:"])
        s("v_lshrrev_b32 v40, 3, v0\nv_lshlrev_b32 v40, 12, v40\nv_and_b32 v41, 7, v0\nv_lshl_add_u32 v40, v41, 7, v40\nv_add_u32 v40, L_main-L_pc2+%d, v40" % (4096 * cfg.get("tr_n", 14)))
        s("v_min_u32 v40, L_codeend-L_pc2-4, v40\nv_mov_b32 v41, 0\nv_lshl_add_u64 v[40:41], v[40:41], 0, s[82:83]")
        s.vm("global_load_dword a246, v[40:41], off")
        if cfg.get("cpe", 0):
            n_ = 16 * cfg.get("cpe", 0)
            s("s_mul_i32 s65, s%d, %d\ns_add_u32 s65, s65, L_epi-L_pc2+%d\nv_min_u32 v40, %d, v0\nv_lshl_add_u32 v40, v40, 7, s65\nv_mov_b32 v41, 0\nv_lshl_add_u64 v[40:41], v[40:41], 0, s[82:83]" % (sW, n_ * 128, cfg.get("cpe_off", -2048), n_ - 1))
            s.vm("global_load_dword a246, v[40:41], off")
    f1bload = "buffer_load_dword v44, v43, s[36:39], s71 offen %s" % SC
    s.vm(f1bload, "f1b")
    steps = [("g", 0, 2), ("g", 0, 0), ("g", 0, 1)]
    NA0 = cfg.get("na0", 2)
    steps += [("g", k, 0) for k in range(1, NA0 + 1)]
    UA = len(steps)
    steps += [("g", k, 1) for k in range(1, NA0 + 1)]
    for k in range(NA0 + 1, 8): steps += [("g", k, 0), ("g", k, 1)]
    UB = len(steps)
    for k in range(1, 8): steps += [("g", k, 2)] + ([("s", k // 2, 0)] if k % 2 else [])
    assert len(steps) == 28
    cst = [("r", 0), ("i", 0), ("r", 1), ("r", 2), ("r", 3), ("i", 1), ("i", 2), ("i", 3)]
    steps += [("c", 14, 0), ("c", 15, 0), ("c", 14, 1), ("c", 15, 1)]
    for st in range(16, 22): steps += [("c", st, 0), ("c", st, 1)]
    own = {0, 1, 2, 28, 29}; UC = 30
    NST = 22; KC = cfg.get("kc", 8)
    slot = {st: st % 8 for st in range(22)}; prevocc = {st: (st - 8 if st >= 8 else None) for st in range(22)}
    aW2 = 0; aAG = 32
    vC, vCA = 16, 20
    def dma2(s, st, k, early=None, vC=vC):
        if st < 14:
            kind, x, p = steps[2 * st + k // 2]
            if k % 2 == 0:
                if kind == "g" and p: s("s_add_u32 s%d, s%d, %d\ns_lshl_b32 s%d, s%d, 4" % (sKD, sTQ[x], p * 4096, sKD, sKD))
                else: s("s_lshl_b32 s%d, s%d, 4" % (sKD, (sTQ if kind == "g" else sTS)[x]))
            v, sr = (vD0, vD1)[k % 2], 12
        else:
            part, p = cst[st - 14]
            if k == 0: s("s_lshr_b32 s%d, s%d, 6" % (sKD, sGp[p]))
            v, sr = vC + k, (16 if part == "r" else 20)
        s("s_add_u32 m0, s%d, %d" % (sM, slot[st] * 16384 + k * 4096))
        s.op(Op("buffer_load_dwordx4 v%d, s[%d:%d], s%d offen lds" % (v, sr, sr + 3, sKD), "vm", K(("D2", st, k))), early)
    NPRE = 4
    r = sc.stream(s.units(), res[-1] + 2, 3)
    gS = r[-1]
    L2P = cfg.get("l2p", 0)
    if L2P:
        s("s_lshr_b32 s65, s2, 3\ns_lshl_b32 s65, s65, 2\ns_add_u32 s65, s65, s%d" % sW)
        s("s_mul_i32 s69, s65, %d\ns_mul_i32 s70, s%d, %d\ns_add_u32 s69, s69, s70\nv_min_u32 v40, 55, v0\nv_lshl_add_u32 v40, v40, 7, s69\ns_mov_b32 s70, %d" % (56 * 128, sQ, 896 * 2048, 448 * 2048))
        s.vm("buffer_load_dword a246, v40, s[12:15], 0 offen"); s.delay(cfg.get("l2p_sp", 40))
        s.vm("buffer_load_dword a246, v40, s[12:15], s70 offen"); s.delay(cfg.get("l2p_sp", 40))
        if L2P >= 2:
            s("s_lshl_b32 s69, s65, 14\ns_lshl_b32 s70, s%d, 9\ns_add_u32 s69, s69, s70\nv_bfe_u32 v40, v0, 2, 3\nv_lshl_add_u32 v40, v40, 11, s69\nv_and_b32 v41, 3, v0\nv_lshl_add_u32 v40, v41, 7, v40" % sQ)
    s.at(max(bar[13] + 1, cfg.get("pre_at", 0 if KT else 2170)))
    for st in range(NPRE):
        for k in range(4): dma2(s, st, k)
    if L2P >= 2:
        s.vm("buffer_load_dword a246, v40, s[16:19], 0 offen")
        if L2P >= 3: s.delay(20); s.vm("buffer_load_dword a246, v40, s[20:23], 0 offen")
    r = sc.stream(s.units(), gS + 1, 2, vmspace=cfg.get("pre_sp", 5))
    hst = cfg.get("hst", SC)
    aK0 = xalloc[27][1] if KT else 96; aK1 = 112 if aK0 != 112 else 96
    left = []; msh = 0
    if KT:
        msh = cfg.get("msh", 4)
        for m in range(msh):
            gs = [128 + 4 * m + e for e in range(4)] + [160 + 4 * m + e for e in range(4)]
            o = (56, 60)[m % 2]
            for k, g in enumerate(gs): s("v_mul_f32 v%d, v%d, v%d" % (48 + k, g, g))
            for k, g in enumerate(gs): s("v_fma_f32 v%d, v%d, v47, v46" % (48 + k, 48 + k))
            for k, g in enumerate(gs): s("v_mul_f32 v%d, v%d, v%d" % (48 + k, 48 + k, g))
            for k, g in enumerate(gs): s("v_exp_f32 v%d, v%d" % (48 + k, 48 + k))
            for k, g in enumerate(gs): s("v_mul_f32 v%d, v%d, v%d" % (g + 16, g, g + 16))
            for k, g in enumerate(gs): s("v_add_f32 v%d, 1.0, v%d" % (48 + k, 48 + k))
            for k, g in enumerate(gs): s("v_rcp_f32 v%d, v%d" % (48 + k, 48 + k))
            for k, g in enumerate(gs): s("v_mul_f32 v%d, v%d, v%d" % (g + 16, g + 16, 48 + k))
            for k in range(4): s("v_cvt_pk_bf16_f32 v%d, v%d, v%d" % (o + k, gs[2 * k] + 16, gs[2 * k] + 17))
            s.vm("buffer_store_dwordx4 %s, v1, s[32:35], s66 offen offset:%d %s" % (Q(o), 1024 * m, hst), ("hs", 0, m))
            for k in range(4): s("v_accvgpr_write_b32 a%d, v%d" % (aK0 + 4 * m + k, o + k))
        un = s.units()
        r = sc.stream(un, max(gS + 1, 4 * (28 * 18 + 16) + 2), 3, vmspace=2, overflow=True)
        left = un[len(r):]
        if cfg.get("verbose"): print("setup end", gS, "shadow gelu placed", len(r), "left", len(left))
    if cfg.get("stall"):
        for G in range(1, NG):
            if G % cfg["stall"] == 0 and len(sc.classes(4 * G - 1)) == 3: sc.put(4 * G - 1, [Op("s_nop 0")], 9)
    prog.add(sc.ops())
    vTA = 40
    s.atom(["L_epi:"])
    s("s_barrier")
    stamp(s, "end1")
    s.u += left
    KD = [int(c, 36) for c in str(cfg.get("kd", "g088"))]
    CH2 = cfg.get("ch2", 1); nochain = [int(c) for c in str(cfg.get("ch2_skip", "1"))]
    assert all(k % 2 == 0 for k in KD)
    def sg2(st, ul):
        if CH2 and st not in nochain: return [(2 * st + kk, u) for u in ul for kk in range(2)]
        return [(2 * st + kk, u) for kk in range(2) for u in ul]
    groups = []
    for st in range(22): groups += sg2(st, [u for u in (range(8) if st < 14 else (2, 3, 4, 5, 6, 7, 0, 1)) if 2 * st < 44 - KD[u // 2]])
    pend_ = {}
    for d in (1, 2, 3, 0):
        for st in range(22 - KD[d] // 2, 22): groups += sg2(st, (2 * d, 2 * d + 1))
    for G, (uu, u) in enumerate(groups): pend_[u // 2] = G
    assert len(groups) == 352 and max(KD) <= 16
    NG = len(groups)
    mo, head, tail = order_mfma(groups)
    lastuse = {}; firstuse = {}
    for G, (uu, u) in enumerate(groups): firstuse.setdefault(uu, head(G)); lastuse[uu] = tail(G)
    hreg = {0: ("v", 48), 1: ("a", aK0), 2: ("a", aK1), 28: ("a", 32), 29: ("a", 48)}; hfree = {}
    pool = [(-1, ("a", r)) for r in [96, 112, 128, 144, 192, 208, 224, 160, 176, 64, 80] if r not in (aK0, aK1)] + [(4 * lastuse[u] + 3, hreg[u]) for u in (1, 2, 28, 29)]
    VFREE = cfg.get("vfree", 700)
    pool += [(VFREE, ("v", r)) for r in (64, 80, 96, 112)[:cfg.get("nvs", 4)]]
    for u in range(44):
        if u in own: continue
        pool.sort(key=lambda x: x[0]); e, r = pool.pop(0)
        hreg[u] = r; hfree[u] = e; pool.append((4 * lastuse[u] + 3, r))
    def hload(s, u, m, early=None):
        kind, x, p = steps[u]
        if m == 0:
            if kind == "g": s("s_add_u32 s%d, s%d, %d" % (sKH, sTQ[x], p * 4096))
            elif kind == "s": s("s_mov_b32 s%d, s%d" % (sKH, sTS[x]))
            else:
                part, pp = cst[x - 14]
                s("s_xor_b32 s%d, s%d, %d\ns_add_u32 s%d, s%d, s%d" % (sKH, sPar, ((28 if part == "r" else 36) + p) * 4096, sKH, sKH, sGp[pp]))
        hk, d = hreg[u]; d += 4 * m
        if kind == "s":
            s.op(Op("buffer_load_dwordx2 %s, v%d, s[32:35], s%d offen offset:%d" % (R(hk, d, 2), vH8, sKH, 1024 * m), "vm"), early)
            s.op(Op("buffer_load_dwordx2 %s, v%d, s[32:35], s%d offen offset:%d" % (R(hk, d + 2, 2), vH8, sKH, 1024 * m + 512), "vm", K(("H", u, m))))
        else: s.op(Op("buffer_load_dwordx4 %s, v1, s[32:35], s%d offen offset:%d" % (R(hk, d, 4), sKH, 1024 * m), "vm", K(("H", u, m))), early)
    def gelu_pair(base0, base1, pid, T, OUT, keep=None, hook=None, m0=0):
        for m in range(m0, 4):
            o = OUT[m % len(OUT)]
            items = [(base0 + 4 * m, base0 + 16 + 4 * m, o), (base0 + 4 * m + 2, base0 + 18 + 4 * m, o + 1),
                     (base1 + 4 * m, base1 + 16 + 4 * m, o + 2), (base1 + 4 * m + 2, base1 + 18 + 4 * m, o + 3)]
            gelu_block(s, items, CC, T)
            s.vm("buffer_store_dwordx4 %s, v1, s[32:35], s66 offen offset:%d %s" % (Q(o), 1024 * m, hst), ("hs", pid, m))
            if keep is not None:
                for r in range(4): s("v_accvgpr_write_b32 a%d, v%d" % (keep + 4 * m + r, o + r))
            if hook: hook(m)
        s("s_add_u32 s66, s66, 4096")
    NPRE2 = cfg.get("npre2", 8)
    cpre = [(st, k) for st in range(NPRE, NPRE2) for k in range(4)]
    def cdma(n):
        for _ in range(n):
            if cpre: st, k = cpre.pop(0); dma2(s, st, k)
    fstore = lambda off: "buffer_store_dword v%d, v1, s[36:39], s81 offen offset:%d %s" % (vTG, off, SC)
    fload = lambda off: "buffer_load_dword v%d, v%d, s[36:39], s68 offen offset:%d %s" % (vPD, vPAd, off, SC)
    s("v_mov_b32 v%d, s%d" % (vTG, sTAG))
    npg = cfg.get("cpre_g", 1)
    cdma(cfg.get("cpre_0", 4))
    gelu_pair(128, 160, 0, 48, [56, 60], aK0, lambda m: cdma(npg), m0=msh)
    def hook1(m):
        cdma(npg)
        if m == cfg.get("fa0_m", 1): flag(s, fstore(96), [("hs", 0, 3)])
    gelu_pair(192, 224, 1, 48, [56, 60], aK1, hook1)
    stamp(s, "p01")
    def pkfma(d, s0, s1, s2, T, neg=False):
        s("v_pk_fma_f32 %s, %s, %s, %s op_sel:[%d,0,0] op_sel_hi:[%d,1,1]%s" % (P(d), P(s0), P(s1), P(s2), T, T, " neg_lo:[1,0,0] neg_hi:[1,0,0]" if neg else ""))
    def pkmul(d, s0, s1, T, neg=False):
        s("v_pk_mul_f32 %s, %s, %s op_sel:[%d,0] op_sel_hi:[%d,1]%s" % (P(d), P(s0), P(s1), T, T, " neg_lo:[1,0] neg_hi:[1,0]" if neg else ""))
    BR = lambda T, x: 64 + 16 * T + 2 * x
    BI = lambda T, x: 96 + 16 * T + 2 * x
    for x in range(8):
        for T in range(2):
            pkmul(128 + 2 * T, cC + 2, BI(T, x), T, True); pkmul(BI(T, x), cC, BI(T, x), T, True)
        for T in range(2):
            pkfma(BI(T, x), cC + 2, BR(T, x), BI(T, x), T, True); pkfma(BR(T, x), cC, BR(T, x), 128 + 2 * T, T)
    sr = [BR(0, 0), BR(1, 0)]; si = [BI(0, 0), BI(1, 0)]
    bufs = [[132, 134], [138, 140]]; SI = [136, 142]
    for x in range(1, 8):
        nr = [bufs[T][x % 2] for T in range(2)]
        for T in range(2): pkfma(nr[T], cL, sr[T], BR(T, x), T)
        for T in range(2): pkfma(nr[T], cL + 2, si[T], nr[T], T, True)
        for T in range(2): pkfma(SI[T], cL, si[T], BI(T, x), T)
        for T in range(2): pkfma(SI[T], cL + 2, sr[T], SI[T], T)
        sr = nr; si = list(SI)
        if x % 2: cdma(1)
    EA = 20
    for T in range(2):
        s("v_mov_b32 v%d, v%d\nv_mov_b32 v%d, v%d\nv_mov_b32 v%d, v%d\nv_mov_b32 v%d, v%d" % (EA + T, sr[T], EA + 2 + T, si[T], 144 + T, sr[T] + 1, 146 + T, si[T] + 1))
    horner_pk(s, EA, cL8, 144, 144)
    s("v_add_u32 v%d, s46, v1\nv_and_b32 v%d, 0xf0, v1\nv_add_u32 v%d, s46, v%d" % (vEW, vER, vER, vER))
    s.lg("ds_write_b128 v%d, v[144:147]" % vEW)
    for g in range(4): s.lg("ds_read_b128 %s, v%d offset:%d" % (Q(148 + 4 * g), vER, 256 * g), ("e", g))
    HPN = cfg.get("hpn", 0)
    if HPN: s.vm(fload(96), "f3a0")
    for r in range(32):
        s("v_accvgpr_read_b32 v%d, a%d" % (192 + r, r))
        if r % 16 == 15: cdma(1)
    flag(s, fstore(0), [("hs", 1, 3)])
    for g in range(1, 4):
        s.wait([("e", g)]); horner_pk(s, 148 + 4 * (g - 1), cL16, 148 + 4 * g, 148 + 4 * g)
    for r in range(160, 164): s("v_min_u32 v%d, -2, v%d" % (r, r))
    s.atom(["s_mov_b64 exec, 0xffff", Op("buffer_store_dwordx4 v[160:163], v1, s[36:39], s64 offen %s" % SC, "vm"), "s_mov_b64 exec, -1"])
    stamp(s, "pub")
    poll(s, "P1b", f1bload, 44, "f1b")
    for r in range(32, 64):
        s("v_accvgpr_read_b32 v%d, a%d" % (192 + r, r))
        if r % 16 == 15: cdma(1)
    cdma(16)
    for r in range(32): s("v_accvgpr_read_b32 v%d, a%d" % (128 + r, aBS + r))
    hq = [(u, m) for u in range(3, UA) for m in range(4)][:HPN]; nh_pre = [3 + HPN // 4]
    assert HPN % 4 == 0
    def issue_h(n):
        for _ in range(n):
            if hq: hload(s, *hq.pop(0))
    hpb = cfg.get("hpb", 3)
    def hookA(m): issue_h(hpb)
    def tramp2():
        s("s_mov_b64 exec, 0")
        for w in range(1, 4): s("s_cmp_eq_u32 s%d, %d\ns_cbranch_scc1 L_trB%d" % (sW, w, w))
        s("s_branch L_trB0")
        s.atom(["L_trret2:"])
        s("s_mov_b64 exec, -1")
    if TRP >= 0 and cfg.get("tr2", 1): tramp2()
    if HPN:
        poll(s, "P3a0", fload(96), vPD, "f3a0"); stamp(s, "ok3a"); issue_h(hpb)
    gelu_pair(192, 224, 2, 168, [48, 52, 56, 60], None, hookA)
    for r in range(32): s("v_accvgpr_read_b32 v%d, a%d" % (192 + r, 64 + r))
    issue_h(hpb)
    for mp in range(2):
        o = 240 + 4 * mp; items = []
        for mm in range(2):
            m = 2 * mp + mm
            items += [(192 + 4 * m, 208 + 4 * m, o + 2 * mm), (194 + 4 * m, 210 + 4 * m, o + 2 * mm + 1)]
        gelu_block(s, items, CC, 168)
        if mp == 0:
            s("v_accvgpr_read_b32 v%d, a%d" % (vTA, PK["TA"]))
            for u in range(1, 6): s("v_xor_b32 v%d, %d, v%d" % (vTA + u, 32 * u, vTA))
        issue_h(hpb if mp == 0 else 99)
        if mp == 1 and not HPN: s.vm(fload(96), "f3a0")
        for mm in range(2):
            s.vm("buffer_store_dwordx2 %s, v%d, s[32:35], s67 offen offset:%d %s" % (P(o + 2 * mm), vH8, 1024 * (2 * mp + mm), hst), ("hsS", 2 * mp + mm))
        if mp == 0:
            s.wait([("D2", st, k) for st in range(cfg.get("bar2", 2)) for k in range(4)])
            s("s_barrier")
            pre_reads_at = len(s.u)
    for u in range(6, 8): s("v_xor_b32 v%d, %d, v%d" % (vTA + u, 32 * u, vTA))
    L2 = cfg.get("l2_lead", 4); B2 = cfg.get("bar2", 2)
    def read2(G, part):
        uu, u = groups[G]; f = G % NWB
        if uu < 28:
            st, kk = divmod(uu, 2)
            return Op("ds_read_b64_tr_b16 %s, v%d offset:%d" % (R("a", aW2 + 4 * f + 2 * part, 2), vTA + u, (slot[st] % 4) * 16384 + kk * 8192 + part * 4096), "lg", K(("F2", G, part)))
        _, st, kk = steps[uu]
        return Op("ds_read_b128 %s, v%d offset:%d" % (R("a", aW2 + 4 * f, 4), vCA + 2 * (slot[st] >= 4) + kk, (slot[st] % 4) * 16384 + u * 2048), "lg", K(("F2", G, part)))
    parts = lambda G: [0, 1] if groups[G][0] < 28 else [None]
    mf = []
    for G, m in mo:
        uu, u = groups[G]
        mf.append(Op(mfma16(("v", 128 + 16 * u + 4 * m), ("a", aW2 + 4 * (G % NWB)), (hreg[uu][0], hreg[uu][1] + 4 * m), zero=(uu == 0 and u >= 2))))
    sc = Sch(mf)
    gneed = lambda G: [("F2", H, p) for H in range(G, tail(G) + 1) for p in parts(H)] + [("H", uu, m) for uu in range(44) if firstuse[uu] == G and uu not in own for m in range(4)]
    rgap = {}
    for G in range(NG):
        st, f = divmod(G, 16)
        if st < 14 and st % B2 == B2 - 1:
            if f <= 4: rgap[G] = 4 * (G - L2) - 1
            elif f == 5: rgap[G] = 4 * (G - 1 - L2) + 1
            elif f <= 10: rgap[G] = 4 * (G - 1 - L2) - 1
            elif f == 11: rgap[G] = 4 * (G - 2 - L2) + 1
            else: rgap[G] = 4 * (G - 2 - L2) - 1
        else: rgap[G] = 4 * (G - L2) - 1
        assert rgap[G] >= 4 * tail(G - NWB) + 3
    pr = Seq()
    for G in range(NG):
        if rgap[G] < 0:
            for p in parts(G): pr.op(read2(G, p))
    s.u[pre_reads_at:pre_reads_at] = pr.units()
    s.wait(gneed(0))
    stamp(s, "loop2")
    prog.add(s.done())
    for G in range(1, NG):
        w = Op("", needs=K(gneed(G)))
        w.keep = sum(len(parts(H)) for H in range(max(0, G - 2), min(NG, G + 10)) if rgap[H] == 4 * G - 1) == 2
        if w.keep or head(G) == G: sc.put(4 * G - 1, [w], 0)
    for G in range(NG):
        if rgap[G] >= 0:
            if rgap[G] % 4 != 3: sc.put(rgap[G], [Op("s_waitcnt lgkmcnt(15)")], 0)
            sc.put(rgap[G], [read2(G, p) for p in parts(G)], 1)
    bar = {}
    for st in range(14):
        if st % B2 != B2 - 1: continue
        bar[st] = 4 * (16 * (st + 1) - L2) - 2
        pub = list(range(st + 1, st + 1 + B2)) if st < 13 else [14, 15, 16, 17]
        sc.put(bar[st], [Op("s_barrier", needs=K([("D2", x, k) for x in pub for k in range(4)]), drain=["lg"])], 0)
    for st in (3, 7, 11):
        for i_, g_ in enumerate((1, 2, 4, 5)):
            sc.put(bar[st] - g_, [Op("v_xor_b32 v%d, 0x10000, v%d" % (vTA + 2 * i_ + k, vTA + 2 * i_ + k)) for k in range(2)], 2)
        assert max(rgap[G] for G in range(16 * st, 16 * st + 16)) < bar[st] - 5
    barF = min(rgap[G] for G in range(NG) if groups[G][0] >= 36) - 1
    sc.put(barF, [Op("s_barrier", needs=K([("D2", x, k) for x in range(18, 22) for k in range(4)]))], 0)
    def mark(o, nm): o.u[-1].append(nm)
    def after(o, nm, n): o.u.append([[Op("")], lambda mk: (mk[nm] + n) if nm in mk else None])
    def dly(o, n): o.u.append([[Op("")], lambda mk: mk["_prev"] + n])
    gl = []
    t = Seq()
    t("v_accvgpr_read_b32 v%d, a%d\nv_accvgpr_read_b32 v%d, a%d\nv_accvgpr_read_b32 v%d, a%d" % (vAG, PK["AG"], vTRW, PK["TRW"], vTRR, PK["TRR"]))
    t("s_mov_b32 s40, s36\ns_mov_b32 s41, s37\ns_mov_b32 s42, 0x40000\ns_mov_b32 s43, 0x20000")
    t("v_lshrrev_b32 v8, 4, v0\nv_cmp_eq_u32 s[64:65], 1, v8\nv_cmp_eq_u32 s[66:67], 2, v8\nv_cmp_eq_u32 s[74:75], 3, v8")
    t.at(cfg.get("ag_gap", 32))
    for x in range(7, -1, -1):
        t("s_mov_b32 s57, %d" % (8192 * x))
        g = "buffer_load_dwordx4 %s, v%d, s[40:43], s57 offen %s" % (R("a", aAG + 4 * x, 4), vAG, SC)
        gl.append("s_mov_b32 s57, %d\n%s" % (8192 * x, g))
        t.vm(g, ("ag", x))
        if x: dly(t, cfg.get("ag_sp", 8))
    mark(t, "ag")
    srd(t, 8, 86, 87, 2048 * 4096)
    flag(t, fstore(32), [("hsS", 3)], early=cfg.get("fb_gap", 80)); mark(t, "flagb")
    after(t, "ag", cfg.get("ag_lat", 20)); t.at(4 * lastuse[0] + 4)
    def ag_horner(o, w):
        cur = None
        for x in range(7, -1, -1):
            q = 48 + 4 * (x % 2)
            if w: o.wait([("ag", x)])
            for r in range(4): o("v_accvgpr_read_b32 v%d, a%d" % (q + r, aAG + 4 * x + r))
            if not w: o(("v_max3_u32 v56, v%d, v%d, v%d\nv_max_u32 v56, v56, v%d" % (q, q + 1, q + 2, q + 3)) if x == 7 else ("v_max3_u32 v56, v56, v%d, v%d\nv_max3_u32 v56, v56, v%d, v%d" % (q, q + 1, q + 2, q + 3)))
            if cur is not None: horner_sc(o, cur, cL64, q)
            cur = q
    ag_horner(t, True)
    t("v_cmp_u_f32 s[70:71], v48, v49")
    t.atom(["v_cmp_u_f32 vcc, v50, v51", "s_or_b64 vcc, vcc, s[70:71]", "s_cbranch_scc1 PAG_retry", "PAG_ok:"])
    ool("PAG_retry:\n" + "\n".join(gl) + "\ns_waitcnt vmcnt(0)")
    ag_horner(ool, False)
    ool("v_cmp_eq_u32 vcc, -1, v56\ns_and_b64 vcc, vcc, exec\ns_cbranch_scc0 PAG_ok\ns_cmp_eq_u32 s79, 0\ns_cbranch_scc1 PAG_ok\ns_sub_u32 s79, s79, 1\ns_sleep 1\ns_branch PAG_retry")
    t.lg("ds_write_b128 v%d, v[48:51] offset:1024" % vEW)
    for g, r in ((3, 52), (2, 56), (1, 60)): t.lg("ds_read_b128 %s, v%d offset:%d" % (Q(r), vER, 1024 + 256 * g), ("s", g))
    t.lg("ds_read_b128 %s, v%d offset:1024" % (Q(48), vER), ("s", 0))
    dly(t, 8)
    t.wait([("s", 2)]); horner_sc(t, 52, cL512, 56)
    t.lg("ds_read_b128 %s, v%d" % (Q(52), vER), ("e2", 0))
    t.wait([("s", 1)]); horner_sc(t, 56, cL512, 60)
    t.lg("ds_read_b128 %s, v%d offset:256" % (Q(56), vER), ("e2", 1))
    t.wait([("s", 0)]); horner_sc(t, 60, cL512, 48)
    t.lg("ds_read_b128 %s, v%d offset:512" % (Q(60), vER), ("e2", 2))
    t.wait([("e2", 0)]); horner_sc(t, 48, cL16, 52)
    t.wait([("e2", 1)]); horner_sc(t, 52, cL16, 56)
    t.wait([("e2", 2)]); horner_sc(t, 56, cL16, 60)
    for g, sm in ((52, 64), (56, 66), (60, 74)):
        for r in range(4): t("v_cndmask_b32 v%d, v%d, v%d, s[%d:%d]" % (48 + r, 48 + r, g + r, sm, sm + 1))
    horner_sc(t, 48, cL8, EA)
    t("v_xor_b32 v52, 16, v%d" % vTRR)
    st_r = {(T, h): (48, EA)[h] + T for T in range(2) for h in range(2)}
    st_i = {(T, h): (48, EA)[h] + 2 + T for T in range(2) for h in range(2)}
    TH = [(T, h) for T in range(2) for h in range(2)]
    xs = Seq()
    for x in range(8):
        for (T, h) in TH: t("v_fmac_f32 v%d, v%d, v%d" % (BR(T, x) + h, cL + T, st_r[T, h]))
        for (T, h) in TH: t("v_fmac_f32 v%d, v%d, v%d" % (BI(T, x) + h, cL + T, st_i[T, h]))
        for (T, h) in TH: t("v_fma_f32 v%d, -v%d, v%d, v%d" % (BR(T, x) + h, cL + 2 + T, st_i[T, h], BR(T, x) + h))
        for (T, h) in TH: t("v_fmac_f32 v%d, v%d, v%d" % (BI(T, x) + h, cL + 2 + T, st_r[T, h]))
        for (T, h) in TH: st_r[T, h] = BR(T, x) + h; st_i[T, h] = BI(T, x) + h
        if x % 2 == 1:
            m = x // 2; mo = (m % 2) * 2048
            for part, Fn in enumerate((BR, BI)):
                for T in range(2):
                    o = 56 + 4 * part + 2 * T
                    t("v_cvt_pk_bf16_f32 v%d, v%d, v%d\nv_cvt_pk_bf16_f32 v%d, v%d, v%d" % (o, Fn(T, x - 1), Fn(T, x - 1) + 1, o + 1, Fn(T, x), Fn(T, x) + 1))
                    t.lg("ds_write_b64 v%d, %s offset:%d" % (vTRW, P(o), mo + part * 1024 + 512 * T))
                t.atom(["s_waitcnt lgkmcnt(15)"] + [Op("ds_read_b64_tr_b16 %s, v%d offset:%d" % (R("a", aAG + 16 * part + 4 * m + 2 * half, 2), (vTRR, 52)[half], mo + part * 1024 + 256 * half), "lg", K(("tr", m, part, half))) for half in range(2)])
                mark(t, ("tr", m, part))
                after(xs, ("tr", m, part), 10)
                if (m, part) != (0, 0) and m < 3: after(xs, ("hl", m - 1 + part, 1 - part), cfg.get("hl_sp", 24))
                xs.vm("buffer_store_dwordx4 %s, v1, s[32:35], s%d offen offset:%d %s" % (R("a", aAG + 16 * part + 4 * m, 4), 72 + part, 1024 * m, hst), ("hl", m, part), needs=[("tr", m, part, 1)])
                mark(xs, ("hl", m, part))
    dly(xs, cfg.get("fc_lat", 60))
    flag(xs, fstore(64), [("hl", 3, 1)]); mark(xs, "flagc")
    t("v_accvgpr_read_b32 v48, a%d\nv_accvgpr_read_b32 v%d, a%d" % (PK["C"], vCA, PK["CA"]))
    for k in range(4): t("s_xor_b32 s65, s%d, %d\ns_lshl_b32 s65, s65, 16\nv_add_u32 v%d, s65, v48" % (sQ, k, vC + k))
    t("s_and_b32 s65, s%d, 1\ns_lshl_b32 s65, s65, 6\nv_xor_b32 v%d, s65, v%d" % (sTN, vCA, vCA))
    t("v_xor_b32 v%d, 64, v%d\nv_add_u32 v%d, 0x10000, v%d\nv_xor_b32 v%d, 64, v%d" % (vCA + 1, vCA, vCA + 2, vCA, vCA + 3, vCA + 2))
    vOO = 28
    t("v_accvgpr_read_b32 v24, a%d\nv_accvgpr_read_b32 v25, a%d\nv_lshlrev_b32 v25, 2, v25\nv_lshl_add_u32 v%d, v24, 12, v25" % (PK["TOK"], PK["COL"], vOO))
    mark(t, "cready")
    RB = lambda u, m: 128 + 16 * u + 4 * m
    after(t, "flagc", 1)
    t("s_lshl_b32 s65, s%d, 3\ns_add_u32 s65, s65, s%d\ns_lshl_b32 s66, s65, 18\ns_lshl_b32 s67, s%d, 14\ns_add_u32 s66, s66, s67\ns_add_u32 s66, s66, 0x%x" % (sI, sTN, sW, WS_PART))
    t.atom(["s_add_u32 s40, s6, s66", "s_addc_u32 s41, s7, 0"])
    t("s_and_b32 s41, s41, 0xffff\ns_mov_b32 s42, 0x34000\ns_mov_b32 s43, 0x20000")
    t("s_lshl_b32 s69, s65, 2\ns_add_u32 s69, s69, s%d\ns_lshl_b32 s69, s69, 7\ns_add_u32 s69, s69, 0x%x" % (sW, SM_F4))
    for d in (1, 2, 3):
        t("s_xor_b32 s67, s%d, %d\ns_lshl_b32 s66, s67, 16\ns_add_u32 s%d, s66, %d" % (sQ, d, 72 + d, (d - 1) * 4096))
        t("s_lshl_b32 s67, s67, 4\ns_add_u32 s67, s67, %d\nv_mov_b32 v%d, s67" % (4 * d, 28 + d))
        t("s_lshl_b32 s67, s%d, 16\ns_add_u32 s%d, s67, %d" % (sQ, 69 + d, (d - 1) * 4096))
    t("s_lshl_b32 s67, s%d, 4\nv_and_b32 v32, 3, v0\nv_lshl_add_u32 v32, v32, 2, s67" % sQ)
    t("s_mov_b32 s57, 0\ns_mov_b32 s58, 8192\ns_mov_b32 s59, 16384\ns_mov_b32 s64, 24576")
    t("v_mov_b32 v34, 0x3f80\nv_mov_b32 v35, 0x3f800000")
    mark(t, "setup")
    if cfg.get("tlb", 0):
        after(t, ("H", 43), 2)
        t.vm("buffer_load_dword a246, v29, s[40:43], s73 offen")
        t("v_readfirstlane_b32 s67, v%d" % vOO); dly(t, 3)
        t.vm("buffer_load_dword a246, v29, s[8:11], s67 offen")
    f4store = lambda d: "buffer_store_dword v%d, v%d, s[36:39], s69 offen %s" % (vTG, 28 + d, SC)
    f4load = "buffer_load_dword v33, v32, s[36:39], s69 offen %s" % SC
    gp = lambda d: 4 * pend_[d] + 3 + 3
    RV = lambda d, m: 128 + 32 * d + 16 + 4 * m
    rload = lambda d, m: "buffer_load_dwordx4 %s, v1, s[40:43], s%d offen offset:%d %s" % (Q(RV(d, m)), 69 + d, 1024 * m, SC)
    NFI = cfg.get("nfi", 3); NRI = cfg.get("nri", 1)
    fs = Seq(); rs = Seq(); pl_ = Seq(); assert NFI == 3
    for d in (1, 2, 3):
        t.at(gp(d))
        for m in range(4):
            A = 128 + 32 * d + 4 * m; Bq = A + 16
            t("v_cvt_pk_bf16_f32 v%d, v%d, v%d\nv_cvt_pk_bf16_f32 v%d, v%d, v%d\nv_cvt_pk_bf16_f32 v%d, v%d, v%d\nv_cvt_pk_bf16_f32 v%d, v%d, v%d" % (A, A, A + 1, A + 1, A + 2, A + 3, A + 2, Bq, Bq + 1, A + 3, Bq + 2, Bq + 3))
            mark(t, ("cv", d, m))
            after(xs, ("cv", d, m), 1)
            xs.vm("buffer_store_dwordx4 %s, v1, s[40:43], s%d offen offset:%d %s" % (Q(A), 72 + d, 1024 * m, SC), ("ps", d, m)); mark(xs, ("ps", d, m))
        if d <= NFI:
            after(fs, ("ps", d, 3), cfg.get("f4_lat", 44)); flag(fs, f4store(d), [("ps", d, 3)]); mark(fs, ("f4", d))
        f4l = f4load.replace("v33,", "v%d," % (35 + d))
        after(pl_, ("f4", d), cfg.get("p4_lat", 30)); pl_.vm(f4l, ("f4l", d)); mark(pl_, ("f4l", d))
        after(rs, ("f4l", d), cfg.get("p4_rt", 36))
        poll(rs, "P4%d" % d, f4l, 35 + d, ("f4l", d), mask=str(1 << d))
        for m in range(4):
            rs.vm(rload(d, m), ("pl", d, m)); mark(rs, ("pl", d, m)); dly(rs, cfg.get("r_sp", 12))
    hs = Seq(); hdl = {}
    if not HPN: poll(hs, "P3a0", fload(96), vPD, "f3a0", early=cfg.get("pa_gap", 12))
    for u in range(nh_pre[0], 44):
        if u in own: continue
        for (U, nm, off, fl, lat) in ((UA, "P3a", 0, None, 0), (UB, "P3b", 32, "flagb", cfg.get("pb_lat", 80)), (UC, "P3c", 64, "flagc", cfg.get("pc_lat", 80))):
            if u == (max(U - 2, nh_pre[0]) if U != UC else U):
                if fl: after(hs, fl, lat)
                hs.vm(fload(off), nm); mark(hs, nm + "l")
            if u == U:
                after(hs, nm + "l", cfg.get("poll_rt", 44)); poll(hs, nm, fload(off), vPD, nm); mark(hs, nm)
        n0 = len(hs.u)
        for m in range(4): hload(hs, u, m, max(hfree[u], 4 * firstuse[u] - cfg.get("l2_la", 400)))
        for i in range(n0, len(hs.u)): hdl[i] = 4 * firstuse[u] - 1
        mark(hs, ("H", u))
    ds = Seq(); ddl = {}
    DL = lambda st: bar[st // B2 * B2 - 1] if st < 14 else (bar[13] if st < 18 else barF)
    for st in range(NPRE2, 22):
        n0 = len(ds.u)
        if st == "E":
            after(ds, "cready", 1); after(ds, ("hl", 3, 1), 1)
            for n in range(4):
                ds("s_mov_b32 s%d, %d\ns_add_u32 m0, s46, %d" % (sKD, 32768 * n, 2048 + 1024 * n))
                ds.vm("buffer_load_dwordx4 v26, s[24:27], s%d offen lds" % sKD)
            ds("s_add_u32 m0, s46, 6144"); ds.vm("buffer_load_dwordx4 v1, s[36:39], s59 offen lds")
            ds("s_add_u32 m0, s46, 7168"); ds.vm("buffer_load_dwordx4 v1, s[28:31], s58 offen lds", "Elast"); mark(ds, "edma")
            dl = 900
        else:
            if st == 14: after(ds, "cready", 1)
            for k in range(4): dma2(ds, st, k, bar[prevocc[st] // B2 * B2 + B2 - 1] + 1 if st >= 8 else 0)
            dl = DL(st)
            mark(ds, ("D", st))
        for i in range(n0, len(ds.u)): ddl[i] = dl
    RS = Stream("r", rs.units(), 2, deadline=lambda i: cfg.get("r_prio", -3)); PS = Stream("pl", pl_.units(), 2, deadline=lambda i: -2); RS.overflow = PS.overflow = True
    mk = multi(sc, [Stream("h", hs.units(), 2, deadline=lambda i: hdl.get(i, 0)), Stream("d", ds.units(), 2, deadline=lambda i: ddl.get(i, 0)),
                    Stream("x", xs.units(), 2), Stream("t", t.units(), 3, start=1), RS, PS, Stream("f", fs.units(), 2, deadline=lambda i: -2)],
               cl=cfg.get("cl", 70), cs=cfg.get("cs", 210), B0=cfg.get("b0", 150), busy0=cfg.get("busy0", 300))
    sl = sorted([(4 * firstuse[u] - 1 - mk[("H", u)], "h", u) for u in range(nh_pre[0], 44) if u not in own] + [(DL(st) - mk[("D", st)], "d", st) for st in range(NPRE2, 22)])
    if cfg.get("verbose"):
        print("loop2 slacks", sl[:6], {k: v for k, v in mk.items() if isinstance(k, str)}, "hl", [mk[("hl", m, p)] for m in range(4) for p in range(2)], "ps", [mk[("ps", d, m)] for d in (1, 2, 3) for m in range(4)], "barF", barF, "f4", [mk.get(("f4", d)) for d in (1, 2, 3)], "f4l", [mk.get(("f4l", d)) for d in (1, 2, 3)], "pl", [mk.get(("pl", d, m)) for d in (1, 2, 3) for m in range(4)])
    assert sl[0][0] > cfg.get("minslack", 30), sl[:4]
    assert mk["cready"] < rgap[firstuse[28]] and mk[("hl", 3, 1)] < 4 * firstuse[28] - 1 and mk["setup"] < gp(1) and mk[("tr", 3, 1)] < VFREE
    for nm in names:
        if TS and nm[0] == "g" and nm[1:].isdigit():
            g_ = 4 * (16 * (int(nm[1:]) + 1) - L2) - 2
            sc.put(g_ - 1, [Op("s_memrealtime s[100:101]")], 5)
            sc.put(g_, [Op("s_waitcnt lgkmcnt(0)\nv_writelane_b32 v%d, s100, %d" % (vTS, names.index(nm)))], 5)
    if cfg.get("drop"):
        for g in range(cfg.get("drop_lo", 120), cfg.get("drop_hi", 600)):
            for it in sc.g[g]:
                o = it[2]
                if it[0] in (2, 3) and o.text and "\n" not in o.text and not o.text.endswith(":"):
                    c = opclass(o.text)
                    if it[0] == 2 and not (c == "X" and "x4" in o.text): continue
                    if c in cfg["drop"] and "cmp" not in o.text and not any(("v%d," % r) in o.text.split(None, 2)[1] + "," for r in range(16, 32)):
                        o.text = "s_nop 0" if cfg.get("dropnop") else ""
    prog.add(sc.ops())
    stamp(s, "end2")
    def addp(d, m):
        s.wait([("pl", d, m)])
        for k in range(8):
            r = RB(k // 4, m) + k % 4
            s("v_dot2_f32_bf16 v%d, v%d, v%d, v%d" % (r, RV(d, m) + k // 2, 34 + k % 2, r))
    for un in PS.units[PS.pos:]: s.u.append([un[0], None])
    added = set()
    for un in RS.units[RS.pos:]:
        if un[0][0].needs and not un[0][0].text:
            for d in (1, 2):
                for m in range(4):
                    if ("pl", d, m) in mk and (d, m) not in added: addp(d, m); added.add((d, m))
        s.u.append([un[0], None])
    stamp(s, "poll4")
    for d in (1, 2):
        for m in range(4):
            if (d, m) not in added: addp(d, m)
    sM4 = [57, 58, 59, 64]
    for m in range(4):
        addp(3, m)
        stamp(s, "r%d" % m)
        s.vm("buffer_store_dwordx4 %s, v%d, s[8:11], s%d offen %s" % (Q(RB(0, m)), vOO, sM4[m], cfg.get("ost", SC)))
        s("s_nop 1")
        s.vm("buffer_store_dwordx4 %s, v%d, s[8:11], s%d offen offset:64 %s" % (Q(RB(1, m)), vOO, sM4[m], cfg.get("ost", SC)))
    prog.add(s.done())
    prog.emit(a)
    a("s_cmp_eq_u32 s%d, 31\ns_cbranch_scc0 L_noep\ns_cmp_eq_u32 s%d, 0\ns_cbranch_scc0 L_noep" % (sB, sJ))
    a("v_mov_b32 v40, 0x%x\ns_mov_b64 exec, 1\nbuffer_store_dword v%d, v40, s[36:39], 0 offen %s\ns_mov_b64 exec, -1" % (SM_EP, vTG, SC))
    a("L_noep:")
    if TS:
        a("s_waitcnt vmcnt(0)\ns_memrealtime s[100:101]\ns_waitcnt lgkmcnt(0)\nv_writelane_b32 v%d, s100, %d" % (vTS, len(names) - 1))
        a("s_cmp_lg_u32 s%d, %d\ns_cbranch_scc1 L_end" % (sW, cfg.get("tsw", 0)))
        if cfg.get("leak"):
            A, B = cfg["leak"].split(":")
            a("s_cmp_lg_u32 s2, %d\ns_cbranch_scc1 L_end" % cfg.get("leakwg", 100))
            a("v_readlane_b32 s64, v%d, %d\nv_readlane_b32 s65, v%d, %d\ns_nop 4\ns_sub_u32 s64, s65, s64\ns_mul_i32 s64, s64, %d\ns_min_u32 s64, s64, 200000" % (vTS, names.index(A), vTS, names.index(B), cfg.get("leakk", 8)))
            a("L_leak:\ns_memrealtime s[66:67]\ns_waitcnt lgkmcnt(0)\ns_sub_u32 s66, s66, s100\ns_cmp_lt_u32 s66, s64\ns_cbranch_scc1 L_leak")
        ws_srd(a, 12, WS_TS, 16384)
        a("s_lshl_b32 s75, s2, 6\nv_lshlrev_b32 v1, 2, v0\ns_mov_b64 exec, 0xffff\nbuffer_store_dword v%d, v1, s[12:15], s75 offen" % vTS)
    a("L_end:")
    a("s_endpgm")
    if ".p2align 12" in a.lines and cfg.get("oolf", 1):
        i = a.lines.index(".p2align 12"); a.lines[i:i] = ool.lines
    else: a.lines += ool.lines
    a("L_codeend:")
    return name, a

def inst_sizes(lines):
    import subprocess, tempfile, os, re
    d = tempfile.mkdtemp()
    und = sorted(set(re.findall(r"L_trB?\d+\b", "\n".join(lines))))
    open(d + "/a.s", "w").write('.amdgcn_target "amdgcn-amd-amdhsa--gfx950"\n' + "\n".join(l for l in lines if not l.startswith(".p2align 12")) + "\n" + "".join(u + ":\n" for u in und))
    subprocess.check_call(["clang", "-x", "assembler", "-target", "amdgcn-amd-amdhsa", "-mcpu=gfx950", "-c", d + "/a.s", "-o", d + "/a.o"])
    o = subprocess.check_output(["llvm-objdump", "-d", "--mcpu=gfx950", d + "/a.o"], text=True)
    sz = [4 * len(m.group(1).split()) for m in re.finditer(r"// [0-9A-F]+: ([0-9A-F ]+)", o)]
    n = sum(1 for l in lines if parse(l))
    assert n == len(sz), (n, len(sz))
    return sz

def add_stubs(lines, cfg):
    NL = 1; step = cfg.get("tr_step", 128)
    sz = iter(inst_sizes(lines)); size = [next(sz) if parse(l) else 0 for l in lines]
    i0 = lines.index("L_main:"); iend = lines.index("L_end:")
    out = lines[:i0 + 1]; off = 0; targets = [4096 * p + step * k for p in range(0, 40) for k in range(NL)]
    n = 0; pos = []
    def penalty(i):
        if not lines[i - 1].startswith("v_mfma"): return 0 if not any(l.startswith("v_mfma") for l in lines[max(0, i - 6):i + 6]) else 1
        j = i; c = ["S"]
        while not lines[j].startswith("v_mfma") and j - i < 8:
            try: c.append(opclass(lines[j]))
            except AssertionError: return 0
            j += 1
        t = gap_time(c)
        return 0 if (t is not None and t <= 16) else 1
    for i in range(i0 + 1, len(lines)):
        if i < iend and size[i] and off >= targets[n] and (penalty(i) == 0 or off + size[i] > targets[n] + 56):
            out.append("L_tr%d:" % n); out.append(("STUB", n)); off += 4; n += 1
        out.append(lines[i]); off += size[i]
    n1 = min(n, cfg.get("tr_n", 14))
    res = []
    for l in out:
        if isinstance(l, tuple):
            k = l[1]; nx = k + 4
            if k < n1: res.append("s_cbranch_execz %s" % ("L_tr%d" % nx if nx < n1 else "L_trret"))
            elif cfg.get("tr2", 1): res.append("s_cbranch_execz %s" % ("L_tr%d" % nx if nx < n else "L_trret2"))
            else: res.append("s_nop 0")
        elif "L_trB" in l:
            k = n1 + int(l[-1]); res.append(l.replace("L_trB" + l[-1], "L_tr%d" % k if k < n else "L_trret2"))
        else: res.append(l)
    if cfg.get("verbose"): print("pages", n)
    return res

def build(cfg):
    name, a = gen(cfg)
    hdr = open("cdna_kernels/%s.s.ref" % NAME).read().split("; Override launch")[0]
    out = hdr + "; @launch grid=(256,1,1) block=(256,1,1) lds=163840\n"
    out += '.amdgcn_target "amdgcn-amd-amdhsa--gfx950"\n'
    lines = pad_hazards([l for l in a.lines if l], cfg.get("verbose", 0) > 1)
    if cfg.get("tramp", 1): lines = add_stubs(lines, cfg)
    if cfg.get("verbose"): print(gap_report(lines))
    if cfg.get("lsc"): lines = [l.replace("sc0 sc1", cfg["lsc"]) if l.startswith("buffer_load") else l for l in lines]
    la = cfg.get("laux"); da = cfg.get("daux")
    if la: lines = [l + " " + la if (l.startswith("buffer_load_dwordx4 a[") and "sc1" not in l) else l for l in lines]
    if da: lines = [l.replace(" lds", " %s lds" % da) if l.endswith(" lds") else l for l in lines]
    out += "\n".join(lines) + "\n"
    if cfg.get("cyc"): out = out.replace("s_memrealtime", "s_memtime")
    b = Asm(); kernel_desc(b, name, 512, accum=256); out += b.text()
    return out

if __name__ == "__main__":
    cfg = {}
    for kv in sys.argv[2:]:
        k, v = kv.split("=")
        try: v = int(v)
        except ValueError:
            try: v = float(v)
            except ValueError: v = v.replace("+", " ")
        cfg[k] = v
    open(sys.argv[1], "w").write(build(cfg))
```

```python
import sys, math, struct
from asmlib import *

NAME = "parallel_sum__ssm_conv_s5__glu_gated_geglu__prompt"
KX, KLRE, KLIM, KBRE, KBIM, KCRE, KCIM, KLDT, KDSK, KBX, KWG, KWU, KWD, KOUT, KDBG, KWS = [8 * i for i in range(16)]
WS_XN = 0
WS_H = 0x400000
H_BLK = 176 * 4096
WS_SM = 0x1A00000
SM_AG = 0; SM_ST = 0x40000; SM_EP = 0x48000; SM_F1 = 0x50000; SM_F1B = 0x60000; SM_F3 = 0x70000; SM_F4 = 0xB0000; SM_SIZE = 0xF0000
WS_TS = 0x1B00000
WS_PART = 0x2000000
NSTAMPS = [16]
SPLIT_LAYOUT = True
XN_DIRECT = 0
STAMPS = []

def f2u(x): return struct.unpack("<I", struct.pack("<f", x))[0]
def fx(x): return "0x%08x" % f2u(x)
P = lambda r: "v[%d:%d]" % (r, r + 1)
Q = lambda r: "v[%d:%d]" % (r, r + 3)
LOG2E = 1.4426950408889634
K = lambda v: (lambda it: v)

def ws_srd(a, r, off, size):
    a("s_add_u32 s%d, s6, 0x%x\ns_addc_u32 s%d, s7, 0\ns_and_b32 s%d, s%d, 0xffff\ns_mov_b32 s%d, 0x%x\ns_mov_b32 s%d, 0x20000" % (r, off, r + 1, r + 1, r + 1, r + 2, size, r + 3))

def mfma16(d, A, B, zero=False):
    return "v_mfma_f32_16x16x32_bf16 %s, %s, %s, %s" % (R(d[0], d[1], 4), R(A[0], A[1], 4), R(B[0], B[1], 4), "0" if zero else R(d[0], d[1], 4))

def cmul_pk(a, dr, di, ar, ai, br, bi, t):
    a("v_pk_mul_f32 %s, %s, %s" % (P(t), P(ai), P(bi)))
    a("v_pk_fma_f32 %s, %s, %s, %s neg_lo:[0,0,1] neg_hi:[0,0,1]" % (P(t), P(ar), P(br), P(t)))
    a("v_pk_mul_f32 %s, %s, %s" % (P(t + 2), P(ar), P(bi)))
    a("v_pk_fma_f32 %s, %s, %s, %s" % (P(di), P(ai), P(br), P(t + 2)))
    a("v_mov_b32 v%d, v%d\nv_mov_b32 v%d, v%d" % (dr, t, dr + 1, t + 1))

def horner_pk(a, s, L, e, d):
    a("v_pk_fma_f32 %s, %s, %s, %s" % (P(d), P(L), P(s), P(e)))
    a("v_pk_fma_f32 %s, %s, %s, %s" % (P(d + 2), P(L), P(s + 2), P(e + 2)))
    a("v_pk_fma_f32 %s, %s, %s, %s neg_lo:[1,0,0] neg_hi:[1,0,0]" % (P(d), P(L + 2), P(s + 2), P(d)))
    a("v_pk_fma_f32 %s, %s, %s, %s" % (P(d + 2), P(L + 2), P(s), P(d + 2)))

def horner_sc(a, s, L, e):
    for T in range(2):
        a("v_fmac_f32 v%d, v%d, v%d" % (e + T, L + T, s + T)); a("v_fmac_f32 v%d, v%d, v%d" % (e + 2 + T, L + T, s + 2 + T))
    for T in range(2):
        a("v_fma_f32 v%d, -v%d, v%d, v%d" % (e + T, L + 2 + T, s + 2 + T, e + T)); a("v_fmac_f32 v%d, v%d, v%d" % (e + 2 + T, L + 2 + T, s + T))

def gelu_block(a, items, CC, T):
    for k, (g, u, o) in enumerate(items): a("v_pk_mul_f32 %s, %s, %s" % (P(T + 2 * k), P(g), P(g)))
    for k, (g, u, o) in enumerate(items): a("v_pk_fma_f32 %s, %s, %s, %s op_sel:[0,1,0] op_sel_hi:[1,1,0]" % (P(T + 2 * k), P(T + 2 * k), P(CC), P(CC)))
    for k, (g, u, o) in enumerate(items): a("v_pk_mul_f32 %s, %s, %s" % (P(T + 2 * k), P(T + 2 * k), P(g)))
    for k, (g, u, o) in enumerate(items):
        a("v_exp_f32 v%d, v%d" % (T + 2 * k, T + 2 * k)); a("v_exp_f32 v%d, v%d" % (T + 2 * k + 1, T + 2 * k + 1))
        a("v_pk_mul_f32 %s, %s, %s" % (P(u), P(g), P(u)))
    for k, (g, u, o) in enumerate(items): a("v_pk_add_f32 %s, %s, 1.0 op_sel_hi:[1,0]" % (P(T + 2 * k), P(T + 2 * k)))
    for k, (g, u, o) in enumerate(items):
        a("v_rcp_f32 v%d, v%d" % (T + 2 * k, T + 2 * k)); a("v_rcp_f32 v%d, v%d" % (T + 2 * k + 1, T + 2 * k + 1))
    for k, (g, u, o) in enumerate(items): a("v_pk_mul_f32 %s, %s, %s" % (P(u), P(u), P(T + 2 * k)))
    for k, (g, u, o) in enumerate(items): a("v_cvt_pk_bf16_f32 v%d, v%d, v%d" % (o, u, u + 1))

class Seq:
    def __init__(self): self.u = []
    def __call__(self, s):
        for l in s.split("\n"):
            l = l.strip()
            assert not l.startswith(("buffer_", "global_", "ds_")), ("uncounted memory op", l)
            self.u.append([[Op(l)], None])
    def atom(self, ops, early=None): self.u.append([[o if isinstance(o, Op) else Op(o) for o in ops], early])
    def vm(self, text, tag=None, needs=None, early=None):
        if needs: self.wait(needs, early=early); early = None
        self.u.append([[Op(text, "vm", K(tag) if tag is not None else None)], early])
    def lg(self, text, tag=None, needs=None):
        if needs: self.wait(needs)
        self.u.append([[Op(text, "lg", K(tag) if tag is not None else None)], None])
    def wait(self, needs, drain=None, early=None): self.u.append([[Op("", needs=K(needs) if needs else None, drain=drain)], early])
    def op(self, o, early=None): self.u.append([[o], early])
    def delay(self, n):
        self._d = n; i = len(self.u) - 1
        self.u.append([[Op("")], lambda res, n=n: res[-1] + n])
    def at(self, g): self.u.append([[Op("")], g])
    def done(self):
        o = [x for un, _ in self.u for x in un]; self.u = []; return o
    def units(self):
        u = self.u; self.u = []; return u

def order_mfma(groups):
    ch = [groups[2 * p][1] == groups[2 * p + 1][1] for p in range(len(groups) // 2)]
    out = []; up = True
    for p, c in enumerate(ch):
        if c:
            for m in (range(4) if up else range(3, -1, -1)): out += [(2 * p, m), (2 * p + 1, m)]
            up = not up
        else:
            for G in (2 * p, 2 * p + 1):
                out += [(G, m) for m in (range(4) if up else range(3, -1, -1))]; up = not up
    return out, (lambda G: G & ~1 if ch[G // 2] else G), (lambda G: G | 1 if (G >= 0 and ch[G // 2]) else G)

W_ST = 28672; U_OFF = 14336
B_BASE = 131072; B_ST = 8192
LN_LDS = 65536 + W_ST

def gen(cfg):
    name = NAME + "_kernel"
    a = Asm(); kernel_header(a, name)
    ool = Asm()
    TS = cfg.get("ts")
    names = ["start"] + cfg.get("stamps", "flag1 poll1 loop1 end1 p01 pub loop2 end2 poll4").split() + ["end"]
    STAMPS[:] = names; NSTAMPS[0] = len(names)
    vTS = 15; RC = []
    def stamp(s, nm):
        if TS and nm in names: s.atom(["s_memrealtime s[100:101]", "s_waitcnt lgkmcnt(0)", "v_writelane_b32 v%d, s100, %d" % (vTS, names.index(nm))])
    SC = cfg.get("sc", "sc0 sc1")
    FS = cfg.get("f1s", 128)
    prog = Prog(); s = Seq()
    sJ, sI, sW, sB, sQ, sTN, sTAG = 60, 61, 62, 63, 52, 53, 3
    sMW, sM3, sMB, sKW, sKB, sKX, sCNT = 54, 55, 56, 57, 58, 59, 81
    sPAs, sKPA, sKPB, sPBs = 76, 77, 78, 80
    def poll(s, nm, loadtext, dst, tagneed, mask=None, early=None):
        s.wait([tagneed], early=early)
        s.atom(["%s_chk:" % nm, "v_cmp_ne_u32 vcc, s%d, v%d" % (sTAG, dst), "s_and_b64 vcc, vcc, %s" % (mask or "exec"), "s_cbranch_scc1 %s_retry" % nm, "%s_ok:" % nm])
        ool("%s_retry:" % nm)
        if cfg.get("rc"): RC.append(nm); ool("v_readlane_b32 s100, v15, %d\ns_nop 3\ns_add_u32 s100, s100, 100\nv_writelane_b32 v15, s100, %d" % (len(RC), len(RC)))
        ool("%s_r2:\ns_cmp_eq_u32 s79, 0\ns_cbranch_scc1 %s_ok\ns_sub_u32 s79, s79, 1\ns_sleep %d\n%s\ns_waitcnt vmcnt(0)\ns_branch %s_chk" % (nm, nm, cfg.get("psl", 1), loadtext, nm))
    def flag(s, text, needs, early=None):
        s.wait(needs, early=early)
        s.atom(["s_mov_b64 exec, %d" % (15 if "x4" in text else 1), Op(text, "vm"), "s_mov_b64 exec, -1"])

    s("s_cmp_ge_u32 s2, 256\ns_cbranch_scc1 L_end")
    if cfg.get("gx"): s("s_xor_b32 s2, s2, %d" % cfg["gx"])
    if TS: s("s_memrealtime s[100:101]")
    CP = cfg.get("cpf", 1)
    s("s_load_dwordx2 s[4:5], s[0:1], %d" % KX)
    s("s_load_dwordx2 s[6:7], s[0:1], %d" % KWS)
    s("s_load_dwordx4 s[12:15], s[0:1], %d" % KWG)
    s("s_load_dwordx4 s[24:27], s[0:1], %d" % KBRE)
    s("s_load_dwordx4 s[96:99], s[0:1], %d" % KLRE)
    s("s_load_dwordx4 s[92:95], s[0:1], %d" % KLDT)
    s("s_load_dwordx4 s[84:87], s[0:1], %d" % KWD)
    s("s_load_dwordx4 s[88:91], s[0:1], %d" % KCRE)
    if CP:
        s("s_getpc_b64 s[82:83]")
        s.atom(["L_pc:"])
        s("s_lshr_b32 s64, s2, 3\ns_mul_i32 s64, s64, 28\nv_add_u32 v3, s64, v0\nv_cmp_gt_u32 vcc, 64, v0\nv_cndmask_b32 v2, v3, v0, vcc\nv_lshlrev_b32 v2, 7, v2")
        s("v_min_u32 v2, L_codeend-L_pc-4, v2\nv_mov_b32 v3, 0\nv_lshl_add_u64 v[2:3], v[2:3], 0, s[82:83]")
        s("v_cmp_gt_u32 vcc, 92, v0\ns_and_saveexec_b64 s[66:67], vcc\ns_cbranch_execz L_nocp")
        s.atom([Op("global_load_dword a246, v[2:3], off")])
        s.atom(["L_nocp:", "s_mov_b64 exec, -1"])
    s("v_lshrrev_b32 v1, 6, v0\nv_and_b32 v0, 63, v0")
    s("v_readfirstlane_b32 s%d, v1" % sW)
    s("v_lshlrev_b32 v1, 4, v0")
    s("s_mov_b32 s79, 0x40000")
    s("s_bfe_u32 s%d, s2, 0x20001" % sQ)
    s("s_and_b32 s64, s2, 1\ns_lshl_b32 s64, s64, 2\ns_lshr_b32 s%d, s2, 6\ns_add_u32 s%d, s%d, s64" % (sI, sI, sI))
    s("s_bfe_u32 s%d, s2, 0x30003" % sTN)
    s("s_lshl_b32 s%d, s%d, 3\ns_add_u32 s%d, s%d, s%d" % (sJ, sQ, sJ, sJ, sTN))
    s("s_lshl_b32 s%d, s%d, 2\ns_add_u32 s%d, s%d, s%d" % (sB, sI, sB, sB, sW))
    s("s_and_b32 s64, s2, 1\ns_lshl_b32 s64, s64, 1\ns_lshr_b32 s65, s%d, 1\ns_add_u32 s64, s64, s65\ns_lshl_b32 s64, s64, 4" % sW)
    s("s_lshl_b32 s65, s%d, 1\ns_add_u32 s64, s64, s65" % sQ)
    s("s_lshr_b32 s66, s2, 3\ns_lshl_b32 s65, s66, 6\ns_add_u32 s64, s64, s65")
    s("s_lshl_b32 s67, s64, 11\ns_and_b32 s68, s%d, 1\ns_lshl_b32 s65, s68, 8\ns_add_u32 s67, s67, s65" % sW)
    LQ = cfg.get("lq", 1)
    if LQ: s("v_and_b32 v48, 15, v0\nv_bfe_u32 v56, v0, 1, 1\nv_and_b32 v57, 1, v0\nv_lshl_add_u32 v56, v57, 3, v56\nv_lshrrev_b32 v57, 2, v0\nv_lshlrev_b32 v40, 11, v56\nv_lshl_add_u32 v40, v57, 4, v40")
    else: s("v_and_b32 v48, 15, v0\nv_lshrrev_b32 v56, 5, v0\nv_bfe_u32 v57, v0, 4, 1\nv_lshl_add_u32 v56, v57, 3, v56\nv_lshlrev_b32 v40, 11, v56\nv_lshl_add_u32 v40, v48, 4, v40")
    s("s_mov_b32 s10, %d\ns_mov_b32 s11, 0x20000" % (2048 * 2048))
    s("s_waitcnt lgkmcnt(0)")
    if TS: s("v_writelane_b32 v%d, s100, 0" % vTS)
    if cfg.get("rc"): s("v_mov_b32 v15, 0")
    stamp(s, "karg")
    s("s_mov_b32 s8, s4\ns_and_b32 s9, s5, 0xffff")
    for q in range(4): s.vm("buffer_load_dwordx4 %s, v40, s[8:11], s67 offen offset:%d" % (Q(64 + 4 * q), 512 * q), ("x", q))
    s("s_add_u32 s70, s6, 0x%x\ns_addc_u32 s71, s7, 0" % (WS_SM + SM_EP))
    s("s_load_dword s%d, s[70:71], 0" % sTAG)
    srd(s, 16, 14, 15, 1024 * 7168); srd(s, 12, 12, 13, 1024 * 7168)
    srd(s, 28, 26, 27, 1024 * 2048); srd(s, 24, 24, 25, 1024 * 2048)
    s("s_cmp_ge_u32 s%d, 2" % sW)
    s("s_cselect_b32 s20, s16, s12\ns_cselect_b32 s21, s17, s13\ns_mov_b32 s22, %d\ns_mov_b32 s23, 0x20000" % (1024 * 7168))
    ws_srd(s, 36, WS_SM, SM_SIZE)
    s("v_lshrrev_b32 v49, 4, v0")
    WGF = 1; vP1 = 63
    s("v_and_b32 v60, 31, v0\nv_lshlrev_b32 v60, 2, v60\ns_lshl_b32 s81, s%d, 7\ns_add_u32 s81, s81, 0x%x" % (sB, SM_F1B))
    s("v_and_b32 v63, 7, v0\nv_lshlrev_b32 v63, 6, v63\ns_lshl_b32 s75, s%d, 11\ns_lshl_b32 s65, s%d, 9\ns_add_u32 s75, s75, s65\ns_add_u32 s75, s75, 0x%x" % (sB, sQ, SM_F1))
    FT = cfg.get("ftouch", 0)
    if FT & 4: s.vm("buffer_load_dword a246, v63, s[36:39], s75 offen %s" % SC)
    if FT & 1: s.vm("buffer_load_dword a246, v60, s[36:39], s81 offen %s" % SC)
    s("v_mov_b32 v41, -1\nv_lshlrev_b32 v42, 2, v0\ns_xor_b32 s69, s2, 0xf8\ns_lshl_b32 s69, s69, 10\ns_lshl_b32 s65, s%d, 8\ns_add_u32 s69, s69, s65" % sW)
    s.vm("buffer_store_dword v41, v42, s[36:39], s69 offen %s" % SC, "agfill")
    vWA, vBA0, vBA1, vWA2, vW0, vW3, vB, vJ, vPA, vPB = 2, 3, 4, 5, 6, 9, 10, 12, 13, 14
    s("s_lshl_b32 s70, s66, 1\ns_and_b32 s65, s2, 1\ns_add_u32 s70, s70, s65")
    s("s_mul_i32 s69, s70, 7168\ns_mul_i32 s65, s%d, 1792\ns_add_u32 s69, s69, s65\nv_and_b32 v40, 31, v0\nv_min_u32 v40, 13, v40\nv_lshl_add_u32 v44, v40, 7, s69" % sQ)
    s("v_and_b32 v45, 3, v0\ns_lshl_b32 s69, s%d, 8\ns_lshl_b32 s65, s70, 2\ns_add_u32 s69, s69, s65\nv_add_u32 v45, s69, v45\nv_lshlrev_b32 v45, 11, v45" % sQ)
    if cfg.get("pfd"):
        n_ = cfg["pfd"]
        s("s_and_b32 s65, s2, 1\ns_mul_i32 s69, s65, %d\ns_add_u32 s69, s69, 7168\ns_mul_i32 s65, s65, %d\ns_add_u32 s65, s65, 8192\nv_cmp_gt_u32 vcc, 32, v0" % (-2 * 7168, -2 * 8192))
        s("v_mov_b32 v40, s69\nv_mov_b32 v43, %d\nv_cndmask_b32 v40, v40, v43, vcc\nv_add_u32 v44, v44, v40\nv_mov_b32 v40, s65\nv_mov_b32 v43, %d\nv_cndmask_b32 v40, v40, v43, vcc\nv_add_u32 v45, v45, v40" % (n_ * 64 * 7168, n_ * 128))
    s("s_mov_b32 s69, %d\ns_cmp_ge_u32 s%d, 2\ns_cselect_b64 vcc, -1, 0\nv_cndmask_b32 v%d, v44, v45, vcc\ns_cselect_b32 s%d, 128, s69" % (64 * 7168, sW, vPA, sPAs))
    s("s_cselect_b32 s40, s24, s12\ns_cselect_b32 s41, s25, s13\ns_cselect_b32 s69, s28, s16\ns_cselect_b32 s65, s29, s17\ns_cselect_b32 s42, s26, s14")
    s("s_bitcmp1_b32 s%d, 0\ns_cselect_b32 s40, s69, s40\ns_cselect_b32 s41, s65, s41\ns_mov_b32 s43, 0x20000\ns_mov_b32 s%d, 0" % (sW, sKPA))
    def pfa(s):
        s.vm("buffer_load_dword a246, v%d, s[40:43], s%d offen" % (vPA, sKPA)); s("s_add_u32 s%d, s%d, s%d" % (sKPA, sKPA, sPAs))
    def pfb(s):
        s.vm("buffer_load_dword a246, v%d, s[44:47], s%d offen" % (vPB, sKPB)); s("s_add_u32 s%d, s%d, s%d" % (sKPB, sKPB, sPBs))
    ND = cfg.get("dup0", 0)
    if ND:
        s("s_and_b32 s65, s2, 1\ns_lshl_b32 s65, s65, 1\ns_sub_u32 s65, 1, s65\ns_cmp_ge_u32 s%d, 2\ns_mov_b32 s69, 7168\ns_cselect_b32 s69, 8192, s69\ns_mul_i32 s69, s69, s65" % sW)
        s("v_lshrrev_b32 v43, 5, v0\nv_mul_lo_u32 v43, v43, s69\nv_add_u32 v%d, v%d, v43" % (vPA, vPA))
        for _ in range(ND): pfa(s)
        s("v_sub_u32 v%d, v%d, v43" % (vPA, vPA))
    if cfg.get("pfd"): s("s_mov_b32 exec_lo, 0")
    for _ in range(cfg.get("pf_t0", 3) - ND): pfa(s)
    if cfg.get("pfd"): s("s_mov_b64 exec, -1\ns_mul_i32 s%d, s%d, %d" % (sKPA, sPAs, cfg.get("pf_t0", 3) - cfg["pfd"]))
    s("s_and_b32 s71, s%d, 1\ns_lshl_b32 s71, s71, 1\ns_mul_i32 s72, s%d, 224\ns_and_b32 s73, s%d, 1\ns_add_u32 s73, s73, 12" % (sJ, sJ, sW))
    for k in range(4):
        if k < 3: s("s_add_u32 s69, s%d, %d\ns_lshl_b32 s69, s69, 6" % (sW, 4 * k))
        else: s("s_lshl_b32 s69, s73, 6")
        s("v_add_u32 v40, s69, v0\nv_mul_u32_u24 v44, 4682, v40\nv_lshrrev_b32 v44, 16, v44\nv_mul_u32_u24 v45, 14, v44\nv_sub_u32 v45, v40, v45")
        s("v_add_u32 v45, s71, v45\nv_subrev_u32 v43, 14, v45\nv_min_u32 v45, v45, v43")
        s("v_lshrrev_b32 v43, 1, v44\nv_xor_b32 v43, v43, v44\nv_and_b32 v43, 4, v43\nv_mul_u32_u24 v43, 3, v43\nv_xor_b32 v44, v44, v43")
        s("v_mul_u32_u24 v44, 7168, v44\nv_lshl_add_u32 v44, v45, 4, v44\nv_add_u32 v%d, s72, v44" % (vW0 + k))
    s("v_lshrrev_b32 v50, 3, v0\ns_lshl_b32 s69, s%d, 3\nv_add_u32 v40, s69, v50\nv_bfe_u32 v44, v40, 1, 3\nv_and_b32 v51, 7, v0\nv_xor_b32 v44, v44, v51" % sW)
    s("v_lshlrev_b32 v47, 11, v40\nv_lshl_add_u32 v47, v44, 4, v47")
    s("s_lshl_b32 s69, s%d, 16\nv_add_u32 v%d, s69, v47" % (sJ, vB))
    s("s_lshl_b32 s%d, s%d, 10\ns_lshl_b32 s%d, s73, 10" % (sMW, sW, sM3))
    s("s_cmp_ge_u32 s%d, 2\ns_cselect_b32 s69, %d, 0\ns_add_u32 s%d, s%d, s69\ns_add_u32 s%d, s%d, %d" % (sW, U_OFF, sM3, sM3, sMB, sMW, B_BASE))
    s("s_lshl_b32 s65, s%d, 9\ns_add_u32 s65, s65, 57344\nv_lshl_add_u32 v52, v0, 3, s65\nv_xor_b32 v54, 512, v52" % sW)
    if LQ: s("v_lshlrev_b32 v55, 12, v49\nv_lshrrev_b32 v44, 2, v48\nv_lshl_add_u32 v55, v44, 8, v55\nv_and_b32 v44, 48, v1\nv_add_u32 v55, v55, v44")
    else: s("v_lshrrev_b32 v55, 2, v48\nv_lshlrev_b32 v55, 12, v55\nv_and_b32 v44, 3, v0\nv_lshl_add_u32 v55, v44, 8, v55\nv_lshl_add_u32 v55, v49, 4, v55")
    s("s_lshl_b32 s70, s66, 17\ns_lshl_b32 s67, s%d, 10\ns_add_u32 s70, s70, s67\ns_and_b32 s67, s2, 1\ns_lshl_b32 s67, s67, 7\ns_add_u32 s70, s70, s67" % sQ)
    s("s_lshr_b32 s67, s%d, 1\ns_lshl_b32 s67, s67, 6\ns_add_u32 s70, s70, s67\ns_lshl_b32 s67, s68, 14\ns_add_u32 s70, s70, s67" % sW)
    s("s_add_u32 s71, s70, 32768\ns_add_u32 s72, s70, 65536\ns_add_u32 s73, s70, 98304")
    s("s_lshl_b32 s74, s2, 7\ns_lshr_b32 s67, s%d, 1\ns_lshl_b32 s67, s67, 6\ns_add_u32 s74, s74, s67\ns_add_u32 s74, s74, 0x%x" % (sW, SM_ST))
    ws_srd(s, 48, WS_XN, 0x400000)
    dma_items = [(vW0, 12, sKW, sMW, 0), (vW0 + 1, 12, sKW, sMW, 4096), (vW0 + 2, 12, sKW, sMW, 8192), (vW3, 20, sKW, sM3, 0),
                 (vW0, 16, sKW, sMW, U_OFF), (vW0 + 1, 16, sKW, sMW, U_OFF + 4096), (vW0 + 2, 16, sKW, sMW, U_OFF + 8192),
                 (vB, 24, sKB, sMB, 0), (vB, 28, sKB, sMB, 4096)]
    def dma1(s, st, k, early=None):
        v, sr, so, mb, off = dma_items[k]
        isb = mb == sMB
        base = ((st >> 1) & 1) * (16384 if isb else 65536) + (st & 1) * (B_ST if isb else W_ST)
        if k == 0: s("s_mov_b32 s%d, %d" % (sKW, st * 64 * 7168))
        if k == 7: s("s_mov_b32 s%d, %d" % (sKB, st * 128))
        s("s_add_u32 m0, s%d, %d" % (mb, off + base))
        s.op(Op("buffer_load_dwordx4 v%d, s[%d:%d], s%d offen lds" % (v, sr, sr + 3, so), "vm", K(("D", st, k))), early)
    CH1 = cfg.get("ch1", 1)
    xalloc = {}; xprev = {}; fifo = [(("a", r), None) for r in (96, 112, 128, 144, 192)]
    for u in range(32):
        if u == 26: xalloc[u] = ("v", 48); xprev[u] = None; continue
        xalloc[u], xprev[u] = fifo.pop(0); fifo.append((xalloc[u], u))
    aX, aW, NWB = 96, 208, 8
    def xload(s, u, m, early=None):
        if m == 0: s("s_mov_b32 s%d, %d" % (sKX, u * 4096))
        s.op(Op("buffer_load_dwordx4 %s, v%d, s[8:11], s%d offen offset:%d" % (R(xalloc[u][0], xalloc[u][1] + 4 * m, 4), 1, sKX, 1024 * m), "vm", K(("X", u, m))), early)
    def pro_stage(st):
        for k in range(9): dma1(s, st, k)
    ND0P = cfg.get("d_t0", 0)
    for k in range(ND0P): dma1(s, 0, k)
    EP_LDS = 131072; EPW = 8192
    PK = dict(C=252, CA=253, TOK=254, COL=255, D=240, TA=242, TRW=243, TRR=244, AG=245)
    s("v_lshrrev_b32 v40, 1, v48\nv_xor_b32 v40, v40, v49\nv_lshlrev_b32 v40, 4, v40\nv_lshl_add_u32 v40, v48, 7, v40")
    s("v_add_u32 v%d, %d, v40\nv_xor_b32 v%d, 64, v%d" % (vBA0, B_BASE, vBA1, vBA0))
    s("v_lshrrev_b32 v40, 1, v49\nv_lshlrev_b32 v40, 4, v40\nv_and_b32 v41, 1, v49\nv_lshlrev_b32 v41, 2, v41\nv_lshrrev_b32 v50, 2, v48\nv_add3_u32 v11, v40, v41, v50")
    s("v_mul_u32_u24 v40, 224, v11\nv_and_b32 v51, 3, v0\nv_lshl_add_u32 v%d, v51, 3, v40\nv_add_u32 v%d, 0x10000, v%d" % (vWA, vWA2, vWA))
    s("s_lshl_b32 s65, s%d, 17\ns_add_u32 s8, s6, s65\ns_addc_u32 s9, s7, 0\ns_and_b32 s9, s9, 0xffff\ns_mov_b32 s10, 0x20000" % sB)
    s("s_lshl_b32 s83, s2, 4\ns_lshl_b32 s65, s%d, 2\ns_add_u32 s83, s83, s65" % sW)
    if WGF: s("s_and_b32 s82, s2, 7\ns_lshl_b32 s82, s82, 6\ns_lshl_b32 s65, s66, 11\ns_add_u32 s82, s82, s65\ns_lshl_b32 s65, s%d, 9\ns_add_u32 s82, s82, s65\ns_add_u32 s82, s82, 0x%x" % (sW, SM_F1))
    else: s("s_add_u32 s82, s83, 0x%x" % SM_F1)
    s("s_add_u32 s83, s83, 0x%x" % SM_F1B)
    def tramp():
        s("s_mov_b64 exec, 0")
        for w in range(1, 4): s("s_cmp_eq_u32 s%d, %d\ns_cbranch_scc1 L_tr%d" % (sW, w, w))
        s("s_branch L_tr0")
        s.atom(["L_trret:"])
        s("s_mov_b64 exec, -1")
    TRP = cfg.get("tr_at", 2) if cfg.get("tramp", 1) else -1
    if TRP == 0: tramp()
    stamp(s, "prex")
    F = 80; D = 112; T0 = 144; ST = 28
    ln = Seq()
    def unpack(q):
        for i in range(4 * q, 4 * q + 4): ln("v_lshlrev_b32 v%d, 16, v%d\nv_and_b32 v%d, 0xffff0000, v%d" % (F + 2 * i, 64 + i, F + 2 * i + 1, 64 + i))
    def pack(q, dst=64):
        for i in range(4 * q, 4 * q + 4): ln("v_cvt_pk_bf16_f32 v%d, v%d, v%d" % (dst + i, F + 2 * i, F + 2 * i + 1))
    def hsum(dst):
        ln("v_pk_add_f32 %s, %s, %s\nv_add_f32 v%d, v%d, v%d" % (P(T0), P(T0), P(T0 + 2), T0, T0, T0 + 1))
        for sh in ((4, 8) if LQ else (1, 2, 4, 8)): ln("v_add_f32_dpp v%d, v%d, v%d row_ror:%d row_mask:0xf bank_mask:0xf" % (T0, T0, T0, sh))
        if LQ:
            for w_ in (16, 32): ln("v_mov_b32 v%d, v%d\nv_permlane%d_swap_b32 v%d, v%d\nv_add_f32 v%d, v%d, v%d" % (T0 + 1, T0, w_, T0, T0 + 1, T0, T0, T0 + 1))
        ln("v_mul_f32 v%d, %s, v%d" % (dst, fx(1.0 / 512), T0))
    for q in range(4):
        ln.wait([("x", q)])
        if q == 3:
            stamp(ln, "xin")
            for _ in range(cfg.get("pf_t1", 0)): pfa(ln)
            i_d0 = len(ln.u)
        unpack(q)
        if q == 0: ln("v_pk_add_f32 %s, %s, %s\nv_pk_add_f32 %s, %s, %s" % (P(T0), P(F), P(F + 2), P(T0 + 2), P(F + 4), P(F + 6)))
        else:
            for i in range(4): ln("v_pk_add_f32 %s, %s, %s" % (P(T0 + 2 * (i % 2)), P(T0 + 2 * (i % 2)), P(F + 8 * q + 2 * i)))
    hsum(ST)
    for i in range(16): ln("v_pk_add_f32 %s, %s, %s op_sel_hi:[1,0] neg_lo:[0,1] neg_hi:[0,1]" % (P(D + 2 * i), P(F + 2 * i), P(ST)))
    for i in range(16):
        if i < 2: ln("v_pk_mul_f32 %s, %s, %s" % (P(T0 + 2 * i), P(D + 2 * i), P(D + 2 * i)))
        else: ln("v_pk_fma_f32 %s, %s, %s, %s" % (P(T0 + 2 * (i % 2)), P(D + 2 * i), P(D + 2 * i), P(T0 + 2 * (i % 2))))
    hsum(ST + 1)
    ln.lg("ds_write_b64 v52, %s" % P(ST))
    ln.wait(None, drain=["lg"])
    ln("s_barrier")
    ln.lg("ds_read_b64 %s, v54" % P(T0), "oth")
    ln("s_mul_i32 s%d, s%d, 0x9E3779B1\ns_add_u32 s%d, s%d, 0x7F4A7C15\nv_mov_b32 v56, s%d" % (sTAG, sTAG, sTAG, sTAG, sTAG))
    ln.wait(["oth"])
    ln("v_sub_f32 v%d, v%d, v%d\nv_pk_add_f32 %s, %s, %s\nv_mul_f32 v%d, 0.5, v%d\nv_pk_mul_f32 %s, %s, 0.5 op_sel_hi:[1,0]\nv_fmac_f32 v%d, v%d, v%d" % (T0 + 2, ST, T0, P(ST), P(ST), P(T0), T0 + 2, T0 + 2, P(ST), P(ST), ST + 1, T0 + 2, T0 + 2))
    ln("v_cvt_pk_bf16_f32 v%d, v%d, v%d\nv_lshlrev_b32 v%d, 16, v%d\nv_and_b32 v%d, 0xffff0000, v%d" % (T0, ST, ST + 1, ST, T0, ST + 1, T0))
    ln(("v_add_f32 V, %s, V\nv_cvt_pk_bf16_f32 V, V, V\nv_and_b32 V, 0xffff0000, V\nv_sqrt_f32 V, V" % fx(1e-5)).replace("V", "v%d" % (ST + 1)))
    def sub(q):
        for i in range(4 * q, 4 * q + 4): ln("v_pk_add_f32 %s, %s, %s op_sel_hi:[1,0] neg_lo:[0,1] neg_hi:[0,1]" % (P(F + 2 * i), P(F + 2 * i), P(ST)))
    def fin(q):
        pack(q); unpack(q)
        for i in range(4 * q, 4 * q + 4): ln("v_pk_mul_f32 %s, %s, %s op_sel:[0,1] op_sel_hi:[1,1]" % (P(F + 2 * i), P(F + 2 * i), P(ST)))
        pack(q, 12 if q else 64)
    ln("v_cvt_pk_bf16_f32 V, V, V\nv_and_b32 V, 0xffff0000, V\nv_rcp_f32 V, V".replace("V", "v%d" % (ST + 1)))
    sub(0); fin(0)
    lu = ln.units()
    nD_0 = cfg.get("d_t1", 1 if ND0P else 0)
    if nD_0:
        dq = Seq(); step = cfg.get("d0_step", 10); pos = i_d0 + cfg.get("d0_off", 6)
        for k in range(ND0P, 9):
            dma1(dq, 0, k); un = dq.units()
            lu[pos:pos] = un[:-1]; pos += len(un); lu[pos:pos] = un[-1:]; pos += step
    s.u += lu
    xst = lambda q: "buffer_store_dwordx4 %s, v55, s[48:51], s%d offen %s" % (Q(12 + 4 * q if q else 64), 70 + q, SC)
    stst = lambda: (["s_mov_b64 exec, 15"] if LQ else ["s_mov_b32 exec_lo, 0x10001", "s_mov_b32 exec_hi, 0x10001"]) + [Op("buffer_store_dwordx4 %s, v%d, s[36:39], s74 offen %s" % (Q(ST), LQ, SC), "vm"), "s_mov_b64 exec, -1"]
    s.vm(xst(0), ("xn", 0))
    stamp(s, "xnst")
    for q in range(1, 4):
        sub(q); fin(q); s.u += ln.units()
    XBP = cfg.get("xbp", 0)
    TWO = 1
    nD_b = cfg.get("d_t3", 1)
    nD_c = cfg.get("d_t4", 2)
    nD_d = cfg.get("d_t5", 2)
    if TRP == 1: tramp()
    if WGF: s.wait([("xn", 0), "agfill"]); s("s_barrier")
    flag(s, "buffer_store_dwordx4 v[56:59], v1, s[36:39], s82 offen %s" % SC, [("xn", 0), "agfill"])
    stamp(s, "flag1")
    if TRP == 4: tramp()
    if cfg.get("bar_f"): s("s_barrier")
    stamp(s, "barf")
    def xb_now():
        s.atom(stst())
        for q in range(1, 4): s.vm(xst(q), ("xn", q))
    if XBP == 1: xb_now()
    for st in range(nD_0, nD_b): pro_stage(st)
    stamp(s, "d0")
    if TRP == 2: tramp()
    stamp(s, "trd")
    f1load = "buffer_load_dword v61, v%d, s[36:39], s75 offen %s" % (vP1, SC)
    s.vm(f1load, "f1")
    if XBP == 2: xb_now()
    for st in range(max(nD_0, nD_b), nD_c): pro_stage(st)
    nD_b = max(nD_0, nD_b, nD_c)
    if TRP == 3: tramp()
    stamp(s, "prepoll")
    if TRP >= 0:
        s("s_branch L_main"); s.atom([".p2align 12"]); s.atom(["L_main:"])
    poll(s, "P1", f1load, 61, "f1")
    stamp(s, "poll1")
    NXP = cfg.get("nxpre", 1 if cfg.get("ch1_first", 1) else 2)
    for u in range(NXP):
        for m in range(4): xload(s, u, m)
    if TRP == 5: tramp()
    if XBP == 3: xb_now()
    for _ in range(cfg.get("pf_t5", 0)): pfa(s)
    for st in range(nD_b, nD_d): pro_stage(st)
    nD_b = max(nD_b, nD_d)
    npfa = cfg.get("pf_t0", 3) + cfg.get("pf_t1", 0) + cfg.get("pf_t5", 0)
    NPB = cfg.get("npb", 4)
    tiles = []
    for q in range(7): tiles += [("G", q), ("U", q)]
    tiles += [("R", 0), ("I", 0), ("R", 1), ("I", 1)]
    def acc(t, m):
        k, q = t
        if k == "R": return ("v", 64 + 16 * q + 4 * m)
        if k == "I": return ("v", 96 + 16 * q + 4 * m)
        o = 32 * q + (16 if k == "U" else 0) + 4 * m
        return ("v", 128 + o) if q < 4 else ("a", o - 128)
    L0 = cfg.get("l1_lead", 4)
    KT = cfg.get("kt", 1)
    def stage_groups(st, tl):
        if CH1 and st >= cfg.get("ch1_first", 1): return [(2 * st + kk, ti) for ti in tl for kk in range(2)]
        return [(2 * st + kk, ti) for kk in range(2) for ti in tl]
    groups = []
    for st in range(14 if KT else 16): groups += stage_groups(st, range(18))
    if KT:
        for tl in (range(4), range(4, 18)):
            for st in (14, 15): groups += stage_groups(st, tl)
    NG = len(groups)
    mo, head, tail = order_mfma(groups)
    xfirst = {}; xlast = {}
    for G, (u, ti) in enumerate(groups): xfirst.setdefault(u, head(G)); xlast[u] = tail(G)
    parts = lambda G: [0, 1] if groups[G][1] < 14 else [None]
    def read1(G, part):
        u, ti = groups[G]; st, kk = divmod(u, 2); t = tiles[ti]; f = G % NWB
        if t[0] in "GU":
            off = (st & 1) * W_ST + (U_OFF if t[0] == "U" else 0) + kk * 7168 + part * 1792 + t[1] * 32
            return Op("ds_read_b64_tr_b16 %s, v%d offset:%d" % (R("a", aW + 4 * f + 2 * part, 2), (vWA, vWA2)[(st >> 1) & 1], off), "lg", K(("F", G, part)))
        off = (st & 3) * B_ST + (4096 if t[0] == "I" else 0) + t[1] * 2048
        return Op("ds_read_b128 %s, v%d offset:%d" % (R("a", aW + 4 * f, 4), vBA1 if kk else vBA0, off), "lg", K(("F", G, part)))
    rgap = {}
    for G in range(NG):
        f = G % 36
        g = G if (f < 33 or (KT and G >= 28 * 18)) else G - (1 if f < 35 else 2)
        rgap[G] = 4 * (g - L0) - 1
        assert rgap[G] >= 4 * tail(G - NWB) + 3
    gneed = lambda G: [("F", H, p) for H in range(G, tail(G) + 1) for p in parts(H)] + [("X", u, m) for u in range(32) if xfirst[u] == G for m in range(4)]
    s.wait([("D", 0, k) for k in range(9)])
    s("s_barrier")
    for G in range(NG):
        if rgap[G] < 0:
            for p in parts(G): s.op(read1(G, p))
    s.wait(gneed(0))
    stamp(s, "loop1")
    prog.add(s.done())
    mf = []
    for G, m in mo:
        u, ti = groups[G]; t = tiles[ti]
        xr = (xalloc[u][0], xalloc[u][1] + 4 * m); wr = ("a", aW + 4 * (G % NWB))
        mf.append(Op(mfma16(acc(t, m), wr, xr, u == 0) if t[0] in "GU" else mfma16(acc(t, m), xr, wr, u == 0)))
    sc = Sch(mf)
    for G in range(1, NG):
        w = Op("", needs=K(gneed(G)))
        w.keep = sum(len(parts(H)) for H in range(max(0, G - 2), min(NG, G + 10)) if rgap[H] == 4 * G - 1) == 2
        if w.keep or head(G) == G: sc.put(4 * G - 1, [w], 0)
    for G in range(NG):
        if rgap[G] >= 0: sc.put(rgap[G], [read1(G, p) for p in parts(G)], 1)
    bar = {}
    for st in range(15):
        bar[st] = rgap[xfirst[2 * st + 2]] - 1
        sc.put(bar[st], [Op("s_barrier", needs=K([("D", st + 1, k) for k in range(9)]), drain=["lg"] if st < 14 else None)], 0)
    items = []
    PFL = cfg.get("pfl", 9)
    pft = {}
    if cfg.get("pf1", 1):
        ev = cfg.get("pf_first", 70); st = npfa
        for k in range(npfa - cfg.get("pfd", 0), npfa): items.append((0, 2, ev - cfg.get("pfd_pre", 0), "a", k, 0))
        while st < 16:
            n = 0
            while st < 16 and (n < cfg.get("pf_max", 2) or (st == 15 and cfg.get("pf_l3", 1))) and (n == 0 or 144 * (st - 3 - PFL) < ev):
                e = max(int(144 * (st - 3 - PFL)), ev); pft[st] = e; items.append((0, 2, e, "a", st, 0)); st += 1; n += 1
            ev = e + cfg.get("pf_min", 288)
    for st in range(nD_b, 16):
        e = max(bar[st - 4] + 1 if st >= 4 else 0, pft.get(st, -1000) + cfg.get("pf_lat", 100))
        for k in range(9): items.append((bar[st - 1], 0, e, "d", st, k))
    for u in range(NXP, 32):
        e = 4 * xlast[xprev[u]] + 3 if xprev[u] is not None else 0
        for m in range(4): items.append((4 * xfirst[u] - 1, 1, max(e, 4 * xfirst[u] - (cfg.get("x_la", 230) if u != 8 else cfg.get("x_la8", 105))), "x", u, m))
    for k in range(1, 4 if not XBP else 0): items.append((0, 3, cfg.get("xb_first", 140) + cfg.get("xb_sp", 40) * (k - 1), "s", k, 0))
    items.append((0, 3, cfg.get("xb_first", 140) + cfg.get("xb_sp", 40) * 2 + cfg.get("xb_lat", 70) if not XBP else cfg.get("fb_at", 30), "f", 0, 0))
    items.append((0, 3, cfg.get("p1c_at", 430), "p", 0, 0))
    gC_ = sorted(set(pft.values()))[cfg.get("c_ev", 1)] if pft else 300
    items.append((0, 3, gC_, "c", 0, 0))
    gE_ = gC_ + cfg.get("e_off", 90)
    for n in range(4): items.append((gE_ + 100, 3, gE_ + 20 * n, "e", n, 0))
    f1cload = "buffer_load_dword v61, v60, s[36:39], s81 offen %s" % SC
    if cfg.get("pf2", 1):
        for c in range(NPB): items.append((0, 2, cfg.get("pfb_first", 646) + int(c * cfg.get("pfb_sp", 288)), "b", c, 0))
    now = 0; pend = sorted(items); done = []; quiet = -1
    FM = cfg.get("fm", 1); WL = cfg.get("fm_wl", 14); fifo = []; comp = cfg.get("fm_c0", 30); fsl = []; lastk = ""; PFD = cfg.get("pfd", 0); PFX = cfg.get("pfx", 0)
    while pend:
        nxt = {}
        for x in pend:
            if x[3] not in nxt or x[4:] < nxt[x[3]][4:]: nxt[x[3]] = x
        av = sorted(x for x in nxt.values() if x[2] <= now)
        if FM:
            occ = sum(n for c, n in fifo if c > now)
            lines_of = lambda x: {"d": WL if x[5] < 7 else 8, "x": 8, "a": 9 * (1 + bool(PFD)) + 8 * PFX, "b": 88 // NPB, "c": 10, "e": 16}.get(x[3], 1)
            if av and av[0][3] in "dx" and len(av) > 1 and av[1][3] in "dx" and av[0][3] == lastk and av[0][0] - now > cfg.get("alt_slack", 110): av = av[1:]
            av = [x for x in av[:1] if occ + lines_of(x) <= cfg.get("fm_c", 66)]
        if not av: now += 1; continue
        x = av[0]; pend.remove(x); lastk = x[3]
        if FM:
            lat = cfg.get("fm_slow", 64) if x[3] in "abc" else cfg.get("fm_fast", 36)
            comp = max(comp + 4.3, now + lat); fifo.append((comp, lines_of(x)))
            if x[3] in "dx": fsl.append((x[0] - comp, x[3], x[4], x[5]))
        fifo_now = now
        if x[3] == "d": dma1(s, x[4], x[5], int(now))
        elif x[3] == "x":
            if TWO and x[4:] == (8, 0): poll(s, "P1c", f1cload, 61, "f1c", early=int(now))
            xload(s, x[4], x[5], int(now))
        elif x[3] == "p": s.vm(f1cload, "f1c", early=int(now)); i_f1c = len(s.u) - 1
        elif x[3] == "a":
            s.at(int(now)); pfa(s); quiet = now + cfg.get("q_len", 64)
            if [y for y in pend if y[3] in "abc" and y[2] <= now]: now -= cfg.get("q_sp", 10) - 4
        elif x[3] == "c":
            s.at(int(now)); i_c0 = len(s.u) - 1
            for k, lo in enumerate((96, 98, 92)):
                s("s_mov_b32 s32, s%d\ns_and_b32 s33, s%d, 0xffff" % (lo, lo + 1))
                for T in range(2): s.vm("buffer_load_ushort v%d, v40, s[32:35], 0 offen offset:%d" % (16 + 2 * k + T, 32 * T), ("c", k, T))
            s("s_mov_b32 s32, s94\ns_and_b32 s33, s95, 0xffff")
            for u in range(2): s.vm("buffer_load_dwordx2 %s, v41, s[32:35], 0 offen offset:%d" % (R("a", 248 + 2 * u, 2), 32 * u), ("dk", u))
            if FT & 2:
                s.vm("buffer_load_dword a246, v42, s[36:39], 0 offen %s" % SC); now += 4
            i_c1 = len(s.u) - 1; now += 30
        elif x[3] == "s":
            if x[4] == 1: s.atom(stst(), int(now)); now += 4
            s.op(Op(xst(x[4]), "vm", K(("xn", x[4]))), int(now)); now += (4 - cfg.get("q_sp", 10)) if now < quiet else 10
        elif x[3] == "f":
            flag(s, "buffer_store_dword v56, v1, s[36:39], s83 offen %s" % SC, [("xn", 3)], early=int(now)); i_fb = len(s.u) - 1
        elif x[3] == "e":
            s("s_mov_b32 s70, %d\ns_add_u32 m0, s71, %d" % (32768 * x[4], 1024 * x[4]))
            s.op(Op("buffer_load_dwordx4 v12, s[48:51], s70 offen lds", "vm", K(("E", x[4]))), int(now)); i_e1 = len(s.u) - 1; now += 4
        else: s.at(int(now)); pfb(s); quiet = now + cfg.get("q_len", 64)
        if x[3] in "dx": done.append((x, len(s.u) - 1))
        if x[3:] == ("x", 8, 0): i_p1c = len(s.u) - 1
        if x[3:] == ("x", 26, 0): i_x26 = len(s.u) - 1
        if FM: now = fifo_now + {"c": 36, "s": cfg.get("fm_st", 16) + 4 * (x[4] == 1)}.get(x[3], cfg.get("fm_sp", 4.5))
        else: now += cfg.get("q_sp", 10) if now < quiet else cfg.get("l1_sp", 5)
    res = sc.stream(s.units(), 0, 2)
    sl = sorted((x[0] - res[i], x[3], x[4], x[5]) for x, i in done)
    if cfg.get("verbose") and FM: print("model slacks", sorted(fsl)[:5])
    if cfg.get("verbose"): print("loop1 vm end", res[-1], "of", 4 * NG, "min slacks", sl[:3], "steady", min(z for z in sl if z[2] > 8))
    for nm in names:
        if TS and nm[0] == "f" and nm[1:].isdigit():
            st_ = int(nm[1:])
            sc.put(bar[st_] - 1, [Op("s_memrealtime s[100:101]")], 5)
            sc.put(bar[st_], [Op("v_writelane_b32 v%d, s100, %d" % (vTS, names.index(nm)))], 5)
    if cfg.get("verbose"): print("flag b", res[i_fb], "poll load", res[i_f1c], "check", res[i_p1c])
    s.at(res[i_fb] + 1)
    cL, cC, cL8, cL16, cL64, cL512 = 16, 20, 24, 28, 32, 36
    s("s_mov_b32 s34, 2048\ns_mov_b32 s35, 0x20000")
    s("s_lshl_b32 s69, s%d, 5\nv_add_u32 v40, s69, v48\nv_lshlrev_b32 v40, 1, v40" % sJ)
    s("s_lshl_b32 s68, s%d, 7\ns_lshl_b32 s66, s%d, 5\ns_add_u32 s68, s68, s66\nv_lshl_add_u32 v41, v49, 2, s68\nv_accvgpr_write_b32 a%d, v41\nv_lshlrev_b32 v41, 1, v41" % (sTN, sQ, PK["COL"]))
    srd(s, 48, 4, 5, 2048 * 2048)
    s("s_lshl_b32 s66, s%d, 2\ns_add_u32 s66, s66, s%d\ns_lshl_b32 s66, s66, 7\ns_add_u32 s66, s66, 0x%x\nv_mov_b32 v42, s66" % (sB, sQ, SM_F3))
    s("s_lshl_b32 s66, s%d, 3\ns_add_u32 s66, s66, s%d\ns_lshl_b32 s66, s66, 2\ns_add_u32 s66, s66, s%d\ns_lshl_b32 s66, s66, 7\ns_add_u32 s66, s66, 0x%x\nv_writelane_b32 v42, s66, 0" % (sI, sTN, sW, SM_F4))
    s("s_lshl_b32 s68, s68, 1\ns_lshl_b32 s66, s%d, 17\ns_add_u32 s68, s68, s66\nv_lshrrev_b32 v12, 2, v0\nv_lshl_add_u32 v12, v12, 11, s68\nv_lshl_add_u32 v12, v51, 4, v12" % sB)
    s("s_lshr_b32 s66, s%d, 1\ns_lshl_b32 s66, s66, 16\ns_and_b32 s71, s%d, 1\ns_lshl_b32 s71, s71, 12\ns_add_u32 s71, s71, s66\ns_add_u32 s71, s71, 57344" % (sW, sW))
    r0 = sc.stream(s.units(), 0, 3)
    assert r0[-1] < res[i_c0]
    s.at(res[i_c1] + 1)
    s("v_subrev_u32 v40, %d, v%d\nv_accvgpr_write_b32 a%d, v40" % (B_BASE, vBA0, PK["CA"]))
    s("s_mul_i32 s69, s%d, %d\ns_add_u32 s69, s69, %d" % (sW, EPW, EP_LDS + 2048))
    s("v_and_b32 v41, 1, v49\nv_xor_b32 v41, v41, v51\nv_lshlrev_b32 v40, 5, v11\nv_lshl_add_u32 v40, v41, 3, v40\nv_add_u32 v40, s69, v40\nv_accvgpr_write_b32 a%d, v40" % PK["TRR"])
    s("v_lshrrev_b32 v40, 1, v48\nv_xor_b32 v40, v40, v48\nv_and_b32 v40, 4, v40\nv_mul_u32_u24 v40, 3, v40\nv_xor_b32 v40, v40, v48\nv_lshrrev_b32 v41, 2, v40\nv_xor_b32 v41, v41, v49\nv_lshlrev_b32 v40, 5, v40\nv_lshl_add_u32 v40, v41, 3, v40\nv_add_u32 v40, s69, v40\nv_accvgpr_write_b32 a%d, v40" % PK["TRW"])
    s("v_lshrrev_b32 v40, 2, v0\nv_and_b32 v41, 7, v40\nv_lshlrev_b32 v41, 5, v41\nv_lshl_add_u32 v41, v40, 8, v41\nv_lshl_add_u32 v41, v51, 3, v41\nv_accvgpr_write_b32 a%d, v41" % PK["TA"])
    s("s_lshl_b32 s68, s%d, 2\nv_add_u32 v40, s68, v49\nv_and_b32 v41, 7, v40\nv_bfe_u32 v51, v0, 1, 3\nv_xor_b32 v41, v41, v51\ns_lshl_b32 s66, s%d, 1\nv_xor_b32 v41, s66, v41\nv_lshlrev_b32 v41, 5, v41" % (sW, sQ))
    s("v_and_b32 v51, 1, v0\nv_lshl_add_u32 v41, v51, 4, v41\ns_mul_i32 s67, s%d, 896\nv_add_u32 v40, s67, v40\nv_lshl_add_u32 v40, v40, 11, v41\ns_lshl_b32 s67, s%d, 8\nv_add_u32 v40, s67, v40\nv_accvgpr_write_b32 a%d, v40" % (sQ, sTN, PK["D"]))
    s("s_lshl_b32 s68, s%d, 18\ns_lshl_b32 s66, s%d, 9\ns_add_u32 s68, s68, s66\nv_add_u32 v40, s68, v47\nv_accvgpr_write_b32 a%d, v40" % (sTN, sQ, PK["C"]))
    s("v_lshlrev_b32 v40, 4, v50\nv_lshl_add_u32 v40, v51, 3, v40\nv_bfe_u32 v41, v48, 1, 1\ns_lshl_b32 s68, s%d, 6\nv_add3_u32 v40, v40, v41, s68\nv_accvgpr_write_b32 a%d, v40" % (sB, PK["TOK"]))
    s("s_sub_u32 s68, 32, s%d\ns_lshl_b32 s68, s68, 13\ns_lshl_b32 s66, s%d, 8\ns_add_u32 s68, s68, s66\nv_lshl_add_u32 v40, v48, 4, s68\nv_lshl_add_u32 v40, v49, 16, v40\nv_accvgpr_write_b32 a%d, v40" % (sB, sJ, PK["AG"]))
    ld, lc = 112 // NPB, 64 // NPB
    s("s_lshl_b32 s68, s2, 1\ns_and_b32 s66, s%d, 1\ns_add_u32 s68, s68, s66\ns_mul_i32 s68, s68, %d\ns_mul_i32 s66, s2, %d" % (sW, ld * 128, lc * 128))
    ge2 = "s_cmp_ge_u32 s%d, 2" % sW
    s.atom([ge2, "s_cselect_b32 s68, s66, s68", "s_cselect_b32 s66, %d, %d" % (lc - 1, ld - 1)])
    s("v_min_u32 v40, s66, v0\nv_lshl_add_u32 v%d, v40, 7, s68" % vPB)
    s.atom(["s_bitcmp1_b32 s%d, 0" % sW, "s_cselect_b32 s68, s90, s88", "s_cselect_b32 s66, s91, s89"])
    s.atom([ge2, "s_cselect_b32 s44, s68, s84", "s_cselect_b32 s45, s66, s85"])
    s("s_mov_b32 s67, %d\ns_mov_b32 s68, %d" % (3584 * 2048, 512 * ld * 128))
    s.atom([ge2, "s_cselect_b32 s46, %d, s67" % (1024 * 2048), "s_cselect_b32 s%d, %d, s68" % (sPBs, 256 * lc * 128)])
    s("s_and_b32 s45, s45, 0xffff\ns_mov_b32 s47, 0x20000\ns_mov_b32 s%d, 0" % sKPB)
    i_pbs = len(s.u) - 1
    s.at(res[i_c1] + 90)
    s.wait([("c", 2, 1)])
    def two(f):
        for T in range(2): s(f(T))
    for k in range(6): s("v_lshlrev_b32 v%d, 16, v%d" % (40 + k, 16 + k))
    two(lambda T: "v_mul_f32 v%d, %s, v%d" % (44 + T, fx(LOG2E), 44 + T)); two(lambda T: "v_exp_f32 v%d, v%d" % (44 + T, 44 + T))
    s("v_cvt_pk_bf16_f32 v45, v44, v45\nv_lshlrev_b32 v44, 16, v45\nv_and_b32 v45, 0xffff0000, v45")
    two(lambda T: "v_mul_f32 v%d, v%d, v%d\nv_mul_f32 v%d, v%d, v%d" % (24 + T, 44 + T, 40 + T, 26 + T, 44 + T, 42 + T))
    two(lambda T: "v_mul_f32 v%d, %s, v%d" % (24 + T, fx(LOG2E), 24 + T)); two(lambda T: "v_exp_f32 v%d, v%d" % (24 + T, 24 + T))
    two(lambda T: "v_mul_f32 v%d, 0.15915494, v%d\nv_rndne_f32 v%d, v%d\nv_sub_f32 v%d, v%d, v%d" % (26 + T, 26 + T, 52 + T, 26 + T, 26 + T, 26 + T, 52 + T))
    two(lambda T: "v_cos_f32 v%d, v%d\nv_sin_f32 v%d, v%d" % (52 + T, 26 + T, 54 + T, 26 + T))
    two(lambda T: "v_mul_f32 v%d, v%d, v%d\nv_mul_f32 v%d, v%d, v%d\nv_add_f32 v%d, -1.0, v%d" % (cL + T, 24 + T, 52 + T, 54 + T, 24 + T, 54 + T, 52 + T, cL + T))
    two(lambda T: "v_mul_f32 v%d, v%d, v%d\nv_fmac_f32 v%d, v%d, v%d\nv_rcp_f32 v%d, v%d" % (24 + T, 40 + T, 40 + T, 24 + T, 42 + T, 42 + T, 24 + T, 24 + T))
    two(lambda T: "v_mul_f32 v%d, v%d, v%d\nv_fmac_f32 v%d, v%d, v%d" % (26 + T, 52 + T, 40 + T, 26 + T, 54 + T, 42 + T))
    two(lambda T: "v_mul_f32 v%d, v%d, v%d\nv_fma_f32 v%d, -v%d, v%d, v%d" % (56 + T, 54 + T, 40 + T, 56 + T, 52 + T, 42 + T, 56 + T))
    two(lambda T: "v_add_f32 v%d, v%d, v%d\nv_mul_f32 v%d, v%d, v%d\nv_mul_f32 v%d, v%d, v%d\nv_sub_f32 v%d, 0, v%d" % (24 + T, 24 + T, 24 + T, cC + T, 26 + T, 24 + T, cC + 2 + T, 56 + T, 24 + T, cL + 2 + T, 54 + T))
    def sq(d, x):
        two(lambda T: "v_mul_f32 v%d, v%d, v%d\nv_mul_f32 v%d, v%d, v%d\nv_fma_f32 v%d, v%d, v%d, -v%d\nv_add_f32 v%d, v%d, v%d" % (52 + T, x + 2 + T, x + 2 + T, 54 + T, x + T, x + 2 + T, d + T, x + T, x + T, 52 + T, d + 2 + T, 54 + T, 54 + T))
    sq(cL8, cL); sq(cL8, cL8); sq(cL8, cL8); sq(cL16, cL8); sq(cL64, cL16); sq(cL64, cL64); sq(cL512, cL64); sq(cL512, cL512); sq(cL512, cL512)
    aBS = 160
    s.at(max(res[i_p1c] + 2, res[i_e1] + 90))
    s("v_accvgpr_read_b32 v12, a%d\nv_and_b32 v11, 63, v12\nv_lshlrev_b32 v11, 6, v11\nv_lshl_add_u32 v11, v49, 3, v11\nv_add_u32 v11, s71, v11\nv_and_b32 v12, 0xf0, v1\ns_lshl_b32 s66, s%d, 10\ns_add_u32 s66, s66, 0x%x" % (PK["TOK"], sB, SM_ST))
    s.wait([("E", 3), ("dk", 1)])
    for k in range(4): s("v_accvgpr_read_b32 v%d, a%d" % (40 + k, 248 + k))
    for m in range(4):
        s.vm("buffer_load_dwordx2 v[44:45], v12, s[36:39], s66 offen offset:%d" % (256 * m), ("St", m))
        for u in range(2): s.lg("ds_read_b64 %s, v11 offset:%d" % (P(52 + 2 * u), 128 * m + 32 * u), ("er", m, u))
        s.delay(cfg.get("e_lat", 90))
        s.wait([("St", m), ("er", m, 1)])
        for u in range(2):
            def unp(d, x):
                for h in range(2): s("v_lshlrev_b32 v%d, 16, v%d\nv_and_b32 v%d, 0xffff0000, v%d" % (d + 2 * h, x + h, d + 2 * h + 1, x + h))
            def rnd():
                for h in range(2): s("v_cvt_pk_bf16_f32 v%d, v%d, v%d" % (48 + h, 60 + 2 * h, 61 + 2 * h))
                unp(60, 48)
            unp(56, 52 + 2 * u)
            for k in range(4): s("v_sub_f32 v%d, v%d, v44" % (60 + k, 56 + k))
            rnd()
            for k in range(4): s("v_mul_f32 v%d, v%d, v45" % (60 + k, 60 + k))
            rnd()
            for h in range(2):
                s("v_lshlrev_b32 v46, 16, v%d\nv_and_b32 v47, 0xffff0000, v%d\nv_mul_f32 v%d, v%d, v46\nv_mul_f32 v%d, v%d, v47" % (40 + 2 * u + h, 40 + 2 * u + h, 60 + 2 * h, 60 + 2 * h, 61 + 2 * h, 61 + 2 * h))
            rnd()
            for k in range(4): s("v_add_f32 v%d, v%d, v%d" % (56 + k, 56 + k, 60 + k))
            for k in range(4): s("v_accvgpr_write_b32 a%d, v%d" % (aBS + 16 * u + 4 * m + k, 56 + k))
    rb = sc.stream(s.units(), 0, 3, vmspace=2)
    if cfg.get("verbose"): print("shadow end", rb[-1])
    assert rb[-1] < res[i_x26] and rb[-1] < bar[13] and rb[i_pbs] < cfg.get("pfb_first", 646)
    vEW, vER, vTG, vAG, vTRW, vTRR, vCP, vH8, vD1, vPAd, vPD, vD0 = 2, 3, 4, 5, 6, 7, 8, 10, 11, 12, 13, 14
    sM, sKD, sKH = 54, 55, 56
    c1 = -2.0 * math.sqrt(2.0 / math.pi) * LOG2E
    CC = 46
    s("v_accvgpr_read_b32 v%d, a%d\nv_lshlrev_b32 v%d, 3, v0\nv_add_u32 v%d, 32768, v%d" % (vD0, PK["D"], vH8, vD1, vD0))
    s("v_and_b32 v43, 31, v0\nv_lshlrev_b32 v43, 7, v43\ns_lshl_b32 s71, s%d, 2\ns_add_u32 s71, s71, 0x%x" % (sJ, SM_F1B))
    s("s_mul_i32 s65, s%d, 176\ns_mul_i32 s66, s%d, 44\ns_add_u32 s65, s65, s66\ns_lshl_b32 s65, s65, 12\ns_add_u32 s65, s65, 0x%x" % (sB, sQ, WS_H))
    s.atom(["s_add_u32 s32, s6, s65", "s_addc_u32 s33, s7, 0"])
    s("s_and_b32 s33, s33, 0xffff\ns_mov_b32 s34, 0x%x\ns_mov_b32 s35, 0x20000" % (44 * 4096))
    srd(s, 12, 84, 85, 3584 * 2048); srd(s, 16, 88, 89, 1024 * 2048); srd(s, 20, 90, 91, 1024 * 2048)
    s("s_lshl_b32 s%d, s%d, 10" % (sM, sW))
    s("v_mov_b32 v46, %s\nv_mov_b32 v47, %s" % (fx(c1), fx(c1 * 0.044715)))
    ROT = cfg.get("rot", 2)
    sTQ = [96, 97, 98, 99, 48, 49, 50, 51]; sTS = [76, 77, 78, 80]; sJ12, sG7 = 44, 45
    s("s_and_b32 s67, s%d, 3\ns_lshl_b32 s67, s67, 1" % sI)
    for k in range(8):
        if k == 0: s("s_mov_b32 s65, s%d" % sTN)
        elif ROT == 2: s.atom(["s_cmp_le_u32 s%d, %d" % (sTN, k - 1), "s_cselect_b32 s65, %d, %d" % (k, k - 1)])
        elif ROT: s("s_add_u32 s65, s67, %d\ns_sub_u32 s66, s65, 7\ns_min_u32 s65, s65, s66\ns_add_u32 s65, s65, 1\ns_xor_b32 s65, s65, s%d" % (k - 1, sTN))
        else: s("s_xor_b32 s65, s%d, %d" % (sTN, k))
        s("s_mul_i32 s65, s65, 7\ns_add_u32 s65, s65, 1\ns_lshr_b32 s65, s65, 1\ns_lshl_b32 s%d, s65, 12" % sTQ[k])
    s("s_lshr_b32 s67, s%d, 1" % sTN)
    sGp = [24, 25, 26, 27]; sPar = 45
    for p in range(4):
        if ROT == 2:
            s("s_mov_b32 s%d, %d" % (sTS[p], (7 * p + 3) * 4096))
            if p == 0: s("s_lshl_b32 s%d, s67, 13" % sGp[0])
            else:
                s.atom(["s_cmp_le_u32 s67, %d" % (p - 1), "s_cselect_b32 s65, %d, %d" % (p, p - 1)]); s("s_lshl_b32 s%d, s65, 13" % sGp[p])
        else: s("s_xor_b32 s65, s67, %d\ns_lshl_b32 s%d, s65, 13\ns_mul_i32 s65, s65, %d\ns_add_u32 s%d, s65, %d" % (p, sGp[p], 7 * 4096, sTS[p], 3 * 4096))
    s("s_lshl_b32 s%d, s%d, 12\ns_and_b32 s69, s%d, 1\ns_lshl_b32 s%d, s69, 12" % (sJ12, sTN, sTN, sPar))
    s("s_mul_i32 s67, s67, %d\ns_lshl_b32 s69, s69, 9\ns_add_u32 s67, s67, s69\ns_add_u32 s67, s67, %d" % (7 * 4096, 3 * 4096))
    s("s_add_u32 s72, s%d, %d\ns_add_u32 s73, s%d, %d\ns_mov_b32 s66, s%d" % (sJ12, 28 * 4096, sJ12, 36 * 4096, sTQ[0]))
    s("s_lshl_b32 s68, s%d, 2\ns_add_u32 s68, s68, s%d\ns_lshl_b32 s68, s68, 7\ns_add_u32 s68, s68, 0x%x" % (sB, sQ, SM_F3))
    s("s_lshl_b32 s81, s%d, 2\ns_add_u32 s81, s81, s68\nv_and_b32 v%d, 7, v0\nv_lshlrev_b32 v%d, 2, v%d" % (sTN, vPAd, vPAd, vPAd))
    s("s_sub_u32 s64, 31, s%d\ns_lshl_b32 s64, s64, 13\ns_lshl_b32 s65, s%d, 8\ns_add_u32 s64, s64, s65" % (sB, sJ))
    s("s_mul_i32 s46, s%d, %d\ns_add_u32 s46, s46, %d" % (sW, EPW, EP_LDS))
    if TRP >= 0 and cfg.get("tr2", 1) and cfg.get("tr2pf", 1):
        s.atom(["s_getpc_b64 s[82:83]", "L_pc2:"])
        s("v_lshrrev_b32 v40, 3, v0\nv_lshlrev_b32 v40, 12, v40\nv_and_b32 v41, 7, v0\nv_lshl_add_u32 v40, v41, 7, v40\nv_add_u32 v40, L_main-L_pc2+%d, v40" % (4096 * cfg.get("tr_n", 14)))
        s("v_min_u32 v40, L_codeend-L_pc2-4, v40\nv_mov_b32 v41, 0\nv_lshl_add_u64 v[40:41], v[40:41], 0, s[82:83]")
        s.vm("global_load_dword a246, v[40:41], off")
        if cfg.get("cpe", 0):
            n_ = 16 * cfg.get("cpe", 0)
            s("s_mul_i32 s65, s%d, %d\ns_add_u32 s65, s65, L_epi-L_pc2+%d\nv_min_u32 v40, %d, v0\nv_lshl_add_u32 v40, v40, 7, s65\nv_mov_b32 v41, 0\nv_lshl_add_u64 v[40:41], v[40:41], 0, s[82:83]" % (sW, n_ * 128, cfg.get("cpe_off", -2048), n_ - 1))
            s.vm("global_load_dword a246, v[40:41], off")
    f1bload = "buffer_load_dword v44, v43, s[36:39], s71 offen %s" % SC
    s.vm(f1bload, "f1b")
    steps = [("g", 0, 2), ("g", 0, 0), ("g", 0, 1)]
    NA0 = cfg.get("na0", 2)
    steps += [("g", k, 0) for k in range(1, NA0 + 1)]
    UA = len(steps)
    steps += [("g", k, 1) for k in range(1, NA0 + 1)]
    for k in range(NA0 + 1, 8): steps += [("g", k, 0), ("g", k, 1)]
    UB = len(steps)
    for k in range(1, 8): steps += [("g", k, 2)] + ([("s", k // 2, 0)] if k % 2 else [])
    assert len(steps) == 28
    cst = [("r", 0), ("i", 0), ("r", 1), ("r", 2), ("r", 3), ("i", 1), ("i", 2), ("i", 3)]
    steps += [("c", 14, 0), ("c", 15, 0), ("c", 14, 1), ("c", 15, 1)]
    for st in range(16, 22): steps += [("c", st, 0), ("c", st, 1)]
    own = {0, 1, 2, 28, 29}; UC = 30
    NST = 22; KC = cfg.get("kc", 8)
    slot = {st: st % 8 for st in range(22)}; prevocc = {st: (st - 8 if st >= 8 else None) for st in range(22)}
    aW2 = 0; aAG = 32
    vC, vCA = 16, 20
    def dma2(s, st, k, early=None, vC=vC):
        if st < 14:
            kind, x, p = steps[2 * st + k // 2]
            if k % 2 == 0:
                if kind == "g" and p: s("s_add_u32 s%d, s%d, %d\ns_lshl_b32 s%d, s%d, 4" % (sKD, sTQ[x], p * 4096, sKD, sKD))
                else: s("s_lshl_b32 s%d, s%d, 4" % (sKD, (sTQ if kind == "g" else sTS)[x]))
            v, sr = (vD0, vD1)[k % 2], 12
        else:
            part, p = cst[st - 14]
            if k == 0: s("s_lshr_b32 s%d, s%d, 6" % (sKD, sGp[p]))
            v, sr = vC + k, (16 if part == "r" else 20)
        s("s_add_u32 m0, s%d, %d" % (sM, slot[st] * 16384 + k * 4096))
        s.op(Op("buffer_load_dwordx4 v%d, s[%d:%d], s%d offen lds" % (v, sr, sr + 3, sKD), "vm", K(("D2", st, k))), early)
    NPRE = 4
    r = sc.stream(s.units(), res[-1] + 2, 3)
    gS = r[-1]
    L2P = cfg.get("l2p", 0)
    if L2P:
        s("s_lshr_b32 s65, s2, 3\ns_lshl_b32 s65, s65, 2\ns_add_u32 s65, s65, s%d" % sW)
        s("s_mul_i32 s69, s65, %d\ns_mul_i32 s70, s%d, %d\ns_add_u32 s69, s69, s70\nv_min_u32 v40, 55, v0\nv_lshl_add_u32 v40, v40, 7, s69\ns_mov_b32 s70, %d" % (56 * 128, sQ, 896 * 2048, 448 * 2048))
        s.vm("buffer_load_dword a246, v40, s[12:15], 0 offen"); s.delay(cfg.get("l2p_sp", 40))
        s.vm("buffer_load_dword a246, v40, s[12:15], s70 offen"); s.delay(cfg.get("l2p_sp", 40))
        if L2P >= 2:
            s("s_lshl_b32 s69, s65, 14\ns_lshl_b32 s70, s%d, 9\ns_add_u32 s69, s69, s70\nv_bfe_u32 v40, v0, 2, 3\nv_lshl_add_u32 v40, v40, 11, s69\nv_and_b32 v41, 3, v0\nv_lshl_add_u32 v40, v41, 7, v40" % sQ)
    s.at(max(bar[13] + 1, cfg.get("pre_at", 0 if KT else 2170)))
    for st in range(NPRE):
        for k in range(4): dma2(s, st, k)
    if L2P >= 2:
        s.vm("buffer_load_dword a246, v40, s[16:19], 0 offen")
        if L2P >= 3: s.delay(20); s.vm("buffer_load_dword a246, v40, s[20:23], 0 offen")
    r = sc.stream(s.units(), gS + 1, 2, vmspace=cfg.get("pre_sp", 5))
    hst = cfg.get("hst", SC)
    aK0 = xalloc[27][1] if KT else 96; aK1 = 112 if aK0 != 112 else 96
    left = []; msh = 0
    if KT:
        msh = cfg.get("msh", 4)
        for m in range(msh):
            gs = [128 + 4 * m + e for e in range(4)] + [160 + 4 * m + e for e in range(4)]
            o = (56, 60)[m % 2]
            for k, g in enumerate(gs): s("v_mul_f32 v%d, v%d, v%d" % (48 + k, g, g))
            for k, g in enumerate(gs): s("v_fma_f32 v%d, v%d, v47, v46" % (48 + k, 48 + k))
            for k, g in enumerate(gs): s("v_mul_f32 v%d, v%d, v%d" % (48 + k, 48 + k, g))
            for k, g in enumerate(gs): s("v_exp_f32 v%d, v%d" % (48 + k, 48 + k))
            for k, g in enumerate(gs): s("v_mul_f32 v%d, v%d, v%d" % (g + 16, g, g + 16))
            for k, g in enumerate(gs): s("v_add_f32 v%d, 1.0, v%d" % (48 + k, 48 + k))
            for k, g in enumerate(gs): s("v_rcp_f32 v%d, v%d" % (48 + k, 48 + k))
            for k, g in enumerate(gs): s("v_mul_f32 v%d, v%d, v%d" % (g + 16, g + 16, 48 + k))
            for k in range(4): s("v_cvt_pk_bf16_f32 v%d, v%d, v%d" % (o + k, gs[2 * k] + 16, gs[2 * k] + 17))
            s.vm("buffer_store_dwordx4 %s, v1, s[32:35], s66 offen offset:%d %s" % (Q(o), 1024 * m, hst), ("hs", 0, m))
            for k in range(4): s("v_accvgpr_write_b32 a%d, v%d" % (aK0 + 4 * m + k, o + k))
        un = s.units()
        r = sc.stream(un, max(gS + 1, 4 * (28 * 18 + 16) + 2), 3, vmspace=2, overflow=True)
        left = un[len(r):]
        if cfg.get("verbose"): print("setup end", gS, "shadow gelu placed", len(r), "left", len(left))
    if cfg.get("abl"):
        for g in range(720, 1850):
            for it in sc.g[g]:
                o = it[2]; tx = o.text or ""
                if ("T" in cfg["abl"] and tx.startswith("ds_read_b64_tr")) or ("B" in cfg["abl"] and tx.startswith("ds_read_b128")) or \
                   ("X" in cfg["abl"] and tx.startswith("buffer_load_dwordx4") and "s[8:11]" in tx) or ("D" in cfg["abl"] and tx.endswith(" lds")) or \
                   ("P" in cfg["abl"] and tx.startswith("buffer_load_dword a246")) or ("V" in cfg["abl"] and tx.startswith("v_") and it[0] == 3): o.text = ""
    if cfg.get("stall"):
        for G in range(1, NG):
            if G % cfg["stall"] == 0 and len(sc.classes(4 * G - 1)) == 3: sc.put(4 * G - 1, [Op("s_nop 0")], 9)
    prog.add(sc.ops())
    vTA = 40
    s.atom(["L_epi:"])
    s("s_barrier")
    stamp(s, "end1")
    s.u += left
    KD = [int(c, 36) for c in str(cfg.get("kd", "g0a8"))]
    CH2 = cfg.get("ch2", 1); nochain = [int(c) for c in str(cfg.get("ch2_skip", "1"))]
    assert all(k % 2 == 0 for k in KD)
    def sg2(st, ul):
        if CH2 and st not in nochain: return [(2 * st + kk, u) for u in ul for kk in range(2)]
        return [(2 * st + kk, u) for kk in range(2) for u in ul]
    groups = []
    for st in range(22): groups += sg2(st, [u for u in (range(8) if st < 14 else (2, 3, 4, 5, 6, 7, 0, 1)) if 2 * st < 44 - KD[u // 2]])
    pend_ = {}
    for d in (1, 2, 3, 0):
        for st in range(22 - KD[d] // 2, 22): groups += sg2(st, (2 * d, 2 * d + 1))
    for G, (uu, u) in enumerate(groups): pend_[u // 2] = G
    assert len(groups) == 352 and max(KD) <= 16
    NG = len(groups)
    mo, head, tail = order_mfma(groups)
    lastuse = {}; firstuse = {}
    for G, (uu, u) in enumerate(groups): firstuse.setdefault(uu, head(G)); lastuse[uu] = tail(G)
    hreg = {0: ("v", 48), 1: ("a", aK0), 2: ("a", aK1), 28: ("a", 32), 29: ("a", 48)}; hfree = {}
    pool = [(-1, ("a", r)) for r in [96, 112, 128, 144, 192, 208, 224, 160, 176, 64, 80] if r not in (aK0, aK1)] + [(4 * lastuse[u] + 3, hreg[u]) for u in (1, 2, 28, 29)]
    VFREE = cfg.get("vfree", 700)
    pool += [(VFREE, ("v", r)) for r in (64, 80, 96, 112)[:cfg.get("nvs", 4)]]
    for u in range(44):
        if u in own: continue
        pool.sort(key=lambda x: x[0]); e, r = pool.pop(0)
        hreg[u] = r; hfree[u] = e; pool.append((4 * lastuse[u] + 3, r))
    def hload(s, u, m, early=None):
        kind, x, p = steps[u]
        if m == 0:
            if kind == "g": s("s_add_u32 s%d, s%d, %d" % (sKH, sTQ[x], p * 4096))
            elif kind == "s": s("s_mov_b32 s%d, s%d" % (sKH, sTS[x]))
            else:
                part, pp = cst[x - 14]
                s("s_xor_b32 s%d, s%d, %d\ns_add_u32 s%d, s%d, s%d" % (sKH, sPar, ((28 if part == "r" else 36) + p) * 4096, sKH, sKH, sGp[pp]))
        hk, d = hreg[u]; d += 4 * m
        if kind == "s":
            s.op(Op("buffer_load_dwordx2 %s, v%d, s[32:35], s%d offen offset:%d" % (R(hk, d, 2), vH8, sKH, 1024 * m), "vm"), early)
            s.op(Op("buffer_load_dwordx2 %s, v%d, s[32:35], s%d offen offset:%d" % (R(hk, d + 2, 2), vH8, sKH, 1024 * m + 512), "vm", K(("H", u, m))))
        else: s.op(Op("buffer_load_dwordx4 %s, v1, s[32:35], s%d offen offset:%d" % (R(hk, d, 4), sKH, 1024 * m), "vm", K(("H", u, m))), early)
    def gelu_pair(base0, base1, pid, T, OUT, keep=None, hook=None, m0=0):
        for m in range(m0, 4):
            o = OUT[m % len(OUT)]
            items = [(base0 + 4 * m, base0 + 16 + 4 * m, o), (base0 + 4 * m + 2, base0 + 18 + 4 * m, o + 1),
                     (base1 + 4 * m, base1 + 16 + 4 * m, o + 2), (base1 + 4 * m + 2, base1 + 18 + 4 * m, o + 3)]
            gelu_block(s, items, CC, T)
            s.vm("buffer_store_dwordx4 %s, v1, s[32:35], s66 offen offset:%d %s" % (Q(o), 1024 * m, hst), ("hs", pid, m))
            if keep is not None:
                for r in range(4): s("v_accvgpr_write_b32 a%d, v%d" % (keep + 4 * m + r, o + r))
            if hook: hook(m)
        s("s_add_u32 s66, s66, 4096")
    NPRE2 = cfg.get("npre2", 8)
    cpre = [(st, k) for st in range(NPRE, NPRE2) for k in range(4)]
    def cdma(n):
        for _ in range(n):
            if cpre: st, k = cpre.pop(0); dma2(s, st, k)
    fstore = lambda off: "buffer_store_dword v%d, v1, s[36:39], s81 offen offset:%d %s" % (vTG, off, SC)
    fload = lambda off: "buffer_load_dword v%d, v%d, s[36:39], s68 offen offset:%d %s" % (vPD, vPAd, off, SC)
    s("v_mov_b32 v%d, s%d" % (vTG, sTAG))
    npg = cfg.get("cpre_g", 1)
    cdma(cfg.get("cpre_0", 4))
    gelu_pair(128, 160, 0, 48, [56, 60], aK0, lambda m: cdma(npg), m0=msh)
    def hook1(m):
        cdma(npg)
        if m == cfg.get("fa0_m", 1): flag(s, fstore(96), [("hs", 0, 3)])
    gelu_pair(192, 224, 1, 48, [56, 60], aK1, hook1)
    stamp(s, "p01")
    def pkfma(d, s0, s1, s2, T, neg=False):
        s("v_pk_fma_f32 %s, %s, %s, %s op_sel:[%d,0,0] op_sel_hi:[%d,1,1]%s" % (P(d), P(s0), P(s1), P(s2), T, T, " neg_lo:[1,0,0] neg_hi:[1,0,0]" if neg else ""))
    def pkmul(d, s0, s1, T, neg=False):
        s("v_pk_mul_f32 %s, %s, %s op_sel:[%d,0] op_sel_hi:[%d,1]%s" % (P(d), P(s0), P(s1), T, T, " neg_lo:[1,0] neg_hi:[1,0]" if neg else ""))
    BR = lambda T, x: 64 + 16 * T + 2 * x
    BI = lambda T, x: 96 + 16 * T + 2 * x
    for x in range(8):
        for T in range(2):
            pkmul(128 + 2 * T, cC + 2, BI(T, x), T, True); pkmul(BI(T, x), cC, BI(T, x), T, True)
        for T in range(2):
            pkfma(BI(T, x), cC + 2, BR(T, x), BI(T, x), T, True); pkfma(BR(T, x), cC, BR(T, x), 128 + 2 * T, T)
    sr = [BR(0, 0), BR(1, 0)]; si = [BI(0, 0), BI(1, 0)]
    bufs = [[132, 134], [138, 140]]; SI = [136, 142]
    for x in range(1, 8):
        nr = [bufs[T][x % 2] for T in range(2)]
        for T in range(2): pkfma(nr[T], cL, sr[T], BR(T, x), T)
        for T in range(2): pkfma(nr[T], cL + 2, si[T], nr[T], T, True)
        for T in range(2): pkfma(SI[T], cL, si[T], BI(T, x), T)
        for T in range(2): pkfma(SI[T], cL + 2, sr[T], SI[T], T)
        sr = nr; si = list(SI)
        if x % 2: cdma(1)
    EA = 20
    for T in range(2):
        s("v_mov_b32 v%d, v%d\nv_mov_b32 v%d, v%d\nv_mov_b32 v%d, v%d\nv_mov_b32 v%d, v%d" % (EA + T, sr[T], EA + 2 + T, si[T], 144 + T, sr[T] + 1, 146 + T, si[T] + 1))
    horner_pk(s, EA, cL8, 144, 144)
    s("v_add_u32 v%d, s46, v1\nv_and_b32 v%d, 0xf0, v1\nv_add_u32 v%d, s46, v%d" % (vEW, vER, vER, vER))
    s.lg("ds_write_b128 v%d, v[144:147]" % vEW)
    for g in range(4): s.lg("ds_read_b128 %s, v%d offset:%d" % (Q(148 + 4 * g), vER, 256 * g), ("e", g))
    HPN = cfg.get("hpn", 0)
    if HPN: s.vm(fload(96), "f3a0")
    for r in range(32):
        s("v_accvgpr_read_b32 v%d, a%d" % (192 + r, r))
        if r % 16 == 15: cdma(1)
    flag(s, fstore(0), [("hs", 1, 3)])
    for g in range(1, 4):
        s.wait([("e", g)]); horner_pk(s, 148 + 4 * (g - 1), cL16, 148 + 4 * g, 148 + 4 * g)
    for r in range(160, 164): s("v_min_u32 v%d, -2, v%d" % (r, r))
    s.atom(["s_mov_b64 exec, 0xffff", Op("buffer_store_dwordx4 v[160:163], v1, s[36:39], s64 offen %s" % SC, "vm"), "s_mov_b64 exec, -1"])
    stamp(s, "pub")
    poll(s, "P1b", f1bload, 44, "f1b")
    for r in range(32, 64):
        s("v_accvgpr_read_b32 v%d, a%d" % (192 + r, r))
        if r % 16 == 15: cdma(1)
    cdma(16)
    for r in range(32): s("v_accvgpr_read_b32 v%d, a%d" % (128 + r, aBS + r))
    hq = [(u, m) for u in range(3, UA) for m in range(4)][:HPN]; nh_pre = [3 + HPN // 4]
    assert HPN % 4 == 0
    def issue_h(n):
        for _ in range(n):
            if hq: hload(s, *hq.pop(0))
    hpb = cfg.get("hpb", 3)
    def hookA(m): issue_h(hpb)
    def tramp2():
        s("s_mov_b64 exec, 0")
        for w in range(1, 4): s("s_cmp_eq_u32 s%d, %d\ns_cbranch_scc1 L_trB%d" % (sW, w, w))
        s("s_branch L_trB0")
        s.atom(["L_trret2:"])
        s("s_mov_b64 exec, -1")
    if TRP >= 0 and cfg.get("tr2", 1): tramp2()
    if HPN:
        poll(s, "P3a0", fload(96), vPD, "f3a0"); stamp(s, "ok3a"); issue_h(hpb)
    gelu_pair(192, 224, 2, 168, [48, 52, 56, 60], None, hookA)
    for r in range(32): s("v_accvgpr_read_b32 v%d, a%d" % (192 + r, 64 + r))
    issue_h(hpb)
    for mp in range(2):
        o = 240 + 4 * mp; items = []
        for mm in range(2):
            m = 2 * mp + mm
            items += [(192 + 4 * m, 208 + 4 * m, o + 2 * mm), (194 + 4 * m, 210 + 4 * m, o + 2 * mm + 1)]
        gelu_block(s, items, CC, 168)
        if mp == 0:
            s("v_accvgpr_read_b32 v%d, a%d" % (vTA, PK["TA"]))
            for u in range(1, 6): s("v_xor_b32 v%d, %d, v%d" % (vTA + u, 32 * u, vTA))
        issue_h(hpb if mp == 0 else 99)
        if mp == 1 and not HPN: s.vm(fload(96), "f3a0")
        for mm in range(2):
            s.vm("buffer_store_dwordx2 %s, v%d, s[32:35], s67 offen offset:%d %s" % (P(o + 2 * mm), vH8, 1024 * (2 * mp + mm), hst), ("hsS", 2 * mp + mm))
        if mp == 0:
            s.wait([("D2", st, k) for st in range(cfg.get("bar2", 2)) for k in range(4)])
            s("s_barrier")
            pre_reads_at = len(s.u)
    for u in range(6, 8): s("v_xor_b32 v%d, %d, v%d" % (vTA + u, 32 * u, vTA))
    L2 = cfg.get("l2_lead", 4); B2 = cfg.get("bar2", 2)
    def read2(G, part):
        uu, u = groups[G]; f = G % NWB
        if uu < 28:
            st, kk = divmod(uu, 2)
            return Op("ds_read_b64_tr_b16 %s, v%d offset:%d" % (R("a", aW2 + 4 * f + 2 * part, 2), vTA + u, (slot[st] % 4) * 16384 + kk * 8192 + part * 4096), "lg", K(("F2", G, part)))
        _, st, kk = steps[uu]
        return Op("ds_read_b128 %s, v%d offset:%d" % (R("a", aW2 + 4 * f, 4), vCA + 2 * (slot[st] >= 4) + kk, (slot[st] % 4) * 16384 + u * 2048), "lg", K(("F2", G, part)))
    parts = lambda G: [0, 1] if groups[G][0] < 28 else [None]
    mf = []
    for G, m in mo:
        uu, u = groups[G]
        mf.append(Op(mfma16(("v", 128 + 16 * u + 4 * m), ("a", aW2 + 4 * (G % NWB)), (hreg[uu][0], hreg[uu][1] + 4 * m), zero=(uu == 0 and u >= 2))))
    sc = Sch(mf)
    gneed = lambda G: [("F2", H, p) for H in range(G, tail(G) + 1) for p in parts(H)] + [("H", uu, m) for uu in range(44) if firstuse[uu] == G and uu not in own for m in range(4)]
    rgap = {}
    for G in range(NG):
        st, f = divmod(G, 16)
        if st < 14 and st % B2 == B2 - 1:
            if f <= 4: rgap[G] = 4 * (G - L2) - 1
            elif f == 5: rgap[G] = 4 * (G - 1 - L2) + 1
            elif f <= 10: rgap[G] = 4 * (G - 1 - L2) - 1
            elif f == 11: rgap[G] = 4 * (G - 2 - L2) + 1
            else: rgap[G] = 4 * (G - 2 - L2) - 1
        else: rgap[G] = 4 * (G - L2) - 1
        assert rgap[G] >= 4 * tail(G - NWB) + 3
    pr = Seq()
    for G in range(NG):
        if rgap[G] < 0:
            for p in parts(G): pr.op(read2(G, p))
    s.u[pre_reads_at:pre_reads_at] = pr.units()
    s.wait(gneed(0))
    stamp(s, "loop2")
    prog.add(s.done())
    for G in range(1, NG):
        w = Op("", needs=K(gneed(G)))
        w.keep = sum(len(parts(H)) for H in range(max(0, G - 2), min(NG, G + 10)) if rgap[H] == 4 * G - 1) == 2
        if w.keep or head(G) == G: sc.put(4 * G - 1, [w], 0)
    for G in range(NG):
        if rgap[G] >= 0:
            if rgap[G] % 4 != 3: sc.put(rgap[G], [Op("s_waitcnt lgkmcnt(15)")], 0)
            sc.put(rgap[G], [read2(G, p) for p in parts(G)], 1)
    bar = {}
    for st in range(14):
        if st % B2 != B2 - 1: continue
        bar[st] = 4 * (16 * (st + 1) - L2) - 2
        pub = list(range(st + 1, st + 1 + B2)) if st < 13 else [14, 15, 16, 17]
        sc.put(bar[st], [Op("s_barrier", needs=K([("D2", x, k) for x in pub for k in range(4)]), drain=["lg"])], 0)
    for st in (3, 7, 11):
        for i_, g_ in enumerate((1, 2, 4, 5)):
            sc.put(bar[st] - g_, [Op("v_xor_b32 v%d, 0x10000, v%d" % (vTA + 2 * i_ + k, vTA + 2 * i_ + k)) for k in range(2)], 2)
        assert max(rgap[G] for G in range(16 * st, 16 * st + 16)) < bar[st] - 5
    barF = min(rgap[G] for G in range(NG) if groups[G][0] >= 36) - 1
    sc.put(barF, [Op("s_barrier", needs=K([("D2", x, k) for x in range(18, 22) for k in range(4)]))], 0)
    def mark(o, nm): o.u[-1].append(nm)
    def after(o, nm, n): o.u.append([[Op("")], lambda mk: (mk[nm] + n) if nm in mk else None])
    def dly(o, n): o.u.append([[Op("")], lambda mk: mk["_prev"] + n])
    gl = []
    t = Seq()
    t("v_accvgpr_read_b32 v%d, a%d\nv_accvgpr_read_b32 v%d, a%d\nv_accvgpr_read_b32 v%d, a%d" % (vAG, PK["AG"], vTRW, PK["TRW"], vTRR, PK["TRR"]))
    t("s_mov_b32 s40, s36\ns_mov_b32 s41, s37\ns_mov_b32 s42, 0x40000\ns_mov_b32 s43, 0x20000")
    t("v_lshrrev_b32 v8, 4, v0\nv_cmp_eq_u32 s[64:65], 1, v8\nv_cmp_eq_u32 s[66:67], 2, v8\nv_cmp_eq_u32 s[74:75], 3, v8")
    t.at(cfg.get("ag_gap", 32))
    for x in range(7, -1, -1):
        t("s_mov_b32 s57, %d" % (8192 * x))
        g = "buffer_load_dwordx4 %s, v%d, s[40:43], s57 offen %s" % (R("a", aAG + 4 * x, 4), vAG, SC)
        gl.append("s_mov_b32 s57, %d\n%s" % (8192 * x, g))
        t.vm(g, ("ag", x))
        if x: dly(t, cfg.get("ag_sp", 8))
    mark(t, "ag")
    srd(t, 8, 86, 87, 2048 * 4096)
    flag(t, fstore(32), [("hsS", 3)], early=cfg.get("fb_gap", 80)); mark(t, "flagb")
    after(t, "ag", cfg.get("ag_lat", 20)); t.at(4 * lastuse[0] + 4)
    def ag_horner(o, w):
        cur = None
        for x in range(7, -1, -1):
            q = 48 + 4 * (x % 2)
            if w: o.wait([("ag", x)])
            for r in range(4): o("v_accvgpr_read_b32 v%d, a%d" % (q + r, aAG + 4 * x + r))
            if not w: o(("v_max3_u32 v56, v%d, v%d, v%d\nv_max_u32 v56, v56, v%d" % (q, q + 1, q + 2, q + 3)) if x == 7 else ("v_max3_u32 v56, v56, v%d, v%d\nv_max3_u32 v56, v56, v%d, v%d" % (q, q + 1, q + 2, q + 3)))
            if cur is not None: horner_sc(o, cur, cL64, q)
            cur = q
    ag_horner(t, True)
    t("v_cmp_u_f32 s[70:71], v48, v49")
    t.atom(["v_cmp_u_f32 vcc, v50, v51", "s_or_b64 vcc, vcc, s[70:71]", "s_cbranch_scc1 PAG_retry", "PAG_ok:"])
    ool("PAG_retry:")
    if cfg.get("rc"): RC.append("PAG"); ool("v_readlane_b32 s100, v15, %d\ns_nop 3\ns_add_u32 s100, s100, 100\nv_writelane_b32 v15, s100, %d" % (len(RC), len(RC)))
    ool("\n".join(gl) + "\ns_waitcnt vmcnt(0)")
    ag_horner(ool, False)
    ool("v_cmp_eq_u32 vcc, -1, v56\ns_and_b64 vcc, vcc, exec\ns_cbranch_scc0 PAG_ok\ns_cmp_eq_u32 s79, 0\ns_cbranch_scc1 PAG_ok\ns_sub_u32 s79, s79, 1\ns_sleep 1\ns_branch PAG_retry")
    t.lg("ds_write_b128 v%d, v[48:51] offset:1024" % vEW)
    for g, r in ((3, 52), (2, 56), (1, 60)): t.lg("ds_read_b128 %s, v%d offset:%d" % (Q(r), vER, 1024 + 256 * g), ("s", g))
    t.lg("ds_read_b128 %s, v%d offset:1024" % (Q(48), vER), ("s", 0))
    dly(t, 8)
    t.wait([("s", 2)]); horner_sc(t, 52, cL512, 56)
    t.lg("ds_read_b128 %s, v%d" % (Q(52), vER), ("e2", 0))
    t.wait([("s", 1)]); horner_sc(t, 56, cL512, 60)
    t.lg("ds_read_b128 %s, v%d offset:256" % (Q(56), vER), ("e2", 1))
    t.wait([("s", 0)]); horner_sc(t, 60, cL512, 48)
    t.lg("ds_read_b128 %s, v%d offset:512" % (Q(60), vER), ("e2", 2))
    t.wait([("e2", 0)]); horner_sc(t, 48, cL16, 52)
    t.wait([("e2", 1)]); horner_sc(t, 52, cL16, 56)
    t.wait([("e2", 2)]); horner_sc(t, 56, cL16, 60)
    for g, sm in ((52, 64), (56, 66), (60, 74)):
        for r in range(4): t("v_cndmask_b32 v%d, v%d, v%d, s[%d:%d]" % (48 + r, 48 + r, g + r, sm, sm + 1))
    horner_sc(t, 48, cL8, EA)
    t("v_xor_b32 v52, 16, v%d" % vTRR)
    st_r = {(T, h): (48, EA)[h] + T for T in range(2) for h in range(2)}
    st_i = {(T, h): (48, EA)[h] + 2 + T for T in range(2) for h in range(2)}
    TH = [(T, h) for T in range(2) for h in range(2)]
    xs = Seq()
    for x in range(8):
        for (T, h) in TH: t("v_fmac_f32 v%d, v%d, v%d" % (BR(T, x) + h, cL + T, st_r[T, h]))
        for (T, h) in TH: t("v_fmac_f32 v%d, v%d, v%d" % (BI(T, x) + h, cL + T, st_i[T, h]))
        for (T, h) in TH: t("v_fma_f32 v%d, -v%d, v%d, v%d" % (BR(T, x) + h, cL + 2 + T, st_i[T, h], BR(T, x) + h))
        for (T, h) in TH: t("v_fmac_f32 v%d, v%d, v%d" % (BI(T, x) + h, cL + 2 + T, st_r[T, h]))
        for (T, h) in TH: st_r[T, h] = BR(T, x) + h; st_i[T, h] = BI(T, x) + h
        if x % 2 == 1:
            m = x // 2; mo = (m % 2) * 2048
            for part, Fn in enumerate((BR, BI)):
                for T in range(2):
                    o = 56 + 4 * part + 2 * T
                    t("v_cvt_pk_bf16_f32 v%d, v%d, v%d\nv_cvt_pk_bf16_f32 v%d, v%d, v%d" % (o, Fn(T, x - 1), Fn(T, x - 1) + 1, o + 1, Fn(T, x), Fn(T, x) + 1))
                    t.lg("ds_write_b64 v%d, %s offset:%d" % (vTRW, P(o), mo + part * 1024 + 512 * T))
                t.atom(["s_waitcnt lgkmcnt(15)"] + [Op("ds_read_b64_tr_b16 %s, v%d offset:%d" % (R("a", aAG + 16 * part + 4 * m + 2 * half, 2), (vTRR, 52)[half], mo + part * 1024 + 256 * half), "lg", K(("tr", m, part, half))) for half in range(2)])
                mark(t, ("tr", m, part))
                after(xs, ("tr", m, part), 10)
                if (m, part) != (0, 0) and m < 3: after(xs, ("hl", m - 1 + part, 1 - part), cfg.get("hl_sp", 24))
                xs.vm("buffer_store_dwordx4 %s, v1, s[32:35], s%d offen offset:%d %s" % (R("a", aAG + 16 * part + 4 * m, 4), 72 + part, 1024 * m, hst), ("hl", m, part), needs=[("tr", m, part, 1)])
                mark(xs, ("hl", m, part))
    dly(xs, cfg.get("fc_lat", 60))
    flag(xs, fstore(64), [("hl", 3, 1)]); mark(xs, "flagc")
    t("v_accvgpr_read_b32 v48, a%d\nv_accvgpr_read_b32 v%d, a%d" % (PK["C"], vCA, PK["CA"]))
    for k in range(4): t("s_xor_b32 s65, s%d, %d\ns_lshl_b32 s65, s65, 16\nv_add_u32 v%d, s65, v48" % (sQ, k, vC + k))
    t("s_and_b32 s65, s%d, 1\ns_lshl_b32 s65, s65, 6\nv_xor_b32 v%d, s65, v%d" % (sTN, vCA, vCA))
    t("v_xor_b32 v%d, 64, v%d\nv_add_u32 v%d, 0x10000, v%d\nv_xor_b32 v%d, 64, v%d" % (vCA + 1, vCA, vCA + 2, vCA, vCA + 3, vCA + 2))
    vOO = 28
    t("v_accvgpr_read_b32 v24, a%d\nv_accvgpr_read_b32 v25, a%d\nv_lshlrev_b32 v25, 2, v25\nv_lshl_add_u32 v%d, v24, 12, v25" % (PK["TOK"], PK["COL"], vOO))
    mark(t, "cready")
    RB = lambda u, m: 128 + 16 * u + 4 * m
    after(t, "flagc", 1)
    t("s_lshl_b32 s65, s%d, 3\ns_add_u32 s65, s65, s%d\ns_lshl_b32 s66, s65, 18\ns_lshl_b32 s67, s%d, 14\ns_add_u32 s66, s66, s67\ns_add_u32 s66, s66, 0x%x" % (sI, sTN, sW, WS_PART))
    t.atom(["s_add_u32 s40, s6, s66", "s_addc_u32 s41, s7, 0"])
    t("s_and_b32 s41, s41, 0xffff\ns_mov_b32 s42, 0x34000\ns_mov_b32 s43, 0x20000")
    t("s_lshl_b32 s69, s65, 2\ns_add_u32 s69, s69, s%d\ns_lshl_b32 s69, s69, 7\ns_add_u32 s69, s69, 0x%x" % (sW, SM_F4))
    for d in (1, 2, 3):
        t("s_xor_b32 s67, s%d, %d\ns_lshl_b32 s66, s67, 16\ns_add_u32 s%d, s66, %d" % (sQ, d, 72 + d, (d - 1) * 4096))
        t("s_lshl_b32 s67, s67, 4\ns_add_u32 s67, s67, %d\nv_mov_b32 v%d, s67" % (4 * d, 28 + d))
        t("s_lshl_b32 s67, s%d, 16\ns_add_u32 s%d, s67, %d" % (sQ, 69 + d, (d - 1) * 4096))
    t("s_lshl_b32 s67, s%d, 4\nv_and_b32 v32, 3, v0\nv_lshl_add_u32 v32, v32, 2, s67" % sQ)
    t("s_mov_b32 s57, 0\ns_mov_b32 s58, 8192\ns_mov_b32 s59, 16384\ns_mov_b32 s64, 24576")
    t("v_mov_b32 v34, 0x3f80\nv_mov_b32 v35, 0x3f800000")
    mark(t, "setup")
    if cfg.get("tlb", 0):
        after(t, ("H", 43), 2)
        t.vm("buffer_load_dword a246, v29, s[40:43], s73 offen")
        t("v_readfirstlane_b32 s67, v%d" % vOO); dly(t, 3)
        t.vm("buffer_load_dword a246, v29, s[8:11], s67 offen")
    f4store = lambda d: "buffer_store_dword v%d, v%d, s[36:39], s69 offen %s" % (vTG, 28 + d, SC)
    f4load = "buffer_load_dword v33, v32, s[36:39], s69 offen %s" % SC
    gp = lambda d: 4 * pend_[d] + 3 + 3
    RV = lambda d, m: 128 + 32 * d + 16 + 4 * m
    rload = lambda d, m: "buffer_load_dwordx4 %s, v1, s[40:43], s%d offen offset:%d %s" % (Q(RV(d, m)), 69 + d, 1024 * m, SC)
    NFI = cfg.get("nfi", 3); NRI = cfg.get("nri", 1)
    fs = Seq(); rs = Seq(); pl_ = Seq(); assert NFI == 3
    for d in (1, 2, 3):
        t.at(gp(d))
        for m in range(4):
            A = 128 + 32 * d + 4 * m; Bq = A + 16
            t("v_cvt_pk_bf16_f32 v%d, v%d, v%d\nv_cvt_pk_bf16_f32 v%d, v%d, v%d\nv_cvt_pk_bf16_f32 v%d, v%d, v%d\nv_cvt_pk_bf16_f32 v%d, v%d, v%d" % (A, A, A + 1, A + 1, A + 2, A + 3, A + 2, Bq, Bq + 1, A + 3, Bq + 2, Bq + 3))
            mark(t, ("cv", d, m))
            after(xs, ("cv", d, m), 1)
            xs.vm("buffer_store_dwordx4 %s, v1, s[40:43], s%d offen offset:%d %s" % (Q(A), 72 + d, 1024 * m, SC), ("ps", d, m)); mark(xs, ("ps", d, m))
        if d <= NFI:
            after(fs, ("ps", d, 3), cfg.get("f4_lat", 44)); flag(fs, f4store(d), [("ps", d, 3)]); mark(fs, ("f4", d))
        f4l = f4load.replace("v33,", "v%d," % (35 + d))
        after(pl_, ("f4", d), cfg.get("p4_lat", 30)); pl_.vm(f4l, ("f4l", d)); mark(pl_, ("f4l", d))
        after(rs, ("f4l", d), cfg.get("p4_rt", 36))
        poll(rs, "P4%d" % d, f4l, 35 + d, ("f4l", d), mask=str(1 << d))
        for m in range(4):
            rs.vm(rload(d, m), ("pl", d, m)); mark(rs, ("pl", d, m)); dly(rs, cfg.get("r_sp", 8))
    hs = Seq(); hdl = {}
    if not HPN: poll(hs, "P3a0", fload(96), vPD, "f3a0", early=cfg.get("pa_gap", 12))
    for u in range(nh_pre[0], 44):
        if u in own: continue
        for (U, nm, off, fl, lat) in ((UA, "P3a", 0, None, 0), (UB, "P3b", 32, "flagb", cfg.get("pb_lat", 80)), (UC, "P3c", 64, "flagc", cfg.get("pc_lat", 80))):
            if u == (max(U - 2, nh_pre[0]) if U != UC else U):
                if fl: after(hs, fl, lat)
                hs.vm(fload(off), nm); mark(hs, nm + "l")
            if u == U:
                after(hs, nm + "l", cfg.get("poll_rt", 44)); poll(hs, nm, fload(off), vPD, nm); mark(hs, nm)
        n0 = len(hs.u)
        for m in range(4): hload(hs, u, m, max(hfree[u], 4 * firstuse[u] - cfg.get("l2_la", 400)))
        for i in range(n0, len(hs.u)): hdl[i] = 4 * firstuse[u] - 1
        mark(hs, ("H", u))
    ds = Seq(); ddl = {}
    DL = lambda st: bar[st // B2 * B2 - 1] if st < 14 else (bar[13] if st < 18 else barF)
    for st in range(NPRE2, 22):
        n0 = len(ds.u)
        if st == "E":
            after(ds, "cready", 1); after(ds, ("hl", 3, 1), 1)
            for n in range(4):
                ds("s_mov_b32 s%d, %d\ns_add_u32 m0, s46, %d" % (sKD, 32768 * n, 2048 + 1024 * n))
                ds.vm("buffer_load_dwordx4 v26, s[24:27], s%d offen lds" % sKD)
            ds("s_add_u32 m0, s46, 6144"); ds.vm("buffer_load_dwordx4 v1, s[36:39], s59 offen lds")
            ds("s_add_u32 m0, s46, 7168"); ds.vm("buffer_load_dwordx4 v1, s[28:31], s58 offen lds", "Elast"); mark(ds, "edma")
            dl = 900
        else:
            if st == 14: after(ds, "cready", 1)
            for k in range(4): dma2(ds, st, k, bar[prevocc[st] // B2 * B2 + B2 - 1] + 1 if st >= 8 else 0)
            dl = DL(st)
            mark(ds, ("D", st))
        for i in range(n0, len(ds.u)): ddl[i] = dl
    RS = Stream("r", rs.units(), 2, deadline=lambda i: cfg.get("r_prio", -3)); PS = Stream("pl", pl_.units(), 2, deadline=lambda i: -2); RS.overflow = PS.overflow = True
    mk = multi(sc, [Stream("h", hs.units(), 2, deadline=lambda i: hdl.get(i, 0)), Stream("d", ds.units(), 2, deadline=lambda i: ddl.get(i, 0)),
                    Stream("x", xs.units(), 2), Stream("t", t.units(), 3, start=1), RS, PS, Stream("f", fs.units(), 2, deadline=lambda i: -2)],
               cl=cfg.get("cl", 70), cs=cfg.get("cs", 210), B0=cfg.get("b0", 150), busy0=cfg.get("busy0", 300))
    sl = sorted([(4 * firstuse[u] - 1 - mk[("H", u)], "h", u) for u in range(nh_pre[0], 44) if u not in own] + [(DL(st) - mk[("D", st)], "d", st) for st in range(NPRE2, 22)])
    if cfg.get("verbose"):
        print("loop2 slacks", sl[:6], {k: v for k, v in mk.items() if isinstance(k, str)}, "hl", [mk[("hl", m, p)] for m in range(4) for p in range(2)], "ps", [mk[("ps", d, m)] for d in (1, 2, 3) for m in range(4)], "barF", barF, "f4", [mk.get(("f4", d)) for d in (1, 2, 3)], "f4l", [mk.get(("f4l", d)) for d in (1, 2, 3)], "pl", [mk.get(("pl", d, m)) for d in (1, 2, 3) for m in range(4)])
    assert sl[0][0] > cfg.get("minslack", 30), sl[:4]
    assert mk["cready"] < rgap[firstuse[28]] and mk[("hl", 3, 1)] < 4 * firstuse[28] - 1 and mk["setup"] < gp(1) and mk[("tr", 3, 1)] < VFREE
    for nm in names:
        if TS and nm[0] == "g" and nm[1:].isdigit():
            g_ = 4 * (16 * (int(nm[1:]) + 1) - L2) - 2
            sc.put(g_ - 1, [Op("s_memrealtime s[100:101]")], 5)
            sc.put(g_, [Op("s_waitcnt lgkmcnt(0)\nv_writelane_b32 v%d, s100, %d" % (vTS, names.index(nm)))], 5)
    if cfg.get("drop"):
        for g in range(cfg.get("drop_lo", 120), cfg.get("drop_hi", 600)):
            for it in sc.g[g]:
                o = it[2]
                if it[0] in (2, 3) and o.text and "\n" not in o.text and not o.text.endswith(":"):
                    c = opclass(o.text)
                    if it[0] == 2 and not (c == "X" and "x4" in o.text): continue
                    if c in cfg["drop"] and "cmp" not in o.text and not any(("v%d," % r) in o.text.split(None, 2)[1] + "," for r in range(16, 32)):
                        o.text = "s_nop 0" if cfg.get("dropnop") else ""
    prog.add(sc.ops())
    stamp(s, "end2")
    def addp(d, m):
        s.wait([("pl", d, m)])
        for k in range(8):
            r = RB(k // 4, m) + k % 4
            s("v_dot2_f32_bf16 v%d, v%d, v%d, v%d" % (r, RV(d, m) + k // 2, 34 + k % 2, r))
    for un in PS.units[PS.pos:]: s.u.append([un[0], None])
    added = set()
    for un in RS.units[RS.pos:]:
        if un[0][0].needs and not un[0][0].text:
            for d in (1, 2):
                for m in range(4):
                    if ("pl", d, m) in mk and (d, m) not in added: addp(d, m); added.add((d, m))
        s.u.append([un[0], None])
    stamp(s, "poll4")
    for d in (1, 2):
        for m in range(4):
            if (d, m) not in added: addp(d, m)
    sM4 = [57, 58, 59, 64]
    for m in range(4):
        addp(3, m)
        stamp(s, "r%d" % m)
        s.vm("buffer_store_dwordx4 %s, v%d, s[8:11], s%d offen %s" % (Q(RB(0, m)), vOO, sM4[m], cfg.get("ost", SC)))
        s("s_nop 1")
        s.vm("buffer_store_dwordx4 %s, v%d, s[8:11], s%d offen offset:64 %s" % (Q(RB(1, m)), vOO, sM4[m], cfg.get("ost", SC)))
    prog.add(s.done())
    prog.emit(a)
    a("s_cmp_eq_u32 s%d, 31\ns_cbranch_scc0 L_noep\ns_cmp_eq_u32 s%d, 0\ns_cbranch_scc0 L_noep" % (sB, sJ))
    a("v_mov_b32 v40, 0x%x\ns_mov_b64 exec, 1\nbuffer_store_dword v%d, v40, s[36:39], 0 offen %s\ns_mov_b64 exec, -1" % (SM_EP, vTG, SC))
    a("L_noep:")
    if TS:
        a("s_waitcnt vmcnt(0)\ns_memrealtime s[100:101]\ns_waitcnt lgkmcnt(0)\nv_writelane_b32 v%d, s100, %d" % (vTS, len(names) - 1))
        a("s_cmp_lg_u32 s%d, %d\ns_cbranch_scc1 L_end" % (sW, cfg.get("tsw", 0)))
        if cfg.get("leak"):
            A, B = cfg["leak"].split(":")
            a("s_cmp_lg_u32 s2, %d\ns_cbranch_scc1 L_end" % cfg.get("leakwg", 100))
            a("v_readlane_b32 s64, v%d, %d\nv_readlane_b32 s65, v%d, %d\ns_nop 4\ns_sub_u32 s64, s65, s64\ns_mul_i32 s64, s64, %d\ns_min_u32 s64, s64, 200000" % (vTS, names.index(A), vTS, names.index(B), cfg.get("leakk", 8)))
            a("L_leak:\ns_memrealtime s[66:67]\ns_waitcnt lgkmcnt(0)\ns_sub_u32 s66, s66, s100\ns_cmp_lt_u32 s66, s64\ns_cbranch_scc1 L_leak")
        ws_srd(a, 12, WS_TS, 16384)
        a("s_lshl_b32 s75, s2, 6\nv_lshlrev_b32 v1, 2, v0\ns_mov_b64 exec, 0xffff\nbuffer_store_dword v%d, v1, s[12:15], s75 offen" % vTS)
    if cfg.get("rc"): STAMPS[1:1 + len(RC)] = RC
    a("L_end:")
    a("s_endpgm")
    if ".p2align 12" in a.lines and cfg.get("oolf", 1):
        i = a.lines.index(".p2align 12"); a.lines[i:i] = ool.lines
    else: a.lines += ool.lines
    a("L_codeend:")
    return name, a

DOC = """;
; instruction placed by hand-written rules into the issue gaps between the 16x16x32 bf16 MFMAs).
;   phase 1  [gate | up | B_re | B_im] projection, tile 256 x 288, weights by LDS-DMA, xn straight into registers
;   phase 2  [w_down ; C_re ; -C_im] projection, tile 256 x 128, K split over 4 workgroups, partial sums exchanged
"""

def inst_sizes(lines):
    import subprocess, tempfile, os, re
    d = tempfile.mkdtemp()
    und = sorted(set(re.findall(r"L_trB?\d+\b", "\n".join(lines))))
    open(d + "/a.s", "w").write('.amdgcn_target "amdgcn-amd-amdhsa--gfx950"\n' + "\n".join(l for l in lines if not l.startswith(".p2align 12")) + "\n" + "".join(u + ":\n" for u in und))
    subprocess.check_call(["clang", "-x", "assembler", "-target", "amdgcn-amd-amdhsa", "-mcpu=gfx950", "-c", d + "/a.s", "-o", d + "/a.o"])
    o = subprocess.check_output(["llvm-objdump", "-d", "--mcpu=gfx950", d + "/a.o"], text=True)
    sz = [4 * len(m.group(1).split()) for m in re.finditer(r"// [0-9A-F]+: ([0-9A-F ]+)", o)]
    n = sum(1 for l in lines if parse(l))
    assert n == len(sz), (n, len(sz))
    return sz

def add_stubs(lines, cfg):
    NL = 1; step = cfg.get("tr_step", 128)
    sz = iter(inst_sizes(lines)); size = [next(sz) if parse(l) else 0 for l in lines]
    i0 = lines.index("L_main:"); iend = lines.index("L_end:")
    out = lines[:i0 + 1]; off = 0; targets = [4096 * p + step * k for p in range(0, 40) for k in range(NL)]
    n = 0; pos = []
    def penalty(i):
        if not lines[i - 1].startswith("v_mfma"): return 0 if not any(l.startswith("v_mfma") for l in lines[max(0, i - 6):i + 6]) else 1
        j = i; c = ["S"]
        while not lines[j].startswith("v_mfma") and j - i < 8:
            try: c.append(opclass(lines[j]))
            except AssertionError: return 0
            j += 1
        t = gap_time(c)
        return 0 if (t is not None and t <= 16) else 1
    for i in range(i0 + 1, len(lines)):
        if i < iend and size[i] and off >= targets[n] and (penalty(i) == 0 or off + size[i] > targets[n] + 56):
            out.append("L_tr%d:" % n); out.append(("STUB", n)); off += 4; n += 1
        out.append(lines[i]); off += size[i]
    n1 = min(n, cfg.get("tr_n", 14))
    res = []
    for l in out:
        if isinstance(l, tuple):
            k = l[1]; nx = k + 4
            if k < n1: res.append("s_cbranch_execz %s" % ("L_tr%d" % nx if nx < n1 else "L_trret"))
            elif cfg.get("tr2", 1): res.append("s_cbranch_execz %s" % ("L_tr%d" % nx if nx < n else "L_trret2"))
            else: res.append("s_nop 0")
        elif "L_trB" in l:
            k = n1 + int(l[-1]); res.append(l.replace("L_trB" + l[-1], "L_tr%d" % k if k < n else "L_trret2"))
        else: res.append(l)
    if cfg.get("verbose"): print("pages", n)
    return res

def build(cfg):
    name, a = gen(cfg)
    hdr = open("cdna_kernels/%s.s.ref" % NAME).read().split("; Override launch")[0]
    out = hdr + "; @launch grid=(256,1,1) block=(256,1,1) lds=163840\n"
    out += DOC
    out += '.amdgcn_target "amdgcn-amd-amdhsa--gfx950"\n'
    lines = pad_hazards([l for l in a.lines if l], cfg.get("verbose", 0) > 1)
    if cfg.get("tramp", 1): lines = add_stubs(lines, cfg)
    if cfg.get("verbose"): print(gap_report(lines))
    if cfg.get("lsc"): lines = [l.replace("sc0 sc1", cfg["lsc"]) if l.startswith("buffer_load") else l for l in lines]
    la = cfg.get("laux"); da = cfg.get("daux")
    if la: lines = [l + " " + la if (l.startswith("buffer_load_dwordx4 a[") and "sc1" not in l) else l for l in lines]
    if da: lines = [l.replace(" lds", " %s lds" % da) if l.endswith(" lds") else l for l in lines]
    out += "\n".join(lines) + "\n"
    if cfg.get("cyc"): out = out.replace("s_memrealtime", "s_memtime")
    b = Asm(); kernel_desc(b, name, 512, accum=256); out += b.text()
    return out

if __name__ == "__main__":
    cfg = {}
    for kv in sys.argv[2:]:
        k, v = kv.split("=")
        try: v = int(v)
        except ValueError:
            try: v = float(v)
            except ValueError: v = v.replace("+", " ")
        cfg[k] = v
    open(sys.argv[1], "w").write(build(cfg))
```

```python
import sys, math, struct
from asmlib import *

NAME = "parallel_sum__ssm_conv_s5__glu_gated_geglu__prompt"
KX, KLRE, KLIM, KBRE, KBIM, KCRE, KCIM, KLDT, KDSK, KBX, KWG, KWU, KWD, KOUT, KDBG, KWS = [8 * i for i in range(16)]
WS_XN = 0
WS_H = 0x400000
H_BLK = 176 * 4096
WS_SM = 0x1A00000
SM_AG = 0; SM_ST = 0x40000; SM_EP = 0x48000; SM_F1 = 0x50000; SM_F1B = 0x60000; SM_F3 = 0x70000; SM_F4 = 0xB0000; SM_SIZE = 0xF0000
WS_TS = 0x1B00000
WS_PART = 0x2000000
NSTAMPS = [16]
SPLIT_LAYOUT = True
XN_DIRECT = 0
STAMPS = []

def f2u(x): return struct.unpack("<I", struct.pack("<f", x))[0]
def fx(x): return "0x%08x" % f2u(x)
P = lambda r: "v[%d:%d]" % (r, r + 1)
Q = lambda r: "v[%d:%d]" % (r, r + 3)
LOG2E = 1.4426950408889634
K = lambda v: (lambda it: v)

def ws_srd(a, r, off, size):
    a("s_add_u32 s%d, s6, 0x%x\ns_addc_u32 s%d, s7, 0\ns_and_b32 s%d, s%d, 0xffff\ns_mov_b32 s%d, 0x%x\ns_mov_b32 s%d, 0x20000" % (r, off, r + 1, r + 1, r + 1, r + 2, size, r + 3))

def mfma16(d, A, B, zero=False):
    return "v_mfma_f32_16x16x32_bf16 %s, %s, %s, %s" % (R(d[0], d[1], 4), R(A[0], A[1], 4), R(B[0], B[1], 4), "0" if zero else R(d[0], d[1], 4))

def cmul_pk(a, dr, di, ar, ai, br, bi, t):
    a("v_pk_mul_f32 %s, %s, %s" % (P(t), P(ai), P(bi)))
    a("v_pk_fma_f32 %s, %s, %s, %s neg_lo:[0,0,1] neg_hi:[0,0,1]" % (P(t), P(ar), P(br), P(t)))
    a("v_pk_mul_f32 %s, %s, %s" % (P(t + 2), P(ar), P(bi)))
    a("v_pk_fma_f32 %s, %s, %s, %s" % (P(di), P(ai), P(br), P(t + 2)))
    a("v_mov_b32 v%d, v%d\nv_mov_b32 v%d, v%d" % (dr, t, dr + 1, t + 1))

def horner_pk(a, s, L, e, d):
    a("v_pk_fma_f32 %s, %s, %s, %s" % (P(d), P(L), P(s), P(e)))
    a("v_pk_fma_f32 %s, %s, %s, %s" % (P(d + 2), P(L), P(s + 2), P(e + 2)))
    a("v_pk_fma_f32 %s, %s, %s, %s neg_lo:[1,0,0] neg_hi:[1,0,0]" % (P(d), P(L + 2), P(s + 2), P(d)))
    a("v_pk_fma_f32 %s, %s, %s, %s" % (P(d + 2), P(L + 2), P(s), P(d + 2)))

def horner_sc(a, s, L, e):
    for T in range(2):
        a("v_fmac_f32 v%d, v%d, v%d" % (e + T, L + T, s + T)); a("v_fmac_f32 v%d, v%d, v%d" % (e + 2 + T, L + T, s + 2 + T))
    for T in range(2):
        a("v_fma_f32 v%d, -v%d, v%d, v%d" % (e + T, L + 2 + T, s + 2 + T, e + T)); a("v_fmac_f32 v%d, v%d, v%d" % (e + 2 + T, L + 2 + T, s + T))

def gelu_block(a, items, CC, T):
    for k, (g, u, o) in enumerate(items): a("v_pk_mul_f32 %s, %s, %s" % (P(T + 2 * k), P(g), P(g)))
    for k, (g, u, o) in enumerate(items): a("v_pk_fma_f32 %s, %s, %s, %s op_sel:[0,1,0] op_sel_hi:[1,1,0]" % (P(T + 2 * k), P(T + 2 * k), P(CC), P(CC)))
    for k, (g, u, o) in enumerate(items): a("v_pk_mul_f32 %s, %s, %s" % (P(T + 2 * k), P(T + 2 * k), P(g)))
    for k, (g, u, o) in enumerate(items):
        a("v_exp_f32 v%d, v%d" % (T + 2 * k, T + 2 * k)); a("v_exp_f32 v%d, v%d" % (T + 2 * k + 1, T + 2 * k + 1))
        a("v_pk_mul_f32 %s, %s, %s" % (P(u), P(g), P(u)))
    for k, (g, u, o) in enumerate(items): a("v_pk_add_f32 %s, %s, 1.0 op_sel_hi:[1,0]" % (P(T + 2 * k), P(T + 2 * k)))
    for k, (g, u, o) in enumerate(items):
        a("v_rcp_f32 v%d, v%d" % (T + 2 * k, T + 2 * k)); a("v_rcp_f32 v%d, v%d" % (T + 2 * k + 1, T + 2 * k + 1))
    for k, (g, u, o) in enumerate(items): a("v_pk_mul_f32 %s, %s, %s" % (P(u), P(u), P(T + 2 * k)))
    for k, (g, u, o) in enumerate(items): a("v_cvt_pk_bf16_f32 v%d, v%d, v%d" % (o, u, u + 1))

class Seq:
    def __init__(self): self.u = []
    def __call__(self, s):
        for l in s.split("\n"):
            l = l.strip()
            assert not l.startswith(("buffer_", "global_", "ds_")), ("uncounted memory op", l)
            self.u.append([[Op(l)], None])
    def atom(self, ops, early=None): self.u.append([[o if isinstance(o, Op) else Op(o) for o in ops], early])
    def vm(self, text, tag=None, needs=None, early=None):
        if needs: self.wait(needs, early=early); early = None
        self.u.append([[Op(text, "vm", K(tag) if tag is not None else None)], early])
    def lg(self, text, tag=None, needs=None):
        if needs: self.wait(needs)
        self.u.append([[Op(text, "lg", K(tag) if tag is not None else None)], None])
    def wait(self, needs, drain=None, early=None): self.u.append([[Op("", needs=K(needs) if needs else None, drain=drain)], early])
    def op(self, o, early=None): self.u.append([[o], early])
    def delay(self, n):
        self._d = n; i = len(self.u) - 1
        self.u.append([[Op("")], lambda res, n=n: res[-1] + n])
    def at(self, g): self.u.append([[Op("")], g])
    def done(self):
        o = [x for un, _ in self.u for x in un]; self.u = []; return o
    def units(self):
        u = self.u; self.u = []; return u

def order_mfma(groups):
    ch = [groups[2 * p][1] == groups[2 * p + 1][1] for p in range(len(groups) // 2)]
    out = []; up = True
    for p, c in enumerate(ch):
        if c:
            for m in (range(4) if up else range(3, -1, -1)): out += [(2 * p, m), (2 * p + 1, m)]
            up = not up
        else:
            for G in (2 * p, 2 * p + 1):
                out += [(G, m) for m in (range(4) if up else range(3, -1, -1))]; up = not up
    return out, (lambda G: G & ~1 if ch[G // 2] else G), (lambda G: G | 1 if (G >= 0 and ch[G // 2]) else G)

W_ST = 28672; U_OFF = 14336
B_BASE = 131072; B_ST = 8192
LN_LDS = 65536 + W_ST

def gen(cfg):
    name = NAME + "_kernel"
    a = Asm(); kernel_header(a, name)
    ool = Asm()
    TS = cfg.get("ts")
    names = ["start"] + cfg.get("stamps", "flag1 poll1 loop1 end1 p01 pub loop2 end2 poll4").split() + ["end"]
    STAMPS[:] = names; NSTAMPS[0] = len(names)
    vTS = 15; RC = []
    def stamp(s, nm):
        if TS and nm in names: s.atom(["s_memrealtime s[100:101]", "s_waitcnt lgkmcnt(0)", "v_writelane_b32 v%d, s100, %d" % (vTS, names.index(nm))])
    SC = cfg.get("sc", "sc0 sc1")
    HL = cfg.get("hl", "sc1")
    FS = cfg.get("f1s", 128)
    prog = Prog(); s = Seq()
    sJ, sI, sW, sB, sQ, sTN, sTAG = 60, 61, 62, 63, 52, 53, 3
    sMW, sM3, sMB, sKW, sKB, sKX, sCNT = 54, 55, 56, 57, 58, 59, 81
    sPAs, sKPA, sKPB, sPBs = 76, 77, 78, 80
    def poll(s, nm, loadtext, dst, tagneed, mask=None, early=None):
        s.wait([tagneed], early=early)
        s.atom(["%s_chk:" % nm, "v_cmp_ne_u32 vcc, s%d, v%d" % (sTAG, dst), "s_and_b64 vcc, vcc, %s" % (mask or "exec"), "s_cbranch_scc1 %s_retry" % nm, "%s_ok:" % nm])
        ool("%s_retry:" % nm)
        if cfg.get("rc"): RC.append(nm); ool("v_readlane_b32 s100, v15, %d\ns_nop 3\ns_add_u32 s100, s100, 100\nv_writelane_b32 v15, s100, %d" % (len(RC), len(RC)))
        ool("%s_r2:\ns_cmp_eq_u32 s79, 0\ns_cbranch_scc1 %s_ok\ns_sub_u32 s79, s79, 1\ns_sleep %d\n%s\ns_waitcnt vmcnt(0)\ns_branch %s_chk" % (nm, nm, cfg.get("psl", 1), loadtext, nm))
    def flag(s, text, needs, early=None):
        s.wait(needs, early=early)
        s.atom(["s_mov_b64 exec, %d" % (15 if "x4" in text else 1), Op(text, "vm"), "s_mov_b64 exec, -1"])

    s("s_cmp_ge_u32 s2, 256\ns_cbranch_scc1 L_end")
    if cfg.get("gx"): s("s_xor_b32 s2, s2, %d" % cfg["gx"])
    if TS: s("s_memrealtime s[100:101]")
    CP = cfg.get("cpf", 1)
    s("s_load_dwordx2 s[4:5], s[0:1], %d" % KX)
    s("s_load_dwordx2 s[6:7], s[0:1], %d" % KWS)
    s("s_load_dwordx4 s[12:15], s[0:1], %d" % KWG)
    s("s_load_dwordx4 s[24:27], s[0:1], %d" % KBRE)
    s("s_load_dwordx4 s[96:99], s[0:1], %d" % KLRE)
    s("s_load_dwordx4 s[92:95], s[0:1], %d" % KLDT)
    s("s_load_dwordx4 s[84:87], s[0:1], %d" % KWD)
    s("s_load_dwordx4 s[88:91], s[0:1], %d" % KCRE)
    if CP:
        s("s_getpc_b64 s[82:83]")
        s.atom(["L_pc:"])
        s("s_lshr_b32 s64, s2, 3\ns_mul_i32 s64, s64, 28\nv_add_u32 v3, s64, v0\nv_cmp_gt_u32 vcc, 64, v0\nv_cndmask_b32 v2, v3, v0, vcc\nv_lshlrev_b32 v2, 7, v2")
        s("v_min_u32 v2, L_codeend-L_pc-4, v2\nv_mov_b32 v3, 0\nv_lshl_add_u64 v[2:3], v[2:3], 0, s[82:83]")
        s("v_cmp_gt_u32 vcc, 92, v0\ns_and_saveexec_b64 s[66:67], vcc\ns_cbranch_execz L_nocp")
        s.atom([Op("global_load_dword a246, v[2:3], off")])
        s.atom(["L_nocp:", "s_mov_b64 exec, -1"])
    s("v_lshrrev_b32 v1, 6, v0\nv_and_b32 v0, 63, v0")
    s("v_readfirstlane_b32 s%d, v1" % sW)
    s("v_lshlrev_b32 v1, 4, v0")
    s("s_mov_b32 s79, 0x40000")
    s("s_bfe_u32 s%d, s2, 0x20001" % sQ)
    s("s_and_b32 s64, s2, 1\ns_lshl_b32 s64, s64, 2\ns_lshr_b32 s%d, s2, 6\ns_add_u32 s%d, s%d, s64" % (sI, sI, sI))
    s("s_bfe_u32 s%d, s2, 0x30003" % sTN)
    s("s_lshl_b32 s%d, s%d, 3\ns_add_u32 s%d, s%d, s%d" % (sJ, sQ, sJ, sJ, sTN))
    s("s_lshl_b32 s%d, s%d, 2\ns_add_u32 s%d, s%d, s%d" % (sB, sI, sB, sB, sW))
    s("s_and_b32 s64, s2, 1\ns_lshl_b32 s64, s64, 1\ns_lshr_b32 s65, s%d, 1\ns_add_u32 s64, s64, s65\ns_lshl_b32 s64, s64, 4" % sW)
    s("s_lshl_b32 s65, s%d, 1\ns_add_u32 s64, s64, s65" % sQ)
    s("s_lshr_b32 s66, s2, 3\ns_lshl_b32 s65, s66, 6\ns_add_u32 s64, s64, s65")
    s("s_lshl_b32 s67, s64, 11\ns_and_b32 s68, s%d, 1\ns_lshl_b32 s65, s68, 8\ns_add_u32 s67, s67, s65" % sW)
    LQ = cfg.get("lq", 1)
    if LQ: s("v_and_b32 v48, 15, v0\nv_bfe_u32 v56, v0, 1, 1\nv_and_b32 v57, 1, v0\nv_lshl_add_u32 v56, v57, 3, v56\nv_lshrrev_b32 v57, 2, v0\nv_lshlrev_b32 v40, 11, v56\nv_lshl_add_u32 v40, v57, 4, v40")
    else: s("v_and_b32 v48, 15, v0\nv_lshrrev_b32 v56, 5, v0\nv_bfe_u32 v57, v0, 4, 1\nv_lshl_add_u32 v56, v57, 3, v56\nv_lshlrev_b32 v40, 11, v56\nv_lshl_add_u32 v40, v48, 4, v40")
    s("s_mov_b32 s10, %d\ns_mov_b32 s11, 0x20000" % (2048 * 2048))
    s("s_waitcnt lgkmcnt(0)")
    if TS: s("v_writelane_b32 v%d, s100, 0" % vTS)
    if cfg.get("rc"): s("v_mov_b32 v15, 0")
    stamp(s, "karg")
    s("s_mov_b32 s8, s4\ns_and_b32 s9, s5, 0xffff")
    for q in range(4): s.vm("buffer_load_dwordx4 %s, v40, s[8:11], s67 offen offset:%d" % (Q(64 + 4 * q), 512 * q), ("x", q))
    s("s_add_u32 s70, s6, 0x%x\ns_addc_u32 s71, s7, 0" % (WS_SM + SM_EP))
    s("s_load_dword s%d, s[70:71], 0" % sTAG)
    srd(s, 16, 14, 15, 1024 * 7168); srd(s, 12, 12, 13, 1024 * 7168)
    srd(s, 28, 26, 27, 1024 * 2048); srd(s, 24, 24, 25, 1024 * 2048)
    s("s_cmp_ge_u32 s%d, 2" % sW)
    s("s_cselect_b32 s20, s16, s12\ns_cselect_b32 s21, s17, s13\ns_mov_b32 s22, %d\ns_mov_b32 s23, 0x20000" % (1024 * 7168))
    ws_srd(s, 36, WS_SM, SM_SIZE)
    s("v_lshrrev_b32 v49, 4, v0")
    WGF = 1; vP1 = 63
    s("v_and_b32 v60, 31, v0\nv_lshlrev_b32 v60, 2, v60\ns_lshl_b32 s81, s%d, 7\ns_add_u32 s81, s81, 0x%x" % (sB, SM_F1B))
    s("v_and_b32 v63, 7, v0\nv_lshlrev_b32 v63, 6, v63\ns_lshl_b32 s75, s%d, 11\ns_lshl_b32 s65, s%d, 9\ns_add_u32 s75, s75, s65\ns_add_u32 s75, s75, 0x%x" % (sB, sQ, SM_F1))
    FT = cfg.get("ftouch", 0)
    if FT & 4: s.vm("buffer_load_dword a246, v63, s[36:39], s75 offen %s" % SC)
    if FT & 1: s.vm("buffer_load_dword a246, v60, s[36:39], s81 offen %s" % SC)
    s("v_mov_b32 v41, -1\nv_lshlrev_b32 v42, 2, v0\ns_xor_b32 s69, s2, 0xf8\ns_lshl_b32 s69, s69, 10\ns_lshl_b32 s65, s%d, 8\ns_add_u32 s69, s69, s65" % sW)
    s.vm("buffer_store_dword v41, v42, s[36:39], s69 offen %s" % SC, "agfill")
    vWA, vBA0, vBA1, vWA2, vW0, vW3, vB, vJ, vPA, vPB = 2, 3, 4, 5, 6, 9, 10, 12, 13, 14
    s("s_lshl_b32 s70, s66, 1\ns_and_b32 s65, s2, 1\ns_add_u32 s70, s70, s65")
    s("s_mul_i32 s69, s70, 7168\ns_mul_i32 s65, s%d, 1792\ns_add_u32 s69, s69, s65\nv_and_b32 v40, 31, v0\nv_min_u32 v40, 13, v40\nv_lshl_add_u32 v44, v40, 7, s69" % sQ)
    s("v_and_b32 v45, 3, v0\ns_lshl_b32 s69, s%d, 8\ns_lshl_b32 s65, s70, 2\ns_add_u32 s69, s69, s65\nv_add_u32 v45, s69, v45\nv_lshlrev_b32 v45, 11, v45" % sQ)
    if cfg.get("pfd"):
        n_ = cfg["pfd"]
        s("s_and_b32 s65, s2, 1\ns_mul_i32 s69, s65, %d\ns_add_u32 s69, s69, 7168\ns_mul_i32 s65, s65, %d\ns_add_u32 s65, s65, 8192\nv_cmp_gt_u32 vcc, 32, v0" % (-2 * 7168, -2 * 8192))
        s("v_mov_b32 v40, s69\nv_mov_b32 v43, %d\nv_cndmask_b32 v40, v40, v43, vcc\nv_add_u32 v44, v44, v40\nv_mov_b32 v40, s65\nv_mov_b32 v43, %d\nv_cndmask_b32 v40, v40, v43, vcc\nv_add_u32 v45, v45, v40" % (n_ * 64 * 7168, n_ * 128))
    s("s_mov_b32 s69, %d\ns_cmp_ge_u32 s%d, 2\ns_cselect_b64 vcc, -1, 0\nv_cndmask_b32 v%d, v44, v45, vcc\ns_cselect_b32 s%d, 128, s69" % (64 * 7168, sW, vPA, sPAs))
    s("s_cselect_b32 s40, s24, s12\ns_cselect_b32 s41, s25, s13\ns_cselect_b32 s69, s28, s16\ns_cselect_b32 s65, s29, s17\ns_cselect_b32 s42, s26, s14")
    s("s_bitcmp1_b32 s%d, 0\ns_cselect_b32 s40, s69, s40\ns_cselect_b32 s41, s65, s41\ns_mov_b32 s43, 0x20000\ns_mov_b32 s%d, 0" % (sW, sKPA))
    def pfa(s):
        s.vm("buffer_load_dword a246, v%d, s[40:43], s%d offen" % (vPA, sKPA)); s("s_add_u32 s%d, s%d, s%d" % (sKPA, sKPA, sPAs))
    def pfb(s):
        s.vm("buffer_load_dword a246, v%d, s[44:47], s%d offen" % (vPB, sKPB)); s("s_add_u32 s%d, s%d, s%d" % (sKPB, sKPB, sPBs))
    ND = cfg.get("dup0", 0)
    if ND:
        s("s_and_b32 s65, s2, 1\ns_lshl_b32 s65, s65, 1\ns_sub_u32 s65, 1, s65\ns_cmp_ge_u32 s%d, 2\ns_mov_b32 s69, 7168\ns_cselect_b32 s69, 8192, s69\ns_mul_i32 s69, s69, s65" % sW)
        s("v_lshrrev_b32 v43, 5, v0\nv_mul_lo_u32 v43, v43, s69\nv_add_u32 v%d, v%d, v43" % (vPA, vPA))
        for _ in range(ND): pfa(s)
        s("v_sub_u32 v%d, v%d, v43" % (vPA, vPA))
    if cfg.get("pfd"): s("s_mov_b32 exec_lo, 0")
    for _ in range(cfg.get("pf_t0", 3) - ND): pfa(s)
    if cfg.get("pfd"): s("s_mov_b64 exec, -1\ns_mul_i32 s%d, s%d, %d" % (sKPA, sPAs, cfg.get("pf_t0", 3) - cfg["pfd"]))
    s("s_and_b32 s71, s%d, 1\ns_lshl_b32 s71, s71, 1\ns_mul_i32 s72, s%d, 224\ns_and_b32 s73, s%d, 1\ns_add_u32 s73, s73, 12" % (sJ, sJ, sW))
    for k in range(4):
        if k < 3: s("s_add_u32 s69, s%d, %d\ns_lshl_b32 s69, s69, 6" % (sW, 4 * k))
        else: s("s_lshl_b32 s69, s73, 6")
        s("v_add_u32 v40, s69, v0\nv_mul_u32_u24 v44, 4682, v40\nv_lshrrev_b32 v44, 16, v44\nv_mul_u32_u24 v45, 14, v44\nv_sub_u32 v45, v40, v45")
        s("v_add_u32 v45, s71, v45\nv_subrev_u32 v43, 14, v45\nv_min_u32 v45, v45, v43")
        s("v_lshrrev_b32 v43, 1, v44\nv_xor_b32 v43, v43, v44\nv_and_b32 v43, 4, v43\nv_mul_u32_u24 v43, 3, v43\nv_xor_b32 v44, v44, v43")
        s("v_mul_u32_u24 v44, 7168, v44\nv_lshl_add_u32 v44, v45, 4, v44\nv_add_u32 v%d, s72, v44" % (vW0 + k))
    s("v_lshrrev_b32 v50, 3, v0\ns_lshl_b32 s69, s%d, 3\nv_add_u32 v40, s69, v50\nv_bfe_u32 v44, v40, 1, 3\nv_and_b32 v51, 7, v0\nv_xor_b32 v44, v44, v51" % sW)
    s("v_lshlrev_b32 v47, 11, v40\nv_lshl_add_u32 v47, v44, 4, v47")
    s("s_lshl_b32 s69, s%d, 16\nv_add_u32 v%d, s69, v47" % (sJ, vB))
    s("s_lshl_b32 s%d, s%d, 10\ns_lshl_b32 s%d, s73, 10" % (sMW, sW, sM3))
    s("s_cmp_ge_u32 s%d, 2\ns_cselect_b32 s69, %d, 0\ns_add_u32 s%d, s%d, s69\ns_add_u32 s%d, s%d, %d" % (sW, U_OFF, sM3, sM3, sMB, sMW, B_BASE))
    s("s_lshl_b32 s65, s%d, 9\ns_add_u32 s65, s65, 57344\nv_lshl_add_u32 v52, v0, 3, s65\nv_xor_b32 v54, 512, v52" % sW)
    if LQ: s("v_lshlrev_b32 v55, 12, v49\nv_lshrrev_b32 v44, 2, v48\nv_lshl_add_u32 v55, v44, 8, v55\nv_and_b32 v44, 48, v1\nv_add_u32 v55, v55, v44")
    else: s("v_lshrrev_b32 v55, 2, v48\nv_lshlrev_b32 v55, 12, v55\nv_and_b32 v44, 3, v0\nv_lshl_add_u32 v55, v44, 8, v55\nv_lshl_add_u32 v55, v49, 4, v55")
    s("s_lshl_b32 s70, s66, 17\ns_lshl_b32 s67, s%d, 10\ns_add_u32 s70, s70, s67\ns_and_b32 s67, s2, 1\ns_lshl_b32 s67, s67, 7\ns_add_u32 s70, s70, s67" % sQ)
    s("s_lshr_b32 s67, s%d, 1\ns_lshl_b32 s67, s67, 6\ns_add_u32 s70, s70, s67\ns_lshl_b32 s67, s68, 14\ns_add_u32 s70, s70, s67" % sW)
    s("s_add_u32 s71, s70, 32768\ns_add_u32 s72, s70, 65536\ns_add_u32 s73, s70, 98304")
    s("s_lshl_b32 s74, s2, 7\ns_lshr_b32 s67, s%d, 1\ns_lshl_b32 s67, s67, 6\ns_add_u32 s74, s74, s67\ns_add_u32 s74, s74, 0x%x" % (sW, SM_ST))
    ws_srd(s, 48, WS_XN, 0x400000)
    dma_items = [(vW0, 12, sKW, sMW, 0), (vW0 + 1, 12, sKW, sMW, 4096), (vW0 + 2, 12, sKW, sMW, 8192), (vW3, 20, sKW, sM3, 0),
                 (vW0, 16, sKW, sMW, U_OFF), (vW0 + 1, 16, sKW, sMW, U_OFF + 4096), (vW0 + 2, 16, sKW, sMW, U_OFF + 8192),
                 (vB, 24, sKB, sMB, 0), (vB, 28, sKB, sMB, 4096)]
    def dma1(s, st, k, early=None):
        v, sr, so, mb, off = dma_items[k]
        isb = mb == sMB
        base = ((st >> 1) & 1) * (16384 if isb else 65536) + (st & 1) * (B_ST if isb else W_ST)
        if k == 0: s("s_mov_b32 s%d, %d" % (sKW, st * 64 * 7168))
        if k == 7: s("s_mov_b32 s%d, %d" % (sKB, st * 128))
        s("s_add_u32 m0, s%d, %d" % (mb, off + base))
        s.op(Op("buffer_load_dwordx4 v%d, s[%d:%d], s%d offen lds" % (v, sr, sr + 3, so), "vm", K(("D", st, k))), early)
    CH1 = cfg.get("ch1", 1)
    xalloc = {}; xprev = {}; fifo = [(("a", r), None) for r in (96, 112, 128, 144, 192)]
    for u in range(32):
        if u == 26: xalloc[u] = ("v", 48); xprev[u] = None; continue
        xalloc[u], xprev[u] = fifo.pop(0); fifo.append((xalloc[u], u))
    aX, aW, NWB = 96, 208, 8
    def xload(s, u, m, early=None):
        if m == 0: s("s_mov_b32 s%d, %d" % (sKX, u * 4096))
        s.op(Op("buffer_load_dwordx4 %s, v%d, s[8:11], s%d offen offset:%d %s" % (R(xalloc[u][0], xalloc[u][1] + 4 * m, 4), 1, sKX, 1024 * m, HL), "vm", K(("X", u, m))), early)
    def pro_stage(st):
        for k in range(9): dma1(s, st, k)
    ND0P = cfg.get("d_t0", 0)
    for k in range(ND0P): dma1(s, 0, k)
    EP_LDS = 131072; EPW = 8192
    PK = dict(C=252, CA=253, TOK=254, COL=255, D=240, TA=242, TRW=243, TRR=244, AG=245)
    s("v_lshrrev_b32 v40, 1, v48\nv_xor_b32 v40, v40, v49\nv_lshlrev_b32 v40, 4, v40\nv_lshl_add_u32 v40, v48, 7, v40")
    s("v_add_u32 v%d, %d, v40\nv_xor_b32 v%d, 64, v%d" % (vBA0, B_BASE, vBA1, vBA0))
    s("v_lshrrev_b32 v40, 1, v49\nv_lshlrev_b32 v40, 4, v40\nv_and_b32 v41, 1, v49\nv_lshlrev_b32 v41, 2, v41\nv_lshrrev_b32 v50, 2, v48\nv_add3_u32 v11, v40, v41, v50")
    s("v_mul_u32_u24 v40, 224, v11\nv_and_b32 v51, 3, v0\nv_lshl_add_u32 v%d, v51, 3, v40\nv_add_u32 v%d, 0x10000, v%d" % (vWA, vWA2, vWA))
    s("s_lshl_b32 s65, s%d, 17\ns_add_u32 s8, s6, s65\ns_addc_u32 s9, s7, 0\ns_and_b32 s9, s9, 0xffff\ns_mov_b32 s10, 0x20000" % sB)
    s("s_lshl_b32 s83, s2, 4\ns_lshl_b32 s65, s%d, 2\ns_add_u32 s83, s83, s65" % sW)
    if WGF: s("s_and_b32 s82, s2, 7\ns_lshl_b32 s82, s82, 6\ns_lshl_b32 s65, s66, 11\ns_add_u32 s82, s82, s65\ns_lshl_b32 s65, s%d, 9\ns_add_u32 s82, s82, s65\ns_add_u32 s82, s82, 0x%x" % (sW, SM_F1))
    else: s("s_add_u32 s82, s83, 0x%x" % SM_F1)
    s("s_add_u32 s83, s83, 0x%x" % SM_F1B)
    def tramp():
        s("s_mov_b64 exec, 0")
        for w in range(1, 4): s("s_cmp_eq_u32 s%d, %d\ns_cbranch_scc1 L_tr%d" % (sW, w, w))
        s("s_branch L_tr0")
        s.atom(["L_trret:"])
        s("s_mov_b64 exec, -1")
    TRP = cfg.get("tr_at", 2) if cfg.get("tramp", 1) else -1
    if TRP == 0: tramp()
    stamp(s, "prex")
    F = 80; D = 112; T0 = 144; ST = 28
    ln = Seq()
    def unpack(q):
        for i in range(4 * q, 4 * q + 4): ln("v_lshlrev_b32 v%d, 16, v%d\nv_and_b32 v%d, 0xffff0000, v%d" % (F + 2 * i, 64 + i, F + 2 * i + 1, 64 + i))
    def pack(q, dst=64):
        for i in range(4 * q, 4 * q + 4): ln("v_cvt_pk_bf16_f32 v%d, v%d, v%d" % (dst + i, F + 2 * i, F + 2 * i + 1))
    def hsum(dst):
        ln("v_pk_add_f32 %s, %s, %s\nv_add_f32 v%d, v%d, v%d" % (P(T0), P(T0), P(T0 + 2), T0, T0, T0 + 1))
        for sh in ((4, 8) if LQ else (1, 2, 4, 8)): ln("v_add_f32_dpp v%d, v%d, v%d row_ror:%d row_mask:0xf bank_mask:0xf" % (T0, T0, T0, sh))
        if LQ:
            for w_ in (16, 32): ln("v_mov_b32 v%d, v%d\nv_permlane%d_swap_b32 v%d, v%d\nv_add_f32 v%d, v%d, v%d" % (T0 + 1, T0, w_, T0, T0 + 1, T0, T0, T0 + 1))
        ln("v_mul_f32 v%d, %s, v%d" % (dst, fx(1.0 / 512), T0))
    for q in range(4):
        ln.wait([("x", q)])
        if q == 3:
            stamp(ln, "xin")
            for _ in range(cfg.get("pf_t1", 0)): pfa(ln)
            i_d0 = len(ln.u)
        unpack(q)
        if q == 0: ln("v_pk_add_f32 %s, %s, %s\nv_pk_add_f32 %s, %s, %s" % (P(T0), P(F), P(F + 2), P(T0 + 2), P(F + 4), P(F + 6)))
        else:
            for i in range(4): ln("v_pk_add_f32 %s, %s, %s" % (P(T0 + 2 * (i % 2)), P(T0 + 2 * (i % 2)), P(F + 8 * q + 2 * i)))
    hsum(ST)
    for i in range(16): ln("v_pk_add_f32 %s, %s, %s op_sel_hi:[1,0] neg_lo:[0,1] neg_hi:[0,1]" % (P(D + 2 * i), P(F + 2 * i), P(ST)))
    for i in range(16):
        if i < 2: ln("v_pk_mul_f32 %s, %s, %s" % (P(T0 + 2 * i), P(D + 2 * i), P(D + 2 * i)))
        else: ln("v_pk_fma_f32 %s, %s, %s, %s" % (P(T0 + 2 * (i % 2)), P(D + 2 * i), P(D + 2 * i), P(T0 + 2 * (i % 2))))
    hsum(ST + 1)
    ln.lg("ds_write_b64 v52, %s" % P(ST))
    ln.wait(None, drain=["lg"])
    ln("s_barrier")
    ln.lg("ds_read_b64 %s, v54" % P(T0), "oth")
    ln("s_mul_i32 s%d, s%d, 0x9E3779B1\ns_add_u32 s%d, s%d, 0x7F4A7C15\nv_mov_b32 v56, s%d" % (sTAG, sTAG, sTAG, sTAG, sTAG))
    ln.wait(["oth"])
    ln("v_sub_f32 v%d, v%d, v%d\nv_pk_add_f32 %s, %s, %s\nv_mul_f32 v%d, 0.5, v%d\nv_pk_mul_f32 %s, %s, 0.5 op_sel_hi:[1,0]\nv_fmac_f32 v%d, v%d, v%d" % (T0 + 2, ST, T0, P(ST), P(ST), P(T0), T0 + 2, T0 + 2, P(ST), P(ST), ST + 1, T0 + 2, T0 + 2))
    ln("v_cvt_pk_bf16_f32 v%d, v%d, v%d\nv_lshlrev_b32 v%d, 16, v%d\nv_and_b32 v%d, 0xffff0000, v%d" % (T0, ST, ST + 1, ST, T0, ST + 1, T0))
    ln(("v_add_f32 V, %s, V\nv_cvt_pk_bf16_f32 V, V, V\nv_and_b32 V, 0xffff0000, V\nv_sqrt_f32 V, V" % fx(1e-5)).replace("V", "v%d" % (ST + 1)))
    def sub(q):
        for i in range(4 * q, 4 * q + 4): ln("v_pk_add_f32 %s, %s, %s op_sel_hi:[1,0] neg_lo:[0,1] neg_hi:[0,1]" % (P(F + 2 * i), P(F + 2 * i), P(ST)))
    def fin(q):
        pack(q); unpack(q)
        for i in range(4 * q, 4 * q + 4): ln("v_pk_mul_f32 %s, %s, %s op_sel:[0,1] op_sel_hi:[1,1]" % (P(F + 2 * i), P(F + 2 * i), P(ST)))
        pack(q, 12 if q else 64)
    ln("v_cvt_pk_bf16_f32 V, V, V\nv_and_b32 V, 0xffff0000, V\nv_rcp_f32 V, V".replace("V", "v%d" % (ST + 1)))
    sub(0); fin(0)
    lu = ln.units()
    nD_0 = cfg.get("d_t1", 1 if ND0P else 0)
    if nD_0:
        dq = Seq(); step = cfg.get("d0_step", 10); pos = i_d0 + cfg.get("d0_off", 6)
        for k in range(ND0P, 9):
            dma1(dq, 0, k); un = dq.units()
            lu[pos:pos] = un[:-1]; pos += len(un); lu[pos:pos] = un[-1:]; pos += step
    s.u += lu
    xst = lambda q: "buffer_store_dwordx4 %s, v55, s[48:51], s%d offen %s" % (Q(12 + 4 * q if q else 64), 70 + q, SC)
    stst = lambda: (["s_mov_b64 exec, 15"] if LQ else ["s_mov_b32 exec_lo, 0x10001", "s_mov_b32 exec_hi, 0x10001"]) + [Op("buffer_store_dwordx4 %s, v%d, s[36:39], s74 offen %s" % (Q(ST), LQ, SC), "vm"), "s_mov_b64 exec, -1"]
    s.vm(xst(0), ("xn", 0))
    stamp(s, "xnst")
    for q in range(1, 4):
        sub(q); fin(q); s.u += ln.units()
    XBP = cfg.get("xbp", 0)
    TWO = 1
    nD_b = cfg.get("d_t3", 1)
    nD_c = cfg.get("d_t4", 2)
    nD_d = cfg.get("d_t5", 2)
    if TRP == 1: tramp()
    if WGF: s.wait([("xn", 0), "agfill"]); s("s_barrier")
    flag(s, "buffer_store_dwordx4 v[56:59], v1, s[36:39], s82 offen %s" % SC, [("xn", 0), "agfill"])
    stamp(s, "flag1")
    if TRP == 4: tramp()
    if cfg.get("bar_f"): s("s_barrier")
    stamp(s, "barf")
    def xb_now():
        s.atom(stst())
        for q in range(1, 4): s.vm(xst(q), ("xn", q))
    if XBP == 1: xb_now()
    for st in range(nD_0, nD_b): pro_stage(st)
    stamp(s, "d0")
    if TRP == 2: tramp()
    stamp(s, "trd")
    f1load = "buffer_load_dword v61, v%d, s[36:39], s75 offen %s" % (vP1, SC)
    s.vm(f1load, "f1")
    if XBP == 2: xb_now()
    for st in range(max(nD_0, nD_b), nD_c): pro_stage(st)
    nD_b = max(nD_0, nD_b, nD_c)
    if TRP == 3: tramp()
    stamp(s, "prepoll")
    if TRP >= 0:
        s("s_branch L_main"); s.atom([".p2align 12"]); s.atom(["L_main:"])
    poll(s, "P1", f1load, 61, "f1")
    stamp(s, "poll1")
    NXP = cfg.get("nxpre", 1 if cfg.get("ch1_first", 1) else 2)
    for u in range(NXP):
        for m in range(4): xload(s, u, m)
    if TRP == 5: tramp()
    if XBP == 3: xb_now()
    for _ in range(cfg.get("pf_t5", 0)): pfa(s)
    for st in range(nD_b, nD_d): pro_stage(st)
    nD_b = max(nD_b, nD_d)
    npfa = cfg.get("pf_t0", 3) + cfg.get("pf_t1", 0) + cfg.get("pf_t5", 0)
    NPB = cfg.get("npb", 4)
    tiles = []
    for q in range(7): tiles += [("G", q), ("U", q)]
    tiles += [("R", 0), ("I", 0), ("R", 1), ("I", 1)]
    def acc(t, m):
        k, q = t
        if k == "R": return ("v", 64 + 16 * q + 4 * m)
        if k == "I": return ("v", 96 + 16 * q + 4 * m)
        o = 32 * q + (16 if k == "U" else 0) + 4 * m
        return ("v", 128 + o) if q < 4 else ("a", o - 128)
    L0 = cfg.get("l1_lead", 4)
    KT = cfg.get("kt", 1)
    def stage_groups(st, tl):
        if CH1 and st >= cfg.get("ch1_first", 1): return [(2 * st + kk, ti) for ti in tl for kk in range(2)]
        return [(2 * st + kk, ti) for kk in range(2) for ti in tl]
    groups = []
    for st in range(14 if KT else 16): groups += stage_groups(st, range(18))
    if KT:
        for tl in (range(4), range(4, 18)):
            for st in (14, 15): groups += stage_groups(st, tl)
    NG = len(groups)
    mo, head, tail = order_mfma(groups)
    xfirst = {}; xlast = {}
    for G, (u, ti) in enumerate(groups): xfirst.setdefault(u, head(G)); xlast[u] = tail(G)
    parts = lambda G: [0, 1] if groups[G][1] < 14 else [None]
    def read1(G, part):
        u, ti = groups[G]; st, kk = divmod(u, 2); t = tiles[ti]; f = G % NWB
        if t[0] in "GU":
            off = (st & 1) * W_ST + (U_OFF if t[0] == "U" else 0) + kk * 7168 + part * 1792 + t[1] * 32
            return Op("ds_read_b64_tr_b16 %s, v%d offset:%d" % (R("a", aW + 4 * f + 2 * part, 2), (vWA, vWA2)[(st >> 1) & 1], off), "lg", K(("F", G, part)))
        off = (st & 3) * B_ST + (4096 if t[0] == "I" else 0) + t[1] * 2048
        return Op("ds_read_b128 %s, v%d offset:%d" % (R("a", aW + 4 * f, 4), vBA1 if kk else vBA0, off), "lg", K(("F", G, part)))
    rgap = {}
    for G in range(NG):
        f = G % 36
        g = G if (f < 33 or (KT and G >= 28 * 18)) else G - (1 if f < 35 else 2)
        rgap[G] = 4 * (g - L0) - 1
        assert rgap[G] >= 4 * tail(G - NWB) + 3
    gneed = lambda G: [("F", H, p) for H in range(G, tail(G) + 1) for p in parts(H)] + [("X", u, m) for u in range(32) if xfirst[u] == G for m in range(4)]
    s.wait([("D", 0, k) for k in range(9)])
    s("s_barrier")
    for G in range(NG):
        if rgap[G] < 0:
            for p in parts(G): s.op(read1(G, p))
    s.wait(gneed(0))
    stamp(s, "loop1")
    prog.add(s.done())
    mf = []
    for G, m in mo:
        u, ti = groups[G]; t = tiles[ti]
        xr = (xalloc[u][0], xalloc[u][1] + 4 * m); wr = ("a", aW + 4 * (G % NWB))
        mf.append(Op(mfma16(acc(t, m), wr, xr, u == 0) if t[0] in "GU" else mfma16(acc(t, m), xr, wr, u == 0)))
    sc = Sch(mf)
    for G in range(1, NG):
        w = Op("", needs=K(gneed(G)))
        w.keep = sum(len(parts(H)) for H in range(max(0, G - 2), min(NG, G + 10)) if rgap[H] == 4 * G - 1) == 2
        if w.keep or head(G) == G: sc.put(4 * G - 1, [w], 0)
    for G in range(NG):
        if rgap[G] >= 0: sc.put(rgap[G], [read1(G, p) for p in parts(G)], 1)
    bar = {}
    for st in range(15):
        bar[st] = rgap[xfirst[2 * st + 2]] - 1
        sc.put(bar[st], [Op("s_barrier", needs=K([("D", st + 1, k) for k in range(9)]), drain=["lg"] if st < 14 else None)], 0)
    items = []
    PFL = cfg.get("pfl", 9)
    pft = {}
    if cfg.get("pf1", 1):
        ev = cfg.get("pf_first", 70); st = npfa
        for k in range(npfa - cfg.get("pfd", 0), npfa): items.append((0, 2, ev - cfg.get("pfd_pre", 0), "a", k, 0))
        while st < 16:
            n = 0
            while st < 16 and (n < cfg.get("pf_max", 2) or (st == 15 and cfg.get("pf_l3", 1))) and (n == 0 or 144 * (st - 3 - PFL) < ev):
                e = max(int(144 * (st - 3 - PFL)), ev); pft[st] = e; items.append((0, 2, e, "a", st, 0)); st += 1; n += 1
            ev = e + cfg.get("pf_min", 288)
    for st in range(nD_b, 16):
        e = max(bar[st - 4] + 1 if st >= 4 else 0, pft.get(st, -1000) + cfg.get("pf_lat", 100))
        for k in range(9): items.append((bar[st - 1], 0, e, "d", st, k))
    for u in range(NXP, 32):
        e = 4 * xlast[xprev[u]] + 3 if xprev[u] is not None else 0
        for m in range(4): items.append((4 * xfirst[u] - 1, 1, max(e, 4 * xfirst[u] - (cfg.get("x_la", 230) if u != 8 else cfg.get("x_la8", 105))), "x", u, m))
    for k in range(1, 4 if not XBP else 0): items.append((0, 3, cfg.get("xb_first", 140) + cfg.get("xb_sp", 40) * (k - 1), "s", k, 0))
    items.append((0, 3, cfg.get("xb_first", 140) + cfg.get("xb_sp", 40) * 2 + cfg.get("xb_lat", 70) if not XBP else cfg.get("fb_at", 30), "f", 0, 0))
    items.append((0, 3, cfg.get("p1c_at", 430), "p", 0, 0))
    gC_ = sorted(set(pft.values()))[cfg.get("c_ev", 1)] if pft else 300
    items.append((0, 3, gC_, "c", 0, 0))
    gE_ = gC_ + cfg.get("e_off", 90)
    for n in range(4): items.append((gE_ + 100, 3, gE_ + 20 * n, "e", n, 0))
    f1cload = "buffer_load_dword v61, v60, s[36:39], s81 offen %s" % SC
    if cfg.get("pf2", 1):
        for c in range(NPB): items.append((0, 2, cfg.get("pfb_first", 646) + int(c * cfg.get("pfb_sp", 288)), "b", c, 0))
    now = 0; pend = sorted(items); done = []; quiet = -1
    FM = cfg.get("fm", 1); WL = cfg.get("fm_wl", 14); fifo = []; comp = cfg.get("fm_c0", 30); fsl = []; lastk = ""; PFD = cfg.get("pfd", 0); PFX = cfg.get("pfx", 0)
    while pend:
        nxt = {}
        for x in pend:
            if x[3] not in nxt or x[4:] < nxt[x[3]][4:]: nxt[x[3]] = x
        av = sorted(x for x in nxt.values() if x[2] <= now)
        if FM:
            occ = sum(n for c, n in fifo if c > now)
            lines_of = lambda x: {"d": WL if x[5] < 7 else 8, "x": 8, "a": 9 * (1 + bool(PFD)) + 8 * PFX, "b": 88 // NPB, "c": 10, "e": 16}.get(x[3], 1)
            if av and av[0][3] in "dx" and len(av) > 1 and av[1][3] in "dx" and av[0][3] == lastk and av[0][0] - now > cfg.get("alt_slack", 110): av = av[1:]
            av = [x for x in av[:1] if occ + lines_of(x) <= cfg.get("fm_c", 66)]
        if not av: now += 1; continue
        x = av[0]; pend.remove(x); lastk = x[3]
        if FM:
            lat = cfg.get("fm_slow", 64) if x[3] in "abc" else cfg.get("fm_fast", 36)
            comp = max(comp + 4.3, now + lat); fifo.append((comp, lines_of(x)))
            if x[3] in "dx": fsl.append((x[0] - comp, x[3], x[4], x[5]))
        fifo_now = now
        if x[3] == "d": dma1(s, x[4], x[5], int(now))
        elif x[3] == "x":
            if TWO and x[4:] == (8, 0): poll(s, "P1c", f1cload, 61, "f1c", early=int(now))
            xload(s, x[4], x[5], int(now))
        elif x[3] == "p": s.vm(f1cload, "f1c", early=int(now)); i_f1c = len(s.u) - 1
        elif x[3] == "a":
            s.at(int(now)); pfa(s); quiet = now + cfg.get("q_len", 64)
            if [y for y in pend if y[3] in "abc" and y[2] <= now]: now -= cfg.get("q_sp", 10) - 4
        elif x[3] == "c":
            s.at(int(now)); i_c0 = len(s.u) - 1
            for k, lo in enumerate((96, 98, 92)):
                s("s_mov_b32 s32, s%d\ns_and_b32 s33, s%d, 0xffff" % (lo, lo + 1))
                for T in range(2): s.vm("buffer_load_ushort v%d, v40, s[32:35], 0 offen offset:%d" % (16 + 2 * k + T, 32 * T), ("c", k, T))
            s("s_mov_b32 s32, s94\ns_and_b32 s33, s95, 0xffff")
            for u in range(2): s.vm("buffer_load_dwordx2 %s, v41, s[32:35], 0 offen offset:%d" % (R("a", 248 + 2 * u, 2), 32 * u), ("dk", u))
            if FT & 2:
                s.vm("buffer_load_dword a246, v42, s[36:39], 0 offen %s" % SC); now += 4
            i_c1 = len(s.u) - 1; now += 30
        elif x[3] == "s":
            if x[4] == 1: s.atom(stst(), int(now)); now += 4
            s.op(Op(xst(x[4]), "vm", K(("xn", x[4]))), int(now)); now += (4 - cfg.get("q_sp", 10)) if now < quiet else 10
        elif x[3] == "f":
            flag(s, "buffer_store_dword v56, v1, s[36:39], s83 offen %s" % SC, [("xn", 3)], early=int(now)); i_fb = len(s.u) - 1
        elif x[3] == "e":
            s("s_mov_b32 s70, %d\ns_add_u32 m0, s71, %d" % (32768 * x[4], 1024 * x[4]))
            s.op(Op("buffer_load_dwordx4 v12, s[48:51], s70 offen lds", "vm", K(("E", x[4]))), int(now)); i_e1 = len(s.u) - 1; now += 4
        else: s.at(int(now)); pfb(s); quiet = now + cfg.get("q_len", 64)
        if x[3] in "dx": done.append((x, len(s.u) - 1))
        if x[3:] == ("x", 8, 0): i_p1c = len(s.u) - 1
        if x[3:] == ("x", 26, 0): i_x26 = len(s.u) - 1
        if FM: now = fifo_now + {"c": 36, "s": cfg.get("fm_st", 16) + 4 * (x[4] == 1)}.get(x[3], cfg.get("fm_sp", 4.5))
        else: now += cfg.get("q_sp", 10) if now < quiet else cfg.get("l1_sp", 5)
    res = sc.stream(s.units(), 0, 2)
    sl = sorted((x[0] - res[i], x[3], x[4], x[5]) for x, i in done)
    if cfg.get("verbose") and FM: print("model slacks", sorted(fsl)[:5])
    if cfg.get("verbose"): print("loop1 vm end", res[-1], "of", 4 * NG, "min slacks", sl[:3], "steady", min(z for z in sl if z[2] > 8))
    for nm in names:
        if TS and nm[0] == "f" and nm[1:].isdigit():
            st_ = int(nm[1:])
            sc.put(bar[st_] - 1, [Op("s_memrealtime s[100:101]")], 5)
            sc.put(bar[st_], [Op("v_writelane_b32 v%d, s100, %d" % (vTS, names.index(nm)))], 5)
    if cfg.get("verbose"): print("flag b", res[i_fb], "poll load", res[i_f1c], "check", res[i_p1c])
    s.at(res[i_fb] + 1)
    cL, cC, cL8, cL16, cL64, cL512 = 16, 20, 24, 28, 32, 36
    s("s_mov_b32 s34, 2048\ns_mov_b32 s35, 0x20000")
    s("s_lshl_b32 s69, s%d, 5\nv_add_u32 v40, s69, v48\nv_lshlrev_b32 v40, 1, v40" % sJ)
    s("s_lshl_b32 s68, s%d, 7\ns_lshl_b32 s66, s%d, 5\ns_add_u32 s68, s68, s66\nv_lshl_add_u32 v41, v49, 2, s68\nv_accvgpr_write_b32 a%d, v41\nv_lshlrev_b32 v41, 1, v41" % (sTN, sQ, PK["COL"]))
    srd(s, 48, 4, 5, 2048 * 2048)
    s("s_lshl_b32 s66, s%d, 2\ns_add_u32 s66, s66, s%d\ns_lshl_b32 s66, s66, 7\ns_add_u32 s66, s66, 0x%x\nv_mov_b32 v42, s66" % (sB, sQ, SM_F3))
    s("s_lshl_b32 s66, s%d, 3\ns_add_u32 s66, s66, s%d\ns_lshl_b32 s66, s66, 2\ns_add_u32 s66, s66, s%d\ns_lshl_b32 s66, s66, 7\ns_add_u32 s66, s66, 0x%x\nv_writelane_b32 v42, s66, 0" % (sI, sTN, sW, SM_F4))
    s("s_lshl_b32 s68, s68, 1\ns_lshl_b32 s66, s%d, 17\ns_add_u32 s68, s68, s66\nv_lshrrev_b32 v12, 2, v0\nv_lshl_add_u32 v12, v12, 11, s68\nv_lshl_add_u32 v12, v51, 4, v12" % sB)
    s("s_lshr_b32 s66, s%d, 1\ns_lshl_b32 s66, s66, 16\ns_and_b32 s71, s%d, 1\ns_lshl_b32 s71, s71, 12\ns_add_u32 s71, s71, s66\ns_add_u32 s71, s71, 57344" % (sW, sW))
    r0 = sc.stream(s.units(), 0, 3)
    assert r0[-1] < res[i_c0]
    s.at(res[i_c1] + 1)
    s("v_subrev_u32 v40, %d, v%d\nv_accvgpr_write_b32 a%d, v40" % (B_BASE, vBA0, PK["CA"]))
    s("s_mul_i32 s69, s%d, %d\ns_add_u32 s69, s69, %d" % (sW, EPW, EP_LDS + 2048))
    s("v_and_b32 v41, 1, v49\nv_xor_b32 v41, v41, v51\nv_lshlrev_b32 v40, 5, v11\nv_lshl_add_u32 v40, v41, 3, v40\nv_add_u32 v40, s69, v40\nv_accvgpr_write_b32 a%d, v40" % PK["TRR"])
    s("v_lshrrev_b32 v40, 1, v48\nv_xor_b32 v40, v40, v48\nv_and_b32 v40, 4, v40\nv_mul_u32_u24 v40, 3, v40\nv_xor_b32 v40, v40, v48\nv_lshrrev_b32 v41, 2, v40\nv_xor_b32 v41, v41, v49\nv_lshlrev_b32 v40, 5, v40\nv_lshl_add_u32 v40, v41, 3, v40\nv_add_u32 v40, s69, v40\nv_accvgpr_write_b32 a%d, v40" % PK["TRW"])
    s("v_lshrrev_b32 v40, 2, v0\nv_and_b32 v41, 7, v40\nv_lshlrev_b32 v41, 5, v41\nv_lshl_add_u32 v41, v40, 8, v41\nv_lshl_add_u32 v41, v51, 3, v41\nv_accvgpr_write_b32 a%d, v41" % PK["TA"])
    s("s_lshl_b32 s68, s%d, 2\nv_add_u32 v40, s68, v49\nv_and_b32 v41, 7, v40\nv_bfe_u32 v51, v0, 1, 3\nv_xor_b32 v41, v41, v51\ns_lshl_b32 s66, s%d, 1\nv_xor_b32 v41, s66, v41\nv_lshlrev_b32 v41, 5, v41" % (sW, sQ))
    s("v_and_b32 v51, 1, v0\nv_lshl_add_u32 v41, v51, 4, v41\ns_mul_i32 s67, s%d, 896\nv_add_u32 v40, s67, v40\nv_lshl_add_u32 v40, v40, 11, v41\ns_lshl_b32 s67, s%d, 8\nv_add_u32 v40, s67, v40\nv_accvgpr_write_b32 a%d, v40" % (sQ, sTN, PK["D"]))
    s("s_lshl_b32 s68, s%d, 18\ns_lshl_b32 s66, s%d, 9\ns_add_u32 s68, s68, s66\nv_add_u32 v40, s68, v47\nv_accvgpr_write_b32 a%d, v40" % (sTN, sQ, PK["C"]))
    s("v_lshlrev_b32 v40, 4, v50\nv_lshl_add_u32 v40, v51, 3, v40\nv_bfe_u32 v41, v48, 1, 1\ns_lshl_b32 s68, s%d, 6\nv_add3_u32 v40, v40, v41, s68\nv_accvgpr_write_b32 a%d, v40" % (sB, PK["TOK"]))
    s("s_sub_u32 s68, 32, s%d\ns_lshl_b32 s68, s68, 13\ns_lshl_b32 s66, s%d, 8\ns_add_u32 s68, s68, s66\nv_lshl_add_u32 v40, v48, 4, s68\nv_lshl_add_u32 v40, v49, 16, v40\nv_accvgpr_write_b32 a%d, v40" % (sB, sJ, PK["AG"]))
    ld, lc = 112 // NPB, 64 // NPB
    s("s_lshl_b32 s68, s2, 1\ns_and_b32 s66, s%d, 1\ns_add_u32 s68, s68, s66\ns_mul_i32 s68, s68, %d\ns_mul_i32 s66, s2, %d" % (sW, ld * 128, lc * 128))
    ge2 = "s_cmp_ge_u32 s%d, 2" % sW
    s.atom([ge2, "s_cselect_b32 s68, s66, s68", "s_cselect_b32 s66, %d, %d" % (lc - 1, ld - 1)])
    s("v_min_u32 v40, s66, v0\nv_lshl_add_u32 v%d, v40, 7, s68" % vPB)
    s.atom(["s_bitcmp1_b32 s%d, 0" % sW, "s_cselect_b32 s68, s90, s88", "s_cselect_b32 s66, s91, s89"])
    s.atom([ge2, "s_cselect_b32 s44, s68, s84", "s_cselect_b32 s45, s66, s85"])
    s("s_mov_b32 s67, %d\ns_mov_b32 s68, %d" % (3584 * 2048, 512 * ld * 128))
    s.atom([ge2, "s_cselect_b32 s46, %d, s67" % (1024 * 2048), "s_cselect_b32 s%d, %d, s68" % (sPBs, 256 * lc * 128)])
    s("s_and_b32 s45, s45, 0xffff\ns_mov_b32 s47, 0x20000\ns_mov_b32 s%d, 0" % sKPB)
    i_pbs = len(s.u) - 1
    s.at(res[i_c1] + 90)
    s.wait([("c", 2, 1)])
    def two(f):
        for T in range(2): s(f(T))
    for k in range(6): s("v_lshlrev_b32 v%d, 16, v%d" % (40 + k, 16 + k))
    two(lambda T: "v_mul_f32 v%d, %s, v%d" % (44 + T, fx(LOG2E), 44 + T)); two(lambda T: "v_exp_f32 v%d, v%d" % (44 + T, 44 + T))
    s("v_cvt_pk_bf16_f32 v45, v44, v45\nv_lshlrev_b32 v44, 16, v45\nv_and_b32 v45, 0xffff0000, v45")
    two(lambda T: "v_mul_f32 v%d, v%d, v%d\nv_mul_f32 v%d, v%d, v%d" % (24 + T, 44 + T, 40 + T, 26 + T, 44 + T, 42 + T))
    two(lambda T: "v_mul_f32 v%d, %s, v%d" % (24 + T, fx(LOG2E), 24 + T)); two(lambda T: "v_exp_f32 v%d, v%d" % (24 + T, 24 + T))
    two(lambda T: "v_mul_f32 v%d, 0.15915494, v%d\nv_rndne_f32 v%d, v%d\nv_sub_f32 v%d, v%d, v%d" % (26 + T, 26 + T, 52 + T, 26 + T, 26 + T, 26 + T, 52 + T))
    two(lambda T: "v_cos_f32 v%d, v%d\nv_sin_f32 v%d, v%d" % (52 + T, 26 + T, 54 + T, 26 + T))
    two(lambda T: "v_mul_f32 v%d, v%d, v%d\nv_mul_f32 v%d, v%d, v%d\nv_add_f32 v%d, -1.0, v%d" % (cL + T, 24 + T, 52 + T, 54 + T, 24 + T, 54 + T, 52 + T, cL + T))
    two(lambda T: "v_mul_f32 v%d, v%d, v%d\nv_fmac_f32 v%d, v%d, v%d\nv_rcp_f32 v%d, v%d" % (24 + T, 40 + T, 40 + T, 24 + T, 42 + T, 42 + T, 24 + T, 24 + T))
    two(lambda T: "v_mul_f32 v%d, v%d, v%d\nv_fmac_f32 v%d, v%d, v%d" % (26 + T, 52 + T, 40 + T, 26 + T, 54 + T, 42 + T))
    two(lambda T: "v_mul_f32 v%d, v%d, v%d\nv_fma_f32 v%d, -v%d, v%d, v%d" % (56 + T, 54 + T, 40 + T, 56 + T, 52 + T, 42 + T, 56 + T))
    two(lambda T: "v_add_f32 v%d, v%d, v%d\nv_mul_f32 v%d, v%d, v%d\nv_mul_f32 v%d, v%d, v%d\nv_sub_f32 v%d, 0, v%d" % (24 + T, 24 + T, 24 + T, cC + T, 26 + T, 24 + T, cC + 2 + T, 56 + T, 24 + T, cL + 2 + T, 54 + T))
    def sq(d, x):
        two(lambda T: "v_mul_f32 v%d, v%d, v%d\nv_mul_f32 v%d, v%d, v%d\nv_fma_f32 v%d, v%d, v%d, -v%d\nv_add_f32 v%d, v%d, v%d" % (52 + T, x + 2 + T, x + 2 + T, 54 + T, x + T, x + 2 + T, d + T, x + T, x + T, 52 + T, d + 2 + T, 54 + T, 54 + T))
    sq(cL8, cL); sq(cL8, cL8); sq(cL8, cL8); sq(cL16, cL8); sq(cL64, cL16); sq(cL64, cL64); sq(cL512, cL64); sq(cL512, cL512); sq(cL512, cL512)
    aBS = 160
    s.at(max(res[i_p1c] + 2, res[i_e1] + 90))
    s("v_accvgpr_read_b32 v12, a%d\nv_and_b32 v11, 63, v12\nv_lshlrev_b32 v11, 6, v11\nv_lshl_add_u32 v11, v49, 3, v11\nv_add_u32 v11, s71, v11\nv_and_b32 v12, 0xf0, v1\ns_lshl_b32 s66, s%d, 10\ns_add_u32 s66, s66, 0x%x" % (PK["TOK"], sB, SM_ST))
    s.wait([("E", 3), ("dk", 1)])
    for k in range(4): s("v_accvgpr_read_b32 v%d, a%d" % (40 + k, 248 + k))
    for m in range(4):
        s.vm("buffer_load_dwordx2 v[44:45], v12, s[36:39], s66 offen offset:%d %s" % (256 * m, HL), ("St", m))
        for u in range(2): s.lg("ds_read_b64 %s, v11 offset:%d" % (P(52 + 2 * u), 128 * m + 32 * u), ("er", m, u))
        s.delay(cfg.get("e_lat", 90))
        s.wait([("St", m), ("er", m, 1)])
        for u in range(2):
            def unp(d, x):
                for h in range(2): s("v_lshlrev_b32 v%d, 16, v%d\nv_and_b32 v%d, 0xffff0000, v%d" % (d + 2 * h, x + h, d + 2 * h + 1, x + h))
            def rnd():
                for h in range(2): s("v_cvt_pk_bf16_f32 v%d, v%d, v%d" % (48 + h, 60 + 2 * h, 61 + 2 * h))
                unp(60, 48)
            unp(56, 52 + 2 * u)
            for k in range(4): s("v_sub_f32 v%d, v%d, v44" % (60 + k, 56 + k))
            rnd()
            for k in range(4): s("v_mul_f32 v%d, v%d, v45" % (60 + k, 60 + k))
            rnd()
            for h in range(2):
                s("v_lshlrev_b32 v46, 16, v%d\nv_and_b32 v47, 0xffff0000, v%d\nv_mul_f32 v%d, v%d, v46\nv_mul_f32 v%d, v%d, v47" % (40 + 2 * u + h, 40 + 2 * u + h, 60 + 2 * h, 60 + 2 * h, 61 + 2 * h, 61 + 2 * h))
            rnd()
            for k in range(4): s("v_add_f32 v%d, v%d, v%d" % (56 + k, 56 + k, 60 + k))
            for k in range(4): s("v_accvgpr_write_b32 a%d, v%d" % (aBS + 16 * u + 4 * m + k, 56 + k))
    rb = sc.stream(s.units(), 0, 3, vmspace=2)
    if cfg.get("verbose"): print("shadow end", rb[-1])
    assert rb[-1] < res[i_x26] and rb[-1] < bar[13] and rb[i_pbs] < cfg.get("pfb_first", 646)
    vEW, vER, vTG, vAG, vTRW, vTRR, vCP, vH8, vD1, vPAd, vPD, vD0 = 2, 3, 4, 5, 6, 7, 8, 10, 11, 12, 13, 14
    sM, sKD, sKH = 54, 55, 56
    c1 = -2.0 * math.sqrt(2.0 / math.pi) * LOG2E
    CC = 46
    s("v_accvgpr_read_b32 v%d, a%d\nv_lshlrev_b32 v%d, 3, v0\nv_add_u32 v%d, 32768, v%d" % (vD0, PK["D"], vH8, vD1, vD0))
    s("v_and_b32 v43, 31, v0\nv_lshlrev_b32 v43, 7, v43\ns_lshl_b32 s71, s%d, 2\ns_add_u32 s71, s71, 0x%x" % (sJ, SM_F1B))
    s("s_mul_i32 s65, s%d, 176\ns_mul_i32 s66, s%d, 44\ns_add_u32 s65, s65, s66\ns_lshl_b32 s65, s65, 12\ns_add_u32 s65, s65, 0x%x" % (sB, sQ, WS_H))
    s.atom(["s_add_u32 s32, s6, s65", "s_addc_u32 s33, s7, 0"])
    s("s_and_b32 s33, s33, 0xffff\ns_mov_b32 s34, 0x%x\ns_mov_b32 s35, 0x20000" % (44 * 4096))
    srd(s, 12, 84, 85, 3584 * 2048); srd(s, 16, 88, 89, 1024 * 2048); srd(s, 20, 90, 91, 1024 * 2048)
    s("s_lshl_b32 s%d, s%d, 10" % (sM, sW))
    s("v_mov_b32 v46, %s\nv_mov_b32 v47, %s" % (fx(c1), fx(c1 * 0.044715)))
    ROT = cfg.get("rot", 2)
    sTQ = [96, 97, 98, 99, 48, 49, 50, 51]; sTS = [76, 77, 78, 80]; sJ12, sG7 = 44, 45
    s("s_and_b32 s67, s%d, 3\ns_lshl_b32 s67, s67, 1" % sI)
    for k in range(8):
        if k == 0: s("s_mov_b32 s65, s%d" % sTN)
        elif ROT == 2: s.atom(["s_cmp_le_u32 s%d, %d" % (sTN, k - 1), "s_cselect_b32 s65, %d, %d" % (k, k - 1)])
        elif ROT: s("s_add_u32 s65, s67, %d\ns_sub_u32 s66, s65, 7\ns_min_u32 s65, s65, s66\ns_add_u32 s65, s65, 1\ns_xor_b32 s65, s65, s%d" % (k - 1, sTN))
        else: s("s_xor_b32 s65, s%d, %d" % (sTN, k))
        s("s_mul_i32 s65, s65, 7\ns_add_u32 s65, s65, 1\ns_lshr_b32 s65, s65, 1\ns_lshl_b32 s%d, s65, 12" % sTQ[k])
    s("s_lshr_b32 s67, s%d, 1" % sTN)
    sGp = [24, 25, 26, 27]; sPar = 45
    for p in range(4):
        if ROT == 2:
            s("s_mov_b32 s%d, %d" % (sTS[p], (7 * p + 3) * 4096))
            if p == 0: s("s_lshl_b32 s%d, s67, 13" % sGp[0])
            else:
                s.atom(["s_cmp_le_u32 s67, %d" % (p - 1), "s_cselect_b32 s65, %d, %d" % (p, p - 1)]); s("s_lshl_b32 s%d, s65, 13" % sGp[p])
        else: s("s_xor_b32 s65, s67, %d\ns_lshl_b32 s%d, s65, 13\ns_mul_i32 s65, s65, %d\ns_add_u32 s%d, s65, %d" % (p, sGp[p], 7 * 4096, sTS[p], 3 * 4096))
    s("s_lshl_b32 s%d, s%d, 12\ns_and_b32 s69, s%d, 1\ns_lshl_b32 s%d, s69, 12" % (sJ12, sTN, sTN, sPar))
    s("s_mul_i32 s67, s67, %d\ns_lshl_b32 s69, s69, 9\ns_add_u32 s67, s67, s69\ns_add_u32 s67, s67, %d" % (7 * 4096, 3 * 4096))
    s("s_add_u32 s72, s%d, %d\ns_add_u32 s73, s%d, %d\ns_mov_b32 s66, s%d" % (sJ12, 28 * 4096, sJ12, 36 * 4096, sTQ[0]))
    s("s_lshl_b32 s68, s%d, 2\ns_add_u32 s68, s68, s%d\ns_lshl_b32 s68, s68, 7\ns_add_u32 s68, s68, 0x%x" % (sB, sQ, SM_F3))
    s("s_lshl_b32 s81, s%d, 2\ns_add_u32 s81, s81, s68\nv_and_b32 v%d, 7, v0\nv_lshlrev_b32 v%d, 2, v%d" % (sTN, vPAd, vPAd, vPAd))
    s("s_sub_u32 s64, 31, s%d\ns_lshl_b32 s64, s64, 13\ns_lshl_b32 s65, s%d, 8\ns_add_u32 s64, s64, s65" % (sB, sJ))
    s("s_mul_i32 s46, s%d, %d\ns_add_u32 s46, s46, %d" % (sW, EPW, EP_LDS))
    if TRP >= 0 and cfg.get("tr2", 1) and cfg.get("tr2pf", 1):
        s.atom(["s_getpc_b64 s[82:83]", "L_pc2:"])
        s("v_lshrrev_b32 v40, 3, v0\nv_lshlrev_b32 v40, 12, v40\nv_and_b32 v41, 7, v0\nv_lshl_add_u32 v40, v41, 7, v40\nv_add_u32 v40, L_main-L_pc2+%d, v40" % (4096 * cfg.get("tr_n", 14)))
        s("v_min_u32 v40, L_codeend-L_pc2-4, v40\nv_mov_b32 v41, 0\nv_lshl_add_u64 v[40:41], v[40:41], 0, s[82:83]")
        s.vm("global_load_dword a246, v[40:41], off")
        if cfg.get("cpe", 0):
            n_ = 16 * cfg.get("cpe", 0)
            s("s_mul_i32 s65, s%d, %d\ns_add_u32 s65, s65, L_epi-L_pc2+%d\nv_min_u32 v40, %d, v0\nv_lshl_add_u32 v40, v40, 7, s65\nv_mov_b32 v41, 0\nv_lshl_add_u64 v[40:41], v[40:41], 0, s[82:83]" % (sW, n_ * 128, cfg.get("cpe_off", -2048), n_ - 1))
            s.vm("global_load_dword a246, v[40:41], off")
    f1bload = "buffer_load_dword v44, v43, s[36:39], s71 offen %s" % SC
    s.vm(f1bload, "f1b")
    steps = [("g", 0, 2), ("g", 0, 0), ("g", 0, 1)]
    NA0 = cfg.get("na0", 2)
    steps += [("g", k, 0) for k in range(1, NA0 + 1)]
    UA = len(steps)
    steps += [("g", k, 1) for k in range(1, NA0 + 1)]
    for k in range(NA0 + 1, 8): steps += [("g", k, 0), ("g", k, 1)]
    UB = len(steps)
    for k in range(1, 8): steps += [("g", k, 2)] + ([("s", k // 2, 0)] if k % 2 else [])
    assert len(steps) == 28
    cst = [("r", 0), ("i", 0), ("r", 1), ("r", 2), ("r", 3), ("i", 1), ("i", 2), ("i", 3)]
    steps += [("c", 14, 0), ("c", 15, 0), ("c", 14, 1), ("c", 15, 1)]
    for st in range(16, 22): steps += [("c", st, 0), ("c", st, 1)]
    own = {0, 1, 2, 28, 29}; UC = 30
    NST = 22; KC = cfg.get("kc", 8)
    slot = {st: st % 8 for st in range(22)}; prevocc = {st: (st - 8 if st >= 8 else None) for st in range(22)}
    aW2 = 0; aAG = 32
    vC, vCA = 16, 20
    def dma2(s, st, k, early=None, vC=vC):
        if st < 14:
            kind, x, p = steps[2 * st + k // 2]
            if k % 2 == 0:
                if kind == "g" and p: s("s_add_u32 s%d, s%d, %d\ns_lshl_b32 s%d, s%d, 4" % (sKD, sTQ[x], p * 4096, sKD, sKD))
                else: s("s_lshl_b32 s%d, s%d, 4" % (sKD, (sTQ if kind == "g" else sTS)[x]))
            v, sr = (vD0, vD1)[k % 2], 12
        else:
            part, p = cst[st - 14]
            if k == 0: s("s_lshr_b32 s%d, s%d, 6" % (sKD, sGp[p]))
            v, sr = vC + k, (16 if part == "r" else 20)
        s("s_add_u32 m0, s%d, %d" % (sM, slot[st] * 16384 + k * 4096))
        s.op(Op("buffer_load_dwordx4 v%d, s[%d:%d], s%d offen lds" % (v, sr, sr + 3, sKD), "vm", K(("D2", st, k))), early)
    NPRE = 4
    r = sc.stream(s.units(), res[-1] + 2, 3)
    gS = r[-1]
    L2P = cfg.get("l2p", 0)
    if L2P:
        s("s_lshr_b32 s65, s2, 3\ns_lshl_b32 s65, s65, 2\ns_add_u32 s65, s65, s%d" % sW)
        s("s_mul_i32 s69, s65, %d\ns_mul_i32 s70, s%d, %d\ns_add_u32 s69, s69, s70\nv_min_u32 v40, 55, v0\nv_lshl_add_u32 v40, v40, 7, s69\ns_mov_b32 s70, %d" % (56 * 128, sQ, 896 * 2048, 448 * 2048))
        s.vm("buffer_load_dword a246, v40, s[12:15], 0 offen"); s.delay(cfg.get("l2p_sp", 40))
        s.vm("buffer_load_dword a246, v40, s[12:15], s70 offen"); s.delay(cfg.get("l2p_sp", 40))
        if L2P >= 2:
            s("s_lshl_b32 s69, s65, 14\ns_lshl_b32 s70, s%d, 9\ns_add_u32 s69, s69, s70\nv_bfe_u32 v40, v0, 2, 3\nv_lshl_add_u32 v40, v40, 11, s69\nv_and_b32 v41, 3, v0\nv_lshl_add_u32 v40, v41, 7, v40" % sQ)
    s.at(max(bar[13] + 1, cfg.get("pre_at", 0 if KT else 2170)))
    for st in range(NPRE):
        for k in range(4): dma2(s, st, k)
    if L2P >= 2:
        s.vm("buffer_load_dword a246, v40, s[16:19], 0 offen")
        if L2P >= 3: s.delay(20); s.vm("buffer_load_dword a246, v40, s[20:23], 0 offen")
    r = sc.stream(s.units(), gS + 1, 2, vmspace=cfg.get("pre_sp", 5))
    hst = cfg.get("hst", SC)
    aK0 = xalloc[27][1] if KT else 96; aK1 = 112 if aK0 != 112 else 96
    left = []; msh = 0
    if KT:
        msh = cfg.get("msh", 4)
        for m in range(msh):
            gs = [128 + 4 * m + e for e in range(4)] + [160 + 4 * m + e for e in range(4)]
            o = (56, 60)[m % 2]
            for k, g in enumerate(gs): s("v_mul_f32 v%d, v%d, v%d" % (48 + k, g, g))
            for k, g in enumerate(gs): s("v_fma_f32 v%d, v%d, v47, v46" % (48 + k, 48 + k))
            for k, g in enumerate(gs): s("v_mul_f32 v%d, v%d, v%d" % (48 + k, 48 + k, g))
            for k, g in enumerate(gs): s("v_exp_f32 v%d, v%d" % (48 + k, 48 + k))
            for k, g in enumerate(gs): s("v_mul_f32 v%d, v%d, v%d" % (g + 16, g, g + 16))
            for k, g in enumerate(gs): s("v_add_f32 v%d, 1.0, v%d" % (48 + k, 48 + k))
            for k, g in enumerate(gs): s("v_rcp_f32 v%d, v%d" % (48 + k, 48 + k))
            for k, g in enumerate(gs): s("v_mul_f32 v%d, v%d, v%d" % (g + 16, g + 16, 48 + k))
            for k in range(4): s("v_cvt_pk_bf16_f32 v%d, v%d, v%d" % (o + k, gs[2 * k] + 16, gs[2 * k] + 17))
            s.vm("buffer_store_dwordx4 %s, v1, s[32:35], s66 offen offset:%d %s" % (Q(o), 1024 * m, hst), ("hs", 0, m))
            for k in range(4): s("v_accvgpr_write_b32 a%d, v%d" % (aK0 + 4 * m + k, o + k))
        un = s.units()
        r = sc.stream(un, max(gS + 1, 4 * (28 * 18 + 16) + 2), 3, vmspace=2, overflow=True)
        left = un[len(r):]
        if cfg.get("verbose"): print("setup end", gS, "shadow gelu placed", len(r), "left", len(left))
    if cfg.get("abl"):
        for g in range(720, 1850):
            for it in sc.g[g]:
                o = it[2]; tx = o.text or ""
                if ("T" in cfg["abl"] and tx.startswith("ds_read_b64_tr")) or ("B" in cfg["abl"] and tx.startswith("ds_read_b128")) or \
                   ("X" in cfg["abl"] and tx.startswith("buffer_load_dwordx4") and "s[8:11]" in tx) or ("D" in cfg["abl"] and tx.endswith(" lds")) or \
                   ("P" in cfg["abl"] and tx.startswith("buffer_load_dword a246")) or ("V" in cfg["abl"] and tx.startswith("v_") and it[0] == 3): o.text = ""
    if cfg.get("stall"):
        for G in range(1, NG):
            if G % cfg["stall"] == 0 and len(sc.classes(4 * G - 1)) == 3: sc.put(4 * G - 1, [Op("s_nop 0")], 9)
    prog.add(sc.ops())
    vTA = 40
    s.atom(["L_epi:"])
    s("s_barrier")
    stamp(s, "end1")
    s.u += left
    KD = [int(c, 36) for c in str(cfg.get("kd", "g0a8"))]
    CH2 = cfg.get("ch2", 1); nochain = [int(c) for c in str(cfg.get("ch2_skip", "1"))]
    assert all(k % 2 == 0 for k in KD)
    def sg2(st, ul):
        if CH2 and st not in nochain: return [(2 * st + kk, u) for u in ul for kk in range(2)]
        return [(2 * st + kk, u) for kk in range(2) for u in ul]
    groups = []
    for st in range(22): groups += sg2(st, [u for u in (range(8) if st < 14 else (2, 3, 4, 5, 6, 7, 0, 1)) if 2 * st < 44 - KD[u // 2]])
    pend_ = {}
    for d in (1, 2, 3, 0):
        for st in range(22 - KD[d] // 2, 22): groups += sg2(st, (2 * d, 2 * d + 1))
    for G, (uu, u) in enumerate(groups): pend_[u // 2] = G
    assert len(groups) == 352 and max(KD) <= 16
    NG = len(groups)
    mo, head, tail = order_mfma(groups)
    lastuse = {}; firstuse = {}
    for G, (uu, u) in enumerate(groups): firstuse.setdefault(uu, head(G)); lastuse[uu] = tail(G)
    hreg = {0: ("v", 48), 1: ("a", aK0), 2: ("a", aK1), 28: ("a", 32), 29: ("a", 48)}; hfree = {}
    pool = [(-1, ("a", r)) for r in [96, 112, 128, 144, 192, 208, 224, 160, 176, 64, 80] if r not in (aK0, aK1)] + [(4 * lastuse[u] + 3, hreg[u]) for u in (1, 2, 28, 29)]
    VFREE = cfg.get("vfree", 700)
    pool += [(VFREE, ("v", r)) for r in (64, 80, 96, 112)[:cfg.get("nvs", 4)]]
    for u in range(44):
        if u in own: continue
        pool.sort(key=lambda x: x[0]); e, r = pool.pop(0)
        hreg[u] = r; hfree[u] = e; pool.append((4 * lastuse[u] + 3, r))
    def hload(s, u, m, early=None):
        kind, x, p = steps[u]
        if m == 0:
            if kind == "g": s("s_add_u32 s%d, s%d, %d" % (sKH, sTQ[x], p * 4096))
            elif kind == "s": s("s_mov_b32 s%d, s%d" % (sKH, sTS[x]))
            else:
                part, pp = cst[x - 14]
                s("s_xor_b32 s%d, s%d, %d\ns_add_u32 s%d, s%d, s%d" % (sKH, sPar, ((28 if part == "r" else 36) + p) * 4096, sKH, sKH, sGp[pp]))
        hk, d = hreg[u]; d += 4 * m
        if kind == "s":
            s.op(Op("buffer_load_dwordx2 %s, v%d, s[32:35], s%d offen offset:%d %s" % (R(hk, d, 2), vH8, sKH, 1024 * m, HL), "vm"), early)
            s.op(Op("buffer_load_dwordx2 %s, v%d, s[32:35], s%d offen offset:%d %s" % (R(hk, d + 2, 2), vH8, sKH, 1024 * m + 512, HL), "vm", K(("H", u, m))))
        else: s.op(Op("buffer_load_dwordx4 %s, v1, s[32:35], s%d offen offset:%d %s" % (R(hk, d, 4), sKH, 1024 * m, HL), "vm", K(("H", u, m))), early)
    def gelu_pair(base0, base1, pid, T, OUT, keep=None, hook=None, m0=0):
        for m in range(m0, 4):
            o = OUT[m % len(OUT)]
            items = [(base0 + 4 * m, base0 + 16 + 4 * m, o), (base0 + 4 * m + 2, base0 + 18 + 4 * m, o + 1),
                     (base1 + 4 * m, base1 + 16 + 4 * m, o + 2), (base1 + 4 * m + 2, base1 + 18 + 4 * m, o + 3)]
            gelu_block(s, items, CC, T)
            s.vm("buffer_store_dwordx4 %s, v1, s[32:35], s66 offen offset:%d %s" % (Q(o), 1024 * m, hst), ("hs", pid, m))
            if keep is not None:
                for r in range(4): s("v_accvgpr_write_b32 a%d, v%d" % (keep + 4 * m + r, o + r))
            if hook: hook(m)
        s("s_add_u32 s66, s66, 4096")
    NPRE2 = cfg.get("npre2", 8)
    cpre = [(st, k) for st in range(NPRE, NPRE2) for k in range(4)]
    def cdma(n):
        for _ in range(n):
            if cpre: st, k = cpre.pop(0); dma2(s, st, k)
    fstore = lambda off: "buffer_store_dword v%d, v1, s[36:39], s81 offen offset:%d %s" % (vTG, off, SC)
    fload = lambda off: "buffer_load_dword v%d, v%d, s[36:39], s68 offen offset:%d %s" % (vPD, vPAd, off, SC)
    s("v_mov_b32 v%d, s%d" % (vTG, sTAG))
    npg = cfg.get("cpre_g", 1)
    cdma(cfg.get("cpre_0", 4))
    gelu_pair(128, 160, 0, 48, [56, 60], aK0, lambda m: cdma(npg), m0=msh)
    def hook1(m):
        cdma(npg)
        if m == cfg.get("fa0_m", 1): flag(s, fstore(96), [("hs", 0, 3)])
    gelu_pair(192, 224, 1, 48, [56, 60], aK1, hook1)
    stamp(s, "p01")
    def pkfma(d, s0, s1, s2, T, neg=False):
        s("v_pk_fma_f32 %s, %s, %s, %s op_sel:[%d,0,0] op_sel_hi:[%d,1,1]%s" % (P(d), P(s0), P(s1), P(s2), T, T, " neg_lo:[1,0,0] neg_hi:[1,0,0]" if neg else ""))
    def pkmul(d, s0, s1, T, neg=False):
        s("v_pk_mul_f32 %s, %s, %s op_sel:[%d,0] op_sel_hi:[%d,1]%s" % (P(d), P(s0), P(s1), T, T, " neg_lo:[1,0] neg_hi:[1,0]" if neg else ""))
    BR = lambda T, x: 64 + 16 * T + 2 * x
    BI = lambda T, x: 96 + 16 * T + 2 * x
    for x in range(8):
        for T in range(2):
            pkmul(128 + 2 * T, cC + 2, BI(T, x), T, True); pkmul(BI(T, x), cC, BI(T, x), T, True)
        for T in range(2):
            pkfma(BI(T, x), cC + 2, BR(T, x), BI(T, x), T, True); pkfma(BR(T, x), cC, BR(T, x), 128 + 2 * T, T)
    sr = [BR(0, 0), BR(1, 0)]; si = [BI(0, 0), BI(1, 0)]
    bufs = [[132, 134], [138, 140]]; SI = [136, 142]
    for x in range(1, 8):
        nr = [bufs[T][x % 2] for T in range(2)]
        for T in range(2): pkfma(nr[T], cL, sr[T], BR(T, x), T)
        for T in range(2): pkfma(nr[T], cL + 2, si[T], nr[T], T, True)
        for T in range(2): pkfma(SI[T], cL, si[T], BI(T, x), T)
        for T in range(2): pkfma(SI[T], cL + 2, sr[T], SI[T], T)
        sr = nr; si = list(SI)
        if x % 2: cdma(1)
    EA = 20
    for T in range(2):
        s("v_mov_b32 v%d, v%d\nv_mov_b32 v%d, v%d\nv_mov_b32 v%d, v%d\nv_mov_b32 v%d, v%d" % (EA + T, sr[T], EA + 2 + T, si[T], 144 + T, sr[T] + 1, 146 + T, si[T] + 1))
    horner_pk(s, EA, cL8, 144, 144)
    s("v_add_u32 v%d, s46, v1\nv_and_b32 v%d, 0xf0, v1\nv_add_u32 v%d, s46, v%d" % (vEW, vER, vER, vER))
    s.lg("ds_write_b128 v%d, v[144:147]" % vEW)
    for g in range(4): s.lg("ds_read_b128 %s, v%d offset:%d" % (Q(148 + 4 * g), vER, 256 * g), ("e", g))
    HPN = cfg.get("hpn", 0)
    if HPN: s.vm(fload(96), "f3a0")
    for r in range(32):
        s("v_accvgpr_read_b32 v%d, a%d" % (192 + r, r))
        if r % 16 == 15: cdma(1)
    flag(s, fstore(0), [("hs", 1, 3)])
    for g in range(1, 4):
        s.wait([("e", g)]); horner_pk(s, 148 + 4 * (g - 1), cL16, 148 + 4 * g, 148 + 4 * g)
    for r in range(160, 164): s("v_min_u32 v%d, -2, v%d" % (r, r))
    s.atom(["s_mov_b64 exec, 0xffff", Op("buffer_store_dwordx4 v[160:163], v1, s[36:39], s64 offen %s" % SC, "vm"), "s_mov_b64 exec, -1"])
    stamp(s, "pub")
    poll(s, "P1b", f1bload, 44, "f1b")
    for r in range(32, 64):
        s("v_accvgpr_read_b32 v%d, a%d" % (192 + r, r))
        if r % 16 == 15: cdma(1)
    cdma(16)
    for r in range(32): s("v_accvgpr_read_b32 v%d, a%d" % (128 + r, aBS + r))
    hq = [(u, m) for u in range(3, UA) for m in range(4)][:HPN]; nh_pre = [3 + HPN // 4]
    assert HPN % 4 == 0
    def issue_h(n):
        for _ in range(n):
            if hq: hload(s, *hq.pop(0))
    hpb = cfg.get("hpb", 3)
    def hookA(m): issue_h(hpb)
    def tramp2():
        s("s_mov_b64 exec, 0")
        for w in range(1, 4): s("s_cmp_eq_u32 s%d, %d\ns_cbranch_scc1 L_trB%d" % (sW, w, w))
        s("s_branch L_trB0")
        s.atom(["L_trret2:"])
        s("s_mov_b64 exec, -1")
    if TRP >= 0 and cfg.get("tr2", 1): tramp2()
    if HPN:
        poll(s, "P3a0", fload(96), vPD, "f3a0"); stamp(s, "ok3a"); issue_h(hpb)
    gelu_pair(192, 224, 2, 168, [48, 52, 56, 60], None, hookA)
    for r in range(32): s("v_accvgpr_read_b32 v%d, a%d" % (192 + r, 64 + r))
    issue_h(hpb)
    for mp in range(2):
        o = 240 + 4 * mp; items = []
        for mm in range(2):
            m = 2 * mp + mm
            items += [(192 + 4 * m, 208 + 4 * m, o + 2 * mm), (194 + 4 * m, 210 + 4 * m, o + 2 * mm + 1)]
        gelu_block(s, items, CC, 168)
        if mp == 0:
            s("v_accvgpr_read_b32 v%d, a%d" % (vTA, PK["TA"]))
            for u in range(1, 6): s("v_xor_b32 v%d, %d, v%d" % (vTA + u, 32 * u, vTA))
        issue_h(hpb if mp == 0 else 99)
        if mp == 1 and not HPN: s.vm(fload(96), "f3a0")
        for mm in range(2):
            s.vm("buffer_store_dwordx2 %s, v%d, s[32:35], s67 offen offset:%d %s" % (P(o + 2 * mm), vH8, 1024 * (2 * mp + mm), hst), ("hsS", 2 * mp + mm))
        if mp == 0:
            s.wait([("D2", st, k) for st in range(cfg.get("bar2", 2)) for k in range(4)])
            s("s_barrier")
            pre_reads_at = len(s.u)
    for u in range(6, 8): s("v_xor_b32 v%d, %d, v%d" % (vTA + u, 32 * u, vTA))
    L2 = cfg.get("l2_lead", 4); B2 = cfg.get("bar2", 2)
    def read2(G, part):
        uu, u = groups[G]; f = G % NWB
        if uu < 28:
            st, kk = divmod(uu, 2)
            return Op("ds_read_b64_tr_b16 %s, v%d offset:%d" % (R("a", aW2 + 4 * f + 2 * part, 2), vTA + u, (slot[st] % 4) * 16384 + kk * 8192 + part * 4096), "lg", K(("F2", G, part)))
        _, st, kk = steps[uu]
        return Op("ds_read_b128 %s, v%d offset:%d" % (R("a", aW2 + 4 * f, 4), vCA + 2 * (slot[st] >= 4) + kk, (slot[st] % 4) * 16384 + u * 2048), "lg", K(("F2", G, part)))
    parts = lambda G: [0, 1] if groups[G][0] < 28 else [None]
    mf = []
    for G, m in mo:
        uu, u = groups[G]
        mf.append(Op(mfma16(("v", 128 + 16 * u + 4 * m), ("a", aW2 + 4 * (G % NWB)), (hreg[uu][0], hreg[uu][1] + 4 * m), zero=(uu == 0 and u >= 2))))
    sc = Sch(mf)
    gneed = lambda G: [("F2", H, p) for H in range(G, tail(G) + 1) for p in parts(H)] + [("H", uu, m) for uu in range(44) if firstuse[uu] == G and uu not in own for m in range(4)]
    rgap = {}
    for G in range(NG):
        st, f = divmod(G, 16)
        if st < 14 and st % B2 == B2 - 1:
            if f <= 4: rgap[G] = 4 * (G - L2) - 1
            elif f == 5: rgap[G] = 4 * (G - 1 - L2) + 1
            elif f <= 10: rgap[G] = 4 * (G - 1 - L2) - 1
            elif f == 11: rgap[G] = 4 * (G - 2 - L2) + 1
            else: rgap[G] = 4 * (G - 2 - L2) - 1
        else: rgap[G] = 4 * (G - L2) - 1
        assert rgap[G] >= 4 * tail(G - NWB) + 3
    pr = Seq()
    for G in range(NG):
        if rgap[G] < 0:
            for p in parts(G): pr.op(read2(G, p))
    s.u[pre_reads_at:pre_reads_at] = pr.units()
    s.wait(gneed(0))
    stamp(s, "loop2")
    prog.add(s.done())
    for G in range(1, NG):
        w = Op("", needs=K(gneed(G)))
        w.keep = sum(len(parts(H)) for H in range(max(0, G - 2), min(NG, G + 10)) if rgap[H] == 4 * G - 1) == 2
        if w.keep or head(G) == G: sc.put(4 * G - 1, [w], 0)
    for G in range(NG):
        if rgap[G] >= 0:
            if rgap[G] % 4 != 3: sc.put(rgap[G], [Op("s_waitcnt lgkmcnt(15)")], 0)
            sc.put(rgap[G], [read2(G, p) for p in parts(G)], 1)
    bar = {}
    for st in range(14):
        if st % B2 != B2 - 1: continue
        bar[st] = 4 * (16 * (st + 1) - L2) - 2
        pub = list(range(st + 1, st + 1 + B2)) if st < 13 else [14, 15, 16, 17]
        sc.put(bar[st], [Op("s_barrier", needs=K([("D2", x, k) for x in pub for k in range(4)]), drain=["lg"])], 0)
    for st in (3, 7, 11):
        for i_, g_ in enumerate((1, 2, 4, 5)):
            sc.put(bar[st] - g_, [Op("v_xor_b32 v%d, 0x10000, v%d" % (vTA + 2 * i_ + k, vTA + 2 * i_ + k)) for k in range(2)], 2)
        assert max(rgap[G] for G in range(16 * st, 16 * st + 16)) < bar[st] - 5
    barF = min(rgap[G] for G in range(NG) if groups[G][0] >= 36) - 1
    sc.put(barF, [Op("s_barrier", needs=K([("D2", x, k) for x in range(18, 22) for k in range(4)]))], 0)
    def mark(o, nm): o.u[-1].append(nm)
    def after(o, nm, n): o.u.append([[Op("")], lambda mk: (mk[nm] + n) if nm in mk else None])
    def dly(o, n): o.u.append([[Op("")], lambda mk: mk["_prev"] + n])
    gl = []
    t = Seq()
    t("v_accvgpr_read_b32 v%d, a%d\nv_accvgpr_read_b32 v%d, a%d\nv_accvgpr_read_b32 v%d, a%d" % (vAG, PK["AG"], vTRW, PK["TRW"], vTRR, PK["TRR"]))
    t("s_mov_b32 s40, s36\ns_mov_b32 s41, s37\ns_mov_b32 s42, 0x40000\ns_mov_b32 s43, 0x20000")
    t("v_lshrrev_b32 v8, 4, v0\nv_cmp_eq_u32 s[64:65], 1, v8\nv_cmp_eq_u32 s[66:67], 2, v8\nv_cmp_eq_u32 s[74:75], 3, v8")
    t.at(cfg.get("ag_gap", 32))
    for x in range(7, -1, -1):
        t("s_mov_b32 s57, %d" % (8192 * x))
        g = "buffer_load_dwordx4 %s, v%d, s[40:43], s57 offen %s" % (R("a", aAG + 4 * x, 4), vAG, SC)
        gl.append("s_mov_b32 s57, %d\n%s" % (8192 * x, g))
        t.vm(g, ("ag", x))
        if x: dly(t, cfg.get("ag_sp", 8))
    mark(t, "ag")
    srd(t, 8, 86, 87, 2048 * 4096)
    flag(t, fstore(32), [("hsS", 3)], early=cfg.get("fb_gap", 80)); mark(t, "flagb")
    after(t, "ag", cfg.get("ag_lat", 20)); t.at(4 * lastuse[0] + 4)
    def ag_horner(o, w):
        cur = None
        for x in range(7, -1, -1):
            q = 48 + 4 * (x % 2)
            if w: o.wait([("ag", x)])
            for r in range(4): o("v_accvgpr_read_b32 v%d, a%d" % (q + r, aAG + 4 * x + r))
            if not w: o(("v_max3_u32 v56, v%d, v%d, v%d\nv_max_u32 v56, v56, v%d" % (q, q + 1, q + 2, q + 3)) if x == 7 else ("v_max3_u32 v56, v56, v%d, v%d\nv_max3_u32 v56, v56, v%d, v%d" % (q, q + 1, q + 2, q + 3)))
            if cur is not None: horner_sc(o, cur, cL64, q)
            cur = q
    ag_horner(t, True)
    t("v_cmp_u_f32 s[70:71], v48, v49")
    t.atom(["v_cmp_u_f32 vcc, v50, v51", "s_or_b64 vcc, vcc, s[70:71]", "s_cbranch_scc1 PAG_retry", "PAG_ok:"])
    ool("PAG_retry:")
    if cfg.get("rc"): RC.append("PAG"); ool("v_readlane_b32 s100, v15, %d\ns_nop 3\ns_add_u32 s100, s100, 100\nv_writelane_b32 v15, s100, %d" % (len(RC), len(RC)))
    ool("\n".join(gl) + "\ns_waitcnt vmcnt(0)")
    ag_horner(ool, False)
    ool("v_cmp_eq_u32 vcc, -1, v56\ns_and_b64 vcc, vcc, exec\ns_cbranch_scc0 PAG_ok\ns_cmp_eq_u32 s79, 0\ns_cbranch_scc1 PAG_ok\ns_sub_u32 s79, s79, 1\ns_sleep 1\ns_branch PAG_retry")
    t.lg("ds_write_b128 v%d, v[48:51] offset:1024" % vEW)
    for g, r in ((3, 52), (2, 56), (1, 60)): t.lg("ds_read_b128 %s, v%d offset:%d" % (Q(r), vER, 1024 + 256 * g), ("s", g))
    t.lg("ds_read_b128 %s, v%d offset:1024" % (Q(48), vER), ("s", 0))
    dly(t, 8)
    t.wait([("s", 2)]); horner_sc(t, 52, cL512, 56)
    t.lg("ds_read_b128 %s, v%d" % (Q(52), vER), ("e2", 0))
    t.wait([("s", 1)]); horner_sc(t, 56, cL512, 60)
    t.lg("ds_read_b128 %s, v%d offset:256" % (Q(56), vER), ("e2", 1))
    t.wait([("s", 0)]); horner_sc(t, 60, cL512, 48)
    t.lg("ds_read_b128 %s, v%d offset:512" % (Q(60), vER), ("e2", 2))
    t.wait([("e2", 0)]); horner_sc(t, 48, cL16, 52)
    t.wait([("e2", 1)]); horner_sc(t, 52, cL16, 56)
    t.wait([("e2", 2)]); horner_sc(t, 56, cL16, 60)
    for g, sm in ((52, 64), (56, 66), (60, 74)):
        for r in range(4): t("v_cndmask_b32 v%d, v%d, v%d, s[%d:%d]" % (48 + r, 48 + r, g + r, sm, sm + 1))
    horner_sc(t, 48, cL8, EA)
    t("v_xor_b32 v52, 16, v%d" % vTRR)
    st_r = {(T, h): (48, EA)[h] + T for T in range(2) for h in range(2)}
    st_i = {(T, h): (48, EA)[h] + 2 + T for T in range(2) for h in range(2)}
    TH = [(T, h) for T in range(2) for h in range(2)]
    xs = Seq()
    for x in range(8):
        for (T, h) in TH: t("v_fmac_f32 v%d, v%d, v%d" % (BR(T, x) + h, cL + T, st_r[T, h]))
        for (T, h) in TH: t("v_fmac_f32 v%d, v%d, v%d" % (BI(T, x) + h, cL + T, st_i[T, h]))
        for (T, h) in TH: t("v_fma_f32 v%d, -v%d, v%d, v%d" % (BR(T, x) + h, cL + 2 + T, st_i[T, h], BR(T, x) + h))
        for (T, h) in TH: t("v_fmac_f32 v%d, v%d, v%d" % (BI(T, x) + h, cL + 2 + T, st_r[T, h]))
        for (T, h) in TH: st_r[T, h] = BR(T, x) + h; st_i[T, h] = BI(T, x) + h
        if x % 2 == 1:
            m = x // 2; mo = (m % 2) * 2048
            for part, Fn in enumerate((BR, BI)):
                for T in range(2):
                    o = 56 + 4 * part + 2 * T
                    t("v_cvt_pk_bf16_f32 v%d, v%d, v%d\nv_cvt_pk_bf16_f32 v%d, v%d, v%d" % (o, Fn(T, x - 1), Fn(T, x - 1) + 1, o + 1, Fn(T, x), Fn(T, x) + 1))
                    t.lg("ds_write_b64 v%d, %s offset:%d" % (vTRW, P(o), mo + part * 1024 + 512 * T))
                t.atom(["s_waitcnt lgkmcnt(15)"] + [Op("ds_read_b64_tr_b16 %s, v%d offset:%d" % (R("a", aAG + 16 * part + 4 * m + 2 * half, 2), (vTRR, 52)[half], mo + part * 1024 + 256 * half), "lg", K(("tr", m, part, half))) for half in range(2)])
                mark(t, ("tr", m, part))
                after(xs, ("tr", m, part), 10)
                if (m, part) != (0, 0) and m < 3: after(xs, ("hl", m - 1 + part, 1 - part), cfg.get("hl_sp", 24))
                xs.vm("buffer_store_dwordx4 %s, v1, s[32:35], s%d offen offset:%d %s" % (R("a", aAG + 16 * part + 4 * m, 4), 72 + part, 1024 * m, hst), ("hl", m, part), needs=[("tr", m, part, 1)])
                mark(xs, ("hl", m, part))
    dly(xs, cfg.get("fc_lat", 60))
    flag(xs, fstore(64), [("hl", 3, 1)]); mark(xs, "flagc")
    t("v_accvgpr_read_b32 v48, a%d\nv_accvgpr_read_b32 v%d, a%d" % (PK["C"], vCA, PK["CA"]))
    for k in range(4): t("s_xor_b32 s65, s%d, %d\ns_lshl_b32 s65, s65, 16\nv_add_u32 v%d, s65, v48" % (sQ, k, vC + k))
    t("s_and_b32 s65, s%d, 1\ns_lshl_b32 s65, s65, 6\nv_xor_b32 v%d, s65, v%d" % (sTN, vCA, vCA))
    t("v_xor_b32 v%d, 64, v%d\nv_add_u32 v%d, 0x10000, v%d\nv_xor_b32 v%d, 64, v%d" % (vCA + 1, vCA, vCA + 2, vCA, vCA + 3, vCA + 2))
    vOO = 28
    t("v_accvgpr_read_b32 v24, a%d\nv_accvgpr_read_b32 v25, a%d\nv_lshlrev_b32 v25, 2, v25\nv_lshl_add_u32 v%d, v24, 12, v25" % (PK["TOK"], PK["COL"], vOO))
    mark(t, "cready")
    RB = lambda u, m: 128 + 16 * u + 4 * m
    after(t, "flagc", 1)
    t("s_lshl_b32 s65, s%d, 3\ns_add_u32 s65, s65, s%d\ns_lshl_b32 s66, s65, 18\ns_lshl_b32 s67, s%d, 14\ns_add_u32 s66, s66, s67\ns_add_u32 s66, s66, 0x%x" % (sI, sTN, sW, WS_PART))
    t.atom(["s_add_u32 s40, s6, s66", "s_addc_u32 s41, s7, 0"])
    t("s_and_b32 s41, s41, 0xffff\ns_mov_b32 s42, 0x34000\ns_mov_b32 s43, 0x20000")
    t("s_lshl_b32 s69, s65, 2\ns_add_u32 s69, s69, s%d\ns_lshl_b32 s69, s69, 7\ns_add_u32 s69, s69, 0x%x" % (sW, SM_F4))
    for d in (1, 2, 3):
        t("s_xor_b32 s67, s%d, %d\ns_lshl_b32 s66, s67, 16\ns_add_u32 s%d, s66, %d" % (sQ, d, 72 + d, (d - 1) * 4096))
        t("s_lshl_b32 s67, s67, 4\ns_add_u32 s67, s67, %d\nv_mov_b32 v%d, s67" % (4 * d, 28 + d))
        t("s_lshl_b32 s67, s%d, 16\ns_add_u32 s%d, s67, %d" % (sQ, 69 + d, (d - 1) * 4096))
    t("s_lshl_b32 s67, s%d, 4\nv_and_b32 v32, 3, v0\nv_lshl_add_u32 v32, v32, 2, s67" % sQ)
    t("s_mov_b32 s57, 0\ns_mov_b32 s58, 8192\ns_mov_b32 s59, 16384\ns_mov_b32 s64, 24576")
    t("v_mov_b32 v34, 0x3f80\nv_mov_b32 v35, 0x3f800000")
    mark(t, "setup")
    if cfg.get("tlb", 0):
        after(t, ("H", 43), 2)
        t.vm("buffer_load_dword a246, v29, s[40:43], s73 offen")
        t("v_readfirstlane_b32 s67, v%d" % vOO); dly(t, 3)
        t.vm("buffer_load_dword a246, v29, s[8:11], s67 offen")
    f4store = lambda d: "buffer_store_dword v%d, v%d, s[36:39], s69 offen %s" % (vTG, 28 + d, SC)
    f4load = "buffer_load_dword v33, v32, s[36:39], s69 offen %s" % SC
    gp = lambda d: 4 * pend_[d] + 3 + 3
    RV = lambda d, m: 128 + 32 * d + 16 + 4 * m
    rload = lambda d, m: "buffer_load_dwordx4 %s, v1, s[40:43], s%d offen offset:%d %s" % (Q(RV(d, m)), 69 + d, 1024 * m, SC)
    NFI = cfg.get("nfi", 3); NRI = cfg.get("nri", 1)
    fs = Seq(); rs = Seq(); pl_ = Seq(); assert NFI == 3
    for d in (1, 2, 3):
        t.at(gp(d))
        for m in range(4):
            A = 128 + 32 * d + 4 * m; Bq = A + 16
            t("v_cvt_pk_bf16_f32 v%d, v%d, v%d\nv_cvt_pk_bf16_f32 v%d, v%d, v%d\nv_cvt_pk_bf16_f32 v%d, v%d, v%d\nv_cvt_pk_bf16_f32 v%d, v%d, v%d" % (A, A, A + 1, A + 1, A + 2, A + 3, A + 2, Bq, Bq + 1, A + 3, Bq + 2, Bq + 3))
            mark(t, ("cv", d, m))
            after(xs, ("cv", d, m), 1)
            xs.vm("buffer_store_dwordx4 %s, v1, s[40:43], s%d offen offset:%d %s" % (Q(A), 72 + d, 1024 * m, SC), ("ps", d, m)); mark(xs, ("ps", d, m))
        if d <= NFI:
            after(fs, ("ps", d, 3), cfg.get("f4_lat", 44)); flag(fs, f4store(d), [("ps", d, 3)]); mark(fs, ("f4", d))
        f4l = f4load.replace("v33,", "v%d," % (35 + d))
        after(pl_, ("f4", d), cfg.get("p4_lat", 30)); pl_.vm(f4l, ("f4l", d)); mark(pl_, ("f4l", d))
        after(rs, ("f4l", d), cfg.get("p4_rt", 36))
        poll(rs, "P4%d" % d, f4l, 35 + d, ("f4l", d), mask=str(1 << d))
        for m in range(4):
            rs.vm(rload(d, m), ("pl", d, m)); mark(rs, ("pl", d, m)); dly(rs, cfg.get("r_sp", 8))
    hs = Seq(); hdl = {}
    if not HPN: poll(hs, "P3a0", fload(96), vPD, "f3a0", early=cfg.get("pa_gap", 12))
    for u in range(nh_pre[0], 44):
        if u in own: continue
        for (U, nm, off, fl, lat) in ((UA, "P3a", 0, None, 0), (UB, "P3b", 32, "flagb", cfg.get("pb_lat", 80)), (UC, "P3c", 64, "flagc", cfg.get("pc_lat", 80))):
            if u == (max(U - 2, nh_pre[0]) if U != UC else U):
                if fl: after(hs, fl, lat)
                hs.vm(fload(off), nm); mark(hs, nm + "l")
            if u == U:
                after(hs, nm + "l", cfg.get("poll_rt", 44)); poll(hs, nm, fload(off), vPD, nm); mark(hs, nm)
        n0 = len(hs.u)
        for m in range(4): hload(hs, u, m, max(hfree[u], 4 * firstuse[u] - cfg.get("l2_la", 400)))
        for i in range(n0, len(hs.u)): hdl[i] = 4 * firstuse[u] - 1
        mark(hs, ("H", u))
    ds = Seq(); ddl = {}
    DL = lambda st: bar[st // B2 * B2 - 1] if st < 14 else (bar[13] if st < 18 else barF)
    for st in range(NPRE2, 22):
        n0 = len(ds.u)
        if st == "E":
            after(ds, "cready", 1); after(ds, ("hl", 3, 1), 1)
            for n in range(4):
                ds("s_mov_b32 s%d, %d\ns_add_u32 m0, s46, %d" % (sKD, 32768 * n, 2048 + 1024 * n))
                ds.vm("buffer_load_dwordx4 v26, s[24:27], s%d offen lds" % sKD)
            ds("s_add_u32 m0, s46, 6144"); ds.vm("buffer_load_dwordx4 v1, s[36:39], s59 offen lds")
            ds("s_add_u32 m0, s46, 7168"); ds.vm("buffer_load_dwordx4 v1, s[28:31], s58 offen lds", "Elast"); mark(ds, "edma")
            dl = 900
        else:
            if st == 14: after(ds, "cready", 1)
            for k in range(4): dma2(ds, st, k, bar[prevocc[st] // B2 * B2 + B2 - 1] + 1 if st >= 8 else 0)
            dl = DL(st)
            mark(ds, ("D", st))
        for i in range(n0, len(ds.u)): ddl[i] = dl
    RS = Stream("r", rs.units(), 2, deadline=lambda i: cfg.get("r_prio", -3)); PS = Stream("pl", pl_.units(), 2, deadline=lambda i: -2); RS.overflow = PS.overflow = True
    mk = multi(sc, [Stream("h", hs.units(), 2, deadline=lambda i: hdl.get(i, 0)), Stream("d", ds.units(), 2, deadline=lambda i: ddl.get(i, 0)),
                    Stream("x", xs.units(), 2), Stream("t", t.units(), 3, start=1), RS, PS, Stream("f", fs.units(), 2, deadline=lambda i: -2)],
               cl=cfg.get("cl", 70), cs=cfg.get("cs", 210), B0=cfg.get("b0", 150), busy0=cfg.get("busy0", 300))
    sl = sorted([(4 * firstuse[u] - 1 - mk[("H", u)], "h", u) for u in range(nh_pre[0], 44) if u not in own] + [(DL(st) - mk[("D", st)], "d", st) for st in range(NPRE2, 22)])
    if cfg.get("verbose"):
        print("loop2 slacks", sl[:6], {k: v for k, v in mk.items() if isinstance(k, str)}, "hl", [mk[("hl", m, p)] for m in range(4) for p in range(2)], "ps", [mk[("ps", d, m)] for d in (1, 2, 3) for m in range(4)], "barF", barF, "f4", [mk.get(("f4", d)) for d in (1, 2, 3)], "f4l", [mk.get(("f4l", d)) for d in (1, 2, 3)], "pl", [mk.get(("pl", d, m)) for d in (1, 2, 3) for m in range(4)])
    assert sl[0][0] > cfg.get("minslack", 30), sl[:4]
    assert mk["cready"] < rgap[firstuse[28]] and mk[("hl", 3, 1)] < 4 * firstuse[28] - 1 and mk["setup"] < gp(1) and mk[("tr", 3, 1)] < VFREE
    for nm in names:
        if TS and nm[0] == "g" and nm[1:].isdigit():
            g_ = 4 * (16 * (int(nm[1:]) + 1) - L2) - 2
            sc.put(g_ - 1, [Op("s_memrealtime s[100:101]")], 5)
            sc.put(g_, [Op("s_waitcnt lgkmcnt(0)\nv_writelane_b32 v%d, s100, %d" % (vTS, names.index(nm)))], 5)
    if cfg.get("drop"):
        for g in range(cfg.get("drop_lo", 120), cfg.get("drop_hi", 600)):
            for it in sc.g[g]:
                o = it[2]
                if it[0] in (2, 3) and o.text and "\n" not in o.text and not o.text.endswith(":"):
                    c = opclass(o.text)
                    if it[0] == 2 and not (c == "X" and "x4" in o.text): continue
                    if c in cfg["drop"] and "cmp" not in o.text and not any(("v%d," % r) in o.text.split(None, 2)[1] + "," for r in range(16, 32)):
                        o.text = "s_nop 0" if cfg.get("dropnop") else ""
    prog.add(sc.ops())
    stamp(s, "end2")
    def addp(d, m):
        s.wait([("pl", d, m)])
        for k in range(8):
            r = RB(k // 4, m) + k % 4
            s("v_dot2_f32_bf16 v%d, v%d, v%d, v%d" % (r, RV(d, m) + k // 2, 34 + k % 2, r))
    for un in PS.units[PS.pos:]: s.u.append([un[0], None])
    added = set()
    for un in RS.units[RS.pos:]:
        if un[0][0].needs and not un[0][0].text:
            for d in (1, 2):
                for m in range(4):
                    if ("pl", d, m) in mk and (d, m) not in added: addp(d, m); added.add((d, m))
        s.u.append([un[0], None])
    stamp(s, "poll4")
    for d in (1, 2):
        for m in range(4):
            if (d, m) not in added: addp(d, m)
    sM4 = [57, 58, 59, 64]
    for m in range(4):
        addp(3, m)
        stamp(s, "r%d" % m)
        s.vm("buffer_store_dwordx4 %s, v%d, s[8:11], s%d offen %s" % (Q(RB(0, m)), vOO, sM4[m], cfg.get("ost", SC)))
        s("s_nop 1")
        s.vm("buffer_store_dwordx4 %s, v%d, s[8:11], s%d offen offset:64 %s" % (Q(RB(1, m)), vOO, sM4[m], cfg.get("ost", SC)))
    prog.add(s.done())
    prog.emit(a)
    a("s_cmp_eq_u32 s%d, 31\ns_cbranch_scc0 L_noep\ns_cmp_eq_u32 s%d, 0\ns_cbranch_scc0 L_noep" % (sB, sJ))
    a("v_mov_b32 v40, 0x%x\ns_mov_b64 exec, 1\nbuffer_store_dword v%d, v40, s[36:39], 0 offen %s\ns_mov_b64 exec, -1" % (SM_EP, vTG, SC))
    a("L_noep:")
    if TS:
        a("s_waitcnt vmcnt(0)\ns_memrealtime s[100:101]\ns_waitcnt lgkmcnt(0)\nv_writelane_b32 v%d, s100, %d" % (vTS, len(names) - 1))
        a("s_cmp_lg_u32 s%d, %d\ns_cbranch_scc1 L_end" % (sW, cfg.get("tsw", 0)))
        if cfg.get("leak"):
            A, B = cfg["leak"].split(":")
            a("s_cmp_lg_u32 s2, %d\ns_cbranch_scc1 L_end" % cfg.get("leakwg", 100))
            a("v_readlane_b32 s64, v%d, %d\nv_readlane_b32 s65, v%d, %d\ns_nop 4\ns_sub_u32 s64, s65, s64\ns_mul_i32 s64, s64, %d\ns_min_u32 s64, s64, 200000" % (vTS, names.index(A), vTS, names.index(B), cfg.get("leakk", 8)))
            a("L_leak:\ns_memrealtime s[66:67]\ns_waitcnt lgkmcnt(0)\ns_sub_u32 s66, s66, s100\ns_cmp_lt_u32 s66, s64\ns_cbranch_scc1 L_leak")
        ws_srd(a, 12, WS_TS, 16384)
        a("s_lshl_b32 s75, s2, 6\nv_lshlrev_b32 v1, 2, v0\ns_mov_b64 exec, 0xffff\nbuffer_store_dword v%d, v1, s[12:15], s75 offen" % vTS)
    if cfg.get("rc"): STAMPS[1:1 + len(RC)] = RC
    a("L_end:")
    a("s_endpgm")
    if ".p2align 12" in a.lines and cfg.get("oolf", 1):
        i = a.lines.index(".p2align 12"); a.lines[i:i] = ool.lines
    else: a.lines += ool.lines
    a("L_codeend:")
    return name, a

DOC = """;
; instruction placed by hand-written rules into the issue gaps between the 16x16x32 bf16 MFMAs).
;   phase 1  [gate | up | B_re | B_im] projection, tile 256 x 288, weights by LDS-DMA, xn straight into registers
;   phase 2  [w_down ; C_re ; -C_im] projection, tile 256 x 128, K split over 4 workgroups, partial sums exchanged
"""

def inst_sizes(lines):
    import subprocess, tempfile, os, re
    d = tempfile.mkdtemp()
    und = sorted(set(re.findall(r"L_trB?\d+\b", "\n".join(lines))))
    open(d + "/a.s", "w").write('.amdgcn_target "amdgcn-amd-amdhsa--gfx950"\n' + "\n".join(l for l in lines if not l.startswith(".p2align 12")) + "\n" + "".join(u + ":\n" for u in und))
    subprocess.check_call(["clang", "-x", "assembler", "-target", "amdgcn-amd-amdhsa", "-mcpu=gfx950", "-c", d + "/a.s", "-o", d + "/a.o"])
    o = subprocess.check_output(["llvm-objdump", "-d", "--mcpu=gfx950", d + "/a.o"], text=True)
    sz = [4 * len(m.group(1).split()) for m in re.finditer(r"// [0-9A-F]+: ([0-9A-F ]+)", o)]
    n = sum(1 for l in lines if parse(l))
    assert n == len(sz), (n, len(sz))
    return sz

def add_stubs(lines, cfg):
    NL = 1; step = cfg.get("tr_step", 128)
    sz = iter(inst_sizes(lines)); size = [next(sz) if parse(l) else 0 for l in lines]
    i0 = lines.index("L_main:"); iend = lines.index("L_end:")
    out = lines[:i0 + 1]; off = 0; targets = [4096 * p + step * k for p in range(0, 40) for k in range(NL)]
    n = 0; pos = []
    def penalty(i):
        if not lines[i - 1].startswith("v_mfma"): return 0 if not any(l.startswith("v_mfma") for l in lines[max(0, i - 6):i + 6]) else 1
        j = i; c = ["S"]
        while not lines[j].startswith("v_mfma") and j - i < 8:
            try: c.append(opclass(lines[j]))
            except AssertionError: return 0
            j += 1
        t = gap_time(c)
        return 0 if (t is not None and t <= 16) else 1
    for i in range(i0 + 1, len(lines)):
        if i < iend and size[i] and off >= targets[n] and (penalty(i) == 0 or off + size[i] > targets[n] + 56):
            out.append("L_tr%d:" % n); out.append(("STUB", n)); off += 4; n += 1
        out.append(lines[i]); off += size[i]
    n1 = min(n, cfg.get("tr_n", 14))
    res = []
    for l in out:
        if isinstance(l, tuple):
            k = l[1]; nx = k + 4
            if k < n1: res.append("s_cbranch_execz %s" % ("L_tr%d" % nx if nx < n1 else "L_trret"))
            elif cfg.get("tr2", 1): res.append("s_cbranch_execz %s" % ("L_tr%d" % nx if nx < n else "L_trret2"))
            else: res.append("s_nop 0")
        elif "L_trB" in l:
            k = n1 + int(l[-1]); res.append(l.replace("L_trB" + l[-1], "L_tr%d" % k if k < n else "L_trret2"))
        else: res.append(l)
    if cfg.get("verbose"): print("pages", n)
    return res

def build(cfg):
    name, a = gen(cfg)
    hdr = open("cdna_kernels/%s.s.ref" % NAME).read().split("; Override launch")[0]
    out = hdr + "; @launch grid=(256,1,1) block=(256,1,1) lds=163840\n"
    out += DOC
    out += '.amdgcn_target "amdgcn-amd-amdhsa--gfx950"\n'
    lines = pad_hazards([l for l in a.lines if l], cfg.get("verbose", 0) > 1)
    if cfg.get("tramp", 1): lines = add_stubs(lines, cfg)
    if cfg.get("verbose"): print(gap_report(lines))
    if cfg.get("lsc"): lines = [l.replace("sc0 sc1", cfg["lsc"]) if l.startswith("buffer_load") else l for l in lines]
    if cfg.get("jit"):
        import random
        rnd = random.Random(cfg["jit"]); outl = []; n = 0; nm = 0
        at = set(rnd.sample(range(3712), 10)) | {0, 150, 2303, 2304}
        for l in lines:
            hit = False
            if l.startswith("v_mfma"):
                hit = nm in at; nm += 1
            if l.startswith(("P1_chk:", "P1b_chk:", "L_trret2:", "L_epi:")) or "agfill" in l: hit = True
            if hit:
                n += 1
                outl += ["s_cselect_b32 s101, 1, 0", "s_mul_i32 s100, s2, %d" % rnd.randrange(1, 1 << 12, 2), "s_add_u32 s100, s100, s62" if rnd.random() < 0.5 else "s_nop 0", "s_bfe_u32 s100, s100, 0x%x" % (0x40000 + rnd.randrange(0, 4)),
                         "s_cmp_lg_u32 s100, %d" % rnd.randrange(16), "s_cbranch_scc1 L_jit%d" % n] + ["s_sleep 127"] * rnd.randrange(1, 3) + ["L_jit%d:" % n, "s_cmp_eq_u32 s101, 1"]
            outl.append(l)
        lines = outl
    la = cfg.get("laux"); da = cfg.get("daux")
    if la: lines = [l + " " + la if (l.startswith("buffer_load_dwordx4 a[") and "sc1" not in l) else l for l in lines]
    if da: lines = [l.replace(" lds", " %s lds" % da) if l.endswith(" lds") else l for l in lines]
    out += "\n".join(lines) + "\n"
    if cfg.get("cyc"): out = out.replace("s_memrealtime", "s_memtime")
    b = Asm(); kernel_desc(b, name, 512, accum=256); out += b.text()
    return out

if __name__ == "__main__":
    cfg = {}
    for kv in sys.argv[2:]:
        k, v = kv.split("=")
        try: v = int(v)
        except ValueError:
            try: v = float(v)
            except ValueError: v = v.replace("+", " ")
        cfg[k] = v
    open(sys.argv[1], "w").write(build(cfg))
```

```python
import sys, math, struct
from asmlib import *

NAME = "parallel_sum__ssm_conv_s5__glu_gated_geglu__prompt"
KX, KLRE, KLIM, KBRE, KBIM, KCRE, KCIM, KLDT, KDSK, KBX, KWG, KWU, KWD, KOUT, KDBG, KWS = [8 * i for i in range(16)]
WS_XN = 0
WS_H = 0x400000
H_BLK = 176 * 4096
WS_SM = 0x1A00000
SM_AG = 0; SM_ST = 0x40000; SM_EP = 0x48000; SM_F1 = 0x50000; SM_F1B = 0x60000; SM_F3 = 0x70000; SM_F4 = 0xB0000; SM_SIZE = 0xF0000
WS_TS = 0x1B00000
WS_PART = 0x2000000
NSTAMPS = [16]
SPLIT_LAYOUT = True
XN_DIRECT = 0
STAMPS = []

def f2u(x): return struct.unpack("<I", struct.pack("<f", x))[0]
def fx(x): return "0x%08x" % f2u(x)
P = lambda r: "v[%d:%d]" % (r, r + 1)
Q = lambda r: "v[%d:%d]" % (r, r + 3)
LOG2E = 1.4426950408889634
K = lambda v: (lambda it: v)

def ws_srd(a, r, off, size):
    a("s_add_u32 s%d, s6, 0x%x\ns_addc_u32 s%d, s7, 0\ns_and_b32 s%d, s%d, 0xffff\ns_mov_b32 s%d, 0x%x\ns_mov_b32 s%d, 0x20000" % (r, off, r + 1, r + 1, r + 1, r + 2, size, r + 3))

def mfma16(d, A, B, zero=False):
    return "v_mfma_f32_16x16x32_bf16 %s, %s, %s, %s" % (R(d[0], d[1], 4), R(A[0], A[1], 4), R(B[0], B[1], 4), "0" if zero else R(d[0], d[1], 4))

def cmul_pk(a, dr, di, ar, ai, br, bi, t):
    a("v_pk_mul_f32 %s, %s, %s" % (P(t), P(ai), P(bi)))
    a("v_pk_fma_f32 %s, %s, %s, %s neg_lo:[0,0,1] neg_hi:[0,0,1]" % (P(t), P(ar), P(br), P(t)))
    a("v_pk_mul_f32 %s, %s, %s" % (P(t + 2), P(ar), P(bi)))
    a("v_pk_fma_f32 %s, %s, %s, %s" % (P(di), P(ai), P(br), P(t + 2)))
    a("v_mov_b32 v%d, v%d\nv_mov_b32 v%d, v%d" % (dr, t, dr + 1, t + 1))

def horner_pk(a, s, L, e, d):
    a("v_pk_fma_f32 %s, %s, %s, %s" % (P(d), P(L), P(s), P(e)))
    a("v_pk_fma_f32 %s, %s, %s, %s" % (P(d + 2), P(L), P(s + 2), P(e + 2)))
    a("v_pk_fma_f32 %s, %s, %s, %s neg_lo:[1,0,0] neg_hi:[1,0,0]" % (P(d), P(L + 2), P(s + 2), P(d)))
    a("v_pk_fma_f32 %s, %s, %s, %s" % (P(d + 2), P(L + 2), P(s), P(d + 2)))

def horner_sc(a, s, L, e):
    for T in range(2):
        a("v_fmac_f32 v%d, v%d, v%d" % (e + T, L + T, s + T)); a("v_fmac_f32 v%d, v%d, v%d" % (e + 2 + T, L + T, s + 2 + T))
    for T in range(2):
        a("v_fma_f32 v%d, -v%d, v%d, v%d" % (e + T, L + 2 + T, s + 2 + T, e + T)); a("v_fmac_f32 v%d, v%d, v%d" % (e + 2 + T, L + 2 + T, s + T))

def gelu_block(a, items, CC, T):
    for k, (g, u, o) in enumerate(items): a("v_pk_mul_f32 %s, %s, %s" % (P(T + 2 * k), P(g), P(g)))
    for k, (g, u, o) in enumerate(items): a("v_pk_fma_f32 %s, %s, %s, %s op_sel:[0,1,0] op_sel_hi:[1,1,0]" % (P(T + 2 * k), P(T + 2 * k), P(CC), P(CC)))
    for k, (g, u, o) in enumerate(items): a("v_pk_mul_f32 %s, %s, %s" % (P(T + 2 * k), P(T + 2 * k), P(g)))
    for k, (g, u, o) in enumerate(items):
        a("v_exp_f32 v%d, v%d" % (T + 2 * k, T + 2 * k)); a("v_exp_f32 v%d, v%d" % (T + 2 * k + 1, T + 2 * k + 1))
        a("v_pk_mul_f32 %s, %s, %s" % (P(u), P(g), P(u)))
    for k, (g, u, o) in enumerate(items): a("v_pk_add_f32 %s, %s, 1.0 op_sel_hi:[1,0]" % (P(T + 2 * k), P(T + 2 * k)))
    for k, (g, u, o) in enumerate(items):
        a("v_rcp_f32 v%d, v%d" % (T + 2 * k, T + 2 * k)); a("v_rcp_f32 v%d, v%d" % (T + 2 * k + 1, T + 2 * k + 1))
    for k, (g, u, o) in enumerate(items): a("v_pk_mul_f32 %s, %s, %s" % (P(u), P(u), P(T + 2 * k)))
    for k, (g, u, o) in enumerate(items): a("v_cvt_pk_bf16_f32 v%d, v%d, v%d" % (o, u, u + 1))

class Seq:
    def __init__(self): self.u = []
    def __call__(self, s):
        for l in s.split("\n"):
            l = l.strip()
            assert not l.startswith(("buffer_", "global_", "ds_")), ("uncounted memory op", l)
            self.u.append([[Op(l)], None])
    def atom(self, ops, early=None): self.u.append([[o if isinstance(o, Op) else Op(o) for o in ops], early])
    def vm(self, text, tag=None, needs=None, early=None):
        if needs: self.wait(needs, early=early); early = None
        self.u.append([[Op(text, "vm", K(tag) if tag is not None else None)], early])
    def lg(self, text, tag=None, needs=None):
        if needs: self.wait(needs)
        self.u.append([[Op(text, "lg", K(tag) if tag is not None else None)], None])
    def wait(self, needs, drain=None, early=None): self.u.append([[Op("", needs=K(needs) if needs else None, drain=drain)], early])
    def op(self, o, early=None): self.u.append([[o], early])
    def delay(self, n):
        self._d = n; i = len(self.u) - 1
        self.u.append([[Op("")], lambda res, n=n: res[-1] + n])
    def at(self, g): self.u.append([[Op("")], g])
    def done(self):
        o = [x for un, _ in self.u for x in un]; self.u = []; return o
    def units(self):
        u = self.u; self.u = []; return u

def order_mfma(groups):
    ch = [groups[2 * p][1] == groups[2 * p + 1][1] for p in range(len(groups) // 2)]
    out = []; up = True
    for p, c in enumerate(ch):
        if c:
            for m in (range(4) if up else range(3, -1, -1)): out += [(2 * p, m), (2 * p + 1, m)]
            up = not up
        else:
            for G in (2 * p, 2 * p + 1):
                out += [(G, m) for m in (range(4) if up else range(3, -1, -1))]; up = not up
    return out, (lambda G: G & ~1 if ch[G // 2] else G), (lambda G: G | 1 if (G >= 0 and ch[G // 2]) else G)

W_ST = 28672; U_OFF = 14336
B_BASE = 131072; B_ST = 8192
LN_LDS = 65536 + W_ST

def gen(cfg):
    name = NAME + "_kernel"
    a = Asm(); kernel_header(a, name)
    ool = Asm()
    TS = cfg.get("ts")
    names = ["start"] + cfg.get("stamps", "flag1 poll1 loop1 end1 p01 pub loop2 end2 poll4").split() + ["end"]
    STAMPS[:] = names; NSTAMPS[0] = len(names)
    vTS = 15; RC = []
    def stamp(s, nm):
        if TS and nm in names: s.atom(["s_memrealtime s[100:101]", "s_waitcnt lgkmcnt(0)", "v_writelane_b32 v%d, s100, %d" % (vTS, names.index(nm))])
    SC = cfg.get("sc", "sc0 sc1")
    HL = cfg.get("hl", "sc1")
    FS = cfg.get("f1s", 128)
    prog = Prog(); s = Seq()
    sJ, sI, sW, sB, sQ, sTN, sTAG = 60, 61, 62, 63, 52, 53, 3
    sMW, sM3, sMB, sKW, sKB, sKX, sCNT = 54, 55, 56, 57, 58, 59, 81
    sPAs, sKPA, sKPB, sPBs = 76, 77, 78, 80
    def poll(s, nm, loadtext, dst, tagneed, mask=None, early=None):
        s.wait([tagneed], early=early)
        s.atom(["%s_chk:" % nm, "v_cmp_ne_u32 vcc, s%d, v%d" % (sTAG, dst), "s_and_b64 vcc, vcc, %s" % (mask or "exec"), "s_cbranch_scc1 %s_retry" % nm, "%s_ok:" % nm])
        ool("%s_retry:" % nm)
        if cfg.get("rc"): RC.append(nm); ool("v_readlane_b32 s100, v15, %d\ns_nop 3\ns_add_u32 s100, s100, 100\nv_writelane_b32 v15, s100, %d" % (len(RC), len(RC)))
        ool("%s_r2:\ns_cmp_eq_u32 s79, 0\ns_cbranch_scc1 %s_ok\ns_sub_u32 s79, s79, 1\ns_sleep %d\n%s\ns_waitcnt vmcnt(0)\ns_branch %s_chk" % (nm, nm, cfg.get("psl", 1), loadtext, nm))
    def flag(s, text, needs, early=None):
        s.wait(needs, early=early)
        s.atom(["s_mov_b64 exec, %d" % (15 if "x4" in text else 1), Op(text, "vm"), "s_mov_b64 exec, -1"])

    s("s_cmp_ge_u32 s2, 256\ns_cbranch_scc1 L_end")
    if cfg.get("gx"): s("s_xor_b32 s2, s2, %d" % cfg["gx"])
    if TS: s("s_memrealtime s[100:101]")
    CP = cfg.get("cpf", 1)
    s("s_load_dwordx2 s[4:5], s[0:1], %d" % KX)
    s("s_load_dwordx2 s[6:7], s[0:1], %d" % KWS)
    s("s_load_dwordx4 s[12:15], s[0:1], %d" % KWG)
    s("s_load_dwordx4 s[24:27], s[0:1], %d" % KBRE)
    s("s_load_dwordx4 s[96:99], s[0:1], %d" % KLRE)
    s("s_load_dwordx4 s[92:95], s[0:1], %d" % KLDT)
    s("s_load_dwordx4 s[84:87], s[0:1], %d" % KWD)
    s("s_load_dwordx4 s[88:91], s[0:1], %d" % KCRE)
    if CP:
        s("s_getpc_b64 s[82:83]")
        s.atom(["L_pc:"])
        s("s_lshr_b32 s64, s2, 3\ns_mul_i32 s64, s64, 28\nv_add_u32 v3, s64, v0\nv_cmp_gt_u32 vcc, 64, v0\nv_cndmask_b32 v2, v3, v0, vcc\nv_lshlrev_b32 v2, 7, v2")
        s("v_min_u32 v2, L_codeend-L_pc-4, v2\nv_mov_b32 v3, 0\nv_lshl_add_u64 v[2:3], v[2:3], 0, s[82:83]")
        s("v_cmp_gt_u32 vcc, 92, v0\ns_and_saveexec_b64 s[66:67], vcc\ns_cbranch_execz L_nocp")
        s.atom([Op("global_load_dword a246, v[2:3], off")])
        s.atom(["L_nocp:", "s_mov_b64 exec, -1"])
    s("v_lshrrev_b32 v1, 6, v0\nv_and_b32 v0, 63, v0")
    s("v_readfirstlane_b32 s%d, v1" % sW)
    s("v_lshlrev_b32 v1, 4, v0")
    s("s_mov_b32 s79, 0x40000")
    s("s_bfe_u32 s%d, s2, 0x20001" % sQ)
    s("s_and_b32 s64, s2, 1\ns_lshl_b32 s64, s64, 2\ns_lshr_b32 s%d, s2, 6\ns_add_u32 s%d, s%d, s64" % (sI, sI, sI))
    s("s_bfe_u32 s%d, s2, 0x30003" % sTN)
    s("s_lshl_b32 s%d, s%d, 3\ns_add_u32 s%d, s%d, s%d" % (sJ, sQ, sJ, sJ, sTN))
    s("s_lshl_b32 s%d, s%d, 2\ns_add_u32 s%d, s%d, s%d" % (sB, sI, sB, sB, sW))
    s("s_and_b32 s64, s2, 1\ns_lshl_b32 s64, s64, 1\ns_lshr_b32 s65, s%d, 1\ns_add_u32 s64, s64, s65\ns_lshl_b32 s64, s64, 4" % sW)
    s("s_lshl_b32 s65, s%d, 1\ns_add_u32 s64, s64, s65" % sQ)
    s("s_lshr_b32 s66, s2, 3\ns_lshl_b32 s65, s66, 6\ns_add_u32 s64, s64, s65")
    s("s_lshl_b32 s67, s64, 11\ns_and_b32 s68, s%d, 1\ns_lshl_b32 s65, s68, 8\ns_add_u32 s67, s67, s65" % sW)
    LQ = cfg.get("lq", 1)
    if LQ: s("v_and_b32 v48, 15, v0\nv_bfe_u32 v56, v0, 1, 1\nv_and_b32 v57, 1, v0\nv_lshl_add_u32 v56, v57, 3, v56\nv_lshrrev_b32 v57, 2, v0\nv_lshlrev_b32 v40, 11, v56\nv_lshl_add_u32 v40, v57, 4, v40")
    else: s("v_and_b32 v48, 15, v0\nv_lshrrev_b32 v56, 5, v0\nv_bfe_u32 v57, v0, 4, 1\nv_lshl_add_u32 v56, v57, 3, v56\nv_lshlrev_b32 v40, 11, v56\nv_lshl_add_u32 v40, v48, 4, v40")
    s("s_mov_b32 s10, %d\ns_mov_b32 s11, 0x20000" % (2048 * 2048))
    s("s_waitcnt lgkmcnt(0)")
    if TS: s("v_writelane_b32 v%d, s100, 0" % vTS)
    if cfg.get("rc"): s("v_mov_b32 v15, 0")
    stamp(s, "karg")
    s("s_mov_b32 s8, s4\ns_and_b32 s9, s5, 0xffff")
    for q in range(4): s.vm("buffer_load_dwordx4 %s, v40, s[8:11], s67 offen offset:%d" % (Q(64 + 4 * q), 512 * q), ("x", q))
    s("s_add_u32 s70, s6, 0x%x\ns_addc_u32 s71, s7, 0" % (WS_SM + SM_EP))
    s("s_load_dword s%d, s[70:71], 0" % sTAG)
    srd(s, 16, 14, 15, 1024 * 7168); srd(s, 12, 12, 13, 1024 * 7168)
    srd(s, 28, 26, 27, 1024 * 2048); srd(s, 24, 24, 25, 1024 * 2048)
    s("s_cmp_ge_u32 s%d, 2" % sW)
    s("s_cselect_b32 s20, s16, s12\ns_cselect_b32 s21, s17, s13\ns_mov_b32 s22, %d\ns_mov_b32 s23, 0x20000" % (1024 * 7168))
    ws_srd(s, 36, WS_SM, SM_SIZE)
    s("v_lshrrev_b32 v49, 4, v0")
    WGF = 1; vP1 = 63
    s("v_and_b32 v60, 31, v0\nv_lshlrev_b32 v60, 2, v60\ns_lshl_b32 s81, s%d, 7\ns_add_u32 s81, s81, 0x%x" % (sB, SM_F1B))
    s("v_and_b32 v63, 7, v0\nv_lshlrev_b32 v63, 6, v63\ns_lshl_b32 s75, s%d, 11\ns_lshl_b32 s65, s%d, 9\ns_add_u32 s75, s75, s65\ns_add_u32 s75, s75, 0x%x" % (sB, sQ, SM_F1))
    FT = cfg.get("ftouch", 0)
    if FT & 4: s.vm("buffer_load_dword a246, v63, s[36:39], s75 offen %s" % SC)
    if FT & 1: s.vm("buffer_load_dword a246, v60, s[36:39], s81 offen %s" % SC)
    s("v_mov_b32 v41, -1\nv_lshlrev_b32 v42, 2, v0\ns_xor_b32 s69, s2, 0xf8\ns_lshl_b32 s69, s69, 10\ns_lshl_b32 s65, s%d, 8\ns_add_u32 s69, s69, s65" % sW)
    s.vm("buffer_store_dword v41, v42, s[36:39], s69 offen %s" % SC, "agfill")
    vWA, vBA0, vBA1, vWA2, vW0, vW3, vB, vJ, vPA, vPB = 2, 3, 4, 5, 6, 9, 10, 12, 13, 14
    s("s_lshl_b32 s70, s66, 1\ns_and_b32 s65, s2, 1\ns_add_u32 s70, s70, s65")
    s("s_mul_i32 s69, s70, 7168\ns_mul_i32 s65, s%d, 1792\ns_add_u32 s69, s69, s65\nv_and_b32 v40, 31, v0\nv_min_u32 v40, 13, v40\nv_lshl_add_u32 v44, v40, 7, s69" % sQ)
    s("v_and_b32 v45, 3, v0\ns_lshl_b32 s69, s%d, 8\ns_lshl_b32 s65, s70, 2\ns_add_u32 s69, s69, s65\nv_add_u32 v45, s69, v45\nv_lshlrev_b32 v45, 11, v45" % sQ)
    if cfg.get("pfd"):
        n_ = cfg["pfd"]
        s("s_and_b32 s65, s2, 1\ns_mul_i32 s69, s65, %d\ns_add_u32 s69, s69, 7168\ns_mul_i32 s65, s65, %d\ns_add_u32 s65, s65, 8192\nv_cmp_gt_u32 vcc, 32, v0" % (-2 * 7168, -2 * 8192))
        s("v_mov_b32 v40, s69\nv_mov_b32 v43, %d\nv_cndmask_b32 v40, v40, v43, vcc\nv_add_u32 v44, v44, v40\nv_mov_b32 v40, s65\nv_mov_b32 v43, %d\nv_cndmask_b32 v40, v40, v43, vcc\nv_add_u32 v45, v45, v40" % (n_ * 64 * 7168, n_ * 128))
    s("s_mov_b32 s69, %d\ns_cmp_ge_u32 s%d, 2\ns_cselect_b64 vcc, -1, 0\nv_cndmask_b32 v%d, v44, v45, vcc\ns_cselect_b32 s%d, 128, s69" % (64 * 7168, sW, vPA, sPAs))
    s("s_cselect_b32 s40, s24, s12\ns_cselect_b32 s41, s25, s13\ns_cselect_b32 s69, s28, s16\ns_cselect_b32 s65, s29, s17\ns_cselect_b32 s42, s26, s14")
    s("s_bitcmp1_b32 s%d, 0\ns_cselect_b32 s40, s69, s40\ns_cselect_b32 s41, s65, s41\ns_mov_b32 s43, 0x20000\ns_mov_b32 s%d, 0" % (sW, sKPA))
    def pfa(s):
        s.vm("buffer_load_dword a246, v%d, s[40:43], s%d offen" % (vPA, sKPA)); s("s_add_u32 s%d, s%d, s%d" % (sKPA, sKPA, sPAs))
    def pfb(s):
        s.vm("buffer_load_dword a246, v%d, s[44:47], s%d offen" % (vPB, sKPB)); s("s_add_u32 s%d, s%d, s%d" % (sKPB, sKPB, sPBs))
    ND = cfg.get("dup0", 0)
    if ND:
        s("s_and_b32 s65, s2, 1\ns_lshl_b32 s65, s65, 1\ns_sub_u32 s65, 1, s65\ns_cmp_ge_u32 s%d, 2\ns_mov_b32 s69, 7168\ns_cselect_b32 s69, 8192, s69\ns_mul_i32 s69, s69, s65" % sW)
        s("v_lshrrev_b32 v43, 5, v0\nv_mul_lo_u32 v43, v43, s69\nv_add_u32 v%d, v%d, v43" % (vPA, vPA))
        for _ in range(ND): pfa(s)
        s("v_sub_u32 v%d, v%d, v43" % (vPA, vPA))
    if cfg.get("pfd"): s("s_mov_b32 exec_lo, 0")
    for _ in range(cfg.get("pf_t0", 3) - ND): pfa(s)
    if cfg.get("pfd"): s("s_mov_b64 exec, -1\ns_mul_i32 s%d, s%d, %d" % (sKPA, sPAs, cfg.get("pf_t0", 3) - cfg["pfd"]))
    s("s_and_b32 s71, s%d, 1\ns_lshl_b32 s71, s71, 1\ns_mul_i32 s72, s%d, 224\ns_and_b32 s73, s%d, 1\ns_add_u32 s73, s73, 12" % (sJ, sJ, sW))
    for k in range(4):
        if k < 3: s("s_add_u32 s69, s%d, %d\ns_lshl_b32 s69, s69, 6" % (sW, 4 * k))
        else: s("s_lshl_b32 s69, s73, 6")
        s("v_add_u32 v40, s69, v0\nv_mul_u32_u24 v44, 4682, v40\nv_lshrrev_b32 v44, 16, v44\nv_mul_u32_u24 v45, 14, v44\nv_sub_u32 v45, v40, v45")
        s("v_add_u32 v45, s71, v45\nv_subrev_u32 v43, 14, v45\nv_min_u32 v45, v45, v43")
        s("v_lshrrev_b32 v43, 1, v44\nv_xor_b32 v43, v43, v44\nv_and_b32 v43, 4, v43\nv_mul_u32_u24 v43, 3, v43\nv_xor_b32 v44, v44, v43")
        s("v_mul_u32_u24 v44, 7168, v44\nv_lshl_add_u32 v44, v45, 4, v44\nv_add_u32 v%d, s72, v44" % (vW0 + k))
    s("v_lshrrev_b32 v50, 3, v0\ns_lshl_b32 s69, s%d, 3\nv_add_u32 v40, s69, v50\nv_bfe_u32 v44, v40, 1, 3\nv_and_b32 v51, 7, v0\nv_xor_b32 v44, v44, v51" % sW)
    s("v_lshlrev_b32 v47, 11, v40\nv_lshl_add_u32 v47, v44, 4, v47")
    s("s_lshl_b32 s69, s%d, 16\nv_add_u32 v%d, s69, v47" % (sJ, vB))
    s("s_lshl_b32 s%d, s%d, 10\ns_lshl_b32 s%d, s73, 10" % (sMW, sW, sM3))
    s("s_cmp_ge_u32 s%d, 2\ns_cselect_b32 s69, %d, 0\ns_add_u32 s%d, s%d, s69\ns_add_u32 s%d, s%d, %d" % (sW, U_OFF, sM3, sM3, sMB, sMW, B_BASE))
    s("s_lshl_b32 s65, s%d, 9\ns_add_u32 s65, s65, 57344\nv_lshl_add_u32 v52, v0, 3, s65\nv_xor_b32 v54, 512, v52" % sW)
    if LQ: s("v_lshlrev_b32 v55, 12, v49\nv_lshrrev_b32 v44, 2, v48\nv_lshl_add_u32 v55, v44, 8, v55\nv_and_b32 v44, 48, v1\nv_add_u32 v55, v55, v44")
    else: s("v_lshrrev_b32 v55, 2, v48\nv_lshlrev_b32 v55, 12, v55\nv_and_b32 v44, 3, v0\nv_lshl_add_u32 v55, v44, 8, v55\nv_lshl_add_u32 v55, v49, 4, v55")
    s("s_lshl_b32 s70, s66, 17\ns_lshl_b32 s67, s%d, 10\ns_add_u32 s70, s70, s67\ns_and_b32 s67, s2, 1\ns_lshl_b32 s67, s67, 7\ns_add_u32 s70, s70, s67" % sQ)
    s("s_lshr_b32 s67, s%d, 1\ns_lshl_b32 s67, s67, 6\ns_add_u32 s70, s70, s67\ns_lshl_b32 s67, s68, 14\ns_add_u32 s70, s70, s67" % sW)
    s("s_add_u32 s71, s70, 32768\ns_add_u32 s72, s70, 65536\ns_add_u32 s73, s70, 98304")
    s("s_lshl_b32 s74, s2, 7\ns_lshr_b32 s67, s%d, 1\ns_lshl_b32 s67, s67, 6\ns_add_u32 s74, s74, s67\ns_add_u32 s74, s74, 0x%x" % (sW, SM_ST))
    ws_srd(s, 48, WS_XN, 0x400000)
    dma_items = [(vW0, 12, sKW, sMW, 0), (vW0 + 1, 12, sKW, sMW, 4096), (vW0 + 2, 12, sKW, sMW, 8192), (vW3, 20, sKW, sM3, 0),
                 (vW0, 16, sKW, sMW, U_OFF), (vW0 + 1, 16, sKW, sMW, U_OFF + 4096), (vW0 + 2, 16, sKW, sMW, U_OFF + 8192),
                 (vB, 24, sKB, sMB, 0), (vB, 28, sKB, sMB, 4096)]
    def dma1(s, st, k, early=None):
        v, sr, so, mb, off = dma_items[k]
        isb = mb == sMB
        base = ((st >> 1) & 1) * (16384 if isb else 65536) + (st & 1) * (B_ST if isb else W_ST)
        if k == 0: s("s_mov_b32 s%d, %d" % (sKW, st * 64 * 7168))
        if k == 7: s("s_mov_b32 s%d, %d" % (sKB, st * 128))
        s("s_add_u32 m0, s%d, %d" % (mb, off + base))
        s.op(Op("buffer_load_dwordx4 v%d, s[%d:%d], s%d offen lds" % (v, sr, sr + 3, so), "vm", K(("D", st, k))), early)
    CH1 = cfg.get("ch1", 1)
    xalloc = {}; xprev = {}; fifo = [(("a", r), None) for r in (96, 112, 128, 144, 192)]
    for u in range(32):
        if u == 26: xalloc[u] = ("v", 48); xprev[u] = None; continue
        xalloc[u], xprev[u] = fifo.pop(0); fifo.append((xalloc[u], u))
    aX, aW, NWB = 96, 208, 8
    def xload(s, u, m, early=None):
        if m == 0: s("s_mov_b32 s%d, %d" % (sKX, u * 4096))
        s.op(Op("buffer_load_dwordx4 %s, v%d, s[8:11], s%d offen offset:%d %s" % (R(xalloc[u][0], xalloc[u][1] + 4 * m, 4), 1, sKX, 1024 * m, HL), "vm", K(("X", u, m))), early)
    def pro_stage(st):
        for k in range(9): dma1(s, st, k)
    ND0P = cfg.get("d_t0", 0)
    for k in range(ND0P): dma1(s, 0, k)
    EP_LDS = 131072; EPW = 8192
    PK = dict(C=252, CA=253, TOK=254, COL=255, D=240, TA=242, TRW=243, TRR=244, AG=245)
    s("v_lshrrev_b32 v40, 1, v48\nv_xor_b32 v40, v40, v49\nv_lshlrev_b32 v40, 4, v40\nv_lshl_add_u32 v40, v48, 7, v40")
    s("v_add_u32 v%d, %d, v40\nv_xor_b32 v%d, 64, v%d" % (vBA0, B_BASE, vBA1, vBA0))
    s("v_lshrrev_b32 v40, 1, v49\nv_lshlrev_b32 v40, 4, v40\nv_and_b32 v41, 1, v49\nv_lshlrev_b32 v41, 2, v41\nv_lshrrev_b32 v50, 2, v48\nv_add3_u32 v11, v40, v41, v50")
    s("v_mul_u32_u24 v40, 224, v11\nv_and_b32 v51, 3, v0\nv_lshl_add_u32 v%d, v51, 3, v40\nv_add_u32 v%d, 0x10000, v%d" % (vWA, vWA2, vWA))
    s("s_lshl_b32 s65, s%d, 17\ns_add_u32 s8, s6, s65\ns_addc_u32 s9, s7, 0\ns_and_b32 s9, s9, 0xffff\ns_mov_b32 s10, 0x20000" % sB)
    s("s_lshl_b32 s83, s2, 4\ns_lshl_b32 s65, s%d, 2\ns_add_u32 s83, s83, s65" % sW)
    if WGF: s("s_and_b32 s82, s2, 7\ns_lshl_b32 s82, s82, 6\ns_lshl_b32 s65, s66, 11\ns_add_u32 s82, s82, s65\ns_lshl_b32 s65, s%d, 9\ns_add_u32 s82, s82, s65\ns_add_u32 s82, s82, 0x%x" % (sW, SM_F1))
    else: s("s_add_u32 s82, s83, 0x%x" % SM_F1)
    s("s_add_u32 s83, s83, 0x%x" % SM_F1B)
    def tramp():
        s("s_mov_b64 exec, 0")
        for w in range(1, 4): s("s_cmp_eq_u32 s%d, %d\ns_cbranch_scc1 L_tr%d" % (sW, w, w))
        s("s_branch L_tr0")
        s.atom(["L_trret:"])
        s("s_mov_b64 exec, -1")
    TRP = cfg.get("tr_at", 2) if cfg.get("tramp", 1) else -1
    if TRP == 0: tramp()
    stamp(s, "prex")
    F = 80; D = 112; T0 = 144; ST = 28
    ln = Seq()
    def unpack(q):
        for i in range(4 * q, 4 * q + 4): ln("v_lshlrev_b32 v%d, 16, v%d\nv_and_b32 v%d, 0xffff0000, v%d" % (F + 2 * i, 64 + i, F + 2 * i + 1, 64 + i))
    def pack(q, dst=64):
        for i in range(4 * q, 4 * q + 4): ln("v_cvt_pk_bf16_f32 v%d, v%d, v%d" % (dst + i, F + 2 * i, F + 2 * i + 1))
    def hsum(dst):
        ln("v_pk_add_f32 %s, %s, %s\nv_add_f32 v%d, v%d, v%d" % (P(T0), P(T0), P(T0 + 2), T0, T0, T0 + 1))
        for sh in ((4, 8) if LQ else (1, 2, 4, 8)): ln("v_add_f32_dpp v%d, v%d, v%d row_ror:%d row_mask:0xf bank_mask:0xf" % (T0, T0, T0, sh))
        if LQ:
            for w_ in (16, 32): ln("v_mov_b32 v%d, v%d\nv_permlane%d_swap_b32 v%d, v%d\nv_add_f32 v%d, v%d, v%d" % (T0 + 1, T0, w_, T0, T0 + 1, T0, T0, T0 + 1))
        ln("v_mul_f32 v%d, %s, v%d" % (dst, fx(1.0 / 512), T0))
    for q in range(4):
        ln.wait([("x", q)])
        if q == 3:
            stamp(ln, "xin")
            for _ in range(cfg.get("pf_t1", 0)): pfa(ln)
            i_d0 = len(ln.u)
        unpack(q)
        if q == 0: ln("v_pk_add_f32 %s, %s, %s\nv_pk_add_f32 %s, %s, %s" % (P(T0), P(F), P(F + 2), P(T0 + 2), P(F + 4), P(F + 6)))
        else:
            for i in range(4): ln("v_pk_add_f32 %s, %s, %s" % (P(T0 + 2 * (i % 2)), P(T0 + 2 * (i % 2)), P(F + 8 * q + 2 * i)))
    hsum(ST)
    for i in range(16): ln("v_pk_add_f32 %s, %s, %s op_sel_hi:[1,0] neg_lo:[0,1] neg_hi:[0,1]" % (P(D + 2 * i), P(F + 2 * i), P(ST)))
    for i in range(16):
        if i < 2: ln("v_pk_mul_f32 %s, %s, %s" % (P(T0 + 2 * i), P(D + 2 * i), P(D + 2 * i)))
        else: ln("v_pk_fma_f32 %s, %s, %s, %s" % (P(T0 + 2 * (i % 2)), P(D + 2 * i), P(D + 2 * i), P(T0 + 2 * (i % 2))))
    hsum(ST + 1)
    ln.lg("ds_write_b64 v52, %s" % P(ST))
    ln.wait(None, drain=["lg"])
    ln("s_barrier")
    ln.lg("ds_read_b64 %s, v54" % P(T0), "oth")
    ln("s_mul_i32 s%d, s%d, 0x9E3779B1\ns_add_u32 s%d, s%d, 0x7F4A7C15\nv_mov_b32 v56, s%d" % (sTAG, sTAG, sTAG, sTAG, sTAG))
    ln.wait(["oth"])
    ln("v_sub_f32 v%d, v%d, v%d\nv_pk_add_f32 %s, %s, %s\nv_mul_f32 v%d, 0.5, v%d\nv_pk_mul_f32 %s, %s, 0.5 op_sel_hi:[1,0]\nv_fmac_f32 v%d, v%d, v%d" % (T0 + 2, ST, T0, P(ST), P(ST), P(T0), T0 + 2, T0 + 2, P(ST), P(ST), ST + 1, T0 + 2, T0 + 2))
    ln("v_cvt_pk_bf16_f32 v%d, v%d, v%d\nv_lshlrev_b32 v%d, 16, v%d\nv_and_b32 v%d, 0xffff0000, v%d" % (T0, ST, ST + 1, ST, T0, ST + 1, T0))
    ln(("v_add_f32 V, %s, V\nv_cvt_pk_bf16_f32 V, V, V\nv_and_b32 V, 0xffff0000, V\nv_sqrt_f32 V, V" % fx(1e-5)).replace("V", "v%d" % (ST + 1)))
    def sub(q):
        for i in range(4 * q, 4 * q + 4): ln("v_pk_add_f32 %s, %s, %s op_sel_hi:[1,0] neg_lo:[0,1] neg_hi:[0,1]" % (P(F + 2 * i), P(F + 2 * i), P(ST)))
    def fin(q):
        pack(q); unpack(q)
        for i in range(4 * q, 4 * q + 4): ln("v_pk_mul_f32 %s, %s, %s op_sel:[0,1] op_sel_hi:[1,1]" % (P(F + 2 * i), P(F + 2 * i), P(ST)))
        pack(q, 12 if q else 64)
    ln("v_cvt_pk_bf16_f32 V, V, V\nv_and_b32 V, 0xffff0000, V\nv_rcp_f32 V, V".replace("V", "v%d" % (ST + 1)))
    sub(0); fin(0)
    lu = ln.units()
    nD_0 = cfg.get("d_t1", 1 if ND0P else 0)
    if nD_0:
        dq = Seq(); step = cfg.get("d0_step", 10); pos = i_d0 + cfg.get("d0_off", 6)
        for k in range(ND0P, 9):
            dma1(dq, 0, k); un = dq.units()
            lu[pos:pos] = un[:-1]; pos += len(un); lu[pos:pos] = un[-1:]; pos += step
    s.u += lu
    xst = lambda q: "buffer_store_dwordx4 %s, v55, s[48:51], s%d offen %s" % (Q(12 + 4 * q if q else 64), 70 + q, SC)
    stst = lambda: (["s_mov_b64 exec, 15"] if LQ else ["s_mov_b32 exec_lo, 0x10001", "s_mov_b32 exec_hi, 0x10001"]) + [Op("buffer_store_dwordx4 %s, v%d, s[36:39], s74 offen %s" % (Q(ST), LQ, SC), "vm"), "s_mov_b64 exec, -1"]
    s.vm(xst(0), ("xn", 0))
    stamp(s, "xnst")
    for q in range(1, 4):
        sub(q); fin(q); s.u += ln.units()
    XBP = cfg.get("xbp", 0)
    TWO = 1
    nD_b = cfg.get("d_t3", 1)
    nD_c = cfg.get("d_t4", 2)
    nD_d = cfg.get("d_t5", 2)
    if TRP == 1: tramp()
    if WGF: s.wait([("xn", 0), "agfill"]); s("s_barrier")
    flag(s, "buffer_store_dwordx4 v[56:59], v1, s[36:39], s82 offen %s" % SC, [("xn", 0), "agfill"])
    stamp(s, "flag1")
    if TRP == 4: tramp()
    if cfg.get("bar_f"): s("s_barrier")
    stamp(s, "barf")
    def xb_now():
        s.atom(stst())
        for q in range(1, 4): s.vm(xst(q), ("xn", q))
    if XBP == 1: xb_now()
    for st in range(nD_0, nD_b): pro_stage(st)
    stamp(s, "d0")
    if TRP == 2: tramp()
    stamp(s, "trd")
    f1load = "buffer_load_dword v61, v%d, s[36:39], s75 offen %s" % (vP1, SC)
    s.vm(f1load, "f1")
    if XBP == 2: xb_now()
    for st in range(max(nD_0, nD_b), nD_c): pro_stage(st)
    nD_b = max(nD_0, nD_b, nD_c)
    if TRP == 3: tramp()
    stamp(s, "prepoll")
    if TRP >= 0:
        s("s_branch L_main"); s.atom([".p2align 12"]); s.atom(["L_main:"])
    poll(s, "P1", f1load, 61, "f1")
    stamp(s, "poll1")
    NXP = cfg.get("nxpre", 1 if cfg.get("ch1_first", 1) else 2)
    for u in range(NXP):
        for m in range(4): xload(s, u, m)
    if TRP == 5: tramp()
    if XBP == 3: xb_now()
    for _ in range(cfg.get("pf_t5", 0)): pfa(s)
    for st in range(nD_b, nD_d): pro_stage(st)
    nD_b = max(nD_b, nD_d)
    npfa = cfg.get("pf_t0", 3) + cfg.get("pf_t1", 0) + cfg.get("pf_t5", 0)
    NPB = cfg.get("npb", 4)
    tiles = []
    for q in range(7): tiles += [("G", q), ("U", q)]
    tiles += [("R", 0), ("I", 0), ("R", 1), ("I", 1)]
    def acc(t, m):
        k, q = t
        if k == "R": return ("v", 64 + 16 * q + 4 * m)
        if k == "I": return ("v", 96 + 16 * q + 4 * m)
        o = 32 * q + (16 if k == "U" else 0) + 4 * m
        return ("v", 128 + o) if q < 4 else ("a", o - 128)
    L0 = cfg.get("l1_lead", 4)
    KT = cfg.get("kt", 1)
    def stage_groups(st, tl):
        if CH1 and st >= cfg.get("ch1_first", 1): return [(2 * st + kk, ti) for ti in tl for kk in range(2)]
        return [(2 * st + kk, ti) for kk in range(2) for ti in tl]
    groups = []
    for st in range(14 if KT else 16): groups += stage_groups(st, range(18))
    if KT:
        for tl in (range(4), range(4, 18)):
            for st in (14, 15): groups += stage_groups(st, tl)
    NG = len(groups)
    mo, head, tail = order_mfma(groups)
    xfirst = {}; xlast = {}
    for G, (u, ti) in enumerate(groups): xfirst.setdefault(u, head(G)); xlast[u] = tail(G)
    parts = lambda G: [0, 1] if groups[G][1] < 14 else [None]
    def read1(G, part):
        u, ti = groups[G]; st, kk = divmod(u, 2); t = tiles[ti]; f = G % NWB
        if t[0] in "GU":
            off = (st & 1) * W_ST + (U_OFF if t[0] == "U" else 0) + kk * 7168 + part * 1792 + t[1] * 32
            return Op("ds_read_b64_tr_b16 %s, v%d offset:%d" % (R("a", aW + 4 * f + 2 * part, 2), (vWA, vWA2)[(st >> 1) & 1], off), "lg", K(("F", G, part)))
        off = (st & 3) * B_ST + (4096 if t[0] == "I" else 0) + t[1] * 2048
        return Op("ds_read_b128 %s, v%d offset:%d" % (R("a", aW + 4 * f, 4), vBA1 if kk else vBA0, off), "lg", K(("F", G, part)))
    rgap = {}
    for G in range(NG):
        f = G % 36
        g = G if (f < 33 or (KT and G >= 28 * 18)) else G - (1 if f < 35 else 2)
        rgap[G] = 4 * (g - L0) - 1
        assert rgap[G] >= 4 * tail(G - NWB) + 3
    gneed = lambda G: [("F", H, p) for H in range(G, tail(G) + 1) for p in parts(H)] + [("X", u, m) for u in range(32) if xfirst[u] == G for m in range(4)]
    s.wait([("D", 0, k) for k in range(9)])
    s("s_barrier")
    for G in range(NG):
        if rgap[G] < 0:
            for p in parts(G): s.op(read1(G, p))
    s.wait(gneed(0))
    stamp(s, "loop1")
    prog.add(s.done())
    mf = []
    for G, m in mo:
        u, ti = groups[G]; t = tiles[ti]
        xr = (xalloc[u][0], xalloc[u][1] + 4 * m); wr = ("a", aW + 4 * (G % NWB))
        mf.append(Op(mfma16(acc(t, m), wr, xr, u == 0) if t[0] in "GU" else mfma16(acc(t, m), xr, wr, u == 0)))
    sc = Sch(mf)
    for G in range(1, NG):
        w = Op("", needs=K(gneed(G)))
        w.keep = sum(len(parts(H)) for H in range(max(0, G - 2), min(NG, G + 10)) if rgap[H] == 4 * G - 1) == 2
        if w.keep or head(G) == G: sc.put(4 * G - 1, [w], 0)
    for G in range(NG):
        if rgap[G] >= 0: sc.put(rgap[G], [read1(G, p) for p in parts(G)], 1)
    bar = {}
    for st in range(15):
        bar[st] = rgap[xfirst[2 * st + 2]] - 1
        sc.put(bar[st], [Op("s_barrier", needs=K([("D", st + 1, k) for k in range(9)]), drain=["lg"] if st < 14 else None)], 0)
    items = []
    PFL = cfg.get("pfl", 9)
    pft = {}
    if cfg.get("pf1", 1):
        ev = cfg.get("pf_first", 70); st = npfa
        for k in range(npfa - cfg.get("pfd", 0), npfa): items.append((0, 2, ev - cfg.get("pfd_pre", 0), "a", k, 0))
        while st < 16:
            n = 0
            while st < 16 and (n < cfg.get("pf_max", 2) or (st == 15 and cfg.get("pf_l3", 1))) and (n == 0 or 144 * (st - 3 - PFL) < ev):
                e = max(int(144 * (st - 3 - PFL)), ev); pft[st] = e; items.append((0, 2, e, "a", st, 0)); st += 1; n += 1
            ev = e + cfg.get("pf_min", 288)
    for st in range(nD_b, 16):
        e = max(bar[st - 4] + 1 if st >= 4 else 0, pft.get(st, -1000) + cfg.get("pf_lat", 100))
        for k in range(9): items.append((bar[st - 1], 0, e, "d", st, k))
    for u in range(NXP, 32):
        e = 4 * xlast[xprev[u]] + 3 if xprev[u] is not None else 0
        for m in range(4): items.append((4 * xfirst[u] - 1, 1, max(e, 4 * xfirst[u] - (cfg.get("x_la", 230) if u != 8 else cfg.get("x_la8", 105))), "x", u, m))
    for k in range(1, 4 if not XBP else 0): items.append((0, 3, cfg.get("xb_first", 140) + cfg.get("xb_sp", 40) * (k - 1), "s", k, 0))
    items.append((0, 3, cfg.get("xb_first", 140) + cfg.get("xb_sp", 40) * 2 + cfg.get("xb_lat", 70) if not XBP else cfg.get("fb_at", 30), "f", 0, 0))
    items.append((0, 3, cfg.get("p1c_at", 430), "p", 0, 0))
    gC_ = sorted(set(pft.values()))[cfg.get("c_ev", 1)] if pft else 300
    items.append((0, 3, gC_, "c", 0, 0))
    gE_ = gC_ + cfg.get("e_off", 90)
    for n in range(4): items.append((gE_ + 100, 3, gE_ + 20 * n, "e", n, 0))
    f1cload = "buffer_load_dword v61, v60, s[36:39], s81 offen %s" % SC
    if cfg.get("pf2", 1):
        for c in range(NPB): items.append((0, 2, cfg.get("pfb_first", 646) + int(c * cfg.get("pfb_sp", 288)), "b", c, 0))
    now = 0; pend = sorted(items); done = []; quiet = -1
    FM = cfg.get("fm", 1); WL = cfg.get("fm_wl", 14); fifo = []; comp = cfg.get("fm_c0", 30); fsl = []; lastk = ""; PFD = cfg.get("pfd", 0); PFX = cfg.get("pfx", 0)
    while pend:
        nxt = {}
        for x in pend:
            if x[3] not in nxt or x[4:] < nxt[x[3]][4:]: nxt[x[3]] = x
        av = sorted(x for x in nxt.values() if x[2] <= now)
        if FM:
            occ = sum(n for c, n in fifo if c > now)
            lines_of = lambda x: {"d": WL if x[5] < 7 else 8, "x": 8, "a": 9 * (1 + bool(PFD)) + 8 * PFX, "b": 88 // NPB, "c": 10, "e": 16}.get(x[3], 1)
            if av and av[0][3] in "dx" and len(av) > 1 and av[1][3] in "dx" and av[0][3] == lastk and av[0][0] - now > cfg.get("alt_slack", 110): av = av[1:]
            av = [x for x in av[:1] if occ + lines_of(x) <= cfg.get("fm_c", 66)]
        if not av: now += 1; continue
        x = av[0]; pend.remove(x); lastk = x[3]
        if FM:
            lat = cfg.get("fm_slow", 64) if x[3] in "abc" else cfg.get("fm_fast", 36)
            comp = max(comp + 4.3, now + lat); fifo.append((comp, lines_of(x)))
            if x[3] in "dx": fsl.append((x[0] - comp, x[3], x[4], x[5]))
        fifo_now = now
        if x[3] == "d": dma1(s, x[4], x[5], int(now))
        elif x[3] == "x":
            if TWO and x[4:] == (8, 0): poll(s, "P1c", f1cload, 61, "f1c", early=int(now))
            xload(s, x[4], x[5], int(now))
        elif x[3] == "p": s.vm(f1cload, "f1c", early=int(now)); i_f1c = len(s.u) - 1
        elif x[3] == "a":
            s.at(int(now)); pfa(s); quiet = now + cfg.get("q_len", 64)
            if [y for y in pend if y[3] in "abc" and y[2] <= now]: now -= cfg.get("q_sp", 10) - 4
        elif x[3] == "c":
            s.at(int(now)); i_c0 = len(s.u) - 1
            for k, lo in enumerate((96, 98, 92)):
                s("s_mov_b32 s32, s%d\ns_and_b32 s33, s%d, 0xffff" % (lo, lo + 1))
                for T in range(2): s.vm("buffer_load_ushort v%d, v40, s[32:35], 0 offen offset:%d" % (16 + 2 * k + T, 32 * T), ("c", k, T))
            s("s_mov_b32 s32, s94\ns_and_b32 s33, s95, 0xffff")
            for u in range(2): s.vm("buffer_load_dwordx2 %s, v41, s[32:35], 0 offen offset:%d" % (R("a", 248 + 2 * u, 2), 32 * u), ("dk", u))
            if FT & 2:
                s.vm("buffer_load_dword a246, v42, s[36:39], 0 offen %s" % SC); now += 4
            i_c1 = len(s.u) - 1; now += 30
        elif x[3] == "s":
            if x[4] == 1: s.atom(stst(), int(now)); now += 4
            s.op(Op(xst(x[4]), "vm", K(("xn", x[4]))), int(now)); now += (4 - cfg.get("q_sp", 10)) if now < quiet else 10
        elif x[3] == "f":
            flag(s, "buffer_store_dword v56, v1, s[36:39], s83 offen %s" % SC, [("xn", 3)], early=int(now)); i_fb = len(s.u) - 1
        elif x[3] == "e":
            s("s_mov_b32 s70, %d\ns_add_u32 m0, s71, %d" % (32768 * x[4], 1024 * x[4]))
            s.op(Op("buffer_load_dwordx4 v12, s[48:51], s70 offen lds", "vm", K(("E", x[4]))), int(now)); i_e1 = len(s.u) - 1; now += 4
        else: s.at(int(now)); pfb(s); quiet = now + cfg.get("q_len", 64)
        if x[3] in "dx": done.append((x, len(s.u) - 1))
        if x[3:] == ("x", 8, 0): i_p1c = len(s.u) - 1
        if x[3:] == ("x", 26, 0): i_x26 = len(s.u) - 1
        if FM: now = fifo_now + {"c": 36, "s": cfg.get("fm_st", 16) + 4 * (x[4] == 1)}.get(x[3], cfg.get("fm_sp", 4.5))
        else: now += cfg.get("q_sp", 10) if now < quiet else cfg.get("l1_sp", 5)
    res = sc.stream(s.units(), 0, 2)
    sl = sorted((x[0] - res[i], x[3], x[4], x[5]) for x, i in done)
    if cfg.get("verbose") and FM: print("model slacks", sorted(fsl)[:5])
    if cfg.get("verbose"): print("loop1 vm end", res[-1], "of", 4 * NG, "min slacks", sl[:3], "steady", min(z for z in sl if z[2] > 8))
    for nm in names:
        if TS and nm[0] == "f" and nm[1:].isdigit():
            st_ = int(nm[1:])
            sc.put(bar[st_] - 1, [Op("s_memrealtime s[100:101]")], 5)
            sc.put(bar[st_], [Op("v_writelane_b32 v%d, s100, %d" % (vTS, names.index(nm)))], 5)
    if cfg.get("verbose"): print("flag b", res[i_fb], "poll load", res[i_f1c], "check", res[i_p1c])
    s.at(res[i_fb] + 1)
    cL, cC, cL8, cL16, cL64, cL512 = 16, 20, 24, 28, 32, 36
    s("s_mov_b32 s34, 2048\ns_mov_b32 s35, 0x20000")
    s("s_lshl_b32 s69, s%d, 5\nv_add_u32 v40, s69, v48\nv_lshlrev_b32 v40, 1, v40" % sJ)
    s("s_lshl_b32 s68, s%d, 7\ns_lshl_b32 s66, s%d, 5\ns_add_u32 s68, s68, s66\nv_lshl_add_u32 v41, v49, 2, s68\nv_accvgpr_write_b32 a%d, v41\nv_lshlrev_b32 v41, 1, v41" % (sTN, sQ, PK["COL"]))
    srd(s, 48, 4, 5, 2048 * 2048)
    s("s_lshl_b32 s66, s%d, 2\ns_add_u32 s66, s66, s%d\ns_lshl_b32 s66, s66, 7\ns_add_u32 s66, s66, 0x%x\nv_mov_b32 v42, s66" % (sB, sQ, SM_F3))
    s("s_lshl_b32 s66, s%d, 3\ns_add_u32 s66, s66, s%d\ns_lshl_b32 s66, s66, 2\ns_add_u32 s66, s66, s%d\ns_lshl_b32 s66, s66, 7\ns_add_u32 s66, s66, 0x%x\nv_writelane_b32 v42, s66, 0" % (sI, sTN, sW, SM_F4))
    s("s_lshl_b32 s68, s68, 1\ns_lshl_b32 s66, s%d, 17\ns_add_u32 s68, s68, s66\nv_lshrrev_b32 v12, 2, v0\nv_lshl_add_u32 v12, v12, 11, s68\nv_lshl_add_u32 v12, v51, 4, v12" % sB)
    s("s_lshr_b32 s66, s%d, 1\ns_lshl_b32 s66, s66, 16\ns_and_b32 s71, s%d, 1\ns_lshl_b32 s71, s71, 12\ns_add_u32 s71, s71, s66\ns_add_u32 s71, s71, 57344" % (sW, sW))
    r0 = sc.stream(s.units(), 0, 3)
    assert r0[-1] < res[i_c0]
    s.at(res[i_c1] + 1)
    s("v_subrev_u32 v40, %d, v%d\nv_accvgpr_write_b32 a%d, v40" % (B_BASE, vBA0, PK["CA"]))
    s("s_mul_i32 s69, s%d, %d\ns_add_u32 s69, s69, %d" % (sW, EPW, EP_LDS + 2048))
    s("v_and_b32 v41, 1, v49\nv_xor_b32 v41, v41, v51\nv_lshlrev_b32 v40, 5, v11\nv_lshl_add_u32 v40, v41, 3, v40\nv_add_u32 v40, s69, v40\nv_accvgpr_write_b32 a%d, v40" % PK["TRR"])
    s("v_lshrrev_b32 v40, 1, v48\nv_xor_b32 v40, v40, v48\nv_and_b32 v40, 4, v40\nv_mul_u32_u24 v40, 3, v40\nv_xor_b32 v40, v40, v48\nv_lshrrev_b32 v41, 2, v40\nv_xor_b32 v41, v41, v49\nv_lshlrev_b32 v40, 5, v40\nv_lshl_add_u32 v40, v41, 3, v40\nv_add_u32 v40, s69, v40\nv_accvgpr_write_b32 a%d, v40" % PK["TRW"])
    s("v_lshrrev_b32 v40, 2, v0\nv_and_b32 v41, 7, v40\nv_lshlrev_b32 v41, 5, v41\nv_lshl_add_u32 v41, v40, 8, v41\nv_lshl_add_u32 v41, v51, 3, v41\nv_accvgpr_write_b32 a%d, v41" % PK["TA"])
    s("s_lshl_b32 s68, s%d, 2\nv_add_u32 v40, s68, v49\nv_and_b32 v41, 7, v40\nv_bfe_u32 v51, v0, 1, 3\nv_xor_b32 v41, v41, v51\ns_lshl_b32 s66, s%d, 1\nv_xor_b32 v41, s66, v41\nv_lshlrev_b32 v41, 5, v41" % (sW, sQ))
    s("v_and_b32 v51, 1, v0\nv_lshl_add_u32 v41, v51, 4, v41\ns_mul_i32 s67, s%d, 896\nv_add_u32 v40, s67, v40\nv_lshl_add_u32 v40, v40, 11, v41\ns_lshl_b32 s67, s%d, 8\nv_add_u32 v40, s67, v40\nv_accvgpr_write_b32 a%d, v40" % (sQ, sTN, PK["D"]))
    s("s_lshl_b32 s68, s%d, 18\ns_lshl_b32 s66, s%d, 9\ns_add_u32 s68, s68, s66\nv_add_u32 v40, s68, v47\nv_accvgpr_write_b32 a%d, v40" % (sTN, sQ, PK["C"]))
    s("v_lshlrev_b32 v40, 4, v50\nv_lshl_add_u32 v40, v51, 3, v40\nv_bfe_u32 v41, v48, 1, 1\ns_lshl_b32 s68, s%d, 6\nv_add3_u32 v40, v40, v41, s68\nv_accvgpr_write_b32 a%d, v40" % (sB, PK["TOK"]))
    s("s_sub_u32 s68, 32, s%d\ns_lshl_b32 s68, s68, 13\ns_lshl_b32 s66, s%d, 8\ns_add_u32 s68, s68, s66\nv_lshl_add_u32 v40, v48, 4, s68\nv_lshl_add_u32 v40, v49, 16, v40\nv_accvgpr_write_b32 a%d, v40" % (sB, sJ, PK["AG"]))
    ld, lc = 112 // NPB, 64 // NPB
    s("s_lshl_b32 s68, s2, 1\ns_and_b32 s66, s%d, 1\ns_add_u32 s68, s68, s66\ns_mul_i32 s68, s68, %d\ns_mul_i32 s66, s2, %d" % (sW, ld * 128, lc * 128))
    ge2 = "s_cmp_ge_u32 s%d, 2" % sW
    s.atom([ge2, "s_cselect_b32 s68, s66, s68", "s_cselect_b32 s66, %d, %d" % (lc - 1, ld - 1)])
    s("v_min_u32 v40, s66, v0\nv_lshl_add_u32 v%d, v40, 7, s68" % vPB)
    s.atom(["s_bitcmp1_b32 s%d, 0" % sW, "s_cselect_b32 s68, s90, s88", "s_cselect_b32 s66, s91, s89"])
    s.atom([ge2, "s_cselect_b32 s44, s68, s84", "s_cselect_b32 s45, s66, s85"])
    s("s_mov_b32 s67, %d\ns_mov_b32 s68, %d" % (3584 * 2048, 512 * ld * 128))
    s.atom([ge2, "s_cselect_b32 s46, %d, s67" % (1024 * 2048), "s_cselect_b32 s%d, %d, s68" % (sPBs, 256 * lc * 128)])
    s("s_and_b32 s45, s45, 0xffff\ns_mov_b32 s47, 0x20000\ns_mov_b32 s%d, 0" % sKPB)
    i_pbs = len(s.u) - 1
    s.at(res[i_c1] + 90)
    s.wait([("c", 2, 1)])
    def two(f):
        for T in range(2): s(f(T))
    for k in range(6): s("v_lshlrev_b32 v%d, 16, v%d" % (40 + k, 16 + k))
    two(lambda T: "v_mul_f32 v%d, %s, v%d" % (44 + T, fx(LOG2E), 44 + T)); two(lambda T: "v_exp_f32 v%d, v%d" % (44 + T, 44 + T))
    s("v_cvt_pk_bf16_f32 v45, v44, v45\nv_lshlrev_b32 v44, 16, v45\nv_and_b32 v45, 0xffff0000, v45")
    two(lambda T: "v_mul_f32 v%d, v%d, v%d\nv_mul_f32 v%d, v%d, v%d" % (24 + T, 44 + T, 40 + T, 26 + T, 44 + T, 42 + T))
    two(lambda T: "v_mul_f32 v%d, %s, v%d" % (24 + T, fx(LOG2E), 24 + T)); two(lambda T: "v_exp_f32 v%d, v%d" % (24 + T, 24 + T))
    two(lambda T: "v_mul_f32 v%d, 0.15915494, v%d\nv_rndne_f32 v%d, v%d\nv_sub_f32 v%d, v%d, v%d" % (26 + T, 26 + T, 52 + T, 26 + T, 26 + T, 26 + T, 52 + T))
    two(lambda T: "v_cos_f32 v%d, v%d\nv_sin_f32 v%d, v%d" % (52 + T, 26 + T, 54 + T, 26 + T))
    two(lambda T: "v_mul_f32 v%d, v%d, v%d\nv_mul_f32 v%d, v%d, v%d\nv_add_f32 v%d, -1.0, v%d" % (cL + T, 24 + T, 52 + T, 54 + T, 24 + T, 54 + T, 52 + T, cL + T))
    two(lambda T: "v_mul_f32 v%d, v%d, v%d\nv_fmac_f32 v%d, v%d, v%d\nv_rcp_f32 v%d, v%d" % (24 + T, 40 + T, 40 + T, 24 + T, 42 + T, 42 + T, 24 + T, 24 + T))
    two(lambda T: "v_mul_f32 v%d, v%d, v%d\nv_fmac_f32 v%d, v%d, v%d" % (26 + T, 52 + T, 40 + T, 26 + T, 54 + T, 42 + T))
    two(lambda T: "v_mul_f32 v%d, v%d, v%d\nv_fma_f32 v%d, -v%d, v%d, v%d" % (56 + T, 54 + T, 40 + T, 56 + T, 52 + T, 42 + T, 56 + T))
    two(lambda T: "v_add_f32 v%d, v%d, v%d\nv_mul_f32 v%d, v%d, v%d\nv_mul_f32 v%d, v%d, v%d\nv_sub_f32 v%d, 0, v%d" % (24 + T, 24 + T, 24 + T, cC + T, 26 + T, 24 + T, cC + 2 + T, 56 + T, 24 + T, cL + 2 + T, 54 + T))
    def sq(d, x):
        two(lambda T: "v_mul_f32 v%d, v%d, v%d\nv_mul_f32 v%d, v%d, v%d\nv_fma_f32 v%d, v%d, v%d, -v%d\nv_add_f32 v%d, v%d, v%d" % (52 + T, x + 2 + T, x + 2 + T, 54 + T, x + T, x + 2 + T, d + T, x + T, x + T, 52 + T, d + 2 + T, 54 + T, 54 + T))
    sq(cL8, cL); sq(cL8, cL8); sq(cL8, cL8); sq(cL16, cL8); sq(cL64, cL16); sq(cL64, cL64); sq(cL512, cL64); sq(cL512, cL512); sq(cL512, cL512)
    aBS = 160
    s.at(max(res[i_p1c] + 2, res[i_e1] + 90))
    s("v_accvgpr_read_b32 v12, a%d\nv_and_b32 v11, 63, v12\nv_lshlrev_b32 v11, 6, v11\nv_lshl_add_u32 v11, v49, 3, v11\nv_add_u32 v11, s71, v11\nv_and_b32 v12, 0xf0, v1\ns_lshl_b32 s66, s%d, 10\ns_add_u32 s66, s66, 0x%x" % (PK["TOK"], sB, SM_ST))
    s.wait([("E", 3), ("dk", 1)])
    for k in range(4): s("v_accvgpr_read_b32 v%d, a%d" % (40 + k, 248 + k))
    for m in range(4):
        s.vm("buffer_load_dwordx2 v[44:45], v12, s[36:39], s66 offen offset:%d %s" % (256 * m, HL), ("St", m))
        for u in range(2): s.lg("ds_read_b64 %s, v11 offset:%d" % (P(52 + 2 * u), 128 * m + 32 * u), ("er", m, u))
        s.delay(cfg.get("e_lat", 90))
        s.wait([("St", m), ("er", m, 1)])
        for u in range(2):
            def unp(d, x):
                for h in range(2): s("v_lshlrev_b32 v%d, 16, v%d\nv_and_b32 v%d, 0xffff0000, v%d" % (d + 2 * h, x + h, d + 2 * h + 1, x + h))
            def rnd():
                for h in range(2): s("v_cvt_pk_bf16_f32 v%d, v%d, v%d" % (48 + h, 60 + 2 * h, 61 + 2 * h))
                unp(60, 48)
            unp(56, 52 + 2 * u)
            for k in range(4): s("v_sub_f32 v%d, v%d, v44" % (60 + k, 56 + k))
            rnd()
            for k in range(4): s("v_mul_f32 v%d, v%d, v45" % (60 + k, 60 + k))
            rnd()
            for h in range(2):
                s("v_lshlrev_b32 v46, 16, v%d\nv_and_b32 v47, 0xffff0000, v%d\nv_mul_f32 v%d, v%d, v46\nv_mul_f32 v%d, v%d, v47" % (40 + 2 * u + h, 40 + 2 * u + h, 60 + 2 * h, 60 + 2 * h, 61 + 2 * h, 61 + 2 * h))
            rnd()
            for k in range(4): s("v_add_f32 v%d, v%d, v%d" % (56 + k, 56 + k, 60 + k))
            for k in range(4): s("v_accvgpr_write_b32 a%d, v%d" % (aBS + 16 * u + 4 * m + k, 56 + k))
    rb = sc.stream(s.units(), 0, 3, vmspace=2)
    if cfg.get("verbose"): print("shadow end", rb[-1])
    assert rb[-1] < res[i_x26] and rb[-1] < bar[13] and rb[i_pbs] < cfg.get("pfb_first", 646)
    vEW, vER, vTG, vAG, vTRW, vTRR, vCP, vH8, vD1, vPAd, vPD, vD0 = 2, 3, 4, 5, 6, 7, 8, 10, 11, 12, 13, 14
    sM, sKD, sKH = 54, 55, 56
    c1 = -2.0 * math.sqrt(2.0 / math.pi) * LOG2E
    CC = 46
    s("v_accvgpr_read_b32 v%d, a%d\nv_lshlrev_b32 v%d, 3, v0\nv_add_u32 v%d, 32768, v%d" % (vD0, PK["D"], vH8, vD1, vD0))
    s("v_and_b32 v43, 31, v0\nv_lshlrev_b32 v43, 7, v43\ns_lshl_b32 s71, s%d, 2\ns_add_u32 s71, s71, 0x%x" % (sJ, SM_F1B))
    s("s_mul_i32 s65, s%d, 176\ns_mul_i32 s66, s%d, 44\ns_add_u32 s65, s65, s66\ns_lshl_b32 s65, s65, 12\ns_add_u32 s65, s65, 0x%x" % (sB, sQ, WS_H))
    s.atom(["s_add_u32 s32, s6, s65", "s_addc_u32 s33, s7, 0"])
    s("s_and_b32 s33, s33, 0xffff\ns_mov_b32 s34, 0x%x\ns_mov_b32 s35, 0x20000" % (44 * 4096))
    srd(s, 12, 84, 85, 3584 * 2048); srd(s, 16, 88, 89, 1024 * 2048); srd(s, 20, 90, 91, 1024 * 2048)
    s("s_lshl_b32 s%d, s%d, 10" % (sM, sW))
    s("v_mov_b32 v46, %s\nv_mov_b32 v47, %s" % (fx(c1), fx(c1 * 0.044715)))
    ROT = cfg.get("rot", 2)
    sTQ = [96, 97, 98, 99, 48, 49, 50, 51]; sTS = [76, 77, 78, 80]; sJ12, sG7 = 44, 45
    s("s_and_b32 s67, s%d, 3\ns_lshl_b32 s67, s67, 1" % sI)
    for k in range(8):
        if k == 0: s("s_mov_b32 s65, s%d" % sTN)
        elif ROT == 2: s.atom(["s_cmp_le_u32 s%d, %d" % (sTN, k - 1), "s_cselect_b32 s65, %d, %d" % (k, k - 1)])
        elif ROT: s("s_add_u32 s65, s67, %d\ns_sub_u32 s66, s65, 7\ns_min_u32 s65, s65, s66\ns_add_u32 s65, s65, 1\ns_xor_b32 s65, s65, s%d" % (k - 1, sTN))
        else: s("s_xor_b32 s65, s%d, %d" % (sTN, k))
        s("s_mul_i32 s65, s65, 7\ns_add_u32 s65, s65, 1\ns_lshr_b32 s65, s65, 1\ns_lshl_b32 s%d, s65, 12" % sTQ[k])
    s("s_lshr_b32 s67, s%d, 1" % sTN)
    sGp = [24, 25, 26, 27]; sPar = 45
    for p in range(4):
        if ROT == 2:
            s("s_mov_b32 s%d, %d" % (sTS[p], (7 * p + 3) * 4096))
            if p == 0: s("s_lshl_b32 s%d, s67, 13" % sGp[0])
            else:
                s.atom(["s_cmp_le_u32 s67, %d" % (p - 1), "s_cselect_b32 s65, %d, %d" % (p, p - 1)]); s("s_lshl_b32 s%d, s65, 13" % sGp[p])
        else: s("s_xor_b32 s65, s67, %d\ns_lshl_b32 s%d, s65, 13\ns_mul_i32 s65, s65, %d\ns_add_u32 s%d, s65, %d" % (p, sGp[p], 7 * 4096, sTS[p], 3 * 4096))
    s("s_lshl_b32 s%d, s%d, 12\ns_and_b32 s69, s%d, 1\ns_lshl_b32 s%d, s69, 12" % (sJ12, sTN, sTN, sPar))
    s("s_mul_i32 s67, s67, %d\ns_lshl_b32 s69, s69, 9\ns_add_u32 s67, s67, s69\ns_add_u32 s67, s67, %d" % (7 * 4096, 3 * 4096))
    s("s_add_u32 s72, s%d, %d\ns_add_u32 s73, s%d, %d\ns_mov_b32 s66, s%d" % (sJ12, 28 * 4096, sJ12, 36 * 4096, sTQ[0]))
    s("s_lshl_b32 s68, s%d, 2\ns_add_u32 s68, s68, s%d\ns_lshl_b32 s68, s68, 7\ns_add_u32 s68, s68, 0x%x" % (sB, sQ, SM_F3))
    s("s_lshl_b32 s81, s%d, 2\ns_add_u32 s81, s81, s68\nv_and_b32 v%d, 7, v0\nv_lshlrev_b32 v%d, 2, v%d" % (sTN, vPAd, vPAd, vPAd))
    s("s_sub_u32 s64, 31, s%d\ns_lshl_b32 s64, s64, 13\ns_lshl_b32 s65, s%d, 8\ns_add_u32 s64, s64, s65" % (sB, sJ))
    s("s_mul_i32 s46, s%d, %d\ns_add_u32 s46, s46, %d" % (sW, EPW, EP_LDS))
    if TRP >= 0 and cfg.get("tr2", 1) and cfg.get("tr2pf", 1):
        s.atom(["s_getpc_b64 s[82:83]", "L_pc2:"])
        s("v_lshrrev_b32 v40, 3, v0\nv_lshlrev_b32 v40, 12, v40\nv_and_b32 v41, 7, v0\nv_lshl_add_u32 v40, v41, 7, v40\nv_add_u32 v40, L_main-L_pc2+%d, v40" % (4096 * cfg.get("tr_n", 14)))
        s("v_min_u32 v40, L_codeend-L_pc2-4, v40\nv_mov_b32 v41, 0\nv_lshl_add_u64 v[40:41], v[40:41], 0, s[82:83]")
        s.vm("global_load_dword a246, v[40:41], off")
        if cfg.get("cpe", 0):
            n_ = 16 * cfg.get("cpe", 0)
            s("s_mul_i32 s65, s%d, %d\ns_add_u32 s65, s65, L_epi-L_pc2+%d\nv_min_u32 v40, %d, v0\nv_lshl_add_u32 v40, v40, 7, s65\nv_mov_b32 v41, 0\nv_lshl_add_u64 v[40:41], v[40:41], 0, s[82:83]" % (sW, n_ * 128, cfg.get("cpe_off", -2048), n_ - 1))
            s.vm("global_load_dword a246, v[40:41], off")
    f1bload = "buffer_load_dword v44, v43, s[36:39], s71 offen %s" % SC
    s.vm(f1bload, "f1b")
    steps = [("g", 0, 2), ("g", 0, 0), ("g", 0, 1)]
    NA0 = cfg.get("na0", 2)
    steps += [("g", k, 0) for k in range(1, NA0 + 1)]
    UA = len(steps)
    steps += [("g", k, 1) for k in range(1, NA0 + 1)]
    for k in range(NA0 + 1, 8): steps += [("g", k, 0), ("g", k, 1)]
    UB = len(steps)
    for k in range(1, 8): steps += [("g", k, 2)] + ([("s", k // 2, 0)] if k % 2 else [])
    assert len(steps) == 28
    cst = [("r", 0), ("i", 0), ("r", 1), ("r", 2), ("r", 3), ("i", 1), ("i", 2), ("i", 3)]
    steps += [("c", 14, 0), ("c", 15, 0), ("c", 14, 1), ("c", 15, 1)]
    for st in range(16, 22): steps += [("c", st, 0), ("c", st, 1)]
    own = {0, 1, 2, 28, 29}; UC = 30
    NST = 22; KC = cfg.get("kc", 8)
    slot = {st: st % 8 for st in range(22)}; prevocc = {st: (st - 8 if st >= 8 else None) for st in range(22)}
    aW2 = 0; aAG = 32
    vC, vCA = 16, 20
    def dma2(s, st, k, early=None, vC=vC):
        if st < 14:
            kind, x, p = steps[2 * st + k // 2]
            if k % 2 == 0:
                if kind == "g" and p: s("s_add_u32 s%d, s%d, %d\ns_lshl_b32 s%d, s%d, 4" % (sKD, sTQ[x], p * 4096, sKD, sKD))
                else: s("s_lshl_b32 s%d, s%d, 4" % (sKD, (sTQ if kind == "g" else sTS)[x]))
            v, sr = (vD0, vD1)[k % 2], 12
        else:
            part, p = cst[st - 14]
            if k == 0: s("s_lshr_b32 s%d, s%d, 6" % (sKD, sGp[p]))
            v, sr = vC + k, (16 if part == "r" else 20)
        s("s_add_u32 m0, s%d, %d" % (sM, slot[st] * 16384 + k * 4096))
        s.op(Op("buffer_load_dwordx4 v%d, s[%d:%d], s%d offen lds" % (v, sr, sr + 3, sKD), "vm", K(("D2", st, k))), early)
    NPRE = 4
    r = sc.stream(s.units(), res[-1] + 2, 3)
    gS = r[-1]
    L2P = cfg.get("l2p", 0)
    if L2P:
        s("s_lshr_b32 s65, s2, 3\ns_lshl_b32 s65, s65, 2\ns_add_u32 s65, s65, s%d" % sW)
        s("s_mul_i32 s69, s65, %d\ns_mul_i32 s70, s%d, %d\ns_add_u32 s69, s69, s70\nv_min_u32 v40, 55, v0\nv_lshl_add_u32 v40, v40, 7, s69\ns_mov_b32 s70, %d" % (56 * 128, sQ, 896 * 2048, 448 * 2048))
        s.vm("buffer_load_dword a246, v40, s[12:15], 0 offen"); s.delay(cfg.get("l2p_sp", 40))
        s.vm("buffer_load_dword a246, v40, s[12:15], s70 offen"); s.delay(cfg.get("l2p_sp", 40))
        if L2P >= 2:
            s("s_lshl_b32 s69, s65, 14\ns_lshl_b32 s70, s%d, 9\ns_add_u32 s69, s69, s70\nv_bfe_u32 v40, v0, 2, 3\nv_lshl_add_u32 v40, v40, 11, s69\nv_and_b32 v41, 3, v0\nv_lshl_add_u32 v40, v41, 7, v40" % sQ)
    s.at(max(bar[13] + 1, cfg.get("pre_at", 0 if KT else 2170)))
    for st in range(NPRE):
        for k in range(4): dma2(s, st, k)
    if L2P >= 2:
        s.vm("buffer_load_dword a246, v40, s[16:19], 0 offen")
        if L2P >= 3: s.delay(20); s.vm("buffer_load_dword a246, v40, s[20:23], 0 offen")
    r = sc.stream(s.units(), gS + 1, 2, vmspace=cfg.get("pre_sp", 5))
    hst = cfg.get("hst", SC)
    aK0 = xalloc[27][1] if KT else 96; aK1 = 112 if aK0 != 112 else 96
    left = []; msh = 0
    if KT:
        msh = cfg.get("msh", 4)
        for m in range(msh):
            gs = [128 + 4 * m + e for e in range(4)] + [160 + 4 * m + e for e in range(4)]
            o = (56, 60)[m % 2]
            for k, g in enumerate(gs): s("v_mul_f32 v%d, v%d, v%d" % (48 + k, g, g))
            for k, g in enumerate(gs): s("v_fma_f32 v%d, v%d, v47, v46" % (48 + k, 48 + k))
            for k, g in enumerate(gs): s("v_mul_f32 v%d, v%d, v%d" % (48 + k, 48 + k, g))
            for k, g in enumerate(gs): s("v_exp_f32 v%d, v%d" % (48 + k, 48 + k))
            for k, g in enumerate(gs): s("v_mul_f32 v%d, v%d, v%d" % (g + 16, g, g + 16))
            for k, g in enumerate(gs): s("v_add_f32 v%d, 1.0, v%d" % (48 + k, 48 + k))
            for k, g in enumerate(gs): s("v_rcp_f32 v%d, v%d" % (48 + k, 48 + k))
            for k, g in enumerate(gs): s("v_mul_f32 v%d, v%d, v%d" % (g + 16, g + 16, 48 + k))
            for k in range(4): s("v_cvt_pk_bf16_f32 v%d, v%d, v%d" % (o + k, gs[2 * k] + 16, gs[2 * k] + 17))
            s.vm("buffer_store_dwordx4 %s, v1, s[32:35], s66 offen offset:%d %s" % (Q(o), 1024 * m, hst), ("hs", 0, m))
            for k in range(4): s("v_accvgpr_write_b32 a%d, v%d" % (aK0 + 4 * m + k, o + k))
        un = s.units()
        r = sc.stream(un, max(gS + 1, 4 * (28 * 18 + 16) + 2), 3, vmspace=2, overflow=True)
        left = un[len(r):]
        if cfg.get("verbose"): print("setup end", gS, "shadow gelu placed", len(r), "left", len(left))
    if cfg.get("abl"):
        for g in range(720, 1850):
            for it in sc.g[g]:
                o = it[2]; tx = o.text or ""
                if ("T" in cfg["abl"] and tx.startswith("ds_read_b64_tr")) or ("B" in cfg["abl"] and tx.startswith("ds_read_b128")) or \
                   ("X" in cfg["abl"] and tx.startswith("buffer_load_dwordx4") and "s[8:11]" in tx) or ("D" in cfg["abl"] and tx.endswith(" lds")) or \
                   ("P" in cfg["abl"] and tx.startswith("buffer_load_dword a246")) or ("V" in cfg["abl"] and tx.startswith("v_") and it[0] == 3): o.text = ""
    if cfg.get("stall"):
        for G in range(1, NG):
            if G % cfg["stall"] == 0 and len(sc.classes(4 * G - 1)) == 3: sc.put(4 * G - 1, [Op("s_nop 0")], 9)
    prog.add(sc.ops())
    vTA = 40
    s.atom(["L_epi:"])
    s("s_barrier")
    stamp(s, "end1")
    s.u += left
    KD = [int(c, 36) for c in str(cfg.get("kd", "g0a8"))]
    CH2 = cfg.get("ch2", 1); nochain = [int(c) for c in str(cfg.get("ch2_skip", "1"))]
    assert all(k % 2 == 0 for k in KD)
    def sg2(st, ul):
        if CH2 and st not in nochain: return [(2 * st + kk, u) for u in ul for kk in range(2)]
        return [(2 * st + kk, u) for kk in range(2) for u in ul]
    groups = []
    for st in range(22): groups += sg2(st, [u for u in (range(8) if st < 14 else (2, 3, 4, 5, 6, 7, 0, 1)) if 2 * st < 44 - KD[u // 2]])
    pend_ = {}
    for d in (1, 2, 3, 0):
        if str(d) in str(cfg.get("tm", "023")):
            for u in (2 * d, 2 * d + 1):
                for st in range(22 - KD[d] // 2, 22): groups += sg2(st, (u,))
        else:
            for st in range(22 - KD[d] // 2, 22): groups += sg2(st, (2 * d, 2 * d + 1))
    for G, (uu, u) in enumerate(groups): pend_[u] = G
    assert len(groups) == 352 and max(KD) <= 16
    NG = len(groups)
    mo, head, tail = order_mfma(groups)
    lastuse = {}; firstuse = {}
    for G, (uu, u) in enumerate(groups): firstuse.setdefault(uu, head(G)); lastuse[uu] = tail(G)
    hreg = {0: ("v", 48), 1: ("a", aK0), 2: ("a", aK1), 28: ("a", 32), 29: ("a", 48)}; hfree = {}
    pool = [(-1, ("a", r)) for r in [96, 112, 128, 144, 192, 208, 224, 160, 176, 64, 80] if r not in (aK0, aK1)] + [(4 * lastuse[u] + 3, hreg[u]) for u in (1, 2, 28, 29)]
    VFREE = cfg.get("vfree", 700)
    pool += [(VFREE, ("v", r)) for r in (64, 80, 96, 112)[:cfg.get("nvs", 4)]]
    for u in range(44):
        if u in own: continue
        pool.sort(key=lambda x: x[0]); e, r = pool.pop(0)
        hreg[u] = r; hfree[u] = e; pool.append((4 * lastuse[u] + 3, r))
    def hload(s, u, m, early=None):
        kind, x, p = steps[u]
        if m == 0:
            if kind == "g": s("s_add_u32 s%d, s%d, %d" % (sKH, sTQ[x], p * 4096))
            elif kind == "s": s("s_mov_b32 s%d, s%d" % (sKH, sTS[x]))
            else:
                part, pp = cst[x - 14]
                s("s_xor_b32 s%d, s%d, %d\ns_add_u32 s%d, s%d, s%d" % (sKH, sPar, ((28 if part == "r" else 36) + p) * 4096, sKH, sKH, sGp[pp]))
        hk, d = hreg[u]; d += 4 * m
        if kind == "s":
            s.op(Op("buffer_load_dwordx2 %s, v%d, s[32:35], s%d offen offset:%d %s" % (R(hk, d, 2), vH8, sKH, 1024 * m, HL), "vm"), early)
            s.op(Op("buffer_load_dwordx2 %s, v%d, s[32:35], s%d offen offset:%d %s" % (R(hk, d + 2, 2), vH8, sKH, 1024 * m + 512, HL), "vm", K(("H", u, m))))
        else: s.op(Op("buffer_load_dwordx4 %s, v1, s[32:35], s%d offen offset:%d %s" % (R(hk, d, 4), sKH, 1024 * m, HL), "vm", K(("H", u, m))), early)
    def gelu_pair(base0, base1, pid, T, OUT, keep=None, hook=None, m0=0):
        for m in range(m0, 4):
            o = OUT[m % len(OUT)]
            items = [(base0 + 4 * m, base0 + 16 + 4 * m, o), (base0 + 4 * m + 2, base0 + 18 + 4 * m, o + 1),
                     (base1 + 4 * m, base1 + 16 + 4 * m, o + 2), (base1 + 4 * m + 2, base1 + 18 + 4 * m, o + 3)]
            gelu_block(s, items, CC, T)
            s.vm("buffer_store_dwordx4 %s, v1, s[32:35], s66 offen offset:%d %s" % (Q(o), 1024 * m, hst), ("hs", pid, m))
            if keep is not None:
                for r in range(4): s("v_accvgpr_write_b32 a%d, v%d" % (keep + 4 * m + r, o + r))
            if hook: hook(m)
        s("s_add_u32 s66, s66, 4096")
    NPRE2 = cfg.get("npre2", 8)
    cpre = [(st, k) for st in range(NPRE, NPRE2) for k in range(4)]
    def cdma(n):
        for _ in range(n):
            if cpre: st, k = cpre.pop(0); dma2(s, st, k)
    fstore = lambda off: "buffer_store_dword v%d, v1, s[36:39], s81 offen offset:%d %s" % (vTG, off, SC)
    fload = lambda off: "buffer_load_dword v%d, v%d, s[36:39], s68 offen offset:%d %s" % (vPD, vPAd, off, SC)
    s("v_mov_b32 v%d, s%d" % (vTG, sTAG))
    npg = cfg.get("cpre_g", 1)
    cdma(cfg.get("cpre_0", 4))
    gelu_pair(128, 160, 0, 48, [56, 60], aK0, lambda m: cdma(npg), m0=msh)
    def hook1(m):
        cdma(npg)
        if m == cfg.get("fa0_m", 1): flag(s, fstore(96), [("hs", 0, 3)])
    gelu_pair(192, 224, 1, 48, [56, 60], aK1, hook1)
    stamp(s, "p01")
    def pkfma(d, s0, s1, s2, T, neg=False):
        s("v_pk_fma_f32 %s, %s, %s, %s op_sel:[%d,0,0] op_sel_hi:[%d,1,1]%s" % (P(d), P(s0), P(s1), P(s2), T, T, " neg_lo:[1,0,0] neg_hi:[1,0,0]" if neg else ""))
    def pkmul(d, s0, s1, T, neg=False):
        s("v_pk_mul_f32 %s, %s, %s op_sel:[%d,0] op_sel_hi:[%d,1]%s" % (P(d), P(s0), P(s1), T, T, " neg_lo:[1,0] neg_hi:[1,0]" if neg else ""))
    BR = lambda T, x: 64 + 16 * T + 2 * x
    BI = lambda T, x: 96 + 16 * T + 2 * x
    for x in range(8):
        for T in range(2):
            pkmul(128 + 2 * T, cC + 2, BI(T, x), T, True); pkmul(BI(T, x), cC, BI(T, x), T, True)
        for T in range(2):
            pkfma(BI(T, x), cC + 2, BR(T, x), BI(T, x), T, True); pkfma(BR(T, x), cC, BR(T, x), 128 + 2 * T, T)
    sr = [BR(0, 0), BR(1, 0)]; si = [BI(0, 0), BI(1, 0)]
    bufs = [[132, 134], [138, 140]]; SI = [136, 142]
    for x in range(1, 8):
        nr = [bufs[T][x % 2] for T in range(2)]
        for T in range(2): pkfma(nr[T], cL, sr[T], BR(T, x), T)
        for T in range(2): pkfma(nr[T], cL + 2, si[T], nr[T], T, True)
        for T in range(2): pkfma(SI[T], cL, si[T], BI(T, x), T)
        for T in range(2): pkfma(SI[T], cL + 2, sr[T], SI[T], T)
        sr = nr; si = list(SI)
        if x % 2: cdma(1)
    EA = 20
    for T in range(2):
        s("v_mov_b32 v%d, v%d\nv_mov_b32 v%d, v%d\nv_mov_b32 v%d, v%d\nv_mov_b32 v%d, v%d" % (EA + T, sr[T], EA + 2 + T, si[T], 144 + T, sr[T] + 1, 146 + T, si[T] + 1))
    horner_pk(s, EA, cL8, 144, 144)
    s("v_add_u32 v%d, s46, v1\nv_and_b32 v%d, 0xf0, v1\nv_add_u32 v%d, s46, v%d" % (vEW, vER, vER, vER))
    s.lg("ds_write_b128 v%d, v[144:147]" % vEW)
    for g in range(4): s.lg("ds_read_b128 %s, v%d offset:%d" % (Q(148 + 4 * g), vER, 256 * g), ("e", g))
    HPN = cfg.get("hpn", 0)
    if HPN: s.vm(fload(96), "f3a0")
    for r in range(32):
        s("v_accvgpr_read_b32 v%d, a%d" % (192 + r, r))
        if r % 16 == 15: cdma(1)
    flag(s, fstore(0), [("hs", 1, 3)])
    for g in range(1, 4):
        s.wait([("e", g)]); horner_pk(s, 148 + 4 * (g - 1), cL16, 148 + 4 * g, 148 + 4 * g)
    for r in range(160, 164): s("v_min_u32 v%d, -2, v%d" % (r, r))
    s.atom(["s_mov_b64 exec, 0xffff", Op("buffer_store_dwordx4 v[160:163], v1, s[36:39], s64 offen %s" % SC, "vm"), "s_mov_b64 exec, -1"])
    stamp(s, "pub")
    poll(s, "P1b", f1bload, 44, "f1b")
    for r in range(32, 64):
        s("v_accvgpr_read_b32 v%d, a%d" % (192 + r, r))
        if r % 16 == 15: cdma(1)
    cdma(16)
    for r in range(32): s("v_accvgpr_read_b32 v%d, a%d" % (128 + r, aBS + r))
    hq = [(u, m) for u in range(3, UA) for m in range(4)][:HPN]; nh_pre = [3 + HPN // 4]
    assert HPN % 4 == 0
    def issue_h(n):
        for _ in range(n):
            if hq: hload(s, *hq.pop(0))
    hpb = cfg.get("hpb", 3)
    def hookA(m): issue_h(hpb)
    def tramp2():
        s("s_mov_b64 exec, 0")
        for w in range(1, 4): s("s_cmp_eq_u32 s%d, %d\ns_cbranch_scc1 L_trB%d" % (sW, w, w))
        s("s_branch L_trB0")
        s.atom(["L_trret2:"])
        s("s_mov_b64 exec, -1")
    if TRP >= 0 and cfg.get("tr2", 1): tramp2()
    if HPN:
        poll(s, "P3a0", fload(96), vPD, "f3a0"); stamp(s, "ok3a"); issue_h(hpb)
    gelu_pair(192, 224, 2, 168, [48, 52, 56, 60], None, hookA)
    for r in range(32): s("v_accvgpr_read_b32 v%d, a%d" % (192 + r, 64 + r))
    issue_h(hpb)
    for mp in range(2):
        o = 240 + 4 * mp; items = []
        for mm in range(2):
            m = 2 * mp + mm
            items += [(192 + 4 * m, 208 + 4 * m, o + 2 * mm), (194 + 4 * m, 210 + 4 * m, o + 2 * mm + 1)]
        gelu_block(s, items, CC, 168)
        if mp == 0:
            s("v_accvgpr_read_b32 v%d, a%d" % (vTA, PK["TA"]))
            for u in range(1, 6): s("v_xor_b32 v%d, %d, v%d" % (vTA + u, 32 * u, vTA))
        issue_h(hpb if mp == 0 else 99)
        if mp == 1 and not HPN: s.vm(fload(96), "f3a0")
        for mm in range(2):
            s.vm("buffer_store_dwordx2 %s, v%d, s[32:35], s67 offen offset:%d %s" % (P(o + 2 * mm), vH8, 1024 * (2 * mp + mm), hst), ("hsS", 2 * mp + mm))
        if mp == 0:
            s.wait([("D2", st, k) for st in range(cfg.get("bar2", 2)) for k in range(4)])
            s("s_barrier")
            pre_reads_at = len(s.u)
    for u in range(6, 8): s("v_xor_b32 v%d, %d, v%d" % (vTA + u, 32 * u, vTA))
    L2 = cfg.get("l2_lead", 4); B2 = cfg.get("bar2", 2)
    def read2(G, part):
        uu, u = groups[G]; f = G % NWB
        if uu < 28:
            st, kk = divmod(uu, 2)
            return Op("ds_read_b64_tr_b16 %s, v%d offset:%d" % (R("a", aW2 + 4 * f + 2 * part, 2), vTA + u, (slot[st] % 4) * 16384 + kk * 8192 + part * 4096), "lg", K(("F2", G, part)))
        _, st, kk = steps[uu]
        return Op("ds_read_b128 %s, v%d offset:%d" % (R("a", aW2 + 4 * f, 4), vCA + 2 * (slot[st] >= 4) + kk, (slot[st] % 4) * 16384 + u * 2048), "lg", K(("F2", G, part)))
    parts = lambda G: [0, 1] if groups[G][0] < 28 else [None]
    mf = []
    for G, m in mo:
        uu, u = groups[G]
        mf.append(Op(mfma16(("v", 128 + 16 * u + 4 * m), ("a", aW2 + 4 * (G % NWB)), (hreg[uu][0], hreg[uu][1] + 4 * m), zero=(uu == 0 and u >= 2))))
    sc = Sch(mf)
    gneed = lambda G: [("F2", H, p) for H in range(G, tail(G) + 1) for p in parts(H)] + [("H", uu, m) for uu in range(44) if firstuse[uu] == G and uu not in own for m in range(4)]
    rgap = {}
    for G in range(NG):
        st, f = divmod(G, 16)
        if st < 14 and st % B2 == B2 - 1:
            if f <= 4: rgap[G] = 4 * (G - L2) - 1
            elif f == 5: rgap[G] = 4 * (G - 1 - L2) + 1
            elif f <= 10: rgap[G] = 4 * (G - 1 - L2) - 1
            elif f == 11: rgap[G] = 4 * (G - 2 - L2) + 1
            else: rgap[G] = 4 * (G - 2 - L2) - 1
        else: rgap[G] = 4 * (G - L2) - 1
        assert rgap[G] >= 4 * tail(G - NWB) + 3
    pr = Seq()
    for G in range(NG):
        if rgap[G] < 0:
            for p in parts(G): pr.op(read2(G, p))
    s.u[pre_reads_at:pre_reads_at] = pr.units()
    s.wait(gneed(0))
    stamp(s, "loop2")
    prog.add(s.done())
    for G in range(1, NG):
        w = Op("", needs=K(gneed(G)))
        w.keep = sum(len(parts(H)) for H in range(max(0, G - 2), min(NG, G + 10)) if rgap[H] == 4 * G - 1) == 2
        if w.keep or head(G) == G: sc.put(4 * G - 1, [w], 0)
    for G in range(NG):
        if rgap[G] >= 0:
            if rgap[G] % 4 != 3: sc.put(rgap[G], [Op("s_waitcnt lgkmcnt(15)")], 0)
            sc.put(rgap[G], [read2(G, p) for p in parts(G)], 1)
    bar = {}
    for st in range(14):
        if st % B2 != B2 - 1: continue
        bar[st] = 4 * (16 * (st + 1) - L2) - 2
        pub = list(range(st + 1, st + 1 + B2)) if st < 13 else [14, 15, 16, 17]
        sc.put(bar[st], [Op("s_barrier", needs=K([("D2", x, k) for x in pub for k in range(4)]), drain=["lg"])], 0)
    for st in (3, 7, 11):
        for i_, g_ in enumerate((1, 2, 4, 5)):
            sc.put(bar[st] - g_, [Op("v_xor_b32 v%d, 0x10000, v%d" % (vTA + 2 * i_ + k, vTA + 2 * i_ + k)) for k in range(2)], 2)
        assert max(rgap[G] for G in range(16 * st, 16 * st + 16)) < bar[st] - 5
    barF = min(rgap[G] for G in range(NG) if groups[G][0] >= 36) - 1
    sc.put(barF, [Op("s_barrier", needs=K([("D2", x, k) for x in range(18, 22) for k in range(4)]))], 0)
    def mark(o, nm): o.u[-1].append(nm)
    def after(o, nm, n): o.u.append([[Op("")], lambda mk: (mk[nm] + n) if nm in mk else None])
    def dly(o, n): o.u.append([[Op("")], lambda mk: mk["_prev"] + n])
    gl = []
    t = Seq()
    t("v_accvgpr_read_b32 v%d, a%d\nv_accvgpr_read_b32 v%d, a%d\nv_accvgpr_read_b32 v%d, a%d" % (vAG, PK["AG"], vTRW, PK["TRW"], vTRR, PK["TRR"]))
    t("s_mov_b32 s40, s36\ns_mov_b32 s41, s37\ns_mov_b32 s42, 0x40000\ns_mov_b32 s43, 0x20000")
    t("v_lshrrev_b32 v8, 4, v0\nv_cmp_eq_u32 s[64:65], 1, v8\nv_cmp_eq_u32 s[66:67], 2, v8\nv_cmp_eq_u32 s[74:75], 3, v8")
    t.at(cfg.get("ag_gap", 32))
    for x in range(7, -1, -1):
        t("s_mov_b32 s57, %d" % (8192 * x))
        g = "buffer_load_dwordx4 %s, v%d, s[40:43], s57 offen %s" % (R("a", aAG + 4 * x, 4), vAG, SC)
        gl.append("s_mov_b32 s57, %d\n%s" % (8192 * x, g))
        t.vm(g, ("ag", x))
        if x: dly(t, cfg.get("ag_sp", 8))
    mark(t, "ag")
    srd(t, 8, 86, 87, 2048 * 4096)
    flag(t, fstore(32), [("hsS", 3)], early=cfg.get("fb_gap", 80)); mark(t, "flagb")
    after(t, "ag", cfg.get("ag_lat", 20)); t.at(4 * lastuse[0] + 4)
    def ag_horner(o, w):
        cur = None
        for x in range(7, -1, -1):
            q = 48 + 4 * (x % 2)
            if w: o.wait([("ag", x)])
            for r in range(4): o("v_accvgpr_read_b32 v%d, a%d" % (q + r, aAG + 4 * x + r))
            if not w: o(("v_max3_u32 v56, v%d, v%d, v%d\nv_max_u32 v56, v56, v%d" % (q, q + 1, q + 2, q + 3)) if x == 7 else ("v_max3_u32 v56, v56, v%d, v%d\nv_max3_u32 v56, v56, v%d, v%d" % (q, q + 1, q + 2, q + 3)))
            if cur is not None: horner_sc(o, cur, cL64, q)
            cur = q
    ag_horner(t, True)
    t("v_cmp_u_f32 s[70:71], v48, v49")
    t.atom(["v_cmp_u_f32 vcc, v50, v51", "s_or_b64 vcc, vcc, s[70:71]", "s_cbranch_scc1 PAG_retry", "PAG_ok:"])
    ool("PAG_retry:")
    if cfg.get("rc"): RC.append("PAG"); ool("v_readlane_b32 s100, v15, %d\ns_nop 3\ns_add_u32 s100, s100, 100\nv_writelane_b32 v15, s100, %d" % (len(RC), len(RC)))
    ool("\n".join(gl) + "\ns_waitcnt vmcnt(0)")
    ag_horner(ool, False)
    ool("v_cmp_eq_u32 vcc, -1, v56\ns_and_b64 vcc, vcc, exec\ns_cbranch_scc0 PAG_ok\ns_cmp_eq_u32 s79, 0\ns_cbranch_scc1 PAG_ok\ns_sub_u32 s79, s79, 1\ns_sleep 1\ns_branch PAG_retry")
    t.lg("ds_write_b128 v%d, v[48:51] offset:1024" % vEW)
    for g, r in ((3, 52), (2, 56), (1, 60)): t.lg("ds_read_b128 %s, v%d offset:%d" % (Q(r), vER, 1024 + 256 * g), ("s", g))
    t.lg("ds_read_b128 %s, v%d offset:1024" % (Q(48), vER), ("s", 0))
    dly(t, 8)
    t.wait([("s", 2)]); horner_sc(t, 52, cL512, 56)
    t.lg("ds_read_b128 %s, v%d" % (Q(52), vER), ("e2", 0))
    t.wait([("s", 1)]); horner_sc(t, 56, cL512, 60)
    t.lg("ds_read_b128 %s, v%d offset:256" % (Q(56), vER), ("e2", 1))
    t.wait([("s", 0)]); horner_sc(t, 60, cL512, 48)
    t.lg("ds_read_b128 %s, v%d offset:512" % (Q(60), vER), ("e2", 2))
    t.wait([("e2", 0)]); horner_sc(t, 48, cL16, 52)
    t.wait([("e2", 1)]); horner_sc(t, 52, cL16, 56)
    t.wait([("e2", 2)]); horner_sc(t, 56, cL16, 60)
    for g, sm in ((52, 64), (56, 66), (60, 74)):
        for r in range(4): t("v_cndmask_b32 v%d, v%d, v%d, s[%d:%d]" % (48 + r, 48 + r, g + r, sm, sm + 1))
    horner_sc(t, 48, cL8, EA)
    t("v_xor_b32 v52, 16, v%d" % vTRR)
    st_r = {(T, h): (48, EA)[h] + T for T in range(2) for h in range(2)}
    st_i = {(T, h): (48, EA)[h] + 2 + T for T in range(2) for h in range(2)}
    TH = [(T, h) for T in range(2) for h in range(2)]
    xs = Seq()
    for x in range(8):
        for (T, h) in TH: t("v_fmac_f32 v%d, v%d, v%d" % (BR(T, x) + h, cL + T, st_r[T, h]))
        for (T, h) in TH: t("v_fmac_f32 v%d, v%d, v%d" % (BI(T, x) + h, cL + T, st_i[T, h]))
        for (T, h) in TH: t("v_fma_f32 v%d, -v%d, v%d, v%d" % (BR(T, x) + h, cL + 2 + T, st_i[T, h], BR(T, x) + h))
        for (T, h) in TH: t("v_fmac_f32 v%d, v%d, v%d" % (BI(T, x) + h, cL + 2 + T, st_r[T, h]))
        for (T, h) in TH: st_r[T, h] = BR(T, x) + h; st_i[T, h] = BI(T, x) + h
        if x % 2 == 1:
            m = x // 2; mo = (m % 2) * 2048
            for part, Fn in enumerate((BR, BI)):
                for T in range(2):
                    o = 56 + 4 * part + 2 * T
                    t("v_cvt_pk_bf16_f32 v%d, v%d, v%d\nv_cvt_pk_bf16_f32 v%d, v%d, v%d" % (o, Fn(T, x - 1), Fn(T, x - 1) + 1, o + 1, Fn(T, x), Fn(T, x) + 1))
                    t.lg("ds_write_b64 v%d, %s offset:%d" % (vTRW, P(o), mo + part * 1024 + 512 * T))
                t.atom(["s_waitcnt lgkmcnt(15)"] + [Op("ds_read_b64_tr_b16 %s, v%d offset:%d" % (R("a", aAG + 16 * part + 4 * m + 2 * half, 2), (vTRR, 52)[half], mo + part * 1024 + 256 * half), "lg", K(("tr", m, part, half))) for half in range(2)])
                mark(t, ("tr", m, part))
                after(xs, ("tr", m, part), 10)
                if (m, part) != (0, 0) and m < 3: after(xs, ("hl", m - 1 + part, 1 - part), cfg.get("hl_sp", 24))
                xs.vm("buffer_store_dwordx4 %s, v1, s[32:35], s%d offen offset:%d %s" % (R("a", aAG + 16 * part + 4 * m, 4), 72 + part, 1024 * m, hst), ("hl", m, part), needs=[("tr", m, part, 1)])
                mark(xs, ("hl", m, part))
    dly(xs, cfg.get("fc_lat", 60))
    flag(xs, fstore(64), [("hl", 3, 1)]); mark(xs, "flagc")
    t("v_accvgpr_read_b32 v48, a%d\nv_accvgpr_read_b32 v%d, a%d" % (PK["C"], vCA, PK["CA"]))
    for k in range(4): t("s_xor_b32 s65, s%d, %d\ns_lshl_b32 s65, s65, 16\nv_add_u32 v%d, s65, v48" % (sQ, k, vC + k))
    t("s_and_b32 s65, s%d, 1\ns_lshl_b32 s65, s65, 6\nv_xor_b32 v%d, s65, v%d" % (sTN, vCA, vCA))
    t("v_xor_b32 v%d, 64, v%d\nv_add_u32 v%d, 0x10000, v%d\nv_xor_b32 v%d, 64, v%d" % (vCA + 1, vCA, vCA + 2, vCA, vCA + 3, vCA + 2))
    vOO = 28
    t("v_accvgpr_read_b32 v24, a%d\nv_accvgpr_read_b32 v25, a%d\nv_lshlrev_b32 v25, 2, v25\nv_lshl_add_u32 v%d, v24, 12, v25" % (PK["TOK"], PK["COL"], vOO))
    mark(t, "cready")
    RB = lambda u, m: 128 + 16 * u + 4 * m
    after(t, "flagc", 1)
    t("s_lshl_b32 s65, s%d, 3\ns_add_u32 s65, s65, s%d\ns_lshl_b32 s66, s65, 18\ns_lshl_b32 s67, s%d, 14\ns_add_u32 s66, s66, s67\ns_add_u32 s66, s66, 0x%x" % (sI, sTN, sW, WS_PART))
    t.atom(["s_add_u32 s40, s6, s66", "s_addc_u32 s41, s7, 0"])
    t("s_and_b32 s41, s41, 0xffff\ns_mov_b32 s42, 0x34000\ns_mov_b32 s43, 0x20000")
    t("s_lshl_b32 s69, s65, 2\ns_add_u32 s69, s69, s%d\ns_lshl_b32 s69, s69, 7\ns_add_u32 s69, s69, 0x%x" % (sW, SM_F4))
    for d in (1, 2, 3):
        t("s_xor_b32 s67, s%d, %d\ns_lshl_b32 s66, s67, 16\ns_add_u32 s%d, s66, %d" % (sQ, d, 72 + d, (d - 1) * 4096))
        t("s_lshl_b32 s67, s67, 4\ns_add_u32 s67, s67, %d\nv_mov_b32 v%d, s67" % (4 * d, 28 + d))
        t("s_lshl_b32 s67, s%d, 16\ns_add_u32 s%d, s67, %d" % (sQ, 69 + d, (d - 1) * 4096))
    t("s_lshl_b32 s67, s%d, 4\nv_and_b32 v32, 3, v0\nv_lshl_add_u32 v32, v32, 2, s67" % sQ)
    t("s_mov_b32 s57, 0\ns_mov_b32 s58, 8192\ns_mov_b32 s59, 16384\ns_mov_b32 s64, 24576")
    t("v_mov_b32 v34, 0x3f80\nv_mov_b32 v35, 0x3f800000")
    mark(t, "setup")
    if cfg.get("tlb", 0):
        after(t, ("H", 43), 2)
        t.vm("buffer_load_dword a246, v29, s[40:43], s73 offen")
        t("v_readfirstlane_b32 s67, v%d" % vOO); dly(t, 3)
        t.vm("buffer_load_dword a246, v29, s[8:11], s67 offen")
    f4store = lambda d: "buffer_store_dword v%d, v%d, s[36:39], s69 offen %s" % (vTG, 28 + d, SC)
    f4load = "buffer_load_dword v33, v32, s[36:39], s69 offen %s" % SC
    gp = lambda u: 4 * pend_[u] + 3 + 3
    RV = lambda d, m: 128 + 32 * d + 8 * m + 4
    rload = lambda d, m: "buffer_load_dwordx4 %s, v1, s[40:43], s%d offen offset:%d %s" % (Q(RV(d, m)), 69 + d, 1024 * m, SC)
    NFI = cfg.get("nfi", 3); NRI = cfg.get("nri", 1)
    fs = Seq(); rs = Seq(); pl_ = Seq(); assert NFI == 3; NB = str(cfg.get("nb", "1"))
    for d in (1, 2, 3):
        for m in range(4):
            t.at(gp(2 * d + m // 2))
            A = 128 + 32 * d + 8 * m; Bq = A + 4
            t("v_cvt_pk_bf16_f32 v%d, v%d, v%d\nv_cvt_pk_bf16_f32 v%d, v%d, v%d\nv_cvt_pk_bf16_f32 v%d, v%d, v%d\nv_cvt_pk_bf16_f32 v%d, v%d, v%d" % (A, A, A + 1, A + 1, A + 2, A + 3, A + 2, Bq, Bq + 1, A + 3, Bq + 2, Bq + 3))
            mark(t, ("cv", d, m))
            after(xs, ("cv", d, m), 1)
            xs.vm("buffer_store_dwordx4 %s, v1, s[40:43], s%d offen offset:%d %s" % (Q(A), 72 + d, 1024 * m, SC), ("ps", d, m)); mark(xs, ("ps", d, m))
        if d <= NFI:
            after(fs, ("ps", d, 3), cfg.get("f4_lat", 44)); flag(fs, f4store(d), [("ps", d, 3)]); mark(fs, ("f4", d))
        f4l = f4load.replace("v33,", "v%d," % (35 + d))
        after(pl_, ("f4", d), cfg.get("p4_lat", 30)); pl_.vm(f4l, ("f4l", d)); mark(pl_, ("f4l", d))
        after(rs, ("f4l", d), cfg.get("p4_rt", 36))
        if d == 3 and NB != "0" and "3" not in NB: rs.at(10 ** 6)
        if str(d) in NB:
            rs.wait([("f4l", d)])
            rs("v_cmp_ne_u32 s[82:83], s%d, v%d" % (sTAG, 35 + d)); dly(rs, 1)
            rs.atom(["s_and_b32 s%d, s82, %d" % (27 + d, 1 << d), "s_cselect_b32 s47, 0x40000000, s%d" % (69 + d)])
            ool("FX%d:\n%s\ns_waitcnt vmcnt(0)\nv_cmp_ne_u32 vcc, s%d, v%d\ns_and_b64 vcc, vcc, %d\ns_cbranch_scc0 FX%d_go\ns_cmp_eq_u32 s79, 0\ns_cbranch_scc1 FX%d_go\ns_sub_u32 s79, s79, 1\ns_sleep 1\ns_branch FX%d" % (d, f4l, sTAG, 35 + d, 1 << d, d, d, d))
            ool("FX%d_go:\n%s\ns_waitcnt vmcnt(0)\ns_branch FX%d_ret" % (d, "\n".join(rload(d, m) for m in range(4)), d))
        else: poll(rs, "P4%d" % d, f4l, 35 + d, ("f4l", d), mask=str(1 << d))
        for m in range(4):
            rs.vm(rload(d, m).replace("s%d offen" % (69 + d), "s47 offen") if str(d) in NB else rload(d, m), ("pl", d, m)); mark(rs, ("pl", d, m)); dly(rs, cfg.get("r_sp", 8))
    hs = Seq(); hdl = {}
    if not HPN: poll(hs, "P3a0", fload(96), vPD, "f3a0", early=cfg.get("pa_gap", 12))
    for u in range(nh_pre[0], 44):
        if u in own: continue
        for (U, nm, off, fl, lat) in ((UA, "P3a", 0, None, 0), (UB, "P3b", 32, "flagb", cfg.get("pb_lat", 80)), (UC, "P3c", 64, "flagc", cfg.get("pc_lat", 80))):
            if u == (max(U - 2, nh_pre[0]) if U != UC else U):
                if fl: after(hs, fl, lat)
                hs.vm(fload(off), nm); mark(hs, nm + "l")
            if u == U:
                after(hs, nm + "l", cfg.get("poll_rt", 44)); poll(hs, nm, fload(off), vPD, nm); mark(hs, nm)
        n0 = len(hs.u)
        for m in range(4): hload(hs, u, m, max(hfree[u], 4 * firstuse[u] - cfg.get("l2_la", 400)))
        for i in range(n0, len(hs.u)): hdl[i] = 4 * firstuse[u] - 1
        mark(hs, ("H", u))
    ds = Seq(); ddl = {}
    DL = lambda st: bar[st // B2 * B2 - 1] if st < 14 else (bar[13] if st < 18 else barF)
    for st in range(NPRE2, 22):
        n0 = len(ds.u)
        if st == "E":
            after(ds, "cready", 1); after(ds, ("hl", 3, 1), 1)
            for n in range(4):
                ds("s_mov_b32 s%d, %d\ns_add_u32 m0, s46, %d" % (sKD, 32768 * n, 2048 + 1024 * n))
                ds.vm("buffer_load_dwordx4 v26, s[24:27], s%d offen lds" % sKD)
            ds("s_add_u32 m0, s46, 6144"); ds.vm("buffer_load_dwordx4 v1, s[36:39], s59 offen lds")
            ds("s_add_u32 m0, s46, 7168"); ds.vm("buffer_load_dwordx4 v1, s[28:31], s58 offen lds", "Elast"); mark(ds, "edma")
            dl = 900
        else:
            if st == 14: after(ds, "cready", 1)
            for k in range(4): dma2(ds, st, k, bar[prevocc[st] // B2 * B2 + B2 - 1] + 1 if st >= 8 else 0)
            dl = DL(st)
            mark(ds, ("D", st))
        for i in range(n0, len(ds.u)): ddl[i] = dl
    RS = Stream("r", rs.units(), 2, deadline=lambda i: cfg.get("r_prio", -3)); PS = Stream("pl", pl_.units(), 2, deadline=lambda i: -2); RS.overflow = PS.overflow = True
    mk = multi(sc, [Stream("h", hs.units(), 2, deadline=lambda i: hdl.get(i, 0)), Stream("d", ds.units(), 2, deadline=lambda i: ddl.get(i, 0)),
                    Stream("x", xs.units(), 2), Stream("t", t.units(), 3, start=1), RS, PS, Stream("f", fs.units(), 2, deadline=lambda i: -2)],
               cl=cfg.get("cl", 70), cs=cfg.get("cs", 210), B0=cfg.get("b0", 150), busy0=cfg.get("busy0", 300))
    sl = sorted([(4 * firstuse[u] - 1 - mk[("H", u)], "h", u) for u in range(nh_pre[0], 44) if u not in own] + [(DL(st) - mk[("D", st)], "d", st) for st in range(NPRE2, 22)])
    if cfg.get("verbose"):
        print("loop2 slacks", sl[:6], {k: v for k, v in mk.items() if isinstance(k, str)}, "hl", [mk[("hl", m, p)] for m in range(4) for p in range(2)], "ps", [mk[("ps", d, m)] for d in (1, 2, 3) for m in range(4)], "barF", barF, "f4", [mk.get(("f4", d)) for d in (1, 2, 3)], "f4l", [mk.get(("f4l", d)) for d in (1, 2, 3)], "pl", [mk.get(("pl", d, m)) for d in (1, 2, 3) for m in range(4)])
    assert sl[0][0] > cfg.get("minslack", 30), sl[:4]
    assert mk["cready"] < rgap[firstuse[28]] and mk[("hl", 3, 1)] < 4 * firstuse[28] - 1 and mk["setup"] < gp(2) and mk[("tr", 3, 1)] < VFREE
    for nm in names:
        if TS and nm[0] == "g" and nm[1:].isdigit():
            g_ = 4 * (16 * (int(nm[1:]) + 1) - L2) - 2
            sc.put(g_ - 1, [Op("s_memrealtime s[100:101]")], 5)
            sc.put(g_, [Op("s_waitcnt lgkmcnt(0)\nv_writelane_b32 v%d, s100, %d" % (vTS, names.index(nm)))], 5)
    if cfg.get("drop"):
        for g in range(cfg.get("drop_lo", 120), cfg.get("drop_hi", 600)):
            for it in sc.g[g]:
                o = it[2]
                if it[0] in (2, 3) and o.text and "\n" not in o.text and not o.text.endswith(":"):
                    c = opclass(o.text)
                    if it[0] == 2 and not (c == "X" and "x4" in o.text): continue
                    if c in cfg["drop"] and "cmp" not in o.text and not any(("v%d," % r) in o.text.split(None, 2)[1] + "," for r in range(16, 32)):
                        o.text = "s_nop 0" if cfg.get("dropnop") else ""
    prog.add(sc.ops())
    stamp(s, "end2")
    def addp(d, m):
        s.wait([("pl", d, m)])
        for k in range(8):
            r = 128 + 8 * m + k
            s("v_dot2_f32_bf16 v%d, v%d, v%d, v%d" % (r, RV(d, m) + k // 2, 34 + k % 2, r))
    for d in (1, 2):
        if str(d) in NB:
            assert ("pl", d, 3) in mk
            s("s_cmp_lg_u32 s%d, 0\ns_cbranch_scc1 FX%d" % (27 + d, d)); s.atom(["FX%d_ret:" % d])
    for un in PS.units[PS.pos:]: s.u.append([un[0], None])
    added = set()
    for un in RS.units[RS.pos:]:
        if un[0][0].needs and not un[0][0].text and NB == "0":
            for d in (1, 2):
                for m in range(4):
                    if ("pl", d, m) in mk and (d, m) not in added: addp(d, m); added.add((d, m))
        s.u.append([un[0], None])
    stamp(s, "poll4")
    for d in (1, 2):
        for m in range(4):
            if (d, m) not in added: addp(d, m)
    sM4 = [57, 58, 59, 64]
    for m in range(4):
        addp(3, m)
        stamp(s, "r%d" % m)
        s.vm("buffer_store_dwordx4 %s, v%d, s[8:11], s%d offen offset:%d %s" % (Q(128 + 8 * m), vOO, sM4[2 * (m % 2)], 64 * (m // 2), cfg.get("ost", SC)))
        s("s_nop 1")
        s.vm("buffer_store_dwordx4 %s, v%d, s[8:11], s%d offen offset:%d %s" % (Q(132 + 8 * m), vOO, sM4[2 * (m % 2) + 1], 64 * (m // 2), cfg.get("ost", SC)))
    prog.add(s.done())
    prog.emit(a)
    a("s_cmp_eq_u32 s%d, 31\ns_cbranch_scc0 L_noep\ns_cmp_eq_u32 s%d, 0\ns_cbranch_scc0 L_noep" % (sB, sJ))
    a("v_mov_b32 v40, 0x%x\ns_mov_b64 exec, 1\nbuffer_store_dword v%d, v40, s[36:39], 0 offen %s\ns_mov_b64 exec, -1" % (SM_EP, vTG, SC))
    a("L_noep:")
    if TS:
        a("s_waitcnt vmcnt(0)\ns_memrealtime s[100:101]\ns_waitcnt lgkmcnt(0)\nv_writelane_b32 v%d, s100, %d" % (vTS, len(names) - 1))
        a("s_cmp_lg_u32 s%d, %d\ns_cbranch_scc1 L_end" % (sW, cfg.get("tsw", 0)))
        if cfg.get("leak"):
            A, B = cfg["leak"].split(":")
            a("s_cmp_lg_u32 s2, %d\ns_cbranch_scc1 L_end" % cfg.get("leakwg", 100))
            a("v_readlane_b32 s64, v%d, %d\nv_readlane_b32 s65, v%d, %d\ns_nop 4\ns_sub_u32 s64, s65, s64\ns_mul_i32 s64, s64, %d\ns_min_u32 s64, s64, 200000" % (vTS, names.index(A), vTS, names.index(B), cfg.get("leakk", 8)))
            a("L_leak:\ns_memrealtime s[66:67]\ns_waitcnt lgkmcnt(0)\ns_sub_u32 s66, s66, s100\ns_cmp_lt_u32 s66, s64\ns_cbranch_scc1 L_leak")
        ws_srd(a, 12, WS_TS, 16384)
        a("s_lshl_b32 s75, s2, 6\nv_lshlrev_b32 v1, 2, v0\ns_mov_b64 exec, 0xffff\nbuffer_store_dword v%d, v1, s[12:15], s75 offen" % vTS)
    if cfg.get("rc"): STAMPS[1:1 + len(RC)] = RC
    a("L_end:")
    a("s_endpgm")
    if ".p2align 12" in a.lines and cfg.get("oolf", 1):
        i = a.lines.index(".p2align 12"); a.lines[i:i] = ool.lines
    else: a.lines += ool.lines
    a("L_codeend:")
    return name, a

DOC = """;
; instruction placed by hand-written rules into the issue gaps between the 16x16x32 bf16 MFMAs).
;   phase 1  [gate | up | B_re | B_im] projection, tile 256 x 288, weights by LDS-DMA, xn straight into registers
;   phase 2  [w_down ; C_re ; -C_im] projection, tile 256 x 128, K split over 4 workgroups, partial sums exchanged
"""

def inst_sizes(lines):
    import subprocess, tempfile, os, re
    d = tempfile.mkdtemp()
    und = sorted(set(re.findall(r"L_trB?\d+\b", "\n".join(lines))))
    open(d + "/a.s", "w").write('.amdgcn_target "amdgcn-amd-amdhsa--gfx950"\n' + "\n".join(l for l in lines if not l.startswith(".p2align 12")) + "\n" + "".join(u + ":\n" for u in und))
    subprocess.check_call(["clang", "-x", "assembler", "-target", "amdgcn-amd-amdhsa", "-mcpu=gfx950", "-c", d + "/a.s", "-o", d + "/a.o"])
    o = subprocess.check_output(["llvm-objdump", "-d", "--mcpu=gfx950", d + "/a.o"], text=True)
    sz = [4 * len(m.group(1).split()) for m in re.finditer(r"// [0-9A-F]+: ([0-9A-F ]+)", o)]
    n = sum(1 for l in lines if parse(l))
    assert n == len(sz), (n, len(sz))
    return sz

def add_stubs(lines, cfg):
    NL = 1; step = cfg.get("tr_step", 128)
    sz = iter(inst_sizes(lines)); size = [next(sz) if parse(l) else 0 for l in lines]
    i0 = lines.index("L_main:"); iend = lines.index("L_end:")
    out = lines[:i0 + 1]; off = 0; targets = [4096 * p + step * k for p in range(0, 40) for k in range(NL)]
    n = 0; pos = []
    def penalty(i):
        if not lines[i - 1].startswith("v_mfma"): return 0 if not any(l.startswith("v_mfma") for l in lines[max(0, i - 6):i + 6]) else 1
        j = i; c = ["S"]
        while not lines[j].startswith("v_mfma") and j - i < 8:
            try: c.append(opclass(lines[j]))
            except AssertionError: return 0
            j += 1
        t = gap_time(c)
        return 0 if (t is not None and t <= 16) else 1
    for i in range(i0 + 1, len(lines)):
        if i < iend and size[i] and off >= targets[n] and (penalty(i) == 0 or off + size[i] > targets[n] + 56):
            out.append("L_tr%d:" % n); out.append(("STUB", n)); off += 4; n += 1
        out.append(lines[i]); off += size[i]
    n1 = min(n, cfg.get("tr_n", 14))
    res = []
    for l in out:
        if isinstance(l, tuple):
            k = l[1]; nx = k + 4
            if k < n1: res.append("s_cbranch_execz %s" % ("L_tr%d" % nx if nx < n1 else "L_trret"))
            elif cfg.get("tr2", 1): res.append("s_cbranch_execz %s" % ("L_tr%d" % nx if nx < n else "L_trret2"))
            else: res.append("s_nop 0")
        elif "L_trB" in l:
            k = n1 + int(l[-1]); res.append(l.replace("L_trB" + l[-1], "L_tr%d" % k if k < n else "L_trret2"))
        else: res.append(l)
    if cfg.get("verbose"): print("pages", n)
    return res

def build(cfg):
    name, a = gen(cfg)
    hdr = open("cdna_kernels/%s.s.ref" % NAME).read().split("; Override launch")[0]
    out = hdr + "; @launch grid=(256,1,1) block=(256,1,1) lds=163840\n"
    out += DOC
    out += '.amdgcn_target "amdgcn-amd-amdhsa--gfx950"\n'
    lines = pad_hazards([l for l in a.lines if l], cfg.get("verbose", 0) > 1)
    if cfg.get("tramp", 1): lines = add_stubs(lines, cfg)
    if cfg.get("verbose"): print(gap_report(lines))
    if cfg.get("lsc"): lines = [l.replace("sc0 sc1", cfg["lsc"]) if l.startswith("buffer_load") else l for l in lines]
    if cfg.get("jit"):
        import random
        rnd = random.Random(cfg["jit"]); outl = []; n = 0; nm = 0
        at = set(rnd.sample(range(3712), 10)) | {0, 150, 2303, 2304}
        for l in lines:
            hit = False
            if l.startswith("v_mfma"):
                hit = nm in at; nm += 1
            if l.startswith(("P1_chk:", "P1b_chk:", "L_trret2:", "L_epi:")) or "agfill" in l: hit = True
            if hit:
                n += 1
                outl += ["s_cselect_b32 s101, 1, 0", "s_mul_i32 s100, s2, %d" % rnd.randrange(1, 1 << 12, 2), "s_add_u32 s100, s100, s62" if rnd.random() < 0.5 else "s_nop 0", "s_bfe_u32 s100, s100, 0x%x" % (0x40000 + rnd.randrange(0, 4)),
                         "s_cmp_lg_u32 s100, %d" % rnd.randrange(16), "s_cbranch_scc1 L_jit%d" % n] + ["s_sleep 127"] * rnd.randrange(1, 3) + ["L_jit%d:" % n, "s_cmp_eq_u32 s101, 1"]
            outl.append(l)
        lines = outl
    la = cfg.get("laux"); da = cfg.get("daux")
    if la: lines = [l + " " + la if (l.startswith("buffer_load_dwordx4 a[") and "sc1" not in l) else l for l in lines]
    if da: lines = [l.replace(" lds", " %s lds" % da) if l.endswith(" lds") else l for l in lines]
    out += "\n".join(lines) + "\n"
    if cfg.get("cyc"): out = out.replace("s_memrealtime", "s_memtime")
    b = Asm(); kernel_desc(b, name, 512, accum=256); out += b.text()
    return out

if __name__ == "__main__":
    cfg = {}
    for kv in sys.argv[2:]:
        k, v = kv.split("=")
        try: v = int(v)
        except ValueError:
            try: v = float(v)
            except ValueError: v = v.replace("+", " ")
        cfg[k] = v
    open(sys.argv[1], "w").write(build(cfg))
```

```python
import sys, math, struct
from asmlib import *

NAME = "parallel_sum__ssm_conv_s5__glu_gated_geglu__prompt"
KX, KLRE, KLIM, KBRE, KBIM, KCRE, KCIM, KLDT, KDSK, KBX, KWG, KWU, KWD, KOUT, KDBG, KWS = [8 * i for i in range(16)]
WS_XN = 0
WS_H = 0x400000
H_BLK = 176 * 4096
WS_SM = 0x1A00000
SM_AG = 0; SM_ST = 0x40000; SM_EP = 0x48000; SM_F1 = 0x50000; SM_F1B = 0x60000; SM_F3 = 0x70000; SM_F4 = 0xB0000; SM_SIZE = 0xF0000
WS_TS = 0x1B00000
WS_PART = 0x2000000
NSTAMPS = [16]
SPLIT_LAYOUT = True
XN_DIRECT = 0
STAMPS = []

def f2u(x): return struct.unpack("<I", struct.pack("<f", x))[0]
def fx(x): return "0x%08x" % f2u(x)
P = lambda r: "v[%d:%d]" % (r, r + 1)
Q = lambda r: "v[%d:%d]" % (r, r + 3)
LOG2E = 1.4426950408889634
K = lambda v: (lambda it: v)

def ws_srd(a, r, off, size):
    a("s_add_u32 s%d, s6, 0x%x\ns_addc_u32 s%d, s7, 0\ns_and_b32 s%d, s%d, 0xffff\ns_mov_b32 s%d, 0x%x\ns_mov_b32 s%d, 0x20000" % (r, off, r + 1, r + 1, r + 1, r + 2, size, r + 3))

def mfma16(d, A, B, zero=False):
    return "v_mfma_f32_16x16x32_bf16 %s, %s, %s, %s" % (R(d[0], d[1], 4), R(A[0], A[1], 4), R(B[0], B[1], 4), "0" if zero else R(d[0], d[1], 4))

def cmul_pk(a, dr, di, ar, ai, br, bi, t):
    a("v_pk_mul_f32 %s, %s, %s" % (P(t), P(ai), P(bi)))
    a("v_pk_fma_f32 %s, %s, %s, %s neg_lo:[0,0,1] neg_hi:[0,0,1]" % (P(t), P(ar), P(br), P(t)))
    a("v_pk_mul_f32 %s, %s, %s" % (P(t + 2), P(ar), P(bi)))
    a("v_pk_fma_f32 %s, %s, %s, %s" % (P(di), P(ai), P(br), P(t + 2)))
    a("v_mov_b32 v%d, v%d\nv_mov_b32 v%d, v%d" % (dr, t, dr + 1, t + 1))

def horner_pk(a, s, L, e, d):
    a("v_pk_fma_f32 %s, %s, %s, %s" % (P(d), P(L), P(s), P(e)))
    a("v_pk_fma_f32 %s, %s, %s, %s" % (P(d + 2), P(L), P(s + 2), P(e + 2)))
    a("v_pk_fma_f32 %s, %s, %s, %s neg_lo:[1,0,0] neg_hi:[1,0,0]" % (P(d), P(L + 2), P(s + 2), P(d)))
    a("v_pk_fma_f32 %s, %s, %s, %s" % (P(d + 2), P(L + 2), P(s), P(d + 2)))

def horner_sc(a, s, L, e):
    for T in range(2):
        a("v_fmac_f32 v%d, v%d, v%d" % (e + T, L + T, s + T)); a("v_fmac_f32 v%d, v%d, v%d" % (e + 2 + T, L + T, s + 2 + T))
    for T in range(2):
        a("v_fma_f32 v%d, -v%d, v%d, v%d" % (e + T, L + 2 + T, s + 2 + T, e + T)); a("v_fmac_f32 v%d, v%d, v%d" % (e + 2 + T, L + 2 + T, s + T))

def gelu_block(a, items, CC, T):
    for k, (g, u, o) in enumerate(items): a("v_pk_mul_f32 %s, %s, %s" % (P(T + 2 * k), P(g), P(g)))
    for k, (g, u, o) in enumerate(items): a("v_pk_fma_f32 %s, %s, %s, %s op_sel:[0,1,0] op_sel_hi:[1,1,0]" % (P(T + 2 * k), P(T + 2 * k), P(CC), P(CC)))
    for k, (g, u, o) in enumerate(items): a("v_pk_mul_f32 %s, %s, %s" % (P(T + 2 * k), P(T + 2 * k), P(g)))
    for k, (g, u, o) in enumerate(items):
        a("v_exp_f32 v%d, v%d" % (T + 2 * k, T + 2 * k)); a("v_exp_f32 v%d, v%d" % (T + 2 * k + 1, T + 2 * k + 1))
        a("v_pk_mul_f32 %s, %s, %s" % (P(u), P(g), P(u)))
    for k, (g, u, o) in enumerate(items): a("v_pk_add_f32 %s, %s, 1.0 op_sel_hi:[1,0]" % (P(T + 2 * k), P(T + 2 * k)))
    for k, (g, u, o) in enumerate(items):
        a("v_rcp_f32 v%d, v%d" % (T + 2 * k, T + 2 * k)); a("v_rcp_f32 v%d, v%d" % (T + 2 * k + 1, T + 2 * k + 1))
    for k, (g, u, o) in enumerate(items): a("v_pk_mul_f32 %s, %s, %s" % (P(u), P(u), P(T + 2 * k)))
    for k, (g, u, o) in enumerate(items): a("v_cvt_pk_bf16_f32 v%d, v%d, v%d" % (o, u, u + 1))

class Seq:
    def __init__(self): self.u = []
    def __call__(self, s):
        for l in s.split("\n"):
            l = l.strip()
            assert not l.startswith(("buffer_", "global_", "ds_")), ("uncounted memory op", l)
            self.u.append([[Op(l)], None])
    def atom(self, ops, early=None): self.u.append([[o if isinstance(o, Op) else Op(o) for o in ops], early])
    def vm(self, text, tag=None, needs=None, early=None):
        if needs: self.wait(needs, early=early); early = None
        self.u.append([[Op(text, "vm", K(tag) if tag is not None else None)], early])
    def lg(self, text, tag=None, needs=None):
        if needs: self.wait(needs)
        self.u.append([[Op(text, "lg", K(tag) if tag is not None else None)], None])
    def wait(self, needs, drain=None, early=None): self.u.append([[Op("", needs=K(needs) if needs else None, drain=drain)], early])
    def op(self, o, early=None): self.u.append([[o], early])
    def delay(self, n):
        self._d = n; i = len(self.u) - 1
        self.u.append([[Op("")], lambda res, n=n: res[-1] + n])
    def at(self, g): self.u.append([[Op("")], g])
    def done(self):
        o = [x for un, _ in self.u for x in un]; self.u = []; return o
    def units(self):
        u = self.u; self.u = []; return u

def order_mfma(groups):
    ch = [groups[2 * p][1] == groups[2 * p + 1][1] for p in range(len(groups) // 2)]
    out = []; up = True
    for p, c in enumerate(ch):
        if c:
            for m in (range(4) if up else range(3, -1, -1)): out += [(2 * p, m), (2 * p + 1, m)]
            up = not up
        else:
            for G in (2 * p, 2 * p + 1):
                out += [(G, m) for m in (range(4) if up else range(3, -1, -1))]; up = not up
    return out, (lambda G: G & ~1 if ch[G // 2] else G), (lambda G: G | 1 if (G >= 0 and ch[G // 2]) else G)

W_ST = 28672; U_OFF = 14336
B_BASE = 131072; B_ST = 8192
LN_LDS = 65536 + W_ST

def gen(cfg):
    name = NAME + "_kernel"
    a = Asm(); kernel_header(a, name)
    ool = Asm()
    TS = cfg.get("ts")
    names = ["start"] + cfg.get("stamps", "flag1 poll1 loop1 end1 p01 pub loop2 end2 poll4").split() + ["end"]
    STAMPS[:] = names; NSTAMPS[0] = len(names)
    vTS = 15; RC = []
    def stamp(s, nm):
        if TS and nm in names: s.atom(["s_memrealtime s[100:101]", "s_waitcnt lgkmcnt(0)", "v_writelane_b32 v%d, s100, %d" % (vTS, names.index(nm))])
    SC = cfg.get("sc", "sc0 sc1")
    HL = cfg.get("hl", "sc1")
    F4M = cfg.get("f4m", 1); F3M = cfg.get("f3m", 0); FBW = cfg.get("fbw", 0)
    FS = cfg.get("f1s", 128)
    prog = Prog(); s = Seq()
    sJ, sI, sW, sB, sQ, sTN, sTAG = 60, 61, 62, 63, 52, 53, 3
    sMW, sM3, sMB, sKW, sKB, sKX, sCNT = 54, 55, 56, 57, 58, 59, 81
    sPAs, sKPA, sKPB, sPBs = 76, 77, 78, 80
    def poll(s, nm, loadtext, dst, tagneed, mask=None, early=None):
        s.wait([tagneed], early=early)
        s.atom(["%s_chk:" % nm, "v_cmp_ne_u32 vcc, s%d, v%d" % (sTAG, dst), "s_and_b64 vcc, vcc, %s" % (mask or "exec"), "s_cbranch_scc1 %s_retry" % nm, "%s_ok:" % nm])
        ool("%s_retry:" % nm)
        if cfg.get("rc"): RC.append(nm); ool("v_readlane_b32 s100, v15, %d\ns_nop 3\ns_add_u32 s100, s100, 100\nv_writelane_b32 v15, s100, %d" % (len(RC), len(RC)))
        ool("%s_r2:\ns_cmp_eq_u32 s79, 0\ns_cbranch_scc1 %s_ok\ns_sub_u32 s79, s79, 1\ns_sleep %d\n%s\ns_waitcnt vmcnt(0)\ns_branch %s_chk" % (nm, nm, cfg.get("psl", 1), loadtext, nm))
    def flag(s, text, needs, early=None):
        s.wait(needs, early=early)
        s.atom(["s_mov_b64 exec, %d" % (15 if "x4" in text else 1), Op(text, "vm"), "s_mov_b64 exec, -1"])

    s("s_cmp_ge_u32 s2, 256\ns_cbranch_scc1 L_end")
    if cfg.get("gx"): s("s_xor_b32 s2, s2, %d" % cfg["gx"])
    if TS: s("s_memrealtime s[100:101]")
    CP = cfg.get("cpf", 1)
    s("s_load_dwordx2 s[4:5], s[0:1], %d" % KX)
    s("s_load_dwordx2 s[6:7], s[0:1], %d" % KWS)
    s("s_load_dwordx4 s[12:15], s[0:1], %d" % KWG)
    s("s_load_dwordx4 s[24:27], s[0:1], %d" % KBRE)
    s("s_load_dwordx4 s[96:99], s[0:1], %d" % KLRE)
    s("s_load_dwordx4 s[92:95], s[0:1], %d" % KLDT)
    s("s_load_dwordx4 s[84:87], s[0:1], %d" % KWD)
    s("s_load_dwordx4 s[88:91], s[0:1], %d" % KCRE)
    if CP:
        s("s_getpc_b64 s[82:83]")
        s.atom(["L_pc:"])
        s("s_lshr_b32 s64, s2, 3\ns_mul_i32 s64, s64, 28\nv_add_u32 v3, s64, v0\nv_cmp_gt_u32 vcc, 64, v0\nv_cndmask_b32 v2, v3, v0, vcc\nv_lshlrev_b32 v2, 7, v2")
        s("v_min_u32 v2, L_codeend-L_pc-4, v2\nv_mov_b32 v3, 0\nv_lshl_add_u64 v[2:3], v[2:3], 0, s[82:83]")
        s("v_cmp_gt_u32 vcc, 92, v0\ns_and_saveexec_b64 s[66:67], vcc\ns_cbranch_execz L_nocp")
        s.atom([Op("global_load_dword a246, v[2:3], off")])
        s.atom(["L_nocp:", "s_mov_b64 exec, -1"])
    s("v_lshrrev_b32 v1, 6, v0\nv_and_b32 v0, 63, v0")
    s("v_readfirstlane_b32 s%d, v1" % sW)
    s("v_lshlrev_b32 v1, 4, v0")
    s("s_mov_b32 s79, 0x40000")
    s("s_bfe_u32 s%d, s2, 0x20001" % sQ)
    s("s_and_b32 s64, s2, 1\ns_lshl_b32 s64, s64, 2\ns_lshr_b32 s%d, s2, 6\ns_add_u32 s%d, s%d, s64" % (sI, sI, sI))
    s("s_bfe_u32 s%d, s2, 0x30003" % sTN)
    s("s_lshl_b32 s%d, s%d, 3\ns_add_u32 s%d, s%d, s%d" % (sJ, sQ, sJ, sJ, sTN))
    s("s_lshl_b32 s%d, s%d, 2\ns_add_u32 s%d, s%d, s%d" % (sB, sI, sB, sB, sW))
    s("s_and_b32 s64, s2, 1\ns_lshl_b32 s64, s64, 1\ns_lshr_b32 s65, s%d, 1\ns_add_u32 s64, s64, s65\ns_lshl_b32 s64, s64, 4" % sW)
    s("s_lshl_b32 s65, s%d, 1\ns_add_u32 s64, s64, s65" % sQ)
    s("s_lshr_b32 s66, s2, 3\ns_lshl_b32 s65, s66, 6\ns_add_u32 s64, s64, s65")
    s("s_lshl_b32 s67, s64, 11\ns_and_b32 s68, s%d, 1\ns_lshl_b32 s65, s68, 8\ns_add_u32 s67, s67, s65" % sW)
    LQ = cfg.get("lq", 1)
    if LQ: s("v_and_b32 v48, 15, v0\nv_bfe_u32 v56, v0, 1, 1\nv_and_b32 v57, 1, v0\nv_lshl_add_u32 v56, v57, 3, v56\nv_lshrrev_b32 v57, 2, v0\nv_lshlrev_b32 v40, 11, v56\nv_lshl_add_u32 v40, v57, 4, v40")
    else: s("v_and_b32 v48, 15, v0\nv_lshrrev_b32 v56, 5, v0\nv_bfe_u32 v57, v0, 4, 1\nv_lshl_add_u32 v56, v57, 3, v56\nv_lshlrev_b32 v40, 11, v56\nv_lshl_add_u32 v40, v48, 4, v40")
    s("s_mov_b32 s10, %d\ns_mov_b32 s11, 0x20000" % (2048 * 2048))
    s("s_waitcnt lgkmcnt(0)")
    if TS: s("v_writelane_b32 v%d, s100, 0" % vTS)
    if cfg.get("rc"): s("v_mov_b32 v15, 0")
    stamp(s, "karg")
    s("s_mov_b32 s8, s4\ns_and_b32 s9, s5, 0xffff")
    for q in range(4): s.vm("buffer_load_dwordx4 %s, v40, s[8:11], s67 offen offset:%d" % (Q(64 + 4 * q), 512 * q), ("x", q))
    s("s_add_u32 s70, s6, 0x%x\ns_addc_u32 s71, s7, 0" % (WS_SM + SM_EP))
    s("s_load_dword s%d, s[70:71], 0" % sTAG)
    srd(s, 16, 14, 15, 1024 * 7168); srd(s, 12, 12, 13, 1024 * 7168)
    srd(s, 28, 26, 27, 1024 * 2048); srd(s, 24, 24, 25, 1024 * 2048)
    s("s_cmp_ge_u32 s%d, 2" % sW)
    s("s_cselect_b32 s20, s16, s12\ns_cselect_b32 s21, s17, s13\ns_mov_b32 s22, %d\ns_mov_b32 s23, 0x20000" % (1024 * 7168))
    ws_srd(s, 36, WS_SM, SM_SIZE)
    s("v_lshrrev_b32 v49, 4, v0")
    WGF = 1; vP1 = 63
    s("v_and_b32 v60, 31, v0\nv_lshlrev_b32 v60, 2, v60\ns_lshl_b32 s81, s%d, 7\ns_add_u32 s81, s81, 0x%x" % (sB, SM_F1B))
    s("v_and_b32 v63, 7, v0\nv_lshlrev_b32 v63, 6, v63\ns_lshl_b32 s75, s%d, 11\ns_lshl_b32 s65, s%d, 9\ns_add_u32 s75, s75, s65\ns_add_u32 s75, s75, 0x%x" % (sB, sQ, SM_F1))
    if FBW: s("s_add_u32 s81, s75, 0x%x" % (SM_F1B - SM_F1))
    FT = cfg.get("ftouch", 2)
    if FT & 4: s.vm("buffer_load_dword a246, v63, s[36:39], s75 offen %s" % SC)
    if FT & 1: s.vm("buffer_load_dword a246, v60, s[36:39], s81 offen %s" % SC)
    s("v_mov_b32 v41, -1\nv_lshlrev_b32 v42, 2, v0\ns_xor_b32 s69, s2, 0xf8\ns_lshl_b32 s69, s69, 10\ns_lshl_b32 s65, s%d, 8\ns_add_u32 s69, s69, s65" % sW)
    s.vm("buffer_store_dword v41, v42, s[36:39], s69 offen %s" % SC, "agfill")
    vWA, vBA0, vBA1, vWA2, vW0, vW3, vB, vJ, vPA, vPB = 2, 3, 4, 5, 6, 9, 10, 12, 13, 14
    s("s_lshl_b32 s70, s66, 1\ns_and_b32 s65, s2, 1\ns_add_u32 s70, s70, s65")
    s("s_mul_i32 s69, s70, 7168\ns_mul_i32 s65, s%d, 1792\ns_add_u32 s69, s69, s65\nv_and_b32 v40, 31, v0\nv_min_u32 v40, 13, v40\nv_lshl_add_u32 v44, v40, 7, s69" % sQ)
    s("v_and_b32 v45, 3, v0\ns_lshl_b32 s69, s%d, 8\ns_lshl_b32 s65, s70, 2\ns_add_u32 s69, s69, s65\nv_add_u32 v45, s69, v45\nv_lshlrev_b32 v45, 11, v45" % sQ)
    if cfg.get("pfd"):
        n_ = cfg["pfd"]
        s("s_and_b32 s65, s2, 1\ns_mul_i32 s69, s65, %d\ns_add_u32 s69, s69, 7168\ns_mul_i32 s65, s65, %d\ns_add_u32 s65, s65, 8192\nv_cmp_gt_u32 vcc, 32, v0" % (-2 * 7168, -2 * 8192))
        s("v_mov_b32 v40, s69\nv_mov_b32 v43, %d\nv_cndmask_b32 v40, v40, v43, vcc\nv_add_u32 v44, v44, v40\nv_mov_b32 v40, s65\nv_mov_b32 v43, %d\nv_cndmask_b32 v40, v40, v43, vcc\nv_add_u32 v45, v45, v40" % (n_ * 64 * 7168, n_ * 128))
    s("s_mov_b32 s69, %d\ns_cmp_ge_u32 s%d, 2\ns_cselect_b64 vcc, -1, 0\nv_cndmask_b32 v%d, v44, v45, vcc\ns_cselect_b32 s%d, 128, s69" % (64 * 7168, sW, vPA, sPAs))
    s("s_cselect_b32 s40, s24, s12\ns_cselect_b32 s41, s25, s13\ns_cselect_b32 s69, s28, s16\ns_cselect_b32 s65, s29, s17\ns_cselect_b32 s42, s26, s14")
    s("s_bitcmp1_b32 s%d, 0\ns_cselect_b32 s40, s69, s40\ns_cselect_b32 s41, s65, s41\ns_mov_b32 s43, 0x20000\ns_mov_b32 s%d, 0" % (sW, sKPA))
    def pfa(s):
        s.vm("buffer_load_dword a246, v%d, s[40:43], s%d offen" % (vPA, sKPA)); s("s_add_u32 s%d, s%d, s%d" % (sKPA, sKPA, sPAs))
    def pfb(s):
        s.vm("buffer_load_dword a246, v%d, s[44:47], s%d offen" % (vPB, sKPB)); s("s_add_u32 s%d, s%d, s%d" % (sKPB, sKPB, sPBs))
    ND = cfg.get("dup0", 0)
    if ND:
        s("s_and_b32 s65, s2, 1\ns_lshl_b32 s65, s65, 1\ns_sub_u32 s65, 1, s65\ns_cmp_ge_u32 s%d, 2\ns_mov_b32 s69, 7168\ns_cselect_b32 s69, 8192, s69\ns_mul_i32 s69, s69, s65" % sW)
        s("v_lshrrev_b32 v43, 5, v0\nv_mul_lo_u32 v43, v43, s69\nv_add_u32 v%d, v%d, v43" % (vPA, vPA))
        for _ in range(ND): pfa(s)
        s("v_sub_u32 v%d, v%d, v43" % (vPA, vPA))
    if cfg.get("pfd"): s("s_mov_b32 exec_lo, 0")
    for _ in range(cfg.get("pf_t0", 3) - ND): pfa(s)
    if cfg.get("pfd"): s("s_mov_b64 exec, -1\ns_mul_i32 s%d, s%d, %d" % (sKPA, sPAs, cfg.get("pf_t0", 3) - cfg["pfd"]))
    AS = cfg.get("asym", 0)
    if AS & 1:
        s("s_and_b32 s65, s2, 1\ns_lshl_b32 s65, s65, 1\ns_sub_u32 s65, 1, s65\ns_cmp_ge_u32 s%d, 2\ns_mov_b32 s69, 7168\ns_cselect_b32 s69, 8192, s69\ns_mul_i32 s69, s69, s65" % sW)
        s("v_lshrrev_b32 v43, 5, v0\nv_mul_lo_u32 v43, v43, s69\nv_add_u32 v%d, v%d, v43" % (vPA, vPA))
        s("s_getreg_b32 s65, hwreg(HW_REG_XCC_ID, 0, 1)\ns_cmp_eq_u32 s65, %d\ns_cselect_b32 s%d, 0x40000000, s%d" % (0 if AS & 4 else 1, sKPA, sKPA))
    s("s_and_b32 s71, s%d, 1\ns_lshl_b32 s71, s71, 1\ns_mul_i32 s72, s%d, 224\ns_and_b32 s73, s%d, 1\ns_add_u32 s73, s73, 12" % (sJ, sJ, sW))
    for k in range(4):
        if k < 3: s("s_add_u32 s69, s%d, %d\ns_lshl_b32 s69, s69, 6" % (sW, 4 * k))
        else: s("s_lshl_b32 s69, s73, 6")
        s("v_add_u32 v40, s69, v0\nv_mul_u32_u24 v44, 4682, v40\nv_lshrrev_b32 v44, 16, v44\nv_mul_u32_u24 v45, 14, v44\nv_sub_u32 v45, v40, v45")
        s("v_add_u32 v45, s71, v45\nv_subrev_u32 v43, 14, v45\nv_min_u32 v45, v45, v43")
        s("v_lshrrev_b32 v43, 1, v44\nv_xor_b32 v43, v43, v44\nv_and_b32 v43, 4, v43\nv_mul_u32_u24 v43, 3, v43\nv_xor_b32 v44, v44, v43")
        s("v_mul_u32_u24 v44, 7168, v44\nv_lshl_add_u32 v44, v45, 4, v44\nv_add_u32 v%d, s72, v44" % (vW0 + k))
    s("v_lshrrev_b32 v50, 3, v0\ns_lshl_b32 s69, s%d, 3\nv_add_u32 v40, s69, v50\nv_bfe_u32 v44, v40, 1, 3\nv_and_b32 v51, 7, v0\nv_xor_b32 v44, v44, v51" % sW)
    s("v_lshlrev_b32 v47, 11, v40\nv_lshl_add_u32 v47, v44, 4, v47")
    s("s_lshl_b32 s69, s%d, 16\nv_add_u32 v%d, s69, v47" % (sJ, vB))
    s("s_lshl_b32 s%d, s%d, 10\ns_lshl_b32 s%d, s73, 10" % (sMW, sW, sM3))
    s("s_cmp_ge_u32 s%d, 2\ns_cselect_b32 s69, %d, 0\ns_add_u32 s%d, s%d, s69\ns_add_u32 s%d, s%d, %d" % (sW, U_OFF, sM3, sM3, sMB, sMW, B_BASE))
    s("s_lshl_b32 s65, s%d, 9\ns_add_u32 s65, s65, 57344\nv_lshl_add_u32 v52, v0, 3, s65\nv_xor_b32 v54, 512, v52" % sW)
    if LQ: s("v_lshlrev_b32 v55, 12, v49\nv_lshrrev_b32 v44, 2, v48\nv_lshl_add_u32 v55, v44, 8, v55\nv_and_b32 v44, 48, v1\nv_add_u32 v55, v55, v44")
    else: s("v_lshrrev_b32 v55, 2, v48\nv_lshlrev_b32 v55, 12, v55\nv_and_b32 v44, 3, v0\nv_lshl_add_u32 v55, v44, 8, v55\nv_lshl_add_u32 v55, v49, 4, v55")
    s("s_lshl_b32 s70, s66, 17\ns_lshl_b32 s67, s%d, 10\ns_add_u32 s70, s70, s67\ns_and_b32 s67, s2, 1\ns_lshl_b32 s67, s67, 7\ns_add_u32 s70, s70, s67" % sQ)
    s("s_lshr_b32 s67, s%d, 1\ns_lshl_b32 s67, s67, 6\ns_add_u32 s70, s70, s67\ns_lshl_b32 s67, s68, 14\ns_add_u32 s70, s70, s67" % sW)
    s("s_add_u32 s71, s70, 32768\ns_add_u32 s72, s70, 65536\ns_add_u32 s73, s70, 98304")
    s("s_lshl_b32 s74, s2, 7\ns_lshr_b32 s67, s%d, 1\ns_lshl_b32 s67, s67, 6\ns_add_u32 s74, s74, s67\ns_add_u32 s74, s74, 0x%x" % (sW, SM_ST))
    ws_srd(s, 48, WS_XN, 0x400000)
    dma_items = [(vW0, 12, sKW, sMW, 0), (vW0 + 1, 12, sKW, sMW, 4096), (vW0 + 2, 12, sKW, sMW, 8192), (vW3, 20, sKW, sM3, 0),
                 (vW0, 16, sKW, sMW, U_OFF), (vW0 + 1, 16, sKW, sMW, U_OFF + 4096), (vW0 + 2, 16, sKW, sMW, U_OFF + 8192),
                 (vB, 24, sKB, sMB, 0), (vB, 28, sKB, sMB, 4096)]
    def dma1(s, st, k, early=None):
        v, sr, so, mb, off = dma_items[k]
        isb = mb == sMB
        base = ((st >> 1) & 1) * (16384 if isb else 65536) + (st & 1) * (B_ST if isb else W_ST)
        if k == 0: s("s_mov_b32 s%d, %d" % (sKW, st * 64 * 7168))
        if k == 7: s("s_mov_b32 s%d, %d" % (sKB, st * 128))
        s("s_add_u32 m0, s%d, %d" % (mb, off + base))
        s.op(Op("buffer_load_dwordx4 v%d, s[%d:%d], s%d offen lds" % (v, sr, sr + 3, so), "vm", K(("D", st, k))), early)
    CH1 = cfg.get("ch1", 1)
    xalloc = {}; xprev = {}; fifo = [(("a", r), None) for r in (96, 112, 128, 144, 192)]
    for u in range(32):
        if u == 26: xalloc[u] = ("v", 48); xprev[u] = None; continue
        xalloc[u], xprev[u] = fifo.pop(0); fifo.append((xalloc[u], u))
    aX, aW, NWB = 96, 208, 8
    def xload(s, u, m, early=None):
        if m == 0: s("s_mov_b32 s%d, %d" % (sKX, u * 4096))
        s.op(Op("buffer_load_dwordx4 %s, v%d, s[8:11], s%d offen offset:%d %s" % (R(xalloc[u][0], xalloc[u][1] + 4 * m, 4), 1, sKX, 1024 * m, HL), "vm", K(("X", u, m))), early)
    def pro_stage(st):
        for k in range(9): dma1(s, st, k)
    ND0P = cfg.get("d_t0", 0)
    for k in range(ND0P): dma1(s, 0, k)
    EP_LDS = 131072; EPW = 8192
    PK = dict(C=252, CA=253, TOK=254, COL=255, D=240, TA=242, TRW=243, TRR=244, AG=245)
    s("v_lshrrev_b32 v40, 1, v48\nv_xor_b32 v40, v40, v49\nv_lshlrev_b32 v40, 4, v40\nv_lshl_add_u32 v40, v48, 7, v40")
    s("v_add_u32 v%d, %d, v40\nv_xor_b32 v%d, 64, v%d" % (vBA0, B_BASE, vBA1, vBA0))
    s("v_lshrrev_b32 v40, 1, v49\nv_lshlrev_b32 v40, 4, v40\nv_and_b32 v41, 1, v49\nv_lshlrev_b32 v41, 2, v41\nv_lshrrev_b32 v50, 2, v48\nv_add3_u32 v11, v40, v41, v50")
    s("v_mul_u32_u24 v40, 224, v11\nv_and_b32 v51, 3, v0\nv_lshl_add_u32 v%d, v51, 3, v40\nv_add_u32 v%d, 0x10000, v%d" % (vWA, vWA2, vWA))
    s("s_lshl_b32 s65, s%d, 17\ns_add_u32 s8, s6, s65\ns_addc_u32 s9, s7, 0\ns_and_b32 s9, s9, 0xffff\ns_mov_b32 s10, 0x20000" % sB)
    s("s_lshl_b32 s83, s2, 4\ns_lshl_b32 s65, s%d, 2\ns_add_u32 s83, s83, s65" % sW)
    if WGF: s("s_and_b32 s82, s2, 7\ns_lshl_b32 s82, s82, 6\ns_lshl_b32 s65, s66, 11\ns_add_u32 s82, s82, s65\ns_lshl_b32 s65, s%d, 9\ns_add_u32 s82, s82, s65\ns_add_u32 s82, s82, 0x%x" % (sW, SM_F1))
    else: s("s_add_u32 s82, s83, 0x%x" % SM_F1)
    s(("s_add_u32 s83, s82, 0x%x" % (SM_F1B - SM_F1)) if FBW else ("s_add_u32 s83, s83, 0x%x" % SM_F1B))
    def tramp():
        s("s_mov_b64 exec, 0")
        for w in range(1, 4): s("s_cmp_eq_u32 s%d, %d\ns_cbranch_scc1 L_tr%d" % (sW, w, w))
        s("s_branch L_tr0")
        s.atom(["L_trret:"])
        s("s_mov_b64 exec, -1")
    TRP = cfg.get("tr_at", 2) if cfg.get("tramp", 1) else -1
    if TRP == 0: tramp()
    stamp(s, "prex")
    F = 80; D = 112; T0 = 144; ST = 28
    ln = Seq()
    def unpack(q):
        for i in range(4 * q, 4 * q + 4): ln("v_lshlrev_b32 v%d, 16, v%d\nv_and_b32 v%d, 0xffff0000, v%d" % (F + 2 * i, 64 + i, F + 2 * i + 1, 64 + i))
    def pack(q, dst=64):
        for i in range(4 * q, 4 * q + 4): ln("v_cvt_pk_bf16_f32 v%d, v%d, v%d" % (dst + i, F + 2 * i, F + 2 * i + 1))
    def hsum(dst):
        ln("v_pk_add_f32 %s, %s, %s\nv_add_f32 v%d, v%d, v%d" % (P(T0), P(T0), P(T0 + 2), T0, T0, T0 + 1))
        for sh in ((4, 8) if LQ else (1, 2, 4, 8)): ln("v_add_f32_dpp v%d, v%d, v%d row_ror:%d row_mask:0xf bank_mask:0xf" % (T0, T0, T0, sh))
        if LQ:
            for w_ in (16, 32): ln("v_mov_b32 v%d, v%d\nv_permlane%d_swap_b32 v%d, v%d\nv_add_f32 v%d, v%d, v%d" % (T0 + 1, T0, w_, T0, T0 + 1, T0, T0, T0 + 1))
        ln("v_mul_f32 v%d, %s, v%d" % (dst, fx(1.0 / 512), T0))
    for q in range(4):
        ln.wait([("x", q)])
        if q == 3:
            stamp(ln, "xin")
            for _ in range(cfg.get("pf_t1", 0)): pfa(ln)
            i_d0 = len(ln.u)
        unpack(q)
        if q == 0: ln("v_pk_add_f32 %s, %s, %s\nv_pk_add_f32 %s, %s, %s" % (P(T0), P(F), P(F + 2), P(T0 + 2), P(F + 4), P(F + 6)))
        else:
            for i in range(4): ln("v_pk_add_f32 %s, %s, %s" % (P(T0 + 2 * (i % 2)), P(T0 + 2 * (i % 2)), P(F + 8 * q + 2 * i)))
    hsum(ST)
    for i in range(16): ln("v_pk_add_f32 %s, %s, %s op_sel_hi:[1,0] neg_lo:[0,1] neg_hi:[0,1]" % (P(D + 2 * i), P(F + 2 * i), P(ST)))
    for i in range(16):
        if i < 2: ln("v_pk_mul_f32 %s, %s, %s" % (P(T0 + 2 * i), P(D + 2 * i), P(D + 2 * i)))
        else: ln("v_pk_fma_f32 %s, %s, %s, %s" % (P(T0 + 2 * (i % 2)), P(D + 2 * i), P(D + 2 * i), P(T0 + 2 * (i % 2))))
    hsum(ST + 1)
    ln.lg("ds_write_b64 v52, %s" % P(ST))
    ln.wait(None, drain=["lg"])
    ln("s_barrier")
    ln.lg("ds_read_b64 %s, v54" % P(T0), "oth")
    ln("s_mul_i32 s%d, s%d, 0x9E3779B1\ns_add_u32 s%d, s%d, 0x7F4A7C15\nv_mov_b32 v56, s%d" % (sTAG, sTAG, sTAG, sTAG, sTAG))
    ln.wait(["oth"])
    ln("v_sub_f32 v%d, v%d, v%d\nv_pk_add_f32 %s, %s, %s\nv_mul_f32 v%d, 0.5, v%d\nv_pk_mul_f32 %s, %s, 0.5 op_sel_hi:[1,0]\nv_fmac_f32 v%d, v%d, v%d" % (T0 + 2, ST, T0, P(ST), P(ST), P(T0), T0 + 2, T0 + 2, P(ST), P(ST), ST + 1, T0 + 2, T0 + 2))
    ln("v_cvt_pk_bf16_f32 v%d, v%d, v%d\nv_lshlrev_b32 v%d, 16, v%d\nv_and_b32 v%d, 0xffff0000, v%d" % (T0, ST, ST + 1, ST, T0, ST + 1, T0))
    ln(("v_add_f32 V, %s, V\nv_cvt_pk_bf16_f32 V, V, V\nv_and_b32 V, 0xffff0000, V\nv_sqrt_f32 V, V" % fx(1e-5)).replace("V", "v%d" % (ST + 1)))
    def sub(q):
        for i in range(4 * q, 4 * q + 4): ln("v_pk_add_f32 %s, %s, %s op_sel_hi:[1,0] neg_lo:[0,1] neg_hi:[0,1]" % (P(F + 2 * i), P(F + 2 * i), P(ST)))
    def fin(q):
        pack(q); unpack(q)
        for i in range(4 * q, 4 * q + 4): ln("v_pk_mul_f32 %s, %s, %s op_sel:[0,1] op_sel_hi:[1,1]" % (P(F + 2 * i), P(F + 2 * i), P(ST)))
        pack(q, 12 if q else 64)
    ln("v_cvt_pk_bf16_f32 V, V, V\nv_and_b32 V, 0xffff0000, V\nv_rcp_f32 V, V".replace("V", "v%d" % (ST + 1)))
    sub(0); fin(0)
    lu = ln.units()
    nD_0 = cfg.get("d_t1", 1 if ND0P else 0)
    if nD_0:
        dq = Seq(); step = cfg.get("d0_step", 10); pos = i_d0 + cfg.get("d0_off", 6)
        for k in range(ND0P, 9):
            dma1(dq, 0, k); un = dq.units()
            lu[pos:pos] = un[:-1]; pos += len(un); lu[pos:pos] = un[-1:]; pos += step
    s.u += lu
    xst = lambda q: "buffer_store_dwordx4 %s, v55, s[48:51], s%d offen %s" % (Q(12 + 4 * q if q else 64), 70 + q, SC)
    stst = lambda: (["s_mov_b64 exec, 15"] if LQ else ["s_mov_b32 exec_lo, 0x10001", "s_mov_b32 exec_hi, 0x10001"]) + [Op("buffer_store_dwordx4 %s, v%d, s[36:39], s74 offen %s" % (Q(ST), LQ, SC), "vm"), "s_mov_b64 exec, -1"]
    s.vm(xst(0), ("xn", 0))
    stamp(s, "xnst")
    for q in range(1, 4):
        sub(q); fin(q); s.u += ln.units()
    XBP = cfg.get("xbp", 0)
    TWO = 1
    nD_b = cfg.get("d_t3", 1)
    nD_c = cfg.get("d_t4", 2)
    nD_d = cfg.get("d_t5", 2)
    if TRP == 1: tramp()
    if WGF: s.wait([("xn", 0), "agfill"]); s("s_barrier")
    flag(s, "buffer_store_dwordx4 v[56:59], v1, s[36:39], s82 offen %s" % SC, [("xn", 0), "agfill"])
    stamp(s, "flag1")
    if TRP == 4: tramp()
    if cfg.get("bar_f"): s("s_barrier")
    stamp(s, "barf")
    def xb_now():
        s.atom(stst())
        for q in range(1, 4): s.vm(xst(q), ("xn", q))
    if XBP == 1: xb_now()
    for st in range(nD_0, nD_b): pro_stage(st)
    stamp(s, "d0")
    if TRP == 2: tramp()
    stamp(s, "trd")
    f1load = "buffer_load_dword v61, v%d, s[36:39], s75 offen %s" % (vP1, SC)
    s.vm(f1load, "f1")
    if XBP == 2: xb_now()
    for st in range(max(nD_0, nD_b), nD_c): pro_stage(st)
    nD_b = max(nD_0, nD_b, nD_c)
    if TRP == 3: tramp()
    stamp(s, "prepoll")
    if TRP >= 0:
        s("s_branch L_main"); s.atom([".p2align 12"]); s.atom(["L_main:"])
    poll(s, "P1", f1load, 61, "f1")
    stamp(s, "poll1")
    NXP = cfg.get("nxpre", 1 if cfg.get("ch1_first", 1) else 2)
    for u in range(NXP):
        for m in range(4): xload(s, u, m)
    if TRP == 5: tramp()
    if XBP == 3: xb_now()
    for _ in range(cfg.get("pf_t5", 0)): pfa(s)
    for st in range(nD_b, nD_d): pro_stage(st)
    nD_b = max(nD_b, nD_d)
    npfa = cfg.get("pf_t0", 3) + cfg.get("pf_t1", 0) + cfg.get("pf_t5", 0)
    NPB = cfg.get("npb", 4)
    tiles = []
    for q in range(7): tiles += [("G", q), ("U", q)]
    tiles += [("R", 0), ("I", 0), ("R", 1), ("I", 1)]
    def acc(t, m):
        k, q = t
        if k == "R": return ("v", 64 + 16 * q + 4 * m)
        if k == "I": return ("v", 96 + 16 * q + 4 * m)
        o = 32 * q + (16 if k == "U" else 0) + 4 * m
        return ("v", 128 + o) if q < 4 else ("a", o - 128)
    L0 = cfg.get("l1_lead", 4)
    KT = cfg.get("kt", 1)
    def stage_groups(st, tl):
        if CH1 and st >= cfg.get("ch1_first", 1): return [(2 * st + kk, ti) for ti in tl for kk in range(2)]
        return [(2 * st + kk, ti) for kk in range(2) for ti in tl]
    groups = []
    for st in range(14 if KT else 16): groups += stage_groups(st, range(18))
    if KT:
        for tl in (range(4), range(4, 18)):
            for st in (14, 15): groups += stage_groups(st, tl)
    NG = len(groups)
    mo, head, tail = order_mfma(groups)
    xfirst = {}; xlast = {}
    for G, (u, ti) in enumerate(groups): xfirst.setdefault(u, head(G)); xlast[u] = tail(G)
    parts = lambda G: [0, 1] if groups[G][1] < 14 else [None]
    def read1(G, part):
        u, ti = groups[G]; st, kk = divmod(u, 2); t = tiles[ti]; f = G % NWB
        if t[0] in "GU":
            off = (st & 1) * W_ST + (U_OFF if t[0] == "U" else 0) + kk * 7168 + part * 1792 + t[1] * 32
            return Op("ds_read_b64_tr_b16 %s, v%d offset:%d" % (R("a", aW + 4 * f + 2 * part, 2), (vWA, vWA2)[(st >> 1) & 1], off), "lg", K(("F", G, part)))
        off = (st & 3) * B_ST + (4096 if t[0] == "I" else 0) + t[1] * 2048
        return Op("ds_read_b128 %s, v%d offset:%d" % (R("a", aW + 4 * f, 4), vBA1 if kk else vBA0, off), "lg", K(("F", G, part)))
    rgap = {}
    for G in range(NG):
        f = G % 36
        g = G if (f < 33 or (KT and G >= 28 * 18)) else G - (1 if f < 35 else 2)
        rgap[G] = 4 * (g - L0) - 1
        assert rgap[G] >= 4 * tail(G - NWB) + 3
    gneed = lambda G: [("F", H, p) for H in range(G, tail(G) + 1) for p in parts(H)] + [("X", u, m) for u in range(32) if xfirst[u] == G for m in range(4)]
    s.wait([("D", 0, k) for k in range(9)])
    s("s_barrier")
    for G in range(NG):
        if rgap[G] < 0:
            for p in parts(G): s.op(read1(G, p))
    s.wait(gneed(0))
    stamp(s, "loop1")
    prog.add(s.done())
    mf = []
    for G, m in mo:
        u, ti = groups[G]; t = tiles[ti]
        xr = (xalloc[u][0], xalloc[u][1] + 4 * m); wr = ("a", aW + 4 * (G % NWB))
        mf.append(Op(mfma16(acc(t, m), wr, xr, u == 0) if t[0] in "GU" else mfma16(acc(t, m), xr, wr, u == 0)))
    sc = Sch(mf)
    for G in range(1, NG):
        w = Op("", needs=K(gneed(G)))
        w.keep = sum(len(parts(H)) for H in range(max(0, G - 2), min(NG, G + 10)) if rgap[H] == 4 * G - 1) == 2
        if w.keep or head(G) == G: sc.put(4 * G - 1, [w], 0)
    for G in range(NG):
        if rgap[G] >= 0: sc.put(rgap[G], [read1(G, p) for p in parts(G)], 1)
    bar = {}
    for st in range(15):
        bar[st] = rgap[xfirst[2 * st + 2]] - 1
        sc.put(bar[st], [Op("s_barrier", needs=K([("D", st + 1, k) for k in range(9)] + ([("xn", 3)] if (FBW and st == cfg.get("fb_bar", 1)) else [])), drain=["lg"] if st < 14 else None)], 0)
    items = []
    PFL = cfg.get("pfl", 9)
    pft = {}
    if cfg.get("pf1", 1):
        ev = cfg.get("pf_first", 70); st = npfa
        for k in range(npfa - cfg.get("pfd", 0), npfa): items.append((0, 2, ev - cfg.get("pfd_pre", 0), "a", k, 0))
        while st < 16:
            n = 0
            while st < 16 and (n < cfg.get("pf_max", 2) or (st == 15 and cfg.get("pf_l3", 1))) and (n == 0 or 144 * (st - 3 - PFL) < ev):
                e = max(int(144 * (st - 3 - PFL)), ev); pft[st] = e; items.append((0, 2, e, "a", st, 0)); st += 1; n += 1
            ev = e + cfg.get("pf_min", 288)
    for st in range(nD_b, 16):
        e = max(bar[st - 4] + 1 if st >= 4 else 0, pft.get(st, -1000) + cfg.get("pf_lat", 100))
        for k in range(9): items.append((bar[st - 1], 0, e, "d", st, k))
    for u in range(NXP, 32):
        e = 4 * xlast[xprev[u]] + 3 if xprev[u] is not None else 0
        for m in range(4): items.append((4 * xfirst[u] - 1, 1, max(e, 4 * xfirst[u] - (cfg.get("x_la", 230) if u != 8 else cfg.get("x_la8", 105))), "x", u, m))
    for k in range(1, 4 if not XBP else 0): items.append((0, 3, cfg.get("xb_first", 130) + cfg.get("xb_sp", 36) * (k - 1), "s", k, 0))
    items.append((0, 3, bar[cfg.get("fb_bar", 1)] + 1 if FBW else cfg.get("xb_first", 130) + cfg.get("xb_sp", 36) * 2 + cfg.get("xb_lat", 70), "f", 0, 0))
    items.append((0, 3, cfg.get("p1c_at", 430), "p", 0, 0))
    gC_ = sorted(set(pft.values()))[cfg.get("c_ev", 1)] if pft else 300
    items.append((0, 3, gC_, "c", 0, 0))
    gE_ = gC_ + cfg.get("e_off", 90)
    evs = sorted(set(pft.values())); i_e = {}
    EM = cfg.get("em", 0)
    for n in range(4):
        if EM: items.append((0, 4, evs[cfg.get("c_ev", 1) + cfg.get("e_ev", 0) + n], "e", n, 0))
        else: items.append((gE_ + 100, 3, gE_ + cfg.get("e_sp", 20) * n, "e", n, 0))
    f1cload = "buffer_load_dword v61, v%d, s[36:39], s81 offen %s" % (63 if FBW else 60, SC)
    if cfg.get("pf2", 1):
        for c in range(NPB): items.append((0, 2, cfg.get("pfb_first", 646) + int(c * cfg.get("pfb_sp", 288)), "b", c, 0))
    now = 0; pend = sorted(items); done = []; quiet = -1
    FM = cfg.get("fm", 1); WL = cfg.get("fm_wl", 14); fifo = []; comp = cfg.get("fm_c0", 30); fsl = []; lastk = ""; PFD = cfg.get("pfd", 0); PFX = cfg.get("pfx", 0)
    while pend:
        nxt = {}
        for x in pend:
            if x[3] not in nxt or x[4:] < nxt[x[3]][4:]: nxt[x[3]] = x
        av = sorted(x for x in nxt.values() if x[2] <= now)
        if FM:
            occ = sum(n for c, n in fifo if c > now)
            lines_of = lambda x: {"d": WL if x[5] < 7 else 8, "x": 8, "a": 9 * (1 + bool(PFD)) + 8 * PFX, "b": 88 // NPB, "c": 10, "e": 16}.get(x[3], 1)
            if av and av[0][3] in "dx" and len(av) > 1 and av[1][3] in "dx" and av[0][3] == lastk and av[0][0] - now > cfg.get("alt_slack", 110): av = av[1:]
            av = [x for x in av[:1] if occ + lines_of(x) <= cfg.get("fm_c", 66)]
        if not av: now += 1; continue
        x = av[0]; pend.remove(x); lastk = x[3]
        if FM:
            lat = cfg.get("fm_slow", 64) if x[3] in ("abce" if EM else "abc") else cfg.get("fm_fast", 36)
            comp = max(comp + 4.3, now + lat); fifo.append((comp, lines_of(x)))
            if x[3] in "dx": fsl.append((x[0] - comp, x[3], x[4], x[5]))
        fifo_now = now
        if x[3] == "d": dma1(s, x[4], x[5], int(now))
        elif x[3] == "x":
            if TWO and x[4:] == (8, 0): poll(s, "P1c", f1cload, 61, "f1c", early=int(now))
            xload(s, x[4], x[5], int(now))
        elif x[3] == "p": s.vm(f1cload, "f1c", early=int(now)); i_f1c = len(s.u) - 1
        elif x[3] == "a":
            s.at(int(now)); pfa(s); quiet = now + cfg.get("q_len", 64)
            if [y for y in pend if y[3] in "abc" and y[2] <= now]: now -= cfg.get("q_sp", 10) - 4
        elif x[3] == "c":
            s.at(int(now)); i_c0 = len(s.u) - 1
            for k, lo in enumerate((96, 98, 92)):
                s("s_mov_b32 s32, s%d\ns_and_b32 s33, s%d, 0xffff" % (lo, lo + 1))
                for T in range(2): s.vm("buffer_load_ushort v%d, v40, s[32:35], 0 offen offset:%d" % (16 + 2 * k + T, 32 * T), ("c", k, T))
            s("s_mov_b32 s32, s94\ns_and_b32 s33, s95, 0xffff")
            for u in range(2): s.vm("buffer_load_dwordx2 %s, v41, s[32:35], 0 offen offset:%d" % (R("a", 248 + 2 * u, 2), 32 * u), ("dk", u))
            if FT & 2:
                s.vm("buffer_load_dword a246, v42, s[36:39], 0 offen %s" % SC); now += 4
            i_c1 = len(s.u) - 1; now += 30
        elif x[3] == "s":
            if x[4] == 1: s.atom(stst(), int(now)); now += 4
            s.op(Op(xst(x[4]), "vm", K(("xn", x[4]))), int(now)); now += (4 - cfg.get("q_sp", 10)) if now < quiet else 10
        elif x[3] == "f":
            flag(s, "buffer_store_dword%s, v1, s[36:39], s83 offen %s" % ("x4 v[56:59]" if FBW else " v56", SC), [("xn", 3)], early=int(now)); i_fb = len(s.u) - 1
        elif x[3] == "e":
            s("s_mov_b32 s70, %d\ns_add_u32 m0, s71, %d" % (4096 * x[4], 1024 * x[4]))
            s.op(Op("buffer_load_dwordx4 v12, s[48:51], s70 offen lds", "vm", K(("E", x[4]))), int(now)); i_e[x[4]] = len(s.u) - 1; now += 4
        else: s.at(int(now)); pfb(s); quiet = now + cfg.get("q_len", 64)
        if x[3] in "dx": done.append((x, len(s.u) - 1))
        if x[3:] == ("x", 8, 0): i_p1c = len(s.u) - 1
        if x[3:] == ("x", 26, 0): i_x26 = len(s.u) - 1
        if FM: now = fifo_now + {"c": 36, "s": cfg.get("fm_st", 16) + 4 * (x[4] == 1)}.get(x[3], cfg.get("fm_sp", 4.5))
        else: now += cfg.get("q_sp", 10) if now < quiet else cfg.get("l1_sp", 5)
    res = sc.stream(s.units(), 0, 2)
    sl = sorted((x[0] - res[i], x[3], x[4], x[5]) for x, i in done)
    if cfg.get("verbose") and FM: print("model slacks", sorted(fsl)[:5])
    if cfg.get("verbose"): print("loop1 vm end", res[-1], "of", 4 * NG, "min slacks", sl[:3], "steady", min(z for z in sl if z[2] > 8))
    for nm in names:
        if TS and nm[0] == "f" and nm[1:].isdigit():
            st_ = int(nm[1:])
            sc.put(bar[st_] - 1, [Op("s_memrealtime s[100:101]")], 5)
            sc.put(bar[st_], [Op("v_writelane_b32 v%d, s100, %d" % (vTS, names.index(nm)))], 5)
    if cfg.get("verbose"): print("flag b", res[i_fb], "poll load", res[i_f1c], "check", res[i_p1c])
    s.at(res[i_fb] + 1)
    cL, cC, cL8, cL16, cL64, cL512 = 16, 20, 24, 28, 32, 36
    s("s_mov_b32 s34, 2048\ns_mov_b32 s35, 0x20000")
    s("s_lshl_b32 s69, s%d, 5\nv_add_u32 v40, s69, v48\nv_lshlrev_b32 v40, 1, v40" % sJ)
    s("s_lshl_b32 s68, s%d, 7\ns_lshl_b32 s66, s%d, 5\ns_add_u32 s68, s68, s66\nv_lshl_add_u32 v41, v49, 2, s68\nv_accvgpr_write_b32 a%d, v41\nv_lshlrev_b32 v41, 1, v41" % (sTN, sQ, PK["COL"]))
    srd(s, 48, 4, 5, 2048 * 2048)
    s("s_lshl_b32 s66, s%d, 2\ns_add_u32 s66, s66, s%d\ns_lshl_b32 s66, s66, %d\ns_add_u32 s66, s66, 0x%x\nv_and_b32 v42, %d, v0\nv_lshl_add_u32 v42, v42, 7, s66" % (sB, sQ, (7, 9, 11)[F3M], SM_F3, (0, 3, cfg.get("f3t", 0))[F3M]))
    s("s_lshl_b32 s66, s%d, 3\ns_add_u32 s66, s66, s%d\ns_lshl_b32 s66, s66, 2\ns_add_u32 s66, s66, s%d\ns_lshl_b32 s66, s66, %d\ns_lshl_b32 s67, s%d, %d\ns_add_u32 s66, s66, s67\ns_add_u32 s66, s66, 0x%x\nv_writelane_b32 v42, s66, 0\ns_add_u32 s66, s66, %d\nv_writelane_b32 v42, s66, 1" % (sI, sTN, sW, (7, 10, 10)[F4M], sQ, (4, 8, 8)[F4M], SM_F4, (0, 0, 128)[F4M]))
    s("s_lshl_b32 s68, s68, 1\ns_lshl_b32 s66, s%d, 17\ns_add_u32 s68, s68, s66\nv_bfe_u32 v12, v0, 2, 1\nv_lshlrev_b32 v12, 3, v12\nv_lshl_add_u32 v12, v49, 4, v12\nv_bfe_u32 v43, v0, 3, 1\nv_add_u32 v12, v12, v43\nv_lshl_add_u32 v12, v12, 11, s68\nv_lshl_add_u32 v12, v51, 4, v12" % sB)
    s("s_lshr_b32 s66, s%d, 1\ns_lshl_b32 s66, s66, 16\ns_and_b32 s71, s%d, 1\ns_lshl_b32 s71, s71, 12\ns_add_u32 s71, s71, s66\ns_add_u32 s71, s71, 57344" % (sW, sW))
    r0 = sc.stream(s.units(), 0, 3)
    assert r0[-1] < res[i_c0]
    s.at(res[i_c1] + 1)
    s("v_subrev_u32 v40, %d, v%d\nv_accvgpr_write_b32 a%d, v40" % (B_BASE, vBA0, PK["CA"]))
    s("s_mul_i32 s69, s%d, %d\ns_add_u32 s69, s69, %d" % (sW, EPW, EP_LDS + 2048))
    s("v_and_b32 v41, 1, v49\nv_xor_b32 v41, v41, v51\nv_lshlrev_b32 v40, 5, v11\nv_lshl_add_u32 v40, v41, 3, v40\nv_add_u32 v40, s69, v40\nv_accvgpr_write_b32 a%d, v40" % PK["TRR"])
    s("v_lshrrev_b32 v40, 1, v48\nv_xor_b32 v40, v40, v48\nv_and_b32 v40, 4, v40\nv_mul_u32_u24 v40, 3, v40\nv_xor_b32 v40, v40, v48\nv_lshrrev_b32 v41, 2, v40\nv_xor_b32 v41, v41, v49\nv_lshlrev_b32 v40, 5, v40\nv_lshl_add_u32 v40, v41, 3, v40\nv_add_u32 v40, s69, v40\nv_accvgpr_write_b32 a%d, v40" % PK["TRW"])
    s("v_lshrrev_b32 v40, 2, v0\nv_and_b32 v41, 7, v40\nv_lshlrev_b32 v41, 5, v41\nv_lshl_add_u32 v41, v40, 8, v41\nv_lshl_add_u32 v41, v51, 3, v41\nv_accvgpr_write_b32 a%d, v41" % PK["TA"])
    s("s_lshl_b32 s68, s%d, 2\nv_add_u32 v40, s68, v49\nv_and_b32 v41, 7, v40\nv_bfe_u32 v51, v0, 1, 3\nv_xor_b32 v41, v41, v51\ns_lshl_b32 s66, s%d, 1\nv_xor_b32 v41, s66, v41\nv_lshlrev_b32 v41, 5, v41" % (sW, sQ))
    s("v_and_b32 v51, 1, v0\nv_lshl_add_u32 v41, v51, 4, v41\ns_mul_i32 s67, s%d, 896\nv_add_u32 v40, s67, v40\nv_lshl_add_u32 v40, v40, 11, v41\ns_lshl_b32 s67, s%d, 8\nv_add_u32 v40, s67, v40\nv_accvgpr_write_b32 a%d, v40" % (sQ, sTN, PK["D"]))
    s("s_lshl_b32 s68, s%d, 18\ns_lshl_b32 s66, s%d, 9\ns_add_u32 s68, s68, s66\nv_add_u32 v40, s68, v47\nv_accvgpr_write_b32 a%d, v40" % (sTN, sQ, PK["C"]))
    s("v_lshlrev_b32 v40, 4, v50\nv_lshl_add_u32 v40, v51, 3, v40\nv_bfe_u32 v41, v48, 1, 1\ns_lshl_b32 s68, s%d, 6\nv_add3_u32 v40, v40, v41, s68\nv_accvgpr_write_b32 a%d, v40" % (sB, PK["TOK"]))
    s("s_sub_u32 s68, 32, s%d\ns_lshl_b32 s68, s68, 13\ns_lshl_b32 s66, s%d, 8\ns_add_u32 s68, s68, s66\nv_lshl_add_u32 v40, v48, 4, s68\nv_lshl_add_u32 v40, v49, 16, v40\nv_accvgpr_write_b32 a%d, v40" % (sB, sJ, PK["AG"]))
    f_ = 2 if AS & 2 else 1
    ld, lc = 112 // NPB * f_, 64 // NPB * f_
    s("s_lshr_b32 s67, s2, %d\ns_lshl_b32 s68, s67, 1\ns_and_b32 s66, s%d, 1\ns_add_u32 s68, s68, s66\ns_mul_i32 s68, s68, %d\ns_mul_i32 s66, s67, %d" % (f_ - 1, sW, ld * 128, lc * 128))
    ge2 = "s_cmp_ge_u32 s%d, 2" % sW
    s.atom([ge2, "s_cselect_b32 s68, s66, s68", "s_cselect_b32 s66, %d, %d" % (lc - 1, ld - 1)])
    s("v_min_u32 v40, s66, v0\nv_lshl_add_u32 v%d, v40, 7, s68" % vPB)
    s.atom(["s_bitcmp1_b32 s%d, 0" % sW, "s_cselect_b32 s68, s90, s88", "s_cselect_b32 s66, s91, s89"])
    s.atom([ge2, "s_cselect_b32 s44, s68, s84", "s_cselect_b32 s45, s66, s85"])
    s("s_mov_b32 s67, %d\ns_mov_b32 s68, %d" % (3584 * 2048, 512 * ld * 128 // f_))
    s.atom([ge2, "s_cselect_b32 s46, %d, s67" % (1024 * 2048), "s_cselect_b32 s%d, %d, s68" % (sPBs, 256 * lc * 128 // f_)])
    s("s_and_b32 s45, s45, 0xffff\ns_mov_b32 s47, 0x20000\ns_mov_b32 s%d, 0" % sKPB)
    if AS & 2: s.atom(["s_getreg_b32 s67, hwreg(HW_REG_XCC_ID, 0, 1)", "s_cmp_eq_u32 s67, %d" % (0 if AS & 4 else 1), "s_cselect_b32 s%d, 0x40000000, 0" % sKPB])
    i_pbs = len(s.u) - 1
    s.at(res[i_c1] + 90)
    s.wait([("c", 2, 1)])
    def two(f):
        for T in range(2): s(f(T))
    for k in range(6): s("v_lshlrev_b32 v%d, 16, v%d" % (40 + k, 16 + k))
    two(lambda T: "v_mul_f32 v%d, %s, v%d" % (44 + T, fx(LOG2E), 44 + T)); two(lambda T: "v_exp_f32 v%d, v%d" % (44 + T, 44 + T))
    s("v_cvt_pk_bf16_f32 v45, v44, v45\nv_lshlrev_b32 v44, 16, v45\nv_and_b32 v45, 0xffff0000, v45")
    two(lambda T: "v_mul_f32 v%d, v%d, v%d\nv_mul_f32 v%d, v%d, v%d" % (24 + T, 44 + T, 40 + T, 26 + T, 44 + T, 42 + T))
    two(lambda T: "v_mul_f32 v%d, %s, v%d" % (24 + T, fx(LOG2E), 24 + T)); two(lambda T: "v_exp_f32 v%d, v%d" % (24 + T, 24 + T))
    two(lambda T: "v_mul_f32 v%d, 0.15915494, v%d\nv_rndne_f32 v%d, v%d\nv_sub_f32 v%d, v%d, v%d" % (26 + T, 26 + T, 52 + T, 26 + T, 26 + T, 26 + T, 52 + T))
    two(lambda T: "v_cos_f32 v%d, v%d\nv_sin_f32 v%d, v%d" % (52 + T, 26 + T, 54 + T, 26 + T))
    two(lambda T: "v_mul_f32 v%d, v%d, v%d\nv_mul_f32 v%d, v%d, v%d\nv_add_f32 v%d, -1.0, v%d" % (cL + T, 24 + T, 52 + T, 54 + T, 24 + T, 54 + T, 52 + T, cL + T))
    two(lambda T: "v_mul_f32 v%d, v%d, v%d\nv_fmac_f32 v%d, v%d, v%d\nv_rcp_f32 v%d, v%d" % (24 + T, 40 + T, 40 + T, 24 + T, 42 + T, 42 + T, 24 + T, 24 + T))
    two(lambda T: "v_mul_f32 v%d, v%d, v%d\nv_fmac_f32 v%d, v%d, v%d" % (26 + T, 52 + T, 40 + T, 26 + T, 54 + T, 42 + T))
    two(lambda T: "v_mul_f32 v%d, v%d, v%d\nv_fma_f32 v%d, -v%d, v%d, v%d" % (56 + T, 54 + T, 40 + T, 56 + T, 52 + T, 42 + T, 56 + T))
    two(lambda T: "v_add_f32 v%d, v%d, v%d\nv_mul_f32 v%d, v%d, v%d\nv_mul_f32 v%d, v%d, v%d\nv_sub_f32 v%d, 0, v%d" % (24 + T, 24 + T, 24 + T, cC + T, 26 + T, 24 + T, cC + 2 + T, 56 + T, 24 + T, cL + 2 + T, 54 + T))
    def sq(d, x):
        two(lambda T: "v_mul_f32 v%d, v%d, v%d\nv_mul_f32 v%d, v%d, v%d\nv_fma_f32 v%d, v%d, v%d, -v%d\nv_add_f32 v%d, v%d, v%d" % (52 + T, x + 2 + T, x + 2 + T, 54 + T, x + T, x + 2 + T, d + T, x + T, x + T, 52 + T, d + 2 + T, 54 + T, 54 + T))
    sq(cL8, cL); sq(cL8, cL8); sq(cL8, cL8); sq(cL16, cL8); sq(cL64, cL16); sq(cL64, cL64); sq(cL512, cL64); sq(cL512, cL512); sq(cL512, cL512)
    aBS = 160
    s.at(res[i_p1c] + 2)
    s("v_lshlrev_b32 v11, 6, v48\nv_lshl_add_u32 v11, v49, 3, v11\nv_add_u32 v11, s71, v11\nv_and_b32 v50, 0xf0, v1\ns_lshl_b32 s66, s%d, 10\ns_add_u32 s66, s66, 0x%x" % (sB, SM_ST))
    s.wait([("dk", 1)])
    for k in range(4): s("v_accvgpr_read_b32 v%d, a%d" % (40 + k, 248 + k))
    for m in range(4):
        s.at(res[i_e[m]] + 2)
        s.vm("buffer_load_dwordx2 v[44:45], v50, s[36:39], s66 offen offset:%d %s" % (256 * m, HL), ("St", m))
        s.delay(cfg.get("e_lat", 100))
        s.wait([("St", m), ("E", m)])
        for u in range(2): s.lg("ds_read_b64 %s, v11 offset:%d" % (P(52 + 2 * u), 1024 * m + 32 * u), ("er", m, u))
        s.delay(10)
        s.wait([("er", m, 1)])
        for u in range(2):
            def unp(d, x):
                for h in range(2): s("v_lshlrev_b32 v%d, 16, v%d\nv_and_b32 v%d, 0xffff0000, v%d" % (d + 2 * h, x + h, d + 2 * h + 1, x + h))
            def rnd():
                for h in range(2): s("v_cvt_pk_bf16_f32 v%d, v%d, v%d" % (48 + h, 60 + 2 * h, 61 + 2 * h))
                unp(60, 48)
            unp(56, 52 + 2 * u)
            for k in range(4): s("v_sub_f32 v%d, v%d, v44" % (60 + k, 56 + k))
            rnd()
            for k in range(4): s("v_mul_f32 v%d, v%d, v45" % (60 + k, 60 + k))
            rnd()
            for h in range(2):
                s("v_lshlrev_b32 v46, 16, v%d\nv_and_b32 v47, 0xffff0000, v%d\nv_mul_f32 v%d, v%d, v46\nv_mul_f32 v%d, v%d, v47" % (40 + 2 * u + h, 40 + 2 * u + h, 60 + 2 * h, 60 + 2 * h, 61 + 2 * h, 61 + 2 * h))
            rnd()
            for k in range(4): s("v_add_f32 v%d, v%d, v%d" % (56 + k, 56 + k, 60 + k))
            for k in range(4): s("v_accvgpr_write_b32 a%d, v%d" % (aBS + 16 * u + 4 * m + k, 56 + k))
    rb = sc.stream(s.units(), 0, 3, vmspace=2)
    if cfg.get("verbose"): print("shadow end", rb[-1])
    assert rb[-1] < res[i_x26] and rb[-1] < bar[13] and rb[i_pbs] < cfg.get("pfb_first", 646)
    vEW, vER, vTG, vAG, vTRW, vTRR, vCP, vH8, vD1, vPAd, vPD, vD0 = 2, 3, 4, 5, 6, 7, 8, 10, 11, 12, 13, 14
    sM, sKD, sKH = 54, 55, 56
    c1 = -2.0 * math.sqrt(2.0 / math.pi) * LOG2E
    CC = 46
    s("v_accvgpr_read_b32 v%d, a%d\nv_lshlrev_b32 v%d, 3, v0\nv_add_u32 v%d, 32768, v%d" % (vD0, PK["D"], vH8, vD1, vD0))
    if FBW: s("v_and_b32 v43, 31, v0\nv_lshlrev_b32 v43, 11, v43\ns_lshr_b32 s71, s%d, 2\ns_lshl_b32 s71, s71, 6\ns_lshl_b32 s65, s%d, 9\ns_add_u32 s71, s71, s65\ns_add_u32 s71, s71, 0x%x" % (sJ, sQ, SM_F1))
    else: s("v_and_b32 v43, 31, v0\nv_lshlrev_b32 v43, 7, v43\ns_lshl_b32 s71, s%d, 2\ns_add_u32 s71, s71, 0x%x" % (sJ, SM_F1B))
    s("s_mul_i32 s65, s%d, 176\ns_mul_i32 s66, s%d, 44\ns_add_u32 s65, s65, s66\ns_lshl_b32 s65, s65, 12\ns_add_u32 s65, s65, 0x%x" % (sB, sQ, WS_H))
    s.atom(["s_add_u32 s32, s6, s65", "s_addc_u32 s33, s7, 0"])
    s("s_and_b32 s33, s33, 0xffff\ns_mov_b32 s34, 0x%x\ns_mov_b32 s35, 0x20000" % (44 * 4096))
    srd(s, 12, 84, 85, 3584 * 2048); srd(s, 16, 88, 89, 1024 * 2048); srd(s, 20, 90, 91, 1024 * 2048)
    s("s_lshl_b32 s%d, s%d, 10" % (sM, sW))
    s("v_mov_b32 v46, %s\nv_mov_b32 v47, %s" % (fx(c1), fx(c1 * 0.044715)))
    ROT = cfg.get("rot", 2)
    sTQ = [96, 97, 98, 99, 48, 49, 50, 51]; sTS = [76, 77, 78, 80]; sJ12, sG7 = 44, 45
    s("s_and_b32 s67, s%d, 3\ns_lshl_b32 s67, s67, 1" % sI)
    for k in range(8):
        if k == 0: s("s_mov_b32 s65, s%d" % sTN)
        elif ROT == 2: s.atom(["s_cmp_le_u32 s%d, %d" % (sTN, k - 1), "s_cselect_b32 s65, %d, %d" % (k, k - 1)])
        elif ROT: s("s_add_u32 s65, s67, %d\ns_sub_u32 s66, s65, 7\ns_min_u32 s65, s65, s66\ns_add_u32 s65, s65, 1\ns_xor_b32 s65, s65, s%d" % (k - 1, sTN))
        else: s("s_xor_b32 s65, s%d, %d" % (sTN, k))
        s("s_mul_i32 s65, s65, 7\ns_add_u32 s65, s65, 1\ns_lshr_b32 s65, s65, 1\ns_lshl_b32 s%d, s65, 12" % sTQ[k])
    s("s_lshr_b32 s67, s%d, 1" % sTN)
    sGp = [24, 25, 26, 27]; sPar = 45
    for p in range(4):
        if ROT == 2:
            s("s_mov_b32 s%d, %d" % (sTS[p], (7 * p + 3) * 4096))
            if p == 0: s("s_lshl_b32 s%d, s67, 13" % sGp[0])
            else:
                s.atom(["s_cmp_le_u32 s67, %d" % (p - 1), "s_cselect_b32 s65, %d, %d" % (p, p - 1)]); s("s_lshl_b32 s%d, s65, 13" % sGp[p])
        else: s("s_xor_b32 s65, s67, %d\ns_lshl_b32 s%d, s65, 13\ns_mul_i32 s65, s65, %d\ns_add_u32 s%d, s65, %d" % (p, sGp[p], 7 * 4096, sTS[p], 3 * 4096))
    s("s_lshl_b32 s%d, s%d, 12\ns_and_b32 s69, s%d, 1\ns_lshl_b32 s%d, s69, 12" % (sJ12, sTN, sTN, sPar))
    s("s_mul_i32 s67, s67, %d\ns_lshl_b32 s69, s69, 9\ns_add_u32 s67, s67, s69\ns_add_u32 s67, s67, %d" % (7 * 4096, 3 * 4096))
    s("s_add_u32 s72, s%d, %d\ns_add_u32 s73, s%d, %d\ns_mov_b32 s66, s%d" % (sJ12, 28 * 4096, sJ12, 36 * 4096, sTQ[0]))
    s("s_lshl_b32 s68, s%d, 2\ns_add_u32 s68, s68, s%d\ns_lshl_b32 s68, s68, %d\ns_add_u32 s68, s68, 0x%x" % (sB, sQ, (7, 9, 11)[F3M], SM_F3))
    s("s_lshl_b32 s81, s%d, %d\ns_add_u32 s81, s81, s68\nv_and_b32 v%d, 7, v0\nv_lshlrev_b32 v%d, %d, v%d" % (sTN, (2, 2, 6)[F3M], vPAd, vPAd, (2, 2, 6)[F3M], vPAd))
    s("s_sub_u32 s64, 31, s%d\ns_lshl_b32 s64, s64, 13\ns_lshl_b32 s65, s%d, 8\ns_add_u32 s64, s64, s65" % (sB, sJ))
    s("s_mul_i32 s46, s%d, %d\ns_add_u32 s46, s46, %d" % (sW, EPW, EP_LDS))
    if TRP >= 0 and cfg.get("tr2", 1) and cfg.get("tr2pf", 1):
        s.atom(["s_getpc_b64 s[82:83]", "L_pc2:"])
        s("v_lshrrev_b32 v40, 3, v0\nv_lshlrev_b32 v40, 12, v40\nv_and_b32 v41, 7, v0\nv_lshl_add_u32 v40, v41, 7, v40\nv_add_u32 v40, L_main-L_pc2+%d, v40" % (4096 * cfg.get("tr_n", 14)))
        s("v_min_u32 v40, L_codeend-L_pc2-4, v40\nv_mov_b32 v41, 0\nv_lshl_add_u64 v[40:41], v[40:41], 0, s[82:83]")
        s.vm("global_load_dword a246, v[40:41], off")
        if cfg.get("cpe", 0):
            n_ = 16 * cfg.get("cpe", 0)
            s("s_mul_i32 s65, s%d, %d\ns_add_u32 s65, s65, L_epi-L_pc2+%d\nv_min_u32 v40, %d, v0\nv_lshl_add_u32 v40, v40, 7, s65\nv_mov_b32 v41, 0\nv_lshl_add_u64 v[40:41], v[40:41], 0, s[82:83]" % (sW, n_ * 128, cfg.get("cpe_off", -2048), n_ - 1))
            s.vm("global_load_dword a246, v[40:41], off")
    f1bload = "buffer_load_dword v44, v43, s[36:39], s71 offen %s" % SC
    s.vm(f1bload, "f1b")
    steps = [("g", 0, 2), ("g", 0, 0), ("g", 0, 1)]
    NA0 = cfg.get("na0", 2)
    steps += [("g", k, 0) for k in range(1, NA0 + 1)]
    UA = len(steps)
    steps += [("g", k, 1) for k in range(1, NA0 + 1)]
    for k in range(NA0 + 1, 8): steps += [("g", k, 0), ("g", k, 1)]
    UB = len(steps)
    for k in range(1, 8): steps += [("g", k, 2)] + ([("s", k // 2, 0)] if k % 2 else [])
    assert len(steps) == 28
    cst = [("r", 0), ("i", 0), ("r", 1), ("r", 2), ("r", 3), ("i", 1), ("i", 2), ("i", 3)]
    steps += [("c", 14, 0), ("c", 15, 0), ("c", 14, 1), ("c", 15, 1)]
    for st in range(16, 22): steps += [("c", st, 0), ("c", st, 1)]
    own = {0, 1, 2, 28, 29}; UC = 30
    NST = 22; KC = cfg.get("kc", 8)
    slot = {st: st % 8 for st in range(22)}; prevocc = {st: (st - 8 if st >= 8 else None) for st in range(22)}
    aW2 = 0; aAG = 32
    vC, vCA = 16, 20
    def dma2(s, st, k, early=None, vC=vC):
        if st < 14:
            kind, x, p = steps[2 * st + k // 2]
            if k % 2 == 0:
                if kind == "g" and p: s("s_add_u32 s%d, s%d, %d\ns_lshl_b32 s%d, s%d, 4" % (sKD, sTQ[x], p * 4096, sKD, sKD))
                else: s("s_lshl_b32 s%d, s%d, 4" % (sKD, (sTQ if kind == "g" else sTS)[x]))
            v, sr = (vD0, vD1)[k % 2], 12
        else:
            part, p = cst[st - 14]
            if k == 0: s("s_lshr_b32 s%d, s%d, 6" % (sKD, sGp[p]))
            v, sr = vC + k, (16 if part == "r" else 20)
        s("s_add_u32 m0, s%d, %d" % (sM, slot[st] * 16384 + k * 4096))
        s.op(Op("buffer_load_dwordx4 v%d, s[%d:%d], s%d offen lds" % (v, sr, sr + 3, sKD), "vm", K(("D2", st, k))), early)
    NPRE = 4
    r = sc.stream(s.units(), res[-1] + 2, 3)
    gS = r[-1]
    L2P = cfg.get("l2p", 0)
    if L2P:
        s("s_lshr_b32 s65, s2, 3\ns_lshl_b32 s65, s65, 2\ns_add_u32 s65, s65, s%d" % sW)
        s("s_mul_i32 s69, s65, %d\ns_mul_i32 s70, s%d, %d\ns_add_u32 s69, s69, s70\nv_min_u32 v40, 55, v0\nv_lshl_add_u32 v40, v40, 7, s69\ns_mov_b32 s70, %d" % (56 * 128, sQ, 896 * 2048, 448 * 2048))
        s.vm("buffer_load_dword a246, v40, s[12:15], 0 offen"); s.delay(cfg.get("l2p_sp", 40))
        s.vm("buffer_load_dword a246, v40, s[12:15], s70 offen"); s.delay(cfg.get("l2p_sp", 40))
        if L2P >= 2:
            s("s_lshl_b32 s69, s65, 14\ns_lshl_b32 s70, s%d, 9\ns_add_u32 s69, s69, s70\nv_bfe_u32 v40, v0, 2, 3\nv_lshl_add_u32 v40, v40, 11, s69\nv_and_b32 v41, 3, v0\nv_lshl_add_u32 v40, v41, 7, v40" % sQ)
    s.at(max(bar[13] + 1, cfg.get("pre_at", 0 if KT else 2170)))
    for st in range(NPRE):
        for k in range(4): dma2(s, st, k)
    if L2P >= 2:
        s.vm("buffer_load_dword a246, v40, s[16:19], 0 offen")
        if L2P >= 3: s.delay(20); s.vm("buffer_load_dword a246, v40, s[20:23], 0 offen")
    r = sc.stream(s.units(), gS + 1, 2, vmspace=cfg.get("pre_sp", 5))
    hst = cfg.get("hst", SC)
    aK0 = xalloc[27][1] if KT else 96; aK1 = 112 if aK0 != 112 else 96
    left = []; msh = 0
    if KT:
        msh = cfg.get("msh", 4)
        for m in range(msh):
            gs = [128 + 4 * m + e for e in range(4)] + [160 + 4 * m + e for e in range(4)]
            o = (56, 60)[m % 2]
            for k, g in enumerate(gs): s("v_mul_f32 v%d, v%d, v%d" % (48 + k, g, g))
            for k, g in enumerate(gs): s("v_fma_f32 v%d, v%d, v47, v46" % (48 + k, 48 + k))
            for k, g in enumerate(gs): s("v_mul_f32 v%d, v%d, v%d" % (48 + k, 48 + k, g))
            for k, g in enumerate(gs): s("v_exp_f32 v%d, v%d" % (48 + k, 48 + k))
            for k, g in enumerate(gs): s("v_mul_f32 v%d, v%d, v%d" % (g + 16, g, g + 16))
            for k, g in enumerate(gs): s("v_add_f32 v%d, 1.0, v%d" % (48 + k, 48 + k))
            for k, g in enumerate(gs): s("v_rcp_f32 v%d, v%d" % (48 + k, 48 + k))
            for k, g in enumerate(gs): s("v_mul_f32 v%d, v%d, v%d" % (g + 16, g + 16, 48 + k))
            for k in range(4): s("v_cvt_pk_bf16_f32 v%d, v%d, v%d" % (o + k, gs[2 * k] + 16, gs[2 * k] + 17))
            s.vm("buffer_store_dwordx4 %s, v1, s[32:35], s66 offen offset:%d %s" % (Q(o), 1024 * m, hst), ("hs", 0, m))
            for k in range(4): s("v_accvgpr_write_b32 a%d, v%d" % (aK0 + 4 * m + k, o + k))
        un = s.units()
        r = sc.stream(un, max(gS + 1, 4 * (28 * 18 + 16) + 2), 3, vmspace=2, overflow=True)
        left = un[len(r):]
        if cfg.get("verbose"): print("setup end", gS, "shadow gelu placed", len(r), "left", len(left))
    if cfg.get("abl"):
        for g in range(720, 1850):
            for it in sc.g[g]:
                o = it[2]; tx = o.text or ""
                if ("T" in cfg["abl"] and tx.startswith("ds_read_b64_tr")) or ("B" in cfg["abl"] and tx.startswith("ds_read_b128")) or \
                   ("X" in cfg["abl"] and tx.startswith("buffer_load_dwordx4") and "s[8:11]" in tx) or ("D" in cfg["abl"] and tx.endswith(" lds")) or \
                   ("P" in cfg["abl"] and tx.startswith("buffer_load_dword a246")) or ("V" in cfg["abl"] and tx.startswith("v_") and it[0] == 3): o.text = ""
    if cfg.get("stall"):
        for G in range(1, NG):
            if G % cfg["stall"] == 0 and len(sc.classes(4 * G - 1)) == 3: sc.put(4 * G - 1, [Op("s_nop 0")], 9)
    prog.add(sc.ops())
    vTA = 40
    s.atom(["L_epi:"])
    s("s_barrier")
    stamp(s, "end1")
    s.u += left
    KD = [int(c, 36) for c in str(cfg.get("kd", "g0a8"))]
    CH2 = cfg.get("ch2", 1); nochain = [int(c) for c in str(cfg.get("ch2_skip", "1"))]
    assert all(k % 2 == 0 for k in KD)
    def sg2(st, ul):
        if CH2 and st not in nochain: return [(2 * st + kk, u) for u in ul for kk in range(2)]
        return [(2 * st + kk, u) for kk in range(2) for u in ul]
    groups = []
    for st in range(22): groups += sg2(st, [u for u in (range(8) if st < 14 else (2, 3, 4, 5, 6, 7, 0, 1)) if 2 * st < 44 - KD[u // 2]])
    pend_ = {}
    for d in (1, 2, 3, 0):
        if str(d) in str(cfg.get("tm", "023")):
            for u in (2 * d, 2 * d + 1):
                for st in range(22 - KD[d] // 2, 22): groups += sg2(st, (u,))
        else:
            for st in range(22 - KD[d] // 2, 22): groups += sg2(st, (2 * d, 2 * d + 1))
    for G, (uu, u) in enumerate(groups): pend_[u] = G
    assert len(groups) == 352 and max(KD) <= 16
    NG = len(groups)
    mo, head, tail = order_mfma(groups)
    lastuse = {}; firstuse = {}
    for G, (uu, u) in enumerate(groups): firstuse.setdefault(uu, head(G)); lastuse[uu] = tail(G)
    hreg = {0: ("v", 48), 1: ("a", aK0), 2: ("a", aK1), 28: ("a", 32), 29: ("a", 48)}; hfree = {}
    pool = [(-1, ("a", r)) for r in [96, 112, 128, 144, 192, 208, 224, 160, 176, 64, 80] if r not in (aK0, aK1)] + [(4 * lastuse[u] + 3, hreg[u]) for u in (1, 2, 28, 29)]
    VFREE = cfg.get("vfree", 700)
    pool += [(VFREE, ("v", r)) for r in (64, 80, 96, 112)[:cfg.get("nvs", 4)]]
    for u in range(44):
        if u in own: continue
        pool.sort(key=lambda x: x[0]); e, r = pool.pop(0)
        hreg[u] = r; hfree[u] = e; pool.append((4 * lastuse[u] + 3, r))
    def hload(s, u, m, early=None):
        kind, x, p = steps[u]
        if m == 0:
            if kind == "g": s("s_add_u32 s%d, s%d, %d" % (sKH, sTQ[x], p * 4096))
            elif kind == "s": s("s_mov_b32 s%d, s%d" % (sKH, sTS[x]))
            else:
                part, pp = cst[x - 14]
                s("s_xor_b32 s%d, s%d, %d\ns_add_u32 s%d, s%d, s%d" % (sKH, sPar, ((28 if part == "r" else 36) + p) * 4096, sKH, sKH, sGp[pp]))
        hk, d = hreg[u]; d += 4 * m
        if kind == "s":
            s.op(Op("buffer_load_dwordx2 %s, v%d, s[32:35], s%d offen offset:%d %s" % (R(hk, d, 2), vH8, sKH, 1024 * m, HL), "vm"), early)
            s.op(Op("buffer_load_dwordx2 %s, v%d, s[32:35], s%d offen offset:%d %s" % (R(hk, d + 2, 2), vH8, sKH, 1024 * m + 512, HL), "vm", K(("H", u, m))))
        else: s.op(Op("buffer_load_dwordx4 %s, v1, s[32:35], s%d offen offset:%d %s" % (R(hk, d, 4), sKH, 1024 * m, HL), "vm", K(("H", u, m))), early)
    def gelu_pair(base0, base1, pid, T, OUT, keep=None, hook=None, m0=0):
        for m in range(m0, 4):
            o = OUT[m % len(OUT)]
            items = [(base0 + 4 * m, base0 + 16 + 4 * m, o), (base0 + 4 * m + 2, base0 + 18 + 4 * m, o + 1),
                     (base1 + 4 * m, base1 + 16 + 4 * m, o + 2), (base1 + 4 * m + 2, base1 + 18 + 4 * m, o + 3)]
            gelu_block(s, items, CC, T)
            s.vm("buffer_store_dwordx4 %s, v1, s[32:35], s66 offen offset:%d %s" % (Q(o), 1024 * m, hst), ("hs", pid, m))
            if keep is not None:
                for r in range(4): s("v_accvgpr_write_b32 a%d, v%d" % (keep + 4 * m + r, o + r))
            if hook: hook(m)
        s("s_add_u32 s66, s66, 4096")
    NPRE2 = cfg.get("npre2", 8)
    cpre = [(st, k) for st in range(NPRE, NPRE2) for k in range(4)]
    def cdma(n):
        for _ in range(n):
            if cpre: st, k = cpre.pop(0); dma2(s, st, k)
    fstore = lambda off: "buffer_store_dword%s, v1, s[36:39], s81 offen offset:%d %s" % (("x4 " + Q(vTG)) if F3M == 2 else (" v%d" % vTG), off * (1, 4, 16)[F3M], SC)
    fload = lambda off: "buffer_load_dword v%d, v%d, s[36:39], s68 offen offset:%d %s" % (vPD, vPAd, off * (1, 4, 16)[F3M], SC)
    s("v_mov_b32 v%d, s%d" % (vTG, sTAG))
    npg = cfg.get("cpre_g", 1)
    cdma(cfg.get("cpre_0", 4))
    gelu_pair(128, 160, 0, 48, [56, 60], aK0, lambda m: cdma(npg), m0=msh)
    def hook1(m):
        cdma(npg)
        if m == cfg.get("fa0_m", 1): flag(s, fstore(96), [("hs", 0, 3)])
    gelu_pair(192, 224, 1, 48, [56, 60], aK1, hook1)
    stamp(s, "p01")
    def pkfma(d, s0, s1, s2, T, neg=False):
        s("v_pk_fma_f32 %s, %s, %s, %s op_sel:[%d,0,0] op_sel_hi:[%d,1,1]%s" % (P(d), P(s0), P(s1), P(s2), T, T, " neg_lo:[1,0,0] neg_hi:[1,0,0]" if neg else ""))
    def pkmul(d, s0, s1, T, neg=False):
        s("v_pk_mul_f32 %s, %s, %s op_sel:[%d,0] op_sel_hi:[%d,1]%s" % (P(d), P(s0), P(s1), T, T, " neg_lo:[1,0] neg_hi:[1,0]" if neg else ""))
    BR = lambda T, x: 64 + 16 * T + 2 * x
    BI = lambda T, x: 96 + 16 * T + 2 * x
    for x in range(8):
        for T in range(2):
            pkmul(128 + 2 * T, cC + 2, BI(T, x), T, True); pkmul(BI(T, x), cC, BI(T, x), T, True)
        for T in range(2):
            pkfma(BI(T, x), cC + 2, BR(T, x), BI(T, x), T, True); pkfma(BR(T, x), cC, BR(T, x), 128 + 2 * T, T)
    sr = [BR(0, 0), BR(1, 0)]; si = [BI(0, 0), BI(1, 0)]
    bufs = [[132, 134], [138, 140]]; SI = [136, 142]
    for x in range(1, 8):
        nr = [bufs[T][x % 2] for T in range(2)]
        for T in range(2): pkfma(nr[T], cL, sr[T], BR(T, x), T)
        for T in range(2): pkfma(nr[T], cL + 2, si[T], nr[T], T, True)
        for T in range(2): pkfma(SI[T], cL, si[T], BI(T, x), T)
        for T in range(2): pkfma(SI[T], cL + 2, sr[T], SI[T], T)
        sr = nr; si = list(SI)
        if x % 2: cdma(1)
    EA = 20
    for T in range(2):
        s("v_mov_b32 v%d, v%d\nv_mov_b32 v%d, v%d\nv_mov_b32 v%d, v%d\nv_mov_b32 v%d, v%d" % (EA + T, sr[T], EA + 2 + T, si[T], 144 + T, sr[T] + 1, 146 + T, si[T] + 1))
    horner_pk(s, EA, cL8, 144, 144)
    s("v_add_u32 v%d, s46, v1\nv_and_b32 v%d, 0xf0, v1\nv_add_u32 v%d, s46, v%d" % (vEW, vER, vER, vER))
    s.lg("ds_write_b128 v%d, v[144:147]" % vEW)
    for g in range(4): s.lg("ds_read_b128 %s, v%d offset:%d" % (Q(148 + 4 * g), vER, 256 * g), ("e", g))
    HPN = cfg.get("hpn", 0)
    if HPN: s.vm(fload(96), "f3a0")
    for r in range(32):
        s("v_accvgpr_read_b32 v%d, a%d" % (192 + r, r))
        if r % 16 == 15: cdma(1)
    flag(s, fstore(0), [("hs", 1, 3)])
    for g in range(1, 4):
        s.wait([("e", g)]); horner_pk(s, 148 + 4 * (g - 1), cL16, 148 + 4 * g, 148 + 4 * g)
    for r in range(160, 164): s("v_min_u32 v%d, -2, v%d" % (r, r))
    s.atom(["s_mov_b64 exec, 0xffff", Op("buffer_store_dwordx4 v[160:163], v1, s[36:39], s64 offen %s" % SC, "vm"), "s_mov_b64 exec, -1"])
    stamp(s, "pub")
    poll(s, "P1b", f1bload, 44, "f1b")
    for r in range(32, 64):
        s("v_accvgpr_read_b32 v%d, a%d" % (192 + r, r))
        if r % 16 == 15: cdma(1)
    cdma(16)
    for r in range(32): s("v_accvgpr_read_b32 v%d, a%d" % (128 + r, aBS + r))
    hq = [(u, m) for u in range(3, UA) for m in range(4)][:HPN]; nh_pre = [3 + HPN // 4]
    assert HPN % 4 == 0
    def issue_h(n):
        for _ in range(n):
            if hq: hload(s, *hq.pop(0))
    hpb = cfg.get("hpb", 3)
    def hookA(m): issue_h(hpb)
    def tramp2():
        s("s_mov_b64 exec, 0")
        for w in range(1, 4): s("s_cmp_eq_u32 s%d, %d\ns_cbranch_scc1 L_trB%d" % (sW, w, w))
        s("s_branch L_trB0")
        s.atom(["L_trret2:"])
        s("s_mov_b64 exec, -1")
    if TRP >= 0 and cfg.get("tr2", 1): tramp2()
    if HPN:
        poll(s, "P3a0", fload(96), vPD, "f3a0"); stamp(s, "ok3a"); issue_h(hpb)
    gelu_pair(192, 224, 2, 168, [48, 52, 56, 60], None, hookA)
    for r in range(32): s("v_accvgpr_read_b32 v%d, a%d" % (192 + r, 64 + r))
    issue_h(hpb)
    for mp in range(2):
        o = 240 + 4 * mp; items = []
        for mm in range(2):
            m = 2 * mp + mm
            items += [(192 + 4 * m, 208 + 4 * m, o + 2 * mm), (194 + 4 * m, 210 + 4 * m, o + 2 * mm + 1)]
        gelu_block(s, items, CC, 168)
        if mp == 0:
            s("v_accvgpr_read_b32 v%d, a%d" % (vTA, PK["TA"]))
            for u in range(1, 6): s("v_xor_b32 v%d, %d, v%d" % (vTA + u, 32 * u, vTA))
        issue_h(hpb if mp == 0 else 99)
        if mp == 1 and not HPN: s.vm(fload(96), "f3a0")
        for mm in range(2):
            s.vm("buffer_store_dwordx2 %s, v%d, s[32:35], s67 offen offset:%d %s" % (P(o + 2 * mm), vH8, 1024 * (2 * mp + mm), hst), ("hsS", 2 * mp + mm))
        if mp == 0:
            s.wait([("D2", st, k) for st in range(cfg.get("bar2", 2)) for k in range(4)])
            s("s_barrier")
            pre_reads_at = len(s.u)
    for u in range(6, 8): s("v_xor_b32 v%d, %d, v%d" % (vTA + u, 32 * u, vTA))
    L2 = cfg.get("l2_lead", 4); B2 = cfg.get("bar2", 2)
    def read2(G, part):
        uu, u = groups[G]; f = G % NWB
        if uu < 28:
            st, kk = divmod(uu, 2)
            return Op("ds_read_b64_tr_b16 %s, v%d offset:%d" % (R("a", aW2 + 4 * f + 2 * part, 2), vTA + u, (slot[st] % 4) * 16384 + kk * 8192 + part * 4096), "lg", K(("F2", G, part)))
        _, st, kk = steps[uu]
        return Op("ds_read_b128 %s, v%d offset:%d" % (R("a", aW2 + 4 * f, 4), vCA + 2 * (slot[st] >= 4) + kk, (slot[st] % 4) * 16384 + u * 2048), "lg", K(("F2", G, part)))
    parts = lambda G: [0, 1] if groups[G][0] < 28 else [None]
    mf = []
    for G, m in mo:
        uu, u = groups[G]
        mf.append(Op(mfma16(("v", 128 + 16 * u + 4 * m), ("a", aW2 + 4 * (G % NWB)), (hreg[uu][0], hreg[uu][1] + 4 * m), zero=(uu == 0 and u >= 2))))
    sc = Sch(mf)
    gneed = lambda G: [("F2", H, p) for H in range(G, tail(G) + 1) for p in parts(H)] + [("H", uu, m) for uu in range(44) if firstuse[uu] == G and uu not in own for m in range(4)]
    rgap = {}
    for G in range(NG):
        st, f = divmod(G, 16)
        if st < 14 and st % B2 == B2 - 1:
            if f <= 4: rgap[G] = 4 * (G - L2) - 1
            elif f == 5: rgap[G] = 4 * (G - 1 - L2) + 1
            elif f <= 10: rgap[G] = 4 * (G - 1 - L2) - 1
            elif f == 11: rgap[G] = 4 * (G - 2 - L2) + 1
            else: rgap[G] = 4 * (G - 2 - L2) - 1
        else: rgap[G] = 4 * (G - L2) - 1
        assert rgap[G] >= 4 * tail(G - NWB) + 3
    pr = Seq()
    for G in range(NG):
        if rgap[G] < 0:
            for p in parts(G): pr.op(read2(G, p))
    s.u[pre_reads_at:pre_reads_at] = pr.units()
    s.wait(gneed(0))
    stamp(s, "loop2")
    prog.add(s.done())
    for G in range(1, NG):
        w = Op("", needs=K(gneed(G)))
        w.keep = sum(len(parts(H)) for H in range(max(0, G - 2), min(NG, G + 10)) if rgap[H] == 4 * G - 1) == 2
        if w.keep or head(G) == G: sc.put(4 * G - 1, [w], 0)
    for G in range(NG):
        if rgap[G] >= 0:
            if rgap[G] % 4 != 3: sc.put(rgap[G], [Op("s_waitcnt lgkmcnt(15)")], 0)
            sc.put(rgap[G], [read2(G, p) for p in parts(G)], 1)
    bar = {}
    for st in range(14):
        if st % B2 != B2 - 1: continue
        bar[st] = 4 * (16 * (st + 1) - L2) - 2
        pub = list(range(st + 1, st + 1 + B2)) if st < 13 else [14, 15, 16, 17]
        sc.put(bar[st], [Op("s_barrier", needs=K([("D2", x, k) for x in pub for k in range(4)]), drain=["lg"])], 0)
    for st in (3, 7, 11):
        for i_, g_ in enumerate((1, 2, 4, 5)):
            sc.put(bar[st] - g_, [Op("v_xor_b32 v%d, 0x10000, v%d" % (vTA + 2 * i_ + k, vTA + 2 * i_ + k)) for k in range(2)], 2)
        assert max(rgap[G] for G in range(16 * st, 16 * st + 16)) < bar[st] - 5
    barF = min(rgap[G] for G in range(NG) if groups[G][0] >= 36) - 1
    sc.put(barF, [Op("s_barrier", needs=K([("D2", x, k) for x in range(18, 22) for k in range(4)]))], 0)
    def mark(o, nm): o.u[-1].append(nm)
    def after(o, nm, n): o.u.append([[Op("")], lambda mk: (mk[nm] + n) if nm in mk else None])
    def dly(o, n): o.u.append([[Op("")], lambda mk: mk["_prev"] + n])
    gl = []
    t = Seq()
    t("v_accvgpr_read_b32 v%d, a%d\nv_accvgpr_read_b32 v%d, a%d\nv_accvgpr_read_b32 v%d, a%d" % (vAG, PK["AG"], vTRW, PK["TRW"], vTRR, PK["TRR"]))
    t("s_mov_b32 s40, s36\ns_mov_b32 s41, s37\ns_mov_b32 s42, 0x40000\ns_mov_b32 s43, 0x20000")
    t("v_lshrrev_b32 v8, 4, v0\nv_cmp_eq_u32 s[64:65], 1, v8\nv_cmp_eq_u32 s[66:67], 2, v8\nv_cmp_eq_u32 s[74:75], 3, v8")
    t.at(cfg.get("ag_gap", 32))
    for x in range(7, -1, -1):
        t("s_mov_b32 s57, %d" % (8192 * x))
        g = "buffer_load_dwordx4 %s, v%d, s[40:43], s57 offen %s" % (R("a", aAG + 4 * x, 4), vAG, SC)
        gl.append("s_mov_b32 s57, %d\n%s" % (8192 * x, g))
        t.vm(g, ("ag", x))
        if x: dly(t, cfg.get("ag_sp", 8))
    mark(t, "ag")
    srd(t, 8, 86, 87, 2048 * 4096)
    flag(t, fstore(32), [("hsS", 3)], early=cfg.get("fb_gap", 80)); mark(t, "flagb")
    after(t, "ag", cfg.get("ag_lat", 20)); t.at(4 * lastuse[0] + 4)
    def ag_horner(o, w):
        cur = None
        for x in range(7, -1, -1):
            q = 48 + 4 * (x % 2)
            if w: o.wait([("ag", x)])
            for r in range(4): o("v_accvgpr_read_b32 v%d, a%d" % (q + r, aAG + 4 * x + r))
            if not w: o(("v_max3_u32 v56, v%d, v%d, v%d\nv_max_u32 v56, v56, v%d" % (q, q + 1, q + 2, q + 3)) if x == 7 else ("v_max3_u32 v56, v56, v%d, v%d\nv_max3_u32 v56, v56, v%d, v%d" % (q, q + 1, q + 2, q + 3)))
            if cur is not None: horner_sc(o, cur, cL64, q)
            cur = q
    ag_horner(t, True)
    t("v_cmp_u_f32 s[70:71], v48, v49")
    t.atom(["v_cmp_u_f32 vcc, v50, v51", "s_or_b64 vcc, vcc, s[70:71]", "s_cbranch_scc1 PAG_retry", "PAG_ok:"])
    ool("PAG_retry:")
    if cfg.get("rc"): RC.append("PAG"); ool("v_readlane_b32 s100, v15, %d\ns_nop 3\ns_add_u32 s100, s100, 100\nv_writelane_b32 v15, s100, %d" % (len(RC), len(RC)))
    ool("\n".join(gl) + "\ns_waitcnt vmcnt(0)")
    ag_horner(ool, False)
    ool("v_cmp_eq_u32 vcc, -1, v56\ns_and_b64 vcc, vcc, exec\ns_cbranch_scc0 PAG_ok\ns_cmp_eq_u32 s79, 0\ns_cbranch_scc1 PAG_ok\ns_sub_u32 s79, s79, 1\ns_sleep 1\ns_branch PAG_retry")
    t.lg("ds_write_b128 v%d, v[48:51] offset:1024" % vEW)
    for g, r in ((3, 52), (2, 56), (1, 60)): t.lg("ds_read_b128 %s, v%d offset:%d" % (Q(r), vER, 1024 + 256 * g), ("s", g))
    t.lg("ds_read_b128 %s, v%d offset:1024" % (Q(48), vER), ("s", 0))
    dly(t, 8)
    t.wait([("s", 2)]); horner_sc(t, 52, cL512, 56)
    t.lg("ds_read_b128 %s, v%d" % (Q(52), vER), ("e2", 0))
    t.wait([("s", 1)]); horner_sc(t, 56, cL512, 60)
    t.lg("ds_read_b128 %s, v%d offset:256" % (Q(56), vER), ("e2", 1))
    t.wait([("s", 0)]); horner_sc(t, 60, cL512, 48)
    t.lg("ds_read_b128 %s, v%d offset:512" % (Q(60), vER), ("e2", 2))
    t.wait([("e2", 0)]); horner_sc(t, 48, cL16, 52)
    t.wait([("e2", 1)]); horner_sc(t, 52, cL16, 56)
    t.wait([("e2", 2)]); horner_sc(t, 56, cL16, 60)
    for g, sm in ((52, 64), (56, 66), (60, 74)):
        for r in range(4): t("v_cndmask_b32 v%d, v%d, v%d, s[%d:%d]" % (48 + r, 48 + r, g + r, sm, sm + 1))
    horner_sc(t, 48, cL8, EA)
    t("v_xor_b32 v52, 16, v%d" % vTRR)
    st_r = {(T, h): (48, EA)[h] + T for T in range(2) for h in range(2)}
    st_i = {(T, h): (48, EA)[h] + 2 + T for T in range(2) for h in range(2)}
    TH = [(T, h) for T in range(2) for h in range(2)]
    xs = Seq()
    for x in range(8):
        for (T, h) in TH: t("v_fmac_f32 v%d, v%d, v%d" % (BR(T, x) + h, cL + T, st_r[T, h]))
        for (T, h) in TH: t("v_fmac_f32 v%d, v%d, v%d" % (BI(T, x) + h, cL + T, st_i[T, h]))
        for (T, h) in TH: t("v_fma_f32 v%d, -v%d, v%d, v%d" % (BR(T, x) + h, cL + 2 + T, st_i[T, h], BR(T, x) + h))
        for (T, h) in TH: t("v_fmac_f32 v%d, v%d, v%d" % (BI(T, x) + h, cL + 2 + T, st_r[T, h]))
        for (T, h) in TH: st_r[T, h] = BR(T, x) + h; st_i[T, h] = BI(T, x) + h
        if x % 2 == 1:
            m = x // 2; mo = (m % 2) * 2048
            for part, Fn in enumerate((BR, BI)):
                for T in range(2):
                    o = 56 + 4 * part + 2 * T
                    t("v_cvt_pk_bf16_f32 v%d, v%d, v%d\nv_cvt_pk_bf16_f32 v%d, v%d, v%d" % (o, Fn(T, x - 1), Fn(T, x - 1) + 1, o + 1, Fn(T, x), Fn(T, x) + 1))
                    t.lg("ds_write_b64 v%d, %s offset:%d" % (vTRW, P(o), mo + part * 1024 + 512 * T))
                t.atom(["s_waitcnt lgkmcnt(15)"] + [Op("ds_read_b64_tr_b16 %s, v%d offset:%d" % (R("a", aAG + 16 * part + 4 * m + 2 * half, 2), (vTRR, 52)[half], mo + part * 1024 + 256 * half), "lg", K(("tr", m, part, half))) for half in range(2)])
                mark(t, ("tr", m, part))
                after(xs, ("tr", m, part), 10)
                if (m, part) != (0, 0) and m < 3: after(xs, ("hl", m - 1 + part, 1 - part), cfg.get("hl_sp", 24))
                xs.vm("buffer_store_dwordx4 %s, v1, s[32:35], s%d offen offset:%d %s" % (R("a", aAG + 16 * part + 4 * m, 4), 72 + part, 1024 * m, hst), ("hl", m, part), needs=[("tr", m, part, 1)])
                mark(xs, ("hl", m, part))
    dly(xs, cfg.get("fc_lat", 60))
    flag(xs, fstore(64), [("hl", 3, 1)]); mark(xs, "flagc")
    t("v_accvgpr_read_b32 v48, a%d\nv_accvgpr_read_b32 v%d, a%d" % (PK["C"], vCA, PK["CA"]))
    for k in range(4): t("s_xor_b32 s65, s%d, %d\ns_lshl_b32 s65, s65, 16\nv_add_u32 v%d, s65, v48" % (sQ, k, vC + k))
    t("s_and_b32 s65, s%d, 1\ns_lshl_b32 s65, s65, 6\nv_xor_b32 v%d, s65, v%d" % (sTN, vCA, vCA))
    t("v_xor_b32 v%d, 64, v%d\nv_add_u32 v%d, 0x10000, v%d\nv_xor_b32 v%d, 64, v%d" % (vCA + 1, vCA, vCA + 2, vCA, vCA + 3, vCA + 2))
    vOO = 28
    t("v_accvgpr_read_b32 v24, a%d\nv_accvgpr_read_b32 v25, a%d\nv_lshlrev_b32 v25, 2, v25\nv_lshl_add_u32 v%d, v24, 12, v25" % (PK["TOK"], PK["COL"], vOO))
    mark(t, "cready")
    RB = lambda u, m: 128 + 16 * u + 4 * m
    after(t, "flagc", 1)
    t("s_lshl_b32 s65, s%d, 3\ns_add_u32 s65, s65, s%d\ns_lshl_b32 s66, s65, 18\ns_lshl_b32 s67, s%d, 14\ns_add_u32 s66, s66, s67\ns_add_u32 s66, s66, 0x%x" % (sI, sTN, sW, WS_PART))
    t.atom(["s_add_u32 s40, s6, s66", "s_addc_u32 s41, s7, 0"])
    t("s_and_b32 s41, s41, 0xffff\ns_mov_b32 s42, 0x34000\ns_mov_b32 s43, 0x20000")
    t("s_lshl_b32 s69, s65, 2\ns_add_u32 s69, s69, s%d\ns_lshl_b32 s69, s69, %d\ns_add_u32 s69, s69, 0x%x" % (sW, (7, 10, 10)[F4M], SM_F4))
    for d in (1, 2, 3):
        t("s_xor_b32 s67, s%d, %d\ns_lshl_b32 s66, s67, 16\ns_add_u32 s%d, s66, %d" % (sQ, d, 72 + d, (d - 1) * 4096))
        t("s_lshl_b32 s67, s67, %d\nv_add_u32 v%d, s67, v1" % ((4, 8, 8)[F4M], 28 + d))
        t("s_lshl_b32 s67, s%d, 16\ns_add_u32 s%d, s67, %d" % (sQ, 69 + d, (d - 1) * 4096))
    t("s_lshl_b32 s67, s%d, %d\nv_and_b32 v32, 3, v0\nv_lshl_add_u32 v32, v32, %d, s67" % (sQ, (4, 8, 8)[F4M], (2, 2, 6)[F4M]))
    t("s_mov_b32 s57, 0\ns_mov_b32 s58, 8192\ns_mov_b32 s59, 16384\ns_mov_b32 s64, 24576")
    t("v_mov_b32 v34, 0x3f80\nv_mov_b32 v35, 0x3f800000")
    mark(t, "setup")
    if cfg.get("tlb", 0):
        after(t, ("H", 43), 2)
        t.vm("buffer_load_dword a246, v29, s[40:43], s73 offen")
        t("v_readfirstlane_b32 s67, v%d" % vOO); dly(t, 3)
        t.vm("buffer_load_dword a246, v29, s[8:11], s67 offen")
    f4store = lambda d, ix: ("buffer_store_dword v%d, v%d, s[36:39], s69 offen offset:%d %s" % (vTG, 28 + d, 4 * ix, SC)) if F4M < 2 else ("buffer_store_dwordx4 %s, v%d, s[36:39], s69 offen offset:%d %s" % (Q(vTG), 28 + d, 64 * ix, SC))
    f4load = "buffer_load_dword v33, v32, s[36:39], s69 offen %s" % SC
    gp = lambda u: 4 * pend_[u] + 3 + 3
    RV = lambda d, m: 128 + 32 * d + 8 * m + 4
    rload = lambda d, m: "buffer_load_dwordx4 %s, v1, s[40:43], s%d offen offset:%d %s" % (Q(RV(d, m)), 69 + d, 1024 * m, SC)
    NFI = cfg.get("nfi", 3); NRI = cfg.get("nri", 1)
    fs = Seq(); rs = Seq(); pl_ = Seq(); assert NFI == 3; NB = str(cfg.get("nb", "1"))
    for d in (1, 2, 3):
        for m in range(4):
            t.at(gp(2 * d + m // 2))
            A = 128 + 32 * d + 8 * m; Bq = A + 4
            t("v_cvt_pk_bf16_f32 v%d, v%d, v%d\nv_cvt_pk_bf16_f32 v%d, v%d, v%d\nv_cvt_pk_bf16_f32 v%d, v%d, v%d\nv_cvt_pk_bf16_f32 v%d, v%d, v%d" % (A, A, A + 1, A + 1, A + 2, A + 3, A + 2, Bq, Bq + 1, A + 3, Bq + 2, Bq + 3))
            mark(t, ("cv", d, m))
            after(xs, ("cv", d, m), 1)
            xs.vm("buffer_store_dwordx4 %s, v1, s[40:43], s%d offen offset:%d %s" % (Q(A), 72 + d, 1024 * m, SC), ("ps", d, m)); mark(xs, ("ps", d, m))
    SP3 = cfg.get("sp3", 1)
    HU = ((1, (0, 1, 2, 3), 1), (2, (0, 1, 2, 3), 2)) + (((3, (0, 1), 0), (3, (2, 3), 3)) if SP3 else ((3, (0, 1, 2, 3), 3),))
    f4l3 = f4load.replace("v33,", "v39,")
    ool("FX:\n%s\ns_waitcnt vmcnt(0)\nv_cmp_eq_u32 vcc, s%d, v39\ns_and_b32 s29, vcc_lo, s28\ns_andn2_b32 s28, s28, s29" % (f4l3, sTAG))
    lat4 = [int(x) for x in str(cfg.get("p4_lat", "40")).split("-")]; lat4 += lat4[-1:] * 4
    for hi_, (d, ms, ix) in enumerate(HU):
        after(fs, ("ps", d, ms[-1]), cfg.get("f4_lat", 44)); flag(fs, f4store(d, ix), [("ps", d, ms[-1])]); mark(fs, ("f4", ix))
        vF = 36 + ix
        f4l = f4load.replace("v33,", "v%d," % vF)
        after(pl_, ("f4", ix), lat4[hi_]); pl_.vm(f4l, ("f4l", ix)); mark(pl_, ("f4l", ix))
        after(rs, ("f4l", ix), cfg.get("p4_rt", 36))
        if ix != 3:
            rs.wait([("f4l", ix)])
            rs("v_cmp_ne_u32 s[82:83], s%d, v%d" % (sTAG, vF)); dly(rs, 1)
            rs.atom(["s_and_b32 s29, s82, %d" % (1 << ix), "s_cselect_b32 s47, 0x40000000, s%d" % (69 + d), "s_or_b32 s28, s28, s29" if hi_ else "s_mov_b32 s28, s29"])
            ool("s_bitcmp1_b32 s29, %d\ns_cbranch_scc0 FX_n%d\n%s\nFX_n%d:" % (ix, ix, "\n".join(rload(d, m) for m in ms), ix))
        else:
            ool("s_cmp_eq_u32 s28, 0\ns_cbranch_scc1 FX_done\ns_cmp_eq_u32 s79, 0\ns_cbranch_scc1 FX_done\ns_sub_u32 s79, s79, 1\ns_branch FX\nFX_done:\n%s\ns_waitcnt vmcnt(0)\ns_branch FX_ret" % f4l3)
            rs.at(10 ** 6)
            rs.atom(["s_cmp_lg_u32 s28, 0", "s_cbranch_scc1 FX", "FX_ret:"])
            poll(rs, "P4%d" % ix, f4l, vF, ("f4l", ix), mask=str(1 << ix))
        for m in ms:
            rs.vm(rload(d, m).replace("s%d offen" % (69 + d), "s47 offen") if ix != 3 else rload(d, m), ("pl", d, m)); mark(rs, ("pl", d, m)); dly(rs, cfg.get("r_sp", 8))
    hs = Seq(); hdl = {}
    if not HPN: poll(hs, "P3a0", fload(96), vPD, "f3a0", early=cfg.get("pa_gap", 12))
    for u in range(nh_pre[0], 44):
        if u in own: continue
        for (U, nm, off, fl, lat) in ((UA, "P3a", 0, None, 0), (UB, "P3b", 32, "flagb", cfg.get("pb_lat", 80)), (UC, "P3c", 64, "flagc", cfg.get("pc_lat", 80))):
            if u == (max(U - 2, nh_pre[0]) if U != UC else U):
                if fl: after(hs, fl, lat)
                hs.vm(fload(off), nm); mark(hs, nm + "l")
            if u == U:
                after(hs, nm + "l", cfg.get("poll_rt", 44)); poll(hs, nm, fload(off), vPD, nm); mark(hs, nm)
        n0 = len(hs.u)
        for m in range(4): hload(hs, u, m, max(hfree[u], 4 * firstuse[u] - cfg.get("l2_la", 400)))
        for i in range(n0, len(hs.u)): hdl[i] = 4 * firstuse[u] - 1
        mark(hs, ("H", u))
    ds = Seq(); ddl = {}
    DL = lambda st: bar[st // B2 * B2 - 1] if st < 14 else (bar[13] if st < 18 else barF)
    for st in range(NPRE2, 22):
        n0 = len(ds.u)
        if st == "E":
            after(ds, "cready", 1); after(ds, ("hl", 3, 1), 1)
            for n in range(4):
                ds("s_mov_b32 s%d, %d\ns_add_u32 m0, s46, %d" % (sKD, 32768 * n, 2048 + 1024 * n))
                ds.vm("buffer_load_dwordx4 v26, s[24:27], s%d offen lds" % sKD)
            ds("s_add_u32 m0, s46, 6144"); ds.vm("buffer_load_dwordx4 v1, s[36:39], s59 offen lds")
            ds("s_add_u32 m0, s46, 7168"); ds.vm("buffer_load_dwordx4 v1, s[28:31], s58 offen lds", "Elast"); mark(ds, "edma")
            dl = 900
        else:
            if st == 14: after(ds, "cready", 1)
            for k in range(4): dma2(ds, st, k, bar[prevocc[st] // B2 * B2 + B2 - 1] + 1 if st >= 8 else 0)
            dl = DL(st)
            mark(ds, ("D", st))
        for i in range(n0, len(ds.u)): ddl[i] = dl
    RS = Stream("r", rs.units(), 2, deadline=lambda i: cfg.get("r_prio", 0)); PS = Stream("pl", pl_.units(), 2, deadline=lambda i: -2); RS.overflow = PS.overflow = True
    mk = multi(sc, [Stream("h", hs.units(), 2, deadline=lambda i: hdl.get(i, 0)), Stream("d", ds.units(), 2, deadline=lambda i: ddl.get(i, 0)),
                    Stream("x", xs.units(), 2), Stream("t", t.units(), 3, start=1), RS, PS, Stream("f", fs.units(), 2, deadline=lambda i: -2)],
               cl=cfg.get("cl", 70), cs=cfg.get("cs", 210), B0=cfg.get("b0", 150), busy0=cfg.get("busy0", 300), tinyfree=cfg.get("tf", 1))
    sl = sorted([(4 * firstuse[u] - 1 - mk[("H", u)], "h", u) for u in range(nh_pre[0], 44) if u not in own] + [(DL(st) - mk[("D", st)], "d", st) for st in range(NPRE2, 22)])
    if cfg.get("verbose"):
        print("loop2 slacks", sl[:6], {k: v for k, v in mk.items() if isinstance(k, str)}, "hl", [mk[("hl", m, p)] for m in range(4) for p in range(2)], "ps", [mk[("ps", d, m)] for d in (1, 2, 3) for m in range(4)], "barF", barF, "f4", [mk.get(("f4", d)) for d in (1, 2, 0, 3)], "f4l", [mk.get(("f4l", d)) for d in (1, 2, 0, 3)], "pl", [mk.get(("pl", d, m)) for d in (1, 2, 3) for m in range(4)])
    assert sl[0][0] > cfg.get("minslack", 30), sl[:4]
    assert mk["cready"] < rgap[firstuse[28]] and mk[("hl", 3, 1)] < 4 * firstuse[28] - 1 and mk["setup"] < gp(2) and mk[("tr", 3, 1)] < VFREE
    for nm in names:
        if TS and nm[0] == "g" and nm[1:].isdigit():
            g_ = 4 * (16 * (int(nm[1:]) + 1) - L2) - 2
            sc.put(g_ - 1, [Op("s_memrealtime s[100:101]")], 5)
            sc.put(g_, [Op("s_waitcnt lgkmcnt(0)\nv_writelane_b32 v%d, s100, %d" % (vTS, names.index(nm)))], 5)
    if cfg.get("drop"):
        for g in range(cfg.get("drop_lo", 120), cfg.get("drop_hi", 600)):
            for it in sc.g[g]:
                o = it[2]
                if it[0] in (2, 3) and o.text and "\n" not in o.text and not o.text.endswith(":"):
                    c = opclass(o.text)
                    if it[0] == 2 and not (c == "X" and "x4" in o.text): continue
                    if c in cfg["drop"] and "cmp" not in o.text and not any(("v%d," % r) in o.text.split(None, 2)[1] + "," for r in range(16, 32)):
                        o.text = "s_nop 0" if cfg.get("dropnop") else ""
    prog.add(sc.ops())
    stamp(s, "end2")
    def addp(d, m):
        s.wait([("pl", d, m)])
        for k in range(8):
            r = 128 + 8 * m + k
            s("v_dot2_f32_bf16 v%d, v%d, v%d, v%d" % (r, RV(d, m) + k // 2, 34 + k % 2, r))
    for un in PS.units[PS.pos:] + RS.units[RS.pos:]: s.u.append([un[0], None])
    stamp(s, "poll4")
    sM4 = [57, 58, 59, 64]
    for m in range(4):
        for d in (1, 2, 3): addp(d, m)
        stamp(s, "r%d" % m)
        s.vm("buffer_store_dwordx4 %s, v%d, s[8:11], s%d offen offset:%d %s" % (Q(128 + 8 * m), vOO, sM4[2 * (m % 2)], 64 * (m // 2), cfg.get("ost", SC)))
        s("s_nop 1")
        s.vm("buffer_store_dwordx4 %s, v%d, s[8:11], s%d offen offset:%d %s" % (Q(132 + 8 * m), vOO, sM4[2 * (m % 2) + 1], 64 * (m // 2), cfg.get("ost", SC)))
    prog.add(s.done())
    prog.emit(a)
    a("s_cmp_eq_u32 s%d, 31\ns_cbranch_scc0 L_noep\ns_cmp_eq_u32 s%d, 0\ns_cbranch_scc0 L_noep" % (sB, sJ))
    a("v_mov_b32 v40, 0x%x\ns_mov_b64 exec, 1\nbuffer_store_dword v%d, v40, s[36:39], 0 offen %s\ns_mov_b64 exec, -1" % (SM_EP, vTG, SC))
    a("L_noep:")
    if TS:
        a("s_waitcnt vmcnt(0)\ns_memrealtime s[100:101]\ns_waitcnt lgkmcnt(0)\nv_writelane_b32 v%d, s100, %d" % (vTS, len(names) - 1))
        a("s_cmp_lg_u32 s%d, %d\ns_cbranch_scc1 L_end" % (sW, cfg.get("tsw", 0)))
        if cfg.get("leak"):
            A, B = cfg["leak"].split(":")
            a("s_cmp_lg_u32 s2, %d\ns_cbranch_scc1 L_end" % cfg.get("leakwg", 100))
            a("v_readlane_b32 s64, v%d, %d\nv_readlane_b32 s65, v%d, %d\ns_nop 4\ns_sub_u32 s64, s65, s64\ns_mul_i32 s64, s64, %d\ns_min_u32 s64, s64, 200000" % (vTS, names.index(A), vTS, names.index(B), cfg.get("leakk", 8)))
            a("L_leak:\ns_memrealtime s[66:67]\ns_waitcnt lgkmcnt(0)\ns_sub_u32 s66, s66, s100\ns_cmp_lt_u32 s66, s64\ns_cbranch_scc1 L_leak")
        ws_srd(a, 12, WS_TS, 16384)
        a("s_lshl_b32 s75, s2, 6\nv_lshlrev_b32 v1, 2, v0\ns_mov_b64 exec, 0xffff\nbuffer_store_dword v%d, v1, s[12:15], s75 offen" % vTS)
    if cfg.get("rc"): STAMPS[1:1 + len(RC)] = RC
    a("L_end:")
    a("s_endpgm")
    if ".p2align 12" in a.lines and cfg.get("oolf", 1):
        i = a.lines.index(".p2align 12"); a.lines[i:i] = ool.lines
    else: a.lines += ool.lines
    a("L_codeend:")
    return name, a

DOC = """;
; instruction placed by hand-written rules into the issue gaps between the 16x16x32 bf16 MFMAs).
;   phase 1  [gate | up | B_re | B_im] projection, tile 256 x 288, weights by LDS-DMA, xn straight into registers
"""

def inst_sizes(lines):
    import subprocess, tempfile, os, re
    d = tempfile.mkdtemp()
    und = sorted(set(re.findall(r"L_trB?\d+\b", "\n".join(lines))))
    open(d + "/a.s", "w").write('.amdgcn_target "amdgcn-amd-amdhsa--gfx950"\n' + "\n".join(l for l in lines if not l.startswith(".p2align 12")) + "\n" + "".join(u + ":\n" for u in und))
    subprocess.check_call(["clang", "-x", "assembler", "-target", "amdgcn-amd-amdhsa", "-mcpu=gfx950", "-c", d + "/a.s", "-o", d + "/a.o"])
    o = subprocess.check_output(["llvm-objdump", "-d", "--mcpu=gfx950", d + "/a.o"], text=True)
    sz = [4 * len(m.group(1).split()) for m in re.finditer(r"// [0-9A-F]+: ([0-9A-F ]+)", o)]
    n = sum(1 for l in lines if parse(l))
    assert n == len(sz), (n, len(sz))
    return sz

def add_stubs(lines, cfg):
    NL = 1; step = cfg.get("tr_step", 128)
    sz = iter(inst_sizes(lines)); size = [next(sz) if parse(l) else 0 for l in lines]
    i0 = lines.index("L_main:"); iend = lines.index("L_end:")
    out = lines[:i0 + 1]; off = 0; targets = [4096 * p + step * k for p in range(0, 40) for k in range(NL)]
    n = 0; pos = []
    def penalty(i):
        if not lines[i - 1].startswith("v_mfma"): return 0 if not any(l.startswith("v_mfma") for l in lines[max(0, i - 6):i + 6]) else 1
        j = i; c = ["S"]
        while not lines[j].startswith("v_mfma") and j - i < 8:
            try: c.append(opclass(lines[j]))
            except AssertionError: return 0
            j += 1
        t = gap_time(c)
        return 0 if (t is not None and t <= 16) else 1
    for i in range(i0 + 1, len(lines)):
        if i < iend and size[i] and off >= targets[n] and (penalty(i) == 0 or off + size[i] > targets[n] + 56):
            out.append("L_tr%d:" % n); out.append(("STUB", n)); off += 4; n += 1
        out.append(lines[i]); off += size[i]
    n1 = min(n, cfg.get("tr_n", 14))
    res = []
    for l in out:
        if isinstance(l, tuple):
            k = l[1]; nx = k + 4
            if k < n1: res.append("s_cbranch_execz %s" % ("L_tr%d" % nx if nx < n1 else "L_trret"))
            elif cfg.get("tr2", 1): res.append("s_cbranch_execz %s" % ("L_tr%d" % nx if nx < n else "L_trret2"))
            else: res.append("s_nop 0")
        elif "L_trB" in l:
            k = n1 + int(l[-1]); res.append(l.replace("L_trB" + l[-1], "L_tr%d" % k if k < n else "L_trret2"))
        else: res.append(l)
    if cfg.get("verbose"): print("pages", n)
    return res

def build(cfg):
    name, a = gen(cfg)
    hdr = open("cdna_kernels/%s.s.ref" % NAME).read().split("; Override launch")[0]
    out = hdr + "; @launch grid=(256,1,1) block=(256,1,1) lds=163840\n"
    out += DOC
    out += '.amdgcn_target "amdgcn-amd-amdhsa--gfx950"\n'
    lines = pad_hazards([l for l in a.lines if l], cfg.get("verbose", 0) > 1)
    if cfg.get("tramp", 1): lines = add_stubs(lines, cfg)
    if cfg.get("verbose"): print(gap_report(lines))
    if cfg.get("lsc"): lines = [l.replace("sc0 sc1", cfg["lsc"]) if l.startswith("buffer_load") else l for l in lines]
    if cfg.get("jit"):
        import random
        rnd = random.Random(cfg["jit"]); outl = []; n = 0; nm = 0
        at = set(rnd.sample(range(3712), 10)) | {0, 150, 2303, 2304}
        for l in lines:
            hit = False
            if l.startswith("v_mfma"):
                hit = nm in at; nm += 1
            if l.startswith(("P1_chk:", "P1b_chk:", "L_trret2:", "L_epi:")) or "agfill" in l: hit = True
            if hit:
                n += 1
                outl += ["s_cselect_b32 s101, 1, 0", "s_mul_i32 s100, s2, %d" % rnd.randrange(1, 1 << 12, 2), "s_add_u32 s100, s100, s62" if rnd.random() < 0.5 else "s_nop 0", "s_bfe_u32 s100, s100, 0x%x" % (0x40000 + rnd.randrange(0, 4)),
                         "s_cmp_lg_u32 s100, %d" % rnd.randrange(16), "s_cbranch_scc1 L_jit%d" % n] + ["s_sleep 127"] * rnd.randrange(1, 3) + ["L_jit%d:" % n, "s_cmp_eq_u32 s101, 1"]
            outl.append(l)
        lines = outl
    la = cfg.get("laux"); da = cfg.get("daux")
    if la: lines = [l + " " + la if (l.startswith("buffer_load_dwordx4 a[") and "sc1" not in l) else l for l in lines]
    if da: lines = [l.replace(" lds", " %s lds" % da) if l.endswith(" lds") else l for l in lines]
    out += "\n".join(lines) + "\n"
    if cfg.get("cyc"): out = out.replace("s_memrealtime", "s_memtime")
    b = Asm(); kernel_desc(b, name, 512, accum=256); out += b.text()
    return out

if __name__ == "__main__":
    cfg = {}
    for kv in sys.argv[2:]:
        k, v = kv.split("=")
        try: v = int(v)
        except ValueError:
            try: v = float(v)
            except ValueError: v = v.replace("+", " ")
        cfg[k] = v
    open(sys.argv[1], "w").write(build(cfg))
```

```python
import sys, math, struct
from asmlib import *

NAME = "parallel_sum__ssm_conv_s5__glu_gated_geglu__prompt"
KX, KLRE, KLIM, KBRE, KBIM, KCRE, KCIM, KLDT, KDSK, KBX, KWG, KWU, KWD, KOUT, KDBG, KWS = [8 * i for i in range(16)]
WS_XN = 0
WS_H = 0x400000
H_BLK = 176 * 4096
WS_SM = 0x1A00000
SM_AG = 0; SM_ST = 0x40000; SM_EP = 0x48000; SM_F1 = 0x50000; SM_F1B = 0x60000; SM_F3 = 0x70000; SM_F4 = 0xB0000; SM_SIZE = 0xF0000
WS_TS = 0x1B00000
WS_PART = 0x2000000
NSTAMPS = [16]
SPLIT_LAYOUT = True
XN_DIRECT = 0
STAMPS = []

def f2u(x): return struct.unpack("<I", struct.pack("<f", x))[0]
def fx(x): return "0x%08x" % f2u(x)
P = lambda r: "v[%d:%d]" % (r, r + 1)
Q = lambda r: "v[%d:%d]" % (r, r + 3)
LOG2E = 1.4426950408889634
K = lambda v: (lambda it: v)

def ws_srd(a, r, off, size):
    a("s_add_u32 s%d, s6, 0x%x\ns_addc_u32 s%d, s7, 0\ns_and_b32 s%d, s%d, 0xffff\ns_mov_b32 s%d, 0x%x\ns_mov_b32 s%d, 0x20000" % (r, off, r + 1, r + 1, r + 1, r + 2, size, r + 3))

def mfma16(d, A, B, zero=False):
    return "v_mfma_f32_16x16x32_bf16 %s, %s, %s, %s" % (R(d[0], d[1], 4), R(A[0], A[1], 4), R(B[0], B[1], 4), "0" if zero else R(d[0], d[1], 4))

def cmul_pk(a, dr, di, ar, ai, br, bi, t):
    a("v_pk_mul_f32 %s, %s, %s" % (P(t), P(ai), P(bi)))
    a("v_pk_fma_f32 %s, %s, %s, %s neg_lo:[0,0,1] neg_hi:[0,0,1]" % (P(t), P(ar), P(br), P(t)))
    a("v_pk_mul_f32 %s, %s, %s" % (P(t + 2), P(ar), P(bi)))
    a("v_pk_fma_f32 %s, %s, %s, %s" % (P(di), P(ai), P(br), P(t + 2)))
    a("v_mov_b32 v%d, v%d\nv_mov_b32 v%d, v%d" % (dr, t, dr + 1, t + 1))

def horner_pk(a, s, L, e, d):
    a("v_pk_fma_f32 %s, %s, %s, %s" % (P(d), P(L), P(s), P(e)))
    a("v_pk_fma_f32 %s, %s, %s, %s" % (P(d + 2), P(L), P(s + 2), P(e + 2)))
    a("v_pk_fma_f32 %s, %s, %s, %s neg_lo:[1,0,0] neg_hi:[1,0,0]" % (P(d), P(L + 2), P(s + 2), P(d)))
    a("v_pk_fma_f32 %s, %s, %s, %s" % (P(d + 2), P(L + 2), P(s), P(d + 2)))

def horner_sc(a, s, L, e):
    for T in range(2):
        a("v_fmac_f32 v%d, v%d, v%d" % (e + T, L + T, s + T)); a("v_fmac_f32 v%d, v%d, v%d" % (e + 2 + T, L + T, s + 2 + T))
    for T in range(2):
        a("v_fma_f32 v%d, -v%d, v%d, v%d" % (e + T, L + 2 + T, s + 2 + T, e + T)); a("v_fmac_f32 v%d, v%d, v%d" % (e + 2 + T, L + 2 + T, s + T))

def gelu_block(a, items, CC, T):
    for k, (g, u, o) in enumerate(items): a("v_pk_mul_f32 %s, %s, %s" % (P(T + 2 * k), P(g), P(g)))
    for k, (g, u, o) in enumerate(items): a("v_pk_fma_f32 %s, %s, %s, %s op_sel:[0,1,0] op_sel_hi:[1,1,0]" % (P(T + 2 * k), P(T + 2 * k), P(CC), P(CC)))
    for k, (g, u, o) in enumerate(items): a("v_pk_mul_f32 %s, %s, %s" % (P(T + 2 * k), P(T + 2 * k), P(g)))
    for k, (g, u, o) in enumerate(items):
        a("v_exp_f32 v%d, v%d" % (T + 2 * k, T + 2 * k)); a("v_exp_f32 v%d, v%d" % (T + 2 * k + 1, T + 2 * k + 1))
        a("v_pk_mul_f32 %s, %s, %s" % (P(u), P(g), P(u)))
    for k, (g, u, o) in enumerate(items): a("v_pk_add_f32 %s, %s, 1.0 op_sel_hi:[1,0]" % (P(T + 2 * k), P(T + 2 * k)))
    for k, (g, u, o) in enumerate(items):
        a("v_rcp_f32 v%d, v%d" % (T + 2 * k, T + 2 * k)); a("v_rcp_f32 v%d, v%d" % (T + 2 * k + 1, T + 2 * k + 1))
    for k, (g, u, o) in enumerate(items): a("v_pk_mul_f32 %s, %s, %s" % (P(u), P(u), P(T + 2 * k)))
    for k, (g, u, o) in enumerate(items): a("v_cvt_pk_bf16_f32 v%d, v%d, v%d" % (o, u, u + 1))

class Seq:
    def __init__(self): self.u = []
    def __call__(self, s):
        for l in s.split("\n"):
            l = l.strip()
            assert not l.startswith(("buffer_", "global_", "ds_")), ("uncounted memory op", l)
            self.u.append([[Op(l)], None])
    def atom(self, ops, early=None): self.u.append([[o if isinstance(o, Op) else Op(o) for o in ops], early])
    def vm(self, text, tag=None, needs=None, early=None):
        if needs: self.wait(needs, early=early); early = None
        self.u.append([[Op(text, "vm", K(tag) if tag is not None else None)], early])
    def lg(self, text, tag=None, needs=None):
        if needs: self.wait(needs)
        self.u.append([[Op(text, "lg", K(tag) if tag is not None else None)], None])
    def wait(self, needs, drain=None, early=None): self.u.append([[Op("", needs=K(needs) if needs else None, drain=drain)], early])
    def op(self, o, early=None): self.u.append([[o], early])
    def delay(self, n):
        self._d = n; i = len(self.u) - 1
        self.u.append([[Op("")], lambda res, n=n: res[-1] + n])
    def at(self, g): self.u.append([[Op("")], g])
    def done(self):
        o = [x for un, _ in self.u for x in un]; self.u = []; return o
    def units(self):
        u = self.u; self.u = []; return u

def order_mfma(groups):
    ch = [groups[2 * p][1] == groups[2 * p + 1][1] for p in range(len(groups) // 2)]
    out = []; up = True
    for p, c in enumerate(ch):
        if c:
            for m in (range(4) if up else range(3, -1, -1)): out += [(2 * p, m), (2 * p + 1, m)]
            up = not up
        else:
            for G in (2 * p, 2 * p + 1):
                out += [(G, m) for m in (range(4) if up else range(3, -1, -1))]; up = not up
    return out, (lambda G: G & ~1 if ch[G // 2] else G), (lambda G: G | 1 if (G >= 0 and ch[G // 2]) else G)

W_ST = 28672; U_OFF = 14336
B_BASE = 131072; B_ST = 8192
LN_LDS = 65536 + W_ST

def gen(cfg):
    name = NAME + "_kernel"
    a = Asm(); kernel_header(a, name)
    ool = Asm()
    TS = cfg.get("ts")
    names = ["start"] + cfg.get("stamps", "flag1 poll1 loop1 end1 p01 pub loop2 end2 poll4").split() + ["end"]
    STAMPS[:] = names; NSTAMPS[0] = len(names)
    vTS = 15; RC = []
    def stamp(s, nm):
        if TS and nm in names: s.atom(["s_memrealtime s[100:101]", "s_waitcnt lgkmcnt(0)", "v_writelane_b32 v%d, s100, %d" % (vTS, names.index(nm))])
    SC = cfg.get("sc", "sc0 sc1")
    HL = cfg.get("hl", "sc1")
    FS = cfg.get("f1s", 128)
    prog = Prog(); s = Seq()
    sJ, sI, sW, sB, sQ, sTN, sTAG = 60, 61, 62, 63, 52, 53, 3
    sMW, sM3, sMB, sKW, sKB, sKX, sCNT = 54, 55, 56, 57, 58, 59, 81
    sPAs, sKPA, sKPB, sPBs = 76, 77, 78, 80
    def poll(s, nm, loadtext, dst, tagneed, mask=None, early=None):
        s.wait([tagneed], early=early)
        s.atom(["%s_chk:" % nm, "v_cmp_ne_u32 vcc, s%d, v%d" % (sTAG, dst), "s_and_b64 vcc, vcc, %s" % (mask or "exec"), "s_cbranch_scc1 %s_retry" % nm, "%s_ok:" % nm])
        ool("%s_retry:" % nm)
        if cfg.get("rc"): RC.append(nm); ool("v_readlane_b32 s100, v15, %d\ns_nop 3\ns_add_u32 s100, s100, 100\nv_writelane_b32 v15, s100, %d" % (len(RC), len(RC)))
        ool("%s_r2:\ns_cmp_eq_u32 s79, 0\ns_cbranch_scc1 %s_ok\ns_sub_u32 s79, s79, 1\ns_sleep %d\n%s\ns_waitcnt vmcnt(0)\ns_branch %s_chk" % (nm, nm, cfg.get("psl", 1), loadtext, nm))
    def flag(s, text, needs, early=None):
        s.wait(needs, early=early)
        s.atom(["s_mov_b64 exec, %d" % (15 if "x4" in text else 1), Op(text, "vm"), "s_mov_b64 exec, -1"])

    s("s_cmp_ge_u32 s2, 256\ns_cbranch_scc1 L_end")
    if cfg.get("gx"): s("s_xor_b32 s2, s2, %d" % cfg["gx"])
    if TS: s("s_memrealtime s[100:101]")
    CP = cfg.get("cpf", 1)
    s("s_load_dwordx2 s[4:5], s[0:1], %d" % KX)
    s("s_load_dwordx2 s[6:7], s[0:1], %d" % KWS)
    s("s_load_dwordx4 s[12:15], s[0:1], %d" % KWG)
    s("s_load_dwordx4 s[24:27], s[0:1], %d" % KBRE)
    s("s_load_dwordx4 s[96:99], s[0:1], %d" % KLRE)
    s("s_load_dwordx4 s[92:95], s[0:1], %d" % KLDT)
    s("s_load_dwordx4 s[84:87], s[0:1], %d" % KWD)
    s("s_load_dwordx4 s[88:91], s[0:1], %d" % KCRE)
    if CP:
        s("s_getpc_b64 s[82:83]")
        s.atom(["L_pc:"])
        s("s_lshr_b32 s64, s2, 3\ns_mul_i32 s64, s64, 28\nv_add_u32 v3, s64, v0\nv_cmp_gt_u32 vcc, 64, v0\nv_cndmask_b32 v2, v3, v0, vcc\nv_lshlrev_b32 v2, 7, v2")
        s("v_min_u32 v2, L_codeend-L_pc-4, v2\nv_mov_b32 v3, 0\nv_lshl_add_u64 v[2:3], v[2:3], 0, s[82:83]")
        s("v_cmp_gt_u32 vcc, 92, v0\ns_and_saveexec_b64 s[66:67], vcc\ns_cbranch_execz L_nocp")
        s.atom([Op("global_load_dword a246, v[2:3], off")])
        s.atom(["L_nocp:", "s_mov_b64 exec, -1"])
    s("v_lshrrev_b32 v1, 6, v0\nv_and_b32 v0, 63, v0")
    s("v_readfirstlane_b32 s%d, v1" % sW)
    s("v_lshlrev_b32 v1, 4, v0")
    s("s_mov_b32 s79, 0x40000")
    s("s_bfe_u32 s%d, s2, 0x20001" % sQ)
    s("s_and_b32 s64, s2, 1\ns_lshl_b32 s64, s64, 2\ns_lshr_b32 s%d, s2, 6\ns_add_u32 s%d, s%d, s64" % (sI, sI, sI))
    s("s_bfe_u32 s%d, s2, 0x30003" % sTN)
    s("s_lshl_b32 s%d, s%d, 3\ns_add_u32 s%d, s%d, s%d" % (sJ, sQ, sJ, sJ, sTN))
    s("s_lshl_b32 s%d, s%d, 2\ns_add_u32 s%d, s%d, s%d" % (sB, sI, sB, sB, sW))
    s("s_and_b32 s64, s2, 1\ns_lshl_b32 s64, s64, 1\ns_lshr_b32 s65, s%d, 1\ns_add_u32 s64, s64, s65\ns_lshl_b32 s64, s64, 4" % sW)
    s("s_lshl_b32 s65, s%d, 1\ns_add_u32 s64, s64, s65" % sQ)
    s("s_lshr_b32 s66, s2, 3\ns_lshl_b32 s65, s66, 6\ns_add_u32 s64, s64, s65")
    s("s_lshl_b32 s67, s64, 11\ns_and_b32 s68, s%d, 1\ns_lshl_b32 s65, s68, 8\ns_add_u32 s67, s67, s65" % sW)
    LQ = cfg.get("lq", 1)
    if LQ: s("v_and_b32 v48, 15, v0\nv_bfe_u32 v56, v0, 1, 1\nv_and_b32 v57, 1, v0\nv_lshl_add_u32 v56, v57, 3, v56\nv_lshrrev_b32 v57, 2, v0\nv_lshlrev_b32 v40, 11, v56\nv_lshl_add_u32 v40, v57, 4, v40")
    else: s("v_and_b32 v48, 15, v0\nv_lshrrev_b32 v56, 5, v0\nv_bfe_u32 v57, v0, 4, 1\nv_lshl_add_u32 v56, v57, 3, v56\nv_lshlrev_b32 v40, 11, v56\nv_lshl_add_u32 v40, v48, 4, v40")
    s("s_mov_b32 s10, %d\ns_mov_b32 s11, 0x20000" % (2048 * 2048))
    s("s_waitcnt lgkmcnt(0)")
    if TS: s("v_writelane_b32 v%d, s100, 0" % vTS)
    if cfg.get("rc"): s("v_mov_b32 v15, 0")
    stamp(s, "karg")
    s("s_mov_b32 s8, s4\ns_and_b32 s9, s5, 0xffff")
    for q in range(4): s.vm("buffer_load_dwordx4 %s, v40, s[8:11], s67 offen offset:%d" % (Q(64 + 4 * q), 512 * q), ("x", q))
    s("s_add_u32 s70, s6, 0x%x\ns_addc_u32 s71, s7, 0" % (WS_SM + SM_EP))
    s("s_load_dword s%d, s[70:71], 0" % sTAG)
    srd(s, 16, 14, 15, 1024 * 7168); srd(s, 12, 12, 13, 1024 * 7168)
    srd(s, 28, 26, 27, 1024 * 2048); srd(s, 24, 24, 25, 1024 * 2048)
    s("s_cmp_ge_u32 s%d, 2" % sW)
    s("s_cselect_b32 s20, s16, s12\ns_cselect_b32 s21, s17, s13\ns_mov_b32 s22, %d\ns_mov_b32 s23, 0x20000" % (1024 * 7168))
    ws_srd(s, 36, WS_SM, SM_SIZE)
    s("v_lshrrev_b32 v49, 4, v0")
    WGF = 1; vP1 = 63
    s("v_and_b32 v60, 31, v0\nv_lshlrev_b32 v60, 2, v60\ns_lshl_b32 s81, s%d, 7\ns_add_u32 s81, s81, 0x%x" % (sB, SM_F1B))
    s("v_and_b32 v63, 7, v0\nv_lshlrev_b32 v63, 6, v63\ns_lshl_b32 s75, s%d, 11\ns_lshl_b32 s65, s%d, 9\ns_add_u32 s75, s75, s65\ns_add_u32 s75, s75, 0x%x" % (sB, sQ, SM_F1))
    FT = cfg.get("ftouch", 0)
    if FT & 4: s.vm("buffer_load_dword a246, v63, s[36:39], s75 offen %s" % SC)
    if FT & 1: s.vm("buffer_load_dword a246, v60, s[36:39], s81 offen %s" % SC)
    s("v_mov_b32 v41, -1\nv_lshlrev_b32 v42, 2, v0\ns_xor_b32 s69, s2, 0xf8\ns_lshl_b32 s69, s69, 10\ns_lshl_b32 s65, s%d, 8\ns_add_u32 s69, s69, s65" % sW)
    s.vm("buffer_store_dword v41, v42, s[36:39], s69 offen %s" % SC, "agfill")
    vWA, vBA0, vBA1, vWA2, vW0, vW3, vB, vJ, vPA, vPB = 2, 3, 4, 5, 6, 9, 10, 12, 13, 14
    s("s_lshl_b32 s70, s66, 1\ns_and_b32 s65, s2, 1\ns_add_u32 s70, s70, s65")
    s("s_mul_i32 s69, s70, 7168\ns_mul_i32 s65, s%d, 1792\ns_add_u32 s69, s69, s65\nv_and_b32 v40, 31, v0\nv_min_u32 v40, 13, v40\nv_lshl_add_u32 v44, v40, 7, s69" % sQ)
    s("v_and_b32 v45, 3, v0\ns_lshl_b32 s69, s%d, 8\ns_lshl_b32 s65, s70, 2\ns_add_u32 s69, s69, s65\nv_add_u32 v45, s69, v45\nv_lshlrev_b32 v45, 11, v45" % sQ)
    if cfg.get("pfd"):
        n_ = cfg["pfd"]
        s("s_and_b32 s65, s2, 1\ns_mul_i32 s69, s65, %d\ns_add_u32 s69, s69, 7168\ns_mul_i32 s65, s65, %d\ns_add_u32 s65, s65, 8192\nv_cmp_gt_u32 vcc, 32, v0" % (-2 * 7168, -2 * 8192))
        s("v_mov_b32 v40, s69\nv_mov_b32 v43, %d\nv_cndmask_b32 v40, v40, v43, vcc\nv_add_u32 v44, v44, v40\nv_mov_b32 v40, s65\nv_mov_b32 v43, %d\nv_cndmask_b32 v40, v40, v43, vcc\nv_add_u32 v45, v45, v40" % (n_ * 64 * 7168, n_ * 128))
    s("s_mov_b32 s69, %d\ns_cmp_ge_u32 s%d, 2\ns_cselect_b64 vcc, -1, 0\nv_cndmask_b32 v%d, v44, v45, vcc\ns_cselect_b32 s%d, 128, s69" % (64 * 7168, sW, vPA, sPAs))
    s("s_cselect_b32 s40, s24, s12\ns_cselect_b32 s41, s25, s13\ns_cselect_b32 s69, s28, s16\ns_cselect_b32 s65, s29, s17\ns_cselect_b32 s42, s26, s14")
    s("s_bitcmp1_b32 s%d, 0\ns_cselect_b32 s40, s69, s40\ns_cselect_b32 s41, s65, s41\ns_mov_b32 s43, 0x20000\ns_mov_b32 s%d, 0" % (sW, sKPA))
    def pfa(s):
        s.vm("buffer_load_dword a246, v%d, s[40:43], s%d offen" % (vPA, sKPA)); s("s_add_u32 s%d, s%d, s%d" % (sKPA, sKPA, sPAs))
    def pfb(s):
        s.vm("buffer_load_dword a246, v%d, s[44:47], s%d offen" % (vPB, sKPB)); s("s_add_u32 s%d, s%d, s%d" % (sKPB, sKPB, sPBs))
    ND = cfg.get("dup0", 0)
    if ND:
        s("s_and_b32 s65, s2, 1\ns_lshl_b32 s65, s65, 1\ns_sub_u32 s65, 1, s65\ns_cmp_ge_u32 s%d, 2\ns_mov_b32 s69, 7168\ns_cselect_b32 s69, 8192, s69\ns_mul_i32 s69, s69, s65" % sW)
        s("v_lshrrev_b32 v43, 5, v0\nv_mul_lo_u32 v43, v43, s69\nv_add_u32 v%d, v%d, v43" % (vPA, vPA))
        for _ in range(ND): pfa(s)
        s("v_sub_u32 v%d, v%d, v43" % (vPA, vPA))
    if cfg.get("pfd"): s("s_mov_b32 exec_lo, 0")
    for _ in range(cfg.get("pf_t0", 3) - ND): pfa(s)
    if cfg.get("pfd"): s("s_mov_b64 exec, -1\ns_mul_i32 s%d, s%d, %d" % (sKPA, sPAs, cfg.get("pf_t0", 3) - cfg["pfd"]))
    AS = cfg.get("asym", 0)
    if AS & 1:
        s("s_and_b32 s65, s2, 1\ns_lshl_b32 s65, s65, 1\ns_sub_u32 s65, 1, s65\ns_cmp_ge_u32 s%d, 2\ns_mov_b32 s69, 7168\ns_cselect_b32 s69, 8192, s69\ns_mul_i32 s69, s69, s65" % sW)
        s("v_lshrrev_b32 v43, 5, v0\nv_mul_lo_u32 v43, v43, s69\nv_add_u32 v%d, v%d, v43" % (vPA, vPA))
        s("s_getreg_b32 s65, hwreg(HW_REG_XCC_ID, 0, 1)\ns_cmp_eq_u32 s65, %d\ns_cselect_b32 s%d, 0x40000000, s%d" % (0 if AS & 4 else 1, sKPA, sKPA))
    s("s_and_b32 s71, s%d, 1\ns_lshl_b32 s71, s71, 1\ns_mul_i32 s72, s%d, 224\ns_and_b32 s73, s%d, 1\ns_add_u32 s73, s73, 12" % (sJ, sJ, sW))
    for k in range(4):
        if k < 3: s("s_add_u32 s69, s%d, %d\ns_lshl_b32 s69, s69, 6" % (sW, 4 * k))
        else: s("s_lshl_b32 s69, s73, 6")
        s("v_add_u32 v40, s69, v0\nv_mul_u32_u24 v44, 4682, v40\nv_lshrrev_b32 v44, 16, v44\nv_mul_u32_u24 v45, 14, v44\nv_sub_u32 v45, v40, v45")
        s("v_add_u32 v45, s71, v45\nv_subrev_u32 v43, 14, v45\nv_min_u32 v45, v45, v43")
        s("v_lshrrev_b32 v43, 1, v44\nv_xor_b32 v43, v43, v44\nv_and_b32 v43, 4, v43\nv_mul_u32_u24 v43, 3, v43\nv_xor_b32 v44, v44, v43")
        s("v_mul_u32_u24 v44, 7168, v44\nv_lshl_add_u32 v44, v45, 4, v44\nv_add_u32 v%d, s72, v44" % (vW0 + k))
    s("v_lshrrev_b32 v50, 3, v0\ns_lshl_b32 s69, s%d, 3\nv_add_u32 v40, s69, v50\nv_bfe_u32 v44, v40, 1, 3\nv_and_b32 v51, 7, v0\nv_xor_b32 v44, v44, v51" % sW)
    s("v_lshlrev_b32 v47, 11, v40\nv_lshl_add_u32 v47, v44, 4, v47")
    s("s_lshl_b32 s69, s%d, 16\nv_add_u32 v%d, s69, v47" % (sJ, vB))
    s("s_lshl_b32 s%d, s%d, 10\ns_lshl_b32 s%d, s73, 10" % (sMW, sW, sM3))
    s("s_cmp_ge_u32 s%d, 2\ns_cselect_b32 s69, %d, 0\ns_add_u32 s%d, s%d, s69\ns_add_u32 s%d, s%d, %d" % (sW, U_OFF, sM3, sM3, sMB, sMW, B_BASE))
    s("s_lshl_b32 s65, s%d, 9\ns_add_u32 s65, s65, 57344\nv_lshl_add_u32 v52, v0, 3, s65\nv_xor_b32 v54, 512, v52" % sW)
    if LQ: s("v_lshlrev_b32 v55, 12, v49\nv_lshrrev_b32 v44, 2, v48\nv_lshl_add_u32 v55, v44, 8, v55\nv_and_b32 v44, 48, v1\nv_add_u32 v55, v55, v44")
    else: s("v_lshrrev_b32 v55, 2, v48\nv_lshlrev_b32 v55, 12, v55\nv_and_b32 v44, 3, v0\nv_lshl_add_u32 v55, v44, 8, v55\nv_lshl_add_u32 v55, v49, 4, v55")
    s("s_lshl_b32 s70, s66, 17\ns_lshl_b32 s67, s%d, 10\ns_add_u32 s70, s70, s67\ns_and_b32 s67, s2, 1\ns_lshl_b32 s67, s67, 7\ns_add_u32 s70, s70, s67" % sQ)
    s("s_lshr_b32 s67, s%d, 1\ns_lshl_b32 s67, s67, 6\ns_add_u32 s70, s70, s67\ns_lshl_b32 s67, s68, 14\ns_add_u32 s70, s70, s67" % sW)
    s("s_add_u32 s71, s70, 32768\ns_add_u32 s72, s70, 65536\ns_add_u32 s73, s70, 98304")
    s("s_lshl_b32 s74, s2, 7\ns_lshr_b32 s67, s%d, 1\ns_lshl_b32 s67, s67, 6\ns_add_u32 s74, s74, s67\ns_add_u32 s74, s74, 0x%x" % (sW, SM_ST))
    ws_srd(s, 48, WS_XN, 0x400000)
    dma_items = [(vW0, 12, sKW, sMW, 0), (vW0 + 1, 12, sKW, sMW, 4096), (vW0 + 2, 12, sKW, sMW, 8192), (vW3, 20, sKW, sM3, 0),
                 (vW0, 16, sKW, sMW, U_OFF), (vW0 + 1, 16, sKW, sMW, U_OFF + 4096), (vW0 + 2, 16, sKW, sMW, U_OFF + 8192),
                 (vB, 24, sKB, sMB, 0), (vB, 28, sKB, sMB, 4096)]
    def dma1(s, st, k, early=None):
        v, sr, so, mb, off = dma_items[k]
        isb = mb == sMB
        base = ((st >> 1) & 1) * (16384 if isb else 65536) + (st & 1) * (B_ST if isb else W_ST)
        if k == 0: s("s_mov_b32 s%d, %d" % (sKW, st * 64 * 7168))
        if k == 7: s("s_mov_b32 s%d, %d" % (sKB, st * 128))
        s("s_add_u32 m0, s%d, %d" % (mb, off + base))
        s.op(Op("buffer_load_dwordx4 v%d, s[%d:%d], s%d offen lds" % (v, sr, sr + 3, so), "vm", K(("D", st, k))), early)
    CH1 = cfg.get("ch1", 1)
    xalloc = {}; xprev = {}; fifo = [(("a", r), None) for r in (96, 112, 128, 144, 192)]
    for u in range(32):
        if u == 26: xalloc[u] = ("v", 48); xprev[u] = None; continue
        xalloc[u], xprev[u] = fifo.pop(0); fifo.append((xalloc[u], u))
    aX, aW, NWB = 96, 208, 8
    def xload(s, u, m, early=None):
        if m == 0: s("s_mov_b32 s%d, %d" % (sKX, u * 4096))
        s.op(Op("buffer_load_dwordx4 %s, v%d, s[8:11], s%d offen offset:%d %s" % (R(xalloc[u][0], xalloc[u][1] + 4 * m, 4), 1, sKX, 1024 * m, HL), "vm", K(("X", u, m))), early)
    def pro_stage(st):
        for k in range(9): dma1(s, st, k)
    ND0P = cfg.get("d_t0", 0)
    for k in range(ND0P): dma1(s, 0, k)
    EP_LDS = 131072; EPW = 8192
    PK = dict(C=252, CA=253, TOK=254, COL=255, D=240, TA=242, TRW=243, TRR=244, AG=245)
    s("v_lshrrev_b32 v40, 1, v48\nv_xor_b32 v40, v40, v49\nv_lshlrev_b32 v40, 4, v40\nv_lshl_add_u32 v40, v48, 7, v40")
    s("v_add_u32 v%d, %d, v40\nv_xor_b32 v%d, 64, v%d" % (vBA0, B_BASE, vBA1, vBA0))
    s("v_lshrrev_b32 v40, 1, v49\nv_lshlrev_b32 v40, 4, v40\nv_and_b32 v41, 1, v49\nv_lshlrev_b32 v41, 2, v41\nv_lshrrev_b32 v50, 2, v48\nv_add3_u32 v11, v40, v41, v50")
    s("v_mul_u32_u24 v40, 224, v11\nv_and_b32 v51, 3, v0\nv_lshl_add_u32 v%d, v51, 3, v40\nv_add_u32 v%d, 0x10000, v%d" % (vWA, vWA2, vWA))
    s("s_lshl_b32 s65, s%d, 17\ns_add_u32 s8, s6, s65\ns_addc_u32 s9, s7, 0\ns_and_b32 s9, s9, 0xffff\ns_mov_b32 s10, 0x20000" % sB)
    s("s_lshl_b32 s83, s2, 4\ns_lshl_b32 s65, s%d, 2\ns_add_u32 s83, s83, s65" % sW)
    if WGF: s("s_and_b32 s82, s2, 7\ns_lshl_b32 s82, s82, 6\ns_lshl_b32 s65, s66, 11\ns_add_u32 s82, s82, s65\ns_lshl_b32 s65, s%d, 9\ns_add_u32 s82, s82, s65\ns_add_u32 s82, s82, 0x%x" % (sW, SM_F1))
    else: s("s_add_u32 s82, s83, 0x%x" % SM_F1)
    s("s_add_u32 s83, s83, 0x%x" % SM_F1B)
    def tramp():
        s("s_mov_b64 exec, 0")
        for w in range(1, 4): s("s_cmp_eq_u32 s%d, %d\ns_cbranch_scc1 L_tr%d" % (sW, w, w))
        s("s_branch L_tr0")
        s.atom(["L_trret:"])
        s("s_mov_b64 exec, -1")
    TRP = cfg.get("tr_at", 2) if cfg.get("tramp", 1) else -1
    if TRP == 0: tramp()
    stamp(s, "prex")
    F = 80; D = 112; T0 = 144; ST = 28
    ln = Seq()
    def unpack(q):
        for i in range(4 * q, 4 * q + 4): ln("v_lshlrev_b32 v%d, 16, v%d\nv_and_b32 v%d, 0xffff0000, v%d" % (F + 2 * i, 64 + i, F + 2 * i + 1, 64 + i))
    def pack(q, dst=64):
        for i in range(4 * q, 4 * q + 4): ln("v_cvt_pk_bf16_f32 v%d, v%d, v%d" % (dst + i, F + 2 * i, F + 2 * i + 1))
    def hsum(dst):
        ln("v_pk_add_f32 %s, %s, %s\nv_add_f32 v%d, v%d, v%d" % (P(T0), P(T0), P(T0 + 2), T0, T0, T0 + 1))
        for sh in ((4, 8) if LQ else (1, 2, 4, 8)): ln("v_add_f32_dpp v%d, v%d, v%d row_ror:%d row_mask:0xf bank_mask:0xf" % (T0, T0, T0, sh))
        if LQ:
            for w_ in (16, 32): ln("v_mov_b32 v%d, v%d\nv_permlane%d_swap_b32 v%d, v%d\nv_add_f32 v%d, v%d, v%d" % (T0 + 1, T0, w_, T0, T0 + 1, T0, T0, T0 + 1))
        ln("v_mul_f32 v%d, %s, v%d" % (dst, fx(1.0 / 512), T0))
    for q in range(4):
        ln.wait([("x", q)])
        if q == 3:
            stamp(ln, "xin")
            for _ in range(cfg.get("pf_t1", 0)): pfa(ln)
            i_d0 = len(ln.u)
        unpack(q)
        if q == 0: ln("v_pk_add_f32 %s, %s, %s\nv_pk_add_f32 %s, %s, %s" % (P(T0), P(F), P(F + 2), P(T0 + 2), P(F + 4), P(F + 6)))
        else:
            for i in range(4): ln("v_pk_add_f32 %s, %s, %s" % (P(T0 + 2 * (i % 2)), P(T0 + 2 * (i % 2)), P(F + 8 * q + 2 * i)))
    hsum(ST)
    for i in range(16): ln("v_pk_add_f32 %s, %s, %s op_sel_hi:[1,0] neg_lo:[0,1] neg_hi:[0,1]" % (P(D + 2 * i), P(F + 2 * i), P(ST)))
    for i in range(16):
        if i < 2: ln("v_pk_mul_f32 %s, %s, %s" % (P(T0 + 2 * i), P(D + 2 * i), P(D + 2 * i)))
        else: ln("v_pk_fma_f32 %s, %s, %s, %s" % (P(T0 + 2 * (i % 2)), P(D + 2 * i), P(D + 2 * i), P(T0 + 2 * (i % 2))))
    hsum(ST + 1)
    ln.lg("ds_write_b64 v52, %s" % P(ST))
    ln.wait(None, drain=["lg"])
    ln("s_barrier")
    ln.lg("ds_read_b64 %s, v54" % P(T0), "oth")
    ln("s_mul_i32 s%d, s%d, 0x9E3779B1\ns_add_u32 s%d, s%d, 0x7F4A7C15\nv_mov_b32 v56, s%d" % (sTAG, sTAG, sTAG, sTAG, sTAG))
    ln.wait(["oth"])
    ln("v_sub_f32 v%d, v%d, v%d\nv_pk_add_f32 %s, %s, %s\nv_mul_f32 v%d, 0.5, v%d\nv_pk_mul_f32 %s, %s, 0.5 op_sel_hi:[1,0]\nv_fmac_f32 v%d, v%d, v%d" % (T0 + 2, ST, T0, P(ST), P(ST), P(T0), T0 + 2, T0 + 2, P(ST), P(ST), ST + 1, T0 + 2, T0 + 2))
    ln("v_cvt_pk_bf16_f32 v%d, v%d, v%d\nv_lshlrev_b32 v%d, 16, v%d\nv_and_b32 v%d, 0xffff0000, v%d" % (T0, ST, ST + 1, ST, T0, ST + 1, T0))
    ln(("v_add_f32 V, %s, V\nv_cvt_pk_bf16_f32 V, V, V\nv_and_b32 V, 0xffff0000, V\nv_sqrt_f32 V, V" % fx(1e-5)).replace("V", "v%d" % (ST + 1)))
    def sub(q):
        for i in range(4 * q, 4 * q + 4): ln("v_pk_add_f32 %s, %s, %s op_sel_hi:[1,0] neg_lo:[0,1] neg_hi:[0,1]" % (P(F + 2 * i), P(F + 2 * i), P(ST)))
    def fin(q):
        pack(q); unpack(q)
        for i in range(4 * q, 4 * q + 4): ln("v_pk_mul_f32 %s, %s, %s op_sel:[0,1] op_sel_hi:[1,1]" % (P(F + 2 * i), P(F + 2 * i), P(ST)))
        pack(q, 12 if q else 64)
    ln("v_cvt_pk_bf16_f32 V, V, V\nv_and_b32 V, 0xffff0000, V\nv_rcp_f32 V, V".replace("V", "v%d" % (ST + 1)))
    sub(0); fin(0)
    lu = ln.units()
    nD_0 = cfg.get("d_t1", 1 if ND0P else 0)
    if nD_0:
        dq = Seq(); step = cfg.get("d0_step", 10); pos = i_d0 + cfg.get("d0_off", 6)
        for k in range(ND0P, 9):
            dma1(dq, 0, k); un = dq.units()
            lu[pos:pos] = un[:-1]; pos += len(un); lu[pos:pos] = un[-1:]; pos += step
    s.u += lu
    xst = lambda q: "buffer_store_dwordx4 %s, v55, s[48:51], s%d offen %s" % (Q(12 + 4 * q if q else 64), 70 + q, SC)
    stst = lambda: (["s_mov_b64 exec, 15"] if LQ else ["s_mov_b32 exec_lo, 0x10001", "s_mov_b32 exec_hi, 0x10001"]) + [Op("buffer_store_dwordx4 %s, v%d, s[36:39], s74 offen %s" % (Q(ST), LQ, SC), "vm"), "s_mov_b64 exec, -1"]
    s.vm(xst(0), ("xn", 0))
    stamp(s, "xnst")
    for q in range(1, 4):
        sub(q); fin(q); s.u += ln.units()
    XBP = cfg.get("xbp", 0)
    TWO = 1
    nD_b = cfg.get("d_t3", 1)
    nD_c = cfg.get("d_t4", 2)
    nD_d = cfg.get("d_t5", 2)
    if TRP == 1: tramp()
    if WGF: s.wait([("xn", 0), "agfill"]); s("s_barrier")
    flag(s, "buffer_store_dwordx4 v[56:59], v1, s[36:39], s82 offen %s" % SC, [("xn", 0), "agfill"])
    stamp(s, "flag1")
    if TRP == 4: tramp()
    if cfg.get("bar_f"): s("s_barrier")
    stamp(s, "barf")
    def xb_now():
        s.atom(stst())
        for q in range(1, 4): s.vm(xst(q), ("xn", q))
    if XBP == 1: xb_now()
    for st in range(nD_0, nD_b): pro_stage(st)
    stamp(s, "d0")
    if TRP == 2: tramp()
    stamp(s, "trd")
    f1load = "buffer_load_dword v61, v%d, s[36:39], s75 offen %s" % (vP1, SC)
    s.vm(f1load, "f1")
    if XBP == 2: xb_now()
    for st in range(max(nD_0, nD_b), nD_c): pro_stage(st)
    nD_b = max(nD_0, nD_b, nD_c)
    if TRP == 3: tramp()
    stamp(s, "prepoll")
    if TRP >= 0:
        s("s_branch L_main"); s.atom([".p2align 12"]); s.atom(["L_main:"])
    poll(s, "P1", f1load, 61, "f1")
    stamp(s, "poll1")
    NXP = cfg.get("nxpre", 1 if cfg.get("ch1_first", 1) else 2)
    for u in range(NXP):
        for m in range(4): xload(s, u, m)
    if TRP == 5: tramp()
    if XBP == 3: xb_now()
    for _ in range(cfg.get("pf_t5", 0)): pfa(s)
    for st in range(nD_b, nD_d): pro_stage(st)
    nD_b = max(nD_b, nD_d)
    npfa = cfg.get("pf_t0", 3) + cfg.get("pf_t1", 0) + cfg.get("pf_t5", 0)
    NPB = cfg.get("npb", 4)
    tiles = []
    for q in range(7): tiles += [("G", q), ("U", q)]
    tiles += [("R", 0), ("I", 0), ("R", 1), ("I", 1)]
    def acc(t, m):
        k, q = t
        if k == "R": return ("v", 64 + 16 * q + 4 * m)
        if k == "I": return ("v", 96 + 16 * q + 4 * m)
        o = 32 * q + (16 if k == "U" else 0) + 4 * m
        return ("v", 128 + o) if q < 4 else ("a", o - 128)
    L0 = cfg.get("l1_lead", 4)
    KT = cfg.get("kt", 1)
    def stage_groups(st, tl):
        if CH1 and st >= cfg.get("ch1_first", 1): return [(2 * st + kk, ti) for ti in tl for kk in range(2)]
        return [(2 * st + kk, ti) for kk in range(2) for ti in tl]
    groups = []
    for st in range(14 if KT else 16): groups += stage_groups(st, range(18))
    if KT:
        for tl in (range(4), range(4, 18)):
            for st in (14, 15): groups += stage_groups(st, tl)
    NG = len(groups)
    mo, head, tail = order_mfma(groups)
    xfirst = {}; xlast = {}
    for G, (u, ti) in enumerate(groups): xfirst.setdefault(u, head(G)); xlast[u] = tail(G)
    parts = lambda G: [0, 1] if groups[G][1] < 14 else [None]
    def read1(G, part):
        u, ti = groups[G]; st, kk = divmod(u, 2); t = tiles[ti]; f = G % NWB
        if t[0] in "GU":
            off = (st & 1) * W_ST + (U_OFF if t[0] == "U" else 0) + kk * 7168 + part * 1792 + t[1] * 32
            return Op("ds_read_b64_tr_b16 %s, v%d offset:%d" % (R("a", aW + 4 * f + 2 * part, 2), (vWA, vWA2)[(st >> 1) & 1], off), "lg", K(("F", G, part)))
        off = (st & 3) * B_ST + (4096 if t[0] == "I" else 0) + t[1] * 2048
        return Op("ds_read_b128 %s, v%d offset:%d" % (R("a", aW + 4 * f, 4), vBA1 if kk else vBA0, off), "lg", K(("F", G, part)))
    rgap = {}
    for G in range(NG):
        f = G % 36
        g = G if (f < 33 or (KT and G >= 28 * 18)) else G - (1 if f < 35 else 2)
        rgap[G] = 4 * (g - L0) - 1
        assert rgap[G] >= 4 * tail(G - NWB) + 3
    gneed = lambda G: [("F", H, p) for H in range(G, tail(G) + 1) for p in parts(H)] + [("X", u, m) for u in range(32) if xfirst[u] == G for m in range(4)]
    s.wait([("D", 0, k) for k in range(9)])
    s("s_barrier")
    for G in range(NG):
        if rgap[G] < 0:
            for p in parts(G): s.op(read1(G, p))
    s.wait(gneed(0))
    stamp(s, "loop1")
    prog.add(s.done())
    mf = []
    for G, m in mo:
        u, ti = groups[G]; t = tiles[ti]
        xr = (xalloc[u][0], xalloc[u][1] + 4 * m); wr = ("a", aW + 4 * (G % NWB))
        mf.append(Op(mfma16(acc(t, m), wr, xr, u == 0) if t[0] in "GU" else mfma16(acc(t, m), xr, wr, u == 0)))
    sc = Sch(mf)
    for G in range(1, NG):
        w = Op("", needs=K(gneed(G)))
        w.keep = sum(len(parts(H)) for H in range(max(0, G - 2), min(NG, G + 10)) if rgap[H] == 4 * G - 1) == 2
        if w.keep or head(G) == G: sc.put(4 * G - 1, [w], 0)
    for G in range(NG):
        if rgap[G] >= 0: sc.put(rgap[G], [read1(G, p) for p in parts(G)], 1)
    bar = {}
    for st in range(15):
        bar[st] = rgap[xfirst[2 * st + 2]] - 1
        sc.put(bar[st], [Op("s_barrier", needs=K([("D", st + 1, k) for k in range(9)]), drain=["lg"] if st < 14 else None)], 0)
    items = []
    PFL = cfg.get("pfl", 9)
    pft = {}
    if cfg.get("pf1", 1):
        ev = cfg.get("pf_first", 70); st = npfa
        for k in range(npfa - cfg.get("pfd", 0), npfa): items.append((0, 2, ev - cfg.get("pfd_pre", 0), "a", k, 0))
        while st < 16:
            n = 0
            while st < 16 and (n < cfg.get("pf_max", 2) or (st == 15 and cfg.get("pf_l3", 1))) and (n == 0 or 144 * (st - 3 - PFL) < ev):
                e = max(int(144 * (st - 3 - PFL)), ev); pft[st] = e; items.append((0, 2, e, "a", st, 0)); st += 1; n += 1
            ev = e + cfg.get("pf_min", 288)
    for st in range(nD_b, 16):
        e = max(bar[st - 4] + 1 if st >= 4 else 0, pft.get(st, -1000) + cfg.get("pf_lat", 100))
        for k in range(9): items.append((bar[st - 1], 0, e, "d", st, k))
    for u in range(NXP, 32):
        e = 4 * xlast[xprev[u]] + 3 if xprev[u] is not None else 0
        for m in range(4): items.append((4 * xfirst[u] - 1, 1, max(e, 4 * xfirst[u] - (cfg.get("x_la", 230) if u != 8 else cfg.get("x_la8", 105))), "x", u, m))
    for k in range(1, 4 if not XBP else 0): items.append((0, 3, cfg.get("xb_first", 140) + cfg.get("xb_sp", 40) * (k - 1), "s", k, 0))
    items.append((0, 3, cfg.get("xb_first", 140) + cfg.get("xb_sp", 40) * 2 + cfg.get("xb_lat", 70) if not XBP else cfg.get("fb_at", 30), "f", 0, 0))
    items.append((0, 3, cfg.get("p1c_at", 430), "p", 0, 0))
    gC_ = sorted(set(pft.values()))[cfg.get("c_ev", 1)] if pft else 300
    items.append((0, 3, gC_, "c", 0, 0))
    gE_ = gC_ + cfg.get("e_off", 90)
    for n in range(4): items.append((gE_ + 100, 3, gE_ + 20 * n, "e", n, 0))
    f1cload = "buffer_load_dword v61, v60, s[36:39], s81 offen %s" % SC
    if cfg.get("pf2", 1):
        for c in range(NPB): items.append((0, 2, cfg.get("pfb_first", 646) + int(c * cfg.get("pfb_sp", 288)), "b", c, 0))
    now = 0; pend = sorted(items); done = []; quiet = -1
    FM = cfg.get("fm", 1); WL = cfg.get("fm_wl", 14); fifo = []; comp = cfg.get("fm_c0", 30); fsl = []; lastk = ""; PFD = cfg.get("pfd", 0); PFX = cfg.get("pfx", 0)
    while pend:
        nxt = {}
        for x in pend:
            if x[3] not in nxt or x[4:] < nxt[x[3]][4:]: nxt[x[3]] = x
        av = sorted(x for x in nxt.values() if x[2] <= now)
        if FM:
            occ = sum(n for c, n in fifo if c > now)
            lines_of = lambda x: {"d": WL if x[5] < 7 else 8, "x": 8, "a": 9 * (1 + bool(PFD)) + 8 * PFX, "b": 88 // NPB, "c": 10, "e": 16}.get(x[3], 1)
            if av and av[0][3] in "dx" and len(av) > 1 and av[1][3] in "dx" and av[0][3] == lastk and av[0][0] - now > cfg.get("alt_slack", 110): av = av[1:]
            av = [x for x in av[:1] if occ + lines_of(x) <= cfg.get("fm_c", 66)]
        if not av: now += 1; continue
        x = av[0]; pend.remove(x); lastk = x[3]
        if FM:
            lat = cfg.get("fm_slow", 64) if x[3] in "abc" else cfg.get("fm_fast", 36)
            comp = max(comp + 4.3, now + lat); fifo.append((comp, lines_of(x)))
            if x[3] in "dx": fsl.append((x[0] - comp, x[3], x[4], x[5]))
        fifo_now = now
        if x[3] == "d": dma1(s, x[4], x[5], int(now))
        elif x[3] == "x":
            if TWO and x[4:] == (8, 0): poll(s, "P1c", f1cload, 61, "f1c", early=int(now))
            xload(s, x[4], x[5], int(now))
        elif x[3] == "p": s.vm(f1cload, "f1c", early=int(now)); i_f1c = len(s.u) - 1
        elif x[3] == "a":
            s.at(int(now)); pfa(s); quiet = now + cfg.get("q_len", 64)
            if [y for y in pend if y[3] in "abc" and y[2] <= now]: now -= cfg.get("q_sp", 10) - 4
        elif x[3] == "c":
            s.at(int(now)); i_c0 = len(s.u) - 1
            for k, lo in enumerate((96, 98, 92)):
                s("s_mov_b32 s32, s%d\ns_and_b32 s33, s%d, 0xffff" % (lo, lo + 1))
                for T in range(2): s.vm("buffer_load_ushort v%d, v40, s[32:35], 0 offen offset:%d" % (16 + 2 * k + T, 32 * T), ("c", k, T))
            s("s_mov_b32 s32, s94\ns_and_b32 s33, s95, 0xffff")
            for u in range(2): s.vm("buffer_load_dwordx2 %s, v41, s[32:35], 0 offen offset:%d" % (R("a", 248 + 2 * u, 2), 32 * u), ("dk", u))
            if FT & 2:
                s.vm("buffer_load_dword a246, v42, s[36:39], 0 offen %s" % SC); now += 4
            i_c1 = len(s.u) - 1; now += 30
        elif x[3] == "s":
            if x[4] == 1: s.atom(stst(), int(now)); now += 4
            s.op(Op(xst(x[4]), "vm", K(("xn", x[4]))), int(now)); now += (4 - cfg.get("q_sp", 10)) if now < quiet else 10
        elif x[3] == "f":
            flag(s, "buffer_store_dword v56, v1, s[36:39], s83 offen %s" % SC, [("xn", 3)], early=int(now)); i_fb = len(s.u) - 1
        elif x[3] == "e":
            s("s_mov_b32 s70, %d\ns_add_u32 m0, s71, %d" % (32768 * x[4], 1024 * x[4]))
            s.op(Op("buffer_load_dwordx4 v12, s[48:51], s70 offen lds", "vm", K(("E", x[4]))), int(now)); i_e1 = len(s.u) - 1; now += 4
        else: s.at(int(now)); pfb(s); quiet = now + cfg.get("q_len", 64)
        if x[3] in "dx": done.append((x, len(s.u) - 1))
        if x[3:] == ("x", 8, 0): i_p1c = len(s.u) - 1
        if x[3:] == ("x", 26, 0): i_x26 = len(s.u) - 1
        if FM: now = fifo_now + {"c": 36, "s": cfg.get("fm_st", 16) + 4 * (x[4] == 1)}.get(x[3], cfg.get("fm_sp", 4.5))
        else: now += cfg.get("q_sp", 10) if now < quiet else cfg.get("l1_sp", 5)
    res = sc.stream(s.units(), 0, 2)
    sl = sorted((x[0] - res[i], x[3], x[4], x[5]) for x, i in done)
    if cfg.get("verbose") and FM: print("model slacks", sorted(fsl)[:5])
    if cfg.get("verbose"): print("loop1 vm end", res[-1], "of", 4 * NG, "min slacks", sl[:3], "steady", min(z for z in sl if z[2] > 8))
    for nm in names:
        if TS and nm[0] == "f" and nm[1:].isdigit():
            st_ = int(nm[1:])
            sc.put(bar[st_] - 1, [Op("s_memrealtime s[100:101]")], 5)
            sc.put(bar[st_], [Op("v_writelane_b32 v%d, s100, %d" % (vTS, names.index(nm)))], 5)
    if cfg.get("verbose"): print("flag b", res[i_fb], "poll load", res[i_f1c], "check", res[i_p1c])
    s.at(res[i_fb] + 1)
    cL, cC, cL8, cL16, cL64, cL512 = 16, 20, 24, 28, 32, 36
    s("s_mov_b32 s34, 2048\ns_mov_b32 s35, 0x20000")
    s("s_lshl_b32 s69, s%d, 5\nv_add_u32 v40, s69, v48\nv_lshlrev_b32 v40, 1, v40" % sJ)
    s("s_lshl_b32 s68, s%d, 7\ns_lshl_b32 s66, s%d, 5\ns_add_u32 s68, s68, s66\nv_lshl_add_u32 v41, v49, 2, s68\nv_accvgpr_write_b32 a%d, v41\nv_lshlrev_b32 v41, 1, v41" % (sTN, sQ, PK["COL"]))
    srd(s, 48, 4, 5, 2048 * 2048)
    s("s_lshl_b32 s66, s%d, 2\ns_add_u32 s66, s66, s%d\ns_lshl_b32 s66, s66, 7\ns_add_u32 s66, s66, 0x%x\nv_mov_b32 v42, s66" % (sB, sQ, SM_F3))
    s("s_lshl_b32 s66, s%d, 3\ns_add_u32 s66, s66, s%d\ns_lshl_b32 s66, s66, 2\ns_add_u32 s66, s66, s%d\ns_lshl_b32 s66, s66, 7\ns_add_u32 s66, s66, 0x%x\nv_writelane_b32 v42, s66, 0" % (sI, sTN, sW, SM_F4))
    s("s_lshl_b32 s68, s68, 1\ns_lshl_b32 s66, s%d, 17\ns_add_u32 s68, s68, s66\nv_lshrrev_b32 v12, 2, v0\nv_lshl_add_u32 v12, v12, 11, s68\nv_lshl_add_u32 v12, v51, 4, v12" % sB)
    s("s_lshr_b32 s66, s%d, 1\ns_lshl_b32 s66, s66, 16\ns_and_b32 s71, s%d, 1\ns_lshl_b32 s71, s71, 12\ns_add_u32 s71, s71, s66\ns_add_u32 s71, s71, 57344" % (sW, sW))
    r0 = sc.stream(s.units(), 0, 3)
    assert r0[-1] < res[i_c0]
    s.at(res[i_c1] + 1)
    s("v_subrev_u32 v40, %d, v%d\nv_accvgpr_write_b32 a%d, v40" % (B_BASE, vBA0, PK["CA"]))
    s("s_mul_i32 s69, s%d, %d\ns_add_u32 s69, s69, %d" % (sW, EPW, EP_LDS + 2048))
    s("v_and_b32 v41, 1, v49\nv_xor_b32 v41, v41, v51\nv_lshlrev_b32 v40, 5, v11\nv_lshl_add_u32 v40, v41, 3, v40\nv_add_u32 v40, s69, v40\nv_accvgpr_write_b32 a%d, v40" % PK["TRR"])
    s("v_lshrrev_b32 v40, 1, v48\nv_xor_b32 v40, v40, v48\nv_and_b32 v40, 4, v40\nv_mul_u32_u24 v40, 3, v40\nv_xor_b32 v40, v40, v48\nv_lshrrev_b32 v41, 2, v40\nv_xor_b32 v41, v41, v49\nv_lshlrev_b32 v40, 5, v40\nv_lshl_add_u32 v40, v41, 3, v40\nv_add_u32 v40, s69, v40\nv_accvgpr_write_b32 a%d, v40" % PK["TRW"])
    s("v_lshrrev_b32 v40, 2, v0\nv_and_b32 v41, 7, v40\nv_lshlrev_b32 v41, 5, v41\nv_lshl_add_u32 v41, v40, 8, v41\nv_lshl_add_u32 v41, v51, 3, v41\nv_accvgpr_write_b32 a%d, v41" % PK["TA"])
    s("s_lshl_b32 s68, s%d, 2\nv_add_u32 v40, s68, v49\nv_and_b32 v41, 7, v40\nv_bfe_u32 v51, v0, 1, 3\nv_xor_b32 v41, v41, v51\ns_lshl_b32 s66, s%d, 1\nv_xor_b32 v41, s66, v41\nv_lshlrev_b32 v41, 5, v41" % (sW, sQ))
    s("v_and_b32 v51, 1, v0\nv_lshl_add_u32 v41, v51, 4, v41\ns_mul_i32 s67, s%d, 896\nv_add_u32 v40, s67, v40\nv_lshl_add_u32 v40, v40, 11, v41\ns_lshl_b32 s67, s%d, 8\nv_add_u32 v40, s67, v40\nv_accvgpr_write_b32 a%d, v40" % (sQ, sTN, PK["D"]))
    s("s_lshl_b32 s68, s%d, 18\ns_lshl_b32 s66, s%d, 9\ns_add_u32 s68, s68, s66\nv_add_u32 v40, s68, v47\nv_accvgpr_write_b32 a%d, v40" % (sTN, sQ, PK["C"]))
    s("v_lshlrev_b32 v40, 4, v50\nv_lshl_add_u32 v40, v51, 3, v40\nv_bfe_u32 v41, v48, 1, 1\ns_lshl_b32 s68, s%d, 6\nv_add3_u32 v40, v40, v41, s68\nv_accvgpr_write_b32 a%d, v40" % (sB, PK["TOK"]))
    s("s_sub_u32 s68, 32, s%d\ns_lshl_b32 s68, s68, 13\ns_lshl_b32 s66, s%d, 8\ns_add_u32 s68, s68, s66\nv_lshl_add_u32 v40, v48, 4, s68\nv_lshl_add_u32 v40, v49, 16, v40\nv_accvgpr_write_b32 a%d, v40" % (sB, sJ, PK["AG"]))
    f_ = 2 if AS & 2 else 1
    ld, lc = 112 // NPB * f_, 64 // NPB * f_
    s("s_lshr_b32 s67, s2, %d\ns_lshl_b32 s68, s67, 1\ns_and_b32 s66, s%d, 1\ns_add_u32 s68, s68, s66\ns_mul_i32 s68, s68, %d\ns_mul_i32 s66, s67, %d" % (f_ - 1, sW, ld * 128, lc * 128))
    ge2 = "s_cmp_ge_u32 s%d, 2" % sW
    s.atom([ge2, "s_cselect_b32 s68, s66, s68", "s_cselect_b32 s66, %d, %d" % (lc - 1, ld - 1)])
    s("v_min_u32 v40, s66, v0\nv_lshl_add_u32 v%d, v40, 7, s68" % vPB)
    s.atom(["s_bitcmp1_b32 s%d, 0" % sW, "s_cselect_b32 s68, s90, s88", "s_cselect_b32 s66, s91, s89"])
    s.atom([ge2, "s_cselect_b32 s44, s68, s84", "s_cselect_b32 s45, s66, s85"])
    s("s_mov_b32 s67, %d\ns_mov_b32 s68, %d" % (3584 * 2048, 512 * ld * 128 // f_))
    s.atom([ge2, "s_cselect_b32 s46, %d, s67" % (1024 * 2048), "s_cselect_b32 s%d, %d, s68" % (sPBs, 256 * lc * 128 // f_)])
    s("s_and_b32 s45, s45, 0xffff\ns_mov_b32 s47, 0x20000\ns_mov_b32 s%d, 0" % sKPB)
    if AS & 2: s.atom(["s_getreg_b32 s67, hwreg(HW_REG_XCC_ID, 0, 1)", "s_cmp_eq_u32 s67, %d" % (0 if AS & 4 else 1), "s_cselect_b32 s%d, 0x40000000, 0" % sKPB])
    i_pbs = len(s.u) - 1
    s.at(res[i_c1] + 90)
    s.wait([("c", 2, 1)])
    def two(f):
        for T in range(2): s(f(T))
    for k in range(6): s("v_lshlrev_b32 v%d, 16, v%d" % (40 + k, 16 + k))
    two(lambda T: "v_mul_f32 v%d, %s, v%d" % (44 + T, fx(LOG2E), 44 + T)); two(lambda T: "v_exp_f32 v%d, v%d" % (44 + T, 44 + T))
    s("v_cvt_pk_bf16_f32 v45, v44, v45\nv_lshlrev_b32 v44, 16, v45\nv_and_b32 v45, 0xffff0000, v45")
    two(lambda T: "v_mul_f32 v%d, v%d, v%d\nv_mul_f32 v%d, v%d, v%d" % (24 + T, 44 + T, 40 + T, 26 + T, 44 + T, 42 + T))
    two(lambda T: "v_mul_f32 v%d, %s, v%d" % (24 + T, fx(LOG2E), 24 + T)); two(lambda T: "v_exp_f32 v%d, v%d" % (24 + T, 24 + T))
    two(lambda T: "v_mul_f32 v%d, 0.15915494, v%d\nv_rndne_f32 v%d, v%d\nv_sub_f32 v%d, v%d, v%d" % (26 + T, 26 + T, 52 + T, 26 + T, 26 + T, 26 + T, 52 + T))
    two(lambda T: "v_cos_f32 v%d, v%d\nv_sin_f32 v%d, v%d" % (52 + T, 26 + T, 54 + T, 26 + T))
    two(lambda T: "v_mul_f32 v%d, v%d, v%d\nv_mul_f32 v%d, v%d, v%d\nv_add_f32 v%d, -1.0, v%d" % (cL + T, 24 + T, 52 + T, 54 + T, 24 + T, 54 + T, 52 + T, cL + T))
    two(lambda T: "v_mul_f32 v%d, v%d, v%d\nv_fmac_f32 v%d, v%d, v%d\nv_rcp_f32 v%d, v%d" % (24 + T, 40 + T, 40 + T, 24 + T, 42 + T, 42 + T, 24 + T, 24 + T))
    two(lambda T: "v_mul_f32 v%d, v%d, v%d\nv_fmac_f32 v%d, v%d, v%d" % (26 + T, 52 + T, 40 + T, 26 + T, 54 + T, 42 + T))
    two(lambda T: "v_mul_f32 v%d, v%d, v%d\nv_fma_f32 v%d, -v%d, v%d, v%d" % (56 + T, 54 + T, 40 + T, 56 + T, 52 + T, 42 + T, 56 + T))
    two(lambda T: "v_add_f32 v%d, v%d, v%d\nv_mul_f32 v%d, v%d, v%d\nv_mul_f32 v%d, v%d, v%d\nv_sub_f32 v%d, 0, v%d" % (24 + T, 24 + T, 24 + T, cC + T, 26 + T, 24 + T, cC + 2 + T, 56 + T, 24 + T, cL + 2 + T, 54 + T))
    def sq(d, x):
        two(lambda T: "v_mul_f32 v%d, v%d, v%d\nv_mul_f32 v%d, v%d, v%d\nv_fma_f32 v%d, v%d, v%d, -v%d\nv_add_f32 v%d, v%d, v%d" % (52 + T, x + 2 + T, x + 2 + T, 54 + T, x + T, x + 2 + T, d + T, x + T, x + T, 52 + T, d + 2 + T, 54 + T, 54 + T))
    sq(cL8, cL); sq(cL8, cL8); sq(cL8, cL8); sq(cL16, cL8); sq(cL64, cL16); sq(cL64, cL64); sq(cL512, cL64); sq(cL512, cL512); sq(cL512, cL512)
    aBS = 160
    s.at(max(res[i_p1c] + 2, res[i_e1] + 90))
    s("v_accvgpr_read_b32 v12, a%d\nv_and_b32 v11, 63, v12\nv_lshlrev_b32 v11, 6, v11\nv_lshl_add_u32 v11, v49, 3, v11\nv_add_u32 v11, s71, v11\nv_and_b32 v12, 0xf0, v1\ns_lshl_b32 s66, s%d, 10\ns_add_u32 s66, s66, 0x%x" % (PK["TOK"], sB, SM_ST))
    s.wait([("E", 3), ("dk", 1)])
    for k in range(4): s("v_accvgpr_read_b32 v%d, a%d" % (40 + k, 248 + k))
    for m in range(4):
        s.vm("buffer_load_dwordx2 v[44:45], v12, s[36:39], s66 offen offset:%d %s" % (256 * m, HL), ("St", m))
        for u in range(2): s.lg("ds_read_b64 %s, v11 offset:%d" % (P(52 + 2 * u), 128 * m + 32 * u), ("er", m, u))
        s.delay(cfg.get("e_lat", 90))
        s.wait([("St", m), ("er", m, 1)])
        for u in range(2):
            def unp(d, x):
                for h in range(2): s("v_lshlrev_b32 v%d, 16, v%d\nv_and_b32 v%d, 0xffff0000, v%d" % (d + 2 * h, x + h, d + 2 * h + 1, x + h))
            def rnd():
                for h in range(2): s("v_cvt_pk_bf16_f32 v%d, v%d, v%d" % (48 + h, 60 + 2 * h, 61 + 2 * h))
                unp(60, 48)
            unp(56, 52 + 2 * u)
            for k in range(4): s("v_sub_f32 v%d, v%d, v44" % (60 + k, 56 + k))
            rnd()
            for k in range(4): s("v_mul_f32 v%d, v%d, v45" % (60 + k, 60 + k))
            rnd()
            for h in range(2):
                s("v_lshlrev_b32 v46, 16, v%d\nv_and_b32 v47, 0xffff0000, v%d\nv_mul_f32 v%d, v%d, v46\nv_mul_f32 v%d, v%d, v47" % (40 + 2 * u + h, 40 + 2 * u + h, 60 + 2 * h, 60 + 2 * h, 61 + 2 * h, 61 + 2 * h))
            rnd()
            for k in range(4): s("v_add_f32 v%d, v%d, v%d" % (56 + k, 56 + k, 60 + k))
            for k in range(4): s("v_accvgpr_write_b32 a%d, v%d" % (aBS + 16 * u + 4 * m + k, 56 + k))
    rb = sc.stream(s.units(), 0, 3, vmspace=2)
    if cfg.get("verbose"): print("shadow end", rb[-1])
    assert rb[-1] < res[i_x26] and rb[-1] < bar[13] and rb[i_pbs] < cfg.get("pfb_first", 646)
    vEW, vER, vTG, vAG, vTRW, vTRR, vCP, vH8, vD1, vPAd, vPD, vD0 = 2, 3, 4, 5, 6, 7, 8, 10, 11, 12, 13, 14
    sM, sKD, sKH = 54, 55, 56
    c1 = -2.0 * math.sqrt(2.0 / math.pi) * LOG2E
    CC = 46
    s("v_accvgpr_read_b32 v%d, a%d\nv_lshlrev_b32 v%d, 3, v0\nv_add_u32 v%d, 32768, v%d" % (vD0, PK["D"], vH8, vD1, vD0))
    s("v_and_b32 v43, 31, v0\nv_lshlrev_b32 v43, 7, v43\ns_lshl_b32 s71, s%d, 2\ns_add_u32 s71, s71, 0x%x" % (sJ, SM_F1B))
    s("s_mul_i32 s65, s%d, 176\ns_mul_i32 s66, s%d, 44\ns_add_u32 s65, s65, s66\ns_lshl_b32 s65, s65, 12\ns_add_u32 s65, s65, 0x%x" % (sB, sQ, WS_H))
    s.atom(["s_add_u32 s32, s6, s65", "s_addc_u32 s33, s7, 0"])
    s("s_and_b32 s33, s33, 0xffff\ns_mov_b32 s34, 0x%x\ns_mov_b32 s35, 0x20000" % (44 * 4096))
    srd(s, 12, 84, 85, 3584 * 2048); srd(s, 16, 88, 89, 1024 * 2048); srd(s, 20, 90, 91, 1024 * 2048)
    s("s_lshl_b32 s%d, s%d, 10" % (sM, sW))
    s("v_mov_b32 v46, %s\nv_mov_b32 v47, %s" % (fx(c1), fx(c1 * 0.044715)))
    ROT = cfg.get("rot", 2)
    sTQ = [96, 97, 98, 99, 48, 49, 50, 51]; sTS = [76, 77, 78, 80]; sJ12, sG7 = 44, 45
    s("s_and_b32 s67, s%d, 3\ns_lshl_b32 s67, s67, 1" % sI)
    for k in range(8):
        if k == 0: s("s_mov_b32 s65, s%d" % sTN)
        elif ROT == 2: s.atom(["s_cmp_le_u32 s%d, %d" % (sTN, k - 1), "s_cselect_b32 s65, %d, %d" % (k, k - 1)])
        elif ROT: s("s_add_u32 s65, s67, %d\ns_sub_u32 s66, s65, 7\ns_min_u32 s65, s65, s66\ns_add_u32 s65, s65, 1\ns_xor_b32 s65, s65, s%d" % (k - 1, sTN))
        else: s("s_xor_b32 s65, s%d, %d" % (sTN, k))
        s("s_mul_i32 s65, s65, 7\ns_add_u32 s65, s65, 1\ns_lshr_b32 s65, s65, 1\ns_lshl_b32 s%d, s65, 12" % sTQ[k])
    s("s_lshr_b32 s67, s%d, 1" % sTN)
    sGp = [24, 25, 26, 27]; sPar = 45
    for p in range(4):
        if ROT == 2:
            s("s_mov_b32 s%d, %d" % (sTS[p], (7 * p + 3) * 4096))
            if p == 0: s("s_lshl_b32 s%d, s67, 13" % sGp[0])
            else:
                s.atom(["s_cmp_le_u32 s67, %d" % (p - 1), "s_cselect_b32 s65, %d, %d" % (p, p - 1)]); s("s_lshl_b32 s%d, s65, 13" % sGp[p])
        else: s("s_xor_b32 s65, s67, %d\ns_lshl_b32 s%d, s65, 13\ns_mul_i32 s65, s65, %d\ns_add_u32 s%d, s65, %d" % (p, sGp[p], 7 * 4096, sTS[p], 3 * 4096))
    s("s_lshl_b32 s%d, s%d, 12\ns_and_b32 s69, s%d, 1\ns_lshl_b32 s%d, s69, 12" % (sJ12, sTN, sTN, sPar))
    s("s_mul_i32 s67, s67, %d\ns_lshl_b32 s69, s69, 9\ns_add_u32 s67, s67, s69\ns_add_u32 s67, s67, %d" % (7 * 4096, 3 * 4096))
    s("s_add_u32 s72, s%d, %d\ns_add_u32 s73, s%d, %d\ns_mov_b32 s66, s%d" % (sJ12, 28 * 4096, sJ12, 36 * 4096, sTQ[0]))
    s("s_lshl_b32 s68, s%d, 2\ns_add_u32 s68, s68, s%d\ns_lshl_b32 s68, s68, 7\ns_add_u32 s68, s68, 0x%x" % (sB, sQ, SM_F3))
    s("s_lshl_b32 s81, s%d, 2\ns_add_u32 s81, s81, s68\nv_and_b32 v%d, 7, v0\nv_lshlrev_b32 v%d, 2, v%d" % (sTN, vPAd, vPAd, vPAd))
    s("s_sub_u32 s64, 31, s%d\ns_lshl_b32 s64, s64, 13\ns_lshl_b32 s65, s%d, 8\ns_add_u32 s64, s64, s65" % (sB, sJ))
    s("s_mul_i32 s46, s%d, %d\ns_add_u32 s46, s46, %d" % (sW, EPW, EP_LDS))
    if TRP >= 0 and cfg.get("tr2", 1) and cfg.get("tr2pf", 1):
        s.atom(["s_getpc_b64 s[82:83]", "L_pc2:"])
        s("v_lshrrev_b32 v40, 3, v0\nv_lshlrev_b32 v40, 12, v40\nv_and_b32 v41, 7, v0\nv_lshl_add_u32 v40, v41, 7, v40\nv_add_u32 v40, L_main-L_pc2+%d, v40" % (4096 * cfg.get("tr_n", 14)))
        s("v_min_u32 v40, L_codeend-L_pc2-4, v40\nv_mov_b32 v41, 0\nv_lshl_add_u64 v[40:41], v[40:41], 0, s[82:83]")
        s.vm("global_load_dword a246, v[40:41], off")
        if cfg.get("cpe", 0):
            n_ = 16 * cfg.get("cpe", 0)
            s("s_mul_i32 s65, s%d, %d\ns_add_u32 s65, s65, L_epi-L_pc2+%d\nv_min_u32 v40, %d, v0\nv_lshl_add_u32 v40, v40, 7, s65\nv_mov_b32 v41, 0\nv_lshl_add_u64 v[40:41], v[40:41], 0, s[82:83]" % (sW, n_ * 128, cfg.get("cpe_off", -2048), n_ - 1))
            s.vm("global_load_dword a246, v[40:41], off")
    f1bload = "buffer_load_dword v44, v43, s[36:39], s71 offen %s" % SC
    s.vm(f1bload, "f1b")
    steps = [("g", 0, 2), ("g", 0, 0), ("g", 0, 1)]
    NA0 = cfg.get("na0", 2)
    steps += [("g", k, 0) for k in range(1, NA0 + 1)]
    UA = len(steps)
    steps += [("g", k, 1) for k in range(1, NA0 + 1)]
    for k in range(NA0 + 1, 8): steps += [("g", k, 0), ("g", k, 1)]
    UB = len(steps)
    for k in range(1, 8): steps += [("g", k, 2)] + ([("s", k // 2, 0)] if k % 2 else [])
    assert len(steps) == 28
    cst = [("r", 0), ("i", 0), ("r", 1), ("r", 2), ("r", 3), ("i", 1), ("i", 2), ("i", 3)]
    steps += [("c", 14, 0), ("c", 15, 0), ("c", 14, 1), ("c", 15, 1)]
    for st in range(16, 22): steps += [("c", st, 0), ("c", st, 1)]
    own = {0, 1, 2, 28, 29}; UC = 30
    NST = 22; KC = cfg.get("kc", 8)
    slot = {st: st % 8 for st in range(22)}; prevocc = {st: (st - 8 if st >= 8 else None) for st in range(22)}
    aW2 = 0; aAG = 32
    vC, vCA = 16, 20
    def dma2(s, st, k, early=None, vC=vC):
        if st < 14:
            kind, x, p = steps[2 * st + k // 2]
            if k % 2 == 0:
                if kind == "g" and p: s("s_add_u32 s%d, s%d, %d\ns_lshl_b32 s%d, s%d, 4" % (sKD, sTQ[x], p * 4096, sKD, sKD))
                else: s("s_lshl_b32 s%d, s%d, 4" % (sKD, (sTQ if kind == "g" else sTS)[x]))
            v, sr = (vD0, vD1)[k % 2], 12
        else:
            part, p = cst[st - 14]
            if k == 0: s("s_lshr_b32 s%d, s%d, 6" % (sKD, sGp[p]))
            v, sr = vC + k, (16 if part == "r" else 20)
        s("s_add_u32 m0, s%d, %d" % (sM, slot[st] * 16384 + k * 4096))
        s.op(Op("buffer_load_dwordx4 v%d, s[%d:%d], s%d offen lds" % (v, sr, sr + 3, sKD), "vm", K(("D2", st, k))), early)
    NPRE = 4
    r = sc.stream(s.units(), res[-1] + 2, 3)
    gS = r[-1]
    L2P = cfg.get("l2p", 0)
    if L2P:
        s("s_lshr_b32 s65, s2, 3\ns_lshl_b32 s65, s65, 2\ns_add_u32 s65, s65, s%d" % sW)
        s("s_mul_i32 s69, s65, %d\ns_mul_i32 s70, s%d, %d\ns_add_u32 s69, s69, s70\nv_min_u32 v40, 55, v0\nv_lshl_add_u32 v40, v40, 7, s69\ns_mov_b32 s70, %d" % (56 * 128, sQ, 896 * 2048, 448 * 2048))
        s.vm("buffer_load_dword a246, v40, s[12:15], 0 offen"); s.delay(cfg.get("l2p_sp", 40))
        s.vm("buffer_load_dword a246, v40, s[12:15], s70 offen"); s.delay(cfg.get("l2p_sp", 40))
        if L2P >= 2:
            s("s_lshl_b32 s69, s65, 14\ns_lshl_b32 s70, s%d, 9\ns_add_u32 s69, s69, s70\nv_bfe_u32 v40, v0, 2, 3\nv_lshl_add_u32 v40, v40, 11, s69\nv_and_b32 v41, 3, v0\nv_lshl_add_u32 v40, v41, 7, v40" % sQ)
    s.at(max(bar[13] + 1, cfg.get("pre_at", 0 if KT else 2170)))
    for st in range(NPRE):
        for k in range(4): dma2(s, st, k)
    if L2P >= 2:
        s.vm("buffer_load_dword a246, v40, s[16:19], 0 offen")
        if L2P >= 3: s.delay(20); s.vm("buffer_load_dword a246, v40, s[20:23], 0 offen")
    r = sc.stream(s.units(), gS + 1, 2, vmspace=cfg.get("pre_sp", 5))
    hst = cfg.get("hst", SC)
    aK0 = xalloc[27][1] if KT else 96; aK1 = 112 if aK0 != 112 else 96
    left = []; msh = 0
    if KT:
        msh = cfg.get("msh", 4)
        for m in range(msh):
            gs = [128 + 4 * m + e for e in range(4)] + [160 + 4 * m + e for e in range(4)]
            o = (56, 60)[m % 2]
            for k, g in enumerate(gs): s("v_mul_f32 v%d, v%d, v%d" % (48 + k, g, g))
            for k, g in enumerate(gs): s("v_fma_f32 v%d, v%d, v47, v46" % (48 + k, 48 + k))
            for k, g in enumerate(gs): s("v_mul_f32 v%d, v%d, v%d" % (48 + k, 48 + k, g))
            for k, g in enumerate(gs): s("v_exp_f32 v%d, v%d" % (48 + k, 48 + k))
            for k, g in enumerate(gs): s("v_mul_f32 v%d, v%d, v%d" % (g + 16, g, g + 16))
            for k, g in enumerate(gs): s("v_add_f32 v%d, 1.0, v%d" % (48 + k, 48 + k))
            for k, g in enumerate(gs): s("v_rcp_f32 v%d, v%d" % (48 + k, 48 + k))
            for k, g in enumerate(gs): s("v_mul_f32 v%d, v%d, v%d" % (g + 16, g + 16, 48 + k))
            for k in range(4): s("v_cvt_pk_bf16_f32 v%d, v%d, v%d" % (o + k, gs[2 * k] + 16, gs[2 * k] + 17))
            s.vm("buffer_store_dwordx4 %s, v1, s[32:35], s66 offen offset:%d %s" % (Q(o), 1024 * m, hst), ("hs", 0, m))
            for k in range(4): s("v_accvgpr_write_b32 a%d, v%d" % (aK0 + 4 * m + k, o + k))
        un = s.units()
        r = sc.stream(un, max(gS + 1, 4 * (28 * 18 + 16) + 2), 3, vmspace=2, overflow=True)
        left = un[len(r):]
        if cfg.get("verbose"): print("setup end", gS, "shadow gelu placed", len(r), "left", len(left))
    if cfg.get("abl"):
        for g in range(720, 1850):
            for it in sc.g[g]:
                o = it[2]; tx = o.text or ""
                if ("T" in cfg["abl"] and tx.startswith("ds_read_b64_tr")) or ("B" in cfg["abl"] and tx.startswith("ds_read_b128")) or \
                   ("X" in cfg["abl"] and tx.startswith("buffer_load_dwordx4") and "s[8:11]" in tx) or ("D" in cfg["abl"] and tx.endswith(" lds")) or \
                   ("P" in cfg["abl"] and tx.startswith("buffer_load_dword a246")) or ("V" in cfg["abl"] and tx.startswith("v_") and it[0] == 3): o.text = ""
    if cfg.get("stall"):
        for G in range(1, NG):
            if G % cfg["stall"] == 0 and len(sc.classes(4 * G - 1)) == 3: sc.put(4 * G - 1, [Op("s_nop 0")], 9)
    prog.add(sc.ops())
    vTA = 40
    s.atom(["L_epi:"])
    s("s_barrier")
    stamp(s, "end1")
    s.u += left
    KD = [int(c, 36) for c in str(cfg.get("kd", "g0a8"))]
    CH2 = cfg.get("ch2", 1); nochain = [int(c) for c in str(cfg.get("ch2_skip", "1"))]
    assert all(k % 2 == 0 for k in KD)
    def sg2(st, ul):
        if CH2 and st not in nochain: return [(2 * st + kk, u) for u in ul for kk in range(2)]
        return [(2 * st + kk, u) for kk in range(2) for u in ul]
    groups = []
    for st in range(22): groups += sg2(st, [u for u in (range(8) if st < 14 else (2, 3, 4, 5, 6, 7, 0, 1)) if 2 * st < 44 - KD[u // 2]])
    pend_ = {}
    for d in (1, 2, 3, 0):
        if str(d) in str(cfg.get("tm", "023")):
            for u in (2 * d, 2 * d + 1):
                for st in range(22 - KD[d] // 2, 22): groups += sg2(st, (u,))
        else:
            for st in range(22 - KD[d] // 2, 22): groups += sg2(st, (2 * d, 2 * d + 1))
    for G, (uu, u) in enumerate(groups): pend_[u] = G
    assert len(groups) == 352 and max(KD) <= 16
    NG = len(groups)
    mo, head, tail = order_mfma(groups)
    lastuse = {}; firstuse = {}
    for G, (uu, u) in enumerate(groups): firstuse.setdefault(uu, head(G)); lastuse[uu] = tail(G)
    hreg = {0: ("v", 48), 1: ("a", aK0), 2: ("a", aK1), 28: ("a", 32), 29: ("a", 48)}; hfree = {}
    pool = [(-1, ("a", r)) for r in [96, 112, 128, 144, 192, 208, 224, 160, 176, 64, 80] if r not in (aK0, aK1)] + [(4 * lastuse[u] + 3, hreg[u]) for u in (1, 2, 28, 29)]
    VFREE = cfg.get("vfree", 700)
    pool += [(VFREE, ("v", r)) for r in (64, 80, 96, 112)[:cfg.get("nvs", 4)]]
    for u in range(44):
        if u in own: continue
        pool.sort(key=lambda x: x[0]); e, r = pool.pop(0)
        hreg[u] = r; hfree[u] = e; pool.append((4 * lastuse[u] + 3, r))
    def hload(s, u, m, early=None):
        kind, x, p = steps[u]
        if m == 0:
            if kind == "g": s("s_add_u32 s%d, s%d, %d" % (sKH, sTQ[x], p * 4096))
            elif kind == "s": s("s_mov_b32 s%d, s%d" % (sKH, sTS[x]))
            else:
                part, pp = cst[x - 14]
                s("s_xor_b32 s%d, s%d, %d\ns_add_u32 s%d, s%d, s%d" % (sKH, sPar, ((28 if part == "r" else 36) + p) * 4096, sKH, sKH, sGp[pp]))
        hk, d = hreg[u]; d += 4 * m
        if kind == "s":
            s.op(Op("buffer_load_dwordx2 %s, v%d, s[32:35], s%d offen offset:%d %s" % (R(hk, d, 2), vH8, sKH, 1024 * m, HL), "vm"), early)
            s.op(Op("buffer_load_dwordx2 %s, v%d, s[32:35], s%d offen offset:%d %s" % (R(hk, d + 2, 2), vH8, sKH, 1024 * m + 512, HL), "vm", K(("H", u, m))))
        else: s.op(Op("buffer_load_dwordx4 %s, v1, s[32:35], s%d offen offset:%d %s" % (R(hk, d, 4), sKH, 1024 * m, HL), "vm", K(("H", u, m))), early)
    def gelu_pair(base0, base1, pid, T, OUT, keep=None, hook=None, m0=0):
        for m in range(m0, 4):
            o = OUT[m % len(OUT)]
            items = [(base0 + 4 * m, base0 + 16 + 4 * m, o), (base0 + 4 * m + 2, base0 + 18 + 4 * m, o + 1),
                     (base1 + 4 * m, base1 + 16 + 4 * m, o + 2), (base1 + 4 * m + 2, base1 + 18 + 4 * m, o + 3)]
            gelu_block(s, items, CC, T)
            s.vm("buffer_store_dwordx4 %s, v1, s[32:35], s66 offen offset:%d %s" % (Q(o), 1024 * m, hst), ("hs", pid, m))
            if keep is not None:
                for r in range(4): s("v_accvgpr_write_b32 a%d, v%d" % (keep + 4 * m + r, o + r))
            if hook: hook(m)
        s("s_add_u32 s66, s66, 4096")
    NPRE2 = cfg.get("npre2", 8)
    cpre = [(st, k) for st in range(NPRE, NPRE2) for k in range(4)]
    def cdma(n):
        for _ in range(n):
            if cpre: st, k = cpre.pop(0); dma2(s, st, k)
    fstore = lambda off: "buffer_store_dword v%d, v1, s[36:39], s81 offen offset:%d %s" % (vTG, off, SC)
    fload = lambda off: "buffer_load_dword v%d, v%d, s[36:39], s68 offen offset:%d %s" % (vPD, vPAd, off, SC)
    s("v_mov_b32 v%d, s%d" % (vTG, sTAG))
    npg = cfg.get("cpre_g", 1)
    cdma(cfg.get("cpre_0", 4))
    gelu_pair(128, 160, 0, 48, [56, 60], aK0, lambda m: cdma(npg), m0=msh)
    def hook1(m):
        cdma(npg)
        if m == cfg.get("fa0_m", 1): flag(s, fstore(96), [("hs", 0, 3)])
    gelu_pair(192, 224, 1, 48, [56, 60], aK1, hook1)
    stamp(s, "p01")
    def pkfma(d, s0, s1, s2, T, neg=False):
        s("v_pk_fma_f32 %s, %s, %s, %s op_sel:[%d,0,0] op_sel_hi:[%d,1,1]%s" % (P(d), P(s0), P(s1), P(s2), T, T, " neg_lo:[1,0,0] neg_hi:[1,0,0]" if neg else ""))
    def pkmul(d, s0, s1, T, neg=False):
        s("v_pk_mul_f32 %s, %s, %s op_sel:[%d,0] op_sel_hi:[%d,1]%s" % (P(d), P(s0), P(s1), T, T, " neg_lo:[1,0] neg_hi:[1,0]" if neg else ""))
    BR = lambda T, x: 64 + 16 * T + 2 * x
    BI = lambda T, x: 96 + 16 * T + 2 * x
    for x in range(8):
        for T in range(2):
            pkmul(128 + 2 * T, cC + 2, BI(T, x), T, True); pkmul(BI(T, x), cC, BI(T, x), T, True)
        for T in range(2):
            pkfma(BI(T, x), cC + 2, BR(T, x), BI(T, x), T, True); pkfma(BR(T, x), cC, BR(T, x), 128 + 2 * T, T)
    sr = [BR(0, 0), BR(1, 0)]; si = [BI(0, 0), BI(1, 0)]
    bufs = [[132, 134], [138, 140]]; SI = [136, 142]
    for x in range(1, 8):
        nr = [bufs[T][x % 2] for T in range(2)]
        for T in range(2): pkfma(nr[T], cL, sr[T], BR(T, x), T)
        for T in range(2): pkfma(nr[T], cL + 2, si[T], nr[T], T, True)
        for T in range(2): pkfma(SI[T], cL, si[T], BI(T, x), T)
        for T in range(2): pkfma(SI[T], cL + 2, sr[T], SI[T], T)
        sr = nr; si = list(SI)
        if x % 2: cdma(1)
    EA = 20
    for T in range(2):
        s("v_mov_b32 v%d, v%d\nv_mov_b32 v%d, v%d\nv_mov_b32 v%d, v%d\nv_mov_b32 v%d, v%d" % (EA + T, sr[T], EA + 2 + T, si[T], 144 + T, sr[T] + 1, 146 + T, si[T] + 1))
    horner_pk(s, EA, cL8, 144, 144)
    s("v_add_u32 v%d, s46, v1\nv_and_b32 v%d, 0xf0, v1\nv_add_u32 v%d, s46, v%d" % (vEW, vER, vER, vER))
    s.lg("ds_write_b128 v%d, v[144:147]" % vEW)
    for g in range(4): s.lg("ds_read_b128 %s, v%d offset:%d" % (Q(148 + 4 * g), vER, 256 * g), ("e", g))
    HPN = cfg.get("hpn", 0)
    if HPN: s.vm(fload(96), "f3a0")
    for r in range(32):
        s("v_accvgpr_read_b32 v%d, a%d" % (192 + r, r))
        if r % 16 == 15: cdma(1)
    flag(s, fstore(0), [("hs", 1, 3)])
    for g in range(1, 4):
        s.wait([("e", g)]); horner_pk(s, 148 + 4 * (g - 1), cL16, 148 + 4 * g, 148 + 4 * g)
    for r in range(160, 164): s("v_min_u32 v%d, -2, v%d" % (r, r))
    s.atom(["s_mov_b64 exec, 0xffff", Op("buffer_store_dwordx4 v[160:163], v1, s[36:39], s64 offen %s" % SC, "vm"), "s_mov_b64 exec, -1"])
    stamp(s, "pub")
    poll(s, "P1b", f1bload, 44, "f1b")
    for r in range(32, 64):
        s("v_accvgpr_read_b32 v%d, a%d" % (192 + r, r))
        if r % 16 == 15: cdma(1)
    cdma(16)
    for r in range(32): s("v_accvgpr_read_b32 v%d, a%d" % (128 + r, aBS + r))
    hq = [(u, m) for u in range(3, UA) for m in range(4)][:HPN]; nh_pre = [3 + HPN // 4]
    assert HPN % 4 == 0
    def issue_h(n):
        for _ in range(n):
            if hq: hload(s, *hq.pop(0))
    hpb = cfg.get("hpb", 3)
    def hookA(m): issue_h(hpb)
    def tramp2():
        s("s_mov_b64 exec, 0")
        for w in range(1, 4): s("s_cmp_eq_u32 s%d, %d\ns_cbranch_scc1 L_trB%d" % (sW, w, w))
        s("s_branch L_trB0")
        s.atom(["L_trret2:"])
        s("s_mov_b64 exec, -1")
    if TRP >= 0 and cfg.get("tr2", 1): tramp2()
    if HPN:
        poll(s, "P3a0", fload(96), vPD, "f3a0"); stamp(s, "ok3a"); issue_h(hpb)
    gelu_pair(192, 224, 2, 168, [48, 52, 56, 60], None, hookA)
    for r in range(32): s("v_accvgpr_read_b32 v%d, a%d" % (192 + r, 64 + r))
    issue_h(hpb)
    for mp in range(2):
        o = 240 + 4 * mp; items = []
        for mm in range(2):
            m = 2 * mp + mm
            items += [(192 + 4 * m, 208 + 4 * m, o + 2 * mm), (194 + 4 * m, 210 + 4 * m, o + 2 * mm + 1)]
        gelu_block(s, items, CC, 168)
        if mp == 0:
            s("v_accvgpr_read_b32 v%d, a%d" % (vTA, PK["TA"]))
            for u in range(1, 6): s("v_xor_b32 v%d, %d, v%d" % (vTA + u, 32 * u, vTA))
        issue_h(hpb if mp == 0 else 99)
        if mp == 1 and not HPN: s.vm(fload(96), "f3a0")
        for mm in range(2):
            s.vm("buffer_store_dwordx2 %s, v%d, s[32:35], s67 offen offset:%d %s" % (P(o + 2 * mm), vH8, 1024 * (2 * mp + mm), hst), ("hsS", 2 * mp + mm))
        if mp == 0:
            s.wait([("D2", st, k) for st in range(cfg.get("bar2", 2)) for k in range(4)])
            s("s_barrier")
            pre_reads_at = len(s.u)
    for u in range(6, 8): s("v_xor_b32 v%d, %d, v%d" % (vTA + u, 32 * u, vTA))
    L2 = cfg.get("l2_lead", 4); B2 = cfg.get("bar2", 2)
    def read2(G, part):
        uu, u = groups[G]; f = G % NWB
        if uu < 28:
            st, kk = divmod(uu, 2)
            return Op("ds_read_b64_tr_b16 %s, v%d offset:%d" % (R("a", aW2 + 4 * f + 2 * part, 2), vTA + u, (slot[st] % 4) * 16384 + kk * 8192 + part * 4096), "lg", K(("F2", G, part)))
        _, st, kk = steps[uu]
        return Op("ds_read_b128 %s, v%d offset:%d" % (R("a", aW2 + 4 * f, 4), vCA + 2 * (slot[st] >= 4) + kk, (slot[st] % 4) * 16384 + u * 2048), "lg", K(("F2", G, part)))
    parts = lambda G: [0, 1] if groups[G][0] < 28 else [None]
    mf = []
    for G, m in mo:
        uu, u = groups[G]
        mf.append(Op(mfma16(("v", 128 + 16 * u + 4 * m), ("a", aW2 + 4 * (G % NWB)), (hreg[uu][0], hreg[uu][1] + 4 * m), zero=(uu == 0 and u >= 2))))
    sc = Sch(mf)
    gneed = lambda G: [("F2", H, p) for H in range(G, tail(G) + 1) for p in parts(H)] + [("H", uu, m) for uu in range(44) if firstuse[uu] == G and uu not in own for m in range(4)]
    rgap = {}
    for G in range(NG):
        st, f = divmod(G, 16)
        if st < 14 and st % B2 == B2 - 1:
            if f <= 4: rgap[G] = 4 * (G - L2) - 1
            elif f == 5: rgap[G] = 4 * (G - 1 - L2) + 1
            elif f <= 10: rgap[G] = 4 * (G - 1 - L2) - 1
            elif f == 11: rgap[G] = 4 * (G - 2 - L2) + 1
            else: rgap[G] = 4 * (G - 2 - L2) - 1
        else: rgap[G] = 4 * (G - L2) - 1
        assert rgap[G] >= 4 * tail(G - NWB) + 3
    pr = Seq()
    for G in range(NG):
        if rgap[G] < 0:
            for p in parts(G): pr.op(read2(G, p))
    s.u[pre_reads_at:pre_reads_at] = pr.units()
    s.wait(gneed(0))
    stamp(s, "loop2")
    prog.add(s.done())
    for G in range(1, NG):
        w = Op("", needs=K(gneed(G)))
        w.keep = sum(len(parts(H)) for H in range(max(0, G - 2), min(NG, G + 10)) if rgap[H] == 4 * G - 1) == 2
        if w.keep or head(G) == G: sc.put(4 * G - 1, [w], 0)
    for G in range(NG):
        if rgap[G] >= 0:
            if rgap[G] % 4 != 3: sc.put(rgap[G], [Op("s_waitcnt lgkmcnt(15)")], 0)
            sc.put(rgap[G], [read2(G, p) for p in parts(G)], 1)
    bar = {}
    for st in range(14):
        if st % B2 != B2 - 1: continue
        bar[st] = 4 * (16 * (st + 1) - L2) - 2
        pub = list(range(st + 1, st + 1 + B2)) if st < 13 else [14, 15, 16, 17]
        sc.put(bar[st], [Op("s_barrier", needs=K([("D2", x, k) for x in pub for k in range(4)]), drain=["lg"])], 0)
    for st in (3, 7, 11):
        for i_, g_ in enumerate((1, 2, 4, 5)):
            sc.put(bar[st] - g_, [Op("v_xor_b32 v%d, 0x10000, v%d" % (vTA + 2 * i_ + k, vTA + 2 * i_ + k)) for k in range(2)], 2)
        assert max(rgap[G] for G in range(16 * st, 16 * st + 16)) < bar[st] - 5
    barF = min(rgap[G] for G in range(NG) if groups[G][0] >= 36) - 1
    sc.put(barF, [Op("s_barrier", needs=K([("D2", x, k) for x in range(18, 22) for k in range(4)]))], 0)
    def mark(o, nm): o.u[-1].append(nm)
    def after(o, nm, n): o.u.append([[Op("")], lambda mk: (mk[nm] + n) if nm in mk else None])
    def dly(o, n): o.u.append([[Op("")], lambda mk: mk["_prev"] + n])
    gl = []
    t = Seq()
    t("v_accvgpr_read_b32 v%d, a%d\nv_accvgpr_read_b32 v%d, a%d\nv_accvgpr_read_b32 v%d, a%d" % (vAG, PK["AG"], vTRW, PK["TRW"], vTRR, PK["TRR"]))
    t("s_mov_b32 s40, s36\ns_mov_b32 s41, s37\ns_mov_b32 s42, 0x40000\ns_mov_b32 s43, 0x20000")
    t("v_lshrrev_b32 v8, 4, v0\nv_cmp_eq_u32 s[64:65], 1, v8\nv_cmp_eq_u32 s[66:67], 2, v8\nv_cmp_eq_u32 s[74:75], 3, v8")
    t.at(cfg.get("ag_gap", 32))
    for x in range(7, -1, -1):
        t("s_mov_b32 s57, %d" % (8192 * x))
        g = "buffer_load_dwordx4 %s, v%d, s[40:43], s57 offen %s" % (R("a", aAG + 4 * x, 4), vAG, SC)
        gl.append("s_mov_b32 s57, %d\n%s" % (8192 * x, g))
        t.vm(g, ("ag", x))
        if x: dly(t, cfg.get("ag_sp", 8))
    mark(t, "ag")
    srd(t, 8, 86, 87, 2048 * 4096)
    flag(t, fstore(32), [("hsS", 3)], early=cfg.get("fb_gap", 80)); mark(t, "flagb")
    after(t, "ag", cfg.get("ag_lat", 20)); t.at(4 * lastuse[0] + 4)
    def ag_horner(o, w):
        cur = None
        for x in range(7, -1, -1):
            q = 48 + 4 * (x % 2)
            if w: o.wait([("ag", x)])
            for r in range(4): o("v_accvgpr_read_b32 v%d, a%d" % (q + r, aAG + 4 * x + r))
            if not w: o(("v_max3_u32 v56, v%d, v%d, v%d\nv_max_u32 v56, v56, v%d" % (q, q + 1, q + 2, q + 3)) if x == 7 else ("v_max3_u32 v56, v56, v%d, v%d\nv_max3_u32 v56, v56, v%d, v%d" % (q, q + 1, q + 2, q + 3)))
            if cur is not None: horner_sc(o, cur, cL64, q)
            cur = q
    ag_horner(t, True)
    t("v_cmp_u_f32 s[70:71], v48, v49")
    t.atom(["v_cmp_u_f32 vcc, v50, v51", "s_or_b64 vcc, vcc, s[70:71]", "s_cbranch_scc1 PAG_retry", "PAG_ok:"])
    ool("PAG_retry:")
    if cfg.get("rc"): RC.append("PAG"); ool("v_readlane_b32 s100, v15, %d\ns_nop 3\ns_add_u32 s100, s100, 100\nv_writelane_b32 v15, s100, %d" % (len(RC), len(RC)))
    ool("\n".join(gl) + "\ns_waitcnt vmcnt(0)")
    ag_horner(ool, False)
    ool("v_cmp_eq_u32 vcc, -1, v56\ns_and_b64 vcc, vcc, exec\ns_cbranch_scc0 PAG_ok\ns_cmp_eq_u32 s79, 0\ns_cbranch_scc1 PAG_ok\ns_sub_u32 s79, s79, 1\ns_sleep 1\ns_branch PAG_retry")
    t.lg("ds_write_b128 v%d, v[48:51] offset:1024" % vEW)
    for g, r in ((3, 52), (2, 56), (1, 60)): t.lg("ds_read_b128 %s, v%d offset:%d" % (Q(r), vER, 1024 + 256 * g), ("s", g))
    t.lg("ds_read_b128 %s, v%d offset:1024" % (Q(48), vER), ("s", 0))
    dly(t, 8)
    t.wait([("s", 2)]); horner_sc(t, 52, cL512, 56)
    t.lg("ds_read_b128 %s, v%d" % (Q(52), vER), ("e2", 0))
    t.wait([("s", 1)]); horner_sc(t, 56, cL512, 60)
    t.lg("ds_read_b128 %s, v%d offset:256" % (Q(56), vER), ("e2", 1))
    t.wait([("s", 0)]); horner_sc(t, 60, cL512, 48)
    t.lg("ds_read_b128 %s, v%d offset:512" % (Q(60), vER), ("e2", 2))
    t.wait([("e2", 0)]); horner_sc(t, 48, cL16, 52)
    t.wait([("e2", 1)]); horner_sc(t, 52, cL16, 56)
    t.wait([("e2", 2)]); horner_sc(t, 56, cL16, 60)
    for g, sm in ((52, 64), (56, 66), (60, 74)):
        for r in range(4): t("v_cndmask_b32 v%d, v%d, v%d, s[%d:%d]" % (48 + r, 48 + r, g + r, sm, sm + 1))
    horner_sc(t, 48, cL8, EA)
    t("v_xor_b32 v52, 16, v%d" % vTRR)
    st_r = {(T, h): (48, EA)[h] + T for T in range(2) for h in range(2)}
    st_i = {(T, h): (48, EA)[h] + 2 + T for T in range(2) for h in range(2)}
    TH = [(T, h) for T in range(2) for h in range(2)]
    xs = Seq()
    for x in range(8):
        for (T, h) in TH: t("v_fmac_f32 v%d, v%d, v%d" % (BR(T, x) + h, cL + T, st_r[T, h]))
        for (T, h) in TH: t("v_fmac_f32 v%d, v%d, v%d" % (BI(T, x) + h, cL + T, st_i[T, h]))
        for (T, h) in TH: t("v_fma_f32 v%d, -v%d, v%d, v%d" % (BR(T, x) + h, cL + 2 + T, st_i[T, h], BR(T, x) + h))
        for (T, h) in TH: t("v_fmac_f32 v%d, v%d, v%d" % (BI(T, x) + h, cL + 2 + T, st_r[T, h]))
        for (T, h) in TH: st_r[T, h] = BR(T, x) + h; st_i[T, h] = BI(T, x) + h
        if x % 2 == 1:
            m = x // 2; mo = (m % 2) * 2048
            for part, Fn in enumerate((BR, BI)):
                for T in range(2):
                    o = 56 + 4 * part + 2 * T
                    t("v_cvt_pk_bf16_f32 v%d, v%d, v%d\nv_cvt_pk_bf16_f32 v%d, v%d, v%d" % (o, Fn(T, x - 1), Fn(T, x - 1) + 1, o + 1, Fn(T, x), Fn(T, x) + 1))
                    t.lg("ds_write_b64 v%d, %s offset:%d" % (vTRW, P(o), mo + part * 1024 + 512 * T))
                t.atom(["s_waitcnt lgkmcnt(15)"] + [Op("ds_read_b64_tr_b16 %s, v%d offset:%d" % (R("a", aAG + 16 * part + 4 * m + 2 * half, 2), (vTRR, 52)[half], mo + part * 1024 + 256 * half), "lg", K(("tr", m, part, half))) for half in range(2)])
                mark(t, ("tr", m, part))
                after(xs, ("tr", m, part), 10)
                if (m, part) != (0, 0) and m < 3: after(xs, ("hl", m - 1 + part, 1 - part), cfg.get("hl_sp", 24))
                xs.vm("buffer_store_dwordx4 %s, v1, s[32:35], s%d offen offset:%d %s" % (R("a", aAG + 16 * part + 4 * m, 4), 72 + part, 1024 * m, hst), ("hl", m, part), needs=[("tr", m, part, 1)])
                mark(xs, ("hl", m, part))
    dly(xs, cfg.get("fc_lat", 60))
    flag(xs, fstore(64), [("hl", 3, 1)]); mark(xs, "flagc")
    t("v_accvgpr_read_b32 v48, a%d\nv_accvgpr_read_b32 v%d, a%d" % (PK["C"], vCA, PK["CA"]))
    for k in range(4): t("s_xor_b32 s65, s%d, %d\ns_lshl_b32 s65, s65, 16\nv_add_u32 v%d, s65, v48" % (sQ, k, vC + k))
    t("s_and_b32 s65, s%d, 1\ns_lshl_b32 s65, s65, 6\nv_xor_b32 v%d, s65, v%d" % (sTN, vCA, vCA))
    t("v_xor_b32 v%d, 64, v%d\nv_add_u32 v%d, 0x10000, v%d\nv_xor_b32 v%d, 64, v%d" % (vCA + 1, vCA, vCA + 2, vCA, vCA + 3, vCA + 2))
    vOO = 28
    t("v_accvgpr_read_b32 v24, a%d\nv_accvgpr_read_b32 v25, a%d\nv_lshlrev_b32 v25, 2, v25\nv_lshl_add_u32 v%d, v24, 12, v25" % (PK["TOK"], PK["COL"], vOO))
    mark(t, "cready")
    RB = lambda u, m: 128 + 16 * u + 4 * m
    after(t, "flagc", 1)
    t("s_lshl_b32 s65, s%d, 3\ns_add_u32 s65, s65, s%d\ns_lshl_b32 s66, s65, 18\ns_lshl_b32 s67, s%d, 14\ns_add_u32 s66, s66, s67\ns_add_u32 s66, s66, 0x%x" % (sI, sTN, sW, WS_PART))
    t.atom(["s_add_u32 s40, s6, s66", "s_addc_u32 s41, s7, 0"])
    t("s_and_b32 s41, s41, 0xffff\ns_mov_b32 s42, 0x34000\ns_mov_b32 s43, 0x20000")
    t("s_lshl_b32 s69, s65, 2\ns_add_u32 s69, s69, s%d\ns_lshl_b32 s69, s69, 7\ns_add_u32 s69, s69, 0x%x" % (sW, SM_F4))
    for d in (1, 2, 3):
        t("s_xor_b32 s67, s%d, %d\ns_lshl_b32 s66, s67, 16\ns_add_u32 s%d, s66, %d" % (sQ, d, 72 + d, (d - 1) * 4096))
        t("s_lshl_b32 s67, s67, 4\ns_add_u32 s67, s67, %d\nv_mov_b32 v%d, s67" % (4 * d, 28 + d))
        t("s_lshl_b32 s67, s%d, 16\ns_add_u32 s%d, s67, %d" % (sQ, 69 + d, (d - 1) * 4096))
    t("s_lshl_b32 s67, s%d, 4\nv_and_b32 v32, 3, v0\nv_lshl_add_u32 v32, v32, 2, s67" % sQ)
    t("s_mov_b32 s57, 0\ns_mov_b32 s58, 8192\ns_mov_b32 s59, 16384\ns_mov_b32 s64, 24576")
    t("v_mov_b32 v34, 0x3f80\nv_mov_b32 v35, 0x3f800000")
    mark(t, "setup")
    if cfg.get("tlb", 0):
        after(t, ("H", 43), 2)
        t.vm("buffer_load_dword a246, v29, s[40:43], s73 offen")
        t("v_readfirstlane_b32 s67, v%d" % vOO); dly(t, 3)
        t.vm("buffer_load_dword a246, v29, s[8:11], s67 offen")
    f4store = lambda d: "buffer_store_dword v%d, v%d, s[36:39], s69 offen %s" % (vTG, 28 + d, SC)
    f4load = "buffer_load_dword v33, v32, s[36:39], s69 offen %s" % SC
    gp = lambda u: 4 * pend_[u] + 3 + 3
    RV = lambda d, m: 128 + 32 * d + 8 * m + 4
    rload = lambda d, m: "buffer_load_dwordx4 %s, v1, s[40:43], s%d offen offset:%d %s" % (Q(RV(d, m)), 69 + d, 1024 * m, SC)
    NFI = cfg.get("nfi", 3); NRI = cfg.get("nri", 1)
    fs = Seq(); rs = Seq(); pl_ = Seq(); assert NFI == 3; NB = str(cfg.get("nb", "1"))
    for d in (1, 2, 3):
        for m in range(4):
            t.at(gp(2 * d + m // 2))
            A = 128 + 32 * d + 8 * m; Bq = A + 4
            t("v_cvt_pk_bf16_f32 v%d, v%d, v%d\nv_cvt_pk_bf16_f32 v%d, v%d, v%d\nv_cvt_pk_bf16_f32 v%d, v%d, v%d\nv_cvt_pk_bf16_f32 v%d, v%d, v%d" % (A, A, A + 1, A + 1, A + 2, A + 3, A + 2, Bq, Bq + 1, A + 3, Bq + 2, Bq + 3))
            mark(t, ("cv", d, m))
            after(xs, ("cv", d, m), 1)
            xs.vm("buffer_store_dwordx4 %s, v1, s[40:43], s%d offen offset:%d %s" % (Q(A), 72 + d, 1024 * m, SC), ("ps", d, m)); mark(xs, ("ps", d, m))
        if d <= NFI:
            after(fs, ("ps", d, 3), cfg.get("f4_lat", 44)); flag(fs, f4store(d), [("ps", d, 3)]); mark(fs, ("f4", d))
        f4l = f4load.replace("v33,", "v%d," % (35 + d))
        after(pl_, ("f4", d), cfg.get("p4_lat", 30)); pl_.vm(f4l, ("f4l", d)); mark(pl_, ("f4l", d))
        after(rs, ("f4l", d), cfg.get("p4_rt", 36))
        if d == 3 and NB != "0" and "3" not in NB: rs.at(10 ** 6)
        if str(d) in NB:
            rs.wait([("f4l", d)])
            rs("v_cmp_ne_u32 s[82:83], s%d, v%d" % (sTAG, 35 + d)); dly(rs, 1)
            rs.atom(["s_and_b32 s%d, s82, %d" % (27 + d, 1 << d), "s_cselect_b32 s47, 0x40000000, s%d" % (69 + d)])
            ool("FX%d:\n%s\ns_waitcnt vmcnt(0)\nv_cmp_ne_u32 vcc, s%d, v%d\ns_and_b64 vcc, vcc, %d\ns_cbranch_scc0 FX%d_go\ns_cmp_eq_u32 s79, 0\ns_cbranch_scc1 FX%d_go\ns_sub_u32 s79, s79, 1\ns_sleep 1\ns_branch FX%d" % (d, f4l, sTAG, 35 + d, 1 << d, d, d, d))
            ool("FX%d_go:\n%s\ns_waitcnt vmcnt(0)\ns_branch FX%d_ret" % (d, "\n".join(rload(d, m) for m in range(4)), d))
        else: poll(rs, "P4%d" % d, f4l, 35 + d, ("f4l", d), mask=str(1 << d))
        for m in range(4):
            rs.vm(rload(d, m).replace("s%d offen" % (69 + d), "s47 offen") if str(d) in NB else rload(d, m), ("pl", d, m)); mark(rs, ("pl", d, m)); dly(rs, cfg.get("r_sp", 8))
    hs = Seq(); hdl = {}
    if not HPN: poll(hs, "P3a0", fload(96), vPD, "f3a0", early=cfg.get("pa_gap", 12))
    for u in range(nh_pre[0], 44):
        if u in own: continue
        for (U, nm, off, fl, lat) in ((UA, "P3a", 0, None, 0), (UB, "P3b", 32, "flagb", cfg.get("pb_lat", 80)), (UC, "P3c", 64, "flagc", cfg.get("pc_lat", 80))):
            if u == (max(U - 2, nh_pre[0]) if U != UC else U):
                if fl: after(hs, fl, lat)
                hs.vm(fload(off), nm); mark(hs, nm + "l")
            if u == U:
                after(hs, nm + "l", cfg.get("poll_rt", 44)); poll(hs, nm, fload(off), vPD, nm); mark(hs, nm)
        n0 = len(hs.u)
        for m in range(4): hload(hs, u, m, max(hfree[u], 4 * firstuse[u] - cfg.get("l2_la", 400)))
        for i in range(n0, len(hs.u)): hdl[i] = 4 * firstuse[u] - 1
        mark(hs, ("H", u))
    ds = Seq(); ddl = {}
    DL = lambda st: bar[st // B2 * B2 - 1] if st < 14 else (bar[13] if st < 18 else barF)
    for st in range(NPRE2, 22):
        n0 = len(ds.u)
        if st == "E":
            after(ds, "cready", 1); after(ds, ("hl", 3, 1), 1)
            for n in range(4):
                ds("s_mov_b32 s%d, %d\ns_add_u32 m0, s46, %d" % (sKD, 32768 * n, 2048 + 1024 * n))
                ds.vm("buffer_load_dwordx4 v26, s[24:27], s%d offen lds" % sKD)
            ds("s_add_u32 m0, s46, 6144"); ds.vm("buffer_load_dwordx4 v1, s[36:39], s59 offen lds")
            ds("s_add_u32 m0, s46, 7168"); ds.vm("buffer_load_dwordx4 v1, s[28:31], s58 offen lds", "Elast"); mark(ds, "edma")
            dl = 900
        else:
            if st == 14: after(ds, "cready", 1)
            for k in range(4): dma2(ds, st, k, bar[prevocc[st] // B2 * B2 + B2 - 1] + 1 if st >= 8 else 0)
            dl = DL(st)
            mark(ds, ("D", st))
        for i in range(n0, len(ds.u)): ddl[i] = dl
    RS = Stream("r", rs.units(), 2, deadline=lambda i: cfg.get("r_prio", -3)); PS = Stream("pl", pl_.units(), 2, deadline=lambda i: -2); RS.overflow = PS.overflow = True
    mk = multi(sc, [Stream("h", hs.units(), 2, deadline=lambda i: hdl.get(i, 0)), Stream("d", ds.units(), 2, deadline=lambda i: ddl.get(i, 0)),
                    Stream("x", xs.units(), 2), Stream("t", t.units(), 3, start=1), RS, PS, Stream("f", fs.units(), 2, deadline=lambda i: -2)],
               cl=cfg.get("cl", 70), cs=cfg.get("cs", 210), B0=cfg.get("b0", 150), busy0=cfg.get("busy0", 300))
    sl = sorted([(4 * firstuse[u] - 1 - mk[("H", u)], "h", u) for u in range(nh_pre[0], 44) if u not in own] + [(DL(st) - mk[("D", st)], "d", st) for st in range(NPRE2, 22)])
    if cfg.get("verbose"):
        print("loop2 slacks", sl[:6], {k: v for k, v in mk.items() if isinstance(k, str)}, "hl", [mk[("hl", m, p)] for m in range(4) for p in range(2)], "ps", [mk[("ps", d, m)] for d in (1, 2, 3) for m in range(4)], "barF", barF, "f4", [mk.get(("f4", d)) for d in (1, 2, 3)], "f4l", [mk.get(("f4l", d)) for d in (1, 2, 3)], "pl", [mk.get(("pl", d, m)) for d in (1, 2, 3) for m in range(4)])
    assert sl[0][0] > cfg.get("minslack", 30), sl[:4]
    assert mk["cready"] < rgap[firstuse[28]] and mk[("hl", 3, 1)] < 4 * firstuse[28] - 1 and mk["setup"] < gp(2) and mk[("tr", 3, 1)] < VFREE
    for nm in names:
        if TS and nm[0] == "g" and nm[1:].isdigit():
            g_ = 4 * (16 * (int(nm[1:]) + 1) - L2) - 2
            sc.put(g_ - 1, [Op("s_memrealtime s[100:101]")], 5)
            sc.put(g_, [Op("s_waitcnt lgkmcnt(0)\nv_writelane_b32 v%d, s100, %d" % (vTS, names.index(nm)))], 5)
    if cfg.get("drop"):
        for g in range(cfg.get("drop_lo", 120), cfg.get("drop_hi", 600)):
            for it in sc.g[g]:
                o = it[2]
                if it[0] in (2, 3) and o.text and "\n" not in o.text and not o.text.endswith(":"):
                    c = opclass(o.text)
                    if it[0] == 2 and not (c == "X" and "x4" in o.text): continue
                    if c in cfg["drop"] and "cmp" not in o.text and not any(("v%d," % r) in o.text.split(None, 2)[1] + "," for r in range(16, 32)):
                        o.text = "s_nop 0" if cfg.get("dropnop") else ""
    prog.add(sc.ops())
    stamp(s, "end2")
    def addp(d, m):
        s.wait([("pl", d, m)])
        for k in range(8):
            r = 128 + 8 * m + k
            s("v_dot2_f32_bf16 v%d, v%d, v%d, v%d" % (r, RV(d, m) + k // 2, 34 + k % 2, r))
    for d in (1, 2):
        if str(d) in NB:
            assert ("pl", d, 3) in mk
            s("s_cmp_lg_u32 s%d, 0\ns_cbranch_scc1 FX%d" % (27 + d, d)); s.atom(["FX%d_ret:" % d])
    for un in PS.units[PS.pos:]: s.u.append([un[0], None])
    added = set()
    for un in RS.units[RS.pos:]:
        if un[0][0].needs and not un[0][0].text and NB == "0":
            for d in (1, 2):
                for m in range(4):
                    if ("pl", d, m) in mk and (d, m) not in added: addp(d, m); added.add((d, m))
        s.u.append([un[0], None])
    stamp(s, "poll4")
    for d in (1, 2):
        for m in range(4):
            if (d, m) not in added: addp(d, m)
    sM4 = [57, 58, 59, 64]
    for m in range(4):
        addp(3, m)
        stamp(s, "r%d" % m)
        s.vm("buffer_store_dwordx4 %s, v%d, s[8:11], s%d offen offset:%d %s" % (Q(128 + 8 * m), vOO, sM4[2 * (m % 2)], 64 * (m // 2), cfg.get("ost", SC)))
        s("s_nop 1")
        s.vm("buffer_store_dwordx4 %s, v%d, s[8:11], s%d offen offset:%d %s" % (Q(132 + 8 * m), vOO, sM4[2 * (m % 2) + 1], 64 * (m // 2), cfg.get("ost", SC)))
    prog.add(s.done())
    prog.emit(a)
    a("s_cmp_eq_u32 s%d, 31\ns_cbranch_scc0 L_noep\ns_cmp_eq_u32 s%d, 0\ns_cbranch_scc0 L_noep" % (sB, sJ))
    a("v_mov_b32 v40, 0x%x\ns_mov_b64 exec, 1\nbuffer_store_dword v%d, v40, s[36:39], 0 offen %s\ns_mov_b64 exec, -1" % (SM_EP, vTG, SC))
    a("L_noep:")
    if TS:
        a("s_waitcnt vmcnt(0)\ns_memrealtime s[100:101]\ns_waitcnt lgkmcnt(0)\nv_writelane_b32 v%d, s100, %d" % (vTS, len(names) - 1))
        a("s_cmp_lg_u32 s%d, %d\ns_cbranch_scc1 L_end" % (sW, cfg.get("tsw", 0)))
        if cfg.get("leak"):
            A, B = cfg["leak"].split(":")
            a("s_cmp_lg_u32 s2, %d\ns_cbranch_scc1 L_end" % cfg.get("leakwg", 100))
            a("v_readlane_b32 s64, v%d, %d\nv_readlane_b32 s65, v%d, %d\ns_nop 4\ns_sub_u32 s64, s65, s64\ns_mul_i32 s64, s64, %d\ns_min_u32 s64, s64, 200000" % (vTS, names.index(A), vTS, names.index(B), cfg.get("leakk", 8)))
            a("L_leak:\ns_memrealtime s[66:67]\ns_waitcnt lgkmcnt(0)\ns_sub_u32 s66, s66, s100\ns_cmp_lt_u32 s66, s64\ns_cbranch_scc1 L_leak")
        ws_srd(a, 12, WS_TS, 16384)
        a("s_lshl_b32 s75, s2, 6\nv_lshlrev_b32 v1, 2, v0\ns_mov_b64 exec, 0xffff\nbuffer_store_dword v%d, v1, s[12:15], s75 offen" % vTS)
    if cfg.get("rc"): STAMPS[1:1 + len(RC)] = RC
    a("L_end:")
    a("s_endpgm")
    if ".p2align 12" in a.lines and cfg.get("oolf", 1):
        i = a.lines.index(".p2align 12"); a.lines[i:i] = ool.lines
    else: a.lines += ool.lines
    a("L_codeend:")
    return name, a

DOC = """;
; instruction placed by hand-written rules into the issue gaps between the 16x16x32 bf16 MFMAs).
;   phase 1  [gate | up | B_re | B_im] projection, tile 256 x 288, weights by LDS-DMA, xn straight into registers
;   phase 2  [w_down ; C_re ; -C_im] projection, tile 256 x 128, K split over 4 workgroups, partial sums exchanged
"""

def inst_sizes(lines):
    import subprocess, tempfile, os, re
    d = tempfile.mkdtemp()
    und = sorted(set(re.findall(r"L_trB?\d+\b", "\n".join(lines))))
    open(d + "/a.s", "w").write('.amdgcn_target "amdgcn-amd-amdhsa--gfx950"\n' + "\n".join(l for l in lines if not l.startswith(".p2align 12")) + "\n" + "".join(u + ":\n" for u in und))
    subprocess.check_call(["clang", "-x", "assembler", "-target", "amdgcn-amd-amdhsa", "-mcpu=gfx950", "-c", d + "/a.s", "-o", d + "/a.o"])
    o = subprocess.check_output(["llvm-objdump", "-d", "--mcpu=gfx950", d + "/a.o"], text=True)
    sz = [4 * len(m.group(1).split()) for m in re.finditer(r"// [0-9A-F]+: ([0-9A-F ]+)", o)]
    n = sum(1 for l in lines if parse(l))
    assert n == len(sz), (n, len(sz))
    return sz

def add_stubs(lines, cfg):
    NL = 1; step = cfg.get("tr_step", 128)
    sz = iter(inst_sizes(lines)); size = [next(sz) if parse(l) else 0 for l in lines]
    i0 = lines.index("L_main:"); iend = lines.index("L_end:")
    out = lines[:i0 + 1]; off = 0; targets = [4096 * p + step * k for p in range(0, 40) for k in range(NL)]
    n = 0; pos = []
    def penalty(i):
        if not lines[i - 1].startswith("v_mfma"): return 0 if not any(l.startswith("v_mfma") for l in lines[max(0, i - 6):i + 6]) else 1
        j = i; c = ["S"]
        while not lines[j].startswith("v_mfma") and j - i < 8:
            try: c.append(opclass(lines[j]))
            except AssertionError: return 0
            j += 1
        t = gap_time(c)
        return 0 if (t is not None and t <= 16) else 1
    for i in range(i0 + 1, len(lines)):
        if i < iend and size[i] and off >= targets[n] and (penalty(i) == 0 or off + size[i] > targets[n] + 56):
            out.append("L_tr%d:" % n); out.append(("STUB", n)); off += 4; n += 1
        out.append(lines[i]); off += size[i]
    n1 = min(n, cfg.get("tr_n", 14))
    res = []
    for l in out:
        if isinstance(l, tuple):
            k = l[1]; nx = k + 4
            if k < n1: res.append("s_cbranch_execz %s" % ("L_tr%d" % nx if nx < n1 else "L_trret"))
            elif cfg.get("tr2", 1): res.append("s_cbranch_execz %s" % ("L_tr%d" % nx if nx < n else "L_trret2"))
            else: res.append("s_nop 0")
        elif "L_trB" in l:
            k = n1 + int(l[-1]); res.append(l.replace("L_trB" + l[-1], "L_tr%d" % k if k < n else "L_trret2"))
        else: res.append(l)
    if cfg.get("verbose"): print("pages", n)
    return res

def build(cfg):
    name, a = gen(cfg)
    hdr = open("cdna_kernels/%s.s.ref" % NAME).read().split("; Override launch")[0]
    out = hdr + "; @launch grid=(256,1,1) block=(256,1,1) lds=163840\n"
    out += DOC
    out += '.amdgcn_target "amdgcn-amd-amdhsa--gfx950"\n'
    lines = pad_hazards([l for l in a.lines if l], cfg.get("verbose", 0) > 1)
    if cfg.get("tramp", 1): lines = add_stubs(lines, cfg)
    if cfg.get("verbose"): print(gap_report(lines))
    if cfg.get("lsc"): lines = [l.replace("sc0 sc1", cfg["lsc"]) if l.startswith("buffer_load") else l for l in lines]
    if cfg.get("jit"):
        import random
        rnd = random.Random(cfg["jit"]); outl = []; n = 0; nm = 0
        at = set(rnd.sample(range(3712), 10)) | {0, 150, 2303, 2304}
        for l in lines:
            hit = False
            if l.startswith("v_mfma"):
                hit = nm in at; nm += 1
            if l.startswith(("P1_chk:", "P1b_chk:", "L_trret2:", "L_epi:")) or "agfill" in l: hit = True
            if hit:
                n += 1
                outl += ["s_cselect_b32 s101, 1, 0", "s_mul_i32 s100, s2, %d" % rnd.randrange(1, 1 << 12, 2), "s_add_u32 s100, s100, s62" if rnd.random() < 0.5 else "s_nop 0", "s_bfe_u32 s100, s100, 0x%x" % (0x40000 + rnd.randrange(0, 4)),
                         "s_cmp_lg_u32 s100, %d" % rnd.randrange(16), "s_cbranch_scc1 L_jit%d" % n] + ["s_sleep 127"] * rnd.randrange(1, 3) + ["L_jit%d:" % n, "s_cmp_eq_u32 s101, 1"]
            outl.append(l)
        lines = outl
    la = cfg.get("laux"); da = cfg.get("daux")
    if la: lines = [l + " " + la if (l.startswith("buffer_load_dwordx4 a[") and "sc1" not in l) else l for l in lines]
    if da: lines = [l.replace(" lds", " %s lds" % da) if l.endswith(" lds") else l for l in lines]
    out += "\n".join(lines) + "\n"
    if cfg.get("cyc"): out = out.replace("s_memrealtime", "s_memtime")
    b = Asm(); kernel_desc(b, name, 512, accum=256); out += b.text()
    return out

if __name__ == "__main__":
    cfg = {}
    for kv in sys.argv[2:]:
        k, v = kv.split("=")
        try: v = int(v)
        except ValueError:
            try: v = float(v)
            except ValueError: v = v.replace("+", " ")
        cfg[k] = v
    open(sys.argv[1], "w").write(build(cfg))
```

```python
import sys, math, struct
from asmlib import *

NAME = "parallel_sum__ssm_conv_s5__glu_gated_geglu__prompt"
KX, KLRE, KLIM, KBRE, KBIM, KCRE, KCIM, KLDT, KDSK, KBX, KWG, KWU, KWD, KOUT, KDBG, KWS = [8 * i for i in range(16)]
WS_XN = 0
WS_H = 0x400000
H_BLK = 176 * 4096
WS_SM = 0x1A00000
SM_AG = 0; SM_ST = 0x40000; SM_EP = 0x48000; SM_F1 = 0x50000; SM_F1B = 0x60000; SM_F3 = 0x70000; SM_F4 = 0xB0000; SM_SIZE = 0xF0000
WS_TS = 0x1B00000
WS_PART = 0x2000000
NSTAMPS = [16]
SPLIT_LAYOUT = True
XN_DIRECT = 0
STAMPS = []

def f2u(x): return struct.unpack("<I", struct.pack("<f", x))[0]
def fx(x): return "0x%08x" % f2u(x)
P = lambda r: "v[%d:%d]" % (r, r + 1)
Q = lambda r: "v[%d:%d]" % (r, r + 3)
LOG2E = 1.4426950408889634
K = lambda v: (lambda it: v)

def ws_srd(a, r, off, size):
    a("s_add_u32 s%d, s6, 0x%x\ns_addc_u32 s%d, s7, 0\ns_and_b32 s%d, s%d, 0xffff\ns_mov_b32 s%d, 0x%x\ns_mov_b32 s%d, 0x20000" % (r, off, r + 1, r + 1, r + 1, r + 2, size, r + 3))

def mfma16(d, A, B, zero=False):
    return "v_mfma_f32_16x16x32_bf16 %s, %s, %s, %s" % (R(d[0], d[1], 4), R(A[0], A[1], 4), R(B[0], B[1], 4), "0" if zero else R(d[0], d[1], 4))

def cmul_pk(a, dr, di, ar, ai, br, bi, t):
    a("v_pk_mul_f32 %s, %s, %s" % (P(t), P(ai), P(bi)))
    a("v_pk_fma_f32 %s, %s, %s, %s neg_lo:[0,0,1] neg_hi:[0,0,1]" % (P(t), P(ar), P(br), P(t)))
    a("v_pk_mul_f32 %s, %s, %s" % (P(t + 2), P(ar), P(bi)))
    a("v_pk_fma_f32 %s, %s, %s, %s" % (P(di), P(ai), P(br), P(t + 2)))
    a("v_mov_b32 v%d, v%d\nv_mov_b32 v%d, v%d" % (dr, t, dr + 1, t + 1))

def horner_pk(a, s, L, e, d):
    a("v_pk_fma_f32 %s, %s, %s, %s" % (P(d), P(L), P(s), P(e)))
    a("v_pk_fma_f32 %s, %s, %s, %s" % (P(d + 2), P(L), P(s + 2), P(e + 2)))
    a("v_pk_fma_f32 %s, %s, %s, %s neg_lo:[1,0,0] neg_hi:[1,0,0]" % (P(d), P(L + 2), P(s + 2), P(d)))
    a("v_pk_fma_f32 %s, %s, %s, %s" % (P(d + 2), P(L + 2), P(s), P(d + 2)))

def horner_sc(a, s, L, e):
    for T in range(2):
        a("v_fmac_f32 v%d, v%d, v%d" % (e + T, L + T, s + T)); a("v_fmac_f32 v%d, v%d, v%d" % (e + 2 + T, L + T, s + 2 + T))
    for T in range(2):
        a("v_fma_f32 v%d, -v%d, v%d, v%d" % (e + T, L + 2 + T, s + 2 + T, e + T)); a("v_fmac_f32 v%d, v%d, v%d" % (e + 2 + T, L + 2 + T, s + T))

def gelu_block(a, items, CC, T):
    for k, (g, u, o) in enumerate(items): a("v_pk_mul_f32 %s, %s, %s" % (P(T + 2 * k), P(g), P(g)))
    for k, (g, u, o) in enumerate(items): a("v_pk_fma_f32 %s, %s, %s, %s op_sel:[0,1,0] op_sel_hi:[1,1,0]" % (P(T + 2 * k), P(T + 2 * k), P(CC), P(CC)))
    for k, (g, u, o) in enumerate(items): a("v_pk_mul_f32 %s, %s, %s" % (P(T + 2 * k), P(T + 2 * k), P(g)))
    for k, (g, u, o) in enumerate(items):
        a("v_exp_f32 v%d, v%d" % (T + 2 * k, T + 2 * k)); a("v_exp_f32 v%d, v%d" % (T + 2 * k + 1, T + 2 * k + 1))
        a("v_pk_mul_f32 %s, %s, %s" % (P(u), P(g), P(u)))
    for k, (g, u, o) in enumerate(items): a("v_pk_add_f32 %s, %s, 1.0 op_sel_hi:[1,0]" % (P(T + 2 * k), P(T + 2 * k)))
    for k, (g, u, o) in enumerate(items):
        a("v_rcp_f32 v%d, v%d" % (T + 2 * k, T + 2 * k)); a("v_rcp_f32 v%d, v%d" % (T + 2 * k + 1, T + 2 * k + 1))
    for k, (g, u, o) in enumerate(items): a("v_pk_mul_f32 %s, %s, %s" % (P(u), P(u), P(T + 2 * k)))
    for k, (g, u, o) in enumerate(items): a("v_cvt_pk_bf16_f32 v%d, v%d, v%d" % (o, u, u + 1))

class Seq:
    def __init__(self): self.u = []
    def __call__(self, s):
        for l in s.split("\n"):
            l = l.strip()
            assert not l.startswith(("buffer_", "global_", "ds_")), ("uncounted memory op", l)
            self.u.append([[Op(l)], None])
    def atom(self, ops, early=None): self.u.append([[o if isinstance(o, Op) else Op(o) for o in ops], early])
    def vm(self, text, tag=None, needs=None, early=None):
        if needs: self.wait(needs, early=early); early = None
        self.u.append([[Op(text, "vm", K(tag) if tag is not None else None)], early])
    def lg(self, text, tag=None, needs=None):
        if needs: self.wait(needs)
        self.u.append([[Op(text, "lg", K(tag) if tag is not None else None)], None])
    def wait(self, needs, drain=None, early=None): self.u.append([[Op("", needs=K(needs) if needs else None, drain=drain)], early])
    def op(self, o, early=None): self.u.append([[o], early])
    def delay(self, n):
        self._d = n; i = len(self.u) - 1
        self.u.append([[Op("")], lambda res, n=n: res[-1] + n])
    def at(self, g): self.u.append([[Op("")], g])
    def done(self):
        o = [x for un, _ in self.u for x in un]; self.u = []; return o
    def units(self):
        u = self.u; self.u = []; return u

def order_mfma(groups):
    ch = [groups[2 * p][1] == groups[2 * p + 1][1] for p in range(len(groups) // 2)]
    out = []; up = True
    for p, c in enumerate(ch):
        if c:
            for m in (range(4) if up else range(3, -1, -1)): out += [(2 * p, m), (2 * p + 1, m)]
            up = not up
        else:
            for G in (2 * p, 2 * p + 1):
                out += [(G, m) for m in (range(4) if up else range(3, -1, -1))]; up = not up
    return out, (lambda G: G & ~1 if ch[G // 2] else G), (lambda G: G | 1 if (G >= 0 and ch[G // 2]) else G)

W_ST = 28672; U_OFF = 14336
B_BASE = 131072; B_ST = 8192
LN_LDS = 65536 + W_ST

def gen(cfg):
    name = NAME + "_kernel"
    a = Asm(); kernel_header(a, name)
    ool = Asm()
    TS = cfg.get("ts")
    names = ["start"] + cfg.get("stamps", "flag1 poll1 loop1 end1 p01 pub loop2 end2 poll4").split() + ["end"]
    STAMPS[:] = names; NSTAMPS[0] = len(names)
    vTS = 15; RC = []
    def stamp(s, nm):
        if TS and nm in names: s.atom(["s_memrealtime s[100:101]", "s_waitcnt lgkmcnt(0)", "v_writelane_b32 v%d, s100, %d" % (vTS, names.index(nm))])
    SC = cfg.get("sc", "sc0 sc1")
    HL = cfg.get("hl", "sc1")
    F4M = cfg.get("f4m", 1); F3M = cfg.get("f3m", 0); FBW = cfg.get("fbw", 0)
    FS = cfg.get("f1s", 128)
    prog = Prog(); s = Seq()
    sJ, sI, sW, sB, sQ, sTN, sTAG = 60, 61, 62, 63, 52, 53, 3
    sMW, sM3, sMB, sKW, sKB, sKX, sCNT = 54, 55, 56, 57, 58, 59, 81
    sPAs, sKPA, sKPB, sPBs = 76, 77, 78, 80
    def poll(s, nm, loadtext, dst, tagneed, mask=None, early=None):
        s.wait([tagneed], early=early)
        s.atom(["%s_chk:" % nm, "v_cmp_ne_u32 vcc, s%d, v%d" % (sTAG, dst), "s_and_b64 vcc, vcc, %s" % (mask or "exec"), "s_cbranch_scc1 %s_retry" % nm, "%s_ok:" % nm])
        ool("%s_retry:" % nm)
        if cfg.get("rc"): RC.append(nm); ool("v_readlane_b32 s100, v15, %d\ns_nop 3\ns_add_u32 s100, s100, 100\nv_writelane_b32 v15, s100, %d" % (len(RC), len(RC)))
        ool("%s_r2:\ns_cmp_eq_u32 s79, 0\ns_cbranch_scc1 %s_ok\ns_sub_u32 s79, s79, 1\ns_sleep %d\n%s\ns_waitcnt vmcnt(0)\ns_branch %s_chk" % (nm, nm, cfg.get("psl", 1), loadtext, nm))
    def flag(s, text, needs, early=None):
        s.wait(needs, early=early)
        s.atom(["s_mov_b64 exec, %d" % (15 if "x4" in text else 1), Op(text, "vm"), "s_mov_b64 exec, -1"])

    s("s_cmp_ge_u32 s2, 256\ns_cbranch_scc1 L_end")
    if cfg.get("gx"): s("s_xor_b32 s2, s2, %d" % cfg["gx"])
    if TS: s("s_memrealtime s[100:101]")
    CP = cfg.get("cpf", 1)
    s("s_load_dwordx2 s[4:5], s[0:1], %d" % KX)
    s("s_load_dwordx2 s[6:7], s[0:1], %d" % KWS)
    s("s_load_dwordx4 s[12:15], s[0:1], %d" % KWG)
    s("s_load_dwordx4 s[24:27], s[0:1], %d" % KBRE)
    s("s_load_dwordx4 s[96:99], s[0:1], %d" % KLRE)
    s("s_load_dwordx4 s[92:95], s[0:1], %d" % KLDT)
    s("s_load_dwordx4 s[84:87], s[0:1], %d" % KWD)
    s("s_load_dwordx4 s[88:91], s[0:1], %d" % KCRE)
    if CP:
        s("s_getpc_b64 s[82:83]")
        s.atom(["L_pc:"])
        s("s_lshr_b32 s64, s2, 3\ns_mul_i32 s64, s64, 28\nv_add_u32 v3, s64, v0\nv_cmp_gt_u32 vcc, 64, v0\nv_cndmask_b32 v2, v3, v0, vcc\nv_lshlrev_b32 v2, 7, v2")
        s("v_min_u32 v2, L_codeend-L_pc-4, v2\nv_mov_b32 v3, 0\nv_lshl_add_u64 v[2:3], v[2:3], 0, s[82:83]")
        s("v_cmp_gt_u32 vcc, 92, v0\ns_and_saveexec_b64 s[66:67], vcc\ns_cbranch_execz L_nocp")
        s.atom([Op("global_load_dword a246, v[2:3], off")])
        s.atom(["L_nocp:", "s_mov_b64 exec, -1"])
    s("v_lshrrev_b32 v1, 6, v0\nv_and_b32 v0, 63, v0")
    s("v_readfirstlane_b32 s%d, v1" % sW)
    s("v_lshlrev_b32 v1, 4, v0")
    s("s_mov_b32 s79, 0x40000")
    s("s_bfe_u32 s%d, s2, 0x20001" % sQ)
    s("s_and_b32 s64, s2, 1\ns_lshl_b32 s64, s64, 2\ns_lshr_b32 s%d, s2, 6\ns_add_u32 s%d, s%d, s64" % (sI, sI, sI))
    s("s_bfe_u32 s%d, s2, 0x30003" % sTN)
    s("s_lshl_b32 s%d, s%d, 3\ns_add_u32 s%d, s%d, s%d" % (sJ, sQ, sJ, sJ, sTN))
    s("s_lshl_b32 s%d, s%d, 2\ns_add_u32 s%d, s%d, s%d" % (sB, sI, sB, sB, sW))
    s("s_and_b32 s64, s2, 1\ns_lshl_b32 s64, s64, 1\ns_lshr_b32 s65, s%d, 1\ns_add_u32 s64, s64, s65\ns_lshl_b32 s64, s64, 4" % sW)
    s("s_lshl_b32 s65, s%d, 1\ns_add_u32 s64, s64, s65" % sQ)
    s("s_lshr_b32 s66, s2, 3\ns_lshl_b32 s65, s66, 6\ns_add_u32 s64, s64, s65")
    s("s_lshl_b32 s67, s64, 11\ns_and_b32 s68, s%d, 1\ns_lshl_b32 s65, s68, 8\ns_add_u32 s67, s67, s65" % sW)
    LQ = cfg.get("lq", 1)
    if LQ: s("v_and_b32 v48, 15, v0\nv_bfe_u32 v56, v0, 1, 1\nv_and_b32 v57, 1, v0\nv_lshl_add_u32 v56, v57, 3, v56\nv_lshrrev_b32 v57, 2, v0\nv_lshlrev_b32 v40, 11, v56\nv_lshl_add_u32 v40, v57, 4, v40")
    else: s("v_and_b32 v48, 15, v0\nv_lshrrev_b32 v56, 5, v0\nv_bfe_u32 v57, v0, 4, 1\nv_lshl_add_u32 v56, v57, 3, v56\nv_lshlrev_b32 v40, 11, v56\nv_lshl_add_u32 v40, v48, 4, v40")
    s("s_mov_b32 s10, %d\ns_mov_b32 s11, 0x20000" % (2048 * 2048))
    s("s_waitcnt lgkmcnt(0)")
    if TS: s("v_writelane_b32 v%d, s100, 0" % vTS)
    if cfg.get("rc"): s("v_mov_b32 v15, 0")
    stamp(s, "karg")
    s("s_mov_b32 s8, s4\ns_and_b32 s9, s5, 0xffff")
    for q in range(4): s.vm("buffer_load_dwordx4 %s, v40, s[8:11], s67 offen offset:%d" % (Q(64 + 4 * q), 512 * q), ("x", q))
    s("s_add_u32 s70, s6, 0x%x\ns_addc_u32 s71, s7, 0" % (WS_SM + SM_EP))
    s("s_load_dword s%d, s[70:71], 0" % sTAG)
    srd(s, 16, 14, 15, 1024 * 7168); srd(s, 12, 12, 13, 1024 * 7168)
    srd(s, 28, 26, 27, 1024 * 2048); srd(s, 24, 24, 25, 1024 * 2048)
    s("s_cmp_ge_u32 s%d, 2" % sW)
    s("s_cselect_b32 s20, s16, s12\ns_cselect_b32 s21, s17, s13\ns_mov_b32 s22, %d\ns_mov_b32 s23, 0x20000" % (1024 * 7168))
    ws_srd(s, 36, WS_SM, SM_SIZE)
    s("v_lshrrev_b32 v49, 4, v0")
    WGF = 1; vP1 = 63
    s("v_and_b32 v60, 31, v0\nv_lshlrev_b32 v60, 2, v60\ns_lshl_b32 s81, s%d, 7\ns_add_u32 s81, s81, 0x%x" % (sB, SM_F1B))
    s("v_and_b32 v63, 7, v0\nv_lshlrev_b32 v63, 6, v63\ns_lshl_b32 s75, s%d, 11\ns_lshl_b32 s65, s%d, 9\ns_add_u32 s75, s75, s65\ns_add_u32 s75, s75, 0x%x" % (sB, sQ, SM_F1))
    if FBW: s("s_add_u32 s81, s75, 0x%x" % (SM_F1B - SM_F1))
    FT = cfg.get("ftouch", 2)
    if FT & 4: s.vm("buffer_load_dword a246, v63, s[36:39], s75 offen %s" % SC)
    if FT & 1: s.vm("buffer_load_dword a246, v60, s[36:39], s81 offen %s" % SC)
    s("v_mov_b32 v41, -1\nv_lshlrev_b32 v42, 2, v0\ns_xor_b32 s69, s2, 0xf8\ns_lshl_b32 s69, s69, 10\ns_lshl_b32 s65, s%d, 8\ns_add_u32 s69, s69, s65" % sW)
    s.vm("buffer_store_dword v41, v42, s[36:39], s69 offen %s" % SC, "agfill")
    vWA, vBA0, vBA1, vWA2, vW0, vW3, vB, vJ, vPA, vPB = 2, 3, 4, 5, 6, 9, 10, 12, 13, 14
    s("s_lshl_b32 s70, s66, 1\ns_and_b32 s65, s2, 1\ns_add_u32 s70, s70, s65")
    s("s_mul_i32 s69, s70, 7168\ns_mul_i32 s65, s%d, 1792\ns_add_u32 s69, s69, s65\nv_and_b32 v40, 31, v0\nv_min_u32 v40, 13, v40\nv_lshl_add_u32 v44, v40, 7, s69" % sQ)
    s("v_and_b32 v45, 3, v0\ns_lshl_b32 s69, s%d, 8\ns_lshl_b32 s65, s70, 2\ns_add_u32 s69, s69, s65\nv_add_u32 v45, s69, v45\nv_lshlrev_b32 v45, 11, v45" % sQ)
    if cfg.get("pfd"):
        n_ = cfg["pfd"]
        s("s_and_b32 s65, s2, 1\ns_mul_i32 s69, s65, %d\ns_add_u32 s69, s69, 7168\ns_mul_i32 s65, s65, %d\ns_add_u32 s65, s65, 8192\nv_cmp_gt_u32 vcc, 32, v0" % (-2 * 7168, -2 * 8192))
        s("v_mov_b32 v40, s69\nv_mov_b32 v43, %d\nv_cndmask_b32 v40, v40, v43, vcc\nv_add_u32 v44, v44, v40\nv_mov_b32 v40, s65\nv_mov_b32 v43, %d\nv_cndmask_b32 v40, v40, v43, vcc\nv_add_u32 v45, v45, v40" % (n_ * 64 * 7168, n_ * 128))
    s("s_mov_b32 s69, %d\ns_cmp_ge_u32 s%d, 2\ns_cselect_b64 vcc, -1, 0\nv_cndmask_b32 v%d, v44, v45, vcc\ns_cselect_b32 s%d, 128, s69" % (64 * 7168, sW, vPA, sPAs))
    s("s_cselect_b32 s40, s24, s12\ns_cselect_b32 s41, s25, s13\ns_cselect_b32 s69, s28, s16\ns_cselect_b32 s65, s29, s17\ns_cselect_b32 s42, s26, s14")
    s("s_bitcmp1_b32 s%d, 0\ns_cselect_b32 s40, s69, s40\ns_cselect_b32 s41, s65, s41\ns_mov_b32 s43, 0x20000\ns_mov_b32 s%d, 0" % (sW, sKPA))
    def pfa(s):
        s.vm("buffer_load_dword a246, v%d, s[40:43], s%d offen" % (vPA, sKPA)); s("s_add_u32 s%d, s%d, s%d" % (sKPA, sKPA, sPAs))
    def pfb(s):
        s.vm("buffer_load_dword a246, v%d, s[44:47], s%d offen" % (vPB, sKPB)); s("s_add_u32 s%d, s%d, s%d" % (sKPB, sKPB, sPBs))
    ND = cfg.get("dup0", 0)
    if ND:
        s("s_and_b32 s65, s2, 1\ns_lshl_b32 s65, s65, 1\ns_sub_u32 s65, 1, s65\ns_cmp_ge_u32 s%d, 2\ns_mov_b32 s69, 7168\ns_cselect_b32 s69, 8192, s69\ns_mul_i32 s69, s69, s65" % sW)
        s("v_lshrrev_b32 v43, 5, v0\nv_mul_lo_u32 v43, v43, s69\nv_add_u32 v%d, v%d, v43" % (vPA, vPA))
        for _ in range(ND): pfa(s)
        s("v_sub_u32 v%d, v%d, v43" % (vPA, vPA))
    if cfg.get("pfd"): s("s_mov_b32 exec_lo, 0")
    for _ in range(cfg.get("pf_t0", 3) - ND): pfa(s)
    if cfg.get("pfd"): s("s_mov_b64 exec, -1\ns_mul_i32 s%d, s%d, %d" % (sKPA, sPAs, cfg.get("pf_t0", 3) - cfg["pfd"]))
    AS = cfg.get("asym", 0)
    if AS & 1:
        s("s_and_b32 s65, s2, 1\ns_lshl_b32 s65, s65, 1\ns_sub_u32 s65, 1, s65\ns_cmp_ge_u32 s%d, 2\ns_mov_b32 s69, 7168\ns_cselect_b32 s69, 8192, s69\ns_mul_i32 s69, s69, s65" % sW)
        s("v_lshrrev_b32 v43, 5, v0\nv_mul_lo_u32 v43, v43, s69\nv_add_u32 v%d, v%d, v43" % (vPA, vPA))
        s("s_getreg_b32 s65, hwreg(HW_REG_XCC_ID, 0, 1)\ns_cmp_eq_u32 s65, %d\ns_cselect_b32 s%d, 0x40000000, s%d" % (0 if AS & 4 else 1, sKPA, sKPA))
    s("s_and_b32 s71, s%d, 1\ns_lshl_b32 s71, s71, 1\ns_mul_i32 s72, s%d, 224\ns_and_b32 s73, s%d, 1\ns_add_u32 s73, s73, 12" % (sJ, sJ, sW))
    for k in range(4):
        if k < 3: s("s_add_u32 s69, s%d, %d\ns_lshl_b32 s69, s69, 6" % (sW, 4 * k))
        else: s("s_lshl_b32 s69, s73, 6")
        s("v_add_u32 v40, s69, v0\nv_mul_u32_u24 v44, 4682, v40\nv_lshrrev_b32 v44, 16, v44\nv_mul_u32_u24 v45, 14, v44\nv_sub_u32 v45, v40, v45")
        s("v_add_u32 v45, s71, v45\nv_subrev_u32 v43, 14, v45\nv_min_u32 v45, v45, v43")
        s("v_lshrrev_b32 v43, 1, v44\nv_xor_b32 v43, v43, v44\nv_and_b32 v43, 4, v43\nv_mul_u32_u24 v43, 3, v43\nv_xor_b32 v44, v44, v43")
        s("v_mul_u32_u24 v44, 7168, v44\nv_lshl_add_u32 v44, v45, 4, v44\nv_add_u32 v%d, s72, v44" % (vW0 + k))
    s("v_lshrrev_b32 v50, 3, v0\ns_lshl_b32 s69, s%d, 3\nv_add_u32 v40, s69, v50\nv_bfe_u32 v44, v40, 1, 3\nv_and_b32 v51, 7, v0\nv_xor_b32 v44, v44, v51" % sW)
    s("v_lshlrev_b32 v47, 11, v40\nv_lshl_add_u32 v47, v44, 4, v47")
    s("s_lshl_b32 s69, s%d, 16\nv_add_u32 v%d, s69, v47" % (sJ, vB))
    s("s_lshl_b32 s%d, s%d, 10\ns_lshl_b32 s%d, s73, 10" % (sMW, sW, sM3))
    s("s_cmp_ge_u32 s%d, 2\ns_cselect_b32 s69, %d, 0\ns_add_u32 s%d, s%d, s69\ns_add_u32 s%d, s%d, %d" % (sW, U_OFF, sM3, sM3, sMB, sMW, B_BASE))
    s("s_lshl_b32 s65, s%d, 9\ns_add_u32 s65, s65, 57344\nv_lshl_add_u32 v52, v0, 3, s65\nv_xor_b32 v54, 512, v52" % sW)
    if LQ: s("v_lshlrev_b32 v55, 12, v49\nv_lshrrev_b32 v44, 2, v48\nv_lshl_add_u32 v55, v44, 8, v55\nv_and_b32 v44, 48, v1\nv_add_u32 v55, v55, v44")
    else: s("v_lshrrev_b32 v55, 2, v48\nv_lshlrev_b32 v55, 12, v55\nv_and_b32 v44, 3, v0\nv_lshl_add_u32 v55, v44, 8, v55\nv_lshl_add_u32 v55, v49, 4, v55")
    s("s_lshl_b32 s70, s66, 17\ns_lshl_b32 s67, s%d, 10\ns_add_u32 s70, s70, s67\ns_and_b32 s67, s2, 1\ns_lshl_b32 s67, s67, 7\ns_add_u32 s70, s70, s67" % sQ)
    s("s_lshr_b32 s67, s%d, 1\ns_lshl_b32 s67, s67, 6\ns_add_u32 s70, s70, s67\ns_lshl_b32 s67, s68, 14\ns_add_u32 s70, s70, s67" % sW)
    s("s_add_u32 s71, s70, 32768\ns_add_u32 s72, s70, 65536\ns_add_u32 s73, s70, 98304")
    s("s_lshl_b32 s74, s2, 7\ns_lshr_b32 s67, s%d, 1\ns_lshl_b32 s67, s67, 6\ns_add_u32 s74, s74, s67\ns_add_u32 s74, s74, 0x%x" % (sW, SM_ST))
    ws_srd(s, 48, WS_XN, 0x400000)
    dma_items = [(vW0, 12, sKW, sMW, 0), (vW0 + 1, 12, sKW, sMW, 4096), (vW0 + 2, 12, sKW, sMW, 8192), (vW3, 20, sKW, sM3, 0),
                 (vW0, 16, sKW, sMW, U_OFF), (vW0 + 1, 16, sKW, sMW, U_OFF + 4096), (vW0 + 2, 16, sKW, sMW, U_OFF + 8192),
                 (vB, 24, sKB, sMB, 0), (vB, 28, sKB, sMB, 4096)]
    def dma1(s, st, k, early=None):
        v, sr, so, mb, off = dma_items[k]
        isb = mb == sMB
        base = ((st >> 1) & 1) * (16384 if isb else 65536) + (st & 1) * (B_ST if isb else W_ST)
        if k == 0: s("s_mov_b32 s%d, %d" % (sKW, st * 64 * 7168))
        if k == 7: s("s_mov_b32 s%d, %d" % (sKB, st * 128))
        s("s_add_u32 m0, s%d, %d" % (mb, off + base))
        s.op(Op("buffer_load_dwordx4 v%d, s[%d:%d], s%d offen lds" % (v, sr, sr + 3, so), "vm", K(("D", st, k))), early)
    CH1 = cfg.get("ch1", 1)
    xalloc = {}; xprev = {}; fifo = [(("a", r), None) for r in (96, 112, 128, 144, 192)]
    for u in range(32):
        if u == 26: xalloc[u] = ("v", 48); xprev[u] = None; continue
        xalloc[u], xprev[u] = fifo.pop(0); fifo.append((xalloc[u], u))
    aX, aW, NWB = 96, 208, 8
    def xload(s, u, m, early=None):
        if m == 0: s("s_mov_b32 s%d, %d" % (sKX, u * 4096))
        s.op(Op("buffer_load_dwordx4 %s, v%d, s[8:11], s%d offen offset:%d %s" % (R(xalloc[u][0], xalloc[u][1] + 4 * m, 4), 1, sKX, 1024 * m, HL), "vm", K(("X", u, m))), early)
    def pro_stage(st):
        for k in range(9): dma1(s, st, k)
    ND0P = cfg.get("d_t0", 0)
    for k in range(ND0P): dma1(s, 0, k)
    EP_LDS = 131072; EPW = 8192
    PK = dict(C=252, CA=253, TOK=254, COL=255, D=240, TA=242, TRW=243, TRR=244, AG=245)
    s("v_lshrrev_b32 v40, 1, v48\nv_xor_b32 v40, v40, v49\nv_lshlrev_b32 v40, 4, v40\nv_lshl_add_u32 v40, v48, 7, v40")
    s("v_add_u32 v%d, %d, v40\nv_xor_b32 v%d, 64, v%d" % (vBA0, B_BASE, vBA1, vBA0))
    s("v_lshrrev_b32 v40, 1, v49\nv_lshlrev_b32 v40, 4, v40\nv_and_b32 v41, 1, v49\nv_lshlrev_b32 v41, 2, v41\nv_lshrrev_b32 v50, 2, v48\nv_add3_u32 v11, v40, v41, v50")
    s("v_mul_u32_u24 v40, 224, v11\nv_and_b32 v51, 3, v0\nv_lshl_add_u32 v%d, v51, 3, v40\nv_add_u32 v%d, 0x10000, v%d" % (vWA, vWA2, vWA))
    s("s_lshl_b32 s65, s%d, 17\ns_add_u32 s8, s6, s65\ns_addc_u32 s9, s7, 0\ns_and_b32 s9, s9, 0xffff\ns_mov_b32 s10, 0x20000" % sB)
    s("s_lshl_b32 s83, s2, 4\ns_lshl_b32 s65, s%d, 2\ns_add_u32 s83, s83, s65" % sW)
    if WGF: s("s_and_b32 s82, s2, 7\ns_lshl_b32 s82, s82, 6\ns_lshl_b32 s65, s66, 11\ns_add_u32 s82, s82, s65\ns_lshl_b32 s65, s%d, 9\ns_add_u32 s82, s82, s65\ns_add_u32 s82, s82, 0x%x" % (sW, SM_F1))
    else: s("s_add_u32 s82, s83, 0x%x" % SM_F1)
    s(("s_add_u32 s83, s82, 0x%x" % (SM_F1B - SM_F1)) if FBW else ("s_add_u32 s83, s83, 0x%x" % SM_F1B))
    def tramp():
        s("s_mov_b64 exec, 0")
        for w in range(1, 4): s("s_cmp_eq_u32 s%d, %d\ns_cbranch_scc1 L_tr%d" % (sW, w, w))
        s("s_branch L_tr0")
        s.atom(["L_trret:"])
        s("s_mov_b64 exec, -1")
    TRP = cfg.get("tr_at", 2) if cfg.get("tramp", 1) else -1
    if TRP == 0: tramp()
    stamp(s, "prex")
    F = 80; D = 112; T0 = 144; ST = 28
    ln = Seq()
    def unpack(q):
        for i in range(4 * q, 4 * q + 4): ln("v_lshlrev_b32 v%d, 16, v%d\nv_and_b32 v%d, 0xffff0000, v%d" % (F + 2 * i, 64 + i, F + 2 * i + 1, 64 + i))
    def pack(q, dst=64):
        for i in range(4 * q, 4 * q + 4): ln("v_cvt_pk_bf16_f32 v%d, v%d, v%d" % (dst + i, F + 2 * i, F + 2 * i + 1))
    def hsum(dst):
        ln("v_pk_add_f32 %s, %s, %s\nv_add_f32 v%d, v%d, v%d" % (P(T0), P(T0), P(T0 + 2), T0, T0, T0 + 1))
        for sh in ((4, 8) if LQ else (1, 2, 4, 8)): ln("v_add_f32_dpp v%d, v%d, v%d row_ror:%d row_mask:0xf bank_mask:0xf" % (T0, T0, T0, sh))
        if LQ:
            for w_ in (16, 32): ln("v_mov_b32 v%d, v%d\nv_permlane%d_swap_b32 v%d, v%d\nv_add_f32 v%d, v%d, v%d" % (T0 + 1, T0, w_, T0, T0 + 1, T0, T0, T0 + 1))
        ln("v_mul_f32 v%d, %s, v%d" % (dst, fx(1.0 / 512), T0))
    for q in range(4):
        ln.wait([("x", q)])
        if q == 3:
            stamp(ln, "xin")
            for _ in range(cfg.get("pf_t1", 0)): pfa(ln)
            i_d0 = len(ln.u)
        unpack(q)
        if q == 0: ln("v_pk_add_f32 %s, %s, %s\nv_pk_add_f32 %s, %s, %s" % (P(T0), P(F), P(F + 2), P(T0 + 2), P(F + 4), P(F + 6)))
        else:
            for i in range(4): ln("v_pk_add_f32 %s, %s, %s" % (P(T0 + 2 * (i % 2)), P(T0 + 2 * (i % 2)), P(F + 8 * q + 2 * i)))
    hsum(ST)
    for i in range(16): ln("v_pk_add_f32 %s, %s, %s op_sel_hi:[1,0] neg_lo:[0,1] neg_hi:[0,1]" % (P(D + 2 * i), P(F + 2 * i), P(ST)))
    for i in range(16):
        if i < 2: ln("v_pk_mul_f32 %s, %s, %s" % (P(T0 + 2 * i), P(D + 2 * i), P(D + 2 * i)))
        else: ln("v_pk_fma_f32 %s, %s, %s, %s" % (P(T0 + 2 * (i % 2)), P(D + 2 * i), P(D + 2 * i), P(T0 + 2 * (i % 2))))
    hsum(ST + 1)
    ln.lg("ds_write_b64 v52, %s" % P(ST))
    ln.wait(None, drain=["lg"])
    ln("s_barrier")
    ln.lg("ds_read_b64 %s, v54" % P(T0), "oth")
    ln("s_mul_i32 s%d, s%d, 0x9E3779B1\ns_add_u32 s%d, s%d, 0x7F4A7C15\nv_mov_b32 v56, s%d" % (sTAG, sTAG, sTAG, sTAG, sTAG))
    ln.wait(["oth"])
    ln("v_sub_f32 v%d, v%d, v%d\nv_pk_add_f32 %s, %s, %s\nv_mul_f32 v%d, 0.5, v%d\nv_pk_mul_f32 %s, %s, 0.5 op_sel_hi:[1,0]\nv_fmac_f32 v%d, v%d, v%d" % (T0 + 2, ST, T0, P(ST), P(ST), P(T0), T0 + 2, T0 + 2, P(ST), P(ST), ST + 1, T0 + 2, T0 + 2))
    ln("v_cvt_pk_bf16_f32 v%d, v%d, v%d\nv_lshlrev_b32 v%d, 16, v%d\nv_and_b32 v%d, 0xffff0000, v%d" % (T0, ST, ST + 1, ST, T0, ST + 1, T0))
    ln(("v_add_f32 V, %s, V\nv_cvt_pk_bf16_f32 V, V, V\nv_and_b32 V, 0xffff0000, V\nv_sqrt_f32 V, V" % fx(1e-5)).replace("V", "v%d" % (ST + 1)))
    def sub(q):
        for i in range(4 * q, 4 * q + 4): ln("v_pk_add_f32 %s, %s, %s op_sel_hi:[1,0] neg_lo:[0,1] neg_hi:[0,1]" % (P(F + 2 * i), P(F + 2 * i), P(ST)))
    def fin(q):
        pack(q); unpack(q)
        for i in range(4 * q, 4 * q + 4): ln("v_pk_mul_f32 %s, %s, %s op_sel:[0,1] op_sel_hi:[1,1]" % (P(F + 2 * i), P(F + 2 * i), P(ST)))
        pack(q, 12 if q else 64)
    ln("v_cvt_pk_bf16_f32 V, V, V\nv_and_b32 V, 0xffff0000, V\nv_rcp_f32 V, V".replace("V", "v%d" % (ST + 1)))
    sub(0); fin(0)
    lu = ln.units()
    nD_0 = cfg.get("d_t1", 1 if ND0P else 0)
    if nD_0:
        dq = Seq(); step = cfg.get("d0_step", 10); pos = i_d0 + cfg.get("d0_off", 6)
        for k in range(ND0P, 9):
            dma1(dq, 0, k); un = dq.units()
            lu[pos:pos] = un[:-1]; pos += len(un); lu[pos:pos] = un[-1:]; pos += step
    s.u += lu
    xst = lambda q: "buffer_store_dwordx4 %s, v55, s[48:51], s%d offen %s" % (Q(12 + 4 * q if q else 64), 70 + q, SC)
    stst = lambda: (["s_mov_b64 exec, 15"] if LQ else ["s_mov_b32 exec_lo, 0x10001", "s_mov_b32 exec_hi, 0x10001"]) + [Op("buffer_store_dwordx4 %s, v%d, s[36:39], s74 offen %s" % (Q(ST), LQ, SC), "vm"), "s_mov_b64 exec, -1"]
    s.vm(xst(0), ("xn", 0))
    stamp(s, "xnst")
    for q in range(1, 4):
        sub(q); fin(q); s.u += ln.units()
    XBP = cfg.get("xbp", 0)
    TWO = 1
    nD_b = cfg.get("d_t3", 1)
    nD_c = cfg.get("d_t4", 2)
    nD_d = cfg.get("d_t5", 2)
    if TRP == 1: tramp()
    if WGF: s.wait([("xn", 0), "agfill"]); s("s_barrier")
    flag(s, "buffer_store_dwordx4 v[56:59], v1, s[36:39], s82 offen %s" % SC, [("xn", 0), "agfill"])
    stamp(s, "flag1")
    if TRP == 4: tramp()
    if cfg.get("bar_f"): s("s_barrier")
    stamp(s, "barf")
    def xb_now():
        s.atom(stst())
        for q in range(1, 4): s.vm(xst(q), ("xn", q))
    if XBP == 1: xb_now()
    for st in range(nD_0, nD_b): pro_stage(st)
    stamp(s, "d0")
    if TRP == 2: tramp()
    stamp(s, "trd")
    f1load = "buffer_load_dword v61, v%d, s[36:39], s75 offen %s" % (vP1, SC)
    s.vm(f1load, "f1")
    if XBP == 2: xb_now()
    for st in range(max(nD_0, nD_b), nD_c): pro_stage(st)
    nD_b = max(nD_0, nD_b, nD_c)
    if TRP == 3: tramp()
    stamp(s, "prepoll")
    if TRP >= 0:
        s("s_branch L_main"); s.atom([".p2align 12"]); s.atom(["L_main:"])
    poll(s, "P1", f1load, 61, "f1")
    stamp(s, "poll1")
    NXP = cfg.get("nxpre", 1 if cfg.get("ch1_first", 1) else 2)
    for u in range(NXP):
        for m in range(4): xload(s, u, m)
    if TRP == 5: tramp()
    if XBP == 3: xb_now()
    for _ in range(cfg.get("pf_t5", 0)): pfa(s)
    for st in range(nD_b, nD_d): pro_stage(st)
    nD_b = max(nD_b, nD_d)
    npfa = cfg.get("pf_t0", 3) + cfg.get("pf_t1", 0) + cfg.get("pf_t5", 0)
    NPB = cfg.get("npb", 4)
    tiles = []
    for q in range(7): tiles += [("G", q), ("U", q)]
    tiles += [("R", 0), ("I", 0), ("R", 1), ("I", 1)]
    def acc(t, m):
        k, q = t
        if k == "R": return ("v", 64 + 16 * q + 4 * m)
        if k == "I": return ("v", 96 + 16 * q + 4 * m)
        o = 32 * q + (16 if k == "U" else 0) + 4 * m
        return ("v", 128 + o) if q < 4 else ("a", o - 128)
    L0 = cfg.get("l1_lead", 4)
    KT = cfg.get("kt", 1)
    def stage_groups(st, tl):
        if CH1 and st >= cfg.get("ch1_first", 1): return [(2 * st + kk, ti) for ti in tl for kk in range(2)]
        return [(2 * st + kk, ti) for kk in range(2) for ti in tl]
    groups = []
    for st in range(14 if KT else 16): groups += stage_groups(st, range(18))
    if KT:
        for tl in (range(4), range(4, 18)):
            for st in (14, 15): groups += stage_groups(st, tl)
    NG = len(groups)
    mo, head, tail = order_mfma(groups)
    xfirst = {}; xlast = {}
    for G, (u, ti) in enumerate(groups): xfirst.setdefault(u, head(G)); xlast[u] = tail(G)
    parts = lambda G: [0, 1] if groups[G][1] < 14 else [None]
    def read1(G, part):
        u, ti = groups[G]; st, kk = divmod(u, 2); t = tiles[ti]; f = G % NWB
        if t[0] in "GU":
            off = (st & 1) * W_ST + (U_OFF if t[0] == "U" else 0) + kk * 7168 + part * 1792 + t[1] * 32
            return Op("ds_read_b64_tr_b16 %s, v%d offset:%d" % (R("a", aW + 4 * f + 2 * part, 2), (vWA, vWA2)[(st >> 1) & 1], off), "lg", K(("F", G, part)))
        off = (st & 3) * B_ST + (4096 if t[0] == "I" else 0) + t[1] * 2048
        return Op("ds_read_b128 %s, v%d offset:%d" % (R("a", aW + 4 * f, 4), vBA1 if kk else vBA0, off), "lg", K(("F", G, part)))
    rgap = {}
    for G in range(NG):
        f = G % 36
        g = G if (f < 33 or (KT and G >= 28 * 18)) else G - (1 if f < 35 else 2)
        rgap[G] = 4 * (g - L0) - 1
        assert rgap[G] >= 4 * tail(G - NWB) + 3
    gneed = lambda G: [("F", H, p) for H in range(G, tail(G) + 1) for p in parts(H)] + [("X", u, m) for u in range(32) if xfirst[u] == G for m in range(4)]
    s.wait([("D", 0, k) for k in range(9)])
    s("s_barrier")
    for G in range(NG):
        if rgap[G] < 0:
            for p in parts(G): s.op(read1(G, p))
    s.wait(gneed(0))
    stamp(s, "loop1")
    prog.add(s.done())
    mf = []
    for G, m in mo:
        u, ti = groups[G]; t = tiles[ti]
        xr = (xalloc[u][0], xalloc[u][1] + 4 * m); wr = ("a", aW + 4 * (G % NWB))
        mf.append(Op(mfma16(acc(t, m), wr, xr, u == 0) if t[0] in "GU" else mfma16(acc(t, m), xr, wr, u == 0)))
    sc = Sch(mf)
    for G in range(1, NG):
        w = Op("", needs=K(gneed(G)))
        w.keep = sum(len(parts(H)) for H in range(max(0, G - 2), min(NG, G + 10)) if rgap[H] == 4 * G - 1) == 2
        if w.keep or head(G) == G: sc.put(4 * G - 1, [w], 0)
    for G in range(NG):
        if rgap[G] >= 0: sc.put(rgap[G], [read1(G, p) for p in parts(G)], 1)
    bar = {}
    for st in range(15):
        bar[st] = rgap[xfirst[2 * st + 2]] - 1
        sc.put(bar[st], [Op("s_barrier", needs=K([("D", st + 1, k) for k in range(9)] + ([("xn", 3)] if (FBW and st == cfg.get("fb_bar", 1)) else [])), drain=["lg"] if st < 14 else None)], 0)
    items = []
    PFL = cfg.get("pfl", 9)
    pft = {}
    if cfg.get("pf1", 1):
        ev = cfg.get("pf_first", 70); st = npfa
        for k in range(npfa - cfg.get("pfd", 0), npfa): items.append((0, 2, ev - cfg.get("pfd_pre", 0), "a", k, 0))
        while st < 16:
            n = 0
            while st < 16 and (n < cfg.get("pf_max", 2) or (st == 15 and cfg.get("pf_l3", 1))) and (n == 0 or 144 * (st - 3 - PFL) < ev):
                e = max(int(144 * (st - 3 - PFL)), ev); pft[st] = e; items.append((0, 2, e, "a", st, 0)); st += 1; n += 1
            ev = e + cfg.get("pf_min", 288)
    for st in range(nD_b, 16):
        e = max(bar[st - 4] + 1 if st >= 4 else 0, pft.get(st, -1000) + cfg.get("pf_lat", 100))
        for k in range(9): items.append((bar[st - 1], 0, e, "d", st, k))
    for u in range(NXP, 32):
        e = 4 * xlast[xprev[u]] + 3 if xprev[u] is not None else 0
        for m in range(4): items.append((4 * xfirst[u] - 1, 1, max(e, 4 * xfirst[u] - (cfg.get("x_la", 230) if u != 8 else cfg.get("x_la8", 105))), "x", u, m))
    for k in range(1, 4 if not XBP else 0): items.append((0, 3, cfg.get("xb_first", 130) + cfg.get("xb_sp", 36) * (k - 1), "s", k, 0))
    items.append((0, 3, bar[cfg.get("fb_bar", 1)] + 1 if FBW else cfg.get("xb_first", 130) + cfg.get("xb_sp", 36) * 2 + cfg.get("xb_lat", 70), "f", 0, 0))
    items.append((0, 3, cfg.get("p1c_at", 430), "p", 0, 0))
    gC_ = sorted(set(pft.values()))[cfg.get("c_ev", 1)] if pft else 300
    items.append((0, 3, gC_, "c", 0, 0))
    gE_ = gC_ + cfg.get("e_off", 90)
    evs = sorted(set(pft.values())); i_e = {}
    EM = cfg.get("em", 0)
    for n in range(4):
        if EM: items.append((0, 4, evs[cfg.get("c_ev", 1) + cfg.get("e_ev", 0) + n], "e", n, 0))
        else: items.append((gE_ + 100, 3, gE_ + cfg.get("e_sp", 20) * n, "e", n, 0))
    f1cload = "buffer_load_dword v61, v%d, s[36:39], s81 offen %s" % (63 if FBW else 60, SC)
    if cfg.get("pf2", 1):
        for c in range(NPB): items.append((0, 2, cfg.get("pfb_first", 646) + int(c * cfg.get("pfb_sp", 288)), "b", c, 0))
    now = 0; pend = sorted(items); done = []; quiet = -1
    FM = cfg.get("fm", 1); WL = cfg.get("fm_wl", 14); fifo = []; comp = cfg.get("fm_c0", 30); fsl = []; lastk = ""; PFD = cfg.get("pfd", 0); PFX = cfg.get("pfx", 0)
    while pend:
        nxt = {}
        for x in pend:
            if x[3] not in nxt or x[4:] < nxt[x[3]][4:]: nxt[x[3]] = x
        av = sorted(x for x in nxt.values() if x[2] <= now)
        if FM:
            occ = sum(n for c, n in fifo if c > now)
            lines_of = lambda x: {"d": WL if x[5] < 7 else 8, "x": 8, "a": 9 * (1 + bool(PFD)) + 8 * PFX, "b": 88 // NPB, "c": 10, "e": 16}.get(x[3], 1)
            if av and av[0][3] in "dx" and len(av) > 1 and av[1][3] in "dx" and av[0][3] == lastk and av[0][0] - now > cfg.get("alt_slack", 110): av = av[1:]
            av = [x for x in av[:1] if occ + lines_of(x) <= cfg.get("fm_c", 66)]
        if not av: now += 1; continue
        x = av[0]; pend.remove(x); lastk = x[3]
        if FM:
            lat = cfg.get("fm_slow", 64) if x[3] in ("abce" if EM else "abc") else cfg.get("fm_fast", 36)
            comp = max(comp + 4.3, now + lat); fifo.append((comp, lines_of(x)))
            if x[3] in "dx": fsl.append((x[0] - comp, x[3], x[4], x[5]))
        fifo_now = now
        if x[3] == "d": dma1(s, x[4], x[5], int(now))
        elif x[3] == "x":
            if TWO and x[4:] == (8, 0): poll(s, "P1c", f1cload, 61, "f1c", early=int(now))
            xload(s, x[4], x[5], int(now))
        elif x[3] == "p": s.vm(f1cload, "f1c", early=int(now)); i_f1c = len(s.u) - 1
        elif x[3] == "a":
            s.at(int(now)); pfa(s); quiet = now + cfg.get("q_len", 64)
            if [y for y in pend if y[3] in "abc" and y[2] <= now]: now -= cfg.get("q_sp", 10) - 4
        elif x[3] == "c":
            s.at(int(now)); i_c0 = len(s.u) - 1
            for k, lo in enumerate((96, 98, 92)):
                s("s_mov_b32 s32, s%d\ns_and_b32 s33, s%d, 0xffff" % (lo, lo + 1))
                for T in range(2): s.vm("buffer_load_ushort v%d, v40, s[32:35], 0 offen offset:%d" % (16 + 2 * k + T, 32 * T), ("c", k, T))
            s("s_mov_b32 s32, s94\ns_and_b32 s33, s95, 0xffff")
            for u in range(2): s.vm("buffer_load_dwordx2 %s, v41, s[32:35], 0 offen offset:%d" % (R("a", 248 + 2 * u, 2), 32 * u), ("dk", u))
            if FT & 2:
                s.vm("buffer_load_dword a246, v42, s[36:39], 0 offen %s" % SC); now += 4
            i_c1 = len(s.u) - 1; now += 30
        elif x[3] == "s":
            if x[4] == 1: s.atom(stst(), int(now)); now += 4
            s.op(Op(xst(x[4]), "vm", K(("xn", x[4]))), int(now)); now += (4 - cfg.get("q_sp", 10)) if now < quiet else 10
        elif x[3] == "f":
            flag(s, "buffer_store_dword%s, v1, s[36:39], s83 offen %s" % ("x4 v[56:59]" if FBW else " v56", SC), [("xn", 3)], early=int(now)); i_fb = len(s.u) - 1
        elif x[3] == "e":
            s("s_mov_b32 s70, %d\ns_add_u32 m0, s71, %d" % (4096 * x[4], 1024 * x[4]))
            s.op(Op("buffer_load_dwordx4 v12, s[48:51], s70 offen lds", "vm", K(("E", x[4]))), int(now)); i_e[x[4]] = len(s.u) - 1; now += 4
        else: s.at(int(now)); pfb(s); quiet = now + cfg.get("q_len", 64)
        if x[3] in "dx": done.append((x, len(s.u) - 1))
        if x[3:] == ("x", 8, 0): i_p1c = len(s.u) - 1
        if x[3:] == ("x", 26, 0): i_x26 = len(s.u) - 1
        if FM: now = fifo_now + {"c": 36, "s": cfg.get("fm_st", 16) + 4 * (x[4] == 1)}.get(x[3], cfg.get("fm_sp", 4.5))
        else: now += cfg.get("q_sp", 10) if now < quiet else cfg.get("l1_sp", 5)
    res = sc.stream(s.units(), 0, 2)
    sl = sorted((x[0] - res[i], x[3], x[4], x[5]) for x, i in done)
    if cfg.get("verbose") and FM: print("model slacks", sorted(fsl)[:5])
    if cfg.get("verbose"): print("loop1 vm end", res[-1], "of", 4 * NG, "min slacks", sl[:3], "steady", min(z for z in sl if z[2] > 8))
    for nm in names:
        if TS and nm[0] == "f" and nm[1:].isdigit():
            st_ = int(nm[1:])
            sc.put(bar[st_] - 1, [Op("s_memrealtime s[100:101]")], 5)
            sc.put(bar[st_], [Op("v_writelane_b32 v%d, s100, %d" % (vTS, names.index(nm)))], 5)
    if cfg.get("verbose"): print("flag b", res[i_fb], "poll load", res[i_f1c], "check", res[i_p1c])
    s.at(res[i_fb] + 1)
    cL, cC, cL8, cL16, cL64, cL512 = 16, 20, 24, 28, 32, 36
    s("s_mov_b32 s34, 2048\ns_mov_b32 s35, 0x20000")
    s("s_lshl_b32 s69, s%d, 5\nv_add_u32 v40, s69, v48\nv_lshlrev_b32 v40, 1, v40" % sJ)
    s("s_lshl_b32 s68, s%d, 7\ns_lshl_b32 s66, s%d, 5\ns_add_u32 s68, s68, s66\nv_lshl_add_u32 v41, v49, 2, s68\nv_accvgpr_write_b32 a%d, v41\nv_lshlrev_b32 v41, 1, v41" % (sTN, sQ, PK["COL"]))
    srd(s, 48, 4, 5, 2048 * 2048)
    s("s_lshl_b32 s66, s%d, 2\ns_add_u32 s66, s66, s%d\ns_lshl_b32 s66, s66, %d\ns_add_u32 s66, s66, 0x%x\nv_and_b32 v42, %d, v0\nv_lshl_add_u32 v42, v42, 7, s66" % (sB, sQ, (7, 9, 11)[F3M], SM_F3, (0, 3, cfg.get("f3t", 0))[F3M]))
    s("s_lshl_b32 s66, s%d, 3\ns_add_u32 s66, s66, s%d\ns_lshl_b32 s66, s66, 2\ns_add_u32 s66, s66, s%d\ns_lshl_b32 s66, s66, %d\ns_lshl_b32 s67, s%d, %d\ns_add_u32 s66, s66, s67\ns_add_u32 s66, s66, 0x%x\nv_writelane_b32 v42, s66, 0\ns_add_u32 s66, s66, %d\nv_writelane_b32 v42, s66, 1" % (sI, sTN, sW, (7, 10, 10)[F4M], sQ, (4, 8, 8)[F4M], SM_F4, (0, 0, 128)[F4M]))
    s("s_lshl_b32 s68, s68, 1\ns_lshl_b32 s66, s%d, 17\ns_add_u32 s68, s68, s66\nv_bfe_u32 v12, v0, 2, 1\nv_lshlrev_b32 v12, 3, v12\nv_lshl_add_u32 v12, v49, 4, v12\nv_bfe_u32 v43, v0, 3, 1\nv_add_u32 v12, v12, v43\nv_lshl_add_u32 v12, v12, 11, s68\nv_lshl_add_u32 v12, v51, 4, v12" % sB)
    s("s_lshr_b32 s66, s%d, 1\ns_lshl_b32 s66, s66, 16\ns_and_b32 s71, s%d, 1\ns_lshl_b32 s71, s71, 12\ns_add_u32 s71, s71, s66\ns_add_u32 s71, s71, 57344" % (sW, sW))
    r0 = sc.stream(s.units(), 0, 3)
    assert r0[-1] < res[i_c0]
    s.at(res[i_c1] + 1)
    s("v_subrev_u32 v40, %d, v%d\nv_accvgpr_write_b32 a%d, v40" % (B_BASE, vBA0, PK["CA"]))
    s("s_mul_i32 s69, s%d, %d\ns_add_u32 s69, s69, %d" % (sW, EPW, EP_LDS + 2048))
    s("v_and_b32 v41, 1, v49\nv_xor_b32 v41, v41, v51\nv_lshlrev_b32 v40, 5, v11\nv_lshl_add_u32 v40, v41, 3, v40\nv_add_u32 v40, s69, v40\nv_accvgpr_write_b32 a%d, v40" % PK["TRR"])
    s("v_lshrrev_b32 v40, 1, v48\nv_xor_b32 v40, v40, v48\nv_and_b32 v40, 4, v40\nv_mul_u32_u24 v40, 3, v40\nv_xor_b32 v40, v40, v48\nv_lshrrev_b32 v41, 2, v40\nv_xor_b32 v41, v41, v49\nv_lshlrev_b32 v40, 5, v40\nv_lshl_add_u32 v40, v41, 3, v40\nv_add_u32 v40, s69, v40\nv_accvgpr_write_b32 a%d, v40" % PK["TRW"])
    s("v_lshrrev_b32 v40, 2, v0\nv_and_b32 v41, 7, v40\nv_lshlrev_b32 v41, 5, v41\nv_lshl_add_u32 v41, v40, 8, v41\nv_lshl_add_u32 v41, v51, 3, v41\nv_accvgpr_write_b32 a%d, v41" % PK["TA"])
    s("s_lshl_b32 s68, s%d, 2\nv_add_u32 v40, s68, v49\nv_and_b32 v41, 7, v40\nv_bfe_u32 v51, v0, 1, 3\nv_xor_b32 v41, v41, v51\ns_lshl_b32 s66, s%d, 1\nv_xor_b32 v41, s66, v41\nv_lshlrev_b32 v41, 5, v41" % (sW, sQ))
    s("v_and_b32 v51, 1, v0\nv_lshl_add_u32 v41, v51, 4, v41\ns_mul_i32 s67, s%d, 896\nv_add_u32 v40, s67, v40\nv_lshl_add_u32 v40, v40, 11, v41\ns_lshl_b32 s67, s%d, 8\nv_add_u32 v40, s67, v40\nv_accvgpr_write_b32 a%d, v40" % (sQ, sTN, PK["D"]))
    s("s_lshl_b32 s68, s%d, 18\ns_lshl_b32 s66, s%d, 9\ns_add_u32 s68, s68, s66\nv_add_u32 v40, s68, v47\nv_accvgpr_write_b32 a%d, v40" % (sTN, sQ, PK["C"]))
    s("v_lshlrev_b32 v40, 4, v50\nv_lshl_add_u32 v40, v51, 3, v40\nv_bfe_u32 v41, v48, 1, 1\ns_lshl_b32 s68, s%d, 6\nv_add3_u32 v40, v40, v41, s68\nv_accvgpr_write_b32 a%d, v40" % (sB, PK["TOK"]))
    s("s_sub_u32 s68, 32, s%d\ns_lshl_b32 s68, s68, 13\ns_lshl_b32 s66, s%d, 8\ns_add_u32 s68, s68, s66\nv_lshl_add_u32 v40, v48, 4, s68\nv_lshl_add_u32 v40, v49, 16, v40\nv_accvgpr_write_b32 a%d, v40" % (sB, sJ, PK["AG"]))
    f_ = 2 if AS & 2 else 1
    ld, lc = 112 // NPB * f_, 64 // NPB * f_
    s("s_lshr_b32 s67, s2, %d\ns_lshl_b32 s68, s67, 1\ns_and_b32 s66, s%d, 1\ns_add_u32 s68, s68, s66\ns_mul_i32 s68, s68, %d\ns_mul_i32 s66, s67, %d" % (f_ - 1, sW, ld * 128, lc * 128))
    ge2 = "s_cmp_ge_u32 s%d, 2" % sW
    s.atom([ge2, "s_cselect_b32 s68, s66, s68", "s_cselect_b32 s66, %d, %d" % (lc - 1, ld - 1)])
    s("v_min_u32 v40, s66, v0\nv_lshl_add_u32 v%d, v40, 7, s68" % vPB)
    s.atom(["s_bitcmp1_b32 s%d, 0" % sW, "s_cselect_b32 s68, s90, s88", "s_cselect_b32 s66, s91, s89"])
    s.atom([ge2, "s_cselect_b32 s44, s68, s84", "s_cselect_b32 s45, s66, s85"])
    s("s_mov_b32 s67, %d\ns_mov_b32 s68, %d" % (3584 * 2048, 512 * ld * 128 // f_))
    s.atom([ge2, "s_cselect_b32 s46, %d, s67" % (1024 * 2048), "s_cselect_b32 s%d, %d, s68" % (sPBs, 256 * lc * 128 // f_)])
    s("s_and_b32 s45, s45, 0xffff\ns_mov_b32 s47, 0x20000\ns_mov_b32 s%d, 0" % sKPB)
    if AS & 2: s.atom(["s_getreg_b32 s67, hwreg(HW_REG_XCC_ID, 0, 1)", "s_cmp_eq_u32 s67, %d" % (0 if AS & 4 else 1), "s_cselect_b32 s%d, 0x40000000, 0" % sKPB])
    i_pbs = len(s.u) - 1
    s.at(res[i_c1] + 90)
    s.wait([("c", 2, 1)])
    def two(f):
        for T in range(2): s(f(T))
    for k in range(6): s("v_lshlrev_b32 v%d, 16, v%d" % (40 + k, 16 + k))
    two(lambda T: "v_mul_f32 v%d, %s, v%d" % (44 + T, fx(LOG2E), 44 + T)); two(lambda T: "v_exp_f32 v%d, v%d" % (44 + T, 44 + T))
    s("v_cvt_pk_bf16_f32 v45, v44, v45\nv_lshlrev_b32 v44, 16, v45\nv_and_b32 v45, 0xffff0000, v45")
    two(lambda T: "v_mul_f32 v%d, v%d, v%d\nv_mul_f32 v%d, v%d, v%d" % (24 + T, 44 + T, 40 + T, 26 + T, 44 + T, 42 + T))
    two(lambda T: "v_mul_f32 v%d, %s, v%d" % (24 + T, fx(LOG2E), 24 + T)); two(lambda T: "v_exp_f32 v%d, v%d" % (24 + T, 24 + T))
    two(lambda T: "v_mul_f32 v%d, 0.15915494, v%d\nv_rndne_f32 v%d, v%d\nv_sub_f32 v%d, v%d, v%d" % (26 + T, 26 + T, 52 + T, 26 + T, 26 + T, 26 + T, 52 + T))
    two(lambda T: "v_cos_f32 v%d, v%d\nv_sin_f32 v%d, v%d" % (52 + T, 26 + T, 54 + T, 26 + T))
    two(lambda T: "v_mul_f32 v%d, v%d, v%d\nv_mul_f32 v%d, v%d, v%d\nv_add_f32 v%d, -1.0, v%d" % (cL + T, 24 + T, 52 + T, 54 + T, 24 + T, 54 + T, 52 + T, cL + T))
    two(lambda T: "v_mul_f32 v%d, v%d, v%d\nv_fmac_f32 v%d, v%d, v%d\nv_rcp_f32 v%d, v%d" % (24 + T, 40 + T, 40 + T, 24 + T, 42 + T, 42 + T, 24 + T, 24 + T))
    two(lambda T: "v_mul_f32 v%d, v%d, v%d\nv_fmac_f32 v%d, v%d, v%d" % (26 + T, 52 + T, 40 + T, 26 + T, 54 + T, 42 + T))
    two(lambda T: "v_mul_f32 v%d, v%d, v%d\nv_fma_f32 v%d, -v%d, v%d, v%d" % (56 + T, 54 + T, 40 + T, 56 + T, 52 + T, 42 + T, 56 + T))
    two(lambda T: "v_add_f32 v%d, v%d, v%d\nv_mul_f32 v%d, v%d, v%d\nv_mul_f32 v%d, v%d, v%d\nv_sub_f32 v%d, 0, v%d" % (24 + T, 24 + T, 24 + T, cC + T, 26 + T, 24 + T, cC + 2 + T, 56 + T, 24 + T, cL + 2 + T, 54 + T))
    def sq(d, x):
        two(lambda T: "v_mul_f32 v%d, v%d, v%d\nv_mul_f32 v%d, v%d, v%d\nv_fma_f32 v%d, v%d, v%d, -v%d\nv_add_f32 v%d, v%d, v%d" % (52 + T, x + 2 + T, x + 2 + T, 54 + T, x + T, x + 2 + T, d + T, x + T, x + T, 52 + T, d + 2 + T, 54 + T, 54 + T))
    sq(cL8, cL); sq(cL8, cL8); sq(cL8, cL8); sq(cL16, cL8); sq(cL64, cL16); sq(cL64, cL64); sq(cL512, cL64); sq(cL512, cL512); sq(cL512, cL512)
    aBS = 160
    s.at(res[i_p1c] + 2)
    s("v_lshlrev_b32 v11, 6, v48\nv_lshl_add_u32 v11, v49, 3, v11\nv_add_u32 v11, s71, v11\nv_and_b32 v50, 0xf0, v1\ns_lshl_b32 s66, s%d, 10\ns_add_u32 s66, s66, 0x%x" % (sB, SM_ST))
    s.wait([("dk", 1)])
    for k in range(4): s("v_accvgpr_read_b32 v%d, a%d" % (40 + k, 248 + k))
    for m in range(4):
        s.at(res[i_e[m]] + 2)
        s.vm("buffer_load_dwordx2 v[44:45], v50, s[36:39], s66 offen offset:%d %s" % (256 * m, HL), ("St", m))
        s.delay(cfg.get("e_lat", 100))
        s.wait([("St", m), ("E", m)])
        for u in range(2): s.lg("ds_read_b64 %s, v11 offset:%d" % (P(52 + 2 * u), 1024 * m + 32 * u), ("er", m, u))
        s.delay(10)
        s.wait([("er", m, 1)])
        for u in range(2):
            def unp(d, x):
                for h in range(2): s("v_lshlrev_b32 v%d, 16, v%d\nv_and_b32 v%d, 0xffff0000, v%d" % (d + 2 * h, x + h, d + 2 * h + 1, x + h))
            def rnd():
                for h in range(2): s("v_cvt_pk_bf16_f32 v%d, v%d, v%d" % (48 + h, 60 + 2 * h, 61 + 2 * h))
                unp(60, 48)
            unp(56, 52 + 2 * u)
            for k in range(4): s("v_sub_f32 v%d, v%d, v44" % (60 + k, 56 + k))
            rnd()
            for k in range(4): s("v_mul_f32 v%d, v%d, v45" % (60 + k, 60 + k))
            rnd()
            for h in range(2):
                s("v_lshlrev_b32 v46, 16, v%d\nv_and_b32 v47, 0xffff0000, v%d\nv_mul_f32 v%d, v%d, v46\nv_mul_f32 v%d, v%d, v47" % (40 + 2 * u + h, 40 + 2 * u + h, 60 + 2 * h, 60 + 2 * h, 61 + 2 * h, 61 + 2 * h))
            rnd()
            for k in range(4): s("v_add_f32 v%d, v%d, v%d" % (56 + k, 56 + k, 60 + k))
            for k in range(4): s("v_accvgpr_write_b32 a%d, v%d" % (aBS + 16 * u + 4 * m + k, 56 + k))
    rb = sc.stream(s.units(), 0, 3, vmspace=2)
    if cfg.get("verbose"): print("shadow end", rb[-1])
    assert rb[-1] < res[i_x26] and rb[-1] < bar[13] and rb[i_pbs] < cfg.get("pfb_first", 646)
    vEW, vER, vTG, vAG, vTRW, vTRR, vCP, vH8, vD1, vPAd, vPD, vD0 = 2, 3, 4, 5, 6, 7, 8, 10, 11, 12, 13, 14
    sM, sKD, sKH = 54, 55, 56
    c1 = -2.0 * math.sqrt(2.0 / math.pi) * LOG2E
    CC = 46
    s("v_accvgpr_read_b32 v%d, a%d\nv_lshlrev_b32 v%d, 3, v0\nv_add_u32 v%d, 32768, v%d" % (vD0, PK["D"], vH8, vD1, vD0))
    if FBW: s("v_and_b32 v43, 31, v0\nv_lshlrev_b32 v43, 11, v43\ns_lshr_b32 s71, s%d, 2\ns_lshl_b32 s71, s71, 6\ns_lshl_b32 s65, s%d, 9\ns_add_u32 s71, s71, s65\ns_add_u32 s71, s71, 0x%x" % (sJ, sQ, SM_F1))
    else: s("v_and_b32 v43, 31, v0\nv_lshlrev_b32 v43, 7, v43\ns_lshl_b32 s71, s%d, 2\ns_add_u32 s71, s71, 0x%x" % (sJ, SM_F1B))
    s("s_mul_i32 s65, s%d, 176\ns_mul_i32 s66, s%d, 44\ns_add_u32 s65, s65, s66\ns_lshl_b32 s65, s65, 12\ns_add_u32 s65, s65, 0x%x" % (sB, sQ, WS_H))
    s.atom(["s_add_u32 s32, s6, s65", "s_addc_u32 s33, s7, 0"])
    s("s_and_b32 s33, s33, 0xffff\ns_mov_b32 s34, 0x%x\ns_mov_b32 s35, 0x20000" % (44 * 4096))
    srd(s, 12, 84, 85, 3584 * 2048); srd(s, 16, 88, 89, 1024 * 2048); srd(s, 20, 90, 91, 1024 * 2048)
    s("s_lshl_b32 s%d, s%d, 10" % (sM, sW))
    s("v_mov_b32 v46, %s\nv_mov_b32 v47, %s" % (fx(c1), fx(c1 * 0.044715)))
    ROT = cfg.get("rot", 2)
    sTQ = [96, 97, 98, 99, 48, 49, 50, 51]; sTS = [76, 77, 78, 80]; sJ12, sG7 = 44, 45
    s("s_and_b32 s67, s%d, 3\ns_lshl_b32 s67, s67, 1" % sI)
    for k in range(8):
        if k == 0: s("s_mov_b32 s65, s%d" % sTN)
        elif ROT == 2: s.atom(["s_cmp_le_u32 s%d, %d" % (sTN, k - 1), "s_cselect_b32 s65, %d, %d" % (k, k - 1)])
        elif ROT: s("s_add_u32 s65, s67, %d\ns_sub_u32 s66, s65, 7\ns_min_u32 s65, s65, s66\ns_add_u32 s65, s65, 1\ns_xor_b32 s65, s65, s%d" % (k - 1, sTN))
        else: s("s_xor_b32 s65, s%d, %d" % (sTN, k))
        s("s_mul_i32 s65, s65, 7\ns_add_u32 s65, s65, 1\ns_lshr_b32 s65, s65, 1\ns_lshl_b32 s%d, s65, 12" % sTQ[k])
    s("s_lshr_b32 s67, s%d, 1" % sTN)
    sGp = [24, 25, 26, 27]; sPar = 45
    for p in range(4):
        if ROT == 2:
            s("s_mov_b32 s%d, %d" % (sTS[p], (7 * p + 3) * 4096))
            if p == 0: s("s_lshl_b32 s%d, s67, 13" % sGp[0])
            else:
                s.atom(["s_cmp_le_u32 s67, %d" % (p - 1), "s_cselect_b32 s65, %d, %d" % (p, p - 1)]); s("s_lshl_b32 s%d, s65, 13" % sGp[p])
        else: s("s_xor_b32 s65, s67, %d\ns_lshl_b32 s%d, s65, 13\ns_mul_i32 s65, s65, %d\ns_add_u32 s%d, s65, %d" % (p, sGp[p], 7 * 4096, sTS[p], 3 * 4096))
    s("s_lshl_b32 s%d, s%d, 12\ns_and_b32 s69, s%d, 1\ns_lshl_b32 s%d, s69, 12" % (sJ12, sTN, sTN, sPar))
    s("s_mul_i32 s67, s67, %d\ns_lshl_b32 s69, s69, 9\ns_add_u32 s67, s67, s69\ns_add_u32 s67, s67, %d" % (7 * 4096, 3 * 4096))
    s("s_add_u32 s72, s%d, %d\ns_add_u32 s73, s%d, %d\ns_mov_b32 s66, s%d" % (sJ12, 28 * 4096, sJ12, 36 * 4096, sTQ[0]))
    s("s_lshl_b32 s68, s%d, 2\ns_add_u32 s68, s68, s%d\ns_lshl_b32 s68, s68, %d\ns_add_u32 s68, s68, 0x%x" % (sB, sQ, (7, 9, 11)[F3M], SM_F3))
    s("s_lshl_b32 s81, s%d, %d\ns_add_u32 s81, s81, s68\nv_and_b32 v%d, 7, v0\nv_lshlrev_b32 v%d, %d, v%d" % (sTN, (2, 2, 6)[F3M], vPAd, vPAd, (2, 2, 6)[F3M], vPAd))
    s("s_sub_u32 s64, 31, s%d\ns_lshl_b32 s64, s64, 13\ns_lshl_b32 s65, s%d, 8\ns_add_u32 s64, s64, s65" % (sB, sJ))
    s("s_mul_i32 s46, s%d, %d\ns_add_u32 s46, s46, %d" % (sW, EPW, EP_LDS))
    if TRP >= 0 and cfg.get("tr2", 1) and cfg.get("tr2pf", 1):
        s.atom(["s_getpc_b64 s[82:83]", "L_pc2:"])
        s("v_lshrrev_b32 v40, 3, v0\nv_lshlrev_b32 v40, 12, v40\nv_and_b32 v41, 7, v0\nv_lshl_add_u32 v40, v41, 7, v40\nv_add_u32 v40, L_main-L_pc2+%d, v40" % (4096 * cfg.get("tr_n", 12)))
        s("v_min_u32 v40, L_codeend-L_pc2-4, v40\nv_mov_b32 v41, 0\nv_lshl_add_u64 v[40:41], v[40:41], 0, s[82:83]")
        s.vm("global_load_dword a246, v[40:41], off")
        if cfg.get("cpe", 0):
            n_ = 16 * cfg.get("cpe", 0)
            s("s_mul_i32 s65, s%d, %d\ns_add_u32 s65, s65, L_epi-L_pc2+%d\nv_min_u32 v40, %d, v0\nv_lshl_add_u32 v40, v40, 7, s65\nv_mov_b32 v41, 0\nv_lshl_add_u64 v[40:41], v[40:41], 0, s[82:83]" % (sW, n_ * 128, cfg.get("cpe_off", -2048), n_ - 1))
            s.vm("global_load_dword a246, v[40:41], off")
    f1bload = "buffer_load_dword v44, v43, s[36:39], s71 offen %s" % SC
    s.vm(f1bload, "f1b")
    steps = [("g", 0, 2), ("g", 0, 0), ("g", 0, 1)]
    NA0 = cfg.get("na0", 2)
    steps += [("g", k, 0) for k in range(1, NA0 + 1)]
    UA = len(steps)
    steps += [("g", k, 1) for k in range(1, NA0 + 1)]
    for k in range(NA0 + 1, 8): steps += [("g", k, 0), ("g", k, 1)]
    UB = len(steps)
    for k in range(1, 8): steps += [("g", k, 2)] + ([("s", k // 2, 0)] if k % 2 else [])
    assert len(steps) == 28
    cst = [("r", 0), ("i", 0), ("r", 1), ("r", 2), ("r", 3), ("i", 1), ("i", 2), ("i", 3)]
    steps += [("c", 14, 0), ("c", 15, 0), ("c", 14, 1), ("c", 15, 1)]
    for st in range(16, 22): steps += [("c", st, 0), ("c", st, 1)]
    own = {0, 1, 2, 28, 29}; UC = 30
    NST = 22; KC = cfg.get("kc", 8)
    slot = {st: st % 8 for st in range(22)}; prevocc = {st: (st - 8 if st >= 8 else None) for st in range(22)}
    aW2 = 0; aAG = 32
    vC, vCA = 16, 20
    def dma2(s, st, k, early=None, vC=vC):
        if st < 14:
            kind, x, p = steps[2 * st + k // 2]
            if k % 2 == 0:
                if kind == "g" and p: s("s_add_u32 s%d, s%d, %d\ns_lshl_b32 s%d, s%d, 4" % (sKD, sTQ[x], p * 4096, sKD, sKD))
                else: s("s_lshl_b32 s%d, s%d, 4" % (sKD, (sTQ if kind == "g" else sTS)[x]))
            v, sr = (vD0, vD1)[k % 2], 12
        else:
            part, p = cst[st - 14]
            if k == 0: s("s_lshr_b32 s%d, s%d, 6" % (sKD, sGp[p]))
            v, sr = vC + k, (16 if part == "r" else 20)
        s("s_add_u32 m0, s%d, %d" % (sM, slot[st] * 16384 + k * 4096))
        s.op(Op("buffer_load_dwordx4 v%d, s[%d:%d], s%d offen lds" % (v, sr, sr + 3, sKD), "vm", K(("D2", st, k))), early)
    NPRE = 4
    r = sc.stream(s.units(), res[-1] + 2, 3)
    gS = r[-1]
    L2P = cfg.get("l2p", 0)
    if L2P:
        s("s_lshr_b32 s65, s2, 3\ns_lshl_b32 s65, s65, 2\ns_add_u32 s65, s65, s%d" % sW)
        s("s_mul_i32 s69, s65, %d\ns_mul_i32 s70, s%d, %d\ns_add_u32 s69, s69, s70\nv_min_u32 v40, 55, v0\nv_lshl_add_u32 v40, v40, 7, s69\ns_mov_b32 s70, %d" % (56 * 128, sQ, 896 * 2048, 448 * 2048))
        s.vm("buffer_load_dword a246, v40, s[12:15], 0 offen"); s.delay(cfg.get("l2p_sp", 40))
        s.vm("buffer_load_dword a246, v40, s[12:15], s70 offen"); s.delay(cfg.get("l2p_sp", 40))
        if L2P >= 2:
            s("s_lshl_b32 s69, s65, 14\ns_lshl_b32 s70, s%d, 9\ns_add_u32 s69, s69, s70\nv_bfe_u32 v40, v0, 2, 3\nv_lshl_add_u32 v40, v40, 11, s69\nv_and_b32 v41, 3, v0\nv_lshl_add_u32 v40, v41, 7, v40" % sQ)
    s.at(max(bar[13] + 1, cfg.get("pre_at", 0 if KT else 2170)))
    for st in range(NPRE):
        for k in range(4): dma2(s, st, k)
    if L2P >= 2:
        s.vm("buffer_load_dword a246, v40, s[16:19], 0 offen")
        if L2P >= 3: s.delay(20); s.vm("buffer_load_dword a246, v40, s[20:23], 0 offen")
    r = sc.stream(s.units(), gS + 1, 2, vmspace=cfg.get("pre_sp", 5))
    hst = cfg.get("hst", SC)
    aK0 = xalloc[27][1] if KT else 96; aK1 = 112 if aK0 != 112 else 96
    left = []; msh = 0
    if KT:
        msh = cfg.get("msh", 4)
        for m in range(msh):
            gs = [128 + 4 * m + e for e in range(4)] + [160 + 4 * m + e for e in range(4)]
            o = (56, 60)[m % 2]
            for k, g in enumerate(gs): s("v_mul_f32 v%d, v%d, v%d" % (48 + k, g, g))
            for k, g in enumerate(gs): s("v_fma_f32 v%d, v%d, v47, v46" % (48 + k, 48 + k))
            for k, g in enumerate(gs): s("v_mul_f32 v%d, v%d, v%d" % (48 + k, 48 + k, g))
            for k, g in enumerate(gs): s("v_exp_f32 v%d, v%d" % (48 + k, 48 + k))
            for k, g in enumerate(gs): s("v_mul_f32 v%d, v%d, v%d" % (g + 16, g, g + 16))
            for k, g in enumerate(gs): s("v_add_f32 v%d, 1.0, v%d" % (48 + k, 48 + k))
            for k, g in enumerate(gs): s("v_rcp_f32 v%d, v%d" % (48 + k, 48 + k))
            for k, g in enumerate(gs): s("v_mul_f32 v%d, v%d, v%d" % (g + 16, g + 16, 48 + k))
            for k in range(4): s("v_cvt_pk_bf16_f32 v%d, v%d, v%d" % (o + k, gs[2 * k] + 16, gs[2 * k] + 17))
            s.vm("buffer_store_dwordx4 %s, v1, s[32:35], s66 offen offset:%d %s" % (Q(o), 1024 * m, hst), ("hs", 0, m))
            for k in range(4): s("v_accvgpr_write_b32 a%d, v%d" % (aK0 + 4 * m + k, o + k))
        un = s.units()
        r = sc.stream(un, max(gS + 1, 4 * (28 * 18 + 16) + 2), 3, vmspace=2, overflow=True)
        left = un[len(r):]
        if cfg.get("verbose"): print("setup end", gS, "shadow gelu placed", len(r), "left", len(left))
    if cfg.get("abl"):
        for g in range(720, 1850):
            for it in sc.g[g]:
                o = it[2]; tx = o.text or ""
                if ("T" in cfg["abl"] and tx.startswith("ds_read_b64_tr")) or ("B" in cfg["abl"] and tx.startswith("ds_read_b128")) or \
                   ("X" in cfg["abl"] and tx.startswith("buffer_load_dwordx4") and "s[8:11]" in tx) or ("D" in cfg["abl"] and tx.endswith(" lds")) or \
                   ("P" in cfg["abl"] and tx.startswith("buffer_load_dword a246")) or ("V" in cfg["abl"] and tx.startswith("v_") and it[0] == 3): o.text = ""
    if cfg.get("stall"):
        for G in range(1, NG):
            if G % cfg["stall"] == 0 and len(sc.classes(4 * G - 1)) == 3: sc.put(4 * G - 1, [Op("s_nop 0")], 9)
    prog.add(sc.ops())
    vTA = 40
    s.atom(["L_epi:"])
    s("s_barrier")
    stamp(s, "end1")
    s.u += left
    KD = [int(c, 36) for c in str(cfg.get("kd", "g0a8"))]
    CH2 = cfg.get("ch2", 1); nochain = [int(c) for c in str(cfg.get("ch2_skip", "1"))]
    assert all(k % 2 == 0 for k in KD)
    def sg2(st, ul):
        if CH2 and st not in nochain: return [(2 * st + kk, u) for u in ul for kk in range(2)]
        return [(2 * st + kk, u) for kk in range(2) for u in ul]
    groups = []
    for st in range(22): groups += sg2(st, [u for u in (range(8) if st < 14 else (2, 3, 4, 5, 6, 7, 0, 1)) if 2 * st < 44 - KD[u // 2]])
    pend_ = {}
    for d in (1, 2, 3, 0):
        if str(d) in str(cfg.get("tm", "023")):
            for u in (2 * d, 2 * d + 1):
                for st in range(22 - KD[d] // 2, 22): groups += sg2(st, (u,))
        else:
            for st in range(22 - KD[d] // 2, 22): groups += sg2(st, (2 * d, 2 * d + 1))
    for G, (uu, u) in enumerate(groups): pend_[u] = G
    assert len(groups) == 352 and max(KD) <= 16
    NG = len(groups)
    mo, head, tail = order_mfma(groups)
    lastuse = {}; firstuse = {}
    for G, (uu, u) in enumerate(groups): firstuse.setdefault(uu, head(G)); lastuse[uu] = tail(G)
    hreg = {0: ("v", 48), 1: ("a", aK0), 2: ("a", aK1), 28: ("a", 32), 29: ("a", 48)}; hfree = {}
    pool = [(-1, ("a", r)) for r in [96, 112, 128, 144, 192, 208, 224, 160, 176, 64, 80] if r not in (aK0, aK1)] + [(4 * lastuse[u] + 3, hreg[u]) for u in (1, 2, 28, 29)]
    VFREE = cfg.get("vfree", 700)
    pool += [(VFREE, ("v", r)) for r in (64, 80, 96, 112)[:cfg.get("nvs", 4)]]
    for u in range(44):
        if u in own: continue
        pool.sort(key=lambda x: x[0]); e, r = pool.pop(0)
        hreg[u] = r; hfree[u] = e; pool.append((4 * lastuse[u] + 3, r))
    def hload(s, u, m, early=None):
        kind, x, p = steps[u]
        if m == 0:
            if kind == "g": s("s_add_u32 s%d, s%d, %d" % (sKH, sTQ[x], p * 4096))
            elif kind == "s": s("s_mov_b32 s%d, s%d" % (sKH, sTS[x]))
            else:
                part, pp = cst[x - 14]
                s("s_xor_b32 s%d, s%d, %d\ns_add_u32 s%d, s%d, s%d" % (sKH, sPar, ((28 if part == "r" else 36) + p) * 4096, sKH, sKH, sGp[pp]))
        hk, d = hreg[u]; d += 4 * m
        if kind == "s":
            s.op(Op("buffer_load_dwordx2 %s, v%d, s[32:35], s%d offen offset:%d %s" % (R(hk, d, 2), vH8, sKH, 1024 * m, HL), "vm"), early)
            s.op(Op("buffer_load_dwordx2 %s, v%d, s[32:35], s%d offen offset:%d %s" % (R(hk, d + 2, 2), vH8, sKH, 1024 * m + 512, HL), "vm", K(("H", u, m))))
        else: s.op(Op("buffer_load_dwordx4 %s, v1, s[32:35], s%d offen offset:%d %s" % (R(hk, d, 4), sKH, 1024 * m, HL), "vm", K(("H", u, m))), early)
    def gelu_pair(base0, base1, pid, T, OUT, keep=None, hook=None, m0=0):
        for m in range(m0, 4):
            o = OUT[m % len(OUT)]
            items = [(base0 + 4 * m, base0 + 16 + 4 * m, o), (base0 + 4 * m + 2, base0 + 18 + 4 * m, o + 1),
                     (base1 + 4 * m, base1 + 16 + 4 * m, o + 2), (base1 + 4 * m + 2, base1 + 18 + 4 * m, o + 3)]
            gelu_block(s, items, CC, T)
            s.vm("buffer_store_dwordx4 %s, v1, s[32:35], s66 offen offset:%d %s" % (Q(o), 1024 * m, hst), ("hs", pid, m))
            if keep is not None:
                for r in range(4): s("v_accvgpr_write_b32 a%d, v%d" % (keep + 4 * m + r, o + r))
            if hook: hook(m)
        s("s_add_u32 s66, s66, 4096")
    NPRE2 = cfg.get("npre2", 8)
    cpre = [(st, k) for st in range(NPRE, NPRE2) for k in range(4)]
    def cdma(n):
        for _ in range(n):
            if cpre: st, k = cpre.pop(0); dma2(s, st, k)
    fstore = lambda off: "buffer_store_dword%s, v1, s[36:39], s81 offen offset:%d %s" % (("x4 " + Q(vTG)) if F3M == 2 else (" v%d" % vTG), off * (1, 4, 16)[F3M], SC)
    fload = lambda off: "buffer_load_dword v%d, v%d, s[36:39], s68 offen offset:%d %s" % (vPD, vPAd, off * (1, 4, 16)[F3M], SC)
    s("v_mov_b32 v%d, s%d" % (vTG, sTAG))
    npg = cfg.get("cpre_g", 1)
    cdma(cfg.get("cpre_0", 4))
    gelu_pair(128, 160, 0, 48, [56, 60], aK0, lambda m: cdma(npg), m0=msh)
    def hook1(m):
        cdma(npg)
        if m == cfg.get("fa0_m", 1): flag(s, fstore(96), [("hs", 0, 3)])
    gelu_pair(192, 224, 1, 48, [56, 60], aK1, hook1)
    stamp(s, "p01")
    def pkfma(d, s0, s1, s2, T, neg=False):
        s("v_pk_fma_f32 %s, %s, %s, %s op_sel:[%d,0,0] op_sel_hi:[%d,1,1]%s" % (P(d), P(s0), P(s1), P(s2), T, T, " neg_lo:[1,0,0] neg_hi:[1,0,0]" if neg else ""))
    def pkmul(d, s0, s1, T, neg=False):
        s("v_pk_mul_f32 %s, %s, %s op_sel:[%d,0] op_sel_hi:[%d,1]%s" % (P(d), P(s0), P(s1), T, T, " neg_lo:[1,0] neg_hi:[1,0]" if neg else ""))
    BR = lambda T, x: 64 + 16 * T + 2 * x
    BI = lambda T, x: 96 + 16 * T + 2 * x
    for x in range(8):
        for T in range(2):
            pkmul(128 + 2 * T, cC + 2, BI(T, x), T, True); pkmul(BI(T, x), cC, BI(T, x), T, True)
        for T in range(2):
            pkfma(BI(T, x), cC + 2, BR(T, x), BI(T, x), T, True); pkfma(BR(T, x), cC, BR(T, x), 128 + 2 * T, T)
    sr = [BR(0, 0), BR(1, 0)]; si = [BI(0, 0), BI(1, 0)]
    bufs = [[132, 134], [138, 140]]; SI = [136, 142]
    for x in range(1, 8):
        nr = [bufs[T][x % 2] for T in range(2)]
        for T in range(2): pkfma(nr[T], cL, sr[T], BR(T, x), T)
        for T in range(2): pkfma(nr[T], cL + 2, si[T], nr[T], T, True)
        for T in range(2): pkfma(SI[T], cL, si[T], BI(T, x), T)
        for T in range(2): pkfma(SI[T], cL + 2, sr[T], SI[T], T)
        sr = nr; si = list(SI)
        if x % 2: cdma(1)
    EA = 20
    for T in range(2):
        s("v_mov_b32 v%d, v%d\nv_mov_b32 v%d, v%d\nv_mov_b32 v%d, v%d\nv_mov_b32 v%d, v%d" % (EA + T, sr[T], EA + 2 + T, si[T], 144 + T, sr[T] + 1, 146 + T, si[T] + 1))
    horner_pk(s, EA, cL8, 144, 144)
    s("v_add_u32 v%d, s46, v1\nv_and_b32 v%d, 0xf0, v1\nv_add_u32 v%d, s46, v%d" % (vEW, vER, vER, vER))
    s.lg("ds_write_b128 v%d, v[144:147]" % vEW)
    for g in range(4): s.lg("ds_read_b128 %s, v%d offset:%d" % (Q(148 + 4 * g), vER, 256 * g), ("e", g))
    HPN = cfg.get("hpn", 0)
    if HPN: s.vm(fload(96), "f3a0")
    for r in range(32):
        s("v_accvgpr_read_b32 v%d, a%d" % (192 + r, r))
        if r % 16 == 15: cdma(1)
    flag(s, fstore(0), [("hs", 1, 3)])
    for g in range(1, 4):
        s.wait([("e", g)]); horner_pk(s, 148 + 4 * (g - 1), cL16, 148 + 4 * g, 148 + 4 * g)
    for r in range(160, 164): s("v_min_u32 v%d, -2, v%d" % (r, r))
    s.atom(["s_mov_b64 exec, 0xffff", Op("buffer_store_dwordx4 v[160:163], v1, s[36:39], s64 offen %s" % SC, "vm"), "s_mov_b64 exec, -1"])
    stamp(s, "pub")
    poll(s, "P1b", f1bload, 44, "f1b")
    for r in range(32, 64):
        s("v_accvgpr_read_b32 v%d, a%d" % (192 + r, r))
        if r % 16 == 15: cdma(1)
    cdma(16)
    for r in range(32): s("v_accvgpr_read_b32 v%d, a%d" % (128 + r, aBS + r))
    hq = [(u, m) for u in range(3, UA) for m in range(4)][:HPN]; nh_pre = [3 + HPN // 4]
    assert HPN % 4 == 0
    def issue_h(n):
        for _ in range(n):
            if hq: hload(s, *hq.pop(0))
    hpb = cfg.get("hpb", 3)
    def hookA(m): issue_h(hpb)
    def tramp2():
        s("s_mov_b64 exec, 0")
        for w in range(1, 4): s("s_cmp_eq_u32 s%d, %d\ns_cbranch_scc1 L_trB%d" % (sW, w, w))
        s("s_branch L_trB0")
        s.atom(["L_trret2:"])
        s("s_mov_b64 exec, -1")
    if TRP >= 0 and cfg.get("tr2", 1): tramp2()
    if HPN:
        poll(s, "P3a0", fload(96), vPD, "f3a0"); stamp(s, "ok3a"); issue_h(hpb)
    gelu_pair(192, 224, 2, 168, [48, 52, 56, 60], None, hookA)
    for r in range(32): s("v_accvgpr_read_b32 v%d, a%d" % (192 + r, 64 + r))
    issue_h(hpb)
    for mp in range(2):
        o = 240 + 4 * mp; items = []
        for mm in range(2):
            m = 2 * mp + mm
            items += [(192 + 4 * m, 208 + 4 * m, o + 2 * mm), (194 + 4 * m, 210 + 4 * m, o + 2 * mm + 1)]
        gelu_block(s, items, CC, 168)
        if mp == 0:
            s("v_accvgpr_read_b32 v%d, a%d" % (vTA, PK["TA"]))
            for u in range(1, 6): s("v_xor_b32 v%d, %d, v%d" % (vTA + u, 32 * u, vTA))
        issue_h(hpb if mp == 0 else 99)
        if mp == 1 and not HPN: s.vm(fload(96), "f3a0")
        for mm in range(2):
            s.vm("buffer_store_dwordx2 %s, v%d, s[32:35], s67 offen offset:%d %s" % (P(o + 2 * mm), vH8, 1024 * (2 * mp + mm), hst), ("hsS", 2 * mp + mm))
        if mp == 0:
            s.wait([("D2", st, k) for st in range(cfg.get("bar2", 2)) for k in range(4)])
            s("s_barrier")
            pre_reads_at = len(s.u)
    for u in range(6, 8): s("v_xor_b32 v%d, %d, v%d" % (vTA + u, 32 * u, vTA))
    L2 = cfg.get("l2_lead", 4); B2 = cfg.get("bar2", 2)
    def read2(G, part):
        uu, u = groups[G]; f = G % NWB
        if uu < 28:
            st, kk = divmod(uu, 2)
            return Op("ds_read_b64_tr_b16 %s, v%d offset:%d" % (R("a", aW2 + 4 * f + 2 * part, 2), vTA + u, (slot[st] % 4) * 16384 + kk * 8192 + part * 4096), "lg", K(("F2", G, part)))
        _, st, kk = steps[uu]
        return Op("ds_read_b128 %s, v%d offset:%d" % (R("a", aW2 + 4 * f, 4), vCA + 2 * (slot[st] >= 4) + kk, (slot[st] % 4) * 16384 + u * 2048), "lg", K(("F2", G, part)))
    parts = lambda G: [0, 1] if groups[G][0] < 28 else [None]
    mf = []
    for G, m in mo:
        uu, u = groups[G]
        mf.append(Op(mfma16(("v", 128 + 16 * u + 4 * m), ("a", aW2 + 4 * (G % NWB)), (hreg[uu][0], hreg[uu][1] + 4 * m), zero=(uu == 0 and u >= 2))))
    sc = Sch(mf)
    gneed = lambda G: [("F2", H, p) for H in range(G, tail(G) + 1) for p in parts(H)] + [("H", uu, m) for uu in range(44) if firstuse[uu] == G and uu not in own for m in range(4)]
    rgap = {}
    for G in range(NG):
        st, f = divmod(G, 16)
        if st < 14 and st % B2 == B2 - 1:
            if f <= 4: rgap[G] = 4 * (G - L2) - 1
            elif f == 5: rgap[G] = 4 * (G - 1 - L2) + 1
            elif f <= 10: rgap[G] = 4 * (G - 1 - L2) - 1
            elif f == 11: rgap[G] = 4 * (G - 2 - L2) + 1
            else: rgap[G] = 4 * (G - 2 - L2) - 1
        else: rgap[G] = 4 * (G - L2) - 1
        assert rgap[G] >= 4 * tail(G - NWB) + 3
    pr = Seq()
    for G in range(NG):
        if rgap[G] < 0:
            for p in parts(G): pr.op(read2(G, p))
    s.u[pre_reads_at:pre_reads_at] = pr.units()
    s.wait(gneed(0))
    stamp(s, "loop2")
    prog.add(s.done())
    for G in range(1, NG):
        w = Op("", needs=K(gneed(G)))
        w.keep = sum(len(parts(H)) for H in range(max(0, G - 2), min(NG, G + 10)) if rgap[H] == 4 * G - 1) == 2
        if w.keep or head(G) == G: sc.put(4 * G - 1, [w], 0)
    for G in range(NG):
        if rgap[G] >= 0:
            if rgap[G] % 4 != 3: sc.put(rgap[G], [Op("s_waitcnt lgkmcnt(15)")], 0)
            sc.put(rgap[G], [read2(G, p) for p in parts(G)], 1)
    bar = {}
    for st in range(14):
        if st % B2 != B2 - 1: continue
        bar[st] = 4 * (16 * (st + 1) - L2) - 2
        pub = list(range(st + 1, st + 1 + B2)) if st < 13 else [14, 15, 16, 17]
        sc.put(bar[st], [Op("s_barrier", needs=K([("D2", x, k) for x in pub for k in range(4)]), drain=["lg"])], 0)
    for st in (3, 7, 11):
        for i_, g_ in enumerate((1, 2, 4, 5)):
            sc.put(bar[st] - g_, [Op("v_xor_b32 v%d, 0x10000, v%d" % (vTA + 2 * i_ + k, vTA + 2 * i_ + k)) for k in range(2)], 2)
        assert max(rgap[G] for G in range(16 * st, 16 * st + 16)) < bar[st] - 5
    barF = min(rgap[G] for G in range(NG) if groups[G][0] >= 36) - 1
    sc.put(barF, [Op("s_barrier", needs=K([("D2", x, k) for x in range(18, 22) for k in range(4)]))], 0)
    def mark(o, nm): o.u[-1].append(nm)
    def after(o, nm, n): o.u.append([[Op("")], lambda mk: (mk[nm] + n) if nm in mk else None])
    def dly(o, n): o.u.append([[Op("")], lambda mk: mk["_prev"] + n])
    gl = []
    t = Seq()
    t("v_accvgpr_read_b32 v%d, a%d\nv_accvgpr_read_b32 v%d, a%d\nv_accvgpr_read_b32 v%d, a%d" % (vAG, PK["AG"], vTRW, PK["TRW"], vTRR, PK["TRR"]))
    t("s_mov_b32 s40, s36\ns_mov_b32 s41, s37\ns_mov_b32 s42, 0x40000\ns_mov_b32 s43, 0x20000")
    t("v_lshrrev_b32 v8, 4, v0\nv_cmp_eq_u32 s[64:65], 1, v8\nv_cmp_eq_u32 s[66:67], 2, v8\nv_cmp_eq_u32 s[74:75], 3, v8")
    t.at(cfg.get("ag_gap", 32))
    for x in range(7, -1, -1):
        t("s_mov_b32 s57, %d" % (8192 * x))
        g = "buffer_load_dwordx4 %s, v%d, s[40:43], s57 offen %s" % (R("a", aAG + 4 * x, 4), vAG, SC)
        gl.append("s_mov_b32 s57, %d\n%s" % (8192 * x, g))
        t.vm(g, ("ag", x))
        if x: dly(t, cfg.get("ag_sp", 8))
    mark(t, "ag")
    srd(t, 8, 86, 87, 2048 * 4096)
    flag(t, fstore(32), [("hsS", 3)], early=cfg.get("fb_gap", 80)); mark(t, "flagb")
    after(t, "ag", cfg.get("ag_lat", 20)); t.at(4 * lastuse[0] + 4)
    def ag_horner(o, w):
        cur = None
        for x in range(7, -1, -1):
            q = 48 + 4 * (x % 2)
            if w: o.wait([("ag", x)])
            for r in range(4): o("v_accvgpr_read_b32 v%d, a%d" % (q + r, aAG + 4 * x + r))
            if not w: o(("v_max3_u32 v56, v%d, v%d, v%d\nv_max_u32 v56, v56, v%d" % (q, q + 1, q + 2, q + 3)) if x == 7 else ("v_max3_u32 v56, v56, v%d, v%d\nv_max3_u32 v56, v56, v%d, v%d" % (q, q + 1, q + 2, q + 3)))
            if cur is not None: horner_sc(o, cur, cL64, q)
            cur = q
    ag_horner(t, True)
    t("v_cmp_u_f32 s[70:71], v48, v49")
    t.atom(["v_cmp_u_f32 vcc, v50, v51", "s_or_b64 vcc, vcc, s[70:71]", "s_cbranch_scc1 PAG_retry", "PAG_ok:"])
    ool("PAG_retry:")
    if cfg.get("rc"): RC.append("PAG"); ool("v_readlane_b32 s100, v15, %d\ns_nop 3\ns_add_u32 s100, s100, 100\nv_writelane_b32 v15, s100, %d" % (len(RC), len(RC)))
    ool("\n".join(gl) + "\ns_waitcnt vmcnt(0)")
    ag_horner(ool, False)
    ool("v_cmp_eq_u32 vcc, -1, v56\ns_and_b64 vcc, vcc, exec\ns_cbranch_scc0 PAG_ok\ns_cmp_eq_u32 s79, 0\ns_cbranch_scc1 PAG_ok\ns_sub_u32 s79, s79, 1\ns_sleep 1\ns_branch PAG_retry")
    t.lg("ds_write_b128 v%d, v[48:51] offset:1024" % vEW)
    for g, r in ((3, 52), (2, 56), (1, 60)): t.lg("ds_read_b128 %s, v%d offset:%d" % (Q(r), vER, 1024 + 256 * g), ("s", g))
    t.lg("ds_read_b128 %s, v%d offset:1024" % (Q(48), vER), ("s", 0))
    dly(t, 8)
    t.wait([("s", 2)]); horner_sc(t, 52, cL512, 56)
    t.lg("ds_read_b128 %s, v%d" % (Q(52), vER), ("e2", 0))
    t.wait([("s", 1)]); horner_sc(t, 56, cL512, 60)
    t.lg("ds_read_b128 %s, v%d offset:256" % (Q(56), vER), ("e2", 1))
    t.wait([("s", 0)]); horner_sc(t, 60, cL512, 48)
    t.lg("ds_read_b128 %s, v%d offset:512" % (Q(60), vER), ("e2", 2))
    t.wait([("e2", 0)]); horner_sc(t, 48, cL16, 52)
    t.wait([("e2", 1)]); horner_sc(t, 52, cL16, 56)
    t.wait([("e2", 2)]); horner_sc(t, 56, cL16, 60)
    for g, sm in ((52, 64), (56, 66), (60, 74)):
        for r in range(4): t("v_cndmask_b32 v%d, v%d, v%d, s[%d:%d]" % (48 + r, 48 + r, g + r, sm, sm + 1))
    horner_sc(t, 48, cL8, EA)
    t("v_xor_b32 v52, 16, v%d" % vTRR)
    st_r = {(T, h): (48, EA)[h] + T for T in range(2) for h in range(2)}
    st_i = {(T, h): (48, EA)[h] + 2 + T for T in range(2) for h in range(2)}
    TH = [(T, h) for T in range(2) for h in range(2)]
    xs = Seq()
    for x in range(8):
        for (T, h) in TH: t("v_fmac_f32 v%d, v%d, v%d" % (BR(T, x) + h, cL + T, st_r[T, h]))
        for (T, h) in TH: t("v_fmac_f32 v%d, v%d, v%d" % (BI(T, x) + h, cL + T, st_i[T, h]))
        for (T, h) in TH: t("v_fma_f32 v%d, -v%d, v%d, v%d" % (BR(T, x) + h, cL + 2 + T, st_i[T, h], BR(T, x) + h))
        for (T, h) in TH: t("v_fmac_f32 v%d, v%d, v%d" % (BI(T, x) + h, cL + 2 + T, st_r[T, h]))
        for (T, h) in TH: st_r[T, h] = BR(T, x) + h; st_i[T, h] = BI(T, x) + h
        if x % 2 == 1:
            m = x // 2; mo = (m % 2) * 2048
            for part, Fn in enumerate((BR, BI)):
                for T in range(2):
                    o = 56 + 4 * part + 2 * T
                    t("v_cvt_pk_bf16_f32 v%d, v%d, v%d\nv_cvt_pk_bf16_f32 v%d, v%d, v%d" % (o, Fn(T, x - 1), Fn(T, x - 1) + 1, o + 1, Fn(T, x), Fn(T, x) + 1))
                    t.lg("ds_write_b64 v%d, %s offset:%d" % (vTRW, P(o), mo + part * 1024 + 512 * T))
                t.atom(["s_waitcnt lgkmcnt(15)"] + [Op("ds_read_b64_tr_b16 %s, v%d offset:%d" % (R("a", aAG + 16 * part + 4 * m + 2 * half, 2), (vTRR, 52)[half], mo + part * 1024 + 256 * half), "lg", K(("tr", m, part, half))) for half in range(2)])
                mark(t, ("tr", m, part))
                after(xs, ("tr", m, part), 10)
                if (m, part) != (0, 0) and m < 3: after(xs, ("hl", m - 1 + part, 1 - part), cfg.get("hl_sp", 24))
                xs.vm("buffer_store_dwordx4 %s, v1, s[32:35], s%d offen offset:%d %s" % (R("a", aAG + 16 * part + 4 * m, 4), 72 + part, 1024 * m, hst), ("hl", m, part), needs=[("tr", m, part, 1)])
                mark(xs, ("hl", m, part))
    dly(xs, cfg.get("fc_lat", 60))
    flag(xs, fstore(64), [("hl", 3, 1)]); mark(xs, "flagc")
    t("v_accvgpr_read_b32 v48, a%d\nv_accvgpr_read_b32 v%d, a%d" % (PK["C"], vCA, PK["CA"]))
    for k in range(4): t("s_xor_b32 s65, s%d, %d\ns_lshl_b32 s65, s65, 16\nv_add_u32 v%d, s65, v48" % (sQ, k, vC + k))
    t("s_and_b32 s65, s%d, 1\ns_lshl_b32 s65, s65, 6\nv_xor_b32 v%d, s65, v%d" % (sTN, vCA, vCA))
    t("v_xor_b32 v%d, 64, v%d\nv_add_u32 v%d, 0x10000, v%d\nv_xor_b32 v%d, 64, v%d" % (vCA + 1, vCA, vCA + 2, vCA, vCA + 3, vCA + 2))
    vOO = 28
    t("v_accvgpr_read_b32 v24, a%d\nv_accvgpr_read_b32 v25, a%d\nv_lshlrev_b32 v25, 2, v25\nv_lshl_add_u32 v%d, v24, 12, v25" % (PK["TOK"], PK["COL"], vOO))
    mark(t, "cready")
    RB = lambda u, m: 128 + 16 * u + 4 * m
    after(t, "flagc", 1)
    t("s_lshl_b32 s65, s%d, 3\ns_add_u32 s65, s65, s%d\ns_lshl_b32 s66, s65, 18\ns_lshl_b32 s67, s%d, 14\ns_add_u32 s66, s66, s67\ns_add_u32 s66, s66, 0x%x" % (sI, sTN, sW, WS_PART))
    t.atom(["s_add_u32 s40, s6, s66", "s_addc_u32 s41, s7, 0"])
    t("s_and_b32 s41, s41, 0xffff\ns_mov_b32 s42, 0x34000\ns_mov_b32 s43, 0x20000")
    t("s_lshl_b32 s69, s65, 2\ns_add_u32 s69, s69, s%d\ns_lshl_b32 s69, s69, %d\ns_add_u32 s69, s69, 0x%x" % (sW, (7, 10, 10)[F4M], SM_F4))
    for d in (1, 2, 3):
        t("s_xor_b32 s67, s%d, %d\ns_lshl_b32 s66, s67, 16\ns_add_u32 s%d, s66, %d" % (sQ, d, 72 + d, (d - 1) * 4096))
        t("s_lshl_b32 s67, s67, %d\nv_add_u32 v%d, s67, v1" % ((4, 8, 8)[F4M], 28 + d))
        t("s_lshl_b32 s67, s%d, 16\ns_add_u32 s%d, s67, %d" % (sQ, 69 + d, (d - 1) * 4096))
    t("s_lshl_b32 s67, s%d, %d\nv_and_b32 v32, 3, v0\nv_lshl_add_u32 v32, v32, %d, s67" % (sQ, (4, 8, 8)[F4M], (2, 2, 6)[F4M]))
    t("s_mov_b32 s57, 0\ns_mov_b32 s58, 8192\ns_mov_b32 s59, 16384\ns_mov_b32 s64, 24576")
    t("v_mov_b32 v34, 0x3f80\nv_mov_b32 v35, 0x3f800000")
    mark(t, "setup")
    if cfg.get("tlb", 0):
        after(t, ("H", 43), 2)
        t.vm("buffer_load_dword a246, v29, s[40:43], s73 offen")
        t("v_readfirstlane_b32 s67, v%d" % vOO); dly(t, 3)
        t.vm("buffer_load_dword a246, v29, s[8:11], s67 offen")
    f4store = lambda d, ix: ("buffer_store_dword v%d, v%d, s[36:39], s69 offen offset:%d %s" % (vTG, 28 + d, 4 * ix, SC)) if F4M < 2 else ("buffer_store_dwordx4 %s, v%d, s[36:39], s69 offen offset:%d %s" % (Q(vTG), 28 + d, 64 * ix, SC))
    f4load = "buffer_load_dword v33, v32, s[36:39], s69 offen %s" % SC
    gp = lambda u: 4 * pend_[u] + 3 + 3
    RV = lambda d, m: 128 + 32 * d + 8 * m + 4
    rload = lambda d, m: "buffer_load_dwordx4 %s, v1, s[40:43], s%d offen offset:%d %s" % (Q(RV(d, m)), 69 + d, 1024 * m, SC)
    NFI = cfg.get("nfi", 3); NRI = cfg.get("nri", 1)
    fs = Seq(); rs = Seq(); pl_ = Seq(); assert NFI == 3; NB = str(cfg.get("nb", "1"))
    for d in (1, 2, 3):
        for m in range(4):
            t.at(gp(2 * d + m // 2))
            A = 128 + 32 * d + 8 * m; Bq = A + 4
            t("v_cvt_pk_bf16_f32 v%d, v%d, v%d\nv_cvt_pk_bf16_f32 v%d, v%d, v%d\nv_cvt_pk_bf16_f32 v%d, v%d, v%d\nv_cvt_pk_bf16_f32 v%d, v%d, v%d" % (A, A, A + 1, A + 1, A + 2, A + 3, A + 2, Bq, Bq + 1, A + 3, Bq + 2, Bq + 3))
            mark(t, ("cv", d, m))
            after(xs, ("cv", d, m), 1)
            xs.vm("buffer_store_dwordx4 %s, v1, s[40:43], s%d offen offset:%d %s" % (Q(A), 72 + d, 1024 * m, SC), ("ps", d, m)); mark(xs, ("ps", d, m))
    SP3 = cfg.get("sp3", 1)
    HU = ((1, (0, 1, 2, 3), 1), (2, (0, 1, 2, 3), 2)) + (((3, (0, 1), 0), (3, (2, 3), 3)) if SP3 else ((3, (0, 1, 2, 3), 3),))
    f4l3 = f4load.replace("v33,", "v39,")
    ool("FX:\n%s\ns_waitcnt vmcnt(0)\nv_cmp_eq_u32 vcc, s%d, v39\ns_and_b32 s29, vcc_lo, s28\ns_andn2_b32 s28, s28, s29" % (f4l3, sTAG))
    lat4 = [int(x) for x in str(cfg.get("p4_lat", "40")).split("-")]; lat4 += lat4[-1:] * 4
    for hi_, (d, ms, ix) in enumerate(HU):
        after(fs, ("ps", d, ms[-1]), cfg.get("f4_lat", 44)); flag(fs, f4store(d, ix), [("ps", d, ms[-1])]); mark(fs, ("f4", ix))
        vF = 36 + ix
        f4l = f4load.replace("v33,", "v%d," % vF)
        after(pl_, ("f4", ix), lat4[hi_]); pl_.vm(f4l, ("f4l", ix)); mark(pl_, ("f4l", ix))
        after(rs, ("f4l", ix), cfg.get("p4_rt", 36))
        if ix != 3:
            rs.wait([("f4l", ix)])
            rs("v_cmp_ne_u32 s[82:83], s%d, v%d" % (sTAG, vF)); dly(rs, 1)
            rs.atom(["s_and_b32 s29, s82, %d" % (1 << ix), "s_cselect_b32 s47, 0x40000000, s%d" % (69 + d), "s_or_b32 s28, s28, s29" if hi_ else "s_mov_b32 s28, s29"])
            ool("s_bitcmp1_b32 s29, %d\ns_cbranch_scc0 FX_n%d\n%s\nFX_n%d:" % (ix, ix, "\n".join(rload(d, m) for m in ms), ix))
        else:
            ool("s_cmp_eq_u32 s28, 0\ns_cbranch_scc1 FX_done\ns_cmp_eq_u32 s79, 0\ns_cbranch_scc1 FX_done\ns_sub_u32 s79, s79, 1\ns_branch FX\nFX_done:\n%s\ns_waitcnt vmcnt(0)\ns_branch FX_ret" % f4l3)
            rs.at(10 ** 6)
            rs.atom(["s_cmp_lg_u32 s28, 0", "s_cbranch_scc1 FX", "FX_ret:"])
            poll(rs, "P4%d" % ix, f4l, vF, ("f4l", ix), mask=str(1 << ix))
        for m in ms:
            rs.vm(rload(d, m).replace("s%d offen" % (69 + d), "s47 offen") if ix != 3 else rload(d, m), ("pl", d, m)); mark(rs, ("pl", d, m)); dly(rs, cfg.get("r_sp", 8))
    hs = Seq(); hdl = {}
    if not HPN: poll(hs, "P3a0", fload(96), vPD, "f3a0", early=cfg.get("pa_gap", 12))
    for u in range(nh_pre[0], 44):
        if u in own: continue
        for (U, nm, off, fl, lat) in ((UA, "P3a", 0, None, 0), (UB, "P3b", 32, "flagb", cfg.get("pb_lat", 80)), (UC, "P3c", 64, "flagc", cfg.get("pc_lat", 80))):
            if u == (max(U - 2, nh_pre[0]) if U != UC else U):
                if fl: after(hs, fl, lat)
                hs.vm(fload(off), nm); mark(hs, nm + "l")
            if u == U:
                after(hs, nm + "l", cfg.get("poll_rt", 44)); poll(hs, nm, fload(off), vPD, nm); mark(hs, nm)
        n0 = len(hs.u)
        for m in range(4): hload(hs, u, m, max(hfree[u], 4 * firstuse[u] - cfg.get("l2_la", 400)))
        for i in range(n0, len(hs.u)): hdl[i] = 4 * firstuse[u] - 1
        mark(hs, ("H", u))
    ds = Seq(); ddl = {}
    DL = lambda st: bar[st // B2 * B2 - 1] if st < 14 else (bar[13] if st < 18 else barF)
    for st in range(NPRE2, 22):
        n0 = len(ds.u)
        if st == "E":
            after(ds, "cready", 1); after(ds, ("hl", 3, 1), 1)
            for n in range(4):
                ds("s_mov_b32 s%d, %d\ns_add_u32 m0, s46, %d" % (sKD, 32768 * n, 2048 + 1024 * n))
                ds.vm("buffer_load_dwordx4 v26, s[24:27], s%d offen lds" % sKD)
            ds("s_add_u32 m0, s46, 6144"); ds.vm("buffer_load_dwordx4 v1, s[36:39], s59 offen lds")
            ds("s_add_u32 m0, s46, 7168"); ds.vm("buffer_load_dwordx4 v1, s[28:31], s58 offen lds", "Elast"); mark(ds, "edma")
            dl = 900
        else:
            if st == 14: after(ds, "cready", 1)
            for k in range(4): dma2(ds, st, k, bar[prevocc[st] // B2 * B2 + B2 - 1] + 1 if st >= 8 else 0)
            dl = DL(st)
            mark(ds, ("D", st))
        for i in range(n0, len(ds.u)): ddl[i] = dl
    RS = Stream("r", rs.units(), 2, deadline=lambda i: cfg.get("r_prio", 0)); PS = Stream("pl", pl_.units(), 2, deadline=lambda i: -2); RS.overflow = PS.overflow = True
    mk = multi(sc, [Stream("h", hs.units(), 2, deadline=lambda i: hdl.get(i, 0)), Stream("d", ds.units(), 2, deadline=lambda i: ddl.get(i, 0)),
                    Stream("x", xs.units(), 2), Stream("t", t.units(), 3, start=1), RS, PS, Stream("f", fs.units(), 2, deadline=lambda i: -2)],
               cl=cfg.get("cl", 70), cs=cfg.get("cs", 210), B0=cfg.get("b0", 150), busy0=cfg.get("busy0", 300), tinyfree=cfg.get("tf", 1))
    sl = sorted([(4 * firstuse[u] - 1 - mk[("H", u)], "h", u) for u in range(nh_pre[0], 44) if u not in own] + [(DL(st) - mk[("D", st)], "d", st) for st in range(NPRE2, 22)])
    if cfg.get("verbose"):
        print("loop2 slacks", sl[:6], {k: v for k, v in mk.items() if isinstance(k, str)}, "hl", [mk[("hl", m, p)] for m in range(4) for p in range(2)], "ps", [mk[("ps", d, m)] for d in (1, 2, 3) for m in range(4)], "barF", barF, "f4", [mk.get(("f4", d)) for d in (1, 2, 0, 3)], "f4l", [mk.get(("f4l", d)) for d in (1, 2, 0, 3)], "pl", [mk.get(("pl", d, m)) for d in (1, 2, 3) for m in range(4)])
    assert sl[0][0] > cfg.get("minslack", 30), sl[:4]
    assert mk["cready"] < rgap[firstuse[28]] and mk[("hl", 3, 1)] < 4 * firstuse[28] - 1 and mk["setup"] < gp(2) and mk[("tr", 3, 1)] < VFREE
    for nm in names:
        if TS and nm[0] == "g" and nm[1:].isdigit():
            g_ = 4 * (16 * (int(nm[1:]) + 1) - L2) - 2
            sc.put(g_ - 1, [Op("s_memrealtime s[100:101]")], 5)
            sc.put(g_, [Op("s_waitcnt lgkmcnt(0)\nv_writelane_b32 v%d, s100, %d" % (vTS, names.index(nm)))], 5)
    if cfg.get("drop"):
        for g in range(cfg.get("drop_lo", 120), cfg.get("drop_hi", 600)):
            for it in sc.g[g]:
                o = it[2]
                if it[0] in (2, 3) and o.text and "\n" not in o.text and not o.text.endswith(":"):
                    c = opclass(o.text)
                    if it[0] == 2 and not (c == "X" and "x4" in o.text): continue
                    if c in cfg["drop"] and "cmp" not in o.text and not any(("v%d," % r) in o.text.split(None, 2)[1] + "," for r in range(16, 32)):
                        o.text = "s_nop 0" if cfg.get("dropnop") else ""
    prog.add(sc.ops())
    stamp(s, "end2")
    def addp(d, m):
        s.wait([("pl", d, m)])
        for k in range(8):
            r = 128 + 8 * m + k
            s("v_dot2_f32_bf16 v%d, v%d, v%d, v%d" % (r, RV(d, m) + k // 2, 34 + k % 2, r))
    for un in PS.units[PS.pos:] + RS.units[RS.pos:]: s.u.append([un[0], None])
    stamp(s, "poll4")
    sM4 = [57, 58, 59, 64]
    for m in range(4):
        for d in (1, 2, 3): addp(d, m)
        stamp(s, "r%d" % m)
        s.vm("buffer_store_dwordx4 %s, v%d, s[8:11], s%d offen offset:%d %s" % (Q(128 + 8 * m), vOO, sM4[2 * (m % 2)], 64 * (m // 2), cfg.get("ost", SC)))
        s("s_nop 1")
        s.vm("buffer_store_dwordx4 %s, v%d, s[8:11], s%d offen offset:%d %s" % (Q(132 + 8 * m), vOO, sM4[2 * (m % 2) + 1], 64 * (m // 2), cfg.get("ost", SC)))
    prog.add(s.done())
    prog.emit(a)
    a("s_cmp_eq_u32 s%d, 31\ns_cbranch_scc0 L_noep\ns_cmp_eq_u32 s%d, 0\ns_cbranch_scc0 L_noep" % (sB, sJ))
    a("v_mov_b32 v40, 0x%x\ns_mov_b64 exec, 1\nbuffer_store_dword v%d, v40, s[36:39], 0 offen %s\ns_mov_b64 exec, -1" % (SM_EP, vTG, SC))
    a("L_noep:")
    if TS:
        a("s_waitcnt vmcnt(0)\ns_memrealtime s[100:101]\ns_waitcnt lgkmcnt(0)\nv_writelane_b32 v%d, s100, %d" % (vTS, len(names) - 1))
        a("s_cmp_lg_u32 s%d, %d\ns_cbranch_scc1 L_end" % (sW, cfg.get("tsw", 0)))
        if cfg.get("leak"):
            A, B = cfg["leak"].split(":")
            a("s_cmp_lg_u32 s2, %d\ns_cbranch_scc1 L_end" % cfg.get("leakwg", 100))
            a("v_readlane_b32 s64, v%d, %d\nv_readlane_b32 s65, v%d, %d\ns_nop 4\ns_sub_u32 s64, s65, s64\ns_mul_i32 s64, s64, %d\ns_min_u32 s64, s64, 200000" % (vTS, names.index(A), vTS, names.index(B), cfg.get("leakk", 8)))
            a("L_leak:\ns_memrealtime s[66:67]\ns_waitcnt lgkmcnt(0)\ns_sub_u32 s66, s66, s100\ns_cmp_lt_u32 s66, s64\ns_cbranch_scc1 L_leak")
        ws_srd(a, 12, WS_TS, 16384)
        a("s_lshl_b32 s75, s2, 6\nv_lshlrev_b32 v1, 2, v0\ns_mov_b64 exec, 0xffff\nbuffer_store_dword v%d, v1, s[12:15], s75 offen" % vTS)
    if cfg.get("rc"): STAMPS[1:1 + len(RC)] = RC
    a("L_end:")
    a("s_endpgm")
    if ".p2align 12" in a.lines and cfg.get("oolf", 1):
        i = a.lines.index(".p2align 12"); a.lines[i:i] = ool.lines
    else: a.lines += ool.lines
    a("L_codeend:")
    return name, a

DOC = """;
; instruction placed by hand-written rules into the issue gaps between the 16x16x32 bf16 MFMAs).
;   phase 1  [gate | up | B_re | B_im] projection, tile 256 x 288, weights by LDS-DMA, xn straight into registers
"""

def inst_sizes(lines):
    import subprocess, tempfile, os, re
    d = tempfile.mkdtemp()
    und = sorted(set(re.findall(r"L_trB?\d+\b", "\n".join(lines))))
    open(d + "/a.s", "w").write('.amdgcn_target "amdgcn-amd-amdhsa--gfx950"\n' + "\n".join(l for l in lines if not l.startswith(".p2align 12")) + "\n" + "".join(u + ":\n" for u in und))
    subprocess.check_call(["clang", "-x", "assembler", "-target", "amdgcn-amd-amdhsa", "-mcpu=gfx950", "-c", d + "/a.s", "-o", d + "/a.o"])
    o = subprocess.check_output(["llvm-objdump", "-d", "--mcpu=gfx950", d + "/a.o"], text=True)
    sz = [4 * len(m.group(1).split()) for m in re.finditer(r"// [0-9A-F]+: ([0-9A-F ]+)", o)]
    n = sum(1 for l in lines if parse(l))
    assert n == len(sz), (n, len(sz))
    return sz

def add_stubs(lines, cfg):
    NL = 1; step = cfg.get("tr_step", 128)
    sz = iter(inst_sizes(lines)); size = [next(sz) if parse(l) else 0 for l in lines]
    i0 = lines.index("L_main:"); iend = lines.index("L_end:")
    out = lines[:i0 + 1]; off = 0; targets = [4096 * p + step * k for p in range(0, 40) for k in range(NL)]
    n = 0; pos = []
    def penalty(i):
        if not lines[i - 1].startswith("v_mfma"): return 0 if not any(l.startswith("v_mfma") for l in lines[max(0, i - 6):i + 6]) else 1
        j = i; c = ["S"]
        while not lines[j].startswith("v_mfma") and j - i < 8:
            try: c.append(opclass(lines[j]))
            except AssertionError: return 0
            j += 1
        t = gap_time(c)
        return 0 if (t is not None and t <= 16) else 1
    for i in range(i0 + 1, len(lines)):
        if i < iend and size[i] and off >= targets[n] and (penalty(i) == 0 or off + size[i] > targets[n] + 56):
            out.append("L_tr%d:" % n); out.append(("STUB", n)); off += 4; n += 1
        out.append(lines[i]); off += size[i]
    n1 = min(n, cfg.get("tr_n", 12))
    res = []
    for l in out:
        if isinstance(l, tuple):
            k = l[1]; nx = k + 4
            if k < n1: res.append("s_cbranch_execz %s" % ("L_tr%d" % nx if nx < n1 else "L_trret"))
            elif cfg.get("tr2", 1): res.append("s_cbranch_execz %s" % ("L_tr%d" % nx if nx < n else "L_trret2"))
            else: res.append("s_nop 0")
        elif "L_trB" in l:
            k = n1 + int(l[-1]); res.append(l.replace("L_trB" + l[-1], "L_tr%d" % k if k < n else "L_trret2"))
        else: res.append(l)
    if cfg.get("verbose"): print("pages", n)
    return res

def build(cfg):
    name, a = gen(cfg)
    hdr = open("cdna_kernels/%s.s.ref" % NAME).read().split("; Override launch")[0]
    out = hdr + "; @launch grid=(256,1,1) block=(256,1,1) lds=163840\n"
    out += DOC
    out += '.amdgcn_target "amdgcn-amd-amdhsa--gfx950"\n'
    import re as _re
    lines = pad_hazards([l for l in a.lines if l and not _re.fullmatch(r"s_mov_b32 (s\d+), \1", l)], cfg.get("verbose", 0) > 1)
    import re
    def shorten(l):
        m = re.fullmatch(r"s_mov_b32 (s\d+), (\d+|0x[0-9a-f]+)", l)
        if m and 64 < int(m.group(2), 0) < 32768: return "s_movk_i32 %s, %s" % m.groups()
        return l
    lines = [shorten(l) for l in lines if not re.fullmatch(r"s_mov_b32 (s\d+), \1", l)]
    if cfg.get("tramp", 1): lines = add_stubs(lines, cfg)
    if cfg.get("verbose"): print(gap_report(lines))
    if cfg.get("lsc"): lines = [l.replace("sc0 sc1", cfg["lsc"]) if l.startswith("buffer_load") else l for l in lines]
    if cfg.get("jit"):
        import random
        rnd = random.Random(cfg["jit"]); outl = []; n = 0; nm = 0
        at = set(rnd.sample(range(3712), 10)) | {0, 150, 2303, 2304}
        for l in lines:
            hit = False
            if l.startswith("v_mfma"):
                hit = nm in at; nm += 1
            if l.startswith(("P1_chk:", "P1b_chk:", "L_trret2:", "L_epi:")) or "agfill" in l: hit = True
            if hit:
                n += 1
                outl += ["s_cselect_b32 s101, 1, 0", "s_mul_i32 s100, s2, %d" % rnd.randrange(1, 1 << 12, 2), "s_add_u32 s100, s100, s62" if rnd.random() < 0.5 else "s_nop 0", "s_bfe_u32 s100, s100, 0x%x" % (0x40000 + rnd.randrange(0, 4)),
                         "s_cmp_lg_u32 s100, %d" % rnd.randrange(16), "s_cbranch_scc1 L_jit%d" % n] + ["s_sleep 127"] * rnd.randrange(1, 3) + ["L_jit%d:" % n, "s_cmp_eq_u32 s101, 1"]
            outl.append(l)
        lines = outl
    la = cfg.get("laux"); da = cfg.get("daux")
    if la: lines = [l + " " + la if (l.startswith("buffer_load_dwordx4 a[") and "sc1" not in l) else l for l in lines]
    if da: lines = [l.replace(" lds", " %s lds" % da) if l.endswith(" lds") else l for l in lines]
    out += "\n".join(lines) + "\n"
    if cfg.get("cyc"): out = out.replace("s_memrealtime", "s_memtime")
    b = Asm(); kernel_desc(b, name, 512, accum=256); out += b.text()
    return out

if __name__ == "__main__":
    cfg = {}
    for kv in sys.argv[2:]:
        k, v = kv.split("=")
        try: v = int(v)
        except ValueError:
            try: v = float(v)
            except ValueError: v = v.replace("+", " ")
        cfg[k] = v
    open(sys.argv[1], "w").write(build(cfg))
```

```python
import sys, math, struct
from asmlib import *

NAME = "parallel_sum__ssm_conv_s5__glu_gated_geglu__prompt"
KX, KLRE, KLIM, KBRE, KBIM, KCRE, KCIM, KLDT, KDSK, KBX, KWG, KWU, KWD, KOUT, KDBG, KWS = [8 * i for i in range(16)]
WS_XN = 0
WS_H = 0x400000
H_BLK = 176 * 4096
WS_SM = 0x1A00000
SM_AG = 0; SM_ST = 0x40000; SM_EP = 0x48000; SM_F1 = 0x50000; SM_F1B = 0x60000; SM_F3 = 0x70000; SM_F4 = 0xB0000; SM_SIZE = 0xF0000
WS_TS = 0x1B00000
WS_PART = 0x2000000
NSTAMPS = [16]
SPLIT_LAYOUT = True
XN_DIRECT = 0
STAMPS = []

def f2u(x): return struct.unpack("<I", struct.pack("<f", x))[0]
def fx(x): return "0x%08x" % f2u(x)
P = lambda r: "v[%d:%d]" % (r, r + 1)
Q = lambda r: "v[%d:%d]" % (r, r + 3)
LOG2E = 1.4426950408889634
K = lambda v: (lambda it: v)

def ws_srd(a, r, off, size):
    a("s_add_u32 s%d, s6, 0x%x\ns_addc_u32 s%d, s7, 0\ns_and_b32 s%d, s%d, 0xffff\ns_mov_b32 s%d, 0x%x\ns_mov_b32 s%d, 0x20000" % (r, off, r + 1, r + 1, r + 1, r + 2, size, r + 3))

def mfma16(d, A, B, zero=False):
    return "v_mfma_f32_16x16x32_bf16 %s, %s, %s, %s" % (R(d[0], d[1], 4), R(A[0], A[1], 4), R(B[0], B[1], 4), "0" if zero else R(d[0], d[1], 4))

def cmul_pk(a, dr, di, ar, ai, br, bi, t):
    a("v_pk_mul_f32 %s, %s, %s" % (P(t), P(ai), P(bi)))
    a("v_pk_fma_f32 %s, %s, %s, %s neg_lo:[0,0,1] neg_hi:[0,0,1]" % (P(t), P(ar), P(br), P(t)))
    a("v_pk_mul_f32 %s, %s, %s" % (P(t + 2), P(ar), P(bi)))
    a("v_pk_fma_f32 %s, %s, %s, %s" % (P(di), P(ai), P(br), P(t + 2)))
    a("v_mov_b32 v%d, v%d\nv_mov_b32 v%d, v%d" % (dr, t, dr + 1, t + 1))

def horner_pk(a, s, L, e, d):
    a("v_pk_fma_f32 %s, %s, %s, %s" % (P(d), P(L), P(s), P(e)))
    a("v_pk_fma_f32 %s, %s, %s, %s" % (P(d + 2), P(L), P(s + 2), P(e + 2)))
    a("v_pk_fma_f32 %s, %s, %s, %s neg_lo:[1,0,0] neg_hi:[1,0,0]" % (P(d), P(L + 2), P(s + 2), P(d)))
    a("v_pk_fma_f32 %s, %s, %s, %s" % (P(d + 2), P(L + 2), P(s), P(d + 2)))

def horner_sc(a, s, L, e):
    for T in range(2):
        a("v_fmac_f32 v%d, v%d, v%d" % (e + T, L + T, s + T)); a("v_fmac_f32 v%d, v%d, v%d" % (e + 2 + T, L + T, s + 2 + T))
    for T in range(2):
        a("v_fma_f32 v%d, -v%d, v%d, v%d" % (e + T, L + 2 + T, s + 2 + T, e + T)); a("v_fmac_f32 v%d, v%d, v%d" % (e + 2 + T, L + 2 + T, s + T))

def gelu_block(a, items, CC, T):
    for k, (g, u, o) in enumerate(items): a("v_pk_mul_f32 %s, %s, %s" % (P(T + 2 * k), P(g), P(g)))
    for k, (g, u, o) in enumerate(items): a("v_pk_fma_f32 %s, %s, %s, %s op_sel:[0,1,0] op_sel_hi:[1,1,0]" % (P(T + 2 * k), P(T + 2 * k), P(CC), P(CC)))
    for k, (g, u, o) in enumerate(items): a("v_pk_mul_f32 %s, %s, %s" % (P(T + 2 * k), P(T + 2 * k), P(g)))
    for k, (g, u, o) in enumerate(items):
        a("v_exp_f32 v%d, v%d" % (T + 2 * k, T + 2 * k)); a("v_exp_f32 v%d, v%d" % (T + 2 * k + 1, T + 2 * k + 1))
        a("v_pk_mul_f32 %s, %s, %s" % (P(u), P(g), P(u)))
    for k, (g, u, o) in enumerate(items): a("v_pk_add_f32 %s, %s, 1.0 op_sel_hi:[1,0]" % (P(T + 2 * k), P(T + 2 * k)))
    for k, (g, u, o) in enumerate(items):
        a("v_rcp_f32 v%d, v%d" % (T + 2 * k, T + 2 * k)); a("v_rcp_f32 v%d, v%d" % (T + 2 * k + 1, T + 2 * k + 1))
    for k, (g, u, o) in enumerate(items): a("v_pk_mul_f32 %s, %s, %s" % (P(u), P(u), P(T + 2 * k)))
    for k, (g, u, o) in enumerate(items): a("v_cvt_pk_bf16_f32 v%d, v%d, v%d" % (o, u, u + 1))

class Seq:
    def __init__(self): self.u = []
    def __call__(self, s):
        for l in s.split("\n"):
            l = l.strip()
            assert not l.startswith(("buffer_", "global_", "ds_")), ("uncounted memory op", l)
            self.u.append([[Op(l)], None])
    def atom(self, ops, early=None): self.u.append([[o if isinstance(o, Op) else Op(o) for o in ops], early])
    def vm(self, text, tag=None, needs=None, early=None):
        if needs: self.wait(needs, early=early); early = None
        self.u.append([[Op(text, "vm", K(tag) if tag is not None else None)], early])
    def lg(self, text, tag=None, needs=None):
        if needs: self.wait(needs)
        self.u.append([[Op(text, "lg", K(tag) if tag is not None else None)], None])
    def wait(self, needs, drain=None, early=None): self.u.append([[Op("", needs=K(needs) if needs else None, drain=drain)], early])
    def op(self, o, early=None): self.u.append([[o], early])
    def delay(self, n):
        self._d = n; i = len(self.u) - 1
        self.u.append([[Op("")], lambda res, n=n: res[-1] + n])
    def at(self, g): self.u.append([[Op("")], g])
    def done(self):
        o = [x for un, _ in self.u for x in un]; self.u = []; return o
    def units(self):
        u = self.u; self.u = []; return u

def order_mfma(groups):
    ch = [groups[2 * p][1] == groups[2 * p + 1][1] for p in range(len(groups) // 2)]
    out = []; up = True
    for p, c in enumerate(ch):
        if c:
            for m in (range(4) if up else range(3, -1, -1)): out += [(2 * p, m), (2 * p + 1, m)]
            up = not up
        else:
            for G in (2 * p, 2 * p + 1):
                out += [(G, m) for m in (range(4) if up else range(3, -1, -1))]; up = not up
    return out, (lambda G: G & ~1 if ch[G // 2] else G), (lambda G: G | 1 if (G >= 0 and ch[G // 2]) else G)

W_ST = 28672; U_OFF = 14336
B_BASE = 131072; B_ST = 8192
LN_LDS = 65536 + W_ST

def gen(cfg):
    name = NAME + "_kernel"
    a = Asm(); kernel_header(a, name)
    ool = Asm()
    TS = cfg.get("ts")
    names = ["start"] + cfg.get("stamps", "flag1 poll1 loop1 end1 p01 pub loop2 end2 poll4").split() + ["end"]
    STAMPS[:] = names; NSTAMPS[0] = len(names)
    vTS = 15; RC = []
    def stamp(s, nm):
        if TS and nm in names: s.atom(["s_memrealtime s[100:101]", "s_waitcnt lgkmcnt(0)", "v_writelane_b32 v%d, s100, %d" % (vTS, names.index(nm))])
    SC = cfg.get("sc", "sc0 sc1")
    HL = cfg.get("hl", "sc1")
    F4M = cfg.get("f4m", 1); F3M = cfg.get("f3m", 0); FBW = cfg.get("fbw", 0)
    FS = cfg.get("f1s", 128)
    prog = Prog(); s = Seq()
    sJ, sI, sW, sB, sQ, sTN, sTAG = 60, 61, 62, 63, 52, 53, 3
    sMW, sM3, sMB, sKW, sKB, sKX, sCNT = 54, 55, 56, 57, 58, 59, 81
    sPAs, sKPA, sKPB, sPBs = 76, 77, 78, 80
    def poll(s, nm, loadtext, dst, tagneed, mask=None, early=None):
        s.wait([tagneed], early=early)
        s.atom(["%s_chk:" % nm, "v_cmp_ne_u32 vcc, s%d, v%d" % (sTAG, dst), "s_and_b64 vcc, vcc, %s" % (mask or "exec"), "s_cbranch_scc1 %s_retry" % nm, "%s_ok:" % nm])
        ool("%s_retry:" % nm)
        if cfg.get("rc"): RC.append(nm); ool("v_readlane_b32 s100, v15, %d\ns_nop 3\ns_add_u32 s100, s100, 100\nv_writelane_b32 v15, s100, %d" % (len(RC), len(RC)))
        ool("%s_r2:\ns_cmp_eq_u32 s79, 0\ns_cbranch_scc1 %s_ok\ns_sub_u32 s79, s79, 1\ns_sleep %d\n%s\ns_waitcnt vmcnt(0)\ns_branch %s_chk" % (nm, nm, cfg.get("psl", 1), loadtext, nm))
    def flag(s, text, needs, early=None):
        s.wait(needs, early=early)
        s.atom(["s_mov_b64 exec, %d" % (15 if "x4" in text else 1), Op(text, "vm"), "s_mov_b64 exec, -1"])

    s("s_cmp_ge_u32 s2, 256\ns_cbranch_scc1 L_end")
    if cfg.get("gx"): s("s_xor_b32 s2, s2, %d" % cfg["gx"])
    if TS: s("s_memrealtime s[100:101]")
    CP = cfg.get("cpf", 1)
    s("s_load_dwordx2 s[4:5], s[0:1], %d" % KX)
    s("s_load_dwordx2 s[6:7], s[0:1], %d" % KWS)
    s("s_load_dwordx4 s[12:15], s[0:1], %d" % KWG)
    s("s_load_dwordx4 s[24:27], s[0:1], %d" % KBRE)
    s("s_load_dwordx4 s[96:99], s[0:1], %d" % KLRE)
    s("s_load_dwordx4 s[92:95], s[0:1], %d" % KLDT)
    s("s_load_dwordx4 s[84:87], s[0:1], %d" % KWD)
    s("s_load_dwordx4 s[88:91], s[0:1], %d" % KCRE)
    if CP:
        s("s_getpc_b64 s[82:83]")
        s.atom(["L_pc:"])
        s("s_lshr_b32 s64, s2, 3\ns_mul_i32 s64, s64, 28\nv_add_u32 v3, s64, v0\nv_cmp_gt_u32 vcc, 64, v0\nv_cndmask_b32 v2, v3, v0, vcc\nv_lshlrev_b32 v2, 7, v2")
        s("v_min_u32 v2, L_codeend-L_pc-4, v2\nv_mov_b32 v3, 0\nv_lshl_add_u64 v[2:3], v[2:3], 0, s[82:83]")
        s("v_cmp_gt_u32 vcc, 92, v0\ns_and_saveexec_b64 s[66:67], vcc\ns_cbranch_execz L_nocp")
        s.atom([Op("global_load_dword a246, v[2:3], off")])
        s.atom(["L_nocp:", "s_mov_b64 exec, -1"])
    s("v_lshrrev_b32 v1, 6, v0\nv_and_b32 v0, 63, v0")
    s("v_readfirstlane_b32 s%d, v1" % sW)
    s("v_lshlrev_b32 v1, 4, v0")
    s("s_mov_b32 s79, 0x40000")
    s("s_bfe_u32 s%d, s2, 0x20001" % sQ)
    s("s_and_b32 s64, s2, 1\ns_lshl_b32 s64, s64, 2\ns_lshr_b32 s%d, s2, 6\ns_add_u32 s%d, s%d, s64" % (sI, sI, sI))
    s("s_bfe_u32 s%d, s2, 0x30003" % sTN)
    s("s_lshl_b32 s%d, s%d, 3\ns_add_u32 s%d, s%d, s%d" % (sJ, sQ, sJ, sJ, sTN))
    s("s_lshl_b32 s%d, s%d, 2\ns_add_u32 s%d, s%d, s%d" % (sB, sI, sB, sB, sW))
    s("s_and_b32 s64, s2, 1\ns_lshl_b32 s64, s64, 1\ns_lshr_b32 s65, s%d, 1\ns_add_u32 s64, s64, s65\ns_lshl_b32 s64, s64, 4" % sW)
    s("s_lshl_b32 s65, s%d, 1\ns_add_u32 s64, s64, s65" % sQ)
    s("s_lshr_b32 s66, s2, 3\ns_lshl_b32 s65, s66, 6\ns_add_u32 s64, s64, s65")
    s("s_lshl_b32 s67, s64, 11\ns_and_b32 s68, s%d, 1\ns_lshl_b32 s65, s68, 8\ns_add_u32 s67, s67, s65" % sW)
    LQ = cfg.get("lq", 1)
    if LQ: s("v_and_b32 v48, 15, v0\nv_bfe_u32 v56, v0, 1, 1\nv_and_b32 v57, 1, v0\nv_lshl_add_u32 v56, v57, 3, v56\nv_lshrrev_b32 v57, 2, v0\nv_lshlrev_b32 v40, 11, v56\nv_lshl_add_u32 v40, v57, 4, v40")
    else: s("v_and_b32 v48, 15, v0\nv_lshrrev_b32 v56, 5, v0\nv_bfe_u32 v57, v0, 4, 1\nv_lshl_add_u32 v56, v57, 3, v56\nv_lshlrev_b32 v40, 11, v56\nv_lshl_add_u32 v40, v48, 4, v40")
    s("s_mov_b32 s10, %d\ns_mov_b32 s11, 0x20000" % (2048 * 2048))
    s("s_waitcnt lgkmcnt(0)")
    if TS: s("v_writelane_b32 v%d, s100, 0" % vTS)
    if cfg.get("rc"): s("v_mov_b32 v15, 0")
    stamp(s, "karg")
    s("s_mov_b32 s8, s4\ns_and_b32 s9, s5, 0xffff")
    for q in range(4): s.vm("buffer_load_dwordx4 %s, v40, s[8:11], s67 offen offset:%d" % (Q(64 + 4 * q), 512 * q), ("x", q))
    s("s_add_u32 s70, s6, 0x%x\ns_addc_u32 s71, s7, 0" % (WS_SM + SM_EP))
    s("s_load_dword s%d, s[70:71], 0" % sTAG)
    srd(s, 16, 14, 15, 1024 * 7168); srd(s, 12, 12, 13, 1024 * 7168)
    srd(s, 28, 26, 27, 1024 * 2048); srd(s, 24, 24, 25, 1024 * 2048)
    s("s_cmp_ge_u32 s%d, 2" % sW)
    s("s_cselect_b32 s20, s16, s12\ns_cselect_b32 s21, s17, s13\ns_mov_b32 s22, %d\ns_mov_b32 s23, 0x20000" % (1024 * 7168))
    ws_srd(s, 36, WS_SM, SM_SIZE)
    s("v_lshrrev_b32 v49, 4, v0")
    WGF = 1; vP1 = 63
    s("v_and_b32 v60, 31, v0\nv_lshlrev_b32 v60, 2, v60\ns_lshl_b32 s81, s%d, 7\ns_add_u32 s81, s81, 0x%x" % (sB, SM_F1B))
    s("v_and_b32 v63, 7, v0\nv_lshlrev_b32 v63, 6, v63\ns_lshl_b32 s75, s%d, 11\ns_lshl_b32 s65, s%d, 9\ns_add_u32 s75, s75, s65\ns_add_u32 s75, s75, 0x%x" % (sB, sQ, SM_F1))
    if FBW: s("s_add_u32 s81, s75, 0x%x" % (SM_F1B - SM_F1))
    FT = cfg.get("ftouch", 2)
    if FT & 4: s.vm("buffer_load_dword a246, v63, s[36:39], s75 offen %s" % SC)
    if FT & 1: s.vm("buffer_load_dword a246, v60, s[36:39], s81 offen %s" % SC)
    s("v_mov_b32 v41, -1\nv_lshlrev_b32 v42, 2, v0\ns_xor_b32 s69, s2, 0xf8\ns_lshl_b32 s69, s69, 10\ns_lshl_b32 s65, s%d, 8\ns_add_u32 s69, s69, s65" % sW)
    s.vm("buffer_store_dword v41, v42, s[36:39], s69 offen %s" % SC, "agfill")
    vWA, vBA0, vBA1, vWA2, vW0, vW3, vB, vJ, vPA, vPB = 2, 3, 4, 5, 6, 9, 10, 12, 13, 14
    s("s_lshl_b32 s70, s66, 1\ns_and_b32 s65, s2, 1\ns_add_u32 s70, s70, s65")
    s("s_mul_i32 s69, s70, 7168\ns_mul_i32 s65, s%d, 1792\ns_add_u32 s69, s69, s65\nv_and_b32 v40, 31, v0\nv_min_u32 v40, 13, v40\nv_lshl_add_u32 v44, v40, 7, s69" % sQ)
    s("v_and_b32 v45, 3, v0\ns_lshl_b32 s69, s%d, 8\ns_lshl_b32 s65, s70, 2\ns_add_u32 s69, s69, s65\nv_add_u32 v45, s69, v45\nv_lshlrev_b32 v45, 11, v45" % sQ)
    if cfg.get("pfd"):
        n_ = cfg["pfd"]
        s("s_and_b32 s65, s2, 1\ns_mul_i32 s69, s65, %d\ns_add_u32 s69, s69, 7168\ns_mul_i32 s65, s65, %d\ns_add_u32 s65, s65, 8192\nv_cmp_gt_u32 vcc, 32, v0" % (-2 * 7168, -2 * 8192))
        s("v_mov_b32 v40, s69\nv_mov_b32 v43, %d\nv_cndmask_b32 v40, v40, v43, vcc\nv_add_u32 v44, v44, v40\nv_mov_b32 v40, s65\nv_mov_b32 v43, %d\nv_cndmask_b32 v40, v40, v43, vcc\nv_add_u32 v45, v45, v40" % (n_ * 64 * 7168, n_ * 128))
    s("s_mov_b32 s69, %d\ns_cmp_ge_u32 s%d, 2\ns_cselect_b64 vcc, -1, 0\nv_cndmask_b32 v%d, v44, v45, vcc\ns_cselect_b32 s%d, 128, s69" % (64 * 7168, sW, vPA, sPAs))
    s("s_cselect_b32 s40, s24, s12\ns_cselect_b32 s41, s25, s13\ns_cselect_b32 s69, s28, s16\ns_cselect_b32 s65, s29, s17\ns_cselect_b32 s42, s26, s14")
    s("s_bitcmp1_b32 s%d, 0\ns_cselect_b32 s40, s69, s40\ns_cselect_b32 s41, s65, s41\ns_mov_b32 s43, 0x20000\ns_mov_b32 s%d, 0" % (sW, sKPA))
    def pfa(s):
        s.vm("buffer_load_dword a246, v%d, s[40:43], s%d offen" % (vPA, sKPA)); s("s_add_u32 s%d, s%d, s%d" % (sKPA, sKPA, sPAs))
    def pfb(s):
        s.vm("buffer_load_dword a246, v%d, s[44:47], s%d offen" % (vPB, sKPB)); s("s_add_u32 s%d, s%d, s%d" % (sKPB, sKPB, sPBs))
    ND = cfg.get("dup0", 0)
    if ND:
        s("s_and_b32 s65, s2, 1\ns_lshl_b32 s65, s65, 1\ns_sub_u32 s65, 1, s65\ns_cmp_ge_u32 s%d, 2\ns_mov_b32 s69, 7168\ns_cselect_b32 s69, 8192, s69\ns_mul_i32 s69, s69, s65" % sW)
        s("v_lshrrev_b32 v43, 5, v0\nv_mul_lo_u32 v43, v43, s69\nv_add_u32 v%d, v%d, v43" % (vPA, vPA))
        for _ in range(ND): pfa(s)
        s("v_sub_u32 v%d, v%d, v43" % (vPA, vPA))
    if cfg.get("pfd"): s("s_mov_b32 exec_lo, 0")
    for _ in range(cfg.get("pf_t0", 3) - ND): pfa(s)
    if cfg.get("pfd"): s("s_mov_b64 exec, -1\ns_mul_i32 s%d, s%d, %d" % (sKPA, sPAs, cfg.get("pf_t0", 3) - cfg["pfd"]))
    AS = cfg.get("asym", 0)
    if AS & 1:
        s("s_and_b32 s65, s2, 1\ns_lshl_b32 s65, s65, 1\ns_sub_u32 s65, 1, s65\ns_cmp_ge_u32 s%d, 2\ns_mov_b32 s69, 7168\ns_cselect_b32 s69, 8192, s69\ns_mul_i32 s69, s69, s65" % sW)
        s("v_lshrrev_b32 v43, 5, v0\nv_mul_lo_u32 v43, v43, s69\nv_add_u32 v%d, v%d, v43" % (vPA, vPA))
        s("s_getreg_b32 s65, hwreg(HW_REG_XCC_ID, 0, 1)\ns_cmp_eq_u32 s65, %d\ns_cselect_b32 s%d, 0x40000000, s%d" % (0 if AS & 4 else 1, sKPA, sKPA))
    s("s_and_b32 s71, s%d, 1\ns_lshl_b32 s71, s71, 1\ns_mul_i32 s72, s%d, 224\ns_and_b32 s73, s%d, 1\ns_add_u32 s73, s73, 12" % (sJ, sJ, sW))
    for k in range(4):
        if k < 3: s("s_add_u32 s69, s%d, %d\ns_lshl_b32 s69, s69, 6" % (sW, 4 * k))
        else: s("s_lshl_b32 s69, s73, 6")
        s("v_add_u32 v40, s69, v0\nv_mul_u32_u24 v44, 4682, v40\nv_lshrrev_b32 v44, 16, v44\nv_mul_u32_u24 v45, 14, v44\nv_sub_u32 v45, v40, v45")
        s("v_add_u32 v45, s71, v45\nv_subrev_u32 v43, 14, v45\nv_min_u32 v45, v45, v43")
        s("v_lshrrev_b32 v43, 1, v44\nv_xor_b32 v43, v43, v44\nv_and_b32 v43, 4, v43\nv_mul_u32_u24 v43, 3, v43\nv_xor_b32 v44, v44, v43")
        s("v_mul_u32_u24 v44, 7168, v44\nv_lshl_add_u32 v44, v45, 4, v44\nv_add_u32 v%d, s72, v44" % (vW0 + k))
    s("v_lshrrev_b32 v50, 3, v0\ns_lshl_b32 s69, s%d, 3\nv_add_u32 v40, s69, v50\nv_bfe_u32 v44, v40, 1, 3\nv_and_b32 v51, 7, v0\nv_xor_b32 v44, v44, v51" % sW)
    s("v_lshlrev_b32 v47, 11, v40\nv_lshl_add_u32 v47, v44, 4, v47")
    s("s_lshl_b32 s69, s%d, 16\nv_add_u32 v%d, s69, v47" % (sJ, vB))
    s("s_lshl_b32 s%d, s%d, 10\ns_lshl_b32 s%d, s73, 10" % (sMW, sW, sM3))
    s("s_cmp_ge_u32 s%d, 2\ns_cselect_b32 s69, %d, 0\ns_add_u32 s%d, s%d, s69\ns_add_u32 s%d, s%d, %d" % (sW, U_OFF, sM3, sM3, sMB, sMW, B_BASE))
    s("s_lshl_b32 s65, s%d, 9\ns_add_u32 s65, s65, 57344\nv_lshl_add_u32 v52, v0, 3, s65\nv_xor_b32 v54, 512, v52" % sW)
    if LQ: s("v_lshlrev_b32 v55, 12, v49\nv_lshrrev_b32 v44, 2, v48\nv_lshl_add_u32 v55, v44, 8, v55\nv_and_b32 v44, 48, v1\nv_add_u32 v55, v55, v44")
    else: s("v_lshrrev_b32 v55, 2, v48\nv_lshlrev_b32 v55, 12, v55\nv_and_b32 v44, 3, v0\nv_lshl_add_u32 v55, v44, 8, v55\nv_lshl_add_u32 v55, v49, 4, v55")
    s("s_lshl_b32 s70, s66, 17\ns_lshl_b32 s67, s%d, 10\ns_add_u32 s70, s70, s67\ns_and_b32 s67, s2, 1\ns_lshl_b32 s67, s67, 7\ns_add_u32 s70, s70, s67" % sQ)
    s("s_lshr_b32 s67, s%d, 1\ns_lshl_b32 s67, s67, 6\ns_add_u32 s70, s70, s67\ns_lshl_b32 s67, s68, 14\ns_add_u32 s70, s70, s67" % sW)
    s("s_add_u32 s71, s70, 32768\ns_add_u32 s72, s70, 65536\ns_add_u32 s73, s70, 98304")
    s("s_lshl_b32 s74, s2, 7\ns_lshr_b32 s67, s%d, 1\ns_lshl_b32 s67, s67, 6\ns_add_u32 s74, s74, s67\ns_add_u32 s74, s74, 0x%x" % (sW, SM_ST))
    ws_srd(s, 48, WS_XN, 0x400000)
    dma_items = [(vW0, 12, sKW, sMW, 0), (vW0 + 1, 12, sKW, sMW, 4096), (vW0 + 2, 12, sKW, sMW, 8192), (vW3, 20, sKW, sM3, 0),
                 (vW0, 16, sKW, sMW, U_OFF), (vW0 + 1, 16, sKW, sMW, U_OFF + 4096), (vW0 + 2, 16, sKW, sMW, U_OFF + 8192),
                 (vB, 24, sKB, sMB, 0), (vB, 28, sKB, sMB, 4096)]
    def dma1(s, st, k, early=None):
        v, sr, so, mb, off = dma_items[k]
        isb = mb == sMB
        base = ((st >> 1) & 1) * (16384 if isb else 65536) + (st & 1) * (B_ST if isb else W_ST)
        if k == 0: s("s_mov_b32 s%d, %d" % (sKW, st * 64 * 7168))
        if k == 7: s("s_mov_b32 s%d, %d" % (sKB, st * 128))
        s("s_add_u32 m0, s%d, %d" % (mb, off + base))
        s.op(Op("buffer_load_dwordx4 v%d, s[%d:%d], s%d offen lds" % (v, sr, sr + 3, so), "vm", K(("D", st, k))), early)
    CH1 = cfg.get("ch1", 1)
    xalloc = {}; xprev = {}; fifo = [(("a", r), None) for r in (96, 112, 128, 144, 192)]
    for u in range(32):
        if u == 26: xalloc[u] = ("v", 48); xprev[u] = None; continue
        xalloc[u], xprev[u] = fifo.pop(0); fifo.append((xalloc[u], u))
    aX, aW, NWB = 96, 208, 8
    def xload(s, u, m, early=None):
        if m == 0: s("s_mov_b32 s%d, %d" % (sKX, u * 4096))
        s.op(Op("buffer_load_dwordx4 %s, v%d, s[8:11], s%d offen offset:%d %s" % (R(xalloc[u][0], xalloc[u][1] + 4 * m, 4), 1, sKX, 1024 * m, HL), "vm", K(("X", u, m))), early)
    def pro_stage(st):
        for k in range(9): dma1(s, st, k)
    ND0P = cfg.get("d_t0", 0)
    for k in range(ND0P): dma1(s, 0, k)
    EP_LDS = 131072; EPW = 8192
    PK = dict(C=252, CA=253, TOK=254, COL=255, D=240, TA=242, TRW=243, TRR=244, AG=245)
    s("v_lshrrev_b32 v40, 1, v48\nv_xor_b32 v40, v40, v49\nv_lshlrev_b32 v40, 4, v40\nv_lshl_add_u32 v40, v48, 7, v40")
    s("v_add_u32 v%d, %d, v40\nv_xor_b32 v%d, 64, v%d" % (vBA0, B_BASE, vBA1, vBA0))
    s("v_lshrrev_b32 v40, 1, v49\nv_lshlrev_b32 v40, 4, v40\nv_and_b32 v41, 1, v49\nv_lshlrev_b32 v41, 2, v41\nv_lshrrev_b32 v50, 2, v48\nv_add3_u32 v11, v40, v41, v50")
    s("v_mul_u32_u24 v40, 224, v11\nv_and_b32 v51, 3, v0\nv_lshl_add_u32 v%d, v51, 3, v40\nv_add_u32 v%d, 0x10000, v%d" % (vWA, vWA2, vWA))
    s("s_lshl_b32 s65, s%d, 17\ns_add_u32 s8, s6, s65\ns_addc_u32 s9, s7, 0\ns_and_b32 s9, s9, 0xffff\ns_mov_b32 s10, 0x20000" % sB)
    s("s_lshl_b32 s83, s2, 4\ns_lshl_b32 s65, s%d, 2\ns_add_u32 s83, s83, s65" % sW)
    if WGF: s("s_and_b32 s82, s2, 7\ns_lshl_b32 s82, s82, 6\ns_lshl_b32 s65, s66, 11\ns_add_u32 s82, s82, s65\ns_lshl_b32 s65, s%d, 9\ns_add_u32 s82, s82, s65\ns_add_u32 s82, s82, 0x%x" % (sW, SM_F1))
    else: s("s_add_u32 s82, s83, 0x%x" % SM_F1)
    s(("s_add_u32 s83, s82, 0x%x" % (SM_F1B - SM_F1)) if FBW else ("s_add_u32 s83, s83, 0x%x" % SM_F1B))
    def tramp():
        s("s_mov_b64 exec, 0")
        for w in range(1, 4): s("s_cmp_eq_u32 s%d, %d\ns_cbranch_scc1 L_tr%d" % (sW, w, w))
        s("s_branch L_tr0")
        s.atom(["L_trret:"])
        s("s_mov_b64 exec, -1")
    TRP = cfg.get("tr_at", 2) if cfg.get("tramp", 1) else -1
    if TRP == 0: tramp()
    stamp(s, "prex")
    F = 80; D = 112; T0 = 144; ST = 28
    ln = Seq()
    def unpack(q):
        for i in range(4 * q, 4 * q + 4): ln("v_lshlrev_b32 v%d, 16, v%d\nv_and_b32 v%d, 0xffff0000, v%d" % (F + 2 * i, 64 + i, F + 2 * i + 1, 64 + i))
    def pack(q, dst=64):
        for i in range(4 * q, 4 * q + 4): ln("v_cvt_pk_bf16_f32 v%d, v%d, v%d" % (dst + i, F + 2 * i, F + 2 * i + 1))
    def hsum(dst):
        ln("v_pk_add_f32 %s, %s, %s\nv_add_f32 v%d, v%d, v%d" % (P(T0), P(T0), P(T0 + 2), T0, T0, T0 + 1))
        for sh in ((4, 8) if LQ else (1, 2, 4, 8)): ln("v_add_f32_dpp v%d, v%d, v%d row_ror:%d row_mask:0xf bank_mask:0xf" % (T0, T0, T0, sh))
        if LQ:
            for w_ in (16, 32): ln("v_mov_b32 v%d, v%d\nv_permlane%d_swap_b32 v%d, v%d\nv_add_f32 v%d, v%d, v%d" % (T0 + 1, T0, w_, T0, T0 + 1, T0, T0, T0 + 1))
        ln("v_mul_f32 v%d, %s, v%d" % (dst, fx(1.0 / 512), T0))
    for q in range(4):
        ln.wait([("x", q)])
        if q == 3:
            stamp(ln, "xin")
            for _ in range(cfg.get("pf_t1", 0)): pfa(ln)
            i_d0 = len(ln.u)
        unpack(q)
        if q == 0: ln("v_pk_add_f32 %s, %s, %s\nv_pk_add_f32 %s, %s, %s" % (P(T0), P(F), P(F + 2), P(T0 + 2), P(F + 4), P(F + 6)))
        else:
            for i in range(4): ln("v_pk_add_f32 %s, %s, %s" % (P(T0 + 2 * (i % 2)), P(T0 + 2 * (i % 2)), P(F + 8 * q + 2 * i)))
    hsum(ST)
    for i in range(16): ln("v_pk_add_f32 %s, %s, %s op_sel_hi:[1,0] neg_lo:[0,1] neg_hi:[0,1]" % (P(D + 2 * i), P(F + 2 * i), P(ST)))
    for i in range(16):
        if i < 2: ln("v_pk_mul_f32 %s, %s, %s" % (P(T0 + 2 * i), P(D + 2 * i), P(D + 2 * i)))
        else: ln("v_pk_fma_f32 %s, %s, %s, %s" % (P(T0 + 2 * (i % 2)), P(D + 2 * i), P(D + 2 * i), P(T0 + 2 * (i % 2))))
    hsum(ST + 1)
    ln.lg("ds_write_b64 v52, %s" % P(ST))
    ln.wait(None, drain=["lg"])
    ln("s_barrier")
    ln.lg("ds_read_b64 %s, v54" % P(T0), "oth")
    ln("s_mul_i32 s%d, s%d, 0x9E3779B1\ns_add_u32 s%d, s%d, 0x7F4A7C15\nv_mov_b32 v56, s%d" % (sTAG, sTAG, sTAG, sTAG, sTAG))
    ln.wait(["oth"])
    ln("v_sub_f32 v%d, v%d, v%d\nv_pk_add_f32 %s, %s, %s\nv_mul_f32 v%d, 0.5, v%d\nv_pk_mul_f32 %s, %s, 0.5 op_sel_hi:[1,0]\nv_fmac_f32 v%d, v%d, v%d" % (T0 + 2, ST, T0, P(ST), P(ST), P(T0), T0 + 2, T0 + 2, P(ST), P(ST), ST + 1, T0 + 2, T0 + 2))
    ln("v_cvt_pk_bf16_f32 v%d, v%d, v%d\nv_lshlrev_b32 v%d, 16, v%d\nv_and_b32 v%d, 0xffff0000, v%d" % (T0, ST, ST + 1, ST, T0, ST + 1, T0))
    ln(("v_add_f32 V, %s, V\nv_cvt_pk_bf16_f32 V, V, V\nv_and_b32 V, 0xffff0000, V\nv_sqrt_f32 V, V" % fx(1e-5)).replace("V", "v%d" % (ST + 1)))
    def sub(q):
        for i in range(4 * q, 4 * q + 4): ln("v_pk_add_f32 %s, %s, %s op_sel_hi:[1,0] neg_lo:[0,1] neg_hi:[0,1]" % (P(F + 2 * i), P(F + 2 * i), P(ST)))
    def fin(q):
        pack(q); unpack(q)
        for i in range(4 * q, 4 * q + 4): ln("v_pk_mul_f32 %s, %s, %s op_sel:[0,1] op_sel_hi:[1,1]" % (P(F + 2 * i), P(F + 2 * i), P(ST)))
        pack(q, 12 if q else 64)
    ln("v_cvt_pk_bf16_f32 V, V, V\nv_and_b32 V, 0xffff0000, V\nv_rcp_f32 V, V".replace("V", "v%d" % (ST + 1)))
    sub(0); fin(0)
    lu = ln.units()
    nD_0 = cfg.get("d_t1", 1 if ND0P else 0)
    if nD_0:
        dq = Seq(); step = cfg.get("d0_step", 10); pos = i_d0 + cfg.get("d0_off", 6)
        for k in range(ND0P, 9):
            dma1(dq, 0, k); un = dq.units()
            lu[pos:pos] = un[:-1]; pos += len(un); lu[pos:pos] = un[-1:]; pos += step
    s.u += lu
    xst = lambda q: "buffer_store_dwordx4 %s, v55, s[48:51], s%d offen %s" % (Q(12 + 4 * q if q else 64), 70 + q, SC)
    stst = lambda: (["s_mov_b64 exec, 15"] if LQ else ["s_mov_b32 exec_lo, 0x10001", "s_mov_b32 exec_hi, 0x10001"]) + [Op("buffer_store_dwordx4 %s, v%d, s[36:39], s74 offen %s" % (Q(ST), LQ, SC), "vm"), "s_mov_b64 exec, -1"]
    s.vm(xst(0), ("xn", 0))
    stamp(s, "xnst")
    for q in range(1, 4):
        sub(q); fin(q); s.u += ln.units()
    XBP = cfg.get("xbp", 0)
    TWO = 1
    nD_b = cfg.get("d_t3", 1)
    nD_c = cfg.get("d_t4", 2)
    nD_d = cfg.get("d_t5", 2)
    if TRP == 1: tramp()
    if WGF: s.wait([("xn", 0), "agfill"]); s("s_barrier")
    flag(s, "buffer_store_dwordx4 v[56:59], v1, s[36:39], s82 offen %s" % SC, [("xn", 0), "agfill"])
    stamp(s, "flag1")
    if TRP == 4: tramp()
    if cfg.get("bar_f"): s("s_barrier")
    stamp(s, "barf")
    def xb_now():
        s.atom(stst())
        for q in range(1, 4): s.vm(xst(q), ("xn", q))
    if XBP == 1: xb_now()
    for st in range(nD_0, nD_b): pro_stage(st)
    stamp(s, "d0")
    if TRP == 2: tramp()
    stamp(s, "trd")
    f1load = "buffer_load_dword v61, v%d, s[36:39], s75 offen %s" % (vP1, SC)
    s.vm(f1load, "f1")
    if XBP == 2: xb_now()
    for st in range(max(nD_0, nD_b), nD_c): pro_stage(st)
    nD_b = max(nD_0, nD_b, nD_c)
    if TRP == 3: tramp()
    stamp(s, "prepoll")
    if TRP >= 0:
        s("s_branch L_main"); s.atom([".p2align 12"]); s.atom(["L_main:"])
    poll(s, "P1", f1load, 61, "f1")
    stamp(s, "poll1")
    NXP = cfg.get("nxpre", 1 if cfg.get("ch1_first", 1) else 2)
    for u in range(NXP):
        for m in range(4): xload(s, u, m)
    if TRP == 5: tramp()
    if XBP == 3: xb_now()
    for _ in range(cfg.get("pf_t5", 0)): pfa(s)
    for st in range(nD_b, nD_d): pro_stage(st)
    nD_b = max(nD_b, nD_d)
    npfa = cfg.get("pf_t0", 3) + cfg.get("pf_t1", 0) + cfg.get("pf_t5", 0)
    NPB = cfg.get("npb", 4)
    tiles = []
    for q in range(7): tiles += [("G", q), ("U", q)]
    tiles += [("R", 0), ("I", 0), ("R", 1), ("I", 1)]
    def acc(t, m):
        k, q = t
        if k == "R": return ("v", 64 + 16 * q + 4 * m)
        if k == "I": return ("v", 96 + 16 * q + 4 * m)
        o = 32 * q + (16 if k == "U" else 0) + 4 * m
        return ("v", 128 + o) if q < 4 else ("a", o - 128)
    L0 = cfg.get("l1_lead", 4)
    KT = cfg.get("kt", 1)
    def stage_groups(st, tl):
        if CH1 and st >= cfg.get("ch1_first", 1): return [(2 * st + kk, ti) for ti in tl for kk in range(2)]
        return [(2 * st + kk, ti) for kk in range(2) for ti in tl]
    groups = []
    for st in range(14 if KT else 16): groups += stage_groups(st, range(18))
    if KT:
        for tl in (range(4), range(4, 18)):
            for st in (14, 15): groups += stage_groups(st, tl)
    NG = len(groups)
    mo, head, tail = order_mfma(groups)
    xfirst = {}; xlast = {}
    for G, (u, ti) in enumerate(groups): xfirst.setdefault(u, head(G)); xlast[u] = tail(G)
    parts = lambda G: [0, 1] if groups[G][1] < 14 else [None]
    def read1(G, part):
        u, ti = groups[G]; st, kk = divmod(u, 2); t = tiles[ti]; f = G % NWB
        if t[0] in "GU":
            off = (st & 1) * W_ST + (U_OFF if t[0] == "U" else 0) + kk * 7168 + part * 1792 + t[1] * 32
            return Op("ds_read_b64_tr_b16 %s, v%d offset:%d" % (R("a", aW + 4 * f + 2 * part, 2), (vWA, vWA2)[(st >> 1) & 1], off), "lg", K(("F", G, part)))
        off = (st & 3) * B_ST + (4096 if t[0] == "I" else 0) + t[1] * 2048
        return Op("ds_read_b128 %s, v%d offset:%d" % (R("a", aW + 4 * f, 4), vBA1 if kk else vBA0, off), "lg", K(("F", G, part)))
    rgap = {}
    for G in range(NG):
        f = G % 36
        g = G if (f < 33 or (KT and G >= 28 * 18)) else G - (1 if f < 35 else 2)
        rgap[G] = 4 * (g - L0) - 1
        assert rgap[G] >= 4 * tail(G - NWB) + 3
    gneed = lambda G: [("F", H, p) for H in range(G, tail(G) + 1) for p in parts(H)] + [("X", u, m) for u in range(32) if xfirst[u] == G for m in range(4)]
    s.wait([("D", 0, k) for k in range(9)])
    s("s_barrier")
    for G in range(NG):
        if rgap[G] < 0:
            for p in parts(G): s.op(read1(G, p))
    s.wait(gneed(0))
    stamp(s, "loop1")
    prog.add(s.done())
    mf = []
    for G, m in mo:
        u, ti = groups[G]; t = tiles[ti]
        xr = (xalloc[u][0], xalloc[u][1] + 4 * m); wr = ("a", aW + 4 * (G % NWB))
        mf.append(Op(mfma16(acc(t, m), wr, xr, u == 0) if t[0] in "GU" else mfma16(acc(t, m), xr, wr, u == 0)))
    sc = Sch(mf)
    for G in range(1, NG):
        w = Op("", needs=K(gneed(G)))
        w.keep = sum(len(parts(H)) for H in range(max(0, G - 2), min(NG, G + 10)) if rgap[H] == 4 * G - 1) == 2
        if w.keep or head(G) == G: sc.put(4 * G - 1, [w], 0)
    for G in range(NG):
        if rgap[G] >= 0: sc.put(rgap[G], [read1(G, p) for p in parts(G)], 1)
    bar = {}
    for st in range(15):
        bar[st] = rgap[xfirst[2 * st + 2]] - 1
        sc.put(bar[st], [Op("s_barrier", needs=K([("D", st + 1, k) for k in range(9)] + ([("xn", 3)] if (FBW and st == cfg.get("fb_bar", 1)) else [])), drain=["lg"] if st < 14 else None)], 0)
    items = []
    PFL = cfg.get("pfl", 9)
    pft = {}
    if cfg.get("pf1", 1):
        ev = cfg.get("pf_first", 70); st = npfa
        for k in range(npfa - cfg.get("pfd", 0), npfa): items.append((0, 2, ev - cfg.get("pfd_pre", 0), "a", k, 0))
        while st < 16:
            n = 0
            while st < 16 and (n < cfg.get("pf_max", 2) or (st == 15 and cfg.get("pf_l3", 1))) and (n == 0 or 144 * (st - 3 - PFL) < ev):
                e = max(int(144 * (st - 3 - PFL)), ev); pft[st] = e; items.append((0, 2, e, "a", st, 0)); st += 1; n += 1
            ev = e + cfg.get("pf_min", 288)
    for st in range(nD_b, 16):
        e = max(bar[st - 4] + 1 if st >= 4 else 0, pft.get(st, -1000) + cfg.get("pf_lat", 100))
        for k in range(9): items.append((bar[st - 1], 0, e, "d", st, k))
    for u in range(NXP, 32):
        e = 4 * xlast[xprev[u]] + 3 if xprev[u] is not None else 0
        for m in range(4): items.append((4 * xfirst[u] - 1, 1, max(e, 4 * xfirst[u] - (cfg.get("x_la", 230) if u != 8 else cfg.get("x_la8", 105))), "x", u, m))
    for k in range(1, 4 if not XBP else 0): items.append((0, 3, cfg.get("xb_first", 130) + cfg.get("xb_sp", 36) * (k - 1), "s", k, 0))
    items.append((0, 3, bar[cfg.get("fb_bar", 1)] + 1 if FBW else cfg.get("xb_first", 130) + cfg.get("xb_sp", 36) * 2 + cfg.get("xb_lat", 70), "f", 0, 0))
    items.append((0, 3, cfg.get("p1c_at", 430), "p", 0, 0))
    gC_ = sorted(set(pft.values()))[cfg.get("c_ev", 1)] if pft else 300
    items.append((0, 3, gC_, "c", 0, 0))
    gE_ = gC_ + cfg.get("e_off", 90)
    evs = sorted(set(pft.values())); i_e = {}
    EM = cfg.get("em", 0)
    for n in range(4):
        if EM: items.append((0, 4, evs[cfg.get("c_ev", 1) + cfg.get("e_ev", 0) + n], "e", n, 0))
        else: items.append((gE_ + 100, 3, gE_ + cfg.get("e_sp", 20) * n, "e", n, 0))
    f1cload = "buffer_load_dword v61, v%d, s[36:39], s81 offen %s" % (63 if FBW else 60, SC)
    if cfg.get("pf2", 1):
        for c in range(NPB): items.append((0, 2, cfg.get("pfb_first", 646) + int(c * cfg.get("pfb_sp", 288)), "b", c, 0))
    now = 0; pend = sorted(items); done = []; quiet = -1
    FM = cfg.get("fm", 1); WL = cfg.get("fm_wl", 14); fifo = []; comp = cfg.get("fm_c0", 30); fsl = []; lastk = ""; PFD = cfg.get("pfd", 0); PFX = cfg.get("pfx", 0)
    while pend:
        nxt = {}
        for x in pend:
            if x[3] not in nxt or x[4:] < nxt[x[3]][4:]: nxt[x[3]] = x
        av = sorted(x for x in nxt.values() if x[2] <= now)
        if FM:
            occ = sum(n for c, n in fifo if c > now)
            lines_of = lambda x: {"d": WL if x[5] < 7 else 8, "x": 8, "a": 9 * (1 + bool(PFD)) + 8 * PFX, "b": 88 // NPB, "c": 10, "e": 16}.get(x[3], 1)
            if av and av[0][3] in "dx" and len(av) > 1 and av[1][3] in "dx" and av[0][3] == lastk and av[0][0] - now > cfg.get("alt_slack", 110): av = av[1:]
            av = [x for x in av[:1] if occ + lines_of(x) <= cfg.get("fm_c", 66)]
        if not av: now += 1; continue
        x = av[0]; pend.remove(x); lastk = x[3]
        if FM:
            lat = cfg.get("fm_slow", 64) if x[3] in ("abce" if EM else "abc") else cfg.get("fm_fast", 36)
            comp = max(comp + 4.3, now + lat); fifo.append((comp, lines_of(x)))
            if x[3] in "dx": fsl.append((x[0] - comp, x[3], x[4], x[5]))
        fifo_now = now
        if x[3] == "d": dma1(s, x[4], x[5], int(now))
        elif x[3] == "x":
            if TWO and x[4:] == (8, 0): poll(s, "P1c", f1cload, 61, "f1c", early=int(now))
            xload(s, x[4], x[5], int(now))
        elif x[3] == "p": s.vm(f1cload, "f1c", early=int(now)); i_f1c = len(s.u) - 1
        elif x[3] == "a":
            s.at(int(now)); pfa(s); quiet = now + cfg.get("q_len", 64)
            if [y for y in pend if y[3] in "abc" and y[2] <= now]: now -= cfg.get("q_sp", 10) - 4
        elif x[3] == "c":
            s.at(int(now)); i_c0 = len(s.u) - 1
            for k, lo in enumerate((96, 98, 92)):
                s("s_mov_b32 s32, s%d\ns_and_b32 s33, s%d, 0xffff" % (lo, lo + 1))
                for T in range(2): s.vm("buffer_load_ushort v%d, v40, s[32:35], 0 offen offset:%d" % (16 + 2 * k + T, 32 * T), ("c", k, T))
            s("s_mov_b32 s32, s94\ns_and_b32 s33, s95, 0xffff")
            for u in range(2): s.vm("buffer_load_dwordx2 %s, v41, s[32:35], 0 offen offset:%d" % (R("a", 248 + 2 * u, 2), 32 * u), ("dk", u))
            if FT & 2:
                s.vm("buffer_load_dword a246, v42, s[36:39], 0 offen %s" % SC); now += 4
            i_c1 = len(s.u) - 1; now += 30
        elif x[3] == "s":
            if x[4] == 1: s.atom(stst(), int(now)); now += 4
            s.op(Op(xst(x[4]), "vm", K(("xn", x[4]))), int(now)); now += (4 - cfg.get("q_sp", 10)) if now < quiet else 10
        elif x[3] == "f":
            flag(s, "buffer_store_dword%s, v1, s[36:39], s83 offen %s" % ("x4 v[56:59]" if FBW else " v56", SC), [("xn", 3)], early=int(now)); i_fb = len(s.u) - 1
        elif x[3] == "e":
            s("s_mov_b32 s70, %d\ns_add_u32 m0, s71, %d" % (4096 * x[4], 1024 * x[4]))
            s.op(Op("buffer_load_dwordx4 v12, s[48:51], s70 offen lds", "vm", K(("E", x[4]))), int(now)); i_e[x[4]] = len(s.u) - 1; now += 4
        else: s.at(int(now)); pfb(s); quiet = now + cfg.get("q_len", 64)
        if x[3] in "dx": done.append((x, len(s.u) - 1))
        if x[3:] == ("x", 8, 0): i_p1c = len(s.u) - 1
        if x[3:] == ("x", 26, 0): i_x26 = len(s.u) - 1
        if FM: now = fifo_now + {"c": 36, "s": cfg.get("fm_st", 16) + 4 * (x[4] == 1)}.get(x[3], cfg.get("fm_sp", 4.5))
        else: now += cfg.get("q_sp", 10) if now < quiet else cfg.get("l1_sp", 5)
    res = sc.stream(s.units(), 0, 2)
    sl = sorted((x[0] - res[i], x[3], x[4], x[5]) for x, i in done)
    if cfg.get("verbose") and FM: print("model slacks", sorted(fsl)[:5])
    if cfg.get("verbose"): print("loop1 vm end", res[-1], "of", 4 * NG, "min slacks", sl[:3], "steady", min(z for z in sl if z[2] > 8))
    for nm in names:
        if TS and nm[0] == "f" and nm[1:].isdigit():
            st_ = int(nm[1:])
            sc.put(bar[st_] - 1, [Op("s_memrealtime s[100:101]")], 5)
            sc.put(bar[st_], [Op("v_writelane_b32 v%d, s100, %d" % (vTS, names.index(nm)))], 5)
    if cfg.get("verbose"): print("flag b", res[i_fb], "poll load", res[i_f1c], "check", res[i_p1c])
    s.at(res[i_fb] + 1)
    cL, cC, cL8, cL16, cL64, cL512 = 16, 20, 24, 28, 32, 36
    s("s_mov_b32 s34, 2048\ns_mov_b32 s35, 0x20000")
    s("s_lshl_b32 s69, s%d, 5\nv_add_u32 v40, s69, v48\nv_lshlrev_b32 v40, 1, v40" % sJ)
    s("s_lshl_b32 s68, s%d, 7\ns_lshl_b32 s66, s%d, 5\ns_add_u32 s68, s68, s66\nv_lshl_add_u32 v41, v49, 2, s68\nv_accvgpr_write_b32 a%d, v41\nv_lshlrev_b32 v41, 1, v41" % (sTN, sQ, PK["COL"]))
    srd(s, 48, 4, 5, 2048 * 2048)
    s("s_lshl_b32 s66, s%d, 2\ns_add_u32 s66, s66, s%d\ns_lshl_b32 s66, s66, %d\ns_add_u32 s66, s66, 0x%x\nv_and_b32 v42, %d, v0\nv_lshl_add_u32 v42, v42, 7, s66" % (sB, sQ, (7, 9, 11)[F3M], SM_F3, (0, 3, cfg.get("f3t", 0))[F3M]))
    s("s_lshl_b32 s66, s%d, 3\ns_add_u32 s66, s66, s%d\ns_lshl_b32 s66, s66, 2\ns_add_u32 s66, s66, s%d\ns_lshl_b32 s66, s66, %d\ns_lshl_b32 s67, s%d, %d\ns_add_u32 s66, s66, s67\ns_add_u32 s66, s66, 0x%x\nv_writelane_b32 v42, s66, 0\ns_add_u32 s66, s66, %d\nv_writelane_b32 v42, s66, 1" % (sI, sTN, sW, (7, 10, 10)[F4M], sQ, (4, 8, 8)[F4M], SM_F4, (0, 0, 128)[F4M]))
    s("s_lshl_b32 s68, s68, 1\ns_lshl_b32 s66, s%d, 17\ns_add_u32 s68, s68, s66\nv_bfe_u32 v12, v0, 2, 1\nv_lshlrev_b32 v12, 3, v12\nv_lshl_add_u32 v12, v49, 4, v12\nv_bfe_u32 v43, v0, 3, 1\nv_add_u32 v12, v12, v43\nv_lshl_add_u32 v12, v12, 11, s68\nv_lshl_add_u32 v12, v51, 4, v12" % sB)
    s("s_lshr_b32 s66, s%d, 1\ns_lshl_b32 s66, s66, 16\ns_and_b32 s71, s%d, 1\ns_lshl_b32 s71, s71, 12\ns_add_u32 s71, s71, s66\ns_add_u32 s71, s71, 57344" % (sW, sW))
    r0 = sc.stream(s.units(), 0, 3)
    assert r0[-1] < res[i_c0]
    s.at(res[i_c1] + 1)
    s("v_subrev_u32 v40, %d, v%d\nv_accvgpr_write_b32 a%d, v40" % (B_BASE, vBA0, PK["CA"]))
    s("s_mul_i32 s69, s%d, %d\ns_add_u32 s69, s69, %d" % (sW, EPW, EP_LDS + 2048))
    s("v_and_b32 v41, 1, v49\nv_xor_b32 v41, v41, v51\nv_lshlrev_b32 v40, 5, v11\nv_lshl_add_u32 v40, v41, 3, v40\nv_add_u32 v40, s69, v40\nv_accvgpr_write_b32 a%d, v40" % PK["TRR"])
    s("v_lshrrev_b32 v40, 1, v48\nv_xor_b32 v40, v40, v48\nv_and_b32 v40, 4, v40\nv_mul_u32_u24 v40, 3, v40\nv_xor_b32 v40, v40, v48\nv_lshrrev_b32 v41, 2, v40\nv_xor_b32 v41, v41, v49\nv_lshlrev_b32 v40, 5, v40\nv_lshl_add_u32 v40, v41, 3, v40\nv_add_u32 v40, s69, v40\nv_accvgpr_write_b32 a%d, v40" % PK["TRW"])
    s("v_lshrrev_b32 v40, 2, v0\nv_and_b32 v41, 7, v40\nv_lshlrev_b32 v41, 5, v41\nv_lshl_add_u32 v41, v40, 8, v41\nv_lshl_add_u32 v41, v51, 3, v41\nv_accvgpr_write_b32 a%d, v41" % PK["TA"])
    s("s_lshl_b32 s68, s%d, 2\nv_add_u32 v40, s68, v49\nv_and_b32 v41, 7, v40\nv_bfe_u32 v51, v0, 1, 3\nv_xor_b32 v41, v41, v51\ns_lshl_b32 s66, s%d, 1\nv_xor_b32 v41, s66, v41\nv_lshlrev_b32 v41, 5, v41" % (sW, sQ))
    s("v_and_b32 v51, 1, v0\nv_lshl_add_u32 v41, v51, 4, v41\ns_mul_i32 s67, s%d, 896\nv_add_u32 v40, s67, v40\nv_lshl_add_u32 v40, v40, 11, v41\ns_lshl_b32 s67, s%d, 8\nv_add_u32 v40, s67, v40\nv_accvgpr_write_b32 a%d, v40" % (sQ, sTN, PK["D"]))
    s("s_lshl_b32 s68, s%d, 18\ns_lshl_b32 s66, s%d, 9\ns_add_u32 s68, s68, s66\nv_add_u32 v40, s68, v47\nv_accvgpr_write_b32 a%d, v40" % (sTN, sQ, PK["C"]))
    s("v_lshlrev_b32 v40, 4, v50\nv_lshl_add_u32 v40, v51, 3, v40\nv_bfe_u32 v41, v48, 1, 1\ns_lshl_b32 s68, s%d, 6\nv_add3_u32 v40, v40, v41, s68\nv_accvgpr_write_b32 a%d, v40" % (sB, PK["TOK"]))
    s("s_sub_u32 s68, 32, s%d\ns_lshl_b32 s68, s68, 13\ns_lshl_b32 s66, s%d, 8\ns_add_u32 s68, s68, s66\nv_lshl_add_u32 v40, v48, 4, s68\nv_lshl_add_u32 v40, v49, 16, v40\nv_accvgpr_write_b32 a%d, v40" % (sB, sJ, PK["AG"]))
    f_ = 2 if AS & 2 else 1
    ld, lc = 112 // NPB * f_, 64 // NPB * f_
    s("s_lshr_b32 s67, s2, %d\ns_lshl_b32 s68, s67, 1\ns_and_b32 s66, s%d, 1\ns_add_u32 s68, s68, s66\ns_mul_i32 s68, s68, %d\ns_mul_i32 s66, s67, %d" % (f_ - 1, sW, ld * 128, lc * 128))
    ge2 = "s_cmp_ge_u32 s%d, 2" % sW
    s.atom([ge2, "s_cselect_b32 s68, s66, s68", "s_cselect_b32 s66, %d, %d" % (lc - 1, ld - 1)])
    s("v_min_u32 v40, s66, v0\nv_lshl_add_u32 v%d, v40, 7, s68" % vPB)
    s.atom(["s_bitcmp1_b32 s%d, 0" % sW, "s_cselect_b32 s68, s90, s88", "s_cselect_b32 s66, s91, s89"])
    s.atom([ge2, "s_cselect_b32 s44, s68, s84", "s_cselect_b32 s45, s66, s85"])
    s("s_mov_b32 s67, %d\ns_mov_b32 s68, %d" % (3584 * 2048, 512 * ld * 128 // f_))
    s.atom([ge2, "s_cselect_b32 s46, %d, s67" % (1024 * 2048), "s_cselect_b32 s%d, %d, s68" % (sPBs, 256 * lc * 128 // f_)])
    s("s_and_b32 s45, s45, 0xffff\ns_mov_b32 s47, 0x20000\ns_mov_b32 s%d, 0" % sKPB)
    if AS & 2: s.atom(["s_getreg_b32 s67, hwreg(HW_REG_XCC_ID, 0, 1)", "s_cmp_eq_u32 s67, %d" % (0 if AS & 4 else 1), "s_cselect_b32 s%d, 0x40000000, 0" % sKPB])
    i_pbs = len(s.u) - 1
    s.at(res[i_c1] + 90)
    s.wait([("c", 2, 1)])
    def two(f):
        for T in range(2): s(f(T))
    for k in range(6): s("v_lshlrev_b32 v%d, 16, v%d" % (40 + k, 16 + k))
    two(lambda T: "v_mul_f32 v%d, %s, v%d" % (44 + T, fx(LOG2E), 44 + T)); two(lambda T: "v_exp_f32 v%d, v%d" % (44 + T, 44 + T))
    s("v_cvt_pk_bf16_f32 v45, v44, v45\nv_lshlrev_b32 v44, 16, v45\nv_and_b32 v45, 0xffff0000, v45")
    two(lambda T: "v_mul_f32 v%d, v%d, v%d\nv_mul_f32 v%d, v%d, v%d" % (24 + T, 44 + T, 40 + T, 26 + T, 44 + T, 42 + T))
    two(lambda T: "v_mul_f32 v%d, %s, v%d" % (24 + T, fx(LOG2E), 24 + T)); two(lambda T: "v_exp_f32 v%d, v%d" % (24 + T, 24 + T))
    two(lambda T: "v_mul_f32 v%d, 0.15915494, v%d\nv_rndne_f32 v%d, v%d\nv_sub_f32 v%d, v%d, v%d" % (26 + T, 26 + T, 52 + T, 26 + T, 26 + T, 26 + T, 52 + T))
    two(lambda T: "v_cos_f32 v%d, v%d\nv_sin_f32 v%d, v%d" % (52 + T, 26 + T, 54 + T, 26 + T))
    two(lambda T: "v_mul_f32 v%d, v%d, v%d\nv_mul_f32 v%d, v%d, v%d\nv_add_f32 v%d, -1.0, v%d" % (cL + T, 24 + T, 52 + T, 54 + T, 24 + T, 54 + T, 52 + T, cL + T))
    two(lambda T: "v_mul_f32 v%d, v%d, v%d\nv_fmac_f32 v%d, v%d, v%d\nv_rcp_f32 v%d, v%d" % (24 + T, 40 + T, 40 + T, 24 + T, 42 + T, 42 + T, 24 + T, 24 + T))
    two(lambda T: "v_mul_f32 v%d, v%d, v%d\nv_fmac_f32 v%d, v%d, v%d" % (26 + T, 52 + T, 40 + T, 26 + T, 54 + T, 42 + T))
    two(lambda T: "v_mul_f32 v%d, v%d, v%d\nv_fma_f32 v%d, -v%d, v%d, v%d" % (56 + T, 54 + T, 40 + T, 56 + T, 52 + T, 42 + T, 56 + T))
    two(lambda T: "v_add_f32 v%d, v%d, v%d\nv_mul_f32 v%d, v%d, v%d\nv_mul_f32 v%d, v%d, v%d\nv_sub_f32 v%d, 0, v%d" % (24 + T, 24 + T, 24 + T, cC + T, 26 + T, 24 + T, cC + 2 + T, 56 + T, 24 + T, cL + 2 + T, 54 + T))
    def sq(d, x):
        two(lambda T: "v_mul_f32 v%d, v%d, v%d\nv_mul_f32 v%d, v%d, v%d\nv_fma_f32 v%d, v%d, v%d, -v%d\nv_add_f32 v%d, v%d, v%d" % (52 + T, x + 2 + T, x + 2 + T, 54 + T, x + T, x + 2 + T, d + T, x + T, x + T, 52 + T, d + 2 + T, 54 + T, 54 + T))
    sq(cL8, cL); sq(cL8, cL8); sq(cL8, cL8); sq(cL16, cL8); sq(cL64, cL16); sq(cL64, cL64); sq(cL512, cL64); sq(cL512, cL512); sq(cL512, cL512)
    aBS = 160
    s.at(res[i_p1c] + 2)
    s("v_lshlrev_b32 v11, 6, v48\nv_lshl_add_u32 v11, v49, 3, v11\nv_add_u32 v11, s71, v11\nv_and_b32 v50, 0xf0, v1\ns_lshl_b32 s66, s%d, 10\ns_add_u32 s66, s66, 0x%x" % (sB, SM_ST))
    s.wait([("dk", 1)])
    for k in range(4): s("v_accvgpr_read_b32 v%d, a%d" % (40 + k, 248 + k))
    for m in range(4):
        s.at(res[i_e[m]] + 2)
        s.vm("buffer_load_dwordx2 v[44:45], v50, s[36:39], s66 offen offset:%d %s" % (256 * m, HL), ("St", m))
        s.delay(cfg.get("e_lat", 100))
        s.wait([("St", m), ("E", m)])
        for u in range(2): s.lg("ds_read_b64 %s, v11 offset:%d" % (P(52 + 2 * u), 1024 * m + 32 * u), ("er", m, u))
        s.delay(10)
        s.wait([("er", m, 1)])
        for u in range(2):
            def unp(d, x):
                for h in range(2): s("v_lshlrev_b32 v%d, 16, v%d\nv_and_b32 v%d, 0xffff0000, v%d" % (d + 2 * h, x + h, d + 2 * h + 1, x + h))
            def rnd():
                for h in range(2): s("v_cvt_pk_bf16_f32 v%d, v%d, v%d" % (48 + h, 60 + 2 * h, 61 + 2 * h))
                unp(60, 48)
            unp(56, 52 + 2 * u)
            for k in range(4): s("v_sub_f32 v%d, v%d, v44" % (60 + k, 56 + k))
            rnd()
            for k in range(4): s("v_mul_f32 v%d, v%d, v45" % (60 + k, 60 + k))
            rnd()
            for h in range(2):
                s("v_lshlrev_b32 v46, 16, v%d\nv_and_b32 v47, 0xffff0000, v%d\nv_mul_f32 v%d, v%d, v46\nv_mul_f32 v%d, v%d, v47" % (40 + 2 * u + h, 40 + 2 * u + h, 60 + 2 * h, 60 + 2 * h, 61 + 2 * h, 61 + 2 * h))
            rnd()
            for k in range(4): s("v_add_f32 v%d, v%d, v%d" % (56 + k, 56 + k, 60 + k))
            for k in range(4): s("v_accvgpr_write_b32 a%d, v%d" % (aBS + 16 * u + 4 * m + k, 56 + k))
    rb = sc.stream(s.units(), 0, 3, vmspace=2)
    if cfg.get("verbose"): print("shadow end", rb[-1])
    assert rb[-1] < res[i_x26] and rb[-1] < bar[13] and rb[i_pbs] < cfg.get("pfb_first", 646)
    vEW, vER, vTG, vAG, vTRW, vTRR, vCP, vH8, vD1, vPAd, vPD, vD0 = 2, 3, 4, 5, 6, 7, 8, 10, 11, 12, 13, 14
    sM, sKD, sKH = 54, 55, 56
    c1 = -2.0 * math.sqrt(2.0 / math.pi) * LOG2E
    CC = 46
    s("v_accvgpr_read_b32 v%d, a%d\nv_lshlrev_b32 v%d, 3, v0\nv_add_u32 v%d, 32768, v%d" % (vD0, PK["D"], vH8, vD1, vD0))
    if FBW: s("v_and_b32 v43, 31, v0\nv_lshlrev_b32 v43, 11, v43\ns_lshr_b32 s71, s%d, 2\ns_lshl_b32 s71, s71, 6\ns_lshl_b32 s65, s%d, 9\ns_add_u32 s71, s71, s65\ns_add_u32 s71, s71, 0x%x" % (sJ, sQ, SM_F1))
    else: s("v_and_b32 v43, 31, v0\nv_lshlrev_b32 v43, 7, v43\ns_lshl_b32 s71, s%d, 2\ns_add_u32 s71, s71, 0x%x" % (sJ, SM_F1B))
    s("s_mul_i32 s65, s%d, 176\ns_mul_i32 s66, s%d, 44\ns_add_u32 s65, s65, s66\ns_lshl_b32 s65, s65, 12\ns_add_u32 s65, s65, 0x%x" % (sB, sQ, WS_H))
    s.atom(["s_add_u32 s32, s6, s65", "s_addc_u32 s33, s7, 0"])
    s("s_and_b32 s33, s33, 0xffff\ns_mov_b32 s34, 0x%x\ns_mov_b32 s35, 0x20000" % (44 * 4096))
    srd(s, 12, 84, 85, 3584 * 2048); srd(s, 16, 88, 89, 1024 * 2048); srd(s, 20, 90, 91, 1024 * 2048)
    s("s_lshl_b32 s%d, s%d, 10" % (sM, sW))
    s("v_mov_b32 v46, %s\nv_mov_b32 v47, %s" % (fx(c1), fx(c1 * 0.044715)))
    ROT = cfg.get("rot", 2)
    sTQ = [96, 97, 98, 99, 48, 49, 50, 51]; sTS = [76, 77, 78, 80]; sJ12, sG7 = 44, 45
    s("s_and_b32 s67, s%d, 3\ns_lshl_b32 s67, s67, 1" % sI)
    for k in range(8):
        if k == 0: s("s_mov_b32 s65, s%d" % sTN)
        elif ROT == 2: s.atom(["s_cmp_le_u32 s%d, %d" % (sTN, k - 1), "s_cselect_b32 s65, %d, %d" % (k, k - 1)])
        elif ROT: s("s_add_u32 s65, s67, %d\ns_sub_u32 s66, s65, 7\ns_min_u32 s65, s65, s66\ns_add_u32 s65, s65, 1\ns_xor_b32 s65, s65, s%d" % (k - 1, sTN))
        else: s("s_xor_b32 s65, s%d, %d" % (sTN, k))
        s("s_mul_i32 s65, s65, 7\ns_add_u32 s65, s65, 1\ns_lshr_b32 s65, s65, 1\ns_lshl_b32 s%d, s65, 12" % sTQ[k])
    s("s_lshr_b32 s67, s%d, 1" % sTN)
    sGp = [24, 25, 26, 27]; sPar = 45
    for p in range(4):
        if ROT == 2:
            s("s_mov_b32 s%d, %d" % (sTS[p], (7 * p + 3) * 4096))
            if p == 0: s("s_lshl_b32 s%d, s67, 13" % sGp[0])
            else:
                s.atom(["s_cmp_le_u32 s67, %d" % (p - 1), "s_cselect_b32 s65, %d, %d" % (p, p - 1)]); s("s_lshl_b32 s%d, s65, 13" % sGp[p])
        else: s("s_xor_b32 s65, s67, %d\ns_lshl_b32 s%d, s65, 13\ns_mul_i32 s65, s65, %d\ns_add_u32 s%d, s65, %d" % (p, sGp[p], 7 * 4096, sTS[p], 3 * 4096))
    s("s_lshl_b32 s%d, s%d, 12\ns_and_b32 s69, s%d, 1\ns_lshl_b32 s%d, s69, 12" % (sJ12, sTN, sTN, sPar))
    s("s_mul_i32 s67, s67, %d\ns_lshl_b32 s69, s69, 9\ns_add_u32 s67, s67, s69\ns_add_u32 s67, s67, %d" % (7 * 4096, 3 * 4096))
    s("s_add_u32 s72, s%d, %d\ns_add_u32 s73, s%d, %d\ns_mov_b32 s66, s%d" % (sJ12, 28 * 4096, sJ12, 36 * 4096, sTQ[0]))
    s("s_lshl_b32 s68, s%d, 2\ns_add_u32 s68, s68, s%d\ns_lshl_b32 s68, s68, %d\ns_add_u32 s68, s68, 0x%x" % (sB, sQ, (7, 9, 11)[F3M], SM_F3))
    s("s_lshl_b32 s81, s%d, %d\ns_add_u32 s81, s81, s68\nv_and_b32 v%d, 7, v0\nv_lshlrev_b32 v%d, %d, v%d" % (sTN, (2, 2, 6)[F3M], vPAd, vPAd, (2, 2, 6)[F3M], vPAd))
    s("s_sub_u32 s64, 31, s%d\ns_lshl_b32 s64, s64, 13\ns_lshl_b32 s65, s%d, 8\ns_add_u32 s64, s64, s65" % (sB, sJ))
    s("s_mul_i32 s46, s%d, %d\ns_add_u32 s46, s46, %d" % (sW, EPW, EP_LDS))
    if TRP >= 0 and cfg.get("tr2", 1) and cfg.get("tr2pf", 1):
        s.atom(["s_getpc_b64 s[82:83]", "L_pc2:"])
        s("v_lshrrev_b32 v40, 3, v0\nv_lshlrev_b32 v40, 12, v40\nv_and_b32 v41, 7, v0\nv_lshl_add_u32 v40, v41, 7, v40\nv_add_u32 v40, L_main-L_pc2+%d, v40" % (4096 * cfg.get("tr_n", 12)))
        s("v_min_u32 v40, L_codeend-L_pc2-4, v40\nv_mov_b32 v41, 0\nv_lshl_add_u64 v[40:41], v[40:41], 0, s[82:83]")
        s.vm("global_load_dword a246, v[40:41], off")
        if cfg.get("cpe", 0):
            n_ = 16 * cfg.get("cpe", 0)
            s("s_mul_i32 s65, s%d, %d\ns_add_u32 s65, s65, L_epi-L_pc2+%d\nv_min_u32 v40, %d, v0\nv_lshl_add_u32 v40, v40, 7, s65\nv_mov_b32 v41, 0\nv_lshl_add_u64 v[40:41], v[40:41], 0, s[82:83]" % (sW, n_ * 128, cfg.get("cpe_off", -2048), n_ - 1))
            s.vm("global_load_dword a246, v[40:41], off")
    f1bload = "buffer_load_dword v44, v43, s[36:39], s71 offen %s" % SC
    s.vm(f1bload, "f1b")
    steps = [("g", 0, 2), ("g", 0, 0), ("g", 0, 1)]
    NA0 = cfg.get("na0", 2)
    steps += [("g", k, 0) for k in range(1, NA0 + 1)]
    UA = len(steps)
    steps += [("g", k, 1) for k in range(1, NA0 + 1)]
    for k in range(NA0 + 1, 8): steps += [("g", k, 0), ("g", k, 1)]
    UB = len(steps)
    for k in range(1, 8): steps += [("g", k, 2)] + ([("s", k // 2, 0)] if k % 2 else [])
    assert len(steps) == 28
    cst = [("r", 0), ("i", 0), ("r", 1), ("r", 2), ("r", 3), ("i", 1), ("i", 2), ("i", 3)]
    steps += [("c", 14, 0), ("c", 15, 0), ("c", 14, 1), ("c", 15, 1)]
    for st in range(16, 22): steps += [("c", st, 0), ("c", st, 1)]
    own = {0, 1, 2, 28, 29}; UC = 30
    NST = 22; KC = cfg.get("kc", 8)
    slot = {st: st % 8 for st in range(22)}; prevocc = {st: (st - 8 if st >= 8 else None) for st in range(22)}
    aW2 = 0; aAG = 32
    vC, vCA = 16, 20
    def dma2(s, st, k, early=None, vC=vC):
        if st < 14:
            kind, x, p = steps[2 * st + k // 2]
            if k % 2 == 0:
                if kind == "g" and p: s("s_add_u32 s%d, s%d, %d\ns_lshl_b32 s%d, s%d, 4" % (sKD, sTQ[x], p * 4096, sKD, sKD))
                else: s("s_lshl_b32 s%d, s%d, 4" % (sKD, (sTQ if kind == "g" else sTS)[x]))
            v, sr = (vD0, vD1)[k % 2], 12
        else:
            part, p = cst[st - 14]
            if k == 0: s("s_lshr_b32 s%d, s%d, 6" % (sKD, sGp[p]))
            v, sr = vC + k, (16 if part == "r" else 20)
        s("s_add_u32 m0, s%d, %d" % (sM, slot[st] * 16384 + k * 4096))
        s.op(Op("buffer_load_dwordx4 v%d, s[%d:%d], s%d offen lds" % (v, sr, sr + 3, sKD), "vm", K(("D2", st, k))), early)
    NPRE = 4
    r = sc.stream(s.units(), res[-1] + 2, 3)
    gS = r[-1]
    L2P = cfg.get("l2p", 0)
    if L2P:
        s("s_lshr_b32 s65, s2, 3\ns_lshl_b32 s65, s65, 2\ns_add_u32 s65, s65, s%d" % sW)
        s("s_mul_i32 s69, s65, %d\ns_mul_i32 s70, s%d, %d\ns_add_u32 s69, s69, s70\nv_min_u32 v40, 55, v0\nv_lshl_add_u32 v40, v40, 7, s69\ns_mov_b32 s70, %d" % (56 * 128, sQ, 896 * 2048, 448 * 2048))
        s.vm("buffer_load_dword a246, v40, s[12:15], 0 offen"); s.delay(cfg.get("l2p_sp", 40))
        s.vm("buffer_load_dword a246, v40, s[12:15], s70 offen"); s.delay(cfg.get("l2p_sp", 40))
        if L2P >= 2:
            s("s_lshl_b32 s69, s65, 14\ns_lshl_b32 s70, s%d, 9\ns_add_u32 s69, s69, s70\nv_bfe_u32 v40, v0, 2, 3\nv_lshl_add_u32 v40, v40, 11, s69\nv_and_b32 v41, 3, v0\nv_lshl_add_u32 v40, v41, 7, v40" % sQ)
    s.at(max(bar[13] + 1, cfg.get("pre_at", 0 if KT else 2170)))
    for st in range(NPRE):
        for k in range(4): dma2(s, st, k)
    if L2P >= 2:
        s.vm("buffer_load_dword a246, v40, s[16:19], 0 offen")
        if L2P >= 3: s.delay(20); s.vm("buffer_load_dword a246, v40, s[20:23], 0 offen")
    r = sc.stream(s.units(), gS + 1, 2, vmspace=cfg.get("pre_sp", 5))
    hst = cfg.get("hst", SC)
    aK0 = xalloc[27][1] if KT else 96; aK1 = 112 if aK0 != 112 else 96
    left = []; msh = 0
    if KT:
        msh = cfg.get("msh", 4)
        for m in range(msh):
            gs = [128 + 4 * m + e for e in range(4)] + [160 + 4 * m + e for e in range(4)]
            o = (56, 60)[m % 2]
            for k, g in enumerate(gs): s("v_mul_f32 v%d, v%d, v%d" % (48 + k, g, g))
            for k, g in enumerate(gs): s("v_fma_f32 v%d, v%d, v47, v46" % (48 + k, 48 + k))
            for k, g in enumerate(gs): s("v_mul_f32 v%d, v%d, v%d" % (48 + k, 48 + k, g))
            for k, g in enumerate(gs): s("v_exp_f32 v%d, v%d" % (48 + k, 48 + k))
            for k, g in enumerate(gs): s("v_mul_f32 v%d, v%d, v%d" % (g + 16, g, g + 16))
            for k, g in enumerate(gs): s("v_add_f32 v%d, 1.0, v%d" % (48 + k, 48 + k))
            for k, g in enumerate(gs): s("v_rcp_f32 v%d, v%d" % (48 + k, 48 + k))
            for k, g in enumerate(gs): s("v_mul_f32 v%d, v%d, v%d" % (g + 16, g + 16, 48 + k))
            for k in range(4): s("v_cvt_pk_bf16_f32 v%d, v%d, v%d" % (o + k, gs[2 * k] + 16, gs[2 * k] + 17))
            s.vm("buffer_store_dwordx4 %s, v1, s[32:35], s66 offen offset:%d %s" % (Q(o), 1024 * m, hst), ("hs", 0, m))
            for k in range(4): s("v_accvgpr_write_b32 a%d, v%d" % (aK0 + 4 * m + k, o + k))
        un = s.units()
        r = sc.stream(un, max(gS + 1, 4 * (28 * 18 + 16) + 2), 3, vmspace=2, overflow=True)
        left = un[len(r):]
        if cfg.get("verbose"): print("setup end", gS, "shadow gelu placed", len(r), "left", len(left))
    if cfg.get("abl"):
        for g in range(720, 1850):
            for it in sc.g[g]:
                o = it[2]; tx = o.text or ""
                if ("T" in cfg["abl"] and tx.startswith("ds_read_b64_tr")) or ("B" in cfg["abl"] and tx.startswith("ds_read_b128")) or \
                   ("X" in cfg["abl"] and tx.startswith("buffer_load_dwordx4") and "s[8:11]" in tx) or ("D" in cfg["abl"] and tx.endswith(" lds")) or \
                   ("P" in cfg["abl"] and tx.startswith("buffer_load_dword a246")) or ("V" in cfg["abl"] and tx.startswith("v_") and it[0] == 3): o.text = ""
    if cfg.get("stall"):
        for G in range(1, NG):
            if G % cfg["stall"] == 0 and len(sc.classes(4 * G - 1)) == 3: sc.put(4 * G - 1, [Op("s_nop 0")], 9)
    prog.add(sc.ops())
    vTA = 40
    s.atom(["L_epi:"])
    s("s_barrier")
    stamp(s, "end1")
    s.u += left
    KD = [int(c, 36) for c in str(cfg.get("kd", "g0a8"))]
    CH2 = cfg.get("ch2", 1); nochain = [int(c) for c in str(cfg.get("ch2_skip", "1"))]
    assert all(k % 2 == 0 for k in KD)
    def sg2(st, ul):
        if CH2 and st not in nochain: return [(2 * st + kk, u) for u in ul for kk in range(2)]
        return [(2 * st + kk, u) for kk in range(2) for u in ul]
    groups = []
    for st in range(22): groups += sg2(st, [u for u in (range(8) if st < 14 else (2, 3, 4, 5, 6, 7, 0, 1)) if 2 * st < 44 - KD[u // 2]])
    pend_ = {}
    for d in (1, 2, 3, 0):
        if str(d) in str(cfg.get("tm", "023")):
            for u in (2 * d, 2 * d + 1):
                for st in range(22 - KD[d] // 2, 22): groups += sg2(st, (u,))
        else:
            for st in range(22 - KD[d] // 2, 22): groups += sg2(st, (2 * d, 2 * d + 1))
    for G, (uu, u) in enumerate(groups): pend_[u] = G
    assert len(groups) == 352 and max(KD) <= 16
    NG = len(groups)
    mo, head, tail = order_mfma(groups)
    lastuse = {}; firstuse = {}
    for G, (uu, u) in enumerate(groups): firstuse.setdefault(uu, head(G)); lastuse[uu] = tail(G)
    hreg = {0: ("v", 48), 1: ("a", aK0), 2: ("a", aK1), 28: ("a", 32), 29: ("a", 48)}; hfree = {}
    pool = [(-1, ("a", r)) for r in [96, 112, 128, 144, 192, 208, 224, 160, 176, 64, 80] if r not in (aK0, aK1)] + [(4 * lastuse[u] + 3, hreg[u]) for u in (1, 2, 28, 29)]
    VFREE = cfg.get("vfree", 700)
    pool += [(VFREE, ("v", r)) for r in (64, 80, 96, 112)[:cfg.get("nvs", 4)]]
    for u in range(44):
        if u in own: continue
        pool.sort(key=lambda x: x[0]); e, r = pool.pop(0)
        hreg[u] = r; hfree[u] = e; pool.append((4 * lastuse[u] + 3, r))
    def hload(s, u, m, early=None):
        kind, x, p = steps[u]
        if m == 0:
            if kind == "g": s("s_add_u32 s%d, s%d, %d" % (sKH, sTQ[x], p * 4096))
            elif kind == "s": s("s_mov_b32 s%d, s%d" % (sKH, sTS[x]))
            else:
                part, pp = cst[x - 14]
                s("s_xor_b32 s%d, s%d, %d\ns_add_u32 s%d, s%d, s%d" % (sKH, sPar, ((28 if part == "r" else 36) + p) * 4096, sKH, sKH, sGp[pp]))
        hk, d = hreg[u]; d += 4 * m
        if kind == "s":
            s.op(Op("buffer_load_dwordx2 %s, v%d, s[32:35], s%d offen offset:%d %s" % (R(hk, d, 2), vH8, sKH, 1024 * m, HL), "vm"), early)
            s.op(Op("buffer_load_dwordx2 %s, v%d, s[32:35], s%d offen offset:%d %s" % (R(hk, d + 2, 2), vH8, sKH, 1024 * m + 512, HL), "vm", K(("H", u, m))))
        else: s.op(Op("buffer_load_dwordx4 %s, v1, s[32:35], s%d offen offset:%d %s" % (R(hk, d, 4), sKH, 1024 * m, HL), "vm", K(("H", u, m))), early)
    def gelu_pair(base0, base1, pid, T, OUT, keep=None, hook=None, m0=0):
        for m in range(m0, 4):
            o = OUT[m % len(OUT)]
            items = [(base0 + 4 * m, base0 + 16 + 4 * m, o), (base0 + 4 * m + 2, base0 + 18 + 4 * m, o + 1),
                     (base1 + 4 * m, base1 + 16 + 4 * m, o + 2), (base1 + 4 * m + 2, base1 + 18 + 4 * m, o + 3)]
            gelu_block(s, items, CC, T)
            s.vm("buffer_store_dwordx4 %s, v1, s[32:35], s66 offen offset:%d %s" % (Q(o), 1024 * m, hst), ("hs", pid, m))
            if keep is not None:
                for r in range(4): s("v_accvgpr_write_b32 a%d, v%d" % (keep + 4 * m + r, o + r))
            if hook: hook(m)
        s("s_add_u32 s66, s66, 4096")
    NPRE2 = cfg.get("npre2", 8)
    cpre = [(st, k) for st in range(NPRE, NPRE2) for k in range(4)]
    def cdma(n):
        for _ in range(n):
            if cpre: st, k = cpre.pop(0); dma2(s, st, k)
    fstore = lambda off: "buffer_store_dword%s, v1, s[36:39], s81 offen offset:%d %s" % (("x4 " + Q(vTG)) if F3M == 2 else (" v%d" % vTG), off * (1, 4, 16)[F3M], SC)
    fload = lambda off: "buffer_load_dword v%d, v%d, s[36:39], s68 offen offset:%d %s" % (vPD, vPAd, off * (1, 4, 16)[F3M], SC)
    s("v_mov_b32 v%d, s%d" % (vTG, sTAG))
    npg = cfg.get("cpre_g", 1)
    cdma(cfg.get("cpre_0", 4))
    gelu_pair(128, 160, 0, 48, [56, 60], aK0, lambda m: cdma(npg), m0=msh)
    def hook1(m):
        cdma(npg)
        if m == cfg.get("fa0_m", 1): flag(s, fstore(96), [("hs", 0, 3)])
    gelu_pair(192, 224, 1, 48, [56, 60], aK1, hook1)
    stamp(s, "p01")
    def pkfma(d, s0, s1, s2, T, neg=False):
        s("v_pk_fma_f32 %s, %s, %s, %s op_sel:[%d,0,0] op_sel_hi:[%d,1,1]%s" % (P(d), P(s0), P(s1), P(s2), T, T, " neg_lo:[1,0,0] neg_hi:[1,0,0]" if neg else ""))
    def pkmul(d, s0, s1, T, neg=False):
        s("v_pk_mul_f32 %s, %s, %s op_sel:[%d,0] op_sel_hi:[%d,1]%s" % (P(d), P(s0), P(s1), T, T, " neg_lo:[1,0] neg_hi:[1,0]" if neg else ""))
    BR = lambda T, x: 64 + 16 * T + 2 * x
    BI = lambda T, x: 96 + 16 * T + 2 * x
    for x in range(8):
        for T in range(2):
            pkmul(128 + 2 * T, cC + 2, BI(T, x), T, True); pkmul(BI(T, x), cC, BI(T, x), T, True)
        for T in range(2):
            pkfma(BI(T, x), cC + 2, BR(T, x), BI(T, x), T, True); pkfma(BR(T, x), cC, BR(T, x), 128 + 2 * T, T)
    sr = [BR(0, 0), BR(1, 0)]; si = [BI(0, 0), BI(1, 0)]
    bufs = [[132, 134], [138, 140]]; SI = [136, 142]
    for x in range(1, 8):
        nr = [bufs[T][x % 2] for T in range(2)]
        for T in range(2): pkfma(nr[T], cL, sr[T], BR(T, x), T)
        for T in range(2): pkfma(nr[T], cL + 2, si[T], nr[T], T, True)
        for T in range(2): pkfma(SI[T], cL, si[T], BI(T, x), T)
        for T in range(2): pkfma(SI[T], cL + 2, sr[T], SI[T], T)
        sr = nr; si = list(SI)
        if x % 2: cdma(1)
    EA = 20
    for T in range(2):
        s("v_mov_b32 v%d, v%d\nv_mov_b32 v%d, v%d\nv_mov_b32 v%d, v%d\nv_mov_b32 v%d, v%d" % (EA + T, sr[T], EA + 2 + T, si[T], 144 + T, sr[T] + 1, 146 + T, si[T] + 1))
    horner_pk(s, EA, cL8, 144, 144)
    s("v_add_u32 v%d, s46, v1\nv_and_b32 v%d, 0xf0, v1\nv_add_u32 v%d, s46, v%d" % (vEW, vER, vER, vER))
    s.lg("ds_write_b128 v%d, v[144:147]" % vEW)
    for g in range(4): s.lg("ds_read_b128 %s, v%d offset:%d" % (Q(148 + 4 * g), vER, 256 * g), ("e", g))
    HPN = cfg.get("hpn", 0)
    if HPN: s.vm(fload(96), "f3a0")
    for r in range(32):
        s("v_accvgpr_read_b32 v%d, a%d" % (192 + r, r))
        if r % 16 == 15: cdma(1)
    flag(s, fstore(0), [("hs", 1, 3)])
    for g in range(1, 4):
        s.wait([("e", g)]); horner_pk(s, 148 + 4 * (g - 1), cL16, 148 + 4 * g, 148 + 4 * g)
    for r in range(160, 164): s("v_min_u32 v%d, -2, v%d" % (r, r))
    s.atom(["s_mov_b64 exec, 0xffff", Op("buffer_store_dwordx4 v[160:163], v1, s[36:39], s64 offen %s" % SC, "vm"), "s_mov_b64 exec, -1"])
    stamp(s, "pub")
    poll(s, "P1b", f1bload, 44, "f1b")
    for r in range(32, 64):
        s("v_accvgpr_read_b32 v%d, a%d" % (192 + r, r))
        if r % 16 == 15: cdma(1)
    cdma(16)
    for r in range(32): s("v_accvgpr_read_b32 v%d, a%d" % (128 + r, aBS + r))
    hq = [(u, m) for u in range(3, UA) for m in range(4)][:HPN]; nh_pre = [3 + HPN // 4]
    assert HPN % 4 == 0
    def issue_h(n):
        for _ in range(n):
            if hq: hload(s, *hq.pop(0))
    hpb = cfg.get("hpb", 3)
    PA0 = cfg.get("pa0", 3)
    def hookA(m):
        issue_h(hpb)
        if m == PA0 and not HPN: s.vm(fload(96), "f3a0")
    def tramp2():
        s("s_mov_b64 exec, 0")
        for w in range(1, 4): s("s_cmp_eq_u32 s%d, %d\ns_cbranch_scc1 L_trB%d" % (sW, w, w))
        s("s_branch L_trB0")
        s.atom(["L_trret2:"])
        s("s_mov_b64 exec, -1")
    if TRP >= 0 and cfg.get("tr2", 1): tramp2()
    if HPN:
        poll(s, "P3a0", fload(96), vPD, "f3a0"); stamp(s, "ok3a"); issue_h(hpb)
    gelu_pair(192, 224, 2, 168, [48, 52, 56, 60], None, hookA)
    for r in range(32): s("v_accvgpr_read_b32 v%d, a%d" % (192 + r, 64 + r))
    issue_h(hpb)
    for mp in range(2):
        o = 240 + 4 * mp; items = []
        for mm in range(2):
            m = 2 * mp + mm
            items += [(192 + 4 * m, 208 + 4 * m, o + 2 * mm), (194 + 4 * m, 210 + 4 * m, o + 2 * mm + 1)]
        gelu_block(s, items, CC, 168)
        if mp == 0:
            s("v_accvgpr_read_b32 v%d, a%d" % (vTA, PK["TA"]))
            for u in range(1, 6): s("v_xor_b32 v%d, %d, v%d" % (vTA + u, 32 * u, vTA))
        issue_h(hpb if mp == 0 else 99)
        if mp == PA0 - 4 and not HPN: s.vm(fload(96), "f3a0")
        for mm in range(2):
            s.vm("buffer_store_dwordx2 %s, v%d, s[32:35], s67 offen offset:%d %s" % (P(o + 2 * mm), vH8, 1024 * (2 * mp + mm), hst), ("hsS", 2 * mp + mm))
        if mp == 0:
            s.wait([("D2", st, k) for st in range(cfg.get("bar2", 2)) for k in range(4)])
            s("s_barrier")
            pre_reads_at = len(s.u)
    for u in range(6, 8): s("v_xor_b32 v%d, %d, v%d" % (vTA + u, 32 * u, vTA))
    L2 = cfg.get("l2_lead", 4); B2 = cfg.get("bar2", 2)
    def read2(G, part):
        uu, u = groups[G]; f = G % NWB
        if uu < 28:
            st, kk = divmod(uu, 2)
            return Op("ds_read_b64_tr_b16 %s, v%d offset:%d" % (R("a", aW2 + 4 * f + 2 * part, 2), vTA + u, (slot[st] % 4) * 16384 + kk * 8192 + part * 4096), "lg", K(("F2", G, part)))
        _, st, kk = steps[uu]
        return Op("ds_read_b128 %s, v%d offset:%d" % (R("a", aW2 + 4 * f, 4), vCA + 2 * (slot[st] >= 4) + kk, (slot[st] % 4) * 16384 + u * 2048), "lg", K(("F2", G, part)))
    parts = lambda G: [0, 1] if groups[G][0] < 28 else [None]
    mf = []
    for G, m in mo:
        uu, u = groups[G]
        mf.append(Op(mfma16(("v", 128 + 16 * u + 4 * m), ("a", aW2 + 4 * (G % NWB)), (hreg[uu][0], hreg[uu][1] + 4 * m), zero=(uu == 0 and u >= 2))))
    sc = Sch(mf)
    gneed = lambda G: [("F2", H, p) for H in range(G, tail(G) + 1) for p in parts(H)] + [("H", uu, m) for uu in range(44) if firstuse[uu] == G and uu not in own for m in range(4)]
    rgap = {}
    for G in range(NG):
        st, f = divmod(G, 16)
        if st < 14 and st % B2 == B2 - 1:
            if f <= 4: rgap[G] = 4 * (G - L2) - 1
            elif f == 5: rgap[G] = 4 * (G - 1 - L2) + 1
            elif f <= 10: rgap[G] = 4 * (G - 1 - L2) - 1
            elif f == 11: rgap[G] = 4 * (G - 2 - L2) + 1
            else: rgap[G] = 4 * (G - 2 - L2) - 1
        else: rgap[G] = 4 * (G - L2) - 1
        assert rgap[G] >= 4 * tail(G - NWB) + 3
    pr = Seq()
    for G in range(NG):
        if rgap[G] < 0:
            for p in parts(G): pr.op(read2(G, p))
    s.u[pre_reads_at:pre_reads_at] = pr.units()
    s.wait(gneed(0))
    stamp(s, "loop2")
    prog.add(s.done())
    for G in range(1, NG):
        w = Op("", needs=K(gneed(G)))
        w.keep = sum(len(parts(H)) for H in range(max(0, G - 2), min(NG, G + 10)) if rgap[H] == 4 * G - 1) == 2
        if w.keep or head(G) == G: sc.put(4 * G - 1, [w], 0)
    for G in range(NG):
        if rgap[G] >= 0:
            if rgap[G] % 4 != 3: sc.put(rgap[G], [Op("s_waitcnt lgkmcnt(15)")], 0)
            sc.put(rgap[G], [read2(G, p) for p in parts(G)], 1)
    bar = {}
    for st in range(14):
        if st % B2 != B2 - 1: continue
        bar[st] = 4 * (16 * (st + 1) - L2) - 2
        pub = list(range(st + 1, st + 1 + B2)) if st < 13 else [14, 15, 16, 17]
        sc.put(bar[st], [Op("s_barrier", needs=K([("D2", x, k) for x in pub for k in range(4)]), drain=["lg"])], 0)
    for st in (3, 7, 11):
        for i_, g_ in enumerate((1, 2, 4, 5)):
            sc.put(bar[st] - g_, [Op("v_xor_b32 v%d, 0x10000, v%d" % (vTA + 2 * i_ + k, vTA + 2 * i_ + k)) for k in range(2)], 2)
        assert max(rgap[G] for G in range(16 * st, 16 * st + 16)) < bar[st] - 5
    barF = min(rgap[G] for G in range(NG) if groups[G][0] >= 36) - 1
    sc.put(barF, [Op("s_barrier", needs=K([("D2", x, k) for x in range(18, 22) for k in range(4)]))], 0)
    def mark(o, nm): o.u[-1].append(nm)
    def after(o, nm, n): o.u.append([[Op("")], lambda mk: (mk[nm] + n) if nm in mk else None])
    def dly(o, n): o.u.append([[Op("")], lambda mk: mk["_prev"] + n])
    gl = []
    t = Seq()
    t("v_accvgpr_read_b32 v%d, a%d\nv_accvgpr_read_b32 v%d, a%d\nv_accvgpr_read_b32 v%d, a%d" % (vAG, PK["AG"], vTRW, PK["TRW"], vTRR, PK["TRR"]))
    t("s_mov_b32 s40, s36\ns_mov_b32 s41, s37\ns_mov_b32 s42, 0x40000\ns_mov_b32 s43, 0x20000")
    t("v_lshrrev_b32 v8, 4, v0\nv_cmp_eq_u32 s[64:65], 1, v8\nv_cmp_eq_u32 s[66:67], 2, v8\nv_cmp_eq_u32 s[74:75], 3, v8")
    t.at(cfg.get("ag_gap", 32))
    for x in range(7, -1, -1):
        t("s_mov_b32 s57, %d" % (8192 * x))
        g = "buffer_load_dwordx4 %s, v%d, s[40:43], s57 offen %s" % (R("a", aAG + 4 * x, 4), vAG, SC)
        gl.append("s_mov_b32 s57, %d\n%s" % (8192 * x, g))
        t.vm(g, ("ag", x))
        if x: dly(t, cfg.get("ag_sp", 8))
    mark(t, "ag")
    srd(t, 8, 86, 87, 2048 * 4096)
    flag(t, fstore(32), [("hsS", 3)], early=cfg.get("fb_gap", 80)); mark(t, "flagb")
    after(t, "ag", cfg.get("ag_lat", 20)); t.at(4 * lastuse[0] + 4)
    def ag_horner(o, w):
        cur = None
        for x in range(7, -1, -1):
            q = 48 + 4 * (x % 2)
            if w: o.wait([("ag", x)])
            for r in range(4): o("v_accvgpr_read_b32 v%d, a%d" % (q + r, aAG + 4 * x + r))
            if not w: o(("v_max3_u32 v56, v%d, v%d, v%d\nv_max_u32 v56, v56, v%d" % (q, q + 1, q + 2, q + 3)) if x == 7 else ("v_max3_u32 v56, v56, v%d, v%d\nv_max3_u32 v56, v56, v%d, v%d" % (q, q + 1, q + 2, q + 3)))
            if cur is not None: horner_sc(o, cur, cL64, q)
            cur = q
    ag_horner(t, True)
    t("v_cmp_u_f32 s[70:71], v48, v49")
    t.atom(["v_cmp_u_f32 vcc, v50, v51", "s_or_b64 vcc, vcc, s[70:71]", "s_cbranch_scc1 PAG_retry", "PAG_ok:"])
    ool("PAG_retry:")
    if cfg.get("rc"): RC.append("PAG"); ool("v_readlane_b32 s100, v15, %d\ns_nop 3\ns_add_u32 s100, s100, 100\nv_writelane_b32 v15, s100, %d" % (len(RC), len(RC)))
    ool("\n".join(gl) + "\ns_waitcnt vmcnt(0)")
    ag_horner(ool, False)
    ool("v_cmp_eq_u32 vcc, -1, v56\ns_and_b64 vcc, vcc, exec\ns_cbranch_scc0 PAG_ok\ns_cmp_eq_u32 s79, 0\ns_cbranch_scc1 PAG_ok\ns_sub_u32 s79, s79, 1\ns_sleep 1\ns_branch PAG_retry")
    t.lg("ds_write_b128 v%d, v[48:51] offset:1024" % vEW)
    for g, r in ((3, 52), (2, 56), (1, 60)): t.lg("ds_read_b128 %s, v%d offset:%d" % (Q(r), vER, 1024 + 256 * g), ("s", g))
    t.lg("ds_read_b128 %s, v%d offset:1024" % (Q(48), vER), ("s", 0))
    dly(t, 8)
    t.wait([("s", 2)]); horner_sc(t, 52, cL512, 56)
    t.lg("ds_read_b128 %s, v%d" % (Q(52), vER), ("e2", 0))
    t.wait([("s", 1)]); horner_sc(t, 56, cL512, 60)
    t.lg("ds_read_b128 %s, v%d offset:256" % (Q(56), vER), ("e2", 1))
    t.wait([("s", 0)]); horner_sc(t, 60, cL512, 48)
    t.lg("ds_read_b128 %s, v%d offset:512" % (Q(60), vER), ("e2", 2))
    t.wait([("e2", 0)]); horner_sc(t, 48, cL16, 52)
    t.wait([("e2", 1)]); horner_sc(t, 52, cL16, 56)
    t.wait([("e2", 2)]); horner_sc(t, 56, cL16, 60)
    for g, sm in ((52, 64), (56, 66), (60, 74)):
        for r in range(4): t("v_cndmask_b32 v%d, v%d, v%d, s[%d:%d]" % (48 + r, 48 + r, g + r, sm, sm + 1))
    horner_sc(t, 48, cL8, EA)
    t("v_xor_b32 v52, 16, v%d" % vTRR)
    st_r = {(T, h): (48, EA)[h] + T for T in range(2) for h in range(2)}
    st_i = {(T, h): (48, EA)[h] + 2 + T for T in range(2) for h in range(2)}
    TH = [(T, h) for T in range(2) for h in range(2)]
    xs = Seq()
    for x in range(8):
        for (T, h) in TH: t("v_fmac_f32 v%d, v%d, v%d" % (BR(T, x) + h, cL + T, st_r[T, h]))
        for (T, h) in TH: t("v_fmac_f32 v%d, v%d, v%d" % (BI(T, x) + h, cL + T, st_i[T, h]))
        for (T, h) in TH: t("v_fma_f32 v%d, -v%d, v%d, v%d" % (BR(T, x) + h, cL + 2 + T, st_i[T, h], BR(T, x) + h))
        for (T, h) in TH: t("v_fmac_f32 v%d, v%d, v%d" % (BI(T, x) + h, cL + 2 + T, st_r[T, h]))
        for (T, h) in TH: st_r[T, h] = BR(T, x) + h; st_i[T, h] = BI(T, x) + h
        if x % 2 == 1:
            m = x // 2; mo = (m % 2) * 2048
            for part, Fn in enumerate((BR, BI)):
                for T in range(2):
                    o = 56 + 4 * part + 2 * T
                    t("v_cvt_pk_bf16_f32 v%d, v%d, v%d\nv_cvt_pk_bf16_f32 v%d, v%d, v%d" % (o, Fn(T, x - 1), Fn(T, x - 1) + 1, o + 1, Fn(T, x), Fn(T, x) + 1))
                    t.lg("ds_write_b64 v%d, %s offset:%d" % (vTRW, P(o), mo + part * 1024 + 512 * T))
                t.atom(["s_waitcnt lgkmcnt(15)"] + [Op("ds_read_b64_tr_b16 %s, v%d offset:%d" % (R("a", aAG + 16 * part + 4 * m + 2 * half, 2), (vTRR, 52)[half], mo + part * 1024 + 256 * half), "lg", K(("tr", m, part, half))) for half in range(2)])
                mark(t, ("tr", m, part))
                after(xs, ("tr", m, part), 10)
                if (m, part) != (0, 0) and m < 3: after(xs, ("hl", m - 1 + part, 1 - part), cfg.get("hl_sp", 24))
                xs.vm("buffer_store_dwordx4 %s, v1, s[32:35], s%d offen offset:%d %s" % (R("a", aAG + 16 * part + 4 * m, 4), 72 + part, 1024 * m, hst), ("hl", m, part), needs=[("tr", m, part, 1)])
                mark(xs, ("hl", m, part))
    dly(xs, cfg.get("fc_lat", 60))
    flag(xs, fstore(64), [("hl", 3, 1)]); mark(xs, "flagc")
    t("v_accvgpr_read_b32 v48, a%d\nv_accvgpr_read_b32 v%d, a%d" % (PK["C"], vCA, PK["CA"]))
    for k in range(4): t("s_xor_b32 s65, s%d, %d\ns_lshl_b32 s65, s65, 16\nv_add_u32 v%d, s65, v48" % (sQ, k, vC + k))
    t("s_and_b32 s65, s%d, 1\ns_lshl_b32 s65, s65, 6\nv_xor_b32 v%d, s65, v%d" % (sTN, vCA, vCA))
    t("v_xor_b32 v%d, 64, v%d\nv_add_u32 v%d, 0x10000, v%d\nv_xor_b32 v%d, 64, v%d" % (vCA + 1, vCA, vCA + 2, vCA, vCA + 3, vCA + 2))
    vOO = 28
    t("v_accvgpr_read_b32 v24, a%d\nv_accvgpr_read_b32 v25, a%d\nv_lshlrev_b32 v25, 2, v25\nv_lshl_add_u32 v%d, v24, 12, v25" % (PK["TOK"], PK["COL"], vOO))
    mark(t, "cready")
    RB = lambda u, m: 128 + 16 * u + 4 * m
    after(t, "flagc", 1)
    t("s_lshl_b32 s65, s%d, 3\ns_add_u32 s65, s65, s%d\ns_lshl_b32 s66, s65, 18\ns_lshl_b32 s67, s%d, 14\ns_add_u32 s66, s66, s67\ns_add_u32 s66, s66, 0x%x" % (sI, sTN, sW, WS_PART))
    t.atom(["s_add_u32 s40, s6, s66", "s_addc_u32 s41, s7, 0"])
    t("s_and_b32 s41, s41, 0xffff\ns_mov_b32 s42, 0x34000\ns_mov_b32 s43, 0x20000")
    t("s_lshl_b32 s69, s65, 2\ns_add_u32 s69, s69, s%d\ns_lshl_b32 s69, s69, %d\ns_add_u32 s69, s69, 0x%x" % (sW, (7, 10, 10)[F4M], SM_F4))
    for d in (1, 2, 3):
        t("s_xor_b32 s67, s%d, %d\ns_lshl_b32 s66, s67, 16\ns_add_u32 s%d, s66, %d" % (sQ, d, 72 + d, (d - 1) * 4096))
        t("s_lshl_b32 s67, s67, %d\nv_add_u32 v%d, s67, v1" % ((4, 8, 8)[F4M], 28 + d))
        t("s_lshl_b32 s67, s%d, 16\ns_add_u32 s%d, s67, %d" % (sQ, 69 + d, (d - 1) * 4096))
    t("s_lshl_b32 s67, s%d, %d\nv_and_b32 v32, 3, v0\nv_lshl_add_u32 v32, v32, %d, s67" % (sQ, (4, 8, 8)[F4M], (2, 2, 6)[F4M]))
    t("s_mov_b32 s57, 0\ns_mov_b32 s58, 8192\ns_mov_b32 s59, 16384\ns_mov_b32 s64, 24576")
    t("v_mov_b32 v34, 0x3f80\nv_mov_b32 v35, 0x3f800000")
    mark(t, "setup")
    if cfg.get("tlb", 0):
        after(t, ("H", 43), 2)
        t.vm("buffer_load_dword a246, v29, s[40:43], s73 offen")
        t("v_readfirstlane_b32 s67, v%d" % vOO); dly(t, 3)
        t.vm("buffer_load_dword a246, v29, s[8:11], s67 offen")
    f4store = lambda d, ix: ("buffer_store_dword v%d, v%d, s[36:39], s69 offen offset:%d %s" % (vTG, 28 + d, 4 * ix, SC)) if F4M < 2 else ("buffer_store_dwordx4 %s, v%d, s[36:39], s69 offen offset:%d %s" % (Q(vTG), 28 + d, 64 * ix, SC))
    f4load = "buffer_load_dword v33, v32, s[36:39], s69 offen %s" % SC
    gp = lambda u: 4 * pend_[u] + 3 + 3
    RV = lambda d, m: 128 + 32 * d + 8 * m + 4
    rload = lambda d, m: "buffer_load_dwordx4 %s, v1, s[40:43], s%d offen offset:%d %s" % (Q(RV(d, m)), 69 + d, 1024 * m, SC)
    NFI = cfg.get("nfi", 3); NRI = cfg.get("nri", 1)
    fs = Seq(); rs = Seq(); pl_ = Seq(); assert NFI == 3; NB = str(cfg.get("nb", "1"))
    for d in (1, 2, 3):
        for m in range(4):
            t.at(gp(2 * d + m // 2))
            A = 128 + 32 * d + 8 * m; Bq = A + 4
            t("v_cvt_pk_bf16_f32 v%d, v%d, v%d\nv_cvt_pk_bf16_f32 v%d, v%d, v%d\nv_cvt_pk_bf16_f32 v%d, v%d, v%d\nv_cvt_pk_bf16_f32 v%d, v%d, v%d" % (A, A, A + 1, A + 1, A + 2, A + 3, A + 2, Bq, Bq + 1, A + 3, Bq + 2, Bq + 3))
            mark(t, ("cv", d, m))
            after(xs, ("cv", d, m), 1)
            xs.vm("buffer_store_dwordx4 %s, v1, s[40:43], s%d offen offset:%d %s" % (Q(A), 72 + d, 1024 * m, SC), ("ps", d, m)); mark(xs, ("ps", d, m))
    SP3 = cfg.get("sp3", 1)
    HU = ((1, (0, 1, 2, 3), 1), (2, (0, 1, 2, 3), 2)) + (((3, (0, 1), 0), (3, (2, 3), 3)) if SP3 else ((3, (0, 1, 2, 3), 3),))
    f4l3 = f4load.replace("v33,", "v39,")
    ool("FX:\n%s\ns_waitcnt vmcnt(0)\nv_cmp_eq_u32 vcc, s%d, v39\ns_and_b32 s29, vcc_lo, s28\ns_andn2_b32 s28, s28, s29" % (f4l3, sTAG))
    lat4 = [int(x) for x in str(cfg.get("p4_lat", "40")).split("-")]; lat4 += lat4[-1:] * 4
    for hi_, (d, ms, ix) in enumerate(HU):
        after(fs, ("ps", d, ms[-1]), cfg.get("f4_lat", 44)); flag(fs, f4store(d, ix), [("ps", d, ms[-1])]); mark(fs, ("f4", ix))
        vF = 36 + ix
        f4l = f4load.replace("v33,", "v%d," % vF)
        after(pl_, ("f4", ix), lat4[hi_]); pl_.vm(f4l, ("f4l", ix)); mark(pl_, ("f4l", ix))
        after(rs, ("f4l", ix), cfg.get("p4_rt", 36))
        if ix != 3:
            rs.wait([("f4l", ix)])
            rs("v_cmp_ne_u32 s[82:83], s%d, v%d" % (sTAG, vF)); dly(rs, 1)
            rs.atom(["s_and_b32 s29, s82, %d" % (1 << ix), "s_cselect_b32 s47, 0x40000000, s%d" % (69 + d), "s_or_b32 s28, s28, s29" if hi_ else "s_mov_b32 s28, s29"])
            ool("s_bitcmp1_b32 s29, %d\ns_cbranch_scc0 FX_n%d\n%s\nFX_n%d:" % (ix, ix, "\n".join(rload(d, m) for m in ms), ix))
        else:
            ool("s_cmp_eq_u32 s28, 0\ns_cbranch_scc1 FX_done\ns_cmp_eq_u32 s79, 0\ns_cbranch_scc1 FX_done\ns_sub_u32 s79, s79, 1\ns_branch FX\nFX_done:\n%s\ns_waitcnt vmcnt(0)\ns_branch FX_ret" % f4l3)
            rs.at(10 ** 6)
            rs.atom(["s_cmp_lg_u32 s28, 0", "s_cbranch_scc1 FX", "FX_ret:"])
            poll(rs, "P4%d" % ix, f4l, vF, ("f4l", ix), mask=str(1 << ix))
        for m in ms:
            rs.vm(rload(d, m).replace("s%d offen" % (69 + d), "s47 offen") if ix != 3 else rload(d, m), ("pl", d, m)); mark(rs, ("pl", d, m)); dly(rs, cfg.get("r_sp", 8))
    hs = Seq(); hdl = {}
    if not HPN: poll(hs, "P3a0", fload(96), vPD, "f3a0", early=cfg.get("pa_gap", 1))
    for u in range(nh_pre[0], 44):
        if u in own: continue
        for (U, nm, off, fl, lat) in ((UA, "P3a", 0, None, 0), (UB, "P3b", 32, "flagb", cfg.get("pb_lat", 80)), (UC, "P3c", 64, "flagc", cfg.get("pc_lat", 80))):
            if u == (max(U - 2, nh_pre[0]) if U != UC else U):
                if fl: after(hs, fl, lat)
                hs.vm(fload(off), nm); mark(hs, nm + "l")
            if u == U:
                after(hs, nm + "l", cfg.get("poll_rt", 44)); poll(hs, nm, fload(off), vPD, nm); mark(hs, nm)
        n0 = len(hs.u)
        for m in range(4): hload(hs, u, m, max(hfree[u], 4 * firstuse[u] - cfg.get("l2_la", 400)))
        for i in range(n0, len(hs.u)): hdl[i] = 4 * firstuse[u] - 1
        mark(hs, ("H", u))
    ds = Seq(); ddl = {}
    DL = lambda st: bar[st // B2 * B2 - 1] if st < 14 else (bar[13] if st < 18 else barF)
    for st in range(NPRE2, 22):
        n0 = len(ds.u)
        if st == "E":
            after(ds, "cready", 1); after(ds, ("hl", 3, 1), 1)
            for n in range(4):
                ds("s_mov_b32 s%d, %d\ns_add_u32 m0, s46, %d" % (sKD, 32768 * n, 2048 + 1024 * n))
                ds.vm("buffer_load_dwordx4 v26, s[24:27], s%d offen lds" % sKD)
            ds("s_add_u32 m0, s46, 6144"); ds.vm("buffer_load_dwordx4 v1, s[36:39], s59 offen lds")
            ds("s_add_u32 m0, s46, 7168"); ds.vm("buffer_load_dwordx4 v1, s[28:31], s58 offen lds", "Elast"); mark(ds, "edma")
            dl = 900
        else:
            if st == 14: after(ds, "cready", 1)
            for k in range(4): dma2(ds, st, k, bar[prevocc[st] // B2 * B2 + B2 - 1] + 1 if st >= 8 else 0)
            dl = DL(st)
            mark(ds, ("D", st))
        for i in range(n0, len(ds.u)): ddl[i] = dl
    RS = Stream("r", rs.units(), 2, deadline=lambda i: cfg.get("r_prio", 0)); PS = Stream("pl", pl_.units(), 2, deadline=lambda i: -2); RS.overflow = PS.overflow = True
    mk = multi(sc, [Stream("h", hs.units(), 2, deadline=lambda i: hdl.get(i, 0)), Stream("d", ds.units(), 2, deadline=lambda i: ddl.get(i, 0)),
                    Stream("x", xs.units(), 2), Stream("t", t.units(), 3, start=1), RS, PS, Stream("f", fs.units(), 2, deadline=lambda i: -2)],
               cl=cfg.get("cl", 70), cs=cfg.get("cs", 210), B0=cfg.get("b0", 150), busy0=cfg.get("busy0", 300), tinyfree=cfg.get("tf", 1))
    sl = sorted([(4 * firstuse[u] - 1 - mk[("H", u)], "h", u) for u in range(nh_pre[0], 44) if u not in own] + [(DL(st) - mk[("D", st)], "d", st) for st in range(NPRE2, 22)])
    if cfg.get("verbose"):
        print("loop2 slacks", sl[:6], {k: v for k, v in mk.items() if isinstance(k, str)}, "hl", [mk[("hl", m, p)] for m in range(4) for p in range(2)], "ps", [mk[("ps", d, m)] for d in (1, 2, 3) for m in range(4)], "barF", barF, "f4", [mk.get(("f4", d)) for d in (1, 2, 0, 3)], "f4l", [mk.get(("f4l", d)) for d in (1, 2, 0, 3)], "pl", [mk.get(("pl", d, m)) for d in (1, 2, 3) for m in range(4)])
    assert sl[0][0] > cfg.get("minslack", 30), sl[:4]
    assert mk["cready"] < rgap[firstuse[28]] and mk[("hl", 3, 1)] < 4 * firstuse[28] - 1 and mk["setup"] < gp(2) and mk[("tr", 3, 1)] < VFREE
    for nm in names:
        if TS and nm[0] == "g" and nm[1:].isdigit():
            g_ = 4 * (16 * (int(nm[1:]) + 1) - L2) - 2
            sc.put(g_ - 1, [Op("s_memrealtime s[100:101]")], 5)
            sc.put(g_, [Op("s_waitcnt lgkmcnt(0)\nv_writelane_b32 v%d, s100, %d" % (vTS, names.index(nm)))], 5)
    if cfg.get("drop"):
        for g in range(cfg.get("drop_lo", 120), cfg.get("drop_hi", 600)):
            for it in sc.g[g]:
                o = it[2]
                if it[0] in (2, 3) and o.text and "\n" not in o.text and not o.text.endswith(":"):
                    c = opclass(o.text)
                    if it[0] == 2 and not (c == "X" and "x4" in o.text): continue
                    if c in cfg["drop"] and "cmp" not in o.text and not any(("v%d," % r) in o.text.split(None, 2)[1] + "," for r in range(16, 32)):
                        o.text = "s_nop 0" if cfg.get("dropnop") else ""
    prog.add(sc.ops())
    stamp(s, "end2")
    def addp(d, m):
        s.wait([("pl", d, m)])
        for k in range(8):
            r = 128 + 8 * m + k
            s("v_dot2_f32_bf16 v%d, v%d, v%d, v%d" % (r, RV(d, m) + k // 2, 34 + k % 2, r))
    for un in PS.units[PS.pos:] + RS.units[RS.pos:]: s.u.append([un[0], None])
    stamp(s, "poll4")
    sM4 = [57, 58, 59, 64]
    for m in range(4):
        for d in (1, 2, 3): addp(d, m)
        stamp(s, "r%d" % m)
        s.vm("buffer_store_dwordx4 %s, v%d, s[8:11], s%d offen offset:%d %s" % (Q(128 + 8 * m), vOO, sM4[2 * (m % 2)], 64 * (m // 2), cfg.get("ost", SC)))
        s("s_nop 1")
        s.vm("buffer_store_dwordx4 %s, v%d, s[8:11], s%d offen offset:%d %s" % (Q(132 + 8 * m), vOO, sM4[2 * (m % 2) + 1], 64 * (m // 2), cfg.get("ost", SC)))
    prog.add(s.done())
    prog.emit(a)
    a("s_cmp_eq_u32 s%d, 31\ns_cbranch_scc0 L_noep\ns_cmp_eq_u32 s%d, 0\ns_cbranch_scc0 L_noep" % (sB, sJ))
    a("v_mov_b32 v40, 0x%x\ns_mov_b64 exec, 1\nbuffer_store_dword v%d, v40, s[36:39], 0 offen %s\ns_mov_b64 exec, -1" % (SM_EP, vTG, SC))
    a("L_noep:")
    if TS:
        a("s_waitcnt vmcnt(0)\ns_memrealtime s[100:101]\ns_waitcnt lgkmcnt(0)\nv_writelane_b32 v%d, s100, %d" % (vTS, len(names) - 1))
        a("s_cmp_lg_u32 s%d, %d\ns_cbranch_scc1 L_end" % (sW, cfg.get("tsw", 0)))
        if cfg.get("leak"):
            A, B = cfg["leak"].split(":")
            a("s_cmp_lg_u32 s2, %d\ns_cbranch_scc1 L_end" % cfg.get("leakwg", 100))
            a("v_readlane_b32 s64, v%d, %d\nv_readlane_b32 s65, v%d, %d\ns_nop 4\ns_sub_u32 s64, s65, s64\ns_mul_i32 s64, s64, %d\ns_min_u32 s64, s64, 200000" % (vTS, names.index(A), vTS, names.index(B), cfg.get("leakk", 8)))
            a("L_leak:\ns_memrealtime s[66:67]\ns_waitcnt lgkmcnt(0)\ns_sub_u32 s66, s66, s100\ns_cmp_lt_u32 s66, s64\ns_cbranch_scc1 L_leak")
        ws_srd(a, 12, WS_TS, 16384)
        a("s_lshl_b32 s75, s2, 6\nv_lshlrev_b32 v1, 2, v0\ns_mov_b64 exec, 0xffff\nbuffer_store_dword v%d, v1, s[12:15], s75 offen" % vTS)
    if cfg.get("rc"): STAMPS[1:1 + len(RC)] = RC
    a("L_end:")
    a("s_endpgm")
    if ".p2align 12" in a.lines and cfg.get("oolf", 1):
        i = a.lines.index(".p2align 12"); a.lines[i:i] = ool.lines
    else: a.lines += ool.lines
    a("L_codeend:")
    return name, a

DOC = """;
; instruction placed by hand-written rules into the issue gaps between the 16x16x32 bf16 MFMAs).
;   phase 1  [gate | up | B_re | B_im] projection, tile 256 x 288, weights by LDS-DMA, xn straight into registers
"""

def inst_sizes(lines):
    import subprocess, tempfile, os, re
    d = tempfile.mkdtemp()
    und = sorted(set(re.findall(r"L_trB?\d+\b", "\n".join(lines))))
    open(d + "/a.s", "w").write('.amdgcn_target "amdgcn-amd-amdhsa--gfx950"\n' + "\n".join(l for l in lines if not l.startswith(".p2align 12")) + "\n" + "".join(u + ":\n" for u in und))
    subprocess.check_call(["clang", "-x", "assembler", "-target", "amdgcn-amd-amdhsa", "-mcpu=gfx950", "-c", d + "/a.s", "-o", d + "/a.o"])
    o = subprocess.check_output(["llvm-objdump", "-d", "--mcpu=gfx950", d + "/a.o"], text=True)
    sz = [4 * len(m.group(1).split()) for m in re.finditer(r"// [0-9A-F]+: ([0-9A-F ]+)", o)]
    n = sum(1 for l in lines if parse(l))
    assert n == len(sz), (n, len(sz))
    return sz

def add_stubs(lines, cfg):
    NL = 1; step = cfg.get("tr_step", 128)
    sz = iter(inst_sizes(lines)); size = [next(sz) if parse(l) else 0 for l in lines]
    i0 = lines.index("L_main:"); iend = lines.index("L_end:")
    out = lines[:i0 + 1]; off = 0; targets = [4096 * p + step * k for p in range(0, 40) for k in range(NL)]
    n = 0; pos = []
    def penalty(i):
        if not lines[i - 1].startswith("v_mfma"): return 0 if not any(l.startswith("v_mfma") for l in lines[max(0, i - 6):i + 6]) else 1
        j = i; c = ["S"]
        while not lines[j].startswith("v_mfma") and j - i < 8:
            try: c.append(opclass(lines[j]))
            except AssertionError: return 0
            j += 1
        t = gap_time(c)
        return 0 if (t is not None and t <= 16) else 1
    for i in range(i0 + 1, len(lines)):
        if i < iend and size[i] and off >= targets[n] and (penalty(i) == 0 or off + size[i] > targets[n] + 56):
            out.append("L_tr%d:" % n); out.append(("STUB", n)); off += 4; n += 1
        out.append(lines[i]); off += size[i]
    n1 = min(n, cfg.get("tr_n", 12))
    res = []
    for l in out:
        if isinstance(l, tuple):
            k = l[1]; nx = k + 4
            if k < n1: res.append("s_cbranch_execz %s" % ("L_tr%d" % nx if nx < n1 else "L_trret"))
            elif cfg.get("tr2", 1): res.append("s_cbranch_execz %s" % ("L_tr%d" % nx if nx < n else "L_trret2"))
            else: res.append("s_nop 0")
        elif "L_trB" in l:
            k = n1 + int(l[-1]); res.append(l.replace("L_trB" + l[-1], "L_tr%d" % k if k < n else "L_trret2"))
        else: res.append(l)
    if cfg.get("verbose"): print("pages", n)
    return res

def build(cfg):
    name, a = gen(cfg)
    hdr = open("cdna_kernels/%s.s.ref" % NAME).read().split("; Override launch")[0]
    out = hdr + "; @launch grid=(256,1,1) block=(256,1,1) lds=163840\n"
    out += DOC
    out += '.amdgcn_target "amdgcn-amd-amdhsa--gfx950"\n'
    import re as _re
    lines = pad_hazards([l for l in a.lines if l and not _re.fullmatch(r"s_mov_b32 (s\d+), \1", l)], cfg.get("verbose", 0) > 1)
    import re
    def shorten(l):
        m = re.fullmatch(r"s_mov_b32 (s\d+), (\d+|0x[0-9a-f]+)", l)
        if m and 64 < int(m.group(2), 0) < 32768: return "s_movk_i32 %s, %s" % m.groups()
        return l
    lines = [shorten(l) for l in lines if not re.fullmatch(r"s_mov_b32 (s\d+), \1", l)]
    if cfg.get("tramp", 1): lines = add_stubs(lines, cfg)
    if cfg.get("verbose"): print(gap_report(lines))
    if cfg.get("lsc"): lines = [l.replace("sc0 sc1", cfg["lsc"]) if l.startswith("buffer_load") else l for l in lines]
    if cfg.get("jit"):
        import random
        rnd = random.Random(cfg["jit"]); outl = []; n = 0; nm = 0
        at = set(rnd.sample(range(3712), 10)) | {0, 150, 2303, 2304}
        for l in lines:
            hit = False
            if l.startswith("v_mfma"):
                hit = nm in at; nm += 1
            if l.startswith(("P1_chk:", "P1b_chk:", "L_trret2:", "L_epi:")) or "agfill" in l: hit = True
            if hit:
                n += 1
                outl += ["s_cselect_b32 s101, 1, 0", "s_mul_i32 s100, s2, %d" % rnd.randrange(1, 1 << 12, 2), "s_add_u32 s100, s100, s62" if rnd.random() < 0.5 else "s_nop 0", "s_bfe_u32 s100, s100, 0x%x" % (0x40000 + rnd.randrange(0, 4)),
                         "s_cmp_lg_u32 s100, %d" % rnd.randrange(16), "s_cbranch_scc1 L_jit%d" % n] + ["s_sleep 127"] * rnd.randrange(1, 3) + ["L_jit%d:" % n, "s_cmp_eq_u32 s101, 1"]
            outl.append(l)
        lines = outl
    la = cfg.get("laux"); da = cfg.get("daux")
    if la: lines = [l + " " + la if (l.startswith("buffer_load_dwordx4 a[") and "sc1" not in l) else l for l in lines]
    if da: lines = [l.replace(" lds", " %s lds" % da) if l.endswith(" lds") else l for l in lines]
    out += "\n".join(lines) + "\n"
    if cfg.get("cyc"): out = out.replace("s_memrealtime", "s_memtime")
    b = Asm(); kernel_desc(b, name, 512, accum=256); out += b.text()
    return out

if __name__ == "__main__":
    cfg = {}
    for kv in sys.argv[2:]:
        k, v = kv.split("=")
        try: v = int(v)
        except ValueError:
            try: v = float(v)
            except ValueError: v = v.replace("+", " ")
        cfg[k] = v
    open(sys.argv[1], "w").write(build(cfg))
```

```python
import sys, math, struct
from asmlib import *

NAME = "parallel_sum__ssm_conv_s5__glu_gated_geglu__prompt"
KX, KLRE, KLIM, KBRE, KBIM, KCRE, KCIM, KLDT, KDSK, KBX, KWG, KWU, KWD, KOUT, KDBG, KWS = [8 * i for i in range(16)]
WS_XN = 0
WS_H = 0x400000
H_BLK = 176 * 4096
WS_SM = 0x1A00000
SM_AG = 0; SM_ST = 0x40000; SM_EP = 0x48000; SM_F1 = 0x50000; SM_F1B = 0x60000; SM_F3 = 0x70000; SM_F4 = 0xB0000; SM_SIZE = 0xF0000
WS_TS = 0x1B00000
WS_PART = 0x2000000
NSTAMPS = [16]
SPLIT_LAYOUT = True
XN_DIRECT = 0
STAMPS = []

def f2u(x): return struct.unpack("<I", struct.pack("<f", x))[0]
def fx(x): return "0x%08x" % f2u(x)
P = lambda r: "v[%d:%d]" % (r, r + 1)
Q = lambda r: "v[%d:%d]" % (r, r + 3)
LOG2E = 1.4426950408889634
K = lambda v: (lambda it: v)

def ws_srd(a, r, off, size):
    a("s_add_u32 s%d, s6, 0x%x\ns_addc_u32 s%d, s7, 0\ns_and_b32 s%d, s%d, 0xffff\ns_mov_b32 s%d, 0x%x\ns_mov_b32 s%d, 0x20000" % (r, off, r + 1, r + 1, r + 1, r + 2, size, r + 3))

def mfma16(d, A, B, zero=False):
    return "v_mfma_f32_16x16x32_bf16 %s, %s, %s, %s" % (R(d[0], d[1], 4), R(A[0], A[1], 4), R(B[0], B[1], 4), "0" if zero else R(d[0], d[1], 4))

def cmul_pk(a, dr, di, ar, ai, br, bi, t):
    a("v_pk_mul_f32 %s, %s, %s" % (P(t), P(ai), P(bi)))
    a("v_pk_fma_f32 %s, %s, %s, %s neg_lo:[0,0,1] neg_hi:[0,0,1]" % (P(t), P(ar), P(br), P(t)))
    a("v_pk_mul_f32 %s, %s, %s" % (P(t + 2), P(ar), P(bi)))
    a("v_pk_fma_f32 %s, %s, %s, %s" % (P(di), P(ai), P(br), P(t + 2)))
    a("v_mov_b32 v%d, v%d\nv_mov_b32 v%d, v%d" % (dr, t, dr + 1, t + 1))

def horner_pk(a, s, L, e, d):
    a("v_pk_fma_f32 %s, %s, %s, %s" % (P(d), P(L), P(s), P(e)))
    a("v_pk_fma_f32 %s, %s, %s, %s" % (P(d + 2), P(L), P(s + 2), P(e + 2)))
    a("v_pk_fma_f32 %s, %s, %s, %s neg_lo:[1,0,0] neg_hi:[1,0,0]" % (P(d), P(L + 2), P(s + 2), P(d)))
    a("v_pk_fma_f32 %s, %s, %s, %s" % (P(d + 2), P(L + 2), P(s), P(d + 2)))

def horner_sc(a, s, L, e):
    for T in range(2):
        a("v_fmac_f32 v%d, v%d, v%d" % (e + T, L + T, s + T)); a("v_fmac_f32 v%d, v%d, v%d" % (e + 2 + T, L + T, s + 2 + T))
    for T in range(2):
        a("v_fma_f32 v%d, -v%d, v%d, v%d" % (e + T, L + 2 + T, s + 2 + T, e + T)); a("v_fmac_f32 v%d, v%d, v%d" % (e + 2 + T, L + 2 + T, s + T))

def gelu_block(a, items, CC, T):
    for k, (g, u, o) in enumerate(items): a("v_pk_mul_f32 %s, %s, %s" % (P(T + 2 * k), P(g), P(g)))
    for k, (g, u, o) in enumerate(items): a("v_pk_fma_f32 %s, %s, %s, %s op_sel:[0,1,0] op_sel_hi:[1,1,0]" % (P(T + 2 * k), P(T + 2 * k), P(CC), P(CC)))
    for k, (g, u, o) in enumerate(items): a("v_pk_mul_f32 %s, %s, %s" % (P(T + 2 * k), P(T + 2 * k), P(g)))
    for k, (g, u, o) in enumerate(items):
        a("v_exp_f32 v%d, v%d" % (T + 2 * k, T + 2 * k)); a("v_exp_f32 v%d, v%d" % (T + 2 * k + 1, T + 2 * k + 1))
        a("v_pk_mul_f32 %s, %s, %s" % (P(u), P(g), P(u)))
    for k, (g, u, o) in enumerate(items): a("v_pk_add_f32 %s, %s, 1.0 op_sel_hi:[1,0]" % (P(T + 2 * k), P(T + 2 * k)))
    for k, (g, u, o) in enumerate(items):
        a("v_rcp_f32 v%d, v%d" % (T + 2 * k, T + 2 * k)); a("v_rcp_f32 v%d, v%d" % (T + 2 * k + 1, T + 2 * k + 1))
    for k, (g, u, o) in enumerate(items): a("v_pk_mul_f32 %s, %s, %s" % (P(u), P(u), P(T + 2 * k)))
    for k, (g, u, o) in enumerate(items): a("v_cvt_pk_bf16_f32 v%d, v%d, v%d" % (o, u, u + 1))

class Seq:
    def __init__(self): self.u = []
    def __call__(self, s):
        for l in s.split("\n"):
            l = l.strip()
            assert not l.startswith(("buffer_", "global_", "ds_")), ("uncounted memory op", l)
            self.u.append([[Op(l)], None])
    def atom(self, ops, early=None): self.u.append([[o if isinstance(o, Op) else Op(o) for o in ops], early])
    def vm(self, text, tag=None, needs=None, early=None):
        if needs: self.wait(needs, early=early); early = None
        self.u.append([[Op(text, "vm", K(tag) if tag is not None else None)], early])
    def lg(self, text, tag=None, needs=None):
        if needs: self.wait(needs)
        self.u.append([[Op(text, "lg", K(tag) if tag is not None else None)], None])
    def wait(self, needs, drain=None, early=None): self.u.append([[Op("", needs=K(needs) if needs else None, drain=drain)], early])
    def op(self, o, early=None): self.u.append([[o], early])
    def delay(self, n):
        self._d = n; i = len(self.u) - 1
        self.u.append([[Op("")], lambda res, n=n: res[-1] + n])
    def at(self, g): self.u.append([[Op("")], g])
    def done(self):
        o = [x for un, _ in self.u for x in un]; self.u = []; return o
    def units(self):
        u = self.u; self.u = []; return u

def order_mfma(groups):
    ch = [groups[2 * p][1] == groups[2 * p + 1][1] for p in range(len(groups) // 2)]
    out = []; up = True
    for p, c in enumerate(ch):
        if c:
            for m in (range(4) if up else range(3, -1, -1)): out += [(2 * p, m), (2 * p + 1, m)]
            up = not up
        else:
            for G in (2 * p, 2 * p + 1):
                out += [(G, m) for m in (range(4) if up else range(3, -1, -1))]; up = not up
    return out, (lambda G: G & ~1 if ch[G // 2] else G), (lambda G: G | 1 if (G >= 0 and ch[G // 2]) else G)

W_ST = 28672; U_OFF = 14336
B_BASE = 131072; B_ST = 8192
LN_LDS = 65536 + W_ST

def gen(cfg):
    name = NAME + "_kernel"
    a = Asm(); kernel_header(a, name)
    ool = Asm()
    TS = cfg.get("ts")
    names = ["start"] + cfg.get("stamps", "flag1 poll1 loop1 end1 p01 pub loop2 end2 poll4").split() + ["end"]
    STAMPS[:] = names; NSTAMPS[0] = len(names)
    vTS = 15; RC = []
    def stamp(s, nm):
        if TS and nm in names: s.atom(["s_memrealtime s[100:101]", "s_waitcnt lgkmcnt(0)", "v_writelane_b32 v%d, s100, %d" % (vTS, names.index(nm))])
    SC = cfg.get("sc", "sc0 sc1")
    HL = cfg.get("hl", "sc1")
    F4M = cfg.get("f4m", 1); F3M = cfg.get("f3m", 0); FBW = cfg.get("fbw", 0)
    FS = cfg.get("f1s", 128)
    prog = Prog(); s = Seq()
    sJ, sI, sW, sB, sQ, sTN, sTAG = 60, 61, 62, 63, 52, 53, 3
    sMW, sM3, sMB, sKW, sKB, sKX, sCNT = 54, 55, 56, 57, 58, 59, 81
    sPAs, sKPA, sKPB, sPBs = 76, 77, 78, 80
    def poll(s, nm, loadtext, dst, tagneed, mask=None, early=None):
        s.wait([tagneed], early=early)
        s.atom(["%s_chk:" % nm, "v_cmp_ne_u32 vcc, s%d, v%d" % (sTAG, dst), "s_and_b64 vcc, vcc, %s" % (mask or "exec"), "s_cbranch_scc1 %s_retry" % nm, "%s_ok:" % nm])
        ool("%s_retry:" % nm)
        if cfg.get("rc"): RC.append(nm); ool("v_readlane_b32 s100, v15, %d\ns_nop 3\ns_add_u32 s100, s100, 100\nv_writelane_b32 v15, s100, %d" % (len(RC), len(RC)))
        ool("%s_r2:\ns_cmp_eq_u32 s79, 0\ns_cbranch_scc1 %s_ok\ns_sub_u32 s79, s79, 1\ns_sleep %d\n%s\ns_waitcnt vmcnt(0)\ns_branch %s_chk" % (nm, nm, cfg.get("psl", 1), loadtext, nm))
    def flag(s, text, needs, early=None):
        s.wait(needs, early=early)
        s.atom(["s_mov_b64 exec, %d" % (15 if "x4" in text else 1), Op(text, "vm"), "s_mov_b64 exec, -1"])

    s("s_cmp_ge_u32 s2, 256\ns_cbranch_scc1 L_end")
    if cfg.get("gx"): s("s_xor_b32 s2, s2, %d" % cfg["gx"])
    if TS: s("s_memrealtime s[100:101]")
    CP = cfg.get("cpf", 1)
    s("s_load_dwordx2 s[4:5], s[0:1], %d" % KX)
    s("s_load_dwordx2 s[6:7], s[0:1], %d" % KWS)
    s("s_load_dwordx4 s[12:15], s[0:1], %d" % KWG)
    s("s_load_dwordx4 s[24:27], s[0:1], %d" % KBRE)
    s("s_load_dwordx4 s[96:99], s[0:1], %d" % KLRE)
    s("s_load_dwordx4 s[92:95], s[0:1], %d" % KLDT)
    s("s_load_dwordx4 s[84:87], s[0:1], %d" % KWD)
    s("s_load_dwordx4 s[88:91], s[0:1], %d" % KCRE)
    if CP:
        s("s_getpc_b64 s[82:83]")
        s.atom(["L_pc:"])
        s("s_lshr_b32 s64, s2, 3\ns_mul_i32 s64, s64, 28\nv_add_u32 v3, s64, v0\nv_cmp_gt_u32 vcc, 64, v0\nv_cndmask_b32 v2, v3, v0, vcc\nv_lshlrev_b32 v2, 7, v2")
        s("v_min_u32 v2, L_codeend-L_pc-4, v2\nv_mov_b32 v3, 0\nv_lshl_add_u64 v[2:3], v[2:3], 0, s[82:83]")
        s("v_cmp_gt_u32 vcc, 92, v0\ns_and_saveexec_b64 s[66:67], vcc\ns_cbranch_execz L_nocp")
        s.atom([Op("global_load_dword a246, v[2:3], off")])
        s.atom(["L_nocp:", "s_mov_b64 exec, -1"])
    s("v_lshrrev_b32 v1, 6, v0\nv_and_b32 v0, 63, v0")
    s("v_readfirstlane_b32 s%d, v1" % sW)
    s("v_lshlrev_b32 v1, 4, v0")
    s("s_mov_b32 s79, 0x200000")
    s("s_bfe_u32 s%d, s2, 0x20001" % sQ)
    s("s_and_b32 s64, s2, 1\ns_lshl_b32 s64, s64, 2\ns_lshr_b32 s%d, s2, 6\ns_add_u32 s%d, s%d, s64" % (sI, sI, sI))
    s("s_bfe_u32 s%d, s2, 0x30003" % sTN)
    s("s_lshl_b32 s%d, s%d, 3\ns_add_u32 s%d, s%d, s%d" % (sJ, sQ, sJ, sJ, sTN))
    s("s_lshl_b32 s%d, s%d, 2\ns_add_u32 s%d, s%d, s%d" % (sB, sI, sB, sB, sW))
    s("s_and_b32 s64, s2, 1\ns_lshl_b32 s64, s64, 1\ns_lshr_b32 s65, s%d, 1\ns_add_u32 s64, s64, s65\ns_lshl_b32 s64, s64, 4" % sW)
    s("s_lshl_b32 s65, s%d, 1\ns_add_u32 s64, s64, s65" % sQ)
    s("s_lshr_b32 s66, s2, 3\ns_lshl_b32 s65, s66, 6\ns_add_u32 s64, s64, s65")
    s("s_lshl_b32 s67, s64, 11\ns_and_b32 s68, s%d, 1\ns_lshl_b32 s65, s68, 8\ns_add_u32 s67, s67, s65" % sW)
    LQ = cfg.get("lq", 1)
    if LQ: s("v_and_b32 v48, 15, v0\nv_bfe_u32 v56, v0, 1, 1\nv_and_b32 v57, 1, v0\nv_lshl_add_u32 v56, v57, 3, v56\nv_lshrrev_b32 v57, 2, v0\nv_lshlrev_b32 v40, 11, v56\nv_lshl_add_u32 v40, v57, 4, v40")
    else: s("v_and_b32 v48, 15, v0\nv_lshrrev_b32 v56, 5, v0\nv_bfe_u32 v57, v0, 4, 1\nv_lshl_add_u32 v56, v57, 3, v56\nv_lshlrev_b32 v40, 11, v56\nv_lshl_add_u32 v40, v48, 4, v40")
    s("s_mov_b32 s10, %d\ns_mov_b32 s11, 0x20000" % (2048 * 2048))
    s("s_waitcnt lgkmcnt(0)")
    if TS: s("v_writelane_b32 v%d, s100, 0" % vTS)
    if cfg.get("rc"): s("v_mov_b32 v15, 0")
    stamp(s, "karg")
    s("s_mov_b32 s8, s4\ns_and_b32 s9, s5, 0xffff")
    for q in range(4): s.vm("buffer_load_dwordx4 %s, v40, s[8:11], s67 offen offset:%d" % (Q(64 + 4 * q), 512 * q), ("x", q))
    s("s_add_u32 s70, s6, 0x%x\ns_addc_u32 s71, s7, 0" % (WS_SM + SM_EP))
    s("s_load_dword s%d, s[70:71], 0" % sTAG)
    srd(s, 16, 14, 15, 1024 * 7168); srd(s, 12, 12, 13, 1024 * 7168)
    srd(s, 28, 26, 27, 1024 * 2048); srd(s, 24, 24, 25, 1024 * 2048)
    s("s_cmp_ge_u32 s%d, 2" % sW)
    s("s_cselect_b32 s20, s16, s12\ns_cselect_b32 s21, s17, s13\ns_mov_b32 s22, %d\ns_mov_b32 s23, 0x20000" % (1024 * 7168))
    ws_srd(s, 36, WS_SM, SM_SIZE)
    s("v_lshrrev_b32 v49, 4, v0")
    WGF = 1; vP1 = 63
    s("v_and_b32 v60, 31, v0\nv_lshlrev_b32 v60, 2, v60\ns_lshl_b32 s81, s%d, 7\ns_add_u32 s81, s81, 0x%x" % (sB, SM_F1B))
    s("v_and_b32 v63, 7, v0\nv_lshlrev_b32 v63, 6, v63\ns_lshl_b32 s75, s%d, 11\ns_lshl_b32 s65, s%d, 9\ns_add_u32 s75, s75, s65\ns_add_u32 s75, s75, 0x%x" % (sB, sQ, SM_F1))
    if FBW: s("s_add_u32 s81, s75, 0x%x" % (SM_F1B - SM_F1))
    FT = cfg.get("ftouch", 2)
    if FT & 4: s.vm("buffer_load_dword a246, v63, s[36:39], s75 offen %s" % SC)
    if FT & 1: s.vm("buffer_load_dword a246, v60, s[36:39], s81 offen %s" % SC)
    s("v_mov_b32 v41, -1\nv_lshlrev_b32 v42, 2, v0\ns_xor_b32 s69, s2, 0xf8\ns_lshl_b32 s69, s69, 10\ns_lshl_b32 s65, s%d, 8\ns_add_u32 s69, s69, s65" % sW)
    s.vm("buffer_store_dword v41, v42, s[36:39], s69 offen %s" % SC, "agfill")
    vWA, vBA0, vBA1, vWA2, vW0, vW3, vB, vJ, vPA, vPB = 2, 3, 4, 5, 6, 9, 10, 12, 13, 14
    s("s_lshl_b32 s70, s66, 1\ns_and_b32 s65, s2, 1\ns_add_u32 s70, s70, s65")
    s("s_mul_i32 s69, s70, 7168\ns_mul_i32 s65, s%d, 1792\ns_add_u32 s69, s69, s65\nv_and_b32 v40, 31, v0\nv_min_u32 v40, 13, v40\nv_lshl_add_u32 v44, v40, 7, s69" % sQ)
    s("v_and_b32 v45, 3, v0\ns_lshl_b32 s69, s%d, 8\ns_lshl_b32 s65, s70, 2\ns_add_u32 s69, s69, s65\nv_add_u32 v45, s69, v45\nv_lshlrev_b32 v45, 11, v45" % sQ)
    if cfg.get("pfd"):
        n_ = cfg["pfd"]
        s("s_and_b32 s65, s2, 1\ns_mul_i32 s69, s65, %d\ns_add_u32 s69, s69, 7168\ns_mul_i32 s65, s65, %d\ns_add_u32 s65, s65, 8192\nv_cmp_gt_u32 vcc, 32, v0" % (-2 * 7168, -2 * 8192))
        s("v_mov_b32 v40, s69\nv_mov_b32 v43, %d\nv_cndmask_b32 v40, v40, v43, vcc\nv_add_u32 v44, v44, v40\nv_mov_b32 v40, s65\nv_mov_b32 v43, %d\nv_cndmask_b32 v40, v40, v43, vcc\nv_add_u32 v45, v45, v40" % (n_ * 64 * 7168, n_ * 128))
    s("s_mov_b32 s69, %d\ns_cmp_ge_u32 s%d, 2\ns_cselect_b64 vcc, -1, 0\nv_cndmask_b32 v%d, v44, v45, vcc\ns_cselect_b32 s%d, 128, s69" % (64 * 7168, sW, vPA, sPAs))
    s("s_cselect_b32 s40, s24, s12\ns_cselect_b32 s41, s25, s13\ns_cselect_b32 s69, s28, s16\ns_cselect_b32 s65, s29, s17\ns_cselect_b32 s42, s26, s14")
    s("s_bitcmp1_b32 s%d, 0\ns_cselect_b32 s40, s69, s40\ns_cselect_b32 s41, s65, s41\ns_mov_b32 s43, 0x20000\ns_mov_b32 s%d, 0" % (sW, sKPA))
    def pfa(s):
        s.vm(("buffer_load_dword a246, v%d, s[40:43], s%d offen %s" % (vPA, sKPA, cfg.get("pax", ""))).strip()); s("s_add_u32 s%d, s%d, s%d" % (sKPA, sKPA, sPAs))
    def pfb(s):
        s.vm(("buffer_load_dword a246, v%d, s[44:47], s%d offen %s" % (vPB, sKPB, cfg.get("pbx", ""))).strip()); s("s_add_u32 s%d, s%d, s%d" % (sKPB, sKPB, sPBs))
    ND = cfg.get("dup0", 0)
    if ND:
        s("s_and_b32 s65, s2, 1\ns_lshl_b32 s65, s65, 1\ns_sub_u32 s65, 1, s65\ns_cmp_ge_u32 s%d, 2\ns_mov_b32 s69, 7168\ns_cselect_b32 s69, 8192, s69\ns_mul_i32 s69, s69, s65" % sW)
        s("v_lshrrev_b32 v43, 5, v0\nv_mul_lo_u32 v43, v43, s69\nv_add_u32 v%d, v%d, v43" % (vPA, vPA))
        for _ in range(ND): pfa(s)
        s("v_sub_u32 v%d, v%d, v43" % (vPA, vPA))
    if cfg.get("pfd"): s("s_mov_b32 exec_lo, 0")
    for _ in range(cfg.get("pf_t0", 3) - ND): pfa(s)
    if cfg.get("pfd"): s("s_mov_b64 exec, -1\ns_mul_i32 s%d, s%d, %d" % (sKPA, sPAs, cfg.get("pf_t0", 3) - cfg["pfd"]))
    AS = cfg.get("asym", 0)
    if AS & 1:
        s("s_and_b32 s65, s2, 1\ns_lshl_b32 s65, s65, 1\ns_sub_u32 s65, 1, s65\ns_cmp_ge_u32 s%d, 2\ns_mov_b32 s69, 7168\ns_cselect_b32 s69, 8192, s69\ns_mul_i32 s69, s69, s65" % sW)
        s("v_lshrrev_b32 v43, 5, v0\nv_mul_lo_u32 v43, v43, s69\nv_add_u32 v%d, v%d, v43" % (vPA, vPA))
        s("s_getreg_b32 s65, hwreg(HW_REG_XCC_ID, 0, 1)\ns_cmp_eq_u32 s65, %d\ns_cselect_b32 s%d, 0x40000000, s%d" % (0 if AS & 4 else 1, sKPA, sKPA))
    s("s_and_b32 s71, s%d, 1\ns_lshl_b32 s71, s71, 1\ns_mul_i32 s72, s%d, 224\ns_and_b32 s73, s%d, 1\ns_add_u32 s73, s73, 12" % (sJ, sJ, sW))
    for k in range(4):
        if k < 3: s("s_add_u32 s69, s%d, %d\ns_lshl_b32 s69, s69, 6" % (sW, 4 * k))
        else: s("s_lshl_b32 s69, s73, 6")
        s("v_add_u32 v40, s69, v0\nv_mul_u32_u24 v44, 4682, v40\nv_lshrrev_b32 v44, 16, v44\nv_mul_u32_u24 v45, 14, v44\nv_sub_u32 v45, v40, v45")
        s("v_add_u32 v45, s71, v45\nv_subrev_u32 v43, 14, v45\nv_min_u32 v45, v45, v43")
        s("v_lshrrev_b32 v43, 1, v44\nv_xor_b32 v43, v43, v44\nv_and_b32 v43, 4, v43\nv_mul_u32_u24 v43, 3, v43\nv_xor_b32 v44, v44, v43")
        s("v_mul_u32_u24 v44, 7168, v44\nv_lshl_add_u32 v44, v45, 4, v44\nv_add_u32 v%d, s72, v44" % (vW0 + k))
    s("v_lshrrev_b32 v50, 3, v0\ns_lshl_b32 s69, s%d, 3\nv_add_u32 v40, s69, v50\nv_bfe_u32 v44, v40, 1, 3\nv_and_b32 v51, 7, v0\nv_xor_b32 v44, v44, v51" % sW)
    s("v_lshlrev_b32 v47, 11, v40\nv_lshl_add_u32 v47, v44, 4, v47")
    s("s_lshl_b32 s69, s%d, 16\nv_add_u32 v%d, s69, v47" % (sJ, vB))
    s("s_lshl_b32 s%d, s%d, 10\ns_lshl_b32 s%d, s73, 10" % (sMW, sW, sM3))
    s("s_cmp_ge_u32 s%d, 2\ns_cselect_b32 s69, %d, 0\ns_add_u32 s%d, s%d, s69\ns_add_u32 s%d, s%d, %d" % (sW, U_OFF, sM3, sM3, sMB, sMW, B_BASE))
    s("s_lshl_b32 s65, s%d, 9\ns_add_u32 s65, s65, 57344\nv_lshl_add_u32 v52, v0, 3, s65\nv_xor_b32 v54, 512, v52" % sW)
    if LQ: s("v_lshlrev_b32 v55, 12, v49\nv_lshrrev_b32 v44, 2, v48\nv_lshl_add_u32 v55, v44, 8, v55\nv_and_b32 v44, 48, v1\nv_add_u32 v55, v55, v44")
    else: s("v_lshrrev_b32 v55, 2, v48\nv_lshlrev_b32 v55, 12, v55\nv_and_b32 v44, 3, v0\nv_lshl_add_u32 v55, v44, 8, v55\nv_lshl_add_u32 v55, v49, 4, v55")
    s("s_lshl_b32 s70, s66, 17\ns_lshl_b32 s67, s%d, 10\ns_add_u32 s70, s70, s67\ns_and_b32 s67, s2, 1\ns_lshl_b32 s67, s67, 7\ns_add_u32 s70, s70, s67" % sQ)
    s("s_lshr_b32 s67, s%d, 1\ns_lshl_b32 s67, s67, 6\ns_add_u32 s70, s70, s67\ns_lshl_b32 s67, s68, 14\ns_add_u32 s70, s70, s67" % sW)
    s("s_add_u32 s71, s70, 32768\ns_add_u32 s72, s70, 65536\ns_add_u32 s73, s70, 98304")
    s("s_lshl_b32 s74, s2, 7\ns_lshr_b32 s67, s%d, 1\ns_lshl_b32 s67, s67, 6\ns_add_u32 s74, s74, s67\ns_add_u32 s74, s74, 0x%x" % (sW, SM_ST))
    ws_srd(s, 48, WS_XN, 0x400000)
    dma_items = [(vW0, 12, sKW, sMW, 0), (vW0 + 1, 12, sKW, sMW, 4096), (vW0 + 2, 12, sKW, sMW, 8192), (vW3, 20, sKW, sM3, 0),
                 (vW0, 16, sKW, sMW, U_OFF), (vW0 + 1, 16, sKW, sMW, U_OFF + 4096), (vW0 + 2, 16, sKW, sMW, U_OFF + 8192),
                 (vB, 24, sKB, sMB, 0), (vB, 28, sKB, sMB, 4096)]
    def dma1(s, st, k, early=None):
        v, sr, so, mb, off = dma_items[k]
        isb = mb == sMB
        base = ((st >> 1) & 1) * (16384 if isb else 65536) + (st & 1) * (B_ST if isb else W_ST)
        if k == 0: s("s_mov_b32 s%d, %d" % (sKW, st * 64 * 7168))
        if k == 7: s("s_mov_b32 s%d, %d" % (sKB, st * 128))
        s("s_add_u32 m0, s%d, %d" % (mb, off + base))
        s.op(Op("buffer_load_dwordx4 v%d, s[%d:%d], s%d offen lds" % (v, sr, sr + 3, so), "vm", K(("D", st, k))), early)
    CH1 = cfg.get("ch1", 1)
    xalloc = {}; xprev = {}; fifo = [(("a", r), None) for r in (96, 112, 128, 144, 192)]
    for u in range(32):
        if u == 26: xalloc[u] = ("v", 48); xprev[u] = None; continue
        xalloc[u], xprev[u] = fifo.pop(0); fifo.append((xalloc[u], u))
    aX, aW, NWB = 96, 208, 8
    def xload(s, u, m, early=None):
        if m == 0: s("s_mov_b32 s%d, %d" % (sKX, u * 4096))
        s.op(Op("buffer_load_dwordx4 %s, v%d, s[8:11], s%d offen offset:%d %s" % (R(xalloc[u][0], xalloc[u][1] + 4 * m, 4), 1, sKX, 1024 * m, HL), "vm", K(("X", u, m))), early)
    def pro_stage(st):
        for k in range(9): dma1(s, st, k)
    ND0P = cfg.get("d_t0", 0)
    for k in range(ND0P): dma1(s, 0, k)
    EP_LDS = 131072; EPW = 8192
    PK = dict(C=252, CA=253, TOK=254, COL=255, D=240, TA=242, TRW=243, TRR=244, AG=245)
    s("v_lshrrev_b32 v40, 1, v48\nv_xor_b32 v40, v40, v49\nv_lshlrev_b32 v40, 4, v40\nv_lshl_add_u32 v40, v48, 7, v40")
    s("v_add_u32 v%d, %d, v40\nv_xor_b32 v%d, 64, v%d" % (vBA0, B_BASE, vBA1, vBA0))
    s("v_lshrrev_b32 v40, 1, v49\nv_lshlrev_b32 v40, 4, v40\nv_and_b32 v41, 1, v49\nv_lshlrev_b32 v41, 2, v41\nv_lshrrev_b32 v50, 2, v48\nv_add3_u32 v11, v40, v41, v50")
    s("v_mul_u32_u24 v40, 224, v11\nv_and_b32 v51, 3, v0\nv_lshl_add_u32 v%d, v51, 3, v40\nv_add_u32 v%d, 0x10000, v%d" % (vWA, vWA2, vWA))
    s("s_lshl_b32 s65, s%d, 17\ns_add_u32 s8, s6, s65\ns_addc_u32 s9, s7, 0\ns_and_b32 s9, s9, 0xffff\ns_mov_b32 s10, 0x20000" % sB)
    s("s_lshl_b32 s83, s2, 4\ns_lshl_b32 s65, s%d, 2\ns_add_u32 s83, s83, s65" % sW)
    if WGF: s("s_and_b32 s82, s2, 7\ns_lshl_b32 s82, s82, 6\ns_lshl_b32 s65, s66, 11\ns_add_u32 s82, s82, s65\ns_lshl_b32 s65, s%d, 9\ns_add_u32 s82, s82, s65\ns_add_u32 s82, s82, 0x%x" % (sW, SM_F1))
    else: s("s_add_u32 s82, s83, 0x%x" % SM_F1)
    s(("s_add_u32 s83, s82, 0x%x" % (SM_F1B - SM_F1)) if FBW else ("s_add_u32 s83, s83, 0x%x" % SM_F1B))
    def tramp():
        s("s_mov_b64 exec, 0")
        for w in range(1, 4): s("s_cmp_eq_u32 s%d, %d\ns_cbranch_scc1 L_tr%d" % (sW, w, w))
        s("s_branch L_tr0")
        s.atom(["L_trret:"])
        s("s_mov_b64 exec, -1")
    TRP = cfg.get("tr_at", 2) if cfg.get("tramp", 1) else -1
    if TRP == 0: tramp()
    stamp(s, "prex")
    F = 80; D = 112; T0 = 144; ST = 28
    ln = Seq()
    def unpack(q):
        for i in range(4 * q, 4 * q + 4): ln("v_lshlrev_b32 v%d, 16, v%d\nv_and_b32 v%d, 0xffff0000, v%d" % (F + 2 * i, 64 + i, F + 2 * i + 1, 64 + i))
    def pack(q, dst=64):
        for i in range(4 * q, 4 * q + 4): ln("v_cvt_pk_bf16_f32 v%d, v%d, v%d" % (dst + i, F + 2 * i, F + 2 * i + 1))
    def hsum(dst):
        ln("v_pk_add_f32 %s, %s, %s\nv_add_f32 v%d, v%d, v%d" % (P(T0), P(T0), P(T0 + 2), T0, T0, T0 + 1))
        for sh in ((4, 8) if LQ else (1, 2, 4, 8)): ln("v_add_f32_dpp v%d, v%d, v%d row_ror:%d row_mask:0xf bank_mask:0xf" % (T0, T0, T0, sh))
        if LQ:
            for w_ in (16, 32): ln("v_mov_b32 v%d, v%d\nv_permlane%d_swap_b32 v%d, v%d\nv_add_f32 v%d, v%d, v%d" % (T0 + 1, T0, w_, T0, T0 + 1, T0, T0, T0 + 1))
        ln("v_mul_f32 v%d, %s, v%d" % (dst, fx(1.0 / 512), T0))
    for q in range(4):
        ln.wait([("x", q)])
        if q == 3:
            stamp(ln, "xin")
            for _ in range(cfg.get("pf_t1", 0)): pfa(ln)
            i_d0 = len(ln.u)
        unpack(q)
        if q == 0: ln("v_pk_add_f32 %s, %s, %s\nv_pk_add_f32 %s, %s, %s" % (P(T0), P(F), P(F + 2), P(T0 + 2), P(F + 4), P(F + 6)))
        else:
            for i in range(4): ln("v_pk_add_f32 %s, %s, %s" % (P(T0 + 2 * (i % 2)), P(T0 + 2 * (i % 2)), P(F + 8 * q + 2 * i)))
    hsum(ST)
    for i in range(16): ln("v_pk_add_f32 %s, %s, %s op_sel_hi:[1,0] neg_lo:[0,1] neg_hi:[0,1]" % (P(D + 2 * i), P(F + 2 * i), P(ST)))
    for i in range(16):
        if i < 2: ln("v_pk_mul_f32 %s, %s, %s" % (P(T0 + 2 * i), P(D + 2 * i), P(D + 2 * i)))
        else: ln("v_pk_fma_f32 %s, %s, %s, %s" % (P(T0 + 2 * (i % 2)), P(D + 2 * i), P(D + 2 * i), P(T0 + 2 * (i % 2))))
    hsum(ST + 1)
    ln.lg("ds_write_b64 v52, %s" % P(ST))
    ln.wait(None, drain=["lg"])
    ln("s_barrier")
    ln.lg("ds_read_b64 %s, v54" % P(T0), "oth")
    ln("s_mul_i32 s%d, s%d, 0x9E3779B1\ns_add_u32 s%d, s%d, 0x7F4A7C15\nv_mov_b32 v56, s%d" % (sTAG, sTAG, sTAG, sTAG, sTAG))
    ln.wait(["oth"])
    ln("v_sub_f32 v%d, v%d, v%d\nv_pk_add_f32 %s, %s, %s\nv_mul_f32 v%d, 0.5, v%d\nv_pk_mul_f32 %s, %s, 0.5 op_sel_hi:[1,0]\nv_fmac_f32 v%d, v%d, v%d" % (T0 + 2, ST, T0, P(ST), P(ST), P(T0), T0 + 2, T0 + 2, P(ST), P(ST), ST + 1, T0 + 2, T0 + 2))
    ln("v_cvt_pk_bf16_f32 v%d, v%d, v%d\nv_lshlrev_b32 v%d, 16, v%d\nv_and_b32 v%d, 0xffff0000, v%d" % (T0, ST, ST + 1, ST, T0, ST + 1, T0))
    ln(("v_add_f32 V, %s, V\nv_cvt_pk_bf16_f32 V, V, V\nv_and_b32 V, 0xffff0000, V\nv_sqrt_f32 V, V" % fx(1e-5)).replace("V", "v%d" % (ST + 1)))
    def sub(q):
        for i in range(4 * q, 4 * q + 4): ln("v_pk_add_f32 %s, %s, %s op_sel_hi:[1,0] neg_lo:[0,1] neg_hi:[0,1]" % (P(F + 2 * i), P(F + 2 * i), P(ST)))
    def fin(q):
        pack(q); unpack(q)
        for i in range(4 * q, 4 * q + 4): ln("v_pk_mul_f32 %s, %s, %s op_sel:[0,1] op_sel_hi:[1,1]" % (P(F + 2 * i), P(F + 2 * i), P(ST)))
        pack(q, 12 if q else 64)
    ln("v_cvt_pk_bf16_f32 V, V, V\nv_and_b32 V, 0xffff0000, V\nv_rcp_f32 V, V".replace("V", "v%d" % (ST + 1)))
    sub(0); fin(0)
    lu = ln.units()
    nD_0 = cfg.get("d_t1", 1 if ND0P else 0)
    if nD_0:
        dq = Seq(); step = cfg.get("d0_step", 10); pos = i_d0 + cfg.get("d0_off", 6)
        for k in range(ND0P, 9):
            dma1(dq, 0, k); un = dq.units()
            lu[pos:pos] = un[:-1]; pos += len(un); lu[pos:pos] = un[-1:]; pos += step
    s.u += lu
    xst = lambda q: "buffer_store_dwordx4 %s, v55, s[48:51], s%d offen %s" % (Q(12 + 4 * q if q else 64), 70 + q, SC)
    stst = lambda: (["s_mov_b64 exec, 15"] if LQ else ["s_mov_b32 exec_lo, 0x10001", "s_mov_b32 exec_hi, 0x10001"]) + [Op("buffer_store_dwordx4 %s, v%d, s[36:39], s74 offen %s" % (Q(ST), LQ, SC), "vm"), "s_mov_b64 exec, -1"]
    s.vm(xst(0), ("xn", 0))
    stamp(s, "xnst")
    for q in range(1, 4):
        sub(q); fin(q); s.u += ln.units()
    XBP = cfg.get("xbp", 0)
    TWO = 1
    nD_b = cfg.get("d_t3", 1)
    nD_c = cfg.get("d_t4", 2)
    nD_d = cfg.get("d_t5", 2)
    if TRP == 1: tramp()
    if WGF: s.wait([("xn", 0), "agfill"]); s("s_barrier")
    flag(s, "buffer_store_dwordx4 v[56:59], v1, s[36:39], s82 offen %s" % SC, [("xn", 0), "agfill"])
    stamp(s, "flag1")
    if TRP == 4: tramp()
    if cfg.get("bar_f"): s("s_barrier")
    stamp(s, "barf")
    def xb_now():
        s.atom(stst())
        for q in range(1, 4): s.vm(xst(q), ("xn", q))
    if XBP == 1: xb_now()
    for st in range(nD_0, nD_b): pro_stage(st)
    stamp(s, "d0")
    if TRP == 2: tramp()
    stamp(s, "trd")
    f1load = "buffer_load_dword v61, v%d, s[36:39], s75 offen %s" % (vP1, SC)
    s.vm(f1load, "f1")
    if XBP == 2: xb_now()
    for st in range(max(nD_0, nD_b), nD_c): pro_stage(st)
    nD_b = max(nD_0, nD_b, nD_c)
    if TRP == 3: tramp()
    stamp(s, "prepoll")
    if TRP >= 0:
        s("s_branch L_main"); s.atom([".p2align 12"]); s.atom(["L_main:"])
    poll(s, "P1", f1load, 61, "f1")
    stamp(s, "poll1")
    NXP = cfg.get("nxpre", 1 if cfg.get("ch1_first", 1) else 2)
    for u in range(NXP):
        for m in range(4): xload(s, u, m)
    if TRP == 5: tramp()
    if XBP == 3: xb_now()
    for _ in range(cfg.get("pf_t5", 0)): pfa(s)
    for st in range(nD_b, nD_d): pro_stage(st)
    nD_b = max(nD_b, nD_d)
    npfa = cfg.get("pf_t0", 3) + cfg.get("pf_t1", 0) + cfg.get("pf_t5", 0)
    NPB = cfg.get("npb", 4)
    tiles = []
    for q in range(7): tiles += [("G", q), ("U", q)]
    tiles += [("R", 0), ("I", 0), ("R", 1), ("I", 1)]
    def acc(t, m):
        k, q = t
        if k == "R": return ("v", 64 + 16 * q + 4 * m)
        if k == "I": return ("v", 96 + 16 * q + 4 * m)
        o = 32 * q + (16 if k == "U" else 0) + 4 * m
        return ("v", 128 + o) if q < 4 else ("a", o - 128)
    L0 = cfg.get("l1_lead", 4)
    KT = cfg.get("kt", 1)
    def stage_groups(st, tl):
        if CH1 and st >= cfg.get("ch1_first", 1): return [(2 * st + kk, ti) for ti in tl for kk in range(2)]
        return [(2 * st + kk, ti) for kk in range(2) for ti in tl]
    groups = []
    for st in range(14 if KT else 16): groups += stage_groups(st, range(18))
    if KT:
        for tl in (range(4), range(4, 18)):
            for st in (14, 15): groups += stage_groups(st, tl)
    NG = len(groups)
    mo, head, tail = order_mfma(groups)
    xfirst = {}; xlast = {}
    for G, (u, ti) in enumerate(groups): xfirst.setdefault(u, head(G)); xlast[u] = tail(G)
    parts = lambda G: [0, 1] if groups[G][1] < 14 else [None]
    def read1(G, part):
        u, ti = groups[G]; st, kk = divmod(u, 2); t = tiles[ti]; f = G % NWB
        if t[0] in "GU":
            off = (st & 1) * W_ST + (U_OFF if t[0] == "U" else 0) + kk * 7168 + part * 1792 + t[1] * 32
            return Op("ds_read_b64_tr_b16 %s, v%d offset:%d" % (R("a", aW + 4 * f + 2 * part, 2), (vWA, vWA2)[(st >> 1) & 1], off), "lg", K(("F", G, part)))
        off = (st & 3) * B_ST + (4096 if t[0] == "I" else 0) + t[1] * 2048
        return Op("ds_read_b128 %s, v%d offset:%d" % (R("a", aW + 4 * f, 4), vBA1 if kk else vBA0, off), "lg", K(("F", G, part)))
    rgap = {}
    for G in range(NG):
        f = G % 36
        g = G if (f < 33 or (KT and G >= 28 * 18)) else G - (1 if f < 35 else 2)
        rgap[G] = 4 * (g - L0) - 1
        assert rgap[G] >= 4 * tail(G - NWB) + 3
    gneed = lambda G: [("F", H, p) for H in range(G, tail(G) + 1) for p in parts(H)] + [("X", u, m) for u in range(32) if xfirst[u] == G for m in range(4)]
    s.wait([("D", 0, k) for k in range(9)])
    s("s_barrier")
    for G in range(NG):
        if rgap[G] < 0:
            for p in parts(G): s.op(read1(G, p))
    s.wait(gneed(0))
    stamp(s, "loop1")
    prog.add(s.done())
    mf = []
    for G, m in mo:
        u, ti = groups[G]; t = tiles[ti]
        xr = (xalloc[u][0], xalloc[u][1] + 4 * m); wr = ("a", aW + 4 * (G % NWB))
        mf.append(Op(mfma16(acc(t, m), wr, xr, u == 0) if t[0] in "GU" else mfma16(acc(t, m), xr, wr, u == 0)))
    sc = Sch(mf)
    for G in range(1, NG):
        w = Op("", needs=K(gneed(G)))
        w.keep = sum(len(parts(H)) for H in range(max(0, G - 2), min(NG, G + 10)) if rgap[H] == 4 * G - 1) == 2
        if w.keep or head(G) == G: sc.put(4 * G - 1, [w], 0)
    for G in range(NG):
        if rgap[G] >= 0: sc.put(rgap[G], [read1(G, p) for p in parts(G)], 1)
    bar = {}
    for st in range(15):
        bar[st] = rgap[xfirst[2 * st + 2]] - 1
        sc.put(bar[st], [Op("s_barrier", needs=K([("D", st + 1, k) for k in range(9)] + ([("xn", 3)] if (FBW and st == cfg.get("fb_bar", 1)) else [])), drain=["lg"] if st < 14 else None)], 0)
    items = []
    PFL = cfg.get("pfl", 9)
    pft = {}
    if cfg.get("pf1", 1):
        ev = cfg.get("pf_first", 70); st = npfa
        for k in range(npfa - cfg.get("pfd", 0), npfa): items.append((0, 2, ev - cfg.get("pfd_pre", 0), "a", k, 0))
        while st < 16:
            n = 0
            while st < 16 and (n < cfg.get("pf_max", 2) or (st == 15 and cfg.get("pf_l3", 1))) and (n == 0 or 144 * (st - 3 - PFL) < ev):
                e = max(int(144 * (st - 3 - PFL)), ev); pft[st] = e; items.append((0, 2, e, "a", st, 0)); st += 1; n += 1
            ev = e + cfg.get("pf_min", 288)
    for st in range(nD_b, 16):
        e = max(bar[st - 4] + 1 if st >= 4 else 0, pft.get(st, -1000) + cfg.get("pf_lat", 100))
        for k in range(9): items.append((bar[st - 1], 0, e, "d", st, k))
    for u in range(NXP, 32):
        e = 4 * xlast[xprev[u]] + 3 if xprev[u] is not None else 0
        for m in range(4): items.append((4 * xfirst[u] - 1, 1, max(e, 4 * xfirst[u] - (cfg.get("x_la", 230) if u != 8 else cfg.get("x_la8", 105))), "x", u, m))
    for k in range(1, 4 if not XBP else 0): items.append((0, 3, cfg.get("xb_first", 130) + cfg.get("xb_sp", 36) * (k - 1), "s", k, 0))
    items.append((0, 3, bar[cfg.get("fb_bar", 1)] + 1 if FBW else cfg.get("xb_first", 130) + cfg.get("xb_sp", 36) * 2 + cfg.get("xb_lat", 70), "f", 0, 0))
    items.append((0, 3, cfg.get("p1c_at", 430), "p", 0, 0))
    gC_ = sorted(set(pft.values()))[cfg.get("c_ev", 1)] if pft else 300
    items.append((0, 3, gC_, "c", 0, 0))
    gE_ = gC_ + cfg.get("e_off", 90)
    evs = sorted(set(pft.values())); i_e = {}
    EM = cfg.get("em", 0)
    for n in range(4):
        if EM: items.append((0, 4, evs[cfg.get("c_ev", 1) + cfg.get("e_ev", 0) + n], "e", n, 0))
        else: items.append((gE_ + 100, 3, gE_ + cfg.get("e_sp", 20) * n, "e", n, 0))
    f1cload = "buffer_load_dword v61, v%d, s[36:39], s81 offen %s" % (63 if FBW else 60, SC)
    if cfg.get("pf2", 1):
        for c in range(NPB): items.append((0, 2, cfg.get("pfb_first", 646) + int(c * cfg.get("pfb_sp", 288)), "b", c, 0))
    now = 0; pend = sorted(items); done = []; quiet = -1
    FM = cfg.get("fm", 1); WL = cfg.get("fm_wl", 14); fifo = []; comp = cfg.get("fm_c0", 30); fsl = []; lastk = ""; PFD = cfg.get("pfd", 0); PFX = cfg.get("pfx", 0)
    while pend:
        nxt = {}
        for x in pend:
            if x[3] not in nxt or x[4:] < nxt[x[3]][4:]: nxt[x[3]] = x
        av = sorted(x for x in nxt.values() if x[2] <= now)
        if FM:
            occ = sum(n for c, n in fifo if c > now)
            lines_of = lambda x: {"d": WL if x[5] < 7 else 8, "x": 8, "a": 9 * (1 + bool(PFD)) + 8 * PFX, "b": 88 // NPB, "c": 10, "e": 16}.get(x[3], 1)
            if av and av[0][3] in "dx" and len(av) > 1 and av[1][3] in "dx" and av[0][3] == lastk and av[0][0] - now > cfg.get("alt_slack", 110): av = av[1:]
            av = [x for x in av[:1] if occ + lines_of(x) <= cfg.get("fm_c", 66)]
        if not av: now += 1; continue
        x = av[0]; pend.remove(x); lastk = x[3]
        if FM:
            lat = cfg.get("fm_slow", 64) if x[3] in ("abce" if EM else "abc") else cfg.get("fm_fast", 36)
            comp = max(comp + 4.3, now + lat); fifo.append((comp, lines_of(x)))
            if x[3] in "dx": fsl.append((x[0] - comp, x[3], x[4], x[5]))
        fifo_now = now
        if x[3] == "d": dma1(s, x[4], x[5], int(now))
        elif x[3] == "x":
            if TWO and x[4:] == (8, 0): poll(s, "P1c", f1cload, 61, "f1c", early=int(now))
            xload(s, x[4], x[5], int(now))
        elif x[3] == "p": s.vm(f1cload, "f1c", early=int(now)); i_f1c = len(s.u) - 1
        elif x[3] == "a":
            s.at(int(now)); pfa(s); quiet = now + cfg.get("q_len", 64)
            if [y for y in pend if y[3] in "abc" and y[2] <= now]: now -= cfg.get("q_sp", 10) - 4
        elif x[3] == "c":
            s.at(int(now)); i_c0 = len(s.u) - 1
            for k, lo in enumerate((96, 98, 92)):
                s("s_mov_b32 s32, s%d\ns_and_b32 s33, s%d, 0xffff" % (lo, lo + 1))
                for T in range(2): s.vm("buffer_load_ushort v%d, v40, s[32:35], 0 offen offset:%d" % (16 + 2 * k + T, 32 * T), ("c", k, T))
            s("s_mov_b32 s32, s94\ns_and_b32 s33, s95, 0xffff")
            for u in range(2): s.vm("buffer_load_dwordx2 %s, v41, s[32:35], 0 offen offset:%d" % (R("a", 248 + 2 * u, 2), 32 * u), ("dk", u))
            if FT & 2:
                s.vm("buffer_load_dword a246, v42, s[36:39], 0 offen %s" % SC); now += 4
            i_c1 = len(s.u) - 1; now += 30
        elif x[3] == "s":
            if x[4] == 1: s.atom(stst(), int(now)); now += 4
            s.op(Op(xst(x[4]), "vm", K(("xn", x[4]))), int(now)); now += (4 - cfg.get("q_sp", 10)) if now < quiet else 10
        elif x[3] == "f":
            flag(s, "buffer_store_dword%s, v1, s[36:39], s83 offen %s" % ("x4 v[56:59]" if FBW else " v56", SC), [("xn", 3)], early=int(now)); i_fb = len(s.u) - 1
        elif x[3] == "e":
            s("s_mov_b32 s70, %d\ns_add_u32 m0, s71, %d" % (4096 * x[4], 1024 * x[4]))
            s.op(Op("buffer_load_dwordx4 v12, s[48:51], s70 offen lds", "vm", K(("E", x[4]))), int(now)); i_e[x[4]] = len(s.u) - 1; now += 4
        else: s.at(int(now)); pfb(s); quiet = now + cfg.get("q_len", 64)
        if x[3] in "dx": done.append((x, len(s.u) - 1))
        if x[3:] == ("x", 8, 0): i_p1c = len(s.u) - 1
        if x[3:] == ("x", 26, 0): i_x26 = len(s.u) - 1
        if FM: now = fifo_now + {"c": 36, "s": cfg.get("fm_st", 16) + 4 * (x[4] == 1)}.get(x[3], cfg.get("fm_sp", 4.5))
        else: now += cfg.get("q_sp", 10) if now < quiet else cfg.get("l1_sp", 5)
    res = sc.stream(s.units(), 0, 2)
    sl = sorted((x[0] - res[i], x[3], x[4], x[5]) for x, i in done)
    if cfg.get("verbose") and FM: print("model slacks", sorted(fsl)[:5])
    if cfg.get("verbose"): print("loop1 vm end", res[-1], "of", 4 * NG, "min slacks", sl[:3], "steady", min(z for z in sl if z[2] > 8))
    for nm in names:
        if TS and nm[0] == "f" and nm[1:].isdigit():
            st_ = int(nm[1:])
            sc.put(bar[st_] - 1, [Op("s_memrealtime s[100:101]")], 5)
            sc.put(bar[st_], [Op("v_writelane_b32 v%d, s100, %d" % (vTS, names.index(nm)))], 5)
    if cfg.get("verbose"): print("flag b", res[i_fb], "poll load", res[i_f1c], "check", res[i_p1c])
    s.at(res[i_fb] + 1)
    cL, cC, cL8, cL16, cL64, cL512 = 16, 20, 24, 28, 32, 36
    s("s_mov_b32 s34, 2048\ns_mov_b32 s35, 0x20000")
    s("s_lshl_b32 s69, s%d, 5\nv_add_u32 v40, s69, v48\nv_lshlrev_b32 v40, 1, v40" % sJ)
    s("s_lshl_b32 s68, s%d, 7\ns_lshl_b32 s66, s%d, 5\ns_add_u32 s68, s68, s66\nv_lshl_add_u32 v41, v49, 2, s68\nv_accvgpr_write_b32 a%d, v41\nv_lshlrev_b32 v41, 1, v41" % (sTN, sQ, PK["COL"]))
    srd(s, 48, 4, 5, 2048 * 2048)
    s("s_lshl_b32 s66, s%d, 2\ns_add_u32 s66, s66, s%d\ns_lshl_b32 s66, s66, %d\ns_add_u32 s66, s66, 0x%x\nv_and_b32 v42, %d, v0\nv_lshl_add_u32 v42, v42, 7, s66" % (sB, sQ, (7, 9, 11)[F3M], SM_F3, (0, 3, cfg.get("f3t", 0))[F3M]))
    s("s_lshl_b32 s66, s%d, 3\ns_add_u32 s66, s66, s%d\ns_lshl_b32 s66, s66, 2\ns_add_u32 s66, s66, s%d\ns_lshl_b32 s66, s66, %d\ns_lshl_b32 s67, s%d, %d\ns_add_u32 s66, s66, s67\ns_add_u32 s66, s66, 0x%x\nv_writelane_b32 v42, s66, 0\ns_add_u32 s66, s66, %d\nv_writelane_b32 v42, s66, 1" % (sI, sTN, sW, (7, 10, 10)[F4M], sQ, (4, 8, 8)[F4M], SM_F4, (0, 0, 128)[F4M]))
    s("s_lshl_b32 s68, s68, 1\ns_lshl_b32 s66, s%d, 17\ns_add_u32 s68, s68, s66\nv_bfe_u32 v12, v0, 2, 1\nv_lshlrev_b32 v12, 3, v12\nv_lshl_add_u32 v12, v49, 4, v12\nv_bfe_u32 v43, v0, 3, 1\nv_add_u32 v12, v12, v43\nv_lshl_add_u32 v12, v12, 11, s68\nv_lshl_add_u32 v12, v51, 4, v12" % sB)
    s("s_lshr_b32 s66, s%d, 1\ns_lshl_b32 s66, s66, 16\ns_and_b32 s71, s%d, 1\ns_lshl_b32 s71, s71, 12\ns_add_u32 s71, s71, s66\ns_add_u32 s71, s71, 57344" % (sW, sW))
    r0 = sc.stream(s.units(), 0, 3)
    assert r0[-1] < res[i_c0]
    s.at(res[i_c1] + 1)
    s("v_subrev_u32 v40, %d, v%d\nv_accvgpr_write_b32 a%d, v40" % (B_BASE, vBA0, PK["CA"]))
    s("s_mul_i32 s69, s%d, %d\ns_add_u32 s69, s69, %d" % (sW, EPW, EP_LDS + 2048))
    s("v_and_b32 v41, 1, v49\nv_xor_b32 v41, v41, v51\nv_lshlrev_b32 v40, 5, v11\nv_lshl_add_u32 v40, v41, 3, v40\nv_add_u32 v40, s69, v40\nv_accvgpr_write_b32 a%d, v40" % PK["TRR"])
    s("v_lshrrev_b32 v40, 1, v48\nv_xor_b32 v40, v40, v48\nv_and_b32 v40, 4, v40\nv_mul_u32_u24 v40, 3, v40\nv_xor_b32 v40, v40, v48\nv_lshrrev_b32 v41, 2, v40\nv_xor_b32 v41, v41, v49\nv_lshlrev_b32 v40, 5, v40\nv_lshl_add_u32 v40, v41, 3, v40\nv_add_u32 v40, s69, v40\nv_accvgpr_write_b32 a%d, v40" % PK["TRW"])
    s("v_lshrrev_b32 v40, 2, v0\nv_and_b32 v41, 7, v40\nv_lshlrev_b32 v41, 5, v41\nv_lshl_add_u32 v41, v40, 8, v41\nv_lshl_add_u32 v41, v51, 3, v41\nv_accvgpr_write_b32 a%d, v41" % PK["TA"])
    s("s_lshl_b32 s68, s%d, 2\nv_add_u32 v40, s68, v49\nv_and_b32 v41, 7, v40\nv_bfe_u32 v51, v0, 1, 3\nv_xor_b32 v41, v41, v51\ns_lshl_b32 s66, s%d, 1\nv_xor_b32 v41, s66, v41\nv_lshlrev_b32 v41, 5, v41" % (sW, sQ))
    s("v_and_b32 v51, 1, v0\nv_lshl_add_u32 v41, v51, 4, v41\ns_mul_i32 s67, s%d, 896\nv_add_u32 v40, s67, v40\nv_lshl_add_u32 v40, v40, 11, v41\ns_lshl_b32 s67, s%d, 8\nv_add_u32 v40, s67, v40\nv_accvgpr_write_b32 a%d, v40" % (sQ, sTN, PK["D"]))
    s("s_lshl_b32 s68, s%d, 18\ns_lshl_b32 s66, s%d, 9\ns_add_u32 s68, s68, s66\nv_add_u32 v40, s68, v47\nv_accvgpr_write_b32 a%d, v40" % (sTN, sQ, PK["C"]))
    s("v_lshlrev_b32 v40, 4, v50\nv_lshl_add_u32 v40, v51, 3, v40\nv_bfe_u32 v41, v48, 1, 1\ns_lshl_b32 s68, s%d, 6\nv_add3_u32 v40, v40, v41, s68\nv_accvgpr_write_b32 a%d, v40" % (sB, PK["TOK"]))
    s("s_sub_u32 s68, 32, s%d\ns_lshl_b32 s68, s68, 13\ns_lshl_b32 s66, s%d, 8\ns_add_u32 s68, s68, s66\nv_lshl_add_u32 v40, v48, 4, s68\nv_lshl_add_u32 v40, v49, 16, v40\nv_accvgpr_write_b32 a%d, v40" % (sB, sJ, PK["AG"]))
    f_ = 2 if AS & 2 else 1
    ld, lc = 112 // NPB * f_, 64 // NPB * f_
    s("s_lshr_b32 s67, s2, %d\ns_lshl_b32 s68, s67, 1\ns_and_b32 s66, s%d, 1\ns_add_u32 s68, s68, s66\ns_mul_i32 s68, s68, %d\ns_mul_i32 s66, s67, %d" % (f_ - 1, sW, ld * 128, lc * 128))
    ge2 = "s_cmp_ge_u32 s%d, 2" % sW
    s.atom([ge2, "s_cselect_b32 s68, s66, s68", "s_cselect_b32 s66, %d, %d" % (lc - 1, ld - 1)])
    s("v_min_u32 v40, s66, v0\nv_lshl_add_u32 v%d, v40, 7, s68" % vPB)
    s.atom(["s_bitcmp1_b32 s%d, 0" % sW, "s_cselect_b32 s68, s90, s88", "s_cselect_b32 s66, s91, s89"])
    s.atom([ge2, "s_cselect_b32 s44, s68, s84", "s_cselect_b32 s45, s66, s85"])
    s("s_mov_b32 s67, %d\ns_mov_b32 s68, %d" % (3584 * 2048, 512 * ld * 128 // f_))
    s.atom([ge2, "s_cselect_b32 s46, %d, s67" % (1024 * 2048), "s_cselect_b32 s%d, %d, s68" % (sPBs, 256 * lc * 128 // f_)])
    s("s_and_b32 s45, s45, 0xffff\ns_mov_b32 s47, 0x20000\ns_mov_b32 s%d, 0" % sKPB)
    if AS & 2: s.atom(["s_getreg_b32 s67, hwreg(HW_REG_XCC_ID, 0, 1)", "s_cmp_eq_u32 s67, %d" % (0 if AS & 4 else 1), "s_cselect_b32 s%d, 0x40000000, 0" % sKPB])
    i_pbs = len(s.u) - 1
    s.at(res[i_c1] + 90)
    s.wait([("c", 2, 1)])
    def two(f):
        for T in range(2): s(f(T))
    for k in range(6): s("v_lshlrev_b32 v%d, 16, v%d" % (40 + k, 16 + k))
    two(lambda T: "v_mul_f32 v%d, %s, v%d" % (44 + T, fx(LOG2E), 44 + T)); two(lambda T: "v_exp_f32 v%d, v%d" % (44 + T, 44 + T))
    s("v_cvt_pk_bf16_f32 v45, v44, v45\nv_lshlrev_b32 v44, 16, v45\nv_and_b32 v45, 0xffff0000, v45")
    two(lambda T: "v_mul_f32 v%d, v%d, v%d\nv_mul_f32 v%d, v%d, v%d" % (24 + T, 44 + T, 40 + T, 26 + T, 44 + T, 42 + T))
    two(lambda T: "v_mul_f32 v%d, %s, v%d" % (24 + T, fx(LOG2E), 24 + T)); two(lambda T: "v_exp_f32 v%d, v%d" % (24 + T, 24 + T))
    two(lambda T: "v_mul_f32 v%d, 0.15915494, v%d\nv_rndne_f32 v%d, v%d\nv_sub_f32 v%d, v%d, v%d" % (26 + T, 26 + T, 52 + T, 26 + T, 26 + T, 26 + T, 52 + T))
    two(lambda T: "v_cos_f32 v%d, v%d\nv_sin_f32 v%d, v%d" % (52 + T, 26 + T, 54 + T, 26 + T))
    two(lambda T: "v_mul_f32 v%d, v%d, v%d\nv_mul_f32 v%d, v%d, v%d\nv_add_f32 v%d, -1.0, v%d" % (cL + T, 24 + T, 52 + T, 54 + T, 24 + T, 54 + T, 52 + T, cL + T))
    two(lambda T: "v_mul_f32 v%d, v%d, v%d\nv_fmac_f32 v%d, v%d, v%d\nv_rcp_f32 v%d, v%d" % (24 + T, 40 + T, 40 + T, 24 + T, 42 + T, 42 + T, 24 + T, 24 + T))
    two(lambda T: "v_mul_f32 v%d, v%d, v%d\nv_fmac_f32 v%d, v%d, v%d" % (26 + T, 52 + T, 40 + T, 26 + T, 54 + T, 42 + T))
    two(lambda T: "v_mul_f32 v%d, v%d, v%d\nv_fma_f32 v%d, -v%d, v%d, v%d" % (56 + T, 54 + T, 40 + T, 56 + T, 52 + T, 42 + T, 56 + T))
    two(lambda T: "v_add_f32 v%d, v%d, v%d\nv_mul_f32 v%d, v%d, v%d\nv_mul_f32 v%d, v%d, v%d\nv_sub_f32 v%d, 0, v%d" % (24 + T, 24 + T, 24 + T, cC + T, 26 + T, 24 + T, cC + 2 + T, 56 + T, 24 + T, cL + 2 + T, 54 + T))
    def sq(d, x):
        two(lambda T: "v_mul_f32 v%d, v%d, v%d\nv_mul_f32 v%d, v%d, v%d\nv_fma_f32 v%d, v%d, v%d, -v%d\nv_add_f32 v%d, v%d, v%d" % (52 + T, x + 2 + T, x + 2 + T, 54 + T, x + T, x + 2 + T, d + T, x + T, x + T, 52 + T, d + 2 + T, 54 + T, 54 + T))
    sq(cL8, cL); sq(cL8, cL8); sq(cL8, cL8); sq(cL16, cL8); sq(cL64, cL16); sq(cL64, cL64); sq(cL512, cL64); sq(cL512, cL512); sq(cL512, cL512)
    aBS = 160
    s.at(res[i_p1c] + 2)
    s("v_lshlrev_b32 v11, 6, v48\nv_lshl_add_u32 v11, v49, 3, v11\nv_add_u32 v11, s71, v11\nv_and_b32 v50, 0xf0, v1\ns_lshl_b32 s66, s%d, 10\ns_add_u32 s66, s66, 0x%x" % (sB, SM_ST))
    s.wait([("dk", 1)])
    for k in range(4): s("v_accvgpr_read_b32 v%d, a%d" % (40 + k, 248 + k))
    for m in range(4):
        s.at(res[i_e[m]] + 2)
        s.vm("buffer_load_dwordx2 v[44:45], v50, s[36:39], s66 offen offset:%d %s" % (256 * m, HL), ("St", m))
        s.delay(cfg.get("e_lat", 100))
        s.wait([("St", m), ("E", m)])
        for u in range(2): s.lg("ds_read_b64 %s, v11 offset:%d" % (P(52 + 2 * u), 1024 * m + 32 * u), ("er", m, u))
        s.delay(10)
        s.wait([("er", m, 1)])
        for u in range(2):
            def unp(d, x):
                for h in range(2): s("v_lshlrev_b32 v%d, 16, v%d\nv_and_b32 v%d, 0xffff0000, v%d" % (d + 2 * h, x + h, d + 2 * h + 1, x + h))
            def rnd():
                for h in range(2): s("v_cvt_pk_bf16_f32 v%d, v%d, v%d" % (48 + h, 60 + 2 * h, 61 + 2 * h))
                unp(60, 48)
            unp(56, 52 + 2 * u)
            for k in range(4): s("v_sub_f32 v%d, v%d, v44" % (60 + k, 56 + k))
            rnd()
            for k in range(4): s("v_mul_f32 v%d, v%d, v45" % (60 + k, 60 + k))
            rnd()
            for h in range(2):
                s("v_lshlrev_b32 v46, 16, v%d\nv_and_b32 v47, 0xffff0000, v%d\nv_mul_f32 v%d, v%d, v46\nv_mul_f32 v%d, v%d, v47" % (40 + 2 * u + h, 40 + 2 * u + h, 60 + 2 * h, 60 + 2 * h, 61 + 2 * h, 61 + 2 * h))
            rnd()
            for k in range(4): s("v_add_f32 v%d, v%d, v%d" % (56 + k, 56 + k, 60 + k))
            for k in range(4): s("v_accvgpr_write_b32 a%d, v%d" % (aBS + 16 * u + 4 * m + k, 56 + k))
    rb = sc.stream(s.units(), 0, 3, vmspace=2)
    if cfg.get("verbose"): print("shadow end", rb[-1])
    assert rb[-1] < res[i_x26] and rb[-1] < bar[13] and rb[i_pbs] < cfg.get("pfb_first", 646)
    vEW, vER, vTG, vAG, vTRW, vTRR, vCP, vH8, vD1, vPAd, vPD, vD0 = 2, 3, 4, 5, 6, 7, 8, 10, 11, 12, 13, 14
    sM, sKD, sKH = 54, 55, 56
    c1 = -2.0 * math.sqrt(2.0 / math.pi) * LOG2E
    CC = 46
    s("v_accvgpr_read_b32 v%d, a%d\nv_lshlrev_b32 v%d, 3, v0\nv_add_u32 v%d, 32768, v%d" % (vD0, PK["D"], vH8, vD1, vD0))
    if FBW: s("v_and_b32 v43, 31, v0\nv_lshlrev_b32 v43, 11, v43\ns_lshr_b32 s71, s%d, 2\ns_lshl_b32 s71, s71, 6\ns_lshl_b32 s65, s%d, 9\ns_add_u32 s71, s71, s65\ns_add_u32 s71, s71, 0x%x" % (sJ, sQ, SM_F1))
    else: s("v_and_b32 v43, 31, v0\nv_lshlrev_b32 v43, 7, v43\ns_lshl_b32 s71, s%d, 2\ns_add_u32 s71, s71, 0x%x" % (sJ, SM_F1B))
    s("s_mul_i32 s65, s%d, 176\ns_mul_i32 s66, s%d, 44\ns_add_u32 s65, s65, s66\ns_lshl_b32 s65, s65, 12\ns_add_u32 s65, s65, 0x%x" % (sB, sQ, WS_H))
    s.atom(["s_add_u32 s32, s6, s65", "s_addc_u32 s33, s7, 0"])
    s("s_and_b32 s33, s33, 0xffff\ns_mov_b32 s34, 0x%x\ns_mov_b32 s35, 0x20000" % (44 * 4096))
    srd(s, 12, 84, 85, 3584 * 2048); srd(s, 16, 88, 89, 1024 * 2048); srd(s, 20, 90, 91, 1024 * 2048)
    s("s_lshl_b32 s%d, s%d, 10" % (sM, sW))
    s("v_mov_b32 v46, %s\nv_mov_b32 v47, %s" % (fx(c1), fx(c1 * 0.044715)))
    ROT = cfg.get("rot", 2)
    sTQ = [96, 97, 98, 99, 48, 49, 50, 51]; sTS = [76, 77, 78, 80]; sJ12, sG7 = 44, 45
    s("s_and_b32 s67, s%d, 3\ns_lshl_b32 s67, s67, 1" % sI)
    for k in range(8):
        if k == 0: s("s_mov_b32 s65, s%d" % sTN)
        elif ROT == 2: s.atom(["s_cmp_le_u32 s%d, %d" % (sTN, k - 1), "s_cselect_b32 s65, %d, %d" % (k, k - 1)])
        elif ROT: s("s_add_u32 s65, s67, %d\ns_sub_u32 s66, s65, 7\ns_min_u32 s65, s65, s66\ns_add_u32 s65, s65, 1\ns_xor_b32 s65, s65, s%d" % (k - 1, sTN))
        else: s("s_xor_b32 s65, s%d, %d" % (sTN, k))
        s("s_mul_i32 s65, s65, 7\ns_add_u32 s65, s65, 1\ns_lshr_b32 s65, s65, 1\ns_lshl_b32 s%d, s65, 12" % sTQ[k])
    s("s_lshr_b32 s67, s%d, 1" % sTN)
    sGp = [24, 25, 26, 27]; sPar = 45
    for p in range(4):
        if ROT == 2:
            s("s_mov_b32 s%d, %d" % (sTS[p], (7 * p + 3) * 4096))
            if p == 0: s("s_lshl_b32 s%d, s67, 13" % sGp[0])
            else:
                s.atom(["s_cmp_le_u32 s67, %d" % (p - 1), "s_cselect_b32 s65, %d, %d" % (p, p - 1)]); s("s_lshl_b32 s%d, s65, 13" % sGp[p])
        else: s("s_xor_b32 s65, s67, %d\ns_lshl_b32 s%d, s65, 13\ns_mul_i32 s65, s65, %d\ns_add_u32 s%d, s65, %d" % (p, sGp[p], 7 * 4096, sTS[p], 3 * 4096))
    s("s_lshl_b32 s%d, s%d, 12\ns_and_b32 s69, s%d, 1\ns_lshl_b32 s%d, s69, 12" % (sJ12, sTN, sTN, sPar))
    s("s_mul_i32 s67, s67, %d\ns_lshl_b32 s69, s69, 9\ns_add_u32 s67, s67, s69\ns_add_u32 s67, s67, %d" % (7 * 4096, 3 * 4096))
    s("s_add_u32 s72, s%d, %d\ns_add_u32 s73, s%d, %d\ns_mov_b32 s66, s%d" % (sJ12, 28 * 4096, sJ12, 36 * 4096, sTQ[0]))
    s("s_lshl_b32 s68, s%d, 2\ns_add_u32 s68, s68, s%d\ns_lshl_b32 s68, s68, %d\ns_add_u32 s68, s68, 0x%x" % (sB, sQ, (7, 9, 11)[F3M], SM_F3))
    s("s_lshl_b32 s81, s%d, %d\ns_add_u32 s81, s81, s68\nv_and_b32 v%d, 7, v0\nv_lshlrev_b32 v%d, %d, v%d" % (sTN, (2, 2, 6)[F3M], vPAd, vPAd, (2, 2, 6)[F3M], vPAd))
    s("s_sub_u32 s64, 31, s%d\ns_lshl_b32 s64, s64, 13\ns_lshl_b32 s65, s%d, 8\ns_add_u32 s64, s64, s65" % (sB, sJ))
    s("s_mul_i32 s46, s%d, %d\ns_add_u32 s46, s46, %d" % (sW, EPW, EP_LDS))
    if TRP >= 0 and cfg.get("tr2", 1) and cfg.get("tr2pf", 1):
        s.atom(["s_getpc_b64 s[82:83]", "L_pc2:"])
        s("v_lshrrev_b32 v40, 3, v0\nv_lshlrev_b32 v40, 12, v40\nv_and_b32 v41, 7, v0\nv_lshl_add_u32 v40, v41, 7, v40\nv_add_u32 v40, L_main-L_pc2+%d, v40" % (4096 * cfg.get("tr_n", 12)))
        s("v_min_u32 v40, L_codeend-L_pc2-4, v40\nv_mov_b32 v41, 0\nv_lshl_add_u64 v[40:41], v[40:41], 0, s[82:83]")
        s.vm("global_load_dword a246, v[40:41], off")
        if cfg.get("cpe", 0):
            n_ = 16 * cfg.get("cpe", 0)
            s("s_mul_i32 s65, s%d, %d\ns_add_u32 s65, s65, L_epi-L_pc2+%d\nv_min_u32 v40, %d, v0\nv_lshl_add_u32 v40, v40, 7, s65\nv_mov_b32 v41, 0\nv_lshl_add_u64 v[40:41], v[40:41], 0, s[82:83]" % (sW, n_ * 128, cfg.get("cpe_off", -2048), n_ - 1))
            s.vm("global_load_dword a246, v[40:41], off")
    f1bload = "buffer_load_dword v44, v43, s[36:39], s71 offen %s" % SC
    s.vm(f1bload, "f1b")
    steps = [("g", 0, 2), ("g", 0, 0), ("g", 0, 1)]
    NA0 = cfg.get("na0", 2)
    steps += [("g", k, 0) for k in range(1, NA0 + 1)]
    UA = len(steps)
    steps += [("g", k, 1) for k in range(1, NA0 + 1)]
    for k in range(NA0 + 1, 8): steps += [("g", k, 0), ("g", k, 1)]
    UB = len(steps)
    for k in range(1, 8): steps += [("g", k, 2)] + ([("s", k // 2, 0)] if k % 2 else [])
    assert len(steps) == 28
    cst = [("r", 0), ("i", 0), ("r", 1), ("r", 2), ("r", 3), ("i", 1), ("i", 2), ("i", 3)]
    steps += [("c", 14, 0), ("c", 15, 0), ("c", 14, 1), ("c", 15, 1)]
    for st in range(16, 22): steps += [("c", st, 0), ("c", st, 1)]
    own = {0, 1, 2, 28, 29}; UC = 30
    NST = 22; KC = cfg.get("kc", 8)
    slot = {st: st % 8 for st in range(22)}; prevocc = {st: (st - 8 if st >= 8 else None) for st in range(22)}
    aW2 = 0; aAG = 32
    vC, vCA = 16, 20
    def dma2(s, st, k, early=None, vC=vC):
        if st < 14:
            kind, x, p = steps[2 * st + k // 2]
            if k % 2 == 0:
                if kind == "g" and p: s("s_add_u32 s%d, s%d, %d\ns_lshl_b32 s%d, s%d, 4" % (sKD, sTQ[x], p * 4096, sKD, sKD))
                else: s("s_lshl_b32 s%d, s%d, 4" % (sKD, (sTQ if kind == "g" else sTS)[x]))
            v, sr = (vD0, vD1)[k % 2], 12
        else:
            part, p = cst[st - 14]
            if k == 0: s("s_lshr_b32 s%d, s%d, 6" % (sKD, sGp[p]))
            v, sr = vC + k, (16 if part == "r" else 20)
        s("s_add_u32 m0, s%d, %d" % (sM, slot[st] * 16384 + k * 4096))
        s.op(Op("buffer_load_dwordx4 v%d, s[%d:%d], s%d offen lds" % (v, sr, sr + 3, sKD), "vm", K(("D2", st, k))), early)
    NPRE = 4
    r = sc.stream(s.units(), res[-1] + 2, 3)
    gS = r[-1]
    L2P = cfg.get("l2p", 0)
    if L2P:
        s("s_lshr_b32 s65, s2, 3\ns_lshl_b32 s65, s65, 2\ns_add_u32 s65, s65, s%d" % sW)
        s("s_mul_i32 s69, s65, %d\ns_mul_i32 s70, s%d, %d\ns_add_u32 s69, s69, s70\nv_min_u32 v40, 55, v0\nv_lshl_add_u32 v40, v40, 7, s69\ns_mov_b32 s70, %d" % (56 * 128, sQ, 896 * 2048, 448 * 2048))
        s.vm("buffer_load_dword a246, v40, s[12:15], 0 offen"); s.delay(cfg.get("l2p_sp", 40))
        s.vm("buffer_load_dword a246, v40, s[12:15], s70 offen"); s.delay(cfg.get("l2p_sp", 40))
        if L2P >= 2:
            s("s_lshl_b32 s69, s65, 14\ns_lshl_b32 s70, s%d, 9\ns_add_u32 s69, s69, s70\nv_bfe_u32 v40, v0, 2, 3\nv_lshl_add_u32 v40, v40, 11, s69\nv_and_b32 v41, 3, v0\nv_lshl_add_u32 v40, v41, 7, v40" % sQ)
    s.at(max(bar[13] + 1, cfg.get("pre_at", 0 if KT else 2170)))
    for st in range(NPRE):
        for k in range(4): dma2(s, st, k)
    if L2P >= 2:
        s.vm("buffer_load_dword a246, v40, s[16:19], 0 offen")
        if L2P >= 3: s.delay(20); s.vm("buffer_load_dword a246, v40, s[20:23], 0 offen")
    r = sc.stream(s.units(), gS + 1, 2, vmspace=cfg.get("pre_sp", 5))
    hst = cfg.get("hst", SC)
    aK0 = xalloc[27][1] if KT else 96; aK1 = 112 if aK0 != 112 else 96
    left = []; msh = 0
    if KT:
        msh = cfg.get("msh", 4)
        for m in range(msh):
            gs = [128 + 4 * m + e for e in range(4)] + [160 + 4 * m + e for e in range(4)]
            o = (56, 60)[m % 2]
            for k, g in enumerate(gs): s("v_mul_f32 v%d, v%d, v%d" % (48 + k, g, g))
            for k, g in enumerate(gs): s("v_fma_f32 v%d, v%d, v47, v46" % (48 + k, 48 + k))
            for k, g in enumerate(gs): s("v_mul_f32 v%d, v%d, v%d" % (48 + k, 48 + k, g))
            for k, g in enumerate(gs): s("v_exp_f32 v%d, v%d" % (48 + k, 48 + k))
            for k, g in enumerate(gs): s("v_mul_f32 v%d, v%d, v%d" % (g + 16, g, g + 16))
            for k, g in enumerate(gs): s("v_add_f32 v%d, 1.0, v%d" % (48 + k, 48 + k))
            for k, g in enumerate(gs): s("v_rcp_f32 v%d, v%d" % (48 + k, 48 + k))
            for k, g in enumerate(gs): s("v_mul_f32 v%d, v%d, v%d" % (g + 16, g + 16, 48 + k))
            for k in range(4): s("v_cvt_pk_bf16_f32 v%d, v%d, v%d" % (o + k, gs[2 * k] + 16, gs[2 * k] + 17))
            s.vm("buffer_store_dwordx4 %s, v1, s[32:35], s66 offen offset:%d %s" % (Q(o), 1024 * m, hst), ("hs", 0, m))
            for k in range(4): s("v_accvgpr_write_b32 a%d, v%d" % (aK0 + 4 * m + k, o + k))
        un = s.units()
        r = sc.stream(un, max(gS + 1, 4 * (28 * 18 + 16) + 2), 3, vmspace=2, overflow=True)
        left = un[len(r):]
        if cfg.get("verbose"): print("setup end", gS, "shadow gelu placed", len(r), "left", len(left))
    if cfg.get("abl"):
        for g in range(720, 1850):
            for it in sc.g[g]:
                o = it[2]; tx = o.text or ""
                if ("T" in cfg["abl"] and tx.startswith("ds_read_b64_tr")) or ("B" in cfg["abl"] and tx.startswith("ds_read_b128")) or \
                   ("X" in cfg["abl"] and tx.startswith("buffer_load_dwordx4") and "s[8:11]" in tx) or ("D" in cfg["abl"] and tx.endswith(" lds")) or \
                   ("P" in cfg["abl"] and tx.startswith("buffer_load_dword a246")) or ("V" in cfg["abl"] and tx.startswith("v_") and it[0] == 3): o.text = ""
    if cfg.get("stall"):
        for G in range(1, NG):
            if G % cfg["stall"] == 0 and len(sc.classes(4 * G - 1)) == 3: sc.put(4 * G - 1, [Op("s_nop 0")], 9)
    prog.add(sc.ops())
    vTA = 40
    s.atom(["L_epi:"])
    s("s_barrier")
    stamp(s, "end1")
    s.u += left
    KD = [int(c, 36) for c in str(cfg.get("kd", "g0a8"))]
    CH2 = cfg.get("ch2", 1); nochain = [int(c) for c in str(cfg.get("ch2_skip", "1"))]
    assert all(k % 2 == 0 for k in KD)
    def sg2(st, ul):
        if CH2 and st not in nochain: return [(2 * st + kk, u) for u in ul for kk in range(2)]
        return [(2 * st + kk, u) for kk in range(2) for u in ul]
    groups = []
    for st in range(22): groups += sg2(st, [u for u in (range(8) if st < 14 else (2, 3, 4, 5, 6, 7, 0, 1)) if 2 * st < 44 - KD[u // 2]])
    pend_ = {}
    for d in (1, 2, 3, 0):
        if str(d) in str(cfg.get("tm", "023")):
            for u in (2 * d, 2 * d + 1):
                for st in range(22 - KD[d] // 2, 22): groups += sg2(st, (u,))
        else:
            for st in range(22 - KD[d] // 2, 22): groups += sg2(st, (2 * d, 2 * d + 1))
    for G, (uu, u) in enumerate(groups): pend_[u] = G
    assert len(groups) == 352 and max(KD) <= 16
    NG = len(groups)
    mo, head, tail = order_mfma(groups)
    lastuse = {}; firstuse = {}
    for G, (uu, u) in enumerate(groups): firstuse.setdefault(uu, head(G)); lastuse[uu] = tail(G)
    hreg = {0: ("v", 48), 1: ("a", aK0), 2: ("a", aK1), 28: ("a", 32), 29: ("a", 48)}; hfree = {}
    pool = [(-1, ("a", r)) for r in [96, 112, 128, 144, 192, 208, 224, 160, 176, 64, 80] if r not in (aK0, aK1)] + [(4 * lastuse[u] + 3, hreg[u]) for u in (1, 2, 28, 29)]
    VFREE = cfg.get("vfree", 700)
    pool += [(VFREE, ("v", r)) for r in (64, 80, 96, 112)[:cfg.get("nvs", 4)]]
    for u in range(44):
        if u in own: continue
        pool.sort(key=lambda x: x[0]); e, r = pool.pop(0)
        hreg[u] = r; hfree[u] = e; pool.append((4 * lastuse[u] + 3, r))
    def hload(s, u, m, early=None):
        kind, x, p = steps[u]
        if m == 0:
            if kind == "g": s("s_add_u32 s%d, s%d, %d" % (sKH, sTQ[x], p * 4096))
            elif kind == "s": s("s_mov_b32 s%d, s%d" % (sKH, sTS[x]))
            else:
                part, pp = cst[x - 14]
                s("s_xor_b32 s%d, s%d, %d\ns_add_u32 s%d, s%d, s%d" % (sKH, sPar, ((28 if part == "r" else 36) + p) * 4096, sKH, sKH, sGp[pp]))
        hk, d = hreg[u]; d += 4 * m
        if kind == "s":
            s.op(Op("buffer_load_dwordx2 %s, v%d, s[32:35], s%d offen offset:%d %s" % (R(hk, d, 2), vH8, sKH, 1024 * m, HL), "vm"), early)
            s.op(Op("buffer_load_dwordx2 %s, v%d, s[32:35], s%d offen offset:%d %s" % (R(hk, d + 2, 2), vH8, sKH, 1024 * m + 512, HL), "vm", K(("H", u, m))))
        else: s.op(Op("buffer_load_dwordx4 %s, v1, s[32:35], s%d offen offset:%d %s" % (R(hk, d, 4), sKH, 1024 * m, HL), "vm", K(("H", u, m))), early)
    def gelu_pair(base0, base1, pid, T, OUT, keep=None, hook=None, m0=0):
        for m in range(m0, 4):
            o = OUT[m % len(OUT)]
            items = [(base0 + 4 * m, base0 + 16 + 4 * m, o), (base0 + 4 * m + 2, base0 + 18 + 4 * m, o + 1),
                     (base1 + 4 * m, base1 + 16 + 4 * m, o + 2), (base1 + 4 * m + 2, base1 + 18 + 4 * m, o + 3)]
            gelu_block(s, items, CC, T)
            s.vm("buffer_store_dwordx4 %s, v1, s[32:35], s66 offen offset:%d %s" % (Q(o), 1024 * m, hst), ("hs", pid, m))
            if keep is not None:
                for r in range(4): s("v_accvgpr_write_b32 a%d, v%d" % (keep + 4 * m + r, o + r))
            if hook: hook(m)
        s("s_add_u32 s66, s66, 4096")
    NPRE2 = cfg.get("npre2", 8)
    cpre = [(st, k) for st in range(NPRE, NPRE2) for k in range(4)]
    def cdma(n):
        for _ in range(n):
            if cpre: st, k = cpre.pop(0); dma2(s, st, k)
    fstore = lambda off: "buffer_store_dword%s, v1, s[36:39], s81 offen offset:%d %s" % (("x4 " + Q(vTG)) if F3M == 2 else (" v%d" % vTG), off * (1, 4, 16)[F3M], SC)
    fload = lambda off: "buffer_load_dword v%d, v%d, s[36:39], s68 offen offset:%d %s" % (vPD, vPAd, off * (1, 4, 16)[F3M], SC)
    s("v_mov_b32 v%d, s%d" % (vTG, sTAG))
    npg = cfg.get("cpre_g", 1)
    cdma(cfg.get("cpre_0", 4))
    gelu_pair(128, 160, 0, 48, [56, 60], aK0, lambda m: cdma(npg), m0=msh)
    def hook1(m):
        cdma(npg)
        if m == cfg.get("fa0_m", 1): flag(s, fstore(96), [("hs", 0, 3)])
    gelu_pair(192, 224, 1, 48, [56, 60], aK1, hook1)
    stamp(s, "p01")
    def pkfma(d, s0, s1, s2, T, neg=False):
        s("v_pk_fma_f32 %s, %s, %s, %s op_sel:[%d,0,0] op_sel_hi:[%d,1,1]%s" % (P(d), P(s0), P(s1), P(s2), T, T, " neg_lo:[1,0,0] neg_hi:[1,0,0]" if neg else ""))
    def pkmul(d, s0, s1, T, neg=False):
        s("v_pk_mul_f32 %s, %s, %s op_sel:[%d,0] op_sel_hi:[%d,1]%s" % (P(d), P(s0), P(s1), T, T, " neg_lo:[1,0] neg_hi:[1,0]" if neg else ""))
    BR = lambda T, x: 64 + 16 * T + 2 * x
    BI = lambda T, x: 96 + 16 * T + 2 * x
    for x in range(8):
        for T in range(2):
            pkmul(128 + 2 * T, cC + 2, BI(T, x), T, True); pkmul(BI(T, x), cC, BI(T, x), T, True)
        for T in range(2):
            pkfma(BI(T, x), cC + 2, BR(T, x), BI(T, x), T, True); pkfma(BR(T, x), cC, BR(T, x), 128 + 2 * T, T)
    sr = [BR(0, 0), BR(1, 0)]; si = [BI(0, 0), BI(1, 0)]
    bufs = [[132, 134], [138, 140]]; SI = [136, 142]
    for x in range(1, 8):
        nr = [bufs[T][x % 2] for T in range(2)]
        for T in range(2): pkfma(nr[T], cL, sr[T], BR(T, x), T)
        for T in range(2): pkfma(nr[T], cL + 2, si[T], nr[T], T, True)
        for T in range(2): pkfma(SI[T], cL, si[T], BI(T, x), T)
        for T in range(2): pkfma(SI[T], cL + 2, sr[T], SI[T], T)
        sr = nr; si = list(SI)
        if x % 2: cdma(1)
    EA = 20
    for T in range(2):
        s("v_mov_b32 v%d, v%d\nv_mov_b32 v%d, v%d\nv_mov_b32 v%d, v%d\nv_mov_b32 v%d, v%d" % (EA + T, sr[T], EA + 2 + T, si[T], 144 + T, sr[T] + 1, 146 + T, si[T] + 1))
    horner_pk(s, EA, cL8, 144, 144)
    s("v_add_u32 v%d, s46, v1\nv_and_b32 v%d, 0xf0, v1\nv_add_u32 v%d, s46, v%d" % (vEW, vER, vER, vER))
    s.lg("ds_write_b128 v%d, v[144:147]" % vEW)
    for g in range(4): s.lg("ds_read_b128 %s, v%d offset:%d" % (Q(148 + 4 * g), vER, 256 * g), ("e", g))
    HPN = cfg.get("hpn", 0)
    if HPN: s.vm(fload(96), "f3a0")
    for r in range(32):
        s("v_accvgpr_read_b32 v%d, a%d" % (192 + r, r))
        if r % 16 == 15: cdma(1)
    flag(s, fstore(0), [("hs", 1, 3)])
    for g in range(1, 4):
        s.wait([("e", g)]); horner_pk(s, 148 + 4 * (g - 1), cL16, 148 + 4 * g, 148 + 4 * g)
    for r in range(160, 164): s("v_min_u32 v%d, -2, v%d" % (r, r))
    s.atom(["s_mov_b64 exec, 0xffff", Op("buffer_store_dwordx4 v[160:163], v1, s[36:39], s64 offen %s" % SC, "vm"), "s_mov_b64 exec, -1"])
    stamp(s, "pub")
    poll(s, "P1b", f1bload, 44, "f1b")
    for r in range(32, 64):
        s("v_accvgpr_read_b32 v%d, a%d" % (192 + r, r))
        if r % 16 == 15: cdma(1)
    cdma(16)
    for r in range(32): s("v_accvgpr_read_b32 v%d, a%d" % (128 + r, aBS + r))
    hq = [(u, m) for u in range(3, UA) for m in range(4)][:HPN]; nh_pre = [3 + HPN // 4]
    assert HPN % 4 == 0
    def issue_h(n):
        for _ in range(n):
            if hq: hload(s, *hq.pop(0))
    hpb = cfg.get("hpb", 3)
    PA0 = cfg.get("pa0", 3)
    def hookA(m):
        issue_h(hpb)
        if m == PA0 and not HPN: s.vm(fload(96), "f3a0")
    def tramp2():
        s("s_mov_b64 exec, 0")
        for w in range(1, 4): s("s_cmp_eq_u32 s%d, %d\ns_cbranch_scc1 L_trB%d" % (sW, w, w))
        s("s_branch L_trB0")
        s.atom(["L_trret2:"])
        s("s_mov_b64 exec, -1")
    if TRP >= 0 and cfg.get("tr2", 1): tramp2()
    if HPN:
        poll(s, "P3a0", fload(96), vPD, "f3a0"); stamp(s, "ok3a"); issue_h(hpb)
    gelu_pair(192, 224, 2, 168, [48, 52, 56, 60], None, hookA)
    for r in range(32): s("v_accvgpr_read_b32 v%d, a%d" % (192 + r, 64 + r))
    issue_h(hpb)
    for mp in range(2):
        o = 240 + 4 * mp; items = []
        for mm in range(2):
            m = 2 * mp + mm
            items += [(192 + 4 * m, 208 + 4 * m, o + 2 * mm), (194 + 4 * m, 210 + 4 * m, o + 2 * mm + 1)]
        gelu_block(s, items, CC, 168)
        if mp == 0:
            s("v_accvgpr_read_b32 v%d, a%d" % (vTA, PK["TA"]))
            for u in range(1, 6): s("v_xor_b32 v%d, %d, v%d" % (vTA + u, 32 * u, vTA))
        issue_h(hpb if mp == 0 else 99)
        if mp == PA0 - 4 and not HPN: s.vm(fload(96), "f3a0")
        for mm in range(2):
            s.vm("buffer_store_dwordx2 %s, v%d, s[32:35], s67 offen offset:%d %s" % (P(o + 2 * mm), vH8, 1024 * (2 * mp + mm), hst), ("hsS", 2 * mp + mm))
        if mp == 0:
            s.wait([("D2", st, k) for st in range(cfg.get("bar2", 2)) for k in range(4)])
            s("s_barrier")
            pre_reads_at = len(s.u)
    for u in range(6, 8): s("v_xor_b32 v%d, %d, v%d" % (vTA + u, 32 * u, vTA))
    L2 = cfg.get("l2_lead", 4); B2 = cfg.get("bar2", 2)
    def read2(G, part):
        uu, u = groups[G]; f = G % NWB
        if uu < 28:
            st, kk = divmod(uu, 2)
            return Op("ds_read_b64_tr_b16 %s, v%d offset:%d" % (R("a", aW2 + 4 * f + 2 * part, 2), vTA + u, (slot[st] % 4) * 16384 + kk * 8192 + part * 4096), "lg", K(("F2", G, part)))
        _, st, kk = steps[uu]
        return Op("ds_read_b128 %s, v%d offset:%d" % (R("a", aW2 + 4 * f, 4), vCA + 2 * (slot[st] >= 4) + kk, (slot[st] % 4) * 16384 + u * 2048), "lg", K(("F2", G, part)))
    parts = lambda G: [0, 1] if groups[G][0] < 28 else [None]
    mf = []
    for G, m in mo:
        uu, u = groups[G]
        mf.append(Op(mfma16(("v", 128 + 16 * u + 4 * m), ("a", aW2 + 4 * (G % NWB)), (hreg[uu][0], hreg[uu][1] + 4 * m), zero=(uu == 0 and u >= 2))))
    sc = Sch(mf)
    gneed = lambda G: [("F2", H, p) for H in range(G, tail(G) + 1) for p in parts(H)] + [("H", uu, m) for uu in range(44) if firstuse[uu] == G and uu not in own for m in range(4)]
    rgap = {}
    for G in range(NG):
        st, f = divmod(G, 16)
        if st < 14 and st % B2 == B2 - 1:
            if f <= 4: rgap[G] = 4 * (G - L2) - 1
            elif f == 5: rgap[G] = 4 * (G - 1 - L2) + 1
            elif f <= 10: rgap[G] = 4 * (G - 1 - L2) - 1
            elif f == 11: rgap[G] = 4 * (G - 2 - L2) + 1
            else: rgap[G] = 4 * (G - 2 - L2) - 1
        else: rgap[G] = 4 * (G - L2) - 1
        assert rgap[G] >= 4 * tail(G - NWB) + 3
    pr = Seq()
    for G in range(NG):
        if rgap[G] < 0:
            for p in parts(G): pr.op(read2(G, p))
    s.u[pre_reads_at:pre_reads_at] = pr.units()
    s.wait(gneed(0))
    stamp(s, "loop2")
    prog.add(s.done())
    for G in range(1, NG):
        w = Op("", needs=K(gneed(G)))
        w.keep = sum(len(parts(H)) for H in range(max(0, G - 2), min(NG, G + 10)) if rgap[H] == 4 * G - 1) == 2
        if w.keep or head(G) == G: sc.put(4 * G - 1, [w], 0)
    for G in range(NG):
        if rgap[G] >= 0:
            if rgap[G] % 4 != 3: sc.put(rgap[G], [Op("s_waitcnt lgkmcnt(15)")], 0)
            sc.put(rgap[G], [read2(G, p) for p in parts(G)], 1)
    bar = {}
    for st in range(14):
        if st % B2 != B2 - 1: continue
        bar[st] = 4 * (16 * (st + 1) - L2) - 2
        pub = list(range(st + 1, st + 1 + B2)) if st < 13 else [14, 15, 16, 17]
        sc.put(bar[st], [Op("s_barrier", needs=K([("D2", x, k) for x in pub for k in range(4)]), drain=["lg"])], 0)
    for st in (3, 7, 11):
        for i_, g_ in enumerate((1, 2, 4, 5)):
            sc.put(bar[st] - g_, [Op("v_xor_b32 v%d, 0x10000, v%d" % (vTA + 2 * i_ + k, vTA + 2 * i_ + k)) for k in range(2)], 2)
        assert max(rgap[G] for G in range(16 * st, 16 * st + 16)) < bar[st] - 5
    barF = min(rgap[G] for G in range(NG) if groups[G][0] >= 36) - 1
    sc.put(barF, [Op("s_barrier", needs=K([("D2", x, k) for x in range(18, 22) for k in range(4)]))], 0)
    def mark(o, nm): o.u[-1].append(nm)
    def after(o, nm, n): o.u.append([[Op("")], lambda mk: (mk[nm] + n) if nm in mk else None])
    def dly(o, n): o.u.append([[Op("")], lambda mk: mk["_prev"] + n])
    gl = []
    t = Seq()
    t("v_accvgpr_read_b32 v%d, a%d\nv_accvgpr_read_b32 v%d, a%d\nv_accvgpr_read_b32 v%d, a%d" % (vAG, PK["AG"], vTRW, PK["TRW"], vTRR, PK["TRR"]))
    t("s_mov_b32 s40, s36\ns_mov_b32 s41, s37\ns_mov_b32 s42, 0x40000\ns_mov_b32 s43, 0x20000")
    t("v_lshrrev_b32 v8, 4, v0\nv_cmp_eq_u32 s[64:65], 1, v8\nv_cmp_eq_u32 s[66:67], 2, v8\nv_cmp_eq_u32 s[74:75], 3, v8")
    t.at(cfg.get("ag_gap", 32))
    for x in range(7, -1, -1):
        t("s_mov_b32 s57, %d" % (8192 * x))
        g = "buffer_load_dwordx4 %s, v%d, s[40:43], s57 offen %s" % (R("a", aAG + 4 * x, 4), vAG, SC)
        gl.append("s_mov_b32 s57, %d\n%s" % (8192 * x, g))
        t.vm(g, ("ag", x))
        if x: dly(t, cfg.get("ag_sp", 8))
    mark(t, "ag")
    srd(t, 8, 86, 87, 2048 * 4096)
    flag(t, fstore(32), [("hsS", 3)], early=cfg.get("fb_gap", 80)); mark(t, "flagb")
    after(t, "ag", cfg.get("ag_lat", 20)); t.at(4 * lastuse[0] + 4)
    def ag_horner(o, w):
        cur = None
        for x in range(7, -1, -1):
            q = 48 + 4 * (x % 2)
            if w: o.wait([("ag", x)])
            for r in range(4): o("v_accvgpr_read_b32 v%d, a%d" % (q + r, aAG + 4 * x + r))
            if not w: o(("v_max3_u32 v56, v%d, v%d, v%d\nv_max_u32 v56, v56, v%d" % (q, q + 1, q + 2, q + 3)) if x == 7 else ("v_max3_u32 v56, v56, v%d, v%d\nv_max3_u32 v56, v56, v%d, v%d" % (q, q + 1, q + 2, q + 3)))
            if cur is not None: horner_sc(o, cur, cL64, q)
            cur = q
    ag_horner(t, True)
    t("v_cmp_u_f32 s[70:71], v48, v49")
    t.atom(["v_cmp_u_f32 vcc, v50, v51", "s_or_b64 vcc, vcc, s[70:71]", "s_cbranch_scc1 PAG_retry", "PAG_ok:"])
    ool("PAG_retry:")
    if cfg.get("rc"): RC.append("PAG"); ool("v_readlane_b32 s100, v15, %d\ns_nop 3\ns_add_u32 s100, s100, 100\nv_writelane_b32 v15, s100, %d" % (len(RC), len(RC)))
    ool("\n".join(gl) + "\ns_waitcnt vmcnt(0)")
    ag_horner(ool, False)
    ool("v_cmp_eq_u32 vcc, -1, v56\ns_and_b64 vcc, vcc, exec\ns_cbranch_scc0 PAG_ok\ns_cmp_eq_u32 s79, 0\ns_cbranch_scc1 PAG_ok\ns_sub_u32 s79, s79, 1\ns_sleep 1\ns_branch PAG_retry")
    t.lg("ds_write_b128 v%d, v[48:51] offset:1024" % vEW)
    for g, r in ((3, 52), (2, 56), (1, 60)): t.lg("ds_read_b128 %s, v%d offset:%d" % (Q(r), vER, 1024 + 256 * g), ("s", g))
    t.lg("ds_read_b128 %s, v%d offset:1024" % (Q(48), vER), ("s", 0))
    dly(t, 8)
    t.wait([("s", 2)]); horner_sc(t, 52, cL512, 56)
    t.lg("ds_read_b128 %s, v%d" % (Q(52), vER), ("e2", 0))
    t.wait([("s", 1)]); horner_sc(t, 56, cL512, 60)
    t.lg("ds_read_b128 %s, v%d offset:256" % (Q(56), vER), ("e2", 1))
    t.wait([("s", 0)]); horner_sc(t, 60, cL512, 48)
    t.lg("ds_read_b128 %s, v%d offset:512" % (Q(60), vER), ("e2", 2))
    t.wait([("e2", 0)]); horner_sc(t, 48, cL16, 52)
    t.wait([("e2", 1)]); horner_sc(t, 52, cL16, 56)
    t.wait([("e2", 2)]); horner_sc(t, 56, cL16, 60)
    for g, sm in ((52, 64), (56, 66), (60, 74)):
        for r in range(4): t("v_cndmask_b32 v%d, v%d, v%d, s[%d:%d]" % (48 + r, 48 + r, g + r, sm, sm + 1))
    horner_sc(t, 48, cL8, EA)
    t("v_xor_b32 v52, 16, v%d" % vTRR)
    st_r = {(T, h): (48, EA)[h] + T for T in range(2) for h in range(2)}
    st_i = {(T, h): (48, EA)[h] + 2 + T for T in range(2) for h in range(2)}
    TH = [(T, h) for T in range(2) for h in range(2)]
    xs = Seq()
    for x in range(8):
        for (T, h) in TH: t("v_fmac_f32 v%d, v%d, v%d" % (BR(T, x) + h, cL + T, st_r[T, h]))
        for (T, h) in TH: t("v_fmac_f32 v%d, v%d, v%d" % (BI(T, x) + h, cL + T, st_i[T, h]))
        for (T, h) in TH: t("v_fma_f32 v%d, -v%d, v%d, v%d" % (BR(T, x) + h, cL + 2 + T, st_i[T, h], BR(T, x) + h))
        for (T, h) in TH: t("v_fmac_f32 v%d, v%d, v%d" % (BI(T, x) + h, cL + 2 + T, st_r[T, h]))
        for (T, h) in TH: st_r[T, h] = BR(T, x) + h; st_i[T, h] = BI(T, x) + h
        if x % 2 == 1:
            m = x // 2; mo = (m % 2) * 2048
            for part, Fn in enumerate((BR, BI)):
                for T in range(2):
                    o = 56 + 4 * part + 2 * T
                    t("v_cvt_pk_bf16_f32 v%d, v%d, v%d\nv_cvt_pk_bf16_f32 v%d, v%d, v%d" % (o, Fn(T, x - 1), Fn(T, x - 1) + 1, o + 1, Fn(T, x), Fn(T, x) + 1))
                    t.lg("ds_write_b64 v%d, %s offset:%d" % (vTRW, P(o), mo + part * 1024 + 512 * T))
                t.atom(["s_waitcnt lgkmcnt(15)"] + [Op("ds_read_b64_tr_b16 %s, v%d offset:%d" % (R("a", aAG + 16 * part + 4 * m + 2 * half, 2), (vTRR, 52)[half], mo + part * 1024 + 256 * half), "lg", K(("tr", m, part, half))) for half in range(2)])
                mark(t, ("tr", m, part))
                after(xs, ("tr", m, part), 10)
                if (m, part) != (0, 0) and m < 3: after(xs, ("hl", m - 1 + part, 1 - part), cfg.get("hl_sp", 24))
                xs.vm("buffer_store_dwordx4 %s, v1, s[32:35], s%d offen offset:%d %s" % (R("a", aAG + 16 * part + 4 * m, 4), 72 + part, 1024 * m, hst), ("hl", m, part), needs=[("tr", m, part, 1)])
                mark(xs, ("hl", m, part))
    dly(xs, cfg.get("fc_lat", 60))
    flag(xs, fstore(64), [("hl", 3, 1)]); mark(xs, "flagc")
    t("v_accvgpr_read_b32 v48, a%d\nv_accvgpr_read_b32 v%d, a%d" % (PK["C"], vCA, PK["CA"]))
    for k in range(4): t("s_xor_b32 s65, s%d, %d\ns_lshl_b32 s65, s65, 16\nv_add_u32 v%d, s65, v48" % (sQ, k, vC + k))
    t("s_and_b32 s65, s%d, 1\ns_lshl_b32 s65, s65, 6\nv_xor_b32 v%d, s65, v%d" % (sTN, vCA, vCA))
    t("v_xor_b32 v%d, 64, v%d\nv_add_u32 v%d, 0x10000, v%d\nv_xor_b32 v%d, 64, v%d" % (vCA + 1, vCA, vCA + 2, vCA, vCA + 3, vCA + 2))
    vOO = 28
    t("v_accvgpr_read_b32 v24, a%d\nv_accvgpr_read_b32 v25, a%d\nv_lshlrev_b32 v25, 2, v25\nv_lshl_add_u32 v%d, v24, 12, v25" % (PK["TOK"], PK["COL"], vOO))
    mark(t, "cready")
    RB = lambda u, m: 128 + 16 * u + 4 * m
    after(t, "flagc", 1)
    t("s_lshl_b32 s65, s%d, 3\ns_add_u32 s65, s65, s%d\ns_lshl_b32 s66, s65, 18\ns_lshl_b32 s67, s%d, 14\ns_add_u32 s66, s66, s67\ns_add_u32 s66, s66, 0x%x" % (sI, sTN, sW, WS_PART))
    t.atom(["s_add_u32 s40, s6, s66", "s_addc_u32 s41, s7, 0"])
    t("s_and_b32 s41, s41, 0xffff\ns_mov_b32 s42, 0x34000\ns_mov_b32 s43, 0x20000")
    t("s_lshl_b32 s69, s65, 2\ns_add_u32 s69, s69, s%d\ns_lshl_b32 s69, s69, %d\ns_add_u32 s69, s69, 0x%x" % (sW, (7, 10, 10)[F4M], SM_F4))
    for d in (1, 2, 3):
        t("s_xor_b32 s67, s%d, %d\ns_lshl_b32 s66, s67, 16\ns_add_u32 s%d, s66, %d" % (sQ, d, 72 + d, (d - 1) * 4096))
        t("s_lshl_b32 s67, s67, %d\nv_add_u32 v%d, s67, v1" % ((4, 8, 8)[F4M], 28 + d))
        t("s_lshl_b32 s67, s%d, 16\ns_add_u32 s%d, s67, %d" % (sQ, 69 + d, (d - 1) * 4096))
    t("s_lshl_b32 s67, s%d, %d\nv_and_b32 v32, 3, v0\nv_lshl_add_u32 v32, v32, %d, s67" % (sQ, (4, 8, 8)[F4M], (2, 2, 6)[F4M]))
    t("s_mov_b32 s57, 0\ns_mov_b32 s58, 8192\ns_mov_b32 s59, 16384\ns_mov_b32 s64, 24576")
    t("v_mov_b32 v34, 0x3f80\nv_mov_b32 v35, 0x3f800000")
    mark(t, "setup")
    if cfg.get("tlb", 0):
        after(t, ("H", 43), 2)
        t.vm("buffer_load_dword a246, v29, s[40:43], s73 offen")
        t("v_readfirstlane_b32 s67, v%d" % vOO); dly(t, 3)
        t.vm("buffer_load_dword a246, v29, s[8:11], s67 offen")
    f4store = lambda d, ix: ("buffer_store_dword v%d, v%d, s[36:39], s69 offen offset:%d %s" % (vTG, 28 + d, 4 * ix, SC)) if F4M < 2 else ("buffer_store_dwordx4 %s, v%d, s[36:39], s69 offen offset:%d %s" % (Q(vTG), 28 + d, 64 * ix, SC))
    f4load = "buffer_load_dword v33, v32, s[36:39], s69 offen %s" % SC
    gp = lambda u: 4 * pend_[u] + 3 + 3
    RV = lambda d, m: 128 + 32 * d + 8 * m + 4
    rload = lambda d, m: "buffer_load_dwordx4 %s, v1, s[40:43], s%d offen offset:%d %s" % (Q(RV(d, m)), 69 + d, 1024 * m, SC)
    NFI = cfg.get("nfi", 3); NRI = cfg.get("nri", 1)
    fs = Seq(); rs = Seq(); pl_ = Seq(); assert NFI == 3; NB = str(cfg.get("nb", "1"))
    for d in (1, 2, 3):
        for m in range(4):
            t.at(gp(2 * d + m // 2))
            A = 128 + 32 * d + 8 * m; Bq = A + 4
            t("v_cvt_pk_bf16_f32 v%d, v%d, v%d\nv_cvt_pk_bf16_f32 v%d, v%d, v%d\nv_cvt_pk_bf16_f32 v%d, v%d, v%d\nv_cvt_pk_bf16_f32 v%d, v%d, v%d" % (A, A, A + 1, A + 1, A + 2, A + 3, A + 2, Bq, Bq + 1, A + 3, Bq + 2, Bq + 3))
            mark(t, ("cv", d, m))
            after(xs, ("cv", d, m), 1)
            xs.vm("buffer_store_dwordx4 %s, v1, s[40:43], s%d offen offset:%d %s" % (Q(A), 72 + d, 1024 * m, SC), ("ps", d, m)); mark(xs, ("ps", d, m))
    SP3 = cfg.get("sp3", 1)
    HU = ((1, (0, 1, 2, 3), 1), (2, (0, 1, 2, 3), 2)) + (((3, (0, 1), 0), (3, (2, 3), 3)) if SP3 else ((3, (0, 1, 2, 3), 3),))
    f4l3 = f4load.replace("v33,", "v39,")
    ool("FX:\n%s\ns_waitcnt vmcnt(0)\nv_cmp_eq_u32 vcc, s%d, v39\ns_and_b32 s29, vcc_lo, s28\ns_andn2_b32 s28, s28, s29" % (f4l3, sTAG))
    lat4 = [int(x) for x in str(cfg.get("p4_lat", "40")).split("-")]; lat4 += lat4[-1:] * 4
    for hi_, (d, ms, ix) in enumerate(HU):
        after(fs, ("ps", d, ms[-1]), cfg.get("f4_lat", 44)); flag(fs, f4store(d, ix), [("ps", d, ms[-1])]); mark(fs, ("f4", ix))
        vF = 36 + ix
        f4l = f4load.replace("v33,", "v%d," % vF)
        after(pl_, ("f4", ix), lat4[hi_]); pl_.vm(f4l, ("f4l", ix)); mark(pl_, ("f4l", ix))
        after(rs, ("f4l", ix), cfg.get("p4_rt", 36))
        if ix != 3:
            rs.wait([("f4l", ix)])
            rs("v_cmp_ne_u32 s[82:83], s%d, v%d" % (sTAG, vF)); dly(rs, 1)
            rs.atom(["s_and_b32 s29, s82, %d" % (1 << ix), "s_cselect_b32 s47, 0x40000000, s%d" % (69 + d), "s_or_b32 s28, s28, s29" if hi_ else "s_mov_b32 s28, s29"])
            ool("s_bitcmp1_b32 s29, %d\ns_cbranch_scc0 FX_n%d\n%s\nFX_n%d:" % (ix, ix, "\n".join(rload(d, m) for m in ms), ix))
        else:
            ool("s_cmp_eq_u32 s28, 0\ns_cbranch_scc1 FX_done\ns_cmp_eq_u32 s79, 0\ns_cbranch_scc1 FX_done\ns_sub_u32 s79, s79, 1\ns_branch FX\nFX_done:\n%s\ns_waitcnt vmcnt(0)\ns_branch FX_ret" % f4l3)
            rs.at(10 ** 6)
            rs.atom(["s_cmp_lg_u32 s28, 0", "s_cbranch_scc1 FX", "FX_ret:"])
            poll(rs, "P4%d" % ix, f4l, vF, ("f4l", ix), mask=str(1 << ix))
        for m in ms:
            rs.vm(rload(d, m).replace("s%d offen" % (69 + d), "s47 offen") if ix != 3 else rload(d, m), ("pl", d, m)); mark(rs, ("pl", d, m)); dly(rs, cfg.get("r_sp", 8))
    hs = Seq(); hdl = {}
    if not HPN: poll(hs, "P3a0", fload(96), vPD, "f3a0", early=cfg.get("pa_gap", 1))
    for u in range(nh_pre[0], 44):
        if u in own: continue
        for (U, nm, off, fl, lat) in ((UA, "P3a", 0, None, 0), (UB, "P3b", 32, "flagb", cfg.get("pb_lat", 80)), (UC, "P3c", 64, "flagc", cfg.get("pc_lat", 80))):
            if u == (max(U - 2, nh_pre[0]) if U != UC else U):
                if fl: after(hs, fl, lat)
                hs.vm(fload(off), nm); mark(hs, nm + "l")
            if u == U:
                after(hs, nm + "l", cfg.get("poll_rt", 44)); poll(hs, nm, fload(off), vPD, nm); mark(hs, nm)
        n0 = len(hs.u)
        for m in range(4): hload(hs, u, m, max(hfree[u], 4 * firstuse[u] - cfg.get("l2_la", 400)))
        for i in range(n0, len(hs.u)): hdl[i] = 4 * firstuse[u] - 1
        mark(hs, ("H", u))
    ds = Seq(); ddl = {}
    DL = lambda st: bar[st // B2 * B2 - 1] if st < 14 else (bar[13] if st < 18 else barF)
    for st in range(NPRE2, 22):
        n0 = len(ds.u)
        if st == "E":
            after(ds, "cready", 1); after(ds, ("hl", 3, 1), 1)
            for n in range(4):
                ds("s_mov_b32 s%d, %d\ns_add_u32 m0, s46, %d" % (sKD, 32768 * n, 2048 + 1024 * n))
                ds.vm("buffer_load_dwordx4 v26, s[24:27], s%d offen lds" % sKD)
            ds("s_add_u32 m0, s46, 6144"); ds.vm("buffer_load_dwordx4 v1, s[36:39], s59 offen lds")
            ds("s_add_u32 m0, s46, 7168"); ds.vm("buffer_load_dwordx4 v1, s[28:31], s58 offen lds", "Elast"); mark(ds, "edma")
            dl = 900
        else:
            if st == 14: after(ds, "cready", 1)
            for k in range(4): dma2(ds, st, k, bar[prevocc[st] // B2 * B2 + B2 - 1] + 1 if st >= 8 else 0)
            dl = DL(st)
            mark(ds, ("D", st))
        for i in range(n0, len(ds.u)): ddl[i] = dl
    RS = Stream("r", rs.units(), 2, deadline=lambda i: cfg.get("r_prio", 0)); PS = Stream("pl", pl_.units(), 2, deadline=lambda i: -2); RS.overflow = PS.overflow = True
    mk = multi(sc, [Stream("h", hs.units(), 2, deadline=lambda i: hdl.get(i, 0)), Stream("d", ds.units(), 2, deadline=lambda i: ddl.get(i, 0)),
                    Stream("x", xs.units(), 2), Stream("t", t.units(), 3, start=1), RS, PS, Stream("f", fs.units(), 2, deadline=lambda i: -2)],
               cl=cfg.get("cl", 70), cs=cfg.get("cs", 210), B0=cfg.get("b0", 150), busy0=cfg.get("busy0", 300), tinyfree=cfg.get("tf", 1))
    sl = sorted([(4 * firstuse[u] - 1 - mk[("H", u)], "h", u) for u in range(nh_pre[0], 44) if u not in own] + [(DL(st) - mk[("D", st)], "d", st) for st in range(NPRE2, 22)])
    if cfg.get("verbose"):
        print("loop2 slacks", sl[:6], {k: v for k, v in mk.items() if isinstance(k, str)}, "hl", [mk[("hl", m, p)] for m in range(4) for p in range(2)], "ps", [mk[("ps", d, m)] for d in (1, 2, 3) for m in range(4)], "barF", barF, "f4", [mk.get(("f4", d)) for d in (1, 2, 0, 3)], "f4l", [mk.get(("f4l", d)) for d in (1, 2, 0, 3)], "pl", [mk.get(("pl", d, m)) for d in (1, 2, 3) for m in range(4)])
    assert sl[0][0] > cfg.get("minslack", 30), sl[:4]
    assert mk["cready"] < rgap[firstuse[28]] and mk[("hl", 3, 1)] < 4 * firstuse[28] - 1 and mk["setup"] < gp(2) and mk[("tr", 3, 1)] < VFREE
    for nm in names:
        if TS and nm[0] == "g" and nm[1:].isdigit():
            g_ = 4 * (16 * (int(nm[1:]) + 1) - L2) - 2
            sc.put(g_ - 1, [Op("s_memrealtime s[100:101]")], 5)
            sc.put(g_, [Op("s_waitcnt lgkmcnt(0)\nv_writelane_b32 v%d, s100, %d" % (vTS, names.index(nm)))], 5)
    if cfg.get("drop"):
        for g in range(cfg.get("drop_lo", 120), cfg.get("drop_hi", 600)):
            for it in sc.g[g]:
                o = it[2]
                if it[0] in (2, 3) and o.text and "\n" not in o.text and not o.text.endswith(":"):
                    c = opclass(o.text)
                    if it[0] == 2 and not (c == "X" and "x4" in o.text): continue
                    if c in cfg["drop"] and "cmp" not in o.text and not any(("v%d," % r) in o.text.split(None, 2)[1] + "," for r in range(16, 32)):
                        o.text = "s_nop 0" if cfg.get("dropnop") else ""
    prog.add(sc.ops())
    stamp(s, "end2")
    def addp(d, m):
        s.wait([("pl", d, m)])
        for k in range(8):
            r = 128 + 8 * m + k
            s("v_dot2_f32_bf16 v%d, v%d, v%d, v%d" % (r, RV(d, m) + k // 2, 34 + k % 2, r))
    for un in PS.units[PS.pos:] + RS.units[RS.pos:]: s.u.append([un[0], None])
    stamp(s, "poll4")
    sM4 = [57, 58, 59, 64]
    for m in range(4):
        for d in (1, 2, 3): addp(d, m)
        stamp(s, "r%d" % m)
        s.vm("buffer_store_dwordx4 %s, v%d, s[8:11], s%d offen offset:%d %s" % (Q(128 + 8 * m), vOO, sM4[2 * (m % 2)], 64 * (m // 2), cfg.get("ost", SC)))
        s("s_nop 1")
        s.vm("buffer_store_dwordx4 %s, v%d, s[8:11], s%d offen offset:%d %s" % (Q(132 + 8 * m), vOO, sM4[2 * (m % 2) + 1], 64 * (m // 2), cfg.get("ost", SC)))
    prog.add(s.done())
    prog.emit(a)
    a("s_cmp_eq_u32 s%d, 31\ns_cbranch_scc0 L_noep\ns_cmp_eq_u32 s%d, 0\ns_cbranch_scc0 L_noep" % (sB, sJ))
    a("v_mov_b32 v40, 0x%x\ns_mov_b64 exec, 1\nbuffer_store_dword v%d, v40, s[36:39], 0 offen %s\ns_mov_b64 exec, -1" % (SM_EP, vTG, SC))
    a("L_noep:")
    if TS:
        a("s_waitcnt vmcnt(0)\ns_memrealtime s[100:101]\ns_waitcnt lgkmcnt(0)\nv_writelane_b32 v%d, s100, %d" % (vTS, len(names) - 1))
        a("s_cmp_lg_u32 s%d, %d\ns_cbranch_scc1 L_end" % (sW, cfg.get("tsw", 0)))
        if cfg.get("leak"):
            A, B = cfg["leak"].split(":")
            a("s_cmp_lg_u32 s2, %d\ns_cbranch_scc1 L_end" % cfg.get("leakwg", 100))
            a("v_readlane_b32 s64, v%d, %d\nv_readlane_b32 s65, v%d, %d\ns_nop 4\ns_sub_u32 s64, s65, s64\ns_mul_i32 s64, s64, %d\ns_min_u32 s64, s64, 200000" % (vTS, names.index(A), vTS, names.index(B), cfg.get("leakk", 8)))
            a("L_leak:\ns_memrealtime s[66:67]\ns_waitcnt lgkmcnt(0)\ns_sub_u32 s66, s66, s100\ns_cmp_lt_u32 s66, s64\ns_cbranch_scc1 L_leak")
        ws_srd(a, 12, WS_TS, 16384)
        a("s_lshl_b32 s75, s2, 6\nv_lshlrev_b32 v1, 2, v0\ns_mov_b64 exec, 0xffff\nbuffer_store_dword v%d, v1, s[12:15], s75 offen" % vTS)
    if cfg.get("rc"): STAMPS[1:1 + len(RC)] = RC
    a("L_end:")
    a("s_endpgm")
    if ".p2align 12" in a.lines and cfg.get("oolf", 1):
        i = a.lines.index(".p2align 12"); a.lines[i:i] = ool.lines
    else: a.lines += ool.lines
    a("L_codeend:")
    return name, a

DOC = """;
; instruction placed by hand-written rules into the issue gaps between the 16x16x32 bf16 MFMAs).
;   phase 1  [gate | up | B_re | B_im] projection, tile 256 x 288, weights by LDS-DMA, xn straight into registers
"""

def inst_sizes(lines):
    import subprocess, tempfile, os, re
    d = tempfile.mkdtemp()
    und = sorted(set(re.findall(r"L_trB?\d+\b", "\n".join(lines))))
    open(d + "/a.s", "w").write('.amdgcn_target "amdgcn-amd-amdhsa--gfx950"\n' + "\n".join(l for l in lines if not l.startswith(".p2align 12")) + "\n" + "".join(u + ":\n" for u in und))
    subprocess.check_call(["clang", "-x", "assembler", "-target", "amdgcn-amd-amdhsa", "-mcpu=gfx950", "-c", d + "/a.s", "-o", d + "/a.o"])
    o = subprocess.check_output(["llvm-objdump", "-d", "--mcpu=gfx950", d + "/a.o"], text=True)
    sz = [4 * len(m.group(1).split()) for m in re.finditer(r"// [0-9A-F]+: ([0-9A-F ]+)", o)]
    n = sum(1 for l in lines if parse(l))
    assert n == len(sz), (n, len(sz))
    return sz

def add_stubs(lines, cfg):
    NL = 1; step = cfg.get("tr_step", 128)
    sz = iter(inst_sizes(lines)); size = [next(sz) if parse(l) else 0 for l in lines]
    i0 = lines.index("L_main:"); iend = lines.index("L_end:")
    out = lines[:i0 + 1]; off = 0; targets = [4096 * p + step * k for p in range(0, 40) for k in range(NL)]
    n = 0; pos = []
    def penalty(i):
        if not lines[i - 1].startswith("v_mfma"): return 0 if not any(l.startswith("v_mfma") for l in lines[max(0, i - 6):i + 6]) else 1
        j = i; c = ["S"]
        while not lines[j].startswith("v_mfma") and j - i < 8:
            try: c.append(opclass(lines[j]))
            except AssertionError: return 0
            j += 1
        t = gap_time(c)
        return 0 if (t is not None and t <= 16) else 1
    for i in range(i0 + 1, len(lines)):
        if i < iend and size[i] and off >= targets[n] and (penalty(i) == 0 or off + size[i] > targets[n] + 56):
            out.append("L_tr%d:" % n); out.append(("STUB", n)); off += 4; n += 1
        out.append(lines[i]); off += size[i]
    n1 = min(n, cfg.get("tr_n", 12))
    res = []
    for l in out:
        if isinstance(l, tuple):
            k = l[1]; nx = k + 4
            if k < n1: res.append("s_cbranch_execz %s" % ("L_tr%d" % nx if nx < n1 else "L_trret"))
            elif cfg.get("tr2", 1): res.append("s_cbranch_execz %s" % ("L_tr%d" % nx if nx < n else "L_trret2"))
            else: res.append("s_nop 0")
        elif "L_trB" in l:
            k = n1 + int(l[-1]); res.append(l.replace("L_trB" + l[-1], "L_tr%d" % k if k < n else "L_trret2"))
        else: res.append(l)
    if cfg.get("verbose"): print("pages", n)
    return res

def build(cfg):
    name, a = gen(cfg)
    hdr = open("cdna_kernels/%s.s.ref" % NAME).read().split("; Override launch")[0]
    out = hdr + "; @launch grid=(256,1,1) block=(256,1,1) lds=163840\n"
    out += DOC
    out += '.amdgcn_target "amdgcn-amd-amdhsa--gfx950"\n'
    import re as _re
    lines = pad_hazards([l for l in a.lines if l and not _re.fullmatch(r"s_mov_b32 (s\d+), \1", l)], cfg.get("verbose", 0) > 1)
    import re
    def shorten(l):
        m = re.fullmatch(r"s_mov_b32 (s\d+), (\d+|0x[0-9a-f]+)", l)
        if m and 64 < int(m.group(2), 0) < 32768: return "s_movk_i32 %s, %s" % m.groups()
        return l
    lines = [shorten(l) for l in lines if not re.fullmatch(r"s_mov_b32 (s\d+), \1", l)]
    if cfg.get("tramp", 1): lines = add_stubs(lines, cfg)
    if cfg.get("verbose"): print(gap_report(lines))
    if cfg.get("lsc"): lines = [l.replace("sc0 sc1", cfg["lsc"]) if l.startswith("buffer_load") else l for l in lines]
    if cfg.get("jit"):
        import random
        rnd = random.Random(cfg["jit"]); outl = []; n = 0; nm = 0
        at = set(rnd.sample(range(3712), 10)) | {0, 150, 2303, 2304}
        for l in lines:
            hit = False
            if l.startswith("v_mfma"):
                hit = nm in at; nm += 1
            if l.startswith(("P1_chk:", "P1b_chk:", "L_trret2:", "L_epi:")) or "agfill" in l: hit = True
            if hit:
                n += 1
                outl += ["s_cselect_b32 s101, 1, 0", "s_mul_i32 s100, s2, %d" % rnd.randrange(1, 1 << 12, 2), "s_add_u32 s100, s100, s62" if rnd.random() < 0.5 else "s_nop 0", "s_bfe_u32 s100, s100, 0x%x" % (0x40000 + rnd.randrange(0, 4)),
                         "s_cmp_lg_u32 s100, %d" % rnd.randrange(16), "s_cbranch_scc1 L_jit%d" % n] + ["s_sleep 127"] * rnd.randrange(1, 3) + ["L_jit%d:" % n, "s_cmp_eq_u32 s101, 1"]
            outl.append(l)
        lines = outl
    la = cfg.get("laux"); da = cfg.get("daux")
    if la: lines = [l + " " + la if (l.startswith("buffer_load_dwordx4 a[") and "sc1" not in l) else l for l in lines]
    if da: lines = [l.replace(" lds", " %s lds" % da) if l.endswith(" lds") else l for l in lines]
    out += "\n".join(lines) + "\n"
    if cfg.get("cyc"): out = out.replace("s_memrealtime", "s_memtime")
    b = Asm(); kernel_desc(b, name, 512, accum=256); out += b.text()
    return out

if __name__ == "__main__":
    cfg = {}
    for kv in sys.argv[2:]:
        k, v = kv.split("=")
        try: v = int(v)
        except ValueError:
            try: v = float(v)
            except ValueError: v = v.replace("+", " ")
        cfg[k] = v
    open(sys.argv[1], "w").write(build(cfg))
```

```python
import sys, math, struct
from asmlib import *

NAME = "parallel_sum__ssm_conv_s5__glu_gated_geglu__prompt"
KX, KLRE, KLIM, KBRE, KBIM, KCRE, KCIM, KLDT, KDSK, KBX, KWG, KWU, KWD, KOUT, KDBG, KWS = [8 * i for i in range(16)]
WS_XN = 0
WS_H = 0x400000
H_BLK = 176 * 4096
WS_SM = 0x1A00000
SM_AG = 0; SM_ST = 0x40000; SM_EP = 0x48000; SM_F1 = 0x50000; SM_F1B = 0x60000; SM_F3 = 0x70000; SM_F4 = 0xB0000; SM_SIZE = 0xF0000
WS_TS = 0x1B00000
WS_PART = 0x2000000
NSTAMPS = [16]
SPLIT_LAYOUT = True
XN_DIRECT = 0
STAMPS = []

def f2u(x): return struct.unpack("<I", struct.pack("<f", x))[0]
def fx(x): return "0x%08x" % f2u(x)
P = lambda r: "v[%d:%d]" % (r, r + 1)
Q = lambda r: "v[%d:%d]" % (r, r + 3)
LOG2E = 1.4426950408889634
K = lambda v: (lambda it: v)

def ws_srd(a, r, off, size):
    a("s_add_u32 s%d, s6, 0x%x\ns_addc_u32 s%d, s7, 0\ns_and_b32 s%d, s%d, 0xffff\ns_mov_b32 s%d, 0x%x\ns_mov_b32 s%d, 0x20000" % (r, off, r + 1, r + 1, r + 1, r + 2, size, r + 3))

def mfma16(d, A, B, zero=False):
    return "v_mfma_f32_16x16x32_bf16 %s, %s, %s, %s" % (R(d[0], d[1], 4), R(A[0], A[1], 4), R(B[0], B[1], 4), "0" if zero else R(d[0], d[1], 4))

def cmul_pk(a, dr, di, ar, ai, br, bi, t):
    a("v_pk_mul_f32 %s, %s, %s" % (P(t), P(ai), P(bi)))
    a("v_pk_fma_f32 %s, %s, %s, %s neg_lo:[0,0,1] neg_hi:[0,0,1]" % (P(t), P(ar), P(br), P(t)))
    a("v_pk_mul_f32 %s, %s, %s" % (P(t + 2), P(ar), P(bi)))
    a("v_pk_fma_f32 %s, %s, %s, %s" % (P(di), P(ai), P(br), P(t + 2)))
    a("v_mov_b32 v%d, v%d\nv_mov_b32 v%d, v%d" % (dr, t, dr + 1, t + 1))

def horner_pk(a, s, L, e, d):
    a("v_pk_fma_f32 %s, %s, %s, %s" % (P(d), P(L), P(s), P(e)))
    a("v_pk_fma_f32 %s, %s, %s, %s" % (P(d + 2), P(L), P(s + 2), P(e + 2)))
    a("v_pk_fma_f32 %s, %s, %s, %s neg_lo:[1,0,0] neg_hi:[1,0,0]" % (P(d), P(L + 2), P(s + 2), P(d)))
    a("v_pk_fma_f32 %s, %s, %s, %s" % (P(d + 2), P(L + 2), P(s), P(d + 2)))

def horner_sc(a, s, L, e):
    for T in range(2):
        a("v_fmac_f32 v%d, v%d, v%d" % (e + T, L + T, s + T)); a("v_fmac_f32 v%d, v%d, v%d" % (e + 2 + T, L + T, s + 2 + T))
    for T in range(2):
        a("v_fma_f32 v%d, -v%d, v%d, v%d" % (e + T, L + 2 + T, s + 2 + T, e + T)); a("v_fmac_f32 v%d, v%d, v%d" % (e + 2 + T, L + 2 + T, s + T))

def gelu_block(a, items, CC, T):
    for k, (g, u, o) in enumerate(items): a("v_pk_mul_f32 %s, %s, %s" % (P(T + 2 * k), P(g), P(g)))
    for k, (g, u, o) in enumerate(items): a("v_pk_fma_f32 %s, %s, %s, %s op_sel:[0,1,0] op_sel_hi:[1,1,0]" % (P(T + 2 * k), P(T + 2 * k), P(CC), P(CC)))
    for k, (g, u, o) in enumerate(items): a("v_pk_mul_f32 %s, %s, %s" % (P(T + 2 * k), P(T + 2 * k), P(g)))
    for k, (g, u, o) in enumerate(items):
        a("v_exp_f32 v%d, v%d" % (T + 2 * k, T + 2 * k)); a("v_exp_f32 v%d, v%d" % (T + 2 * k + 1, T + 2 * k + 1))
        a("v_pk_mul_f32 %s, %s, %s" % (P(u), P(g), P(u)))
    for k, (g, u, o) in enumerate(items): a("v_pk_add_f32 %s, %s, 1.0 op_sel_hi:[1,0]" % (P(T + 2 * k), P(T + 2 * k)))
    for k, (g, u, o) in enumerate(items):
        a("v_rcp_f32 v%d, v%d" % (T + 2 * k, T + 2 * k)); a("v_rcp_f32 v%d, v%d" % (T + 2 * k + 1, T + 2 * k + 1))
    for k, (g, u, o) in enumerate(items): a("v_pk_mul_f32 %s, %s, %s" % (P(u), P(u), P(T + 2 * k)))
    for k, (g, u, o) in enumerate(items): a("v_cvt_pk_bf16_f32 v%d, v%d, v%d" % (o, u, u + 1))

class Seq:
    def __init__(self): self.u = []
    def __call__(self, s):
        for l in s.split("\n"):
            l = l.strip()
            assert not l.startswith(("buffer_", "global_", "ds_")), ("uncounted memory op", l)
            self.u.append([[Op(l)], None])
    def atom(self, ops, early=None): self.u.append([[o if isinstance(o, Op) else Op(o) for o in ops], early])
    def vm(self, text, tag=None, needs=None, early=None):
        if needs: self.wait(needs, early=early); early = None
        self.u.append([[Op(text, "vm", K(tag) if tag is not None else None)], early])
    def lg(self, text, tag=None, needs=None):
        if needs: self.wait(needs)
        self.u.append([[Op(text, "lg", K(tag) if tag is not None else None)], None])
    def wait(self, needs, drain=None, early=None): self.u.append([[Op("", needs=K(needs) if needs else None, drain=drain)], early])
    def op(self, o, early=None): self.u.append([[o], early])
    def delay(self, n):
        self._d = n; i = len(self.u) - 1
        self.u.append([[Op("")], lambda res, n=n: res[-1] + n])
    def at(self, g): self.u.append([[Op("")], g])
    def done(self):
        o = [x for un, _ in self.u for x in un]; self.u = []; return o
    def units(self):
        u = self.u; self.u = []; return u

def order_mfma(groups):
    ch = [groups[2 * p][1] == groups[2 * p + 1][1] for p in range(len(groups) // 2)]
    out = []; up = True
    for p, c in enumerate(ch):
        if c:
            for m in (range(4) if up else range(3, -1, -1)): out += [(2 * p, m), (2 * p + 1, m)]
            up = not up
        else:
            for G in (2 * p, 2 * p + 1):
                out += [(G, m) for m in (range(4) if up else range(3, -1, -1))]; up = not up
    return out, (lambda G: G & ~1 if ch[G // 2] else G), (lambda G: G | 1 if (G >= 0 and ch[G // 2]) else G)

W_ST = 28672; U_OFF = 14336
B_BASE = 131072; B_ST = 8192
LN_LDS = 65536 + W_ST

def gen(cfg):
    name = NAME + "_kernel"
    a = Asm(); kernel_header(a, name)
    ool = Asm()
    TS = cfg.get("ts")
    names = ["start"] + cfg.get("stamps", "flag1 poll1 loop1 end1 p01 pub loop2 end2 poll4").split() + ["end"]
    STAMPS[:] = names; NSTAMPS[0] = len(names)
    vTS = 15; RC = []
    def stamp(s, nm):
        if TS and nm in names: s.atom(["s_memrealtime s[100:101]", "s_waitcnt lgkmcnt(0)", "v_writelane_b32 v%d, s100, %d" % (vTS, names.index(nm))])
    SC = cfg.get("sc", "sc0 sc1")
    HL = cfg.get("hl", "sc1")
    F4M = cfg.get("f4m", 1); F3M = cfg.get("f3m", 0); FBW = cfg.get("fbw", 0)
    FS = cfg.get("f1s", 128)
    prog = Prog(); s = Seq()
    sJ, sI, sW, sB, sQ, sTN, sTAG = 60, 61, 62, 63, 52, 53, 3
    sMW, sM3, sMB, sKW, sKB, sKX, sCNT = 54, 55, 56, 57, 58, 59, 81
    sPAs, sKPA, sKPB, sPBs = 76, 77, 78, 80
    def poll(s, nm, loadtext, dst, tagneed, mask=None, early=None):
        s.wait([tagneed], early=early)
        s.atom(["%s_chk:" % nm, "v_cmp_ne_u32 vcc, s%d, v%d" % (sTAG, dst), "s_and_b64 vcc, vcc, %s" % (mask or "exec"), "s_cbranch_scc1 %s_retry" % nm, "%s_ok:" % nm])
        ool("%s_retry:" % nm)
        if cfg.get("rc"): RC.append(nm); ool("v_readlane_b32 s100, v15, %d\ns_nop 3\ns_add_u32 s100, s100, 100\nv_writelane_b32 v15, s100, %d" % (len(RC), len(RC)))
        ool("%s_r2:\ns_cmp_eq_u32 s79, 0\ns_cbranch_scc1 %s_ok\ns_sub_u32 s79, s79, 1\ns_sleep %d\n%s\ns_waitcnt vmcnt(0)\ns_branch %s_chk" % (nm, nm, cfg.get("psl", 1), loadtext, nm))
    def flag(s, text, needs, early=None):
        s.wait(needs, early=early)
        s.atom(["s_mov_b64 exec, %d" % (15 if "x4" in text else 1), Op(text, "vm"), "s_mov_b64 exec, -1"])

    s("s_cmp_ge_u32 s2, 256\ns_cbranch_scc1 L_end")
    if cfg.get("gx"): s("s_xor_b32 s2, s2, %d" % cfg["gx"])
    if TS: s("s_memrealtime s[100:101]")
    CP = cfg.get("cpf", 1)
    s("s_load_dwordx2 s[4:5], s[0:1], %d" % KX)
    s("s_load_dwordx2 s[6:7], s[0:1], %d" % KWS)
    s("s_load_dwordx4 s[12:15], s[0:1], %d" % KWG)
    s("s_load_dwordx4 s[24:27], s[0:1], %d" % KBRE)
    s("s_load_dwordx4 s[96:99], s[0:1], %d" % KLRE)
    s("s_load_dwordx4 s[92:95], s[0:1], %d" % KLDT)
    s("s_load_dwordx4 s[84:87], s[0:1], %d" % KWD)
    s("s_load_dwordx4 s[88:91], s[0:1], %d" % KCRE)
    if CP:
        s("s_getpc_b64 s[82:83]")
        s.atom(["L_pc:"])
        s("s_lshr_b32 s64, s2, 3\ns_mul_i32 s64, s64, 28\nv_add_u32 v3, s64, v0\nv_cmp_gt_u32 vcc, 64, v0\nv_cndmask_b32 v2, v3, v0, vcc\nv_lshlrev_b32 v2, 7, v2")
        s("v_min_u32 v2, L_codeend-L_pc-4, v2\nv_mov_b32 v3, 0\nv_lshl_add_u64 v[2:3], v[2:3], 0, s[82:83]")
        s("v_cmp_gt_u32 vcc, 92, v0\ns_and_saveexec_b64 s[66:67], vcc\ns_cbranch_execz L_nocp")
        s.atom([Op("global_load_dword a246, v[2:3], off")])
        s.atom(["L_nocp:", "s_mov_b64 exec, -1"])
    s("v_lshrrev_b32 v1, 6, v0\nv_and_b32 v0, 63, v0")
    s("v_readfirstlane_b32 s%d, v1" % sW)
    s("v_lshlrev_b32 v1, 4, v0")
    s("s_mov_b32 s79, 0x200000")
    s("s_bfe_u32 s%d, s2, 0x20001" % sQ)
    s("s_and_b32 s64, s2, 1\ns_lshl_b32 s64, s64, 2\ns_lshr_b32 s%d, s2, 6\ns_add_u32 s%d, s%d, s64" % (sI, sI, sI))
    s("s_bfe_u32 s%d, s2, 0x30003" % sTN)
    s("s_lshl_b32 s%d, s%d, 3\ns_add_u32 s%d, s%d, s%d" % (sJ, sQ, sJ, sJ, sTN))
    s("s_lshl_b32 s%d, s%d, 2\ns_add_u32 s%d, s%d, s%d" % (sB, sI, sB, sB, sW))
    s("s_and_b32 s64, s2, 1\ns_lshl_b32 s64, s64, 1\ns_lshr_b32 s65, s%d, 1\ns_add_u32 s64, s64, s65\ns_lshl_b32 s64, s64, 4" % sW)
    s("s_lshl_b32 s65, s%d, 1\ns_add_u32 s64, s64, s65" % sQ)
    s("s_lshr_b32 s66, s2, 3\ns_lshl_b32 s65, s66, 6\ns_add_u32 s64, s64, s65")
    s("s_lshl_b32 s67, s64, 11\ns_and_b32 s68, s%d, 1\ns_lshl_b32 s65, s68, 8\ns_add_u32 s67, s67, s65" % sW)
    LQ = cfg.get("lq", 1)
    if LQ: s("v_and_b32 v48, 15, v0\nv_bfe_u32 v56, v0, 1, 1\nv_and_b32 v57, 1, v0\nv_lshl_add_u32 v56, v57, 3, v56\nv_lshrrev_b32 v57, 2, v0\nv_lshlrev_b32 v40, 11, v56\nv_lshl_add_u32 v40, v57, 4, v40")
    else: s("v_and_b32 v48, 15, v0\nv_lshrrev_b32 v56, 5, v0\nv_bfe_u32 v57, v0, 4, 1\nv_lshl_add_u32 v56, v57, 3, v56\nv_lshlrev_b32 v40, 11, v56\nv_lshl_add_u32 v40, v48, 4, v40")
    s("s_mov_b32 s10, %d\ns_mov_b32 s11, 0x20000" % (2048 * 2048))
    s("s_waitcnt lgkmcnt(0)")
    if TS: s("v_writelane_b32 v%d, s100, 0" % vTS)
    if cfg.get("rc"): s("v_mov_b32 v15, 0")
    stamp(s, "karg")
    s("s_mov_b32 s8, s4\ns_and_b32 s9, s5, 0xffff")
    for q in range(4): s.vm("buffer_load_dwordx4 %s, v40, s[8:11], s67 offen offset:%d" % (Q(64 + 4 * q), 512 * q), ("x", q))
    s("s_add_u32 s70, s6, 0x%x\ns_addc_u32 s71, s7, 0" % (WS_SM + SM_EP))
    s("s_load_dword s%d, s[70:71], 0" % sTAG)
    srd(s, 16, 14, 15, 1024 * 7168); srd(s, 12, 12, 13, 1024 * 7168)
    srd(s, 28, 26, 27, 1024 * 2048); srd(s, 24, 24, 25, 1024 * 2048)
    s("s_cmp_ge_u32 s%d, 2" % sW)
    s("s_cselect_b32 s20, s16, s12\ns_cselect_b32 s21, s17, s13\ns_mov_b32 s22, %d\ns_mov_b32 s23, 0x20000" % (1024 * 7168))
    ws_srd(s, 36, WS_SM, SM_SIZE)
    s("v_lshrrev_b32 v49, 4, v0")
    WGF = 1; vP1 = 63
    s("v_and_b32 v60, 31, v0\nv_lshlrev_b32 v60, 2, v60\ns_lshl_b32 s81, s%d, 7\ns_add_u32 s81, s81, 0x%x" % (sB, SM_F1B))
    s("v_and_b32 v63, 7, v0\nv_lshlrev_b32 v63, 6, v63\ns_lshl_b32 s75, s%d, 11\ns_lshl_b32 s65, s%d, 9\ns_add_u32 s75, s75, s65\ns_add_u32 s75, s75, 0x%x" % (sB, sQ, SM_F1))
    if FBW: s("s_add_u32 s81, s75, 0x%x" % (SM_F1B - SM_F1))
    FT = cfg.get("ftouch", 2)
    if FT & 4: s.vm("buffer_load_dword a246, v63, s[36:39], s75 offen %s" % SC)
    if FT & 1: s.vm("buffer_load_dword a246, v60, s[36:39], s81 offen %s" % SC)
    s("v_mov_b32 v41, -1\nv_lshlrev_b32 v42, 2, v0\ns_xor_b32 s69, s2, 0xf8\ns_lshl_b32 s69, s69, 10\ns_lshl_b32 s65, s%d, 8\ns_add_u32 s69, s69, s65" % sW)
    s.vm("buffer_store_dword v41, v42, s[36:39], s69 offen %s" % SC, "agfill")
    vWA, vBA0, vBA1, vWA2, vW0, vW3, vB, vJ, vPA, vPB = 2, 3, 4, 5, 6, 9, 10, 12, 13, 14
    s("s_lshl_b32 s70, s66, 1\ns_and_b32 s65, s2, 1\ns_add_u32 s70, s70, s65")
    s("s_mul_i32 s69, s70, 7168\ns_mul_i32 s65, s%d, 1792\ns_add_u32 s69, s69, s65\nv_and_b32 v40, 31, v0\nv_min_u32 v40, 13, v40\nv_lshl_add_u32 v44, v40, 7, s69" % sQ)
    s("v_and_b32 v45, 3, v0\ns_lshl_b32 s69, s%d, 8\ns_lshl_b32 s65, s70, 2\ns_add_u32 s69, s69, s65\nv_add_u32 v45, s69, v45\nv_lshlrev_b32 v45, 11, v45" % sQ)
    if cfg.get("pfd"):
        n_ = cfg["pfd"]
        s("s_and_b32 s65, s2, 1\ns_mul_i32 s69, s65, %d\ns_add_u32 s69, s69, 7168\ns_mul_i32 s65, s65, %d\ns_add_u32 s65, s65, 8192\nv_cmp_gt_u32 vcc, 32, v0" % (-2 * 7168, -2 * 8192))
        s("v_mov_b32 v40, s69\nv_mov_b32 v43, %d\nv_cndmask_b32 v40, v40, v43, vcc\nv_add_u32 v44, v44, v40\nv_mov_b32 v40, s65\nv_mov_b32 v43, %d\nv_cndmask_b32 v40, v40, v43, vcc\nv_add_u32 v45, v45, v40" % (n_ * 64 * 7168, n_ * 128))
    s("s_mov_b32 s69, %d\ns_cmp_ge_u32 s%d, 2\ns_cselect_b64 vcc, -1, 0\nv_cndmask_b32 v%d, v44, v45, vcc\ns_cselect_b32 s%d, 128, s69" % (64 * 7168, sW, vPA, sPAs))
    s("s_cselect_b32 s40, s24, s12\ns_cselect_b32 s41, s25, s13\ns_cselect_b32 s69, s28, s16\ns_cselect_b32 s65, s29, s17\ns_cselect_b32 s42, s26, s14")
    s("s_bitcmp1_b32 s%d, 0\ns_cselect_b32 s40, s69, s40\ns_cselect_b32 s41, s65, s41\ns_mov_b32 s43, 0x20000\ns_mov_b32 s%d, 0" % (sW, sKPA))
    def pfa(s):
        s.vm(("buffer_load_dword a246, v%d, s[40:43], s%d offen %s" % (vPA, sKPA, cfg.get("pax", ""))).strip()); s("s_add_u32 s%d, s%d, s%d" % (sKPA, sKPA, sPAs))
    def pfb(s):
        s.vm(("buffer_load_dword a246, v%d, s[44:47], s%d offen %s" % (vPB, sKPB, cfg.get("pbx", ""))).strip()); s("s_add_u32 s%d, s%d, s%d" % (sKPB, sKPB, sPBs))
    ND = cfg.get("dup0", 0)
    if ND:
        s("s_and_b32 s65, s2, 1\ns_lshl_b32 s65, s65, 1\ns_sub_u32 s65, 1, s65\ns_cmp_ge_u32 s%d, 2\ns_mov_b32 s69, 7168\ns_cselect_b32 s69, 8192, s69\ns_mul_i32 s69, s69, s65" % sW)
        s("v_lshrrev_b32 v43, 5, v0\nv_mul_lo_u32 v43, v43, s69\nv_add_u32 v%d, v%d, v43" % (vPA, vPA))
        for _ in range(ND): pfa(s)
        s("v_sub_u32 v%d, v%d, v43" % (vPA, vPA))
    if cfg.get("pfd"): s("s_mov_b32 exec_lo, 0")
    for _ in range(cfg.get("pf_t0", 3) - ND): pfa(s)
    if cfg.get("pfd"): s("s_mov_b64 exec, -1\ns_mul_i32 s%d, s%d, %d" % (sKPA, sPAs, cfg.get("pf_t0", 3) - cfg["pfd"]))
    AL = cfg.get("al", 0)
    if AL & 1:
        s("s_and_b32 s65, s%d, 1\ns_lshl_b32 s65, s65, 1\ns_sub_u32 s65, 1, s65\ns_cmp_ge_u32 s%d, 2\ns_mov_b32 s69, 14336\ns_cselect_b32 s69, 16384, s69\ns_mul_i32 s69, s69, s65" % (sTN, sW))
        s("v_lshrrev_b32 v43, 5, v0\nv_mul_lo_u32 v43, v43, s69\nv_add_u32 v%d, v%d, v43" % (vPA, vPA))
        s("s_add_u32 s65, s%d, 1\ns_bitcmp1_b32 s65, 1\ns_cselect_b32 s%d, 0x40000000, s%d" % (sTN, sKPA, sKPA))
    AS = cfg.get("asym", 0)
    if AS & 1:
        s("s_and_b32 s65, s2, 1\ns_lshl_b32 s65, s65, 1\ns_sub_u32 s65, 1, s65\ns_cmp_ge_u32 s%d, 2\ns_mov_b32 s69, 7168\ns_cselect_b32 s69, 8192, s69\ns_mul_i32 s69, s69, s65" % sW)
        s("v_lshrrev_b32 v43, 5, v0\nv_mul_lo_u32 v43, v43, s69\nv_add_u32 v%d, v%d, v43" % (vPA, vPA))
        s("s_getreg_b32 s65, hwreg(HW_REG_XCC_ID, 0, 1)\ns_cmp_eq_u32 s65, %d\ns_cselect_b32 s%d, 0x40000000, s%d" % (0 if AS & 4 else 1, sKPA, sKPA))
    s("s_and_b32 s71, s%d, 1\ns_lshl_b32 s71, s71, 1\ns_mul_i32 s72, s%d, 224\ns_and_b32 s73, s%d, 1\ns_add_u32 s73, s73, 12" % (sJ, sJ, sW))
    for k in range(4):
        if k < 3: s("s_add_u32 s69, s%d, %d\ns_lshl_b32 s69, s69, 6" % (sW, 4 * k))
        else: s("s_lshl_b32 s69, s73, 6")
        s("v_add_u32 v40, s69, v0\nv_mul_u32_u24 v44, 4682, v40\nv_lshrrev_b32 v44, 16, v44\nv_mul_u32_u24 v45, 14, v44\nv_sub_u32 v45, v40, v45")
        s("v_add_u32 v45, s71, v45\nv_subrev_u32 v43, 14, v45\nv_min_u32 v45, v45, v43")
        s("v_lshrrev_b32 v43, 1, v44\nv_xor_b32 v43, v43, v44\nv_and_b32 v43, 4, v43\nv_mul_u32_u24 v43, 3, v43\nv_xor_b32 v44, v44, v43")
        s("v_mul_u32_u24 v44, 7168, v44\nv_lshl_add_u32 v44, v45, 4, v44\nv_add_u32 v%d, s72, v44" % (vW0 + k))
    s("v_lshrrev_b32 v50, 3, v0\ns_lshl_b32 s69, s%d, 3\nv_add_u32 v40, s69, v50\nv_bfe_u32 v44, v40, 1, 3\nv_and_b32 v51, 7, v0\nv_xor_b32 v44, v44, v51" % sW)
    s("v_lshlrev_b32 v47, 11, v40\nv_lshl_add_u32 v47, v44, 4, v47")
    s("s_lshl_b32 s69, s%d, 16\nv_add_u32 v%d, s69, v47" % (sJ, vB))
    s("s_lshl_b32 s%d, s%d, 10\ns_lshl_b32 s%d, s73, 10" % (sMW, sW, sM3))
    s("s_cmp_ge_u32 s%d, 2\ns_cselect_b32 s69, %d, 0\ns_add_u32 s%d, s%d, s69\ns_add_u32 s%d, s%d, %d" % (sW, U_OFF, sM3, sM3, sMB, sMW, B_BASE))
    s("s_lshl_b32 s65, s%d, 9\ns_add_u32 s65, s65, 57344\nv_lshl_add_u32 v52, v0, 3, s65\nv_xor_b32 v54, 512, v52" % sW)
    if LQ: s("v_lshlrev_b32 v55, 12, v49\nv_lshrrev_b32 v44, 2, v48\nv_lshl_add_u32 v55, v44, 8, v55\nv_and_b32 v44, 48, v1\nv_add_u32 v55, v55, v44")
    else: s("v_lshrrev_b32 v55, 2, v48\nv_lshlrev_b32 v55, 12, v55\nv_and_b32 v44, 3, v0\nv_lshl_add_u32 v55, v44, 8, v55\nv_lshl_add_u32 v55, v49, 4, v55")
    s("s_lshl_b32 s70, s66, 17\ns_lshl_b32 s67, s%d, 10\ns_add_u32 s70, s70, s67\ns_and_b32 s67, s2, 1\ns_lshl_b32 s67, s67, 7\ns_add_u32 s70, s70, s67" % sQ)
    s("s_lshr_b32 s67, s%d, 1\ns_lshl_b32 s67, s67, 6\ns_add_u32 s70, s70, s67\ns_lshl_b32 s67, s68, 14\ns_add_u32 s70, s70, s67" % sW)
    s("s_add_u32 s71, s70, 32768\ns_add_u32 s72, s70, 65536\ns_add_u32 s73, s70, 98304")
    s("s_lshl_b32 s74, s2, 7\ns_lshr_b32 s67, s%d, 1\ns_lshl_b32 s67, s67, 6\ns_add_u32 s74, s74, s67\ns_add_u32 s74, s74, 0x%x" % (sW, SM_ST))
    ws_srd(s, 48, WS_XN, 0x400000)
    dma_items = [(vW0, 12, sKW, sMW, 0), (vW0 + 1, 12, sKW, sMW, 4096), (vW0 + 2, 12, sKW, sMW, 8192), (vW3, 20, sKW, sM3, 0),
                 (vW0, 16, sKW, sMW, U_OFF), (vW0 + 1, 16, sKW, sMW, U_OFF + 4096), (vW0 + 2, 16, sKW, sMW, U_OFF + 8192),
                 (vB, 24, sKB, sMB, 0), (vB, 28, sKB, sMB, 4096)]
    def dma1(s, st, k, early=None):
        v, sr, so, mb, off = dma_items[k]
        isb = mb == sMB
        base = ((st >> 1) & 1) * (16384 if isb else 65536) + (st & 1) * (B_ST if isb else W_ST)
        if k == 0: s("s_mov_b32 s%d, %d" % (sKW, st * 64 * 7168))
        if k == 7: s("s_mov_b32 s%d, %d" % (sKB, st * 128))
        s("s_add_u32 m0, s%d, %d" % (mb, off + base))
        s.op(Op("buffer_load_dwordx4 v%d, s[%d:%d], s%d offen lds" % (v, sr, sr + 3, so), "vm", K(("D", st, k))), early)
    CH1 = cfg.get("ch1", 1)
    xalloc = {}; xprev = {}; fifo = [(("a", r), None) for r in (96, 112, 128, 144, 192)]
    for u in range(32):
        if u == 26: xalloc[u] = ("v", 48); xprev[u] = None; continue
        xalloc[u], xprev[u] = fifo.pop(0); fifo.append((xalloc[u], u))
    aX, aW, NWB = 96, 208, 8
    def xload(s, u, m, early=None):
        if m == 0: s("s_mov_b32 s%d, %d" % (sKX, u * 4096))
        s.op(Op("buffer_load_dwordx4 %s, v%d, s[8:11], s%d offen offset:%d %s" % (R(xalloc[u][0], xalloc[u][1] + 4 * m, 4), 1, sKX, 1024 * m, HL), "vm", K(("X", u, m))), early)
    def pro_stage(st):
        for k in range(9): dma1(s, st, k)
    ND0P = cfg.get("d_t0", 0)
    for k in range(ND0P): dma1(s, 0, k)
    EP_LDS = 131072; EPW = 8192
    PK = dict(C=252, CA=253, TOK=254, COL=255, D=240, TA=242, TRW=243, TRR=244, AG=245)
    s("v_lshrrev_b32 v40, 1, v48\nv_xor_b32 v40, v40, v49\nv_lshlrev_b32 v40, 4, v40\nv_lshl_add_u32 v40, v48, 7, v40")
    s("v_add_u32 v%d, %d, v40\nv_xor_b32 v%d, 64, v%d" % (vBA0, B_BASE, vBA1, vBA0))
    s("v_lshrrev_b32 v40, 1, v49\nv_lshlrev_b32 v40, 4, v40\nv_and_b32 v41, 1, v49\nv_lshlrev_b32 v41, 2, v41\nv_lshrrev_b32 v50, 2, v48\nv_add3_u32 v11, v40, v41, v50")
    s("v_mul_u32_u24 v40, 224, v11\nv_and_b32 v51, 3, v0\nv_lshl_add_u32 v%d, v51, 3, v40\nv_add_u32 v%d, 0x10000, v%d" % (vWA, vWA2, vWA))
    s("s_lshl_b32 s65, s%d, 17\ns_add_u32 s8, s6, s65\ns_addc_u32 s9, s7, 0\ns_and_b32 s9, s9, 0xffff\ns_mov_b32 s10, 0x20000" % sB)
    s("s_lshl_b32 s83, s2, 4\ns_lshl_b32 s65, s%d, 2\ns_add_u32 s83, s83, s65" % sW)
    if WGF: s("s_and_b32 s82, s2, 7\ns_lshl_b32 s82, s82, 6\ns_lshl_b32 s65, s66, 11\ns_add_u32 s82, s82, s65\ns_lshl_b32 s65, s%d, 9\ns_add_u32 s82, s82, s65\ns_add_u32 s82, s82, 0x%x" % (sW, SM_F1))
    else: s("s_add_u32 s82, s83, 0x%x" % SM_F1)
    s(("s_add_u32 s83, s82, 0x%x" % (SM_F1B - SM_F1)) if FBW else ("s_add_u32 s83, s83, 0x%x" % SM_F1B))
    def tramp():
        s("s_mov_b64 exec, 0")
        for w in range(1, 4): s("s_cmp_eq_u32 s%d, %d\ns_cbranch_scc1 L_tr%d" % (sW, w, w))
        s("s_branch L_tr0")
        s.atom(["L_trret:"])
        s("s_mov_b64 exec, -1")
    TRP = cfg.get("tr_at", 2) if cfg.get("tramp", 1) else -1
    if TRP == 0: tramp()
    stamp(s, "prex")
    F = 80; D = 112; T0 = 144; ST = 28
    ln = Seq()
    def unpack(q):
        for i in range(4 * q, 4 * q + 4): ln("v_lshlrev_b32 v%d, 16, v%d\nv_and_b32 v%d, 0xffff0000, v%d" % (F + 2 * i, 64 + i, F + 2 * i + 1, 64 + i))
    def pack(q, dst=64):
        for i in range(4 * q, 4 * q + 4): ln("v_cvt_pk_bf16_f32 v%d, v%d, v%d" % (dst + i, F + 2 * i, F + 2 * i + 1))
    def hsum(dst):
        ln("v_pk_add_f32 %s, %s, %s\nv_add_f32 v%d, v%d, v%d" % (P(T0), P(T0), P(T0 + 2), T0, T0, T0 + 1))
        for sh in ((4, 8) if LQ else (1, 2, 4, 8)): ln("v_add_f32_dpp v%d, v%d, v%d row_ror:%d row_mask:0xf bank_mask:0xf" % (T0, T0, T0, sh))
        if LQ:
            for w_ in (16, 32): ln("v_mov_b32 v%d, v%d\nv_permlane%d_swap_b32 v%d, v%d\nv_add_f32 v%d, v%d, v%d" % (T0 + 1, T0, w_, T0, T0 + 1, T0, T0, T0 + 1))
        ln("v_mul_f32 v%d, %s, v%d" % (dst, fx(1.0 / 512), T0))
    for q in range(4):
        ln.wait([("x", q)])
        if q == 3:
            stamp(ln, "xin")
            for _ in range(cfg.get("pf_t1", 0)): pfa(ln)
            i_d0 = len(ln.u)
        unpack(q)
        if q == 0: ln("v_pk_add_f32 %s, %s, %s\nv_pk_add_f32 %s, %s, %s" % (P(T0), P(F), P(F + 2), P(T0 + 2), P(F + 4), P(F + 6)))
        else:
            for i in range(4): ln("v_pk_add_f32 %s, %s, %s" % (P(T0 + 2 * (i % 2)), P(T0 + 2 * (i % 2)), P(F + 8 * q + 2 * i)))
    hsum(ST)
    for i in range(16): ln("v_pk_add_f32 %s, %s, %s op_sel_hi:[1,0] neg_lo:[0,1] neg_hi:[0,1]" % (P(D + 2 * i), P(F + 2 * i), P(ST)))
    for i in range(16):
        if i < 2: ln("v_pk_mul_f32 %s, %s, %s" % (P(T0 + 2 * i), P(D + 2 * i), P(D + 2 * i)))
        else: ln("v_pk_fma_f32 %s, %s, %s, %s" % (P(T0 + 2 * (i % 2)), P(D + 2 * i), P(D + 2 * i), P(T0 + 2 * (i % 2))))
    hsum(ST + 1)
    ln.lg("ds_write_b64 v52, %s" % P(ST))
    ln.wait(None, drain=["lg"])
    ln("s_barrier")
    ln.lg("ds_read_b64 %s, v54" % P(T0), "oth")
    ln("s_mul_i32 s%d, s%d, 0x9E3779B1\ns_add_u32 s%d, s%d, 0x7F4A7C15\nv_mov_b32 v56, s%d" % (sTAG, sTAG, sTAG, sTAG, sTAG))
    ln.wait(["oth"])
    ln("v_sub_f32 v%d, v%d, v%d\nv_pk_add_f32 %s, %s, %s\nv_mul_f32 v%d, 0.5, v%d\nv_pk_mul_f32 %s, %s, 0.5 op_sel_hi:[1,0]\nv_fmac_f32 v%d, v%d, v%d" % (T0 + 2, ST, T0, P(ST), P(ST), P(T0), T0 + 2, T0 + 2, P(ST), P(ST), ST + 1, T0 + 2, T0 + 2))
    ln("v_cvt_pk_bf16_f32 v%d, v%d, v%d\nv_lshlrev_b32 v%d, 16, v%d\nv_and_b32 v%d, 0xffff0000, v%d" % (T0, ST, ST + 1, ST, T0, ST + 1, T0))
    ln(("v_add_f32 V, %s, V\nv_cvt_pk_bf16_f32 V, V, V\nv_and_b32 V, 0xffff0000, V\nv_sqrt_f32 V, V" % fx(1e-5)).replace("V", "v%d" % (ST + 1)))
    def sub(q):
        for i in range(4 * q, 4 * q + 4): ln("v_pk_add_f32 %s, %s, %s op_sel_hi:[1,0] neg_lo:[0,1] neg_hi:[0,1]" % (P(F + 2 * i), P(F + 2 * i), P(ST)))
    def fin(q):
        pack(q); unpack(q)
        for i in range(4 * q, 4 * q + 4): ln("v_pk_mul_f32 %s, %s, %s op_sel:[0,1] op_sel_hi:[1,1]" % (P(F + 2 * i), P(F + 2 * i), P(ST)))
        pack(q, 12 if q else 64)
    ln("v_cvt_pk_bf16_f32 V, V, V\nv_and_b32 V, 0xffff0000, V\nv_rcp_f32 V, V".replace("V", "v%d" % (ST + 1)))
    sub(0); fin(0)
    lu = ln.units()
    nD_0 = cfg.get("d_t1", 1 if ND0P else 0)
    if nD_0:
        dq = Seq(); step = cfg.get("d0_step", 10); pos = i_d0 + cfg.get("d0_off", 6)
        for k in range(ND0P, 9):
            dma1(dq, 0, k); un = dq.units()
            lu[pos:pos] = un[:-1]; pos += len(un); lu[pos:pos] = un[-1:]; pos += step
    s.u += lu
    xst = lambda q: "buffer_store_dwordx4 %s, v55, s[48:51], s%d offen %s" % (Q(12 + 4 * q if q else 64), 70 + q, SC)
    stst = lambda: (["s_mov_b64 exec, 15"] if LQ else ["s_mov_b32 exec_lo, 0x10001", "s_mov_b32 exec_hi, 0x10001"]) + [Op("buffer_store_dwordx4 %s, v%d, s[36:39], s74 offen %s" % (Q(ST), LQ, SC), "vm"), "s_mov_b64 exec, -1"]
    s.vm(xst(0), ("xn", 0))
    stamp(s, "xnst")
    for q in range(1, 4):
        sub(q); fin(q); s.u += ln.units()
    XBP = cfg.get("xbp", 0)
    TWO = 1
    nD_b = cfg.get("d_t3", 1)
    nD_c = cfg.get("d_t4", 2)
    nD_d = cfg.get("d_t5", 2)
    if TRP == 1: tramp()
    if WGF: s.wait([("xn", 0), "agfill"]); s("s_barrier")
    flag(s, "buffer_store_dwordx4 v[56:59], v1, s[36:39], s82 offen %s" % SC, [("xn", 0), "agfill"])
    stamp(s, "flag1")
    if TRP == 4: tramp()
    if cfg.get("bar_f"): s("s_barrier")
    stamp(s, "barf")
    def xb_now():
        s.atom(stst())
        for q in range(1, 4): s.vm(xst(q), ("xn", q))
    if XBP == 1: xb_now()
    for st in range(nD_0, nD_b): pro_stage(st)
    stamp(s, "d0")
    if TRP == 2: tramp()
    stamp(s, "trd")
    f1load = "buffer_load_dword v61, v%d, s[36:39], s75 offen %s" % (vP1, SC)
    s.vm(f1load, "f1")
    if XBP == 2: xb_now()
    for st in range(max(nD_0, nD_b), nD_c): pro_stage(st)
    nD_b = max(nD_0, nD_b, nD_c)
    if TRP == 3: tramp()
    stamp(s, "prepoll")
    if TRP >= 0:
        s("s_branch L_main"); s.atom([".p2align 12"]); s.atom(["L_main:"])
    poll(s, "P1", f1load, 61, "f1")
    stamp(s, "poll1")
    NXP = cfg.get("nxpre", 1 if cfg.get("ch1_first", 1) else 2)
    for u in range(NXP):
        for m in range(4): xload(s, u, m)
    if TRP == 5: tramp()
    if XBP == 3: xb_now()
    for _ in range(cfg.get("pf_t5", 0)): pfa(s)
    for st in range(nD_b, nD_d): pro_stage(st)
    nD_b = max(nD_b, nD_d)
    npfa = cfg.get("pf_t0", 3) + cfg.get("pf_t1", 0) + cfg.get("pf_t5", 0)
    NPB = cfg.get("npb", 4)
    tiles = []
    for q in range(7): tiles += [("G", q), ("U", q)]
    tiles += [("R", 0), ("I", 0), ("R", 1), ("I", 1)]
    def acc(t, m):
        k, q = t
        if k == "R": return ("v", 64 + 16 * q + 4 * m)
        if k == "I": return ("v", 96 + 16 * q + 4 * m)
        o = 32 * q + (16 if k == "U" else 0) + 4 * m
        return ("v", 128 + o) if q < 4 else ("a", o - 128)
    L0 = cfg.get("l1_lead", 4)
    KT = cfg.get("kt", 1)
    def stage_groups(st, tl):
        if CH1 and st >= cfg.get("ch1_first", 1): return [(2 * st + kk, ti) for ti in tl for kk in range(2)]
        return [(2 * st + kk, ti) for kk in range(2) for ti in tl]
    groups = []
    for st in range(14 if KT else 16): groups += stage_groups(st, range(18))
    if KT:
        for tl in (range(4), range(4, 18)):
            for st in (14, 15): groups += stage_groups(st, tl)
    NG = len(groups)
    mo, head, tail = order_mfma(groups)
    xfirst = {}; xlast = {}
    for G, (u, ti) in enumerate(groups): xfirst.setdefault(u, head(G)); xlast[u] = tail(G)
    parts = lambda G: [0, 1] if groups[G][1] < 14 else [None]
    def read1(G, part):
        u, ti = groups[G]; st, kk = divmod(u, 2); t = tiles[ti]; f = G % NWB
        if t[0] in "GU":
            off = (st & 1) * W_ST + (U_OFF if t[0] == "U" else 0) + kk * 7168 + part * 1792 + t[1] * 32
            return Op("ds_read_b64_tr_b16 %s, v%d offset:%d" % (R("a", aW + 4 * f + 2 * part, 2), (vWA, vWA2)[(st >> 1) & 1], off), "lg", K(("F", G, part)))
        off = (st & 3) * B_ST + (4096 if t[0] == "I" else 0) + t[1] * 2048
        return Op("ds_read_b128 %s, v%d offset:%d" % (R("a", aW + 4 * f, 4), vBA1 if kk else vBA0, off), "lg", K(("F", G, part)))
    rgap = {}
    for G in range(NG):
        f = G % 36
        g = G if (f < 33 or (KT and G >= 28 * 18)) else G - (1 if f < 35 else 2)
        rgap[G] = 4 * (g - L0) - 1
        assert rgap[G] >= 4 * tail(G - NWB) + 3
    gneed = lambda G: [("F", H, p) for H in range(G, tail(G) + 1) for p in parts(H)] + [("X", u, m) for u in range(32) if xfirst[u] == G for m in range(4)]
    s.wait([("D", 0, k) for k in range(9)])
    s("s_barrier")
    for G in range(NG):
        if rgap[G] < 0:
            for p in parts(G): s.op(read1(G, p))
    s.wait(gneed(0))
    stamp(s, "loop1")
    prog.add(s.done())
    mf = []
    for G, m in mo:
        u, ti = groups[G]; t = tiles[ti]
        xr = (xalloc[u][0], xalloc[u][1] + 4 * m); wr = ("a", aW + 4 * (G % NWB))
        mf.append(Op(mfma16(acc(t, m), wr, xr, u == 0) if t[0] in "GU" else mfma16(acc(t, m), xr, wr, u == 0)))
    sc = Sch(mf)
    for G in range(1, NG):
        w = Op("", needs=K(gneed(G)))
        w.keep = sum(len(parts(H)) for H in range(max(0, G - 2), min(NG, G + 10)) if rgap[H] == 4 * G - 1) == 2
        if w.keep or head(G) == G: sc.put(4 * G - 1, [w], 0)
    for G in range(NG):
        if rgap[G] >= 0: sc.put(rgap[G], [read1(G, p) for p in parts(G)], 1)
    bar = {}
    for st in range(15):
        bar[st] = rgap[xfirst[2 * st + 2]] - 1
        sc.put(bar[st], [Op("s_barrier", needs=K([("D", st + 1, k) for k in range(9)] + ([("xn", 3)] if (FBW and st == cfg.get("fb_bar", 1)) else [])), drain=["lg"] if st < 14 else None)], 0)
    items = []
    PFL = cfg.get("pfl", 9)
    pft = {}
    if cfg.get("pf1", 1):
        ev = cfg.get("pf_first", 70); st = npfa
        for k in range(npfa - cfg.get("pfd", 0), npfa): items.append((0, 2, ev - cfg.get("pfd_pre", 0), "a", k, 0))
        while st < 16:
            n = 0
            while st < 16 and (n < cfg.get("pf_max", 2) or (st == 15 and cfg.get("pf_l3", 1))) and (n == 0 or 144 * (st - 3 - PFL) < ev):
                e = max(int(144 * (st - 3 - PFL)), ev); pft[st] = e; items.append((0, 2, e, "a", st, 0)); st += 1; n += 1
            ev = e + cfg.get("pf_min", 288)
    for st in range(nD_b, 16):
        e = max(bar[st - 4] + 1 if st >= 4 else 0, pft.get(st, -1000) + cfg.get("pf_lat", 100))
        for k in range(9): items.append((bar[st - 1], 0, e, "d", st, k))
    for u in range(NXP, 32):
        e = 4 * xlast[xprev[u]] + 3 if xprev[u] is not None else 0
        for m in range(4): items.append((4 * xfirst[u] - 1, 1, max(e, 4 * xfirst[u] - (cfg.get("x_la", 230) if u != 8 else cfg.get("x_la8", 105))), "x", u, m))
    for k in range(1, 4 if not XBP else 0): items.append((0, 3, cfg.get("xb_first", 130) + cfg.get("xb_sp", 36) * (k - 1), "s", k, 0))
    items.append((0, 3, bar[cfg.get("fb_bar", 1)] + 1 if FBW else cfg.get("xb_first", 130) + cfg.get("xb_sp", 36) * 2 + cfg.get("xb_lat", 70), "f", 0, 0))
    items.append((0, 3, cfg.get("p1c_at", 430), "p", 0, 0))
    gC_ = sorted(set(pft.values()))[cfg.get("c_ev", 1)] if pft else 300
    items.append((0, 3, gC_, "c", 0, 0))
    gE_ = gC_ + cfg.get("e_off", 90)
    evs = sorted(set(pft.values())); i_e = {}
    EM = cfg.get("em", 0)
    for n in range(4):
        if EM: items.append((0, 4, evs[cfg.get("c_ev", 1) + cfg.get("e_ev", 0) + n], "e", n, 0))
        else: items.append((gE_ + 100, 3, gE_ + cfg.get("e_sp", 20) * n, "e", n, 0))
    f1cload = "buffer_load_dword v61, v%d, s[36:39], s81 offen %s" % (63 if FBW else 60, SC)
    if cfg.get("pf2", 1):
        for c in range(NPB): items.append((0, 2, cfg.get("pfb_first", 646) + int(c * cfg.get("pfb_sp", 288)), "b", c, 0))
    now = 0; pend = sorted(items); done = []; quiet = -1
    FM = cfg.get("fm", 1); WL = cfg.get("fm_wl", 14); fifo = []; comp = cfg.get("fm_c0", 30); fsl = []; lastk = ""; PFD = cfg.get("pfd", 0); PFX = cfg.get("pfx", 0)
    while pend:
        nxt = {}
        for x in pend:
            if x[3] not in nxt or x[4:] < nxt[x[3]][4:]: nxt[x[3]] = x
        av = sorted(x for x in nxt.values() if x[2] <= now)
        if FM:
            occ = sum(n for c, n in fifo if c > now)
            lines_of = lambda x: {"d": WL if x[5] < 7 else 8, "x": 8, "a": 9 * (1 + bool(PFD)) + 8 * PFX, "b": 88 // NPB, "c": 10, "e": 16}.get(x[3], 1)
            if av and av[0][3] in "dx" and len(av) > 1 and av[1][3] in "dx" and av[0][3] == lastk and av[0][0] - now > cfg.get("alt_slack", 110): av = av[1:]
            av = [x for x in av[:1] if occ + lines_of(x) <= cfg.get("fm_c", 66)]
        if not av: now += 1; continue
        x = av[0]; pend.remove(x); lastk = x[3]
        if FM:
            lat = cfg.get("fm_slow", 64) if x[3] in ("abce" if EM else "abc") else cfg.get("fm_fast", 36)
            comp = max(comp + (0.54 * lines_of(x) if cfg.get("fm2") else 4.3), now + lat); fifo.append((comp, lines_of(x)))
            if x[3] in "dx": fsl.append((x[0] - comp, x[3], x[4], x[5]))
        fifo_now = now
        if x[3] == "d": dma1(s, x[4], x[5], int(now))
        elif x[3] == "x":
            if TWO and x[4:] == (8, 0): poll(s, "P1c", f1cload, 61, "f1c", early=int(now))
            xload(s, x[4], x[5], int(now))
        elif x[3] == "p": s.vm(f1cload, "f1c", early=int(now)); i_f1c = len(s.u) - 1
        elif x[3] == "a":
            s.at(int(now)); pfa(s); quiet = now + cfg.get("q_len", 64)
            if [y for y in pend if y[3] in "abc" and y[2] <= now]: now -= cfg.get("q_sp", 10) - 4
        elif x[3] == "c":
            s.at(int(now)); i_c0 = len(s.u) - 1
            for k, lo in enumerate((96, 98, 92)):
                s("s_mov_b32 s32, s%d\ns_and_b32 s33, s%d, 0xffff" % (lo, lo + 1))
                for T in range(2): s.vm("buffer_load_ushort v%d, v40, s[32:35], 0 offen offset:%d" % (16 + 2 * k + T, 32 * T), ("c", k, T))
            s("s_mov_b32 s32, s94\ns_and_b32 s33, s95, 0xffff")
            for u in range(2): s.vm("buffer_load_dwordx2 %s, v41, s[32:35], 0 offen offset:%d" % (R("a", 248 + 2 * u, 2), 32 * u), ("dk", u))
            if FT & 2:
                s.vm("buffer_load_dword a246, v42, s[36:39], 0 offen %s" % SC); now += 4
            i_c1 = len(s.u) - 1; now += 30
        elif x[3] == "s":
            if x[4] == 1: s.atom(stst(), int(now)); now += 4
            s.op(Op(xst(x[4]), "vm", K(("xn", x[4]))), int(now)); now += (4 - cfg.get("q_sp", 10)) if now < quiet else 10
        elif x[3] == "f":
            flag(s, "buffer_store_dword%s, v1, s[36:39], s83 offen %s" % ("x4 v[56:59]" if FBW else " v56", SC), [("xn", 3)], early=int(now)); i_fb = len(s.u) - 1
        elif x[3] == "e":
            s("s_mov_b32 s70, %d\ns_add_u32 m0, s71, %d" % (4096 * x[4], 1024 * x[4]))
            s.op(Op("buffer_load_dwordx4 v12, s[48:51], s70 offen lds", "vm", K(("E", x[4]))), int(now)); i_e[x[4]] = len(s.u) - 1; now += 4
        else: s.at(int(now)); pfb(s); quiet = now + cfg.get("q_len", 64)
        if x[3] in "dx": done.append((x, len(s.u) - 1))
        if x[3:] == ("x", 8, 0): i_p1c = len(s.u) - 1
        if x[3:] == ("x", 26, 0): i_x26 = len(s.u) - 1
        if FM: now = fifo_now + {"c": 36, "s": cfg.get("fm_st", 16) + 4 * (x[4] == 1)}.get(x[3], cfg.get("fm_wsp", 4.5) if (x[3] == "d" and x[5] < 7) else cfg.get("fm_sp", 4.5))
        else: now += cfg.get("q_sp", 10) if now < quiet else cfg.get("l1_sp", 5)
    res = sc.stream(s.units(), 0, 2)
    sl = sorted((x[0] - res[i], x[3], x[4], x[5]) for x, i in done)
    if cfg.get("verbose") and FM: print("model slacks", sorted(fsl)[:5])
    if cfg.get("verbose"): print("loop1 vm end", res[-1], "of", 4 * NG, "min slacks", sl[:3], "steady", min(z for z in sl if z[2] > 8))
    for nm in names:
        if TS and nm[0] == "f" and nm[1:].isdigit():
            st_ = int(nm[1:])
            sc.put(bar[st_] - 1, [Op("s_memrealtime s[100:101]")], 5)
            sc.put(bar[st_], [Op("v_writelane_b32 v%d, s100, %d" % (vTS, names.index(nm)))], 5)
    if cfg.get("verbose"): print("flag b", res[i_fb], "poll load", res[i_f1c], "check", res[i_p1c])
    s.at(res[i_fb] + 1)
    cL, cC, cL8, cL16, cL64, cL512 = 16, 20, 24, 28, 32, 36
    s("s_mov_b32 s34, 2048\ns_mov_b32 s35, 0x20000")
    s("s_lshl_b32 s69, s%d, 5\nv_add_u32 v40, s69, v48\nv_lshlrev_b32 v40, 1, v40" % sJ)
    s("s_lshl_b32 s68, s%d, 7\ns_lshl_b32 s66, s%d, 5\ns_add_u32 s68, s68, s66\nv_lshl_add_u32 v41, v49, 2, s68\nv_accvgpr_write_b32 a%d, v41\nv_lshlrev_b32 v41, 1, v41" % (sTN, sQ, PK["COL"]))
    srd(s, 48, 4, 5, 2048 * 2048)
    s("s_lshl_b32 s66, s%d, 2\ns_add_u32 s66, s66, s%d\ns_lshl_b32 s66, s66, %d\ns_add_u32 s66, s66, 0x%x\nv_and_b32 v42, %d, v0\nv_lshl_add_u32 v42, v42, 7, s66" % (sB, sQ, (7, 9, 11)[F3M], SM_F3, (0, 3, cfg.get("f3t", 0))[F3M]))
    s("s_lshl_b32 s66, s%d, 3\ns_add_u32 s66, s66, s%d\ns_lshl_b32 s66, s66, 2\ns_add_u32 s66, s66, s%d\ns_lshl_b32 s66, s66, %d\ns_lshl_b32 s67, s%d, %d\ns_add_u32 s66, s66, s67\ns_add_u32 s66, s66, 0x%x\nv_writelane_b32 v42, s66, 0\ns_add_u32 s66, s66, %d\nv_writelane_b32 v42, s66, 1" % (sI, sTN, sW, (7, 10, 10)[F4M], sQ, (4, 8, 8)[F4M], SM_F4, (0, 0, 128)[F4M]))
    s("s_lshl_b32 s68, s68, 1\ns_lshl_b32 s66, s%d, 17\ns_add_u32 s68, s68, s66\nv_bfe_u32 v12, v0, 2, 1\nv_lshlrev_b32 v12, 3, v12\nv_lshl_add_u32 v12, v49, 4, v12\nv_bfe_u32 v43, v0, 3, 1\nv_add_u32 v12, v12, v43\nv_lshl_add_u32 v12, v12, 11, s68\nv_lshl_add_u32 v12, v51, 4, v12" % sB)
    s("s_lshr_b32 s66, s%d, 1\ns_lshl_b32 s66, s66, 16\ns_and_b32 s71, s%d, 1\ns_lshl_b32 s71, s71, 12\ns_add_u32 s71, s71, s66\ns_add_u32 s71, s71, 57344" % (sW, sW))
    r0 = sc.stream(s.units(), 0, 3)
    assert r0[-1] < res[i_c0]
    s.at(res[i_c1] + 1)
    s("v_subrev_u32 v40, %d, v%d\nv_accvgpr_write_b32 a%d, v40" % (B_BASE, vBA0, PK["CA"]))
    s("s_mul_i32 s69, s%d, %d\ns_add_u32 s69, s69, %d" % (sW, EPW, EP_LDS + 2048))
    s("v_and_b32 v41, 1, v49\nv_xor_b32 v41, v41, v51\nv_lshlrev_b32 v40, 5, v11\nv_lshl_add_u32 v40, v41, 3, v40\nv_add_u32 v40, s69, v40\nv_accvgpr_write_b32 a%d, v40" % PK["TRR"])
    s("v_lshrrev_b32 v40, 1, v48\nv_xor_b32 v40, v40, v48\nv_and_b32 v40, 4, v40\nv_mul_u32_u24 v40, 3, v40\nv_xor_b32 v40, v40, v48\nv_lshrrev_b32 v41, 2, v40\nv_xor_b32 v41, v41, v49\nv_lshlrev_b32 v40, 5, v40\nv_lshl_add_u32 v40, v41, 3, v40\nv_add_u32 v40, s69, v40\nv_accvgpr_write_b32 a%d, v40" % PK["TRW"])
    s("v_lshrrev_b32 v40, 2, v0\nv_and_b32 v41, 7, v40\nv_lshlrev_b32 v41, 5, v41\nv_lshl_add_u32 v41, v40, 8, v41\nv_lshl_add_u32 v41, v51, 3, v41\nv_accvgpr_write_b32 a%d, v41" % PK["TA"])
    s("s_lshl_b32 s68, s%d, 2\nv_add_u32 v40, s68, v49\nv_and_b32 v41, 7, v40\nv_bfe_u32 v51, v0, 1, 3\nv_xor_b32 v41, v41, v51\ns_lshl_b32 s66, s%d, 1\nv_xor_b32 v41, s66, v41\nv_lshlrev_b32 v41, 5, v41" % (sW, sQ))
    s("v_and_b32 v51, 1, v0\nv_lshl_add_u32 v41, v51, 4, v41\ns_mul_i32 s67, s%d, 896\nv_add_u32 v40, s67, v40\nv_lshl_add_u32 v40, v40, 11, v41\ns_lshl_b32 s67, s%d, 8\nv_add_u32 v40, s67, v40\nv_accvgpr_write_b32 a%d, v40" % (sQ, sTN, PK["D"]))
    s("s_lshl_b32 s68, s%d, 18\ns_lshl_b32 s66, s%d, 9\ns_add_u32 s68, s68, s66\nv_add_u32 v40, s68, v47\nv_accvgpr_write_b32 a%d, v40" % (sTN, sQ, PK["C"]))
    s("v_lshlrev_b32 v40, 4, v50\nv_lshl_add_u32 v40, v51, 3, v40\nv_bfe_u32 v41, v48, 1, 1\ns_lshl_b32 s68, s%d, 6\nv_add3_u32 v40, v40, v41, s68\nv_accvgpr_write_b32 a%d, v40" % (sB, PK["TOK"]))
    s("s_sub_u32 s68, 32, s%d\ns_lshl_b32 s68, s68, 13\ns_lshl_b32 s66, s%d, 8\ns_add_u32 s68, s68, s66\nv_lshl_add_u32 v40, v48, 4, s68\nv_lshl_add_u32 v40, v49, 16, v40\nv_accvgpr_write_b32 a%d, v40" % (sB, sJ, PK["AG"]))
    f_ = 2 if AS & 2 else 1
    ld, lc = 112 // NPB * f_, 64 // NPB * f_
    s("s_lshr_b32 s67, s2, %d\ns_lshl_b32 s68, s67, 1\ns_and_b32 s66, s%d, 1\ns_add_u32 s68, s68, s66\ns_mul_i32 s68, s68, %d\ns_mul_i32 s66, s67, %d" % (f_ - 1, sW, ld * 128, lc * 128))
    ge2 = "s_cmp_ge_u32 s%d, 2" % sW
    s.atom([ge2, "s_cselect_b32 s68, s66, s68", "s_cselect_b32 s66, %d, %d" % (lc - 1, ld - 1)])
    if AL & 2:
        s("v_and_b32 v40, 31, v0\nv_min_u32 v40, s66, v40\nv_lshl_add_u32 v%d, v40, 7, s68\ns_mov_b32 s68, %d" % (vPB, 16 * ld * 128))
        s.atom([ge2, "s_cselect_b32 s68, %d, s68" % (8 * lc * 128)])
        s("s_and_b32 s66, s%d, 1\ns_lshl_b32 s66, s66, 1\ns_sub_u32 s66, 1, s66\ns_mul_i32 s68, s68, s66\nv_lshrrev_b32 v40, 5, v0\nv_mul_lo_u32 v40, v40, s68\nv_add_u32 v%d, v%d, v40" % (sTN, vPB, vPB))
    else: s("v_min_u32 v40, s66, v0\nv_lshl_add_u32 v%d, v40, 7, s68" % vPB)
    s.atom(["s_bitcmp1_b32 s%d, 0" % sW, "s_cselect_b32 s68, s90, s88", "s_cselect_b32 s66, s91, s89"])
    s.atom([ge2, "s_cselect_b32 s44, s68, s84", "s_cselect_b32 s45, s66, s85"])
    s("s_mov_b32 s67, %d\ns_mov_b32 s68, %d" % (3584 * 2048, 512 * ld * 128 // f_))
    s.atom([ge2, "s_cselect_b32 s46, %d, s67" % (1024 * 2048), "s_cselect_b32 s%d, %d, s68" % (sPBs, 256 * lc * 128 // f_)])
    s("s_and_b32 s45, s45, 0xffff\ns_mov_b32 s47, 0x20000\ns_mov_b32 s%d, 0" % sKPB)
    if AS & 2: s.atom(["s_getreg_b32 s67, hwreg(HW_REG_XCC_ID, 0, 1)", "s_cmp_eq_u32 s67, %d" % (0 if AS & 4 else 1), "s_cselect_b32 s%d, 0x40000000, 0" % sKPB])
    if AL & 2: s.atom(["s_add_u32 s67, s%d, 1" % sTN, "s_bitcmp1_b32 s67, 1", "s_cselect_b32 s%d, 0x40000000, 0" % sKPB])
    i_pbs = len(s.u) - 1
    s.at(res[i_c1] + 90)
    s.wait([("c", 2, 1)])
    def two(f):
        for T in range(2): s(f(T))
    for k in range(6): s("v_lshlrev_b32 v%d, 16, v%d" % (40 + k, 16 + k))
    two(lambda T: "v_mul_f32 v%d, %s, v%d" % (44 + T, fx(LOG2E), 44 + T)); two(lambda T: "v_exp_f32 v%d, v%d" % (44 + T, 44 + T))
    s("v_cvt_pk_bf16_f32 v45, v44, v45\nv_lshlrev_b32 v44, 16, v45\nv_and_b32 v45, 0xffff0000, v45")
    two(lambda T: "v_mul_f32 v%d, v%d, v%d\nv_mul_f32 v%d, v%d, v%d" % (24 + T, 44 + T, 40 + T, 26 + T, 44 + T, 42 + T))
    two(lambda T: "v_mul_f32 v%d, %s, v%d" % (24 + T, fx(LOG2E), 24 + T)); two(lambda T: "v_exp_f32 v%d, v%d" % (24 + T, 24 + T))
    two(lambda T: "v_mul_f32 v%d, 0.15915494, v%d\nv_rndne_f32 v%d, v%d\nv_sub_f32 v%d, v%d, v%d" % (26 + T, 26 + T, 52 + T, 26 + T, 26 + T, 26 + T, 52 + T))
    two(lambda T: "v_cos_f32 v%d, v%d\nv_sin_f32 v%d, v%d" % (52 + T, 26 + T, 54 + T, 26 + T))
    two(lambda T: "v_mul_f32 v%d, v%d, v%d\nv_mul_f32 v%d, v%d, v%d\nv_add_f32 v%d, -1.0, v%d" % (cL + T, 24 + T, 52 + T, 54 + T, 24 + T, 54 + T, 52 + T, cL + T))
    two(lambda T: "v_mul_f32 v%d, v%d, v%d\nv_fmac_f32 v%d, v%d, v%d\nv_rcp_f32 v%d, v%d" % (24 + T, 40 + T, 40 + T, 24 + T, 42 + T, 42 + T, 24 + T, 24 + T))
    two(lambda T: "v_mul_f32 v%d, v%d, v%d\nv_fmac_f32 v%d, v%d, v%d" % (26 + T, 52 + T, 40 + T, 26 + T, 54 + T, 42 + T))
    two(lambda T: "v_mul_f32 v%d, v%d, v%d\nv_fma_f32 v%d, -v%d, v%d, v%d" % (56 + T, 54 + T, 40 + T, 56 + T, 52 + T, 42 + T, 56 + T))
    two(lambda T: "v_add_f32 v%d, v%d, v%d\nv_mul_f32 v%d, v%d, v%d\nv_mul_f32 v%d, v%d, v%d\nv_sub_f32 v%d, 0, v%d" % (24 + T, 24 + T, 24 + T, cC + T, 26 + T, 24 + T, cC + 2 + T, 56 + T, 24 + T, cL + 2 + T, 54 + T))
    def sq(d, x):
        two(lambda T: "v_mul_f32 v%d, v%d, v%d\nv_mul_f32 v%d, v%d, v%d\nv_fma_f32 v%d, v%d, v%d, -v%d\nv_add_f32 v%d, v%d, v%d" % (52 + T, x + 2 + T, x + 2 + T, 54 + T, x + T, x + 2 + T, d + T, x + T, x + T, 52 + T, d + 2 + T, 54 + T, 54 + T))
    sq(cL8, cL); sq(cL8, cL8); sq(cL8, cL8); sq(cL16, cL8); sq(cL64, cL16); sq(cL64, cL64); sq(cL512, cL64); sq(cL512, cL512); sq(cL512, cL512)
    aBS = 160
    s.at(res[i_p1c] + 2)
    s("v_lshlrev_b32 v11, 6, v48\nv_lshl_add_u32 v11, v49, 3, v11\nv_add_u32 v11, s71, v11\nv_and_b32 v50, 0xf0, v1\ns_lshl_b32 s66, s%d, 10\ns_add_u32 s66, s66, 0x%x" % (sB, SM_ST))
    s.wait([("dk", 1)])
    for k in range(4): s("v_accvgpr_read_b32 v%d, a%d" % (40 + k, 248 + k))
    for m in range(4):
        s.at(res[i_e[m]] + 2)
        s.vm("buffer_load_dwordx2 v[44:45], v50, s[36:39], s66 offen offset:%d %s" % (256 * m, HL), ("St", m))
        s.delay(cfg.get("e_lat", 100))
        s.wait([("St", m), ("E", m)])
        for u in range(2): s.lg("ds_read_b64 %s, v11 offset:%d" % (P(52 + 2 * u), 1024 * m + 32 * u), ("er", m, u))
        s.delay(10)
        s.wait([("er", m, 1)])
        for u in range(2):
            def unp(d, x):
                for h in range(2): s("v_lshlrev_b32 v%d, 16, v%d\nv_and_b32 v%d, 0xffff0000, v%d" % (d + 2 * h, x + h, d + 2 * h + 1, x + h))
            def rnd():
                for h in range(2): s("v_cvt_pk_bf16_f32 v%d, v%d, v%d" % (48 + h, 60 + 2 * h, 61 + 2 * h))
                unp(60, 48)
            unp(56, 52 + 2 * u)
            for k in range(4): s("v_sub_f32 v%d, v%d, v44" % (60 + k, 56 + k))
            rnd()
            for k in range(4): s("v_mul_f32 v%d, v%d, v45" % (60 + k, 60 + k))
            rnd()
            for h in range(2):
                s("v_lshlrev_b32 v46, 16, v%d\nv_and_b32 v47, 0xffff0000, v%d\nv_mul_f32 v%d, v%d, v46\nv_mul_f32 v%d, v%d, v47" % (40 + 2 * u + h, 40 + 2 * u + h, 60 + 2 * h, 60 + 2 * h, 61 + 2 * h, 61 + 2 * h))
            rnd()
            for k in range(4): s("v_add_f32 v%d, v%d, v%d" % (56 + k, 56 + k, 60 + k))
            for k in range(4): s("v_accvgpr_write_b32 a%d, v%d" % (aBS + 16 * u + 4 * m + k, 56 + k))
    rb = sc.stream(s.units(), 0, 3, vmspace=2)
    if cfg.get("verbose"): print("shadow end", rb[-1])
    assert rb[-1] < res[i_x26] and rb[-1] < bar[13] and rb[i_pbs] < cfg.get("pfb_first", 646)
    vEW, vER, vTG, vAG, vTRW, vTRR, vCP, vH8, vD1, vPAd, vPD, vD0 = 2, 3, 4, 5, 6, 7, 8, 10, 11, 12, 13, 14
    sM, sKD, sKH = 54, 55, 56
    c1 = -2.0 * math.sqrt(2.0 / math.pi) * LOG2E
    CC = 46
    s("v_accvgpr_read_b32 v%d, a%d\nv_lshlrev_b32 v%d, 3, v0\nv_add_u32 v%d, 32768, v%d" % (vD0, PK["D"], vH8, vD1, vD0))
    if FBW: s("v_and_b32 v43, 31, v0\nv_lshlrev_b32 v43, 11, v43\ns_lshr_b32 s71, s%d, 2\ns_lshl_b32 s71, s71, 6\ns_lshl_b32 s65, s%d, 9\ns_add_u32 s71, s71, s65\ns_add_u32 s71, s71, 0x%x" % (sJ, sQ, SM_F1))
    else: s("v_and_b32 v43, 31, v0\nv_lshlrev_b32 v43, 7, v43\ns_lshl_b32 s71, s%d, 2\ns_add_u32 s71, s71, 0x%x" % (sJ, SM_F1B))
    s("s_mul_i32 s65, s%d, 176\ns_mul_i32 s66, s%d, 44\ns_add_u32 s65, s65, s66\ns_lshl_b32 s65, s65, 12\ns_add_u32 s65, s65, 0x%x" % (sB, sQ, WS_H))
    s.atom(["s_add_u32 s32, s6, s65", "s_addc_u32 s33, s7, 0"])
    s("s_and_b32 s33, s33, 0xffff\ns_mov_b32 s34, 0x%x\ns_mov_b32 s35, 0x20000" % (44 * 4096))
    srd(s, 12, 84, 85, 3584 * 2048); srd(s, 16, 88, 89, 1024 * 2048); srd(s, 20, 90, 91, 1024 * 2048)
    s("s_lshl_b32 s%d, s%d, 10" % (sM, sW))
    s("v_mov_b32 v46, %s\nv_mov_b32 v47, %s" % (fx(c1), fx(c1 * 0.044715)))
    ROT = cfg.get("rot", 2)
    sTQ = [96, 97, 98, 99, 48, 49, 50, 51]; sTS = [76, 77, 78, 80]; sJ12, sG7 = 44, 45
    s("s_and_b32 s67, s%d, 3\ns_lshl_b32 s67, s67, 1" % sI)
    for k in range(8):
        if k == 0: s("s_mov_b32 s65, s%d" % sTN)
        elif ROT == 2: s.atom(["s_cmp_le_u32 s%d, %d" % (sTN, k - 1), "s_cselect_b32 s65, %d, %d" % (k, k - 1)])
        elif ROT: s("s_add_u32 s65, s67, %d\ns_sub_u32 s66, s65, 7\ns_min_u32 s65, s65, s66\ns_add_u32 s65, s65, 1\ns_xor_b32 s65, s65, s%d" % (k - 1, sTN))
        else: s("s_xor_b32 s65, s%d, %d" % (sTN, k))
        s("s_mul_i32 s65, s65, 7\ns_add_u32 s65, s65, 1\ns_lshr_b32 s65, s65, 1\ns_lshl_b32 s%d, s65, 12" % sTQ[k])
    s("s_lshr_b32 s67, s%d, 1" % sTN)
    sGp = [24, 25, 26, 27]; sPar = 45
    for p in range(4):
        if ROT == 2:
            s("s_mov_b32 s%d, %d" % (sTS[p], (7 * p + 3) * 4096))
            if p == 0: s("s_lshl_b32 s%d, s67, 13" % sGp[0])
            else:
                s.atom(["s_cmp_le_u32 s67, %d" % (p - 1), "s_cselect_b32 s65, %d, %d" % (p, p - 1)]); s("s_lshl_b32 s%d, s65, 13" % sGp[p])
        else: s("s_xor_b32 s65, s67, %d\ns_lshl_b32 s%d, s65, 13\ns_mul_i32 s65, s65, %d\ns_add_u32 s%d, s65, %d" % (p, sGp[p], 7 * 4096, sTS[p], 3 * 4096))
    s("s_lshl_b32 s%d, s%d, 12\ns_and_b32 s69, s%d, 1\ns_lshl_b32 s%d, s69, 12" % (sJ12, sTN, sTN, sPar))
    s("s_mul_i32 s67, s67, %d\ns_lshl_b32 s69, s69, 9\ns_add_u32 s67, s67, s69\ns_add_u32 s67, s67, %d" % (7 * 4096, 3 * 4096))
    s("s_add_u32 s72, s%d, %d\ns_add_u32 s73, s%d, %d\ns_mov_b32 s66, s%d" % (sJ12, 28 * 4096, sJ12, 36 * 4096, sTQ[0]))
    s("s_lshl_b32 s68, s%d, 2\ns_add_u32 s68, s68, s%d\ns_lshl_b32 s68, s68, %d\ns_add_u32 s68, s68, 0x%x" % (sB, sQ, (7, 9, 11)[F3M], SM_F3))
    s("s_lshl_b32 s81, s%d, %d\ns_add_u32 s81, s81, s68\nv_and_b32 v%d, 7, v0\nv_lshlrev_b32 v%d, %d, v%d" % (sTN, (2, 2, 6)[F3M], vPAd, vPAd, (2, 2, 6)[F3M], vPAd))
    s("s_sub_u32 s64, 31, s%d\ns_lshl_b32 s64, s64, 13\ns_lshl_b32 s65, s%d, 8\ns_add_u32 s64, s64, s65" % (sB, sJ))
    s("s_mul_i32 s46, s%d, %d\ns_add_u32 s46, s46, %d" % (sW, EPW, EP_LDS))
    if TRP >= 0 and cfg.get("tr2", 1) and cfg.get("tr2pf", 1):
        s.atom(["s_getpc_b64 s[82:83]", "L_pc2:"])
        s("v_lshrrev_b32 v40, 3, v0\nv_lshlrev_b32 v40, 12, v40\nv_and_b32 v41, 7, v0\nv_lshl_add_u32 v40, v41, 7, v40\nv_add_u32 v40, L_main-L_pc2+%d, v40" % (4096 * cfg.get("tr_n", 12)))
        s("v_min_u32 v40, L_codeend-L_pc2-4, v40\nv_mov_b32 v41, 0\nv_lshl_add_u64 v[40:41], v[40:41], 0, s[82:83]")
        s.vm("global_load_dword a246, v[40:41], off")
        if cfg.get("cpe", 0):
            n_ = 16 * cfg.get("cpe", 0)
            s("s_mul_i32 s65, s%d, %d\ns_add_u32 s65, s65, L_epi-L_pc2+%d\nv_min_u32 v40, %d, v0\nv_lshl_add_u32 v40, v40, 7, s65\nv_mov_b32 v41, 0\nv_lshl_add_u64 v[40:41], v[40:41], 0, s[82:83]" % (sW, n_ * 128, cfg.get("cpe_off", -2048), n_ - 1))
            s.vm("global_load_dword a246, v[40:41], off")
    f1bload = "buffer_load_dword v44, v43, s[36:39], s71 offen %s" % SC
    s.vm(f1bload, "f1b")
    steps = [("g", 0, 2), ("g", 0, 0), ("g", 0, 1)]
    NA0 = cfg.get("na0", 2)
    steps += [("g", k, 0) for k in range(1, NA0 + 1)]
    UA = len(steps)
    steps += [("g", k, 1) for k in range(1, NA0 + 1)]
    for k in range(NA0 + 1, 8): steps += [("g", k, 0), ("g", k, 1)]
    UB = len(steps)
    for k in range(1, 8): steps += [("g", k, 2)] + ([("s", k // 2, 0)] if k % 2 else [])
    assert len(steps) == 28
    cst = [("r", 0), ("i", 0), ("r", 1), ("r", 2), ("r", 3), ("i", 1), ("i", 2), ("i", 3)]
    steps += [("c", 14, 0), ("c", 15, 0), ("c", 14, 1), ("c", 15, 1)]
    for st in range(16, 22): steps += [("c", st, 0), ("c", st, 1)]
    own = {0, 1, 2, 28, 29}; UC = 30
    NST = 22; KC = cfg.get("kc", 8)
    slot = {st: st % 8 for st in range(22)}; prevocc = {st: (st - 8 if st >= 8 else None) for st in range(22)}
    aW2 = 0; aAG = 32
    vC, vCA = 16, 20
    def dma2(s, st, k, early=None, vC=vC):
        if st < 14:
            kind, x, p = steps[2 * st + k // 2]
            if k % 2 == 0:
                if kind == "g" and p: s("s_add_u32 s%d, s%d, %d\ns_lshl_b32 s%d, s%d, 4" % (sKD, sTQ[x], p * 4096, sKD, sKD))
                else: s("s_lshl_b32 s%d, s%d, 4" % (sKD, (sTQ if kind == "g" else sTS)[x]))
            v, sr = (vD0, vD1)[k % 2], 12
        else:
            part, p = cst[st - 14]
            if k == 0: s("s_lshr_b32 s%d, s%d, 6" % (sKD, sGp[p]))
            v, sr = vC + k, (16 if part == "r" else 20)
        s("s_add_u32 m0, s%d, %d" % (sM, slot[st] * 16384 + k * 4096))
        s.op(Op("buffer_load_dwordx4 v%d, s[%d:%d], s%d offen lds" % (v, sr, sr + 3, sKD), "vm", K(("D2", st, k))), early)
    NPRE = 4
    r = sc.stream(s.units(), res[-1] + 2, 3)
    gS = r[-1]
    L2P = cfg.get("l2p", 0)
    if L2P:
        s("s_lshr_b32 s65, s2, 3\ns_lshl_b32 s65, s65, 2\ns_add_u32 s65, s65, s%d" % sW)
        s("s_mul_i32 s69, s65, %d\ns_mul_i32 s70, s%d, %d\ns_add_u32 s69, s69, s70\nv_min_u32 v40, 55, v0\nv_lshl_add_u32 v40, v40, 7, s69\ns_mov_b32 s70, %d" % (56 * 128, sQ, 896 * 2048, 448 * 2048))
        s.vm("buffer_load_dword a246, v40, s[12:15], 0 offen"); s.delay(cfg.get("l2p_sp", 40))
        s.vm("buffer_load_dword a246, v40, s[12:15], s70 offen"); s.delay(cfg.get("l2p_sp", 40))
        if L2P >= 2:
            s("s_lshl_b32 s69, s65, 14\ns_lshl_b32 s70, s%d, 9\ns_add_u32 s69, s69, s70\nv_bfe_u32 v40, v0, 2, 3\nv_lshl_add_u32 v40, v40, 11, s69\nv_and_b32 v41, 3, v0\nv_lshl_add_u32 v40, v41, 7, v40" % sQ)
    s.at(max(bar[13] + 1, cfg.get("pre_at", 0 if KT else 2170)))
    for st in range(NPRE):
        for k in range(4): dma2(s, st, k)
    if L2P >= 2:
        s.vm("buffer_load_dword a246, v40, s[16:19], 0 offen")
        if L2P >= 3: s.delay(20); s.vm("buffer_load_dword a246, v40, s[20:23], 0 offen")
    r = sc.stream(s.units(), gS + 1, 2, vmspace=cfg.get("pre_sp", 5))
    hst = cfg.get("hst", SC)
    aK0 = xalloc[27][1] if KT else 96; aK1 = 112 if aK0 != 112 else 96
    left = []; msh = 0
    if KT:
        msh = cfg.get("msh", 4)
        for m in range(msh):
            gs = [128 + 4 * m + e for e in range(4)] + [160 + 4 * m + e for e in range(4)]
            o = (56, 60)[m % 2]
            for k, g in enumerate(gs): s("v_mul_f32 v%d, v%d, v%d" % (48 + k, g, g))
            for k, g in enumerate(gs): s("v_fma_f32 v%d, v%d, v47, v46" % (48 + k, 48 + k))
            for k, g in enumerate(gs): s("v_mul_f32 v%d, v%d, v%d" % (48 + k, 48 + k, g))
            for k, g in enumerate(gs): s("v_exp_f32 v%d, v%d" % (48 + k, 48 + k))
            for k, g in enumerate(gs): s("v_mul_f32 v%d, v%d, v%d" % (g + 16, g, g + 16))
            for k, g in enumerate(gs): s("v_add_f32 v%d, 1.0, v%d" % (48 + k, 48 + k))
            for k, g in enumerate(gs): s("v_rcp_f32 v%d, v%d" % (48 + k, 48 + k))
            for k, g in enumerate(gs): s("v_mul_f32 v%d, v%d, v%d" % (g + 16, g + 16, 48 + k))
            for k in range(4): s("v_cvt_pk_bf16_f32 v%d, v%d, v%d" % (o + k, gs[2 * k] + 16, gs[2 * k] + 17))
            s.vm("buffer_store_dwordx4 %s, v1, s[32:35], s66 offen offset:%d %s" % (Q(o), 1024 * m, hst), ("hs", 0, m))
            for k in range(4): s("v_accvgpr_write_b32 a%d, v%d" % (aK0 + 4 * m + k, o + k))
        un = s.units()
        r = sc.stream(un, max(gS + 1, 4 * (28 * 18 + 16) + 2), 3, vmspace=2, overflow=True)
        left = un[len(r):]
        if cfg.get("verbose"): print("setup end", gS, "shadow gelu placed", len(r), "left", len(left))
    if cfg.get("abl"):
        for g in range(720, 1850):
            for it in sc.g[g]:
                o = it[2]; tx = o.text or ""
                if ("T" in cfg["abl"] and tx.startswith("ds_read_b64_tr")) or ("B" in cfg["abl"] and tx.startswith("ds_read_b128")) or \
                   ("X" in cfg["abl"] and tx.startswith("buffer_load_dwordx4") and "s[8:11]" in tx) or ("D" in cfg["abl"] and tx.endswith(" lds")) or \
                   ("P" in cfg["abl"] and tx.startswith("buffer_load_dword a246")) or ("V" in cfg["abl"] and tx.startswith("v_") and it[0] == 3): o.text = ""
    if cfg.get("stall"):
        for G in range(1, NG):
            if G % cfg["stall"] == 0 and len(sc.classes(4 * G - 1)) == 3: sc.put(4 * G - 1, [Op("s_nop 0")], 9)
    prog.add(sc.ops())
    vTA = 40
    s.atom(["L_epi:"])
    s("s_barrier")
    stamp(s, "end1")
    s.u += left
    KD = [int(c, 36) for c in str(cfg.get("kd", "g0a8"))]
    CH2 = cfg.get("ch2", 1); nochain = [int(c) for c in str(cfg.get("ch2_skip", "1"))]
    assert all(k % 2 == 0 for k in KD)
    def sg2(st, ul):
        if CH2 and st not in nochain: return [(2 * st + kk, u) for u in ul for kk in range(2)]
        return [(2 * st + kk, u) for kk in range(2) for u in ul]
    groups = []
    for st in range(22): groups += sg2(st, [u for u in (range(8) if st < 14 else (2, 3, 4, 5, 6, 7, 0, 1)) if 2 * st < 44 - KD[u // 2]])
    pend_ = {}
    for d in (1, 2, 3, 0):
        if str(d) in str(cfg.get("tm", "023")):
            for u in (2 * d, 2 * d + 1):
                for st in range(22 - KD[d] // 2, 22): groups += sg2(st, (u,))
        else:
            for st in range(22 - KD[d] // 2, 22): groups += sg2(st, (2 * d, 2 * d + 1))
    for G, (uu, u) in enumerate(groups): pend_[u] = G
    assert len(groups) == 352 and max(KD) <= 16
    NG = len(groups)
    mo, head, tail = order_mfma(groups)
    lastuse = {}; firstuse = {}
    for G, (uu, u) in enumerate(groups): firstuse.setdefault(uu, head(G)); lastuse[uu] = tail(G)
    hreg = {0: ("v", 48), 1: ("a", aK0), 2: ("a", aK1), 28: ("a", 32), 29: ("a", 48)}; hfree = {}
    pool = [(-1, ("a", r)) for r in [96, 112, 128, 144, 192, 208, 224, 160, 176, 64, 80] if r not in (aK0, aK1)] + [(4 * lastuse[u] + 3, hreg[u]) for u in (1, 2, 28, 29)]
    VFREE = cfg.get("vfree", 700)
    pool += [(VFREE, ("v", r)) for r in (64, 80, 96, 112)[:cfg.get("nvs", 4)]]
    for u in range(44):
        if u in own: continue
        pool.sort(key=lambda x: x[0]); e, r = pool.pop(0)
        hreg[u] = r; hfree[u] = e; pool.append((4 * lastuse[u] + 3, r))
    def hload(s, u, m, early=None):
        kind, x, p = steps[u]
        if m == 0:
            if kind == "g": s("s_add_u32 s%d, s%d, %d" % (sKH, sTQ[x], p * 4096))
            elif kind == "s": s("s_mov_b32 s%d, s%d" % (sKH, sTS[x]))
            else:
                part, pp = cst[x - 14]
                s("s_xor_b32 s%d, s%d, %d\ns_add_u32 s%d, s%d, s%d" % (sKH, sPar, ((28 if part == "r" else 36) + p) * 4096, sKH, sKH, sGp[pp]))
        hk, d = hreg[u]; d += 4 * m
        if kind == "s":
            s.op(Op("buffer_load_dwordx2 %s, v%d, s[32:35], s%d offen offset:%d %s" % (R(hk, d, 2), vH8, sKH, 1024 * m, HL), "vm"), early)
            s.op(Op("buffer_load_dwordx2 %s, v%d, s[32:35], s%d offen offset:%d %s" % (R(hk, d + 2, 2), vH8, sKH, 1024 * m + 512, HL), "vm", K(("H", u, m))))
        else: s.op(Op("buffer_load_dwordx4 %s, v1, s[32:35], s%d offen offset:%d %s" % (R(hk, d, 4), sKH, 1024 * m, HL), "vm", K(("H", u, m))), early)
    def gelu_pair(base0, base1, pid, T, OUT, keep=None, hook=None, m0=0):
        for m in range(m0, 4):
            o = OUT[m % len(OUT)]
            items = [(base0 + 4 * m, base0 + 16 + 4 * m, o), (base0 + 4 * m + 2, base0 + 18 + 4 * m, o + 1),
                     (base1 + 4 * m, base1 + 16 + 4 * m, o + 2), (base1 + 4 * m + 2, base1 + 18 + 4 * m, o + 3)]
            gelu_block(s, items, CC, T)
            s.vm("buffer_store_dwordx4 %s, v1, s[32:35], s66 offen offset:%d %s" % (Q(o), 1024 * m, hst), ("hs", pid, m))
            if keep is not None:
                for r in range(4): s("v_accvgpr_write_b32 a%d, v%d" % (keep + 4 * m + r, o + r))
            if hook: hook(m)
        s("s_add_u32 s66, s66, 4096")
    NPRE2 = cfg.get("npre2", 8)
    cpre = [(st, k) for st in range(NPRE, NPRE2) for k in range(4)]
    def cdma(n):
        for _ in range(n):
            if cpre: st, k = cpre.pop(0); dma2(s, st, k)
    fstore = lambda off: "buffer_store_dword%s, v1, s[36:39], s81 offen offset:%d %s" % (("x4 " + Q(vTG)) if F3M == 2 else (" v%d" % vTG), off * (1, 4, 16)[F3M], SC)
    fload = lambda off: "buffer_load_dword v%d, v%d, s[36:39], s68 offen offset:%d %s" % (vPD, vPAd, off * (1, 4, 16)[F3M], SC)
    s("v_mov_b32 v%d, s%d" % (vTG, sTAG))
    npg = cfg.get("cpre_g", 1)
    cdma(cfg.get("cpre_0", 4))
    gelu_pair(128, 160, 0, 48, [56, 60], aK0, lambda m: cdma(npg), m0=msh)
    def hook1(m):
        cdma(npg)
        if m == cfg.get("fa0_m", 1): flag(s, fstore(96), [("hs", 0, 3)])
    gelu_pair(192, 224, 1, 48, [56, 60], aK1, hook1)
    stamp(s, "p01")
    def pkfma(d, s0, s1, s2, T, neg=False):
        s("v_pk_fma_f32 %s, %s, %s, %s op_sel:[%d,0,0] op_sel_hi:[%d,1,1]%s" % (P(d), P(s0), P(s1), P(s2), T, T, " neg_lo:[1,0,0] neg_hi:[1,0,0]" if neg else ""))
    def pkmul(d, s0, s1, T, neg=False):
        s("v_pk_mul_f32 %s, %s, %s op_sel:[%d,0] op_sel_hi:[%d,1]%s" % (P(d), P(s0), P(s1), T, T, " neg_lo:[1,0] neg_hi:[1,0]" if neg else ""))
    BR = lambda T, x: 64 + 16 * T + 2 * x
    BI = lambda T, x: 96 + 16 * T + 2 * x
    for x in range(8):
        for T in range(2):
            pkmul(128 + 2 * T, cC + 2, BI(T, x), T, True); pkmul(BI(T, x), cC, BI(T, x), T, True)
        for T in range(2):
            pkfma(BI(T, x), cC + 2, BR(T, x), BI(T, x), T, True); pkfma(BR(T, x), cC, BR(T, x), 128 + 2 * T, T)
    sr = [BR(0, 0), BR(1, 0)]; si = [BI(0, 0), BI(1, 0)]
    bufs = [[132, 134], [138, 140]]; SI = [136, 142]
    for x in range(1, 8):
        nr = [bufs[T][x % 2] for T in range(2)]
        for T in range(2): pkfma(nr[T], cL, sr[T], BR(T, x), T)
        for T in range(2): pkfma(nr[T], cL + 2, si[T], nr[T], T, True)
        for T in range(2): pkfma(SI[T], cL, si[T], BI(T, x), T)
        for T in range(2): pkfma(SI[T], cL + 2, sr[T], SI[T], T)
        sr = nr; si = list(SI)
        if x % 2: cdma(1)
    EA = 20
    for T in range(2):
        s("v_mov_b32 v%d, v%d\nv_mov_b32 v%d, v%d\nv_mov_b32 v%d, v%d\nv_mov_b32 v%d, v%d" % (EA + T, sr[T], EA + 2 + T, si[T], 144 + T, sr[T] + 1, 146 + T, si[T] + 1))
    horner_pk(s, EA, cL8, 144, 144)
    s("v_add_u32 v%d, s46, v1\nv_and_b32 v%d, 0xf0, v1\nv_add_u32 v%d, s46, v%d" % (vEW, vER, vER, vER))
    s.lg("ds_write_b128 v%d, v[144:147]" % vEW)
    for g in range(4): s.lg("ds_read_b128 %s, v%d offset:%d" % (Q(148 + 4 * g), vER, 256 * g), ("e", g))
    HPN = cfg.get("hpn", 0)
    if HPN: s.vm(fload(96), "f3a0")
    for r in range(32):
        s("v_accvgpr_read_b32 v%d, a%d" % (192 + r, r))
        if r % 16 == 15: cdma(1)
    flag(s, fstore(0), [("hs", 1, 3)])
    for g in range(1, 4):
        s.wait([("e", g)]); horner_pk(s, 148 + 4 * (g - 1), cL16, 148 + 4 * g, 148 + 4 * g)
    for r in range(160, 164): s("v_min_u32 v%d, -2, v%d" % (r, r))
    s.atom(["s_mov_b64 exec, 0xffff", Op("buffer_store_dwordx4 v[160:163], v1, s[36:39], s64 offen %s" % SC, "vm"), "s_mov_b64 exec, -1"])
    stamp(s, "pub")
    poll(s, "P1b", f1bload, 44, "f1b")
    for r in range(32, 64):
        s("v_accvgpr_read_b32 v%d, a%d" % (192 + r, r))
        if r % 16 == 15: cdma(1)
    cdma(16)
    for r in range(32): s("v_accvgpr_read_b32 v%d, a%d" % (128 + r, aBS + r))
    hq = [(u, m) for u in range(3, UA) for m in range(4)][:HPN]; nh_pre = [3 + HPN // 4]
    assert HPN % 4 == 0
    def issue_h(n):
        for _ in range(n):
            if hq: hload(s, *hq.pop(0))
    hpb = cfg.get("hpb", 3)
    PA0 = cfg.get("pa0", 3)
    def hookA(m):
        issue_h(hpb)
        if m == PA0 and not HPN: s.vm(fload(96), "f3a0")
    def tramp2():
        s("s_mov_b64 exec, 0")
        for w in range(1, 4): s("s_cmp_eq_u32 s%d, %d\ns_cbranch_scc1 L_trB%d" % (sW, w, w))
        s("s_branch L_trB0")
        s.atom(["L_trret2:"])
        s("s_mov_b64 exec, -1")
    if TRP >= 0 and cfg.get("tr2", 1): tramp2()
    if HPN:
        poll(s, "P3a0", fload(96), vPD, "f3a0"); stamp(s, "ok3a"); issue_h(hpb)
    gelu_pair(192, 224, 2, 168, [48, 52, 56, 60], None, hookA)
    for r in range(32): s("v_accvgpr_read_b32 v%d, a%d" % (192 + r, 64 + r))
    issue_h(hpb)
    for mp in range(2):
        o = 240 + 4 * mp; items = []
        for mm in range(2):
            m = 2 * mp + mm
            items += [(192 + 4 * m, 208 + 4 * m, o + 2 * mm), (194 + 4 * m, 210 + 4 * m, o + 2 * mm + 1)]
        gelu_block(s, items, CC, 168)
        if mp == 0:
            s("v_accvgpr_read_b32 v%d, a%d" % (vTA, PK["TA"]))
            for u in range(1, 6): s("v_xor_b32 v%d, %d, v%d" % (vTA + u, 32 * u, vTA))
        issue_h(hpb if mp == 0 else 99)
        if mp == PA0 - 4 and not HPN: s.vm(fload(96), "f3a0")
        for mm in range(2):
            s.vm("buffer_store_dwordx2 %s, v%d, s[32:35], s67 offen offset:%d %s" % (P(o + 2 * mm), vH8, 1024 * (2 * mp + mm), hst), ("hsS", 2 * mp + mm))
        if mp == 0:
            s.wait([("D2", st, k) for st in range(cfg.get("bar2", 2)) for k in range(4)])
            s("s_barrier")
            pre_reads_at = len(s.u)
    for u in range(6, 8): s("v_xor_b32 v%d, %d, v%d" % (vTA + u, 32 * u, vTA))
    L2 = cfg.get("l2_lead", 4); B2 = cfg.get("bar2", 2)
    def read2(G, part):
        uu, u = groups[G]; f = G % NWB
        if uu < 28:
            st, kk = divmod(uu, 2)
            return Op("ds_read_b64_tr_b16 %s, v%d offset:%d" % (R("a", aW2 + 4 * f + 2 * part, 2), vTA + u, (slot[st] % 4) * 16384 + kk * 8192 + part * 4096), "lg", K(("F2", G, part)))
        _, st, kk = steps[uu]
        return Op("ds_read_b128 %s, v%d offset:%d" % (R("a", aW2 + 4 * f, 4), vCA + 2 * (slot[st] >= 4) + kk, (slot[st] % 4) * 16384 + u * 2048), "lg", K(("F2", G, part)))
    parts = lambda G: [0, 1] if groups[G][0] < 28 else [None]
    mf = []
    for G, m in mo:
        uu, u = groups[G]
        mf.append(Op(mfma16(("v", 128 + 16 * u + 4 * m), ("a", aW2 + 4 * (G % NWB)), (hreg[uu][0], hreg[uu][1] + 4 * m), zero=(uu == 0 and u >= 2))))
    sc = Sch(mf)
    gneed = lambda G: [("F2", H, p) for H in range(G, tail(G) + 1) for p in parts(H)] + [("H", uu, m) for uu in range(44) if firstuse[uu] == G and uu not in own for m in range(4)]
    rgap = {}
    for G in range(NG):
        st, f = divmod(G, 16)
        if st < 14 and st % B2 == B2 - 1:
            if f <= 4: rgap[G] = 4 * (G - L2) - 1
            elif f == 5: rgap[G] = 4 * (G - 1 - L2) + 1
            elif f <= 10: rgap[G] = 4 * (G - 1 - L2) - 1
            elif f == 11: rgap[G] = 4 * (G - 2 - L2) + 1
            else: rgap[G] = 4 * (G - 2 - L2) - 1
        else: rgap[G] = 4 * (G - L2) - 1
        assert rgap[G] >= 4 * tail(G - NWB) + 3
    pr = Seq()
    for G in range(NG):
        if rgap[G] < 0:
            for p in parts(G): pr.op(read2(G, p))
    s.u[pre_reads_at:pre_reads_at] = pr.units()
    s.wait(gneed(0))
    stamp(s, "loop2")
    prog.add(s.done())
    for G in range(1, NG):
        w = Op("", needs=K(gneed(G)))
        w.keep = sum(len(parts(H)) for H in range(max(0, G - 2), min(NG, G + 10)) if rgap[H] == 4 * G - 1) == 2
        if w.keep or head(G) == G: sc.put(4 * G - 1, [w], 0)
    for G in range(NG):
        if rgap[G] >= 0:
            if rgap[G] % 4 != 3: sc.put(rgap[G], [Op("s_waitcnt lgkmcnt(15)")], 0)
            sc.put(rgap[G], [read2(G, p) for p in parts(G)], 1)
    bar = {}
    for st in range(14):
        if st % B2 != B2 - 1: continue
        bar[st] = 4 * (16 * (st + 1) - L2) - 2
        pub = list(range(st + 1, st + 1 + B2)) if st < 13 else [14, 15, 16, 17]
        sc.put(bar[st], [Op("s_barrier", needs=K([("D2", x, k) for x in pub for k in range(4)]), drain=["lg"])], 0)
    for st in (3, 7, 11):
        for i_, g_ in enumerate((1, 2, 4, 5)):
            sc.put(bar[st] - g_, [Op("v_xor_b32 v%d, 0x10000, v%d" % (vTA + 2 * i_ + k, vTA + 2 * i_ + k)) for k in range(2)], 2)
        assert max(rgap[G] for G in range(16 * st, 16 * st + 16)) < bar[st] - 5
    barF = min(rgap[G] for G in range(NG) if groups[G][0] >= 36) - 1
    sc.put(barF, [Op("s_barrier", needs=K([("D2", x, k) for x in range(18, 22) for k in range(4)]))], 0)
    def mark(o, nm): o.u[-1].append(nm)
    def after(o, nm, n): o.u.append([[Op("")], lambda mk: (mk[nm] + n) if nm in mk else None])
    def dly(o, n): o.u.append([[Op("")], lambda mk: mk["_prev"] + n])
    gl = []
    t = Seq()
    t("v_accvgpr_read_b32 v%d, a%d\nv_accvgpr_read_b32 v%d, a%d\nv_accvgpr_read_b32 v%d, a%d" % (vAG, PK["AG"], vTRW, PK["TRW"], vTRR, PK["TRR"]))
    t("s_mov_b32 s40, s36\ns_mov_b32 s41, s37\ns_mov_b32 s42, 0x40000\ns_mov_b32 s43, 0x20000")
    t("v_lshrrev_b32 v8, 4, v0\nv_cmp_eq_u32 s[64:65], 1, v8\nv_cmp_eq_u32 s[66:67], 2, v8\nv_cmp_eq_u32 s[74:75], 3, v8")
    t.at(cfg.get("ag_gap", 32))
    for x in range(7, -1, -1):
        t("s_mov_b32 s57, %d" % (8192 * x))
        g = "buffer_load_dwordx4 %s, v%d, s[40:43], s57 offen %s" % (R("a", aAG + 4 * x, 4), vAG, SC)
        gl.append("s_mov_b32 s57, %d\n%s" % (8192 * x, g))
        t.vm(g, ("ag", x))
        if x: dly(t, cfg.get("ag_sp", 8))
    mark(t, "ag")
    srd(t, 8, 86, 87, 2048 * 4096)
    flag(t, fstore(32), [("hsS", 3)], early=cfg.get("fb_gap", 80)); mark(t, "flagb")
    after(t, "ag", cfg.get("ag_lat", 20)); t.at(4 * lastuse[0] + 4)
    def ag_horner(o, w):
        cur = None
        for x in range(7, -1, -1):
            q = 48 + 4 * (x % 2)
            if w: o.wait([("ag", x)])
            for r in range(4): o("v_accvgpr_read_b32 v%d, a%d" % (q + r, aAG + 4 * x + r))
            if not w: o(("v_max3_u32 v56, v%d, v%d, v%d\nv_max_u32 v56, v56, v%d" % (q, q + 1, q + 2, q + 3)) if x == 7 else ("v_max3_u32 v56, v56, v%d, v%d\nv_max3_u32 v56, v56, v%d, v%d" % (q, q + 1, q + 2, q + 3)))
            if cur is not None: horner_sc(o, cur, cL64, q)
            cur = q
    ag_horner(t, True)
    t("v_cmp_u_f32 s[70:71], v48, v49")
    t.atom(["v_cmp_u_f32 vcc, v50, v51", "s_or_b64 vcc, vcc, s[70:71]", "s_cbranch_scc1 PAG_retry", "PAG_ok:"])
    ool("PAG_retry:")
    if cfg.get("rc"): RC.append("PAG"); ool("v_readlane_b32 s100, v15, %d\ns_nop 3\ns_add_u32 s100, s100, 100\nv_writelane_b32 v15, s100, %d" % (len(RC), len(RC)))
    ool("\n".join(gl) + "\ns_waitcnt vmcnt(0)")
    ag_horner(ool, False)
    ool("v_cmp_eq_u32 vcc, -1, v56\ns_and_b64 vcc, vcc, exec\ns_cbranch_scc0 PAG_ok\ns_cmp_eq_u32 s79, 0\ns_cbranch_scc1 PAG_ok\ns_sub_u32 s79, s79, 1\ns_sleep 1\ns_branch PAG_retry")
    t.lg("ds_write_b128 v%d, v[48:51] offset:1024" % vEW)
    for g, r in ((3, 52), (2, 56), (1, 60)): t.lg("ds_read_b128 %s, v%d offset:%d" % (Q(r), vER, 1024 + 256 * g), ("s", g))
    t.lg("ds_read_b128 %s, v%d offset:1024" % (Q(48), vER), ("s", 0))
    dly(t, 8)
    t.wait([("s", 2)]); horner_sc(t, 52, cL512, 56)
    t.lg("ds_read_b128 %s, v%d" % (Q(52), vER), ("e2", 0))
    t.wait([("s", 1)]); horner_sc(t, 56, cL512, 60)
    t.lg("ds_read_b128 %s, v%d offset:256" % (Q(56), vER), ("e2", 1))
    t.wait([("s", 0)]); horner_sc(t, 60, cL512, 48)
    t.lg("ds_read_b128 %s, v%d offset:512" % (Q(60), vER), ("e2", 2))
    t.wait([("e2", 0)]); horner_sc(t, 48, cL16, 52)
    t.wait([("e2", 1)]); horner_sc(t, 52, cL16, 56)
    t.wait([("e2", 2)]); horner_sc(t, 56, cL16, 60)
    for g, sm in ((52, 64), (56, 66), (60, 74)):
        for r in range(4): t("v_cndmask_b32 v%d, v%d, v%d, s[%d:%d]" % (48 + r, 48 + r, g + r, sm, sm + 1))
    horner_sc(t, 48, cL8, EA)
    t("v_xor_b32 v52, 16, v%d" % vTRR)
    st_r = {(T, h): (48, EA)[h] + T for T in range(2) for h in range(2)}
    st_i = {(T, h): (48, EA)[h] + 2 + T for T in range(2) for h in range(2)}
    TH = [(T, h) for T in range(2) for h in range(2)]
    xs = Seq()
    for x in range(8):
        for (T, h) in TH: t("v_fmac_f32 v%d, v%d, v%d" % (BR(T, x) + h, cL + T, st_r[T, h]))
        for (T, h) in TH: t("v_fmac_f32 v%d, v%d, v%d" % (BI(T, x) + h, cL + T, st_i[T, h]))
        for (T, h) in TH: t("v_fma_f32 v%d, -v%d, v%d, v%d" % (BR(T, x) + h, cL + 2 + T, st_i[T, h], BR(T, x) + h))
        for (T, h) in TH: t("v_fmac_f32 v%d, v%d, v%d" % (BI(T, x) + h, cL + 2 + T, st_r[T, h]))
        for (T, h) in TH: st_r[T, h] = BR(T, x) + h; st_i[T, h] = BI(T, x) + h
        if x % 2 == 1:
            m = x // 2; mo = (m % 2) * 2048
            for part, Fn in enumerate((BR, BI)):
                for T in range(2):
                    o = 56 + 4 * part + 2 * T
                    t("v_cvt_pk_bf16_f32 v%d, v%d, v%d\nv_cvt_pk_bf16_f32 v%d, v%d, v%d" % (o, Fn(T, x - 1), Fn(T, x - 1) + 1, o + 1, Fn(T, x), Fn(T, x) + 1))
                    t.lg("ds_write_b64 v%d, %s offset:%d" % (vTRW, P(o), mo + part * 1024 + 512 * T))
                t.atom(["s_waitcnt lgkmcnt(15)"] + [Op("ds_read_b64_tr_b16 %s, v%d offset:%d" % (R("a", aAG + 16 * part + 4 * m + 2 * half, 2), (vTRR, 52)[half], mo + part * 1024 + 256 * half), "lg", K(("tr", m, part, half))) for half in range(2)])
                mark(t, ("tr", m, part))
                after(xs, ("tr", m, part), 10)
                if (m, part) != (0, 0) and m < 3: after(xs, ("hl", m - 1 + part, 1 - part), cfg.get("hl_sp", 24))
                xs.vm("buffer_store_dwordx4 %s, v1, s[32:35], s%d offen offset:%d %s" % (R("a", aAG + 16 * part + 4 * m, 4), 72 + part, 1024 * m, hst), ("hl", m, part), needs=[("tr", m, part, 1)])
                mark(xs, ("hl", m, part))
    dly(xs, cfg.get("fc_lat", 60))
    flag(xs, fstore(64), [("hl", 3, 1)]); mark(xs, "flagc")
    t("v_accvgpr_read_b32 v48, a%d\nv_accvgpr_read_b32 v%d, a%d" % (PK["C"], vCA, PK["CA"]))
    for k in range(4): t("s_xor_b32 s65, s%d, %d\ns_lshl_b32 s65, s65, 16\nv_add_u32 v%d, s65, v48" % (sQ, k, vC + k))
    t("s_and_b32 s65, s%d, 1\ns_lshl_b32 s65, s65, 6\nv_xor_b32 v%d, s65, v%d" % (sTN, vCA, vCA))
    t("v_xor_b32 v%d, 64, v%d\nv_add_u32 v%d, 0x10000, v%d\nv_xor_b32 v%d, 64, v%d" % (vCA + 1, vCA, vCA + 2, vCA, vCA + 3, vCA + 2))
    vOO = 28
    t("v_accvgpr_read_b32 v24, a%d\nv_accvgpr_read_b32 v25, a%d\nv_lshlrev_b32 v25, 2, v25\nv_lshl_add_u32 v%d, v24, 12, v25" % (PK["TOK"], PK["COL"], vOO))
    mark(t, "cready")
    RB = lambda u, m: 128 + 16 * u + 4 * m
    after(t, "flagc", 1)
    t("s_lshl_b32 s65, s%d, 3\ns_add_u32 s65, s65, s%d\ns_lshl_b32 s66, s65, 18\ns_lshl_b32 s67, s%d, 14\ns_add_u32 s66, s66, s67\ns_add_u32 s66, s66, 0x%x" % (sI, sTN, sW, WS_PART))
    t.atom(["s_add_u32 s40, s6, s66", "s_addc_u32 s41, s7, 0"])
    t("s_and_b32 s41, s41, 0xffff\ns_mov_b32 s42, 0x34000\ns_mov_b32 s43, 0x20000")
    t("s_lshl_b32 s69, s65, 2\ns_add_u32 s69, s69, s%d\ns_lshl_b32 s69, s69, %d\ns_add_u32 s69, s69, 0x%x" % (sW, (7, 10, 10)[F4M], SM_F4))
    for d in (1, 2, 3):
        t("s_xor_b32 s67, s%d, %d\ns_lshl_b32 s66, s67, 16\ns_add_u32 s%d, s66, %d" % (sQ, d, 72 + d, (d - 1) * 4096))
        t("s_lshl_b32 s67, s67, %d\nv_add_u32 v%d, s67, v1" % ((4, 8, 8)[F4M], 28 + d))
        t("s_lshl_b32 s67, s%d, 16\ns_add_u32 s%d, s67, %d" % (sQ, 69 + d, (d - 1) * 4096))
    t("s_lshl_b32 s67, s%d, %d\nv_and_b32 v32, 3, v0\nv_lshl_add_u32 v32, v32, %d, s67" % (sQ, (4, 8, 8)[F4M], (2, 2, 6)[F4M]))
    t("s_mov_b32 s57, 0\ns_mov_b32 s58, 8192\ns_mov_b32 s59, 16384\ns_mov_b32 s64, 24576")
    t("v_mov_b32 v34, 0x3f80\nv_mov_b32 v35, 0x3f800000")
    mark(t, "setup")
    if cfg.get("tlb", 0):
        after(t, ("H", 43), 2)
        t.vm("buffer_load_dword a246, v29, s[40:43], s73 offen")
        t("v_readfirstlane_b32 s67, v%d" % vOO); dly(t, 3)
        t.vm("buffer_load_dword a246, v29, s[8:11], s67 offen")
    f4store = lambda d, ix: ("buffer_store_dword v%d, v%d, s[36:39], s69 offen offset:%d %s" % (vTG, 28 + d, 4 * ix, SC)) if F4M < 2 else ("buffer_store_dwordx4 %s, v%d, s[36:39], s69 offen offset:%d %s" % (Q(vTG), 28 + d, 64 * ix, SC))
    f4load = "buffer_load_dword v33, v32, s[36:39], s69 offen %s" % SC
    gp = lambda u: 4 * pend_[u] + 3 + 3
    RV = lambda d, m: 128 + 32 * d + 8 * m + 4
    rload = lambda d, m: "buffer_load_dwordx4 %s, v1, s[40:43], s%d offen offset:%d %s" % (Q(RV(d, m)), 69 + d, 1024 * m, SC)
    NFI = cfg.get("nfi", 3); NRI = cfg.get("nri", 1)
    fs = Seq(); rs = Seq(); pl_ = Seq(); assert NFI == 3; NB = str(cfg.get("nb", "1"))
    for d in (1, 2, 3):
        for m in range(4):
            t.at(gp(2 * d + m // 2))
            A = 128 + 32 * d + 8 * m; Bq = A + 4
            t("v_cvt_pk_bf16_f32 v%d, v%d, v%d\nv_cvt_pk_bf16_f32 v%d, v%d, v%d\nv_cvt_pk_bf16_f32 v%d, v%d, v%d\nv_cvt_pk_bf16_f32 v%d, v%d, v%d" % (A, A, A + 1, A + 1, A + 2, A + 3, A + 2, Bq, Bq + 1, A + 3, Bq + 2, Bq + 3))
            mark(t, ("cv", d, m))
            after(xs, ("cv", d, m), 1)
            xs.vm("buffer_store_dwordx4 %s, v1, s[40:43], s%d offen offset:%d %s" % (Q(A), 72 + d, 1024 * m, SC), ("ps", d, m)); mark(xs, ("ps", d, m))
    SP3 = cfg.get("sp3", 1)
    HU = ((1, (0, 1, 2, 3), 1), (2, (0, 1, 2, 3), 2)) + (((3, (0, 1), 0), (3, (2, 3), 3)) if SP3 else ((3, (0, 1, 2, 3), 3),))
    f4l3 = f4load.replace("v33,", "v39,")
    ool("FX:\n%s\ns_waitcnt vmcnt(0)\nv_cmp_eq_u32 vcc, s%d, v39\ns_and_b32 s29, vcc_lo, s28\ns_andn2_b32 s28, s28, s29" % (f4l3, sTAG))
    lat4 = [int(x) for x in str(cfg.get("p4_lat", "40")).split("-")]; lat4 += lat4[-1:] * 4
    for hi_, (d, ms, ix) in enumerate(HU):
        after(fs, ("ps", d, ms[-1]), cfg.get("f4_lat", 44)); flag(fs, f4store(d, ix), [("ps", d, ms[-1])]); mark(fs, ("f4", ix))
        vF = 36 + ix
        f4l = f4load.replace("v33,", "v%d," % vF)
        after(pl_, ("f4", ix), lat4[hi_]); pl_.vm(f4l, ("f4l", ix)); mark(pl_, ("f4l", ix))
        after(rs, ("f4l", ix), cfg.get("p4_rt", 36))
        if ix != 3:
            rs.wait([("f4l", ix)])
            rs("v_cmp_ne_u32 s[82:83], s%d, v%d" % (sTAG, vF)); dly(rs, 1)
            rs.atom(["s_and_b32 s29, s82, %d" % (1 << ix), "s_cselect_b32 s47, 0x40000000, s%d" % (69 + d), "s_or_b32 s28, s28, s29" if hi_ else "s_mov_b32 s28, s29"])
            ool("s_bitcmp1_b32 s29, %d\ns_cbranch_scc0 FX_n%d\n%s\nFX_n%d:" % (ix, ix, "\n".join(rload(d, m) for m in ms), ix))
        else:
            ool("s_cmp_eq_u32 s28, 0\ns_cbranch_scc1 FX_done\ns_cmp_eq_u32 s79, 0\ns_cbranch_scc1 FX_done\ns_sub_u32 s79, s79, 1\ns_branch FX\nFX_done:\n%s\ns_waitcnt vmcnt(0)\ns_branch FX_ret" % f4l3)
            rs.at(10 ** 6)
            rs.atom(["s_cmp_lg_u32 s28, 0", "s_cbranch_scc1 FX", "FX_ret:"])
            poll(rs, "P4%d" % ix, f4l, vF, ("f4l", ix), mask=str(1 << ix))
        for m in ms:
            rs.vm(rload(d, m).replace("s%d offen" % (69 + d), "s47 offen") if ix != 3 else rload(d, m), ("pl", d, m)); mark(rs, ("pl", d, m)); dly(rs, cfg.get("r_sp", 8))
    hs = Seq(); hdl = {}
    if not HPN: poll(hs, "P3a0", fload(96), vPD, "f3a0", early=cfg.get("pa_gap", 1))
    for u in range(nh_pre[0], 44):
        if u in own: continue
        for (U, nm, off, fl, lat) in ((UA, "P3a", 0, None, 0), (UB, "P3b", 32, "flagb", cfg.get("pb_lat", 80)), (UC, "P3c", 64, "flagc", cfg.get("pc_lat", 80))):
            if u == (max(U - 2, nh_pre[0]) if U != UC else U):
                if fl: after(hs, fl, lat)
                hs.vm(fload(off), nm); mark(hs, nm + "l")
            if u == U:
                after(hs, nm + "l", cfg.get("poll_rt", 44)); poll(hs, nm, fload(off), vPD, nm); mark(hs, nm)
        n0 = len(hs.u)
        for m in range(4): hload(hs, u, m, max(hfree[u], 4 * firstuse[u] - cfg.get("l2_la", 400)))
        for i in range(n0, len(hs.u)): hdl[i] = 4 * firstuse[u] - 1
        mark(hs, ("H", u))
    ds = Seq(); ddl = {}
    DL = lambda st: bar[st // B2 * B2 - 1] if st < 14 else (bar[13] if st < 18 else barF)
    for st in range(NPRE2, 22):
        n0 = len(ds.u)
        if st == "E":
            after(ds, "cready", 1); after(ds, ("hl", 3, 1), 1)
            for n in range(4):
                ds("s_mov_b32 s%d, %d\ns_add_u32 m0, s46, %d" % (sKD, 32768 * n, 2048 + 1024 * n))
                ds.vm("buffer_load_dwordx4 v26, s[24:27], s%d offen lds" % sKD)
            ds("s_add_u32 m0, s46, 6144"); ds.vm("buffer_load_dwordx4 v1, s[36:39], s59 offen lds")
            ds("s_add_u32 m0, s46, 7168"); ds.vm("buffer_load_dwordx4 v1, s[28:31], s58 offen lds", "Elast"); mark(ds, "edma")
            dl = 900
        else:
            if st == 14: after(ds, "cready", 1)
            for k in range(4): dma2(ds, st, k, bar[prevocc[st] // B2 * B2 + B2 - 1] + 1 if st >= 8 else 0)
            dl = DL(st)
            mark(ds, ("D", st))
        for i in range(n0, len(ds.u)): ddl[i] = dl
    RS = Stream("r", rs.units(), 2, deadline=lambda i: cfg.get("r_prio", 0)); PS = Stream("pl", pl_.units(), 2, deadline=lambda i: -2); RS.overflow = PS.overflow = True
    mk = multi(sc, [Stream("h", hs.units(), 2, deadline=lambda i: hdl.get(i, 0)), Stream("d", ds.units(), 2, deadline=lambda i: ddl.get(i, 0)),
                    Stream("x", xs.units(), 2), Stream("t", t.units(), 3, start=1), RS, PS, Stream("f", fs.units(), 2, deadline=lambda i: -2)],
               cl=cfg.get("cl", 70), cs=cfg.get("cs", 210), B0=cfg.get("b0", 150), busy0=cfg.get("busy0", 300), tinyfree=cfg.get("tf", 1))
    sl = sorted([(4 * firstuse[u] - 1 - mk[("H", u)], "h", u) for u in range(nh_pre[0], 44) if u not in own] + [(DL(st) - mk[("D", st)], "d", st) for st in range(NPRE2, 22)])
    if cfg.get("verbose"):
        print("loop2 slacks", sl[:6], {k: v for k, v in mk.items() if isinstance(k, str)}, "hl", [mk[("hl", m, p)] for m in range(4) for p in range(2)], "ps", [mk[("ps", d, m)] for d in (1, 2, 3) for m in range(4)], "barF", barF, "f4", [mk.get(("f4", d)) for d in (1, 2, 0, 3)], "f4l", [mk.get(("f4l", d)) for d in (1, 2, 0, 3)], "pl", [mk.get(("pl", d, m)) for d in (1, 2, 3) for m in range(4)])
    assert sl[0][0] > cfg.get("minslack", 30), sl[:4]
    assert mk["cready"] < rgap[firstuse[28]] and mk[("hl", 3, 1)] < 4 * firstuse[28] - 1 and mk["setup"] < gp(2) and mk[("tr", 3, 1)] < VFREE
    for nm in names:
        if TS and nm[0] == "g" and nm[1:].isdigit():
            g_ = 4 * (16 * (int(nm[1:]) + 1) - L2) - 2
            sc.put(g_ - 1, [Op("s_memrealtime s[100:101]")], 5)
            sc.put(g_, [Op("s_waitcnt lgkmcnt(0)\nv_writelane_b32 v%d, s100, %d" % (vTS, names.index(nm)))], 5)
    if cfg.get("drop"):
        for g in range(cfg.get("drop_lo", 120), cfg.get("drop_hi", 600)):
            for it in sc.g[g]:
                o = it[2]
                if it[0] in (2, 3) and o.text and "\n" not in o.text and not o.text.endswith(":"):
                    c = opclass(o.text)
                    if it[0] == 2 and not (c == "X" and "x4" in o.text): continue
                    if c in cfg["drop"] and "cmp" not in o.text and not any(("v%d," % r) in o.text.split(None, 2)[1] + "," for r in range(16, 32)):
                        o.text = "s_nop 0" if cfg.get("dropnop") else ""
    prog.add(sc.ops())
    stamp(s, "end2")
    def addp(d, m):
        s.wait([("pl", d, m)])
        for k in range(8):
            r = 128 + 8 * m + k
            s("v_dot2_f32_bf16 v%d, v%d, v%d, v%d" % (r, RV(d, m) + k // 2, 34 + k % 2, r))
    for un in PS.units[PS.pos:] + RS.units[RS.pos:]: s.u.append([un[0], None])
    stamp(s, "poll4")
    sM4 = [57, 58, 59, 64]
    for m in range(4):
        for d in (1, 2, 3): addp(d, m)
        stamp(s, "r%d" % m)
        s.vm("buffer_store_dwordx4 %s, v%d, s[8:11], s%d offen offset:%d %s" % (Q(128 + 8 * m), vOO, sM4[2 * (m % 2)], 64 * (m // 2), cfg.get("ost", SC)))
        s("s_nop 1")
        s.vm("buffer_store_dwordx4 %s, v%d, s[8:11], s%d offen offset:%d %s" % (Q(132 + 8 * m), vOO, sM4[2 * (m % 2) + 1], 64 * (m // 2), cfg.get("ost", SC)))
    prog.add(s.done())
    prog.emit(a)
    a("s_cmp_eq_u32 s%d, 31\ns_cbranch_scc0 L_noep\ns_cmp_eq_u32 s%d, 0\ns_cbranch_scc0 L_noep" % (sB, sJ))
    a("v_mov_b32 v40, 0x%x\ns_mov_b64 exec, 1\nbuffer_store_dword v%d, v40, s[36:39], 0 offen %s\ns_mov_b64 exec, -1" % (SM_EP, vTG, SC))
    a("L_noep:")
    if TS:
        a("s_waitcnt vmcnt(0)\ns_memrealtime s[100:101]\ns_waitcnt lgkmcnt(0)\nv_writelane_b32 v%d, s100, %d" % (vTS, len(names) - 1))
        a("s_cmp_lg_u32 s%d, %d\ns_cbranch_scc1 L_end" % (sW, cfg.get("tsw", 0)))
        if cfg.get("leak"):
            A, B = cfg["leak"].split(":")
            a("s_cmp_lg_u32 s2, %d\ns_cbranch_scc1 L_end" % cfg.get("leakwg", 100))
            a("v_readlane_b32 s64, v%d, %d\nv_readlane_b32 s65, v%d, %d\ns_nop 4\ns_sub_u32 s64, s65, s64\ns_mul_i32 s64, s64, %d\ns_min_u32 s64, s64, 200000" % (vTS, names.index(A), vTS, names.index(B), cfg.get("leakk", 8)))
            a("L_leak:\ns_memrealtime s[66:67]\ns_waitcnt lgkmcnt(0)\ns_sub_u32 s66, s66, s100\ns_cmp_lt_u32 s66, s64\ns_cbranch_scc1 L_leak")
        ws_srd(a, 12, WS_TS, 16384)
        a("s_lshl_b32 s75, s2, 6\nv_lshlrev_b32 v1, 2, v0\ns_mov_b64 exec, 0xffff\nbuffer_store_dword v%d, v1, s[12:15], s75 offen" % vTS)
    if cfg.get("rc"): STAMPS[1:1 + len(RC)] = RC
    a("L_end:")
    a("s_endpgm")
    if ".p2align 12" in a.lines and cfg.get("oolf", 1):
        i = a.lines.index(".p2align 12"); a.lines[i:i] = ool.lines
    else: a.lines += ool.lines
    a("L_codeend:")
    return name, a

DOC = """;
; instruction placed by hand-written rules into the issue gaps between the 16x16x32 bf16 MFMAs).
;   phase 1  [gate | up | B_re | B_im] projection, tile 256 x 288, weights by LDS-DMA, xn straight into registers
"""

def inst_sizes(lines):
    import subprocess, tempfile, os, re
    d = tempfile.mkdtemp()
    und = sorted(set(re.findall(r"L_trB?\d+\b", "\n".join(lines))))
    open(d + "/a.s", "w").write('.amdgcn_target "amdgcn-amd-amdhsa--gfx950"\n' + "\n".join(l for l in lines if not l.startswith(".p2align 12")) + "\n" + "".join(u + ":\n" for u in und))
    subprocess.check_call(["clang", "-x", "assembler", "-target", "amdgcn-amd-amdhsa", "-mcpu=gfx950", "-c", d + "/a.s", "-o", d + "/a.o"])
    o = subprocess.check_output(["llvm-objdump", "-d", "--mcpu=gfx950", d + "/a.o"], text=True)
    sz = [4 * len(m.group(1).split()) for m in re.finditer(r"// [0-9A-F]+: ([0-9A-F ]+)", o)]
    n = sum(1 for l in lines if parse(l))
    assert n == len(sz), (n, len(sz))
    return sz

def add_stubs(lines, cfg):
    NL = 1; step = cfg.get("tr_step", 128)
    sz = iter(inst_sizes(lines)); size = [next(sz) if parse(l) else 0 for l in lines]
    i0 = lines.index("L_main:"); iend = lines.index("L_end:")
    out = lines[:i0 + 1]; off = 0; targets = [4096 * p + step * k for p in range(0, 40) for k in range(NL)]
    n = 0; pos = []
    def penalty(i):
        if not lines[i - 1].startswith("v_mfma"): return 0 if not any(l.startswith("v_mfma") for l in lines[max(0, i - 6):i + 6]) else 1
        j = i; c = ["S"]
        while not lines[j].startswith("v_mfma") and j - i < 8:
            try: c.append(opclass(lines[j]))
            except AssertionError: return 0
            j += 1
        t = gap_time(c)
        return 0 if (t is not None and t <= 16) else 1
    for i in range(i0 + 1, len(lines)):
        if i < iend and size[i] and off >= targets[n] and (penalty(i) == 0 or off + size[i] > targets[n] + 56):
            out.append("L_tr%d:" % n); out.append(("STUB", n)); off += 4; n += 1
        out.append(lines[i]); off += size[i]
    n1 = min(n, cfg.get("tr_n", 12))
    res = []
    for l in out:
        if isinstance(l, tuple):
            k = l[1]; nx = k + 4
            if k < n1: res.append("s_cbranch_execz %s" % ("L_tr%d" % nx if nx < n1 else "L_trret"))
            elif cfg.get("tr2", 1): res.append("s_cbranch_execz %s" % ("L_tr%d" % nx if nx < n else "L_trret2"))
            else: res.append("s_nop 0")
        elif "L_trB" in l:
            k = n1 + int(l[-1]); res.append(l.replace("L_trB" + l[-1], "L_tr%d" % k if k < n else "L_trret2"))
        else: res.append(l)
    if cfg.get("verbose"): print("pages", n)
    return res

def build(cfg):
    name, a = gen(cfg)
    hdr = open("cdna_kernels/%s.s.ref" % NAME).read().split("; Override launch")[0]
    out = hdr + "; @launch grid=(256,1,1) block=(256,1,1) lds=163840\n"
    out += DOC
    out += '.amdgcn_target "amdgcn-amd-amdhsa--gfx950"\n'
    import re as _re
    lines = pad_hazards([l for l in a.lines if l and not _re.fullmatch(r"s_mov_b32 (s\d+), \1", l)], cfg.get("verbose", 0) > 1)
    import re
    def shorten(l):
        m = re.fullmatch(r"s_mov_b32 (s\d+), (\d+|0x[0-9a-f]+)", l)
        if m and 64 < int(m.group(2), 0) < 32768: return "s_movk_i32 %s, %s" % m.groups()
        return l
    lines = [shorten(l) for l in lines if not re.fullmatch(r"s_mov_b32 (s\d+), \1", l)]
    if cfg.get("tramp", 1): lines = add_stubs(lines, cfg)
    if cfg.get("verbose"): print(gap_report(lines))
    if cfg.get("lsc"): lines = [l.replace("sc0 sc1", cfg["lsc"]) if l.startswith("buffer_load") else l for l in lines]
    if cfg.get("jit"):
        import random
        rnd = random.Random(cfg["jit"]); outl = []; n = 0; nm = 0
        at = set(rnd.sample(range(3712), 10)) | {0, 150, 2303, 2304}
        for l in lines:
            hit = False
            if l.startswith("v_mfma"):
                hit = nm in at; nm += 1
            if l.startswith(("P1_chk:", "P1b_chk:", "L_trret2:", "L_epi:")) or "agfill" in l: hit = True
            if hit:
                n += 1
                outl += ["s_cselect_b32 s101, 1, 0", "s_mul_i32 s100, s2, %d" % rnd.randrange(1, 1 << 12, 2), "s_add_u32 s100, s100, s62" if rnd.random() < 0.5 else "s_nop 0", "s_bfe_u32 s100, s100, 0x%x" % (0x40000 + rnd.randrange(0, 4)),
                         "s_cmp_lg_u32 s100, %d" % rnd.randrange(16), "s_cbranch_scc1 L_jit%d" % n] + ["s_sleep 127"] * rnd.randrange(1, 3) + ["L_jit%d:" % n, "s_cmp_eq_u32 s101, 1"]
            outl.append(l)
        lines = outl
    la = cfg.get("laux"); da = cfg.get("daux")
    if la: lines = [l + " " + la if (l.startswith("buffer_load_dwordx4 a[") and "sc1" not in l) else l for l in lines]
    if da: lines = [l.replace(" lds", " %s lds" % da) if l.endswith(" lds") else l for l in lines]
    out += "\n".join(lines) + "\n"
    if cfg.get("cyc"): out = out.replace("s_memrealtime", "s_memtime")
    b = Asm(); kernel_desc(b, name, 512, accum=256); out += b.text()
    return out

if __name__ == "__main__":
    cfg = {}
    for kv in sys.argv[2:]:
        k, v = kv.split("=")
        try: v = int(v)
        except ValueError:
            try: v = float(v)
            except ValueError: v = v.replace("+", " ")
        cfg[k] = v
    open(sys.argv[1], "w").write(build(cfg))
```
